```python
import torch

def _softmax(x, axis=-1):
    return torch.softmax(x, dim=axis)
def _gelu(x):
    return torch.nn.functional.gelu(x, approximate="tanh")
def _silu(x):
    return torch.nn.functional.silu(x)
def _sigmoid(x):
    return torch.sigmoid(x)
def _layernorm(x, axis=-1, eps=1e-5):
    m = x.mean(dim=axis, keepdim=True)
    v = x.var(dim=axis, keepdim=True, unbiased=False)
    return (x - m) / torch.sqrt(v + eps)
def _scatter_add(tgt, idx, src, axis=0):
    return tgt.clone().index_add_(axis, idx, src)
def _segment_sum(src, seg, n):
    out = torch.zeros((n,) + src.shape[1:], dtype=src.dtype)
    return out.index_add_(0, seg, src)
def _pad(x, pw):
    flat = tuple(v for pair in reversed(pw) for v in pair)
    return torch.nn.functional.pad(x, flat)

kernel_name = 'concat_heads__mha_block__ssm_conv_s5__prompt'

def setup_inputs():

    _w = (lambda a: (lambda t: t.to(torch.bfloat16) if t.is_floating_point() else t)(torch.as_tensor(a)))
    def _A_setup():
        B, S, D, H = 1, 2048, 640, 32
        return {
            "x": _w((lambda *s: torch.randn(*s, dtype=torch.bfloat16) * 0.2)(B, S, D)),
            "wqkv": _w((lambda *s: torch.randn(*s, dtype=torch.bfloat16) * 0.2)(D, 3 * D)),
            "wo": _w((lambda *s: torch.randn(*s, dtype=torch.bfloat16) * 0.05)(D, D)),
        }
    _A_in = _A_setup()

    def _B_setup():
        B, S, D = 1, 2048, 640
        P = D
        Lambda_re = -0.5 * (lambda _x: torch.exp(torch.as_tensor(_x)))((lambda *s: torch.randn(*s, dtype=torch.bfloat16) * 0.8)(P))
        Lambda_im = (lambda *s: torch.randn(*s, dtype=torch.bfloat16) * 0.8)(P) * 1.0
        B_re = (lambda *s: torch.randn(*s, dtype=torch.bfloat16) * 0.8)(P, D) * (D ** -0.5)
        B_im = (lambda *s: torch.randn(*s, dtype=torch.bfloat16) * 0.8)(P, D) * (D ** -0.5)
        C_re = (lambda *s: torch.randn(*s, dtype=torch.bfloat16) * 0.8)(D, P) * (P ** -0.5)
        C_im = (lambda *s: torch.randn(*s, dtype=torch.bfloat16) * 0.8)(D, P) * (P ** -0.5)
        log_dt = (lambda *s: torch.randn(*s, dtype=torch.bfloat16) * 0.8)(P) * 0.3 - 2.0
        Dskip = (lambda *s: torch.randn(*s, dtype=torch.bfloat16) * 0.8)(D)
        return {
            "x": _w((lambda *s: torch.randn(*s, dtype=torch.bfloat16) * 0.05)(B, S, D)),
            "Lambda_re": _w(Lambda_re),
            "Lambda_im": _w(Lambda_im),
            "B_re": _w(B_re),
            "B_im": _w(B_im),
            "C_re": _w(C_re),
            "C_im": _w(C_im),
            "log_dt": _w(log_dt),
            "Dskip": _w(Dskip),
        }
    _B_in = _B_setup()

    return {
        "A_x": _A_in["x"],
        "A_wqkv": _A_in["wqkv"],
        "A_wo": _A_in["wo"],
        "B_x": _B_in["x"],
        "B_Lambda_re": _B_in["Lambda_re"],
        "B_Lambda_im": _B_in["Lambda_im"],
        "B_B_re": _B_in["B_re"],
        "B_B_im": _B_in["B_im"],
        "B_C_re": _B_in["C_re"],
        "B_C_im": _B_in["C_im"],
        "B_log_dt": _B_in["log_dt"],
        "B_Dskip": _B_in["Dskip"],
    }

def reference(A_x, A_wqkv, A_wo, B_x, B_Lambda_re, B_Lambda_im, B_B_re, B_B_im, B_C_re, B_C_im, B_log_dt, B_Dskip):
    def _A_ref(x, wqkv, wo):
        B, S, D = x.shape
        H = 32
        Dh = D // H
        qkv = (lambda x, *d: x.permute(*d))((x @ wqkv).reshape(B, S, 3, H, Dh), 2, 0, 3, 1, 4)
        q, k, v = qkv[0], qkv[1], qkv[2]
        scores = torch.einsum("bhqd,bhkd->bhqk", q, k) * (Dh ** -0.5)
        p = _softmax(scores, axis=-1)
        o = torch.einsum("bhqk,bhkd->bhqd", p, v)
        return (lambda x, *d: x.permute(*d))(o, 0, 2, 1, 3).reshape(B, S, D) @ wo

    def _B_ref(x, Lambda_re, Lambda_im, B_re, B_im, C_re, C_im, log_dt, Dskip):
        Bsz, L, H = x.shape
        Lam = Lambda_re + 1j * Lambda_im
        Bmat = B_re + 1j * B_im
        Cmat = C_re + 1j * C_im
        dt = torch.exp(log_dt)
        Lam_bar = torch.exp(dt * Lam)
        B_bar = ((Lam_bar - 1.0) / Lam)[:, None] * Bmat
        Bu = torch.einsum("bld,pd->blp", x + 0j, B_bar)
        h = torch.zeros_like(Bu[:, 0, :])
        hs = []
        for t in range(L):
            h = Lam_bar[None, :] * h + Bu[:, t, :]
            hs.append(h)
        hseq = torch.stack(hs, 1)
        y = 2.0 * torch.einsum("blp,dp->bld", hseq, Cmat).real + x * Dskip[None, None, :]
        return y

    a = _A_ref(A_x, A_wqkv, A_wo)
    b = _B_ref(B_x, B_Lambda_re, B_Lambda_im, B_B_re, B_B_im, B_C_re, B_C_im, B_log_dt, B_Dskip)
    return torch.concatenate([a, b], axis=-1)
```

```python
import re


class Asm:
    def __init__(self):
        self.lines = []
        self.uid = 0

    def __call__(self, s, *a):
        if a:
            s = s % a
        for l in s.split('\n'):
            l = l.strip()
            if l:
                self.lines.append(l)

    def label(self, name):
        self.lines.append(name + ':')

    def newlabel(self, base):
        self.uid += 1
        return 'L_%s_%d' % (base, self.uid)

    def c(self, s):
        self.lines.append('; ' + s)

    def text(self):
        out = []
        for l in self.lines:
            out.append(l if (l.endswith(':') or l.startswith('.')) else '    ' + l)
        return '\n'.join(out) + '\n'


def v(a, n=1):
    return 'v%d' % a if n == 1 else 'v[%d:%d]' % (a, a + n - 1)


def s(a, n=1):
    return 's%d' % a if n == 1 else 's[%d:%d]' % (a, a + n - 1)


_reg = re.compile(r'^(-?)(?:abs\()?([vsa])(?:(\d+)|\[(\d+):(\d+)\])\)?$')
TRANS = ('v_exp_', 'v_log_', 'v_rcp_', 'v_rsq_', 'v_sqrt_', 'v_sin_', 'v_cos_')


def regs(op):
    op = op.strip()
    if op == 'vcc':
        return [('s', 'vcc')]
    if op == 'exec':
        return [('s', 'exec')]
    if op == 'm0':
        return [('s', 'm0')]
    m = _reg.match(op)
    if not m:
        return []
    k = m.group(2)
    if m.group(3) is not None:
        return [(k, int(m.group(3)))]
    return [(k, i) for i in range(int(m.group(4)), int(m.group(5)) + 1)]


class Ins:
    def __init__(self, text):
        self.text = text
        t = text.split(';')[0].strip()
        p = t.split(None, 1)
        self.mn = p[0]
        rest = p[1] if len(p) > 1 else ''
        ops = [o.strip() for o in re.split(r',(?![^\[]*\])', rest)] if rest else []
        mods = ''
        if ops:
            last = ops[-1].split(None, 1)
            if len(last) > 1:
                ops[-1] = last[0]
                mods = last[1]
        self.ops, self.mods = ops, mods
        mn = self.mn
        self.states = 1
        if mn == 's_nop':
            self.states = int(ops[0]) + 1
        self.mfma = mn.startswith('v_mfma') or mn.startswith('v_smfmac')
        self.valu = mn.startswith('v_') and not self.mfma
        self.trans = mn.startswith(TRANS)
        self.vmem = mn.startswith(('buffer_', 'global_'))
        self.ds = mn.startswith('ds_')
        self.salu = mn.startswith('s_')
        self.dpp = 'quad_perm' in mods or 'row_' in mods
        self.passes = 0
        self.wr, self.rd, self.srcc, self.ab = [], [], [], []
        R = [regs(o) for o in ops]
        flat = lambda l: [x for y in l for x in y]
        if self.mfma:
            self.passes = 8 if '32x32' in mn else 4
            self.wr = R[0]
            if mn.startswith('v_smfmac'):
                self.srcc = R[0]
                self.ab = R[1] + R[2] + R[3]
            else:
                self.srcc = R[3]
                self.ab = R[1] + R[2]
            self.rd = self.ab + self.srcc
        elif self.valu:
            if mn.startswith(('v_swap', 'v_permlane')):
                self.wr = R[0] + R[1]
                self.rd = R[0] + R[1]
            elif mn.startswith(('v_add_co', 'v_addc_co', 'v_sub_co', 'v_subb_co')):
                self.wr = R[0] + R[1]
                self.rd = flat(R[2:])
            elif mn == 'v_nop':
                pass
            else:
                self.wr = R[0]
                self.rd = flat(R[1:])
                if mn.startswith(('v_fmac', 'v_writelane', 'v_pk_fmac')) or self.dpp:
                    self.rd = self.rd + R[0]
        elif self.vmem:
            lds = re.search(r'\blds\b', mods) is not None or 'load_lds' in mn
            if 'load' in mn and not lds:
                self.wr = R[0]
                self.rd = flat(R[1:])
            else:
                self.rd = flat(R)
                if lds:
                    self.rd = self.rd + [('s', 'm0')]
            self.widestore = 'store' in mn and ('x4' in mn or 'x3' in mn)
            self.sdata = (R[0] if mn.startswith('buffer_') else R[1]) if 'store' in mn else []
        elif self.ds:
            if 'read' in mn or 'permute' in mn or 'swizzle' in mn:
                self.wr = R[0]
                self.rd = flat(R[1:])
            else:
                self.rd = flat(R)
        elif self.salu:
            if mn.startswith(('s_cmp', 's_waitcnt', 's_nop', 's_barrier', 's_cbranch', 's_branch', 's_endpgm',
                              's_setprio', 's_sleep', 's_bitcmp')):
                self.rd = flat(R)
            else:
                self.wr = R[0] if R else []
                self.rd = flat(R[1:])
                if 'saveexec' in mn:
                    self.wr = self.wr + [('s', 'exec')]


MF_RD = {4: 8, 8: 12}
MF_OV = {4: 6, 8: 10}
MF_WAR = {4: 3, 8: 7}


def need(p, c):
    n = 0
    pw, cr, cw = set(p.wr), set(c.rd), set(c.wr)
    pv = {r for r in pw if r[0] in 'va'}
    ps = {r for r in pw if r[0] == 's'}
    if p.valu:
        if c.mfma and pv & cr:
            n = max(n, 2)
        if c.valu and c.dpp and pv & cr:
            n = max(n, 2)
        if c.mn.startswith('v_permlane') and pv & cr:
            n = max(n, 2)
        if c.mn.startswith(('v_readlane', 'v_readfirstlane')) and pv & cr:
            n = max(n, 1)
        if p.trans and c.valu and not c.trans and pv & cr:
            n = max(n, 1)
        if ps & cr:
            if c.vmem:
                n = max(n, 5)
            if c.valu:
                n = max(n, 4 if c.mn.startswith(('v_readlane', 'v_writelane')) else 2)
        if ('sdwa' in p.mn or 'op_sel' in p.mods) and not p.mn.startswith('v_pk_') and c.valu and pv & (cr | cw):
            n = max(n, 1)
    if p.mfma:
        if c.mfma:
            if pw & set(c.ab):
                n = max(n, MF_RD[p.passes])
            if pw & set(c.srcc):
                if not (p.wr == c.srcc and p.passes == c.passes):
                    n = max(n, MF_OV[p.passes])
        elif (c.valu or c.vmem or c.ds) and pw & (cr | cw):
            n = max(n, MF_RD[p.passes])
        if c.valu and set(p.srcc) & cw:
            n = max(n, MF_WAR[p.passes])
    if p.salu and ('s', 'm0') in pw and c.vmem and ('s', 'm0') in cr:
        n = max(n, 1)
    if p.vmem and getattr(p, 'widestore', False) and set(p.sdata) & cw:
        n = max(n, 2 if (c.valu or c.mfma) else 1)
    return n


def check(lines):
    ins, labels = [], {}
    for l in lines:
        t = l.split(';')[0].strip()
        if not t or t.startswith('.'):
            continue
        if t.endswith(':'):
            labels[t[:-1]] = len(ins)
            continue
        ins.append(Ins(t))
    errs = []
    W = 20

    def succ(i):
        x = ins[i]
        if x.mn == 's_endpgm':
            return []
        if x.mn == 's_branch':
            return [labels[x.ops[0]]]
        r = [i + 1] if i + 1 < len(ins) else []
        if x.mn.startswith('s_cbranch'):
            r.append(labels[x.ops[0]])
        return r

    for i, p in enumerate(ins):
        if not (p.valu or p.mfma or p.vmem or (p.salu and ('s', 'm0') in p.wr)):
            continue
        lim = 12 if p.mfma else 5
        stack = [(j, 0) for j in succ(i)]
        seen = {}
        while stack:
            j, d = stack.pop()
            if d >= lim or seen.get(j, 99) <= d:
                continue
            seen[j] = d
            c = ins[j]
            n = need(p, c)
            if n > d:
                errs.append('need %d have %d: [%s] -> [%s]' % (n, d, p.text, c.text))
            for k in succ(j):
                stack.append((k, d + c.states))
    return errs
```

```python
import sys, math, struct
from asmlib import Asm, v, s, check

NAME = 'concat_heads__mha_block__ssm_conv_s5__prompt'
OPT = dict(diag=0, b3start=12, force_fb=0)
for a_ in sys.argv[2:]:
    k_, v_ = a_.split('=')
    OPT[k_] = int(v_)
DIAG = OPT['diag']

def f2u(x):
    return struct.unpack('<I', struct.pack('<f', x))[0]

BLK, VOFF, VROW = 247808, 164864, 10368
WS_H, HBLK = 0x800000, 40960
WS_O, OBLK = 0xD00000, 20480
WS_E = 0xF80000
WS_F = 0xFA0000
F1, F2, F3, F4 = WS_F, WS_F + 4096, WS_F + 8192, WS_F + 12288
WS_END = 0xFA4000
WS_DIAG = 0x1000000
OOB = 0x7F000000
L_HT, L_EL, L_PL, L_PAR = 131072, 151552, 156672, 161024
L_PAR = 131072 + 0
L_WO = 0
L_REG, REGSZ = 102400, 14848
L_PW = 161792
LDS_BYTES = 163840
sAX, sWQ, sWO, sBX, sLRE, sLIM, sBRE, sBIM, sCRE, sCIM, sLDT, sDSK, sOUT, sDBG, sWS = range(4, 34, 2)
sW, sI, sXCD = 34, 35, 3
R0, R1, RWS, R3, R4, R5, R6 = 36, 40, 44, 48, 52, 56, 60
sRB, sCG, sHD, sQB, sTB, sOG = 64, 65, 66, 67, 68, 69
sSPIN = 96
sHI = 94
vLANE, vPW, vTS = 254, 253, 255
SPIN_MAX = 1 << 19

a = Asm()
nstamp = {}

def stamp(role, name):
    if not DIAG:
        return
    l = nstamp.setdefault(role, [])
    idx = len(l)
    l.append(name)
    a('s_memtime s[98:99]')
    a('s_waitcnt lgkmcnt(0)')
    a('v_writelane_b32 v%d, s98, %d', vTS, idx)

def srd(r, base, nbytes):
    a('s_mov_b32 s%d, s%d', r, base)
    a('s_mov_b32 s%d, s%d', r + 1, base + 1)
    if isinstance(nbytes, int):
        a('s_mov_b32 s%d, 0x%x', r + 2, nbytes)
    else:
        a('s_mov_b32 s%d, %s', r + 2, nbytes)
    a('s_mov_b32 s%d, 0x20000', r + 3)

def setpw(val, tmp):
    a('v_mov_b32 v%d, %d', tmp, val)
    a('ds_write_b32 v%d, v%d', vPW, tmp)

def waitpw(vaddr, val, tmp, sleep=0):
    L = a.newlabel('pw')
    D = a.newlabel('pwd')
    a.label(L)
    a('ds_read_b32 v%d, v%d', tmp, vaddr)
    a('s_waitcnt lgkmcnt(0)')
    a('v_cmp_gt_u32 vcc, %d, v%d', val, tmp)
    a('s_cbranch_vccz %s', D)
    if sleep:
        a('s_sleep %d', sleep)
    a('s_sub_u32 s%d, s%d, 1', sSPIN, sSPIN)
    a('s_cbranch_scc0 %s', L)
    a('s_endpgm')
    a.label(D)

def pollflags(load, tmp, n, sleep=1):
    L = a.newlabel('pf')
    D = a.newlabel('pfd')
    a.label(L)
    a(load)
    a('s_waitcnt vmcnt(0)')
    for i in range(1, n):
        a('v_and_b32 v%d, v%d, v%d', tmp, tmp, tmp + i)
    a('v_cmp_eq_u32 vcc, 0, v%d', tmp)
    a('s_cbranch_vccz %s', D)
    if sleep:
        a('s_sleep %d', sleep)
    a('s_sub_u32 s%d, s%d, 1', sSPIN, sSPIN)
    a('s_cbranch_scc0 %s', L)
    a('s_endpgm')
    a.label(D)

def setflag(soff, tmp):
    a('v_mov_b32 v%d, 1', tmp)
    a('s_mov_b64 exec, 1')
    a('buffer_store_dword v%d, off, s[%d:%d], s%d sc1', tmp, RWS, RWS + 3, soff)
    a('s_mov_b64 exec, -1')

def tau(dst, src, t):
    a('v_and_b32 v%d, 0x13, v%d', dst, src)
    a('v_and_b32 v%d, 4, v%d', t, src)
    a('v_lshl_or_b32 v%d, v%d, 1, v%d', dst, t, dst)
    a('v_and_b32 v%d, 8, v%d', t, src)
    a('v_lshrrev_b32 v%d, 1, v%d', t, t)
    a('v_or_b32 v%d, v%d, v%d', dst, t, dst)

def finish(role):
    if DIAG:
        stamp(role, 'end')
        a('s_memrealtime s[98:99]')
        a('s_waitcnt lgkmcnt(0)')
        a('v_writelane_b32 v%d, s98, 31', vTS)
        a('s_lshl_b32 s70, s2, 3')
        a('s_add_u32 s70, s70, s%d', sW)
        if role == 'S':
            a('s_add_u32 s70, s70, 4')
        a('s_lshl_b32 s70, s70, 8')
        a('s_add_u32 s70, s70, 0x%x', WS_DIAG)
        a('v_lshlrev_b32 v0, 2, v%d', vLANE)
        a('buffer_store_dword v%d, v0, s[%d:%d], s70 offen', vTS, RWS, RWS + 3)
    a('s_endpgm')

def prologue():
    a('s_cmp_ge_u32 s2, 256')
    a('s_cbranch_scc0 L_go')
    a('s_endpgm')
    a.label('L_go')
    a('s_load_dwordx16 s[4:19], s[0:1], 0')
    a('s_load_dwordx8 s[20:27], s[0:1], 64')
    a('s_load_dwordx4 s[28:31], s[0:1], 96')
    a('s_load_dwordx2 s[32:33], s[0:1], 112')
    a('v_lshrrev_b32 v1, 6, v0')
    a('v_and_b32 v%d, 63, v0', vLANE)
    a('v_readfirstlane_b32 s%d, v1', sW)
    a('v_lshlrev_b32 v%d, 2, v0', vPW)
    a('v_add_u32 v%d, %d, v%d', vPW, L_PW, vPW)
    a('v_mov_b32 v1, 0')
    a('ds_write_b32 v%d, v1', vPW)
    a('s_and_b32 s%d, s2, 7', sXCD)
    a('s_lshr_b32 s%d, s2, 3', sI)
    a('s_and_b32 s70, s%d, 3', sI)
    a('s_lshr_b32 s%d, s%d, 2', sOG, sI)
    a('s_lshr_b32 s71, s%d, 1', sXCD)
    a('s_lshl2_add_u32 s%d, s71, s70', sRB)
    a('s_and_b32 s71, s%d, 1', sXCD)
    a('s_lshl3_add_u32 s%d, s71, s%d', sCG, sOG)
    a('s_lshr_b32 s71, s%d, 3', sI)
    a('s_lshl2_add_u32 s%d, s%d, s71', sHD, sXCD)
    a('s_and_b32 s%d, s%d, 7', sQB, sI)
    a('s_lshl2_add_u32 s%d, s%d, s70', sTB, sXCD)
    a('s_mov_b32 s%d, 0x%x', sSPIN, SPIN_MAX)
    a('s_mov_b32 s%d, 0', sHI)
    a('s_mov_b32 s%d, -1', sHI + 1)
    a('s_waitcnt lgkmcnt(0)')
    srd(RWS, sWS, WS_END if not DIAG else WS_DIAG + 0x100000)
    if DIAG:
        a('s_memrealtime s[98:99]')
        a('s_waitcnt lgkmcnt(0)')
        a('v_mov_b32 v%d, 0', vTS)
        a('v_writelane_b32 v%d, s98, 30', vTS)
    a('s_cmp_ge_u32 s%d, 4', sW)
    a('s_cbranch_scc1 L_roleS')

sTW, sCW = 72, 73
vXA, vWA = 96, 104
vF1A = 252

def a_setup():
    stamp('A', 'start')
    a('s_lshr_b32 s%d, s%d, 1', sTW, sW)
    a('s_and_b32 s%d, s%d, 1', sCW, sW)
    a('s_lshl1_add_u32 s75, s%d, s%d', sRB, sTW)
    a('s_mul_i32 s74, s75, %d', BLK)
    a.c('constant blocks + flag clearing (column group 15 has no GEMM tile)')
    a('s_cmp_eq_u32 s%d, 15', sCG)
    a('s_cbranch_scc0 L_noconst')
    a('v_lshlrev_b32 v1, 4, v%d', vLANE)
    a('s_cmp_eq_u32 s75, 0')
    a('s_cselect_b32 s76, s%d, 0', sCW)
    a('s_cmp_eq_u32 s76, 1')
    a('s_cbranch_scc0 L_noclear')
    for i in range(4):
        a('v_mov_b32 v%d, 0', 4 + i)
    for j in range(4):
        a('s_mov_b32 s76, 0x%x', WS_F + 4096 * j)
        for i in range(4):
            a('buffer_store_dwordx4 v[4:7], v1, s[%d:%d], s76 offen offset:%d sc1', RWS, RWS + 3, 1024 * i)
    a('s_waitcnt vmcnt(0)')
    a('v_mov_b32 v8, 1')
    a('s_mov_b64 exec, 1')
    a('global_store_dword v4, v8, s[%d:%d] sc1', sDBG, sDBG + 1)
    a('s_mov_b64 exec, -1')
    a.label('L_noclear')
    a('v_mov_b32 v8, 0x3f803f80')
    a('v_mov_b32 v9, 0')
    a('v_mov_b32 v10, v8')
    a('v_mov_b32 v11, 0')
    for i in range(4):
        a('v_mov_b32 v%d, v8', 12 + i)
    a('s_add_u32 s76, s74, %d', 160 * 1024)
    a('buffer_store_dwordx4 v[8:11], v1, s[%d:%d], s76 offen sc1', RWS, RWS + 3)
    a('v_lshrrev_b32 v2, 3, v%d', vLANE)
    a('v_mul_u32_u24 v2, %d, v2', VROW)
    a('v_and_b32 v3, 7, v%d', vLANE)
    a('v_lshl_add_u32 v2, v3, 4, v2')
    a('s_add_u32 s76, s74, %d', VOFF + 640 * 16)
    a('buffer_store_dwordx4 v[12:15], v2, s[%d:%d], s76 offen sc1', RWS, RWS + 3)
    a.label('L_noconst')
    a.c('LDS fragment addresses for the QKV GEMM')
    a('v_and_b32 v1, 31, v%d', vLANE)
    a('v_lshrrev_b32 v2, 5, v%d', vLANE)
    a('v_bfe_u32 v3, v1, 1, 3')
    a('v_xor_b32 v3, v3, v2')
    a('v_lshlrev_b32 v3, 4, v3')
    a('v_lshl_add_u32 v3, v1, 7, v3')
    a('s_lshl_b32 s76, s%d, 13', sTW)
    a('v_add_u32 v3, s76, v3')
    for ks in range(4):
        a('v_xor_b32 v%d, %d, v3', vXA + ks, ks << 5)
        a('v_add_u32 v%d, 0x10000, v%d', vXA + 4 + ks, vXA + ks)
    a('v_bfe_u32 v4, v%d, 2, 2', vLANE)
    a('v_lshl_add_u32 v5, v2, 3, v4')
    a('v_lshlrev_b32 v5, 8, v5')
    a('v_bfe_u32 v6, v%d, 4, 1', vLANE)
    a('v_and_b32 v7, 1, v%d', vLANE)
    a('v_lshl_add_u32 v6, v6, 1, v7')
    a('s_lshl_b32 s76, s%d, 3', sCW)
    a('v_add_u32 v6, s76, v6')
    a('v_lshlrev_b32 v4, 2, v4')
    a('v_xor_b32 v6, v6, v4')
    a('v_lshl_add_u32 v5, v6, 4, v5')
    a('v_bfe_u32 v7, v%d, 1, 1', vLANE)
    a('v_lshl_add_u32 v5, v7, 3, v5')
    a('v_add_u32 v%d, 16384, v5', vWA)
    a('v_xor_b32 v%d, 64, v%d', vWA + 1, vWA)
    a('v_add_u32 v%d, 0x10000, v%d', vWA + 2, vWA)
    a('v_add_u32 v%d, 0x10000, v%d', vWA + 3, vWA + 1)

def a_qloop(vt):
    F = [64, 80]
    def reads(st, ks, f):
        slot = st % 4
        hi, lo = slot >> 1, (slot & 1) * 32768
        r = []
        for T in range(2):
            r.append('ds_read_b128 %s, v%d offset:%d' % (v(f + 4 * T, 4), vXA + 4 * hi + ks, lo + 4096 * T))
        for Tc in range(2):
            for rd in range(2):
                r.append('ds_read_b64_tr_b16 %s, v%d offset:%d' % (v(f + 8 + 4 * Tc + 2 * rd, 2), vWA + 2 * hi + Tc,
                                                                  lo + (16 * ks + 4 * rd) * 256))
        return [r[0], r[2], r[3], r[1], r[4], r[5]]
    def mfma(f, i, j, first):
        acc = (2 * i + j) * 16
        A = f + 4 * i if vt else f + 8 + 4 * i
        B = f + 8 + 4 * j if vt else f + 4 * j
        return 'v_mfma_f32_32x32x16_bf16 %s, %s, %s, %s' % (v(acc, 16), v(A, 4), v(B, 4), '0' if first else v(acc, 16))
    a('s_barrier')
    for r in reads(0, 0, F[0]):
        a(r)
    for st in range(10):
        for ks in range(4):
            cur, nxt = F[ks & 1], F[(ks + 1) & 1]
            first = st == 0 and ks == 0
            a('s_waitcnt lgkmcnt(0)')
            if ks == 3:
                a('s_barrier')
                rr = reads(st + 1, 0, nxt) if st < 9 else []
            else:
                rr = reads(st, ks + 1, nxt)
            a(mfma(cur, 0, 0, first))
            for r in rr[:3]:
                a(r)
            a(mfma(cur, 0, 1, first))
            for r in rr[3:]:
                a(r)
            a(mfma(cur, 1, 0, first))
            a(mfma(cur, 1, 1, first))

def a_qphase():
    a('s_cmp_ge_u32 s%d, 10', sCG)
    a('s_cbranch_scc1 L_qV')
    a_qloop(False)
    stamp('A', 'qloop')
    a('v_mov_b32 v100, 0')
    a('global_load_dword v101, v100, s[%d:%d] sc1', sDBG, sDBG + 1)
    a('v_and_b32 v98, 31, v%d', vLANE)
    a('v_lshrrev_b32 v97, 5, v%d', vLANE)
    a('v_lshlrev_b32 v98, 4, v98')
    a('v_lshl_add_u32 v96, v97, 10, v98')
    a('s_lshl1_add_u32 s76, s%d, s%d', sCG, sCW)
    a('s_lshl_b32 s77, s76, 13')
    a('s_add_u32 s77, s77, s74')
    a('s_add_u32 s78, s77, 4096')
    a('s_mul_i32 s79, s%d, 3', sCW)
    a('s_add_u32 s79, s79, s%d', sCG)
    for _ in range(2):
        a('s_cmp_ge_u32 s79, 5')
        a('s_cselect_b32 s80, 5, 0')
        a('s_sub_u32 s79, s79, s80')
    a('s_cmp_ge_u32 s%d, 5', sCG)
    a('s_cbranch_scc1 L_noscale')
    c0 = f2u(math.log2(math.e) / math.sqrt(20.0))
    a('s_mov_b32 s80, 0x%x', c0)
    a('s_mov_b32 s81, s80')
    for i in range(0, 64, 2):
        a('v_pk_mul_f32 %s, %s, s[80:81]', v(i, 2), v(i, 2))
    a.label('L_noscale')
    for Tc in range(2):
        for u in range(2):
            P = 64 + 8 * (2 * Tc + u)
            for T in range(2):
                acc = (2 * Tc + T) * 16 + 8 * u
                for q in range(4):
                    a('v_cvt_pk_bf16_f32 v%d, v%d, v%d', P + 4 * T + q, acc + 2 * q, acc + 2 * q + 1)
            a('s_cmp_eq_u32 s79, %d', (2 - 4 * Tc - 2 * u) % 5)
            a('s_cselect_b32 exec_lo, -1, 0')
            a('s_cmp_eq_u32 s79, %d', (1 - 4 * Tc - 2 * u) % 5)
            a('s_cselect_b32 exec_hi, -1, 0')
            a('v_swap_b32 v%d, v%d', P + 2, P + 4)
            a('v_swap_b32 v%d, v%d', P + 3, P + 5)
            a('s_mov_b64 exec, -1')
            for T in range(2):
                a('buffer_store_dwordx4 %s, v96, s[%d:%d], s%d offen offset:%d sc1', v(P + 4 * T, 4), RWS, RWS + 3,
                  77 + Tc, 2048 * u + 512 * T)
    a('s_branch L_qdone')
    a.label('L_qV')
    a_qloop(True)
    if DIAG:
        nstamp['A'].pop()
    stamp('A', 'qloop')
    a('v_mov_b32 v100, 0')
    a('global_load_dword v101, v100, s[%d:%d] sc1', sDBG, sDBG + 1)
    a('s_lshl1_add_u32 s76, s%d, s%d', sCG, sCW)
    a('s_cmp_eq_u32 s%d, 15', sCG)
    a('s_cbranch_scc1 L_qdone')
    a('v_and_b32 v98, 31, v%d', vLANE)
    tau(96, 98, 97)
    a('v_lshrrev_b32 v97, 5, v%d', vLANE)
    a('v_mul_u32_u24 v97, %d, v97', VROW)
    a('v_lshl_add_u32 v96, v96, 4, v97')
    a('s_sub_u32 s77, s76, 20')
    a('s_lshl_b32 s77, s77, 10')
    a('s_add_u32 s77, s77, s74')
    a('s_add_u32 s77, s77, %d', VOFF)
    n = 0
    for T in range(2):
        for m in range(2):
            for Tc in range(2):
                P = 64 + 4 * n
                n += 1
                acc = (2 * T + Tc) * 16 + 8 * m
                for q in range(4):
                    a('v_cvt_pk_bf16_f32 v%d, v%d, v%d', P + q, acc + 2 * q, acc + 2 * q + 1)
                a('buffer_store_dwordx4 %s, v96, s[%d:%d], s77 offen offset:%d sc1', v(P, 4), RWS, RWS + 3, 512 * Tc)
            if (T, m) != (1, 1):
                a('s_add_u32 s77, s77, %d', 2 * VROW)
    a.label('L_qdone')

vO, vS = 0, 64
KV = [128, 156]
K1A, K1B, K2, VA0, VA1, VB0, VB1 = 0, 4, 8, 12, 16, 20, 24
vQ1, vQ2 = 184, 200
vK1, vK2, vV, vIDX, vNC, vM = 208, 209, 210, 214, 216, 220
vT = 224
sQH, sKH, sODD, sP5, sOFF, sKV0, sPASS, sCNT = 76, 77, 78, 79, 80, 81, 82, 83

def a_att_setup():
    a('s_lshl_b32 s84, s76, 5')
    a('s_add_u32 s84, s84, s75')
    a('s_lshl_b32 s84, s84, 2')
    a('s_add_u32 s84, s84, 0x%x', F1)
    a('s_and_b32 s%d, s%d, 1', sQH, sW)
    a('s_lshr_b32 s%d, s%d, 1', sKH, sW)
    a('s_and_b32 s%d, s%d, 1', sODD, sHD)
    a('s_lshr_b32 s85, s%d, 1', sHD)
    a('s_mul_i32 s%d, s85, 5', sP5)
    a('s_mul_i32 s%d, s%d, %d', sKV0, sKH, 16 * BLK)
    a('s_add_u32 s86, s%d, %d', sKV0, 16 * BLK)
    srd(R3, sWS, 's86')
    srd(R4, sOUT, 2048 * 1280 * 4)
    a('s_mov_b32 s%d, 0', sPASS)
    i, h, t, x = vT, vT + 1, vT + 2, vT + 3
    a('v_and_b32 v%d, 31, v%d', i, vLANE)
    a('v_lshrrev_b32 v%d, 5, v%d', h, vLANE)
    tau(t, i, x)
    a('s_mul_i32 s86, s%d, 3', sODD)
    a('s_add_u32 s86, s86, s%d', sP5)
    a('s_lshl_b32 s87, s86, 10')
    a('v_lshl_add_u32 v%d, v%d, 10, s87', x, h)
    a('v_lshl_add_u32 v%d, v%d, 4, v%d', vT + 4, i, x)
    a('v_lshl_add_u32 v%d, v%d, 4, v%d', vK1, t, x)
    a('v_add_u32 v%d, %d, v%d', vK1, 80 * 1024, vK1)
    a('s_add_u32 s87, s%d, 2', sP5)
    a('s_lshl1_add_u32 s87, s87, s%d', sODD)
    a('s_lshl_b32 s87, s87, 9')
    a('v_lshl_add_u32 v%d, v%d, 4, s87', vT + 5, i)
    a('v_mov_b32 v%d, 0x%x', x, OOB)
    a('v_cndmask_b32 v%d, v%d, v%d, s[%d:%d]', vT + 5, vT + 5, x, sHI, sHI + 1)
    a('s_add_u32 s87, s87, %d', 80 * 1024)
    a('v_mov_b32 v%d, s87', vK2)
    a('v_mov_b32 v%d, %d', x, 160 * 1024)
    a('v_cndmask_b32 v%d, v%d, v%d, s[%d:%d]', vK2, vK2, x, sHI, sHI + 1)
    a('v_lshl_add_u32 v%d, v%d, 4, v%d', vK2, t, vK2)
    a('s_mul_i32 s86, s%d, 20', sHD)
    a('s_lshl2_add_u32 s87, s%d, s86', sODD)
    a('s_lshl_b32 s88, s%d, 4', sODD)
    a('s_sub_u32 s88, s86, s88')
    a('v_add_u32 v%d, s87, v%d', vV, t)
    a('v_add_u32 v%d, s88, v%d', x, i)
    a('v_cmp_le_u32 vcc, 16, v%d', i)
    a('v_add_u32 v%d, 620, v%d', vT + 6, i)
    a('s_nop 0')
    a('v_cndmask_b32 v%d, v%d, v%d, vcc', vV, vV, x)
    a('v_cmp_le_u32 vcc, 20, v%d', i)
    a('v_mul_u32_u24 v%d, %d, v%d', x, VROW, h)
    a('v_add_u32 v%d, %d, v%d', x, VOFF, x)
    a('v_cndmask_b32 v%d, v%d, v%d, vcc', vV, vV, vT + 6)
    a('v_lshl_add_u32 v%d, v%d, 4, v%d', vV, vV, x)
    a('v_cmp_le_u32 vcc, 24, v%d', i)
    a('v_mov_b32 v%d, 0x%x', x, OOB)
    a('v_mov_b32 v%d, 0xdddd', vIDX)
    a('v_cndmask_b32 v%d, v%d, v%d, vcc', vV, vV, x)
    for k in range(1, 4):
        a('v_add_u32 v%d, %d, v%d', vV + k, 2 * VROW * k, vV)
    a('s_mul_i32 s87, s85, 40')
    a('s_lshl4_add_u32 s87, s%d, s87', sODD)
    a('s_add_u32 s88, s87, 23')
    a('s_lshr_b32 s87, s87, 6')
    a('s_lshr_b32 s88, s88, 6')
    a('s_add_u32 s89, s86, 19')
    a('s_lshr_b32 s86, s86, 6')
    a('s_lshr_b32 s89, s89, 6')
    a('v_lshrrev_b32 v%d, 2, v%d', x, vLANE)
    a('v_mov_b32 v%d, 30', vF1A)
    for sel, (reg, add) in enumerate(((87, 10), (88, 10), (86, 20), (89, 20))):
        a('s_add_u32 s90, s%d, %d', reg, add)
        a('v_cmp_eq_u32 vcc, %d, v%d', sel, x)
        a('v_mov_b32 v%d, s90', vT + 6)
        a('s_nop 0')
        a('v_cndmask_b32 v%d, v%d, v%d, vcc', vF1A, vF1A, vT + 6)
    a('v_and_b32 v%d, 3, v%d', vT + 6, vLANE)
    a('s_lshl_b32 s90, s%d, 2', sKH)
    a('v_add_u32 v%d, s90, v%d', vT + 6, vT + 6)
    a('v_lshl_add_u32 v%d, v%d, 3, v%d', vF1A, vF1A, vT + 6)
    for sel, reg in ((5, 87), (6, 88)):
        a('s_lshl3_add_u32 s90, s%d, s%d', reg, sQB)
        a('v_cmp_eq_u32 vcc, %d, v%d', sel, x)
        a('v_mov_b32 v%d, s90', vT + 6)
        a('s_nop 0')
        a('v_cndmask_b32 v%d, v%d, v%d, vcc', vF1A, vF1A, vT + 6)
    a('v_lshlrev_b32 v%d, 4, v%d', vF1A, vF1A)
    a('s_lshl1_add_u32 s90, s%d, s%d', sQB, sQH)
    a('s_lshl1_add_u32 s90, s90, s%d', sKH)
    a('s_mul_i32 s91, s90, %d', BLK)
    a('s_xor_b32 s92, s90, 1')
    a('s_mul_i32 s92, s92, %d', BLK)
    a('s_waitcnt vmcnt(0)')
    stamp('A', 'qdrain')
    a('v_cmp_eq_u32 vcc, 0, v101')
    a('s_cbranch_vccz L_clrok')
    pollflags('global_load_dword v101, v100, s[%d:%d] sc1' % (sDBG, sDBG + 1), 101, 1)
    a.label('L_clrok')
    setflag(84, 101)
    a('s_mov_b32 s84, 0x%x', F1)
    pollflags('buffer_load_dwordx4 v[104:107], v%d, s[%d:%d], s84 offen sc1' % (vF1A, RWS, RWS + 3), 104, 4)
    stamp('A', 'f1')

def kvload(st, what, soff):
    r = KV[st] + what
    if what in (K1A, K1B):
        return 'buffer_load_dwordx4 %s, v%d, s[%d:%d], s%d offen offset:%d sc1' % (v(r, 4), vK1, R3, R3 + 3, soff, 512 if what == K1B else 0)
    if what == K2:
        return 'buffer_load_dwordx4 %s, v%d, s[%d:%d], s%d offen sc1' % (v(r, 4), vK2, R3, R3 + 3, soff)
    return 'buffer_load_dwordx4 %s, v%d, s[%d:%d], s%d offen sc1' % (v(r, 4), vV + (what - VA0) // 4, R3, R3 + 3, soff)

def qk1(st, tile, qt, sb):
    return 'v_mfma_f32_32x32x16_bf16 %s, %s, %s, 0' % (v(vS + 16 * sb, 16), v(KV[st] + (K1B if tile else K1A), 4), v(vQ1 + 4 * qt, 4))

def qk2(st, tile, qt, sb):
    return 'v_mfma_f32_32x32x8bf16_1k %s, %s, %s, %s' % (v(vS + 16 * sb, 16), v(KV[st] + K2 + 2 * tile, 2), v(vQ2 + 2 * qt, 2), v(vS + 16 * sb, 16))

def pv(st, tile, qt, m):
    return 'v_smfmac_f32_32x32x32_bf16 %s, %s, %s, v%d' % (v(vO + 16 * qt, 16), v(KV[st] + VA0 + 8 * tile + 4 * m, 4), v(vS + 16 * qt + 8 * m, 8), vIDX)

def maxtree(dst, src, acc):
    if acc:
        a('v_max3_f32 v%d, v%d, v%d, v%d', dst, dst, src, src + 1)
    else:
        a('v_max_f32 v%d, v%d, v%d', dst, src, src + 1)
    for k in range(2, 16, 2):
        a('v_max3_f32 v%d, v%d, v%d, v%d', dst, dst, src + k, src + k + 1)

def a_attention():
    for lp in range(2):
        for T in range(2):
            a('buffer_load_dwordx4 %s, v%d, s[%d:%d], s%d offen offset:%d sc1', v(vQ1 + 8 * lp + 4 * T, 4), vT + 4, RWS, RWS + 3, 91 + lp, 512 * T)
    for lp in range(2):
        a('buffer_load_dwordx4 %s, v%d, s[%d:%d], s%d offen sc1', v(vQ2 + 4 * lp, 4), vT + 5, RWS, RWS + 3, 91 + lp)
    a.label('L_attload')
    a('s_add_u32 s%d, s%d, %d', sOFF, sKV0, BLK)
    for w_ in (K1A, K2, VA0, VA1, K1B, VB0, VB1):
        a(kvload(0, w_, sKV0))
    for w_ in (K1A, VA0, VA1, K1B, K2):
        a(kvload(1, w_, sOFF))
    for i in range(64):
        a('v_mov_b32 v%d, 0', vO + i)
    for i in range(4):
        a('v_mov_b32 v%d, 0', KV[1] + VB1 + i)
    a('s_waitcnt vmcnt(10)')
    stamp('A', 'qkload')
    a('s_cmp_eq_u32 s%d, 0', sPASS)
    a('s_cbranch_scc0 L_setc')
    a.c('stand-in for the row maximum: the maximum over the first key tile (checked after the loop)')
    for qt in range(4):
        a(qk1(0, 0, qt, qt))
        a(qk2(0, 0, qt, qt))
    a('s_nop 5')
    for qt in range(4):
        maxtree(vM + qt, vS + 16 * qt, False)
    a.label('L_setc')
    for qt in range(4):
        a('v_mov_b32 v%d, v%d', vT + 8 + qt, vM + qt)
    for qt in range(4):
        a('v_permlane32_swap_b32 v%d, v%d', vM + qt, vT + 8 + qt)
    for qt in range(4):
        a('v_min_f32 v%d, -v%d, -v%d', vM + qt, vM + qt, vT + 8 + qt)
    for qt in range(4):
        a('v_cvt_pk_bf16_f32 v%d, v%d, v%d', vT + 8 + qt, vM + qt, vM + qt)
    for qt in range(4):
        a('v_and_b32 v%d, 0xffff0000, v%d', vT + 8 + qt, vT + 8 + qt)
    for qt in range(4):
        a('v_sub_f32 v%d, v%d, v%d', vM + qt, vM + qt, vT + 8 + qt)
    for qt in range(4):
        a('v_cvt_pk_bf16_f32 v%d, v%d, v%d', vM + qt, vT + 8 + qt, vM + qt)
    for qt in range(4):
        a('v_cndmask_b32 v%d, v%d, v%d, s[%d:%d]', vQ2 + 2 * qt, vQ2 + 2 * qt, vM + qt, sHI, sHI + 1)
    a(qk1(0, 0, 0, 0))
    a(qk2(0, 0, 0, 0))
    for qt in range(4):
        a('v_and_b32 v%d, 0xffff0000, v%d', vM + qt, vM + qt)
    for qt in range(4):
        a('v_add_f32 v%d, v%d, v%d', vNC + qt, vM + qt, vT + 8 + qt)
    for i in range(8):
        a('v_mov_b32 v%d, 0', vS + 48 + 8 + i)
    a('s_mov_b32 s%d, 8', sCNT)
    a('s_waitcnt vmcnt(7)')
    stamp('A', 'attpro')
    a('.p2align 6')
    a.label('L_attloop')
    for st in range(2):
        for n in range(8):
            tile, qt = n >> 2, n & 3
            nst, ntile, nqt = (st, (n + 1) >> 2, (n + 1) & 3) if n < 7 else (st ^ 1, 0, 0)
            pst, ptile, pqt = (st, (n - 1) >> 2, (n - 1) & 3) if n > 0 else (st ^ 1, 1, 3)
            def ex(k):
                for e in range(4 * k, 4 * k + 4):
                    a('v_exp_f32 v%d, v%d', vS + 16 * qt + e, vS + 16 * qt + e)
            if n == 7:
                a('s_waitcnt vmcnt(5)')
            a(qk1(nst, ntile, nqt, nqt))
            if n == 0:
                a(kvload(st ^ 1, VB0, sOFF))
            if n == 1:
                a(kvload(st ^ 1, VB1, sOFF))
            if n == 2:
                a('s_add_u32 s%d, s%d, %d', sOFF, sOFF, BLK)
            if n == 3:
                a(kvload(st, K1A, sOFF))
            if n == 4:
                a(kvload(st, VA0, sOFF))
            if n == 5:
                a(kvload(st, VA1, sOFF))
            if n == 7:
                a(kvload(st, K1B, sOFF))
            ex(0)
            a(qk2(nst, ntile, nqt, nqt))
            if n == 7:
                a(kvload(st, K2, sOFF))
            ex(1)
            a(pv(pst, ptile, pqt, 1))
            if st == 1 and n == 7:
                a('s_sub_u32 s%d, s%d, 1', sCNT, sCNT)
            if st == 1 and n == 6 and OPT['b3start'] <= 8:
                L = a.newlabel('nosig')
                a('s_cmp_eq_u32 s%d, %d', sCNT, 9 - OPT['b3start'])
                a('s_cbranch_scc0 %s', L)
                setpw(1, vT + 8)
                a.label(L)
            ex(2)
            if n == 4:
                a('s_waitcnt vmcnt(9)')
            a(pv(st, tile, qt, 0))
            if st == 1 and n == 7:
                a('s_cmp_lg_u32 s%d, 0', sCNT)
            ex(3)
    a('s_cbranch_scc1 L_attloop')
    a('s_nop 0')
    a(pv(1, 1, 3, 1))
    stamp('A', 'attloop')
    a('s_mul_i32 s84, s%d, %d', sW, REGSZ)
    a('s_add_u32 s84, s84, %d', L_REG + 8192)
    a('s_xor_b32 s85, s%d, 2', sW)
    a('s_mul_i32 s86, s85, %d', REGSZ)
    a('s_add_u32 s86, s86, %d', L_REG + 8192)
    a('v_lshl_add_u32 v%d, v%d, 4, s84', vT, vLANE)
    a('v_lshl_add_u32 v%d, v%d, 3, s84', vT + 1, vLANE)
    a('v_lshl_add_u32 v%d, v%d, 4, s86', vT + 2, vLANE)
    a('v_lshl_add_u32 v%d, v%d, 3, s86', vT + 3, vLANE)
    a('v_xor_b32 v%d, 512, v%d', vT + 6, vPW)
    a('v_and_b32 v%d, 3, v%d', vT + 7, vLANE)
    a('v_lshlrev_b32 v%d, 8, v%d', vT + 7, vT + 7)
    a('v_lshl_add_u32 v%d, v%d, 2, v%d', vT + 7, vLANE, vT + 7)
    a('v_add_u32 v%d, %d, v%d', vT + 7, L_PW + 1024, vT + 7)
    a('s_waitcnt vmcnt(0)')
    a('s_cmp_eq_u32 s%d, 0', sPASS)
    a('s_cbranch_scc0 L_attok')
    a('v_min_f32 v%d, v%d, v%d', vT + 8, vO + 8, vO + 24)
    a('v_min3_f32 v%d, v%d, v%d, v%d', vT + 8, vT + 8, vO + 40, vO + 56)
    a('v_add_f32 v%d, v%d, v%d', vT + 9, vO + 8, vO + 24)
    a('v_add_f32 v%d, v%d, v%d', vT + 10, vO + 40, vO + 56)
    a('v_add_f32 v%d, v%d, v%d', vT + 9, vT + 9, vT + 10)
    a('s_mov_b32 s86, 0x%x', f2u(2.0 ** -30))
    a('s_mov_b32 s87, 0x%x', f2u(2.0 ** 50))
    a('v_cmp_nle_f32 s[88:89], s86, v%d', vT + 8)
    a('v_cmp_nge_f32 vcc, s87, v%d', vT + 9)
    a('s_or_b32 s89, s89, vcc_hi')
    if OPT['force_fb']:
        a('s_cmp_eq_u32 s%d, 0', sPASS)
    a('s_cbranch_scc0 L_attok')
    a.c('fallback: exact row maximum over this wave\'s keys, then redo the pass')
    a('s_mov_b32 s%d, 1', sPASS)
    a('v_mov_b32 v%d, 0', vT + 8)
    for qt in range(4):
        a('v_cndmask_b32 v%d, v%d, v%d, s[%d:%d]', vQ2 + 2 * qt, vQ2 + 2 * qt, vT + 8, sHI, sHI + 1)
        a('v_mov_b32 v%d, 0xff800000', vM + qt)
    a('s_mov_b32 s%d, s%d', sOFF, sKV0)
    a('s_mov_b32 s%d, 16', sCNT)
    a.label('L_maxloop')
    for w_ in (K1A, K1B, K2):
        a(kvload(0, w_, sOFF))
    a('s_waitcnt vmcnt(0)')
    for tile in range(2):
        for qt in range(4):
            a(qk1(0, tile, qt, qt))
            a(qk2(0, tile, qt, qt))
        a('s_nop 5')
        for qt in range(4):
            maxtree(vM + qt, vS + 16 * qt, True)
    a('s_add_u32 s%d, s%d, %d', sOFF, sOFF, BLK)
    a('s_sub_u32 s%d, s%d, 1', sCNT, sCNT)
    a('s_cmp_lg_u32 s%d, 0', sCNT)
    a('s_cbranch_scc1 L_maxloop')
    a('s_branch L_attload')
    a.label('L_attok')
    waitpw(vT + 7, 14, vT + 8)
    for t in range(2):
        for q in range(3):
            a('ds_write_b128 v%d, %s offset:%d', vT, v(vO + 32 + 16 * t + 4 * q, 4), 1024 * (3 * t + q))
    a('ds_write_b64 v%d, %s offset:6144', vT + 1, v(vNC + 2, 2))
    a('s_waitcnt lgkmcnt(0)')
    setpw(2, vT + 8)
    a('v_bfe_u32 v%d, v%d, 4, 1', vT + 10, vLANE)
    a('v_mul_u32_u24 v%d, %d, v%d', vT + 10, OBLK, vT + 10)
    a('v_and_b32 v%d, 15, v%d', vT + 11, vLANE)
    a('v_lshl_add_u32 v%d, v%d, 4, v%d', vT + 10, vT + 11, vT + 10)
    a('v_lshrrev_b32 v%d, 5, v%d', vT + 12, vLANE)
    a('v_mul_u32_u24 v%d, %d, v%d', vT + 11, 2 * OBLK, vT + 12)
    a('v_add_u32 v%d, v%d, v%d', vT + 11, vT + 11, vT + 10)
    a('v_lshl_add_u32 v%d, v%d, 8, v%d', vT + 10, vT + 12, vT + 10)
    a('s_mul_i32 s84, s90, %d', 4 * OBLK)
    a('s_add_u32 s84, s84, 0x%x', WS_O)
    a('s_lshl_b32 s85, s%d, 8', sP5)
    a('s_add_u32 s84, s84, s85')
    a('s_mul_i32 s85, s%d, 768', sODD)
    a('s_add_u32 s85, s85, s84')
    a('s_add_u32 s86, s85, %d', 2 * OBLK)
    a('s_lshl3_add_u32 s84, s%d, s84', sODD)
    a('s_lshl_b32 s87, s90, 5')
    a('s_add_u32 s87, s87, s%d', sHD)
    a('s_lshl_b32 s87, s87, 2')
    a('s_add_u32 s87, s87, 0x%x', F4)
    waitpw(vT + 6, 2, vT + 8)
    R = vS
    a('ds_read_b64 %s, v%d offset:6144', v(vT + 14, 2), vT + 3)
    for t in range(2):
        a('ds_read_b128 %s, v%d offset:%d', v(R + 16 * t + 8, 4), vT + 2, 1024 * (3 * t + 2))
    for t in range(2):
        for q in range(2):
            a('ds_read_b128 %s, v%d offset:%d', v(R + 16 * t + 4 * q, 4), vT + 2, 1024 * (3 * t + q))
    f1, f2, l1, l2 = vT + 16, vT + 18, vT + 20, vT + 22
    a('s_waitcnt lgkmcnt(6)')
    for t in range(2):
        a('v_min_f32 v%d, v%d, v%d', l1 + t, vNC + t, vT + 14 + t)
    for t in range(2):
        a('v_sub_f32 v%d, v%d, v%d', f1 + t, l1 + t, vNC + t)
        a('v_sub_f32 v%d, v%d, v%d', f2 + t, l1 + t, vT + 14 + t)
    for t in range(2):
        a('v_exp_f32 v%d, v%d', f1 + t, f1 + t)
        a('v_exp_f32 v%d, v%d', f2 + t, f2 + t)
    a('s_waitcnt lgkmcnt(4)')
    for t in range(2):
        a('v_mul_f32 v%d, v%d, v%d', l1 + t, f1 + t, vO + 16 * t + 8)
    for t in range(2):
        a('v_fmac_f32 v%d, v%d, v%d', l1 + t, f2 + t, R + 16 * t + 8)
    for t in range(2):
        a('v_mov_b32 v%d, v%d', l2 + t, l1 + t)
    a('s_nop 0')
    for t in range(2):
        a('v_permlane32_swap_b32 v%d, v%d', l1 + t, l2 + t)
    for t in range(2):
        a('v_rcp_f32 v%d, v%d', l2 + t, l2 + t)
    a('s_waitcnt lgkmcnt(0)')
    setpw(3, vT + 8)
    for t in range(2):
        a('v_mul_f32 v%d, v%d, v%d', f1 + t, f1 + t, l2 + t)
        a('v_mul_f32 v%d, v%d, v%d', f2 + t, f2 + t, l2 + t)
    P = KV[0]
    for t in range(2):
        for r in range(12):
            a('v_mul_f32 v%d, v%d, v%d', vO + 16 * t + r, f1 + t, vO + 16 * t + r)
        for r in range(12):
            a('v_fmac_f32 v%d, v%d, v%d', vO + 16 * t + r, f2 + t, R + 16 * t + r)
        for q in range(6):
            a('v_cvt_pk_bf16_f32 v%d, v%d, v%d', P + 8 * t + q, vO + 16 * t + 2 * q, vO + 16 * t + 2 * q + 1)
        a('buffer_store_dwordx4 %s, v%d, s[%d:%d], s%d offen sc1', v(P + 8 * t, 4), vT + 10, RWS, RWS + 3, 85 + t)
    a('s_nop 0')
    a('v_permlane32_swap_b32 v%d, v%d', P + 4, P + 12)
    a('v_permlane32_swap_b32 v%d, v%d', P + 5, P + 13)
    a('buffer_store_dwordx2 %s, v%d, s[%d:%d], s84 offen offset:512 sc1', v(P + 4, 2), vT + 11, RWS, RWS + 3)
    stamp('A', 'merge')

def a_outproj():
    vA0, vA1, vOA, vST = 240, 241, 242, 244
    a('v_lshrrev_b32 v1, 5, v%d', vLANE)
    a('v_bfe_u32 v2, v%d, 2, 3', vLANE)
    a('v_lshl_add_u32 v1, v1, 4, v2')
    a('v_mul_u32_u24 v1, 160, v1')
    a('v_and_b32 v2, 3, v%d', vLANE)
    a('v_lshl_add_u32 v%d, v2, 3, v1', vA0)
    a('v_add_u32 v%d, %d, v%d', vA1, 10 * 5120, vA0)
    a('v_lshlrev_b32 v%d, 4, v%d', vOA, vLANE)
    a('v_and_b32 v1, 31, v%d', vLANE)
    a('v_lshlrev_b32 v%d, 2, v1', vOA + 1)
    a('v_lshrrev_b32 v1, 4, v%d', vLANE)
    a('v_mul_u32_u24 v1, %d, v1', 4 * 5120)
    a('v_and_b32 v2, 15, v%d', vLANE)
    a('v_lshl_add_u32 v%d, v2, 2, v1', vST)
    for r in range(1, 4):
        a('v_add_u32 v%d, %d, v%d', vST + r, 5120 * r, vST)
    a('s_lshl2_add_u32 s84, s%d, s%d', sTB, sW)
    a('s_mul_i32 s85, s84, %d', OBLK)
    a('s_add_u32 s85, s85, 0x%x', WS_O)
    a('s_mul_i32 s86, s84, %d', 16 * 5120)
    a('s_mul_i32 s88, s%d, 320', sOG)
    a('s_add_u32 s86, s86, s88')
    a('s_lshl_b32 s88, s%d, 7', sTB)
    a('s_add_u32 s88, s88, 0x%x', F4)
    a('s_waitcnt vmcnt(0)')
    stamp('A', 'odrain')
    setflag(87, 1)
    acc, WF = 80, [100, 120]
    def reads(ks):
        f = WF[ks & 1]
        base, off = (vA0, ks * 5120) if ks < 10 else (vA1, (ks - 10) * 5120)
        return ['ds_read_b64_tr_b16 %s, v%d offset:%d' % (v(f + 4 * j + 2 * rd, 2), base, off + 1280 * rd + 32 * j)
                for j in range(5) for rd in range(2)]
    pollflags('buffer_load_dword v1, v%d, s[%d:%d], s88 offen sc1' % (vOA + 1, RWS, RWS + 3), 1, 1)
    stamp('A', 'f4')
    for ks in range(20):
        a('buffer_load_dwordx4 %s, v%d, s[%d:%d], s85 offen offset:%d sc1', v(4 * ks, 4), vOA, RWS, RWS + 3, 1024 * (ks & 3))
        if ks & 3 == 3 and ks < 19:
            a('s_add_u32 s85, s85, 4096')
    for r in reads(0):
        a(r)
    for ks in range(20):
        rr = reads(ks + 1) if ks < 19 else []
        a('s_waitcnt vmcnt(%d) lgkmcnt(0)', 19 - ks)
        for j in range(5):
            a('v_mfma_f32_16x16x32_bf16 %s, %s, %s, %s', v(acc + 4 * j, 4), v(4 * ks, 4), v(WF[ks & 1] + 4 * j, 4),
              '0' if ks == 0 else v(acc + 4 * j, 4))
            for r in rr[4 * j:4 * j + 4]:
                a(r)
    a('s_nop 3')
    for j in range(5):
        for r in range(4):
            a('buffer_store_dword v%d, v%d, s[%d:%d], s86 offen offset:%d', acc + 4 * j + r, vST + r, R4, R4 + 3, 64 * j)
    finish('A')

vDX, vDW, vDBX, vDBB = 236, 240, 244, 248
vSPW = 252
vL8, vL128 = 228, 232

def dma(voff, r, soff, imm):
    return 'buffer_load_dwordx4 v%d, s[%d:%d], s%d offen offset:%d lds' % (voff, r, r + 3, soff, imm)

def s_stage(t):
    slot = (t % 4) * 32768
    if t < 10:
        a('s_add_u32 m0, s74, %d', slot)
        a('s_add_u32 s76, s72, %d', 128 * t)
        for i in range(4):
            a(dma(vDX + i, R0, 76, 1024 * i))
        a('s_add_u32 m0, s74, %d', slot + 16384)
        a('s_add_u32 s76, s73, %d', 245760 * t)
        for i in range(4):
            a(dma(vDW + i, R1, 76, 1024 * i))
    else:
        a('s_add_u32 m0, s74, %d', slot)
        a('s_add_u32 s76, s72, %d', 128 * (t - 10))
        for i in range(4):
            a(dma(vDBX + i, R3, 76, 1024 * i))
        a('s_add_u32 m0, s75, %d', slot + 16384)
        a('s_add_u32 s76, s77, %d', 128 * (t - 10))
        for i in range(3):
            a(dma(vDBB + i, R4, 76, 1024 * i))

def ninstr(t):
    return 0 if t > 19 else (8 if t < 10 else 7)

def exp_acc(dst, x, t1, t2):
    L2E = math.log2(math.e)
    hi = struct.unpack('<f', struct.pack('<f', L2E))[0]
    a('s_mov_b32 s80, 0x%x', f2u(hi))
    a('v_mul_f32 v%d, s80, v%d', t1, x)
    a('v_fma_f32 v%d, v%d, s80, -v%d', t2, x, t1)
    a('v_fmac_f32 v%d, 0x%x, v%d', t2, f2u(L2E - hi), x)
    a('v_exp_f32 v%d, v%d', dst, t1)
    a('v_mul_f32 v%d, 0x%x, v%d', t2, f2u(math.log(2.0)), t2)
    a('v_fmac_f32 v%d, v%d, v%d', dst, dst, t2)

def s_setup():
    a.label('L_roleS')
    a('s_sub_u32 s%d, s%d, 4', sW, sW)
    stamp('S', 'start')
    a('s_cmp_eq_u32 s%d, 15', sCG)
    a('s_cselect_b32 s70, 0, 0x%x', 2048 * 1280)
    a('s_cselect_b32 s71, 0, 0x%x', 640 * 3840)
    srd(R0, sAX, 's70')
    srd(R1, sWQ, 's71')
    a('v_lshrrev_b32 v1, 3, v%d', vLANE)
    a('v_and_b32 v2, 7, v%d', vLANE)
    a('v_lshrrev_b32 v3, 4, v%d', vLANE)
    a('v_xor_b32 v4, v2, v3')
    a('v_mul_u32_u24 v5, 1280, v1')
    a('v_lshl_add_u32 v%d, v4, 4, v5', vDX)
    a('v_xor_b32 v6, 64, v%d', vDX)
    a('v_add_u32 v%d, %d, v6', vDX + 1, 10240 - 1024)
    a('v_add_u32 v%d, %d, v%d', vDX + 2, 2 * (10240 - 1024), vDX)
    a('v_add_u32 v%d, %d, v6', vDX + 3, 3 * (10240 - 1024))
    a('v_and_b32 v7, 15, v%d', vLANE)
    a('v_lshlrev_b32 v8, 2, v3')
    a('v_xor_b32 v7, v7, v8')
    a('v_mul_u32_u24 v8, 3840, v3')
    a('v_lshl_add_u32 v%d, v7, 4, v8', vDW)
    for i in range(1, 4):
        a('v_add_u32 v%d, %d, v%d', vDW + i, (15360 - 1024) * i, vDW)
    a('s_lshl2_add_u32 s72, s%d, s%d', sRB, sW)
    a('s_mul_i32 s72, s72, %d', 32 * 1280)
    a('s_mul_i32 s73, s%d, %d', sW, 16 * 3840)
    a('s_lshl_b32 s70, s%d, 8', sCG)
    a('s_add_u32 s73, s73, s70')
    a('s_lshl_b32 s74, s%d, 12', sW)
    a('s_mul_i32 s70, s%d, 40', sCG)
    a('v_min_u32 v9, 39, v%d', vLANE)
    a('v_add_lshl_u32 v9, v9, s70, 1')
    a('global_load_ushort v10, v9, s[%d:%d]', sLDT, sLDT + 1)
    a('global_load_ushort v11, v9, s[%d:%d]', sLRE, sLRE + 1)
    a('global_load_ushort v12, v9, s[%d:%d]', sLIM, sLIM + 1)
    for t in range(4):
        s_stage(t)
    srd(R3, sBX, 2048 * 1280)
    a('s_cmp_ge_u32 s%d, 2', sW)
    a('s_cselect_b32 s70, s%d, s%d', sBIM, sBRE)
    a('s_cselect_b32 s71, s%d, s%d', sBIM + 1, sBRE + 1)
    srd(R4, 70, 640 * 1280)
    a('v_and_b32 v5, 3, v1')
    a('v_lshrrev_b32 v6, 2, v1')
    a('v_lshl_add_u32 v5, v6, 3, v5')
    a('v_mul_u32_u24 v5, 1280, v5')
    a('v_lshl_add_u32 v%d, v4, 4, v5', vDBX)
    a('v_xor_b32 v6, 64, v%d', vDBX)
    a('v_add_u32 v%d, %d, v6', vDBX + 1, 16 * 1280 - 1024)
    a('v_add_u32 v%d, %d, v%d', vDBX + 2, 4 * 1280 - 2048, vDBX)
    a('v_add_u32 v%d, %d, v6', vDBX + 3, 20 * 1280 - 3072)
    a('s_lshr_b32 s70, s%d, 1', sW)
    a('s_lshl_b32 s71, s70, 6')
    a('v_xor_b32 v%d, s71, v%d', vDBB, vDX)
    for i in range(1, 3):
        a('v_add_u32 v%d, %d, v%d', vDBB + i, (10240 - 1024) * i, vDBB)
    a('s_and_b32 s71, s%d, 1', sW)
    a('s_mul_i32 s75, s70, 5120')
    a('s_lshl_b32 s77, s71, 11')
    a('s_add_u32 s75, s75, s77')
    a('s_mul_i32 s77, s%d, %d', sCG, 40 * 1280)
    a('s_mul_i32 s71, s71, %d', 16 * 1280)
    a('s_add_u32 s77, s77, s71')
    a('v_and_b32 v5, 3, v%d', vLANE)
    a('v_lshlrev_b32 v5, 8, v5')
    a('v_lshl_add_u32 v5, v%d, 2, v5', vLANE)
    a('v_add_u32 v%d, %d, v5', vSPW, L_PW + 1024)
    a('s_cmp_eq_u32 s%d, 0', sW)
    a('s_cbranch_scc0 L_nopar')
    a('s_waitcnt vmcnt(32)')
    for r in (10, 11, 12):
        a('v_lshlrev_b32 v%d, 16, v%d', r, r)
    exp_acc(13, 10, 14, 15)
    a('v_cvt_pk_bf16_f32 v13, v13, v13')
    a('v_and_b32 v13, 0xffff0000, v13')
    a('v_mul_f32 v14, v13, v11')
    a('v_mul_f32 v15, v13, v12')
    exp_acc(16, 14, 17, 18)
    I2P = 1.0 / (2 * math.pi)
    hi = struct.unpack('<f', struct.pack('<f', I2P))[0]
    a('s_mov_b32 s80, 0x%x', f2u(hi))
    a('v_mul_f32 v17, s80, v15')
    a('v_rndne_f32 v17, v17')
    a('v_fma_f32 v17, v15, s80, -v17')
    a('v_fmac_f32 v17, 0x%x, v15', f2u(I2P - hi))
    a('v_cos_f32 v20, v17')
    a('v_sin_f32 v21, v17')
    a('v_mul_f32 v18, v11, v11')
    a('v_fmac_f32 v18, v12, v12')
    a('v_rcp_f32 v19, v18')
    a('v_mul_f32 v20, v16, v20')
    a('v_mul_f32 v21, v16, v21')
    a('v_fma_f32 v18, -v18, v19, 1.0')
    a('v_fmac_f32 v19, v19, v18')
    a('v_add_f32 v19, v19, v19')
    a('v_add_f32 v17, -1.0, v20')
    a('v_mul_f32 v22, v17, v11')
    a('v_fmac_f32 v22, v21, v12')
    a('v_mul_f32 v23, v17, v12')
    a('v_fma_f32 v23, -v21, v11, v23')
    a('v_mul_f32 v22, v22, v19')
    a('v_mul_f32 v23, v23, v19')
    a('v_lshlrev_b32 v9, 4, v%d', vLANE)
    a('v_add_u32 v9, %d, v9', L_PAR)
    a('ds_write_b128 v9, v[20:23]')
    a('v_mov_b32 v24, v20')
    a('v_sub_f32 v25, 0, v21')
    for k in range(7):
        a('v_mul_f32 v26, v25, v25')
        a('v_add_f32 v27, v24, v24')
        a('v_fma_f32 v24, v24, v24, -v26')
        a('v_mul_f32 v25, v27, v25')
        if k in (2, 6):
            d = vL8 if k == 2 else vL128
            a('v_mov_b32 v%d, v24', d)
            a('v_mov_b32 v%d, v24', d + 1)
            a('v_sub_f32 v%d, 0, v25', d + 2)
            a('v_mov_b32 v%d, v25', d + 3)
    a('s_waitcnt lgkmcnt(0)')
    a.label('L_nopar')

def s_qloader():
    for st in range(10):
        a('s_waitcnt vmcnt(%d)', 24 if st == 0 else ninstr(st + 1) + ninstr(st + 2))
        if st == 0:
            stamp('S', 'st0')
        a('s_barrier')
        if st >= 1:
            s_stage(st + 3)
    a('s_barrier')
    s_stage(13)
    stamp('S', 'qend')

vPAR = 200

def s_b1():
    F = [40, 68]
    vXR, vBR = 96, 100
    a('v_and_b32 v1, 15, v%d', vLANE)
    a('v_lshrrev_b32 v2, 4, v%d', vLANE)
    a('v_lshrrev_b32 v3, 1, v1')
    a('v_xor_b32 v3, v3, v2')
    a('v_lshlrev_b32 v3, 4, v3')
    a('v_lshl_add_u32 v4, v1, 7, v3')
    a('v_add_u32 v%d, s74, v4', vXR)
    a('v_xor_b32 v%d, 64, v%d', vXR + 1, vXR)
    a('v_lshrrev_b32 v5, 3, v1')
    a('v_lshl_add_u32 v4, v5, 12, v4')
    a('v_add_u32 v%d, 16384, v4', vBR)
    a('v_xor_b32 v%d, 64, v%d', vBR + 1, vBR)
    for k in range(2):
        a('v_add_u32 v%d, 0x10000, v%d', vXR + 2 + k, vXR + k)
        a('v_add_u32 v%d, 0x10000, v%d', vBR + 2 + k, vBR + k)
    a('v_and_b32 v6, 7, v%d', vLANE)
    a('v_lshlrev_b32 v6, 4, v6')
    a('v_add_u32 v6, %d, v6', L_PAR)
    for j in range(5):
        a('ds_read_b128 %s, v6 offset:%d', v(vPAR + 4 * j, 4), 128 * j)
    a('v_lshlrev_b32 v5, 31, v5')
    a('s_waitcnt lgkmcnt(0)')
    for j in range(5):
        a('v_xor_b32 v%d, v5, v%d', vPAR + 4 * j + 1, vPAR + 4 * j + 1)
        a('v_xor_b32 v%d, v5, v%d', vPAR + 4 * j + 2, vPAR + 4 * j + 2)
    def reads(t, ks, f):
        slot = t % 4
        hi, lo = slot >> 1, (slot & 1) * 32768
        r = ['ds_read_b128 %s, v%d offset:%d' % (v(f + 4 * T, 4), vXR + 2 * hi + ks, lo + 2048 * T) for T in range(2)]
        r += ['ds_read_b128 %s, v%d offset:%d' % (v(f + 8 + 4 * j, 4), vBR + 2 * hi + ks, lo + 1024 * j) for j in range(5)]
        return r
    def mfmas(f, first):
        return ['v_mfma_f32_16x16x32_bf16 %s, %s, %s, %s' % (v(8 * j + 4 * T, 4), v(f + 4 * T, 4), v(f + 8 + 4 * j, 4),
                '0' if first else v(8 * j + 4 * T, 4)) for j in range(5) for T in range(2)]
    for u in range(10):
        t = 10 + u
        out = ninstr(t + 1) + ninstr(t + 2) + (ninstr(t + 3) if u == 0 else 0)
        a('s_waitcnt vmcnt(%d) lgkmcnt(0)', out)
        setpw(u + 1, 104)
        prev = mfmas(F[1], False) if u > 0 else []
        for m in prev[:4]:
            a(m)
        waitpw(vSPW, u + 1, 105)
        for r in reads(t, 0, F[0]):
            a(r)
        for m in prev[4:]:
            a(m)
        for r in reads(t, 1, F[1]):
            a(r)
        if u >= 1 and t + 3 <= 19:
            s_stage(t + 3)
        a('s_waitcnt lgkmcnt(7)')
        for m in mfmas(F[0], u == 0):
            a(m)
    a('s_waitcnt lgkmcnt(0)')
    for m in mfmas(F[1], False):
        a(m)
    stamp('S', 'b1gemm')

def s_scan():
    ROR = 'row_ror:8 row_mask:0xf bank_mask:0xf'
    a('s_setprio 1')
    vE = 106
    a('v_and_b32 v100, 7, v%d', vLANE)
    a('v_bfe_u32 v101, v%d, 3, 1', vLANE)
    a('v_lshlrev_b32 v101, 2, v101')
    a('v_lshl_add_u32 v100, v100, 3, v101')
    a('v_lshrrev_b32 v101, 4, v%d', vLANE)
    a('v_mul_u32_u24 v101, 320, v101')
    a('s_mul_i32 s70, s%d, 1280', sW)
    a('s_add_u32 s70, s70, %d', L_EL)
    a('v_add3_u32 v%d, v100, v101, s70', vE)
    tmp = 40
    for j in range(5):
        for k in range(8):
            a('v_mul_f32_dpp v%d, v%d, v%d %s', tmp + k, 8 * j + k, vPAR + 4 * j + 3, ROR)
        for k in range(8):
            a('v_fma_f32 v%d, v%d, v%d, v%d', 8 * j + k, vPAR + 4 * j + 2, 8 * j + k, tmp + k)
    e = [[8 * j for j in range(5)], [50 + j for j in range(5)], [56 + j for j in range(5)]]
    cur = e[0]
    for k in range(1, 8):
        nx = e[1 + (k & 1)]
        for j in range(5):
            a('v_fma_f32 v%d, v%d, v%d, v%d', nx[j], vPAR + 4 * j, cur[j], 8 * j + k)
        for j in range(5):
            a('v_fmac_f32_dpp v%d, v%d, v%d %s', nx[j], cur[j], vPAR + 4 * j + 1, ROR)
        cur = nx
    for j in range(5):
        a('ds_write_b32 v%d, v%d offset:%d', vE, cur[j], 64 * j)
    a('s_waitcnt lgkmcnt(0)')
    setpw(11, 104)
    stamp('S', 'pass1')
    a('s_cmp_eq_u32 s%d, 0', sW)
    a('s_cbranch_scc0 L_nocol')
    def chain(dst, src, L, add):
        a('v_pk_fma_f32 %s, %s, %s, %s', v(dst, 2), v(L, 2), v(src, 2), v(add, 2))
        a('v_pk_fma_f32 %s, %s, %s, %s op_sel:[0,1,0] op_sel_hi:[1,0,1]', v(dst, 2), v(L + 2, 2), v(src, 2), v(dst, 2))
    a('v_mov_b32 v100, 0')
    a('global_load_dword v101, v100, s[%d:%d] sc1', sDBG, sDBG + 1)
    a('s_lshl_b32 s70, s%d, 13', sCG)
    a('s_add_u32 s70, s70, 0x%x', WS_E)
    a('s_add_u32 s70, s70, s%d', sWS)
    a('s_addc_u32 s71, s%d, 0', sWS + 1)
    srd(R5, 70, 8192)
    a('s_sub_u32 s70, 15, s%d', sRB)
    a('s_lshl_b32 s70, s70, 9')
    a('s_add_u32 s71, s70, 4096')
    a('s_lshl_b32 s78, s%d, 7', sCG)
    a('s_add_u32 s78, s78, 0x%x', F2)
    a('s_lshl2_add_u32 s79, s%d, s78', sRB)
    a('v_lshlrev_b32 v102, 3, v%d', vLANE)
    a('v_add_u32 v103, %d, v102', L_EL)
    waitpw(vSPW, 11, 105)
    ES, EG, PP = 110, 142, 172
    for sg in range(16):
        a('ds_read_b64 %s, v103 offset:%d', v(ES + 2 * sg, 2), 320 * sg)
    a('s_waitcnt lgkmcnt(0)')
    src = ES
    for sg in range(1, 16):
        dst = PP + 2 * (sg & 1)
        chain(dst, src, vL8, ES + 2 * sg)
        src = dst
    a('s_mov_b32 exec_hi, 0xff')
    a('buffer_store_dwordx2 %s, v102, s[%d:%d], s70 offen sc1', v(src, 2), R5, R5 + 3)
    a('s_mov_b32 exec_hi, -1')
    a('s_waitcnt vmcnt(0)')
    a('v_cmp_eq_u32 vcc, 0, v101')
    a('s_cbranch_vccz L_clrok2')
    pollflags('global_load_dword v101, v100, s[%d:%d] sc1' % (sDBG, sDBG + 1), 101, 1)
    a.label('L_clrok2')
    setflag(79, 101)
    a('v_min_u32 v100, s%d, v%d', sRB, vLANE)
    a('v_lshlrev_b32 v100, 2, v100')
    pollflags('buffer_load_dword v101, v100, s[%d:%d], s78 offen sc1' % (RWS, RWS + 3), 101, 1, sleep=2)
    a('s_mov_b32 exec_hi, 0xff')
    for k in range(15, 0, -1):
        a('buffer_load_dwordx2 %s, v102, s[%d:%d], s%d offen offset:%d sc1', v(EG + 2 * (15 - k), 2), R5, R5 + 3,
          71 if k >= 8 else 70, 512 * (k & 7))
    a('v_add_u32 v103, %d, v102', L_PL)
    a('s_waitcnt vmcnt(0)')
    src = EG
    for n in range(1, 15):
        dst = PP + 2 * (n & 1)
        chain(dst, src, vL128, EG + 2 * n)
        src = dst
    for sg in range(16):
        a('ds_write_b64 v103, %s offset:%d', v(src, 2), 320 * sg)
        if sg < 15:
            dst = EG + 2 * sg
            chain(dst, src, vL8, ES + 2 * sg)
            src = dst
    a('s_mov_b32 exec_hi, -1')
    a('s_waitcnt lgkmcnt(0)')
    setpw(12, 104)
    a.label('L_nocol')
    a('v_lshlrev_b32 v100, 2, v%d', vLANE)
    a('v_add_u32 v100, %d, v100', L_PW + 1024)
    a('v_and_b32 v101, 15, v%d', vLANE)
    a('v_lshrrev_b32 v102, 4, v%d', vLANE)
    a('v_bfe_u32 v103, v%d, 1, 2', vLANE)
    a('v_xor_b32 v103, v103, v102')
    a('v_lshlrev_b32 v103, 4, v103')
    a('s_mul_i32 s70, s%d, 5120', sW)
    a('s_add_u32 s70, s70, %d', L_HT)
    a('v_lshl_add_u32 v107, v101, 6, v103')
    a('v_add_u32 v107, s70, v107')
    a('v_bfe_u32 v103, v%d, 2, 2', vLANE)
    a('v_lshrrev_b32 v108, 5, v%d', vLANE)
    a('v_lshl_add_u32 v109, v108, 3, v103')
    a('v_lshlrev_b32 v109, 6, v109')
    a('v_lshrrev_b32 v103, 1, v103')
    a('v_bfe_u32 v110, v%d, 4, 1', vLANE)
    a('v_bfe_u32 v111, v%d, 1, 1', vLANE)
    a('v_lshl_add_u32 v111, v110, 1, v111')
    a('v_xor_b32 v111, v111, v103')
    a('v_lshl_add_u32 v109, v111, 4, v109')
    a('v_and_b32 v111, 1, v%d', vLANE)
    a('v_lshl_add_u32 v109, v111, 3, v109')
    a('v_xor_b32 v112, 32, v109')
    a('v_add_u32 v109, s70, v109')
    a('v_add_u32 v112, s70, v112')
    a('v_mul_u32_u24 v110, %d, v110', HBLK)
    a('v_mul_u32_u24 v108, %d, v108', 80 * 256)
    a('v_lshl_add_u32 v110, v101, 4, v110')
    a('v_add_u32 v110, v110, v108')
    a('s_lshl2_add_u32 s70, s%d, s%d', sRB, sW)
    a('s_mul_i32 s71, s70, %d', 2 * HBLK)
    a('s_mul_i32 s78, s%d, 1280', sCG)
    a('s_add_u32 s71, s71, s78')
    a('s_add_u32 s71, s71, 0x%x', WS_H)
    a('s_lshl4_add_u32 s70, s70, s%d', sCG)
    a('s_lshl_b32 s70, s70, 2')
    a('s_add_u32 s70, s70, 0x%x', F3)
    waitpw(100, 12, 105, sleep=4)
    stamp('S', 'carry')
    for j in range(5):
        a('ds_read_b32 v%d, v%d offset:%d', 50 + j, vE, L_PL - L_EL + 64 * j)
    a('s_waitcnt lgkmcnt(0)')
    for k in range(8):
        pr = [50 + j if k == 0 else 8 * j + k - 1 for j in range(5)]
        for j in range(5):
            a('v_fmac_f32 v%d, v%d, v%d', 8 * j + k, vPAR + 4 * j, pr[j])
        for j in range(5):
            a('v_fmac_f32_dpp v%d, v%d, v%d %s', 8 * j + k, pr[j], vPAR + 4 * j + 1, ROR)
    for j in range(5):
        for q in range(4):
            a('v_cvt_pk_bf16_f32 v%d, v%d, v%d', 60 + 4 * j + q, 8 * j + 2 * q, 8 * j + 2 * q + 1)
        a('ds_write_b128 v107, %s offset:%d', v(60 + 4 * j, 4), 1024 * j)
    a('s_waitcnt lgkmcnt(0)')
    for j in range(5):
        a('ds_read_b64_tr_b16 %s, v109 offset:%d', v(4 * j, 2), 1024 * j)
        a('ds_read_b64_tr_b16 %s, v112 offset:%d', v(4 * j + 2, 2), 1024 * j + 256)
    for j in range(5):
        a('s_waitcnt lgkmcnt(%d)', 8 - 2 * j)
        a('buffer_store_dwordx4 %s, v110, s[%d:%d], s71 offen offset:%d sc1', v(4 * j, 4), RWS, RWS + 3, 256 * j)
    setpw(13, 104)

def s_b3():
    vWOA = 100
    vCA, vCR, vHA = 232, 234, 236
    acc, HF, CF = 0, 80, [208, 216]
    srd(R0, sWO, 640 * 1280)
    a('s_cmp_ge_u32 s%d, 2', sW)
    a('s_cselect_b32 s78, s%d, s%d', sCIM, sCRE)
    a('s_cselect_b32 s79, s%d, s%d', sCIM + 1, sCRE + 1)
    srd(R1, 78, 640 * 1280)
    srd(R6, sOUT, 2048 * 1280 * 4)
    for i in range(5):
        a('v_add_u32 v40, %d, v%d', 64 * i, vLANE)
        a('v_mul_u32_u24 v41, 6554, v40')
        a('v_lshrrev_b32 v41, 16, v41')
        a('v_mul_u32_u24 v42, 10, v41')
        a('v_sub_u32 v40, v40, v42')
        tau(42, 41, 43)
        a('v_mul_u32_u24 v42, 1280, v42')
        a('v_lshl_add_u32 v%d, v40, 4, v42', vWOA + i)
        if 0 < i < 4:
            a('v_subrev_u32 v%d, %d, v%d', vWOA + i, 1024 * i, vWOA + i)
    a('v_mov_b32 v%d, v%d', vCA, vDX)
    a('v_mov_b32 v%d, v%d', vCA + 1, vDX + 1)
    a('v_and_b32 v40, 15, v%d', vLANE)
    a('v_lshrrev_b32 v41, 4, v%d', vLANE)
    a('v_lshrrev_b32 v42, 1, v40')
    a('v_xor_b32 v42, v42, v41')
    a('v_lshlrev_b32 v42, 4, v42')
    a('v_lshl_add_u32 v42, v40, 7, v42')
    a('s_mul_i32 s74, s%d, %d', sW, REGSZ)
    a('s_add_u32 s74, s74, %d', L_REG)
    a('v_xor_b32 v43, 64, v42')
    a('v_add_u32 v%d, s74, v42', vCR)
    a('v_add_u32 v%d, s74, v43', vCR + 1)
    a('v_lshlrev_b32 v%d, 4, v%d', vHA, vLANE)
    a('v_and_b32 v40, 31, v%d', vLANE)
    a('v_lshlrev_b32 v%d, 2, v40', vHA + 1)
    a('s_and_b32 s78, s%d, 1', sW)
    a('s_mul_i32 s72, s%d, %d', sOG, 80 * 1280)
    a('s_mul_i32 s73, s78, 640')
    a('s_add_u32 s72, s72, s73')
    a('s_mul_i32 s73, s%d, %d', sW, 5 * 40960)
    a('s_mul_i32 s75, s%d, 160', sOG)
    a('s_add_u32 s73, s73, s75')
    a('s_mul_i32 s75, s%d, %d', sW, 5 * 5120)
    a('s_mul_i32 s79, s%d, %d', sW, 40 * 256)
    a('s_add_u32 s79, s79, 0x%x', WS_H)
    a('s_lshl_b32 s78, s78, 1')
    for l in range(4):
        a('s_xor_b32 s80, s78, %d', l)
        a('s_lshl2_add_u32 s80, s%d, s80', sTB)
        a('s_mul_i32 s80, s80, %d', HBLK)
        a('s_add_u32 s%d, s80, s79', 84 + l)
    a('s_lshl_b32 s88, s%d, 7', sTB)
    a('s_add_u32 s88, s88, 0x%x', F3)
    a('s_waitcnt vmcnt(0)')
    setflag(70, 40)
    stamp('S', 'hpub')
    waitpw(vSPW, 13, 40)
    def cdma(n):
        kp, j = divmod(n, 5)
        a('s_add_u32 m0, s74, %d', 2048 * (n % 4))
        a('s_add_u32 s76, s72, %d', 16 * 1280 * j + 128 * kp)
        a(dma(vCA, R1, 76, 0))
        a(dma(vCA + 1, R1, 76, 1024))
    for k in range(5):
        a('s_add_u32 m0, s75, %d', L_WO + 5120 * k)
        a('s_add_u32 s76, s73, %d', 40960 * k)
        for i in range(4):
            a(dma(vWOA + i, R0, 76, 1024 * i))
        a('s_add_u32 m0, s75, %d', L_WO + 5120 * k + 4096)
        a('s_nop 0')
        a(dma(vWOA + 4, R0, 76, 0))
    for n in range(4):
        cdma(n)
    a('s_waitcnt vmcnt(0)')
    setpw(14, 40)
    pollflags('buffer_load_dword v40, v%d, s[%d:%d], s88 offen sc1' % (vHA + 1, RWS, RWS + 3), 40, 1, sleep=4)
    stamp('S', 'f3')
    def hload(l, ks):
        return 'buffer_load_dwordx4 %s, v%d, s[%d:%d], s%d offen offset:%d sc1' % (
            v(HF + 16 * (ks % 8) + 4 * l, 4), vHA, RWS, RWS + 3, 84 + l, 1024 * (ks & 3))
    for ks in range(8):
        for l in range(4):
            a(hload(l, ks))
        if ks & 3 == 3:
            for l in range(4):
                a('s_add_u32 s%d, s%d, 4096', 84 + l, 84 + l)
    a('v_subrev_u32 v41, 1024, v%d', vPW)
    waitpw(41, 1, 40, sleep=8)
    a('s_setprio 0')
    a('s_waitcnt vmcnt(0)')
    stamp('S', 'b3go')
    def creads(n):
        return ['ds_read_b128 %s, v%d offset:%d' % (v(CF[n & 1] + 4 * k, 4), vCR + k, 2048 * (n % 4)) for k in range(2)]
    q = []
    def waitfor(tag):
        idx = max(i for i, x in enumerate(q) if x == tag) if tag in q else -1
        n = len(q) - 1 - idx
        del q[:idx + 1]
        return n
    for r in creads(0):
        a(r)
    a('s_waitcnt lgkmcnt(0)')
    cdma(4)
    q += [4, 4]
    for n in range(25):
        kp, j = divmod(n, 5)
        if n + 1 < 25:
            if (n + 1) in q:
                a('s_waitcnt vmcnt(%d)', waitfor(n + 1))
            for r in creads(n + 1):
                a(r)
        if n == 20 and 'h' in q:
            a('s_waitcnt vmcnt(%d)', waitfor('h'))
        for k in range(2):
            ks = 2 * kp + k
            for l in range(4):
                d = acc + 20 * l + 4 * j
                a('v_mfma_f32_16x16x32_bf16 %s, %s, %s, %s', v(d, 4), v(CF[n & 1] + 4 * k, 4), v(HF + 16 * (ks % 8) + 4 * l, 4),
                  '0' if ks == 0 else v(d, 4))
        if n == 4:
            for ks in (8, 9):
                for l in range(4):
                    a(hload(l, ks))
                    q.append('h')
        if n + 1 < 25:
            a('s_waitcnt lgkmcnt(0)')
            if n + 5 < 25:
                cdma(n + 5)
                q += [n + 5, n + 5]
    stamp('S', 'b3gemm')
    a('s_setprio 1')
    vX, vD, vRA, vOA, T = 120, 132, 144, 150, 160
    a('s_lshl1_add_u32 s78, s%d, 0', sW)
    a('s_and_b32 s78, s78, 2')
    a('s_lshr_b32 s79, s%d, 1', sW)
    a('s_xor_b32 s78, s78, s79')
    a('s_lshl2_add_u32 s78, s%d, s78', sTB)
    a('s_mul_i32 s80, s78, %d', 16 * 1280)
    a('s_mul_i32 s81, s%d, 160', sOG)
    a('s_add_u32 s80, s80, s81')
    a('s_mul_i32 s82, s78, %d', 16 * 5120)
    a('s_lshl1_add_u32 s82, s81, s82')
    a('s_add_u32 s82, s82, 2560')
    a('s_add_u32 s84, s%d, s81', sDSK)
    a('s_addc_u32 s85, s%d, 0', sDSK + 1)
    a('s_xor_b32 s86, s%d, 1', sW)
    a('s_mul_i32 s86, s86, %d', REGSZ)
    a('s_add_u32 s86, s86, %d', L_REG)
    a('s_xor_b32 s87, s%d, 3', sW)
    a('s_mul_i32 s87, s87, %d', REGSZ)
    a('s_add_u32 s87, s87, %d', L_REG)
    a('s_mul_i32 s79, s79, %d', 16 * 336)
    for i in range(5):
        a('v_add_u32 v%d, %d, v%d', T, 64 * i, vLANE)
        a('v_mul_u32_u24 v%d, 3277, v%d', T + 1, T)
        a('v_lshrrev_b32 v%d, 16, v%d', T + 1, T + 1)
        a('v_add_lshl_u32 v%d, v%d, v%d, 4', vRA + i, T, T + 1)
        a('v_add_u32 v%d, s79, v%d', vRA + i, vRA + i)
        a('v_mul_u32_u24 v%d, 20, v%d', T + 2, T + 1)
        a('v_sub_u32 v%d, v%d, v%d', T, T, T + 2)
        a('v_lshlrev_b32 v%d, 3, v%d', T + 2, T)
        a('global_load_dwordx2 %s, v%d, s[84:85]', v(vD + 2 * i, 2), T + 2)
        a('v_mul_u32_u24 v%d, 1280, v%d', T + 3, T + 1)
        a('v_add_u32 v%d, v%d, v%d', T + 3, T + 3, T + 2)
        a('buffer_load_dwordx2 %s, v%d, s[%d:%d], s80 offen', v(vX + 2 * i, 2), T + 3, R3, R3 + 3)
        a('v_mul_u32_u24 v%d, 5120, v%d', T + 1, T + 1)
        a('v_lshl_add_u32 v%d, v%d, 4, v%d', vOA + i, T, T + 1)
    a('v_subrev_u32 v%d, 1024, v%d', T, vSPW)
    waitpw(T, 3, T + 1, sleep=2)
    a('v_add_u32 v%d, s74, v%d', T, vHA)
    for qd in range(10):
        a('ds_write_b128 v%d, %s offset:%d', T, v(acc + 40 + 4 * qd, 4), 1024 * qd)
    a('s_waitcnt lgkmcnt(0)')
    setpw(15, T + 1)
    a('v_xor_b32 v%d, 256, v%d', T + 2, vPW)
    a('v_add_u32 v%d, s86, v%d', T, vHA)
    a('v_and_b32 v%d, 15, v%d', T + 3, vLANE)
    a('v_mul_u32_u24 v%d, 336, v%d', T + 3, T + 3)
    a('v_and_b32 v%d, 48, v%d', T + 4, vLANE)
    a('v_add3_u32 v%d, v%d, v%d, s86', T + 3, T + 3, T + 4)
    waitpw(T + 2, 15, T + 1)
    for qd in range(10):
        a('ds_read_b128 %s, v%d offset:%d', v(acc + 40 + 4 * qd, 4), T, 1024 * qd)
    a('s_waitcnt lgkmcnt(0)')
    for qd in range(10):
        l, j = divmod(qd, 5)
        for hf in range(2):
            a('v_pk_add_f32 %s, %s, %s', v(acc + 4 * qd + 2 * hf, 2), v(acc + 4 * qd + 2 * hf, 2), v(acc + 40 + 4 * qd + 2 * hf, 2))
        a('ds_write_b128 v%d, %s offset:%d', T + 3, v(acc + 4 * qd, 4), 16 * 336 * l + 64 * j)
    a('s_waitcnt lgkmcnt(0)')
    setpw(16, T + 1)
    a('v_xor_b32 v%d, 512, v%d', T + 2, vPW)
    a('s_waitcnt vmcnt(0)')
    U = 80
    for i in range(5):
        for hf in range(2):
            a('v_lshlrev_b32 v%d, 16, v%d', T + 4, vX + 2 * i + hf)
            a('v_lshlrev_b32 v%d, 16, v%d', T + 5, vD + 2 * i + hf)
            a('v_and_b32 v%d, 0xffff0000, v%d', T + 6, vX + 2 * i + hf)
            a('v_and_b32 v%d, 0xffff0000, v%d', T + 7, vD + 2 * i + hf)
            a('v_mul_f32 v%d, v%d, v%d', U + 4 * i + 2 * hf, T + 4, T + 5)
            a('v_mul_f32 v%d, v%d, v%d', U + 4 * i + 2 * hf + 1, T + 6, T + 7)
    waitpw(T + 2, 16, T + 1)
    for i in range(5):
        a('v_add_u32 v%d, s86, v%d', T + 4, vRA + i)
        a('v_add_u32 v%d, s87, v%d', T + 5, vRA + i)
        a('ds_read_b128 %s, v%d', v(acc + 8 * i, 4), T + 4)
        a('ds_read_b128 %s, v%d', v(acc + 8 * i + 4, 4), T + 5)
    for i in range(5):
        a('s_waitcnt lgkmcnt(%d)', 8 - 2 * i)
        for hf in range(2):
            a('v_pk_add_f32 %s, %s, %s', v(U + 4 * i + 2 * hf, 2), v(U + 4 * i + 2 * hf, 2), v(acc + 8 * i + 2 * hf, 2))
            a('v_pk_add_f32 %s, %s, %s', v(U + 4 * i + 2 * hf, 2), v(U + 4 * i + 2 * hf, 2), v(acc + 8 * i + 4 + 2 * hf, 2))
        a('buffer_store_dwordx4 %s, v%d, s[%d:%d], s82 offen', v(U + 4 * i, 4), vOA + i, R6, R6 + 3)
    finish('S')

prologue()
a_setup()
a_qphase()
a_att_setup()
a_attention()
a_outproj()
s_setup()
s_qloader()
s_b1()
s_scan()
s_b3()

errs = check(a.lines)
for e_ in errs:
    print('HAZARD', e_, file=sys.stderr)

head = open('cdna_kernels/%s.s.ref' % NAME).read().split('; @launch')[0]
out = head + '; @launch grid=(256,1,1) block=(512,1,1) lds=%d\n' % LDS_BYTES
out += '''.amdgcn_target "amdgcn-amd-amdhsa--gfx950"
.text
.globl %s_kernel
.p2align 8
.type %s_kernel,@function
%s_kernel:
''' % (NAME, NAME, NAME)
out += a.text()
out += '''.section .rodata,"a"
.p2align 6
.amdhsa_kernel %s_kernel
  .amdhsa_next_free_vgpr 256
  .amdhsa_next_free_sgpr 102
  .amdhsa_accum_offset 256
  .amdhsa_group_segment_fixed_size 0
  .amdhsa_kernarg_size 120
  .amdhsa_user_sgpr_count 2
  .amdhsa_user_sgpr_kernarg_segment_ptr 1
  .amdhsa_system_sgpr_workgroup_id_x 1
.end_amdhsa_kernel
''' % NAME
open(sys.argv[1], 'w').write(out)
if DIAG:
    import json
    json.dump(nstamp, open(sys.argv[1] + '.stamps.json', 'w'))
if errs:
    sys.exit(1)
```

```python
import sys, math, struct
from asmlib import Asm, v, s, check

NAME = 'concat_heads__mha_block__ssm_conv_s5__prompt'
OPT = dict(diag=0, b3start=12, force_fb=0, psleep=1, fine=0, cpre=1, stag=4, b1dep=2, rot=1, thr=4, hold=0, codepre=1, psleep4=2)
for a_ in sys.argv[2:]:
    k_, v_ = a_.split('=')
    OPT[k_] = int(v_)
DIAG = OPT['diag']

def f2u(x):
    return struct.unpack('<I', struct.pack('<f', x))[0]

BLK, VOFF, VROW = 247808, 164864, 10368
WS_H, HBLK = 0x800000, 40960
WS_O, OBLK = 0xD00000, 20480
WS_E = 0xF80000
WS_F = 0xFA0000
F1, F2, F3, F4 = WS_F, WS_F + 0x8000, WS_F + 0x10000, WS_F + 0x30000
WS_END = WS_F + 0x50000
WS_DIAG = 0x1000000
OOB = 0x7F000000
L_HT, L_EL, L_PL, L_PAR = 131072, 151552, 156672, 161024
L_PAR = 131072 + 0
L_WO = 0
L_REG, REGSZ = 102400, 14848
L_PW = 161792
LDS_BYTES = 163840
sAX, sWQ, sWO, sBX, sLRE, sLIM, sBRE, sBIM, sCRE, sCIM, sLDT, sDSK, sOUT, sDBG, sWS = range(4, 34, 2)
sW, sI, sXCD = 34, 35, 3
R0, R1, RWS, R3, R4, R5, R6 = 36, 40, 44, 48, 52, 56, 60
sRB, sCG, sHD, sQB, sTB, sOG = 64, 65, 66, 67, 68, 69
sSPIN = 96
sHI = 94
vLANE, vPW, vTS = 254, 253, 255
SPIN_MAX = 1 << 19

a = Asm()
nstamp = {}

def stamp(role, name):
    if not DIAG:
        return
    l = nstamp.setdefault(role, [])
    idx = len(l)
    l.append(name)
    a('s_memtime s[98:99]')
    a('s_waitcnt lgkmcnt(0)')
    a('v_writelane_b32 v%d, s98, %d', vTS, idx)

def srd(r, base, nbytes):
    a('s_mov_b32 s%d, s%d', r, base)
    a('s_mov_b32 s%d, s%d', r + 1, base + 1)
    if isinstance(nbytes, int):
        a('s_mov_b32 s%d, 0x%x', r + 2, nbytes)
    else:
        a('s_mov_b32 s%d, %s', r + 2, nbytes)
    a('s_mov_b32 s%d, 0x20000', r + 3)

def setpw(val, tmp):
    a('v_mov_b32 v%d, %d', tmp, val)
    a('ds_write_b32 v%d, v%d', vPW, tmp)

def waitpw(vaddr, val, tmp, sleep=0):
    L = a.newlabel('pw')
    D = a.newlabel('pwd')
    a.label(L)
    a('ds_read_b32 v%d, v%d', tmp, vaddr)
    a('s_waitcnt lgkmcnt(0)')
    a('v_cmp_gt_u32 vcc, %d, v%d', val, tmp)
    a('s_cbranch_vccz %s', D)
    if sleep:
        a('s_sleep %d', sleep)
    a('s_sub_u32 s%d, s%d, 1', sSPIN, sSPIN)
    a('s_cbranch_scc0 %s', L)
    a('s_endpgm')
    a.label(D)

def pollflags(loads, tmp, sleep=1):
    L = a.newlabel('pf')
    D = a.newlabel('pfd')
    a.label(L)
    for l in loads:
        a(l)
    a('s_waitcnt vmcnt(0)')
    for i in range(1, len(loads)):
        a('v_and_b32 v%d, v%d, v%d', tmp, tmp, tmp + i)
    a('v_cmp_eq_u32 vcc, 0, v%d', tmp)
    a('s_cbranch_vccz %s', D)
    a('s_mov_b64 exec, vcc')
    if sleep:
        a('s_sleep %d', sleep)
    a('s_sub_u32 s%d, s%d, 1', sSPIN, sSPIN)
    a('s_cbranch_scc0 %s', L)
    a('s_endpgm')
    a.label(D)
    a('s_mov_b64 exec, -1')

def dbgload(va, vd):
    return 'global_load_dword v%d, v%d, s[%d:%d] sc1' % (vd, va, sDBG, sDBG + 1)

def flagaddr(dst, idx, base, t):
    a('s_lshl_b32 s%d, s%d, 7', dst, idx)
    a('s_add_u32 s%d, s%d, 0x%x', dst, dst, base)

def setflag(soff, tmp):
    a('v_mov_b32 v%d, 1', tmp)
    a('s_mov_b64 exec, 1')
    a('buffer_store_dword v%d, off, s[%d:%d], s%d sc1', tmp, RWS, RWS + 3, soff)
    a('s_mov_b64 exec, -1')

def tau(dst, src, t):
    a('v_and_b32 v%d, 0x13, v%d', dst, src)
    a('v_and_b32 v%d, 4, v%d', t, src)
    a('v_lshl_or_b32 v%d, v%d, 1, v%d', dst, t, dst)
    a('v_and_b32 v%d, 8, v%d', t, src)
    a('v_lshrrev_b32 v%d, 1, v%d', t, t)
    a('v_or_b32 v%d, v%d, v%d', dst, t, dst)

def finish(role):
    if DIAG:
        stamp(role, 'end')
        a('s_memrealtime s[98:99]')
        a('s_waitcnt lgkmcnt(0)')
        a('v_writelane_b32 v%d, s98, 31', vTS)
        a('s_lshl_b32 s70, s2, 3')
        a('s_add_u32 s70, s70, s%d', sW)
        if role == 'S':
            a('s_add_u32 s70, s70, 4')
        a('s_lshl_b32 s70, s70, 8')
        a('s_add_u32 s70, s70, 0x%x', WS_DIAG)
        a('v_lshlrev_b32 v0, 2, v%d', vLANE)
        a('buffer_store_dword v%d, v0, s[%d:%d], s70 offen', vTS, RWS, RWS + 3)
    a('s_endpgm')

def prologue():
    a('s_cmp_ge_u32 s2, 256')
    a('s_cbranch_scc0 L_go')
    a('s_endpgm')
    a.label('L_go')
    a('s_load_dwordx16 s[4:19], s[0:1], 0')
    a('s_load_dwordx8 s[20:27], s[0:1], 64')
    a('s_load_dwordx4 s[28:31], s[0:1], 96')
    a('s_load_dwordx2 s[32:33], s[0:1], 112')
    a('v_lshrrev_b32 v1, 6, v0')
    a('v_and_b32 v%d, 63, v0', vLANE)
    a('v_readfirstlane_b32 s%d, v1', sW)
    a('v_lshlrev_b32 v%d, 2, v0', vPW)
    a('v_add_u32 v%d, %d, v%d', vPW, L_PW, vPW)
    a('v_mov_b32 v1, 0')
    a('ds_write_b32 v%d, v1', vPW)
    a('s_and_b32 s%d, s2, 7', sXCD)
    a('s_lshr_b32 s%d, s2, 3', sI)
    a('s_and_b32 s70, s%d, 3', sI)
    a('s_lshr_b32 s%d, s%d, 2', sOG, sI)
    a('s_lshr_b32 s71, s%d, 1', sXCD)
    a('s_lshl2_add_u32 s%d, s71, s70', sRB)
    a('s_and_b32 s71, s%d, 1', sXCD)
    a('s_lshl3_add_u32 s%d, s71, s%d', sCG, sOG)
    a('s_lshr_b32 s71, s%d, 3', sI)
    a('s_lshl2_add_u32 s%d, s%d, s71', sHD, sXCD)
    a('s_and_b32 s%d, s%d, 7', sQB, sI)
    a('s_lshl2_add_u32 s%d, s%d, s70', sTB, sXCD)
    a('s_mov_b32 s%d, 0x%x', sSPIN, SPIN_MAX)
    a('s_mov_b32 s%d, 0', sHI)
    a('s_mov_b32 s%d, -1', sHI + 1)
    a('s_waitcnt lgkmcnt(0)')
    srd(RWS, sWS, WS_END if not DIAG else WS_DIAG + 0x100000)
    if DIAG:
        a('s_memrealtime s[98:99]')
        a('s_waitcnt lgkmcnt(0)')
        a('v_mov_b32 v%d, 0', vTS)
        a('v_writelane_b32 v%d, s98, 30', vTS)
    a('s_cmp_ge_u32 s%d, 4', sW)
    a('s_cbranch_scc1 L_roleS')

sTW, sCW = 72, 73
vXA, vWA = 96, 104
vF1A = 252
vAPW = 249

def a_setup():
    a.label('L_roleA')
    stamp('A', 'start')
    a('s_lshr_b32 s%d, s%d, 1', sTW, sW)
    a('s_and_b32 s%d, s%d, 1', sCW, sW)
    a('s_lshl1_add_u32 s75, s%d, s%d', sRB, sTW)
    a('s_mul_i32 s74, s75, %d', BLK)
    if OPT['codepre']:
        a.c('pull the code into L2: each wave of an XCD touches a few lines')
        a('s_getpc_b64 s[76:77]')
        a('s_lshl2_add_u32 s78, s%d, s%d', sI, sW)
        a('s_mul_i32 s78, s78, 3')
        a('v_min_u32 v1, 2, v%d', vLANE)
        a('v_add_u32 v1, s78, v1')
        a('v_min_u32 v1, (L_codeend - L_roleA) / 128 - 1, v1')
        a('v_lshlrev_b32 v1, 7, v1')
        a('global_load_dword v110, v1, s[76:77]')
    a.c('constant blocks + flag clearing (column group 15 has no GEMM tile)')
    a('s_cmp_eq_u32 s%d, 15', sCG)
    a('s_cbranch_scc0 L_noconst')
    a('s_cmp_eq_u32 s%d, 0', sW)
    a('s_cbranch_scc0 L_noconst')
    a('v_lshlrev_b32 v1, 4, v%d', vLANE)
    for i in range(4):
        a('v_mov_b32 v%d, 0', 4 + i)
    a('s_mul_i32 s76, s%d, 0x5000', sRB)
    a('s_add_u32 s76, s76, 0x%x', WS_F)
    for j in range(5):
        for i in range(4):
            a('buffer_store_dwordx4 v[4:7], v1, s[%d:%d], s76 offen offset:%d sc1', RWS, RWS + 3, 1024 * i)
        a('s_add_u32 s76, s76, 4096')
    a('v_mov_b32 v8, 0x3f803f80')
    a('v_mov_b32 v9, 0')
    a('v_mov_b32 v10, v8')
    a('v_mov_b32 v11, 0')
    for i in range(4):
        a('v_mov_b32 v%d, v8', 12 + i)
    a('v_lshrrev_b32 v2, 3, v%d', vLANE)
    a('v_mul_u32_u24 v2, %d, v2', VROW)
    a('v_and_b32 v3, 7, v%d', vLANE)
    a('v_lshl_add_u32 v2, v3, 4, v2')
    for b in range(2):
        a('s_add_u32 s76, s74, %d', 160 * 1024 + b * BLK)
        a('buffer_store_dwordx4 v[8:11], v1, s[%d:%d], s76 offen sc1', RWS, RWS + 3)
        a('s_add_u32 s76, s74, %d', VOFF + 640 * 16 + b * BLK)
        a('buffer_store_dwordx4 v[12:15], v2, s[%d:%d], s76 offen sc1', RWS, RWS + 3)
    a('s_lshl_b32 s76, s%d, 2', sRB)
    a('v_mov_b32 v16, s76')
    a('v_mov_b32 v17, 1')
    a('s_waitcnt vmcnt(0)')
    a('s_mov_b64 exec, 1')
    a('global_store_dword v16, v17, s[%d:%d] sc1', sDBG, sDBG + 1)
    a('s_mov_b64 exec, -1')
    a.label('L_noconst')
    a.c('LDS fragment addresses for the QKV GEMM')
    a('v_and_b32 v1, 31, v%d', vLANE)
    a('v_lshrrev_b32 v2, 5, v%d', vLANE)
    a('v_bfe_u32 v3, v1, 1, 3')
    a('v_xor_b32 v3, v3, v2')
    a('v_lshlrev_b32 v3, 4, v3')
    a('v_lshl_add_u32 v3, v1, 7, v3')
    a('s_lshl_b32 s76, s%d, 13', sTW)
    a('v_add_u32 v3, s76, v3')
    for ks in range(4):
        a('v_xor_b32 v%d, %d, v3', vXA + ks, ks << 5)
        a('v_add_u32 v%d, 0x10000, v%d', vXA + 4 + ks, vXA + ks)
    a('v_bfe_u32 v4, v%d, 2, 2', vLANE)
    a('v_lshl_add_u32 v5, v2, 3, v4')
    a('v_lshlrev_b32 v5, 8, v5')
    a('v_bfe_u32 v6, v%d, 4, 1', vLANE)
    a('v_and_b32 v7, 1, v%d', vLANE)
    a('v_lshl_add_u32 v6, v6, 1, v7')
    a('s_lshl_b32 s76, s%d, 3', sCW)
    a('v_add_u32 v6, s76, v6')
    a('v_lshlrev_b32 v4, 2, v4')
    a('v_xor_b32 v6, v6, v4')
    a('v_lshl_add_u32 v5, v6, 4, v5')
    a('v_bfe_u32 v7, v%d, 1, 1', vLANE)
    a('v_lshl_add_u32 v5, v7, 3, v5')
    a('v_add_u32 v%d, 16384, v5', vWA)
    a('v_xor_b32 v%d, 64, v%d', vWA + 1, vWA)
    a('v_add_u32 v%d, 0x10000, v%d', vWA + 2, vWA)
    a('v_add_u32 v%d, 0x10000, v%d', vWA + 3, vWA + 1)

def a_qloop(vt):
    F = [64, 80]
    def reads(st, ks, f):
        slot = st % 4
        hi, lo = slot >> 1, (slot & 1) * 32768
        r = []
        for T in range(2):
            r.append('ds_read_b128 %s, v%d offset:%d' % (v(f + 4 * T, 4), vXA + 4 * hi + ks, lo + 4096 * T))
        for Tc in range(2):
            for rd in range(2):
                r.append('ds_read_b64_tr_b16 %s, v%d offset:%d' % (v(f + 8 + 4 * Tc + 2 * rd, 2), vWA + 2 * hi + Tc,
                                                                  lo + (16 * ks + 4 * rd) * 256))
        return [r[0], r[2], r[3], r[1], r[4], r[5]]
    def mfma(f, i, j, first):
        acc = (2 * i + j) * 16
        A = f + 4 * i if vt else f + 8 + 4 * i
        B = f + 8 + 4 * j if vt else f + 4 * j
        return 'v_mfma_f32_32x32x16_bf16 %s, %s, %s, %s' % (v(acc, 16), v(A, 4), v(B, 4), '0' if first else v(acc, 16))
    a('s_barrier')
    for r in reads(0, 0, F[0]):
        a(r)
    for st in range(10):
        for ks in range(4):
            cur, nxt = F[ks & 1], F[(ks + 1) & 1]
            first = st == 0 and ks == 0
            a('s_waitcnt lgkmcnt(0)')
            if ks == 3:
                a('s_barrier')
                rr = reads(st + 1, 0, nxt) if st < 9 else []
            else:
                rr = reads(st, ks + 1, nxt)
            a(mfma(cur, 0, 0, first))
            for r in rr[:3]:
                a(r)
            a(mfma(cur, 0, 1, first))
            for r in rr[3:]:
                a(r)
            a(mfma(cur, 1, 0, first))
            a(mfma(cur, 1, 1, first))

def a_qphase():
    a('s_cmp_ge_u32 s%d, 10', sCG)
    a('s_cbranch_scc1 L_qV')
    a_qloop(False)
    stamp('A', 'qloop')
    a('v_and_b32 v98, 31, v%d', vLANE)
    a('v_lshrrev_b32 v97, 5, v%d', vLANE)
    a('v_lshlrev_b32 v98, 4, v98')
    a('v_lshl_add_u32 v96, v97, 10, v98')
    a('s_lshl1_add_u32 s76, s%d, s%d', sCG, sCW)
    a('s_lshl_b32 s77, s76, 13')
    a('s_add_u32 s77, s77, s74')
    a('s_add_u32 s78, s77, 4096')
    a('s_mul_i32 s79, s%d, 3', sCW)
    a('s_add_u32 s79, s79, s%d', sCG)
    for _ in range(2):
        a('s_cmp_ge_u32 s79, 5')
        a('s_cselect_b32 s80, 5, 0')
        a('s_sub_u32 s79, s79, s80')
    a('s_cmp_ge_u32 s%d, 5', sCG)
    a('s_cbranch_scc1 L_noscale')
    c0 = f2u(math.log2(math.e) / math.sqrt(20.0))
    a('s_mov_b32 s80, 0x%x', c0)
    a('s_mov_b32 s81, s80')
    for i in range(0, 64, 2):
        a('v_pk_mul_f32 %s, %s, s[80:81]', v(i, 2), v(i, 2))
    a.label('L_noscale')
    for Tc in range(2):
        for u in range(2):
            P = 64 + 8 * (2 * Tc + u)
            for T in range(2):
                acc = (2 * Tc + T) * 16 + 8 * u
                for q in range(4):
                    a('v_cvt_pk_bf16_f32 v%d, v%d, v%d', P + 4 * T + q, acc + 2 * q, acc + 2 * q + 1)
            a('s_cmp_eq_u32 s79, %d', (2 - 4 * Tc - 2 * u) % 5)
            a('s_cselect_b32 exec_lo, -1, 0')
            a('s_cmp_eq_u32 s79, %d', (1 - 4 * Tc - 2 * u) % 5)
            a('s_cselect_b32 exec_hi, -1, 0')
            a('v_swap_b32 v%d, v%d', P + 2, P + 4)
            a('v_swap_b32 v%d, v%d', P + 3, P + 5)
            a('s_mov_b64 exec, -1')
            for T in range(2):
                a('buffer_store_dwordx4 %s, v96, s[%d:%d], s%d offen offset:%d sc1', v(P + 4 * T, 4), RWS, RWS + 3,
                  77 + Tc, 2048 * u + 512 * T)
    a('s_branch L_qdone')
    a.label('L_qV')
    a_qloop(True)
    if DIAG:
        nstamp['A'].pop()
    stamp('A', 'qloop')
    a('s_lshl1_add_u32 s76, s%d, s%d', sCG, sCW)
    a('s_cmp_eq_u32 s%d, 15', sCG)
    a('s_cbranch_scc1 L_qdone')
    a('v_and_b32 v98, 31, v%d', vLANE)
    tau(96, 98, 97)
    a('v_lshrrev_b32 v97, 5, v%d', vLANE)
    a('v_mul_u32_u24 v97, %d, v97', VROW)
    a('v_lshl_add_u32 v96, v96, 4, v97')
    a('s_sub_u32 s77, s76, 20')
    a('s_lshl_b32 s77, s77, 10')
    a('s_add_u32 s77, s77, s74')
    a('s_add_u32 s77, s77, %d', VOFF)
    n = 0
    for T in range(2):
        for m in range(2):
            for Tc in range(2):
                P = 64 + 4 * n
                n += 1
                acc = (2 * T + Tc) * 16 + 8 * m
                for q in range(4):
                    a('v_cvt_pk_bf16_f32 v%d, v%d, v%d', P + q, acc + 2 * q, acc + 2 * q + 1)
                a('buffer_store_dwordx4 %s, v96, s[%d:%d], s77 offen offset:%d sc1', v(P, 4), RWS, RWS + 3, 512 * Tc)
            if (T, m) != (1, 1):
                a('s_add_u32 s77, s77, %d', 2 * VROW)
    a.label('L_qdone')

vO, vS = 0, 64
KV = [128, 156]
K1A, K1B, K2, VA0, VA1, VB0, VB1 = 0, 4, 8, 12, 16, 20, 24
vQ1, vQ2 = 184, 200
vK1, vK2, vV, vIDX, vNC, vM = 208, 209, 210, 214, 216, 220
vT = 224
sQH, sKH, sODD, sP5, sOFF, sKV0, sPASS, sCNT = 76, 77, 78, 79, 80, 81, 82, 83
sKVB, sKVE = 70, 71

def a_att_setup():
    a('s_lshl4_add_u32 s84, s%d, s%d', sCG, sRB)
    flagaddr(84, 84, F1, 85)
    a('s_and_b32 s%d, s%d, 1', sQH, sW)
    a('s_lshr_b32 s%d, s%d, 1', sKH, sW)
    a('s_and_b32 s%d, s%d, 1', sODD, sHD)
    a('s_lshr_b32 s85, s%d, 1', sHD)
    a('s_mul_i32 s%d, s85, 5', sP5)
    a('s_mul_i32 s%d, s%d, %d', sKVB, sKH, 16 * BLK)
    a('s_add_u32 s%d, s%d, %d', sKVE, sKVB, 16 * BLK)
    a('s_mul_i32 s86, s%d, %d', sQB, 2 * BLK * OPT['rot'])
    a('s_add_u32 s%d, s%d, s86', sKV0, sKVB)
    srd(R3, sWS, 32 * BLK)
    srd(R4, sOUT, 2048 * 1280 * 4)
    a('s_mov_b32 s%d, 0', sPASS)
    i, h, t, x = vT, vT + 1, vT + 2, vT + 3
    a('v_and_b32 v%d, 31, v%d', i, vLANE)
    a('v_lshrrev_b32 v%d, 5, v%d', h, vLANE)
    tau(t, i, x)
    a('s_mul_i32 s86, s%d, 3', sODD)
    a('s_add_u32 s86, s86, s%d', sP5)
    a('s_lshl_b32 s87, s86, 10')
    a('v_lshl_add_u32 v%d, v%d, 10, s87', x, h)
    a('v_lshl_add_u32 v%d, v%d, 4, v%d', vT + 4, i, x)
    a('v_lshl_add_u32 v%d, v%d, 4, v%d', vK1, t, x)
    a('v_add_u32 v%d, %d, v%d', vK1, 80 * 1024, vK1)
    a('s_add_u32 s87, s%d, 2', sP5)
    a('s_lshl1_add_u32 s87, s87, s%d', sODD)
    a('s_lshl_b32 s87, s87, 9')
    a('v_lshl_add_u32 v%d, v%d, 4, s87', vT + 5, i)
    a('v_mov_b32 v%d, 0x%x', x, OOB)
    a('v_cndmask_b32 v%d, v%d, v%d, s[%d:%d]', vT + 5, vT + 5, x, sHI, sHI + 1)
    a('s_add_u32 s87, s87, %d', 80 * 1024)
    a('v_mov_b32 v%d, s87', vK2)
    a('v_mov_b32 v%d, %d', x, 160 * 1024)
    a('v_cndmask_b32 v%d, v%d, v%d, s[%d:%d]', vK2, vK2, x, sHI, sHI + 1)
    a('v_lshl_add_u32 v%d, v%d, 4, v%d', vK2, t, vK2)
    a('s_mul_i32 s86, s%d, 20', sHD)
    a('s_lshl2_add_u32 s87, s%d, s86', sODD)
    a('s_lshl_b32 s88, s%d, 4', sODD)
    a('s_sub_u32 s88, s86, s88')
    a('v_add_u32 v%d, s87, v%d', vV, t)
    a('v_add_u32 v%d, s88, v%d', x, i)
    a('v_cmp_le_u32 vcc, 16, v%d', i)
    a('v_add_u32 v%d, 620, v%d', vT + 6, i)
    a('s_nop 0')
    a('v_cndmask_b32 v%d, v%d, v%d, vcc', vV, vV, x)
    a('v_cmp_le_u32 vcc, 20, v%d', i)
    a('v_mul_u32_u24 v%d, %d, v%d', x, VROW, h)
    a('v_add_u32 v%d, %d, v%d', x, VOFF, x)
    a('v_cndmask_b32 v%d, v%d, v%d, vcc', vV, vV, vT + 6)
    a('v_lshl_add_u32 v%d, v%d, 4, v%d', vV, vV, x)
    a('v_cmp_le_u32 vcc, 24, v%d', i)
    a('v_mov_b32 v%d, 0x%x', x, OOB)
    a('v_mov_b32 v%d, 0xdddd', vIDX)
    a('v_cndmask_b32 v%d, v%d, v%d, vcc', vV, vV, x)
    for k in range(1, 4):
        a('v_add_u32 v%d, %d, v%d', vV + k, 2 * VROW * k, vV)
    a('s_mul_i32 s87, s85, 40')
    a('s_lshl4_add_u32 s87, s%d, s87', sODD)
    a('s_add_u32 s88, s87, 23')
    a('s_lshr_b32 s87, s87, 7')
    a('s_lshr_b32 s88, s88, 7')
    a('s_add_u32 s89, s86, 19')
    a('s_lshr_b32 s86, s86, 7')
    a('s_lshr_b32 s89, s89, 7')
    a('v_lshrrev_b32 v%d, 4, v%d', x, vLANE)
    a('s_add_u32 s90, s87, 5')
    a('v_mov_b32 v%d, s90', vF1A)
    for sel, (reg, add) in enumerate(((88, 5), (86, 10), (89, 10))):
        a('s_add_u32 s90, s%d, %d', reg, add)
        a('v_cmp_eq_u32 vcc, %d, v%d', sel + 1, x)
        a('v_mov_b32 v%d, s90', vT + 6)
        a('s_nop 0')
        a('v_cndmask_b32 v%d, v%d, v%d, vcc', vF1A, vF1A, vT + 6)
    a('v_and_b32 v%d, 15, v%d', vT + 6, vLANE)
    a('v_lshl_add_u32 v%d, v%d, 4, v%d', vF1A, vF1A, vT + 6)
    a('v_lshlrev_b32 v%d, 7, v%d', vF1A, vF1A)
    a('v_mov_b32 v%d, s87', vF1A - 1)
    a('v_mov_b32 v%d, s88', vT + 6)
    a('v_cndmask_b32 v%d, v%d, v%d, s[%d:%d]', vF1A - 1, vF1A - 1, vT + 6, sHI, sHI + 1)
    a('v_bfe_u32 v%d, v%d, 4, 1', vT + 6, vLANE)
    a('v_lshl_add_u32 v%d, v%d, 4, v%d', vF1A - 1, vF1A - 1, vT + 6)
    a('s_lshl_b32 s90, s%d, 1', sQB)
    a('v_add_lshl_u32 v%d, v%d, s90, 7', vF1A - 1, vF1A - 1)
    a('v_and_b32 v%d, 3, v%d', vAPW, vLANE)
    a('v_lshlrev_b32 v%d, 8, v%d', vAPW, vAPW)
    a('v_lshlrev_b32 v%d, 2, v%d', vAPW + 1, vLANE)
    a('v_add_u32 v%d, %d, v%d', vAPW + 1, L_PW, vAPW + 1)
    a('v_add_u32 v%d, v%d, v%d', vAPW, vAPW, vAPW + 1)
    a('s_lshl1_add_u32 s90, s%d, s%d', sQB, sQH)
    a('s_lshl1_add_u32 s90, s90, s%d', sKH)
    a('s_mul_i32 s91, s90, %d', BLK)
    a('s_xor_b32 s92, s90, 1')
    a('s_mul_i32 s92, s92, %d', BLK)
    a('s_waitcnt vmcnt(0)')
    stamp('A', 'qdrain')
    setpw(1, 102)
    a('s_cmp_eq_u32 s%d, 0', sW)
    a('s_cbranch_scc0 L_f1wait')
    waitpw(vAPW, 1, 102)
    setflag(84, 101)
    a('s_mov_b32 s84, 0x%x', F1)
    pollflags(['buffer_load_dword v%d, v%d, s[%d:%d], s84 offen sc1' % (104 + k, vF1A - k, RWS, RWS + 3) for k in range(2)], 104,
              sleep=OPT['psleep'])
    setpw(2, 102)
    a.label('L_f1wait')
    waitpw(vAPW + 1, 2, 102, sleep=1)
    stamp('A', 'f1')

def kvload(st, what, soff):
    r = KV[st] + what
    if what in (K1A, K1B):
        return 'buffer_load_dwordx4 %s, v%d, s[%d:%d], s%d offen offset:%d sc1' % (v(r, 4), vK1, R3, R3 + 3, soff, 512 if what == K1B else 0)
    if what == K2:
        return 'buffer_load_dwordx4 %s, v%d, s[%d:%d], s%d offen sc1' % (v(r, 4), vK2, R3, R3 + 3, soff)
    return 'buffer_load_dwordx4 %s, v%d, s[%d:%d], s%d offen sc1' % (v(r, 4), vV + (what - VA0) // 4, R3, R3 + 3, soff)

def qk1(st, tile, qt, sb):
    return 'v_mfma_f32_32x32x16_bf16 %s, %s, %s, 0' % (v(vS + 16 * sb, 16), v(KV[st] + (K1B if tile else K1A), 4), v(vQ1 + 4 * qt, 4))

def qk2(st, tile, qt, sb):
    return 'v_mfma_f32_32x32x8bf16_1k %s, %s, %s, %s' % (v(vS + 16 * sb, 16), v(KV[st] + K2 + 2 * tile, 2), v(vQ2 + 2 * qt, 2), v(vS + 16 * sb, 16))

def pv(st, tile, qt, m):
    return 'v_smfmac_f32_32x32x32_bf16 %s, %s, %s, v%d' % (v(vO + 16 * qt, 16), v(KV[st] + VA0 + 8 * tile + 4 * m, 4), v(vS + 16 * qt + 8 * m, 8), vIDX)

def maxtree(dst, src, acc):
    if acc:
        a('v_max3_f32 v%d, v%d, v%d, v%d', dst, dst, src, src + 1)
    else:
        a('v_max_f32 v%d, v%d, v%d', dst, src, src + 1)
    for k in range(2, 16, 2):
        a('v_max3_f32 v%d, v%d, v%d, v%d', dst, dst, src + k, src + k + 1)

def a_attention():
    for lp in range(2):
        for T in range(2):
            a('buffer_load_dwordx4 %s, v%d, s[%d:%d], s%d offen offset:%d sc1', v(vQ1 + 8 * lp + 4 * T, 4), vT + 4, RWS, RWS + 3, 91 + lp, 512 * T)
    for lp in range(2):
        a('buffer_load_dwordx4 %s, v%d, s[%d:%d], s%d offen sc1', v(vQ2 + 4 * lp, 4), vT + 5, RWS, RWS + 3, 91 + lp)
    a.label('L_attload')
    a('s_add_u32 s%d, s%d, %d', sOFF, sKV0, BLK)
    for w_ in (K1A, K2, VA0, VA1, K1B, VB0, VB1):
        a(kvload(0, w_, sKV0))
    for w_ in (K1A, VA0, VA1, K1B, K2):
        a(kvload(1, w_, sOFF))
    for i in range(64):
        a('v_mov_b32 v%d, 0', vO + i)
    for i in range(4):
        a('v_mov_b32 v%d, 0', KV[1] + VB1 + i)
    a('s_waitcnt vmcnt(10)')
    stamp('A', 'qkload')
    a('s_cmp_eq_u32 s%d, 0', sPASS)
    a('s_cbranch_scc0 L_setc')
    a.c('stand-in for the row maximum: the maximum over the first key tile (checked after the loop)')
    for qt in range(4):
        a(qk1(0, 0, qt, qt))
        a(qk2(0, 0, qt, qt))
    a('s_nop 5')
    for qt in range(4):
        maxtree(vM + qt, vS + 16 * qt, False)
    a.label('L_setc')
    for qt in range(4):
        a('v_mov_b32 v%d, v%d', vT + 8 + qt, vM + qt)
    for qt in range(4):
        a('v_permlane32_swap_b32 v%d, v%d', vM + qt, vT + 8 + qt)
    for qt in range(4):
        a('v_min_f32 v%d, -v%d, -v%d', vM + qt, vM + qt, vT + 8 + qt)
    for qt in range(4):
        a('v_cvt_pk_bf16_f32 v%d, v%d, v%d', vT + 8 + qt, vM + qt, vM + qt)
    for qt in range(4):
        a('v_and_b32 v%d, 0xffff0000, v%d', vT + 8 + qt, vT + 8 + qt)
    for qt in range(4):
        a('v_sub_f32 v%d, v%d, v%d', vM + qt, vM + qt, vT + 8 + qt)
    for qt in range(4):
        a('v_cvt_pk_bf16_f32 v%d, v%d, v%d', vM + qt, vT + 8 + qt, vM + qt)
    for qt in range(4):
        a('v_cndmask_b32 v%d, v%d, v%d, s[%d:%d]', vQ2 + 2 * qt, vQ2 + 2 * qt, vM + qt, sHI, sHI + 1)
    a(qk1(0, 0, 0, 0))
    a(qk2(0, 0, 0, 0))
    for qt in range(4):
        a('v_and_b32 v%d, 0xffff0000, v%d', vM + qt, vM + qt)
    for qt in range(4):
        a('v_add_f32 v%d, v%d, v%d', vNC + qt, vM + qt, vT + 8 + qt)
    for i in range(8):
        a('v_mov_b32 v%d, 0', vS + 48 + 8 + i)
    a('s_mov_b32 s%d, 8', sCNT)
    a('s_waitcnt vmcnt(7)')
    stamp('A', 'attpro')
    a('.p2align 6')
    a.label('L_attloop')
    for st in range(2):
        for n in range(8):
            tile, qt = n >> 2, n & 3
            nst, ntile, nqt = (st, (n + 1) >> 2, (n + 1) & 3) if n < 7 else (st ^ 1, 0, 0)
            pst, ptile, pqt = (st, (n - 1) >> 2, (n - 1) & 3) if n > 0 else (st ^ 1, 1, 3)
            def ex(k):
                for e in range(4 * k, 4 * k + 4):
                    a('v_exp_f32 v%d, v%d', vS + 16 * qt + e, vS + 16 * qt + e)
            if n == 7:
                a('s_waitcnt vmcnt(5)')
            a(qk1(nst, ntile, nqt, nqt))
            if n == 0:
                a(kvload(st ^ 1, VB0, sOFF))
            if n == 1:
                a(kvload(st ^ 1, VB1, sOFF))
            if n == 2:
                a('s_add_u32 s%d, s%d, %d', sOFF, sOFF, BLK)
            if n == 3:
                a(kvload(st, K1A, sOFF))
            if n == 4:
                a(kvload(st, VA0, sOFF))
            if n == 5:
                a(kvload(st, VA1, sOFF))
            if n == 7:
                a(kvload(st, K1B, sOFF))
            ex(0)
            a(qk2(nst, ntile, nqt, nqt))
            if n == 7:
                a(kvload(st, K2, sOFF))
            if n == 2 and st == 0:
                a('s_cmp_eq_u32 s%d, s%d', sOFF, sKVE)
            ex(1)
            a(pv(pst, ptile, pqt, 1))
            if n == 2 and st == 0:
                a('s_cselect_b32 s%d, s%d, s%d', sOFF, sKVB, sOFF)
            if st == 1 and n == 7:
                a('s_sub_u32 s%d, s%d, 1', sCNT, sCNT)
            if st == 1 and n == 6 and OPT['b3start'] <= 8:
                L = a.newlabel('nosig')
                a('s_cmp_eq_u32 s%d, %d', sCNT, 9 - OPT['b3start'])
                a('s_cbranch_scc0 %s', L)
                setpw(3, vT + 8)
                a.label(L)
            ex(2)
            if n == 4:
                a('s_waitcnt vmcnt(9)')
            a(pv(st, tile, qt, 0))
            if st == 1 and n == 7:
                a('s_cmp_lg_u32 s%d, 0', sCNT)
            ex(3)
    a('s_cbranch_scc1 L_attloop')
    a('s_nop 0')
    a(pv(1, 1, 3, 1))
    stamp('A', 'attloop')
    a('s_mul_i32 s84, s%d, %d', sW, REGSZ)
    a('s_add_u32 s84, s84, %d', L_REG + 8192)
    a('s_xor_b32 s85, s%d, 2', sW)
    a('s_mul_i32 s86, s85, %d', REGSZ)
    a('s_add_u32 s86, s86, %d', L_REG + 8192)
    a('v_lshl_add_u32 v%d, v%d, 4, s84', vT, vLANE)
    a('v_lshl_add_u32 v%d, v%d, 3, s84', vT + 1, vLANE)
    a('v_lshl_add_u32 v%d, v%d, 4, s86', vT + 2, vLANE)
    a('v_lshl_add_u32 v%d, v%d, 3, s86', vT + 3, vLANE)
    a('v_xor_b32 v%d, 512, v%d', vT + 6, vPW)
    a('v_and_b32 v%d, 3, v%d', vT + 7, vLANE)
    a('v_lshlrev_b32 v%d, 8, v%d', vT + 7, vT + 7)
    a('v_lshl_add_u32 v%d, v%d, 2, v%d', vT + 7, vLANE, vT + 7)
    a('v_add_u32 v%d, %d, v%d', vT + 7, L_PW + 1024, vT + 7)
    a('s_waitcnt vmcnt(0)')
    a('s_cmp_eq_u32 s%d, 0', sPASS)
    a('s_cbranch_scc0 L_attok')
    a('v_min_f32 v%d, v%d, v%d', vT + 8, vO + 8, vO + 24)
    a('v_min3_f32 v%d, v%d, v%d, v%d', vT + 8, vT + 8, vO + 40, vO + 56)
    a('v_add_f32 v%d, v%d, v%d', vT + 9, vO + 8, vO + 24)
    a('v_add_f32 v%d, v%d, v%d', vT + 10, vO + 40, vO + 56)
    a('v_add_f32 v%d, v%d, v%d', vT + 9, vT + 9, vT + 10)
    a('s_mov_b32 s86, 0x%x', f2u(2.0 ** -30))
    a('s_mov_b32 s87, 0x%x', f2u(2.0 ** 50))
    a('v_cmp_nle_f32 s[88:89], s86, v%d', vT + 8)
    a('v_cmp_nge_f32 vcc, s87, v%d', vT + 9)
    a('s_or_b32 s89, s89, vcc_hi')
    if OPT['force_fb']:
        a('s_cmp_eq_u32 s%d, 0', sPASS)
    a('s_cbranch_scc0 L_attok')
    a.c('fallback: exact row maximum over this wave\'s keys, then redo the pass')
    a('s_mov_b32 s%d, 1', sPASS)
    a('v_mov_b32 v%d, 0', vT + 8)
    for qt in range(4):
        a('v_cndmask_b32 v%d, v%d, v%d, s[%d:%d]', vQ2 + 2 * qt, vQ2 + 2 * qt, vT + 8, sHI, sHI + 1)
        a('v_mov_b32 v%d, 0xff800000', vM + qt)
    a('s_mov_b32 s%d, s%d', sOFF, sKVB)
    a('s_mov_b32 s%d, 16', sCNT)
    a.label('L_maxloop')
    for w_ in (K1A, K1B, K2):
        a(kvload(0, w_, sOFF))
    a('s_waitcnt vmcnt(0)')
    for tile in range(2):
        for qt in range(4):
            a(qk1(0, tile, qt, qt))
            a(qk2(0, tile, qt, qt))
        a('s_nop 5')
        for qt in range(4):
            maxtree(vM + qt, vS + 16 * qt, True)
    a('s_add_u32 s%d, s%d, %d', sOFF, sOFF, BLK)
    a('s_sub_u32 s%d, s%d, 1', sCNT, sCNT)
    a('s_cmp_lg_u32 s%d, 0', sCNT)
    a('s_cbranch_scc1 L_maxloop')
    a('s_branch L_attload')
    a.label('L_attok')
    waitpw(vT + 7, 14, vT + 8)
    for t in range(2):
        for q in range(3):
            a('ds_write_b128 v%d, %s offset:%d', vT, v(vO + 32 + 16 * t + 4 * q, 4), 1024 * (3 * t + q))
    a('ds_write_b64 v%d, %s offset:6144', vT + 1, v(vNC + 2, 2))
    a('s_waitcnt lgkmcnt(0)')
    setpw(4, vT + 8)
    a('v_bfe_u32 v%d, v%d, 4, 1', vT + 10, vLANE)
    a('v_mul_u32_u24 v%d, %d, v%d', vT + 10, OBLK, vT + 10)
    a('v_and_b32 v%d, 15, v%d', vT + 11, vLANE)
    a('v_lshl_add_u32 v%d, v%d, 4, v%d', vT + 10, vT + 11, vT + 10)
    a('v_lshrrev_b32 v%d, 5, v%d', vT + 12, vLANE)
    a('v_mul_u32_u24 v%d, %d, v%d', vT + 11, 2 * OBLK, vT + 12)
    a('v_add_u32 v%d, v%d, v%d', vT + 11, vT + 11, vT + 10)
    a('v_lshl_add_u32 v%d, v%d, 8, v%d', vT + 10, vT + 12, vT + 10)
    a('s_mul_i32 s84, s90, %d', 4 * OBLK)
    a('s_add_u32 s84, s84, 0x%x', WS_O)
    a('s_lshl_b32 s85, s%d, 8', sP5)
    a('s_add_u32 s84, s84, s85')
    a('s_mul_i32 s85, s%d, 768', sODD)
    a('s_add_u32 s85, s85, s84')
    a('s_add_u32 s86, s85, %d', 2 * OBLK)
    a('s_lshl3_add_u32 s84, s%d, s84', sODD)
    a('s_lshl_b32 s87, s90, 5')
    a('s_add_u32 s87, s87, s%d', sHD)
    flagaddr(87, 87, F4, 88)
    waitpw(vT + 6, 4, vT + 8)
    R = vS
    a('ds_read_b64 %s, v%d offset:6144', v(vT + 14, 2), vT + 3)
    for t in range(2):
        a('ds_read_b128 %s, v%d offset:%d', v(R + 16 * t + 8, 4), vT + 2, 1024 * (3 * t + 2))
    for t in range(2):
        for q in range(2):
            a('ds_read_b128 %s, v%d offset:%d', v(R + 16 * t + 4 * q, 4), vT + 2, 1024 * (3 * t + q))
    f1, f2, l1, l2 = vT + 16, vT + 18, vT + 20, vT + 22
    a('s_waitcnt lgkmcnt(6)')
    for t in range(2):
        a('v_min_f32 v%d, v%d, v%d', l1 + t, vNC + t, vT + 14 + t)
    for t in range(2):
        a('v_sub_f32 v%d, v%d, v%d', f1 + t, l1 + t, vNC + t)
        a('v_sub_f32 v%d, v%d, v%d', f2 + t, l1 + t, vT + 14 + t)
    for t in range(2):
        a('v_exp_f32 v%d, v%d', f1 + t, f1 + t)
        a('v_exp_f32 v%d, v%d', f2 + t, f2 + t)
    a('s_waitcnt lgkmcnt(4)')
    for t in range(2):
        a('v_mul_f32 v%d, v%d, v%d', l1 + t, f1 + t, vO + 16 * t + 8)
    for t in range(2):
        a('v_fmac_f32 v%d, v%d, v%d', l1 + t, f2 + t, R + 16 * t + 8)
    for t in range(2):
        a('v_mov_b32 v%d, v%d', l2 + t, l1 + t)
    a('s_nop 0')
    for t in range(2):
        a('v_permlane32_swap_b32 v%d, v%d', l1 + t, l2 + t)
    for t in range(2):
        a('v_rcp_f32 v%d, v%d', l2 + t, l2 + t)
    a('s_waitcnt lgkmcnt(0)')
    setpw(5, vT + 8)
    for t in range(2):
        a('v_mul_f32 v%d, v%d, v%d', f1 + t, f1 + t, l2 + t)
        a('v_mul_f32 v%d, v%d, v%d', f2 + t, f2 + t, l2 + t)
    P = KV[0]
    for t in range(2):
        for r in range(12):
            a('v_mul_f32 v%d, v%d, v%d', vO + 16 * t + r, f1 + t, vO + 16 * t + r)
        for r in range(12):
            a('v_fmac_f32 v%d, v%d, v%d', vO + 16 * t + r, f2 + t, R + 16 * t + r)
        for q in range(6):
            a('v_cvt_pk_bf16_f32 v%d, v%d, v%d', P + 8 * t + q, vO + 16 * t + 2 * q, vO + 16 * t + 2 * q + 1)
        a('buffer_store_dwordx4 %s, v%d, s[%d:%d], s%d offen sc1', v(P + 8 * t, 4), vT + 10, RWS, RWS + 3, 85 + t)
    a('s_nop 0')
    a('v_permlane32_swap_b32 v%d, v%d', P + 4, P + 12)
    a('v_permlane32_swap_b32 v%d, v%d', P + 5, P + 13)
    a('buffer_store_dwordx2 %s, v%d, s[%d:%d], s84 offen offset:512 sc1', v(P + 4, 2), vT + 11, RWS, RWS + 3)
    stamp('A', 'merge')

def a_outproj():
    vA0, vA1, vOA, vST = 240, 241, 242, 244
    a('v_lshrrev_b32 v1, 5, v%d', vLANE)
    a('v_bfe_u32 v2, v%d, 2, 3', vLANE)
    a('v_lshl_add_u32 v1, v1, 4, v2')
    a('v_mul_u32_u24 v1, 160, v1')
    a('v_and_b32 v2, 3, v%d', vLANE)
    a('v_lshl_add_u32 v%d, v2, 3, v1', vA0)
    a('v_add_u32 v%d, %d, v%d', vA1, 10 * 5120, vA0)
    a('v_lshlrev_b32 v%d, 4, v%d', vOA, vLANE)
    a('v_lshrrev_b32 v1, 4, v%d', vLANE)
    a('v_mul_u32_u24 v1, %d, v1', 4 * 5120)
    a('v_and_b32 v2, 15, v%d', vLANE)
    a('v_lshl_add_u32 v%d, v2, 2, v1', vST)
    for r in range(1, 4):
        a('v_add_u32 v%d, %d, v%d', vST + r, 5120 * r, vST)
    a('s_mul_i32 s84, s%d, 2560', sOG)
    a('v_min_u32 v140, 19, v%d', vLANE)
    a('v_lshl_add_u32 v140, v140, 7, s84')
    a('s_lshl2_add_u32 s84, s%d, s%d', sTB, sW)
    a('s_mul_i32 s85, s84, %d', OBLK)
    a('s_add_u32 s85, s85, 0x%x', WS_O)
    a('s_mul_i32 s86, s84, %d', 16 * 5120)
    a('s_mul_i32 s88, s%d, 320', sOG)
    a('s_add_u32 s86, s86, s88')
    a('v_lshlrev_b32 v%d, 7, v%d', vOA + 1, vLANE)
    a('s_lshl_b32 s88, s%d, 12', sTB)
    a('s_add_u32 s88, s88, 0x%x', F4)
    a('s_waitcnt vmcnt(0)')
    stamp('A', 'odrain')
    setflag(87, 1)
    acc, WF = 80, [100, 120]
    def reads(ks):
        f = WF[ks & 1]
        base, off = (vA0, ks * 5120) if ks < 10 else (vA1, (ks - 10) * 5120)
        return ['ds_read_b64_tr_b16 %s, v%d offset:%d' % (v(f + 4 * j + 2 * rd, 2), base, off + 1280 * rd + 32 * j)
                for j in range(5) for rd in range(2)]
    a('s_cmp_eq_u32 s%d, 0', sW)
    a('s_cbranch_scc0 L_f4wait')
    a('s_mov_b32 exec_hi, 0')
    pollflags(['buffer_load_dword v1, v%d, s[%d:%d], s88 offen sc1' % (vOA + 1, RWS, RWS + 3)], 1, sleep=OPT['psleep4'])
    setpw(6, 1)
    a.label('L_f4wait')
    waitpw(vAPW + 1, 6, 1, sleep=1)
    stamp('A', 'f4')
    a('buffer_load_dword v141, v140, s[%d:%d], s85 offen sc1', RWS, RWS + 3)
    for ks in range(20):
        a('buffer_load_dwordx4 %s, v%d, s[%d:%d], s85 offen offset:%d sc1', v(4 * ks, 4), vOA, RWS, RWS + 3, 1024 * (ks & 3))
        if ks & 3 == 3 and ks < 19:
            a('s_add_u32 s85, s85, 4096')
    for r in reads(0):
        a(r)
    for ks in range(20):
        rr = reads(ks + 1) if ks < 19 else []
        a('s_waitcnt vmcnt(%d) lgkmcnt(0)', 19 - ks)
        for j in range(5):
            a('v_mfma_f32_16x16x32_bf16 %s, %s, %s, %s', v(acc + 4 * j, 4), v(4 * ks, 4), v(WF[ks & 1] + 4 * j, 4),
              '0' if ks == 0 else v(acc + 4 * j, 4))
            for r in rr[4 * j:4 * j + 4]:
                a(r)
    a('s_nop 3')
    for j in range(5):
        for r in range(4):
            a('buffer_store_dword v%d, v%d, s[%d:%d], s86 offen offset:%d', acc + 4 * j + r, vST + r, R4, R4 + 3, 64 * j)
    finish('A')

vDX, vDW, vDBX, vDBB = 236, 240, 244, 248
vSPW = 252
vL8, vL128 = 228, 232

def dma(voff, r, soff, imm):
    return 'buffer_load_dwordx4 v%d, s[%d:%d], s%d offen offset:%d lds' % (voff, r, r + 3, soff, imm)

def s_stage(t, emit=None):
    out = []
    slot = (t % 4) * 32768
    out.append('s_add_u32 m0, s74, %d' % slot)
    out.append('s_lshl_b32 s83, s82, 7')
    out.append('s_add_u32 s76, s72, s83')
    if t < 10:
        out += [dma(vDX + i, R0, 76, 1024 * i) for i in range(4)]
        out.append('s_add_u32 m0, s74, %d' % (slot + 16384))
        out.append('s_mul_i32 s83, s82, 245760')
        out.append('s_add_u32 s76, s73, s83')
        out += [dma(vDW + i, R1, 76, 1024 * i) for i in range(4)]
    else:
        out += [dma(vDBX + i, R3, 76, 1024 * i) for i in range(4)]
        out.append('s_add_u32 m0, s75, %d' % (slot + 16384))
        out.append('s_add_u32 s76, s77, s83')
        out += [dma(vDBB + i, R4, 76, 1024 * i) for i in range(3)]
    out.append('s_add_u32 s82, s82, 1')
    out.append('s_cmp_eq_u32 s82, 10')
    out.append('s_cselect_b32 s82, 0, s82')
    if emit is None:
        for o in out:
            a(o)
    return out

def ninstr(t):
    return 0 if t > 19 else (8 if t < 10 else 7)

def exp_acc(dst, x, t1, t2):
    L2E = math.log2(math.e)
    hi = struct.unpack('<f', struct.pack('<f', L2E))[0]
    a('s_mov_b32 s80, 0x%x', f2u(hi))
    a('v_mul_f32 v%d, s80, v%d', t1, x)
    a('v_fma_f32 v%d, v%d, s80, -v%d', t2, x, t1)
    a('v_fmac_f32 v%d, 0x%x, v%d', t2, f2u(L2E - hi), x)
    a('v_exp_f32 v%d, v%d', dst, t1)
    a('v_mul_f32 v%d, 0x%x, v%d', t2, f2u(math.log(2.0)), t2)
    a('v_fmac_f32 v%d, v%d, v%d', dst, dst, t2)

def s_setup():
    a.label('L_roleS')
    a('s_sub_u32 s%d, s%d, 4', sW, sW)
    stamp('S', 'start')
    a('s_cmp_eq_u32 s%d, 15', sCG)
    a('s_cselect_b32 s70, 0, 0x%x', 2048 * 1280)
    a('s_cselect_b32 s71, 0, 0x%x', 640 * 3840)
    srd(R0, sAX, 's70')
    srd(R1, sWQ, 's71')
    a('v_lshrrev_b32 v1, 3, v%d', vLANE)
    a('v_and_b32 v2, 7, v%d', vLANE)
    a('v_lshrrev_b32 v3, 4, v%d', vLANE)
    a('v_xor_b32 v4, v2, v3')
    a('v_mul_u32_u24 v5, 1280, v1')
    a('v_lshl_add_u32 v%d, v4, 4, v5', vDX)
    a('v_xor_b32 v6, 64, v%d', vDX)
    a('v_add_u32 v%d, %d, v6', vDX + 1, 10240 - 1024)
    a('v_add_u32 v%d, %d, v%d', vDX + 2, 2 * (10240 - 1024), vDX)
    a('v_add_u32 v%d, %d, v6', vDX + 3, 3 * (10240 - 1024))
    a('v_and_b32 v7, 15, v%d', vLANE)
    a('v_lshlrev_b32 v8, 2, v3')
    a('v_xor_b32 v7, v7, v8')
    a('v_mul_u32_u24 v8, 3840, v3')
    a('v_lshl_add_u32 v%d, v7, 4, v8', vDW)
    for i in range(1, 4):
        a('v_add_u32 v%d, %d, v%d', vDW + i, (15360 - 1024) * i, vDW)
    a('s_lshl2_add_u32 s72, s%d, s%d', sRB, sW)
    a('s_mul_i32 s72, s72, %d', 32 * 1280)
    a('s_mul_i32 s73, s%d, %d', sW, 16 * 3840)
    a('s_lshl_b32 s70, s%d, 8', sCG)
    a('s_add_u32 s73, s73, s70')
    a('s_lshl_b32 s74, s%d, 12', sW)
    if OPT['stag'] == 1:
        a('s_and_b32 s82, s%d, 3', sI)
        a('s_lshl1_add_u32 s82, s82, s%d', sOG)
        a('s_and_b32 s82, s82, 7')
        a('s_mul_i32 s82, s82, 5')
        a('s_lshr_b32 s82, s82, 2')
    elif OPT['stag'] == 4:
        a('s_and_b32 s82, s%d, 3', sI)
        a('s_mul_i32 s82, s82, 5')
        a('s_lshr_b32 s82, s82, 1')
        a('s_mul_i32 s83, s%d, 5', sOG)
        a('s_lshr_b32 s83, s83, 2')
        a('s_add_u32 s82, s82, s83')
        a('s_add_u32 s83, s%d, 1', sXCD)
        a('s_lshr_b32 s83, s83, 1')
        a('s_add_u32 s82, s82, s83')
        a('s_cmp_ge_u32 s82, 10')
        a('s_cselect_b32 s83, 10, 0')
        a('s_sub_u32 s82, s82, s83')
    elif OPT['stag'] == 2:
        a('s_add_u32 s82, s%d, s%d', sI, sOG)
        a('s_and_b32 s82, s82, 1')
        a('s_mul_i32 s82, s82, 5')
    elif OPT['stag'] == 3:
        a('s_add_u32 s82, s%d, s%d', sI, sOG)
        a('s_and_b32 s82, s82, 3')
        a('s_mul_i32 s82, s82, 5')
        a('s_lshr_b32 s82, s82, 1')
    else:
        a('s_mov_b32 s82, 0')
    if OPT['fine']:
        stamp('S', 'setup')
    s_stage(0)
    if OPT['fine']:
        stamp('S', 'iss0')
    a('s_mul_i32 s70, s%d, 40', sCG)
    a('v_min_u32 v9, 39, v%d', vLANE)
    a('v_add_lshl_u32 v9, v9, s70, 1')
    a('global_load_ushort v10, v9, s[%d:%d]', sLDT, sLDT + 1)
    a('global_load_ushort v11, v9, s[%d:%d]', sLRE, sLRE + 1)
    a('global_load_ushort v12, v9, s[%d:%d]', sLIM, sLIM + 1)
    s_stage(1)
    if OPT['fine']:
        stamp('S', 'iss1')
    srd(R3, sBX, 2048 * 1280)
    a('s_cmp_ge_u32 s%d, 2', sW)
    a('s_cselect_b32 s70, s%d, s%d', sBIM, sBRE)
    a('s_cselect_b32 s71, s%d, s%d', sBIM + 1, sBRE + 1)
    srd(R4, 70, 640 * 1280)
    a('v_and_b32 v5, 3, v1')
    a('v_lshrrev_b32 v6, 2, v1')
    a('v_lshl_add_u32 v5, v6, 3, v5')
    a('v_mul_u32_u24 v5, 1280, v5')
    a('v_lshl_add_u32 v%d, v4, 4, v5', vDBX)
    a('v_xor_b32 v6, 64, v%d', vDBX)
    a('v_add_u32 v%d, %d, v6', vDBX + 1, 16 * 1280 - 1024)
    a('v_add_u32 v%d, %d, v%d', vDBX + 2, 4 * 1280 - 2048, vDBX)
    a('v_add_u32 v%d, %d, v6', vDBX + 3, 20 * 1280 - 3072)
    a('s_lshr_b32 s70, s%d, 1', sW)
    a('s_lshl_b32 s71, s70, 6')
    a('v_xor_b32 v%d, s71, v%d', vDBB, vDX)
    for i in range(1, 3):
        a('v_add_u32 v%d, %d, v%d', vDBB + i, (10240 - 1024) * i, vDBB)
    a('s_and_b32 s71, s%d, 1', sW)
    a('s_mul_i32 s75, s70, 5120')
    a('s_lshl_b32 s77, s71, 11')
    a('s_add_u32 s75, s75, s77')
    a('s_mul_i32 s77, s%d, %d', sCG, 40 * 1280)
    a('s_mul_i32 s71, s71, %d', 16 * 1280)
    a('s_add_u32 s77, s77, s71')
    a('v_and_b32 v5, 3, v%d', vLANE)
    a('v_lshlrev_b32 v5, 8, v5')
    a('v_lshl_add_u32 v5, v%d, 2, v5', vLANE)
    a('v_add_u32 v%d, %d, v5', vSPW, L_PW + 1024)
    s_stage(2)
    if OPT['fine']:
        stamp('S', 'iss2')
    a('s_waitcnt vmcnt(16)')
    stamp('S', 'st0')
    a('s_barrier')
    s_stage(3)

def s_params():
    a('s_cmp_eq_u32 s%d, 0', sW)
    a('s_cbranch_scc0 L_nopar')
    for r in (10, 11, 12):
        a('v_lshlrev_b32 v%d, 16, v%d', r, r)
    exp_acc(13, 10, 14, 15)
    a('v_cvt_pk_bf16_f32 v13, v13, v13')
    a('v_and_b32 v13, 0xffff0000, v13')
    a('v_mul_f32 v14, v13, v11')
    a('v_mul_f32 v15, v13, v12')
    exp_acc(16, 14, 17, 18)
    I2P = 1.0 / (2 * math.pi)
    hi = struct.unpack('<f', struct.pack('<f', I2P))[0]
    a('s_mov_b32 s80, 0x%x', f2u(hi))
    a('v_mul_f32 v17, s80, v15')
    a('v_rndne_f32 v17, v17')
    a('v_fma_f32 v17, v15, s80, -v17')
    a('v_fmac_f32 v17, 0x%x, v15', f2u(I2P - hi))
    a('v_cos_f32 v20, v17')
    a('v_sin_f32 v21, v17')
    a('v_mul_f32 v18, v11, v11')
    a('v_fmac_f32 v18, v12, v12')
    a('v_rcp_f32 v19, v18')
    a('v_mul_f32 v20, v16, v20')
    a('v_mul_f32 v21, v16, v21')
    a('v_fma_f32 v18, -v18, v19, 1.0')
    a('v_fmac_f32 v19, v19, v18')
    a('v_add_f32 v19, v19, v19')
    a('v_add_f32 v17, -1.0, v20')
    a('v_mul_f32 v22, v17, v11')
    a('v_fmac_f32 v22, v21, v12')
    a('v_mul_f32 v23, v17, v12')
    a('v_fma_f32 v23, -v21, v11, v23')
    a('v_mul_f32 v22, v22, v19')
    a('v_mul_f32 v23, v23, v19')
    a('v_lshlrev_b32 v9, 4, v%d', vLANE)
    a('v_add_u32 v9, %d, v9', L_PAR)
    a('ds_write_b128 v9, v[20:23]')
    a('v_mov_b32 v24, v20')
    a('v_sub_f32 v25, 0, v21')
    for k in range(7):
        a('v_mul_f32 v26, v25, v25')
        a('v_add_f32 v27, v24, v24')
        a('v_fma_f32 v24, v24, v24, -v26')
        a('v_mul_f32 v25, v27, v25')
        if k in (2, 6):
            d = vL8 if k == 2 else vL128
            a('v_mov_b32 v%d, v24', d)
            a('v_mov_b32 v%d, v24', d + 1)
            a('v_sub_f32 v%d, 0, v25', d + 2)
            a('v_mov_b32 v%d, v25', d + 3)
    a('s_waitcnt lgkmcnt(0)')
    a.label('L_nopar')

vWOA = 220

def s_wooffs():
    for i in range(5):
        a('v_add_u32 v40, %d, v%d', 64 * i, vLANE)
        a('v_mul_u32_u24 v41, 6554, v40')
        a('v_lshrrev_b32 v41, 16, v41')
        a('v_mul_u32_u24 v42, 10, v41')
        a('v_sub_u32 v40, v40, v42')
        tau(42, 41, 43)
        a('v_mul_u32_u24 v42, 1280, v42')
        a('v_lshl_add_u32 v%d, v40, 4, v42', vWOA + i)
        if 0 < i < 4:
            a('v_subrev_u32 v%d, %d, v%d', vWOA + i, 1024 * i, vWOA + i)

def s_qloader():
    for st in range(1, 10):
        out = {7: 16, 8: 8 + 9, 9: 9}.get(st, 16)
        a('s_waitcnt vmcnt(%d)', out)
        if OPT['fine'] and st in (1, 3, 5, 7, 9):
            stamp('S', 'st%d' % st)
        a('s_barrier')
        if st == 7:
            a('v_and_b32 v32, 15, v%d', vLANE)
            a('v_lshlrev_b32 v32, 2, v32')
            a(dbgload(32, 33))
        if st <= 7:
            s_stage(st + 3)
        if st == 7:
            a('s_cmp_eq_u32 s%d, 1', sW)
            a('s_cselect_b32 s70, s%d, s%d', sCIM, sCRE)
            a('s_cselect_b32 s71, s%d, s%d', sCIM + 1, sCRE + 1)
            a('s_cmp_ge_u32 s%d, 2', sW)
            a('s_cselect_b32 s70, s%d, s70', sWO)
            a('s_cselect_b32 s71, s%d, s71', sWO + 1)
            a('s_mul_i32 s83, s2, 3200')
            a('v_min_u32 v30, 24, v%d', vLANE)
            a('v_lshl_add_u32 v30, v30, 7, s83')
            a('global_load_dword v31, v30, s[70:71]')
        if st == 8:
            s_params()
        if st == 9:
            s_wooffs()
    a('s_waitcnt vmcnt(8)')
    a('v_cmp_eq_u32 vcc, 0, v33')
    a('s_cbranch_vccz L_clrok')
    pollflags([dbgload(32, 33)], 33)
    a.label('L_clrok')
    a('s_barrier')
    stamp('S', 'qend')

vPAR = 200

def s_b1():
    F = [40, 68]
    vXR, vBR = 96, 100
    a('v_and_b32 v1, 15, v%d', vLANE)
    a('v_lshrrev_b32 v2, 4, v%d', vLANE)
    a('v_lshrrev_b32 v3, 1, v1')
    a('v_xor_b32 v3, v3, v2')
    a('v_lshlrev_b32 v3, 4, v3')
    a('v_lshl_add_u32 v4, v1, 7, v3')
    a('v_add_u32 v%d, s74, v4', vXR)
    a('v_xor_b32 v%d, 64, v%d', vXR + 1, vXR)
    a('v_lshrrev_b32 v5, 3, v1')
    a('v_lshl_add_u32 v4, v5, 12, v4')
    a('v_add_u32 v%d, 16384, v4', vBR)
    a('v_xor_b32 v%d, 64, v%d', vBR + 1, vBR)
    for k in range(2):
        a('v_add_u32 v%d, 0x10000, v%d', vXR + 2 + k, vXR + k)
        a('v_add_u32 v%d, 0x10000, v%d', vBR + 2 + k, vBR + k)
    a('v_and_b32 v6, 7, v%d', vLANE)
    a('v_lshlrev_b32 v6, 4, v6')
    a('v_add_u32 v6, %d, v6', L_PAR)
    for j in range(5):
        a('ds_read_b128 %s, v6 offset:%d', v(vPAR + 4 * j, 4), 128 * j)
    a('v_lshlrev_b32 v5, 31, v5')
    a('s_waitcnt lgkmcnt(0)')
    for j in range(5):
        a('v_xor_b32 v%d, v5, v%d', vPAR + 4 * j + 1, vPAR + 4 * j + 1)
        a('v_xor_b32 v%d, v5, v%d', vPAR + 4 * j + 2, vPAR + 4 * j + 2)
    def reads(t, ks, f):
        slot = t % 4
        hi, lo = slot >> 1, (slot & 1) * 32768
        r = ['ds_read_b128 %s, v%d offset:%d' % (v(f + 4 * T, 4), vXR + 2 * hi + ks, lo + 2048 * T) for T in range(2)]
        r += ['ds_read_b128 %s, v%d offset:%d' % (v(f + 8 + 4 * j, 4), vBR + 2 * hi + ks, lo + 1024 * j) for j in range(5)]
        return r
    def mfmas(f, first):
        return ['v_mfma_f32_16x16x32_bf16 %s, %s, %s, %s' % (v(8 * j + 4 * T, 4), v(f + 4 * T, 4), v(f + 8 + 4 * j, 4),
                '0' if first else v(8 * j + 4 * T, 4)) for j in range(5) for T in range(2)]
    def weave(ms, others):
        n = len(ms)
        k = 0
        for i_, m in enumerate(ms):
            a(m)
            while k < len(others) * (i_ + 1) // n:
                a(others[k])
                k += 1
    DEP = OPT['b1dep']
    q = [10]
    def vmwait(t):
        n = sum(7 for x in q if x > t)
        return n
    a('s_waitcnt vmcnt(0)')
    setpw(1, 104)
    if OPT['hold']:
        a('v_subrev_u32 v106, 1024, v%d', vPW)
        waitpw(106, 1, 105, sleep=1)
    for t in range(11, 11 + DEP - 1):
        s_stage(t)
        q.append(t)
    waitpw(vSPW, 1, 105)
    for r in reads(10, 0, F[0]):
        a(r)
    for u in range(10):
        t = 10 + u
        if OPT['fine'] and u in (0, 3, 6, 9):
            stamp('S', 'b1w%d' % u)
        for r in reads(t, 1, F[1]):
            a(r)
        nt = t + DEP
        st_ = s_stage(nt, emit=False) if nt <= 19 else []
        m0_ = mfmas(F[0], u == 0)
        a('s_waitcnt lgkmcnt(7)')
        weave(m0_, st_)
        if nt <= 19:
            q.append(nt)
        m1_ = mfmas(F[1], False)
        if u < 9:
            a('s_waitcnt vmcnt(%d) lgkmcnt(0)', vmwait(t + 1))
            setpw(u + 2, 104)
            for m in m1_[:5]:
                a(m)
            waitpw(vSPW, u + 2, 105)
            weave(m1_[5:], reads(t + 1, 0, F[0]))
        else:
            a('s_waitcnt lgkmcnt(0)')
            for m in m1_:
                a(m)
    stamp('S', 'b1gemm')

def s_scan():
    ROR = 'row_ror:8 row_mask:0xf bank_mask:0xf'
    a('s_setprio 1')
    vE = 106
    a('v_and_b32 v100, 7, v%d', vLANE)
    a('v_bfe_u32 v101, v%d, 3, 1', vLANE)
    a('v_lshlrev_b32 v101, 2, v101')
    a('v_lshl_add_u32 v100, v100, 3, v101')
    a('v_lshrrev_b32 v101, 4, v%d', vLANE)
    a('v_mul_u32_u24 v101, 320, v101')
    a('s_mul_i32 s70, s%d, 1280', sW)
    a('s_add_u32 s70, s70, %d', L_EL)
    a('v_add3_u32 v%d, v100, v101, s70', vE)
    tmp = 40
    for j in range(5):
        for k in range(8):
            a('v_mul_f32_dpp v%d, v%d, v%d %s', tmp + k, 8 * j + k, vPAR + 4 * j + 3, ROR)
        for k in range(8):
            a('v_fma_f32 v%d, v%d, v%d, v%d', 8 * j + k, vPAR + 4 * j + 2, 8 * j + k, tmp + k)
    e = [[8 * j for j in range(5)], [50 + j for j in range(5)], [56 + j for j in range(5)]]
    cur = e[0]
    for k in range(1, 8):
        nx = e[1 + (k & 1)]
        for j in range(5):
            a('v_fma_f32 v%d, v%d, v%d, v%d', nx[j], vPAR + 4 * j, cur[j], 8 * j + k)
        for j in range(5):
            a('v_fmac_f32_dpp v%d, v%d, v%d %s', nx[j], cur[j], vPAR + 4 * j + 1, ROR)
        cur = nx
    for j in range(5):
        a('ds_write_b32 v%d, v%d offset:%d', vE, cur[j], 64 * j)
    a('s_waitcnt lgkmcnt(0)')
    setpw(11, 104)
    stamp('S', 'pass1')
    a('s_cmp_eq_u32 s%d, 0', sW)
    a('s_cbranch_scc0 L_nocol')
    def chain(dst, src, L, add):
        a('v_fma_f32 v%d, v%d, v%d, v%d', dst, L, src, add)
        a('v_fma_f32 v%d, v%d, v%d, v%d', dst + 1, L, src + 1, add + 1)
        a('v_fmac_f32 v%d, v%d, v%d', dst, L + 2, src + 1)
        a('v_fmac_f32 v%d, v%d, v%d', dst + 1, L + 3, src)
    a('s_lshl_b32 s70, s%d, 13', sCG)
    a('s_add_u32 s70, s70, 0x%x', WS_E)
    a('s_add_u32 s70, s70, s%d', sWS)
    a('s_addc_u32 s71, s%d, 0', sWS + 1)
    srd(R5, 70, 8192)
    a('s_sub_u32 s70, 15, s%d', sRB)
    a('s_lshl_b32 s70, s70, 9')
    a('s_add_u32 s71, s70, 4096')
    a('s_lshl_b32 s78, s%d, 11', sCG)
    a('s_add_u32 s78, s78, 0x%x', F2)
    a('s_lshl_b32 s79, s%d, 7', sRB)
    a('s_add_u32 s79, s79, s78')
    a('v_lshlrev_b32 v102, 3, v%d', vLANE)
    a('v_add_u32 v103, %d, v102', L_EL)
    waitpw(vSPW, 11, 105, sleep=1)
    ES, EG, PP = 110, 142, 172
    for sg in range(16):
        a('ds_read_b64 %s, v103 offset:%d', v(ES + 2 * sg, 2), 320 * sg)
    a('s_waitcnt lgkmcnt(0)')
    src = ES
    for sg in range(1, 16):
        dst = PP + 2 * (sg & 1)
        chain(dst, src, vL8, ES + 2 * sg)
        src = dst
    a('s_mov_b32 exec_hi, 0xff')
    a('buffer_store_dwordx2 %s, v102, s[%d:%d], s70 offen sc1', v(src, 2), R5, R5 + 3)
    a('s_mov_b32 exec_hi, -1')
    a('s_waitcnt vmcnt(0)')
    setflag(79, 101)
    a('v_lshlrev_b32 v100, 7, v%d', vLANE)
    a('s_cmp_eq_u32 s%d, 0', sRB)
    a('s_cbranch_scc1 L_nof2')
    a('s_bfm_b64 exec, s%d, 0', sRB)
    pollflags(['buffer_load_dword v101, v100, s[%d:%d], s78 offen sc1' % (RWS, RWS + 3)], 101, sleep=4)
    a.label('L_nof2')
    a('s_mov_b32 exec_hi, 0xff')
    for k in range(15, 0, -1):
        a('buffer_load_dwordx2 %s, v102, s[%d:%d], s%d offen offset:%d sc1', v(EG + 2 * (15 - k), 2), R5, R5 + 3,
          71 if k >= 8 else 70, 512 * (k & 7))
    a('v_add_u32 v103, %d, v102', L_PL)
    a('s_waitcnt vmcnt(0)')
    src = EG
    for n in range(1, 15):
        dst = PP + 2 * (n & 1)
        chain(dst, src, vL128, EG + 2 * n)
        src = dst
    for sg in range(16):
        a('ds_write_b64 v103, %s offset:%d', v(src, 2), 320 * sg)
        if sg < 15:
            dst = EG + 2 * sg
            chain(dst, src, vL8, ES + 2 * sg)
            src = dst
    a('s_mov_b32 exec_hi, -1')
    a('s_waitcnt lgkmcnt(0)')
    setpw(12, 104)
    a('s_branch L_coldone')
    a.label('L_nocol')
    srd(R0, sWO, 640 * 1280)
    a('s_cmp_eq_u32 s%d, 2', sW)
    a('s_cselect_b32 s70, s%d, s%d', sCRE, sCIM)
    a('s_cselect_b32 s71, s%d, s%d', sCRE + 1, sCIM + 1)
    a('s_cmp_eq_u32 s%d, 1', sW)
    a('s_cselect_b32 s70, s%d, s70', sWO)
    a('s_cselect_b32 s71, s%d, s71', sWO + 1)
    a('s_mul_i32 s78, s%d, 25600', sI)
    a('v_min_u32 v100, 49, v%d', vLANE)
    a('v_lshl_add_u32 v100, v100, 7, s78')
    for k in range(4):
        if OPT['cpre']:
            a('global_load_dword v101, v100, s[70:71]')
            if k < 3:
                a('v_add_u32 v100, 6400, v100')
            a('s_waitcnt vmcnt(0)')
    waitpw(vSPW, 11, 105, sleep=2)
    a('s_sub_u32 s78, s%d, 1', sW)
    a('s_mul_i32 s79, s78, 40960')
    a('s_mul_i32 s70, s%d, 160', sOG)
    a('s_add_u32 s79, s79, s70')
    a('s_mul_i32 s78, s78, 5120')
    a.label('L_woloop')
    a('s_mov_b32 m0, s78')
    a('s_add_u32 s70, s78, 4096')
    for i in range(4):
        a(dma(vWOA + i, R0, 79, 1024 * i))
    a('s_mov_b32 m0, s70')
    a('s_add_u32 s78, s78, %d', 3 * 5120)
    a(dma(vWOA + 4, R0, 79, 0))
    a('s_add_u32 s79, s79, %d', 3 * 40960)
    a('s_waitcnt vmcnt(%d)', OPT['thr'] // 2)
    a('s_cmp_lt_u32 s78, %d', 20 * 5120)
    a('s_cbranch_scc1 L_woloop')
    a.label('L_coldone')
    a('v_lshlrev_b32 v100, 2, v%d', vLANE)
    a('v_add_u32 v100, %d, v100', L_PW + 1024)
    a('v_and_b32 v101, 15, v%d', vLANE)
    a('v_lshrrev_b32 v102, 4, v%d', vLANE)
    a('v_bfe_u32 v103, v%d, 1, 2', vLANE)
    a('v_xor_b32 v103, v103, v102')
    a('v_lshlrev_b32 v103, 4, v103')
    a('s_mul_i32 s70, s%d, 5120', sW)
    a('s_add_u32 s70, s70, %d', L_HT)
    a('v_lshl_add_u32 v107, v101, 6, v103')
    a('v_add_u32 v107, s70, v107')
    a('v_bfe_u32 v103, v%d, 2, 2', vLANE)
    a('v_lshrrev_b32 v108, 5, v%d', vLANE)
    a('v_lshl_add_u32 v109, v108, 3, v103')
    a('v_lshlrev_b32 v109, 6, v109')
    a('v_lshrrev_b32 v103, 1, v103')
    a('v_bfe_u32 v110, v%d, 4, 1', vLANE)
    a('v_bfe_u32 v111, v%d, 1, 1', vLANE)
    a('v_lshl_add_u32 v111, v110, 1, v111')
    a('v_xor_b32 v111, v111, v103')
    a('v_lshl_add_u32 v109, v111, 4, v109')
    a('v_and_b32 v111, 1, v%d', vLANE)
    a('v_lshl_add_u32 v109, v111, 3, v109')
    a('v_xor_b32 v112, 32, v109')
    a('v_add_u32 v109, s70, v109')
    a('v_add_u32 v112, s70, v112')
    a('v_mul_u32_u24 v110, %d, v110', HBLK)
    a('v_mul_u32_u24 v108, %d, v108', 80 * 256)
    a('v_lshl_add_u32 v110, v101, 4, v110')
    a('v_add_u32 v110, v110, v108')
    a('s_lshl2_add_u32 s70, s%d, s%d', sRB, sW)
    a('s_mul_i32 s71, s70, %d', 2 * HBLK)
    a('s_mul_i32 s78, s%d, 1280', sCG)
    a('s_add_u32 s71, s71, s78')
    a('s_add_u32 s71, s71, 0x%x', WS_H)
    a('s_lshl4_add_u32 s70, s70, s%d', sCG)
    flagaddr(70, 70, F3, 78)
    waitpw(100, 12, 105, sleep=4)
    stamp('S', 'carry')
    for j in range(5):
        a('ds_read_b32 v%d, v%d offset:%d', 50 + j, vE, L_PL - L_EL + 64 * j)
    a('s_waitcnt lgkmcnt(0)')
    for k in range(8):
        pr = [50 + j if k == 0 else 8 * j + k - 1 for j in range(5)]
        for j in range(5):
            a('v_fmac_f32 v%d, v%d, v%d', 8 * j + k, vPAR + 4 * j, pr[j])
        for j in range(5):
            a('v_fmac_f32_dpp v%d, v%d, v%d %s', 8 * j + k, pr[j], vPAR + 4 * j + 1, ROR)
    for j in range(5):
        for q in range(4):
            a('v_cvt_pk_bf16_f32 v%d, v%d, v%d', 60 + 4 * j + q, 8 * j + 2 * q, 8 * j + 2 * q + 1)
        a('ds_write_b128 v107, %s offset:%d', v(60 + 4 * j, 4), 1024 * j)
    a('s_waitcnt lgkmcnt(0)')
    for j in range(5):
        a('ds_read_b64_tr_b16 %s, v109 offset:%d', v(4 * j, 2), 1024 * j)
        a('ds_read_b64_tr_b16 %s, v112 offset:%d', v(4 * j + 2, 2), 1024 * j + 256)
    for j in range(5):
        a('s_waitcnt lgkmcnt(%d)', 8 - 2 * j)
        a('buffer_store_dwordx4 %s, v110, s[%d:%d], s71 offen offset:%d sc1', v(4 * j, 4), RWS, RWS + 3, 256 * j)
    setpw(13, 104)

def s_b3():
    vCA, vCR, vHA = 232, 234, 236
    acc, HF, CF = 0, 80, [208, 216]
    a('s_cmp_ge_u32 s%d, 2', sW)
    a('s_cselect_b32 s78, s%d, s%d', sCIM, sCRE)
    a('s_cselect_b32 s79, s%d, s%d', sCIM + 1, sCRE + 1)
    srd(R1, 78, 640 * 1280)
    srd(R6, sOUT, 2048 * 1280 * 4)
    a('v_mov_b32 v%d, v%d', vCA, vDX)
    a('v_mov_b32 v%d, v%d', vCA + 1, vDX + 1)
    a('v_and_b32 v40, 15, v%d', vLANE)
    a('v_lshrrev_b32 v41, 4, v%d', vLANE)
    a('v_lshrrev_b32 v42, 1, v40')
    a('v_xor_b32 v42, v42, v41')
    a('v_lshlrev_b32 v42, 4, v42')
    a('v_lshl_add_u32 v42, v40, 7, v42')
    a('s_mul_i32 s74, s%d, %d', sW, REGSZ)
    a('s_add_u32 s74, s74, %d', L_REG)
    a('v_xor_b32 v43, 64, v42')
    a('v_add_u32 v%d, s74, v42', vCR)
    a('v_add_u32 v%d, s74, v43', vCR + 1)
    a('v_lshlrev_b32 v%d, 4, v%d', vHA, vLANE)
    a('s_and_b32 s78, s%d, 1', sW)
    a('s_mul_i32 s72, s%d, %d', sOG, 80 * 1280)
    a('s_mul_i32 s73, s78, 640')
    a('s_add_u32 s72, s72, s73')
    a('s_mul_i32 s79, s%d, %d', sW, 40 * 256)
    a('s_add_u32 s79, s79, 0x%x', WS_H)
    a('s_lshl_b32 s78, s78, 1')
    for l in range(4):
        a('s_xor_b32 s80, s78, %d', l)
        a('s_lshl2_add_u32 s80, s%d, s80', sTB)
        a('s_mul_i32 s80, s80, %d', HBLK)
        a('s_add_u32 s%d, s80, s79', 84 + l)
    a('v_lshlrev_b32 v%d, 7, v%d', vHA + 1, vLANE)
    a('s_lshl_b32 s88, s%d, 12', sTB)
    a('s_add_u32 s88, s88, 0x%x', F3)
    a('s_waitcnt vmcnt(0)')
    setflag(70, 40)
    stamp('S', 'hpub')
    waitpw(vSPW, 13, 40, sleep=2)
    def cdma(n):
        kp, j = divmod(n, 5)
        a('s_add_u32 m0, s74, %d', 2048 * (n % 4))
        a('s_add_u32 s76, s72, %d', 16 * 1280 * j + 128 * kp)
        a(dma(vCA, R1, 76, 0))
        a(dma(vCA + 1, R1, 76, 1024))
    for n in range(4):
        cdma(n)
    a('s_waitcnt vmcnt(0)')
    setpw(14, 40)
    a('s_cmp_eq_u32 s%d, 0', sW)
    a('s_cbranch_scc0 L_f3wait')
    a('s_mov_b32 exec_hi, 0')
    pollflags(['buffer_load_dword v40, v%d, s[%d:%d], s88 offen sc1' % (vHA + 1, RWS, RWS + 3)], 40, sleep=4)
    setpw(15, 40)
    a.label('L_f3wait')
    a('v_lshlrev_b32 v41, 2, v%d', vLANE)
    a('v_add_u32 v41, %d, v41', L_PW + 1024)
    waitpw(41, 15, 40, sleep=8)
    stamp('S', 'f3')
    def hload(l, ks):
        return 'buffer_load_dwordx4 %s, v%d, s[%d:%d], s%d offen offset:%d sc1' % (
            v(HF + 16 * (ks % 8) + 4 * l, 4), vHA, RWS, RWS + 3, 84 + l, 1024 * (ks & 3))
    a('s_lshl2_add_u32 s78, s%d, s%d', sOG, sW)
    a('s_mul_i32 s78, s78, 5120')
    a('s_mul_i32 s79, s%d, %d', sTB, 4 * HBLK)
    a('s_add_u32 s78, s78, s79')
    a('s_add_u32 s78, s78, 0x%x', WS_H)
    a('v_min_u32 v41, 39, v%d', vLANE)
    a('v_lshlrev_b32 v41, 7, v41')
    a('buffer_load_dword v40, v41, s[%d:%d], s78 offen sc1', RWS, RWS + 3)
    a('s_waitcnt vmcnt(0)')
    for ks in range(8):
        for l in range(4):
            a(hload(l, ks))
            if l & 1:
                a('s_waitcnt vmcnt(%d)', OPT['thr'])
        if ks & 3 == 3:
            for l in range(4):
                a('s_add_u32 s%d, s%d, 4096', 84 + l, 84 + l)
    a('v_subrev_u32 v41, 1024, v%d', vPW)
    waitpw(41, 3, 40, sleep=8)
    a('s_setprio 0')
    a('s_waitcnt vmcnt(0)')
    stamp('S', 'b3go')
    def creads(n):
        return ['ds_read_b128 %s, v%d offset:%d' % (v(CF[n & 1] + 4 * k, 4), vCR + k, 2048 * (n % 4)) for k in range(2)]
    q = []
    def waitfor(tag):
        idx = max(i for i, x in enumerate(q) if x == tag) if tag in q else -1
        n = len(q) - 1 - idx
        del q[:idx + 1]
        return n
    for r in creads(0):
        a(r)
    a('s_waitcnt lgkmcnt(0)')
    cdma(4)
    q += [4, 4]
    for n in range(25):
        kp, j = divmod(n, 5)
        if n + 1 < 25:
            if (n + 1) in q:
                a('s_waitcnt vmcnt(%d)', waitfor(n + 1))
            for r in creads(n + 1):
                a(r)
        if n == 20 and 'h' in q:
            a('s_waitcnt vmcnt(%d)', waitfor('h'))
        for k in range(2):
            ks = 2 * kp + k
            for l in range(4):
                d = acc + 20 * l + 4 * j
                a('v_mfma_f32_16x16x32_bf16 %s, %s, %s, %s', v(d, 4), v(CF[n & 1] + 4 * k, 4), v(HF + 16 * (ks % 8) + 4 * l, 4),
                  '0' if ks == 0 else v(d, 4))
        if n == 4:
            for ks in (8, 9):
                for l in range(4):
                    a(hload(l, ks))
                    q.append('h')
        if n + 1 < 25:
            a('s_waitcnt lgkmcnt(0)')
            if n + 5 < 25:
                cdma(n + 5)
                q += [n + 5, n + 5]
    stamp('S', 'b3gemm')
    a('s_setprio 1')
    vX, vD, vRA, vOA, T = 120, 132, 144, 150, 160
    a('s_lshl1_add_u32 s78, s%d, 0', sW)
    a('s_and_b32 s78, s78, 2')
    a('s_lshr_b32 s79, s%d, 1', sW)
    a('s_xor_b32 s78, s78, s79')
    a('s_lshl2_add_u32 s78, s%d, s78', sTB)
    a('s_mul_i32 s80, s78, %d', 16 * 1280)
    a('s_mul_i32 s81, s%d, 160', sOG)
    a('s_add_u32 s80, s80, s81')
    a('s_mul_i32 s82, s78, %d', 16 * 5120)
    a('s_lshl1_add_u32 s82, s81, s82')
    a('s_add_u32 s82, s82, 2560')
    a('s_add_u32 s84, s%d, s81', sDSK)
    a('s_addc_u32 s85, s%d, 0', sDSK + 1)
    a('s_xor_b32 s86, s%d, 1', sW)
    a('s_mul_i32 s86, s86, %d', REGSZ)
    a('s_add_u32 s86, s86, %d', L_REG)
    a('s_xor_b32 s87, s%d, 3', sW)
    a('s_mul_i32 s87, s87, %d', REGSZ)
    a('s_add_u32 s87, s87, %d', L_REG)
    a('s_mul_i32 s79, s79, %d', 16 * 336)
    for i in range(5):
        a('v_add_u32 v%d, %d, v%d', T, 64 * i, vLANE)
        a('v_mul_u32_u24 v%d, 3277, v%d', T + 1, T)
        a('v_lshrrev_b32 v%d, 16, v%d', T + 1, T + 1)
        a('v_add_lshl_u32 v%d, v%d, v%d, 4', vRA + i, T, T + 1)
        a('v_add_u32 v%d, s79, v%d', vRA + i, vRA + i)
        a('v_mul_u32_u24 v%d, 20, v%d', T + 2, T + 1)
        a('v_sub_u32 v%d, v%d, v%d', T, T, T + 2)
        a('v_lshlrev_b32 v%d, 3, v%d', T + 2, T)
        a('global_load_dwordx2 %s, v%d, s[84:85]', v(vD + 2 * i, 2), T + 2)
        a('v_mul_u32_u24 v%d, 1280, v%d', T + 3, T + 1)
        a('v_add_u32 v%d, v%d, v%d', T + 3, T + 3, T + 2)
        a('buffer_load_dwordx2 %s, v%d, s[%d:%d], s80 offen', v(vX + 2 * i, 2), T + 3, R3, R3 + 3)
        a('v_mul_u32_u24 v%d, 5120, v%d', T + 1, T + 1)
        a('v_lshl_add_u32 v%d, v%d, 4, v%d', vOA + i, T, T + 1)
    a('v_subrev_u32 v%d, 1024, v%d', T, vSPW)
    waitpw(T, 5, T + 1, sleep=2)
    a('v_add_u32 v%d, s74, v%d', T, vHA)
    for qd in range(10):
        a('ds_write_b128 v%d, %s offset:%d', T, v(acc + 40 + 4 * qd, 4), 1024 * qd)
    a('s_waitcnt lgkmcnt(0)')
    setpw(16, T + 1)
    a('v_xor_b32 v%d, 256, v%d', T + 2, vPW)
    a('v_add_u32 v%d, s86, v%d', T, vHA)
    a('v_and_b32 v%d, 15, v%d', T + 3, vLANE)
    a('v_mul_u32_u24 v%d, 336, v%d', T + 3, T + 3)
    a('v_and_b32 v%d, 48, v%d', T + 4, vLANE)
    a('v_add3_u32 v%d, v%d, v%d, s86', T + 3, T + 3, T + 4)
    waitpw(T + 2, 16, T + 1)
    for qd in range(10):
        a('ds_read_b128 %s, v%d offset:%d', v(acc + 40 + 4 * qd, 4), T, 1024 * qd)
    a('s_waitcnt lgkmcnt(0)')
    for qd in range(10):
        l, j = divmod(qd, 5)
        for e in range(4):
            a('v_add_f32 v%d, v%d, v%d', acc + 4 * qd + e, acc + 4 * qd + e, acc + 40 + 4 * qd + e)
        a('ds_write_b128 v%d, %s offset:%d', T + 3, v(acc + 4 * qd, 4), 16 * 336 * l + 64 * j)
    a('s_waitcnt lgkmcnt(0)')
    setpw(17, T + 1)
    a('v_xor_b32 v%d, 512, v%d', T + 2, vPW)
    a('s_waitcnt vmcnt(0)')
    U = 80
    for i in range(5):
        for hf in range(2):
            a('v_lshlrev_b32 v%d, 16, v%d', T + 4, vX + 2 * i + hf)
            a('v_lshlrev_b32 v%d, 16, v%d', T + 5, vD + 2 * i + hf)
            a('v_and_b32 v%d, 0xffff0000, v%d', T + 6, vX + 2 * i + hf)
            a('v_and_b32 v%d, 0xffff0000, v%d', T + 7, vD + 2 * i + hf)
            a('v_mul_f32 v%d, v%d, v%d', U + 4 * i + 2 * hf, T + 4, T + 5)
            a('v_mul_f32 v%d, v%d, v%d', U + 4 * i + 2 * hf + 1, T + 6, T + 7)
    waitpw(T + 2, 17, T + 1)
    for i in range(5):
        a('v_add_u32 v%d, s86, v%d', T + 4, vRA + i)
        a('v_add_u32 v%d, s87, v%d', T + 5, vRA + i)
        a('ds_read_b128 %s, v%d', v(acc + 8 * i, 4), T + 4)
        a('ds_read_b128 %s, v%d', v(acc + 8 * i + 4, 4), T + 5)
    for i in range(5):
        a('s_waitcnt lgkmcnt(%d)', 8 - 2 * i)
        for e in range(4):
            a('v_add_f32 v%d, v%d, v%d', U + 4 * i + e, U + 4 * i + e, acc + 8 * i + e)
        for e in range(4):
            a('v_add_f32 v%d, v%d, v%d', U + 4 * i + e, U + 4 * i + e, acc + 8 * i + 4 + e)
        a('buffer_store_dwordx4 %s, v%d, s[%d:%d], s82 offen', v(U + 4 * i, 4), vOA + i, R6, R6 + 3)
    finish('S')

prologue()
a_setup()
a_qphase()
a_att_setup()
a_attention()
a_outproj()
s_setup()
s_qloader()
s_b1()
s_scan()
s_b3()
a.label('L_codeend')

errs = check(a.lines)
for e_ in errs:
    print('HAZARD', e_, file=sys.stderr)

head = open('cdna_kernels/%s.s.ref' % NAME).read().split('; @launch')[0]
out = head + '; @launch grid=(256,1,1) block=(512,1,1) lds=%d\n' % LDS_BYTES
out += '''.amdgcn_target "amdgcn-amd-amdhsa--gfx950"
.text
.globl %s_kernel
.p2align 8
.type %s_kernel,@function
%s_kernel:
''' % (NAME, NAME, NAME)
out += a.text()
out += '''.section .rodata,"a"
.p2align 6
.amdhsa_kernel %s_kernel
  .amdhsa_next_free_vgpr 256
  .amdhsa_next_free_sgpr 102
  .amdhsa_accum_offset 256
  .amdhsa_group_segment_fixed_size 0
  .amdhsa_kernarg_size 120
  .amdhsa_user_sgpr_count 2
  .amdhsa_user_sgpr_kernarg_segment_ptr 1
  .amdhsa_system_sgpr_workgroup_id_x 1
.end_amdhsa_kernel
''' % NAME
open(sys.argv[1], 'w').write(out)
if DIAG:
    import json
    json.dump(nstamp, open(sys.argv[1] + '.stamps.json', 'w'))
if errs:
    sys.exit(1)
```

```python
import sys, math, struct
from asmlib import Asm, v, s, check

NAME = 'concat_heads__mha_block__ssm_conv_s5__prompt'
OPT = dict(diag=0, b3start=12, force_fb=0, psleep=1, fine=0, cpre=1, stag=4, b1dep=2, rot=1, thr=4, hold=0, codepre=1, psleep4=2, padto=0, outsc1=0)
for a_ in sys.argv[2:]:
    k_, v_ = a_.split('=')
    OPT[k_] = int(v_)
DIAG = OPT['diag']
OSC = ['', ' sc1', ' nt', ' sc1 nt'][OPT['outsc1']]

def f2u(x):
    return struct.unpack('<I', struct.pack('<f', x))[0]

BLK, VOFF, VROW = 247808, 164864, 10368
WS_H, HBLK = 0x800000, 40960
WS_O, OBLK = 0xD00000, 20480
WS_E = 0xF80000
WS_F = 0xFA0000
F1, F2, F3, F4 = WS_F, WS_F + 0x8000, WS_F + 0x10000, WS_F + 0x30000
WS_END = WS_F + 0x50000
WS_DIAG = 0x1000000
OOB = 0x7F000000
L_HT, L_EL, L_PL, L_PAR = 131072, 151552, 156672, 161024
L_PAR = 131072 + 0
L_WO = 0
L_REG, REGSZ = 102400, 14848
L_PW = 161792
LDS_BYTES = 163840
sAX, sWQ, sWO, sBX, sLRE, sLIM, sBRE, sBIM, sCRE, sCIM, sLDT, sDSK, sOUT, sDBG, sWS = range(4, 34, 2)
sW, sI, sXCD = 34, 35, 3
R0, R1, RWS, R3, R4, R5, R6 = 36, 40, 44, 48, 52, 56, 60
sRB, sCG, sHD, sQB, sTB, sOG = 64, 65, 66, 67, 68, 69
sSPIN = 96
sHI = 94
vLANE, vPW, vTS = 254, 253, 255
SPIN_MAX = 1 << 19

a = Asm()
nstamp = {}

def stamp(role, name):
    if not DIAG:
        return
    l = nstamp.setdefault(role, [])
    idx = len(l)
    l.append(name)
    a('s_memtime s[98:99]')
    a('s_waitcnt lgkmcnt(0)')
    a('v_writelane_b32 v%d, s98, %d', vTS, idx)

def srd(r, base, nbytes):
    a('s_mov_b32 s%d, s%d', r, base)
    a('s_mov_b32 s%d, s%d', r + 1, base + 1)
    if isinstance(nbytes, int):
        a('s_mov_b32 s%d, 0x%x', r + 2, nbytes)
    else:
        a('s_mov_b32 s%d, %s', r + 2, nbytes)
    a('s_mov_b32 s%d, 0x20000', r + 3)

def setpw(val, tmp):
    a('v_mov_b32 v%d, %d', tmp, val)
    a('ds_write_b32 v%d, v%d', vPW, tmp)

def waitpw(vaddr, val, tmp, sleep=0):
    L = a.newlabel('pw')
    D = a.newlabel('pwd')
    a.label(L)
    a('ds_read_b32 v%d, v%d', tmp, vaddr)
    a('s_waitcnt lgkmcnt(0)')
    a('v_cmp_gt_u32 vcc, %d, v%d', val, tmp)
    a('s_cbranch_vccz %s', D)
    if sleep:
        a('s_sleep %d', sleep)
    a('s_sub_u32 s%d, s%d, 1', sSPIN, sSPIN)
    a('s_cbranch_scc0 %s', L)
    a('s_endpgm')
    a.label(D)

def pollflags(loads, tmp, sleep=1):
    L = a.newlabel('pf')
    D = a.newlabel('pfd')
    a.label(L)
    for l in loads:
        a(l)
    a('s_waitcnt vmcnt(0)')
    for i in range(1, len(loads)):
        a('v_and_b32 v%d, v%d, v%d', tmp, tmp, tmp + i)
    a('v_cmp_eq_u32 vcc, 0, v%d', tmp)
    a('s_cbranch_vccz %s', D)
    a('s_mov_b64 exec, vcc')
    if sleep:
        a('s_sleep %d', sleep)
    a('s_sub_u32 s%d, s%d, 1', sSPIN, sSPIN)
    a('s_cbranch_scc0 %s', L)
    a('s_endpgm')
    a.label(D)
    a('s_mov_b64 exec, -1')

def dbgload(va, vd):
    return 'global_load_dword v%d, v%d, s[%d:%d] sc1' % (vd, va, sDBG, sDBG + 1)

def flagaddr(dst, idx, base, t):
    a('s_lshl_b32 s%d, s%d, 7', dst, idx)
    a('s_add_u32 s%d, s%d, 0x%x', dst, dst, base)

def setflag(soff, tmp):
    a('v_mov_b32 v%d, 1', tmp)
    a('s_mov_b64 exec, 1')
    a('buffer_store_dword v%d, off, s[%d:%d], s%d sc1', tmp, RWS, RWS + 3, soff)
    a('s_mov_b64 exec, -1')

def tau(dst, src, t):
    a('v_and_b32 v%d, 0x13, v%d', dst, src)
    a('v_and_b32 v%d, 4, v%d', t, src)
    a('v_lshl_or_b32 v%d, v%d, 1, v%d', dst, t, dst)
    a('v_and_b32 v%d, 8, v%d', t, src)
    a('v_lshrrev_b32 v%d, 1, v%d', t, t)
    a('v_or_b32 v%d, v%d, v%d', dst, t, dst)

def finish(role):
    if OPT['padto']:
        L = a.newlabel('pad')
        a.label(L)
        a('s_sleep 4')
        a('s_memrealtime s[98:99]')
        a('s_waitcnt lgkmcnt(0)')
        a('s_sub_u32 s98, s98, s100')
        a('s_cmp_lt_u32 s98, %d', OPT['padto'])
        a('s_cbranch_scc1 %s', L)
    if DIAG:
        stamp(role, 'end')
        a('s_memrealtime s[98:99]')
        a('s_waitcnt lgkmcnt(0)')
        a('v_writelane_b32 v%d, s98, 31', vTS)
        a('s_lshl_b32 s70, s2, 3')
        a('s_add_u32 s70, s70, s%d', sW)
        if role == 'S':
            a('s_add_u32 s70, s70, 4')
        a('s_lshl_b32 s70, s70, 8')
        a('s_add_u32 s70, s70, 0x%x', WS_DIAG)
        a('v_lshlrev_b32 v0, 2, v%d', vLANE)
        a('buffer_store_dword v%d, v0, s[%d:%d], s70 offen', vTS, RWS, RWS + 3)
    a('s_endpgm')

def prologue():
    a('s_cmp_ge_u32 s2, 256')
    a('s_cbranch_scc0 L_go')
    a('s_endpgm')
    a.label('L_go')
    if OPT['padto']:
        a('s_memrealtime s[100:101]')
    a('s_load_dwordx16 s[4:19], s[0:1], 0')
    a('s_load_dwordx8 s[20:27], s[0:1], 64')
    a('s_load_dwordx4 s[28:31], s[0:1], 96')
    a('s_load_dwordx2 s[32:33], s[0:1], 112')
    a('v_lshrrev_b32 v1, 6, v0')
    a('v_and_b32 v%d, 63, v0', vLANE)
    a('v_readfirstlane_b32 s%d, v1', sW)
    a('v_lshlrev_b32 v%d, 2, v0', vPW)
    a('v_add_u32 v%d, %d, v%d', vPW, L_PW, vPW)
    a('v_mov_b32 v1, 0')
    a('ds_write_b32 v%d, v1', vPW)
    a('s_and_b32 s%d, s2, 7', sXCD)
    a('s_lshr_b32 s%d, s2, 3', sI)
    a('s_and_b32 s70, s%d, 3', sI)
    a('s_lshr_b32 s%d, s%d, 2', sOG, sI)
    a('s_lshr_b32 s71, s%d, 1', sXCD)
    a('s_lshl2_add_u32 s%d, s71, s70', sRB)
    a('s_and_b32 s71, s%d, 1', sXCD)
    a('s_lshl3_add_u32 s%d, s71, s%d', sCG, sOG)
    a('s_lshr_b32 s71, s%d, 3', sI)
    a('s_lshl2_add_u32 s%d, s%d, s71', sHD, sXCD)
    a('s_and_b32 s%d, s%d, 7', sQB, sI)
    a('s_lshl2_add_u32 s%d, s%d, s70', sTB, sXCD)
    a('s_mov_b32 s%d, 0x%x', sSPIN, SPIN_MAX)
    a('s_mov_b32 s%d, 0', sHI)
    a('s_mov_b32 s%d, -1', sHI + 1)
    a('s_waitcnt lgkmcnt(0)')
    srd(RWS, sWS, WS_END if not DIAG else WS_DIAG + 0x100000)
    if DIAG:
        a('s_memrealtime s[98:99]')
        a('s_waitcnt lgkmcnt(0)')
        a('v_mov_b32 v%d, 0', vTS)
        a('v_writelane_b32 v%d, s98, 30', vTS)
    a('s_cmp_ge_u32 s%d, 4', sW)
    a('s_cbranch_scc1 L_roleS')

sTW, sCW = 72, 73
vXA, vWA = 96, 104
vF1A = 252
vAPW = 249

def a_setup():
    a.label('L_roleA')
    stamp('A', 'start')
    a('s_lshr_b32 s%d, s%d, 1', sTW, sW)
    a('s_and_b32 s%d, s%d, 1', sCW, sW)
    a('s_lshl1_add_u32 s75, s%d, s%d', sRB, sTW)
    a('s_mul_i32 s74, s75, %d', BLK)
    if OPT['codepre']:
        a.c('pull the code into L2: each wave of an XCD touches a few lines')
        a('s_getpc_b64 s[76:77]')
        a('s_lshl2_add_u32 s78, s%d, s%d', sI, sW)
        a('s_mul_i32 s78, s78, 3')
        a('v_min_u32 v1, 2, v%d', vLANE)
        a('v_add_u32 v1, s78, v1')
        a('v_min_u32 v1, (L_codeend - L_roleA) / 128 - 1, v1')
        a('v_lshlrev_b32 v1, 7, v1')
        a('global_load_dword v110, v1, s[76:77]')
    a.c('constant blocks + flag clearing (column group 15 has no GEMM tile)')
    a('s_cmp_eq_u32 s%d, 15', sCG)
    a('s_cbranch_scc0 L_noconst')
    a('s_cmp_eq_u32 s%d, 0', sW)
    a('s_cbranch_scc0 L_noconst')
    a('v_lshlrev_b32 v1, 4, v%d', vLANE)
    for i in range(4):
        a('v_mov_b32 v%d, 0', 4 + i)
    a('s_mul_i32 s76, s%d, 0x5000', sRB)
    a('s_add_u32 s76, s76, 0x%x', WS_F)
    for j in range(5):
        for i in range(4):
            a('buffer_store_dwordx4 v[4:7], v1, s[%d:%d], s76 offen offset:%d sc1', RWS, RWS + 3, 1024 * i)
        a('s_add_u32 s76, s76, 4096')
    a('v_mov_b32 v8, 0x3f803f80')
    a('v_mov_b32 v9, 0')
    a('v_mov_b32 v10, v8')
    a('v_mov_b32 v11, 0')
    for i in range(4):
        a('v_mov_b32 v%d, v8', 12 + i)
    a('v_lshrrev_b32 v2, 3, v%d', vLANE)
    a('v_mul_u32_u24 v2, %d, v2', VROW)
    a('v_and_b32 v3, 7, v%d', vLANE)
    a('v_lshl_add_u32 v2, v3, 4, v2')
    for b in range(2):
        a('s_add_u32 s76, s74, %d', 160 * 1024 + b * BLK)
        a('buffer_store_dwordx4 v[8:11], v1, s[%d:%d], s76 offen sc1', RWS, RWS + 3)
        a('s_add_u32 s76, s74, %d', VOFF + 640 * 16 + b * BLK)
        a('buffer_store_dwordx4 v[12:15], v2, s[%d:%d], s76 offen sc1', RWS, RWS + 3)
    a('s_lshl_b32 s76, s%d, 2', sRB)
    a('v_mov_b32 v16, s76')
    a('v_mov_b32 v17, 1')
    a('s_waitcnt vmcnt(0)')
    a('s_mov_b64 exec, 1')
    a('global_store_dword v16, v17, s[%d:%d] sc1', sDBG, sDBG + 1)
    a('s_mov_b64 exec, -1')
    a.label('L_noconst')
    a.c('LDS fragment addresses for the QKV GEMM')
    a('v_and_b32 v1, 31, v%d', vLANE)
    a('v_lshrrev_b32 v2, 5, v%d', vLANE)
    a('v_bfe_u32 v3, v1, 1, 3')
    a('v_xor_b32 v3, v3, v2')
    a('v_lshlrev_b32 v3, 4, v3')
    a('v_lshl_add_u32 v3, v1, 7, v3')
    a('s_lshl_b32 s76, s%d, 13', sTW)
    a('v_add_u32 v3, s76, v3')
    for ks in range(4):
        a('v_xor_b32 v%d, %d, v3', vXA + ks, ks << 5)
        a('v_add_u32 v%d, 0x10000, v%d', vXA + 4 + ks, vXA + ks)
    a('v_bfe_u32 v4, v%d, 2, 2', vLANE)
    a('v_lshl_add_u32 v5, v2, 3, v4')
    a('v_lshlrev_b32 v5, 8, v5')
    a('v_bfe_u32 v6, v%d, 4, 1', vLANE)
    a('v_and_b32 v7, 1, v%d', vLANE)
    a('v_lshl_add_u32 v6, v6, 1, v7')
    a('s_lshl_b32 s76, s%d, 3', sCW)
    a('v_add_u32 v6, s76, v6')
    a('v_lshlrev_b32 v4, 2, v4')
    a('v_xor_b32 v6, v6, v4')
    a('v_lshl_add_u32 v5, v6, 4, v5')
    a('v_bfe_u32 v7, v%d, 1, 1', vLANE)
    a('v_lshl_add_u32 v5, v7, 3, v5')
    a('v_add_u32 v%d, 16384, v5', vWA)
    a('v_xor_b32 v%d, 64, v%d', vWA + 1, vWA)
    a('v_add_u32 v%d, 0x10000, v%d', vWA + 2, vWA)
    a('v_add_u32 v%d, 0x10000, v%d', vWA + 3, vWA + 1)

def a_qloop(vt):
    F = [64, 80]
    def reads(st, ks, f):
        slot = st % 4
        hi, lo = slot >> 1, (slot & 1) * 32768
        r = []
        for T in range(2):
            r.append('ds_read_b128 %s, v%d offset:%d' % (v(f + 4 * T, 4), vXA + 4 * hi + ks, lo + 4096 * T))
        for Tc in range(2):
            for rd in range(2):
                r.append('ds_read_b64_tr_b16 %s, v%d offset:%d' % (v(f + 8 + 4 * Tc + 2 * rd, 2), vWA + 2 * hi + Tc,
                                                                  lo + (16 * ks + 4 * rd) * 256))
        return [r[0], r[2], r[3], r[1], r[4], r[5]]
    def mfma(f, i, j, first):
        acc = (2 * i + j) * 16
        A = f + 4 * i if vt else f + 8 + 4 * i
        B = f + 8 + 4 * j if vt else f + 4 * j
        return 'v_mfma_f32_32x32x16_bf16 %s, %s, %s, %s' % (v(acc, 16), v(A, 4), v(B, 4), '0' if first else v(acc, 16))
    a('s_barrier')
    for r in reads(0, 0, F[0]):
        a(r)
    for st in range(10):
        for ks in range(4):
            cur, nxt = F[ks & 1], F[(ks + 1) & 1]
            first = st == 0 and ks == 0
            a('s_waitcnt lgkmcnt(0)')
            if ks == 3:
                a('s_barrier')
                rr = reads(st + 1, 0, nxt) if st < 9 else []
            else:
                rr = reads(st, ks + 1, nxt)
            a(mfma(cur, 0, 0, first))
            for r in rr[:3]:
                a(r)
            a(mfma(cur, 0, 1, first))
            for r in rr[3:]:
                a(r)
            a(mfma(cur, 1, 0, first))
            a(mfma(cur, 1, 1, first))

def a_qphase():
    a('s_cmp_ge_u32 s%d, 10', sCG)
    a('s_cbranch_scc1 L_qV')
    a_qloop(False)
    stamp('A', 'qloop')
    a('v_and_b32 v98, 31, v%d', vLANE)
    a('v_lshrrev_b32 v97, 5, v%d', vLANE)
    a('v_lshlrev_b32 v98, 4, v98')
    a('v_lshl_add_u32 v96, v97, 10, v98')
    a('s_lshl1_add_u32 s76, s%d, s%d', sCG, sCW)
    a('s_lshl_b32 s77, s76, 13')
    a('s_add_u32 s77, s77, s74')
    a('s_add_u32 s78, s77, 4096')
    a('s_mul_i32 s79, s%d, 3', sCW)
    a('s_add_u32 s79, s79, s%d', sCG)
    for _ in range(2):
        a('s_cmp_ge_u32 s79, 5')
        a('s_cselect_b32 s80, 5, 0')
        a('s_sub_u32 s79, s79, s80')
    a('s_cmp_ge_u32 s%d, 5', sCG)
    a('s_cbranch_scc1 L_noscale')
    c0 = f2u(math.log2(math.e) / math.sqrt(20.0))
    a('s_mov_b32 s80, 0x%x', c0)
    a('s_mov_b32 s81, s80')
    for i in range(0, 64, 2):
        a('v_pk_mul_f32 %s, %s, s[80:81]', v(i, 2), v(i, 2))
    a.label('L_noscale')
    for Tc in range(2):
        for u in range(2):
            P = 64 + 8 * (2 * Tc + u)
            for T in range(2):
                acc = (2 * Tc + T) * 16 + 8 * u
                for q in range(4):
                    a('v_cvt_pk_bf16_f32 v%d, v%d, v%d', P + 4 * T + q, acc + 2 * q, acc + 2 * q + 1)
            a('s_cmp_eq_u32 s79, %d', (2 - 4 * Tc - 2 * u) % 5)
            a('s_cselect_b32 exec_lo, -1, 0')
            a('s_cmp_eq_u32 s79, %d', (1 - 4 * Tc - 2 * u) % 5)
            a('s_cselect_b32 exec_hi, -1, 0')
            a('v_swap_b32 v%d, v%d', P + 2, P + 4)
            a('v_swap_b32 v%d, v%d', P + 3, P + 5)
            a('s_mov_b64 exec, -1')
            for T in range(2):
                a('buffer_store_dwordx4 %s, v96, s[%d:%d], s%d offen offset:%d sc1', v(P + 4 * T, 4), RWS, RWS + 3,
                  77 + Tc, 2048 * u + 512 * T)
    a('s_branch L_qdone')
    a.label('L_qV')
    a_qloop(True)
    if DIAG:
        nstamp['A'].pop()
    stamp('A', 'qloop')
    a('s_lshl1_add_u32 s76, s%d, s%d', sCG, sCW)
    a('s_cmp_eq_u32 s%d, 15', sCG)
    a('s_cbranch_scc1 L_qdone')
    a('v_and_b32 v98, 31, v%d', vLANE)
    tau(96, 98, 97)
    a('v_lshrrev_b32 v97, 5, v%d', vLANE)
    a('v_mul_u32_u24 v97, %d, v97', VROW)
    a('v_lshl_add_u32 v96, v96, 4, v97')
    a('s_sub_u32 s77, s76, 20')
    a('s_lshl_b32 s77, s77, 10')
    a('s_add_u32 s77, s77, s74')
    a('s_add_u32 s77, s77, %d', VOFF)
    n = 0
    for T in range(2):
        for m in range(2):
            for Tc in range(2):
                P = 64 + 4 * n
                n += 1
                acc = (2 * T + Tc) * 16 + 8 * m
                for q in range(4):
                    a('v_cvt_pk_bf16_f32 v%d, v%d, v%d', P + q, acc + 2 * q, acc + 2 * q + 1)
                a('buffer_store_dwordx4 %s, v96, s[%d:%d], s77 offen offset:%d sc1', v(P, 4), RWS, RWS + 3, 512 * Tc)
            if (T, m) != (1, 1):
                a('s_add_u32 s77, s77, %d', 2 * VROW)
    a.label('L_qdone')

vO, vS = 0, 64
KV = [128, 156]
K1A, K1B, K2, VA0, VA1, VB0, VB1 = 0, 4, 8, 12, 16, 20, 24
vQ1, vQ2 = 184, 200
vK1, vK2, vV, vIDX, vNC, vM = 208, 209, 210, 214, 216, 220
vT = 224
sQH, sKH, sODD, sP5, sOFF, sKV0, sPASS, sCNT = 76, 77, 78, 79, 80, 81, 82, 83
sKVB, sKVE = 70, 71

def a_att_setup():
    a('s_lshl4_add_u32 s84, s%d, s%d', sCG, sRB)
    flagaddr(84, 84, F1, 85)
    a('s_and_b32 s%d, s%d, 1', sQH, sW)
    a('s_lshr_b32 s%d, s%d, 1', sKH, sW)
    a('s_and_b32 s%d, s%d, 1', sODD, sHD)
    a('s_lshr_b32 s85, s%d, 1', sHD)
    a('s_mul_i32 s%d, s85, 5', sP5)
    a('s_mul_i32 s%d, s%d, %d', sKVB, sKH, 16 * BLK)
    a('s_add_u32 s%d, s%d, %d', sKVE, sKVB, 16 * BLK)
    a('s_mul_i32 s86, s%d, %d', sQB, 2 * BLK * OPT['rot'])
    a('s_add_u32 s%d, s%d, s86', sKV0, sKVB)
    srd(R3, sWS, 32 * BLK)
    srd(R4, sOUT, 2048 * 1280 * 4)
    a('s_mov_b32 s%d, 0', sPASS)
    i, h, t, x = vT, vT + 1, vT + 2, vT + 3
    a('v_and_b32 v%d, 31, v%d', i, vLANE)
    a('v_lshrrev_b32 v%d, 5, v%d', h, vLANE)
    tau(t, i, x)
    a('s_mul_i32 s86, s%d, 3', sODD)
    a('s_add_u32 s86, s86, s%d', sP5)
    a('s_lshl_b32 s87, s86, 10')
    a('v_lshl_add_u32 v%d, v%d, 10, s87', x, h)
    a('v_lshl_add_u32 v%d, v%d, 4, v%d', vT + 4, i, x)
    a('v_lshl_add_u32 v%d, v%d, 4, v%d', vK1, t, x)
    a('v_add_u32 v%d, %d, v%d', vK1, 80 * 1024, vK1)
    a('s_add_u32 s87, s%d, 2', sP5)
    a('s_lshl1_add_u32 s87, s87, s%d', sODD)
    a('s_lshl_b32 s87, s87, 9')
    a('v_lshl_add_u32 v%d, v%d, 4, s87', vT + 5, i)
    a('v_mov_b32 v%d, 0x%x', x, OOB)
    a('v_cndmask_b32 v%d, v%d, v%d, s[%d:%d]', vT + 5, vT + 5, x, sHI, sHI + 1)
    a('s_add_u32 s87, s87, %d', 80 * 1024)
    a('v_mov_b32 v%d, s87', vK2)
    a('v_mov_b32 v%d, %d', x, 160 * 1024)
    a('v_cndmask_b32 v%d, v%d, v%d, s[%d:%d]', vK2, vK2, x, sHI, sHI + 1)
    a('v_lshl_add_u32 v%d, v%d, 4, v%d', vK2, t, vK2)
    a('s_mul_i32 s86, s%d, 20', sHD)
    a('s_lshl2_add_u32 s87, s%d, s86', sODD)
    a('s_lshl_b32 s88, s%d, 4', sODD)
    a('s_sub_u32 s88, s86, s88')
    a('v_add_u32 v%d, s87, v%d', vV, t)
    a('v_add_u32 v%d, s88, v%d', x, i)
    a('v_cmp_le_u32 vcc, 16, v%d', i)
    a('v_add_u32 v%d, 620, v%d', vT + 6, i)
    a('s_nop 0')
    a('v_cndmask_b32 v%d, v%d, v%d, vcc', vV, vV, x)
    a('v_cmp_le_u32 vcc, 20, v%d', i)
    a('v_mul_u32_u24 v%d, %d, v%d', x, VROW, h)
    a('v_add_u32 v%d, %d, v%d', x, VOFF, x)
    a('v_cndmask_b32 v%d, v%d, v%d, vcc', vV, vV, vT + 6)
    a('v_lshl_add_u32 v%d, v%d, 4, v%d', vV, vV, x)
    a('v_cmp_le_u32 vcc, 24, v%d', i)
    a('v_mov_b32 v%d, 0x%x', x, OOB)
    a('v_mov_b32 v%d, 0xdddd', vIDX)
    a('v_cndmask_b32 v%d, v%d, v%d, vcc', vV, vV, x)
    for k in range(1, 4):
        a('v_add_u32 v%d, %d, v%d', vV + k, 2 * VROW * k, vV)
    a('s_mul_i32 s87, s85, 40')
    a('s_lshl4_add_u32 s87, s%d, s87', sODD)
    a('s_add_u32 s88, s87, 23')
    a('s_lshr_b32 s87, s87, 7')
    a('s_lshr_b32 s88, s88, 7')
    a('s_add_u32 s89, s86, 19')
    a('s_lshr_b32 s86, s86, 7')
    a('s_lshr_b32 s89, s89, 7')
    a('v_lshrrev_b32 v%d, 4, v%d', x, vLANE)
    a('s_add_u32 s90, s87, 5')
    a('v_mov_b32 v%d, s90', vF1A)
    for sel, (reg, add) in enumerate(((88, 5), (86, 10), (89, 10))):
        a('s_add_u32 s90, s%d, %d', reg, add)
        a('v_cmp_eq_u32 vcc, %d, v%d', sel + 1, x)
        a('v_mov_b32 v%d, s90', vT + 6)
        a('s_nop 0')
        a('v_cndmask_b32 v%d, v%d, v%d, vcc', vF1A, vF1A, vT + 6)
    a('v_and_b32 v%d, 15, v%d', vT + 6, vLANE)
    a('v_lshl_add_u32 v%d, v%d, 4, v%d', vF1A, vF1A, vT + 6)
    a('v_lshlrev_b32 v%d, 7, v%d', vF1A, vF1A)
    a('v_mov_b32 v%d, s87', vF1A - 1)
    a('v_mov_b32 v%d, s88', vT + 6)
    a('v_cndmask_b32 v%d, v%d, v%d, s[%d:%d]', vF1A - 1, vF1A - 1, vT + 6, sHI, sHI + 1)
    a('v_bfe_u32 v%d, v%d, 4, 1', vT + 6, vLANE)
    a('v_lshl_add_u32 v%d, v%d, 4, v%d', vF1A - 1, vF1A - 1, vT + 6)
    a('s_lshl_b32 s90, s%d, 1', sQB)
    a('v_add_lshl_u32 v%d, v%d, s90, 7', vF1A - 1, vF1A - 1)
    a('v_and_b32 v%d, 3, v%d', vAPW, vLANE)
    a('v_lshlrev_b32 v%d, 8, v%d', vAPW, vAPW)
    a('v_lshlrev_b32 v%d, 2, v%d', vAPW + 1, vLANE)
    a('v_add_u32 v%d, %d, v%d', vAPW + 1, L_PW, vAPW + 1)
    a('v_add_u32 v%d, v%d, v%d', vAPW, vAPW, vAPW + 1)
    a('s_lshl1_add_u32 s90, s%d, s%d', sQB, sQH)
    a('s_lshl1_add_u32 s90, s90, s%d', sKH)
    a('s_mul_i32 s91, s90, %d', BLK)
    a('s_xor_b32 s92, s90, 1')
    a('s_mul_i32 s92, s92, %d', BLK)
    a('s_waitcnt vmcnt(0)')
    stamp('A', 'qdrain')
    setpw(1, 102)
    a('s_cmp_eq_u32 s%d, 0', sW)
    a('s_cbranch_scc0 L_f1wait')
    waitpw(vAPW, 1, 102)
    setflag(84, 101)
    a('s_mov_b32 s84, 0x%x', F1)
    pollflags(['buffer_load_dword v%d, v%d, s[%d:%d], s84 offen sc1' % (104 + k, vF1A - k, RWS, RWS + 3) for k in range(2)], 104,
              sleep=OPT['psleep'])
    setpw(2, 102)
    a.label('L_f1wait')
    waitpw(vAPW + 1, 2, 102, sleep=1)
    stamp('A', 'f1')

def kvload(st, what, soff):
    r = KV[st] + what
    if what in (K1A, K1B):
        return 'buffer_load_dwordx4 %s, v%d, s[%d:%d], s%d offen offset:%d sc1' % (v(r, 4), vK1, R3, R3 + 3, soff, 512 if what == K1B else 0)
    if what == K2:
        return 'buffer_load_dwordx4 %s, v%d, s[%d:%d], s%d offen sc1' % (v(r, 4), vK2, R3, R3 + 3, soff)
    return 'buffer_load_dwordx4 %s, v%d, s[%d:%d], s%d offen sc1' % (v(r, 4), vV + (what - VA0) // 4, R3, R3 + 3, soff)

def qk1(st, tile, qt, sb):
    return 'v_mfma_f32_32x32x16_bf16 %s, %s, %s, 0' % (v(vS + 16 * sb, 16), v(KV[st] + (K1B if tile else K1A), 4), v(vQ1 + 4 * qt, 4))

def qk2(st, tile, qt, sb):
    return 'v_mfma_f32_32x32x8bf16_1k %s, %s, %s, %s' % (v(vS + 16 * sb, 16), v(KV[st] + K2 + 2 * tile, 2), v(vQ2 + 2 * qt, 2), v(vS + 16 * sb, 16))

def pv(st, tile, qt, m):
    return 'v_smfmac_f32_32x32x32_bf16 %s, %s, %s, v%d' % (v(vO + 16 * qt, 16), v(KV[st] + VA0 + 8 * tile + 4 * m, 4), v(vS + 16 * qt + 8 * m, 8), vIDX)

def maxtree(dst, src, acc):
    if acc:
        a('v_max3_f32 v%d, v%d, v%d, v%d', dst, dst, src, src + 1)
    else:
        a('v_max_f32 v%d, v%d, v%d', dst, src, src + 1)
    for k in range(2, 16, 2):
        a('v_max3_f32 v%d, v%d, v%d, v%d', dst, dst, src + k, src + k + 1)

def a_attention():
    for lp in range(2):
        for T in range(2):
            a('buffer_load_dwordx4 %s, v%d, s[%d:%d], s%d offen offset:%d sc1', v(vQ1 + 8 * lp + 4 * T, 4), vT + 4, RWS, RWS + 3, 91 + lp, 512 * T)
    for lp in range(2):
        a('buffer_load_dwordx4 %s, v%d, s[%d:%d], s%d offen sc1', v(vQ2 + 4 * lp, 4), vT + 5, RWS, RWS + 3, 91 + lp)
    a.label('L_attload')
    a('s_add_u32 s%d, s%d, %d', sOFF, sKV0, BLK)
    for w_ in (K1A, K2, VA0, VA1, K1B, VB0, VB1):
        a(kvload(0, w_, sKV0))
    for w_ in (K1A, VA0, VA1, K1B, K2):
        a(kvload(1, w_, sOFF))
    for i in range(64):
        a('v_mov_b32 v%d, 0', vO + i)
    for i in range(4):
        a('v_mov_b32 v%d, 0', KV[1] + VB1 + i)
    a('s_waitcnt vmcnt(10)')
    stamp('A', 'qkload')
    a('s_cmp_eq_u32 s%d, 0', sPASS)
    a('s_cbranch_scc0 L_setc')
    a.c('stand-in for the row maximum: the maximum over the first key tile (checked after the loop)')
    for qt in range(4):
        a(qk1(0, 0, qt, qt))
        a(qk2(0, 0, qt, qt))
    a('s_nop 5')
    for qt in range(4):
        maxtree(vM + qt, vS + 16 * qt, False)
    a.label('L_setc')
    for qt in range(4):
        a('v_mov_b32 v%d, v%d', vT + 8 + qt, vM + qt)
    for qt in range(4):
        a('v_permlane32_swap_b32 v%d, v%d', vM + qt, vT + 8 + qt)
    for qt in range(4):
        a('v_min_f32 v%d, -v%d, -v%d', vM + qt, vM + qt, vT + 8 + qt)
    for qt in range(4):
        a('v_cvt_pk_bf16_f32 v%d, v%d, v%d', vT + 8 + qt, vM + qt, vM + qt)
    for qt in range(4):
        a('v_and_b32 v%d, 0xffff0000, v%d', vT + 8 + qt, vT + 8 + qt)
    for qt in range(4):
        a('v_sub_f32 v%d, v%d, v%d', vM + qt, vM + qt, vT + 8 + qt)
    for qt in range(4):
        a('v_cvt_pk_bf16_f32 v%d, v%d, v%d', vM + qt, vT + 8 + qt, vM + qt)
    for qt in range(4):
        a('v_cndmask_b32 v%d, v%d, v%d, s[%d:%d]', vQ2 + 2 * qt, vQ2 + 2 * qt, vM + qt, sHI, sHI + 1)
    a(qk1(0, 0, 0, 0))
    a(qk2(0, 0, 0, 0))
    for qt in range(4):
        a('v_and_b32 v%d, 0xffff0000, v%d', vM + qt, vM + qt)
    for qt in range(4):
        a('v_add_f32 v%d, v%d, v%d', vNC + qt, vM + qt, vT + 8 + qt)
    for i in range(8):
        a('v_mov_b32 v%d, 0', vS + 48 + 8 + i)
    a('s_mov_b32 s%d, 8', sCNT)
    a('s_waitcnt vmcnt(7)')
    stamp('A', 'attpro')
    a('.p2align 6')
    a.label('L_attloop')
    for st in range(2):
        for n in range(8):
            tile, qt = n >> 2, n & 3
            nst, ntile, nqt = (st, (n + 1) >> 2, (n + 1) & 3) if n < 7 else (st ^ 1, 0, 0)
            pst, ptile, pqt = (st, (n - 1) >> 2, (n - 1) & 3) if n > 0 else (st ^ 1, 1, 3)
            def ex(k):
                for e in range(4 * k, 4 * k + 4):
                    a('v_exp_f32 v%d, v%d', vS + 16 * qt + e, vS + 16 * qt + e)
            if n == 7:
                a('s_waitcnt vmcnt(5)')
            a(qk1(nst, ntile, nqt, nqt))
            if n == 0:
                a(kvload(st ^ 1, VB0, sOFF))
            if n == 1:
                a(kvload(st ^ 1, VB1, sOFF))
            if n == 2:
                a('s_add_u32 s%d, s%d, %d', sOFF, sOFF, BLK)
            if n == 3:
                a(kvload(st, K1A, sOFF))
            if n == 4:
                a(kvload(st, VA0, sOFF))
            if n == 5:
                a(kvload(st, VA1, sOFF))
            if n == 7:
                a(kvload(st, K1B, sOFF))
            ex(0)
            a(qk2(nst, ntile, nqt, nqt))
            if n == 7:
                a(kvload(st, K2, sOFF))
            if n == 2 and st == 0:
                a('s_cmp_eq_u32 s%d, s%d', sOFF, sKVE)
            ex(1)
            a(pv(pst, ptile, pqt, 1))
            if n == 2 and st == 0:
                a('s_cselect_b32 s%d, s%d, s%d', sOFF, sKVB, sOFF)
            if st == 1 and n == 7:
                a('s_sub_u32 s%d, s%d, 1', sCNT, sCNT)
            if st == 1 and n == 6 and OPT['b3start'] <= 8:
                L = a.newlabel('nosig')
                a('s_cmp_eq_u32 s%d, %d', sCNT, 9 - OPT['b3start'])
                a('s_cbranch_scc0 %s', L)
                setpw(3, vT + 8)
                a.label(L)
            ex(2)
            if n == 4:
                a('s_waitcnt vmcnt(9)')
            a(pv(st, tile, qt, 0))
            if st == 1 and n == 7:
                a('s_cmp_lg_u32 s%d, 0', sCNT)
            ex(3)
    a('s_cbranch_scc1 L_attloop')
    a('s_nop 0')
    a(pv(1, 1, 3, 1))
    stamp('A', 'attloop')
    a('s_mul_i32 s84, s%d, %d', sW, REGSZ)
    a('s_add_u32 s84, s84, %d', L_REG + 8192)
    a('s_xor_b32 s85, s%d, 2', sW)
    a('s_mul_i32 s86, s85, %d', REGSZ)
    a('s_add_u32 s86, s86, %d', L_REG + 8192)
    a('v_lshl_add_u32 v%d, v%d, 4, s84', vT, vLANE)
    a('v_lshl_add_u32 v%d, v%d, 3, s84', vT + 1, vLANE)
    a('v_lshl_add_u32 v%d, v%d, 4, s86', vT + 2, vLANE)
    a('v_lshl_add_u32 v%d, v%d, 3, s86', vT + 3, vLANE)
    a('v_xor_b32 v%d, 512, v%d', vT + 6, vPW)
    a('v_and_b32 v%d, 3, v%d', vT + 7, vLANE)
    a('v_lshlrev_b32 v%d, 8, v%d', vT + 7, vT + 7)
    a('v_lshl_add_u32 v%d, v%d, 2, v%d', vT + 7, vLANE, vT + 7)
    a('v_add_u32 v%d, %d, v%d', vT + 7, L_PW + 1024, vT + 7)
    a('s_waitcnt vmcnt(0)')
    a('s_cmp_eq_u32 s%d, 0', sPASS)
    a('s_cbranch_scc0 L_attok')
    a('v_min_f32 v%d, v%d, v%d', vT + 8, vO + 8, vO + 24)
    a('v_min3_f32 v%d, v%d, v%d, v%d', vT + 8, vT + 8, vO + 40, vO + 56)
    a('v_add_f32 v%d, v%d, v%d', vT + 9, vO + 8, vO + 24)
    a('v_add_f32 v%d, v%d, v%d', vT + 10, vO + 40, vO + 56)
    a('v_add_f32 v%d, v%d, v%d', vT + 9, vT + 9, vT + 10)
    a('s_mov_b32 s86, 0x%x', f2u(2.0 ** -30))
    a('s_mov_b32 s87, 0x%x', f2u(2.0 ** 50))
    a('v_cmp_nle_f32 s[88:89], s86, v%d', vT + 8)
    a('v_cmp_nge_f32 vcc, s87, v%d', vT + 9)
    a('s_or_b32 s89, s89, vcc_hi')
    if OPT['force_fb']:
        a('s_cmp_eq_u32 s%d, 0', sPASS)
    a('s_cbranch_scc0 L_attok')
    a.c('fallback: exact row maximum over this wave\'s keys, then redo the pass')
    a('s_mov_b32 s%d, 1', sPASS)
    a('v_mov_b32 v%d, 0', vT + 8)
    for qt in range(4):
        a('v_cndmask_b32 v%d, v%d, v%d, s[%d:%d]', vQ2 + 2 * qt, vQ2 + 2 * qt, vT + 8, sHI, sHI + 1)
        a('v_mov_b32 v%d, 0xff800000', vM + qt)
    a('s_mov_b32 s%d, s%d', sOFF, sKVB)
    a('s_mov_b32 s%d, 16', sCNT)
    a.label('L_maxloop')
    for w_ in (K1A, K1B, K2):
        a(kvload(0, w_, sOFF))
    a('s_waitcnt vmcnt(0)')
    for tile in range(2):
        for qt in range(4):
            a(qk1(0, tile, qt, qt))
            a(qk2(0, tile, qt, qt))
        a('s_nop 5')
        for qt in range(4):
            maxtree(vM + qt, vS + 16 * qt, True)
    a('s_add_u32 s%d, s%d, %d', sOFF, sOFF, BLK)
    a('s_sub_u32 s%d, s%d, 1', sCNT, sCNT)
    a('s_cmp_lg_u32 s%d, 0', sCNT)
    a('s_cbranch_scc1 L_maxloop')
    a('s_branch L_attload')
    a.label('L_attok')
    waitpw(vT + 7, 14, vT + 8)
    for t in range(2):
        for q in range(3):
            a('ds_write_b128 v%d, %s offset:%d', vT, v(vO + 32 + 16 * t + 4 * q, 4), 1024 * (3 * t + q))
    a('ds_write_b64 v%d, %s offset:6144', vT + 1, v(vNC + 2, 2))
    a('s_waitcnt lgkmcnt(0)')
    setpw(4, vT + 8)
    a('v_bfe_u32 v%d, v%d, 4, 1', vT + 10, vLANE)
    a('v_mul_u32_u24 v%d, %d, v%d', vT + 10, OBLK, vT + 10)
    a('v_and_b32 v%d, 15, v%d', vT + 11, vLANE)
    a('v_lshl_add_u32 v%d, v%d, 4, v%d', vT + 10, vT + 11, vT + 10)
    a('v_lshrrev_b32 v%d, 5, v%d', vT + 12, vLANE)
    a('v_mul_u32_u24 v%d, %d, v%d', vT + 11, 2 * OBLK, vT + 12)
    a('v_add_u32 v%d, v%d, v%d', vT + 11, vT + 11, vT + 10)
    a('v_lshl_add_u32 v%d, v%d, 8, v%d', vT + 10, vT + 12, vT + 10)
    a('s_mul_i32 s84, s90, %d', 4 * OBLK)
    a('s_add_u32 s84, s84, 0x%x', WS_O)
    a('s_lshl_b32 s85, s%d, 8', sP5)
    a('s_add_u32 s84, s84, s85')
    a('s_mul_i32 s85, s%d, 768', sODD)
    a('s_add_u32 s85, s85, s84')
    a('s_add_u32 s86, s85, %d', 2 * OBLK)
    a('s_lshl3_add_u32 s84, s%d, s84', sODD)
    a('s_lshl_b32 s87, s90, 5')
    a('s_add_u32 s87, s87, s%d', sHD)
    flagaddr(87, 87, F4, 88)
    waitpw(vT + 6, 4, vT + 8)
    R = vS
    a('ds_read_b64 %s, v%d offset:6144', v(vT + 14, 2), vT + 3)
    for t in range(2):
        a('ds_read_b128 %s, v%d offset:%d', v(R + 16 * t + 8, 4), vT + 2, 1024 * (3 * t + 2))
    for t in range(2):
        for q in range(2):
            a('ds_read_b128 %s, v%d offset:%d', v(R + 16 * t + 4 * q, 4), vT + 2, 1024 * (3 * t + q))
    f1, f2, l1, l2 = vT + 16, vT + 18, vT + 20, vT + 22
    a('s_waitcnt lgkmcnt(6)')
    for t in range(2):
        a('v_min_f32 v%d, v%d, v%d', l1 + t, vNC + t, vT + 14 + t)
    for t in range(2):
        a('v_sub_f32 v%d, v%d, v%d', f1 + t, l1 + t, vNC + t)
        a('v_sub_f32 v%d, v%d, v%d', f2 + t, l1 + t, vT + 14 + t)
    for t in range(2):
        a('v_exp_f32 v%d, v%d', f1 + t, f1 + t)
        a('v_exp_f32 v%d, v%d', f2 + t, f2 + t)
    a('s_waitcnt lgkmcnt(4)')
    for t in range(2):
        a('v_mul_f32 v%d, v%d, v%d', l1 + t, f1 + t, vO + 16 * t + 8)
    for t in range(2):
        a('v_fmac_f32 v%d, v%d, v%d', l1 + t, f2 + t, R + 16 * t + 8)
    for t in range(2):
        a('v_mov_b32 v%d, v%d', l2 + t, l1 + t)
    a('s_nop 0')
    for t in range(2):
        a('v_permlane32_swap_b32 v%d, v%d', l1 + t, l2 + t)
    for t in range(2):
        a('v_rcp_f32 v%d, v%d', l2 + t, l2 + t)
    a('s_waitcnt lgkmcnt(0)')
    setpw(5, vT + 8)
    for t in range(2):
        a('v_mul_f32 v%d, v%d, v%d', f1 + t, f1 + t, l2 + t)
        a('v_mul_f32 v%d, v%d, v%d', f2 + t, f2 + t, l2 + t)
    P = KV[0]
    for t in range(2):
        for r in range(12):
            a('v_mul_f32 v%d, v%d, v%d', vO + 16 * t + r, f1 + t, vO + 16 * t + r)
        for r in range(12):
            a('v_fmac_f32 v%d, v%d, v%d', vO + 16 * t + r, f2 + t, R + 16 * t + r)
        for q in range(6):
            a('v_cvt_pk_bf16_f32 v%d, v%d, v%d', P + 8 * t + q, vO + 16 * t + 2 * q, vO + 16 * t + 2 * q + 1)
        a('buffer_store_dwordx4 %s, v%d, s[%d:%d], s%d offen sc1', v(P + 8 * t, 4), vT + 10, RWS, RWS + 3, 85 + t)
    a('s_nop 0')
    a('v_permlane32_swap_b32 v%d, v%d', P + 4, P + 12)
    a('v_permlane32_swap_b32 v%d, v%d', P + 5, P + 13)
    a('buffer_store_dwordx2 %s, v%d, s[%d:%d], s84 offen offset:512 sc1', v(P + 4, 2), vT + 11, RWS, RWS + 3)
    stamp('A', 'merge')

def a_outproj():
    vA0, vA1, vOA, vST = 240, 241, 242, 244
    a('v_lshrrev_b32 v1, 5, v%d', vLANE)
    a('v_bfe_u32 v2, v%d, 2, 3', vLANE)
    a('v_lshl_add_u32 v1, v1, 4, v2')
    a('v_mul_u32_u24 v1, 160, v1')
    a('v_and_b32 v2, 3, v%d', vLANE)
    a('v_lshl_add_u32 v%d, v2, 3, v1', vA0)
    a('v_add_u32 v%d, %d, v%d', vA1, 10 * 5120, vA0)
    a('v_lshlrev_b32 v%d, 4, v%d', vOA, vLANE)
    a('v_lshrrev_b32 v1, 4, v%d', vLANE)
    a('v_mul_u32_u24 v1, %d, v1', 4 * 5120)
    a('v_and_b32 v2, 15, v%d', vLANE)
    a('v_lshl_add_u32 v%d, v2, 2, v1', vST)
    for r in range(1, 4):
        a('v_add_u32 v%d, %d, v%d', vST + r, 5120 * r, vST)
    a('s_mul_i32 s84, s%d, 2560', sOG)
    a('v_min_u32 v140, 19, v%d', vLANE)
    a('v_lshl_add_u32 v140, v140, 7, s84')
    a('s_lshl2_add_u32 s84, s%d, s%d', sTB, sW)
    a('s_mul_i32 s85, s84, %d', OBLK)
    a('s_add_u32 s85, s85, 0x%x', WS_O)
    a('s_mul_i32 s86, s84, %d', 16 * 5120)
    a('s_mul_i32 s88, s%d, 320', sOG)
    a('s_add_u32 s86, s86, s88')
    a('v_lshlrev_b32 v%d, 7, v%d', vOA + 1, vLANE)
    a('s_lshl_b32 s88, s%d, 12', sTB)
    a('s_add_u32 s88, s88, 0x%x', F4)
    a('s_waitcnt vmcnt(0)')
    stamp('A', 'odrain')
    setflag(87, 1)
    acc, WF = 80, [100, 120]
    def reads(ks):
        f = WF[ks & 1]
        base, off = (vA0, ks * 5120) if ks < 10 else (vA1, (ks - 10) * 5120)
        return ['ds_read_b64_tr_b16 %s, v%d offset:%d' % (v(f + 4 * j + 2 * rd, 2), base, off + 1280 * rd + 32 * j)
                for j in range(5) for rd in range(2)]
    a('s_cmp_eq_u32 s%d, 0', sW)
    a('s_cbranch_scc0 L_f4wait')
    a('s_mov_b32 exec_hi, 0')
    pollflags(['buffer_load_dword v1, v%d, s[%d:%d], s88 offen sc1' % (vOA + 1, RWS, RWS + 3)], 1, sleep=OPT['psleep4'])
    setpw(6, 1)
    a.label('L_f4wait')
    waitpw(vAPW + 1, 6, 1, sleep=1)
    stamp('A', 'f4')
    a('buffer_load_dword v141, v140, s[%d:%d], s85 offen sc1', RWS, RWS + 3)
    for ks in range(20):
        a('buffer_load_dwordx4 %s, v%d, s[%d:%d], s85 offen offset:%d sc1', v(4 * ks, 4), vOA, RWS, RWS + 3, 1024 * (ks & 3))
        if ks & 3 == 3 and ks < 19:
            a('s_add_u32 s85, s85, 4096')
    for r in reads(0):
        a(r)
    for ks in range(20):
        rr = reads(ks + 1) if ks < 19 else []
        a('s_waitcnt vmcnt(%d) lgkmcnt(0)', 19 - ks)
        for j in range(5):
            a('v_mfma_f32_16x16x32_bf16 %s, %s, %s, %s', v(acc + 4 * j, 4), v(4 * ks, 4), v(WF[ks & 1] + 4 * j, 4),
              '0' if ks == 0 else v(acc + 4 * j, 4))
            for r in rr[4 * j:4 * j + 4]:
                a(r)
    a('s_nop 3')
    for j in range(5):
        for r in range(4):
            a('buffer_store_dword v%d, v%d, s[%d:%d], s86 offen offset:%d%s', acc + 4 * j + r, vST + r, R4, R4 + 3, 64 * j, OSC)
    finish('A')

vDX, vDW, vDBX, vDBB = 236, 240, 244, 248
vSPW = 252
vL8, vL128 = 228, 232

def dma(voff, r, soff, imm):
    return 'buffer_load_dwordx4 v%d, s[%d:%d], s%d offen offset:%d lds' % (voff, r, r + 3, soff, imm)

def s_stage(t, emit=None):
    out = []
    slot = (t % 4) * 32768
    out.append('s_add_u32 m0, s74, %d' % slot)
    out.append('s_lshl_b32 s83, s82, 7')
    out.append('s_add_u32 s76, s72, s83')
    if t < 10:
        out += [dma(vDX + i, R0, 76, 1024 * i) for i in range(4)]
        out.append('s_add_u32 m0, s74, %d' % (slot + 16384))
        out.append('s_mul_i32 s83, s82, 245760')
        out.append('s_add_u32 s76, s73, s83')
        out += [dma(vDW + i, R1, 76, 1024 * i) for i in range(4)]
    else:
        out += [dma(vDBX + i, R3, 76, 1024 * i) for i in range(4)]
        out.append('s_add_u32 m0, s75, %d' % (slot + 16384))
        out.append('s_add_u32 s76, s77, s83')
        out += [dma(vDBB + i, R4, 76, 1024 * i) for i in range(3)]
    out.append('s_add_u32 s82, s82, 1')
    out.append('s_cmp_eq_u32 s82, 10')
    out.append('s_cselect_b32 s82, 0, s82')
    if emit is None:
        for o in out:
            a(o)
    return out

def ninstr(t):
    return 0 if t > 19 else (8 if t < 10 else 7)

def exp_acc(dst, x, t1, t2):
    L2E = math.log2(math.e)
    hi = struct.unpack('<f', struct.pack('<f', L2E))[0]
    a('s_mov_b32 s80, 0x%x', f2u(hi))
    a('v_mul_f32 v%d, s80, v%d', t1, x)
    a('v_fma_f32 v%d, v%d, s80, -v%d', t2, x, t1)
    a('v_fmac_f32 v%d, 0x%x, v%d', t2, f2u(L2E - hi), x)
    a('v_exp_f32 v%d, v%d', dst, t1)
    a('v_mul_f32 v%d, 0x%x, v%d', t2, f2u(math.log(2.0)), t2)
    a('v_fmac_f32 v%d, v%d, v%d', dst, dst, t2)

def s_setup():
    a.label('L_roleS')
    a('s_sub_u32 s%d, s%d, 4', sW, sW)
    stamp('S', 'start')
    a('s_cmp_eq_u32 s%d, 15', sCG)
    a('s_cselect_b32 s70, 0, 0x%x', 2048 * 1280)
    a('s_cselect_b32 s71, 0, 0x%x', 640 * 3840)
    srd(R0, sAX, 's70')
    srd(R1, sWQ, 's71')
    a('v_lshrrev_b32 v1, 3, v%d', vLANE)
    a('v_and_b32 v2, 7, v%d', vLANE)
    a('v_lshrrev_b32 v3, 4, v%d', vLANE)
    a('v_xor_b32 v4, v2, v3')
    a('v_mul_u32_u24 v5, 1280, v1')
    a('v_lshl_add_u32 v%d, v4, 4, v5', vDX)
    a('v_xor_b32 v6, 64, v%d', vDX)
    a('v_add_u32 v%d, %d, v6', vDX + 1, 10240 - 1024)
    a('v_add_u32 v%d, %d, v%d', vDX + 2, 2 * (10240 - 1024), vDX)
    a('v_add_u32 v%d, %d, v6', vDX + 3, 3 * (10240 - 1024))
    a('v_and_b32 v7, 15, v%d', vLANE)
    a('v_lshlrev_b32 v8, 2, v3')
    a('v_xor_b32 v7, v7, v8')
    a('v_mul_u32_u24 v8, 3840, v3')
    a('v_lshl_add_u32 v%d, v7, 4, v8', vDW)
    for i in range(1, 4):
        a('v_add_u32 v%d, %d, v%d', vDW + i, (15360 - 1024) * i, vDW)
    a('s_lshl2_add_u32 s72, s%d, s%d', sRB, sW)
    a('s_mul_i32 s72, s72, %d', 32 * 1280)
    a('s_mul_i32 s73, s%d, %d', sW, 16 * 3840)
    a('s_lshl_b32 s70, s%d, 8', sCG)
    a('s_add_u32 s73, s73, s70')
    a('s_lshl_b32 s74, s%d, 12', sW)
    if OPT['stag'] == 1:
        a('s_and_b32 s82, s%d, 3', sI)
        a('s_lshl1_add_u32 s82, s82, s%d', sOG)
        a('s_and_b32 s82, s82, 7')
        a('s_mul_i32 s82, s82, 5')
        a('s_lshr_b32 s82, s82, 2')
    elif OPT['stag'] == 4:
        a('s_and_b32 s82, s%d, 3', sI)
        a('s_mul_i32 s82, s82, 5')
        a('s_lshr_b32 s82, s82, 1')
        a('s_mul_i32 s83, s%d, 5', sOG)
        a('s_lshr_b32 s83, s83, 2')
        a('s_add_u32 s82, s82, s83')
        a('s_add_u32 s83, s%d, 1', sXCD)
        a('s_lshr_b32 s83, s83, 1')
        a('s_add_u32 s82, s82, s83')
        a('s_cmp_ge_u32 s82, 10')
        a('s_cselect_b32 s83, 10, 0')
        a('s_sub_u32 s82, s82, s83')
    elif OPT['stag'] == 2:
        a('s_add_u32 s82, s%d, s%d', sI, sOG)
        a('s_and_b32 s82, s82, 1')
        a('s_mul_i32 s82, s82, 5')
    elif OPT['stag'] == 3:
        a('s_add_u32 s82, s%d, s%d', sI, sOG)
        a('s_and_b32 s82, s82, 3')
        a('s_mul_i32 s82, s82, 5')
        a('s_lshr_b32 s82, s82, 1')
    else:
        a('s_mov_b32 s82, 0')
    if OPT['fine']:
        stamp('S', 'setup')
    s_stage(0)
    if OPT['fine']:
        stamp('S', 'iss0')
    a('s_mul_i32 s70, s%d, 40', sCG)
    a('v_min_u32 v9, 39, v%d', vLANE)
    a('v_add_lshl_u32 v9, v9, s70, 1')
    a('global_load_ushort v10, v9, s[%d:%d]', sLDT, sLDT + 1)
    a('global_load_ushort v11, v9, s[%d:%d]', sLRE, sLRE + 1)
    a('global_load_ushort v12, v9, s[%d:%d]', sLIM, sLIM + 1)
    s_stage(1)
    if OPT['fine']:
        stamp('S', 'iss1')
    srd(R3, sBX, 2048 * 1280)
    a('s_cmp_ge_u32 s%d, 2', sW)
    a('s_cselect_b32 s70, s%d, s%d', sBIM, sBRE)
    a('s_cselect_b32 s71, s%d, s%d', sBIM + 1, sBRE + 1)
    srd(R4, 70, 640 * 1280)
    a('v_and_b32 v5, 3, v1')
    a('v_lshrrev_b32 v6, 2, v1')
    a('v_lshl_add_u32 v5, v6, 3, v5')
    a('v_mul_u32_u24 v5, 1280, v5')
    a('v_lshl_add_u32 v%d, v4, 4, v5', vDBX)
    a('v_xor_b32 v6, 64, v%d', vDBX)
    a('v_add_u32 v%d, %d, v6', vDBX + 1, 16 * 1280 - 1024)
    a('v_add_u32 v%d, %d, v%d', vDBX + 2, 4 * 1280 - 2048, vDBX)
    a('v_add_u32 v%d, %d, v6', vDBX + 3, 20 * 1280 - 3072)
    a('s_lshr_b32 s70, s%d, 1', sW)
    a('s_lshl_b32 s71, s70, 6')
    a('v_xor_b32 v%d, s71, v%d', vDBB, vDX)
    for i in range(1, 3):
        a('v_add_u32 v%d, %d, v%d', vDBB + i, (10240 - 1024) * i, vDBB)
    a('s_and_b32 s71, s%d, 1', sW)
    a('s_mul_i32 s75, s70, 5120')
    a('s_lshl_b32 s77, s71, 11')
    a('s_add_u32 s75, s75, s77')
    a('s_mul_i32 s77, s%d, %d', sCG, 40 * 1280)
    a('s_mul_i32 s71, s71, %d', 16 * 1280)
    a('s_add_u32 s77, s77, s71')
    a('v_and_b32 v5, 3, v%d', vLANE)
    a('v_lshlrev_b32 v5, 8, v5')
    a('v_lshl_add_u32 v5, v%d, 2, v5', vLANE)
    a('v_add_u32 v%d, %d, v5', vSPW, L_PW + 1024)
    s_stage(2)
    if OPT['fine']:
        stamp('S', 'iss2')
    a('s_waitcnt vmcnt(16)')
    stamp('S', 'st0')
    a('s_barrier')
    s_stage(3)

def s_params():
    a('s_cmp_eq_u32 s%d, 0', sW)
    a('s_cbranch_scc0 L_nopar')
    for r in (10, 11, 12):
        a('v_lshlrev_b32 v%d, 16, v%d', r, r)
    exp_acc(13, 10, 14, 15)
    a('v_cvt_pk_bf16_f32 v13, v13, v13')
    a('v_and_b32 v13, 0xffff0000, v13')
    a('v_mul_f32 v14, v13, v11')
    a('v_mul_f32 v15, v13, v12')
    exp_acc(16, 14, 17, 18)
    I2P = 1.0 / (2 * math.pi)
    hi = struct.unpack('<f', struct.pack('<f', I2P))[0]
    a('s_mov_b32 s80, 0x%x', f2u(hi))
    a('v_mul_f32 v17, s80, v15')
    a('v_rndne_f32 v17, v17')
    a('v_fma_f32 v17, v15, s80, -v17')
    a('v_fmac_f32 v17, 0x%x, v15', f2u(I2P - hi))
    a('v_cos_f32 v20, v17')
    a('v_sin_f32 v21, v17')
    a('v_mul_f32 v18, v11, v11')
    a('v_fmac_f32 v18, v12, v12')
    a('v_rcp_f32 v19, v18')
    a('v_mul_f32 v20, v16, v20')
    a('v_mul_f32 v21, v16, v21')
    a('v_fma_f32 v18, -v18, v19, 1.0')
    a('v_fmac_f32 v19, v19, v18')
    a('v_add_f32 v19, v19, v19')
    a('v_add_f32 v17, -1.0, v20')
    a('v_mul_f32 v22, v17, v11')
    a('v_fmac_f32 v22, v21, v12')
    a('v_mul_f32 v23, v17, v12')
    a('v_fma_f32 v23, -v21, v11, v23')
    a('v_mul_f32 v22, v22, v19')
    a('v_mul_f32 v23, v23, v19')
    a('v_lshlrev_b32 v9, 4, v%d', vLANE)
    a('v_add_u32 v9, %d, v9', L_PAR)
    a('ds_write_b128 v9, v[20:23]')
    a('v_mov_b32 v24, v20')
    a('v_sub_f32 v25, 0, v21')
    for k in range(7):
        a('v_mul_f32 v26, v25, v25')
        a('v_add_f32 v27, v24, v24')
        a('v_fma_f32 v24, v24, v24, -v26')
        a('v_mul_f32 v25, v27, v25')
        if k in (2, 6):
            d = vL8 if k == 2 else vL128
            a('v_mov_b32 v%d, v24', d)
            a('v_mov_b32 v%d, v24', d + 1)
            a('v_sub_f32 v%d, 0, v25', d + 2)
            a('v_mov_b32 v%d, v25', d + 3)
    a('s_waitcnt lgkmcnt(0)')
    a.label('L_nopar')

vWOA = 220

def s_wooffs():
    for i in range(5):
        a('v_add_u32 v40, %d, v%d', 64 * i, vLANE)
        a('v_mul_u32_u24 v41, 6554, v40')
        a('v_lshrrev_b32 v41, 16, v41')
        a('v_mul_u32_u24 v42, 10, v41')
        a('v_sub_u32 v40, v40, v42')
        tau(42, 41, 43)
        a('v_mul_u32_u24 v42, 1280, v42')
        a('v_lshl_add_u32 v%d, v40, 4, v42', vWOA + i)
        if 0 < i < 4:
            a('v_subrev_u32 v%d, %d, v%d', vWOA + i, 1024 * i, vWOA + i)

def s_qloader():
    for st in range(1, 10):
        out = {7: 16, 8: 8 + 9, 9: 9}.get(st, 16)
        a('s_waitcnt vmcnt(%d)', out)
        if OPT['fine'] and st in (1, 3, 5, 7, 9):
            stamp('S', 'st%d' % st)
        a('s_barrier')
        if st == 7:
            a('v_and_b32 v32, 15, v%d', vLANE)
            a('v_lshlrev_b32 v32, 2, v32')
            a(dbgload(32, 33))
        if st <= 7:
            s_stage(st + 3)
        if st == 7:
            a('s_cmp_eq_u32 s%d, 1', sW)
            a('s_cselect_b32 s70, s%d, s%d', sCIM, sCRE)
            a('s_cselect_b32 s71, s%d, s%d', sCIM + 1, sCRE + 1)
            a('s_cmp_ge_u32 s%d, 2', sW)
            a('s_cselect_b32 s70, s%d, s70', sWO)
            a('s_cselect_b32 s71, s%d, s71', sWO + 1)
            a('s_mul_i32 s83, s2, 3200')
            a('v_min_u32 v30, 24, v%d', vLANE)
            a('v_lshl_add_u32 v30, v30, 7, s83')
            a('global_load_dword v31, v30, s[70:71]')
        if st == 8:
            s_params()
        if st == 9:
            s_wooffs()
    a('s_waitcnt vmcnt(8)')
    a('v_cmp_eq_u32 vcc, 0, v33')
    a('s_cbranch_vccz L_clrok')
    pollflags([dbgload(32, 33)], 33)
    a.label('L_clrok')
    a('s_barrier')
    stamp('S', 'qend')

vPAR = 200

def s_b1():
    F = [40, 68]
    vXR, vBR = 96, 100
    a('v_and_b32 v1, 15, v%d', vLANE)
    a('v_lshrrev_b32 v2, 4, v%d', vLANE)
    a('v_lshrrev_b32 v3, 1, v1')
    a('v_xor_b32 v3, v3, v2')
    a('v_lshlrev_b32 v3, 4, v3')
    a('v_lshl_add_u32 v4, v1, 7, v3')
    a('v_add_u32 v%d, s74, v4', vXR)
    a('v_xor_b32 v%d, 64, v%d', vXR + 1, vXR)
    a('v_lshrrev_b32 v5, 3, v1')
    a('v_lshl_add_u32 v4, v5, 12, v4')
    a('v_add_u32 v%d, 16384, v4', vBR)
    a('v_xor_b32 v%d, 64, v%d', vBR + 1, vBR)
    for k in range(2):
        a('v_add_u32 v%d, 0x10000, v%d', vXR + 2 + k, vXR + k)
        a('v_add_u32 v%d, 0x10000, v%d', vBR + 2 + k, vBR + k)
    a('v_and_b32 v6, 7, v%d', vLANE)
    a('v_lshlrev_b32 v6, 4, v6')
    a('v_add_u32 v6, %d, v6', L_PAR)
    for j in range(5):
        a('ds_read_b128 %s, v6 offset:%d', v(vPAR + 4 * j, 4), 128 * j)
    a('v_lshlrev_b32 v5, 31, v5')
    a('s_waitcnt lgkmcnt(0)')
    for j in range(5):
        a('v_xor_b32 v%d, v5, v%d', vPAR + 4 * j + 1, vPAR + 4 * j + 1)
        a('v_xor_b32 v%d, v5, v%d', vPAR + 4 * j + 2, vPAR + 4 * j + 2)
    def reads(t, ks, f):
        slot = t % 4
        hi, lo = slot >> 1, (slot & 1) * 32768
        r = ['ds_read_b128 %s, v%d offset:%d' % (v(f + 4 * T, 4), vXR + 2 * hi + ks, lo + 2048 * T) for T in range(2)]
        r += ['ds_read_b128 %s, v%d offset:%d' % (v(f + 8 + 4 * j, 4), vBR + 2 * hi + ks, lo + 1024 * j) for j in range(5)]
        return r
    def mfmas(f, first):
        return ['v_mfma_f32_16x16x32_bf16 %s, %s, %s, %s' % (v(8 * j + 4 * T, 4), v(f + 4 * T, 4), v(f + 8 + 4 * j, 4),
                '0' if first else v(8 * j + 4 * T, 4)) for j in range(5) for T in range(2)]
    def weave(ms, others):
        n = len(ms)
        k = 0
        for i_, m in enumerate(ms):
            a(m)
            while k < len(others) * (i_ + 1) // n:
                a(others[k])
                k += 1
    DEP = OPT['b1dep']
    q = [10]
    def vmwait(t):
        n = sum(7 for x in q if x > t)
        return n
    a('s_waitcnt vmcnt(0)')
    setpw(1, 104)
    if OPT['hold']:
        a('v_subrev_u32 v106, 1024, v%d', vPW)
        waitpw(106, 1, 105, sleep=1)
    for t in range(11, 11 + DEP - 1):
        s_stage(t)
        q.append(t)
    waitpw(vSPW, 1, 105)
    for r in reads(10, 0, F[0]):
        a(r)
    for u in range(10):
        t = 10 + u
        if OPT['fine'] and u in (0, 3, 6, 9):
            stamp('S', 'b1w%d' % u)
        for r in reads(t, 1, F[1]):
            a(r)
        nt = t + DEP
        st_ = s_stage(nt, emit=False) if nt <= 19 else []
        m0_ = mfmas(F[0], u == 0)
        a('s_waitcnt lgkmcnt(7)')
        weave(m0_, st_)
        if nt <= 19:
            q.append(nt)
        m1_ = mfmas(F[1], False)
        if u < 9:
            a('s_waitcnt vmcnt(%d) lgkmcnt(0)', vmwait(t + 1))
            setpw(u + 2, 104)
            for m in m1_[:5]:
                a(m)
            waitpw(vSPW, u + 2, 105)
            weave(m1_[5:], reads(t + 1, 0, F[0]))
        else:
            a('s_waitcnt lgkmcnt(0)')
            for m in m1_:
                a(m)
    stamp('S', 'b1gemm')

def s_scan():
    ROR = 'row_ror:8 row_mask:0xf bank_mask:0xf'
    a('s_setprio 1')
    vE = 106
    a('v_and_b32 v100, 7, v%d', vLANE)
    a('v_bfe_u32 v101, v%d, 3, 1', vLANE)
    a('v_lshlrev_b32 v101, 2, v101')
    a('v_lshl_add_u32 v100, v100, 3, v101')
    a('v_lshrrev_b32 v101, 4, v%d', vLANE)
    a('v_mul_u32_u24 v101, 320, v101')
    a('s_mul_i32 s70, s%d, 1280', sW)
    a('s_add_u32 s70, s70, %d', L_EL)
    a('v_add3_u32 v%d, v100, v101, s70', vE)
    tmp = 40
    for j in range(5):
        for k in range(8):
            a('v_mul_f32_dpp v%d, v%d, v%d %s', tmp + k, 8 * j + k, vPAR + 4 * j + 3, ROR)
        for k in range(8):
            a('v_fma_f32 v%d, v%d, v%d, v%d', 8 * j + k, vPAR + 4 * j + 2, 8 * j + k, tmp + k)
    e = [[8 * j for j in range(5)], [50 + j for j in range(5)], [56 + j for j in range(5)]]
    cur = e[0]
    for k in range(1, 8):
        nx = e[1 + (k & 1)]
        for j in range(5):
            a('v_fma_f32 v%d, v%d, v%d, v%d', nx[j], vPAR + 4 * j, cur[j], 8 * j + k)
        for j in range(5):
            a('v_fmac_f32_dpp v%d, v%d, v%d %s', nx[j], cur[j], vPAR + 4 * j + 1, ROR)
        cur = nx
    for j in range(5):
        a('ds_write_b32 v%d, v%d offset:%d', vE, cur[j], 64 * j)
    a('s_waitcnt lgkmcnt(0)')
    setpw(11, 104)
    stamp('S', 'pass1')
    a('s_cmp_eq_u32 s%d, 0', sW)
    a('s_cbranch_scc0 L_nocol')
    def chain(dst, src, L, add):
        a('v_fma_f32 v%d, v%d, v%d, v%d', dst, L, src, add)
        a('v_fma_f32 v%d, v%d, v%d, v%d', dst + 1, L, src + 1, add + 1)
        a('v_fmac_f32 v%d, v%d, v%d', dst, L + 2, src + 1)
        a('v_fmac_f32 v%d, v%d, v%d', dst + 1, L + 3, src)
    a('s_lshl_b32 s70, s%d, 13', sCG)
    a('s_add_u32 s70, s70, 0x%x', WS_E)
    a('s_add_u32 s70, s70, s%d', sWS)
    a('s_addc_u32 s71, s%d, 0', sWS + 1)
    srd(R5, 70, 8192)
    a('s_sub_u32 s70, 15, s%d', sRB)
    a('s_lshl_b32 s70, s70, 9')
    a('s_add_u32 s71, s70, 4096')
    a('s_lshl_b32 s78, s%d, 11', sCG)
    a('s_add_u32 s78, s78, 0x%x', F2)
    a('s_lshl_b32 s79, s%d, 7', sRB)
    a('s_add_u32 s79, s79, s78')
    a('v_lshlrev_b32 v102, 3, v%d', vLANE)
    a('v_add_u32 v103, %d, v102', L_EL)
    waitpw(vSPW, 11, 105, sleep=1)
    ES, EG, PP = 110, 142, 172
    for sg in range(16):
        a('ds_read_b64 %s, v103 offset:%d', v(ES + 2 * sg, 2), 320 * sg)
    a('s_waitcnt lgkmcnt(0)')
    src = ES
    for sg in range(1, 16):
        dst = PP + 2 * (sg & 1)
        chain(dst, src, vL8, ES + 2 * sg)
        src = dst
    a('s_mov_b32 exec_hi, 0xff')
    a('buffer_store_dwordx2 %s, v102, s[%d:%d], s70 offen sc1', v(src, 2), R5, R5 + 3)
    a('s_mov_b32 exec_hi, -1')
    a('s_waitcnt vmcnt(0)')
    setflag(79, 101)
    a('v_lshlrev_b32 v100, 7, v%d', vLANE)
    a('s_cmp_eq_u32 s%d, 0', sRB)
    a('s_cbranch_scc1 L_nof2')
    a('s_bfm_b64 exec, s%d, 0', sRB)
    pollflags(['buffer_load_dword v101, v100, s[%d:%d], s78 offen sc1' % (RWS, RWS + 3)], 101, sleep=4)
    a.label('L_nof2')
    a('s_mov_b32 exec_hi, 0xff')
    for k in range(15, 0, -1):
        a('buffer_load_dwordx2 %s, v102, s[%d:%d], s%d offen offset:%d sc1', v(EG + 2 * (15 - k), 2), R5, R5 + 3,
          71 if k >= 8 else 70, 512 * (k & 7))
    a('v_add_u32 v103, %d, v102', L_PL)
    a('s_waitcnt vmcnt(0)')
    src = EG
    for n in range(1, 15):
        dst = PP + 2 * (n & 1)
        chain(dst, src, vL128, EG + 2 * n)
        src = dst
    for sg in range(16):
        a('ds_write_b64 v103, %s offset:%d', v(src, 2), 320 * sg)
        if sg < 15:
            dst = EG + 2 * sg
            chain(dst, src, vL8, ES + 2 * sg)
            src = dst
    a('s_mov_b32 exec_hi, -1')
    a('s_waitcnt lgkmcnt(0)')
    setpw(12, 104)
    a('s_branch L_coldone')
    a.label('L_nocol')
    srd(R0, sWO, 640 * 1280)
    a('s_cmp_eq_u32 s%d, 2', sW)
    a('s_cselect_b32 s70, s%d, s%d', sCRE, sCIM)
    a('s_cselect_b32 s71, s%d, s%d', sCRE + 1, sCIM + 1)
    a('s_cmp_eq_u32 s%d, 1', sW)
    a('s_cselect_b32 s70, s%d, s70', sWO)
    a('s_cselect_b32 s71, s%d, s71', sWO + 1)
    a('s_mul_i32 s78, s%d, 25600', sI)
    a('v_min_u32 v100, 49, v%d', vLANE)
    a('v_lshl_add_u32 v100, v100, 7, s78')
    for k in range(4):
        if OPT['cpre']:
            a('global_load_dword v101, v100, s[70:71]')
            if k < 3:
                a('v_add_u32 v100, 6400, v100')
            a('s_waitcnt vmcnt(0)')
    waitpw(vSPW, 11, 105, sleep=2)
    a('s_sub_u32 s78, s%d, 1', sW)
    a('s_mul_i32 s79, s78, 40960')
    a('s_mul_i32 s70, s%d, 160', sOG)
    a('s_add_u32 s79, s79, s70')
    a('s_mul_i32 s78, s78, 5120')
    a.label('L_woloop')
    a('s_mov_b32 m0, s78')
    a('s_add_u32 s70, s78, 4096')
    for i in range(4):
        a(dma(vWOA + i, R0, 79, 1024 * i))
    a('s_mov_b32 m0, s70')
    a('s_add_u32 s78, s78, %d', 3 * 5120)
    a(dma(vWOA + 4, R0, 79, 0))
    a('s_add_u32 s79, s79, %d', 3 * 40960)
    a('s_waitcnt vmcnt(%d)', OPT['thr'] // 2)
    a('s_cmp_lt_u32 s78, %d', 20 * 5120)
    a('s_cbranch_scc1 L_woloop')
    a.label('L_coldone')
    a('v_lshlrev_b32 v100, 2, v%d', vLANE)
    a('v_add_u32 v100, %d, v100', L_PW + 1024)
    a('v_and_b32 v101, 15, v%d', vLANE)
    a('v_lshrrev_b32 v102, 4, v%d', vLANE)
    a('v_bfe_u32 v103, v%d, 1, 2', vLANE)
    a('v_xor_b32 v103, v103, v102')
    a('v_lshlrev_b32 v103, 4, v103')
    a('s_mul_i32 s70, s%d, 5120', sW)
    a('s_add_u32 s70, s70, %d', L_HT)
    a('v_lshl_add_u32 v107, v101, 6, v103')
    a('v_add_u32 v107, s70, v107')
    a('v_bfe_u32 v103, v%d, 2, 2', vLANE)
    a('v_lshrrev_b32 v108, 5, v%d', vLANE)
    a('v_lshl_add_u32 v109, v108, 3, v103')
    a('v_lshlrev_b32 v109, 6, v109')
    a('v_lshrrev_b32 v103, 1, v103')
    a('v_bfe_u32 v110, v%d, 4, 1', vLANE)
    a('v_bfe_u32 v111, v%d, 1, 1', vLANE)
    a('v_lshl_add_u32 v111, v110, 1, v111')
    a('v_xor_b32 v111, v111, v103')
    a('v_lshl_add_u32 v109, v111, 4, v109')
    a('v_and_b32 v111, 1, v%d', vLANE)
    a('v_lshl_add_u32 v109, v111, 3, v109')
    a('v_xor_b32 v112, 32, v109')
    a('v_add_u32 v109, s70, v109')
    a('v_add_u32 v112, s70, v112')
    a('v_mul_u32_u24 v110, %d, v110', HBLK)
    a('v_mul_u32_u24 v108, %d, v108', 80 * 256)
    a('v_lshl_add_u32 v110, v101, 4, v110')
    a('v_add_u32 v110, v110, v108')
    a('s_lshl2_add_u32 s70, s%d, s%d', sRB, sW)
    a('s_mul_i32 s71, s70, %d', 2 * HBLK)
    a('s_mul_i32 s78, s%d, 1280', sCG)
    a('s_add_u32 s71, s71, s78')
    a('s_add_u32 s71, s71, 0x%x', WS_H)
    a('s_lshl4_add_u32 s70, s70, s%d', sCG)
    flagaddr(70, 70, F3, 78)
    waitpw(100, 12, 105, sleep=4)
    stamp('S', 'carry')
    for j in range(5):
        a('ds_read_b32 v%d, v%d offset:%d', 50 + j, vE, L_PL - L_EL + 64 * j)
    a('s_waitcnt lgkmcnt(0)')
    for k in range(8):
        pr = [50 + j if k == 0 else 8 * j + k - 1 for j in range(5)]
        for j in range(5):
            a('v_fmac_f32 v%d, v%d, v%d', 8 * j + k, vPAR + 4 * j, pr[j])
        for j in range(5):
            a('v_fmac_f32_dpp v%d, v%d, v%d %s', 8 * j + k, pr[j], vPAR + 4 * j + 1, ROR)
    for j in range(5):
        for q in range(4):
            a('v_cvt_pk_bf16_f32 v%d, v%d, v%d', 60 + 4 * j + q, 8 * j + 2 * q, 8 * j + 2 * q + 1)
        a('ds_write_b128 v107, %s offset:%d', v(60 + 4 * j, 4), 1024 * j)
    a('s_waitcnt lgkmcnt(0)')
    for j in range(5):
        a('ds_read_b64_tr_b16 %s, v109 offset:%d', v(4 * j, 2), 1024 * j)
        a('ds_read_b64_tr_b16 %s, v112 offset:%d', v(4 * j + 2, 2), 1024 * j + 256)
    for j in range(5):
        a('s_waitcnt lgkmcnt(%d)', 8 - 2 * j)
        a('buffer_store_dwordx4 %s, v110, s[%d:%d], s71 offen offset:%d sc1', v(4 * j, 4), RWS, RWS + 3, 256 * j)
    setpw(13, 104)

def s_b3():
    vCA, vCR, vHA = 232, 234, 236
    acc, HF, CF = 0, 80, [208, 216]
    a('s_cmp_ge_u32 s%d, 2', sW)
    a('s_cselect_b32 s78, s%d, s%d', sCIM, sCRE)
    a('s_cselect_b32 s79, s%d, s%d', sCIM + 1, sCRE + 1)
    srd(R1, 78, 640 * 1280)
    srd(R6, sOUT, 2048 * 1280 * 4)
    a('v_mov_b32 v%d, v%d', vCA, vDX)
    a('v_mov_b32 v%d, v%d', vCA + 1, vDX + 1)
    a('v_and_b32 v40, 15, v%d', vLANE)
    a('v_lshrrev_b32 v41, 4, v%d', vLANE)
    a('v_lshrrev_b32 v42, 1, v40')
    a('v_xor_b32 v42, v42, v41')
    a('v_lshlrev_b32 v42, 4, v42')
    a('v_lshl_add_u32 v42, v40, 7, v42')
    a('s_mul_i32 s74, s%d, %d', sW, REGSZ)
    a('s_add_u32 s74, s74, %d', L_REG)
    a('v_xor_b32 v43, 64, v42')
    a('v_add_u32 v%d, s74, v42', vCR)
    a('v_add_u32 v%d, s74, v43', vCR + 1)
    a('v_lshlrev_b32 v%d, 4, v%d', vHA, vLANE)
    a('s_and_b32 s78, s%d, 1', sW)
    a('s_mul_i32 s72, s%d, %d', sOG, 80 * 1280)
    a('s_mul_i32 s73, s78, 640')
    a('s_add_u32 s72, s72, s73')
    a('s_mul_i32 s79, s%d, %d', sW, 40 * 256)
    a('s_add_u32 s79, s79, 0x%x', WS_H)
    a('s_lshl_b32 s78, s78, 1')
    for l in range(4):
        a('s_xor_b32 s80, s78, %d', l)
        a('s_lshl2_add_u32 s80, s%d, s80', sTB)
        a('s_mul_i32 s80, s80, %d', HBLK)
        a('s_add_u32 s%d, s80, s79', 84 + l)
    a('v_lshlrev_b32 v%d, 7, v%d', vHA + 1, vLANE)
    a('s_lshl_b32 s88, s%d, 12', sTB)
    a('s_add_u32 s88, s88, 0x%x', F3)
    a('s_waitcnt vmcnt(0)')
    setflag(70, 40)
    stamp('S', 'hpub')
    waitpw(vSPW, 13, 40, sleep=2)
    def cdma(n):
        kp, j = divmod(n, 5)
        a('s_add_u32 m0, s74, %d', 2048 * (n % 4))
        a('s_add_u32 s76, s72, %d', 16 * 1280 * j + 128 * kp)
        a(dma(vCA, R1, 76, 0))
        a(dma(vCA + 1, R1, 76, 1024))
    for n in range(4):
        cdma(n)
    a('s_waitcnt vmcnt(0)')
    setpw(14, 40)
    a('s_cmp_eq_u32 s%d, 0', sW)
    a('s_cbranch_scc0 L_f3wait')
    a('s_mov_b32 exec_hi, 0')
    pollflags(['buffer_load_dword v40, v%d, s[%d:%d], s88 offen sc1' % (vHA + 1, RWS, RWS + 3)], 40, sleep=4)
    setpw(15, 40)
    a.label('L_f3wait')
    a('v_lshlrev_b32 v41, 2, v%d', vLANE)
    a('v_add_u32 v41, %d, v41', L_PW + 1024)
    waitpw(41, 15, 40, sleep=8)
    stamp('S', 'f3')
    def hload(l, ks):
        return 'buffer_load_dwordx4 %s, v%d, s[%d:%d], s%d offen offset:%d sc1' % (
            v(HF + 16 * (ks % 8) + 4 * l, 4), vHA, RWS, RWS + 3, 84 + l, 1024 * (ks & 3))
    a('s_lshl2_add_u32 s78, s%d, s%d', sOG, sW)
    a('s_mul_i32 s78, s78, 5120')
    a('s_mul_i32 s79, s%d, %d', sTB, 4 * HBLK)
    a('s_add_u32 s78, s78, s79')
    a('s_add_u32 s78, s78, 0x%x', WS_H)
    a('v_min_u32 v41, 39, v%d', vLANE)
    a('v_lshlrev_b32 v41, 7, v41')
    a('buffer_load_dword v40, v41, s[%d:%d], s78 offen sc1', RWS, RWS + 3)
    a('s_waitcnt vmcnt(0)')
    for ks in range(8):
        for l in range(4):
            a(hload(l, ks))
            if l & 1:
                a('s_waitcnt vmcnt(%d)', OPT['thr'])
        if ks & 3 == 3:
            for l in range(4):
                a('s_add_u32 s%d, s%d, 4096', 84 + l, 84 + l)
    a('v_subrev_u32 v41, 1024, v%d', vPW)
    waitpw(41, 3, 40, sleep=8)
    a('s_setprio 0')
    a('s_waitcnt vmcnt(0)')
    stamp('S', 'b3go')
    def creads(n):
        return ['ds_read_b128 %s, v%d offset:%d' % (v(CF[n & 1] + 4 * k, 4), vCR + k, 2048 * (n % 4)) for k in range(2)]
    q = []
    def waitfor(tag):
        idx = max(i for i, x in enumerate(q) if x == tag) if tag in q else -1
        n = len(q) - 1 - idx
        del q[:idx + 1]
        return n
    for r in creads(0):
        a(r)
    a('s_waitcnt lgkmcnt(0)')
    cdma(4)
    q += [4, 4]
    for n in range(25):
        kp, j = divmod(n, 5)
        if n + 1 < 25:
            if (n + 1) in q:
                a('s_waitcnt vmcnt(%d)', waitfor(n + 1))
            for r in creads(n + 1):
                a(r)
        if n == 20 and 'h' in q:
            a('s_waitcnt vmcnt(%d)', waitfor('h'))
        for k in range(2):
            ks = 2 * kp + k
            for l in range(4):
                d = acc + 20 * l + 4 * j
                a('v_mfma_f32_16x16x32_bf16 %s, %s, %s, %s', v(d, 4), v(CF[n & 1] + 4 * k, 4), v(HF + 16 * (ks % 8) + 4 * l, 4),
                  '0' if ks == 0 else v(d, 4))
        if n == 4:
            for ks in (8, 9):
                for l in range(4):
                    a(hload(l, ks))
                    q.append('h')
        if n + 1 < 25:
            a('s_waitcnt lgkmcnt(0)')
            if n + 5 < 25:
                cdma(n + 5)
                q += [n + 5, n + 5]
    stamp('S', 'b3gemm')
    a('s_setprio 1')
    vX, vD, vRA, vOA, T = 120, 132, 144, 150, 160
    a('s_lshl1_add_u32 s78, s%d, 0', sW)
    a('s_and_b32 s78, s78, 2')
    a('s_lshr_b32 s79, s%d, 1', sW)
    a('s_xor_b32 s78, s78, s79')
    a('s_lshl2_add_u32 s78, s%d, s78', sTB)
    a('s_mul_i32 s80, s78, %d', 16 * 1280)
    a('s_mul_i32 s81, s%d, 160', sOG)
    a('s_add_u32 s80, s80, s81')
    a('s_mul_i32 s82, s78, %d', 16 * 5120)
    a('s_lshl1_add_u32 s82, s81, s82')
    a('s_add_u32 s82, s82, 2560')
    a('s_add_u32 s84, s%d, s81', sDSK)
    a('s_addc_u32 s85, s%d, 0', sDSK + 1)
    a('s_xor_b32 s86, s%d, 1', sW)
    a('s_mul_i32 s86, s86, %d', REGSZ)
    a('s_add_u32 s86, s86, %d', L_REG)
    a('s_xor_b32 s87, s%d, 3', sW)
    a('s_mul_i32 s87, s87, %d', REGSZ)
    a('s_add_u32 s87, s87, %d', L_REG)
    a('s_mul_i32 s79, s79, %d', 16 * 336)
    for i in range(5):
        a('v_add_u32 v%d, %d, v%d', T, 64 * i, vLANE)
        a('v_mul_u32_u24 v%d, 3277, v%d', T + 1, T)
        a('v_lshrrev_b32 v%d, 16, v%d', T + 1, T + 1)
        a('v_add_lshl_u32 v%d, v%d, v%d, 4', vRA + i, T, T + 1)
        a('v_add_u32 v%d, s79, v%d', vRA + i, vRA + i)
        a('v_mul_u32_u24 v%d, 20, v%d', T + 2, T + 1)
        a('v_sub_u32 v%d, v%d, v%d', T, T, T + 2)
        a('v_lshlrev_b32 v%d, 3, v%d', T + 2, T)
        a('global_load_dwordx2 %s, v%d, s[84:85]', v(vD + 2 * i, 2), T + 2)
        a('v_mul_u32_u24 v%d, 1280, v%d', T + 3, T + 1)
        a('v_add_u32 v%d, v%d, v%d', T + 3, T + 3, T + 2)
        a('buffer_load_dwordx2 %s, v%d, s[%d:%d], s80 offen', v(vX + 2 * i, 2), T + 3, R3, R3 + 3)
        a('v_mul_u32_u24 v%d, 5120, v%d', T + 1, T + 1)
        a('v_lshl_add_u32 v%d, v%d, 4, v%d', vOA + i, T, T + 1)
    a('v_subrev_u32 v%d, 1024, v%d', T, vSPW)
    waitpw(T, 5, T + 1, sleep=2)
    a('v_add_u32 v%d, s74, v%d', T, vHA)
    for qd in range(10):
        a('ds_write_b128 v%d, %s offset:%d', T, v(acc + 40 + 4 * qd, 4), 1024 * qd)
    a('s_waitcnt lgkmcnt(0)')
    setpw(16, T + 1)
    a('v_xor_b32 v%d, 256, v%d', T + 2, vPW)
    a('v_add_u32 v%d, s86, v%d', T, vHA)
    a('v_and_b32 v%d, 15, v%d', T + 3, vLANE)
    a('v_mul_u32_u24 v%d, 336, v%d', T + 3, T + 3)
    a('v_and_b32 v%d, 48, v%d', T + 4, vLANE)
    a('v_add3_u32 v%d, v%d, v%d, s86', T + 3, T + 3, T + 4)
    waitpw(T + 2, 16, T + 1)
    for qd in range(10):
        a('ds_read_b128 %s, v%d offset:%d', v(acc + 40 + 4 * qd, 4), T, 1024 * qd)
    a('s_waitcnt lgkmcnt(0)')
    for qd in range(10):
        l, j = divmod(qd, 5)
        for e in range(4):
            a('v_add_f32 v%d, v%d, v%d', acc + 4 * qd + e, acc + 4 * qd + e, acc + 40 + 4 * qd + e)
        a('ds_write_b128 v%d, %s offset:%d', T + 3, v(acc + 4 * qd, 4), 16 * 336 * l + 64 * j)
    a('s_waitcnt lgkmcnt(0)')
    setpw(17, T + 1)
    a('v_xor_b32 v%d, 512, v%d', T + 2, vPW)
    a('s_waitcnt vmcnt(0)')
    U = 80
    for i in range(5):
        for hf in range(2):
            a('v_lshlrev_b32 v%d, 16, v%d', T + 4, vX + 2 * i + hf)
            a('v_lshlrev_b32 v%d, 16, v%d', T + 5, vD + 2 * i + hf)
            a('v_and_b32 v%d, 0xffff0000, v%d', T + 6, vX + 2 * i + hf)
            a('v_and_b32 v%d, 0xffff0000, v%d', T + 7, vD + 2 * i + hf)
            a('v_mul_f32 v%d, v%d, v%d', U + 4 * i + 2 * hf, T + 4, T + 5)
            a('v_mul_f32 v%d, v%d, v%d', U + 4 * i + 2 * hf + 1, T + 6, T + 7)
    waitpw(T + 2, 17, T + 1)
    for i in range(5):
        a('v_add_u32 v%d, s86, v%d', T + 4, vRA + i)
        a('v_add_u32 v%d, s87, v%d', T + 5, vRA + i)
        a('ds_read_b128 %s, v%d', v(acc + 8 * i, 4), T + 4)
        a('ds_read_b128 %s, v%d', v(acc + 8 * i + 4, 4), T + 5)
    for i in range(5):
        a('s_waitcnt lgkmcnt(%d)', 8 - 2 * i)
        for e in range(4):
            a('v_add_f32 v%d, v%d, v%d', U + 4 * i + e, U + 4 * i + e, acc + 8 * i + e)
        for e in range(4):
            a('v_add_f32 v%d, v%d, v%d', U + 4 * i + e, U + 4 * i + e, acc + 8 * i + 4 + e)
        a('buffer_store_dwordx4 %s, v%d, s[%d:%d], s82 offen%s', v(U + 4 * i, 4), vOA + i, R6, R6 + 3, OSC)
    finish('S')

prologue()
a_setup()
a_qphase()
a_att_setup()
a_attention()
a_outproj()
s_setup()
s_qloader()
s_b1()
s_scan()
s_b3()
a.label('L_codeend')

errs = check(a.lines)
for e_ in errs:
    print('HAZARD', e_, file=sys.stderr)

head = open('cdna_kernels/%s.s.ref' % NAME).read().split('; @launch')[0]
out = head + '; @launch grid=(256,1,1) block=(512,1,1) lds=%d\n' % LDS_BYTES
out += '''.amdgcn_target "amdgcn-amd-amdhsa--gfx950"
.text
.globl %s_kernel
.p2align 8
.type %s_kernel,@function
%s_kernel:
''' % (NAME, NAME, NAME)
out += a.text()
out += '''.section .rodata,"a"
.p2align 6
.amdhsa_kernel %s_kernel
  .amdhsa_next_free_vgpr 256
  .amdhsa_next_free_sgpr 102
  .amdhsa_accum_offset 256
  .amdhsa_group_segment_fixed_size 0
  .amdhsa_kernarg_size 120
  .amdhsa_user_sgpr_count 2
  .amdhsa_user_sgpr_kernarg_segment_ptr 1
  .amdhsa_system_sgpr_workgroup_id_x 1
.end_amdhsa_kernel
''' % NAME
open(sys.argv[1], 'w').write(out)
if DIAG:
    import json
    json.dump(nstamp, open(sys.argv[1] + '.stamps.json', 'w'))
if errs:
    sys.exit(1)
```

```python
import sys, math, struct
from asmlib import Asm, v, s, check

NAME = 'concat_heads__mha_block__ssm_conv_s5__prompt'
OPT = dict(diag=0, b3start=12, force_fb=0, psleep=2, fine=0, cpre=1, stag=4, b1dep=2, rot=1, thr=4, hold=0, codepre=1, psleep4=2, padto=0, outsc1=1, gate4=17, early0=1, st10=1, b1prio=0, probe='', probewg=-1)
for a_ in sys.argv[2:]:
    k_, v_ = a_.split('=')
    OPT[k_] = v_ if k_ == 'probe' else int(v_)
DIAG = OPT['diag']
OSC = ['', ' sc1', ' nt', ' sc1 nt'][OPT['outsc1']]

def f2u(x):
    return struct.unpack('<I', struct.pack('<f', x))[0]

BLK, VOFF, VROW = 247808, 164864, 10368
WS_H, HBLK = 0x800000, 40960
WS_O, OBLK = 0xD00000, 20480
WS_E = 0xF80000
WS_F = 0xFA0000
F1, F2, F3, F4 = WS_F, WS_F + 0x8000, WS_F + 0x10000, WS_F + 0x30000
WS_END = WS_F + 0x50000
WS_DIAG = 0x1000000
OOB = 0x7F000000
L_HT, L_EL, L_PL, L_PAR = 131072, 151552, 156672, 161024
L_PAR = 131072 + 0
L_WO = 0
L_REG, REGSZ = 102400, 14848
L_PW = 161792
LDS_BYTES = 163840
sAX, sWQ, sWO, sBX, sLRE, sLIM, sBRE, sBIM, sCRE, sCIM, sLDT, sDSK, sOUT, sDBG, sWS = range(4, 34, 2)
sW, sI, sXCD = 34, 35, 3
R0, R1, RWS, R3, R4, R5, R6 = 36, 40, 44, 48, 52, 56, 60
sRB, sCG, sHD, sQB, sTB, sOG = 64, 65, 66, 67, 68, 69
sSPIN = 96
sHI = 94
vLANE, vPW, vTS = 254, 253, 255
SPIN_MAX = 1 << 19

a = Asm()
nstamp = {}

def stamp(role, name):
    if OPT['probe'] == role + name:
        a('s_memrealtime s[98:99]')
        a('s_waitcnt lgkmcnt(0)')
        a('s_mov_b32 s97, s98')
    if not DIAG:
        return
    l = nstamp.setdefault(role, [])
    idx = len(l)
    l.append(name)
    a('s_memtime s[98:99]')
    a('s_memrealtime s[100:101]')
    a('s_waitcnt lgkmcnt(0)')
    a('v_writelane_b32 v%d, s98, %d', vTS, idx)
    a('v_writelane_b32 v%d, s100, %d', vTS, 32 + idx)

def srd(r, base, nbytes):
    a('s_mov_b32 s%d, s%d', r, base)
    a('s_mov_b32 s%d, s%d', r + 1, base + 1)
    if isinstance(nbytes, int):
        a('s_mov_b32 s%d, 0x%x', r + 2, nbytes)
    else:
        a('s_mov_b32 s%d, %s', r + 2, nbytes)
    a('s_mov_b32 s%d, 0x20000', r + 3)

def setpw(val, tmp):
    a('v_mov_b32 v%d, %d', tmp, val)
    a('ds_write_b32 v%d, v%d', vPW, tmp)

def waitpw(vaddr, val, tmp, sleep=0):
    L = a.newlabel('pw')
    D = a.newlabel('pwd')
    a.label(L)
    a('ds_read_b32 v%d, v%d', tmp, vaddr)
    a('s_waitcnt lgkmcnt(0)')
    a('v_cmp_gt_u32 vcc, %d, v%d', val, tmp)
    a('s_cbranch_vccz %s', D)
    if sleep:
        a('s_sleep %d', sleep)
    a('s_sub_u32 s%d, s%d, 1', sSPIN, sSPIN)
    a('s_cbranch_scc0 %s', L)
    a('s_endpgm')
    a.label(D)

def pollflags(loads, tmp, sleep=1):
    L = a.newlabel('pf')
    D = a.newlabel('pfd')
    a.label(L)
    for l in loads:
        a(l)
    a('s_waitcnt vmcnt(0)')
    for i in range(1, len(loads)):
        a('v_and_b32 v%d, v%d, v%d', tmp, tmp, tmp + i)
    a('v_cmp_eq_u32 vcc, 0, v%d', tmp)
    a('s_cbranch_vccz %s', D)
    a('s_mov_b64 exec, vcc')
    if sleep:
        a('s_sleep %d', sleep)
    a('s_sub_u32 s%d, s%d, 1', sSPIN, sSPIN)
    a('s_cbranch_scc0 %s', L)
    a('s_endpgm')
    a.label(D)
    a('s_mov_b64 exec, -1')

def dbgload(va, vd):
    return 'global_load_dword v%d, v%d, s[%d:%d] sc1' % (vd, va, sDBG, sDBG + 1)

def flagaddr(dst, idx, base, t):
    a('s_lshl_b32 s%d, s%d, 7', dst, idx)
    a('s_add_u32 s%d, s%d, 0x%x', dst, dst, base)

def setflag(soff, tmp):
    a('v_mov_b32 v%d, 1', tmp)
    a('s_mov_b64 exec, 1')
    a('buffer_store_dword v%d, off, s[%d:%d], s%d sc1', tmp, RWS, RWS + 3, soff)
    a('s_mov_b64 exec, -1')

def tau(dst, src, t):
    a('v_and_b32 v%d, 0x13, v%d', dst, src)
    a('v_and_b32 v%d, 4, v%d', t, src)
    a('v_lshl_or_b32 v%d, v%d, 1, v%d', dst, t, dst)
    a('v_and_b32 v%d, 8, v%d', t, src)
    a('v_lshrrev_b32 v%d, 1, v%d', t, t)
    a('v_or_b32 v%d, v%d, v%d', dst, t, dst)

def finish(role):
    if OPT['probe'][:1] == role:
        if OPT['probe'][1:] == 'drained':
            a('s_waitcnt vmcnt(0)')
            stamp(role, 'drained')
        a('s_sub_u32 s97, s97, s100')
        a('s_mul_i32 s97, s97, 10')
        a('s_add_u32 s97, s97, 10000')
        if OPT['probewg'] >= 0:
            a('s_and_b32 s98, s2, 31')
            a('s_cmp_eq_u32 s98, %d', OPT['probewg'])
            a('s_cselect_b32 s97, s97, 0')
        L = a.newlabel('pad')
        a.label(L)
        a('s_sleep 4')
        a('s_memrealtime s[98:99]')
        a('s_waitcnt lgkmcnt(0)')
        a('s_sub_u32 s98, s98, s100')
        a('s_cmp_lt_u32 s98, s97')
        a('s_cbranch_scc1 %s', L)
    if OPT['padto']:
        L = a.newlabel('pad')
        a.label(L)
        a('s_sleep 4')
        a('s_memrealtime s[98:99]')
        a('s_waitcnt lgkmcnt(0)')
        a('s_sub_u32 s98, s98, s100')
        a('s_cmp_lt_u32 s98, %d', OPT['padto'])
        a('s_cbranch_scc1 %s', L)
    if DIAG:
        stamp(role, 'end')
        a('s_waitcnt vmcnt(0)')
        stamp(role, 'drained')
        a('s_memrealtime s[98:99]')
        a('s_waitcnt lgkmcnt(0)')
        a('v_writelane_b32 v%d, s98, 31', vTS)
        a('s_lshl_b32 s70, s2, 3')
        a('s_add_u32 s70, s70, s%d', sW)
        if role == 'S':
            a('s_add_u32 s70, s70, 4')
        a('s_lshl_b32 s70, s70, 8')
        a('s_add_u32 s70, s70, 0x%x', WS_DIAG)
        a('v_lshlrev_b32 v0, 2, v%d', vLANE)
        a('buffer_store_dword v%d, v0, s[%d:%d], s70 offen', vTS, RWS, RWS + 3)
    a('s_endpgm')

def prologue():
    a('s_cmp_ge_u32 s2, 256')
    a('s_cbranch_scc0 L_go')
    a('s_endpgm')
    a.label('L_go')
    if OPT['padto'] or DIAG or OPT['probe']:
        a('s_memrealtime s[100:101]')
    a('s_load_dwordx16 s[4:19], s[0:1], 0')
    a('s_load_dwordx8 s[20:27], s[0:1], 64')
    a('s_load_dwordx4 s[28:31], s[0:1], 96')
    a('s_load_dwordx2 s[32:33], s[0:1], 112')
    a('v_lshrrev_b32 v1, 6, v0')
    a('v_and_b32 v%d, 63, v0', vLANE)
    a('v_readfirstlane_b32 s%d, v1', sW)
    a('v_lshlrev_b32 v%d, 2, v0', vPW)
    a('v_add_u32 v%d, %d, v%d', vPW, L_PW, vPW)
    a('v_mov_b32 v1, 0')
    a('ds_write_b32 v%d, v1', vPW)
    a('s_and_b32 s%d, s2, 7', sXCD)
    a('s_lshr_b32 s%d, s2, 3', sI)
    a('s_and_b32 s70, s%d, 3', sI)
    a('s_lshr_b32 s%d, s%d, 2', sOG, sI)
    a('s_lshr_b32 s71, s%d, 1', sXCD)
    a('s_lshl2_add_u32 s%d, s71, s70', sRB)
    a('s_and_b32 s71, s%d, 1', sXCD)
    a('s_lshl3_add_u32 s%d, s71, s%d', sCG, sOG)
    a('s_lshr_b32 s71, s%d, 3', sI)
    a('s_lshl2_add_u32 s%d, s%d, s71', sHD, sXCD)
    a('s_and_b32 s%d, s%d, 7', sQB, sI)
    a('s_lshl2_add_u32 s%d, s%d, s70', sTB, sXCD)
    a('s_mov_b32 s%d, 0x%x', sSPIN, SPIN_MAX)
    a('s_mov_b32 s%d, 0', sHI)
    a('s_mov_b32 s%d, -1', sHI + 1)
    a('s_waitcnt lgkmcnt(0)')
    srd(RWS, sWS, WS_END if not DIAG else WS_DIAG + 0x100000)
    if DIAG:
        a('v_mov_b32 v%d, 0', vTS)
        a('v_writelane_b32 v%d, s100, 30', vTS)
    a('s_cmp_ge_u32 s%d, 4', sW)
    a('s_cbranch_scc1 L_roleS')

sTW, sCW = 72, 73
vXA, vWA = 96, 104
vF1A = 252
vAPW = 249

def a_setup():
    a.label('L_roleA')
    stamp('A', 'start')
    a('s_lshr_b32 s%d, s%d, 1', sTW, sW)
    a('s_and_b32 s%d, s%d, 1', sCW, sW)
    a('s_lshl1_add_u32 s75, s%d, s%d', sRB, sTW)
    a('s_mul_i32 s74, s75, %d', BLK)
    if OPT['codepre']:
        a.c('pull the code into L2: each wave of an XCD touches a few lines')
        a('s_getpc_b64 s[76:77]')
        a('s_lshl2_add_u32 s78, s%d, s%d', sI, sW)
        a('s_mul_i32 s78, s78, 3')
        a('v_min_u32 v1, 2, v%d', vLANE)
        a('v_add_u32 v1, s78, v1')
        a('v_min_u32 v1, (L_codeend - L_roleA) / 128 - 1, v1')
        a('v_lshlrev_b32 v1, 7, v1')
        a('global_load_dword v110, v1, s[76:77]')
    a.c('constant blocks + flag clearing (column group 15 has no GEMM tile)')
    a('s_cmp_eq_u32 s%d, 15', sCG)
    a('s_cbranch_scc0 L_noconst')
    a('s_cmp_eq_u32 s%d, 0', sW)
    a('s_cbranch_scc0 L_noconst')
    a('v_lshlrev_b32 v1, 4, v%d', vLANE)
    for i in range(4):
        a('v_mov_b32 v%d, 0', 4 + i)
    a('s_mul_i32 s76, s%d, 0x5000', sRB)
    a('s_add_u32 s76, s76, 0x%x', WS_F)
    for j in range(5):
        for i in range(4):
            a('buffer_store_dwordx4 v[4:7], v1, s[%d:%d], s76 offen offset:%d sc1', RWS, RWS + 3, 1024 * i)
        a('s_add_u32 s76, s76, 4096')
    a('v_mov_b32 v8, 0x3f803f80')
    a('v_mov_b32 v9, 0')
    a('v_mov_b32 v10, v8')
    a('v_mov_b32 v11, 0')
    for i in range(4):
        a('v_mov_b32 v%d, v8', 12 + i)
    a('v_lshrrev_b32 v2, 3, v%d', vLANE)
    a('v_mul_u32_u24 v2, %d, v2', VROW)
    a('v_and_b32 v3, 7, v%d', vLANE)
    a('v_lshl_add_u32 v2, v3, 4, v2')
    for b in range(2):
        a('s_add_u32 s76, s74, %d', 160 * 1024 + b * BLK)
        a('buffer_store_dwordx4 v[8:11], v1, s[%d:%d], s76 offen sc1', RWS, RWS + 3)
        a('s_add_u32 s76, s74, %d', VOFF + 640 * 16 + b * BLK)
        a('buffer_store_dwordx4 v[12:15], v2, s[%d:%d], s76 offen sc1', RWS, RWS + 3)
    a('s_lshl_b32 s76, s%d, 2', sRB)
    a('v_mov_b32 v16, s76')
    a('v_mov_b32 v17, 1')
    a('s_waitcnt vmcnt(0)')
    a('s_mov_b64 exec, 1')
    a('global_store_dword v16, v17, s[%d:%d] sc1', sDBG, sDBG + 1)
    a('s_mov_b64 exec, -1')
    a.label('L_noconst')
    a.c('LDS fragment addresses for the QKV GEMM')
    a('v_and_b32 v1, 31, v%d', vLANE)
    a('v_lshrrev_b32 v2, 5, v%d', vLANE)
    a('v_bfe_u32 v3, v1, 1, 3')
    a('v_xor_b32 v3, v3, v2')
    a('v_lshlrev_b32 v3, 4, v3')
    a('v_lshl_add_u32 v3, v1, 7, v3')
    a('s_lshl_b32 s76, s%d, 13', sTW)
    a('v_add_u32 v3, s76, v3')
    for ks in range(4):
        a('v_xor_b32 v%d, %d, v3', vXA + ks, ks << 5)
        a('v_add_u32 v%d, 0x10000, v%d', vXA + 4 + ks, vXA + ks)
    a('v_bfe_u32 v4, v%d, 2, 2', vLANE)
    a('v_lshl_add_u32 v5, v2, 3, v4')
    a('v_lshlrev_b32 v5, 8, v5')
    a('v_bfe_u32 v6, v%d, 4, 1', vLANE)
    a('v_and_b32 v7, 1, v%d', vLANE)
    a('v_lshl_add_u32 v6, v6, 1, v7')
    a('s_lshl_b32 s76, s%d, 3', sCW)
    a('v_add_u32 v6, s76, v6')
    a('v_lshlrev_b32 v4, 2, v4')
    a('v_xor_b32 v6, v6, v4')
    a('v_lshl_add_u32 v5, v6, 4, v5')
    a('v_bfe_u32 v7, v%d, 1, 1', vLANE)
    a('v_lshl_add_u32 v5, v7, 3, v5')
    a('v_add_u32 v%d, 16384, v5', vWA)
    a('v_xor_b32 v%d, 64, v%d', vWA + 1, vWA)
    a('v_add_u32 v%d, 0x10000, v%d', vWA + 2, vWA)
    a('v_add_u32 v%d, 0x10000, v%d', vWA + 3, vWA + 1)

def a_qloop(vt):
    F = [64, 80]
    def reads(st, ks, f):
        slot = st % 4
        hi, lo = slot >> 1, (slot & 1) * 32768
        r = []
        for T in range(2):
            r.append('ds_read_b128 %s, v%d offset:%d' % (v(f + 4 * T, 4), vXA + 4 * hi + ks, lo + 4096 * T))
        for Tc in range(2):
            for rd in range(2):
                r.append('ds_read_b64_tr_b16 %s, v%d offset:%d' % (v(f + 8 + 4 * Tc + 2 * rd, 2), vWA + 2 * hi + Tc,
                                                                  lo + (16 * ks + 4 * rd) * 256))
        return [r[0], r[2], r[3], r[1], r[4], r[5]]
    def mfma(f, i, j, first):
        acc = (2 * i + j) * 16
        A = f + 4 * i if vt else f + 8 + 4 * i
        B = f + 8 + 4 * j if vt else f + 4 * j
        return 'v_mfma_f32_32x32x16_bf16 %s, %s, %s, %s' % (v(acc, 16), v(A, 4), v(B, 4), '0' if first else v(acc, 16))
    a('s_barrier')
    for r in reads(0, 0, F[0]):
        a(r)
    for st in range(10):
        for ks in range(4):
            cur, nxt = F[ks & 1], F[(ks + 1) & 1]
            first = st == 0 and ks == 0
            a('s_waitcnt lgkmcnt(0)')
            if ks == 3:
                a('s_barrier')
                rr = reads(st + 1, 0, nxt) if st < 9 else []
            else:
                rr = reads(st, ks + 1, nxt)
            a(mfma(cur, 0, 0, first))
            for r in rr[:3]:
                a(r)
            a(mfma(cur, 0, 1, first))
            for r in rr[3:]:
                a(r)
            a(mfma(cur, 1, 0, first))
            a(mfma(cur, 1, 1, first))

def a_qphase():
    a('s_cmp_ge_u32 s%d, 10', sCG)
    a('s_cbranch_scc1 L_qV')
    a_qloop(False)
    stamp('A', 'qloop')
    a('v_and_b32 v98, 31, v%d', vLANE)
    a('v_lshrrev_b32 v97, 5, v%d', vLANE)
    a('v_lshlrev_b32 v98, 4, v98')
    a('v_lshl_add_u32 v96, v97, 10, v98')
    a('s_lshl1_add_u32 s76, s%d, s%d', sCG, sCW)
    a('s_lshl_b32 s77, s76, 13')
    a('s_add_u32 s77, s77, s74')
    a('s_add_u32 s78, s77, 4096')
    a('s_mul_i32 s79, s%d, 3', sCW)
    a('s_add_u32 s79, s79, s%d', sCG)
    for _ in range(2):
        a('s_cmp_ge_u32 s79, 5')
        a('s_cselect_b32 s80, 5, 0')
        a('s_sub_u32 s79, s79, s80')
    a('s_cmp_ge_u32 s%d, 5', sCG)
    a('s_cbranch_scc1 L_noscale')
    c0 = f2u(math.log2(math.e) / math.sqrt(20.0))
    a('s_mov_b32 s80, 0x%x', c0)
    a('s_mov_b32 s81, s80')
    for i in range(0, 64, 2):
        a('v_pk_mul_f32 %s, %s, s[80:81]', v(i, 2), v(i, 2))
    a.label('L_noscale')
    for Tc in range(2):
        for u in range(2):
            P = 64 + 8 * (2 * Tc + u)
            for T in range(2):
                acc = (2 * Tc + T) * 16 + 8 * u
                for q in range(4):
                    a('v_cvt_pk_bf16_f32 v%d, v%d, v%d', P + 4 * T + q, acc + 2 * q, acc + 2 * q + 1)
            a('s_cmp_eq_u32 s79, %d', (2 - 4 * Tc - 2 * u) % 5)
            a('s_cselect_b32 exec_lo, -1, 0')
            a('s_cmp_eq_u32 s79, %d', (1 - 4 * Tc - 2 * u) % 5)
            a('s_cselect_b32 exec_hi, -1, 0')
            a('v_swap_b32 v%d, v%d', P + 2, P + 4)
            a('v_swap_b32 v%d, v%d', P + 3, P + 5)
            a('s_mov_b64 exec, -1')
            for T in range(2):
                a('buffer_store_dwordx4 %s, v96, s[%d:%d], s%d offen offset:%d sc1', v(P + 4 * T, 4), RWS, RWS + 3,
                  77 + Tc, 2048 * u + 512 * T)
    a('s_branch L_qdone')
    a.label('L_qV')
    a_qloop(True)
    if DIAG:
        nstamp['A'].pop()
    stamp('A', 'qloop')
    a('s_lshl1_add_u32 s76, s%d, s%d', sCG, sCW)
    a('s_cmp_eq_u32 s%d, 15', sCG)
    a('s_cbranch_scc1 L_qdone')
    a('v_and_b32 v98, 31, v%d', vLANE)
    tau(96, 98, 97)
    a('v_lshrrev_b32 v97, 5, v%d', vLANE)
    a('v_mul_u32_u24 v97, %d, v97', VROW)
    a('v_lshl_add_u32 v96, v96, 4, v97')
    a('s_sub_u32 s77, s76, 20')
    a('s_lshl_b32 s77, s77, 10')
    a('s_add_u32 s77, s77, s74')
    a('s_add_u32 s77, s77, %d', VOFF)
    n = 0
    for T in range(2):
        for m in range(2):
            for Tc in range(2):
                P = 64 + 4 * n
                n += 1
                acc = (2 * T + Tc) * 16 + 8 * m
                for q in range(4):
                    a('v_cvt_pk_bf16_f32 v%d, v%d, v%d', P + q, acc + 2 * q, acc + 2 * q + 1)
                a('buffer_store_dwordx4 %s, v96, s[%d:%d], s77 offen offset:%d sc1', v(P, 4), RWS, RWS + 3, 512 * Tc)
            if (T, m) != (1, 1):
                a('s_add_u32 s77, s77, %d', 2 * VROW)
    a.label('L_qdone')
    setpw(1, 102)

vO, vS = 0, 64
KV = [128, 156]
K1A, K1B, K2, VA0, VA1, VB0, VB1 = 0, 4, 8, 12, 16, 20, 24
vQ1, vQ2 = 184, 200
vK1, vK2, vV, vIDX, vNC, vM = 208, 209, 210, 214, 216, 220
vT = 224
sQH, sKH, sODD, sP5, sOFF, sKV0, sPASS, sCNT = 76, 77, 78, 79, 80, 81, 82, 83
sKVB, sKVE = 70, 71

def a_att_setup():
    a('s_lshl4_add_u32 s84, s%d, s%d', sCG, sRB)
    flagaddr(84, 84, F1, 85)
    a('s_and_b32 s%d, s%d, 1', sQH, sW)
    a('s_lshr_b32 s%d, s%d, 1', sKH, sW)
    a('s_and_b32 s%d, s%d, 1', sODD, sHD)
    a('s_lshr_b32 s85, s%d, 1', sHD)
    a('s_mul_i32 s%d, s85, 5', sP5)
    a('s_mul_i32 s%d, s%d, %d', sKVB, sKH, 16 * BLK)
    a('s_add_u32 s%d, s%d, %d', sKVE, sKVB, 16 * BLK)
    a('s_mul_i32 s86, s%d, %d', sQB, 2 * BLK * OPT['rot'])
    a('s_add_u32 s%d, s%d, s86', sKV0, sKVB)
    srd(R3, sWS, 32 * BLK)
    srd(R4, sOUT, 2048 * 1280 * 4)
    a('s_mov_b32 s%d, 0', sPASS)
    i, h, t, x = vT, vT + 1, vT + 2, vT + 3
    a('v_and_b32 v%d, 31, v%d', i, vLANE)
    a('v_lshrrev_b32 v%d, 5, v%d', h, vLANE)
    tau(t, i, x)
    a('s_mul_i32 s86, s%d, 3', sODD)
    a('s_add_u32 s86, s86, s%d', sP5)
    a('s_lshl_b32 s87, s86, 10')
    a('v_lshl_add_u32 v%d, v%d, 10, s87', x, h)
    a('v_lshl_add_u32 v%d, v%d, 4, v%d', vT + 4, i, x)
    a('v_lshl_add_u32 v%d, v%d, 4, v%d', vK1, t, x)
    a('v_add_u32 v%d, %d, v%d', vK1, 80 * 1024, vK1)
    a('s_add_u32 s87, s%d, 2', sP5)
    a('s_lshl1_add_u32 s87, s87, s%d', sODD)
    a('s_lshl_b32 s87, s87, 9')
    a('v_lshl_add_u32 v%d, v%d, 4, s87', vT + 5, i)
    a('v_mov_b32 v%d, 0x%x', x, OOB)
    a('v_cndmask_b32 v%d, v%d, v%d, s[%d:%d]', vT + 5, vT + 5, x, sHI, sHI + 1)
    a('s_add_u32 s87, s87, %d', 80 * 1024)
    a('v_mov_b32 v%d, s87', vK2)
    a('v_mov_b32 v%d, %d', x, 160 * 1024)
    a('v_cndmask_b32 v%d, v%d, v%d, s[%d:%d]', vK2, vK2, x, sHI, sHI + 1)
    a('v_lshl_add_u32 v%d, v%d, 4, v%d', vK2, t, vK2)
    a('s_mul_i32 s86, s%d, 20', sHD)
    a('s_lshl2_add_u32 s87, s%d, s86', sODD)
    a('s_lshl_b32 s88, s%d, 4', sODD)
    a('s_sub_u32 s88, s86, s88')
    a('v_add_u32 v%d, s87, v%d', vV, t)
    a('v_add_u32 v%d, s88, v%d', x, i)
    a('v_cmp_le_u32 vcc, 16, v%d', i)
    a('v_add_u32 v%d, 620, v%d', vT + 6, i)
    a('s_nop 0')
    a('v_cndmask_b32 v%d, v%d, v%d, vcc', vV, vV, x)
    a('v_cmp_le_u32 vcc, 20, v%d', i)
    a('v_mul_u32_u24 v%d, %d, v%d', x, VROW, h)
    a('v_add_u32 v%d, %d, v%d', x, VOFF, x)
    a('v_cndmask_b32 v%d, v%d, v%d, vcc', vV, vV, vT + 6)
    a('v_lshl_add_u32 v%d, v%d, 4, v%d', vV, vV, x)
    a('v_cmp_le_u32 vcc, 24, v%d', i)
    a('v_mov_b32 v%d, 0x%x', x, OOB)
    a('v_mov_b32 v%d, 0xdddd', vIDX)
    a('v_cndmask_b32 v%d, v%d, v%d, vcc', vV, vV, x)
    for k in range(1, 4):
        a('v_add_u32 v%d, %d, v%d', vV + k, 2 * VROW * k, vV)
    a('s_mul_i32 s87, s85, 40')
    a('s_lshl4_add_u32 s87, s%d, s87', sODD)
    a('s_add_u32 s88, s87, 23')
    a('s_lshr_b32 s87, s87, 7')
    a('s_lshr_b32 s88, s88, 7')
    a('s_add_u32 s89, s86, 19')
    a('s_lshr_b32 s86, s86, 7')
    a('s_lshr_b32 s89, s89, 7')
    a('v_lshrrev_b32 v%d, 4, v%d', x, vLANE)
    a('s_add_u32 s90, s87, 5')
    a('v_mov_b32 v%d, s90', vF1A)
    for sel, (reg, add) in enumerate(((88, 5), (86, 10), (89, 10))):
        a('s_add_u32 s90, s%d, %d', reg, add)
        a('v_cmp_eq_u32 vcc, %d, v%d', sel + 1, x)
        a('v_mov_b32 v%d, s90', vT + 6)
        a('s_nop 0')
        a('v_cndmask_b32 v%d, v%d, v%d, vcc', vF1A, vF1A, vT + 6)
    a('v_and_b32 v%d, 15, v%d', vT + 6, vLANE)
    a('v_lshl_add_u32 v%d, v%d, 4, v%d', vF1A, vF1A, vT + 6)
    a('v_lshlrev_b32 v%d, 7, v%d', vF1A, vF1A)
    a('v_mov_b32 v%d, s87', vF1A - 1)
    a('v_mov_b32 v%d, s88', vT + 6)
    a('v_cndmask_b32 v%d, v%d, v%d, s[%d:%d]', vF1A - 1, vF1A - 1, vT + 6, sHI, sHI + 1)
    a('v_bfe_u32 v%d, v%d, 4, 1', vT + 6, vLANE)
    a('v_lshl_add_u32 v%d, v%d, 4, v%d', vF1A - 1, vF1A - 1, vT + 6)
    a('s_lshl_b32 s90, s%d, 1', sQB)
    a('v_add_lshl_u32 v%d, v%d, s90, 7', vF1A - 1, vF1A - 1)
    a('v_and_b32 v%d, 3, v%d', vAPW, vLANE)
    a('v_lshlrev_b32 v%d, 8, v%d', vAPW, vAPW)
    a('v_lshlrev_b32 v%d, 2, v%d', vAPW + 1, vLANE)
    a('v_add_u32 v%d, %d, v%d', vAPW + 1, L_PW, vAPW + 1)
    a('v_add_u32 v%d, v%d, v%d', vAPW, vAPW, vAPW + 1)
    a('s_lshl1_add_u32 s90, s%d, s%d', sQB, sQH)
    a('s_lshl1_add_u32 s90, s90, s%d', sKH)
    a('s_mul_i32 s91, s90, %d', BLK)
    a('s_xor_b32 s92, s90, 1')
    a('s_mul_i32 s92, s92, %d', BLK)
    a('s_waitcnt vmcnt(0)')
    stamp('A', 'qdrain')
    setpw(2, 102)
    a('s_cmp_eq_u32 s%d, 0', sW)
    a('s_cbranch_scc0 L_f1wait')
    waitpw(vAPW, 2, 102)
    setflag(84, 101)
    a('s_mov_b32 s84, 0x%x', F1)
    pollflags(['buffer_load_dword v%d, v%d, s[%d:%d], s84 offen sc1' % (104 + k, vF1A - k, RWS, RWS + 3) for k in range(2)], 104,
              sleep=OPT['psleep'])
    setpw(3, 102)
    a.label('L_f1wait')
    waitpw(vAPW + 1, 3, 102, sleep=1)
    stamp('A', 'f1')

def kvload(st, what, soff):
    r = KV[st] + what
    if what in (K1A, K1B):
        return 'buffer_load_dwordx4 %s, v%d, s[%d:%d], s%d offen offset:%d sc1' % (v(r, 4), vK1, R3, R3 + 3, soff, 512 if what == K1B else 0)
    if what == K2:
        return 'buffer_load_dwordx4 %s, v%d, s[%d:%d], s%d offen sc1' % (v(r, 4), vK2, R3, R3 + 3, soff)
    return 'buffer_load_dwordx4 %s, v%d, s[%d:%d], s%d offen sc1' % (v(r, 4), vV + (what - VA0) // 4, R3, R3 + 3, soff)

def qk1(st, tile, qt, sb):
    return 'v_mfma_f32_32x32x16_bf16 %s, %s, %s, 0' % (v(vS + 16 * sb, 16), v(KV[st] + (K1B if tile else K1A), 4), v(vQ1 + 4 * qt, 4))

def qk2(st, tile, qt, sb):
    return 'v_mfma_f32_32x32x8bf16_1k %s, %s, %s, %s' % (v(vS + 16 * sb, 16), v(KV[st] + K2 + 2 * tile, 2), v(vQ2 + 2 * qt, 2), v(vS + 16 * sb, 16))

def pv(st, tile, qt, m):
    return 'v_smfmac_f32_32x32x32_bf16 %s, %s, %s, v%d' % (v(vO + 16 * qt, 16), v(KV[st] + VA0 + 8 * tile + 4 * m, 4), v(vS + 16 * qt + 8 * m, 8), vIDX)

def maxtree(dst, src, acc):
    if acc:
        a('v_max3_f32 v%d, v%d, v%d, v%d', dst, dst, src, src + 1)
    else:
        a('v_max_f32 v%d, v%d, v%d', dst, src, src + 1)
    for k in range(2, 16, 2):
        a('v_max3_f32 v%d, v%d, v%d, v%d', dst, dst, src + k, src + k + 1)

def a_attention():
    for lp in range(2):
        for T in range(2):
            a('buffer_load_dwordx4 %s, v%d, s[%d:%d], s%d offen offset:%d sc1', v(vQ1 + 8 * lp + 4 * T, 4), vT + 4, RWS, RWS + 3, 91 + lp, 512 * T)
    for lp in range(2):
        a('buffer_load_dwordx4 %s, v%d, s[%d:%d], s%d offen sc1', v(vQ2 + 4 * lp, 4), vT + 5, RWS, RWS + 3, 91 + lp)
    a.label('L_attload')
    a('s_add_u32 s%d, s%d, %d', sOFF, sKV0, BLK)
    for w_ in (K1A, K2, VA0, VA1, K1B, VB0, VB1):
        a(kvload(0, w_, sKV0))
    for w_ in (K1A, VA0, VA1, K1B, K2):
        a(kvload(1, w_, sOFF))
    for i in range(64):
        a('v_mov_b32 v%d, 0', vO + i)
    for i in range(4):
        a('v_mov_b32 v%d, 0', KV[1] + VB1 + i)
    a('s_waitcnt vmcnt(10)')
    stamp('A', 'qkload')
    a('s_cmp_eq_u32 s%d, 0', sPASS)
    a('s_cbranch_scc0 L_setc')
    a.c('stand-in for the row maximum: the maximum over the first key tile (checked after the loop)')
    for qt in range(4):
        a(qk1(0, 0, qt, qt))
        a(qk2(0, 0, qt, qt))
    a('s_nop 5')
    for qt in range(4):
        maxtree(vM + qt, vS + 16 * qt, False)
    a.label('L_setc')
    for qt in range(4):
        a('v_mov_b32 v%d, v%d', vT + 8 + qt, vM + qt)
    for qt in range(4):
        a('v_permlane32_swap_b32 v%d, v%d', vM + qt, vT + 8 + qt)
    for qt in range(4):
        a('v_min_f32 v%d, -v%d, -v%d', vM + qt, vM + qt, vT + 8 + qt)
    for qt in range(4):
        a('v_cvt_pk_bf16_f32 v%d, v%d, v%d', vT + 8 + qt, vM + qt, vM + qt)
    for qt in range(4):
        a('v_and_b32 v%d, 0xffff0000, v%d', vT + 8 + qt, vT + 8 + qt)
    for qt in range(4):
        a('v_sub_f32 v%d, v%d, v%d', vM + qt, vM + qt, vT + 8 + qt)
    for qt in range(4):
        a('v_cvt_pk_bf16_f32 v%d, v%d, v%d', vM + qt, vT + 8 + qt, vM + qt)
    for qt in range(4):
        a('v_cndmask_b32 v%d, v%d, v%d, s[%d:%d]', vQ2 + 2 * qt, vQ2 + 2 * qt, vM + qt, sHI, sHI + 1)
    a(qk1(0, 0, 0, 0))
    a(qk2(0, 0, 0, 0))
    for qt in range(4):
        a('v_and_b32 v%d, 0xffff0000, v%d', vM + qt, vM + qt)
    for qt in range(4):
        a('v_add_f32 v%d, v%d, v%d', vNC + qt, vM + qt, vT + 8 + qt)
    for i in range(8):
        a('v_mov_b32 v%d, 0', vS + 48 + 8 + i)
    a('s_mov_b32 s%d, 8', sCNT)
    a('s_waitcnt vmcnt(7)')
    stamp('A', 'attpro')
    a('.p2align 6')
    a.label('L_attloop')
    for st in range(2):
        for n in range(8):
            tile, qt = n >> 2, n & 3
            nst, ntile, nqt = (st, (n + 1) >> 2, (n + 1) & 3) if n < 7 else (st ^ 1, 0, 0)
            pst, ptile, pqt = (st, (n - 1) >> 2, (n - 1) & 3) if n > 0 else (st ^ 1, 1, 3)
            def ex(k):
                for e in range(4 * k, 4 * k + 4):
                    a('v_exp_f32 v%d, v%d', vS + 16 * qt + e, vS + 16 * qt + e)
            if n == 7:
                a('s_waitcnt vmcnt(5)')
            a(qk1(nst, ntile, nqt, nqt))
            if n == 0:
                a(kvload(st ^ 1, VB0, sOFF))
            if n == 1:
                a(kvload(st ^ 1, VB1, sOFF))
            if n == 2:
                a('s_add_u32 s%d, s%d, %d', sOFF, sOFF, BLK)
            if n == 3:
                a(kvload(st, K1A, sOFF))
            if n == 4:
                a(kvload(st, VA0, sOFF))
            if n == 5:
                a(kvload(st, VA1, sOFF))
            if n == 7:
                a(kvload(st, K1B, sOFF))
            ex(0)
            a(qk2(nst, ntile, nqt, nqt))
            if n == 7:
                a(kvload(st, K2, sOFF))
            if n == 2 and st == 0:
                a('s_cmp_eq_u32 s%d, s%d', sOFF, sKVE)
            ex(1)
            a(pv(pst, ptile, pqt, 1))
            if n == 2 and st == 0:
                a('s_cselect_b32 s%d, s%d, s%d', sOFF, sKVB, sOFF)
            if st == 1 and n == 7:
                a('s_sub_u32 s%d, s%d, 1', sCNT, sCNT)
            if st == 1 and n == 6 and OPT['b3start'] <= 8:
                L = a.newlabel('nosig')
                a('s_cmp_eq_u32 s%d, %d', sCNT, 9 - OPT['b3start'])
                a('s_cbranch_scc0 %s', L)
                setpw(4, vT + 8)
                a.label(L)
            ex(2)
            if n == 4:
                a('s_waitcnt vmcnt(9)')
            a(pv(st, tile, qt, 0))
            if st == 1 and n == 7:
                a('s_cmp_lg_u32 s%d, 0', sCNT)
            ex(3)
    a('s_cbranch_scc1 L_attloop')
    a('s_nop 0')
    a(pv(1, 1, 3, 1))
    stamp('A', 'attloop')
    a('s_mul_i32 s84, s%d, %d', sW, REGSZ)
    a('s_add_u32 s84, s84, %d', L_REG + 8192)
    a('s_xor_b32 s85, s%d, 2', sW)
    a('s_mul_i32 s86, s85, %d', REGSZ)
    a('s_add_u32 s86, s86, %d', L_REG + 8192)
    a('v_lshl_add_u32 v%d, v%d, 4, s84', vT, vLANE)
    a('v_lshl_add_u32 v%d, v%d, 3, s84', vT + 1, vLANE)
    a('v_lshl_add_u32 v%d, v%d, 4, s86', vT + 2, vLANE)
    a('v_lshl_add_u32 v%d, v%d, 3, s86', vT + 3, vLANE)
    a('v_xor_b32 v%d, 512, v%d', vT + 6, vPW)
    a('v_and_b32 v%d, 3, v%d', vT + 7, vLANE)
    a('v_lshlrev_b32 v%d, 8, v%d', vT + 7, vT + 7)
    a('v_lshl_add_u32 v%d, v%d, 2, v%d', vT + 7, vLANE, vT + 7)
    a('v_add_u32 v%d, %d, v%d', vT + 7, L_PW + 1024, vT + 7)
    a('s_waitcnt vmcnt(0)')
    a('s_cmp_eq_u32 s%d, 0', sPASS)
    a('s_cbranch_scc0 L_attok')
    a('v_min_f32 v%d, v%d, v%d', vT + 8, vO + 8, vO + 24)
    a('v_min3_f32 v%d, v%d, v%d, v%d', vT + 8, vT + 8, vO + 40, vO + 56)
    a('v_add_f32 v%d, v%d, v%d', vT + 9, vO + 8, vO + 24)
    a('v_add_f32 v%d, v%d, v%d', vT + 10, vO + 40, vO + 56)
    a('v_add_f32 v%d, v%d, v%d', vT + 9, vT + 9, vT + 10)
    a('s_mov_b32 s86, 0x%x', f2u(2.0 ** -30))
    a('s_mov_b32 s87, 0x%x', f2u(2.0 ** 50))
    a('v_cmp_nle_f32 s[88:89], s86, v%d', vT + 8)
    a('v_cmp_nge_f32 vcc, s87, v%d', vT + 9)
    a('s_or_b32 s89, s89, vcc_hi')
    if OPT['force_fb']:
        a('s_cmp_eq_u32 s%d, 0', sPASS)
    a('s_cbranch_scc0 L_attok')
    a.c('fallback: exact row maximum over this wave\'s keys, then redo the pass')
    a('s_mov_b32 s%d, 1', sPASS)
    a('v_mov_b32 v%d, 0', vT + 8)
    for qt in range(4):
        a('v_cndmask_b32 v%d, v%d, v%d, s[%d:%d]', vQ2 + 2 * qt, vQ2 + 2 * qt, vT + 8, sHI, sHI + 1)
        a('v_mov_b32 v%d, 0xff800000', vM + qt)
    a('s_mov_b32 s%d, s%d', sOFF, sKVB)
    a('s_mov_b32 s%d, 16', sCNT)
    a.label('L_maxloop')
    for w_ in (K1A, K1B, K2):
        a(kvload(0, w_, sOFF))
    a('s_waitcnt vmcnt(0)')
    for tile in range(2):
        for qt in range(4):
            a(qk1(0, tile, qt, qt))
            a(qk2(0, tile, qt, qt))
        a('s_nop 5')
        for qt in range(4):
            maxtree(vM + qt, vS + 16 * qt, True)
    a('s_add_u32 s%d, s%d, %d', sOFF, sOFF, BLK)
    a('s_sub_u32 s%d, s%d, 1', sCNT, sCNT)
    a('s_cmp_lg_u32 s%d, 0', sCNT)
    a('s_cbranch_scc1 L_maxloop')
    a('s_branch L_attload')
    a.label('L_attok')
    waitpw(vT + 7, 14, vT + 8)
    for t in range(2):
        for q in range(3):
            a('ds_write_b128 v%d, %s offset:%d', vT, v(vO + 32 + 16 * t + 4 * q, 4), 1024 * (3 * t + q))
    a('ds_write_b64 v%d, %s offset:6144', vT + 1, v(vNC + 2, 2))
    a('s_waitcnt lgkmcnt(0)')
    setpw(5, vT + 8)
    a('v_bfe_u32 v%d, v%d, 4, 1', vT + 10, vLANE)
    a('v_mul_u32_u24 v%d, %d, v%d', vT + 10, OBLK, vT + 10)
    a('v_and_b32 v%d, 15, v%d', vT + 11, vLANE)
    a('v_lshl_add_u32 v%d, v%d, 4, v%d', vT + 10, vT + 11, vT + 10)
    a('v_lshrrev_b32 v%d, 5, v%d', vT + 12, vLANE)
    a('v_mul_u32_u24 v%d, %d, v%d', vT + 11, 2 * OBLK, vT + 12)
    a('v_add_u32 v%d, v%d, v%d', vT + 11, vT + 11, vT + 10)
    a('v_lshl_add_u32 v%d, v%d, 8, v%d', vT + 10, vT + 12, vT + 10)
    a('s_mul_i32 s84, s90, %d', 4 * OBLK)
    a('s_add_u32 s84, s84, 0x%x', WS_O)
    a('s_lshl_b32 s85, s%d, 8', sP5)
    a('s_add_u32 s84, s84, s85')
    a('s_mul_i32 s85, s%d, 768', sODD)
    a('s_add_u32 s85, s85, s84')
    a('s_add_u32 s86, s85, %d', 2 * OBLK)
    a('s_lshl3_add_u32 s84, s%d, s84', sODD)
    a('s_lshl_b32 s87, s90, 5')
    a('s_add_u32 s87, s87, s%d', sHD)
    flagaddr(87, 87, F4, 88)
    waitpw(vT + 6, 5, vT + 8)
    R = vS
    a('ds_read_b64 %s, v%d offset:6144', v(vT + 14, 2), vT + 3)
    for t in range(2):
        a('ds_read_b128 %s, v%d offset:%d', v(R + 16 * t + 8, 4), vT + 2, 1024 * (3 * t + 2))
    for t in range(2):
        for q in range(2):
            a('ds_read_b128 %s, v%d offset:%d', v(R + 16 * t + 4 * q, 4), vT + 2, 1024 * (3 * t + q))
    f1, f2, l1, l2 = vT + 16, vT + 18, vT + 20, vT + 22
    a('s_waitcnt lgkmcnt(6)')
    for t in range(2):
        a('v_min_f32 v%d, v%d, v%d', l1 + t, vNC + t, vT + 14 + t)
    for t in range(2):
        a('v_sub_f32 v%d, v%d, v%d', f1 + t, l1 + t, vNC + t)
        a('v_sub_f32 v%d, v%d, v%d', f2 + t, l1 + t, vT + 14 + t)
    for t in range(2):
        a('v_exp_f32 v%d, v%d', f1 + t, f1 + t)
        a('v_exp_f32 v%d, v%d', f2 + t, f2 + t)
    a('s_waitcnt lgkmcnt(4)')
    for t in range(2):
        a('v_mul_f32 v%d, v%d, v%d', l1 + t, f1 + t, vO + 16 * t + 8)
    for t in range(2):
        a('v_fmac_f32 v%d, v%d, v%d', l1 + t, f2 + t, R + 16 * t + 8)
    for t in range(2):
        a('v_mov_b32 v%d, v%d', l2 + t, l1 + t)
    a('s_nop 0')
    for t in range(2):
        a('v_permlane32_swap_b32 v%d, v%d', l1 + t, l2 + t)
    for t in range(2):
        a('v_rcp_f32 v%d, v%d', l2 + t, l2 + t)
    a('s_waitcnt lgkmcnt(0)')
    setpw(6, vT + 8)
    for t in range(2):
        a('v_mul_f32 v%d, v%d, v%d', f1 + t, f1 + t, l2 + t)
        a('v_mul_f32 v%d, v%d, v%d', f2 + t, f2 + t, l2 + t)
    P = KV[0]
    for t in range(2):
        for r in range(12):
            a('v_mul_f32 v%d, v%d, v%d', vO + 16 * t + r, f1 + t, vO + 16 * t + r)
        for r in range(12):
            a('v_fmac_f32 v%d, v%d, v%d', vO + 16 * t + r, f2 + t, R + 16 * t + r)
        for q in range(6):
            a('v_cvt_pk_bf16_f32 v%d, v%d, v%d', P + 8 * t + q, vO + 16 * t + 2 * q, vO + 16 * t + 2 * q + 1)
        a('buffer_store_dwordx4 %s, v%d, s[%d:%d], s%d offen sc1', v(P + 8 * t, 4), vT + 10, RWS, RWS + 3, 85 + t)
    a('s_nop 0')
    a('v_permlane32_swap_b32 v%d, v%d', P + 4, P + 12)
    a('v_permlane32_swap_b32 v%d, v%d', P + 5, P + 13)
    a('buffer_store_dwordx2 %s, v%d, s[%d:%d], s84 offen offset:512 sc1', v(P + 4, 2), vT + 11, RWS, RWS + 3)
    stamp('A', 'merge')

def a_outproj():
    vA0, vA1, vOA, vST = 240, 241, 242, 244
    a('v_lshrrev_b32 v1, 5, v%d', vLANE)
    a('v_bfe_u32 v2, v%d, 2, 3', vLANE)
    a('v_lshl_add_u32 v1, v1, 4, v2')
    a('v_mul_u32_u24 v1, 160, v1')
    a('v_and_b32 v2, 3, v%d', vLANE)
    a('v_lshl_add_u32 v%d, v2, 3, v1', vA0)
    a('v_add_u32 v%d, %d, v%d', vA1, 10 * 5120, vA0)
    a('v_lshlrev_b32 v%d, 4, v%d', vOA, vLANE)
    a('v_lshrrev_b32 v1, 4, v%d', vLANE)
    a('v_mul_u32_u24 v1, %d, v1', 4 * 5120)
    a('v_and_b32 v2, 15, v%d', vLANE)
    a('v_lshl_add_u32 v%d, v2, 2, v1', vST)
    for r in range(1, 4):
        a('v_add_u32 v%d, %d, v%d', vST + r, 5120 * r, vST)
    a('s_mul_i32 s84, s%d, 2560', sOG)
    a('v_min_u32 v140, 19, v%d', vLANE)
    a('v_lshl_add_u32 v140, v140, 7, s84')
    a('s_lshl2_add_u32 s84, s%d, s%d', sTB, sW)
    a('s_mul_i32 s85, s84, %d', OBLK)
    a('s_add_u32 s85, s85, 0x%x', WS_O)
    a('s_mul_i32 s86, s84, %d', 16 * 5120)
    a('s_mul_i32 s88, s%d, 320', sOG)
    a('s_add_u32 s86, s86, s88')
    a('v_lshlrev_b32 v%d, 7, v%d', vOA + 1, vLANE)
    a('s_lshl_b32 s88, s%d, 12', sTB)
    a('s_add_u32 s88, s88, 0x%x', F4)
    a('s_waitcnt vmcnt(0)')
    stamp('A', 'odrain')
    setflag(87, 1)
    acc, WF = 80, [100, 120]
    def reads(ks):
        f = WF[ks & 1]
        base, off = (vA0, ks * 5120) if ks < 10 else (vA1, (ks - 10) * 5120)
        return ['ds_read_b64_tr_b16 %s, v%d offset:%d' % (v(f + 4 * j + 2 * rd, 2), base, off + 1280 * rd + 32 * j)
                for j in range(5) for rd in range(2)]
    a('s_cmp_eq_u32 s%d, 0', sW)
    a('s_cbranch_scc0 L_f4wait')
    if OPT['gate4'] >= 0:
        a('v_add_u32 v2, 1024, v%d', vAPW + 1)
        waitpw(2, 16, 1, sleep=2)
    a('s_mov_b32 exec_hi, 0')
    pollflags(['buffer_load_dword v1, v%d, s[%d:%d], s88 offen sc1' % (vOA + 1, RWS, RWS + 3)], 1, sleep=OPT['psleep4'])
    setpw(7, 1)
    a.label('L_f4wait')
    waitpw(vAPW + 1, 7, 1, sleep=1)
    stamp('A', 'f4')
    a('buffer_load_dword v141, v140, s[%d:%d], s85 offen sc1', RWS, RWS + 3)
    for ks in range(20):
        a('buffer_load_dwordx4 %s, v%d, s[%d:%d], s85 offen offset:%d sc1', v(4 * ks, 4), vOA, RWS, RWS + 3, 1024 * (ks & 3))
        if ks & 3 == 3 and ks < 19:
            a('s_add_u32 s85, s85, 4096')
    for r in reads(0):
        a(r)
    for ks in range(20):
        rr = reads(ks + 1) if ks < 19 else []
        a('s_waitcnt vmcnt(%d) lgkmcnt(0)', 19 - ks)
        for j in range(5):
            a('v_mfma_f32_16x16x32_bf16 %s, %s, %s, %s', v(acc + 4 * j, 4), v(4 * ks, 4), v(WF[ks & 1] + 4 * j, 4),
              '0' if ks == 0 else v(acc + 4 * j, 4))
            for r in rr[4 * j:4 * j + 4]:
                a(r)
    a('s_nop 3')
    for j in range(5):
        for r in range(4):
            a('buffer_store_dword v%d, v%d, s[%d:%d], s86 offen offset:%d%s', acc + 4 * j + r, vST + r, R4, R4 + 3, 64 * j, OSC)
    finish('A')

vDX, vDW, vDBX, vDBB = 236, 240, 244, 248
vSPW = 252
vL8, vL128 = 228, 232

def dma(voff, r, soff, imm):
    return 'buffer_load_dwordx4 v%d, s[%d:%d], s%d offen offset:%d lds' % (voff, r, r + 3, soff, imm)

def s_stage(t, emit=None):
    out = []
    slot = (t % 4) * 32768
    out.append('s_add_u32 m0, s74, %d' % slot)
    out.append('s_lshl_b32 s83, s82, 7')
    out.append('s_add_u32 s76, s72, s83')
    if t < 10:
        out += [dma(vDX + i, R0, 76, 1024 * i) for i in range(4)]
        out.append('s_add_u32 m0, s74, %d' % (slot + 16384))
        out.append('s_mul_i32 s83, s82, 245760')
        out.append('s_add_u32 s76, s73, s83')
        out += [dma(vDW + i, R1, 76, 1024 * i) for i in range(4)]
    else:
        out += [dma(vDBX + i, R3, 76, 1024 * i) for i in range(4)]
        out.append('s_add_u32 m0, s75, %d' % (slot + 16384))
        out.append('s_add_u32 s76, s77, s83')
        out += [dma(vDBB + i, R4, 76, 1024 * i) for i in range(3)]
    out.append('s_add_u32 s82, s82, 1')
    out.append('s_cmp_eq_u32 s82, 10')
    out.append('s_cselect_b32 s82, 0, s82')
    if emit is None:
        for o in out:
            a(o)
    return out

def ninstr(t):
    return 0 if t > 19 else (8 if t < 10 else 7)

def exp_acc(dst, x, t1, t2):
    L2E = math.log2(math.e)
    hi = struct.unpack('<f', struct.pack('<f', L2E))[0]
    a('s_mov_b32 s80, 0x%x', f2u(hi))
    a('v_mul_f32 v%d, s80, v%d', t1, x)
    a('v_fma_f32 v%d, v%d, s80, -v%d', t2, x, t1)
    a('v_fmac_f32 v%d, 0x%x, v%d', t2, f2u(L2E - hi), x)
    a('v_exp_f32 v%d, v%d', dst, t1)
    a('v_mul_f32 v%d, 0x%x, v%d', t2, f2u(math.log(2.0)), t2)
    a('v_fmac_f32 v%d, v%d, v%d', dst, dst, t2)

def s_setup():
    a.label('L_roleS')
    a('s_sub_u32 s%d, s%d, 4', sW, sW)
    stamp('S', 'start')
    a('s_cmp_eq_u32 s%d, 15', sCG)
    a('s_cselect_b32 s70, 0, 0x%x', 2048 * 1280)
    a('s_cselect_b32 s71, 0, 0x%x', 640 * 3840)
    srd(R0, sAX, 's70')
    srd(R1, sWQ, 's71')
    a('v_lshrrev_b32 v1, 3, v%d', vLANE)
    a('v_and_b32 v2, 7, v%d', vLANE)
    a('v_lshrrev_b32 v3, 4, v%d', vLANE)
    a('v_xor_b32 v4, v2, v3')
    a('v_mul_u32_u24 v5, 1280, v1')
    a('v_lshl_add_u32 v%d, v4, 4, v5', vDX)
    a('v_xor_b32 v6, 64, v%d', vDX)
    a('v_add_u32 v%d, %d, v6', vDX + 1, 10240 - 1024)
    a('v_add_u32 v%d, %d, v%d', vDX + 2, 2 * (10240 - 1024), vDX)
    a('v_add_u32 v%d, %d, v6', vDX + 3, 3 * (10240 - 1024))
    a('v_and_b32 v7, 15, v%d', vLANE)
    a('v_lshlrev_b32 v8, 2, v3')
    a('v_xor_b32 v7, v7, v8')
    a('v_mul_u32_u24 v8, 3840, v3')
    a('v_lshl_add_u32 v%d, v7, 4, v8', vDW)
    for i in range(1, 4):
        a('v_add_u32 v%d, %d, v%d', vDW + i, (15360 - 1024) * i, vDW)
    a('s_lshl2_add_u32 s72, s%d, s%d', sRB, sW)
    a('s_mul_i32 s72, s72, %d', 32 * 1280)
    a('s_mul_i32 s73, s%d, %d', sW, 16 * 3840)
    a('s_lshl_b32 s70, s%d, 8', sCG)
    a('s_add_u32 s73, s73, s70')
    a('s_lshl_b32 s74, s%d, 12', sW)
    if OPT['stag'] == 1:
        a('s_and_b32 s82, s%d, 3', sI)
        a('s_lshl1_add_u32 s82, s82, s%d', sOG)
        a('s_and_b32 s82, s82, 7')
        a('s_mul_i32 s82, s82, 5')
        a('s_lshr_b32 s82, s82, 2')
    elif OPT['stag'] == 4:
        a('s_and_b32 s82, s%d, 3', sI)
        a('s_mul_i32 s82, s82, 5')
        a('s_lshr_b32 s82, s82, 1')
        a('s_mul_i32 s83, s%d, 5', sOG)
        a('s_lshr_b32 s83, s83, 2')
        a('s_add_u32 s82, s82, s83')
        a('s_add_u32 s83, s%d, 1', sXCD)
        a('s_lshr_b32 s83, s83, 1')
        a('s_add_u32 s82, s82, s83')
        a('s_cmp_ge_u32 s82, 10')
        a('s_cselect_b32 s83, 10, 0')
        a('s_sub_u32 s82, s82, s83')
    elif OPT['stag'] == 2:
        a('s_add_u32 s82, s%d, s%d', sI, sOG)
        a('s_and_b32 s82, s82, 1')
        a('s_mul_i32 s82, s82, 5')
    elif OPT['stag'] == 3:
        a('s_add_u32 s82, s%d, s%d', sI, sOG)
        a('s_and_b32 s82, s82, 3')
        a('s_mul_i32 s82, s82, 5')
        a('s_lshr_b32 s82, s82, 1')
    else:
        a('s_mov_b32 s82, 0')
    if OPT['fine']:
        stamp('S', 'setup')
    s_stage(0)
    if OPT['fine']:
        stamp('S', 'iss0')
    a('s_mul_i32 s70, s%d, 40', sCG)
    a('v_min_u32 v9, 39, v%d', vLANE)
    a('v_add_lshl_u32 v9, v9, s70, 1')
    a('global_load_ushort v10, v9, s[%d:%d]', sLDT, sLDT + 1)
    a('global_load_ushort v11, v9, s[%d:%d]', sLRE, sLRE + 1)
    a('global_load_ushort v12, v9, s[%d:%d]', sLIM, sLIM + 1)
    s_stage(1)
    if OPT['fine']:
        stamp('S', 'iss1')
    srd(R3, sBX, 2048 * 1280)
    a('s_cmp_ge_u32 s%d, 2', sW)
    a('s_cselect_b32 s70, s%d, s%d', sBIM, sBRE)
    a('s_cselect_b32 s71, s%d, s%d', sBIM + 1, sBRE + 1)
    srd(R4, 70, 640 * 1280)
    a('v_and_b32 v5, 3, v1')
    a('v_lshrrev_b32 v6, 2, v1')
    a('v_lshl_add_u32 v5, v6, 3, v5')
    a('v_mul_u32_u24 v5, 1280, v5')
    a('v_lshl_add_u32 v%d, v4, 4, v5', vDBX)
    a('v_xor_b32 v6, 64, v%d', vDBX)
    a('v_add_u32 v%d, %d, v6', vDBX + 1, 16 * 1280 - 1024)
    a('v_add_u32 v%d, %d, v%d', vDBX + 2, 4 * 1280 - 2048, vDBX)
    a('v_add_u32 v%d, %d, v6', vDBX + 3, 20 * 1280 - 3072)
    a('s_lshr_b32 s70, s%d, 1', sW)
    a('s_lshl_b32 s71, s70, 6')
    a('v_xor_b32 v%d, s71, v%d', vDBB, vDX)
    for i in range(1, 3):
        a('v_add_u32 v%d, %d, v%d', vDBB + i, (10240 - 1024) * i, vDBB)
    a('s_and_b32 s71, s%d, 1', sW)
    a('s_mul_i32 s75, s70, 5120')
    a('s_lshl_b32 s77, s71, 11')
    a('s_add_u32 s75, s75, s77')
    a('s_mul_i32 s77, s%d, %d', sCG, 40 * 1280)
    a('s_mul_i32 s71, s71, %d', 16 * 1280)
    a('s_add_u32 s77, s77, s71')
    a('v_and_b32 v5, 3, v%d', vLANE)
    a('v_lshlrev_b32 v5, 8, v5')
    a('v_lshl_add_u32 v5, v%d, 2, v5', vLANE)
    a('v_add_u32 v%d, %d, v5', vSPW, L_PW + 1024)
    if OPT['early0']:
        a('s_waitcnt vmcnt(11)')
        stamp('S', 'st0')
        a('s_barrier')
        s_stage(2)
        a('s_waitcnt vmcnt(8)')
        a('s_barrier')
        s_stage(3)
        s_stage(4)
    else:
        s_stage(2)
        a('s_waitcnt vmcnt(16)')
        stamp('S', 'st0')
        a('s_barrier')
        s_stage(3)

def s_params():
    a('s_cmp_eq_u32 s%d, 0', sW)
    a('s_cbranch_scc0 L_nopar')
    for r in (10, 11, 12):
        a('v_lshlrev_b32 v%d, 16, v%d', r, r)
    exp_acc(13, 10, 14, 15)
    a('v_cvt_pk_bf16_f32 v13, v13, v13')
    a('v_and_b32 v13, 0xffff0000, v13')
    a('v_mul_f32 v14, v13, v11')
    a('v_mul_f32 v15, v13, v12')
    exp_acc(16, 14, 17, 18)
    I2P = 1.0 / (2 * math.pi)
    hi = struct.unpack('<f', struct.pack('<f', I2P))[0]
    a('s_mov_b32 s80, 0x%x', f2u(hi))
    a('v_mul_f32 v17, s80, v15')
    a('v_rndne_f32 v17, v17')
    a('v_fma_f32 v17, v15, s80, -v17')
    a('v_fmac_f32 v17, 0x%x, v15', f2u(I2P - hi))
    a('v_cos_f32 v20, v17')
    a('v_sin_f32 v21, v17')
    a('v_mul_f32 v18, v11, v11')
    a('v_fmac_f32 v18, v12, v12')
    a('v_rcp_f32 v19, v18')
    a('v_mul_f32 v20, v16, v20')
    a('v_mul_f32 v21, v16, v21')
    a('v_fma_f32 v18, -v18, v19, 1.0')
    a('v_fmac_f32 v19, v19, v18')
    a('v_add_f32 v19, v19, v19')
    a('v_add_f32 v17, -1.0, v20')
    a('v_mul_f32 v22, v17, v11')
    a('v_fmac_f32 v22, v21, v12')
    a('v_mul_f32 v23, v17, v12')
    a('v_fma_f32 v23, -v21, v11, v23')
    a('v_mul_f32 v22, v22, v19')
    a('v_mul_f32 v23, v23, v19')
    a('v_lshlrev_b32 v9, 4, v%d', vLANE)
    a('v_add_u32 v9, %d, v9', L_PAR)
    a('ds_write_b128 v9, v[20:23]')
    a('v_mov_b32 v24, v20')
    a('v_sub_f32 v25, 0, v21')
    for k in range(7):
        a('v_mul_f32 v26, v25, v25')
        a('v_add_f32 v27, v24, v24')
        a('v_fma_f32 v24, v24, v24, -v26')
        a('v_mul_f32 v25, v27, v25')
        if k in (2, 6):
            d = vL8 if k == 2 else vL128
            a('v_mov_b32 v%d, v24', d)
            a('v_mov_b32 v%d, v24', d + 1)
            a('v_sub_f32 v%d, 0, v25', d + 2)
            a('v_mov_b32 v%d, v25', d + 3)
    a('s_waitcnt lgkmcnt(0)')
    a.label('L_nopar')

vWOA = 220

def s_wooffs():
    for i in range(5):
        a('v_add_u32 v40, %d, v%d', 64 * i, vLANE)
        a('v_mul_u32_u24 v41, 6554, v40')
        a('v_lshrrev_b32 v41, 16, v41')
        a('v_mul_u32_u24 v42, 10, v41')
        a('v_sub_u32 v40, v40, v42')
        tau(42, 41, 43)
        a('v_mul_u32_u24 v42, 1280, v42')
        a('v_lshl_add_u32 v%d, v40, 4, v42', vWOA + i)
        if 0 < i < 4:
            a('v_subrev_u32 v%d, %d, v%d', vWOA + i, 1024 * i, vWOA + i)

def s_qloader():
    for st in range(2 if OPT['early0'] else 1, 10):
        nx = 9 if OPT['st10'] else 1
        out = {7: 16, 8: 8 + nx, 9: nx}.get(st, 16)
        a('s_waitcnt vmcnt(%d)', out)
        if OPT['fine'] and st in (3, 5, 7, 9):
            stamp('S', 'st%d' % st)
        a('s_barrier')
        if st == 7:
            a('v_and_b32 v32, 15, v%d', vLANE)
            a('v_lshlrev_b32 v32, 2, v32')
            a(dbgload(32, 33))
        if st <= 6:
            s_stage(st + 3)
        if st == 7 and OPT['st10']:
            s_first10()
        if st == 8:
            s_params()
        if st == 9:
            s_wooffs()
    a('s_waitcnt vmcnt(%d)', 8 if OPT['st10'] else 0)
    a('v_cmp_eq_u32 vcc, 0, v33')
    a('s_cbranch_vccz L_clrok')
    pollflags([dbgload(32, 33)], 33)
    a.label('L_clrok')
    a('s_barrier')
    stamp('S', 'qend')

def s_first10():
    if True:
        if True:
            s_stage(10)
            a('s_cmp_eq_u32 s%d, 1', sW)
            a('s_cselect_b32 s70, s%d, s%d', sCIM, sCRE)
            a('s_cselect_b32 s71, s%d, s%d', sCIM + 1, sCRE + 1)
            a('s_cmp_ge_u32 s%d, 2', sW)
            a('s_cselect_b32 s70, s%d, s70', sWO)
            a('s_cselect_b32 s71, s%d, s71', sWO + 1)
            a('s_mul_i32 s83, s2, 3200')
            a('v_min_u32 v30, 24, v%d', vLANE)
            a('v_lshl_add_u32 v30, v30, 7, s83')
            a('global_load_dword v31, v30, s[70:71]')

vPAR = 200

def s_b1():
    F = [40, 68]
    vXR, vBR = 96, 100
    a('v_and_b32 v1, 15, v%d', vLANE)
    a('v_lshrrev_b32 v2, 4, v%d', vLANE)
    a('v_lshrrev_b32 v3, 1, v1')
    a('v_xor_b32 v3, v3, v2')
    a('v_lshlrev_b32 v3, 4, v3')
    a('v_lshl_add_u32 v4, v1, 7, v3')
    a('v_add_u32 v%d, s74, v4', vXR)
    a('v_xor_b32 v%d, 64, v%d', vXR + 1, vXR)
    a('v_lshrrev_b32 v5, 3, v1')
    a('v_lshl_add_u32 v4, v5, 12, v4')
    a('v_add_u32 v%d, 16384, v4', vBR)
    a('v_xor_b32 v%d, 64, v%d', vBR + 1, vBR)
    for k in range(2):
        a('v_add_u32 v%d, 0x10000, v%d', vXR + 2 + k, vXR + k)
        a('v_add_u32 v%d, 0x10000, v%d', vBR + 2 + k, vBR + k)
    a('v_and_b32 v6, 7, v%d', vLANE)
    a('v_lshlrev_b32 v6, 4, v6')
    a('v_add_u32 v6, %d, v6', L_PAR)
    for j in range(5):
        a('ds_read_b128 %s, v6 offset:%d', v(vPAR + 4 * j, 4), 128 * j)
    a('v_lshlrev_b32 v5, 31, v5')
    a('s_waitcnt lgkmcnt(0)')
    for j in range(5):
        a('v_xor_b32 v%d, v5, v%d', vPAR + 4 * j + 1, vPAR + 4 * j + 1)
        a('v_xor_b32 v%d, v5, v%d', vPAR + 4 * j + 2, vPAR + 4 * j + 2)
    def reads(t, ks, f):
        slot = t % 4
        hi, lo = slot >> 1, (slot & 1) * 32768
        r = ['ds_read_b128 %s, v%d offset:%d' % (v(f + 4 * T, 4), vXR + 2 * hi + ks, lo + 2048 * T) for T in range(2)]
        r += ['ds_read_b128 %s, v%d offset:%d' % (v(f + 8 + 4 * j, 4), vBR + 2 * hi + ks, lo + 1024 * j) for j in range(5)]
        return r
    def mfmas(f, first):
        return ['v_mfma_f32_16x16x32_bf16 %s, %s, %s, %s' % (v(8 * j + 4 * T, 4), v(f + 4 * T, 4), v(f + 8 + 4 * j, 4),
                '0' if first else v(8 * j + 4 * T, 4)) for j in range(5) for T in range(2)]
    def weave(ms, others):
        n = len(ms)
        k = 0
        for i_, m in enumerate(ms):
            a(m)
            while k < len(others) * (i_ + 1) // n:
                a(others[k])
                k += 1
    if OPT['b1prio']:
        a('s_setprio 1')
    DEP = OPT['b1dep']
    q = [10]
    def vmwait(t):
        n = sum(7 for x in q if x > t)
        return n
    if not OPT['st10']:
        a('v_subrev_u32 v106, 1024, v%d', vSPW)
        waitpw(106, OPT['hold'], 105, sleep=1)
        s_first10()
    a('s_waitcnt vmcnt(0)')
    setpw(1, 104)
    if OPT['hold'] and OPT['st10']:
        a('v_subrev_u32 v106, 1024, v%d', vSPW)
        waitpw(106, OPT['hold'], 105, sleep=1)
    for t in range(11, 11 + DEP - 1):
        s_stage(t)
        q.append(t)
    waitpw(vSPW, 1, 105)
    for r in reads(10, 0, F[0]):
        a(r)
    for u in range(10):
        t = 10 + u
        if OPT['fine'] and u in (0, 3, 6, 9):
            stamp('S', 'b1w%d' % u)
        for r in reads(t, 1, F[1]):
            a(r)
        nt = t + DEP
        st_ = s_stage(nt, emit=False) if nt <= 19 else []
        m0_ = mfmas(F[0], u == 0)
        a('s_waitcnt lgkmcnt(7)')
        weave(m0_, st_)
        if nt <= 19:
            q.append(nt)
        m1_ = mfmas(F[1], False)
        if u < 9:
            a('s_waitcnt vmcnt(%d) lgkmcnt(0)', vmwait(t + 1))
            setpw(u + 2, 104)
            for m in m1_[:5]:
                a(m)
            waitpw(vSPW, u + 2, 105)
            weave(m1_[5:], reads(t + 1, 0, F[0]))
        else:
            a('s_waitcnt lgkmcnt(0)')
            for m in m1_:
                a(m)
    stamp('S', 'b1gemm')

def s_scan():
    ROR = 'row_ror:8 row_mask:0xf bank_mask:0xf'
    a('s_setprio 1')
    vE = 106
    a('v_and_b32 v100, 7, v%d', vLANE)
    a('v_bfe_u32 v101, v%d, 3, 1', vLANE)
    a('v_lshlrev_b32 v101, 2, v101')
    a('v_lshl_add_u32 v100, v100, 3, v101')
    a('v_lshrrev_b32 v101, 4, v%d', vLANE)
    a('v_mul_u32_u24 v101, 320, v101')
    a('s_mul_i32 s70, s%d, 1280', sW)
    a('s_add_u32 s70, s70, %d', L_EL)
    a('v_add3_u32 v%d, v100, v101, s70', vE)
    tmp = 40
    for j in range(5):
        for k in range(8):
            a('v_mul_f32_dpp v%d, v%d, v%d %s', tmp + k, 8 * j + k, vPAR + 4 * j + 3, ROR)
        for k in range(8):
            a('v_fma_f32 v%d, v%d, v%d, v%d', 8 * j + k, vPAR + 4 * j + 2, 8 * j + k, tmp + k)
    e = [[8 * j for j in range(5)], [50 + j for j in range(5)], [56 + j for j in range(5)]]
    cur = e[0]
    for k in range(1, 8):
        nx = e[1 + (k & 1)]
        for j in range(5):
            a('v_fma_f32 v%d, v%d, v%d, v%d', nx[j], vPAR + 4 * j, cur[j], 8 * j + k)
        for j in range(5):
            a('v_fmac_f32_dpp v%d, v%d, v%d %s', nx[j], cur[j], vPAR + 4 * j + 1, ROR)
        cur = nx
    for j in range(5):
        a('ds_write_b32 v%d, v%d offset:%d', vE, cur[j], 64 * j)
    a('s_waitcnt lgkmcnt(0)')
    setpw(11, 104)
    stamp('S', 'pass1')
    a('s_cmp_eq_u32 s%d, 0', sW)
    a('s_cbranch_scc0 L_nocol')
    def chain(dst, src, L, add):
        a('v_fma_f32 v%d, v%d, v%d, v%d', dst, L, src, add)
        a('v_fma_f32 v%d, v%d, v%d, v%d', dst + 1, L, src + 1, add + 1)
        a('v_fmac_f32 v%d, v%d, v%d', dst, L + 2, src + 1)
        a('v_fmac_f32 v%d, v%d, v%d', dst + 1, L + 3, src)
    a('s_lshl_b32 s70, s%d, 13', sCG)
    a('s_add_u32 s70, s70, 0x%x', WS_E)
    a('s_add_u32 s70, s70, s%d', sWS)
    a('s_addc_u32 s71, s%d, 0', sWS + 1)
    srd(R5, 70, 8192)
    a('s_sub_u32 s70, 15, s%d', sRB)
    a('s_lshl_b32 s70, s70, 9')
    a('s_add_u32 s71, s70, 4096')
    a('s_lshl_b32 s78, s%d, 11', sCG)
    a('s_add_u32 s78, s78, 0x%x', F2)
    a('s_lshl_b32 s79, s%d, 7', sRB)
    a('s_add_u32 s79, s79, s78')
    a('v_lshlrev_b32 v102, 3, v%d', vLANE)
    a('v_add_u32 v103, %d, v102', L_EL)
    waitpw(vSPW, 11, 105, sleep=1)
    ES, EG, PP = 110, 142, 172
    for sg in range(16):
        a('ds_read_b64 %s, v103 offset:%d', v(ES + 2 * sg, 2), 320 * sg)
    a('s_waitcnt lgkmcnt(0)')
    src = ES
    for sg in range(1, 16):
        dst = PP + 2 * (sg & 1)
        chain(dst, src, vL8, ES + 2 * sg)
        src = dst
    a('s_mov_b32 exec_hi, 0xff')
    a('buffer_store_dwordx2 %s, v102, s[%d:%d], s70 offen sc1', v(src, 2), R5, R5 + 3)
    a('s_mov_b32 exec_hi, -1')
    a('s_waitcnt vmcnt(0)')
    setflag(79, 101)
    a('v_lshlrev_b32 v100, 7, v%d', vLANE)
    a('s_cmp_eq_u32 s%d, 0', sRB)
    a('s_cbranch_scc1 L_nof2')
    a('s_bfm_b64 exec, s%d, 0', sRB)
    pollflags(['buffer_load_dword v101, v100, s[%d:%d], s78 offen sc1' % (RWS, RWS + 3)], 101, sleep=4)
    a.label('L_nof2')
    a('s_mov_b32 exec_hi, 0xff')
    for k in range(15, 0, -1):
        a('buffer_load_dwordx2 %s, v102, s[%d:%d], s%d offen offset:%d sc1', v(EG + 2 * (15 - k), 2), R5, R5 + 3,
          71 if k >= 8 else 70, 512 * (k & 7))
    a('v_add_u32 v103, %d, v102', L_PL)
    a('s_waitcnt vmcnt(0)')
    src = EG
    for n in range(1, 15):
        dst = PP + 2 * (n & 1)
        chain(dst, src, vL128, EG + 2 * n)
        src = dst
    for sg in range(16):
        a('ds_write_b64 v103, %s offset:%d', v(src, 2), 320 * sg)
        if sg < 15:
            dst = EG + 2 * sg
            chain(dst, src, vL8, ES + 2 * sg)
            src = dst
    a('s_mov_b32 exec_hi, -1')
    a('s_waitcnt lgkmcnt(0)')
    setpw(12, 104)
    a('s_branch L_coldone')
    a.label('L_nocol')
    srd(R0, sWO, 640 * 1280)
    a('s_cmp_eq_u32 s%d, 2', sW)
    a('s_cselect_b32 s70, s%d, s%d', sCRE, sCIM)
    a('s_cselect_b32 s71, s%d, s%d', sCRE + 1, sCIM + 1)
    a('s_cmp_eq_u32 s%d, 1', sW)
    a('s_cselect_b32 s70, s%d, s70', sWO)
    a('s_cselect_b32 s71, s%d, s71', sWO + 1)
    a('s_mul_i32 s78, s%d, 25600', sI)
    a('v_min_u32 v100, 49, v%d', vLANE)
    a('v_lshl_add_u32 v100, v100, 7, s78')
    for k in range(4):
        if OPT['cpre']:
            a('global_load_dword v101, v100, s[70:71]')
            if k < 3:
                a('v_add_u32 v100, 6400, v100')
            a('s_waitcnt vmcnt(0)')
    waitpw(vSPW, 11, 105, sleep=2)
    a('s_sub_u32 s78, s%d, 1', sW)
    a('s_mul_i32 s79, s78, 40960')
    a('s_mul_i32 s70, s%d, 160', sOG)
    a('s_add_u32 s79, s79, s70')
    a('s_mul_i32 s78, s78, 5120')
    a.label('L_woloop')
    a('s_mov_b32 m0, s78')
    a('s_add_u32 s70, s78, 4096')
    for i in range(4):
        a(dma(vWOA + i, R0, 79, 1024 * i))
    a('s_mov_b32 m0, s70')
    a('s_add_u32 s78, s78, %d', 3 * 5120)
    a(dma(vWOA + 4, R0, 79, 0))
    a('s_add_u32 s79, s79, %d', 3 * 40960)
    a('s_waitcnt vmcnt(%d)', OPT['thr'] // 2)
    a('s_cmp_lt_u32 s78, %d', 20 * 5120)
    a('s_cbranch_scc1 L_woloop')
    a.label('L_coldone')
    a('v_lshlrev_b32 v100, 2, v%d', vLANE)
    a('v_add_u32 v100, %d, v100', L_PW + 1024)
    a('v_and_b32 v101, 15, v%d', vLANE)
    a('v_lshrrev_b32 v102, 4, v%d', vLANE)
    a('v_bfe_u32 v103, v%d, 1, 2', vLANE)
    a('v_xor_b32 v103, v103, v102')
    a('v_lshlrev_b32 v103, 4, v103')
    a('s_mul_i32 s70, s%d, 5120', sW)
    a('s_add_u32 s70, s70, %d', L_HT)
    a('v_lshl_add_u32 v107, v101, 6, v103')
    a('v_add_u32 v107, s70, v107')
    a('v_bfe_u32 v103, v%d, 2, 2', vLANE)
    a('v_lshrrev_b32 v108, 5, v%d', vLANE)
    a('v_lshl_add_u32 v109, v108, 3, v103')
    a('v_lshlrev_b32 v109, 6, v109')
    a('v_lshrrev_b32 v103, 1, v103')
    a('v_bfe_u32 v110, v%d, 4, 1', vLANE)
    a('v_bfe_u32 v111, v%d, 1, 1', vLANE)
    a('v_lshl_add_u32 v111, v110, 1, v111')
    a('v_xor_b32 v111, v111, v103')
    a('v_lshl_add_u32 v109, v111, 4, v109')
    a('v_and_b32 v111, 1, v%d', vLANE)
    a('v_lshl_add_u32 v109, v111, 3, v109')
    a('v_xor_b32 v112, 32, v109')
    a('v_add_u32 v109, s70, v109')
    a('v_add_u32 v112, s70, v112')
    a('v_mul_u32_u24 v110, %d, v110', HBLK)
    a('v_mul_u32_u24 v108, %d, v108', 80 * 256)
    a('v_lshl_add_u32 v110, v101, 4, v110')
    a('v_add_u32 v110, v110, v108')
    a('s_lshl2_add_u32 s70, s%d, s%d', sRB, sW)
    a('s_mul_i32 s71, s70, %d', 2 * HBLK)
    a('s_mul_i32 s78, s%d, 1280', sCG)
    a('s_add_u32 s71, s71, s78')
    a('s_add_u32 s71, s71, 0x%x', WS_H)
    a('s_lshl4_add_u32 s70, s70, s%d', sCG)
    flagaddr(70, 70, F3, 78)
    waitpw(100, 12, 105, sleep=4)
    stamp('S', 'carry')
    for j in range(5):
        a('ds_read_b32 v%d, v%d offset:%d', 50 + j, vE, L_PL - L_EL + 64 * j)
    a('s_waitcnt lgkmcnt(0)')
    for k in range(8):
        pr = [50 + j if k == 0 else 8 * j + k - 1 for j in range(5)]
        for j in range(5):
            a('v_fmac_f32 v%d, v%d, v%d', 8 * j + k, vPAR + 4 * j, pr[j])
        for j in range(5):
            a('v_fmac_f32_dpp v%d, v%d, v%d %s', 8 * j + k, pr[j], vPAR + 4 * j + 1, ROR)
    for j in range(5):
        for q in range(4):
            a('v_cvt_pk_bf16_f32 v%d, v%d, v%d', 60 + 4 * j + q, 8 * j + 2 * q, 8 * j + 2 * q + 1)
        a('ds_write_b128 v107, %s offset:%d', v(60 + 4 * j, 4), 1024 * j)
    a('s_waitcnt lgkmcnt(0)')
    for j in range(5):
        a('ds_read_b64_tr_b16 %s, v109 offset:%d', v(4 * j, 2), 1024 * j)
        a('ds_read_b64_tr_b16 %s, v112 offset:%d', v(4 * j + 2, 2), 1024 * j + 256)
    for j in range(5):
        a('s_waitcnt lgkmcnt(%d)', 8 - 2 * j)
        a('buffer_store_dwordx4 %s, v110, s[%d:%d], s71 offen offset:%d sc1', v(4 * j, 4), RWS, RWS + 3, 256 * j)
    setpw(13, 104)

def s_b3():
    vCA, vCR, vHA = 232, 234, 236
    acc, HF, CF = 0, 80, [208, 216]
    a('s_cmp_ge_u32 s%d, 2', sW)
    a('s_cselect_b32 s78, s%d, s%d', sCIM, sCRE)
    a('s_cselect_b32 s79, s%d, s%d', sCIM + 1, sCRE + 1)
    srd(R1, 78, 640 * 1280)
    srd(R6, sOUT, 2048 * 1280 * 4)
    a('v_mov_b32 v%d, v%d', vCA, vDX)
    a('v_mov_b32 v%d, v%d', vCA + 1, vDX + 1)
    a('v_and_b32 v40, 15, v%d', vLANE)
    a('v_lshrrev_b32 v41, 4, v%d', vLANE)
    a('v_lshrrev_b32 v42, 1, v40')
    a('v_xor_b32 v42, v42, v41')
    a('v_lshlrev_b32 v42, 4, v42')
    a('v_lshl_add_u32 v42, v40, 7, v42')
    a('s_mul_i32 s74, s%d, %d', sW, REGSZ)
    a('s_add_u32 s74, s74, %d', L_REG)
    a('v_xor_b32 v43, 64, v42')
    a('v_add_u32 v%d, s74, v42', vCR)
    a('v_add_u32 v%d, s74, v43', vCR + 1)
    a('v_lshlrev_b32 v%d, 4, v%d', vHA, vLANE)
    a('s_and_b32 s78, s%d, 1', sW)
    a('s_mul_i32 s72, s%d, %d', sOG, 80 * 1280)
    a('s_mul_i32 s73, s78, 640')
    a('s_add_u32 s72, s72, s73')
    a('s_mul_i32 s79, s%d, %d', sW, 40 * 256)
    a('s_add_u32 s79, s79, 0x%x', WS_H)
    a('s_lshl_b32 s78, s78, 1')
    for l in range(4):
        a('s_xor_b32 s80, s78, %d', l)
        a('s_lshl2_add_u32 s80, s%d, s80', sTB)
        a('s_mul_i32 s80, s80, %d', HBLK)
        a('s_add_u32 s%d, s80, s79', 84 + l)
    a('v_lshlrev_b32 v%d, 7, v%d', vHA + 1, vLANE)
    a('s_lshl_b32 s88, s%d, 12', sTB)
    a('s_add_u32 s88, s88, 0x%x', F3)
    a('s_waitcnt vmcnt(0)')
    setflag(70, 40)
    stamp('S', 'hpub')
    waitpw(vSPW, 13, 40, sleep=2)
    def cdma(n):
        kp, j = divmod(n, 5)
        a('s_add_u32 m0, s74, %d', 2048 * (n % 4))
        a('s_add_u32 s76, s72, %d', 16 * 1280 * j + 128 * kp)
        a(dma(vCA, R1, 76, 0))
        a(dma(vCA + 1, R1, 76, 1024))
    for n in range(4):
        cdma(n)
    a('s_waitcnt vmcnt(0)')
    setpw(14, 40)
    a('s_cmp_eq_u32 s%d, 0', sW)
    a('s_cbranch_scc0 L_f3wait')
    a('s_mov_b32 exec_hi, 0')
    pollflags(['buffer_load_dword v40, v%d, s[%d:%d], s88 offen sc1' % (vHA + 1, RWS, RWS + 3)], 40, sleep=4)
    setpw(15, 40)
    a.label('L_f3wait')
    a('v_lshlrev_b32 v41, 2, v%d', vLANE)
    a('v_add_u32 v41, %d, v41', L_PW + 1024)
    waitpw(41, 15, 40, sleep=8)
    stamp('S', 'f3')
    def hload(l, ks):
        return 'buffer_load_dwordx4 %s, v%d, s[%d:%d], s%d offen offset:%d sc1' % (
            v(HF + 16 * (ks % 8) + 4 * l, 4), vHA, RWS, RWS + 3, 84 + l, 1024 * (ks & 3))
    a('s_lshl2_add_u32 s78, s%d, s%d', sOG, sW)
    a('s_mul_i32 s78, s78, 5120')
    a('s_mul_i32 s79, s%d, %d', sTB, 4 * HBLK)
    a('s_add_u32 s78, s78, s79')
    a('s_add_u32 s78, s78, 0x%x', WS_H)
    a('v_min_u32 v41, 39, v%d', vLANE)
    a('v_lshlrev_b32 v41, 7, v41')
    a('buffer_load_dword v40, v41, s[%d:%d], s78 offen sc1', RWS, RWS + 3)
    a('s_waitcnt vmcnt(0)')
    for ks in range(8):
        for l in range(4):
            a(hload(l, ks))
            if l & 1:
                a('s_waitcnt vmcnt(%d)', OPT['thr'])
        if ks & 3 == 3:
            for l in range(4):
                a('s_add_u32 s%d, s%d, 4096', 84 + l, 84 + l)
    a('v_subrev_u32 v41, 1024, v%d', vPW)
    waitpw(41, 4, 40, sleep=4)
    a('s_setprio 0')
    a('s_waitcnt vmcnt(0)')
    stamp('S', 'b3go')
    def creads(n):
        return ['ds_read_b128 %s, v%d offset:%d' % (v(CF[n & 1] + 4 * k, 4), vCR + k, 2048 * (n % 4)) for k in range(2)]
    q = []
    def waitfor(tag):
        idx = max(i for i, x in enumerate(q) if x == tag) if tag in q else -1
        n = len(q) - 1 - idx
        del q[:idx + 1]
        return n
    for r in creads(0):
        a(r)
    a('s_waitcnt lgkmcnt(0)')
    cdma(4)
    q += [4, 4]
    for n in range(25):
        kp, j = divmod(n, 5)
        if n + 1 < 25:
            if (n + 1) in q:
                a('s_waitcnt vmcnt(%d)', waitfor(n + 1))
            for r in creads(n + 1):
                a(r)
        if n == 20 and 'h' in q:
            a('s_waitcnt vmcnt(%d)', waitfor('h'))
        for k in range(2):
            ks = 2 * kp + k
            for l in range(4):
                d = acc + 20 * l + 4 * j
                a('v_mfma_f32_16x16x32_bf16 %s, %s, %s, %s', v(d, 4), v(CF[n & 1] + 4 * k, 4), v(HF + 16 * (ks % 8) + 4 * l, 4),
                  '0' if ks == 0 else v(d, 4))
        if n == 4:
            for ks in (8, 9):
                for l in range(4):
                    a(hload(l, ks))
                    q.append('h')
        if n + 1 < 25:
            a('s_waitcnt lgkmcnt(0)')
            if n + 5 < 25:
                cdma(n + 5)
                q += [n + 5, n + 5]
            if n == OPT['gate4']:
                setpw(16, 224)
    stamp('S', 'b3gemm')
    a('s_setprio 1')
    vX, vD, vRA, vOA, T = 120, 132, 144, 150, 160
    a('s_lshl1_add_u32 s78, s%d, 0', sW)
    a('s_and_b32 s78, s78, 2')
    a('s_lshr_b32 s79, s%d, 1', sW)
    a('s_xor_b32 s78, s78, s79')
    a('s_lshl2_add_u32 s78, s%d, s78', sTB)
    a('s_mul_i32 s80, s78, %d', 16 * 1280)
    a('s_mul_i32 s81, s%d, 160', sOG)
    a('s_add_u32 s80, s80, s81')
    a('s_mul_i32 s82, s78, %d', 16 * 5120)
    a('s_lshl1_add_u32 s82, s81, s82')
    a('s_add_u32 s82, s82, 2560')
    a('s_add_u32 s84, s%d, s81', sDSK)
    a('s_addc_u32 s85, s%d, 0', sDSK + 1)
    a('s_xor_b32 s86, s%d, 1', sW)
    a('s_mul_i32 s86, s86, %d', REGSZ)
    a('s_add_u32 s86, s86, %d', L_REG)
    a('s_xor_b32 s87, s%d, 3', sW)
    a('s_mul_i32 s87, s87, %d', REGSZ)
    a('s_add_u32 s87, s87, %d', L_REG)
    a('s_mul_i32 s79, s79, %d', 16 * 336)
    for i in range(5):
        a('v_add_u32 v%d, %d, v%d', T, 64 * i, vLANE)
        a('v_mul_u32_u24 v%d, 3277, v%d', T + 1, T)
        a('v_lshrrev_b32 v%d, 16, v%d', T + 1, T + 1)
        a('v_add_lshl_u32 v%d, v%d, v%d, 4', vRA + i, T, T + 1)
        a('v_add_u32 v%d, s79, v%d', vRA + i, vRA + i)
        a('v_mul_u32_u24 v%d, 20, v%d', T + 2, T + 1)
        a('v_sub_u32 v%d, v%d, v%d', T, T, T + 2)
        a('v_lshlrev_b32 v%d, 3, v%d', T + 2, T)
        a('global_load_dwordx2 %s, v%d, s[84:85]', v(vD + 2 * i, 2), T + 2)
        a('v_mul_u32_u24 v%d, 1280, v%d', T + 3, T + 1)
        a('v_add_u32 v%d, v%d, v%d', T + 3, T + 3, T + 2)
        a('buffer_load_dwordx2 %s, v%d, s[%d:%d], s80 offen', v(vX + 2 * i, 2), T + 3, R3, R3 + 3)
        a('v_mul_u32_u24 v%d, 5120, v%d', T + 1, T + 1)
        a('v_lshl_add_u32 v%d, v%d, 4, v%d', vOA + i, T, T + 1)
    a('v_subrev_u32 v%d, 1024, v%d', T, vSPW)
    waitpw(T, 6, T + 1, sleep=2)
    a('v_add_u32 v%d, s74, v%d', T, vHA)
    for qd in range(10):
        a('ds_write_b128 v%d, %s offset:%d', T, v(acc + 40 + 4 * qd, 4), 1024 * qd)
    a('s_waitcnt lgkmcnt(0)')
    setpw(17, T + 1)
    a('v_xor_b32 v%d, 256, v%d', T + 2, vPW)
    a('v_add_u32 v%d, s86, v%d', T, vHA)
    a('v_and_b32 v%d, 15, v%d', T + 3, vLANE)
    a('v_mul_u32_u24 v%d, 336, v%d', T + 3, T + 3)
    a('v_and_b32 v%d, 48, v%d', T + 4, vLANE)
    a('v_add3_u32 v%d, v%d, v%d, s86', T + 3, T + 3, T + 4)
    waitpw(T + 2, 17, T + 1)
    for qd in range(10):
        a('ds_read_b128 %s, v%d offset:%d', v(acc + 40 + 4 * qd, 4), T, 1024 * qd)
    a('s_waitcnt lgkmcnt(0)')
    for qd in range(10):
        l, j = divmod(qd, 5)
        for e in range(4):
            a('v_add_f32 v%d, v%d, v%d', acc + 4 * qd + e, acc + 4 * qd + e, acc + 40 + 4 * qd + e)
        a('ds_write_b128 v%d, %s offset:%d', T + 3, v(acc + 4 * qd, 4), 16 * 336 * l + 64 * j)
    a('s_waitcnt lgkmcnt(0)')
    setpw(18, T + 1)
    a('v_xor_b32 v%d, 512, v%d', T + 2, vPW)
    a('s_waitcnt vmcnt(0)')
    U = 80
    for i in range(5):
        for hf in range(2):
            a('v_lshlrev_b32 v%d, 16, v%d', T + 4, vX + 2 * i + hf)
            a('v_lshlrev_b32 v%d, 16, v%d', T + 5, vD + 2 * i + hf)
            a('v_and_b32 v%d, 0xffff0000, v%d', T + 6, vX + 2 * i + hf)
            a('v_and_b32 v%d, 0xffff0000, v%d', T + 7, vD + 2 * i + hf)
            a('v_mul_f32 v%d, v%d, v%d', U + 4 * i + 2 * hf, T + 4, T + 5)
            a('v_mul_f32 v%d, v%d, v%d', U + 4 * i + 2 * hf + 1, T + 6, T + 7)
    waitpw(T + 2, 18, T + 1)
    for i in range(5):
        a('v_add_u32 v%d, s86, v%d', T + 4, vRA + i)
        a('v_add_u32 v%d, s87, v%d', T + 5, vRA + i)
        a('ds_read_b128 %s, v%d', v(acc + 8 * i, 4), T + 4)
        a('ds_read_b128 %s, v%d', v(acc + 8 * i + 4, 4), T + 5)
    for i in range(5):
        a('s_waitcnt lgkmcnt(%d)', 8 - 2 * i)
        for e in range(4):
            a('v_add_f32 v%d, v%d, v%d', U + 4 * i + e, U + 4 * i + e, acc + 8 * i + e)
        for e in range(4):
            a('v_add_f32 v%d, v%d, v%d', U + 4 * i + e, U + 4 * i + e, acc + 8 * i + 4 + e)
        a('buffer_store_dwordx4 %s, v%d, s[%d:%d], s82 offen%s', v(U + 4 * i, 4), vOA + i, R6, R6 + 3, OSC)
    finish('S')

prologue()
a_setup()
a_qphase()
a_att_setup()
a_attention()
a_outproj()
s_setup()
s_qloader()
s_b1()
s_scan()
s_b3()
a.label('L_codeend')

errs = check(a.lines)
for e_ in errs:
    print('HAZARD', e_, file=sys.stderr)

head = open('cdna_kernels/%s.s.ref' % NAME).read().split('; @launch')[0]
out = head + '; @launch grid=(256,1,1) block=(512,1,1) lds=%d\n' % LDS_BYTES
out += '''.amdgcn_target "amdgcn-amd-amdhsa--gfx950"
.text
.globl %s_kernel
.p2align 8
.type %s_kernel,@function
%s_kernel:
''' % (NAME, NAME, NAME)
out += a.text()
out += '''.section .rodata,"a"
.p2align 6
.amdhsa_kernel %s_kernel
  .amdhsa_next_free_vgpr 256
  .amdhsa_next_free_sgpr 102
  .amdhsa_accum_offset 256
  .amdhsa_group_segment_fixed_size 0
  .amdhsa_kernarg_size 120
  .amdhsa_user_sgpr_count 2
  .amdhsa_user_sgpr_kernarg_segment_ptr 1
  .amdhsa_system_sgpr_workgroup_id_x 1
.end_amdhsa_kernel
''' % NAME
open(sys.argv[1], 'w').write(out)
if DIAG:
    import json
    json.dump(nstamp, open(sys.argv[1] + '.stamps.json', 'w'))
if errs:
    sys.exit(1)
```

```python
import sys, math, struct
from asmlib import Asm, v, s, check

NAME = 'concat_heads__mha_block__ssm_conv_s5__prompt'
OPT = dict(diag=0, b3start=12, force_fb=0, psleep=2, fine=0, cpre=1, stag=4, b1dep=2, rot=1, thr=4, hold=3, codepre=1, psleep4=2, padto=0, outsc1=1, gate4=17, early0=1, st10=2, b1prio=0, probe='', probewg=-1, sexit=0, b3prio=0, nocdma=0, mallpre=0, b3early=1, pretouch=-1, pace=0, pause=1, wolate=1, thrw=2, kvsplit=5, tstart=4, k2split=0, gate1='x', tlate=1, spread=1, pollat=17)
for a_ in sys.argv[2:]:
    k_, v_ = a_.split('=')
    OPT[k_] = v_ if k_ in ('probe', 'gate1') else int(v_)
DIAG = OPT['diag']
OSC = ['', ' sc1', ' nt', ' sc1 nt'][OPT['outsc1']]

def f2u(x):
    return struct.unpack('<I', struct.pack('<f', x))[0]

BLK, VOFF, VROW = 247808, 164864, 10368
WS_H, HBLK = 0x800000, 40960
WS_O, OBLK = 0xD00000, 20480
WS_E = 0xF80000
WS_F = 0xFA0000
F1, F2, F3, F4 = WS_F, WS_F + 0x8000, WS_F + 0x10000, WS_F + 0x30000
WS_END = WS_F + 0x50000
WS_DIAG = 0x1000000
OOB = 0x7F000000
L_HT, L_EL, L_PL, L_PAR = 131072, 151552, 156672, 161024
L_PAR = 131072 + 0
L_WO = 0
L_REG, REGSZ = 102400, 14848
L_PW = 161792
LDS_BYTES = 163840
sAX, sWQ, sWO, sBX, sLRE, sLIM, sBRE, sBIM, sCRE, sCIM, sLDT, sDSK, sOUT, sDBG, sWS = range(4, 34, 2)
sW, sI, sXCD = 34, 35, 3
R0, R1, RWS, R3, R4, R5, R6 = 36, 40, 44, 48, 52, 56, 60
sRB, sCG, sHD, sQB, sTB, sOG = 64, 65, 66, 67, 68, 69
sSPIN = 96
sHI = 94
vLANE, vPW, vTS = 254, 253, 255
SPIN_MAX = 1 << 19

a = Asm()
nstamp = {}

def stamp(role, name):
    if OPT['probe'] == role + name:
        a('s_memrealtime s[98:99]')
        a('s_waitcnt lgkmcnt(0)')
        a('s_mov_b32 s97, s98')
    if not DIAG:
        return
    l = nstamp.setdefault(role, [])
    idx = len(l)
    l.append(name)
    a('s_memtime s[98:99]')
    a('s_memrealtime s[100:101]')
    a('s_waitcnt lgkmcnt(0)')
    a('v_writelane_b32 v%d, s98, %d', vTS, idx)
    a('v_writelane_b32 v%d, s100, %d', vTS, 32 + idx)

def srd(r, base, nbytes):
    a('s_mov_b32 s%d, s%d', r, base)
    a('s_mov_b32 s%d, s%d', r + 1, base + 1)
    if isinstance(nbytes, int):
        a('s_mov_b32 s%d, 0x%x', r + 2, nbytes)
    else:
        a('s_mov_b32 s%d, %s', r + 2, nbytes)
    a('s_mov_b32 s%d, 0x20000', r + 3)

def setpw(val, tmp):
    a('v_mov_b32 v%d, %d', tmp, val)
    a('ds_write_b32 v%d, v%d', vPW, tmp)

def waitpw(vaddr, val, tmp, sleep=0):
    L = a.newlabel('pw')
    D = a.newlabel('pwd')
    a.label(L)
    a('ds_read_b32 v%d, v%d', tmp, vaddr)
    a('s_waitcnt lgkmcnt(0)')
    a('v_cmp_gt_u32 vcc, %d, v%d', val, tmp)
    a('s_cbranch_vccz %s', D)
    if sleep:
        a('s_sleep %d', sleep)
    a('s_sub_u32 s%d, s%d, 1', sSPIN, sSPIN)
    a('s_cbranch_scc0 %s', L)
    a('s_endpgm')
    a.label(D)

def pollflags(loads, tmp, sleep=1):
    L = a.newlabel('pf')
    D = a.newlabel('pfd')
    a.label(L)
    for l in loads:
        a(l)
    a('s_waitcnt vmcnt(0)')
    for i in range(1, len(loads)):
        a('v_and_b32 v%d, v%d, v%d', tmp, tmp, tmp + i)
    a('v_cmp_eq_u32 vcc, 0, v%d', tmp)
    a('s_cbranch_vccz %s', D)
    a('s_mov_b64 exec, vcc')
    if sleep:
        a('s_sleep %d', sleep)
    a('s_sub_u32 s%d, s%d, 1', sSPIN, sSPIN)
    a('s_cbranch_scc0 %s', L)
    a('s_endpgm')
    a.label(D)
    a('s_mov_b64 exec, -1')

def dbgload(va, vd):
    return 'global_load_dword v%d, v%d, s[%d:%d] sc1' % (vd, va, sDBG, sDBG + 1)

def flagaddr(dst, idx, base, t):
    a('s_lshl_b32 s%d, s%d, 7', dst, idx)
    a('s_add_u32 s%d, s%d, 0x%x', dst, dst, base)

def setflag(soff, tmp):
    a('v_mov_b32 v%d, 1', tmp)
    a('s_mov_b64 exec, 1')
    a('buffer_store_dword v%d, off, s[%d:%d], s%d sc1', tmp, RWS, RWS + 3, soff)
    a('s_mov_b64 exec, -1')

def tau(dst, src, t):
    a('v_and_b32 v%d, 0x13, v%d', dst, src)
    a('v_and_b32 v%d, 4, v%d', t, src)
    a('v_lshl_or_b32 v%d, v%d, 1, v%d', dst, t, dst)
    a('v_and_b32 v%d, 8, v%d', t, src)
    a('v_lshrrev_b32 v%d, 1, v%d', t, t)
    a('v_or_b32 v%d, v%d, v%d', dst, t, dst)

def finish(role):
    if OPT['probe'][:1] == role:
        if OPT['probe'][1:] == 'drained':
            a('s_waitcnt vmcnt(0)')
            stamp(role, 'drained')
        a('s_sub_u32 s97, s97, s100')
        a('s_mul_i32 s97, s97, 10')
        a('s_add_u32 s97, s97, 10000')
        if OPT['probewg'] >= 0:
            a('s_and_b32 s98, s2, 31')
            a('s_cmp_eq_u32 s98, %d', OPT['probewg'])
            a('s_cselect_b32 s97, s97, 0')
        L = a.newlabel('pad')
        a.label(L)
        a('s_sleep 4')
        a('s_memrealtime s[98:99]')
        a('s_waitcnt lgkmcnt(0)')
        a('s_sub_u32 s98, s98, s100')
        a('s_cmp_lt_u32 s98, s97')
        a('s_cbranch_scc1 %s', L)
    if OPT['padto']:
        L = a.newlabel('pad')
        a.label(L)
        a('s_sleep 4')
        a('s_memrealtime s[98:99]')
        a('s_waitcnt lgkmcnt(0)')
        a('s_sub_u32 s98, s98, s100')
        a('s_cmp_lt_u32 s98, %d', OPT['padto'])
        a('s_cbranch_scc1 %s', L)
    if DIAG:
        stamp(role, 'end')
        a('s_waitcnt vmcnt(0)')
        stamp(role, 'drained')
        a('s_memrealtime s[98:99]')
        a('s_waitcnt lgkmcnt(0)')
        a('v_writelane_b32 v%d, s98, 31', vTS)
        a('s_lshl_b32 s70, s2, 3')
        a('s_add_u32 s70, s70, s%d', sW)
        if role == 'S':
            a('s_add_u32 s70, s70, 4')
        a('s_lshl_b32 s70, s70, 8')
        a('s_add_u32 s70, s70, 0x%x', WS_DIAG)
        a('v_lshlrev_b32 v0, 2, v%d', vLANE)
        a('buffer_store_dword v%d, v0, s[%d:%d], s70 offen', vTS, RWS, RWS + 3)
    a('s_endpgm')

def prologue():
    a('s_cmp_ge_u32 s2, 256')
    a('s_cbranch_scc0 L_go')
    a('s_endpgm')
    a.label('L_go')
    if OPT['padto'] or DIAG or OPT['probe']:
        a('s_memrealtime s[100:101]')
    a('s_load_dwordx16 s[4:19], s[0:1], 0')
    a('s_load_dwordx8 s[20:27], s[0:1], 64')
    a('s_load_dwordx4 s[28:31], s[0:1], 96')
    a('s_load_dwordx2 s[32:33], s[0:1], 112')
    a('v_lshrrev_b32 v1, 6, v0')
    a('v_and_b32 v%d, 63, v0', vLANE)
    a('v_readfirstlane_b32 s%d, v1', sW)
    a('v_lshlrev_b32 v%d, 2, v0', vPW)
    a('v_add_u32 v%d, %d, v%d', vPW, L_PW, vPW)
    a('v_mov_b32 v1, 0')
    a('ds_write_b32 v%d, v1', vPW)
    a('s_and_b32 s%d, s2, 7', sXCD)
    a('s_lshr_b32 s%d, s2, 3', sI)
    a('s_and_b32 s70, s%d, 3', sI)
    a('s_lshr_b32 s%d, s%d, 2', sOG, sI)
    a('s_lshr_b32 s71, s%d, 1', sXCD)
    a('s_lshl2_add_u32 s%d, s71, s70', sRB)
    a('s_and_b32 s71, s%d, 1', sXCD)
    a('s_lshl3_add_u32 s%d, s71, s%d', sCG, sOG)
    a('s_lshr_b32 s71, s%d, 3', sI)
    a('s_lshl2_add_u32 s%d, s%d, s71', sHD, sXCD)
    a('s_and_b32 s%d, s%d, 7', sQB, sI)
    a('s_lshl2_add_u32 s%d, s%d, s70', sTB, sXCD)
    a('s_mov_b32 s%d, 0x%x', sSPIN, SPIN_MAX)
    a('s_mov_b32 s%d, 0', sHI)
    a('s_mov_b32 s%d, -1', sHI + 1)
    a('s_waitcnt lgkmcnt(0)')
    srd(RWS, sWS, WS_END if not DIAG else WS_DIAG + 0x100000)
    if DIAG:
        a('v_mov_b32 v%d, 0', vTS)
        a('v_writelane_b32 v%d, s100, 30', vTS)
    a('s_cmp_ge_u32 s%d, 4', sW)
    a('s_cbranch_scc1 L_roleS')

def stagger(k, t, add):
    a('s_and_b32 s%d, s%d, 3', k, sI)
    a('s_mul_i32 s%d, s%d, 5', k, k)
    a('s_lshr_b32 s%d, s%d, 1', k, k)
    a('s_mul_i32 s%d, s%d, 5', t, sOG)
    a('s_lshr_b32 s%d, s%d, 2', t, t)
    a('s_add_u32 s%d, s%d, s%d', k, k, t)
    a('s_add_u32 s%d, s%d, %d', t, sXCD, 1 + 2 * add)
    a('s_lshr_b32 s%d, s%d, 1', t, t)
    a('s_add_u32 s%d, s%d, s%d', k, k, t)
    for _ in range(2 if add else 1):
        a('s_cmp_ge_u32 s%d, 10', k)
        a('s_cselect_b32 s%d, 10, 0', t)
        a('s_sub_u32 s%d, s%d, s%d', k, k, t)

def b1_sources(rx, rb, vx, vb, sm, sb, t):
    srd(rx, sBX, 2048 * 1280)
    a('s_cmp_ge_u32 s%d, 2', sW)
    a('s_cselect_b32 s%d, s%d, s%d', t, sBIM, sBRE)
    a('s_cselect_b32 s%d, s%d, s%d', t + 1, sBIM + 1, sBRE + 1)
    srd(rb, t, 640 * 1280)
    a('v_lshrrev_b32 v1, 3, v%d', vLANE)
    a('v_and_b32 v2, 7, v%d', vLANE)
    a('v_lshrrev_b32 v3, 4, v%d', vLANE)
    a('v_xor_b32 v4, v2, v3')
    a('v_and_b32 v5, 3, v1')
    a('v_lshrrev_b32 v6, 2, v1')
    a('v_lshl_add_u32 v5, v6, 3, v5')
    a('v_mul_u32_u24 v5, 1280, v5')
    a('v_lshl_add_u32 v%d, v4, 4, v5', vx)
    a('v_xor_b32 v6, 64, v%d', vx)
    a('v_add_u32 v%d, %d, v6', vx + 1, 16 * 1280 - 1024)
    a('v_add_u32 v%d, %d, v%d', vx + 2, 4 * 1280 - 2048, vx)
    a('v_add_u32 v%d, %d, v6', vx + 3, 20 * 1280 - 3072)
    a('s_lshr_b32 s%d, s%d, 1', t, sW)
    a('s_lshl_b32 s%d, s%d, 6', t + 1, t)
    a('v_mul_u32_u24 v5, 1280, v1')
    a('v_lshl_add_u32 v5, v4, 4, v5')
    a('v_xor_b32 v%d, s%d, v5', vb, t + 1)
    for i in range(1, 3):
        a('v_add_u32 v%d, %d, v%d', vb + i, (10240 - 1024) * i, vb)
    a('s_and_b32 s%d, s%d, 1', t + 1, sW)
    a('s_mul_i32 s%d, s%d, 5120', sm, t)
    a('s_lshl_b32 s%d, s%d, 11', sb, t + 1)
    a('s_add_u32 s%d, s%d, s%d', sm, sm, sb)
    a('s_mul_i32 s%d, s%d, %d', sb, sCG, 40 * 1280)
    a('s_mul_i32 s%d, s%d, %d', t + 1, t + 1, 16 * 1280)
    a('s_add_u32 s%d, s%d, s%d', sb, sb, t + 1)

def dma(voff, r, soff, imm):
    return 'buffer_load_dwordx4 v%d, s[%d:%d], s%d offen offset:%d lds' % (voff, r, r + 3, soff, imm)

def a_b1stage(t):
    slot = (t % 4) * 32768
    a('s_add_u32 m0, s6, %d', slot)
    a('s_lshl_b32 s9, s8, 7')
    a('s_add_u32 s12, s4, s9')
    for i in range(4):
        a(dma(112 + i, R5, 12, 1024 * i))
    a('s_add_u32 m0, s7, %d', slot + 16384)
    a('s_add_u32 s12, s5, s9')
    for i in range(3):
        a(dma(116 + i, R6, 12, 1024 * i))
    a('s_add_u32 s8, s8, 1')
    a('s_cmp_eq_u32 s8, 10')
    a('s_cselect_b32 s8, 0, s8')

sTW, sCW = 72, 73
vXA, vWA = 96, 104
vF1A = 252
vAPW = 249

def a_setup():
    a.label('L_roleA')
    stamp('A', 'start')
    a('s_lshr_b32 s%d, s%d, 1', sTW, sW)
    a('s_and_b32 s%d, s%d, 1', sCW, sW)
    a('s_lshl1_add_u32 s75, s%d, s%d', sRB, sTW)
    a('s_mul_i32 s74, s75, %d', BLK)
    if OPT['codepre']:
        a.c('pull the code into L2: each wave of an XCD touches a few lines')
        a('s_getpc_b64 s[76:77]')
        a('s_lshl2_add_u32 s78, s%d, s%d', sI, sW)
        a('s_mul_i32 s78, s78, 3')
        a('v_min_u32 v1, 2, v%d', vLANE)
        a('v_add_u32 v1, s78, v1')
        a('v_min_u32 v1, (L_codeend - L_roleA) / 128 - 1, v1')
        a('v_lshlrev_b32 v1, 7, v1')
        a('global_load_dword v110, v1, s[76:77]')
    a.c('constant blocks + flag clearing (column group 15 has no GEMM tile)')
    a('s_cmp_eq_u32 s%d, 15', sCG)
    a('s_cbranch_scc0 L_noconst')
    a('s_cmp_eq_u32 s%d, 0', sW)
    a('s_cbranch_scc0 L_noconst')
    a('v_lshlrev_b32 v1, 4, v%d', vLANE)
    for i in range(4):
        a('v_mov_b32 v%d, 0', 4 + i)
    a('s_mul_i32 s76, s%d, 0x5000', sRB)
    a('s_add_u32 s76, s76, 0x%x', WS_F)
    for j in range(5):
        for i in range(4):
            a('buffer_store_dwordx4 v[4:7], v1, s[%d:%d], s76 offen offset:%d sc1', RWS, RWS + 3, 1024 * i)
        a('s_add_u32 s76, s76, 4096')
    for i in range(4):
        a('v_mov_b32 v%d, -1', 20 + i)
    a('s_lshl_b32 s76, s%d, 13', sRB)
    a('s_add_u32 s76, s76, 0x%x', WS_E)
    for j in range(2):
        for i in range(4):
            a('buffer_store_dwordx4 v[20:23], v1, s[%d:%d], s76 offen offset:%d sc1', RWS, RWS + 3, 1024 * i)
        a('s_add_u32 s76, s76, 4096')
    a('v_mov_b32 v8, 0x3f803f80')
    a('v_mov_b32 v9, 0')
    a('v_mov_b32 v10, v8')
    a('v_mov_b32 v11, 0')
    for i in range(4):
        a('v_mov_b32 v%d, v8', 12 + i)
    a('v_lshrrev_b32 v2, 3, v%d', vLANE)
    a('v_mul_u32_u24 v2, %d, v2', VROW)
    a('v_and_b32 v3, 7, v%d', vLANE)
    a('v_lshl_add_u32 v2, v3, 4, v2')
    for b in range(2):
        a('s_add_u32 s76, s74, %d', 160 * 1024 + b * BLK)
        a('buffer_store_dwordx4 v[8:11], v1, s[%d:%d], s76 offen sc1', RWS, RWS + 3)
        a('s_add_u32 s76, s74, %d', VOFF + 640 * 16 + b * BLK)
        a('buffer_store_dwordx4 v[12:15], v2, s[%d:%d], s76 offen sc1', RWS, RWS + 3)
    a('s_lshl_b32 s76, s%d, 2', sRB)
    a('v_mov_b32 v16, s76')
    a('v_mov_b32 v17, 1')
    a('s_waitcnt vmcnt(0)')
    a('s_mov_b64 exec, 1')
    a('global_store_dword v16, v17, s[%d:%d] sc1', sDBG, sDBG + 1)
    a('s_mov_b64 exec, -1')
    if OPT['mallpre']:
        a('v_lshlrev_b32 v1, 7, v%d', vLANE)
        srd(R3, sBRE, 640 * 1280)
        srd(R4, sBIM, 640 * 1280)
        srd(R5, sBX, 2048 * 1280)
        a('v_min_u32 v2, %d, v1', 39 * 128)
        a('s_mul_i32 s76, s%d, 51200', sRB)
        a('s_mul_i32 s77, s%d, 163840', sRB)
        for k in range(OPT['mallpre']):
            a('buffer_load_dword v111, v2, s[%d:%d], s76 offen', R3, R3 + 3)
            a('buffer_load_dword v111, v2, s[%d:%d], s76 offen', R4, R4 + 3)
            a('buffer_load_dword v111, v1, s[%d:%d], s77 offen', R5, R5 + 3)
            a('s_add_u32 s77, s77, 8192')
            a('s_add_u32 s76, s76, %d', 40 * 128)
            a('buffer_load_dword v111, v1, s[%d:%d], s77 offen', R5, R5 + 3)
            a('s_add_u32 s77, s77, 8192')
    a.label('L_noconst')
    a.c('LDS fragment addresses for the QKV GEMM')
    a('v_and_b32 v1, 31, v%d', vLANE)
    a('v_lshrrev_b32 v2, 5, v%d', vLANE)
    a('v_bfe_u32 v3, v1, 1, 3')
    a('v_xor_b32 v3, v3, v2')
    a('v_lshlrev_b32 v3, 4, v3')
    a('v_lshl_add_u32 v3, v1, 7, v3')
    a('s_lshl_b32 s76, s%d, 13', sTW)
    a('v_add_u32 v3, s76, v3')
    for ks in range(4):
        a('v_xor_b32 v%d, %d, v3', vXA + ks, ks << 5)
        a('v_add_u32 v%d, 0x10000, v%d', vXA + 4 + ks, vXA + ks)
    a('v_bfe_u32 v4, v%d, 2, 2', vLANE)
    a('v_lshl_add_u32 v5, v2, 3, v4')
    a('v_lshlrev_b32 v5, 8, v5')
    a('v_bfe_u32 v6, v%d, 4, 1', vLANE)
    a('v_and_b32 v7, 1, v%d', vLANE)
    a('v_lshl_add_u32 v6, v6, 1, v7')
    a('s_lshl_b32 s76, s%d, 3', sCW)
    a('v_add_u32 v6, s76, v6')
    a('v_lshlrev_b32 v4, 2, v4')
    a('v_xor_b32 v6, v6, v4')
    a('v_lshl_add_u32 v5, v6, 4, v5')
    a('v_bfe_u32 v7, v%d, 1, 1', vLANE)
    a('v_lshl_add_u32 v5, v7, 3, v5')
    a('v_add_u32 v%d, 16384, v5', vWA)
    a('v_xor_b32 v%d, 64, v%d', vWA + 1, vWA)
    a('v_add_u32 v%d, 0x10000, v%d', vWA + 2, vWA)
    a('v_add_u32 v%d, 0x10000, v%d', vWA + 3, vWA + 1)

def a_qloop(vt):
    F = [64, 80]
    def reads(st, ks, f):
        slot = st % 4
        hi, lo = slot >> 1, (slot & 1) * 32768
        r = []
        for T in range(2):
            r.append('ds_read_b128 %s, v%d offset:%d' % (v(f + 4 * T, 4), vXA + 4 * hi + ks, lo + 4096 * T))
        for Tc in range(2):
            for rd in range(2):
                r.append('ds_read_b64_tr_b16 %s, v%d offset:%d' % (v(f + 8 + 4 * Tc + 2 * rd, 2), vWA + 2 * hi + Tc,
                                                                  lo + (16 * ks + 4 * rd) * 256))
        return [r[0], r[2], r[3], r[1], r[4], r[5]]
    def mfma(f, i, j, first):
        acc = (2 * i + j) * 16
        A = f + 4 * i if vt else f + 8 + 4 * i
        B = f + 8 + 4 * j if vt else f + 4 * j
        return 'v_mfma_f32_32x32x16_bf16 %s, %s, %s, %s' % (v(acc, 16), v(A, 4), v(B, 4), '0' if first else v(acc, 16))
    a('s_barrier')
    for r in reads(0, 0, F[0]):
        a(r)
    for st in range(10):
        for ks in range(4):
            cur, nxt = F[ks & 1], F[(ks + 1) & 1]
            first = st == 0 and ks == 0
            a('s_waitcnt lgkmcnt(0)')
            if ks == 3:
                a('s_barrier')
                rr = reads(st + 1, 0, nxt) if st < 9 else []
            else:
                rr = reads(st, ks + 1, nxt)
            a(mfma(cur, 0, 0, first))
            for r in rr[:3]:
                a(r)
            a(mfma(cur, 0, 1, first))
            for r in rr[3:]:
                a(r)
            a(mfma(cur, 1, 0, first))
            a(mfma(cur, 1, 1, first))

def a_qphase():
    a('s_cmp_ge_u32 s%d, 10', sCG)
    a('s_cbranch_scc1 L_qV')
    a_qloop(False)
    stamp('A', 'qloop')
    a('v_and_b32 v98, 31, v%d', vLANE)
    a('v_lshrrev_b32 v97, 5, v%d', vLANE)
    a('v_lshlrev_b32 v98, 4, v98')
    a('v_lshl_add_u32 v96, v97, 10, v98')
    a('s_lshl1_add_u32 s76, s%d, s%d', sCG, sCW)
    a('s_lshl_b32 s77, s76, 13')
    a('s_add_u32 s77, s77, s74')
    a('s_add_u32 s78, s77, 4096')
    a('s_mul_i32 s79, s%d, 3', sCW)
    a('s_add_u32 s79, s79, s%d', sCG)
    for _ in range(2):
        a('s_cmp_ge_u32 s79, 5')
        a('s_cselect_b32 s80, 5, 0')
        a('s_sub_u32 s79, s79, s80')
    a('s_cmp_ge_u32 s%d, 5', sCG)
    a('s_cbranch_scc1 L_noscale')
    c0 = f2u(math.log2(math.e) / math.sqrt(20.0))
    a('s_mov_b32 s80, 0x%x', c0)
    a('s_mov_b32 s81, s80')
    for i in range(0, 64, 2):
        a('v_pk_mul_f32 %s, %s, s[80:81]', v(i, 2), v(i, 2))
    a.label('L_noscale')
    for Tc in range(2):
        for u in range(2):
            P = 64 + 8 * (2 * Tc + u)
            for T in range(2):
                acc = (2 * Tc + T) * 16 + 8 * u
                for q in range(4):
                    a('v_cvt_pk_bf16_f32 v%d, v%d, v%d', P + 4 * T + q, acc + 2 * q, acc + 2 * q + 1)
            a('s_cmp_eq_u32 s79, %d', (2 - 4 * Tc - 2 * u) % 5)
            a('s_cselect_b32 exec_lo, -1, 0')
            a('s_cmp_eq_u32 s79, %d', (1 - 4 * Tc - 2 * u) % 5)
            a('s_cselect_b32 exec_hi, -1, 0')
            a('v_swap_b32 v%d, v%d', P + 2, P + 4)
            a('v_swap_b32 v%d, v%d', P + 3, P + 5)
            a('s_mov_b64 exec, -1')
            for T in range(2):
                a('buffer_store_dwordx4 %s, v96, s[%d:%d], s%d offen offset:%d sc1', v(P + 4 * T, 4), RWS, RWS + 3,
                  77 + Tc, 2048 * u + 512 * T)
    a('s_branch L_qdone')
    a.label('L_qV')
    a('s_cmp_eq_u32 s%d, 15', sCG)
    a('s_cbranch_scc0 L_qV2')
    for _ in range(11):
        a('s_barrier')
    if DIAG:
        nstamp['A'].pop()
    stamp('A', 'qloop')
    a('s_branch L_qdone')
    a.label('L_qV2')
    a_qloop(True)
    if DIAG:
        nstamp['A'].pop()
    stamp('A', 'qloop')
    a('s_lshl1_add_u32 s76, s%d, s%d', sCG, sCW)
    a('s_nop 1')
    a('v_and_b32 v98, 31, v%d', vLANE)
    tau(96, 98, 97)
    a('v_lshrrev_b32 v97, 5, v%d', vLANE)
    a('v_mul_u32_u24 v97, %d, v97', VROW)
    a('v_lshl_add_u32 v96, v96, 4, v97')
    a('s_sub_u32 s77, s76, 20')
    a('s_lshl_b32 s77, s77, 10')
    a('s_add_u32 s77, s77, s74')
    a('s_add_u32 s77, s77, %d', VOFF)
    n = 0
    for T in range(2):
        for m in range(2):
            for Tc in range(2):
                P = 64 + 4 * n
                n += 1
                acc = (2 * T + Tc) * 16 + 8 * m
                for q in range(4):
                    a('v_cvt_pk_bf16_f32 v%d, v%d, v%d', P + q, acc + 2 * q, acc + 2 * q + 1)
                a('buffer_store_dwordx4 %s, v96, s[%d:%d], s77 offen offset:%d sc1', v(P, 4), RWS, RWS + 3, 512 * Tc)
            if (T, m) != (1, 1):
                a('s_add_u32 s77, s77, %d', 2 * VROW)
    a.label('L_qdone')

vO, vS = 0, 64
KV = [128, 156]
K1A, K1B, K2, VA0, VA1, VB0, VB1 = 0, 4, 8, 12, 16, 20, 24
vQ1, vQ2 = 184, 200
vK1, vK2, vV, vIDX, vNC, vM = 208, 209, 210, 214, 216, 220
vT = 224
vMG = 240
sQH, sKH, sODD, sP5, sOFF, sKV0, sPASS, sCNT = 76, 77, 78, 79, 80, 93, 82, 83
sKVB, sKVE = 70, 71

def a_att_setup():
    a('s_and_b32 s%d, s%d, 1', sQH, sW)
    a('s_lshr_b32 s%d, s%d, 1', sKH, sW)
    a('s_and_b32 s%d, s%d, 1', sODD, sHD)
    a('s_lshr_b32 s85, s%d, 1', sHD)
    a('s_mul_i32 s%d, s85, 5', sP5)
    a('s_mul_i32 s%d, s%d, %d', sKVB, sKH, 16 * BLK)
    a('s_add_u32 s%d, s%d, %d', sKVE, sKVB, 16 * BLK)
    a('s_mul_i32 s86, s%d, %d', sQB, 2 * BLK * OPT['rot'])
    a('s_add_u32 s%d, s%d, s86', sKV0, sKVB)
    srd(R3, sWS, 32 * BLK)
    srd(R4, sOUT, 2048 * 1280 * 4)
    a('s_mov_b32 s%d, 0', sPASS)
    i, h, t, x = vT, vT + 1, vT + 2, vT + 3
    a('v_and_b32 v%d, 31, v%d', i, vLANE)
    a('v_lshrrev_b32 v%d, 5, v%d', h, vLANE)
    tau(t, i, x)
    a('s_mul_i32 s86, s%d, 3', sODD)
    a('s_add_u32 s86, s86, s%d', sP5)
    a('s_lshl_b32 s87, s86, 10')
    a('v_lshl_add_u32 v%d, v%d, 10, s87', x, h)
    a('v_lshl_add_u32 v%d, v%d, 4, v%d', vT + 4, i, x)
    a('v_lshl_add_u32 v%d, v%d, 4, v%d', vK1, t, x)
    a('v_add_u32 v%d, %d, v%d', vK1, 80 * 1024, vK1)
    a('s_add_u32 s87, s%d, 2', sP5)
    a('s_lshl1_add_u32 s87, s87, s%d', sODD)
    a('s_lshl_b32 s87, s87, 9')
    a('v_lshl_add_u32 v%d, v%d, 4, s87', vT + 5, i)
    a('v_mov_b32 v%d, 0x%x', x, OOB)
    a('v_cndmask_b32 v%d, v%d, v%d, s[%d:%d]', vT + 5, vT + 5, x, sHI, sHI + 1)
    a('s_add_u32 s87, s87, %d', 80 * 1024)
    a('v_mov_b32 v%d, s87', vK2)
    a('v_mov_b32 v%d, %d', x, 160 * 1024)
    a('v_cndmask_b32 v%d, v%d, v%d, s[%d:%d]', vK2, vK2, x, sHI, sHI + 1)
    a('v_lshl_add_u32 v%d, v%d, 4, v%d', vK2, t, vK2)
    a('s_mul_i32 s86, s%d, 20', sHD)
    a('s_lshl2_add_u32 s87, s%d, s86', sODD)
    a('s_lshl_b32 s88, s%d, 4', sODD)
    a('s_sub_u32 s88, s86, s88')
    a('v_add_u32 v%d, s87, v%d', vV, t)
    a('v_add_u32 v%d, s88, v%d', x, i)
    a('v_cmp_le_u32 vcc, 16, v%d', i)
    a('v_add_u32 v%d, 620, v%d', vT + 6, i)
    a('s_nop 0')
    a('v_cndmask_b32 v%d, v%d, v%d, vcc', vV, vV, x)
    a('v_cmp_le_u32 vcc, 20, v%d', i)
    a('v_mul_u32_u24 v%d, %d, v%d', x, VROW, h)
    a('v_add_u32 v%d, %d, v%d', x, VOFF, x)
    a('v_cndmask_b32 v%d, v%d, v%d, vcc', vV, vV, vT + 6)
    a('v_lshl_add_u32 v%d, v%d, 4, v%d', vV, vV, x)
    a('v_cmp_le_u32 vcc, 24, v%d', i)
    a('v_mov_b32 v%d, 0x%x', x, OOB)
    a('v_mov_b32 v%d, 0xdddd', vIDX)
    a('v_cndmask_b32 v%d, v%d, v%d, vcc', vV, vV, x)
    for k in range(1, 4):
        a('v_add_u32 v%d, %d, v%d', vV + k, 2 * VROW * k, vV)
    a('s_mul_i32 s87, s85, 40')
    a('s_lshl4_add_u32 s87, s%d, s87', sODD)
    a('s_add_u32 s88, s87, 23')
    a('s_lshr_b32 s87, s87, 7')
    a('s_lshr_b32 s88, s88, 7')
    a('s_add_u32 s89, s86, 19')
    a('s_lshr_b32 s86, s86, 7')
    a('s_lshr_b32 s89, s89, 7')
    a('v_lshrrev_b32 v%d, 4, v%d', x, vLANE)
    a('s_add_u32 s90, s87, 5')
    a('v_mov_b32 v%d, s90', vF1A)
    for sel, (reg, add) in enumerate(((88, 5), (86, 10), (89, 10))):
        a('s_add_u32 s90, s%d, %d', reg, add)
        a('v_cmp_eq_u32 vcc, %d, v%d', sel + 1, x)
        a('v_mov_b32 v%d, s90', vT + 6)
        a('s_nop 0')
        a('v_cndmask_b32 v%d, v%d, v%d, vcc', vF1A, vF1A, vT + 6)
    a('v_and_b32 v%d, 15, v%d', vT + 6, vLANE)
    a('v_lshl_add_u32 v%d, v%d, 4, v%d', vF1A, vF1A, vT + 6)
    a('v_lshlrev_b32 v%d, 7, v%d', vF1A, vF1A)
    a('v_mov_b32 v%d, s87', vF1A - 1)
    a('v_mov_b32 v%d, s88', vT + 6)
    a('v_cndmask_b32 v%d, v%d, v%d, s[%d:%d]', vF1A - 1, vF1A - 1, vT + 6, sHI, sHI + 1)
    a('v_bfe_u32 v%d, v%d, 4, 1', vT + 6, vLANE)
    a('v_lshl_add_u32 v%d, v%d, 4, v%d', vF1A - 1, vF1A - 1, vT + 6)
    a('s_lshl_b32 s90, s%d, 1', sQB)
    a('v_add_lshl_u32 v%d, v%d, s90, 7', vF1A - 1, vF1A - 1)
    a('v_and_b32 v%d, 3, v%d', vAPW, vLANE)
    a('v_lshlrev_b32 v%d, 8, v%d', vAPW, vAPW)
    a('v_lshlrev_b32 v%d, 2, v%d', vAPW + 1, vLANE)
    a('v_add_u32 v%d, %d, v%d', vAPW + 1, L_PW, vAPW + 1)
    a('v_add_u32 v%d, v%d, v%d', vAPW, vAPW, vAPW + 1)
    a('s_lshl1_add_u32 s90, s%d, s%d', sQB, sQH)
    a('s_lshl1_add_u32 s90, s90, s%d', sKH)
    a('s_mul_i32 s91, s90, %d', BLK)
    a('s_xor_b32 s92, s90, 1')
    a('s_mul_i32 s92, s92, %d', BLK)
    a('s_mul_i32 s36, s%d, %d', sW, REGSZ)
    a('s_add_u32 s36, s36, %d', L_REG + 8192)
    a('s_xor_b32 s37, s%d, 2', sW)
    a('s_mul_i32 s37, s37, %d', REGSZ)
    a('s_add_u32 s37, s37, %d', L_REG + 8192)
    a('v_lshl_add_u32 v%d, v%d, 4, s36', vMG, vLANE)
    a('v_lshl_add_u32 v%d, v%d, 3, s36', vMG + 1, vLANE)
    a('v_lshl_add_u32 v%d, v%d, 4, s37', vMG + 2, vLANE)
    a('v_lshl_add_u32 v%d, v%d, 3, s37', vMG + 3, vLANE)
    a('v_xor_b32 v%d, 512, v%d', vMG + 4, vPW)
    a('v_add_u32 v%d, 1024, v%d', vMG + 5, vAPW)
    a('v_bfe_u32 v%d, v%d, 4, 1', x, vLANE)
    a('v_mul_u32_u24 v%d, %d, v%d', x, OBLK, x)
    a('v_and_b32 v%d, 15, v%d', t, vLANE)
    a('v_lshl_add_u32 v%d, v%d, 4, v%d', x, t, x)
    a('v_mul_u32_u24 v%d, %d, v%d', t, 2 * OBLK, h)
    a('v_add_u32 v%d, v%d, v%d', vMG + 7, t, x)
    a('v_lshl_add_u32 v%d, v%d, 8, v%d', vMG + 6, h, x)
    a('s_mul_i32 s40, s90, %d', 4 * OBLK)
    a('s_add_u32 s40, s40, 0x%x', WS_O)
    a('s_lshl_b32 s41, s%d, 8', sP5)
    a('s_add_u32 s40, s40, s41')
    a('s_mul_i32 s41, s%d, 768', sODD)
    a('s_add_u32 s41, s41, s40')
    a('s_add_u32 s42, s41, %d', 2 * OBLK)
    a('s_lshl3_add_u32 s40, s%d, s40', sODD)
    a('s_lshl_b32 s43, s90, 5')
    a('s_add_u32 s43, s43, s%d', sHD)
    flagaddr(43, 43, F4, 0)
    b1_sources(R5, R6, 112, 116, 7, 5, 12)
    a('s_lshl2_add_u32 s4, s%d, s%d', sRB, sW)
    a('s_mul_i32 s4, s4, %d', 32 * 1280)
    a('s_lshl_b32 s6, s%d, 12', sW)
    stagger(8, 9, OPT['st10'])

def a_handoff():
    first = 10 + OPT['st10']
    nst = 8
    for t in range(10, first):
        a('s_barrier')
        if t == 10:
            for i_ in range(64):
                a('v_mov_b32 v%d, 0', vO + i_)
    a_b1stage(first)
    a_b1stage(first + 1)
    lds_ = ['buffer_load_dword v%d, v%d, s[%d:%d], s85 offen sc1' % (104 + k, vF1A - k, RWS, RWS + 3) for k in range(2)]
    a('s_mov_b32 s85, 0x%x', F1)
    for t in range(first, 20):
        a('s_waitcnt vmcnt(%d)', 7 if t < 19 else 0)
        if t == first:
            stamp('A', 'qdrain')
        if t == 19:
            a('s_cmp_eq_u32 s%d, 0', sW)
            a('s_cbranch_scc0 L_c19')
            a('v_and_b32 v104, v104, v105')
            a('v_cmp_eq_u32 vcc, 0, v104')
            a('s_cbranch_vccnz L_c19')
            setpw(4, 102)
            a('s_waitcnt lgkmcnt(0)')
            a.label('L_c19')
        a('s_barrier')
        if t + 2 <= 19:
            a_b1stage(t + 2)
        if t == OPT['pollat']:
            a('s_cmp_eq_u32 s%d, 0', sW)
            a('s_cbranch_scc0 L_nopoll')
            for l in lds_:
                a(l)
            a.label('L_nopoll')
    stamp('A', 'b1load')
    a('s_cmp_eq_u32 s%d, 0', sW)
    a('s_cbranch_scc0 L_f1wait')
    a('s_cbranch_vccz L_f1go')
    a('s_mov_b64 exec, vcc')
    pollflags(lds_, 104, sleep=OPT['psleep'])
    setpw(4, 102)
    a.label('L_f1wait')
    waitpw(vAPW + 1, 4, 102, sleep=1)
    a.label('L_f1go')
    stamp('A', 'f1')

def kvload(st, what, soff):
    if what in (K1A, K1B):
        r = KV[st] + what
        return 'buffer_load_dwordx4 %s, v%d, s[%d:%d], s%d offen offset:%d sc1' % (v(r, 4), vK1, R3, R3 + 3, soff, 512 if what == K1B else 0)
    if what in ('2A', '2B'):
        tl = what == '2B'
        return 'buffer_load_dwordx2 %s, v%d, s[%d:%d], s%d offen offset:%d sc1' % (v(KV[st] + K2 + 2 * tl, 2), vK2, R3, R3 + 3, soff, 8 * tl)
    r = KV[st] + what
    if what == K2:
        return 'buffer_load_dwordx4 %s, v%d, s[%d:%d], s%d offen sc1' % (v(r, 4), vK2, R3, R3 + 3, soff)
    return 'buffer_load_dwordx4 %s, v%d, s[%d:%d], s%d offen sc1' % (v(r, 4), vV + (what - VA0) // 4, R3, R3 + 3, soff)

def qk1(st, tile, qt, sb):
    return 'v_mfma_f32_32x32x16_bf16 %s, %s, %s, 0' % (v(vS + 16 * sb, 16), v(KV[st] + (K1B if tile else K1A), 4), v(vQ1 + 4 * qt, 4))

def qk2(st, tile, qt, sb):
    return 'v_mfma_f32_32x32x8bf16_1k %s, %s, %s, %s' % (v(vS + 16 * sb, 16), v(KV[st] + K2 + 2 * tile, 2), v(vQ2 + 2 * qt, 2), v(vS + 16 * sb, 16))

def pv(st, tile, qt, m):
    return 'v_smfmac_f32_32x32x32_bf16 %s, %s, %s, v%d' % (v(vO + 16 * qt, 16), v(KV[st] + VA0 + 8 * tile + 4 * m, 4), v(vS + 16 * qt + 8 * m, 8), vIDX)

def maxtree(dst, src, acc):
    if acc:
        a('v_max3_f32 v%d, v%d, v%d, v%d', dst, dst, src, src + 1)
    else:
        a('v_max_f32 v%d, v%d, v%d', dst, src, src + 1)
    for k in range(2, 16, 2):
        a('v_max3_f32 v%d, v%d, v%d, v%d', dst, dst, src + k, src + k + 1)

def a_attention():
    for lp in range(2):
        for T in range(2):
            a('buffer_load_dwordx4 %s, v%d, s[%d:%d], s%d offen offset:%d sc1', v(vQ1 + 8 * lp + 4 * T, 4), vT + 4, RWS, RWS + 3, 91 + lp, 512 * T)
    for lp in range(2):
        a('buffer_load_dwordx4 %s, v%d, s[%d:%d], s%d offen sc1', v(vQ2 + 4 * lp, 4), vT + 5, RWS, RWS + 3, 91 + lp)
    a.label('L_attload')
    a('s_mov_b32 s%d, 0x40000000', sCNT)
    a('s_add_u32 s%d, s%d, %d', sOFF, sKV0, BLK)
    for w_ in (K1A, K2):
        a(kvload(0, w_, sKV0))
    for i in range(4):
        a('v_mov_b32 v%d, 0', KV[1] + VB1 + i)
    if OPT['kvsplit']:
        a('s_waitcnt vmcnt(%d)', OPT['kvsplit'] - 1)
    for w_ in (VA0, VA1, K1B, VB0, VB1):
        a(kvload(0, w_, sKV0))
    for w_ in ((K1A, '2A', VA0, VA1, K1B, '2B') if OPT['k2split'] else (K1A, VA0, VA1, K1B, K2)):
        a(kvload(1, w_, sOFF))
    a('s_waitcnt vmcnt(%d)', 10 + OPT['k2split'])
    stamp('A', 'qkload')
    a('s_cmp_eq_u32 s%d, 0', sPASS)
    a('s_cbranch_scc0 L_setc')
    a.c('stand-in for the row maximum: the maximum over the first key tile (checked after the loop)')
    for qt in range(4):
        a(qk1(0, 0, qt, qt))
        a(qk2(0, 0, qt, qt))
    a('s_nop 5')
    for qt in range(4):
        maxtree(vM + qt, vS + 16 * qt, False)
    a.label('L_setc')
    for qt in range(4):
        a('v_mov_b32 v%d, v%d', vT + 8 + qt, vM + qt)
    for qt in range(4):
        a('v_permlane32_swap_b32 v%d, v%d', vM + qt, vT + 8 + qt)
    for qt in range(4):
        a('v_min_f32 v%d, -v%d, -v%d', vM + qt, vM + qt, vT + 8 + qt)
    for qt in range(4):
        a('v_cvt_pk_bf16_f32 v%d, v%d, v%d', vT + 8 + qt, vM + qt, vM + qt)
    for qt in range(4):
        a('v_and_b32 v%d, 0xffff0000, v%d', vT + 8 + qt, vT + 8 + qt)
    for qt in range(4):
        a('v_sub_f32 v%d, v%d, v%d', vM + qt, vM + qt, vT + 8 + qt)
    for qt in range(4):
        a('v_cvt_pk_bf16_f32 v%d, v%d, v%d', vM + qt, vT + 8 + qt, vM + qt)
    for qt in range(4):
        a('v_cndmask_b32 v%d, v%d, v%d, s[%d:%d]', vQ2 + 2 * qt, vQ2 + 2 * qt, vM + qt, sHI, sHI + 1)
    a(qk1(0, 0, 0, 0))
    a(qk2(0, 0, 0, 0))
    for qt in range(4):
        a('v_and_b32 v%d, 0xffff0000, v%d', vM + qt, vM + qt)
    for qt in range(4):
        a('v_add_f32 v%d, v%d, v%d', vNC + qt, vM + qt, vT + 8 + qt)
    for i in range(8):
        a('v_mov_b32 v%d, 0', vS + 48 + 8 + i)
    a('s_waitcnt vmcnt(%d)', 9 if OPT['k2split'] else 7)
    stamp('A', 'attpro')
    if OPT['fine'] == 3:
        base = len(nstamp['A'])
        nstamp['A'] += ['it%d' % i for i in range(16)]
        a('s_mov_b32 s20, %d', base)
    a('.p2align 6')
    a.label('L_attloop')
    for st in range(2):
        for n in range(8):
            tile, qt = n >> 2, n & 3
            nst, ntile, nqt = (st, (n + 1) >> 2, (n + 1) & 3) if n < 7 else (st ^ 1, 0, 0)
            pst, ptile, pqt = (st, (n - 1) >> 2, (n - 1) & 3) if n > 0 else (st ^ 1, 1, 3)
            def ex(k):
                for e in range(4 * k, 4 * k + 4):
                    a('v_exp_f32 v%d, v%d', vS + 16 * qt + e, vS + 16 * qt + e)
            KS = OPT['k2split']
            if n == 7:
                a('s_waitcnt vmcnt(%d)', 8 if KS else 5)
            if n == 3 and KS:
                a('s_waitcnt vmcnt(8)')
            a(qk1(nst, ntile, nqt, nqt))
            if n == 0:
                a(kvload(st ^ 1, VB0, sOFF))
            if n == 1:
                a(kvload(st ^ 1, VB1, sOFF))
            if n == 2:
                a('s_add_u32 s%d, s%d, %d', sOFF, sOFF, BLK)
            if n == 3:
                a(kvload(st, K1A, sOFF))
            if n == 4:
                a(kvload(st, VA0, sOFF))
            if n == 5:
                a(kvload(st, VA1, sOFF))
            if n == 5 and OPT['fine'] == 3:
                a('s_memtime s[98:99]')
                a('s_memrealtime s[100:101]')
            if n == 6 and OPT['fine'] == 3:
                a('s_waitcnt lgkmcnt(0)')
                a('s_mov_b32 m0, s20')
                a('s_add_u32 s21, s20, 32')
                a('v_writelane_b32 v%d, s98, m0', vTS)
                a('s_mov_b32 m0, s21')
                a('s_add_u32 s20, s20, 1')
                a('v_writelane_b32 v%d, s100, m0', vTS)
            if n == 7:
                a(kvload(st, K1B, sOFF))
            ex(0)
            a(qk2(nst, ntile, nqt, nqt))
            if n == 7:
                a(kvload(st, '2B' if KS else K2, sOFF))
            if n == 3 and KS:
                a(kvload(st, '2A', sOFF))
            if n == 2 and st == 0:
                a('s_cmp_eq_u32 s%d, s%d', sOFF, sKVE)
            ex(1)
            a(pv(pst, ptile, pqt, 1))
            if n == 2 and st == 0:
                a('s_cselect_b32 s%d, s%d, s%d', sOFF, sKVB, sOFF)
            ex(2)
            if n == 4 and not KS:
                a('s_waitcnt vmcnt(9)')
            a(pv(st, tile, qt, 0))
            if n == 2 and st == 0:
                a('s_cmp_eq_u32 s%d, s%d', sOFF, sKV0)
                a('s_cselect_b32 s%d, s%d, s%d', sOFF, sCNT, sOFF)
            if st == 1 and n == 7:
                a('s_cmp_lt_u32 s%d, s%d', sOFF, sCNT)
            ex(3)
    a('s_cbranch_scc1 L_attloop')
    a('s_nop 0')
    a(pv(1, 1, 3, 1))
    stamp('A', 'attloop')
    a('ds_read_b32 v%d, v%d', vT + 12, vMG + 5)
    a('s_mov_b32 s36, 0x%x', f2u(2.0 ** -30))
    a('s_mov_b32 s37, 0x%x', f2u(2.0 ** 50))
    a('s_cmp_eq_u32 s%d, 0', sPASS)
    a('s_cbranch_scc0 L_attok')
    a('v_min3_f32 v%d, v%d, v%d, v%d', vT + 8, vO + 8, vO + 24, vO + 40)
    a('v_add_f32 v%d, v%d, v%d', vT + 9, vO + 8, vO + 24)
    a('v_add_f32 v%d, v%d, v%d', vT + 9, vT + 9, vO + 40)
    a('s_nop 3')
    a('v_min_f32 v%d, v%d, v%d', vT + 8, vT + 8, vO + 56)
    a('v_add_f32 v%d, v%d, v%d', vT + 9, vT + 9, vO + 56)
    a('v_cmp_nle_f32 s[38:39], s36, v%d', vT + 8)
    a('v_cmp_nge_f32 vcc, s37, v%d', vT + 9)
    a('s_or_b32 s39, s39, vcc_hi')
    if OPT['force_fb']:
        a('s_cmp_eq_u32 s%d, 0', sPASS)
    a('s_cbranch_scc0 L_attok')
    a.c('fallback: exact row maximum over this wave\'s keys, then redo the pass')
    a('s_mov_b32 s%d, 1', sPASS)
    a('s_waitcnt vmcnt(0) lgkmcnt(0)')
    a('v_mov_b32 v%d, 0', vT + 8)
    for qt in range(4):
        a('v_cndmask_b32 v%d, v%d, v%d, s[%d:%d]', vQ2 + 2 * qt, vQ2 + 2 * qt, vT + 8, sHI, sHI + 1)
        a('v_mov_b32 v%d, 0xff800000', vM + qt)
    a('s_mov_b32 s%d, s%d', sOFF, sKVB)
    a('s_mov_b32 s%d, 16', sCNT)
    a.label('L_maxloop')
    for w_ in (K1A, K1B, K2):
        a(kvload(0, w_, sOFF))
    a('s_waitcnt vmcnt(0)')
    for tile in range(2):
        for qt in range(4):
            a(qk1(0, tile, qt, qt))
            a(qk2(0, tile, qt, qt))
        a('s_nop 5')
        for qt in range(4):
            maxtree(vM + qt, vS + 16 * qt, True)
    a('s_add_u32 s%d, s%d, %d', sOFF, sOFF, BLK)
    a('s_sub_u32 s%d, s%d, 1', sCNT, sCNT)
    a('s_cmp_lg_u32 s%d, 0', sCNT)
    a('s_cbranch_scc1 L_maxloop')
    for i in range(64):
        a('v_mov_b32 v%d, 0', vO + i)
    a('s_branch L_attload')
    a.label('L_attok')
    a('s_waitcnt lgkmcnt(0)')
    a('v_cmp_gt_u32 vcc, 14, v%d', vT + 12)
    a('s_cbranch_vccz L_sready')
    waitpw(vMG + 5, 14, vT + 8)
    a.label('L_sready')
    a('ds_write_b64 v%d, %s offset:6144', vMG + 1, v(vNC + 2, 2))
    for t in range(2):
        for q in range(3):
            a('ds_write_b128 v%d, %s offset:%d', vMG, v(vO + 32 + 16 * t + 4 * q, 4), 1024 * (3 * t + q))
    setpw(6, vT + 8)
    waitpw(vMG + 4, 6, vT + 8)
    R = vS
    NC2 = vS + 32
    a('ds_read_b64 %s, v%d offset:6144', v(NC2, 2), vMG + 3)
    for t in range(2):
        a('ds_read_b128 %s, v%d offset:%d', v(R + 16 * t + 8, 4), vMG + 2, 1024 * (3 * t + 2))
    for t in range(2):
        for q in range(2):
            a('ds_read_b128 %s, v%d offset:%d', v(R + 16 * t + 4 * q, 4), vMG + 2, 1024 * (3 * t + q))
    setpw(7, vT + 9)
    f1, f2, l1, l2 = vS + 34, vS + 36, vS + 38, vS + 40
    a('s_waitcnt lgkmcnt(7)')
    for t in range(2):
        a('v_min_f32 v%d, v%d, v%d', l1 + t, vNC + t, NC2 + t)
    for t in range(2):
        a('v_sub_f32 v%d, v%d, v%d', f1 + t, l1 + t, vNC + t)
        a('v_sub_f32 v%d, v%d, v%d', f2 + t, l1 + t, NC2 + t)
    for t in range(2):
        a('v_exp_f32 v%d, v%d', f1 + t, f1 + t)
        a('v_exp_f32 v%d, v%d', f2 + t, f2 + t)
    a('s_waitcnt lgkmcnt(5)')
    for t in range(2):
        a('v_mul_f32 v%d, v%d, v%d', l1 + t, f1 + t, vO + 16 * t + 8)
    for t in range(2):
        a('v_fmac_f32 v%d, v%d, v%d', l1 + t, f2 + t, R + 16 * t + 8)
    for t in range(2):
        a('v_mov_b32 v%d, v%d', l2 + t, l1 + t)
    a('s_nop 0')
    for t in range(2):
        a('v_permlane32_swap_b32 v%d, v%d', l1 + t, l2 + t)
    for t in range(2):
        a('v_rcp_f32 v%d, v%d', l2 + t, l2 + t)
    a('s_waitcnt lgkmcnt(0)')
    for t in range(2):
        a('v_mul_f32 v%d, v%d, v%d', f1 + t, f1 + t, l2 + t)
        a('v_mul_f32 v%d, v%d, v%d', f2 + t, f2 + t, l2 + t)
    P = vO + 32
    for t in range(2):
        for r in range(12):
            a('v_mul_f32 v%d, v%d, v%d', vO + 16 * t + r, f1 + t, vO + 16 * t + r)
        for r in range(12):
            a('v_fmac_f32 v%d, v%d, v%d', vO + 16 * t + r, f2 + t, R + 16 * t + r)
        for q in range(6):
            a('v_cvt_pk_bf16_f32 v%d, v%d, v%d', P + 8 * t + q, vO + 16 * t + 2 * q, vO + 16 * t + 2 * q + 1)
        a('buffer_store_dwordx4 %s, v%d, s[%d:%d], s%d offen sc1', v(P + 8 * t, 4), vMG + 6, RWS, RWS + 3, 41 + t)
    a('s_nop 0')
    a('v_permlane32_swap_b32 v%d, v%d', P + 4, P + 12)
    a('v_permlane32_swap_b32 v%d, v%d', P + 5, P + 13)
    a('buffer_store_dwordx2 %s, v%d, s[%d:%d], s40 offen offset:512 sc1', v(P + 4, 2), vMG + 7, RWS, RWS + 3)
    stamp('A', 'merge')

def a_outproj():
    vA0, vA1, vOA, vST = 240, 241, 242, 244
    a('v_lshrrev_b32 v1, 5, v%d', vLANE)
    a('v_bfe_u32 v2, v%d, 2, 3', vLANE)
    a('v_lshl_add_u32 v1, v1, 4, v2')
    a('v_mul_u32_u24 v1, 160, v1')
    a('v_and_b32 v2, 3, v%d', vLANE)
    a('v_lshl_add_u32 v%d, v2, 3, v1', vA0)
    a('v_add_u32 v%d, %d, v%d', vA1, 10 * 5120, vA0)
    a('v_lshlrev_b32 v%d, 4, v%d', vOA, vLANE)
    a('v_lshrrev_b32 v1, 4, v%d', vLANE)
    a('v_mul_u32_u24 v1, %d, v1', 4 * 5120)
    a('v_and_b32 v2, 15, v%d', vLANE)
    a('v_lshl_add_u32 v%d, v2, 2, v1', vST)
    for r in range(1, 4):
        a('v_add_u32 v%d, %d, v%d', vST + r, 5120 * r, vST)
    a('s_mul_i32 s84, s%d, 2560', sOG)
    a('v_min_u32 v248, 19, v%d', vLANE)
    a('v_lshl_add_u32 v248, v248, 7, s84')
    a('s_lshl2_add_u32 s84, s%d, s%d', sTB, sW)
    a('s_mul_i32 s85, s84, %d', OBLK)
    a('s_add_u32 s85, s85, 0x%x', WS_O)
    a('s_mul_i32 s86, s84, %d', 16 * 5120)
    a('s_mul_i32 s88, s%d, 320', sOG)
    a('s_add_u32 s86, s86, s88')
    a('v_lshlrev_b32 v%d, 7, v%d', vOA + 1, vLANE)
    a('s_lshl_b32 s88, s%d, 12', sTB)
    a('s_add_u32 s88, s88, 0x%x', F4)
    a('s_waitcnt vmcnt(0)')
    stamp('A', 'odrain')
    setflag(43, 1)
    acc, NB = 80, 7
    def reads(ks):
        f = 100 + 20 * (ks % NB)
        base, off = (vA0, ks * 5120) if ks < 10 else (vA1, (ks - 10) * 5120)
        return ['ds_read_b64_tr_b16 %s, v%d offset:%d' % (v(f + 4 * j + 2 * rd, 2), base, off + 1280 * rd + 32 * j)
                for j in range(5) for rd in range(2)]
    for ks in range(NB):
        for r in reads(ks):
            a(r)
    a('s_cmp_eq_u32 s%d, 0', sW)
    a('s_cbranch_scc0 L_f4wait')
    if OPT['gate4'] >= 0:
        a('v_add_u32 v2, 1024, v%d', vAPW + 1)
        waitpw(2, 16, 1, sleep=2)
    a('s_mov_b32 exec_hi, 0')
    pollflags(['buffer_load_dword v1, v%d, s[%d:%d], s88 offen sc1' % (vOA + 1, RWS, RWS + 3)], 1, sleep=OPT['psleep4'])
    setpw(8, 1)
    a.label('L_f4wait')
    waitpw(vAPW + 1, 8, 1, sleep=1)
    stamp('A', 'f4')
    a('buffer_load_dword v251, v248, s[%d:%d], s85 offen sc1', RWS, RWS + 3)
    for ks in range(20):
        a('buffer_load_dwordx4 %s, v%d, s[%d:%d], s85 offen offset:%d sc1', v(4 * ks, 4), vOA, RWS, RWS + 3, 1024 * (ks & 3))
        if ks & 3 == 3 and ks < 19:
            a('s_add_u32 s85, s85, 4096')
    pend = []
    for ks in range(20):
        young = sum(10 for k in range(ks + 1, min(ks + NB, 20)) if k >= NB) - len(pend)
        if ks >= NB:
            a('s_waitcnt vmcnt(%d) lgkmcnt(%d)', 19 - ks, max(0, min(15, young)))
        else:
            a('s_waitcnt vmcnt(%d)', 19 - ks)
        if OPT['fine'] in (1, 2) and ks in (0, 10, 19):
            stamp('A', 'p3k%d' % ks)
        rr = reads(ks + NB) if ks + NB < 20 else []
        for j in range(5):
            a('v_mfma_f32_16x16x32_bf16 %s, %s, %s, %s', v(acc + 4 * j, 4), v(4 * ks, 4), v(100 + 20 * (ks % NB) + 4 * j, 4),
              '0' if ks == 0 else v(acc + 4 * j, 4))
            for r in pend:
                a(r)
            pend = rr[2 * j:2 * j + 2]
    a('s_nop 3')
    for j in range(5):
        for r in range(4):
            a('buffer_store_dword v%d, v%d, s[%d:%d], s86 offen offset:%d%s', acc + 4 * j + r, vST + r, R4, R4 + 3, 64 * j, OSC)
    finish('A')

vXR, vBR, vA0PW = 96, 100, 107
vL, vE, vHW, vHR0, vHR1, vHS, vCH, vCHL, vHH, vP01, vTCH, vHINT = 146, 150, 151, 152, 153, 154, 155, 156, 157, 158, 159, 160
vDX, vDW, vDBX, vDBB = 161, 165, 169, 173
vZ, vWOA, vPAR = 176, 186, 200
vCA, vCR, vHA, vF3, vXO, vDO, vC16, vAM, vOA, vRA = 224, 226, 228, 229, 230, 231, 232, 233, 234, 235
vR1W, vR1R, vR2W, vPW1, vPW2, vS2PW, vHT, vCT = 237, 238, 239, 240, 241, 242, 243, 244
vSPW = 252
L_Z, L_H = L_HT + 1024, 124928
SENT = 0xffffffff

def s_stage(t, emit=None):
    out = []
    slot = (t % 4) * 32768
    out.append('s_add_u32 m0, s74, %d' % slot)
    out.append('s_lshl_b32 s83, s82, 7')
    out.append('s_add_u32 s76, s72, s83')
    if t < 10:
        out += [dma(vDX + i, R0, 76, 1024 * i) for i in range(4)]
        out.append('s_add_u32 m0, s74, %d' % (slot + 16384))
        out.append('s_mul_i32 s83, s82, 245760')
        out.append('s_add_u32 s76, s73, s83')
        out += [dma(vDW + i, R1, 76, 1024 * i) for i in range(4)]
    else:
        out += [dma(vDBX + i, R3, 76, 1024 * i) for i in range(4)]
        out.append('s_add_u32 m0, s75, %d' % (slot + 16384))
        out.append('s_add_u32 s76, s77, s83')
        out += [dma(vDBB + i, R4, 76, 1024 * i) for i in range(3)]
    out.append('s_add_u32 s82, s82, 1')
    out.append('s_cmp_eq_u32 s82, 10')
    out.append('s_cselect_b32 s82, 0, s82')
    if emit is None:
        for o in out:
            a(o)
    return out

def ninstr(t):
    return 0 if t > 19 else (8 if t < 10 else 7)

def exp_acc(dst, x, t1, t2):
    L2E = math.log2(math.e)
    hi = struct.unpack('<f', struct.pack('<f', L2E))[0]
    a('s_mov_b32 s80, 0x%x', f2u(hi))
    a('v_mul_f32 v%d, s80, v%d', t1, x)
    a('v_fma_f32 v%d, v%d, s80, -v%d', t2, x, t1)
    a('v_fmac_f32 v%d, 0x%x, v%d', t2, f2u(L2E - hi), x)
    a('v_exp_f32 v%d, v%d', dst, t1)
    a('v_mul_f32 v%d, 0x%x, v%d', t2, f2u(math.log(2.0)), t2)
    a('v_fmac_f32 v%d, v%d, v%d', dst, dst, t2)

def s_setup():
    a.label('L_roleS')
    a('s_sub_u32 s%d, s%d, 4', sW, sW)
    stamp('S', 'start')
    a('s_cmp_eq_u32 s%d, 15', sCG)
    a('s_cselect_b32 s70, 0, 0x%x', 2048 * 1280)
    a('s_cselect_b32 s71, 0, 0x%x', 640 * 3840)
    srd(R0, sAX, 's70')
    srd(R1, sWQ, 's71')
    a('v_lshrrev_b32 v1, 3, v%d', vLANE)
    a('v_and_b32 v2, 7, v%d', vLANE)
    a('v_lshrrev_b32 v3, 4, v%d', vLANE)
    a('v_xor_b32 v4, v2, v3')
    a('v_mul_u32_u24 v5, 1280, v1')
    a('v_lshl_add_u32 v%d, v4, 4, v5', vDX)
    a('v_xor_b32 v6, 64, v%d', vDX)
    a('v_add_u32 v%d, %d, v6', vDX + 1, 10240 - 1024)
    a('v_add_u32 v%d, %d, v%d', vDX + 2, 2 * (10240 - 1024), vDX)
    a('v_add_u32 v%d, %d, v6', vDX + 3, 3 * (10240 - 1024))
    a('v_and_b32 v7, 15, v%d', vLANE)
    a('v_lshlrev_b32 v8, 2, v3')
    a('v_xor_b32 v7, v7, v8')
    a('v_mul_u32_u24 v8, 3840, v3')
    a('v_lshl_add_u32 v%d, v7, 4, v8', vDW)
    for i in range(1, 4):
        a('v_add_u32 v%d, %d, v%d', vDW + i, (15360 - 1024) * i, vDW)
    a('s_lshl2_add_u32 s72, s%d, s%d', sRB, sW)
    a('s_mul_i32 s72, s72, %d', 32 * 1280)
    a('s_mul_i32 s73, s%d, %d', sW, 16 * 3840)
    a('s_lshl_b32 s70, s%d, 8', sCG)
    a('s_add_u32 s73, s73, s70')
    a('s_lshl_b32 s74, s%d, 12', sW)
    stagger(82, 83, 0)
    if OPT['fine'] == 1:
        stamp('S', 'setup')
    s_stage(0)
    if OPT['fine'] == 1:
        stamp('S', 'iss0')
    a('s_mul_i32 s70, s%d, 40', sCG)
    a('v_min_u32 v9, 39, v%d', vLANE)
    a('v_add_lshl_u32 v9, v9, s70, 1')
    a('global_load_ushort v10, v9, s[%d:%d]', sLDT, sLDT + 1)
    a('global_load_ushort v11, v9, s[%d:%d]', sLRE, sLRE + 1)
    a('global_load_ushort v12, v9, s[%d:%d]', sLIM, sLIM + 1)
    b1_sources(R3, R4, vDBX, vDBB, 75, 77, 70)
    a('v_and_b32 v5, 3, v%d', vLANE)
    a('v_lshlrev_b32 v5, 8, v5')
    a('v_lshl_add_u32 v5, v%d, 2, v5', vLANE)
    a('v_add_u32 v%d, %d, v5', vSPW, L_PW + 1024)
    s_addresses()
    s_stage(1)
    if OPT['fine'] == 1:
        stamp('S', 'iss1')
    a('s_waitcnt vmcnt(11)')
    stamp('S', 'st0')
    a('s_barrier')
    s_stage(2)
    a('s_waitcnt vmcnt(8)')
    a('s_barrier')
    s_stage(3)
    s_stage(4)

def s_addresses():
    c, g, t0, t1, t2 = 40, 41, 42, 43, 44
    a('v_and_b32 v%d, 15, v%d', c, vLANE)
    a('v_lshrrev_b32 v%d, 4, v%d', g, vLANE)
    a('v_lshrrev_b32 v%d, 1, v%d', t0, c)
    a('v_xor_b32 v%d, v%d, v%d', t0, t0, g)
    a('v_lshlrev_b32 v%d, 4, v%d', t0, t0)
    a('v_lshl_add_u32 v%d, v%d, 7, v%d', t0, c, t0)
    a('v_xor_b32 v%d, 64, v%d', t1, t0)
    a('v_add_u32 v%d, s74, v%d', vXR, t0)
    a('v_add_u32 v%d, s74, v%d', vXR + 1, t1)
    a('s_mul_i32 s70, s%d, %d', sW, REGSZ)
    a('s_add_u32 s70, s70, %d', L_REG)
    a('v_add_u32 v%d, s70, v%d', vCR, t0)
    a('v_add_u32 v%d, s70, v%d', vCR + 1, t1)
    a('v_lshrrev_b32 v%d, 3, v%d', t2, c)
    a('v_lshl_add_u32 v%d, v%d, 12, v%d', t0, t2, t0)
    a('v_add_u32 v%d, 16384, v%d', vBR, t0)
    a('v_xor_b32 v%d, 64, v%d', vBR + 1, vBR)
    for k in range(2):
        a('v_add_u32 v%d, 0x10000, v%d', vXR + 2 + k, vXR + k)
        a('v_add_u32 v%d, 0x10000, v%d', vBR + 2 + k, vBR + k)
    a('v_and_b32 v%d, 7, v%d', t0, vLANE)
    a('v_lshlrev_b32 v%d, 2, v%d', t2, t2)
    a('v_lshl_add_u32 v%d, v%d, 3, v%d', t0, t0, t2)
    a('v_add_u32 v%d, %d, v%d', vHH, L_H, t0)
    a('v_mul_u32_u24 v%d, 320, v%d', t1, g)
    a('s_mul_i32 s71, s%d, 1280', sW)
    a('s_add_u32 s71, s71, %d', L_EL)
    a('v_add3_u32 v%d, v%d, v%d, s71', vE, t0, t1)
    a('v_lshlrev_b32 v%d, 3, v%d', vCH, vLANE)
    a('v_add_u32 v%d, %d, v%d', vCHL, L_H, vCH)
    a('v_lshlrev_b32 v%d, 9, v%d', vHINT, vLANE)
    a('v_lshlrev_b32 v%d, 2, v%d', vA0PW, vLANE)
    a('v_add_u32 v%d, %d, v%d', vA0PW, L_PW, vA0PW)
    a('v_add_u32 v%d, %d, v%d', vS2PW, 1024 + 512, vA0PW)
    a('v_and_b32 v%d, 0x%x, v%d', vP01, 0xffffffff ^ 512, vSPW)
    a('v_xor_b32 v%d, 256, v%d', vPW1, vPW)
    a('v_xor_b32 v%d, 512, v%d', vPW2, vPW)
    a('v_and_b32 v%d, 1, v%d', t0, vLANE)
    a('v_lshlrev_b32 v%d, 9, v%d', t0, t0)
    a('v_xor_b32 v%d, v%d, v%d', t0, t0, vPW)
    a('v_subrev_u32 v%d, 1024, v%d', vAM, t0)
    a('v_mov_b32 v%d, 16', vC16)
    a('v_bfe_u32 v%d, v%d, 1, 2', t0, vLANE)
    a('v_xor_b32 v%d, v%d, v%d', t0, t0, g)
    a('v_lshlrev_b32 v%d, 4, v%d', t0, t0)
    a('s_mul_i32 s71, s%d, 5120', sW)
    a('s_add_u32 s71, s71, %d', L_HT)
    a('v_lshl_add_u32 v%d, v%d, 6, v%d', t0, c, t0)
    a('v_add_u32 v%d, s71, v%d', vHW, t0)
    a('v_bfe_u32 v%d, v%d, 2, 2', t0, vLANE)
    a('v_lshrrev_b32 v%d, 5, v%d', t1, vLANE)
    a('v_lshl_add_u32 v%d, v%d, 3, v%d', vHR0, t1, t0)
    a('v_lshlrev_b32 v%d, 6, v%d', vHR0, vHR0)
    a('v_mul_u32_u24 v%d, %d, v%d', vHS, 80 * 256, t1)
    a('v_lshrrev_b32 v%d, 1, v%d', t0, t0)
    a('v_bfe_u32 v%d, v%d, 4, 1', t1, vLANE)
    a('v_bfe_u32 v%d, v%d, 1, 1', t2, vLANE)
    a('v_lshl_add_u32 v%d, v%d, 1, v%d', t2, t1, t2)
    a('v_xor_b32 v%d, v%d, v%d', t2, t2, t0)
    a('v_lshl_add_u32 v%d, v%d, 4, v%d', vHR0, t2, vHR0)
    a('v_and_b32 v%d, 1, v%d', t2, vLANE)
    a('v_lshl_add_u32 v%d, v%d, 3, v%d', vHR0, t2, vHR0)
    a('v_xor_b32 v%d, 32, v%d', vHR1, vHR0)
    a('v_add_u32 v%d, s71, v%d', vHR0, vHR0)
    a('v_add_u32 v%d, s71, v%d', vHR1, vHR1)
    a('v_mul_u32_u24 v%d, %d, v%d', t1, HBLK, t1)
    a('v_lshl_add_u32 v%d, v%d, 4, v%d', t1, c, t1)
    a('v_add_u32 v%d, v%d, v%d', vHS, vHS, t1)
    a('v_mov_b32 v%d, v%d', vCA, vDX)
    a('v_mov_b32 v%d, v%d', vCA + 1, vDX + 1)
    a('v_lshlrev_b32 v%d, 4, v%d', vHA, vLANE)
    a('v_lshlrev_b32 v%d, 7, v%d', vF3, vLANE)
    a('v_min_u32 v%d, %d, v%d', vHT, 39 * 128, vF3)
    a('v_min_u32 v%d, %d, v%d', vTCH, 24 * 128, vF3)
    a('s_lshl2_add_u32 s71, s%d, s%d', sI, sW)
    a('s_mul_i32 s71, s71, 6400')
    a('v_add_u32 v%d, s71, v%d', vTCH, vTCH)
    a('v_min_u32 v%d, 19, v%d', t0, vLANE)
    a('s_and_b32 s71, s%d, 3', sI)
    a('s_mul_i32 s71, s71, 20')
    a('v_add_u32 v%d, s71, v%d', t0, t0)
    a('v_mul_u32_u24 v%d, 1280, v%d', vCT, t0)
    a('s_xor_b32 s92, s%d, 1', sW)
    a('s_mul_i32 s92, s92, %d', REGSZ)
    a('s_add_u32 s92, s92, %d', L_REG)
    a('s_xor_b32 s93, s%d, 3', sW)
    a('s_mul_i32 s93, s93, %d', REGSZ)
    a('s_add_u32 s93, s93, %d', L_REG + 16 * 336)
    a('v_add_u32 v%d, s70, v%d', vR1W, vHA)
    a('v_add_u32 v%d, s92, v%d', vR1R, vHA)
    a('v_mul_u32_u24 v%d, 336, v%d', t0, c)
    a('v_and_b32 v%d, 48, v%d', t1, vLANE)
    a('v_add3_u32 v%d, v%d, v%d, s92', vR2W, t0, t1)
    a('v_lshrrev_b32 v%d, 2, v%d', t0, vLANE)
    a('v_and_b32 v%d, 3, v%d', t1, vLANE)
    a('v_lshlrev_b32 v%d, 3, v%d', vDO, t1)
    a('v_mul_u32_u24 v%d, 1280, v%d', t2, t0)
    a('v_add_u32 v%d, v%d, v%d', vXO, t2, vDO)
    a('v_lshlrev_b32 v%d, 4, v%d', t1, t1)
    a('v_lshl_add_u32 v%d, v%d, 2, v%d', vOA, t2, t1)
    a('v_mul_u32_u24 v%d, 336, v%d', t2, t0)
    a('v_add3_u32 v%d, v%d, v%d, s92', vRA, t2, t1)
    a('v_add3_u32 v%d, v%d, v%d, s93', vRA + 1, t2, t1)
    s_wooffs()

def s_params():
    a('s_cmp_eq_u32 s%d, 0', sW)
    a('s_cbranch_scc0 L_nopar')
    for r in (10, 11, 12):
        a('v_lshlrev_b32 v%d, 16, v%d', r, r)
    exp_acc(13, 10, 14, 15)
    a('v_cvt_pk_bf16_f32 v13, v13, v13')
    a('v_and_b32 v13, 0xffff0000, v13')
    a('v_mul_f32 v14, v13, v11')
    a('v_mul_f32 v15, v13, v12')
    exp_acc(16, 14, 17, 18)
    I2P = 1.0 / (2 * math.pi)
    hi = struct.unpack('<f', struct.pack('<f', I2P))[0]
    a('s_mov_b32 s80, 0x%x', f2u(hi))
    a('v_mul_f32 v17, s80, v15')
    a('v_rndne_f32 v17, v17')
    a('v_fma_f32 v17, v15, s80, -v17')
    a('v_fmac_f32 v17, 0x%x, v15', f2u(I2P - hi))
    a('v_cos_f32 v20, v17')
    a('v_sin_f32 v21, v17')
    a('v_mul_f32 v18, v11, v11')
    a('v_fmac_f32 v18, v12, v12')
    a('v_rcp_f32 v19, v18')
    a('v_mul_f32 v20, v16, v20')
    a('v_mul_f32 v21, v16, v21')
    a('v_fma_f32 v18, -v18, v19, 1.0')
    a('v_fmac_f32 v19, v19, v18')
    a('v_add_f32 v19, v19, v19')
    a('v_add_f32 v17, -1.0, v20')
    a('v_mul_f32 v22, v17, v11')
    a('v_fmac_f32 v22, v21, v12')
    a('v_mul_f32 v23, v17, v12')
    a('v_fma_f32 v23, -v21, v11, v23')
    a('v_mul_f32 v22, v22, v19')
    a('v_mul_f32 v23, v23, v19')
    a('v_lshlrev_b32 v9, 4, v%d', vLANE)
    a('v_add_u32 v9, %d, v9', L_PAR)
    a('ds_write_b128 v9, v[20:23]')
    a('v_mov_b32 v24, v20')
    a('v_sub_f32 v25, 0, v21')
    for k in range(3):
        a('v_mul_f32 v26, v25, v25')
        a('v_add_f32 v27, v24, v24')
        a('v_fma_f32 v24, v24, v24, -v26')
        a('v_mul_f32 v25, v27, v25')
    a.label('L_nopar')

def s_params2():
    a('s_cmp_eq_u32 s%d, 0', sW)
    a('s_cbranch_scc0 L_nopar2')
    a('s_mov_b32 exec_hi, 0xff')
    a('v_mov_b32 v14, 1.0')
    a('v_mov_b32 v15, 0')
    a('ds_write_b64 v%d, v[14:15] offset:%d', vCHL, L_Z - L_H)
    a('ds_write_b64 v%d, v[24:25] offset:%d', vCHL, L_Z - L_H + 320)
    src = 24
    for sg in range(2, 17):
        dst = 16 + 2 * (sg % 3)
        a('v_mul_f32 v%d, v24, v%d', dst, src)
        a('v_mul_f32 v%d, v24, v%d', dst + 1, src + 1)
        a('v_fma_f32 v%d, -v25, v%d, v%d', dst, src + 1, dst)
        a('v_fmac_f32 v%d, v25, v%d', dst + 1, src)
        a('ds_write_b64 v%d, %s offset:%d', vCHL, v(dst, 2), L_Z - L_H + 320 * sg)
        src = dst
    a('s_mov_b32 exec_hi, -1')
    a('s_waitcnt lgkmcnt(0)')
    a.label('L_nopar2')

def s_wooffs():
    for i in range(5):
        a('v_add_u32 v40, %d, v%d', 64 * i, vLANE)
        a('v_mul_u32_u24 v41, 6554, v40')
        a('v_lshrrev_b32 v41, 16, v41')
        a('v_mul_u32_u24 v42, 10, v41')
        a('v_sub_u32 v40, v40, v42')
        tau(42, 41, 43)
        a('v_mul_u32_u24 v42, 1280, v42')
        a('v_lshl_add_u32 v%d, v40, 4, v42', vWOA + i)
        if 0 < i < 4:
            a('v_subrev_u32 v%d, %d, v%d', vWOA + i, 1024 * i, vWOA + i)

def s_qloader():
    early = {1: {7: 10}, 2: {7: 10, 9: 11}, 3: {7: 10, 8: 11, 9: 12}, 0: {}}[OPT['st10']]
    q = [2] * 8 + [3] * 8 + [4] * 8
    for st in range(2, 10):
        a('s_waitcnt vmcnt(%d)', len(q) - 1 - max(i for i, x in enumerate(q) if x == st))
        if OPT['fine'] == 1 and st in (3, 5, 7, 9):
            stamp('S', 'st%d' % st)
        a('s_barrier')
        if st == 6:
            a('v_and_b32 v32, 15, v%d', vLANE)
            a('v_lshlrev_b32 v32, 2, v32')
            a(dbgload(32, 33))
            q.append('d')
        if st <= 6:
            s_stage(st + 3)
            q += [st + 3] * 8
        if st == OPT['pretouch']:
            a('s_cmp_eq_u32 s%d, 2', sW)
            a('s_cselect_b32 s70, s%d, s%d', sBRE, sBIM)
            a('s_cselect_b32 s71, s%d, s%d', sBRE + 1, sBIM + 1)
            a('s_mul_i32 s83, s2, 3200')
            a('s_lshl1_add_u32 s84, s2, s%d', sW)
            a('s_mul_i32 s84, s84, 5120')
            a('s_cmp_lt_u32 s%d, 2', sW)
            a('s_cselect_b32 s70, s%d, s70', sBX)
            a('s_cselect_b32 s71, s%d, s71', sBX + 1)
            a('s_cselect_b32 s83, s84, s83')
            a('s_cselect_b32 s84, 39, 24')
            a('v_min_u32 v30, s84, v%d', vLANE)
            a('v_lshl_add_u32 v30, v30, 7, s83')
            a('global_load_dword v31, v30, s[70:71]')
            q.append('t')
        if st in early:
            s_stage(early[st])
            q += [early[st]] * 7
        if st == 7:
            s_params()
        if st == 8:
            s_params2()

    a('v_cmp_eq_u32 vcc, 0, v33')
    a('s_cbranch_vccz L_clrok')
    pollflags([dbgload(32, 33)], 33)
    a.label('L_clrok')
    a('s_barrier')
    stamp('S', 'qend')
    s_consts()

def s_consts():
    a('v_and_b32 v6, 7, v%d', vLANE)
    a('v_lshlrev_b32 v6, 4, v6')
    a('v_add_u32 v6, %d, v6', L_PAR)
    for j in range(5):
        a('ds_read_b128 %s, v6 offset:%d', v(vPAR + 4 * j, 4), 128 * j)
    a('v_and_b32 v7, -8, v%d', vE)
    a('v_subrev_u32 v7, %d, v7', L_EL - L_Z)
    for j in range(5):
        a('ds_read_b64 %s, v7 offset:%d', v(vZ + 2 * j, 2), 64 * j)
    a('s_cmp_eq_u32 s%d, 0', sW)
    a('s_cselect_b32 s70, 1, 16')
    a('s_mul_i32 s70, s70, 320')
    a('v_add_u32 v8, s70, v%d', vCHL)
    a('ds_read_b64 %s, v8 offset:%d', v(vL, 2), L_Z - L_H)
    a('v_bfe_u32 v5, v%d, 3, 1', vLANE)
    a('v_lshlrev_b32 v5, 31, v5')
    a('v_xor_b32 v4, 0x80000000, v5')
    a('s_waitcnt lgkmcnt(0)')
    for j in range(5):
        a('v_xor_b32 v%d, v5, v%d', vPAR + 4 * j + 1, vPAR + 4 * j + 1)
        a('v_xor_b32 v%d, v5, v%d', vPAR + 4 * j + 2, vPAR + 4 * j + 2)
        a('v_xor_b32 v%d, v4, v%d', vZ + 2 * j + 1, vZ + 2 * j + 1)

def touch(r):
    o = ['s_add_u32 s84, s%d, %d' % (sXCD, r),
         's_cmp_ge_u32 s84, 6', 's_cselect_b32 s85, 6, 0', 's_sub_u32 s84, s84, s85',
         's_cmp_ge_u32 s84, 6', 's_cselect_b32 s85, 6, 0', 's_sub_u32 s84, s84, s85',
         's_cmp_ge_u32 s84, 2',
         's_cselect_b32 s86, s%d, s%d' % (sCRE, sWO), 's_cselect_b32 s87, s%d, s%d' % (sCRE + 1, sWO + 1),
         's_cmp_ge_u32 s84, 4',
         's_cselect_b32 s86, s%d, s86' % sCIM, 's_cselect_b32 s87, s%d, s87' % (sCIM + 1),
         's_and_b32 s84, s84, 1', 's_mul_i32 s84, s84, 3200',
         's_add_u32 s86, s86, s84', 's_addc_u32 s87, s87, 0',
         'global_load_dword v109, v%d, s[86:87]' % vTCH]
    return o

def s_b1():
    F = [40, 68]
    def reads(t, ks, f):
        slot = t % 4
        hi, lo = slot >> 1, (slot & 1) * 32768
        r = ['ds_read_b128 %s, v%d offset:%d' % (v(f + 4 * T, 4), vXR + 2 * hi + ks, lo + 2048 * T) for T in range(2)]
        r += ['ds_read_b128 %s, v%d offset:%d' % (v(f + 8 + 4 * j, 4), vBR + 2 * hi + ks, lo + 1024 * j) for j in range(5)]
        return r
    def mfmas(f, first):
        return ['v_mfma_f32_16x16x32_bf16 %s, %s, %s, %s' % (v(8 * j + 4 * T, 4), v(f + 4 * T, 4), v(f + 8 + 4 * j, 4),
                '0' if first else v(8 * j + 4 * T, 4)) for j in range(5) for T in range(2)]
    def weave(ms, others):
        n = len(ms)
        k = 0
        for i_, m in enumerate(ms):
            a(m)
            while k < len(others) * (i_ + 1) // n:
                a(others[k])
                k += 1
    first = 10 + OPT['st10']
    a('s_lshl4_add_u32 s84, s%d, s%d', sCG, sRB)
    flagaddr(84, 84, F1, 85)
    a('s_waitcnt vmcnt(%d)', max(0, 7 * (first - 11)))
    a('s_barrier')
    for r in reads(10, 0, F[0]):
        a(r)
    for u in range(10):
        t = 10 + u
        if OPT['fine'] == 1 and u in (0, 2, 4, 6, 8):
            stamp('S', 'b1w%d' % u)
        a('s_waitcnt lgkmcnt(0)')
        m0_ = mfmas(F[0], u == 0)
        weave(m0_[:4], reads(t, 1, F[1]))
        for m in m0_[4:]:
            a(m)
        m1_ = mfmas(F[1], False)
        if u < 9:
            if t + 1 < first:
                a('s_waitcnt vmcnt(%d) lgkmcnt(0)', 7 * (first - t - 2))
            else:
                a('s_waitcnt lgkmcnt(0)')
            a('s_barrier')
            if t + 1 == first:
                a('s_cmp_eq_u32 s%d, 3', sW)
                a('s_cbranch_scc0 L_noflag')
                setflag(84, 104)
                a.label('L_noflag')
            weave(m1_[:4], reads(t + 1, 0, F[0]))
            for m in m1_[4:]:
                a(m)
        else:
            a('s_waitcnt lgkmcnt(0)')
            for m in m1_:
                a(m)
    stamp('S', 'b1gemm')

def s_wo():
    srd(R0, sWO, 640 * 1280)
    a('s_mul_i32 s79, s%d, 40960', sW)
    a('s_mul_i32 s73, s%d, 160', sOG)
    a('s_add_u32 s79, s79, s73')
    a('s_mul_i32 s78, s%d, 5120', sW)
    a.label('L_woloop')
    a('s_mov_b32 m0, s78')
    a('s_add_u32 s73, s78, 4096')
    for i in range(5):
        if i == 4:
            a('s_mov_b32 m0, s73')
        a('s_waitcnt vmcnt(%d)', OPT['thrw'])
        a(dma(vWOA + i, R0, 79, 1024 * (i & 3)))
    a('s_add_u32 s78, s78, %d', 4 * 5120)
    a('s_add_u32 s79, s79, %d', 4 * 40960)
    a('s_cmp_lt_u32 s78, %d', 20 * 5120)
    a('s_cbranch_scc1 L_woloop')

def s_scan():
    ROR = 'row_ror:8 row_mask:0xf bank_mask:0xf'
    a('s_setprio 1')
    a('s_lshl_b32 s70, s%d, 13', sCG)
    a('s_add_u32 s70, s70, 0x%x', WS_E)
    a('s_add_u32 s70, s70, s%d', sWS)
    a('s_addc_u32 s71, s%d, 0', sWS + 1)
    srd(R5, 70, 8192)
    a('s_sub_u32 s70, 15, s%d', sRB)
    a('s_lshl_b32 s70, s70, 9')
    a('s_add_u32 s71, s70, 4096')
    tmp = 40
    for j in range(5):
        for k in range(8):
            a('v_mul_f32_dpp v%d, v%d, v%d %s', tmp + k, 8 * j + k, vPAR + 4 * j + 3, ROR)
        for k in range(8):
            a('v_fma_f32 v%d, v%d, v%d, v%d', 8 * j + k, vPAR + 4 * j + 2, 8 * j + k, tmp + k)
    e = [[8 * j for j in range(5)], [50 + j for j in range(5)], [56 + j for j in range(5)]]
    cur = e[0]
    for k in range(1, 8):
        nx = e[1 + (k & 1)]
        for j in range(5):
            a('v_fma_f32 v%d, v%d, v%d, v%d', nx[j], vPAR + 4 * j, cur[j], 8 * j + k)
        for j in range(5):
            a('v_fmac_f32_dpp v%d, v%d, v%d %s', nx[j], cur[j], vPAR + 4 * j + 1, ROR)
        cur = nx
    for j in range(5):
        a('ds_write_b32 v%d, v%d offset:%d', vE, cur[j], 64 * j)
    setpw(11, 104)
    for r in range(10 - OPT['tstart'], 0 if OPT['tlate'] else 6):
        a('s_waitcnt vmcnt(0)')
        for o in touch(r):
            a(o)
    stamp('S', 'pass1')
    def chain(dst, src, add):
        a('v_fma_f32 v%d, v%d, v%d, v%d', dst, vL, src, add)
        a('v_fma_f32 v%d, v%d, v%d, v%d', dst + 1, vL, src + 1, add + 1)
        a('v_fma_f32 v%d, -v%d, v%d, v%d', dst, vL + 1, src + 1, dst)
        a('v_fmac_f32 v%d, v%d, v%d', dst + 1, vL + 1, src)
    ES = 110
    a('s_cmp_eq_u32 s%d, 1', sW)
    a('s_cbranch_scc1 L_wave1')
    a('s_cmp_eq_u32 s%d, 0', sW)
    a('s_cbranch_scc0 L_wave23')
    waitpw(vSPW, 11, 105, sleep=1)
    a('s_mov_b32 exec_hi, 0xff')
    for sg in range(16):
        a('ds_read_b64 %s, v%d offset:%d', v(ES + 2 * sg, 2), vCHL, L_EL - L_H + 320 * sg)
    a('v_mov_b32 v142, 0')
    a('v_mov_b32 v143, 0')
    a('s_waitcnt lgkmcnt(0)')
    a('ds_write_b64 v%d, v[142:143] offset:%d', vCHL, L_PL - L_H)
    for sg in range(1, 16):
        a('ds_write_b64 v%d, %s offset:%d', vCHL, v(ES + 2 * sg - 2, 2), L_PL - L_H + 320 * sg)
        chain(ES + 2 * sg, ES + 2 * sg - 2, ES + 2 * sg)
    a('v_min_u32 v%d, -2, v%d', ES + 30, ES + 30)
    a('v_min_u32 v%d, -2, v%d', ES + 31, ES + 31)
    a('buffer_store_dwordx2 %s, v%d, s[%d:%d], s70 offen sc1', v(ES + 30, 2), vCH, R5, R5 + 3)
    a('s_mov_b32 exec_hi, -1')
    setpw(12, 104)
    a('s_branch L_coldone')
    a.label('L_wave1')
    a.label('L_hint')
    a('buffer_load_dword v105, v%d, s[%d:%d], s70 offen offset:512 sc1', vHINT, R5, R5 + 3)
    a('s_waitcnt vmcnt(0)')
    a('v_cmp_eq_u32 vcc, -1, v105')
    a('s_cbranch_vccz L_hintok')
    a('s_mov_b64 exec, vcc')
    a('s_sleep 3')
    a.label('L_hint2')
    a('s_sub_u32 s%d, s%d, 1', sSPIN, sSPIN)
    a('s_cbranch_scc0 L_hint')
    a('s_endpgm')
    a.label('L_hintok')
    a('s_mov_b32 exec_lo, -1')
    a('s_mov_b32 exec_hi, 0xff')
    for k in range(15, 0, -1):
        a('buffer_load_dwordx2 %s, v%d, s[%d:%d], s%d offen offset:%d sc1', v(ES + 2 * (15 - k), 2), vCH, R5, R5 + 3,
          71 if k >= 8 else 70, 512 * (k & 7))
    a('s_waitcnt vmcnt(0)')
    a('v_max_u32 v105, v%d, v%d', ES, ES + 1)
    for n in range(1, 15):
        a('v_max3_u32 v105, v105, v%d, v%d', ES + 2 * n, ES + 2 * n + 1)
    a('v_cmp_eq_u32 vcc, -1, v105')
    a('s_cbranch_vccnz L_hint2')
    for n in range(1, 15):
        chain(ES + 2 * n, ES + 2 * n - 2, ES + 2 * n)
    a('ds_write_b64 v%d, %s', vCHL, v(ES + 28, 2))
    a('s_mov_b32 exec_hi, -1')
    setpw(12, 104)
    a('s_branch L_coldone')
    a.label('L_wave23')
    a.label('L_coldone')
    a('s_lshl2_add_u32 s70, s%d, s%d', sRB, sW)
    a('s_mul_i32 s71, s70, %d', 2 * HBLK)
    a('s_mul_i32 s78, s%d, 1280', sCG)
    a('s_add_u32 s71, s71, s78')
    a('s_add_u32 s71, s71, 0x%x', WS_H)
    a('s_lshl4_add_u32 s70, s70, s%d', sCG)
    flagaddr(70, 70, F3, 78)
    waitpw(vP01, 12, 105, sleep=4)
    stamp('S', 'carry')
    for j in range(5):
        a('ds_read_b32 v%d, v%d offset:%d', 50 + j, vE, L_PL - L_EL + 64 * j)
        a('ds_read_b32 v%d, v%d offset:%d', 56 + j, vHH, 64 * j)
    a('s_waitcnt lgkmcnt(0)')
    for j in range(5):
        a('v_fmac_f32 v%d, v%d, v%d', 50 + j, vZ + 2 * j, 56 + j)
    for j in range(5):
        a('v_fmac_f32_dpp v%d, v%d, v%d %s', 50 + j, 56 + j, vZ + 2 * j + 1, ROR)
    for k in range(8):
        pr = [50 + j if k == 0 else 8 * j + k - 1 for j in range(5)]
        for j in range(5):
            a('v_fmac_f32 v%d, v%d, v%d', 8 * j + k, vPAR + 4 * j, pr[j])
        for j in range(5):
            a('v_fmac_f32_dpp v%d, v%d, v%d %s', 8 * j + k, pr[j], vPAR + 4 * j + 1, ROR)
    for j in range(5):
        for q in range(4):
            a('v_cvt_pk_bf16_f32 v%d, v%d, v%d', 64 + 4 * j + q, 8 * j + 2 * q, 8 * j + 2 * q + 1)
        a('ds_write_b128 v%d, %s offset:%d', vHW, v(64 + 4 * j, 4), 1024 * j)
        a('ds_read_b64_tr_b16 %s, v%d offset:%d', v(110 + 4 * j, 2), vHR0, 1024 * j)
        a('ds_read_b64_tr_b16 %s, v%d offset:%d', v(110 + 4 * j + 2, 2), vHR1, 1024 * j + 256)
    for j in range(5):
        a('s_waitcnt lgkmcnt(%d)', 12 - 3 * j)
        a('buffer_store_dwordx4 %s, v%d, s[%d:%d], s71 offen offset:%d sc1', v(110 + 4 * j, 4), vHS, RWS, RWS + 3, 256 * j)
    setpw(13, 104)

def s_b3():
    NS = 4
    acc, HF, CF = 0, 80, [208, 216]
    a('s_cmp_ge_u32 s%d, 2', sW)
    a('s_cselect_b32 s78, s%d, s%d', sCIM, sCRE)
    a('s_cselect_b32 s79, s%d, s%d', sCIM + 1, sCRE + 1)
    srd(R1, 78, 640 * 1280)
    srd(R6, sOUT, 2048 * 1280 * 4)
    a('s_mul_i32 s74, s%d, %d', sW, REGSZ)
    a('s_add_u32 s74, s74, %d', L_REG)
    a('s_and_b32 s78, s%d, 1', sW)
    a('s_mul_i32 s72, s%d, %d', sOG, 80 * 1280)
    a('s_mul_i32 s73, s78, 640')
    a('s_add_u32 s72, s72, s73')
    a('s_mul_i32 s79, s%d, %d', sW, 40 * 256)
    a('s_add_u32 s79, s79, 0x%x', WS_H)
    a('s_lshr_b32 s80, s%d, 1', sW)
    a('s_lshl1_add_u32 s78, s78, s80')
    for l in range(4):
        a('s_xor_b32 s80, s78, %d', l)
        a('s_lshl2_add_u32 s80, s%d, s80', sTB)
        a('s_mul_i32 s80, s80, %d', HBLK)
        a('s_add_u32 s%d, s80, s79', 84 + l)
    a('s_lshl_b32 s88, s%d, 12', sTB)
    a('s_add_u32 s88, s88, 0x%x', F3)
    a('s_lshl2_add_u32 s78, s%d, s78', sTB)
    a('s_mul_i32 s80, s78, %d', 16 * 1280)
    a('s_mul_i32 s81, s%d, 160', sOG)
    a('s_add_u32 s80, s80, s81')
    a('s_mul_i32 s82, s78, %d', 16 * 5120)
    a('s_lshl1_add_u32 s82, s81, s82')
    a('s_add_u32 s82, s82, 2560')
    a('s_add_u32 s90, s%d, s81', sDSK)
    a('s_addc_u32 s91, s%d, 0', sDSK + 1)
    a('s_lshl2_add_u32 s89, s%d, s%d', sOG, sW)
    a('s_mul_i32 s89, s89, 5120')
    a('s_mul_i32 s79, s%d, %d', sTB, 4 * HBLK)
    a('s_add_u32 s89, s89, s79')
    a('s_add_u32 s89, s89, 0x%x', WS_H)
    a('s_waitcnt vmcnt(0)')
    setflag(70, 40)
    stamp('S', 'hpub')
    if OPT['tlate']:
        for k in range(4):
            a('s_mov_b32 s%d, s%d', 4 + k, 84 + k)
        for r in range(6):
            for o in touch(r):
                a(o)
            a('s_waitcnt vmcnt(0)')
        for k in range(4):
            a('s_mov_b32 s%d, s%d', 84 + k, 4 + k)
        stamp('S', 'touch')
    s_wo()
    waitpw(vSPW, 13, 40, sleep=2)
    def cdma(n):
        kp, j = divmod(n, 5)
        a('s_add_u32 m0, s74, %d', 2048 * (n % NS))
        a('s_add_u32 s76, s72, %d', 16 * 1280 * j + 128 * kp)
        a(dma(vCA, R1, 76, 0))
        a(dma(vCA + 1, R1, 76, 1024))
    for n in range(NS):
        cdma(n)
        a('s_waitcnt vmcnt(%d)', 0 if n == NS - 1 else 4)
    setpw(14, 40)
    stamp('S', 'wo')
    a('s_cmp_eq_u32 s%d, 2', sW)
    a('s_cbranch_scc0 L_f3wait')
    a('s_mov_b32 exec_hi, 0')
    pollflags(['buffer_load_dword v40, v%d, s[%d:%d], s88 offen sc1' % (vF3, RWS, RWS + 3)], 40, sleep=4)
    setpw(15, 40)
    a.label('L_f3wait')
    waitpw(vS2PW, 15, 40, sleep=4)
    stamp('S', 'f3')
    a('s_setprio %d', OPT['b3prio'])
    def hload(l, ks):
        r = ['buffer_load_dwordx4 %s, v%d, s[%d:%d], s%d offen offset:%d sc1' % (
            v(HF + 16 * (ks % 8) + 4 * l, 4), vHA, RWS, RWS + 3, 84 + l, 1024 * (ks & 3))]
        if ks & 3 == 3:
            r.append('s_add_u32 s%d, s%d, 4096' % (84 + l, 84 + l))
        return '\n'.join(r)
    a('buffer_load_dword v40, v%d, s[%d:%d], s89 offen sc1', vHT, RWS, RWS + 3)
    for ks in range(2):
        if ks:
            a('s_waitcnt vmcnt(0)')
        for l in range(4):
            a(hload(l, ks))
    def creads(n):
        return ['ds_read_b128 %s, v%d offset:%d' % (v(CF[n & 1] + 4 * k, 4), vCR + k, 2048 * (n % NS)) for k in range(2)]
    q = []
    def waitfor(tag):
        idx = max(i for i, x in enumerate(q) if x == tag)
        n = len(q) - 1 - idx
        del q[:idx + 1]
        return n
    for r in creads(0):
        a(r)
    a('s_waitcnt vmcnt(0) lgkmcnt(0)')
    stamp('S', 'b3go')
    cdma(NS)
    q += [NS, NS]
    vX, vD = HF + 32, HF + 44
    hq = [(l, ks) for ks in range(2, 10) for l in range(4)]
    for n in range(25):
        kp, j = divmod(n, 5)
        if n + 1 < 25:
            if (n + 1) in q:
                a('s_waitcnt vmcnt(%d)', waitfor(n + 1))
            for r in creads(n + 1):
                a(r)
        if j == 0 and 'h%d' % kp in q:
            a('s_waitcnt vmcnt(%d)', waitfor('h%d' % kp))
        if OPT['fine'] >= 2 and n in (3, 6, 9, 12, 15, 18, 21):
            stamp('S', 'u%d' % n)
        extra = []
        for _ in range(3):
            if hq:
                l, ks = hq.pop(0)
                assert ks < 8 or n >= 5
                extra.append(hload(l, ks))
                q.append('h%d' % (ks // 2))
        if 11 <= n < 16:
            i = n - 11
            extra += ['global_load_dwordx2 %s, v%d, s[90:91] offset:%d' % (v(vD + 2 * i, 2), vDO, 32 * i),
                      'buffer_load_dwordx2 %s, v%d, s[%d:%d], s80 offen offset:%d' % (v(vX + 2 * i, 2), vXO, R3, R3 + 3, 32 * i)]
            q += ['x', 'x']
        cnt = 0
        for k in range(2):
            ks = 2 * kp + k
            for l in range(4):
                d = acc + 20 * l + 4 * j
                a('v_mfma_f32_16x16x32_bf16 %s, %s, %s, %s', v(d, 4), v(CF[n & 1] + 4 * k, 4), v(HF + 16 * (ks % 8) + 4 * l, 4),
                  '0' if ks == 0 else v(d, 4))
                if cnt < len(extra):
                    a(extra[cnt])
                cnt += 1
                if cnt == 5 and n + 1 < 25:
                    a('s_waitcnt lgkmcnt(0)')
                    if n + NS + 1 < 25:
                        cdma(n + NS + 1)
                        q += [n + NS + 1, n + NS + 1]
                    if n == OPT['gate4']:
                        a('ds_write_b32 v%d, v%d', vPW, vC16)
    stamp('S', 'b3gemm')
    T = 160
    a('s_setprio 1')
    waitpw(vAM, 7, T, sleep=2)
    for qd in range(10):
        a('ds_write_b128 v%d, %s offset:%d', vR1W, v(acc + 40 + 4 * qd, 4), 1024 * qd)
    setpw(17, T + 1)
    a('s_waitcnt vmcnt(0)')
    U = 180
    def skip(i):
        for hf in range(2):
            a('v_lshlrev_b32 v%d, 16, v%d', T + 4, vX + 2 * i + hf)
            a('v_lshlrev_b32 v%d, 16, v%d', T + 5, vD + 2 * i + hf)
            a('v_and_b32 v%d, 0xffff0000, v%d', T + 6, vX + 2 * i + hf)
            a('v_and_b32 v%d, 0xffff0000, v%d', T + 7, vD + 2 * i + hf)
            a('v_mul_f32 v%d, v%d, v%d', U + 4 * i + 2 * hf, T + 4, T + 5)
            a('v_mul_f32 v%d, v%d, v%d', U + 4 * i + 2 * hf + 1, T + 6, T + 7)
    skip(0)
    skip(1)
    waitpw(vPW1, 17, T + 1)
    for qd in (5, 6, 7, 8, 9, 0, 1, 2, 3, 4):
        a('ds_read_b128 %s, v%d offset:%d', v(acc + 40 + 4 * qd, 4), vR1R, 1024 * qd)
    skip(2)
    a('s_waitcnt lgkmcnt(0)')
    for qd in (5, 6, 7, 8, 9, 0, 1, 2, 3, 4):
        l, j = divmod(qd, 5)
        for e in range(4):
            a('v_add_f32 v%d, v%d, v%d', acc + 4 * qd + e, acc + 4 * qd + e, acc + 40 + 4 * qd + e)
        a('ds_write_b128 v%d, %s offset:%d', vR2W, v(acc + 4 * qd, 4), 16 * 336 * l + 64 * j)
        if qd == 9:
            setpw(18, T + 1)
    for i in range(5):
        a('ds_read_b128 %s, v%d offset:%d', v(acc + 40 + 8 * i, 4), vRA, 64 * i)
    skip(3)
    skip(4)
    waitpw(vPW2, 18, T + 1)
    for i in range(5):
        a('ds_read_b128 %s, v%d offset:%d', v(acc + 44 + 8 * i, 4), vRA + 1, 64 * i)
    for i in range(5):
        for e in range(4):
            a('v_add_f32 v%d, v%d, v%d', U + 4 * i + e, U + 4 * i + e, acc + 40 + 8 * i + e)
    for i in range(5):
        a('s_waitcnt lgkmcnt(%d)', 4 - i)
        for e in range(4):
            a('v_add_f32 v%d, v%d, v%d', U + 4 * i + e, U + 4 * i + e, acc + 44 + 8 * i + e)
        a('buffer_store_dwordx4 %s, v%d, s[%d:%d], s82 offen offset:%d%s', v(U + 4 * i, 4), vOA, R6, R6 + 3, 64 * i, OSC)
    finish('S')

prologue()
a_setup()
a_att_setup()
a_qphase()
a_handoff()
a_attention()
a_outproj()
s_setup()
s_qloader()
if OPT['sexit'] == 1:
    setpw(99, 40)
    finish('S')
s_b1()
if OPT['sexit'] == 2:
    setpw(99, 40)
    finish('S')
s_scan()
s_b3()
a.label('L_codeend')

errs = check(a.lines)
for e_ in errs:
    print('HAZARD', e_, file=sys.stderr)

head = open('cdna_kernels/%s.s.ref' % NAME).read().split('; @launch')[0]
out = head + '; @launch grid=(256,1,1) block=(512,1,1) lds=%d\n' % LDS_BYTES
out += '''.amdgcn_target "amdgcn-amd-amdhsa--gfx950"
.text
.globl %s_kernel
.p2align 8
.type %s_kernel,@function
%s_kernel:
''' % (NAME, NAME, NAME)
out += a.text()
out += '''.section .rodata,"a"
.p2align 6
.amdhsa_kernel %s_kernel
  .amdhsa_next_free_vgpr 256
  .amdhsa_next_free_sgpr 102
  .amdhsa_accum_offset 256
  .amdhsa_group_segment_fixed_size 0
  .amdhsa_kernarg_size 120
  .amdhsa_user_sgpr_count 2
  .amdhsa_user_sgpr_kernarg_segment_ptr 1
  .amdhsa_system_sgpr_workgroup_id_x 1
.end_amdhsa_kernel
''' % NAME
open(sys.argv[1], 'w').write(out)
if DIAG:
    import json
    json.dump(nstamp, open(sys.argv[1] + '.stamps.json', 'w'))
import subprocess
r_ = subprocess.run(['clang', '-x', 'assembler', '-target', 'amdgcn-amd-amdhsa', '-mcpu=gfx950', '-c', sys.argv[1], '-o', 'chk.o'], capture_output=True, text=True)
if r_.returncode:
    print(r_.stderr[:2000])
    sys.exit(1)
if errs:
    sys.exit(1)
```

```python
import sys, math, struct
from asmlib import Asm, v, s, check

NAME = 'concat_heads__mha_block__ssm_conv_s5__prompt'
OPT = dict(diag=0, b3start=12, force_fb=0, psleep=2, fine=0, cpre=1, stag=4, b1dep=2, rot=1, thr=4, hold=3, codepre=1, psleep4=2, padto=0, outsc1=1, gate4=-1, early0=1, st10=2, b1prio=0, probe='', probewg=-1, sexit=0, b3prio=0, nocdma=0, mallpre=0, b3early=1, pretouch=-1, pace=0, pause=1, wolate=1, thrw=2, kvsplit=5, tstart=0, k2split=0, gate1='x', tlate=0, spread=1, pollat=17, tearly=0, b3stop=15, b3res=7, hrate=3, yhold=1, rot5=1, wopack=0, olead=8, allpoll=1, ysc=1)
for a_ in sys.argv[2:]:
    k_, v_ = a_.split('=')
    OPT[k_] = v_ if k_ in ('probe', 'gate1') else int(v_)
DIAG = OPT['diag']
OSC = ['', ' sc1', ' nt', ' sc1 nt'][OPT['outsc1']]
YSC = ['', ' sc1', ' nt', ' sc1 nt'][OPT['ysc']]

def f2u(x):
    return struct.unpack('<I', struct.pack('<f', x))[0]

BLK, VOFF, VROW = 247808, 164864, 10368
WS_H, HBLK = 0x800000, 40960
WS_O, OBLK = 0xD00000, 20480
WS_E = 0xF80000
WS_F = 0xFA0000
F1, F2, F3, F4 = WS_F, WS_F + 0x8000, WS_F + 0x10000, WS_F + 0x30000
WS_WP = 0x1000000
WS_END = WS_WP + 8 * 102400
WS_DIAG = 0x1100000
OOB = 0x7F000000
L_HT, L_EL, L_PL, L_PAR = 131072, 151552, 156672, 161024
L_PAR = 131072 + 0
L_WO = 0
L_REG, REGSZ = 102400, 14848
L_PW = 161792
LDS_BYTES = 163840
sAX, sWQ, sWO, sBX, sLRE, sLIM, sBRE, sBIM, sCRE, sCIM, sLDT, sDSK, sOUT, sDBG, sWS = range(4, 34, 2)
sW, sI, sXCD = 34, 35, 3
R0, R1, RWS, R3, R4, R5, R6 = 36, 40, 44, 48, 52, 56, 60
sRB, sCG, sHD, sQB, sTB, sOG = 64, 65, 66, 67, 68, 69
sSPIN = 96
sHI = 94
vLANE, vPW, vTS = 254, 253, 255
SPIN_MAX = 1 << 19

a = Asm()
nstamp = {}

def stamp(role, name):
    if OPT['probe'] == role + name:
        a('s_memrealtime s[98:99]')
        a('s_waitcnt lgkmcnt(0)')
        a('s_mov_b32 s97, s98')
    if not DIAG:
        return
    l = nstamp.setdefault(role, [])
    idx = len(l)
    l.append(name)
    a('s_memtime s[98:99]')
    a('s_memrealtime s[100:101]')
    a('s_waitcnt lgkmcnt(0)')
    a('v_writelane_b32 v%d, s98, %d', vTS, idx)
    a('v_writelane_b32 v%d, s100, %d', vTS, 32 + idx)

def srd(r, base, nbytes):
    a('s_mov_b32 s%d, s%d', r, base)
    a('s_mov_b32 s%d, s%d', r + 1, base + 1)
    if isinstance(nbytes, int):
        a('s_mov_b32 s%d, 0x%x', r + 2, nbytes)
    else:
        a('s_mov_b32 s%d, %s', r + 2, nbytes)
    a('s_mov_b32 s%d, 0x20000', r + 3)

def setpw(val, tmp):
    a('v_mov_b32 v%d, %d', tmp, val)
    a('ds_write_b32 v%d, v%d', vPW, tmp)

def waitpw(vaddr, val, tmp, sleep=0):
    L = a.newlabel('pw')
    D = a.newlabel('pwd')
    a.label(L)
    a('ds_read_b32 v%d, v%d', tmp, vaddr)
    a('s_waitcnt lgkmcnt(0)')
    a('v_cmp_gt_u32 vcc, %d, v%d', val, tmp)
    a('s_cbranch_vccz %s', D)
    if sleep:
        a('s_sleep %d', sleep)
    a('s_sub_u32 s%d, s%d, 1', sSPIN, sSPIN)
    a('s_cbranch_scc0 %s', L)
    a('s_endpgm')
    a.label(D)

def pollflags(loads, tmp, sleep=1):
    L = a.newlabel('pf')
    D = a.newlabel('pfd')
    a.label(L)
    for l in loads:
        a(l)
    a('s_waitcnt vmcnt(0)')
    for i in range(1, len(loads)):
        a('v_and_b32 v%d, v%d, v%d', tmp, tmp, tmp + i)
    a('v_cmp_eq_u32 vcc, 0, v%d', tmp)
    a('s_cbranch_vccz %s', D)
    a('s_mov_b64 exec, vcc')
    if sleep:
        a('s_sleep %d', sleep)
    a('s_sub_u32 s%d, s%d, 1', sSPIN, sSPIN)
    a('s_cbranch_scc0 %s', L)
    a('s_endpgm')
    a.label(D)
    a('s_mov_b64 exec, -1')

def dbgload(va, vd):
    return 'global_load_dword v%d, v%d, s[%d:%d] sc1' % (vd, va, sDBG, sDBG + 1)

def flagaddr(dst, idx, base, t):
    a('s_lshl_b32 s%d, s%d, 7', dst, idx)
    a('s_add_u32 s%d, s%d, 0x%x', dst, dst, base)

def setflag(soff, tmp):
    a('v_mov_b32 v%d, 1', tmp)
    a('s_mov_b64 exec, 1')
    a('buffer_store_dword v%d, off, s[%d:%d], s%d sc1', tmp, RWS, RWS + 3, soff)
    a('s_mov_b64 exec, -1')

def tau(dst, src, t):
    a('v_and_b32 v%d, 0x13, v%d', dst, src)
    a('v_and_b32 v%d, 4, v%d', t, src)
    a('v_lshl_or_b32 v%d, v%d, 1, v%d', dst, t, dst)
    a('v_and_b32 v%d, 8, v%d', t, src)
    a('v_lshrrev_b32 v%d, 1, v%d', t, t)
    a('v_or_b32 v%d, v%d, v%d', dst, t, dst)

def finish(role):
    if OPT['probe'][:1] == role:
        if OPT['probe'][1:] == 'drained':
            a('s_waitcnt vmcnt(0)')
            stamp(role, 'drained')
        a('s_sub_u32 s97, s97, s100')
        a('s_mul_i32 s97, s97, 10')
        a('s_add_u32 s97, s97, 10000')
        if OPT['probewg'] >= 0:
            a('s_and_b32 s98, s2, 31')
            a('s_cmp_eq_u32 s98, %d', OPT['probewg'])
            a('s_cselect_b32 s97, s97, 0')
        L = a.newlabel('pad')
        a.label(L)
        a('s_sleep 4')
        a('s_memrealtime s[98:99]')
        a('s_waitcnt lgkmcnt(0)')
        a('s_sub_u32 s98, s98, s100')
        a('s_cmp_lt_u32 s98, s97')
        a('s_cbranch_scc1 %s', L)
    if OPT['padto']:
        L = a.newlabel('pad')
        a.label(L)
        a('s_sleep 4')
        a('s_memrealtime s[98:99]')
        a('s_waitcnt lgkmcnt(0)')
        a('s_sub_u32 s98, s98, s100')
        a('s_cmp_lt_u32 s98, %d', OPT['padto'])
        a('s_cbranch_scc1 %s', L)
    if DIAG:
        stamp(role, 'end')
        a('s_waitcnt vmcnt(0)')
        stamp(role, 'drained')
        a('s_memrealtime s[98:99]')
        a('s_waitcnt lgkmcnt(0)')
        a('v_writelane_b32 v%d, s98, 31', vTS)
        a('s_lshl_b32 s70, s2, 3')
        a('s_add_u32 s70, s70, s%d', sW)
        if role == 'S':
            a('s_add_u32 s70, s70, 4')
        a('s_lshl_b32 s70, s70, 8')
        a('s_add_u32 s70, s70, 0x%x', WS_DIAG)
        a('v_lshlrev_b32 v0, 2, v%d', vLANE)
        a('buffer_store_dword v%d, v0, s[%d:%d], s70 offen', vTS, RWS, RWS + 3)
    a('s_endpgm')

def prologue():
    a('s_cmp_ge_u32 s2, 256')
    a('s_cbranch_scc0 L_go')
    a('s_endpgm')
    a.label('L_go')
    if OPT['padto'] or DIAG or OPT['probe']:
        a('s_memrealtime s[100:101]')
    a('s_load_dwordx16 s[4:19], s[0:1], 0')
    a('s_load_dwordx8 s[20:27], s[0:1], 64')
    a('s_load_dwordx4 s[28:31], s[0:1], 96')
    a('s_load_dwordx2 s[32:33], s[0:1], 112')
    a('v_lshrrev_b32 v1, 6, v0')
    a('v_and_b32 v%d, 63, v0', vLANE)
    a('v_readfirstlane_b32 s%d, v1', sW)
    a('v_lshlrev_b32 v%d, 2, v0', vPW)
    a('v_add_u32 v%d, %d, v%d', vPW, L_PW, vPW)
    a('v_mov_b32 v1, 0')
    a('ds_write_b32 v%d, v1', vPW)
    a('s_and_b32 s%d, s2, 7', sXCD)
    a('s_lshr_b32 s%d, s2, 3', sI)
    a('s_and_b32 s70, s%d, 3', sI)
    a('s_lshr_b32 s%d, s%d, 2', sOG, sI)
    a('s_lshr_b32 s71, s%d, 1', sXCD)
    a('s_lshl2_add_u32 s%d, s71, s70', sRB)
    a('s_and_b32 s71, s%d, 1', sXCD)
    a('s_lshl3_add_u32 s%d, s71, s%d', sCG, sOG)
    a('s_lshr_b32 s71, s%d, 3', sI)
    a('s_lshl2_add_u32 s%d, s%d, s71', sHD, sXCD)
    a('s_and_b32 s%d, s%d, 7', sQB, sI)
    a('s_lshl2_add_u32 s%d, s%d, s70', sTB, sXCD)
    a('s_mov_b32 s%d, 0x%x', sSPIN, SPIN_MAX)
    a('s_mov_b32 s%d, 0', sHI)
    a('s_mov_b32 s%d, -1', sHI + 1)
    a('s_waitcnt lgkmcnt(0)')
    srd(RWS, sWS, WS_END if not DIAG else WS_DIAG + 0x100000)
    if DIAG:
        a('v_mov_b32 v%d, 0', vTS)
        a('v_writelane_b32 v%d, s100, 30', vTS)
    a('s_cmp_ge_u32 s%d, 4', sW)
    a('s_cbranch_scc1 L_roleS')

def stagger(k, t, add):
    a('s_and_b32 s%d, s%d, 3', k, sI)
    a('s_mul_i32 s%d, s%d, 5', k, k)
    a('s_lshr_b32 s%d, s%d, 1', k, k)
    a('s_mul_i32 s%d, s%d, 5', t, sOG)
    a('s_lshr_b32 s%d, s%d, 2', t, t)
    a('s_add_u32 s%d, s%d, s%d', k, k, t)
    a('s_add_u32 s%d, s%d, %d', t, sXCD, 1 + 2 * add)
    a('s_lshr_b32 s%d, s%d, 1', t, t)
    a('s_add_u32 s%d, s%d, s%d', k, k, t)
    for _ in range(2 if add else 1):
        a('s_cmp_ge_u32 s%d, 10', k)
        a('s_cselect_b32 s%d, 10, 0', t)
        a('s_sub_u32 s%d, s%d, s%d', k, k, t)

def b1_sources(rx, rb, vx, vb, sm, sb, t):
    srd(rx, sBX, 2048 * 1280)
    a('s_cmp_ge_u32 s%d, 2', sW)
    a('s_cselect_b32 s%d, s%d, s%d', t, sBIM, sBRE)
    a('s_cselect_b32 s%d, s%d, s%d', t + 1, sBIM + 1, sBRE + 1)
    srd(rb, t, 640 * 1280)
    a('v_lshrrev_b32 v1, 3, v%d', vLANE)
    a('v_and_b32 v2, 7, v%d', vLANE)
    a('v_lshrrev_b32 v3, 4, v%d', vLANE)
    a('v_xor_b32 v4, v2, v3')
    a('v_and_b32 v5, 3, v1')
    a('v_lshrrev_b32 v6, 2, v1')
    a('v_lshl_add_u32 v5, v6, 3, v5')
    a('v_mul_u32_u24 v5, 1280, v5')
    a('v_lshl_add_u32 v%d, v4, 4, v5', vx)
    a('v_xor_b32 v6, 64, v%d', vx)
    a('v_add_u32 v%d, %d, v6', vx + 1, 16 * 1280 - 1024)
    a('v_add_u32 v%d, %d, v%d', vx + 2, 4 * 1280 - 2048, vx)
    a('v_add_u32 v%d, %d, v6', vx + 3, 20 * 1280 - 3072)
    a('s_lshr_b32 s%d, s%d, 1', t, sW)
    a('s_lshl_b32 s%d, s%d, 6', t + 1, t)
    a('v_mul_u32_u24 v5, 1280, v1')
    a('v_lshl_add_u32 v5, v4, 4, v5')
    a('v_xor_b32 v%d, s%d, v5', vb, t + 1)
    for i in range(1, 3):
        a('v_add_u32 v%d, %d, v%d', vb + i, (10240 - 1024) * i, vb)
    a('s_and_b32 s%d, s%d, 1', t + 1, sW)
    a('s_mul_i32 s%d, s%d, 5120', sm, t)
    a('s_lshl_b32 s%d, s%d, 11', sb, t + 1)
    a('s_add_u32 s%d, s%d, s%d', sm, sm, sb)
    a('s_mul_i32 s%d, s%d, %d', sb, sCG, 40 * 1280)
    a('s_mul_i32 s%d, s%d, %d', t + 1, t + 1, 16 * 1280)
    a('s_add_u32 s%d, s%d, s%d', sb, sb, t + 1)

def dma(voff, r, soff, imm):
    return 'buffer_load_dwordx4 v%d, s[%d:%d], s%d offen offset:%d lds' % (voff, r, r + 3, soff, imm)

def a_b1stage(t):
    slot = (t % 4) * 32768
    a('s_add_u32 m0, s6, %d', slot)
    a('s_lshl_b32 s9, s8, 7')
    a('s_add_u32 s12, s4, s9')
    for i in range(4):
        a(dma(112 + i, R5, 12, 1024 * i))
    a('s_add_u32 m0, s7, %d', slot + 16384)
    a('s_add_u32 s12, s5, s9')
    for i in range(3):
        a(dma(116 + i, R6, 12, 1024 * i))
    a('s_add_u32 s8, s8, 1')
    a('s_cmp_eq_u32 s8, 10')
    a('s_cselect_b32 s8, 0, s8')

sTW, sCW = 72, 73
vXA, vWA = 96, 104
vF1A = 252
vAPW = 249

def a_setup():
    a.label('L_roleA')
    stamp('A', 'start')
    a('s_lshr_b32 s%d, s%d, 1', sTW, sW)
    a('s_and_b32 s%d, s%d, 1', sCW, sW)
    a('s_lshl1_add_u32 s75, s%d, s%d', sRB, sTW)
    a('s_mul_i32 s74, s75, %d', BLK)
    if OPT['codepre']:
        a.c('pull the code into L2: each wave of an XCD touches a few lines')
        a('s_getpc_b64 s[76:77]')
        a('s_lshl2_add_u32 s78, s%d, s%d', sI, sW)
        a('s_mul_i32 s78, s78, 3')
        a('v_min_u32 v1, 2, v%d', vLANE)
        a('v_add_u32 v1, s78, v1')
        a('v_min_u32 v1, (L_codeend - L_roleA) / 128 - 1, v1')
        a('v_lshlrev_b32 v1, 7, v1')
        a('global_load_dword v110, v1, s[76:77]')
    a.c('constant blocks + flag clearing (column group 15 has no GEMM tile)')
    a('s_cmp_eq_u32 s%d, 15', sCG)
    a('s_cbranch_scc0 L_noconst')
    a('s_cmp_eq_u32 s%d, 0', sW)
    a('s_cbranch_scc0 L_noconst')
    a('v_lshlrev_b32 v1, 4, v%d', vLANE)
    for i in range(4):
        a('v_mov_b32 v%d, 0', 4 + i)
    a('s_mul_i32 s76, s%d, 0x5000', sRB)
    a('s_add_u32 s76, s76, 0x%x', WS_F)
    for j in range(5):
        for i in range(4):
            a('buffer_store_dwordx4 v[4:7], v1, s[%d:%d], s76 offen offset:%d sc1', RWS, RWS + 3, 1024 * i)
        a('s_add_u32 s76, s76, 4096')
    for i in range(4):
        a('v_mov_b32 v%d, -1', 20 + i)
    a('s_lshl_b32 s76, s%d, 13', sRB)
    a('s_add_u32 s76, s76, 0x%x', WS_E)
    for j in range(2):
        for i in range(4):
            a('buffer_store_dwordx4 v[20:23], v1, s[%d:%d], s76 offen offset:%d sc1', RWS, RWS + 3, 1024 * i)
        a('s_add_u32 s76, s76, 4096')
    a('v_mov_b32 v8, 0x3f803f80')
    a('v_mov_b32 v9, 0')
    a('v_mov_b32 v10, v8')
    a('v_mov_b32 v11, 0')
    for i in range(4):
        a('v_mov_b32 v%d, v8', 12 + i)
    a('v_lshrrev_b32 v2, 3, v%d', vLANE)
    a('v_mul_u32_u24 v2, %d, v2', VROW)
    a('v_and_b32 v3, 7, v%d', vLANE)
    a('v_lshl_add_u32 v2, v3, 4, v2')
    for b in range(2):
        a('s_add_u32 s76, s74, %d', 160 * 1024 + b * BLK)
        a('buffer_store_dwordx4 v[8:11], v1, s[%d:%d], s76 offen sc1', RWS, RWS + 3)
        a('s_add_u32 s76, s74, %d', VOFF + 640 * 16 + b * BLK)
        a('buffer_store_dwordx4 v[12:15], v2, s[%d:%d], s76 offen sc1', RWS, RWS + 3)
    a('s_lshl_b32 s76, s%d, 2', sRB)
    a('v_mov_b32 v16, s76')
    a('v_mov_b32 v17, 1')
    a('s_waitcnt vmcnt(0)')
    a('s_mov_b64 exec, 1')
    a('global_store_dword v16, v17, s[%d:%d] sc1', sDBG, sDBG + 1)
    a('s_mov_b64 exec, -1')
    if OPT['mallpre']:
        a('v_lshlrev_b32 v1, 7, v%d', vLANE)
        srd(R3, sBRE, 640 * 1280)
        srd(R4, sBIM, 640 * 1280)
        srd(R5, sBX, 2048 * 1280)
        a('v_min_u32 v2, %d, v1', 39 * 128)
        a('s_mul_i32 s76, s%d, 51200', sRB)
        a('s_mul_i32 s77, s%d, 163840', sRB)
        for k in range(OPT['mallpre']):
            a('buffer_load_dword v111, v2, s[%d:%d], s76 offen', R3, R3 + 3)
            a('buffer_load_dword v111, v2, s[%d:%d], s76 offen', R4, R4 + 3)
            a('buffer_load_dword v111, v1, s[%d:%d], s77 offen', R5, R5 + 3)
            a('s_add_u32 s77, s77, 8192')
            a('s_add_u32 s76, s76, %d', 40 * 128)
            a('buffer_load_dword v111, v1, s[%d:%d], s77 offen', R5, R5 + 3)
            a('s_add_u32 s77, s77, 8192')
    a.label('L_noconst')
    a.c('LDS fragment addresses for the QKV GEMM')
    a('v_and_b32 v1, 31, v%d', vLANE)
    a('v_lshrrev_b32 v2, 5, v%d', vLANE)
    a('v_bfe_u32 v3, v1, 1, 3')
    a('v_xor_b32 v3, v3, v2')
    a('v_lshlrev_b32 v3, 4, v3')
    a('v_lshl_add_u32 v3, v1, 7, v3')
    a('s_lshl_b32 s76, s%d, 13', sTW)
    a('v_add_u32 v3, s76, v3')
    for ks in range(4):
        a('v_xor_b32 v%d, %d, v3', vXA + ks, ks << 5)
        a('v_add_u32 v%d, 0x10000, v%d', vXA + 4 + ks, vXA + ks)
    a('v_bfe_u32 v4, v%d, 2, 2', vLANE)
    a('v_lshl_add_u32 v5, v2, 3, v4')
    a('v_lshlrev_b32 v5, 8, v5')
    a('v_bfe_u32 v6, v%d, 4, 1', vLANE)
    a('v_and_b32 v7, 1, v%d', vLANE)
    a('v_lshl_add_u32 v6, v6, 1, v7')
    a('s_lshl_b32 s76, s%d, 3', sCW)
    a('v_add_u32 v6, s76, v6')
    a('v_lshlrev_b32 v4, 2, v4')
    a('v_xor_b32 v6, v6, v4')
    a('v_lshl_add_u32 v5, v6, 4, v5')
    a('v_bfe_u32 v7, v%d, 1, 1', vLANE)
    a('v_lshl_add_u32 v5, v7, 3, v5')
    a('v_add_u32 v%d, 16384, v5', vWA)
    a('v_xor_b32 v%d, 64, v%d', vWA + 1, vWA)
    a('v_add_u32 v%d, 0x10000, v%d', vWA + 2, vWA)
    a('v_add_u32 v%d, 0x10000, v%d', vWA + 3, vWA + 1)

def a_qloop(vt):
    F = [64, 80]
    def reads(st, ks, f):
        slot = st % 4
        hi, lo = slot >> 1, (slot & 1) * 32768
        r = []
        for T in range(2):
            r.append('ds_read_b128 %s, v%d offset:%d' % (v(f + 4 * T, 4), vXA + 4 * hi + ks, lo + 4096 * T))
        for Tc in range(2):
            for rd in range(2):
                r.append('ds_read_b64_tr_b16 %s, v%d offset:%d' % (v(f + 8 + 4 * Tc + 2 * rd, 2), vWA + 2 * hi + Tc,
                                                                  lo + (16 * ks + 4 * rd) * 256))
        return [r[0], r[2], r[3], r[1], r[4], r[5]]
    def mfma(f, i, j, first):
        acc = (2 * i + j) * 16
        A = f + 4 * i if vt else f + 8 + 4 * i
        B = f + 8 + 4 * j if vt else f + 4 * j
        return 'v_mfma_f32_32x32x16_bf16 %s, %s, %s, %s' % (v(acc, 16), v(A, 4), v(B, 4), '0' if first else v(acc, 16))
    a('s_barrier')
    for r in reads(0, 0, F[0]):
        a(r)
    for st in range(10):
        for ks in range(4):
            cur, nxt = F[ks & 1], F[(ks + 1) & 1]
            first = st == 0 and ks == 0
            a('s_waitcnt lgkmcnt(0)')
            if ks == 3:
                a('s_barrier')
                rr = reads(st + 1, 0, nxt) if st < 9 else []
            else:
                rr = reads(st, ks + 1, nxt)
            a(mfma(cur, 0, 0, first))
            for r in rr[:3]:
                a(r)
            a(mfma(cur, 0, 1, first))
            for r in rr[3:]:
                a(r)
            a(mfma(cur, 1, 0, first))
            a(mfma(cur, 1, 1, first))

def a_pack_wo():
    a('s_lshl2_add_u32 s76, s%d, s%d', sRB, sW)
    a('s_mul_i32 s77, s76, 12800')
    a('s_add_u32 s78, s14, s77')
    a('s_addc_u32 s79, s15, 0')
    a('s_mul_i32 s76, s76, 10')
    a('s_mov_b32 s80, 0x%x', WS_WP)
    for n in range(13):
        a('v_add_u32 v60, %d, v%d', 64 * n, vLANE)
        if n == 12:
            a('v_min_u32 v60, 799, v60')
        a('v_lshlrev_b32 v61, 4, v60')
        a('global_load_dwordx4 %s, v61, s[78:79]', v(4 * n, 4))
        a('v_mul_u32_u24 v61, 820, v60')
        a('v_lshrrev_b32 v61, 16, v61')
        a('v_mul_u32_u24 v62, 80, v61')
        a('v_sub_u32 v60, v60, v62')
        a('v_add_u32 v61, s76, v61')
        a('v_mul_u32_u24 v62, 6554, v60')
        a('v_lshrrev_b32 v62, 16, v62')
        a('v_mul_u32_u24 v62, %d, v62', 6400 - 10)
        a('v_add_u32 v60, v60, v62')
        a('v_and_b32 v62, 0xfff3, v61')
        a('v_and_b32 v63, 4, v61')
        a('v_lshl_or_b32 v62, v63, 1, v62')
        a('v_bfe_u32 v63, v61, 3, 1')
        a('v_lshl_or_b32 v62, v63, 2, v62')
        a('v_mul_u32_u24 v62, 10, v62')
        a('v_add_lshl_u32 v%d, v60, v62, 4', 64 + n)
    for n in range(13):
        a('s_waitcnt vmcnt(12)')
        a('buffer_store_dwordx4 %s, v%d, s[%d:%d], s80 offen sc1', v(4 * n, 4), 64 + n, RWS, RWS + 3)
    if OPT['wopack'] > 1:
        a('v_min_u32 v60, 49, v%d', vLANE)
        a('v_lshl_add_u32 v60, v60, 7, s77')
        a('v_add_u32 v61, 6400, v60')
        for p in (sCRE, sCIM):
            a('global_load_dword v111, v60, s[%d:%d]', p, p + 1)
            a('global_load_dword v111, v61, s[%d:%d]', p, p + 1)

def a_qphase():
    a('s_cmp_ge_u32 s%d, 10', sCG)
    a('s_cbranch_scc1 L_qV')
    a_qloop(False)
    stamp('A', 'qloop')
    a('v_and_b32 v98, 31, v%d', vLANE)
    a('v_lshrrev_b32 v97, 5, v%d', vLANE)
    a('v_lshlrev_b32 v98, 4, v98')
    a('v_lshl_add_u32 v96, v97, 10, v98')
    a('s_lshl1_add_u32 s76, s%d, s%d', sCG, sCW)
    a('s_lshl_b32 s77, s76, 13')
    a('s_add_u32 s77, s77, s74')
    a('s_add_u32 s78, s77, 4096')
    a('s_mul_i32 s79, s%d, 3', sCW)
    a('s_add_u32 s79, s79, s%d', sCG)
    for _ in range(2):
        a('s_cmp_ge_u32 s79, 5')
        a('s_cselect_b32 s80, 5, 0')
        a('s_sub_u32 s79, s79, s80')
    a('s_cmp_ge_u32 s%d, 5', sCG)
    a('s_cbranch_scc1 L_noscale')
    c0 = f2u(math.log2(math.e) / math.sqrt(20.0))
    a('s_mov_b32 s80, 0x%x', c0)
    a('s_mov_b32 s81, s80')
    for i in range(0, 64, 2):
        a('v_pk_mul_f32 %s, %s, s[80:81]', v(i, 2), v(i, 2))
    a.label('L_noscale')
    for Tc in range(2):
        for u in range(2):
            P = 64 + 8 * (2 * Tc + u)
            for T in range(2):
                acc = (2 * Tc + T) * 16 + 8 * u
                for q in range(4):
                    a('v_cvt_pk_bf16_f32 v%d, v%d, v%d', P + 4 * T + q, acc + 2 * q, acc + 2 * q + 1)
            a('s_cmp_eq_u32 s79, %d', (2 - 4 * Tc - 2 * u) % 5)
            a('s_cselect_b32 exec_lo, -1, 0')
            a('s_cmp_eq_u32 s79, %d', (1 - 4 * Tc - 2 * u) % 5)
            a('s_cselect_b32 exec_hi, -1, 0')
            a('v_swap_b32 v%d, v%d', P + 2, P + 4)
            a('v_swap_b32 v%d, v%d', P + 3, P + 5)
            a('s_mov_b64 exec, -1')
            for T in range(2):
                a('buffer_store_dwordx4 %s, v96, s[%d:%d], s%d offen offset:%d sc1', v(P + 4 * T, 4), RWS, RWS + 3,
                  77 + Tc, 2048 * u + 512 * T)
    a('s_branch L_qdone')
    a.label('L_qV')
    a('s_cmp_eq_u32 s%d, 15', sCG)
    a('s_cbranch_scc0 L_qV2')
    a('s_barrier')
    if OPT['wopack']:
        a_pack_wo()
    for _ in range(10):
        a('s_barrier')
    if DIAG:
        nstamp['A'].pop()
    stamp('A', 'qloop')
    a('s_branch L_qdone')
    a.label('L_qV2')
    a_qloop(True)
    if DIAG:
        nstamp['A'].pop()
    stamp('A', 'qloop')
    a('s_lshl1_add_u32 s76, s%d, s%d', sCG, sCW)
    a('s_nop 1')
    a('v_and_b32 v98, 31, v%d', vLANE)
    tau(96, 98, 97)
    a('v_lshrrev_b32 v97, 5, v%d', vLANE)
    a('v_mul_u32_u24 v97, %d, v97', VROW)
    a('v_lshl_add_u32 v96, v96, 4, v97')
    a('s_sub_u32 s77, s76, 20')
    a('s_lshl_b32 s77, s77, 10')
    a('s_add_u32 s77, s77, s74')
    a('s_add_u32 s77, s77, %d', VOFF)
    n = 0
    for T in range(2):
        for m in range(2):
            for Tc in range(2):
                P = 64 + 4 * n
                n += 1
                acc = (2 * T + Tc) * 16 + 8 * m
                for q in range(4):
                    a('v_cvt_pk_bf16_f32 v%d, v%d, v%d', P + q, acc + 2 * q, acc + 2 * q + 1)
                a('buffer_store_dwordx4 %s, v96, s[%d:%d], s77 offen offset:%d sc1', v(P, 4), RWS, RWS + 3, 512 * Tc)
            if (T, m) != (1, 1):
                a('s_add_u32 s77, s77, %d', 2 * VROW)
    a.label('L_qdone')

vO, vS = 0, 64
KV = [128, 156]
K1A, K1B, K2, VA0, VA1, VB0, VB1 = 0, 4, 8, 12, 16, 20, 24
vQ1, vQ2 = 184, 200
vK1, vK2, vV, vIDX, vNC, vM = 208, 209, 210, 214, 216, 220
vT = 224
vMG = 240
sQH, sKH, sODD, sP5, sOFF, sKV0, sPASS, sCNT = 76, 77, 78, 79, 80, 93, 82, 83
sKVB, sKVE = 70, 71

def a_att_setup():
    a('s_and_b32 s%d, s%d, 1', sQH, sW)
    a('s_lshr_b32 s%d, s%d, 1', sKH, sW)
    a('s_and_b32 s%d, s%d, 1', sODD, sHD)
    a('s_lshr_b32 s85, s%d, 1', sHD)
    a('s_mul_i32 s%d, s85, 5', sP5)
    a('s_mul_i32 s%d, s%d, %d', sKVB, sKH, 16 * BLK)
    a('s_add_u32 s%d, s%d, %d', sKVE, sKVB, 16 * BLK)
    a('s_mul_i32 s86, s%d, %d', sQB, 2 * BLK * OPT['rot'])
    a('s_add_u32 s%d, s%d, s86', sKV0, sKVB)
    srd(R3, sWS, 32 * BLK)
    srd(R4, sOUT, 2048 * 1280 * 4)
    a('s_mov_b32 s%d, 0', sPASS)
    i, h, t, x = vT, vT + 1, vT + 2, vT + 3
    a('v_and_b32 v%d, 31, v%d', i, vLANE)
    a('v_lshrrev_b32 v%d, 5, v%d', h, vLANE)
    tau(t, i, x)
    a('s_mul_i32 s86, s%d, 3', sODD)
    a('s_add_u32 s86, s86, s%d', sP5)
    a('s_lshl_b32 s87, s86, 10')
    a('v_lshl_add_u32 v%d, v%d, 10, s87', x, h)
    a('v_lshl_add_u32 v%d, v%d, 4, v%d', vT + 4, i, x)
    a('v_lshl_add_u32 v%d, v%d, 4, v%d', vK1, t, x)
    a('v_add_u32 v%d, %d, v%d', vK1, 80 * 1024, vK1)
    a('s_add_u32 s87, s%d, 2', sP5)
    a('s_lshl1_add_u32 s87, s87, s%d', sODD)
    a('s_lshl_b32 s87, s87, 9')
    a('v_lshl_add_u32 v%d, v%d, 4, s87', vT + 5, i)
    a('v_mov_b32 v%d, 0x%x', x, OOB)
    a('v_cndmask_b32 v%d, v%d, v%d, s[%d:%d]', vT + 5, vT + 5, x, sHI, sHI + 1)
    a('s_add_u32 s87, s87, %d', 80 * 1024)
    a('v_mov_b32 v%d, s87', vK2)
    a('v_mov_b32 v%d, %d', x, 160 * 1024)
    a('v_cndmask_b32 v%d, v%d, v%d, s[%d:%d]', vK2, vK2, x, sHI, sHI + 1)
    a('v_lshl_add_u32 v%d, v%d, 4, v%d', vK2, t, vK2)
    a('s_mul_i32 s86, s%d, 20', sHD)
    a('s_lshl2_add_u32 s87, s%d, s86', sODD)
    a('s_lshl_b32 s88, s%d, 4', sODD)
    a('s_sub_u32 s88, s86, s88')
    a('v_add_u32 v%d, s87, v%d', vV, t)
    a('v_add_u32 v%d, s88, v%d', x, i)
    a('v_cmp_le_u32 vcc, 16, v%d', i)
    a('v_add_u32 v%d, 620, v%d', vT + 6, i)
    a('s_nop 0')
    a('v_cndmask_b32 v%d, v%d, v%d, vcc', vV, vV, x)
    a('v_cmp_le_u32 vcc, 20, v%d', i)
    a('v_mul_u32_u24 v%d, %d, v%d', x, VROW, h)
    a('v_add_u32 v%d, %d, v%d', x, VOFF, x)
    a('v_cndmask_b32 v%d, v%d, v%d, vcc', vV, vV, vT + 6)
    a('v_lshl_add_u32 v%d, v%d, 4, v%d', vV, vV, x)
    a('v_cmp_le_u32 vcc, 24, v%d', i)
    a('v_mov_b32 v%d, 0x%x', x, OOB)
    a('v_mov_b32 v%d, 0xdddd', vIDX)
    a('v_cndmask_b32 v%d, v%d, v%d, vcc', vV, vV, x)
    for k in range(1, 4):
        a('v_add_u32 v%d, %d, v%d', vV + k, 2 * VROW * k, vV)
    a('s_mul_i32 s87, s85, 40')
    a('s_lshl4_add_u32 s87, s%d, s87', sODD)
    a('s_add_u32 s88, s87, 23')
    a('s_lshr_b32 s87, s87, 7')
    a('s_lshr_b32 s88, s88, 7')
    a('s_add_u32 s89, s86, 19')
    a('s_lshr_b32 s86, s86, 7')
    a('s_lshr_b32 s89, s89, 7')
    a('v_lshrrev_b32 v%d, 4, v%d', x, vLANE)
    a('s_add_u32 s90, s87, 5')
    a('v_mov_b32 v%d, s90', vF1A)
    for sel, (reg, add) in enumerate(((88, 5), (86, 10), (89, 10))):
        a('s_add_u32 s90, s%d, %d', reg, add)
        a('v_cmp_eq_u32 vcc, %d, v%d', sel + 1, x)
        a('v_mov_b32 v%d, s90', vT + 6)
        a('s_nop 0')
        a('v_cndmask_b32 v%d, v%d, v%d, vcc', vF1A, vF1A, vT + 6)
    a('v_and_b32 v%d, 15, v%d', vT + 6, vLANE)
    a('v_lshl_add_u32 v%d, v%d, 4, v%d', vF1A, vF1A, vT + 6)
    a('v_lshlrev_b32 v%d, 7, v%d', vF1A, vF1A)
    a('v_mov_b32 v%d, s87', vF1A - 1)
    a('v_mov_b32 v%d, s88', vT + 6)
    a('v_cndmask_b32 v%d, v%d, v%d, s[%d:%d]', vF1A - 1, vF1A - 1, vT + 6, sHI, sHI + 1)
    a('v_bfe_u32 v%d, v%d, 4, 1', vT + 6, vLANE)
    a('v_lshl_add_u32 v%d, v%d, 4, v%d', vF1A - 1, vF1A - 1, vT + 6)
    a('s_lshl_b32 s90, s%d, 1', sQB)
    a('v_add_lshl_u32 v%d, v%d, s90, 7', vF1A - 1, vF1A - 1)
    a('v_and_b32 v%d, 3, v%d', vAPW, vLANE)
    a('v_lshlrev_b32 v%d, 8, v%d', vAPW, vAPW)
    a('v_lshlrev_b32 v%d, 2, v%d', vAPW + 1, vLANE)
    a('v_add_u32 v%d, %d, v%d', vAPW + 1, L_PW, vAPW + 1)
    a('v_add_u32 v%d, v%d, v%d', vAPW, vAPW, vAPW + 1)
    a('s_lshl1_add_u32 s90, s%d, s%d', sQB, sQH)
    a('s_lshl1_add_u32 s90, s90, s%d', sKH)
    a('s_mul_i32 s91, s90, %d', BLK)
    a('s_xor_b32 s92, s90, 1')
    a('s_mul_i32 s92, s92, %d', BLK)
    a('s_mul_i32 s36, s%d, %d', sW, REGSZ)
    a('s_add_u32 s36, s36, %d', L_REG + 8192)
    a('s_xor_b32 s37, s%d, 2', sW)
    a('s_mul_i32 s37, s37, %d', REGSZ)
    a('s_add_u32 s37, s37, %d', L_REG + 8192)
    a('v_lshl_add_u32 v%d, v%d, 4, s36', vMG, vLANE)
    a('v_lshl_add_u32 v%d, v%d, 3, s36', vMG + 1, vLANE)
    a('v_lshl_add_u32 v%d, v%d, 4, s37', vMG + 2, vLANE)
    a('v_lshl_add_u32 v%d, v%d, 3, s37', vMG + 3, vLANE)
    a('v_xor_b32 v%d, 512, v%d', vMG + 4, vPW)
    a('v_add_u32 v%d, 1024, v%d', vMG + 5, vAPW)
    a('v_bfe_u32 v%d, v%d, 4, 1', x, vLANE)
    a('v_mul_u32_u24 v%d, %d, v%d', x, OBLK, x)
    a('v_and_b32 v%d, 15, v%d', t, vLANE)
    a('v_lshl_add_u32 v%d, v%d, 4, v%d', x, t, x)
    a('v_mul_u32_u24 v%d, %d, v%d', t, 2 * OBLK, h)
    a('v_add_u32 v%d, v%d, v%d', vMG + 7, t, x)
    a('v_lshl_add_u32 v%d, v%d, 8, v%d', vMG + 6, h, x)
    a('s_mul_i32 s40, s90, %d', 4 * OBLK)
    a('s_add_u32 s40, s40, 0x%x', WS_O)
    a('s_lshl_b32 s41, s%d, 8', sP5)
    a('s_add_u32 s40, s40, s41')
    a('s_mul_i32 s41, s%d, 768', sODD)
    a('s_add_u32 s41, s41, s40')
    a('s_add_u32 s42, s41, %d', 2 * OBLK)
    a('s_lshl3_add_u32 s40, s%d, s40', sODD)
    a('s_lshl_b32 s43, s90, 5')
    a('s_add_u32 s43, s43, s%d', sHD)
    flagaddr(43, 43, F4, 0)
    a('s_mov_b64 s[14:15], s[%d:%d]', sWO, sWO + 1)
    b1_sources(R5, R6, 112, 116, 7, 5, 12)
    a('s_lshl2_add_u32 s4, s%d, s%d', sRB, sW)
    a('s_mul_i32 s4, s4, %d', 32 * 1280)
    a('s_lshl_b32 s6, s%d, 12', sW)
    stagger(8, 9, OPT['st10'])

def a_handoff():
    first = 10 + OPT['st10']
    nst = 8
    for t in range(10, first):
        a('s_barrier')
        if t == 10:
            for i_ in range(64):
                a('v_mov_b32 v%d, 0', vO + i_)
    a_b1stage(first)
    a_b1stage(first + 1)
    lds_ = ['buffer_load_dword v%d, v%d, s[%d:%d], s85 offen sc1' % (104 + k, vF1A - k, RWS, RWS + 3) for k in range(2)]
    a('s_mov_b32 s85, 0x%x', F1)
    for t in range(first, 20):
        a('s_waitcnt vmcnt(%d)', 7 if t < 19 else 0)
        if t == first:
            stamp('A', 'qdrain')
        if t == 19:
            a('s_cmp_eq_u32 s%d, 0', sW)
            a('s_cbranch_scc0 L_c19')
            a('v_and_b32 v104, v104, v105')
            a('v_cmp_eq_u32 vcc, 0, v104')
            a('s_cbranch_vccnz L_c19')
            setpw(4, 102)
            a('s_waitcnt lgkmcnt(0)')
            a.label('L_c19')
        a('s_barrier')
        if t + 2 <= 19:
            a_b1stage(t + 2)
        if t == OPT['pollat']:
            a('s_cmp_eq_u32 s%d, 0', sW)
            a('s_cbranch_scc0 L_nopoll')
            for l in lds_:
                a(l)
            a.label('L_nopoll')
    stamp('A', 'b1load')
    a('s_cmp_eq_u32 s%d, 0', sW)
    a('s_cbranch_scc0 L_f1wait')
    a('s_cbranch_vccz L_f1go')
    a('s_mov_b64 exec, vcc')
    pollflags(lds_, 104, sleep=OPT['psleep'])
    setpw(4, 102)
    a.label('L_f1wait')
    waitpw(vAPW + 1, 4, 102, sleep=1)
    a.label('L_f1go')
    stamp('A', 'f1')

def kvload(st, what, soff):
    if what in (K1A, K1B):
        r = KV[st] + what
        return 'buffer_load_dwordx4 %s, v%d, s[%d:%d], s%d offen offset:%d sc1' % (v(r, 4), vK1, R3, R3 + 3, soff, 512 if what == K1B else 0)
    if what in ('2A', '2B'):
        tl = what == '2B'
        return 'buffer_load_dwordx2 %s, v%d, s[%d:%d], s%d offen offset:%d sc1' % (v(KV[st] + K2 + 2 * tl, 2), vK2, R3, R3 + 3, soff, 8 * tl)
    r = KV[st] + what
    if what == K2:
        return 'buffer_load_dwordx4 %s, v%d, s[%d:%d], s%d offen sc1' % (v(r, 4), vK2, R3, R3 + 3, soff)
    return 'buffer_load_dwordx4 %s, v%d, s[%d:%d], s%d offen sc1' % (v(r, 4), vV + (what - VA0) // 4, R3, R3 + 3, soff)

def qk1(st, tile, qt, sb):
    return 'v_mfma_f32_32x32x16_bf16 %s, %s, %s, 0' % (v(vS + 16 * sb, 16), v(KV[st] + (K1B if tile else K1A), 4), v(vQ1 + 4 * qt, 4))

def qk2(st, tile, qt, sb):
    return 'v_mfma_f32_32x32x8bf16_1k %s, %s, %s, %s' % (v(vS + 16 * sb, 16), v(KV[st] + K2 + 2 * tile, 2), v(vQ2 + 2 * qt, 2), v(vS + 16 * sb, 16))

def pv(st, tile, qt, m):
    return 'v_smfmac_f32_32x32x32_bf16 %s, %s, %s, v%d' % (v(vO + 16 * qt, 16), v(KV[st] + VA0 + 8 * tile + 4 * m, 4), v(vS + 16 * qt + 8 * m, 8), vIDX)

def maxtree(dst, src, acc):
    if acc:
        a('v_max3_f32 v%d, v%d, v%d, v%d', dst, dst, src, src + 1)
    else:
        a('v_max_f32 v%d, v%d, v%d', dst, src, src + 1)
    for k in range(2, 16, 2):
        a('v_max3_f32 v%d, v%d, v%d, v%d', dst, dst, src + k, src + k + 1)

def a_attention():
    for lp in range(2):
        for T in range(2):
            a('buffer_load_dwordx4 %s, v%d, s[%d:%d], s%d offen offset:%d sc1', v(vQ1 + 8 * lp + 4 * T, 4), vT + 4, RWS, RWS + 3, 91 + lp, 512 * T)
    for lp in range(2):
        a('buffer_load_dwordx4 %s, v%d, s[%d:%d], s%d offen sc1', v(vQ2 + 4 * lp, 4), vT + 5, RWS, RWS + 3, 91 + lp)
    a.label('L_attload')
    a('s_mov_b32 s%d, 0x40000000', sCNT)
    a('s_add_u32 s%d, s%d, %d', sOFF, sKV0, BLK)
    for w_ in (K1A, K2):
        a(kvload(0, w_, sKV0))
    for i in range(4):
        a('v_mov_b32 v%d, 0', KV[1] + VB1 + i)
    if OPT['kvsplit']:
        a('s_waitcnt vmcnt(%d)', OPT['kvsplit'] - 1)
    for w_ in (VA0, VA1, K1B, VB0, VB1):
        a(kvload(0, w_, sKV0))
    for w_ in ((K1A, '2A', VA0, VA1, K1B, '2B') if OPT['k2split'] else (K1A, VA0, VA1, K1B, K2)):
        a(kvload(1, w_, sOFF))
    a('s_waitcnt vmcnt(%d)', 10 + OPT['k2split'])
    stamp('A', 'qkload')
    a('s_cmp_eq_u32 s%d, 0', sPASS)
    a('s_cbranch_scc0 L_setc')
    a.c('stand-in for the row maximum: the maximum over the first key tile (checked after the loop)')
    def tree(qt):
        src = vS + 16 * qt
        return ['v_max_f32 v%d, v%d, v%d' % (vM + qt, src, src + 1)] + \
               ['v_max3_f32 v%d, v%d, v%d, v%d' % (vM + qt, vM + qt, src + k, src + k + 1) for k in range(2, 16, 2)]
    for qt in range(3):
        a(qk1(0, 0, qt, qt))
        a(qk2(0, 0, qt, qt))
    a(qk1(0, 0, 3, 3))
    a('s_nop 6')
    for o in tree(0)[:4]:
        a(o)
    a(qk2(0, 0, 3, 3))
    for o in tree(0)[4:] + tree(1) + tree(2) + tree(3):
        a(o)
    a.label('L_setc')
    for qt in range(4):
        a('v_mov_b32 v%d, v%d', vT + 8 + qt, vM + qt)
    for qt in range(4):
        a('v_permlane32_swap_b32 v%d, v%d', vM + qt, vT + 8 + qt)
    for qt in range(4):
        a('v_min_f32 v%d, -v%d, -v%d', vM + qt, vM + qt, vT + 8 + qt)
    for qt in range(4):
        a('v_cvt_pk_bf16_f32 v%d, v%d, v%d', vT + 8 + qt, vM + qt, vM + qt)
    for qt in range(4):
        a('v_and_b32 v%d, 0xffff0000, v%d', vT + 8 + qt, vT + 8 + qt)
    for qt in range(4):
        a('v_sub_f32 v%d, v%d, v%d', vM + qt, vM + qt, vT + 8 + qt)
    for qt in range(4):
        a('v_cvt_pk_bf16_f32 v%d, v%d, v%d', vM + qt, vT + 8 + qt, vM + qt)
    for qt in range(4):
        a('v_cndmask_b32 v%d, v%d, v%d, s[%d:%d]', vQ2 + 2 * qt, vQ2 + 2 * qt, vM + qt, sHI, sHI + 1)
    a(qk1(0, 0, 0, 0))
    a(qk2(0, 0, 0, 0))
    for qt in range(4):
        a('v_and_b32 v%d, 0xffff0000, v%d', vM + qt, vM + qt)
    for qt in range(4):
        a('v_add_f32 v%d, v%d, v%d', vNC + qt, vM + qt, vT + 8 + qt)
    for i in range(8):
        a('v_mov_b32 v%d, 0', vS + 48 + 8 + i)
    a('s_waitcnt vmcnt(%d)', 9 if OPT['k2split'] else 7)
    setpw(5, vT + 8)
    stamp('A', 'attpro')
    if OPT['fine'] == 3:
        base = len(nstamp['A'])
        nstamp['A'] += ['it%d' % i for i in range(16)]
        a('s_mov_b32 s24, %d', base)
    a('.p2align 6')
    a.label('L_attloop')
    for st in range(2):
        for n in range(8):
            tile, qt = n >> 2, n & 3
            nst, ntile, nqt = (st, (n + 1) >> 2, (n + 1) & 3) if n < 7 else (st ^ 1, 0, 0)
            pst, ptile, pqt = (st, (n - 1) >> 2, (n - 1) & 3) if n > 0 else (st ^ 1, 1, 3)
            def ex(k):
                for e in range(4 * k, 4 * k + 4):
                    a('v_exp_f32 v%d, v%d', vS + 16 * qt + e, vS + 16 * qt + e)
            KS = OPT['k2split']
            if n == 7:
                a('s_waitcnt vmcnt(%d)', 8 if KS else 5)
            if n == 3 and KS:
                a('s_waitcnt vmcnt(8)')
            a(qk1(nst, ntile, nqt, nqt))
            if n == 0:
                a(kvload(st ^ 1, VB0, sOFF))
            if n == 1:
                a(kvload(st ^ 1, VB1, sOFF))
            if n == 2:
                a('s_add_u32 s%d, s%d, %d', sOFF, sOFF, BLK)
            if n == 3:
                a(kvload(st, K1A, sOFF))
            if n == 4:
                a(kvload(st, VA0, sOFF))
            if n == 5:
                a(kvload(st, VA1, sOFF))
            if n == 5 and OPT['fine'] == 3:
                a('s_memtime s[98:99]')
                a('s_memrealtime s[100:101]')
            if n == 6 and OPT['fine'] == 3:
                a('s_waitcnt lgkmcnt(0)')
                a('s_mov_b32 m0, s24')
                a('s_add_u32 s25, s24, 32')
                a('v_writelane_b32 v%d, s98, m0', vTS)
                a('s_mov_b32 m0, s25')
                a('s_add_u32 s24, s24, 1')
                a('v_writelane_b32 v%d, s100, m0', vTS)
            if n == 7:
                a(kvload(st, K1B, sOFF))
            ex(0)
            a(qk2(nst, ntile, nqt, nqt))
            if n == 7:
                a(kvload(st, '2B' if KS else K2, sOFF))
            if n == 3 and KS:
                a(kvload(st, '2A', sOFF))
            if n == 2 and st == 0:
                a('s_cmp_eq_u32 s%d, s%d', sOFF, sKVE)
            ex(1)
            a(pv(pst, ptile, pqt, 1))
            if n == 2 and st == 0:
                a('s_cselect_b32 s%d, s%d, s%d', sOFF, sKVB, sOFF)
            ex(2)
            if n == 4 and not KS:
                a('s_waitcnt vmcnt(9)')
            a(pv(st, tile, qt, 0))
            if n == 2 and st == 0:
                a('s_cmp_eq_u32 s%d, s%d', sOFF, sKV0)
                a('s_cselect_b32 s%d, s%d, s%d', sOFF, sCNT, sOFF)
            if st == 1 and n == 7:
                a('s_cmp_lt_u32 s%d, s%d', sOFF, sCNT)
            ex(3)
    a('s_cbranch_scc1 L_attloop')
    a('s_nop 0')
    a(pv(1, 1, 3, 1))
    stamp('A', 'attloop')
    a('ds_read_b32 v%d, v%d', vT + 12, vMG + 5)
    a('s_mov_b32 s36, 0x%x', f2u(2.0 ** -30))
    a('s_mov_b32 s37, 0x%x', f2u(2.0 ** 50))
    a('s_cmp_eq_u32 s%d, 0', sPASS)
    a('s_cbranch_scc0 L_attok')
    a('v_min3_f32 v%d, v%d, v%d, v%d', vT + 8, vO + 8, vO + 24, vO + 40)
    a('v_add_f32 v%d, v%d, v%d', vT + 9, vO + 8, vO + 24)
    a('v_add_f32 v%d, v%d, v%d', vT + 9, vT + 9, vO + 40)
    a('s_nop 3')
    a('v_min_f32 v%d, v%d, v%d', vT + 8, vT + 8, vO + 56)
    a('v_add_f32 v%d, v%d, v%d', vT + 9, vT + 9, vO + 56)
    a('v_cmp_nle_f32 s[38:39], s36, v%d', vT + 8)
    a('v_cmp_nge_f32 vcc, s37, v%d', vT + 9)
    a('s_or_b32 s39, s39, vcc_hi')
    if OPT['force_fb']:
        a('s_cmp_eq_u32 s%d, 0', sPASS)
    a('s_cbranch_scc0 L_attok')
    a.c('fallback: exact row maximum over this wave\'s keys, then redo the pass')
    a('s_mov_b32 s%d, 1', sPASS)
    a('s_waitcnt vmcnt(0) lgkmcnt(0)')
    a('v_mov_b32 v%d, 0', vT + 8)
    for qt in range(4):
        a('v_cndmask_b32 v%d, v%d, v%d, s[%d:%d]', vQ2 + 2 * qt, vQ2 + 2 * qt, vT + 8, sHI, sHI + 1)
        a('v_mov_b32 v%d, 0xff800000', vM + qt)
    a('s_mov_b32 s%d, s%d', sOFF, sKVB)
    a('s_mov_b32 s%d, 16', sCNT)
    a.label('L_maxloop')
    for w_ in (K1A, K1B, K2):
        a(kvload(0, w_, sOFF))
    a('s_waitcnt vmcnt(0)')
    for tile in range(2):
        for qt in range(4):
            a(qk1(0, tile, qt, qt))
            a(qk2(0, tile, qt, qt))
        a('s_nop 5')
        for qt in range(4):
            maxtree(vM + qt, vS + 16 * qt, True)
    a('s_add_u32 s%d, s%d, %d', sOFF, sOFF, BLK)
    a('s_sub_u32 s%d, s%d, 1', sCNT, sCNT)
    a('s_cmp_lg_u32 s%d, 0', sCNT)
    a('s_cbranch_scc1 L_maxloop')
    for i in range(64):
        a('v_mov_b32 v%d, 0', vO + i)
    a('s_branch L_attload')
    a.label('L_attok')
    a('s_waitcnt lgkmcnt(0)')
    a('v_cmp_gt_u32 vcc, 14, v%d', vT + 12)
    a('s_cbranch_vccz L_sready')
    waitpw(vMG + 5, 14, vT + 8)
    a.label('L_sready')
    a('ds_write_b64 v%d, %s offset:6144', vMG + 1, v(vNC + 2, 2))
    for t in range(2):
        for q in range(3):
            a('ds_write_b128 v%d, %s offset:%d', vMG, v(vO + 32 + 16 * t + 4 * q, 4), 1024 * (3 * t + q))
    setpw(6, vT + 8)
    waitpw(vMG + 4, 6, vT + 8)
    R = vS
    NC2 = vS + 32
    a('ds_read_b64 %s, v%d offset:6144', v(NC2, 2), vMG + 3)
    for t in range(2):
        a('ds_read_b128 %s, v%d offset:%d', v(R + 16 * t + 8, 4), vMG + 2, 1024 * (3 * t + 2))
    for t in range(2):
        for q in range(2):
            a('ds_read_b128 %s, v%d offset:%d', v(R + 16 * t + 4 * q, 4), vMG + 2, 1024 * (3 * t + q))
    setpw(7, vT + 9)
    f1, f2, l1, l2 = vS + 34, vS + 36, vS + 38, vS + 40
    a('s_waitcnt lgkmcnt(7)')
    for t in range(2):
        a('v_min_f32 v%d, v%d, v%d', l1 + t, vNC + t, NC2 + t)
    for t in range(2):
        a('v_sub_f32 v%d, v%d, v%d', f1 + t, l1 + t, vNC + t)
        a('v_sub_f32 v%d, v%d, v%d', f2 + t, l1 + t, NC2 + t)
    for t in range(2):
        a('v_exp_f32 v%d, v%d', f1 + t, f1 + t)
        a('v_exp_f32 v%d, v%d', f2 + t, f2 + t)
    a('s_waitcnt lgkmcnt(5)')
    for t in range(2):
        a('v_mul_f32 v%d, v%d, v%d', l1 + t, f1 + t, vO + 16 * t + 8)
    for t in range(2):
        a('v_fmac_f32 v%d, v%d, v%d', l1 + t, f2 + t, R + 16 * t + 8)
    for t in range(2):
        a('v_mov_b32 v%d, v%d', l2 + t, l1 + t)
    a('s_nop 0')
    for t in range(2):
        a('v_permlane32_swap_b32 v%d, v%d', l1 + t, l2 + t)
    for t in range(2):
        a('v_rcp_f32 v%d, v%d', l2 + t, l2 + t)
    a('s_waitcnt lgkmcnt(0)')
    for t in range(2):
        a('v_mul_f32 v%d, v%d, v%d', f1 + t, f1 + t, l2 + t)
        a('v_mul_f32 v%d, v%d, v%d', f2 + t, f2 + t, l2 + t)
    P = vO + 32
    for t in range(2):
        for r in range(12):
            a('v_mul_f32 v%d, v%d, v%d', vO + 16 * t + r, f1 + t, vO + 16 * t + r)
        for r in range(12):
            a('v_fmac_f32 v%d, v%d, v%d', vO + 16 * t + r, f2 + t, R + 16 * t + r)
        for q in range(6):
            a('v_cvt_pk_bf16_f32 v%d, v%d, v%d', P + 8 * t + q, vO + 16 * t + 2 * q, vO + 16 * t + 2 * q + 1)
        a('buffer_store_dwordx4 %s, v%d, s[%d:%d], s%d offen sc1', v(P + 8 * t, 4), vMG + 6, RWS, RWS + 3, 41 + t)
    a('s_nop 0')
    a('v_permlane32_swap_b32 v%d, v%d', P + 4, P + 12)
    a('v_permlane32_swap_b32 v%d, v%d', P + 5, P + 13)
    a('buffer_store_dwordx2 %s, v%d, s[%d:%d], s40 offen offset:512 sc1', v(P + 4, 2), vMG + 7, RWS, RWS + 3)
    stamp('A', 'merge')

def a_outproj():
    vA0, vA1, vOA, vST = 240, 241, 242, 244
    a('v_lshrrev_b32 v1, 5, v%d', vLANE)
    a('v_bfe_u32 v2, v%d, 2, 3', vLANE)
    a('v_lshl_add_u32 v1, v1, 4, v2')
    a('v_mul_u32_u24 v1, 160, v1')
    a('v_and_b32 v2, 3, v%d', vLANE)
    a('v_lshl_add_u32 v%d, v2, 3, v1', vA0)
    a('v_add_u32 v%d, %d, v%d', vA1, 10 * 5120, vA0)
    a('v_lshlrev_b32 v%d, 4, v%d', vOA, vLANE)
    a('v_lshrrev_b32 v1, 4, v%d', vLANE)
    a('v_mul_u32_u24 v1, %d, v1', 4 * 5120)
    a('v_and_b32 v2, 15, v%d', vLANE)
    a('v_lshl_add_u32 v%d, v2, 2, v1', vST)
    for r in range(1, 4):
        a('v_add_u32 v%d, %d, v%d', vST + r, 5120 * r, vST)
    a('s_mul_i32 s84, s%d, 2560', sOG)
    a('v_min_u32 v248, 19, v%d', vLANE)
    a('v_lshl_add_u32 v248, v248, 7, s84')
    a('s_lshl2_add_u32 s84, s%d, s%d', sTB, sW)
    a('s_mul_i32 s85, s84, %d', OBLK)
    a('s_add_u32 s85, s85, 0x%x', WS_O)
    a('s_mul_i32 s86, s84, %d', 16 * 5120)
    a('s_mul_i32 s88, s%d, 320', sOG)
    a('s_add_u32 s86, s86, s88')
    a('v_lshlrev_b32 v%d, 7, v%d', vOA + 1, vLANE)
    a('s_lshl_b32 s88, s%d, 12', sTB)
    a('s_add_u32 s88, s88, 0x%x', F4)
    a('s_waitcnt vmcnt(0)')
    stamp('A', 'odrain')
    setflag(43, 1)
    acc, NB = 80, 7
    def reads(ks):
        f = 100 + 20 * (ks % NB)
        base, off = (vA0, ks * 5120) if ks < 10 else (vA1, (ks - 10) * 5120)
        return ['ds_read_b64_tr_b16 %s, v%d offset:%d' % (v(f + 4 * j + 2 * rd, 2), base, off + 1280 * rd + 32 * j)
                for j in range(5) for rd in range(2)]
    for ks in range(NB):
        for r in reads(ks):
            a(r)
    if OPT['allpoll']:
        a('s_mov_b32 exec_hi, 0')
        pollflags(['buffer_load_dword v1, v%d, s[%d:%d], s88 offen sc1' % (vOA + 1, RWS, RWS + 3)], 1, sleep=OPT['psleep4'])
        a('s_waitcnt lgkmcnt(0)')
    else:
        a('s_cmp_eq_u32 s%d, 0', sW)
        a('s_cbranch_scc0 L_f4wait')
        if OPT['gate4'] >= 0:
            a('v_add_u32 v2, 1024, v%d', vAPW + 1)
            waitpw(2, 16, 1, sleep=2)
        a('s_mov_b32 exec_hi, 0')
        pollflags(['buffer_load_dword v1, v%d, s[%d:%d], s88 offen sc1' % (vOA + 1, RWS, RWS + 3)], 1, sleep=OPT['psleep4'])
        setpw(8, 1)
        a.label('L_f4wait')
        waitpw(vAPW + 1, 8, 1, sleep=1)
    stamp('A', 'f4')
    a('buffer_load_dword v251, v248, s[%d:%d], s85 offen sc1', RWS, RWS + 3)
    def oload(ks):
        a('buffer_load_dwordx4 %s, v%d, s[%d:%d], s85 offen offset:%d sc1', v(4 * ks, 4), vOA, RWS, RWS + 3, 1024 * (ks & 3))
        if ks & 3 == 3 and ks < 19:
            a('s_add_u32 s85, s85, 4096')
    LEAD = OPT['olead']
    for ks in range(LEAD):
        oload(ks)
    nl = LEAD
    a('v_mov_b32 v248, 9')
    lq = []
    if nl == 20:
        a('ds_write_b32 v%d, v248', vPW)
    pend = []
    for ks in range(20):
        w_ = 's_waitcnt vmcnt(%d)' % (nl - 1 - ks)
        if ks in lq:
            idx = max(i for i, x in enumerate(lq) if x == ks)
            w_ += ' lgkmcnt(%d)' % min(15, len(lq) - 1 - idx)
        a(w_)
        if OPT['fine'] in (1, 2) and ks in (0, 10, 19):
            stamp('A', 'p3k%d' % ks)
        rr = reads(ks + NB) if ks + NB < 20 else []
        for j in range(5):
            a('v_mfma_f32_16x16x32_bf16 %s, %s, %s, %s', v(acc + 4 * j, 4), v(4 * ks, 4), v(100 + 20 * (ks % NB) + 4 * j, 4),
              '0' if ks == 0 else v(acc + 4 * j, 4))
            for tg, r in pend:
                a(r)
                lq.append(tg)
            pend = [(ks + NB, r) for r in rr[2 * j:2 * j + 2]]
            if j in (0, 3) and nl < 20 and (j == 0 or ks % 2 == 0):
                oload(nl)
                nl += 1
                if nl == 20:
                    a('ds_write_b32 v%d, v248', vPW)
                    lq.append('w')
    a('s_nop 3')
    for j in range(5):
        for r in range(4):
            a('buffer_store_dword v%d, v%d, s[%d:%d], s86 offen offset:%d%s', acc + 4 * j + r, vST + r, R4, R4 + 3, 64 * j, OSC)
    finish('A')

vXR, vBR, vA0PW = 96, 100, 107
vL, vE, vHW, vHR0, vHR1, vHS, vCH, vCHL, vHH, vP01, vTCH, vHINT = 146, 150, 151, 152, 153, 154, 155, 156, 157, 158, 159, 160
vDX, vDW, vDBX, vDBB = 161, 165, 169, 173
vZ, vWOA, vPAR = 176, 186, 200
vCA, vCR, vHA, vF3, vXO, vDO, vC16, vAM, vOA, vRA = 224, 226, 228, 229, 230, 231, 232, 233, 234, 235
vR1W, vR1R, vR2W, vPW1, vPW2, vS2PW, vHT, vCT = 237, 238, 239, 240, 241, 242, 243, 244
vSPW = 252
L_Z, L_H = L_HT + 1024, 124928
SENT = 0xffffffff

def s_stage(t, emit=None):
    out = []
    slot = (t % 4) * 32768
    out.append('s_add_u32 m0, s74, %d' % slot)
    out.append('s_lshl_b32 s83, s82, 7')
    out.append('s_add_u32 s76, s72, s83')
    if t < 10:
        out += [dma(vDX + i, R0, 76, 1024 * i) for i in range(4)]
        out.append('s_add_u32 m0, s74, %d' % (slot + 16384))
        out.append('s_mul_i32 s83, s82, 245760')
        out.append('s_add_u32 s76, s73, s83')
        out += [dma(vDW + i, R1, 76, 1024 * i) for i in range(4)]
    else:
        out += [dma(vDBX + i, R3, 76, 1024 * i) for i in range(4)]
        out.append('s_add_u32 m0, s75, %d' % (slot + 16384))
        out.append('s_add_u32 s76, s77, s83')
        out += [dma(vDBB + i, R4, 76, 1024 * i) for i in range(3)]
    out.append('s_add_u32 s82, s82, 1')
    out.append('s_cmp_eq_u32 s82, 10')
    out.append('s_cselect_b32 s82, 0, s82')
    if emit is None:
        L = a.newlabel('skip')
        if t < 10:
            a('s_cmp_eq_u32 s%d, 15', sCG)
            a('s_cbranch_scc1 %s', L)
        for o in out:
            a(o)
        if t < 10:
            a.label(L)
    return out

def ninstr(t):
    return 0 if t > 19 else (8 if t < 10 else 7)

def exp_acc(dst, x, t1, t2):
    L2E = math.log2(math.e)
    hi = struct.unpack('<f', struct.pack('<f', L2E))[0]
    a('s_mov_b32 s80, 0x%x', f2u(hi))
    a('v_mul_f32 v%d, s80, v%d', t1, x)
    a('v_fma_f32 v%d, v%d, s80, -v%d', t2, x, t1)
    a('v_fmac_f32 v%d, 0x%x, v%d', t2, f2u(L2E - hi), x)
    a('v_exp_f32 v%d, v%d', dst, t1)
    a('v_mul_f32 v%d, 0x%x, v%d', t2, f2u(math.log(2.0)), t2)
    a('v_fmac_f32 v%d, v%d, v%d', dst, dst, t2)

def s_setup():
    a.label('L_roleS')
    a('s_sub_u32 s%d, s%d, 4', sW, sW)
    stamp('S', 'start')
    a('s_cmp_eq_u32 s%d, 15', sCG)
    a('s_cselect_b32 s70, 0, 0x%x', 2048 * 1280)
    a('s_cselect_b32 s71, 0, 0x%x', 640 * 3840)
    srd(R0, sAX, 's70')
    srd(R1, sWQ, 's71')
    a('v_lshrrev_b32 v1, 3, v%d', vLANE)
    a('v_and_b32 v2, 7, v%d', vLANE)
    a('v_lshrrev_b32 v3, 4, v%d', vLANE)
    a('v_xor_b32 v4, v2, v3')
    a('v_mul_u32_u24 v5, 1280, v1')
    a('v_lshl_add_u32 v%d, v4, 4, v5', vDX)
    a('v_xor_b32 v6, 64, v%d', vDX)
    a('v_add_u32 v%d, %d, v6', vDX + 1, 10240 - 1024)
    a('v_add_u32 v%d, %d, v%d', vDX + 2, 2 * (10240 - 1024), vDX)
    a('v_add_u32 v%d, %d, v6', vDX + 3, 3 * (10240 - 1024))
    a('v_and_b32 v7, 15, v%d', vLANE)
    a('v_lshlrev_b32 v8, 2, v3')
    a('v_xor_b32 v7, v7, v8')
    a('v_mul_u32_u24 v8, 3840, v3')
    a('v_lshl_add_u32 v%d, v7, 4, v8', vDW)
    for i in range(1, 4):
        a('v_add_u32 v%d, %d, v%d', vDW + i, (15360 - 1024) * i, vDW)
    a('s_lshl2_add_u32 s72, s%d, s%d', sRB, sW)
    a('s_mul_i32 s72, s72, %d', 32 * 1280)
    a('s_mul_i32 s73, s%d, %d', sW, 16 * 3840)
    a('s_lshl_b32 s70, s%d, 8', sCG)
    a('s_add_u32 s73, s73, s70')
    a('s_lshl_b32 s74, s%d, 12', sW)
    stagger(82, 83, 0)
    if OPT['fine'] == 1:
        stamp('S', 'setup')
    s_stage(0)
    if OPT['fine'] == 1:
        stamp('S', 'iss0')
    a('s_mul_i32 s70, s%d, 40', sCG)
    a('v_min_u32 v9, 39, v%d', vLANE)
    a('v_add_lshl_u32 v9, v9, s70, 1')
    a('global_load_ushort v10, v9, s[%d:%d]', sLDT, sLDT + 1)
    a('global_load_ushort v11, v9, s[%d:%d]', sLRE, sLRE + 1)
    a('global_load_ushort v12, v9, s[%d:%d]', sLIM, sLIM + 1)
    b1_sources(R3, R4, vDBX, vDBB, 75, 77, 70)
    a('v_and_b32 v5, 3, v%d', vLANE)
    a('v_lshlrev_b32 v5, 8, v5')
    a('v_lshl_add_u32 v5, v%d, 2, v5', vLANE)
    a('v_add_u32 v%d, %d, v5', vSPW, L_PW + 1024)
    s_addresses()
    s_stage(1)
    if OPT['fine'] == 1:
        stamp('S', 'iss1')
    a('s_waitcnt vmcnt(11)')
    stamp('S', 'st0')
    a('s_barrier')
    s_stage(2)
    a('s_waitcnt vmcnt(8)')
    a('s_barrier')
    s_stage(3)
    s_stage(4)

def s_addresses():
    c, g, t0, t1, t2 = 40, 41, 42, 43, 44
    a('v_and_b32 v%d, 15, v%d', c, vLANE)
    a('v_lshrrev_b32 v%d, 4, v%d', g, vLANE)
    a('v_lshrrev_b32 v%d, 1, v%d', t0, c)
    a('v_xor_b32 v%d, v%d, v%d', t0, t0, g)
    a('v_lshlrev_b32 v%d, 4, v%d', t0, t0)
    a('v_lshl_add_u32 v%d, v%d, 7, v%d', t0, c, t0)
    a('v_xor_b32 v%d, 64, v%d', t1, t0)
    a('v_add_u32 v%d, s74, v%d', vXR, t0)
    a('v_add_u32 v%d, s74, v%d', vXR + 1, t1)
    a('s_mul_i32 s70, s%d, %d', sW, REGSZ)
    a('s_add_u32 s70, s70, %d', L_REG)
    a('v_add_u32 v%d, s70, v%d', vCR, t0)
    a('v_add_u32 v%d, s70, v%d', vCR + 1, t1)
    a('v_lshrrev_b32 v%d, 3, v%d', t2, c)
    a('v_lshl_add_u32 v%d, v%d, 12, v%d', t0, t2, t0)
    a('v_add_u32 v%d, 16384, v%d', vBR, t0)
    a('v_xor_b32 v%d, 64, v%d', vBR + 1, vBR)
    for k in range(2):
        a('v_add_u32 v%d, 0x10000, v%d', vXR + 2 + k, vXR + k)
        a('v_add_u32 v%d, 0x10000, v%d', vBR + 2 + k, vBR + k)
    a('v_and_b32 v%d, 7, v%d', t0, vLANE)
    a('v_lshlrev_b32 v%d, 2, v%d', t2, t2)
    a('v_lshl_add_u32 v%d, v%d, 3, v%d', t0, t0, t2)
    a('v_add_u32 v%d, %d, v%d', vHH, L_H, t0)
    a('v_mul_u32_u24 v%d, 320, v%d', t1, g)
    a('s_mul_i32 s71, s%d, 1280', sW)
    a('s_add_u32 s71, s71, %d', L_EL)
    a('v_add3_u32 v%d, v%d, v%d, s71', vE, t0, t1)
    a('v_lshlrev_b32 v%d, 3, v%d', vCH, vLANE)
    a('v_add_u32 v%d, %d, v%d', vCHL, L_H, vCH)
    a('v_lshlrev_b32 v%d, 9, v%d', vHINT, vLANE)
    a('v_lshlrev_b32 v%d, 2, v%d', vA0PW, vLANE)
    a('v_add_u32 v%d, %d, v%d', vA0PW, L_PW, vA0PW)
    a('v_add_u32 v%d, %d, v%d', vS2PW, 1024 + 512, vA0PW)
    a('v_and_b32 v%d, 0x%x, v%d', vP01, 0xffffffff ^ 512, vSPW)
    a('v_xor_b32 v%d, 256, v%d', vPW1, vPW)
    a('v_xor_b32 v%d, 512, v%d', vPW2, vPW)
    a('v_and_b32 v%d, 1, v%d', t0, vLANE)
    a('v_lshlrev_b32 v%d, 9, v%d', t0, t0)
    a('v_xor_b32 v%d, v%d, v%d', t0, t0, vPW)
    a('v_subrev_u32 v%d, 1024, v%d', vAM, t0)
    a('v_mov_b32 v%d, 16', vC16)
    a('v_bfe_u32 v%d, v%d, 1, 2', t0, vLANE)
    a('v_xor_b32 v%d, v%d, v%d', t0, t0, g)
    a('v_lshlrev_b32 v%d, 4, v%d', t0, t0)
    a('s_mul_i32 s71, s%d, 5120', sW)
    a('s_add_u32 s71, s71, %d', L_HT)
    a('v_lshl_add_u32 v%d, v%d, 6, v%d', t0, c, t0)
    a('v_add_u32 v%d, s71, v%d', vHW, t0)
    a('v_bfe_u32 v%d, v%d, 2, 2', t0, vLANE)
    a('v_lshrrev_b32 v%d, 5, v%d', t1, vLANE)
    a('v_lshl_add_u32 v%d, v%d, 3, v%d', vHR0, t1, t0)
    a('v_lshlrev_b32 v%d, 6, v%d', vHR0, vHR0)
    a('v_mul_u32_u24 v%d, %d, v%d', vHS, 80 * 256, t1)
    a('v_lshrrev_b32 v%d, 1, v%d', t0, t0)
    a('v_bfe_u32 v%d, v%d, 4, 1', t1, vLANE)
    a('v_bfe_u32 v%d, v%d, 1, 1', t2, vLANE)
    a('v_lshl_add_u32 v%d, v%d, 1, v%d', t2, t1, t2)
    a('v_xor_b32 v%d, v%d, v%d', t2, t2, t0)
    a('v_lshl_add_u32 v%d, v%d, 4, v%d', vHR0, t2, vHR0)
    a('v_and_b32 v%d, 1, v%d', t2, vLANE)
    a('v_lshl_add_u32 v%d, v%d, 3, v%d', vHR0, t2, vHR0)
    a('v_xor_b32 v%d, 32, v%d', vHR1, vHR0)
    a('v_add_u32 v%d, s71, v%d', vHR0, vHR0)
    a('v_add_u32 v%d, s71, v%d', vHR1, vHR1)
    a('v_mul_u32_u24 v%d, %d, v%d', t1, HBLK, t1)
    a('v_lshl_add_u32 v%d, v%d, 4, v%d', t1, c, t1)
    a('v_add_u32 v%d, v%d, v%d', vHS, vHS, t1)
    a('v_mov_b32 v%d, v%d', vCA, vDX)
    a('v_mov_b32 v%d, v%d', vCA + 1, vDX + 1)
    a('v_lshlrev_b32 v%d, 4, v%d', vHA, vLANE)
    a('v_lshlrev_b32 v%d, 7, v%d', vF3, vLANE)
    a('v_min_u32 v%d, %d, v%d', vHT, 39 * 128, vF3)
    a('v_min_u32 v%d, %d, v%d', vTCH, 24 * 128, vF3)
    a('s_lshl2_add_u32 s71, s%d, s%d', sI, sW)
    a('s_mul_i32 s71, s71, 6400')
    a('v_add_u32 v%d, s71, v%d', vTCH, vTCH)
    a('v_min_u32 v%d, %d, v%d', vCT, 49 * 128, vF3)
    a('v_cmp_le_u32 vcc, 25, v%d', vLANE)
    a('v_add_u32 v%d, 3200, v%d', t0, vCT)
    a('s_and_b32 s71, s%d, 1', sW)
    a('v_cndmask_b32 v%d, v%d, v%d, vcc', vCT, vCT, t0)
    a('s_lshl1_add_u32 s71, s%d, s71', sI)
    a('s_mul_i32 s71, s71, 12800')
    a('v_add_u32 v%d, s71, v%d', vCT, vCT)
    a('s_xor_b32 s92, s%d, 1', sW)
    a('s_mul_i32 s92, s92, %d', REGSZ)
    a('s_add_u32 s92, s92, %d', L_REG)
    a('s_xor_b32 s93, s%d, 3', sW)
    a('s_mul_i32 s93, s93, %d', REGSZ)
    a('s_add_u32 s93, s93, %d', L_REG + 16 * 336)
    a('v_add_u32 v%d, s70, v%d', vR1W, vHA)
    a('v_add_u32 v%d, s92, v%d', vR1R, vHA)
    a('v_mul_u32_u24 v%d, 336, v%d', t0, c)
    a('v_and_b32 v%d, 48, v%d', t1, vLANE)
    a('v_add3_u32 v%d, v%d, v%d, s92', vR2W, t0, t1)
    a('v_lshrrev_b32 v%d, 2, v%d', t0, vLANE)
    a('v_and_b32 v%d, 3, v%d', t1, vLANE)
    a('v_lshlrev_b32 v%d, 3, v%d', vDO, t1)
    a('v_mul_u32_u24 v%d, 1280, v%d', t2, t0)
    a('v_add_u32 v%d, v%d, v%d', vXO, t2, vDO)
    a('v_lshlrev_b32 v%d, 4, v%d', t1, t1)
    a('v_lshl_add_u32 v%d, v%d, 2, v%d', vOA, t2, t1)
    a('v_mul_u32_u24 v%d, 336, v%d', t2, t0)
    a('v_add3_u32 v%d, v%d, v%d, s92', vRA, t2, t1)
    a('v_add3_u32 v%d, v%d, v%d, s93', vRA + 1, t2, t1)
    if not OPT['wopack']:
        s_wooffs()

def s_params():
    a('s_cmp_eq_u32 s%d, 0', sW)
    a('s_cbranch_scc0 L_nopar')
    for r in (10, 11, 12):
        a('v_lshlrev_b32 v%d, 16, v%d', r, r)
    exp_acc(13, 10, 14, 15)
    a('v_cvt_pk_bf16_f32 v13, v13, v13')
    a('v_and_b32 v13, 0xffff0000, v13')
    a('v_mul_f32 v14, v13, v11')
    a('v_mul_f32 v15, v13, v12')
    exp_acc(16, 14, 17, 18)
    I2P = 1.0 / (2 * math.pi)
    hi = struct.unpack('<f', struct.pack('<f', I2P))[0]
    a('s_mov_b32 s80, 0x%x', f2u(hi))
    a('v_mul_f32 v17, s80, v15')
    a('v_rndne_f32 v17, v17')
    a('v_fma_f32 v17, v15, s80, -v17')
    a('v_fmac_f32 v17, 0x%x, v15', f2u(I2P - hi))
    a('v_cos_f32 v20, v17')
    a('v_sin_f32 v21, v17')
    a('v_mul_f32 v18, v11, v11')
    a('v_fmac_f32 v18, v12, v12')
    a('v_rcp_f32 v19, v18')
    a('v_mul_f32 v20, v16, v20')
    a('v_mul_f32 v21, v16, v21')
    a('v_fma_f32 v18, -v18, v19, 1.0')
    a('v_fmac_f32 v19, v19, v18')
    a('v_add_f32 v19, v19, v19')
    a('v_add_f32 v17, -1.0, v20')
    a('v_mul_f32 v22, v17, v11')
    a('v_fmac_f32 v22, v21, v12')
    a('v_mul_f32 v23, v17, v12')
    a('v_fma_f32 v23, -v21, v11, v23')
    a('v_mul_f32 v22, v22, v19')
    a('v_mul_f32 v23, v23, v19')
    a('v_lshlrev_b32 v9, 4, v%d', vLANE)
    a('v_add_u32 v9, %d, v9', L_PAR)
    a('ds_write_b128 v9, v[20:23]')
    a('v_mov_b32 v24, v20')
    a('v_sub_f32 v25, 0, v21')
    for k in range(3):
        a('v_mul_f32 v26, v25, v25')
        a('v_add_f32 v27, v24, v24')
        a('v_fma_f32 v24, v24, v24, -v26')
        a('v_mul_f32 v25, v27, v25')
    a.label('L_nopar')

def s_params2():
    a('s_cmp_eq_u32 s%d, 0', sW)
    a('s_cbranch_scc0 L_nopar2')
    a('s_mov_b32 exec_hi, 0xff')
    a('v_mov_b32 v14, 1.0')
    a('v_mov_b32 v15, 0')
    a('ds_write_b64 v%d, v[14:15] offset:%d', vCHL, L_Z - L_H)
    a('ds_write_b64 v%d, v[24:25] offset:%d', vCHL, L_Z - L_H + 320)
    src = 24
    for sg in range(2, 17):
        dst = 16 + 2 * (sg % 3)
        a('v_mul_f32 v%d, v24, v%d', dst, src)
        a('v_mul_f32 v%d, v24, v%d', dst + 1, src + 1)
        a('v_fma_f32 v%d, -v25, v%d, v%d', dst, src + 1, dst)
        a('v_fmac_f32 v%d, v25, v%d', dst + 1, src)
        a('ds_write_b64 v%d, %s offset:%d', vCHL, v(dst, 2), L_Z - L_H + 320 * sg)
        src = dst
    a('s_mov_b32 exec_hi, -1')
    a('s_waitcnt lgkmcnt(0)')
    a.label('L_nopar2')

def s_wooffs():
    for i in range(5):
        a('v_add_u32 v40, %d, v%d', 64 * i, vLANE)
        a('v_mul_u32_u24 v41, 6554, v40')
        a('v_lshrrev_b32 v41, 16, v41')
        a('v_mul_u32_u24 v42, 10, v41')
        a('v_sub_u32 v40, v40, v42')
        tau(42, 41, 43)
        a('v_mul_u32_u24 v42, 1280, v42')
        a('v_lshl_add_u32 v%d, v40, 4, v42', vWOA + i)
        if 0 < i < 4:
            a('v_subrev_u32 v%d, %d, v%d', vWOA + i, 1024 * i, vWOA + i)

def s_qloader():
    early = {1: {7: 10}, 2: {7: 10, 9: 11}, 3: {7: 10, 8: 11, 9: 12}, 0: {}}[OPT['st10']]
    q = [2] * 8 + [3] * 8 + [4] * 8
    for st in range(2, 10):
        a('s_waitcnt vmcnt(%d)', len(q) - 1 - max(i for i, x in enumerate(q) if x == st))
        if OPT['fine'] == 1 and st in (3, 5, 7, 9):
            stamp('S', 'st%d' % st)
        a('s_barrier')
        if st == 6:
            a('v_and_b32 v32, 15, v%d', vLANE)
            a('v_lshlrev_b32 v32, 2, v32')
            a(dbgload(32, 33))
            q.append('d')
            a('s_cmp_eq_u32 s%d, 15', sCG)
            a('s_cbranch_scc0 L_cw')
            a('s_waitcnt vmcnt(0)')
            a.label('L_cw')
        if st <= 6:
            s_stage(st + 3)
            q += [st + 3] * 8
        if st == OPT['pretouch']:
            a('s_cmp_eq_u32 s%d, 2', sW)
            a('s_cselect_b32 s70, s%d, s%d', sBRE, sBIM)
            a('s_cselect_b32 s71, s%d, s%d', sBRE + 1, sBIM + 1)
            a('s_mul_i32 s83, s2, 3200')
            a('s_lshl1_add_u32 s84, s2, s%d', sW)
            a('s_mul_i32 s84, s84, 5120')
            a('s_cmp_lt_u32 s%d, 2', sW)
            a('s_cselect_b32 s70, s%d, s70', sBX)
            a('s_cselect_b32 s71, s%d, s71', sBX + 1)
            a('s_cselect_b32 s83, s84, s83')
            a('s_cselect_b32 s84, 39, 24')
            a('v_min_u32 v30, s84, v%d', vLANE)
            a('v_lshl_add_u32 v30, v30, 7, s83')
            a('global_load_dword v31, v30, s[70:71]')
            q.append('t')
        if st in early:
            s_stage(early[st])
            q += [early[st]] * 7
        if st == 7:
            s_params()
        if st == 8:
            s_params2()

    a('v_cmp_eq_u32 vcc, 0, v33')
    a('s_cbranch_vccz L_clrok')
    pollflags([dbgload(32, 33)], 33)
    a.label('L_clrok')
    a('s_barrier')
    stamp('S', 'qend')
    s_consts()

def s_consts():
    a('v_and_b32 v6, 7, v%d', vLANE)
    a('v_lshlrev_b32 v6, 4, v6')
    a('v_add_u32 v6, %d, v6', L_PAR)
    for j in range(5):
        a('ds_read_b128 %s, v6 offset:%d', v(vPAR + 4 * j, 4), 128 * j)
    a('v_and_b32 v7, -8, v%d', vE)
    a('v_subrev_u32 v7, %d, v7', L_EL - L_Z)
    for j in range(5):
        a('ds_read_b64 %s, v7 offset:%d', v(vZ + 2 * j, 2), 64 * j)
    a('s_cmp_eq_u32 s%d, 0', sW)
    a('s_cselect_b32 s70, 1, 16')
    a('s_mul_i32 s70, s70, 320')
    a('v_add_u32 v8, s70, v%d', vCHL)
    a('ds_read_b64 %s, v8 offset:%d', v(vL, 2), L_Z - L_H)
    a('v_bfe_u32 v5, v%d, 3, 1', vLANE)
    a('v_lshlrev_b32 v5, 31, v5')
    a('v_xor_b32 v4, 0x80000000, v5')
    a('s_waitcnt lgkmcnt(0)')
    for j in range(5):
        a('v_xor_b32 v%d, v5, v%d', vPAR + 4 * j + 1, vPAR + 4 * j + 1)
        a('v_xor_b32 v%d, v5, v%d', vPAR + 4 * j + 2, vPAR + 4 * j + 2)
        a('v_xor_b32 v%d, v4, v%d', vZ + 2 * j + 1, vZ + 2 * j + 1)

def touch(r, va=None):
    o = ['s_add_u32 s84, s%d, %d' % (sXCD, r),
         's_cmp_ge_u32 s84, 6', 's_cselect_b32 s85, 6, 0', 's_sub_u32 s84, s84, s85',
         's_cmp_ge_u32 s84, 6', 's_cselect_b32 s85, 6, 0', 's_sub_u32 s84, s84, s85',
         's_cmp_ge_u32 s84, 2',
         's_cselect_b32 s86, s%d, s%d' % (sCRE, sWO), 's_cselect_b32 s87, s%d, s%d' % (sCRE + 1, sWO + 1),
         's_cmp_ge_u32 s84, 4',
         's_cselect_b32 s86, s%d, s86' % sCIM, 's_cselect_b32 s87, s%d, s87' % (sCIM + 1),
         's_and_b32 s84, s84, 1', 's_mul_i32 s84, s84, 3200',
         's_add_u32 s86, s86, s84', 's_addc_u32 s87, s87, 0',
         'global_load_dword v109, v%d, s[86:87]' % (va or vTCH)]
    return o

def s_b1():
    F = [40, 68]
    def reads(t, ks, f):
        slot = t % 4
        hi, lo = slot >> 1, (slot & 1) * 32768
        r = ['ds_read_b128 %s, v%d offset:%d' % (v(f + 4 * T, 4), vXR + 2 * hi + ks, lo + 2048 * T) for T in range(2)]
        r += ['ds_read_b128 %s, v%d offset:%d' % (v(f + 8 + 4 * j, 4), vBR + 2 * hi + ks, lo + 1024 * j) for j in range(5)]
        return r
    def mfmas(f, first):
        return ['v_mfma_f32_16x16x32_bf16 %s, %s, %s, %s' % (v(8 * j + 4 * T, 4), v(f + 4 * T, 4), v(f + 8 + 4 * j, 4),
                '0' if first else v(8 * j + 4 * T, 4)) for j in range(5) for T in range(2)]
    def weave(ms, others):
        n = len(ms)
        k = 0
        for i_, m in enumerate(ms):
            a(m)
            while k < len(others) * (i_ + 1) // n:
                a(others[k])
                k += 1
    first = 10 + OPT['st10']
    a('s_lshl4_add_u32 s84, s%d, s%d', sCG, sRB)
    flagaddr(84, 84, F1, 85)
    a('s_waitcnt vmcnt(%d)', max(0, 7 * (first - 11)))
    a('s_barrier')
    for r in reads(10, 0, F[0]):
        a(r)
    for u in range(10):
        t = 10 + u
        if OPT['fine'] == 1 and u in (0, 2, 4, 6, 8):
            stamp('S', 'b1w%d' % u)
        a('s_waitcnt lgkmcnt(0)')
        m0_ = mfmas(F[0], u == 0)
        weave(m0_[:4], reads(t, 1, F[1]))
        for m in m0_[4:]:
            a(m)
        m1_ = mfmas(F[1], False)
        if u < 9:
            if t + 1 < first:
                a('s_waitcnt vmcnt(%d) lgkmcnt(0)', 7 * (first - t - 2))
            else:
                a('s_waitcnt lgkmcnt(0)')
            a('s_barrier')
            if t + 1 == first:
                a('s_cmp_eq_u32 s%d, 3', sW)
                a('s_cbranch_scc0 L_noflag')
                setflag(84, 104)
                a.label('L_noflag')
            weave(m1_[:4], reads(t + 1, 0, F[0]))
            for m in m1_[4:]:
                a(m)
        else:
            a('s_waitcnt lgkmcnt(0)')
            for m in m1_:
                a(m)
    stamp('S', 'b1gemm')

def rot5(dst, t):
    a('s_and_b32 s%d, s%d, 3', dst, sI)
    a('s_add_u32 s%d, s%d, s%d', dst, dst, sXCD)
    for _ in range(2):
        a('s_cmp_ge_u32 s%d, 5', dst)
        a('s_cselect_b32 s%d, 5, 0', t)
        a('s_sub_u32 s%d, s%d, s%d', dst, dst, t)
    if not OPT['rot5']:
        a('s_mov_b32 s%d, 0', dst)

def s_wo():
    if OPT['wopack']:
        a('s_mov_b32 s73, 0x%x', F1 + 15 * 16 * 128)
        a('s_mov_b64 exec, 0xffff')
        pollflags(['buffer_load_dword v40, v%d, s[%d:%d], s73 offen sc1' % (vF3, RWS, RWS + 3)], 40, sleep=4)
        rot5(83, 73)
        a('s_mul_i32 s75, s%d, 102400', sOG)
        a('s_add_u32 s75, s75, 0x%x', WS_WP)
        a('s_mov_b32 s77, 5')
        a.label('L_woloop')
        a('s_lshl2_add_u32 s78, s83, s%d', sW)
        a('s_mul_i32 s78, s78, 5120')
        a('s_add_u32 s79, s78, s75')
        a('s_mov_b32 m0, s78')
        for i in range(5):
            if i == 4:
                a('s_add_u32 m0, s78, 4096')
                a('s_add_u32 s79, s79, 4096')
            a('s_waitcnt vmcnt(%d)', OPT['thrw'])
            a(dma(vHA, RWS, 79, 1024 * (i & 3)).replace(' lds', ' sc1 lds'))
    else:
        srd(R0, sWO, 640 * 1280)
        rot5(83, 73)
        a('s_mul_i32 s75, s%d, 160', sOG)
        a('s_mov_b32 s77, 5')
        a.label('L_woloop')
        a('s_lshl2_add_u32 s78, s83, s%d', sW)
        a('s_mul_i32 s79, s78, 40960')
        a('s_add_u32 s79, s79, s75')
        a('s_mul_i32 s78, s78, 5120')
        a('s_mov_b32 m0, s78')
        a('s_add_u32 s73, s78, 4096')
        for i in range(5):
            if i == 4:
                a('s_mov_b32 m0, s73')
            a('s_waitcnt vmcnt(%d)', OPT['thrw'])
            a(dma(vWOA + i, R0, 79, 1024 * (i & 3)))
    a('s_add_u32 s83, s83, 1')
    a('s_cmp_eq_u32 s83, 5')
    a('s_cselect_b32 s83, 0, s83')
    a('s_sub_u32 s77, s77, 1')
    a('s_cmp_lg_u32 s77, 0')
    a('s_cbranch_scc1 L_woloop')
    for kp in range(5):
        a('s_lshl_b32 s73, s83, 7')
        a('s_add_u32 s%d, s72, s73', 4 + kp)
        a('s_lshl_b32 s%d, s83, 11', 12 + kp)
        a('s_add_u32 s83, s83, 1')
        a('s_cmp_eq_u32 s83, 5')
        a('s_cselect_b32 s83, 0, s83')

def s_scan():
    ROR = 'row_ror:8 row_mask:0xf bank_mask:0xf'
    a('s_setprio 1')
    a('s_lshl_b32 s70, s%d, 13', sCG)
    a('s_add_u32 s70, s70, 0x%x', WS_E)
    a('s_add_u32 s70, s70, s%d', sWS)
    a('s_addc_u32 s71, s%d, 0', sWS + 1)
    srd(R5, 70, 8192)
    a('s_sub_u32 s70, 15, s%d', sRB)
    a('s_lshl_b32 s70, s70, 9')
    a('s_add_u32 s71, s70, 4096')
    tmp = 40
    for j in range(5):
        for k in range(8):
            a('v_mul_f32_dpp v%d, v%d, v%d %s', tmp + k, 8 * j + k, vPAR + 4 * j + 3, ROR)
        for k in range(8):
            a('v_fma_f32 v%d, v%d, v%d, v%d', 8 * j + k, vPAR + 4 * j + 2, 8 * j + k, tmp + k)
    e = [[8 * j for j in range(5)], [50 + j for j in range(5)], [56 + j for j in range(5)]]
    cur = e[0]
    for k in range(1, 8):
        nx = e[1 + (k & 1)]
        for j in range(5):
            a('v_fma_f32 v%d, v%d, v%d, v%d', nx[j], vPAR + 4 * j, cur[j], 8 * j + k)
        for j in range(5):
            a('v_fmac_f32_dpp v%d, v%d, v%d %s', nx[j], cur[j], vPAR + 4 * j + 1, ROR)
        cur = nx
    for j in range(5):
        a('ds_write_b32 v%d, v%d offset:%d', vE, cur[j], 64 * j)
    setpw(11, 104)
    for r in range(10 - OPT['tstart'], 0 if OPT['tlate'] else 6):
        a('s_waitcnt vmcnt(0)')
        for o in touch(r):
            a(o)
    stamp('S', 'pass1')
    def chain(dst, src, add):
        a('v_fma_f32 v%d, v%d, v%d, v%d', dst, vL, src, add)
        a('v_fma_f32 v%d, v%d, v%d, v%d', dst + 1, vL, src + 1, add + 1)
        a('v_fma_f32 v%d, -v%d, v%d, v%d', dst, vL + 1, src + 1, dst)
        a('v_fmac_f32 v%d, v%d, v%d', dst + 1, vL + 1, src)
    ES = 110
    a('s_cmp_eq_u32 s%d, 1', sW)
    a('s_cbranch_scc1 L_wave1')
    a('s_cmp_eq_u32 s%d, 0', sW)
    a('s_cbranch_scc0 L_wave23')
    waitpw(vSPW, 11, 105, sleep=1)
    a('s_mov_b32 exec_hi, 0xff')
    for sg in range(16):
        a('ds_read_b64 %s, v%d offset:%d', v(ES + 2 * sg, 2), vCHL, L_EL - L_H + 320 * sg)
    a('v_mov_b32 v142, 0')
    a('v_mov_b32 v143, 0')
    a('s_waitcnt lgkmcnt(0)')
    a('ds_write_b64 v%d, v[142:143] offset:%d', vCHL, L_PL - L_H)
    for sg in range(1, 16):
        a('ds_write_b64 v%d, %s offset:%d', vCHL, v(ES + 2 * sg - 2, 2), L_PL - L_H + 320 * sg)
        chain(ES + 2 * sg, ES + 2 * sg - 2, ES + 2 * sg)
    a('v_min_u32 v%d, -2, v%d', ES + 30, ES + 30)
    a('v_min_u32 v%d, -2, v%d', ES + 31, ES + 31)
    a('buffer_store_dwordx2 %s, v%d, s[%d:%d], s70 offen sc1', v(ES + 30, 2), vCH, R5, R5 + 3)
    a('s_mov_b32 exec_hi, -1')
    setpw(12, 104)
    a('s_branch L_coldone')
    a.label('L_wave1')
    a.label('L_hint')
    a('buffer_load_dword v105, v%d, s[%d:%d], s70 offen offset:512 sc1', vHINT, R5, R5 + 3)
    a('s_waitcnt vmcnt(0)')
    a('v_cmp_eq_u32 vcc, -1, v105')
    a('s_cbranch_vccz L_hintok')
    a('s_mov_b64 exec, vcc')
    a('s_sleep 3')
    a.label('L_hint2')
    a('s_sub_u32 s%d, s%d, 1', sSPIN, sSPIN)
    a('s_cbranch_scc0 L_hint')
    a('s_endpgm')
    a.label('L_hintok')
    a('s_mov_b32 exec_lo, -1')
    a('s_mov_b32 exec_hi, 0xff')
    for k in range(15, 0, -1):
        a('buffer_load_dwordx2 %s, v%d, s[%d:%d], s%d offen offset:%d sc1', v(ES + 2 * (15 - k), 2), vCH, R5, R5 + 3,
          71 if k >= 8 else 70, 512 * (k & 7))
    a('s_waitcnt vmcnt(0)')
    a('v_max_u32 v105, v%d, v%d', ES, ES + 1)
    for n in range(1, 15):
        a('v_max3_u32 v105, v105, v%d, v%d', ES + 2 * n, ES + 2 * n + 1)
    a('v_cmp_eq_u32 vcc, -1, v105')
    a('s_cbranch_vccnz L_hint2')
    for n in range(1, 15):
        chain(ES + 2 * n, ES + 2 * n - 2, ES + 2 * n)
    a('ds_write_b64 v%d, %s', vCHL, v(ES + 28, 2))
    a('s_mov_b32 exec_hi, -1')
    setpw(12, 104)
    a('s_branch L_coldone')
    a.label('L_wave23')
    if OPT['tearly']:
        waitpw(vA0PW, 5, 105, sleep=2)
    for r in range(OPT['tearly']):
        for o in touch(r, vCT):
            a(o)
        if r + 1 < OPT['tearly']:
            a('s_waitcnt vmcnt(0)')
    a.label('L_coldone')
    a('s_lshl2_add_u32 s70, s%d, s%d', sRB, sW)
    a('s_mul_i32 s71, s70, %d', 2 * HBLK)
    a('s_mul_i32 s78, s%d, 1280', sCG)
    a('s_add_u32 s71, s71, s78')
    a('s_add_u32 s71, s71, 0x%x', WS_H)
    a('s_lshl4_add_u32 s70, s70, s%d', sCG)
    flagaddr(70, 70, F3, 78)
    waitpw(vP01, 12, 105, sleep=4)
    stamp('S', 'carry')
    for j in range(5):
        a('ds_read_b32 v%d, v%d offset:%d', 50 + j, vE, L_PL - L_EL + 64 * j)
        a('ds_read_b32 v%d, v%d offset:%d', 56 + j, vHH, 64 * j)
    a('s_waitcnt lgkmcnt(0)')
    for j in range(5):
        a('v_fmac_f32 v%d, v%d, v%d', 50 + j, vZ + 2 * j, 56 + j)
    for j in range(5):
        a('v_fmac_f32_dpp v%d, v%d, v%d %s', 50 + j, 56 + j, vZ + 2 * j + 1, ROR)
    for k in range(8):
        pr = [50 + j if k == 0 else 8 * j + k - 1 for j in range(5)]
        for j in range(5):
            a('v_fmac_f32 v%d, v%d, v%d', 8 * j + k, vPAR + 4 * j, pr[j])
        for j in range(5):
            a('v_fmac_f32_dpp v%d, v%d, v%d %s', 8 * j + k, pr[j], vPAR + 4 * j + 1, ROR)
    for j in range(5):
        for q in range(4):
            a('v_cvt_pk_bf16_f32 v%d, v%d, v%d', 64 + 4 * j + q, 8 * j + 2 * q, 8 * j + 2 * q + 1)
        a('ds_write_b128 v%d, %s offset:%d', vHW, v(64 + 4 * j, 4), 1024 * j)
        a('ds_read_b64_tr_b16 %s, v%d offset:%d', v(110 + 4 * j, 2), vHR0, 1024 * j)
        a('ds_read_b64_tr_b16 %s, v%d offset:%d', v(110 + 4 * j + 2, 2), vHR1, 1024 * j + 256)
    for j in range(5):
        a('s_waitcnt lgkmcnt(%d)', 12 - 3 * j)
        a('buffer_store_dwordx4 %s, v%d, s[%d:%d], s71 offen offset:%d sc1', v(110 + 4 * j, 4), vHS, RWS, RWS + 3, 256 * j)
    setpw(13, 104)

def s_b3():
    NS = 4
    acc, HF, CF = 0, 80, [208, 216]
    a('s_cmp_ge_u32 s%d, 2', sW)
    a('s_cselect_b32 s78, s%d, s%d', sCIM, sCRE)
    a('s_cselect_b32 s79, s%d, s%d', sCIM + 1, sCRE + 1)
    srd(R1, 78, 640 * 1280)
    srd(R6, sOUT, 2048 * 1280 * 4)
    a('s_mul_i32 s74, s%d, %d', sW, REGSZ)
    a('s_add_u32 s74, s74, %d', L_REG)
    a('s_and_b32 s78, s%d, 1', sW)
    a('s_mul_i32 s72, s%d, %d', sOG, 80 * 1280)
    a('s_mul_i32 s73, s78, 640')
    a('s_add_u32 s72, s72, s73')
    a('s_mul_i32 s79, s%d, %d', sW, 40 * 256)
    a('s_add_u32 s79, s79, 0x%x', WS_H)
    a('s_lshr_b32 s80, s%d, 1', sW)
    a('s_lshl1_add_u32 s78, s78, s80')
    for l in range(4):
        a('s_xor_b32 s80, s78, %d', l)
        a('s_lshl2_add_u32 s80, s%d, s80', sTB)
        a('s_mul_i32 s80, s80, %d', HBLK)
        a('s_add_u32 s%d, s80, s79', 84 + l)
    a('s_lshl_b32 s88, s%d, 12', sTB)
    a('s_add_u32 s88, s88, 0x%x', F3)
    a('s_lshl2_add_u32 s78, s%d, s78', sTB)
    a('s_mul_i32 s80, s78, %d', 16 * 1280)
    a('s_mul_i32 s81, s%d, 160', sOG)
    a('s_add_u32 s80, s80, s81')
    a('s_mul_i32 s82, s78, %d', 16 * 5120)
    a('s_lshl1_add_u32 s82, s81, s82')
    a('s_add_u32 s82, s82, 2560')
    a('s_add_u32 s90, s%d, s81', sDSK)
    a('s_addc_u32 s91, s%d, 0', sDSK + 1)
    a('s_lshl2_add_u32 s89, s%d, s%d', sOG, sW)
    a('s_mul_i32 s89, s89, 5120')
    a('s_mul_i32 s79, s%d, %d', sTB, 4 * HBLK)
    a('s_add_u32 s89, s89, s79')
    a('s_add_u32 s89, s89, 0x%x', WS_H)
    a('s_waitcnt vmcnt(0)')
    setflag(70, 40)
    stamp('S', 'hpub')
    if OPT['tlate']:
        for k in range(4):
            a('s_mov_b32 s%d, s%d', 4 + k, 84 + k)
        for r in range(OPT['tearly'], 6):
            for o in touch(r):
                a(o)
            a('s_waitcnt vmcnt(0)')
        for k in range(4):
            a('s_mov_b32 s%d, s%d', 84 + k, 4 + k)
    stamp('S', 'touch')
    s_wo()
    waitpw(vSPW, 13, 40, sleep=2)
    def cdma(n):
        kp, j = divmod(n, 5)
        a('s_add_u32 m0, s74, %d', 2048 * (n % NS))
        a('s_add_u32 s76, s%d, %d', 4 + kp, 16 * 1280 * j)
        a(dma(vCA, R1, 76, 0))
        a(dma(vCA + 1, R1, 76, 1024))
    for n in range(NS):
        cdma(n)
        a('s_waitcnt vmcnt(%d)', 0 if n == NS - 1 else 4)
    setpw(14, 40)
    stamp('S', 'wo')
    a('s_cmp_eq_u32 s%d, 2', sW)
    a('s_cbranch_scc0 L_f3wait')
    a('s_mov_b32 exec_hi, 0')
    pollflags(['buffer_load_dword v40, v%d, s[%d:%d], s88 offen sc1' % (vF3, RWS, RWS + 3)], 40, sleep=4)
    setpw(15, 40)
    a.label('L_f3wait')
    waitpw(vS2PW, 15, 40, sleep=4)
    stamp('S', 'f3')
    a('s_setprio %d', OPT['b3prio'])
    def hload(l, ks):
        return 's_add_u32 s9, s%d, s%d\nbuffer_load_dwordx4 %s, v%d, s[%d:%d], s9 offen offset:%d sc1' % (
            84 + l, 12 + ks // 2, v(HF + 16 * (ks % 8) + 4 * l, 4), vHA, RWS, RWS + 3, 1024 * (ks & 1))
    a('buffer_load_dword v40, v%d, s[%d:%d], s89 offen sc1', vHT, RWS, RWS + 3)
    for ks in range(2):
        if ks:
            a('s_waitcnt vmcnt(0)')
        for l in range(4):
            a(hload(l, ks))
    def creads(n):
        return ['ds_read_b128 %s, v%d offset:%d' % (v(CF[n & 1] + 4 * k, 4), vCR + k, 2048 * (n % NS)) for k in range(2)]
    q = []
    def waitfor(tag):
        idx = max(i for i, x in enumerate(q) if x == tag)
        n = len(q) - 1 - idx
        del q[:idx + 1]
        return n
    for r in creads(0):
        a(r)
    a('s_waitcnt vmcnt(0) lgkmcnt(0)')
    stamp('S', 'b3go')
    cdma(NS)
    q += [NS, NS]
    vX, vD = HF + 32, HF + 42
    hq = [(l, ks) for ks in range(2, 10) for l in range(4)]
    STOP = OPT['b3stop']
    frag = {n: CF[n & 1] for n in range(25)}
    if STOP == 15:
        for k, n in enumerate(range(17, 21)):
            frag[n] = HF + 64 + 8 * k
    def creads(n):
        return ['ds_read_b128 %s, v%d offset:%d' % (v(frag[n] + 4 * k, 4), vCR + k, 2048 * (n % NS)) for k in range(2)]
    done = {0}
    def fetch(n):
        if n in q:
            a('s_waitcnt vmcnt(%d)', waitfor(n))
        for r in creads(n):
            a(r)
        done.add(n)
    issued = set(range(NS + 1))
    def refill(n):
        if n + NS < 25 and n + NS not in issued:
            cdma(n + NS)
            q.extend([n + NS, n + NS])
            issued.add(n + NS)
    for n in range(25):
        kp, j = divmod(n, 5)
        if n == STOP:
            last = 20 if STOP == 15 else n
            for m in range(n + 1, last + 1):
                fetch(m)
                a('s_waitcnt lgkmcnt(0)')
                refill(m)
            a('s_waitcnt vmcnt(0)')
            del q[:]
            stamp('S', 'b3stop')
            a('s_setprio 1')
            waitpw(vAM, OPT['b3res'], 245, sleep=2)
            stamp('S', 'b3res')
        nxt = n + 1
        while nxt in done:
            nxt += 1
        rd = nxt < 25 and (nxt == n + 1 or all(frag[nxt] != frag[m] for m in range(n, nxt)))
        if rd:
            fetch(nxt)
        if j == 0 and 'h%d' % kp in q:
            a('s_waitcnt vmcnt(%d)', waitfor('h%d' % kp))
        if OPT['fine'] >= 2 and n in (3, 6, 9, 12):
            stamp('S', 'u%d' % n)
        extra = []
        for _ in range(OPT['hrate']):
            if hq and (hq[0][1] < 8 or n >= 5):
                l, ks = hq.pop(0)
                extra.append(hload(l, ks))
                q.append('h%d' % (ks // 2))
        if 10 <= n < 15:
            i = n - 10
            extra += ['global_load_dwordx2 %s, v%d, s[90:91] offset:%d' % (v(vD + 2 * i, 2), vDO, 32 * i),
                      'buffer_load_dwordx2 %s, v%d, s[%d:%d], s80 offen offset:%d' % (v(vX + 2 * i, 2), vXO, R3, R3 + 3, 32 * i)]
            q += ['x', 'x']
        assert len(extra) <= 5
        cnt = 0
        for k in range(2):
            ks = 2 * kp + k
            for l in range(4):
                d = acc + 20 * l + 4 * j
                a('v_mfma_f32_16x16x32_bf16 %s, %s, %s, %s', v(d, 4), v(frag[n] + 4 * k, 4), v(HF + 16 * (ks % 8) + 4 * l, 4),
                  '0' if ks == 0 else v(d, 4))
                if cnt < len(extra):
                    a(extra[cnt])
                cnt += 1
                if cnt == 5 and rd:
                    a('s_waitcnt lgkmcnt(0)')
                    refill(nxt)
                if cnt == 5 and n == OPT['gate4']:
                    a('ds_write_b32 v%d, v%d', vPW, vC16)
    assert not hq
    stamp('S', 'b3gemm')
    T = 160
    a('s_setprio 1')
    waitpw(vAM, 7, T, sleep=2)
    for qd in range(10):
        a('ds_write_b128 v%d, %s offset:%d', vR1W, v(acc + 40 + 4 * qd, 4), 1024 * qd)
    setpw(17, T + 1)
    a('s_waitcnt vmcnt(0)')
    U = 180
    def skip(i):
        for hf in range(2):
            a('v_lshlrev_b32 v%d, 16, v%d', T + 4, vX + 2 * i + hf)
            a('v_lshlrev_b32 v%d, 16, v%d', T + 5, vD + 2 * i + hf)
            a('v_and_b32 v%d, 0xffff0000, v%d', T + 6, vX + 2 * i + hf)
            a('v_and_b32 v%d, 0xffff0000, v%d', T + 7, vD + 2 * i + hf)
            a('v_mul_f32 v%d, v%d, v%d', U + 4 * i + 2 * hf, T + 4, T + 5)
            a('v_mul_f32 v%d, v%d, v%d', U + 4 * i + 2 * hf + 1, T + 6, T + 7)
    skip(0)
    skip(1)
    waitpw(vPW1, 17, T + 1)
    for qd in (5, 6, 7, 8, 9, 0, 1, 2, 3, 4):
        a('ds_read_b128 %s, v%d offset:%d', v(acc + 40 + 4 * qd, 4), vR1R, 1024 * qd)
    skip(2)
    a('s_waitcnt lgkmcnt(0)')
    for qd in (5, 6, 7, 8, 9, 0, 1, 2, 3, 4):
        l, j = divmod(qd, 5)
        for e in range(4):
            a('v_add_f32 v%d, v%d, v%d', acc + 4 * qd + e, acc + 4 * qd + e, acc + 40 + 4 * qd + e)
        a('ds_write_b128 v%d, %s offset:%d', vR2W, v(acc + 4 * qd, 4), 16 * 336 * l + 64 * j)
        if qd == 9:
            setpw(18, T + 1)
    for i in range(5):
        a('ds_read_b128 %s, v%d offset:%d', v(acc + 40 + 8 * i, 4), vRA, 64 * i)
    skip(3)
    skip(4)
    waitpw(vPW2, 18, T + 1)
    for i in range(5):
        a('ds_read_b128 %s, v%d offset:%d', v(acc + 44 + 8 * i, 4), vRA + 1, 64 * i)
    for i in range(5):
        for e in range(4):
            a('v_add_f32 v%d, v%d, v%d', U + 4 * i + e, U + 4 * i + e, acc + 40 + 8 * i + e)
    for i in range(5):
        a('s_waitcnt lgkmcnt(%d)', 4 - i)
        for e in range(4):
            a('v_add_f32 v%d, v%d, v%d', U + 4 * i + e, U + 4 * i + e, acc + 44 + 8 * i + e)
    stamp('S', 'yrdy')
    if OPT['yhold']:
        a('v_subrev_u32 v%d, 1024, v%d', T + 2, vSPW)
        waitpw(T + 2, 9, T + 1, sleep=2)
    for i in range(5):
        a('buffer_store_dwordx4 %s, v%d, s[%d:%d], s82 offen offset:%d%s', v(U + 4 * i, 4), vOA, R6, R6 + 3, 64 * i, YSC)
    finish('S')

prologue()
a_setup()
a_att_setup()
a_qphase()
a_handoff()
a_attention()
a_outproj()
s_setup()
s_qloader()
if OPT['sexit'] == 1:
    setpw(99, 40)
    finish('S')
s_b1()
if OPT['sexit'] == 2:
    setpw(99, 40)
    finish('S')
s_scan()
s_b3()
a.label('L_codeend')

errs = check(a.lines)
for e_ in errs:
    print('HAZARD', e_, file=sys.stderr)

head = open('cdna_kernels/%s.s.ref' % NAME).read().split('; @launch')[0]
out = head + '; @launch grid=(256,1,1) block=(512,1,1) lds=%d\n' % LDS_BYTES
out += '''.amdgcn_target "amdgcn-amd-amdhsa--gfx950"
.text
.globl %s_kernel
.p2align 8
.type %s_kernel,@function
%s_kernel:
''' % (NAME, NAME, NAME)
out += a.text()
out += '''.section .rodata,"a"
.p2align 6
.amdhsa_kernel %s_kernel
  .amdhsa_next_free_vgpr 256
  .amdhsa_next_free_sgpr 102
  .amdhsa_accum_offset 256
  .amdhsa_group_segment_fixed_size 0
  .amdhsa_kernarg_size 120
  .amdhsa_user_sgpr_count 2
  .amdhsa_user_sgpr_kernarg_segment_ptr 1
  .amdhsa_system_sgpr_workgroup_id_x 1
.end_amdhsa_kernel
''' % NAME
open(sys.argv[1], 'w').write(out)
if DIAG:
    import json
    json.dump(nstamp, open(sys.argv[1] + '.stamps.json', 'w'))
import subprocess
r_ = subprocess.run(['clang', '-x', 'assembler', '-target', 'amdgcn-amd-amdhsa', '-mcpu=gfx950', '-c', sys.argv[1], '-o', 'chk.o'], capture_output=True, text=True)
if r_.returncode:
    print(r_.stderr[:2000])
    sys.exit(1)
if errs:
    sys.exit(1)
```

```python
import sys, math, struct
from asmlib import Asm, v, s, check

NAME = 'concat_heads__mha_block__ssm_conv_s5__prompt'
OPT = dict(diag=0, b3start=12, force_fb=0, psleep=2, fine=0, cpre=1, stag=4, b1dep=2, rot=1, thr=4, hold=3, codepre=1, psleep4=2, padto=0, outsc1=1, gate4=-1, early0=1, st10=2, b1prio=0, probe='', probewg=-1, sexit=0, b3prio=0, nocdma=0, mallpre=0, b3early=1, pretouch=-1, pace=0, pause=1, wolate=1, thrw=2, kvsplit=5, tstart=0, k2split=0, gate1='x', tlate=0, spread=1, pollat=17, tearly=0, b3stop=15, b3res=7, hrate=3, yhold=1, rot5=1, wopack=0, olead=20, allpoll=1, ysc=1, clrwide=0, nodup=1, onewait=0, vzero=1, lalign=6, lpad=0, epoll=1, npre=2, tprio=0, pgate=1, p3dyn=0, flip=1, newpre=1, f3at=2, gtouch=0)
for a_ in sys.argv[2:]:
    k_, v_ = a_.split('=')
    OPT[k_] = v_ if k_ in ('probe', 'gate1') else int(v_)
DIAG = OPT['diag']
OSC = ['', ' sc1', ' nt', ' sc1 nt'][OPT['outsc1']]
YSC = ['', ' sc1', ' nt', ' sc1 nt'][OPT['ysc']]

def f2u(x):
    return struct.unpack('<I', struct.pack('<f', x))[0]

BLK, VOFF, VROW = 247808, 164864, 10368
WS_H, HBLK = 0x800000, 40960
WS_O, OBLK = 0xD00000, 20480
WS_E = 0xF80000
WS_F = 0xFA0000
F1, F3, F4 = WS_F, WS_F + 0x8000, WS_F + 0x28000
WS_WP = 0x1000000
WS_END = WS_WP + 8 * 102400
WS_DIAG = 0x1100000
OOB = 0x7F000000
L_HT, L_EL, L_PL, L_PAR = 131072, 151552, 156672, 161024
L_PAR = 131072 + 0
L_WO = 0
L_REG, REGSZ = 102400, 14848
L_PW = 161792
LDS_BYTES = 163840
sAX, sWQ, sWO, sBX, sLRE, sLIM, sBRE, sBIM, sCRE, sCIM, sLDT, sDSK, sOUT, sDBG, sWS = range(4, 34, 2)
sW, sI, sXCD = 34, 35, 3
R0, R1, RWS, R3, R4, R5, R6 = 36, 40, 44, 48, 52, 56, 60
sRB, sCG, sHD, sQB, sTB, sOG = 64, 65, 66, 67, 68, 69
sSPIN = 96
sHI = 94
vLANE, vPW, vTS = 254, 253, 255
SPIN_MAX = 1 << 19

a = Asm()
nstamp = {}

def stamp(role, name):
    if OPT['probe'] == role + name:
        a('s_memrealtime s[98:99]')
        a('s_waitcnt lgkmcnt(0)')
        a('s_mov_b32 s97, s98')
    if not DIAG:
        return
    l = nstamp.setdefault(role, [])
    if DIAG == 2:
        l.append(name)
        return
    idx = len(l)
    l.append(name)
    a('s_memtime s[98:99]')
    a('s_memrealtime s[100:101]')
    a('s_waitcnt lgkmcnt(0)')
    a('v_writelane_b32 v%d, s98, %d', vTS, idx)
    a('v_writelane_b32 v%d, s100, %d', vTS, 32 + idx)

def srd(r, base, nbytes):
    a('s_mov_b32 s%d, s%d', r, base)
    a('s_mov_b32 s%d, s%d', r + 1, base + 1)
    if isinstance(nbytes, int):
        a('s_mov_b32 s%d, 0x%x', r + 2, nbytes)
    else:
        a('s_mov_b32 s%d, %s', r + 2, nbytes)
    a('s_mov_b32 s%d, 0x20000', r + 3)

def setpw(val, tmp):
    a('v_mov_b32 v%d, %d', tmp, val)
    a('ds_write_b32 v%d, v%d', vPW, tmp)

def waitpw(vaddr, val, tmp, sleep=0):
    L = a.newlabel('pw')
    D = a.newlabel('pwd')
    a.label(L)
    a('ds_read_b32 v%d, v%d', tmp, vaddr)
    a('s_waitcnt lgkmcnt(0)')
    a('v_cmp_gt_u32 vcc, %d, v%d', val, tmp)
    a('s_cbranch_vccz %s', D)
    if sleep:
        a('s_sleep %d', sleep)
    a('s_sub_u32 s%d, s%d, 1', sSPIN, sSPIN)
    a('s_cbranch_scc0 %s', L)
    a('s_endpgm')
    a.label(D)

def pollflags(loads, tmp, sleep=1):
    L = a.newlabel('pf')
    D = a.newlabel('pfd')
    a.label(L)
    for l in loads:
        a(l)
    a('s_waitcnt vmcnt(0)')
    for i in range(1, len(loads)):
        a('v_and_b32 v%d, v%d, v%d', tmp, tmp, tmp + i)
    a('v_cmp_eq_u32 vcc, 0, v%d', tmp)
    a('s_cbranch_vccz %s', D)
    a('s_mov_b64 exec, vcc')
    if sleep:
        a('s_sleep %d', sleep)
    a('s_sub_u32 s%d, s%d, 1', sSPIN, sSPIN)
    a('s_cbranch_scc0 %s', L)
    a('s_endpgm')
    a.label(D)
    a('s_mov_b64 exec, -1')

def dbgload(va, vd):
    return 'global_load_dword v%d, v%d, s[%d:%d] sc1' % (vd, va, sDBG, sDBG + 1)

def flagaddr(dst, idx, base, t):
    a('s_lshl_b32 s%d, s%d, 7', dst, idx)
    a('s_add_u32 s%d, s%d, 0x%x', dst, dst, base)

def setflag(soff, tmp):
    a('v_mov_b32 v%d, 1', tmp)
    a('s_mov_b64 exec, 1')
    a('buffer_store_dword v%d, off, s[%d:%d], s%d sc1', tmp, RWS, RWS + 3, soff)
    a('s_mov_b64 exec, -1')

def tau(dst, src, t):
    a('v_and_b32 v%d, 0x13, v%d', dst, src)
    a('v_and_b32 v%d, 4, v%d', t, src)
    a('v_lshl_or_b32 v%d, v%d, 1, v%d', dst, t, dst)
    a('v_and_b32 v%d, 8, v%d', t, src)
    a('v_lshrrev_b32 v%d, 1, v%d', t, t)
    a('v_or_b32 v%d, v%d, v%d', dst, t, dst)

def finish(role):
    if OPT['probe'][:1] == role:
        if OPT['probe'][1:] == 'drained':
            a('s_waitcnt vmcnt(0)')
            stamp(role, 'drained')
        a('s_sub_u32 s97, s97, s100')
        a('s_mul_i32 s97, s97, 10')
        a('s_add_u32 s97, s97, 10000')
        if OPT['probewg'] >= 0:
            a('s_and_b32 s98, s2, 31')
            a('s_cmp_eq_u32 s98, %d', OPT['probewg'])
            a('s_cselect_b32 s97, s97, 0')
        L = a.newlabel('pad')
        a.label(L)
        a('s_sleep 4')
        a('s_memrealtime s[98:99]')
        a('s_waitcnt lgkmcnt(0)')
        a('s_sub_u32 s98, s98, s100')
        a('s_cmp_lt_u32 s98, s97')
        a('s_cbranch_scc1 %s', L)
    if OPT['padto']:
        L = a.newlabel('pad')
        a.label(L)
        a('s_sleep 4')
        a('s_memrealtime s[98:99]')
        a('s_waitcnt lgkmcnt(0)')
        a('s_sub_u32 s98, s98, s100')
        a('s_cmp_lt_u32 s98, %d', OPT['padto'])
        a('s_cbranch_scc1 %s', L)
    if DIAG:
        stamp(role, 'end')
        a('s_waitcnt vmcnt(0)')
        stamp(role, 'drained')
        a('s_memrealtime s[98:99]')
        a('s_waitcnt lgkmcnt(0)')
        a('v_writelane_b32 v%d, s98, 31', vTS)
        a('s_lshl_b32 s70, s2, 3')
        a('s_add_u32 s70, s70, s%d', sW)
        if role == 'S':
            a('s_add_u32 s70, s70, 4')
        a('s_lshl_b32 s70, s70, 8')
        a('s_add_u32 s70, s70, 0x%x', WS_DIAG)
        a('v_lshlrev_b32 v0, 2, v%d', vLANE)
        a('buffer_store_dword v%d, v0, s[%d:%d], s70 offen', vTS, RWS, RWS + 3)
    a('s_endpgm')

def prologue():
    a('s_cmp_ge_u32 s2, 256')
    a('s_cbranch_scc0 L_go')
    a('s_endpgm')
    a.label('L_go')
    if OPT['padto'] or DIAG or OPT['probe']:
        a('s_memrealtime s[100:101]')
    a('s_load_dwordx16 s[4:19], s[0:1], 0')
    a('s_load_dwordx8 s[20:27], s[0:1], 64')
    a('s_load_dwordx4 s[28:31], s[0:1], 96')
    a('s_load_dwordx2 s[32:33], s[0:1], 112')
    a('v_lshrrev_b32 v1, 6, v0')
    a('v_and_b32 v%d, 63, v0', vLANE)
    a('v_readfirstlane_b32 s%d, v1', sW)
    a('v_lshlrev_b32 v%d, 2, v0', vPW)
    a('v_add_u32 v%d, %d, v%d', vPW, L_PW, vPW)
    a('v_mov_b32 v1, 0')
    a('ds_write_b32 v%d, v1', vPW)
    a('s_and_b32 s%d, s2, 7', sXCD)
    a('s_lshr_b32 s%d, s2, 3', sI)
    a('s_and_b32 s70, s%d, 3', sI)
    a('s_lshr_b32 s%d, s%d, 2', sOG, sI)
    a('s_lshr_b32 s71, s%d, 1', sXCD)
    a('s_lshl2_add_u32 s%d, s71, s70', sRB)
    a('s_and_b32 s71, s%d, 1', sXCD)
    a('s_lshl3_add_u32 s%d, s71, s%d', sCG, sOG)
    a('s_lshr_b32 s71, s%d, 3', sI)
    a('s_lshl2_add_u32 s%d, s%d, s71', sHD, sXCD)
    a('s_and_b32 s%d, s%d, 7', sQB, sI)
    a('s_lshl2_add_u32 s%d, s%d, s70', sTB, sXCD)
    a('s_mov_b32 s%d, 0x%x', sSPIN, SPIN_MAX)
    a('s_mov_b32 s%d, 0', sHI)
    a('s_mov_b32 s%d, -1', sHI + 1)
    a('s_cmp_ge_u32 s%d, 4', sW)
    a('s_cbranch_scc0 L_roleA')

def ws_setup():
    srd(RWS, sWS, WS_END if not DIAG else WS_DIAG + 0x100000)
    if DIAG:
        a('v_mov_b32 v%d, 0', vTS)
        a('v_writelane_b32 v%d, s100, 30', vTS)

def stagger(k, t, add, flip=1, newpre=1, f3at=2, gtouch=0):
    a('s_and_b32 s%d, s%d, 3', k, sI)
    if flip:
        a('s_xor_b32 s%d, s%d, 1', k, k)
    a('s_mul_i32 s%d, s%d, 5', k, k)
    a('s_lshr_b32 s%d, s%d, 1', k, k)
    a('s_mul_i32 s%d, s%d, 5', t, sOG)
    a('s_lshr_b32 s%d, s%d, 2', t, t)
    a('s_add_u32 s%d, s%d, s%d', k, k, t)
    a('s_add_u32 s%d, s%d, %d', t, sXCD, 1 + 2 * add)
    a('s_lshr_b32 s%d, s%d, 1', t, t)
    a('s_add_u32 s%d, s%d, s%d', k, k, t)
    for _ in range(2 if add else 1):
        a('s_cmp_ge_u32 s%d, 10', k)
        a('s_cselect_b32 s%d, 10, 0', t)
        a('s_sub_u32 s%d, s%d, s%d', k, k, t)

def b1_sources(rx, rb, vx, vb, sm, sb, t, j0=2):
    srd(rx, sBX, 2048 * 1280)
    a('s_cmp_ge_u32 s%d, 2', sW)
    a('s_cselect_b32 s%d, s%d, s%d', t, sBIM, sBRE)
    a('s_cselect_b32 s%d, s%d, s%d', t + 1, sBIM + 1, sBRE + 1)
    srd(rb, t, 640 * 1280)
    a('v_lshrrev_b32 v1, 3, v%d', vLANE)
    a('v_and_b32 v2, 7, v%d', vLANE)
    a('v_lshrrev_b32 v3, 4, v%d', vLANE)
    a('v_xor_b32 v4, v2, v3')
    a('v_and_b32 v5, 3, v1')
    a('v_lshrrev_b32 v6, 2, v1')
    a('v_lshl_add_u32 v5, v6, 3, v5')
    a('v_mul_u32_u24 v5, 1280, v5')
    a('v_lshl_add_u32 v%d, v4, 4, v5', vx)
    a('v_xor_b32 v6, 64, v%d', vx)
    a('v_add_u32 v%d, %d, v6', vx + 1, 16 * 1280 - 1024)
    a('v_add_u32 v%d, %d, v%d', vx + 2, 4 * 1280 - 2048, vx)
    a('v_add_u32 v%d, %d, v6', vx + 3, 20 * 1280 - 3072)
    a('s_lshr_b32 s%d, s%d, 1', t, sW)
    a('s_lshl_b32 s%d, s%d, 6', t + 1, t)
    a('v_mul_u32_u24 v5, 1280, v1')
    a('v_lshl_add_u32 v5, v4, 4, v5')
    a('v_xor_b32 v%d, s%d, v5', vb, t + 1)
    for i in range(1, 3):
        a('v_add_u32 v%d, %d, v%d', vb + i, (10240 - 1024) * i, vb)
    a('s_and_b32 s%d, s%d, 1', t + 1, sW)
    a('s_mul_i32 s%d, s%d, 5120', sm, t)
    a('s_mul_i32 s%d, s%d, %d', sb, t + 1, 1024 * j0)
    a('s_add_u32 s%d, s%d, s%d', sm, sm, sb)
    a('s_mul_i32 s%d, s%d, %d', sb, sCG, 40 * 1280)
    a('s_mul_i32 s%d, s%d, %d', t + 1, t + 1, 8 * 1280 * j0)
    a('s_add_u32 s%d, s%d, s%d', sb, sb, t + 1)

def dma(voff, r, soff, imm):
    return 'buffer_load_dwordx4 v%d, s[%d:%d], s%d offen offset:%d lds' % (voff, r, r + 3, soff, imm)

def a_b1stage(t):
    slot = (t % 4) * 32768
    a('s_add_u32 m0, s6, %d', slot)
    a('s_lshl_b32 s9, s8, 7')
    a('s_add_u32 s12, s4, s9')
    for i in range(4):
        a(dma(112 + i, R5, 12, 1024 * i))
    a('s_add_u32 m0, s7, %d', slot + 16384)
    a('s_add_u32 s12, s5, s9')
    L = a.newlabel('b3rd')
    for i in range(3):
        if i == 2 and OPT['nodup']:
            a('s_cmp_eq_u32 s%d, 1', sCW)
            a('s_cbranch_scc1 %s', L)
        a(dma(116 + i, R6, 12, 1024 * i))
    a.label(L)
    a('s_add_u32 s8, s8, 1')
    a('s_cmp_eq_u32 s8, 10')
    a('s_cselect_b32 s8, 0, s8')

sTW, sCW = 72, 73
vXA, vWA = 96, 104
vF1A = 252
vAPW = 249

def a_setup():
    a.label('L_roleA')
    a('s_waitcnt lgkmcnt(0)')
    ws_setup()
    stamp('A', 'start')
    a('s_lshr_b32 s%d, s%d, 1', sTW, sW)
    a('s_and_b32 s%d, s%d, 1', sCW, sW)
    a('s_lshl1_add_u32 s75, s%d, s%d', sRB, sTW)
    a('s_mul_i32 s74, s75, %d', BLK)
    a.c('column group 15 has no GEMM tile: these workgroups clear the flags and write the constant blocks')
    a('s_cmp_eq_u32 s%d, 15', sCG)
    a('s_cbranch_scc0 L_noconst')
    a('s_lshl2_add_u32 s77, s%d, s%d', sRB, sW)
    if OPT['clrwide']:
        a('v_lshlrev_b32 v2, 4, v%d', vLANE)
        a('v_min_u32 v3, 496, v2')
        for i in range(4):
            a('v_mov_b32 v%d, 0', 4 + i)
        a('s_mul_i32 s76, s77, 4608')
        a('s_add_u32 s76, s76, 0x%x', WS_F)
        for i in range(4):
            a('buffer_store_dwordx4 v[4:7], v2, s[%d:%d], s76 offen offset:%d sc1', RWS, RWS + 3, 1024 * i)
        a('s_add_u32 s76, s76, 4096')
        a('buffer_store_dwordx4 v[4:7], v3, s[%d:%d], s76 offen sc1', RWS, RWS + 3)
    else:
        a('v_min_u32 v1, 35, v%d', vLANE)
        a('v_lshlrev_b32 v1, 7, v1')
        a('v_mov_b32 v4, 0')
        a('s_mul_i32 s76, s77, 4608')
        a('s_add_u32 s76, s76, 0x%x', WS_F)
        a('buffer_store_dword v4, v1, s[%d:%d], s76 offen sc1', RWS, RWS + 3)
        a('v_lshlrev_b32 v2, 4, v%d', vLANE)
    for i in range(4):
        a('v_mov_b32 v%d, -1', 20 + i)
    a('s_lshl_b32 s76, s77, 11')
    a('s_add_u32 s76, s76, 0x%x', WS_E)
    for i in range(2):
        a('buffer_store_dwordx4 v[20:23], v2, s[%d:%d], s76 offen offset:%d sc1', RWS, RWS + 3, 1024 * i)
    a('v_lshrrev_b32 v1, 3, v%d', vLANE)
    a('v_mul_u32_u24 v1, %d, v1', VROW - 128)
    a('v_add_u32 v1, %d, v1', VOFF + 640 * 16 - 160 * 1024)
    a('v_mul_lo_u32 v1, v1, s%d', sCW)
    a('v_add_u32 v1, v1, v2')
    a('s_mul_i32 s76, s%d, 0x3f803f80', sCW)
    a('v_mov_b32 v8, 0x3f803f80')
    a('v_mov_b32 v9, s76')
    a('v_mov_b32 v10, v8')
    a('v_mov_b32 v11, s76')
    a('s_add_u32 s76, s74, %d', 160 * 1024)
    a('buffer_store_dwordx4 v[8:11], v1, s[%d:%d], s76 offen sc1', RWS, RWS + 3)
    a.label('L_noconst')
    if OPT['codepre']:
        a.c('pull the code into L2: each wave of an XCD touches a few lines')
        a('s_getpc_b64 s[76:77]')
        a.label('L_pc')
        a('s_sub_u32 s76, s76, L_pc - L_go')
        a('s_subb_u32 s77, s77, 0')
        a('s_lshl2_add_u32 s78, s%d, s%d', sI, sW)
        a('s_mul_i32 s78, s78, 3')
        a('v_min_u32 v1, 2, v%d', vLANE)
        a('v_add_u32 v1, s78, v1')
        a('v_min_u32 v1, (L_codeend - L_go) / 128 - 1, v1')
        a('v_lshlrev_b32 v1, 7, v1')
        a('global_load_dword v110, v1, s[76:77]')
    a.c('LDS fragment addresses for the QKV GEMM')
    a('v_and_b32 v1, 31, v%d', vLANE)
    a('v_lshrrev_b32 v2, 5, v%d', vLANE)
    a('v_bfe_u32 v3, v1, 1, 3')
    a('v_xor_b32 v3, v3, v2')
    a('v_lshlrev_b32 v3, 4, v3')
    a('v_lshl_add_u32 v3, v1, 7, v3')
    a('s_lshl_b32 s76, s%d, 13', sTW)
    a('v_add_u32 v3, s76, v3')
    for ks in range(4):
        a('v_xor_b32 v%d, %d, v3', vXA + ks, ks << 5)
        a('v_add_u32 v%d, 0x10000, v%d', vXA + 4 + ks, vXA + ks)
    a('v_bfe_u32 v4, v%d, 2, 2', vLANE)
    a('v_lshl_add_u32 v5, v2, 3, v4')
    a('v_lshlrev_b32 v5, 8, v5')
    a('v_bfe_u32 v6, v%d, 4, 1', vLANE)
    a('v_and_b32 v7, 1, v%d', vLANE)
    a('v_lshl_add_u32 v6, v6, 1, v7')
    a('s_lshl_b32 s76, s%d, 3', sCW)
    a('v_add_u32 v6, s76, v6')
    a('v_lshlrev_b32 v4, 2, v4')
    a('v_xor_b32 v6, v6, v4')
    a('v_lshl_add_u32 v5, v6, 4, v5')
    a('v_bfe_u32 v7, v%d, 1, 1', vLANE)
    a('v_lshl_add_u32 v5, v7, 3, v5')
    a('v_add_u32 v%d, 16384, v5', vWA)
    a('v_xor_b32 v%d, 64, v%d', vWA + 1, vWA)
    a('v_add_u32 v%d, 0x10000, v%d', vWA + 2, vWA)
    a('v_add_u32 v%d, 0x10000, v%d', vWA + 3, vWA + 1)

def a_qloop(vt):
    F = [64, 80]
    def reads(st, ks, f):
        slot = st % 4
        hi, lo = slot >> 1, (slot & 1) * 32768
        r = []
        for T in range(2):
            r.append('ds_read_b128 %s, v%d offset:%d' % (v(f + 4 * T, 4), vXA + 4 * hi + ks, lo + 4096 * T))
        for Tc in range(2):
            for rd in range(2):
                r.append('ds_read_b64_tr_b16 %s, v%d offset:%d' % (v(f + 8 + 4 * Tc + 2 * rd, 2), vWA + 2 * hi + Tc,
                                                                  lo + (16 * ks + 4 * rd) * 256))
        return [r[0], r[2], r[3], r[1], r[4], r[5]]
    def mfma(f, i, j, first):
        acc = (2 * i + j) * 16
        A = f + 4 * i if vt else f + 8 + 4 * i
        B = f + 8 + 4 * j if vt else f + 4 * j
        return 'v_mfma_f32_32x32x16_bf16 %s, %s, %s, %s' % (v(acc, 16), v(A, 4), v(B, 4), '0' if first else v(acc, 16))
    a('s_barrier')
    for r in reads(0, 0, F[0]):
        a(r)
    for st in range(10):
        for ks in range(4):
            cur, nxt = F[ks & 1], F[(ks + 1) & 1]
            first = st == 0 and ks == 0
            a('s_waitcnt lgkmcnt(0)')
            if ks == 3:
                a('s_barrier')
                rr = reads(st + 1, 0, nxt) if st < 9 else []
            else:
                rr = reads(st, ks + 1, nxt)
            if st == 9 and ks == 3:
                a(mfma(cur, 0, 0, False))
                a(mfma(cur, 0, 1, False))
                return [mfma(nxt, 1, 1, False), mfma(cur, 1, 0, False), mfma(cur, 1, 1, False)]
            a(mfma(cur, 0, 0, first))
            for r in rr[:3]:
                a(r)
            a(mfma(cur, 0, 1, first))
            for r in rr[3:]:
                a(r)
            a(mfma(cur, 1, 0, first))
            if not (st == 9 and ks == 2):
                a(mfma(cur, 1, 1, first))

def tailweave(ms, work):
    a(ms[0])
    a('s_nop 6')
    a(ms[1])
    a('s_nop 1')
    for o in work[:6]:
        a(o)
    a(ms[2])
    for o in work[6:]:
        a(o)

def a_pack_wo():
    a('s_lshl2_add_u32 s76, s%d, s%d', sRB, sW)
    a('s_mul_i32 s77, s76, 12800')
    a('s_add_u32 s78, s14, s77')
    a('s_addc_u32 s79, s15, 0')
    a('s_mul_i32 s76, s76, 10')
    a('s_mov_b32 s80, 0x%x', WS_WP)
    for n in range(13):
        a('v_add_u32 v60, %d, v%d', 64 * n, vLANE)
        if n == 12:
            a('v_min_u32 v60, 799, v60')
        a('v_lshlrev_b32 v61, 4, v60')
        a('global_load_dwordx4 %s, v61, s[78:79]', v(4 * n, 4))
        a('v_mul_u32_u24 v61, 820, v60')
        a('v_lshrrev_b32 v61, 16, v61')
        a('v_mul_u32_u24 v62, 80, v61')
        a('v_sub_u32 v60, v60, v62')
        a('v_add_u32 v61, s76, v61')
        a('v_mul_u32_u24 v62, 6554, v60')
        a('v_lshrrev_b32 v62, 16, v62')
        a('v_mul_u32_u24 v62, %d, v62', 6400 - 10)
        a('v_add_u32 v60, v60, v62')
        a('v_and_b32 v62, 0xfff3, v61')
        a('v_and_b32 v63, 4, v61')
        a('v_lshl_or_b32 v62, v63, 1, v62')
        a('v_bfe_u32 v63, v61, 3, 1')
        a('v_lshl_or_b32 v62, v63, 2, v62')
        a('v_mul_u32_u24 v62, 10, v62')
        a('v_add_lshl_u32 v%d, v60, v62, 4', 64 + n)
    for n in range(13):
        a('s_waitcnt vmcnt(12)')
        a('buffer_store_dwordx4 %s, v%d, s[%d:%d], s80 offen sc1', v(4 * n, 4), 64 + n, RWS, RWS + 3)
    if OPT['wopack'] > 1:
        a('v_min_u32 v60, 49, v%d', vLANE)
        a('v_lshl_add_u32 v60, v60, 7, s77')
        a('v_add_u32 v61, 6400, v60')
        for p in (sCRE, sCIM):
            a('global_load_dword v111, v60, s[%d:%d]', p, p + 1)
            a('global_load_dword v111, v61, s[%d:%d]', p, p + 1)

def a_qphase():
    a('s_cmp_ge_u32 s%d, 10', sCG)
    a('s_cbranch_scc1 L_qV')
    a('v_and_b32 v1, 31, v%d', vLANE)
    a('v_lshrrev_b32 v2, 5, v%d', vLANE)
    a('v_lshlrev_b32 v1, 4, v1')
    a('v_lshl_add_u32 v108, v2, 10, v1')
    a('s_lshl1_add_u32 s76, s%d, s%d', sCG, sCW)
    a('s_lshl_b32 s77, s76, 13')
    a('s_add_u32 s77, s77, s74')
    a('s_add_u32 s78, s77, 4096')
    a('s_mul_i32 s79, s%d, 3', sCW)
    a('s_add_u32 s79, s79, s%d', sCG)
    for _ in range(2):
        a('s_cmp_ge_u32 s79, 5')
        a('s_cselect_b32 s80, 5, 0')
        a('s_sub_u32 s79, s79, s80')
    for Tc in range(2):
        for u in range(2):
            m = 16 + 2 * (2 * Tc + u)
            a('s_cmp_eq_u32 s79, %d', (2 - 4 * Tc - 2 * u) % 5)
            a('s_cselect_b32 s%d, -1, 0', m)
            a('s_cmp_eq_u32 s79, %d', (1 - 4 * Tc - 2 * u) % 5)
            a('s_cselect_b32 s%d, -1, 0', m + 1)
    c0 = f2u(math.log2(math.e) / math.sqrt(20.0))
    a('s_mov_b32 s80, 0x%x', c0)
    ms = a_qloop(False)
    def group(Tc, u, scale):
        o = []
        P = 120 + 8 * (2 * Tc + u)
        for T in range(2):
            acc = (2 * Tc + T) * 16 + 8 * u
            if scale:
                o += ['v_mul_f32 v%d, s80, v%d' % (acc + e, acc + e) for e in range(8)]
            o += ['v_cvt_pk_bf16_f32 v%d, v%d, v%d' % (P + 4 * T + q, acc + 2 * q, acc + 2 * q + 1) for q in range(4)]
        m = 16 + 2 * (2 * Tc + u)
        o.append('s_mov_b64 exec, s[%d:%d]\nv_swap_b32 v%d, v%d\nv_swap_b32 v%d, v%d\ns_mov_b64 exec, -1' % (m, m + 1, P + 2, P + 4, P + 3, P + 5))
        for T in range(2):
            o.append('buffer_store_dwordx4 %s, v108, s[%d:%d], s%d offen offset:%d sc1' % (v(P + 4 * T, 4), RWS, RWS + 3,
                     77 + Tc, 2048 * u + 512 * T))
        return o
    a('s_cmp_ge_u32 s%d, 5', sCG)
    a('s_cbranch_scc1 L_noscale')
    tailweave(ms, group(0, 0, True) + group(0, 1, True))
    a('s_mov_b32 s81, s80')
    for i in range(32, 64, 2):
        a('v_pk_mul_f32 %s, %s, s[80:81]', v(i, 2), v(i, 2))
    a('s_branch L_qk2')
    a.label('L_noscale')
    tailweave(ms, group(0, 0, False) + group(0, 1, False))
    a.label('L_qk2')
    for o in group(1, 0, False) + group(1, 1, False):
        a(o)
    stamp('A', 'qloop')
    a('s_branch L_qdone')
    a.label('L_qV')
    a('s_cmp_eq_u32 s%d, 15', sCG)
    a('s_cbranch_scc0 L_qV2')
    a('s_lshl_b32 s76, s%d, 4', sRB)
    a('v_mov_b32 v16, s76')
    a('v_mov_b32 v17, 1')
    a('s_waitcnt vmcnt(0)')
    a('s_barrier')
    a('s_cmp_eq_u32 s%d, 0', sW)
    a('s_cbranch_scc0 L_nosig')
    a('s_mov_b64 exec, 1')
    a('global_store_dword v16, v17, s[%d:%d] sc1', sDBG, sDBG + 1)
    a('s_mov_b64 exec, -1')
    a.label('L_nosig')
    if OPT['mallpre']:
        a('v_lshlrev_b32 v1, 7, v%d', vLANE)
        a('v_min_u32 v2, %d, v1', 39 * 128)
        a('s_lshl2_add_u32 s76, s%d, s%d', sRB, sW)
        a('s_mul_i32 s76, s76, 40960')
        a('s_lshl1_add_u32 s77, s%d, s%d', sRB, sCW)
        a('s_mul_i32 s77, s77, 25600')
        for k in range(OPT['mallpre']):
            a('buffer_load_dword v111, v2, s[%d:%d], s77 offen', R6, R6 + 3)
            a('buffer_load_dword v111, v1, s[%d:%d], s76 offen', R5, R5 + 3)
            a('s_add_u32 s77, s77, 5120')
            a('s_add_u32 s76, s76, 8192')
    if OPT['wopack']:
        a_pack_wo()
    for _ in range(10):
        a('s_barrier')
    if DIAG:
        nstamp['A'].pop()
    stamp('A', 'qloop')
    a('s_branch L_qdone')
    a.label('L_qV2')
    a('s_lshl1_add_u32 s76, s%d, s%d', sCG, sCW)
    a('v_and_b32 v1, 31, v%d', vLANE)
    tau(108, 1, 2)
    a('v_lshrrev_b32 v2, 5, v%d', vLANE)
    a('v_mul_u32_u24 v2, %d, v2', VROW)
    a('v_lshl_add_u32 v108, v108, 4, v2')
    a('s_sub_u32 s76, s76, 20')
    a('s_lshl_b32 s76, s76, 10')
    a('s_add_u32 s76, s76, s74')
    a('s_add_u32 s76, s76, %d', VOFF)
    for k in range(1, 4):
        a('s_add_u32 s%d, s76, %d', 76 + k, 2 * VROW * k)
    ms = a_qloop(True)
    work = []
    n = 0
    for T in range(2):
        for Tc in range(2):
            for m in range(2):
                P = 120 + 4 * n
                n += 1
                acc = (2 * T + Tc) * 16 + 8 * m
                work += ['v_cvt_pk_bf16_f32 v%d, v%d, v%d' % (P + q, acc + 2 * q, acc + 2 * q + 1) for q in range(4)]
                work.append('buffer_store_dwordx4 %s, v108, s[%d:%d], s%d offen offset:%d sc1' % (v(P, 4), RWS, RWS + 3, 76 + 2 * T + m, 512 * Tc))
    tailweave(ms, work)
    if DIAG:
        nstamp['A'].pop()
    stamp('A', 'qloop')
    a.label('L_qdone')

vO, vS = 0, 64
KV = [128, 156]
K1A, K1B, K2, VA0, VA1, VB0, VB1 = 0, 4, 8, 12, 16, 20, 24
vQ1, vQ2 = 184, 200
vK1, vK2, vV, vIDX, vNC, vM = 208, 209, 210, 214, 216, 220
vT = 224
vMG = 240
sQH, sKH, sODD, sP5, sOFF, sKV0, sPASS, sCNT = 76, 77, 78, 79, 80, 93, 82, 83
sKVB, sKVE = 70, 71

def a_att_setup():
    a('s_and_b32 s%d, s%d, 1', sQH, sW)
    a('s_lshr_b32 s%d, s%d, 1', sKH, sW)
    a('s_and_b32 s%d, s%d, 1', sODD, sHD)
    a('s_lshr_b32 s85, s%d, 1', sHD)
    a('s_mul_i32 s%d, s85, 5', sP5)
    a('s_mul_i32 s%d, s%d, %d', sKVB, sKH, 16 * BLK)
    a('s_add_u32 s%d, s%d, %d', sKVE, sKVB, 16 * BLK)
    a('s_mul_i32 s86, s%d, %d', sQB, 2 * BLK * OPT['rot'])
    a('s_add_u32 s%d, s%d, s86', sKV0, sKVB)
    srd(R3, sWS, 32 * BLK)
    srd(R4, sOUT, 2048 * 1280 * 4)
    a('s_mov_b32 s%d, 0', sPASS)
    i, h, t, x = vT, vT + 1, vT + 2, vT + 3
    a('v_and_b32 v%d, 31, v%d', i, vLANE)
    a('v_lshrrev_b32 v%d, 5, v%d', h, vLANE)
    tau(t, i, x)
    a('s_mul_i32 s86, s%d, 3', sODD)
    a('s_add_u32 s86, s86, s%d', sP5)
    a('s_lshl_b32 s87, s86, 10')
    a('v_lshl_add_u32 v%d, v%d, 10, s87', x, h)
    a('v_lshl_add_u32 v%d, v%d, 4, v%d', vT + 4, i, x)
    a('v_lshl_add_u32 v%d, v%d, 4, v%d', vK1, t, x)
    a('v_add_u32 v%d, %d, v%d', vK1, 80 * 1024, vK1)
    a('s_add_u32 s87, s%d, 2', sP5)
    a('s_lshl1_add_u32 s87, s87, s%d', sODD)
    a('s_lshl_b32 s87, s87, 9')
    a('v_lshl_add_u32 v%d, v%d, 4, s87', vT + 5, i)
    a('v_mov_b32 v%d, 0x%x', x, OOB)
    a('v_cndmask_b32 v%d, v%d, v%d, s[%d:%d]', vT + 5, vT + 5, x, sHI, sHI + 1)
    a('s_add_u32 s87, s87, %d', 80 * 1024)
    a('v_mov_b32 v%d, s87', vK2)
    a('v_mov_b32 v%d, %d', x, 160 * 1024)
    a('v_cndmask_b32 v%d, v%d, v%d, s[%d:%d]', vK2, vK2, x, sHI, sHI + 1)
    a('v_lshl_add_u32 v%d, v%d, 4, v%d', vK2, t, vK2)
    a('s_mul_i32 s86, s%d, 20', sHD)
    a('s_lshl2_add_u32 s87, s%d, s86', sODD)
    a('s_lshl_b32 s88, s%d, 4', sODD)
    a('s_sub_u32 s88, s86, s88')
    a('v_add_u32 v%d, s87, v%d', vV, t)
    a('v_add_u32 v%d, s88, v%d', x, i)
    a('v_cmp_le_u32 vcc, 16, v%d', i)
    a('v_add_u32 v%d, 620, v%d', vT + 6, i)
    a('s_nop 0')
    a('v_cndmask_b32 v%d, v%d, v%d, vcc', vV, vV, x)
    a('v_cmp_le_u32 vcc, 20, v%d', i)
    a('v_mul_u32_u24 v%d, %d, v%d', x, VROW, h)
    a('v_add_u32 v%d, %d, v%d', x, VOFF, x)
    a('v_cndmask_b32 v%d, v%d, v%d, vcc', vV, vV, vT + 6)
    a('v_lshl_add_u32 v%d, v%d, 4, v%d', vV, vV, x)
    a('v_cmp_le_u32 vcc, %d, v%d', 21 if OPT['vzero'] else 24, i)
    a('v_mov_b32 v%d, 0x%x', x, OOB)
    a('v_mov_b32 v%d, 0xdddd', vIDX)
    a('v_cndmask_b32 v%d, v%d, v%d, vcc', vV, vV, x)
    for k in range(1, 4):
        a('v_add_u32 v%d, %d, v%d', vV + k, 2 * VROW * k, vV)
    a('s_mul_i32 s87, s85, 40')
    a('s_lshl4_add_u32 s87, s%d, s87', sODD)
    a('s_add_u32 s88, s87, 23')
    a('s_lshr_b32 s87, s87, 7')
    a('s_lshr_b32 s88, s88, 7')
    a('s_add_u32 s89, s86, 19')
    a('s_lshr_b32 s86, s86, 7')
    a('s_lshr_b32 s89, s89, 7')
    a('v_lshrrev_b32 v%d, 4, v%d', x, vLANE)
    a('s_add_u32 s90, s87, 5')
    a('v_mov_b32 v%d, s90', vF1A)
    for sel, (reg, add) in enumerate(((88, 5), (86, 10), (89, 10))):
        a('s_add_u32 s90, s%d, %d', reg, add)
        a('v_cmp_eq_u32 vcc, %d, v%d', sel + 1, x)
        a('v_mov_b32 v%d, s90', vT + 6)
        a('s_nop 0')
        a('v_cndmask_b32 v%d, v%d, v%d, vcc', vF1A, vF1A, vT + 6)
    a('v_and_b32 v%d, 15, v%d', vT + 6, vLANE)
    a('v_lshl_add_u32 v%d, v%d, 4, v%d', vF1A, vF1A, vT + 6)
    a('v_lshlrev_b32 v%d, 7, v%d', vF1A, vF1A)
    a('v_mov_b32 v%d, s87', vF1A - 1)
    a('v_mov_b32 v%d, s88', vT + 6)
    a('v_cndmask_b32 v%d, v%d, v%d, s[%d:%d]', vF1A - 1, vF1A - 1, vT + 6, sHI, sHI + 1)
    a('v_bfe_u32 v%d, v%d, 4, 1', vT + 6, vLANE)
    a('v_lshl_add_u32 v%d, v%d, 4, v%d', vF1A - 1, vF1A - 1, vT + 6)
    a('s_lshl_b32 s90, s%d, 1', sQB)
    a('v_add_lshl_u32 v%d, v%d, s90, 7', vF1A - 1, vF1A - 1)
    a('v_and_b32 v%d, 3, v%d', vAPW, vLANE)
    a('v_lshlrev_b32 v%d, 8, v%d', vAPW, vAPW)
    a('v_lshlrev_b32 v%d, 2, v%d', vAPW + 1, vLANE)
    a('v_add_u32 v%d, %d, v%d', vAPW + 1, L_PW, vAPW + 1)
    a('v_add_u32 v%d, v%d, v%d', vAPW, vAPW, vAPW + 1)
    a('s_lshl1_add_u32 s90, s%d, s%d', sQB, sQH)
    a('s_lshl1_add_u32 s90, s90, s%d', sKH)
    a('s_mul_i32 s91, s90, %d', BLK)
    a('s_xor_b32 s92, s90, 1')
    a('s_mul_i32 s92, s92, %d', BLK)
    a('s_mul_i32 s36, s%d, %d', sW, REGSZ)
    a('s_add_u32 s36, s36, %d', L_REG + 8192)
    a('s_xor_b32 s37, s%d, 2', sW)
    a('s_mul_i32 s37, s37, %d', REGSZ)
    a('s_add_u32 s37, s37, %d', L_REG + 8192)
    a('v_lshl_add_u32 v%d, v%d, 4, s36', vMG, vLANE)
    a('v_lshl_add_u32 v%d, v%d, 3, s36', vMG + 1, vLANE)
    a('v_lshl_add_u32 v%d, v%d, 4, s37', vMG + 2, vLANE)
    a('v_lshl_add_u32 v%d, v%d, 3, s37', vMG + 3, vLANE)
    a('v_xor_b32 v%d, 512, v%d', vMG + 4, vPW)
    a('v_add_u32 v%d, 1024, v%d', vMG + 5, vAPW)
    a('v_bfe_u32 v%d, v%d, 4, 1', x, vLANE)
    a('v_mul_u32_u24 v%d, %d, v%d', x, OBLK, x)
    a('v_and_b32 v%d, 15, v%d', t, vLANE)
    a('v_lshl_add_u32 v%d, v%d, 4, v%d', x, t, x)
    a('v_mul_u32_u24 v%d, %d, v%d', t, 2 * OBLK, h)
    a('v_add_u32 v%d, v%d, v%d', vMG + 7, t, x)
    a('v_lshl_add_u32 v%d, v%d, 8, v%d', vMG + 6, h, x)
    a('s_mul_i32 s40, s90, %d', 4 * OBLK)
    a('s_add_u32 s40, s40, 0x%x', WS_O)
    a('s_lshl_b32 s41, s%d, 8', sP5)
    a('s_add_u32 s40, s40, s41')
    a('s_mul_i32 s41, s%d, 768', sODD)
    a('s_add_u32 s41, s41, s40')
    a('s_add_u32 s42, s41, %d', 2 * OBLK)
    a('s_lshl3_add_u32 s40, s%d, s40', sODD)
    a('s_lshl_b32 s43, s90, 5')
    a('s_add_u32 s43, s43, s%d', sHD)
    flagaddr(43, 43, F4, 0)
    a('s_mov_b64 s[14:15], s[%d:%d]', sWO, sWO + 1)
    b1_sources(R5, R6, 112, 116, 7, 5, 12, 3 if OPT['nodup'] else 2)
    a('s_lshl2_add_u32 s4, s%d, s%d', sRB, sW)
    a('s_mul_i32 s4, s4, %d', 32 * 1280)
    a('s_lshl_b32 s6, s%d, 12', sW)
    stagger(8, 9, OPT['st10'], OPT['flip'])

def a_handoff():
    first = 10 + OPT['st10']
    nst = 8
    for t in range(10, first):
        a('s_barrier')
        if t == 10:
            for i_ in range(64):
                a('v_mov_b32 v%d, 0', vO + i_)
    a_b1stage(first)
    a_b1stage(first + 1)
    lds_ = ['buffer_load_dword v%d, v%d, s[%d:%d], s85 offen sc1' % (104 + k, vF1A - k, RWS, RWS + 3) for k in range(2)]
    a('s_mov_b32 s85, 0x%x', F1)
    for t in range(first, 20):
        a('s_waitcnt vmcnt(%d)', 7 - OPT['nodup'] if t < 19 else 0)
        if t == first:
            stamp('A', 'qdrain')
        if t == 19:
            a('s_cmp_eq_u32 s%d, 0', sW)
            a('s_cbranch_scc0 L_c19')
            a('v_and_b32 v104, v104, v105')
            a('v_cmp_eq_u32 vcc, 0, v104')
            a('s_cbranch_vccnz L_c19')
            setpw(4, 102)
            a('s_waitcnt lgkmcnt(0)')
            a.label('L_c19')
        a('s_barrier')
        if t + 2 <= 19:
            a_b1stage(t + 2)
        if t == OPT['pollat']:
            a('s_cmp_eq_u32 s%d, 0', sW)
            a('s_cbranch_scc0 L_nopoll')
            for l in lds_:
                a(l)
            a.label('L_nopoll')
    stamp('A', 'b1load')
    a('s_cmp_eq_u32 s%d, 0', sW)
    a('s_cbranch_scc0 L_f1wait')
    a('s_cbranch_vccz L_f1go')
    a('s_mov_b64 exec, vcc')
    pollflags(lds_, 104, sleep=OPT['psleep'])
    setpw(4, 102)
    a.label('L_f1wait')
    waitpw(vAPW + 1, 4, 102, sleep=1)
    a.label('L_f1go')
    stamp('A', 'f1')

def kvload(st, what, soff):
    if what in (K1A, K1B):
        r = KV[st] + what
        return 'buffer_load_dwordx4 %s, v%d, s[%d:%d], s%d offen offset:%d sc1' % (v(r, 4), vK1, R3, R3 + 3, soff, 512 if what == K1B else 0)
    if what in ('2A', '2B'):
        tl = what == '2B'
        return 'buffer_load_dwordx2 %s, v%d, s[%d:%d], s%d offen offset:%d sc1' % (v(KV[st] + K2 + 2 * tl, 2), vK2, R3, R3 + 3, soff, 8 * tl)
    r = KV[st] + what
    if what == K2:
        return 'buffer_load_dwordx4 %s, v%d, s[%d:%d], s%d offen sc1' % (v(r, 4), vK2, R3, R3 + 3, soff)
    return 'buffer_load_dwordx4 %s, v%d, s[%d:%d], s%d offen sc1' % (v(r, 4), vV + (what - VA0) // 4, R3, R3 + 3, soff)

def qk1(st, tile, qt, sb):
    return 'v_mfma_f32_32x32x16_bf16 %s, %s, %s, 0' % (v(vS + 16 * sb, 16), v(KV[st] + (K1B if tile else K1A), 4), v(vQ1 + 4 * qt, 4))

def qk2(st, tile, qt, sb):
    return 'v_mfma_f32_32x32x8bf16_1k %s, %s, %s, %s' % (v(vS + 16 * sb, 16), v(KV[st] + K2 + 2 * tile, 2), v(vQ2 + 2 * qt, 2), v(vS + 16 * sb, 16))

def pv(st, tile, qt, m):
    return 'v_smfmac_f32_32x32x32_bf16 %s, %s, %s, v%d' % (v(vO + 16 * qt, 16), v(KV[st] + VA0 + 8 * tile + 4 * m, 4), v(vS + 16 * qt + 8 * m, 8), vIDX)

def maxtree(dst, src, acc):
    if acc:
        a('v_max3_f32 v%d, v%d, v%d, v%d', dst, dst, src, src + 1)
    else:
        a('v_max_f32 v%d, v%d, v%d', dst, src, src + 1)
    for k in range(2, 16, 2):
        a('v_max3_f32 v%d, v%d, v%d, v%d', dst, dst, src + k, src + k + 1)

def a_attention():
    for lp in range(2):
        for T in range(2):
            a('buffer_load_dwordx4 %s, v%d, s[%d:%d], s%d offen offset:%d sc1', v(vQ1 + 8 * lp + 4 * T, 4), vT + 4, RWS, RWS + 3, 91 + lp, 512 * T)
    for lp in range(2):
        a('buffer_load_dwordx4 %s, v%d, s[%d:%d], s%d offen sc1', v(vQ2 + 4 * lp, 4), vT + 5, RWS, RWS + 3, 91 + lp)
    a.label('L_attload')
    a('s_mov_b32 s%d, 0x40000000', sCNT)
    a('s_add_u32 s%d, s%d, %d', sOFF, sKV0, BLK)
    for w_ in (K1A, K2):
        a(kvload(0, w_, sKV0))
    for i in range(4):
        a('v_mov_b32 v%d, 0', KV[1] + VB1 + i)
    if OPT['kvsplit']:
        a('s_waitcnt vmcnt(%d)', OPT['kvsplit'] - 1)
    for w_ in (VA0, VA1, K1B, VB0, VB1):
        a(kvload(0, w_, sKV0))
    for w_ in (K1A, VA0, VA1, K1B, K2, VB0):
        a(kvload(1, w_, sOFF))
    a('s_waitcnt vmcnt(11)')
    stamp('A', 'qkload')
    a('s_cmp_eq_u32 s%d, 0', sPASS)
    a('s_cbranch_scc0 L_setc')
    a.c('stand-in for the row maximum: the maximum over the first key tile (checked after the loop)')
    def tree(qt):
        src = vS + 16 * qt
        return ['v_max_f32 v%d, v%d, v%d' % (vM + qt, src, src + 1)] + \
               ['v_max3_f32 v%d, v%d, v%d, v%d' % (vM + qt, vM + qt, src + k, src + k + 1) for k in range(2, 16, 2)]
    for qt in range(3):
        a(qk1(0, 0, qt, qt))
        a(qk2(0, 0, qt, qt))
    a(qk1(0, 0, 3, 3))
    a('s_nop 6')
    for o in tree(0)[:4]:
        a(o)
    a(qk2(0, 0, 3, 3))
    for o in tree(0)[4:] + tree(1) + tree(2) + tree(3):
        a(o)
    a.label('L_setc')
    for qt in range(4):
        a('v_mov_b32 v%d, v%d', vT + 8 + qt, vM + qt)
    for qt in range(4):
        a('v_permlane32_swap_b32 v%d, v%d', vM + qt, vT + 8 + qt)
    for qt in range(4):
        a('v_min_f32 v%d, -v%d, -v%d', vM + qt, vM + qt, vT + 8 + qt)
    for qt in range(4):
        a('v_cvt_pk_bf16_f32 v%d, v%d, v%d', vT + 8 + qt, vM + qt, vM + qt)
    for qt in range(4):
        a('v_and_b32 v%d, 0xffff0000, v%d', vT + 8 + qt, vT + 8 + qt)
    for qt in range(4):
        a('v_sub_f32 v%d, v%d, v%d', vM + qt, vM + qt, vT + 8 + qt)
    for qt in range(4):
        a('v_cvt_pk_bf16_f32 v%d, v%d, v%d', vM + qt, vT + 8 + qt, vM + qt)
    for qt in range(4):
        a('v_cndmask_b32 v%d, v%d, v%d, s[%d:%d]', vQ2 + 2 * qt, vQ2 + 2 * qt, vM + qt, sHI, sHI + 1)
    a(qk1(0, 0, 0, 0))
    a(qk2(0, 0, 0, 0))
    for qt in range(4):
        a('v_and_b32 v%d, 0xffff0000, v%d', vM + qt, vM + qt)
    for qt in range(4):
        a('v_add_f32 v%d, v%d, v%d', vNC + qt, vM + qt, vT + 8 + qt)
    for i in range(8):
        a('v_mov_b32 v%d, 0', vS + 48 + 8 + i)
    a('s_waitcnt vmcnt(8)')
    if OPT['tearly'] or OPT['gtouch'] == 1:
        setpw(5, vT + 8)
    stamp('A', 'attpro')
    if OPT['fine'] == 3:
        base = len(nstamp['A'])
        nstamp['A'] += ['it%d' % i for i in range(16)]
        a('s_mov_b32 s24, %d', base)
    a('.p2align %d', OPT['lalign'])
    for _ in range(OPT['lpad']):
        a('s_nop 0')
    a.label('L_attloop')
    for st in range(2):
        for n in range(8):
            tile, qt = n >> 2, n & 3
            nst, ntile, nqt = (st, (n + 1) >> 2, (n + 1) & 3) if n < 7 else (st ^ 1, 0, 0)
            pst, ptile, pqt = (st, (n - 1) >> 2, (n - 1) & 3) if n > 0 else (st ^ 1, 1, 3)
            def ex(k):
                for e in range(4 * k, 4 * k + 4):
                    a('v_exp_f32 v%d, v%d', vS + 16 * qt + e, vS + 16 * qt + e)
            if n == 7:
                a('s_waitcnt vmcnt(7)')
            a(qk1(nst, ntile, nqt, nqt))
            if n == 1:
                a('s_add_u32 s%d, s%d, %d', sOFF, sOFF, BLK)
            if n == 2:
                a(kvload(st, K1A, sOFF))
            if n == 6:
                a(kvload(st, K1B, sOFF))
            if n == 5 and OPT['fine'] == 3:
                a('s_memtime s[98:99]')
                a('s_memrealtime s[100:101]')
            if n == 6 and OPT['fine'] == 3:
                a('s_waitcnt lgkmcnt(0)')
                a('s_mov_b32 m0, s24')
                a('s_add_u32 s25, s24, 32')
                a('v_writelane_b32 v%d, s98, m0', vTS)
                a('s_mov_b32 m0, s25')
                a('s_add_u32 s24, s24, 1')
                a('v_writelane_b32 v%d, s100, m0', vTS)
            ex(0)
            a(qk2(nst, ntile, nqt, nqt))
            if n == 6:
                a(kvload(st, K2, sOFF))
            if n == 1 and st == 0:
                a('s_cmp_eq_u32 s%d, s%d', sOFF, sKVE)
                a('s_cselect_b32 s%d, s%d, s%d', sOFF, sKVB, sOFF)
            ex(1)
            a(pv(pst, ptile, pqt, 1))
            if n == 0:
                a(kvload(st ^ 1, VB1, sOFF))
            if n == 4:
                a(kvload(st, VA1, sOFF))
            if n == 1 and st == 0:
                a('s_cmp_eq_u32 s%d, s%d', sOFF, sKV0)
                a('s_cselect_b32 s%d, s%d, s%d', sOFF, sCNT, sOFF)
            if st == 1 and n == 7:
                a('s_cmp_lt_u32 s%d, s%d', sOFF, sCNT)
            ex(2)
            if n == 4:
                a('s_waitcnt vmcnt(10)')
            a(pv(st, tile, qt, 0))
            if n == 3:
                a(kvload(st, VA0, sOFF))
            if n == 7:
                a(kvload(st, VB0, sOFF))
            ex(3)
    a('s_cbranch_scc1 L_attloop')
    a('s_nop 0')
    a(pv(1, 1, 3, 1))
    stamp('A', 'attloop')
    if OPT['tprio']:
        a('s_setprio 2')
    a('ds_read_b32 v%d, v%d', vT + 12, vMG + 5)
    a('s_mov_b32 s36, 0x%x', f2u(2.0 ** -4))
    a('s_mov_b32 s37, 0x%x', f2u(2.0 ** 96))
    a('s_cmp_eq_u32 s%d, 0', sPASS)
    a('s_cbranch_scc0 L_attok')
    a('v_min3_f32 v%d, v%d, v%d, v%d', vT + 8, vO + 8, vO + 24, vO + 40)
    a('v_add_f32 v%d, v%d, v%d', vT + 9, vO + 8, vO + 24)
    a('v_add_f32 v%d, v%d, v%d', vT + 9, vT + 9, vO + 40)
    a('s_nop 3')
    a('v_min_f32 v%d, v%d, v%d', vT + 8, vT + 8, vO + 56)
    a('v_add_f32 v%d, v%d, v%d', vT + 9, vT + 9, vO + 56)
    a('v_cmp_nle_f32 s[38:39], s36, v%d', vT + 8)
    a('v_cmp_nge_f32 vcc, s37, v%d', vT + 9)
    a('s_or_b32 s39, s39, vcc_hi')
    if OPT['force_fb']:
        a('s_cmp_eq_u32 s%d, 0', sPASS)
    a('s_cbranch_scc0 L_attok')
    a.c('fallback: exact row maximum over this wave\'s keys, then redo the pass')
    a('s_mov_b32 s%d, 1', sPASS)
    a('s_waitcnt vmcnt(0) lgkmcnt(0)')
    a('v_mov_b32 v%d, 0', vT + 8)
    for qt in range(4):
        a('v_cndmask_b32 v%d, v%d, v%d, s[%d:%d]', vQ2 + 2 * qt, vQ2 + 2 * qt, vT + 8, sHI, sHI + 1)
        a('v_mov_b32 v%d, 0xff800000', vM + qt)
    a('s_mov_b32 s%d, s%d', sOFF, sKVB)
    a('s_mov_b32 s%d, 16', sCNT)
    a.label('L_maxloop')
    for w_ in (K1A, K1B, K2):
        a(kvload(0, w_, sOFF))
    a('s_waitcnt vmcnt(0)')
    for tile in range(2):
        for qt in range(4):
            a(qk1(0, tile, qt, qt))
            a(qk2(0, tile, qt, qt))
        a('s_nop 5')
        for qt in range(4):
            maxtree(vM + qt, vS + 16 * qt, True)
    a('s_add_u32 s%d, s%d, %d', sOFF, sOFF, BLK)
    a('s_sub_u32 s%d, s%d, 1', sCNT, sCNT)
    a('s_cmp_lg_u32 s%d, 0', sCNT)
    a('s_cbranch_scc1 L_maxloop')
    for i in range(64):
        a('v_mov_b32 v%d, 0', vO + i)
    a('s_branch L_attload')
    a.label('L_attok')
    a('s_waitcnt lgkmcnt(0)')
    a('v_cmp_gt_u32 vcc, 14, v%d', vT + 12)
    a('s_cbranch_vccz L_sready')
    waitpw(vMG + 5, 14, vT + 8)
    a.label('L_sready')
    a('ds_write_b64 v%d, %s offset:6144', vMG + 1, v(vNC + 2, 2))
    for t in range(2):
        for q in range(3):
            a('ds_write_b128 v%d, %s offset:%d', vMG, v(vO + 32 + 16 * t + 4 * q, 4), 1024 * (3 * t + q))
    setpw(6, vT + 8)
    waitpw(vMG + 4, 6, vT + 8)
    R = vS
    NC2 = vS + 32
    a('ds_read_b64 %s, v%d offset:6144', v(NC2, 2), vMG + 3)
    for t in range(2):
        a('ds_read_b128 %s, v%d offset:%d', v(R + 16 * t + 8, 4), vMG + 2, 1024 * (3 * t + 2))
    for t in range(2):
        for q in range(2):
            a('ds_read_b128 %s, v%d offset:%d', v(R + 16 * t + 4 * q, 4), vMG + 2, 1024 * (3 * t + q))
    setpw(7, vT + 9)
    f1, f2, l1, l2 = vS + 34, vS + 36, vS + 38, vS + 40
    a('s_waitcnt lgkmcnt(7)')
    for t in range(2):
        a('v_min_f32 v%d, v%d, v%d', l1 + t, vNC + t, NC2 + t)
    for t in range(2):
        a('v_sub_f32 v%d, v%d, v%d', f1 + t, l1 + t, vNC + t)
        a('v_sub_f32 v%d, v%d, v%d', f2 + t, l1 + t, NC2 + t)
    for t in range(2):
        a('v_exp_f32 v%d, v%d', f1 + t, f1 + t)
        a('v_exp_f32 v%d, v%d', f2 + t, f2 + t)
    a('s_waitcnt lgkmcnt(5)')
    for t in range(2):
        a('v_mul_f32 v%d, v%d, v%d', l1 + t, f1 + t, vO + 16 * t + 8)
    for t in range(2):
        a('v_fmac_f32 v%d, v%d, v%d', l1 + t, f2 + t, R + 16 * t + 8)
    for t in range(2):
        a('v_mov_b32 v%d, v%d', l2 + t, l1 + t)
    a('s_nop 0')
    for t in range(2):
        a('v_permlane32_swap_b32 v%d, v%d', l1 + t, l2 + t)
    for t in range(2):
        a('v_rcp_f32 v%d, v%d', l2 + t, l2 + t)
    a('s_waitcnt vmcnt(0) lgkmcnt(0)')
    for t in range(2):
        a('v_mul_f32 v%d, v%d, v%d', f1 + t, f1 + t, l2 + t)
        a('v_mul_f32 v%d, v%d, v%d', f2 + t, f2 + t, l2 + t)
    P = vO + 32
    for t in range(2):
        for r in range(12):
            a('v_mul_f32 v%d, v%d, v%d', vO + 16 * t + r, f1 + t, vO + 16 * t + r)
        for r in range(12):
            a('v_fmac_f32 v%d, v%d, v%d', vO + 16 * t + r, f2 + t, R + 16 * t + r)
        for q in range(6):
            a('v_cvt_pk_bf16_f32 v%d, v%d, v%d', P + 8 * t + q, vO + 16 * t + 2 * q, vO + 16 * t + 2 * q + 1)
        a('buffer_store_dwordx4 %s, v%d, s[%d:%d], s%d offen sc1', v(P + 8 * t, 4), vMG + 6, RWS, RWS + 3, 41 + t)
    a('s_nop 0')
    a('v_permlane32_swap_b32 v%d, v%d', P + 4, P + 12)
    a('v_permlane32_swap_b32 v%d, v%d', P + 5, P + 13)
    a('buffer_store_dwordx2 %s, v%d, s[%d:%d], s40 offen offset:512 sc1', v(P + 4, 2), vMG + 7, RWS, RWS + 3)
    if OPT['pgate']:
        setpw(8, vT + 8)
        a('ds_read_b32 v%d, v%d', 99, vAPW)
    stamp('A', 'merge')

def p3_static(vA0, vA1, vOA, acc):
    EP = OPT['epoll']
    if not EP:
        a('s_waitcnt vmcnt(0)')
        stamp('A', 'odrain')
        setflag(43, 1)
    NB = 7
    def reads(ks):
        f = 100 + 20 * (ks % NB)
        base, off = (vA0, ks * 5120) if ks < 10 else (vA1, (ks - 10) * 5120)
        return ['ds_read_b64_tr_b16 %s, v%d offset:%d' % (v(f + 4 * j + 2 * rd, 2), base, off + 1280 * rd + 32 * j)
                for j in range(5) for rd in range(2)]
    pl = 'buffer_load_dword v252, v%d, s[%d:%d], s88 offen sc1' % (vOA + 1, RWS, RWS + 3)
    def oload(ks):
        a('buffer_load_dwordx4 %s, v%d, s[%d:%d], s85 offen offset:%d sc1', v(4 * ks, 4), vOA, RWS, RWS + 3, 1024 * (ks & 3))
        if ks & 3 == 3 and ks < 19:
            a('s_add_u32 s85, s85, 4096')
    LEAD = OPT['olead']
    touch_ = 'buffer_load_dword v251, v248, s[%d:%d], s85 offen sc1' % (RWS, RWS + 3)
    NP = OPT['npre'] if EP else 0
    rest = [r for ks in range(NP, NB) for r in reads(ks)]
    if EP:
        for ks in range(NP):
            for r in reads(ks):
                a(r)
        if OPT['pgate']:
            a('s_waitcnt lgkmcnt(0)')
            a('v_cmp_gt_u32 vcc, 8, v99')
            a('s_cbranch_vccz L_epoll')
            a('s_waitcnt vmcnt(0)')
            stamp('A', 'odrain')
            if DIAG:
                nstamp['A'].pop()
            setflag(43, 2)
            a('s_mov_b32 vcc_lo, -1')
            a('s_mov_b32 vcc_hi, 0')
            a('s_branch L_f4late')
            a.label('L_epoll')
        a('s_mov_b32 exec_hi, 0')
        a(pl)
        a('s_waitcnt vmcnt(1)')
        stamp('A', 'odrain')
        setflag(43, 2)
        a('s_mov_b32 exec_hi, 0')
        a('s_waitcnt vmcnt(1)')
        a('v_cmp_eq_u32 vcc, 0, v252')
        a('s_mov_b64 exec, -1')
        a('s_cbranch_vccnz L_f4late')
        stamp('A', 'f4')
        if DIAG:
            nstamp['A'].pop()
        a(touch_)
        k = 0
        for ks in range(LEAD):
            oload(ks)
            while k < len(rest) * (ks + 1) // LEAD:
                a(rest[k])
                k += 1
        a('s_branch L_p3go')
        a.label('L_f4late')
    for r in rest:
        a(r)
    if OPT['pgate']:
        a('s_mov_b64 s[38:39], vcc')
        waitpw(vAPW, 8, 99, sleep=1)
        a('s_mov_b64 vcc, s[38:39]')
    if EP:
        a('s_mov_b64 exec, vcc')
    else:
        a('s_mov_b32 exec_hi, 0')
    pollflags([pl], 252, sleep=OPT['psleep4'])
    stamp('A', 'f4')
    a(touch_)
    for ks in range(LEAD):
        oload(ks)
    a.label('L_p3go')
    a('s_waitcnt lgkmcnt(0)')
    nl = LEAD
    a('v_mov_b32 v248, 9')
    lq = []
    if nl == 20:
        a('ds_write_b32 v%d, v248', vPW)
    pend = []
    for ks in range(20):
        w_ = 's_waitcnt vmcnt(%d)' % (nl - 1 - ks)
        if ks in lq:
            idx = max(i for i, x in enumerate(lq) if x == ks)
            w_ += ' lgkmcnt(%d)' % min(15, len(lq) - 1 - idx)
        a(w_)
        if OPT['fine'] in (1, 2) and ks in (0, 10, 19):
            stamp('A', 'p3k%d' % ks)
        rr = reads(ks + NB) if ks + NB < 20 else []
        for j in range(5):
            a('v_mfma_f32_16x16x32_bf16 %s, %s, %s, %s', v(acc + 4 * j, 4), v(4 * ks, 4), v(100 + 20 * (ks % NB) + 4 * j, 4),
              '0' if ks == 0 else v(acc + 4 * j, 4))
            for tg, r in pend:
                a(r)
                lq.append(tg)
            pend = [(ks + NB, r) for r in rr[2 * j:2 * j + 2]]
            if j in (0, 3) and nl < 20 and (j == 0 or ks % 2 == 0):
                oload(nl)
                nl += 1
                if nl == 20:
                    a('ds_write_b32 v%d, v248', vPW)
                    lq.append('w')

def p3_groups(vA0, vOA, acc):
    WF, vAN = 100, 241
    sP, sG, sM, sKEY, sC = 4, 5, 6, 7, 8
    pl = 'buffer_load_dword v252, v%d, s[%d:%d], s88 offen sc1' % (vOA + 1, RWS, RWS + 3)
    for g in range(4):
        a('s_sub_u32 s%d, %d, s%d', sC + g, g, sOG)
        a('s_and_b32 s%d, s%d, 3', sC + g, sC + g)
        a('s_lshl2_add_u32 s%d, s%d, %d', sC + g, sC + g, g)
    a('v_mov_b32 v248, 9')
    a('s_waitcnt lgkmcnt(0)')
    a('v_cmp_gt_u32 vcc, 8, v99')
    a('s_cbranch_vccz L_epoll')
    a('s_waitcnt vmcnt(0)')
    stamp('A', 'odrain')
    if DIAG:
        nstamp['A'].pop()
    setflag(43, 2)
    waitpw(vAPW, 8, 99, sleep=1)
    a('s_mov_b32 exec_hi, 0')
    a(pl)
    a('s_waitcnt vmcnt(0)')
    a('s_branch L_polled')
    a.label('L_epoll')
    a('s_mov_b32 exec_hi, 0')
    a(pl)
    a('s_waitcnt vmcnt(1)')
    stamp('A', 'odrain')
    setflag(43, 2)
    a('s_mov_b32 exec_hi, 0')
    a('s_waitcnt vmcnt(1)')
    a.label('L_polled')
    a('v_cmp_eq_u32 vcc, 0, v252')
    a('s_mov_b64 exec, -1')
    a('s_mov_b32 s%d, vcc_lo', sP)
    def reads(k):
        return ['ds_read_b64_tr_b16 %s, v%d offset:%d' % (v(WF + 20 * k + 4 * j + 2 * rd, 2), vAN, 5120 * k + 1280 * rd + 32 * j)
                for j in range(5) for rd in range(2)]
    def issue(sl):
        for k in range(5):
            a('buffer_load_dwordx4 %s, v%d, s[%d:%d], s%d offen offset:%d sc1', v(20 * sl + 4 * k, 4), vOA, RWS, RWS + 3,
              12 if k < 4 else 13, 1024 * (k & 3))
        if sl == 3:
            a('ds_write_b32 v%d, v248', vPW)
    for sl in range(-1, 4):
        nx = sl + 1
        Lw, Lc, Ld = a.newlabel('gw'), a.newlabel('gc'), a.newlabel('gd')
        if nx < 4:
            for g in range(4):
                a('s_bfe_u32 s14, s%d, 0x%x', sP, (8 << 16) | (8 * g))
                a('s_bcnt1_i32_b32 s14, s14')
                if g == 0:
                    a('s_lshl4_add_u32 s%d, s14, s%d', sKEY, sC)
                else:
                    a('s_lshl4_add_u32 s14, s14, s%d', sC + g)
                    a('s_min_u32 s%d, s%d, s14', sKEY, sKEY)
            a('s_and_b32 s%d, s%d, 3', sG, sKEY)
            a('s_mul_i32 s12, s%d, 5120', sG)
            a('s_add_u32 s12, s12, s85')
            a('s_add_u32 s13, s12, 4096')
            a('s_cmp_lt_u32 s%d, 16', sKEY)
            a('s_cbranch_scc0 %s', Lw)
            issue(nx)
            if sl >= 0:
                a('s_waitcnt vmcnt(5)')
            a('s_branch %s', Lc)
            a.label(Lw)
            a('s_mov_b32 exec_lo, s%d', sP)
            a('s_mov_b32 exec_hi, 0')
            a(pl)
            a('s_mov_b64 exec, -1')
            if sl >= 0:
                a('s_waitcnt vmcnt(1)')
            a.label(Lc)
            a('s_mul_i32 s14, s%d, 25600', sG)
            a('v_add_u32 v%d, s14, v%d', vAN, vA0)
            if nx < 3:
                for g in range(4):
                    a('s_cmp_eq_u32 s%d, %d', sG, g)
                    a('s_cselect_b32 s%d, 0x1000, s%d', sC + g, sC + g)
        if sl < 0:
            for k in range(5):
                for r in reads(k):
                    a(r)
        else:
            pend = []
            for k in range(5):
                if nx == 4:
                    a('s_waitcnt vmcnt(%d) lgkmcnt(%d)', 4 - k, 0 if k >= 3 else 15)
                else:
                    a('s_waitcnt lgkmcnt(15)')
                rr = reads(k) if nx < 4 else []
                for j in range(5):
                    a('v_mfma_f32_16x16x32_bf16 %s, %s, %s, %s', v(acc + 4 * j, 4), v(20 * sl + 4 * k, 4), v(WF + 20 * k + 4 * j, 4),
                      '0' if (sl == 0 and k == 0) else v(acc + 4 * j, 4))
                    for r in pend:
                        a(r)
                    pend = rr[2 * j:2 * j + 2]
            for r in pend:
                a(r)
        if nx < 4:
            a('s_cmp_lt_u32 s%d, 16', sKEY)
            a('s_cbranch_scc1 %s', Ld)
            L1, L2 = a.newlabel('gp'), a.newlabel('gq')
            a('s_lshl_b32 s14, s%d, 3', sG)
            a('s_lshl_b32 s%d, 0xff, s14', sM)
            a('s_mov_b32 exec_lo, s%d', sP)
            a('s_mov_b32 exec_hi, 0')
            a.label(L1)
            a('s_waitcnt vmcnt(0)')
            a('v_cmp_eq_u32 vcc, 0, v252')
            a('s_and_b32 s14, vcc_lo, s%d', sM)
            a('s_cbranch_scc0 %s', L2)
            a('s_mov_b64 exec, vcc')
            if OPT['psleep4']:
                a('s_sleep %d', OPT['psleep4'])
            a(pl)
            a('s_sub_u32 s%d, s%d, 1', sSPIN, sSPIN)
            a('s_cbranch_scc0 %s', L1)
            a('s_endpgm')
            a.label(L2)
            a('s_mov_b32 s%d, vcc_lo', sP)
            a('s_mov_b64 exec, -1')
            issue(nx)
            a.label(Ld)
            if nx == 3:
                stamp('A', 'f4')

def a_outproj():
    vA0, vA1, vOA, vST = 240, 241, 242, 244
    a('v_lshrrev_b32 v1, 5, v%d', vLANE)
    a('v_bfe_u32 v2, v%d, 2, 3', vLANE)
    a('v_lshl_add_u32 v1, v1, 4, v2')
    a('v_mul_u32_u24 v1, 160, v1')
    a('v_and_b32 v2, 3, v%d', vLANE)
    a('v_lshl_add_u32 v%d, v2, 3, v1', vA0)
    a('v_add_u32 v%d, %d, v%d', vA1, 10 * 5120, vA0)
    a('v_lshlrev_b32 v%d, 4, v%d', vOA, vLANE)
    a('v_lshrrev_b32 v1, 4, v%d', vLANE)
    a('v_mul_u32_u24 v1, %d, v1', 4 * 5120)
    a('v_and_b32 v2, 15, v%d', vLANE)
    a('v_lshl_add_u32 v%d, v2, 2, v1', vST)
    for r in range(1, 4):
        a('v_add_u32 v%d, %d, v%d', vST + r, 5120 * r, vST)
    a('s_mul_i32 s84, s%d, 2560', sOG)
    a('v_min_u32 v248, 19, v%d', vLANE)
    a('v_lshl_add_u32 v248, v248, 7, s84')
    a('s_lshl2_add_u32 s84, s%d, s%d', sTB, sW)
    a('s_mul_i32 s85, s84, %d', OBLK)
    a('s_add_u32 s85, s85, 0x%x', WS_O)
    a('s_mul_i32 s86, s84, %d', 16 * 5120)
    a('s_mul_i32 s88, s%d, 320', sOG)
    a('s_add_u32 s86, s86, s88')
    a('v_lshlrev_b32 v%d, 7, v%d', vOA + 1, vLANE)
    a('s_lshl_b32 s88, s%d, 12', sTB)
    a('s_add_u32 s88, s88, 0x%x', F4)
    acc = 80
    if OPT['p3dyn']:
        p3_groups(vA0, vOA, acc)
    else:
        p3_static(vA0, vA1, vOA, acc)
    a('s_nop 3')
    for j in range(5):
        for r in range(4):
            a('buffer_store_dword v%d, v%d, s[%d:%d], s86 offen offset:%d%s', acc + 4 * j + r, vST + r, R4, R4 + 3, 64 * j, OSC)
    finish('A')

vXR, vBR, vA0PW = 96, 100, 107
vL, vE, vHW, vHR0, vHR1, vHS, vCH, vCHL, vHH, vP01, vTCH, vHINT = 146, 150, 151, 152, 153, 154, 155, 156, 157, 158, 159, 160
vDX, vDW, vDBX, vDBB = 161, 165, 169, 173
vZ, vWOA, vPAR = 176, 186, 200
vCA, vCR, vHA, vF3, vXO, vDO, vC16, vAM, vOA, vRA = 224, 226, 228, 229, 230, 231, 232, 233, 234, 235
vR1W, vR1R, vR2W, vPW1, vPW2, vS2PW, vHT, vCT = 237, 238, 239, 240, 241, 242, 243, 244
vSPW = 252
L_Z, L_H = L_HT + 1024, 124928
SENT = 0xffffffff

def s_stage(t, emit=None):
    out = []
    slot = (t % 4) * 32768
    out.append('s_add_u32 m0, s74, %d' % slot)
    out.append('s_lshl_b32 s83, s82, 7')
    out.append('s_add_u32 s76, s72, s83')
    if t < 10:
        out += [dma(vDX + i, R0, 76, 1024 * i) for i in range(4)]
        out.append('s_add_u32 m0, s74, %d' % (slot + 16384))
        out.append('s_mul_i32 s83, s82, 245760')
        out.append('s_add_u32 s76, s73, s83')
        out += [dma(vDW + i, R1, 76, 1024 * i) for i in range(4)]
    else:
        out += [dma(vDBX + i, R3, 76, 1024 * i) for i in range(4)]
        out.append('s_add_u32 m0, s75, %d' % (slot + 16384))
        out.append('s_add_u32 s76, s77, s83')
        out += [dma(vDBB + i, R4, 76, 1024 * i) for i in range(3)]
    out.append('s_add_u32 s82, s82, 1')
    out.append('s_cmp_eq_u32 s82, 10')
    out.append('s_cselect_b32 s82, 0, s82')
    if emit is None:
        L = a.newlabel('skip')
        if t < 10:
            a('s_cmp_eq_u32 s%d, 15', sCG)
            a('s_cbranch_scc1 %s', L)
        for o in out:
            a(o)
        if t < 10:
            a.label(L)
    return out

def ninstr(t):
    return 0 if t > 19 else (8 if t < 10 else 7)

def exp_acc(dst, x, t1, t2):
    L2E = math.log2(math.e)
    hi = struct.unpack('<f', struct.pack('<f', L2E))[0]
    a('s_mov_b32 s80, 0x%x', f2u(hi))
    a('v_mul_f32 v%d, s80, v%d', t1, x)
    a('v_fma_f32 v%d, v%d, s80, -v%d', t2, x, t1)
    a('v_fmac_f32 v%d, 0x%x, v%d', t2, f2u(L2E - hi), x)
    a('v_exp_f32 v%d, v%d', dst, t1)
    a('v_mul_f32 v%d, 0x%x, v%d', t2, f2u(math.log(2.0)), t2)
    a('v_fmac_f32 v%d, v%d, v%d', dst, dst, t2)

def s_setup():
    a.label('L_roleS')
    a('s_sub_u32 s%d, s%d, 4', sW, sW)
    a('v_lshrrev_b32 v1, 3, v%d', vLANE)
    a('v_and_b32 v2, 7, v%d', vLANE)
    a('v_lshrrev_b32 v3, 4, v%d', vLANE)
    a('v_xor_b32 v4, v2, v3')
    a('v_mul_u32_u24 v5, 1280, v1')
    a('v_lshl_add_u32 v%d, v4, 4, v5', vDX)
    a('v_xor_b32 v6, 64, v%d', vDX)
    a('v_add_u32 v%d, %d, v6', vDX + 1, 10240 - 1024)
    a('v_add_u32 v%d, %d, v%d', vDX + 2, 2 * (10240 - 1024), vDX)
    a('v_add_u32 v%d, %d, v6', vDX + 3, 3 * (10240 - 1024))
    a('v_and_b32 v7, 15, v%d', vLANE)
    a('v_lshlrev_b32 v8, 2, v3')
    a('v_xor_b32 v7, v7, v8')
    a('v_mul_u32_u24 v8, 3840, v3')
    a('v_lshl_add_u32 v%d, v7, 4, v8', vDW)
    for i in range(1, 4):
        a('v_add_u32 v%d, %d, v%d', vDW + i, (15360 - 1024) * i, vDW)
    a('s_lshl2_add_u32 s72, s%d, s%d', sRB, sW)
    a('s_mul_i32 s72, s72, %d', 32 * 1280)
    a('s_mul_i32 s73, s%d, %d', sW, 16 * 3840)
    a('s_lshl_b32 s70, s%d, 8', sCG)
    a('s_add_u32 s73, s73, s70')
    a('s_lshl_b32 s74, s%d, 12', sW)
    stagger(82, 83, 0)
    a('s_waitcnt lgkmcnt(0)')
    srd(R0, sAX, 2048 * 1280)
    srd(R1, sWQ, 640 * 3840)
    if DIAG:
        ws_setup()
    stamp('S', 'start')
    s_stage(0)
    if not DIAG:
        ws_setup()
    if OPT['fine'] == 1:
        stamp('S', 'iss0')
    a('s_mul_i32 s70, s%d, 40', sCG)
    a('v_min_u32 v9, 39, v%d', vLANE)
    a('v_add_lshl_u32 v9, v9, s70, 1')
    a('global_load_ushort v10, v9, s[%d:%d]', sLDT, sLDT + 1)
    a('global_load_ushort v11, v9, s[%d:%d]', sLRE, sLRE + 1)
    a('global_load_ushort v12, v9, s[%d:%d]', sLIM, sLIM + 1)
    b1_sources(R3, R4, vDBX, vDBB, 75, 77, 70)
    a('v_and_b32 v5, 3, v%d', vLANE)
    a('v_lshlrev_b32 v5, 8, v5')
    a('v_lshl_add_u32 v5, v%d, 2, v5', vLANE)
    a('v_add_u32 v%d, %d, v5', vSPW, L_PW + 1024)
    s_addresses()
    s_stage(1)
    if OPT['fine'] == 1:
        stamp('S', 'iss1')
    a('s_waitcnt vmcnt(11)')
    stamp('S', 'st0')
    a('s_barrier')
    s_stage(2)
    a('s_waitcnt vmcnt(8)')
    a('s_barrier')
    s_stage(3)
    s_stage(4)

def s_addresses():
    c, g, t0, t1, t2 = 40, 41, 42, 43, 44
    a('v_and_b32 v%d, 15, v%d', c, vLANE)
    a('v_lshrrev_b32 v%d, 4, v%d', g, vLANE)
    a('v_lshrrev_b32 v%d, 1, v%d', t0, c)
    a('v_xor_b32 v%d, v%d, v%d', t0, t0, g)
    a('v_lshlrev_b32 v%d, 4, v%d', t0, t0)
    a('v_lshl_add_u32 v%d, v%d, 7, v%d', t0, c, t0)
    a('v_xor_b32 v%d, 64, v%d', t1, t0)
    a('v_add_u32 v%d, s74, v%d', vXR, t0)
    a('v_add_u32 v%d, s74, v%d', vXR + 1, t1)
    a('s_mul_i32 s70, s%d, %d', sW, REGSZ)
    a('s_add_u32 s70, s70, %d', L_REG)
    a('v_add_u32 v%d, s70, v%d', vCR, t0)
    a('v_add_u32 v%d, s70, v%d', vCR + 1, t1)
    a('v_lshrrev_b32 v%d, 3, v%d', t2, c)
    a('v_lshl_add_u32 v%d, v%d, 12, v%d', t0, t2, t0)
    a('v_add_u32 v%d, 16384, v%d', vBR, t0)
    a('v_xor_b32 v%d, 64, v%d', vBR + 1, vBR)
    for k in range(2):
        a('v_add_u32 v%d, 0x10000, v%d', vXR + 2 + k, vXR + k)
        a('v_add_u32 v%d, 0x10000, v%d', vBR + 2 + k, vBR + k)
    a('v_and_b32 v%d, 7, v%d', t0, vLANE)
    a('v_lshlrev_b32 v%d, 2, v%d', t2, t2)
    a('v_lshl_add_u32 v%d, v%d, 3, v%d', t0, t0, t2)
    a('v_add_u32 v%d, %d, v%d', vHH, L_H, t0)
    a('v_mul_u32_u24 v%d, 320, v%d', t1, g)
    a('s_mul_i32 s71, s%d, 1280', sW)
    a('s_add_u32 s71, s71, %d', L_EL)
    a('v_add3_u32 v%d, v%d, v%d, s71', vE, t0, t1)
    a('v_lshlrev_b32 v%d, 3, v%d', vCH, vLANE)
    a('v_add_u32 v%d, %d, v%d', vCHL, L_H, vCH)
    a('v_lshlrev_b32 v%d, 9, v%d', vHINT, vLANE)
    a('v_lshlrev_b32 v%d, 2, v%d', vA0PW, vLANE)
    a('v_add_u32 v%d, %d, v%d', vA0PW, L_PW, vA0PW)
    a('v_add_u32 v%d, %d, v%d', vS2PW, 1024 + 512, vA0PW)
    a('v_and_b32 v%d, 0x%x, v%d', vP01, 0xffffffff ^ 512, vSPW)
    a('v_xor_b32 v%d, 256, v%d', vPW1, vPW)
    a('v_xor_b32 v%d, 512, v%d', vPW2, vPW)
    a('v_and_b32 v%d, 1, v%d', t0, vLANE)
    a('v_lshlrev_b32 v%d, 9, v%d', t0, t0)
    a('v_xor_b32 v%d, v%d, v%d', t0, t0, vPW)
    a('v_subrev_u32 v%d, 1024, v%d', vAM, t0)
    a('v_mov_b32 v%d, 16', vC16)
    a('v_bfe_u32 v%d, v%d, 1, 2', t0, vLANE)
    a('v_xor_b32 v%d, v%d, v%d', t0, t0, g)
    a('v_lshlrev_b32 v%d, 4, v%d', t0, t0)
    a('s_mul_i32 s71, s%d, 5120', sW)
    a('s_add_u32 s71, s71, %d', L_HT)
    a('v_lshl_add_u32 v%d, v%d, 6, v%d', t0, c, t0)
    a('v_add_u32 v%d, s71, v%d', vHW, t0)
    a('v_bfe_u32 v%d, v%d, 2, 2', t0, vLANE)
    a('v_lshrrev_b32 v%d, 5, v%d', t1, vLANE)
    a('v_lshl_add_u32 v%d, v%d, 3, v%d', vHR0, t1, t0)
    a('v_lshlrev_b32 v%d, 6, v%d', vHR0, vHR0)
    a('v_mul_u32_u24 v%d, %d, v%d', vHS, 80 * 256, t1)
    a('v_lshrrev_b32 v%d, 1, v%d', t0, t0)
    a('v_bfe_u32 v%d, v%d, 4, 1', t1, vLANE)
    a('v_bfe_u32 v%d, v%d, 1, 1', t2, vLANE)
    a('v_lshl_add_u32 v%d, v%d, 1, v%d', t2, t1, t2)
    a('v_xor_b32 v%d, v%d, v%d', t2, t2, t0)
    a('v_lshl_add_u32 v%d, v%d, 4, v%d', vHR0, t2, vHR0)
    a('v_and_b32 v%d, 1, v%d', t2, vLANE)
    a('v_lshl_add_u32 v%d, v%d, 3, v%d', vHR0, t2, vHR0)
    a('v_xor_b32 v%d, 32, v%d', vHR1, vHR0)
    a('v_add_u32 v%d, s71, v%d', vHR0, vHR0)
    a('v_add_u32 v%d, s71, v%d', vHR1, vHR1)
    a('v_mul_u32_u24 v%d, %d, v%d', t1, HBLK, t1)
    a('v_lshl_add_u32 v%d, v%d, 4, v%d', t1, c, t1)
    a('v_add_u32 v%d, v%d, v%d', vHS, vHS, t1)
    a('v_mov_b32 v%d, v%d', vCA, vDX)
    a('v_mov_b32 v%d, v%d', vCA + 1, vDX + 1)
    a('v_lshlrev_b32 v%d, 4, v%d', vHA, vLANE)
    a('v_lshlrev_b32 v%d, 7, v%d', vF3, vLANE)
    a('v_min_u32 v%d, %d, v%d', vHT, 39 * 128, vF3)
    a('v_min_u32 v%d, %d, v%d', vTCH, 24 * 128, vF3)
    a('s_lshl2_add_u32 s71, s%d, s%d', sI, sW)
    a('s_mul_i32 s71, s71, 6400')
    a('v_add_u32 v%d, s71, v%d', vTCH, vTCH)
    a('v_min_u32 v%d, %d, v%d', vCT, 49 * 128, vF3)
    a('v_cmp_le_u32 vcc, 25, v%d', vLANE)
    a('v_add_u32 v%d, 3200, v%d', t0, vCT)
    a('s_and_b32 s71, s%d, 1', sW)
    a('v_cndmask_b32 v%d, v%d, v%d, vcc', vCT, vCT, t0)
    a('s_lshl1_add_u32 s71, s%d, s71', sI)
    a('s_mul_i32 s71, s71, 12800')
    a('v_add_u32 v%d, s71, v%d', vCT, vCT)
    a('s_xor_b32 s92, s%d, 1', sW)
    a('s_mul_i32 s92, s92, %d', REGSZ)
    a('s_add_u32 s92, s92, %d', L_REG)
    a('s_xor_b32 s93, s%d, 3', sW)
    a('s_mul_i32 s93, s93, %d', REGSZ)
    a('s_add_u32 s93, s93, %d', L_REG + 16 * 336)
    a('v_add_u32 v%d, s70, v%d', vR1W, vHA)
    a('v_add_u32 v%d, s92, v%d', vR1R, vHA)
    a('v_mul_u32_u24 v%d, 336, v%d', t0, c)
    a('v_and_b32 v%d, 48, v%d', t1, vLANE)
    a('v_add3_u32 v%d, v%d, v%d, s92', vR2W, t0, t1)
    a('v_lshrrev_b32 v%d, 2, v%d', t0, vLANE)
    a('v_and_b32 v%d, 3, v%d', t1, vLANE)
    a('v_lshlrev_b32 v%d, 3, v%d', vDO, t1)
    a('v_mul_u32_u24 v%d, 1280, v%d', t2, t0)
    a('v_add_u32 v%d, v%d, v%d', vXO, t2, vDO)
    a('v_lshlrev_b32 v%d, 4, v%d', t1, t1)
    a('v_lshl_add_u32 v%d, v%d, 2, v%d', vOA, t2, t1)
    a('v_mul_u32_u24 v%d, 336, v%d', t2, t0)
    a('v_add3_u32 v%d, v%d, v%d, s92', vRA, t2, t1)
    a('v_add3_u32 v%d, v%d, v%d, s93', vRA + 1, t2, t1)
    if not OPT['wopack']:
        s_wooffs()

def s_params():
    a('s_cmp_eq_u32 s%d, 0', sW)
    a('s_cbranch_scc0 L_nopar')
    for r in (10, 11, 12):
        a('v_lshlrev_b32 v%d, 16, v%d', r, r)
    exp_acc(13, 10, 14, 15)
    a('v_cvt_pk_bf16_f32 v13, v13, v13')
    a('v_and_b32 v13, 0xffff0000, v13')
    a('v_mul_f32 v14, v13, v11')
    a('v_mul_f32 v15, v13, v12')
    exp_acc(16, 14, 17, 18)
    I2P = 1.0 / (2 * math.pi)
    hi = struct.unpack('<f', struct.pack('<f', I2P))[0]
    a('s_mov_b32 s80, 0x%x', f2u(hi))
    a('v_mul_f32 v17, s80, v15')
    a('v_rndne_f32 v17, v17')
    a('v_fma_f32 v17, v15, s80, -v17')
    a('v_fmac_f32 v17, 0x%x, v15', f2u(I2P - hi))
    a('v_cos_f32 v20, v17')
    a('v_sin_f32 v21, v17')
    a('v_mul_f32 v18, v11, v11')
    a('v_fmac_f32 v18, v12, v12')
    a('v_rcp_f32 v19, v18')
    a('v_mul_f32 v20, v16, v20')
    a('v_mul_f32 v21, v16, v21')
    a('v_fma_f32 v18, -v18, v19, 1.0')
    a('v_fmac_f32 v19, v19, v18')
    a('v_add_f32 v19, v19, v19')
    a('v_add_f32 v17, -1.0, v20')
    a('v_mul_f32 v22, v17, v11')
    a('v_fmac_f32 v22, v21, v12')
    a('v_mul_f32 v23, v17, v12')
    a('v_fma_f32 v23, -v21, v11, v23')
    a('v_mul_f32 v22, v22, v19')
    a('v_mul_f32 v23, v23, v19')
    a('v_lshlrev_b32 v9, 4, v%d', vLANE)
    a('v_add_u32 v9, %d, v9', L_PAR)
    a('ds_write_b128 v9, v[20:23]')
    a('v_mov_b32 v24, v20')
    a('v_sub_f32 v25, 0, v21')
    for k in range(3):
        a('v_mul_f32 v26, v25, v25')
        a('v_add_f32 v27, v24, v24')
        a('v_fma_f32 v24, v24, v24, -v26')
        a('v_mul_f32 v25, v27, v25')
    a.label('L_nopar')

def s_params2():
    a('s_cmp_eq_u32 s%d, 0', sW)
    a('s_cbranch_scc0 L_nopar2')
    a('s_mov_b32 exec_hi, 0xff')
    a('v_mov_b32 v14, 1.0')
    a('v_mov_b32 v15, 0')
    a('ds_write_b64 v%d, v[14:15] offset:%d', vCHL, L_Z - L_H)
    a('ds_write_b64 v%d, v[24:25] offset:%d', vCHL, L_Z - L_H + 320)
    src = 24
    for sg in range(2, 17):
        dst = 16 + 2 * (sg % 3)
        a('v_mul_f32 v%d, v24, v%d', dst, src)
        a('v_mul_f32 v%d, v24, v%d', dst + 1, src + 1)
        a('v_fma_f32 v%d, -v25, v%d, v%d', dst, src + 1, dst)
        a('v_fmac_f32 v%d, v25, v%d', dst + 1, src)
        a('ds_write_b64 v%d, %s offset:%d', vCHL, v(dst, 2), L_Z - L_H + 320 * sg)
        src = dst
    a('s_mov_b32 exec_hi, -1')
    a('s_waitcnt lgkmcnt(0)')
    a.label('L_nopar2')

def s_wooffs():
    for i in range(5):
        a('v_add_u32 v40, %d, v%d', 64 * i, vLANE)
        a('v_mul_u32_u24 v41, 6554, v40')
        a('v_lshrrev_b32 v41, 16, v41')
        a('v_mul_u32_u24 v42, 10, v41')
        a('v_sub_u32 v40, v40, v42')
        tau(42, 41, 43)
        a('v_mul_u32_u24 v42, 1280, v42')
        a('v_lshl_add_u32 v%d, v40, 4, v42', vWOA + i)
        if 0 < i < 4:
            a('v_subrev_u32 v%d, %d, v%d', vWOA + i, 1024 * i, vWOA + i)

def s_qloader():
    early = {1: {7: 10}, 2: {7: 10, 9: 11}, 3: {7: 10, 8: 11, 9: 12}, 0: {}}[OPT['st10']]
    q = [2] * 8 + [3] * 8 + [4] * 8
    for st in range(2, 10):
        a('s_waitcnt vmcnt(%d)', len(q) - 1 - max(i for i, x in enumerate(q) if x == st))
        if OPT['fine'] == 1 and st in (3, 5, 7, 9):
            stamp('S', 'st%d' % st)
        a('s_barrier')
        if st == 6:
            a('v_and_b32 v32, 15, v%d', vLANE)
            a('v_lshlrev_b32 v32, 4, v32')
            a('v_mov_b32 v33, 1')
            a('s_cmp_eq_u32 s%d, 3', sW)
            a('s_cbranch_scc0 L_nodbg')
            a(dbgload(32, 33))
            a.label('L_nodbg')
            a('s_cmp_eq_u32 s%d, 15', sCG)
            a('s_cbranch_scc0 L_cw')
            a('s_waitcnt vmcnt(0)')
            a.label('L_cw')
        if st <= 6:
            s_stage(st + 3)
            q += [st + 3] * 8
        if st == OPT['pretouch']:
            a('s_cmp_eq_u32 s%d, 2', sW)
            a('s_cselect_b32 s70, s%d, s%d', sBRE, sBIM)
            a('s_cselect_b32 s71, s%d, s%d', sBRE + 1, sBIM + 1)
            a('s_mul_i32 s83, s2, 3200')
            a('s_lshl1_add_u32 s84, s2, s%d', sW)
            a('s_mul_i32 s84, s84, 5120')
            a('s_cmp_lt_u32 s%d, 2', sW)
            a('s_cselect_b32 s70, s%d, s70', sBX)
            a('s_cselect_b32 s71, s%d, s71', sBX + 1)
            a('s_cselect_b32 s83, s84, s83')
            a('s_cselect_b32 s84, 39, 24')
            a('v_min_u32 v30, s84, v%d', vLANE)
            a('v_lshl_add_u32 v30, v30, 7, s83')
            a('global_load_dword v31, v30, s[70:71]')
            q.append('t')
        if st == 7 and OPT['flip']:
            stagger(82, 83, 0, 1)
        if st in early:
            s_stage(early[st])
            q += [early[st]] * 7
        if st == 7:
            s_params()
        if st == 8:
            s_params2()

    a('v_cmp_eq_u32 vcc, 0, v33')
    a('s_cbranch_vccz L_clrok')
    pollflags([dbgload(32, 33)], 33, sleep=8)
    a.label('L_clrok')
    a('s_barrier')
    stamp('S', 'qend')
    s_consts()

def s_consts():
    a('v_and_b32 v6, 7, v%d', vLANE)
    a('v_lshlrev_b32 v6, 4, v6')
    a('v_add_u32 v6, %d, v6', L_PAR)
    for j in range(5):
        a('ds_read_b128 %s, v6 offset:%d', v(vPAR + 4 * j, 4), 128 * j)
    a('v_and_b32 v7, -8, v%d', vE)
    a('v_subrev_u32 v7, %d, v7', L_EL - L_Z)
    for j in range(5):
        a('ds_read_b64 %s, v7 offset:%d', v(vZ + 2 * j, 2), 64 * j)
    a('s_cmp_eq_u32 s%d, 0', sW)
    a('s_cselect_b32 s70, 1, 16')
    a('s_mul_i32 s70, s70, 320')
    a('v_add_u32 v8, s70, v%d', vCHL)
    a('ds_read_b64 %s, v8 offset:%d', v(vL, 2), L_Z - L_H)
    a('v_bfe_u32 v5, v%d, 3, 1', vLANE)
    a('v_lshlrev_b32 v5, 31, v5')
    a('v_xor_b32 v4, 0x80000000, v5')
    a('s_waitcnt lgkmcnt(0)')
    for j in range(5):
        a('v_xor_b32 v%d, v5, v%d', vPAR + 4 * j + 1, vPAR + 4 * j + 1)
        a('v_xor_b32 v%d, v5, v%d', vPAR + 4 * j + 2, vPAR + 4 * j + 2)
        a('v_xor_b32 v%d, v4, v%d', vZ + 2 * j + 1, vZ + 2 * j + 1)

def touch(r, va=None):
    o = ['s_add_u32 s84, s%d, %d' % (sXCD, r),
         's_cmp_ge_u32 s84, 6', 's_cselect_b32 s85, 6, 0', 's_sub_u32 s84, s84, s85',
         's_cmp_ge_u32 s84, 6', 's_cselect_b32 s85, 6, 0', 's_sub_u32 s84, s84, s85',
         's_cmp_ge_u32 s84, 2',
         's_cselect_b32 s86, s%d, s%d' % (sCRE, sWO), 's_cselect_b32 s87, s%d, s%d' % (sCRE + 1, sWO + 1),
         's_cmp_ge_u32 s84, 4',
         's_cselect_b32 s86, s%d, s86' % sCIM, 's_cselect_b32 s87, s%d, s87' % (sCIM + 1),
         's_and_b32 s84, s84, 1', 's_mul_i32 s84, s84, 3200',
         's_add_u32 s86, s86, s84', 's_addc_u32 s87, s87, 0',
         'global_load_dword v109, v%d, s[86:87]' % (va or vTCH)]
    return o

def s_b1():
    F = [40, 68]
    def reads(t, ks, f):
        slot = t % 4
        hi, lo = slot >> 1, (slot & 1) * 32768
        r = ['ds_read_b128 %s, v%d offset:%d' % (v(f + 4 * T, 4), vXR + 2 * hi + ks, lo + 2048 * T) for T in range(2)]
        r += ['ds_read_b128 %s, v%d offset:%d' % (v(f + 8 + 4 * j, 4), vBR + 2 * hi + ks, lo + 1024 * j) for j in range(5)]
        return r
    def mfmas(f, first):
        return ['v_mfma_f32_16x16x32_bf16 %s, %s, %s, %s' % (v(8 * j + 4 * T, 4), v(f + 4 * T, 4), v(f + 8 + 4 * j, 4),
                '0' if first else v(8 * j + 4 * T, 4)) for j in range(5) for T in range(2)]
    def weave(ms, others):
        n = len(ms)
        k = 0
        for i_, m in enumerate(ms):
            a(m)
            while k < len(others) * (i_ + 1) // n:
                a(others[k])
                k += 1
    first = 10 + OPT['st10']
    a('s_lshl4_add_u32 s84, s%d, s%d', sCG, sRB)
    flagaddr(84, 84, F1, 85)
    a('s_waitcnt vmcnt(%d)', max(0, 7 * (first - 11)))
    a('s_barrier')
    for r in reads(10, 0, F[0]):
        a(r)
    for u in range(10):
        t = 10 + u
        if OPT['fine'] == 1 and u in (0, 2, 4, 6, 8):
            stamp('S', 'b1w%d' % u)
        a('s_waitcnt lgkmcnt(0)')
        m0_ = mfmas(F[0], u == 0)
        weave(m0_[:4], reads(t, 1, F[1]))
        for m in m0_[4:]:
            a(m)
        m1_ = mfmas(F[1], False)
        if u < 9:
            if t + 1 < first:
                a('s_waitcnt vmcnt(%d) lgkmcnt(0)', 7 * (first - t - 2))
            else:
                a('s_waitcnt lgkmcnt(0)')
            a('s_barrier')
            if t + 1 == first:
                a('s_cmp_eq_u32 s%d, 3', sW)
                a('s_cbranch_scc0 L_noflag')
                setflag(84, 104)
                a.label('L_noflag')
            weave(m1_[:4], reads(t + 1, 0, F[0]))
            for m in m1_[4:]:
                a(m)
        else:
            a('s_waitcnt lgkmcnt(0)')
            for m in m1_:
                a(m)
    stamp('S', 'b1gemm')

def rot5(dst, t):
    a('s_and_b32 s%d, s%d, 3', dst, sI)
    a('s_add_u32 s%d, s%d, s%d', dst, dst, sXCD)
    for _ in range(2):
        a('s_cmp_ge_u32 s%d, 5', dst)
        a('s_cselect_b32 s%d, 5, 0', t)
        a('s_sub_u32 s%d, s%d, s%d', dst, dst, t)
    if not OPT['rot5']:
        a('s_mov_b32 s%d, 0', dst)

def s_wo():
    if OPT['wopack']:
        a('s_mov_b32 s73, 0x%x', F1 + 15 * 16 * 128)
        a('s_mov_b64 exec, 0xffff')
        pollflags(['buffer_load_dword v40, v%d, s[%d:%d], s73 offen sc1' % (vF3, RWS, RWS + 3)], 40, sleep=4)
        rot5(83, 73)
        a('s_mul_i32 s75, s%d, 102400', sOG)
        a('s_add_u32 s75, s75, 0x%x', WS_WP)
        a('s_mov_b32 s77, 5')
        a.label('L_woloop')
        a('s_lshl2_add_u32 s78, s83, s%d', sW)
        a('s_mul_i32 s78, s78, 5120')
        a('s_add_u32 s79, s78, s75')
        a('s_mov_b32 m0, s78')
        for i in range(5):
            if i == 4:
                a('s_add_u32 m0, s78, 4096')
                a('s_add_u32 s79, s79, 4096')
            a('s_waitcnt vmcnt(%d)', OPT['thrw'])
            a(dma(vHA, RWS, 79, 1024 * (i & 3)).replace(' lds', ' sc1 lds'))
    else:
        srd(R0, sWO, 640 * 1280)
        rot5(83, 73)
        a('s_mul_i32 s75, s%d, 160', sOG)
        a('s_mov_b32 s77, 5')
        a.label('L_woloop')
        a('s_lshl2_add_u32 s78, s83, s%d', sW)
        a('s_mul_i32 s79, s78, 40960')
        a('s_add_u32 s79, s79, s75')
        a('s_mul_i32 s78, s78, 5120')
        a('s_mov_b32 m0, s78')
        a('s_add_u32 s73, s78, 4096')
        for i in range(5):
            if i == 4:
                a('s_mov_b32 m0, s73')
            a('s_waitcnt vmcnt(%d)', OPT['thrw'])
            a(dma(vWOA + i, R0, 79, 1024 * (i & 3)))
    a('s_add_u32 s83, s83, 1')
    a('s_cmp_eq_u32 s83, 5')
    a('s_cselect_b32 s83, 0, s83')
    a('s_sub_u32 s77, s77, 1')
    a('s_cmp_lg_u32 s77, 0')
    a('s_cbranch_scc1 L_woloop')
    for kp in range(5):
        a('s_lshl_b32 s73, s83, 7')
        a('s_add_u32 s%d, s72, s73', 4 + kp)
        a('s_lshl_b32 s%d, s83, 11', 12 + kp)
        a('s_add_u32 s83, s83, 1')
        a('s_cmp_eq_u32 s83, 5')
        a('s_cselect_b32 s83, 0, s83')

def s_scan():
    ROR = 'row_ror:8 row_mask:0xf bank_mask:0xf'
    a('s_setprio 1')
    a('s_lshl_b32 s70, s%d, 13', sCG)
    a('s_add_u32 s70, s70, 0x%x', WS_E)
    a('s_add_u32 s70, s70, s%d', sWS)
    a('s_addc_u32 s71, s%d, 0', sWS + 1)
    srd(R5, 70, 8192)
    a('s_sub_u32 s70, 15, s%d', sRB)
    a('s_lshl_b32 s70, s70, 9')
    a('s_add_u32 s71, s70, 4096')
    tmp = 40
    for j in range(5):
        for k in range(8):
            a('v_mul_f32_dpp v%d, v%d, v%d %s', tmp + k, 8 * j + k, vPAR + 4 * j + 3, ROR)
        for k in range(8):
            a('v_fma_f32 v%d, v%d, v%d, v%d', 8 * j + k, vPAR + 4 * j + 2, 8 * j + k, tmp + k)
    e = [[8 * j for j in range(5)], [50 + j for j in range(5)], [56 + j for j in range(5)]]
    cur = e[0]
    for k in range(1, 8):
        nx = e[1 + (k & 1)]
        for j in range(5):
            a('v_fma_f32 v%d, v%d, v%d, v%d', nx[j], vPAR + 4 * j, cur[j], 8 * j + k)
        for j in range(5):
            a('v_fmac_f32_dpp v%d, v%d, v%d %s', nx[j], cur[j], vPAR + 4 * j + 1, ROR)
        cur = nx
    for j in range(5):
        a('ds_write_b32 v%d, v%d offset:%d', vE, cur[j], 64 * j)
    setpw(11, 104)
    for r in range(10 - OPT['tstart'], 0 if OPT['tlate'] else 6):
        a('s_waitcnt vmcnt(0)')
        for o in touch(r):
            a(o)
    stamp('S', 'pass1')
    def chain(dst, src, add):
        a('v_fma_f32 v%d, v%d, v%d, v%d', dst, vL, src, add)
        a('v_fma_f32 v%d, v%d, v%d, v%d', dst + 1, vL, src + 1, add + 1)
        a('v_fma_f32 v%d, -v%d, v%d, v%d', dst, vL + 1, src + 1, dst)
        a('v_fmac_f32 v%d, v%d, v%d', dst + 1, vL + 1, src)
    ES = 110
    a('s_cmp_eq_u32 s%d, 1', sW)
    a('s_cbranch_scc1 L_wave1')
    a('s_cmp_eq_u32 s%d, 0', sW)
    a('s_cbranch_scc0 L_wave23')
    waitpw(vSPW, 11, 105, sleep=1)
    a('s_mov_b32 exec_hi, 0xff')
    for sg in range(16):
        a('ds_read_b64 %s, v%d offset:%d', v(ES + 2 * sg, 2), vCHL, L_EL - L_H + 320 * sg)
    a('v_mov_b32 v142, 0')
    a('v_mov_b32 v143, 0')
    a('s_waitcnt lgkmcnt(0)')
    a('ds_write_b64 v%d, v[142:143] offset:%d', vCHL, L_PL - L_H)
    for sg in range(1, 16):
        a('ds_write_b64 v%d, %s offset:%d', vCHL, v(ES + 2 * sg - 2, 2), L_PL - L_H + 320 * sg)
        chain(ES + 2 * sg, ES + 2 * sg - 2, ES + 2 * sg)
    a('v_min_u32 v%d, -2, v%d', ES + 30, ES + 30)
    a('v_min_u32 v%d, -2, v%d', ES + 31, ES + 31)
    a('buffer_store_dwordx2 %s, v%d, s[%d:%d], s70 offen sc1', v(ES + 30, 2), vCH, R5, R5 + 3)
    a('s_mov_b32 exec_hi, -1')
    setpw(12, 104)
    a('s_branch L_coldone')
    a.label('L_wave1')
    a.label('L_hint')
    a('buffer_load_dword v105, v%d, s[%d:%d], s70 offen offset:512 sc1', vHINT, R5, R5 + 3)
    a('s_waitcnt vmcnt(0)')
    a('v_cmp_eq_u32 vcc, -1, v105')
    a('s_cbranch_vccz L_hintok')
    a('s_mov_b64 exec, vcc')
    a('s_sleep 3')
    a.label('L_hint2')
    a('s_sub_u32 s%d, s%d, 1', sSPIN, sSPIN)
    a('s_cbranch_scc0 L_hint')
    a('s_endpgm')
    a.label('L_hintok')
    a('s_mov_b32 exec_lo, -1')
    a('s_mov_b32 exec_hi, 0xff')
    for k in range(15, 0, -1):
        a('buffer_load_dwordx2 %s, v%d, s[%d:%d], s%d offen offset:%d sc1', v(ES + 2 * (15 - k), 2), vCH, R5, R5 + 3,
          71 if k >= 8 else 70, 512 * (k & 7))
    a('s_waitcnt vmcnt(0)')
    a('v_max_u32 v105, v%d, v%d', ES, ES + 1)
    for n in range(1, 15):
        a('v_max3_u32 v105, v105, v%d, v%d', ES + 2 * n, ES + 2 * n + 1)
    a('v_cmp_eq_u32 vcc, -1, v105')
    a('s_cbranch_vccnz L_hint2')
    for n in range(1, 15):
        chain(ES + 2 * n, ES + 2 * n - 2, ES + 2 * n)
    a('ds_write_b64 v%d, %s', vCHL, v(ES + 28, 2))
    a('s_mov_b32 exec_hi, -1')
    setpw(12, 104)
    a('s_branch L_coldone')
    a.label('L_wave23')
    if OPT['gtouch']:
        a('s_cmp_eq_u32 s%d, 2', sW)
        a('s_cbranch_scc0 L_coldone')
        a('v_min_u32 v106, %d, v%d', 24 * 128, vF3)
        a('s_mul_i32 s78, s2, 3200')
        a('v_add_u32 v106, s78, v106')
        if OPT['gtouch'] == 1:
            waitpw(vA0PW, 5, 105, sleep=2)
        for p in (sCRE, sCIM, sWO):
            a('global_load_dword v109, v106, s[%d:%d]', p, p + 1)
    if OPT['tearly']:
        waitpw(vA0PW, 5, 105, sleep=2)
    for r in range(OPT['tearly']):
        for o in touch(r, vCT):
            a(o)
        if r + 1 < OPT['tearly']:
            a('s_waitcnt vmcnt(0)')
    a.label('L_coldone')
    a('s_lshl2_add_u32 s70, s%d, s%d', sRB, sW)
    a('s_mul_i32 s71, s70, %d', 2 * HBLK)
    a('s_mul_i32 s78, s%d, 1280', sCG)
    a('s_add_u32 s71, s71, s78')
    a('s_add_u32 s71, s71, 0x%x', WS_H)
    a('s_lshl4_add_u32 s70, s70, s%d', sCG)
    flagaddr(70, 70, F3, 78)
    waitpw(vP01, 12, 105, sleep=4)
    stamp('S', 'carry')
    for j in range(5):
        a('ds_read_b32 v%d, v%d offset:%d', 50 + j, vE, L_PL - L_EL + 64 * j)
        a('ds_read_b32 v%d, v%d offset:%d', 56 + j, vHH, 64 * j)
    a('s_waitcnt lgkmcnt(0)')
    for j in range(5):
        a('v_fmac_f32 v%d, v%d, v%d', 50 + j, vZ + 2 * j, 56 + j)
    for j in range(5):
        a('v_fmac_f32_dpp v%d, v%d, v%d %s', 50 + j, 56 + j, vZ + 2 * j + 1, ROR)
    for k in range(8):
        pr = [50 + j if k == 0 else 8 * j + k - 1 for j in range(5)]
        for j in range(5):
            a('v_fmac_f32 v%d, v%d, v%d', 8 * j + k, vPAR + 4 * j, pr[j])
        for j in range(5):
            a('v_fmac_f32_dpp v%d, v%d, v%d %s', 8 * j + k, pr[j], vPAR + 4 * j + 1, ROR)
    for j in range(5):
        for q in range(4):
            a('v_cvt_pk_bf16_f32 v%d, v%d, v%d', 64 + 4 * j + q, 8 * j + 2 * q, 8 * j + 2 * q + 1)
        a('ds_write_b128 v%d, %s offset:%d', vHW, v(64 + 4 * j, 4), 1024 * j)
        a('ds_read_b64_tr_b16 %s, v%d offset:%d', v(110 + 4 * j, 2), vHR0, 1024 * j)
        a('ds_read_b64_tr_b16 %s, v%d offset:%d', v(110 + 4 * j + 2, 2), vHR1, 1024 * j + 256)
    for j in range(5):
        a('s_waitcnt lgkmcnt(%d)', 12 - 3 * j)
        a('buffer_store_dwordx4 %s, v%d, s[%d:%d], s71 offen offset:%d sc1', v(110 + 4 * j, 4), vHS, RWS, RWS + 3, 256 * j)
    setpw(13, 104)

def s_b3():
    NS = 4
    acc, HF, CF = 0, 80, [208, 216]
    a('s_cmp_ge_u32 s%d, 2', sW)
    a('s_cselect_b32 s78, s%d, s%d', sCIM, sCRE)
    a('s_cselect_b32 s79, s%d, s%d', sCIM + 1, sCRE + 1)
    srd(R1, 78, 640 * 1280)
    srd(R6, sOUT, 2048 * 1280 * 4)
    a('s_mul_i32 s74, s%d, %d', sW, REGSZ)
    a('s_add_u32 s74, s74, %d', L_REG)
    a('s_and_b32 s78, s%d, 1', sW)
    a('s_mul_i32 s72, s%d, %d', sOG, 80 * 1280)
    a('s_mul_i32 s73, s78, 640')
    a('s_add_u32 s72, s72, s73')
    a('s_mul_i32 s79, s%d, %d', sW, 40 * 256)
    a('s_add_u32 s79, s79, 0x%x', WS_H)
    a('s_lshr_b32 s80, s%d, 1', sW)
    a('s_lshl1_add_u32 s78, s78, s80')
    for l in range(4):
        a('s_xor_b32 s80, s78, %d', l)
        a('s_lshl2_add_u32 s80, s%d, s80', sTB)
        a('s_mul_i32 s80, s80, %d', HBLK)
        a('s_add_u32 s%d, s80, s79', 84 + l)
    a('s_lshl_b32 s88, s%d, 12', sTB)
    a('s_add_u32 s88, s88, 0x%x', F3)
    a('s_lshl2_add_u32 s78, s%d, s78', sTB)
    a('s_mul_i32 s80, s78, %d', 16 * 1280)
    a('s_mul_i32 s81, s%d, 160', sOG)
    a('s_add_u32 s80, s80, s81')
    a('s_mul_i32 s82, s78, %d', 16 * 5120)
    a('s_lshl1_add_u32 s82, s81, s82')
    a('s_add_u32 s82, s82, 2560')
    a('s_add_u32 s90, s%d, s81', sDSK)
    a('s_addc_u32 s91, s%d, 0', sDSK + 1)
    a('s_lshl2_add_u32 s89, s%d, s%d', sOG, sW)
    a('s_mul_i32 s89, s89, 5120')
    a('s_mul_i32 s79, s%d, %d', sTB, 4 * HBLK)
    a('s_add_u32 s89, s89, s79')
    a('s_add_u32 s89, s89, 0x%x', WS_H)
    a('s_waitcnt vmcnt(0)')
    setflag(70, 40)
    stamp('S', 'hpub')
    if OPT['tlate']:
        for k in range(4):
            a('s_mov_b32 s%d, s%d', 4 + k, 84 + k)
        for r in range(OPT['tearly'], 6):
            for o in touch(r):
                a(o)
            a('s_waitcnt vmcnt(0)')
        for k in range(4):
            a('s_mov_b32 s%d, s%d', 84 + k, 4 + k)
    if OPT['newpre']:
        def cdma(n, pace=None):
            kp, j = divmod(n, 5)
            a('s_add_u32 m0, s74, %d', 2048 * (n % NS))
            a('s_add_u32 s76, s%d, %d', 4 + kp, 16 * 1280 * j)
            for k in range(2):
                if pace is not None:
                    a('s_waitcnt vmcnt(%d)', pace)
                a(dma(vCA + k, R1, 76, 1024 * k))
        def hload(l, ks):
            return 's_add_u32 s9, s%d, s%d\nbuffer_load_dwordx4 %s, v%d, s[%d:%d], s9 offen offset:%d sc1' % (
                84 + l, 12 + ks // 2, v(HF + 16 * (ks % 8) + 4 * l, 4), vHA, RWS, RWS + 3, 1024 * (ks & 1))
        srd(R0, sWO, 640 * 1280)
        rot5(83, 73)
        for kp in range(5):
            a('s_lshl_b32 s73, s83, 7')
            a('s_add_u32 s%d, s72, s73', 4 + kp)
            a('s_lshl_b32 s%d, s83, 11', 12 + kp)
            a('s_lshl2_add_u32 s%d, s83, s%d', 17 + kp, sW)
            a('s_add_u32 s83, s83, 1')
            a('s_cmp_eq_u32 s83, 5')
            a('s_cselect_b32 s83, 0, s83')
        a('s_mul_i32 s75, s%d, 160', sOG)
        waitpw(vSPW, 13, 41, sleep=2)
        for n in range(NS):
            cdma(n, OPT['thrw'] + 1)
        pl = 'buffer_load_dword v41, v%d, s[%d:%d], s88 offen sc1' % (vF3, RWS, RWS + 3)
        for it in range(5):
            if it == OPT['f3at']:
                a('s_mov_b32 exec_hi, 0')
                a(pl)
                a('s_mov_b32 exec_hi, -1')
            a('s_mul_i32 s79, s%d, 40960', 17 + it)
            a('s_add_u32 s79, s79, s75')
            a('s_mul_i32 s78, s%d, 5120', 17 + it)
            a('s_mov_b32 m0, s78')
            for i in range(5):
                if i == 4:
                    a('s_add_u32 m0, s78, 4096')
                a('s_waitcnt vmcnt(%d)', OPT['thrw'])
                a(dma(vWOA + i, R0, 79, 1024 * (i & 3)))
            if it == OPT['f3at']:
                a('s_mov_b32 exec_hi, 0')
                a('s_waitcnt vmcnt(5)')
                a('v_cmp_eq_u32 vcc, 0, v41')
                a('s_cbranch_vccz L_f3seen')
                a('s_mov_b64 exec, vcc')
                pollflags([pl], 41, sleep=4)
                a.label('L_f3seen')
                a('s_mov_b64 exec, -1')
                stamp('S', 'f3')
                a('buffer_load_dword v41, v%d, s[%d:%d], s89 offen sc1', vHT, RWS, RWS + 3)
        stamp('S', 'wo')
        a('v_mov_b32 v42, 14')
        for ks in range(2):
            for l in range(4):
                a('s_waitcnt vmcnt(%d)', OPT['thrw'] + 1)
                a(hload(l, ks))
        a('ds_write_b32 v%d, v42', vPW)
        a('s_setprio %d', OPT['b3prio'])
    else:
        stamp('S', 'touch')
        s_wo()
        waitpw(vSPW, 13, 40, sleep=2)
        def cdma(n):
            kp, j = divmod(n, 5)
            a('s_add_u32 m0, s74, %d', 2048 * (n % NS))
            a('s_add_u32 s76, s%d, %d', 4 + kp, 16 * 1280 * j)
            a(dma(vCA, R1, 76, 0))
            a(dma(vCA + 1, R1, 76, 1024))
        for n in range(NS):
            cdma(n)
            a('s_waitcnt vmcnt(%d)', 0 if n == NS - 1 else 4)
        setpw(14, 40)
        stamp('S', 'wo')
        a('s_cmp_eq_u32 s%d, 2', sW)
        a('s_cbranch_scc0 L_f3wait')
        a('s_mov_b32 exec_hi, 0')
        pollflags(['buffer_load_dword v40, v%d, s[%d:%d], s88 offen sc1' % (vF3, RWS, RWS + 3)], 40, sleep=4)
        setpw(15, 40)
        a.label('L_f3wait')
        waitpw(vS2PW, 15, 40, sleep=4)
        stamp('S', 'f3')
        a('s_setprio %d', OPT['b3prio'])
        def hload(l, ks):
            return 's_add_u32 s9, s%d, s%d\nbuffer_load_dwordx4 %s, v%d, s[%d:%d], s9 offen offset:%d sc1' % (
                84 + l, 12 + ks // 2, v(HF + 16 * (ks % 8) + 4 * l, 4), vHA, RWS, RWS + 3, 1024 * (ks & 1))
        a('buffer_load_dword v40, v%d, s[%d:%d], s89 offen sc1', vHT, RWS, RWS + 3)
        for ks in range(2):
            if ks:
                a('s_waitcnt vmcnt(0)')
            for l in range(4):
                a(hload(l, ks))
    def creads(n):
        return ['ds_read_b128 %s, v%d offset:%d' % (v(CF[n & 1] + 4 * k, 4), vCR + k, 2048 * (n % NS)) for k in range(2)]
    q = []
    def waitfor(tag):
        idx = max(i for i, x in enumerate(q) if x == tag)
        n = len(q) - 1 - idx
        del q[:idx + 1]
        return n
    for r in creads(0):
        a(r)
    a('s_waitcnt vmcnt(0) lgkmcnt(0)')
    stamp('S', 'b3go')
    cdma(NS)
    q += [NS, NS]
    vX, vD = HF + 32, HF + 42
    hq = [(l, ks) for ks in range(2, 10) for l in range(4)]
    STOP = OPT['b3stop']
    frag = {n: CF[n & 1] for n in range(25)}
    if STOP == 15:
        for k, n in enumerate(range(17, 21)):
            frag[n] = HF + 64 + 8 * k
    def creads(n):
        return ['ds_read_b128 %s, v%d offset:%d' % (v(frag[n] + 4 * k, 4), vCR + k, 2048 * (n % NS)) for k in range(2)]
    done = {0}
    def fetch(n):
        if n in q:
            a('s_waitcnt vmcnt(%d)', waitfor(n))
        for r in creads(n):
            a(r)
        done.add(n)
    issued = set(range(NS + 1))
    def refill(n):
        if n + NS < 25 and n + NS not in issued:
            cdma(n + NS)
            q.extend([n + NS, n + NS])
            issued.add(n + NS)
    for n in range(25):
        kp, j = divmod(n, 5)
        if n == STOP:
            last = 20 if STOP == 15 else n
            for m in range(n + 1, last + 1):
                fetch(m)
                a('s_waitcnt lgkmcnt(0)')
                refill(m)
            a('s_waitcnt vmcnt(0)')
            del q[:]
            stamp('S', 'b3stop')
            a('s_setprio 1')
            waitpw(vAM, OPT['b3res'], 245, sleep=2)
            stamp('S', 'b3res')
        nxt = n + 1
        while nxt in done:
            nxt += 1
        rd = nxt < 25 and (nxt == n + 1 or all(frag[nxt] != frag[m] for m in range(n, nxt)))
        if rd:
            fetch(nxt)
        if j == 0 and 'h%d' % kp in q:
            a('s_waitcnt vmcnt(%d)', waitfor('h%d' % kp))
        if OPT['fine'] >= 2 and n in (3, 6, 9, 12):
            stamp('S', 'u%d' % n)
        extra = []
        for _ in range(OPT['hrate']):
            if hq and (hq[0][1] < 8 or n >= 5):
                l, ks = hq.pop(0)
                extra.append(hload(l, ks))
                q.append('h%d' % (ks // 2))
        if 10 <= n < 15:
            i = n - 10
            extra += ['global_load_dwordx2 %s, v%d, s[90:91] offset:%d' % (v(vD + 2 * i, 2), vDO, 32 * i),
                      'buffer_load_dwordx2 %s, v%d, s[%d:%d], s80 offen offset:%d' % (v(vX + 2 * i, 2), vXO, R3, R3 + 3, 32 * i)]
            q += ['x', 'x']
        assert len(extra) <= 5
        cnt = 0
        for k in range(2):
            ks = 2 * kp + k
            for l in range(4):
                d = acc + 20 * l + 4 * j
                a('v_mfma_f32_16x16x32_bf16 %s, %s, %s, %s', v(d, 4), v(frag[n] + 4 * k, 4), v(HF + 16 * (ks % 8) + 4 * l, 4),
                  '0' if ks == 0 else v(d, 4))
                if cnt < len(extra):
                    a(extra[cnt])
                cnt += 1
                if cnt == 5 and rd:
                    a('s_waitcnt lgkmcnt(0)')
                    refill(nxt)
                if cnt == 5 and n == OPT['gate4']:
                    a('ds_write_b32 v%d, v%d', vPW, vC16)
    assert not hq
    stamp('S', 'b3gemm')
    T = 160
    a('s_setprio 1')
    waitpw(vAM, 7, T, sleep=2)
    for qd in range(10):
        a('ds_write_b128 v%d, %s offset:%d', vR1W, v(acc + 40 + 4 * qd, 4), 1024 * qd)
    setpw(17, T + 1)
    a('s_waitcnt vmcnt(0)')
    U = 180
    def skip(i):
        for hf in range(2):
            a('v_lshlrev_b32 v%d, 16, v%d', T + 4, vX + 2 * i + hf)
            a('v_lshlrev_b32 v%d, 16, v%d', T + 5, vD + 2 * i + hf)
            a('v_and_b32 v%d, 0xffff0000, v%d', T + 6, vX + 2 * i + hf)
            a('v_and_b32 v%d, 0xffff0000, v%d', T + 7, vD + 2 * i + hf)
            a('v_mul_f32 v%d, v%d, v%d', U + 4 * i + 2 * hf, T + 4, T + 5)
            a('v_mul_f32 v%d, v%d, v%d', U + 4 * i + 2 * hf + 1, T + 6, T + 7)
    skip(0)
    skip(1)
    waitpw(vPW1, 17, T + 1)
    for qd in (5, 6, 7, 8, 9, 0, 1, 2, 3, 4):
        a('ds_read_b128 %s, v%d offset:%d', v(acc + 40 + 4 * qd, 4), vR1R, 1024 * qd)
    skip(2)
    a('s_waitcnt lgkmcnt(0)')
    for qd in (5, 6, 7, 8, 9, 0, 1, 2, 3, 4):
        l, j = divmod(qd, 5)
        for e in range(4):
            a('v_add_f32 v%d, v%d, v%d', acc + 4 * qd + e, acc + 4 * qd + e, acc + 40 + 4 * qd + e)
        a('ds_write_b128 v%d, %s offset:%d', vR2W, v(acc + 4 * qd, 4), 16 * 336 * l + 64 * j)
        if qd == 9:
            setpw(18, T + 1)
    for i in range(5):
        a('ds_read_b128 %s, v%d offset:%d', v(acc + 40 + 8 * i, 4), vRA, 64 * i)
    skip(3)
    skip(4)
    waitpw(vPW2, 18, T + 1)
    for i in range(5):
        a('ds_read_b128 %s, v%d offset:%d', v(acc + 44 + 8 * i, 4), vRA + 1, 64 * i)
    for i in range(5):
        for e in range(4):
            a('v_add_f32 v%d, v%d, v%d', U + 4 * i + e, U + 4 * i + e, acc + 40 + 8 * i + e)
    for i in range(5):
        a('s_waitcnt lgkmcnt(%d)', 4 - i)
        for e in range(4):
            a('v_add_f32 v%d, v%d, v%d', U + 4 * i + e, U + 4 * i + e, acc + 44 + 8 * i + e)
    stamp('S', 'yrdy')
    if OPT['yhold']:
        a('v_subrev_u32 v%d, 1024, v%d', T + 2, vSPW)
        waitpw(T + 2, 9, T + 1, sleep=2)
    for i in range(5):
        a('buffer_store_dwordx4 %s, v%d, s[%d:%d], s82 offen offset:%d%s', v(U + 4 * i, 4), vOA, R6, R6 + 3, 64 * i, YSC)
    finish('S')

prologue()
s_setup()
s_qloader()
if OPT['sexit'] == 1:
    setpw(99, 40)
    finish('S')
s_b1()
if OPT['sexit'] == 2:
    setpw(99, 40)
    finish('S')
s_scan()
s_b3()
a_setup()
a_att_setup()
a_qphase()
a_handoff()
a_attention()
a_outproj()
a.label('L_codeend')

errs = check(a.lines)
for e_ in errs:
    print('HAZARD', e_, file=sys.stderr)

head = open('cdna_kernels/%s.s.ref' % NAME).read().split('; @launch')[0]
out = head + '; @launch grid=(256,1,1) block=(512,1,1) lds=%d\n' % LDS_BYTES
out += '''.amdgcn_target "amdgcn-amd-amdhsa--gfx950"
.text
.globl %s_kernel
.p2align 8
.type %s_kernel,@function
%s_kernel:
''' % (NAME, NAME, NAME)
out += a.text()
out += '''.section .rodata,"a"
.p2align 6
.amdhsa_kernel %s_kernel
  .amdhsa_next_free_vgpr 256
  .amdhsa_next_free_sgpr 102
  .amdhsa_accum_offset 256
  .amdhsa_group_segment_fixed_size 0
  .amdhsa_kernarg_size 120
  .amdhsa_user_sgpr_count 2
  .amdhsa_user_sgpr_kernarg_segment_ptr 1
  .amdhsa_system_sgpr_workgroup_id_x 1
.end_amdhsa_kernel
''' % NAME
open(sys.argv[1], 'w').write(out)
if DIAG:
    import json
    json.dump(nstamp, open(sys.argv[1] + '.stamps.json', 'w'))
import subprocess
r_ = subprocess.run(['clang', '-x', 'assembler', '-target', 'amdgcn-amd-amdhsa', '-mcpu=gfx950', '-c', sys.argv[1], '-o', 'chk.o'], capture_output=True, text=True)
if r_.returncode:
    print(r_.stderr[:2000])
    sys.exit(1)
if errs:
    sys.exit(1)
```

```python
import sys, math, struct
from asmlib import Asm, v, s, check

NAME = 'concat_heads__mha_block__ssm_conv_s5__prompt'
OPT = dict(diag=0, b3start=12, force_fb=0, psleep=2, fine=0, cpre=1, stag=4, b1dep=2, rot=1, thr=4, hold=3, codepre=1, psleep4=2, padto=0, outsc1=1, gate4=-1, early0=1, st10=2, b1prio=0, probe='', probewg=-1, sexit=0, b3prio=0, nocdma=0, mallpre=0, b3early=1, pretouch=-1, pace=0, pause=1, wolate=1, thrw=2, kvsplit=5, tstart=0, k2split=0, gate1='x', tlate=0, spread=1, pollat=17, tearly=0, b3stop=15, b3res=7, hrate=3, yhold=1, rot5=1, wopack=0, olead=20, allpoll=1, ysc=1, clrwide=0, nodup=1, onewait=0, vzero=1, lalign=6, lpad=0, epoll=1, npre=2, tprio=0, pgate=1, p3dyn=0, flip=1, newpre=1, f3at=2, gtouch=0, pkmerge=0, kvplain=0, acq=0)
for a_ in sys.argv[2:]:
    k_, v_ = a_.split('=')
    OPT[k_] = v_ if k_ in ('probe', 'gate1') else int(v_)
DIAG = OPT['diag']
OSC = ['', ' sc1', ' nt', ' sc1 nt'][OPT['outsc1']]
YSC = ['', ' sc1', ' nt', ' sc1 nt'][OPT['ysc']]

def f2u(x):
    return struct.unpack('<I', struct.pack('<f', x))[0]

BLK, VOFF, VROW = 247808, 164864, 10368
WS_H, HBLK = 0x800000, 40960
WS_O, OBLK = 0xD00000, 20480
WS_E = 0xF80000
WS_F = 0xFA0000
F1, F3, F4 = WS_F, WS_F + 0x8000, WS_F + 0x28000
WS_WP = 0x1000000
WS_END = WS_WP + 8 * 102400
WS_DIAG = 0x1100000
OOB = 0x7F000000
L_HT, L_EL, L_PL, L_PAR = 131072, 151552, 156672, 161024
L_PAR = 131072 + 0
L_WO = 0
L_REG, REGSZ = 102400, 14848
L_PW = 161792
LDS_BYTES = 163840
sAX, sWQ, sWO, sBX, sLRE, sLIM, sBRE, sBIM, sCRE, sCIM, sLDT, sDSK, sOUT, sDBG, sWS = range(4, 34, 2)
sW, sI, sXCD = 34, 35, 3
R0, R1, RWS, R3, R4, R5, R6 = 36, 40, 44, 48, 52, 56, 60
sRB, sCG, sHD, sQB, sTB, sOG = 64, 65, 66, 67, 68, 69
sSPIN = 96
sHI = 94
vLANE, vPW, vTS = 254, 253, 255
SPIN_MAX = 1 << 19

a = Asm()
nstamp = {}

def stamp(role, name):
    if OPT['probe'] == role + name:
        a('s_memrealtime s[98:99]')
        a('s_waitcnt lgkmcnt(0)')
        a('s_mov_b32 s97, s98')
    if not DIAG:
        return
    l = nstamp.setdefault(role, [])
    if DIAG == 2:
        l.append(name)
        return
    idx = len(l)
    l.append(name)
    a('s_memtime s[98:99]')
    a('s_memrealtime s[100:101]')
    a('s_waitcnt lgkmcnt(0)')
    a('v_writelane_b32 v%d, s98, %d', vTS, idx)
    a('v_writelane_b32 v%d, s100, %d', vTS, 32 + idx)

def srd(r, base, nbytes):
    a('s_mov_b32 s%d, s%d', r, base)
    a('s_mov_b32 s%d, s%d', r + 1, base + 1)
    if isinstance(nbytes, int):
        a('s_mov_b32 s%d, 0x%x', r + 2, nbytes)
    else:
        a('s_mov_b32 s%d, %s', r + 2, nbytes)
    a('s_mov_b32 s%d, 0x20000', r + 3)

def setpw(val, tmp):
    a('v_mov_b32 v%d, %d', tmp, val)
    a('ds_write_b32 v%d, v%d', vPW, tmp)

def waitpw(vaddr, val, tmp, sleep=0):
    L = a.newlabel('pw')
    D = a.newlabel('pwd')
    a.label(L)
    a('ds_read_b32 v%d, v%d', tmp, vaddr)
    a('s_waitcnt lgkmcnt(0)')
    a('v_cmp_gt_u32 vcc, %d, v%d', val, tmp)
    a('s_cbranch_vccz %s', D)
    if sleep:
        a('s_sleep %d', sleep)
    a('s_sub_u32 s%d, s%d, 1', sSPIN, sSPIN)
    a('s_cbranch_scc0 %s', L)
    a('s_endpgm')
    a.label(D)

def pollflags(loads, tmp, sleep=1):
    L = a.newlabel('pf')
    D = a.newlabel('pfd')
    a.label(L)
    for l in loads:
        a(l)
    a('s_waitcnt vmcnt(0)')
    for i in range(1, len(loads)):
        a('v_and_b32 v%d, v%d, v%d', tmp, tmp, tmp + i)
    a('v_cmp_eq_u32 vcc, 0, v%d', tmp)
    a('s_cbranch_vccz %s', D)
    a('s_mov_b64 exec, vcc')
    if sleep:
        a('s_sleep %d', sleep)
    a('s_sub_u32 s%d, s%d, 1', sSPIN, sSPIN)
    a('s_cbranch_scc0 %s', L)
    a('s_endpgm')
    a.label(D)
    a('s_mov_b64 exec, -1')

def dbgload(va, vd):
    return 'global_load_dword v%d, v%d, s[%d:%d] sc1' % (vd, va, sDBG, sDBG + 1)

def flagaddr(dst, idx, base, t):
    a('s_lshl_b32 s%d, s%d, 7', dst, idx)
    a('s_add_u32 s%d, s%d, 0x%x', dst, dst, base)

def setflag(soff, tmp):
    a('v_mov_b32 v%d, 1', tmp)
    a('s_mov_b64 exec, 1')
    a('buffer_store_dword v%d, off, s[%d:%d], s%d sc1', tmp, RWS, RWS + 3, soff)
    a('s_mov_b64 exec, -1')

def tau(dst, src, t):
    a('v_and_b32 v%d, 0x13, v%d', dst, src)
    a('v_and_b32 v%d, 4, v%d', t, src)
    a('v_lshl_or_b32 v%d, v%d, 1, v%d', dst, t, dst)
    a('v_and_b32 v%d, 8, v%d', t, src)
    a('v_lshrrev_b32 v%d, 1, v%d', t, t)
    a('v_or_b32 v%d, v%d, v%d', dst, t, dst)

def finish(role):
    if OPT['probe'][:1] == role:
        if OPT['probe'][1:] == 'drained':
            a('s_waitcnt vmcnt(0)')
            stamp(role, 'drained')
        a('s_sub_u32 s97, s97, s100')
        a('s_mul_i32 s97, s97, 10')
        a('s_add_u32 s97, s97, 10000')
        if OPT['probewg'] >= 0:
            a('s_and_b32 s98, s2, 31')
            a('s_cmp_eq_u32 s98, %d', OPT['probewg'])
            a('s_cselect_b32 s97, s97, 0')
        L = a.newlabel('pad')
        a.label(L)
        a('s_sleep 4')
        a('s_memrealtime s[98:99]')
        a('s_waitcnt lgkmcnt(0)')
        a('s_sub_u32 s98, s98, s100')
        a('s_cmp_lt_u32 s98, s97')
        a('s_cbranch_scc1 %s', L)
    if OPT['padto']:
        L = a.newlabel('pad')
        a.label(L)
        a('s_sleep 4')
        a('s_memrealtime s[98:99]')
        a('s_waitcnt lgkmcnt(0)')
        a('s_sub_u32 s98, s98, s100')
        a('s_cmp_lt_u32 s98, %d', OPT['padto'])
        a('s_cbranch_scc1 %s', L)
    if DIAG:
        stamp(role, 'end')
        a('s_waitcnt vmcnt(0)')
        stamp(role, 'drained')
        a('s_memrealtime s[98:99]')
        a('s_waitcnt lgkmcnt(0)')
        a('v_writelane_b32 v%d, s98, 31', vTS)
        a('s_lshl_b32 s70, s2, 3')
        a('s_add_u32 s70, s70, s%d', sW)
        if role == 'S':
            a('s_add_u32 s70, s70, 4')
        a('s_lshl_b32 s70, s70, 8')
        a('s_add_u32 s70, s70, 0x%x', WS_DIAG)
        a('v_lshlrev_b32 v0, 2, v%d', vLANE)
        a('buffer_store_dword v%d, v0, s[%d:%d], s70 offen', vTS, RWS, RWS + 3)
    a('s_endpgm')

def prologue():
    a('s_cmp_ge_u32 s2, 256')
    a('s_cbranch_scc0 L_go')
    a('s_endpgm')
    a.label('L_go')
    if OPT['padto'] or DIAG or OPT['probe']:
        a('s_memrealtime s[100:101]')
    a('s_load_dwordx16 s[4:19], s[0:1], 0')
    a('s_load_dwordx8 s[20:27], s[0:1], 64')
    a('s_load_dwordx4 s[28:31], s[0:1], 96')
    a('s_load_dwordx2 s[32:33], s[0:1], 112')
    a('v_lshrrev_b32 v1, 6, v0')
    a('v_and_b32 v%d, 63, v0', vLANE)
    a('v_readfirstlane_b32 s%d, v1', sW)
    a('v_lshlrev_b32 v%d, 2, v0', vPW)
    a('v_add_u32 v%d, %d, v%d', vPW, L_PW, vPW)
    a('v_mov_b32 v1, 0')
    a('ds_write_b32 v%d, v1', vPW)
    a('s_and_b32 s%d, s2, 7', sXCD)
    a('s_lshr_b32 s%d, s2, 3', sI)
    a('s_and_b32 s70, s%d, 3', sI)
    a('s_lshr_b32 s%d, s%d, 2', sOG, sI)
    a('s_lshr_b32 s71, s%d, 1', sXCD)
    a('s_lshl2_add_u32 s%d, s71, s70', sRB)
    a('s_and_b32 s71, s%d, 1', sXCD)
    a('s_lshl3_add_u32 s%d, s71, s%d', sCG, sOG)
    a('s_lshr_b32 s71, s%d, 3', sI)
    a('s_lshl2_add_u32 s%d, s%d, s71', sHD, sXCD)
    a('s_and_b32 s%d, s%d, 7', sQB, sI)
    a('s_lshl2_add_u32 s%d, s%d, s70', sTB, sXCD)
    a('s_mov_b32 s%d, 0x%x', sSPIN, SPIN_MAX)
    a('s_mov_b32 s%d, 0', sHI)
    a('s_mov_b32 s%d, -1', sHI + 1)
    a('s_cmp_ge_u32 s%d, 4', sW)
    a('s_cbranch_scc0 L_roleA')

def ws_setup():
    srd(RWS, sWS, WS_END if not DIAG else WS_DIAG + 0x100000)
    if DIAG:
        a('v_mov_b32 v%d, 0', vTS)
        a('v_writelane_b32 v%d, s100, 30', vTS)

def stagger(k, t, add, flip=1, newpre=1, f3at=2, gtouch=0, pkmerge=0, kvplain=0, acq=0):
    a('s_and_b32 s%d, s%d, 3', k, sI)
    if flip:
        a('s_xor_b32 s%d, s%d, 1', k, k)
    a('s_mul_i32 s%d, s%d, 5', k, k)
    a('s_lshr_b32 s%d, s%d, 1', k, k)
    a('s_mul_i32 s%d, s%d, 5', t, sOG)
    a('s_lshr_b32 s%d, s%d, 2', t, t)
    a('s_add_u32 s%d, s%d, s%d', k, k, t)
    a('s_add_u32 s%d, s%d, %d', t, sXCD, 1 + 2 * add)
    a('s_lshr_b32 s%d, s%d, 1', t, t)
    a('s_add_u32 s%d, s%d, s%d', k, k, t)
    for _ in range(2 if add else 1):
        a('s_cmp_ge_u32 s%d, 10', k)
        a('s_cselect_b32 s%d, 10, 0', t)
        a('s_sub_u32 s%d, s%d, s%d', k, k, t)

def b1_sources(rx, rb, vx, vb, sm, sb, t, j0=2):
    srd(rx, sBX, 2048 * 1280)
    a('s_cmp_ge_u32 s%d, 2', sW)
    a('s_cselect_b32 s%d, s%d, s%d', t, sBIM, sBRE)
    a('s_cselect_b32 s%d, s%d, s%d', t + 1, sBIM + 1, sBRE + 1)
    srd(rb, t, 640 * 1280)
    a('v_lshrrev_b32 v1, 3, v%d', vLANE)
    a('v_and_b32 v2, 7, v%d', vLANE)
    a('v_lshrrev_b32 v3, 4, v%d', vLANE)
    a('v_xor_b32 v4, v2, v3')
    a('v_and_b32 v5, 3, v1')
    a('v_lshrrev_b32 v6, 2, v1')
    a('v_lshl_add_u32 v5, v6, 3, v5')
    a('v_mul_u32_u24 v5, 1280, v5')
    a('v_lshl_add_u32 v%d, v4, 4, v5', vx)
    a('v_xor_b32 v6, 64, v%d', vx)
    a('v_add_u32 v%d, %d, v6', vx + 1, 16 * 1280 - 1024)
    a('v_add_u32 v%d, %d, v%d', vx + 2, 4 * 1280 - 2048, vx)
    a('v_add_u32 v%d, %d, v6', vx + 3, 20 * 1280 - 3072)
    a('s_lshr_b32 s%d, s%d, 1', t, sW)
    a('s_lshl_b32 s%d, s%d, 6', t + 1, t)
    a('v_mul_u32_u24 v5, 1280, v1')
    a('v_lshl_add_u32 v5, v4, 4, v5')
    a('v_xor_b32 v%d, s%d, v5', vb, t + 1)
    for i in range(1, 3):
        a('v_add_u32 v%d, %d, v%d', vb + i, (10240 - 1024) * i, vb)
    a('s_and_b32 s%d, s%d, 1', t + 1, sW)
    a('s_mul_i32 s%d, s%d, 5120', sm, t)
    a('s_mul_i32 s%d, s%d, %d', sb, t + 1, 1024 * j0)
    a('s_add_u32 s%d, s%d, s%d', sm, sm, sb)
    a('s_mul_i32 s%d, s%d, %d', sb, sCG, 40 * 1280)
    a('s_mul_i32 s%d, s%d, %d', t + 1, t + 1, 8 * 1280 * j0)
    a('s_add_u32 s%d, s%d, s%d', sb, sb, t + 1)

def dma(voff, r, soff, imm):
    return 'buffer_load_dwordx4 v%d, s[%d:%d], s%d offen offset:%d lds' % (voff, r, r + 3, soff, imm)

def a_b1stage(t):
    slot = (t % 4) * 32768
    a('s_add_u32 m0, s6, %d', slot)
    a('s_lshl_b32 s9, s8, 7')
    a('s_add_u32 s12, s4, s9')
    for i in range(4):
        a(dma(112 + i, R5, 12, 1024 * i))
    a('s_add_u32 m0, s7, %d', slot + 16384)
    a('s_add_u32 s12, s5, s9')
    L = a.newlabel('b3rd')
    for i in range(3):
        if i == 2 and OPT['nodup']:
            a('s_cmp_eq_u32 s%d, 1', sCW)
            a('s_cbranch_scc1 %s', L)
        a(dma(116 + i, R6, 12, 1024 * i))
    a.label(L)
    a('s_add_u32 s8, s8, 1')
    a('s_cmp_eq_u32 s8, 10')
    a('s_cselect_b32 s8, 0, s8')

sTW, sCW = 72, 73
vXA, vWA = 96, 104
vF1A = 252
vAPW = 249

def a_setup():
    a.label('L_roleA')
    a('s_waitcnt lgkmcnt(0)')
    ws_setup()
    stamp('A', 'start')
    a('s_lshr_b32 s%d, s%d, 1', sTW, sW)
    a('s_and_b32 s%d, s%d, 1', sCW, sW)
    a('s_lshl1_add_u32 s75, s%d, s%d', sRB, sTW)
    a('s_mul_i32 s74, s75, %d', BLK)
    a.c('column group 15 has no GEMM tile: these workgroups clear the flags and write the constant blocks')
    a('s_cmp_eq_u32 s%d, 15', sCG)
    a('s_cbranch_scc0 L_noconst')
    a('s_lshl2_add_u32 s77, s%d, s%d', sRB, sW)
    if OPT['clrwide']:
        a('v_lshlrev_b32 v2, 4, v%d', vLANE)
        a('v_min_u32 v3, 496, v2')
        for i in range(4):
            a('v_mov_b32 v%d, 0', 4 + i)
        a('s_mul_i32 s76, s77, 4608')
        a('s_add_u32 s76, s76, 0x%x', WS_F)
        for i in range(4):
            a('buffer_store_dwordx4 v[4:7], v2, s[%d:%d], s76 offen offset:%d sc1', RWS, RWS + 3, 1024 * i)
        a('s_add_u32 s76, s76, 4096')
        a('buffer_store_dwordx4 v[4:7], v3, s[%d:%d], s76 offen sc1', RWS, RWS + 3)
    else:
        a('v_min_u32 v1, 35, v%d', vLANE)
        a('v_lshlrev_b32 v1, 7, v1')
        a('v_mov_b32 v4, 0')
        a('s_mul_i32 s76, s77, 4608')
        a('s_add_u32 s76, s76, 0x%x', WS_F)
        a('buffer_store_dword v4, v1, s[%d:%d], s76 offen sc1', RWS, RWS + 3)
        a('v_lshlrev_b32 v2, 4, v%d', vLANE)
    for i in range(4):
        a('v_mov_b32 v%d, -1', 20 + i)
    a('s_lshl_b32 s76, s77, 11')
    a('s_add_u32 s76, s76, 0x%x', WS_E)
    for i in range(2):
        a('buffer_store_dwordx4 v[20:23], v2, s[%d:%d], s76 offen offset:%d sc1', RWS, RWS + 3, 1024 * i)
    a('v_lshrrev_b32 v1, 3, v%d', vLANE)
    a('v_mul_u32_u24 v1, %d, v1', VROW - 128)
    a('v_add_u32 v1, %d, v1', VOFF + 640 * 16 - 160 * 1024)
    a('v_mul_lo_u32 v1, v1, s%d', sCW)
    a('v_add_u32 v1, v1, v2')
    a('s_mul_i32 s76, s%d, 0x3f803f80', sCW)
    a('v_mov_b32 v8, 0x3f803f80')
    a('v_mov_b32 v9, s76')
    a('v_mov_b32 v10, v8')
    a('v_mov_b32 v11, s76')
    a('s_add_u32 s76, s74, %d', 160 * 1024)
    a('buffer_store_dwordx4 v[8:11], v1, s[%d:%d], s76 offen sc1', RWS, RWS + 3)
    a.label('L_noconst')
    if OPT['codepre']:
        a.c('pull the code into L2: each wave of an XCD touches a few lines')
        a('s_getpc_b64 s[76:77]')
        a.label('L_pc')
        a('s_sub_u32 s76, s76, L_pc - L_go')
        a('s_subb_u32 s77, s77, 0')
        a('s_lshl2_add_u32 s78, s%d, s%d', sI, sW)
        a('s_mul_i32 s78, s78, 3')
        a('v_min_u32 v1, 2, v%d', vLANE)
        a('v_add_u32 v1, s78, v1')
        a('v_min_u32 v1, (L_codeend - L_go) / 128 - 1, v1')
        a('v_lshlrev_b32 v1, 7, v1')
        a('global_load_dword v110, v1, s[76:77]')
    a.c('LDS fragment addresses for the QKV GEMM')
    a('v_and_b32 v1, 31, v%d', vLANE)
    a('v_lshrrev_b32 v2, 5, v%d', vLANE)
    a('v_bfe_u32 v3, v1, 1, 3')
    a('v_xor_b32 v3, v3, v2')
    a('v_lshlrev_b32 v3, 4, v3')
    a('v_lshl_add_u32 v3, v1, 7, v3')
    a('s_lshl_b32 s76, s%d, 13', sTW)
    a('v_add_u32 v3, s76, v3')
    for ks in range(4):
        a('v_xor_b32 v%d, %d, v3', vXA + ks, ks << 5)
        a('v_add_u32 v%d, 0x10000, v%d', vXA + 4 + ks, vXA + ks)
    a('v_bfe_u32 v4, v%d, 2, 2', vLANE)
    a('v_lshl_add_u32 v5, v2, 3, v4')
    a('v_lshlrev_b32 v5, 8, v5')
    a('v_bfe_u32 v6, v%d, 4, 1', vLANE)
    a('v_and_b32 v7, 1, v%d', vLANE)
    a('v_lshl_add_u32 v6, v6, 1, v7')
    a('s_lshl_b32 s76, s%d, 3', sCW)
    a('v_add_u32 v6, s76, v6')
    a('v_lshlrev_b32 v4, 2, v4')
    a('v_xor_b32 v6, v6, v4')
    a('v_lshl_add_u32 v5, v6, 4, v5')
    a('v_bfe_u32 v7, v%d, 1, 1', vLANE)
    a('v_lshl_add_u32 v5, v7, 3, v5')
    a('v_add_u32 v%d, 16384, v5', vWA)
    a('v_xor_b32 v%d, 64, v%d', vWA + 1, vWA)
    a('v_add_u32 v%d, 0x10000, v%d', vWA + 2, vWA)
    a('v_add_u32 v%d, 0x10000, v%d', vWA + 3, vWA + 1)

def a_qloop(vt):
    F = [64, 80]
    def reads(st, ks, f):
        slot = st % 4
        hi, lo = slot >> 1, (slot & 1) * 32768
        r = []
        for T in range(2):
            r.append('ds_read_b128 %s, v%d offset:%d' % (v(f + 4 * T, 4), vXA + 4 * hi + ks, lo + 4096 * T))
        for Tc in range(2):
            for rd in range(2):
                r.append('ds_read_b64_tr_b16 %s, v%d offset:%d' % (v(f + 8 + 4 * Tc + 2 * rd, 2), vWA + 2 * hi + Tc,
                                                                  lo + (16 * ks + 4 * rd) * 256))
        return [r[0], r[2], r[3], r[1], r[4], r[5]]
    def mfma(f, i, j, first):
        acc = (2 * i + j) * 16
        A = f + 4 * i if vt else f + 8 + 4 * i
        B = f + 8 + 4 * j if vt else f + 4 * j
        return 'v_mfma_f32_32x32x16_bf16 %s, %s, %s, %s' % (v(acc, 16), v(A, 4), v(B, 4), '0' if first else v(acc, 16))
    a('s_barrier')
    for r in reads(0, 0, F[0]):
        a(r)
    for st in range(10):
        for ks in range(4):
            cur, nxt = F[ks & 1], F[(ks + 1) & 1]
            first = st == 0 and ks == 0
            a('s_waitcnt lgkmcnt(0)')
            if ks == 3:
                a('s_barrier')
                rr = reads(st + 1, 0, nxt) if st < 9 else []
            else:
                rr = reads(st, ks + 1, nxt)
            if st == 9 and ks == 3:
                a(mfma(cur, 0, 0, False))
                a(mfma(cur, 0, 1, False))
                return [mfma(nxt, 1, 1, False), mfma(cur, 1, 0, False), mfma(cur, 1, 1, False)]
            a(mfma(cur, 0, 0, first))
            for r in rr[:3]:
                a(r)
            a(mfma(cur, 0, 1, first))
            for r in rr[3:]:
                a(r)
            a(mfma(cur, 1, 0, first))
            if not (st == 9 and ks == 2):
                a(mfma(cur, 1, 1, first))

def tailweave(ms, work):
    a(ms[0])
    a('s_nop 6')
    a(ms[1])
    a('s_nop 1')
    for o in work[:6]:
        a(o)
    a(ms[2])
    for o in work[6:]:
        a(o)

def a_pack_wo():
    a('s_lshl2_add_u32 s76, s%d, s%d', sRB, sW)
    a('s_mul_i32 s77, s76, 12800')
    a('s_add_u32 s78, s14, s77')
    a('s_addc_u32 s79, s15, 0')
    a('s_mul_i32 s76, s76, 10')
    a('s_mov_b32 s80, 0x%x', WS_WP)
    for n in range(13):
        a('v_add_u32 v60, %d, v%d', 64 * n, vLANE)
        if n == 12:
            a('v_min_u32 v60, 799, v60')
        a('v_lshlrev_b32 v61, 4, v60')
        a('global_load_dwordx4 %s, v61, s[78:79]', v(4 * n, 4))
        a('v_mul_u32_u24 v61, 820, v60')
        a('v_lshrrev_b32 v61, 16, v61')
        a('v_mul_u32_u24 v62, 80, v61')
        a('v_sub_u32 v60, v60, v62')
        a('v_add_u32 v61, s76, v61')
        a('v_mul_u32_u24 v62, 6554, v60')
        a('v_lshrrev_b32 v62, 16, v62')
        a('v_mul_u32_u24 v62, %d, v62', 6400 - 10)
        a('v_add_u32 v60, v60, v62')
        a('v_and_b32 v62, 0xfff3, v61')
        a('v_and_b32 v63, 4, v61')
        a('v_lshl_or_b32 v62, v63, 1, v62')
        a('v_bfe_u32 v63, v61, 3, 1')
        a('v_lshl_or_b32 v62, v63, 2, v62')
        a('v_mul_u32_u24 v62, 10, v62')
        a('v_add_lshl_u32 v%d, v60, v62, 4', 64 + n)
    for n in range(13):
        a('s_waitcnt vmcnt(12)')
        a('buffer_store_dwordx4 %s, v%d, s[%d:%d], s80 offen sc1', v(4 * n, 4), 64 + n, RWS, RWS + 3)
    if OPT['wopack'] > 1:
        a('v_min_u32 v60, 49, v%d', vLANE)
        a('v_lshl_add_u32 v60, v60, 7, s77')
        a('v_add_u32 v61, 6400, v60')
        for p in (sCRE, sCIM):
            a('global_load_dword v111, v60, s[%d:%d]', p, p + 1)
            a('global_load_dword v111, v61, s[%d:%d]', p, p + 1)

def a_qphase():
    a('s_cmp_ge_u32 s%d, 10', sCG)
    a('s_cbranch_scc1 L_qV')
    a('v_and_b32 v1, 31, v%d', vLANE)
    a('v_lshrrev_b32 v2, 5, v%d', vLANE)
    a('v_lshlrev_b32 v1, 4, v1')
    a('v_lshl_add_u32 v108, v2, 10, v1')
    a('s_lshl1_add_u32 s76, s%d, s%d', sCG, sCW)
    a('s_lshl_b32 s77, s76, 13')
    a('s_add_u32 s77, s77, s74')
    a('s_add_u32 s78, s77, 4096')
    a('s_mul_i32 s79, s%d, 3', sCW)
    a('s_add_u32 s79, s79, s%d', sCG)
    for _ in range(2):
        a('s_cmp_ge_u32 s79, 5')
        a('s_cselect_b32 s80, 5, 0')
        a('s_sub_u32 s79, s79, s80')
    for Tc in range(2):
        for u in range(2):
            m = 16 + 2 * (2 * Tc + u)
            a('s_cmp_eq_u32 s79, %d', (2 - 4 * Tc - 2 * u) % 5)
            a('s_cselect_b32 s%d, -1, 0', m)
            a('s_cmp_eq_u32 s79, %d', (1 - 4 * Tc - 2 * u) % 5)
            a('s_cselect_b32 s%d, -1, 0', m + 1)
    c0 = f2u(math.log2(math.e) / math.sqrt(20.0))
    a('s_mov_b32 s80, 0x%x', c0)
    ms = a_qloop(False)
    def group(Tc, u, scale):
        o = []
        P = 120 + 8 * (2 * Tc + u)
        for T in range(2):
            acc = (2 * Tc + T) * 16 + 8 * u
            if scale:
                o += ['v_mul_f32 v%d, s80, v%d' % (acc + e, acc + e) for e in range(8)]
            o += ['v_cvt_pk_bf16_f32 v%d, v%d, v%d' % (P + 4 * T + q, acc + 2 * q, acc + 2 * q + 1) for q in range(4)]
        m = 16 + 2 * (2 * Tc + u)
        o.append('s_mov_b64 exec, s[%d:%d]\nv_swap_b32 v%d, v%d\nv_swap_b32 v%d, v%d\ns_mov_b64 exec, -1' % (m, m + 1, P + 2, P + 4, P + 3, P + 5))
        for T in range(2):
            o.append('buffer_store_dwordx4 %s, v108, s[%d:%d], s%d offen offset:%d sc1' % (v(P + 4 * T, 4), RWS, RWS + 3,
                     77 + Tc, 2048 * u + 512 * T))
        return o
    a('s_cmp_ge_u32 s%d, 5', sCG)
    a('s_cbranch_scc1 L_noscale')
    tailweave(ms, group(0, 0, True) + group(0, 1, True))
    a('s_mov_b32 s81, s80')
    for i in range(32, 64, 2):
        a('v_pk_mul_f32 %s, %s, s[80:81]', v(i, 2), v(i, 2))
    a('s_branch L_qk2')
    a.label('L_noscale')
    tailweave(ms, group(0, 0, False) + group(0, 1, False))
    a.label('L_qk2')
    for o in group(1, 0, False) + group(1, 1, False):
        a(o)
    stamp('A', 'qloop')
    a('s_branch L_qdone')
    a.label('L_qV')
    a('s_cmp_eq_u32 s%d, 15', sCG)
    a('s_cbranch_scc0 L_qV2')
    a('s_lshl_b32 s76, s%d, 4', sRB)
    a('v_mov_b32 v16, s76')
    a('v_mov_b32 v17, 1')
    a('s_waitcnt vmcnt(0)')
    a('s_barrier')
    a('s_cmp_eq_u32 s%d, 0', sW)
    a('s_cbranch_scc0 L_nosig')
    a('s_mov_b64 exec, 1')
    a('global_store_dword v16, v17, s[%d:%d] sc1', sDBG, sDBG + 1)
    a('s_mov_b64 exec, -1')
    a.label('L_nosig')
    if OPT['mallpre']:
        a('v_lshlrev_b32 v1, 7, v%d', vLANE)
        a('v_min_u32 v2, %d, v1', 39 * 128)
        a('s_lshl2_add_u32 s76, s%d, s%d', sRB, sW)
        a('s_mul_i32 s76, s76, 40960')
        a('s_lshl1_add_u32 s77, s%d, s%d', sRB, sCW)
        a('s_mul_i32 s77, s77, 25600')
        for k in range(OPT['mallpre']):
            a('buffer_load_dword v111, v2, s[%d:%d], s77 offen', R6, R6 + 3)
            a('buffer_load_dword v111, v1, s[%d:%d], s76 offen', R5, R5 + 3)
            a('s_add_u32 s77, s77, 5120')
            a('s_add_u32 s76, s76, 8192')
    if OPT['wopack']:
        a_pack_wo()
    for _ in range(10):
        a('s_barrier')
    if DIAG:
        nstamp['A'].pop()
    stamp('A', 'qloop')
    a('s_branch L_qdone')
    a.label('L_qV2')
    a('s_lshl1_add_u32 s76, s%d, s%d', sCG, sCW)
    a('v_and_b32 v1, 31, v%d', vLANE)
    tau(108, 1, 2)
    a('v_lshrrev_b32 v2, 5, v%d', vLANE)
    a('v_mul_u32_u24 v2, %d, v2', VROW)
    a('v_lshl_add_u32 v108, v108, 4, v2')
    a('s_sub_u32 s76, s76, 20')
    a('s_lshl_b32 s76, s76, 10')
    a('s_add_u32 s76, s76, s74')
    a('s_add_u32 s76, s76, %d', VOFF)
    for k in range(1, 4):
        a('s_add_u32 s%d, s76, %d', 76 + k, 2 * VROW * k)
    ms = a_qloop(True)
    work = []
    n = 0
    for T in range(2):
        for Tc in range(2):
            for m in range(2):
                P = 120 + 4 * n
                n += 1
                acc = (2 * T + Tc) * 16 + 8 * m
                work += ['v_cvt_pk_bf16_f32 v%d, v%d, v%d' % (P + q, acc + 2 * q, acc + 2 * q + 1) for q in range(4)]
                work.append('buffer_store_dwordx4 %s, v108, s[%d:%d], s%d offen offset:%d sc1' % (v(P, 4), RWS, RWS + 3, 76 + 2 * T + m, 512 * Tc))
    tailweave(ms, work)
    if DIAG:
        nstamp['A'].pop()
    stamp('A', 'qloop')
    a.label('L_qdone')

vO, vS = 0, 64
KV = [128, 156]
K1A, K1B, K2, VA0, VA1, VB0, VB1 = 0, 4, 8, 12, 16, 20, 24
vQ1, vQ2 = 184, 200
vK1, vK2, vV, vIDX, vNC, vM = 208, 209, 210, 214, 216, 220
vT = 224
vMG = 240
sQH, sKH, sODD, sP5, sOFF, sKV0, sPASS, sCNT = 76, 77, 78, 79, 80, 93, 82, 83
sKVB, sKVE = 70, 71

def a_att_setup():
    a('s_and_b32 s%d, s%d, 1', sQH, sW)
    a('s_lshr_b32 s%d, s%d, 1', sKH, sW)
    a('s_and_b32 s%d, s%d, 1', sODD, sHD)
    a('s_lshr_b32 s85, s%d, 1', sHD)
    a('s_mul_i32 s%d, s85, 5', sP5)
    a('s_mul_i32 s%d, s%d, %d', sKVB, sKH, 16 * BLK)
    a('s_add_u32 s%d, s%d, %d', sKVE, sKVB, 16 * BLK)
    a('s_mul_i32 s86, s%d, %d', sQB, 2 * BLK * OPT['rot'])
    a('s_add_u32 s%d, s%d, s86', sKV0, sKVB)
    srd(R3, sWS, 32 * BLK)
    srd(R4, sOUT, 2048 * 1280 * 4)
    a('s_mov_b32 s%d, 0', sPASS)
    i, h, t, x = vT, vT + 1, vT + 2, vT + 3
    a('v_and_b32 v%d, 31, v%d', i, vLANE)
    a('v_lshrrev_b32 v%d, 5, v%d', h, vLANE)
    tau(t, i, x)
    a('s_mul_i32 s86, s%d, 3', sODD)
    a('s_add_u32 s86, s86, s%d', sP5)
    a('s_lshl_b32 s87, s86, 10')
    a('v_lshl_add_u32 v%d, v%d, 10, s87', x, h)
    a('v_lshl_add_u32 v%d, v%d, 4, v%d', vT + 4, i, x)
    a('v_lshl_add_u32 v%d, v%d, 4, v%d', vK1, t, x)
    a('v_add_u32 v%d, %d, v%d', vK1, 80 * 1024, vK1)
    a('s_add_u32 s87, s%d, 2', sP5)
    a('s_lshl1_add_u32 s87, s87, s%d', sODD)
    a('s_lshl_b32 s87, s87, 9')
    a('v_lshl_add_u32 v%d, v%d, 4, s87', vT + 5, i)
    a('v_mov_b32 v%d, 0x%x', x, OOB)
    a('v_cndmask_b32 v%d, v%d, v%d, s[%d:%d]', vT + 5, vT + 5, x, sHI, sHI + 1)
    a('s_add_u32 s87, s87, %d', 80 * 1024)
    a('v_mov_b32 v%d, s87', vK2)
    a('v_mov_b32 v%d, %d', x, 160 * 1024)
    a('v_cndmask_b32 v%d, v%d, v%d, s[%d:%d]', vK2, vK2, x, sHI, sHI + 1)
    a('v_lshl_add_u32 v%d, v%d, 4, v%d', vK2, t, vK2)
    a('s_mul_i32 s86, s%d, 20', sHD)
    a('s_lshl2_add_u32 s87, s%d, s86', sODD)
    a('s_lshl_b32 s88, s%d, 4', sODD)
    a('s_sub_u32 s88, s86, s88')
    a('v_add_u32 v%d, s87, v%d', vV, t)
    a('v_add_u32 v%d, s88, v%d', x, i)
    a('v_cmp_le_u32 vcc, 16, v%d', i)
    a('v_add_u32 v%d, 620, v%d', vT + 6, i)
    a('s_nop 0')
    a('v_cndmask_b32 v%d, v%d, v%d, vcc', vV, vV, x)
    a('v_cmp_le_u32 vcc, 20, v%d', i)
    a('v_mul_u32_u24 v%d, %d, v%d', x, VROW, h)
    a('v_add_u32 v%d, %d, v%d', x, VOFF, x)
    a('v_cndmask_b32 v%d, v%d, v%d, vcc', vV, vV, vT + 6)
    a('v_lshl_add_u32 v%d, v%d, 4, v%d', vV, vV, x)
    a('v_cmp_le_u32 vcc, %d, v%d', 21 if OPT['vzero'] else 24, i)
    a('v_mov_b32 v%d, 0x%x', x, OOB)
    a('v_mov_b32 v%d, 0xdddd', vIDX)
    a('v_cndmask_b32 v%d, v%d, v%d, vcc', vV, vV, x)
    for k in range(1, 4):
        a('v_add_u32 v%d, %d, v%d', vV + k, 2 * VROW * k, vV)
    a('s_mul_i32 s87, s85, 40')
    a('s_lshl4_add_u32 s87, s%d, s87', sODD)
    a('s_add_u32 s88, s87, 23')
    a('s_lshr_b32 s87, s87, 7')
    a('s_lshr_b32 s88, s88, 7')
    a('s_add_u32 s89, s86, 19')
    a('s_lshr_b32 s86, s86, 7')
    a('s_lshr_b32 s89, s89, 7')
    a('v_lshrrev_b32 v%d, 4, v%d', x, vLANE)
    a('s_add_u32 s90, s87, 5')
    a('v_mov_b32 v%d, s90', vF1A)
    for sel, (reg, add) in enumerate(((88, 5), (86, 10), (89, 10))):
        a('s_add_u32 s90, s%d, %d', reg, add)
        a('v_cmp_eq_u32 vcc, %d, v%d', sel + 1, x)
        a('v_mov_b32 v%d, s90', vT + 6)
        a('s_nop 0')
        a('v_cndmask_b32 v%d, v%d, v%d, vcc', vF1A, vF1A, vT + 6)
    a('v_and_b32 v%d, 15, v%d', vT + 6, vLANE)
    a('v_lshl_add_u32 v%d, v%d, 4, v%d', vF1A, vF1A, vT + 6)
    a('v_lshlrev_b32 v%d, 7, v%d', vF1A, vF1A)
    a('v_mov_b32 v%d, s87', vF1A - 1)
    a('v_mov_b32 v%d, s88', vT + 6)
    a('v_cndmask_b32 v%d, v%d, v%d, s[%d:%d]', vF1A - 1, vF1A - 1, vT + 6, sHI, sHI + 1)
    a('v_bfe_u32 v%d, v%d, 4, 1', vT + 6, vLANE)
    a('v_lshl_add_u32 v%d, v%d, 4, v%d', vF1A - 1, vF1A - 1, vT + 6)
    a('s_lshl_b32 s90, s%d, 1', sQB)
    a('v_add_lshl_u32 v%d, v%d, s90, 7', vF1A - 1, vF1A - 1)
    a('v_and_b32 v%d, 3, v%d', vAPW, vLANE)
    a('v_lshlrev_b32 v%d, 8, v%d', vAPW, vAPW)
    a('v_lshlrev_b32 v%d, 2, v%d', vAPW + 1, vLANE)
    a('v_add_u32 v%d, %d, v%d', vAPW + 1, L_PW, vAPW + 1)
    a('v_add_u32 v%d, v%d, v%d', vAPW, vAPW, vAPW + 1)
    a('s_lshl1_add_u32 s90, s%d, s%d', sQB, sQH)
    a('s_lshl1_add_u32 s90, s90, s%d', sKH)
    a('s_mul_i32 s91, s90, %d', BLK)
    a('s_xor_b32 s92, s90, 1')
    a('s_mul_i32 s92, s92, %d', BLK)
    a('s_mul_i32 s36, s%d, %d', sW, REGSZ)
    a('s_add_u32 s36, s36, %d', L_REG + 8192)
    a('s_xor_b32 s37, s%d, 2', sW)
    a('s_mul_i32 s37, s37, %d', REGSZ)
    a('s_add_u32 s37, s37, %d', L_REG + 8192)
    a('v_lshl_add_u32 v%d, v%d, 4, s36', vMG, vLANE)
    a('v_lshl_add_u32 v%d, v%d, 3, s36', vMG + 1, vLANE)
    a('v_lshl_add_u32 v%d, v%d, 4, s37', vMG + 2, vLANE)
    a('v_lshl_add_u32 v%d, v%d, 3, s37', vMG + 3, vLANE)
    a('v_xor_b32 v%d, 512, v%d', vMG + 4, vPW)
    a('v_add_u32 v%d, 1024, v%d', vMG + 5, vAPW)
    a('v_bfe_u32 v%d, v%d, 4, 1', x, vLANE)
    a('v_mul_u32_u24 v%d, %d, v%d', x, OBLK, x)
    a('v_and_b32 v%d, 15, v%d', t, vLANE)
    a('v_lshl_add_u32 v%d, v%d, 4, v%d', x, t, x)
    a('v_mul_u32_u24 v%d, %d, v%d', t, 2 * OBLK, h)
    a('v_add_u32 v%d, v%d, v%d', vMG + 7, t, x)
    a('v_lshl_add_u32 v%d, v%d, 8, v%d', vMG + 6, h, x)
    a('s_mul_i32 s40, s90, %d', 4 * OBLK)
    a('s_add_u32 s40, s40, 0x%x', WS_O)
    a('s_lshl_b32 s41, s%d, 8', sP5)
    a('s_add_u32 s40, s40, s41')
    a('s_mul_i32 s41, s%d, 768', sODD)
    a('s_add_u32 s41, s41, s40')
    a('s_add_u32 s42, s41, %d', 2 * OBLK)
    a('s_lshl3_add_u32 s40, s%d, s40', sODD)
    a('s_lshl_b32 s43, s90, 5')
    a('s_add_u32 s43, s43, s%d', sHD)
    flagaddr(43, 43, F4, 0)
    a('s_mov_b64 s[14:15], s[%d:%d]', sWO, sWO + 1)
    b1_sources(R5, R6, 112, 116, 7, 5, 12, 3 if OPT['nodup'] else 2)
    a('s_lshl2_add_u32 s4, s%d, s%d', sRB, sW)
    a('s_mul_i32 s4, s4, %d', 32 * 1280)
    a('s_lshl_b32 s6, s%d, 12', sW)
    stagger(8, 9, OPT['st10'], OPT['flip'])

def a_handoff():
    first = 10 + OPT['st10']
    nst = 8
    for t in range(10, first):
        a('s_barrier')
        if t == 10:
            for i_ in range(64):
                a('v_mov_b32 v%d, 0', vO + i_)
    a_b1stage(first)
    a_b1stage(first + 1)
    lds_ = ['buffer_load_dword v%d, v%d, s[%d:%d], s85 offen sc1' % (104 + k, vF1A - k, RWS, RWS + 3) for k in range(2)]
    a('s_mov_b32 s85, 0x%x', F1)
    for t in range(first, 20):
        a('s_waitcnt vmcnt(%d)', 7 - OPT['nodup'] if t < 19 else 0)
        if t == first:
            stamp('A', 'qdrain')
        if t == 19:
            a('s_cmp_eq_u32 s%d, 0', sW)
            a('s_cbranch_scc0 L_c19')
            a('v_and_b32 v104, v104, v105')
            a('v_cmp_eq_u32 vcc, 0, v104')
            a('s_cbranch_vccnz L_c19')
            setpw(4, 102)
            a('s_waitcnt lgkmcnt(0)')
            a.label('L_c19')
        a('s_barrier')
        if t + 2 <= 19:
            a_b1stage(t + 2)
        if t == OPT['pollat']:
            a('s_cmp_eq_u32 s%d, 0', sW)
            a('s_cbranch_scc0 L_nopoll')
            for l in lds_:
                a(l)
            a.label('L_nopoll')
    stamp('A', 'b1load')
    a('s_cmp_eq_u32 s%d, 0', sW)
    a('s_cbranch_scc0 L_f1wait')
    a('s_cbranch_vccz L_f1go')
    a('s_mov_b64 exec, vcc')
    pollflags(lds_, 104, sleep=OPT['psleep'])
    setpw(4, 102)
    a.label('L_f1wait')
    waitpw(vAPW + 1, 4, 102, sleep=1)
    a.label('L_f1go')
    stamp('A', 'f1')

def kvload0(st, what, soff):
    if what in (K1A, K1B):
        r = KV[st] + what
        return 'buffer_load_dwordx4 %s, v%d, s[%d:%d], s%d offen offset:%d sc1' % (v(r, 4), vK1, R3, R3 + 3, soff, 512 if what == K1B else 0)
    if what in ('2A', '2B'):
        tl = what == '2B'
        return 'buffer_load_dwordx2 %s, v%d, s[%d:%d], s%d offen offset:%d sc1' % (v(KV[st] + K2 + 2 * tl, 2), vK2, R3, R3 + 3, soff, 8 * tl)
    r = KV[st] + what
    if what == K2:
        return 'buffer_load_dwordx4 %s, v%d, s[%d:%d], s%d offen sc1' % (v(r, 4), vK2, R3, R3 + 3, soff)
    return 'buffer_load_dwordx4 %s, v%d, s[%d:%d], s%d offen sc1' % (v(r, 4), vV + (what - VA0) // 4, R3, R3 + 3, soff)

def kvload(st, what, soff):
    return kvload0(st, what, soff).replace(' sc1', [' sc1', '', ' sc1 nt'][OPT['kvplain']])

def qk1(st, tile, qt, sb):
    return 'v_mfma_f32_32x32x16_bf16 %s, %s, %s, 0' % (v(vS + 16 * sb, 16), v(KV[st] + (K1B if tile else K1A), 4), v(vQ1 + 4 * qt, 4))

def qk2(st, tile, qt, sb):
    return 'v_mfma_f32_32x32x8bf16_1k %s, %s, %s, %s' % (v(vS + 16 * sb, 16), v(KV[st] + K2 + 2 * tile, 2), v(vQ2 + 2 * qt, 2), v(vS + 16 * sb, 16))

def pv(st, tile, qt, m):
    return 'v_smfmac_f32_32x32x32_bf16 %s, %s, %s, v%d' % (v(vO + 16 * qt, 16), v(KV[st] + VA0 + 8 * tile + 4 * m, 4), v(vS + 16 * qt + 8 * m, 8), vIDX)

def maxtree(dst, src, acc):
    if acc:
        a('v_max3_f32 v%d, v%d, v%d, v%d', dst, dst, src, src + 1)
    else:
        a('v_max_f32 v%d, v%d, v%d', dst, src, src + 1)
    for k in range(2, 16, 2):
        a('v_max3_f32 v%d, v%d, v%d, v%d', dst, dst, src + k, src + k + 1)

def a_attention():
    if OPT['acq'] == 2:
        a('buffer_inv sc1')
    for lp in range(2):
        for T in range(2):
            a('buffer_load_dwordx4 %s, v%d, s[%d:%d], s%d offen offset:%d sc1', v(vQ1 + 8 * lp + 4 * T, 4), vT + 4, RWS, RWS + 3, 91 + lp, 512 * T)
    for lp in range(2):
        a('buffer_load_dwordx4 %s, v%d, s[%d:%d], s%d offen sc1', v(vQ2 + 4 * lp, 4), vT + 5, RWS, RWS + 3, 91 + lp)
    a.label('L_attload')
    a('s_mov_b32 s%d, 0x40000000', sCNT)
    a('s_add_u32 s%d, s%d, %d', sOFF, sKV0, BLK)
    for w_ in (K1A, K2):
        a(kvload0(0, w_, sKV0))
    for i in range(4):
        a('v_mov_b32 v%d, 0', KV[1] + VB1 + i)
    if OPT['kvsplit']:
        a('s_waitcnt vmcnt(%d)', OPT['kvsplit'] - 1)
    for w_ in (VA0, VA1, K1B, VB0, VB1):
        a(kvload0(0, w_, sKV0))
    for w_ in (K1A, VA0, VA1, K1B, K2, VB0):
        a(kvload0(1, w_, sOFF))
    if OPT['acq'] == 1:
        a('buffer_inv sc1')
    a('s_waitcnt vmcnt(%d)', 11 + (OPT['acq'] == 1))
    stamp('A', 'qkload')
    a('s_cmp_eq_u32 s%d, 0', sPASS)
    a('s_cbranch_scc0 L_setc')
    a.c('stand-in for the row maximum: the maximum over the first key tile (checked after the loop)')
    def tree(qt):
        src = vS + 16 * qt
        return ['v_max_f32 v%d, v%d, v%d' % (vM + qt, src, src + 1)] + \
               ['v_max3_f32 v%d, v%d, v%d, v%d' % (vM + qt, vM + qt, src + k, src + k + 1) for k in range(2, 16, 2)]
    for qt in range(3):
        a(qk1(0, 0, qt, qt))
        a(qk2(0, 0, qt, qt))
    a(qk1(0, 0, 3, 3))
    a('s_nop 6')
    for o in tree(0)[:4]:
        a(o)
    a(qk2(0, 0, 3, 3))
    for o in tree(0)[4:] + tree(1) + tree(2) + tree(3):
        a(o)
    a.label('L_setc')
    for qt in range(4):
        a('v_mov_b32 v%d, v%d', vT + 8 + qt, vM + qt)
    for qt in range(4):
        a('v_permlane32_swap_b32 v%d, v%d', vM + qt, vT + 8 + qt)
    for qt in range(4):
        a('v_min_f32 v%d, -v%d, -v%d', vM + qt, vM + qt, vT + 8 + qt)
    for qt in range(4):
        a('v_cvt_pk_bf16_f32 v%d, v%d, v%d', vT + 8 + qt, vM + qt, vM + qt)
    for qt in range(4):
        a('v_and_b32 v%d, 0xffff0000, v%d', vT + 8 + qt, vT + 8 + qt)
    for qt in range(4):
        a('v_sub_f32 v%d, v%d, v%d', vM + qt, vM + qt, vT + 8 + qt)
    for qt in range(4):
        a('v_cvt_pk_bf16_f32 v%d, v%d, v%d', vM + qt, vT + 8 + qt, vM + qt)
    for qt in range(4):
        a('v_cndmask_b32 v%d, v%d, v%d, s[%d:%d]', vQ2 + 2 * qt, vQ2 + 2 * qt, vM + qt, sHI, sHI + 1)
    a(qk1(0, 0, 0, 0))
    a(qk2(0, 0, 0, 0))
    for qt in range(4):
        a('v_and_b32 v%d, 0xffff0000, v%d', vM + qt, vM + qt)
    for qt in range(4):
        a('v_add_f32 v%d, v%d, v%d', vNC + qt, vM + qt, vT + 8 + qt)
    for i in range(8):
        a('v_mov_b32 v%d, 0', vS + 48 + 8 + i)
    a('s_waitcnt vmcnt(%d)', 8 + (OPT['acq'] == 1))
    if OPT['tearly'] or OPT['gtouch'] == 1:
        setpw(5, vT + 8)
    stamp('A', 'attpro')
    if OPT['fine'] == 3:
        base = len(nstamp['A'])
        nstamp['A'] += ['it%d' % i for i in range(16)]
        a('s_mov_b32 s24, %d', base)
    a('.p2align %d', OPT['lalign'])
    for _ in range(OPT['lpad']):
        a('s_nop 0')
    a.label('L_attloop')
    for st in range(2):
        for n in range(8):
            tile, qt = n >> 2, n & 3
            nst, ntile, nqt = (st, (n + 1) >> 2, (n + 1) & 3) if n < 7 else (st ^ 1, 0, 0)
            pst, ptile, pqt = (st, (n - 1) >> 2, (n - 1) & 3) if n > 0 else (st ^ 1, 1, 3)
            def ex(k):
                for e in range(4 * k, 4 * k + 4):
                    a('v_exp_f32 v%d, v%d', vS + 16 * qt + e, vS + 16 * qt + e)
            if n == 7:
                a('s_waitcnt vmcnt(7)')
            a(qk1(nst, ntile, nqt, nqt))
            if n == 1:
                a('s_add_u32 s%d, s%d, %d', sOFF, sOFF, BLK)
            if n == 2:
                a(kvload(st, K1A, sOFF))
            if n == 6:
                a(kvload(st, K1B, sOFF))
            if n == 5 and OPT['fine'] == 3:
                a('s_memtime s[98:99]')
                a('s_memrealtime s[100:101]')
            if n == 6 and OPT['fine'] == 3:
                a('s_waitcnt lgkmcnt(0)')
                a('s_mov_b32 m0, s24')
                a('s_add_u32 s25, s24, 32')
                a('v_writelane_b32 v%d, s98, m0', vTS)
                a('s_mov_b32 m0, s25')
                a('s_add_u32 s24, s24, 1')
                a('v_writelane_b32 v%d, s100, m0', vTS)
            ex(0)
            a(qk2(nst, ntile, nqt, nqt))
            if n == 6:
                a(kvload(st, K2, sOFF))
            if n == 1 and st == 0:
                a('s_cmp_eq_u32 s%d, s%d', sOFF, sKVE)
                a('s_cselect_b32 s%d, s%d, s%d', sOFF, sKVB, sOFF)
            ex(1)
            a(pv(pst, ptile, pqt, 1))
            if n == 0:
                a(kvload(st ^ 1, VB1, sOFF))
            if n == 4:
                a(kvload(st, VA1, sOFF))
            if n == 1 and st == 0:
                a('s_cmp_eq_u32 s%d, s%d', sOFF, sKV0)
                a('s_cselect_b32 s%d, s%d, s%d', sOFF, sCNT, sOFF)
            if st == 1 and n == 7:
                a('s_cmp_lt_u32 s%d, s%d', sOFF, sCNT)
            ex(2)
            if n == 4:
                a('s_waitcnt vmcnt(10)')
            a(pv(st, tile, qt, 0))
            if n == 3:
                a(kvload(st, VA0, sOFF))
            if n == 7:
                a(kvload(st, VB0, sOFF))
            ex(3)
    a('s_cbranch_scc1 L_attloop')
    a('s_nop 0')
    a(pv(1, 1, 3, 1))
    stamp('A', 'attloop')
    if OPT['tprio']:
        a('s_setprio 2')
    a('ds_read_b32 v%d, v%d', vT + 12, vMG + 5)
    a('s_mov_b32 s36, 0x%x', f2u(2.0 ** -4))
    a('s_mov_b32 s37, 0x%x', f2u(2.0 ** 96))
    a('s_cmp_eq_u32 s%d, 0', sPASS)
    a('s_cbranch_scc0 L_attok')
    a('v_min3_f32 v%d, v%d, v%d, v%d', vT + 8, vO + 8, vO + 24, vO + 40)
    a('v_add_f32 v%d, v%d, v%d', vT + 9, vO + 8, vO + 24)
    a('v_add_f32 v%d, v%d, v%d', vT + 9, vT + 9, vO + 40)
    a('s_nop 3')
    a('v_min_f32 v%d, v%d, v%d', vT + 8, vT + 8, vO + 56)
    a('v_add_f32 v%d, v%d, v%d', vT + 9, vT + 9, vO + 56)
    a('v_cmp_nle_f32 s[38:39], s36, v%d', vT + 8)
    a('v_cmp_nge_f32 vcc, s37, v%d', vT + 9)
    a('s_or_b32 s39, s39, vcc_hi')
    if OPT['force_fb']:
        a('s_cmp_eq_u32 s%d, 0', sPASS)
    a('s_cbranch_scc0 L_attok')
    a.c('fallback: exact row maximum over this wave\'s keys, then redo the pass')
    a('s_mov_b32 s%d, 1', sPASS)
    a('s_waitcnt vmcnt(0) lgkmcnt(0)')
    a('v_mov_b32 v%d, 0', vT + 8)
    for qt in range(4):
        a('v_cndmask_b32 v%d, v%d, v%d, s[%d:%d]', vQ2 + 2 * qt, vQ2 + 2 * qt, vT + 8, sHI, sHI + 1)
        a('v_mov_b32 v%d, 0xff800000', vM + qt)
    a('s_mov_b32 s%d, s%d', sOFF, sKVB)
    a('s_mov_b32 s%d, 16', sCNT)
    a.label('L_maxloop')
    for w_ in (K1A, K1B, K2):
        a(kvload(0, w_, sOFF))
    a('s_waitcnt vmcnt(0)')
    for tile in range(2):
        for qt in range(4):
            a(qk1(0, tile, qt, qt))
            a(qk2(0, tile, qt, qt))
        a('s_nop 5')
        for qt in range(4):
            maxtree(vM + qt, vS + 16 * qt, True)
    a('s_add_u32 s%d, s%d, %d', sOFF, sOFF, BLK)
    a('s_sub_u32 s%d, s%d, 1', sCNT, sCNT)
    a('s_cmp_lg_u32 s%d, 0', sCNT)
    a('s_cbranch_scc1 L_maxloop')
    for i in range(64):
        a('v_mov_b32 v%d, 0', vO + i)
    a('s_branch L_attload')
    a.label('L_attok')
    a('s_waitcnt lgkmcnt(0)')
    a('v_cmp_gt_u32 vcc, 14, v%d', vT + 12)
    a('s_cbranch_vccz L_sready')
    waitpw(vMG + 5, 14, vT + 8)
    a.label('L_sready')
    a('ds_write_b64 v%d, %s offset:6144', vMG + 1, v(vNC + 2, 2))
    for t in range(2):
        for q in range(3):
            a('ds_write_b128 v%d, %s offset:%d', vMG, v(vO + 32 + 16 * t + 4 * q, 4), 1024 * (3 * t + q))
    setpw(6, vT + 8)
    waitpw(vMG + 4, 6, vT + 8)
    R = vS
    NC2 = vS + 32
    a('ds_read_b64 %s, v%d offset:6144', v(NC2, 2), vMG + 3)
    for t in range(2):
        a('ds_read_b128 %s, v%d offset:%d', v(R + 16 * t + 8, 4), vMG + 2, 1024 * (3 * t + 2))
    for t in range(2):
        for q in range(2):
            a('ds_read_b128 %s, v%d offset:%d', v(R + 16 * t + 4 * q, 4), vMG + 2, 1024 * (3 * t + q))
    setpw(7, vT + 9)
    f1, f2, l1, l2 = vS + 34, vS + 36, vS + 38, vS + 40
    a('s_waitcnt lgkmcnt(7)')
    for t in range(2):
        a('v_min_f32 v%d, v%d, v%d', l1 + t, vNC + t, NC2 + t)
    for t in range(2):
        a('v_sub_f32 v%d, v%d, v%d', f1 + t, l1 + t, vNC + t)
        a('v_sub_f32 v%d, v%d, v%d', f2 + t, l1 + t, NC2 + t)
    for t in range(2):
        a('v_exp_f32 v%d, v%d', f1 + t, f1 + t)
        a('v_exp_f32 v%d, v%d', f2 + t, f2 + t)
    a('s_waitcnt lgkmcnt(5)')
    for t in range(2):
        a('v_mul_f32 v%d, v%d, v%d', l1 + t, f1 + t, vO + 16 * t + 8)
    for t in range(2):
        a('v_fmac_f32 v%d, v%d, v%d', l1 + t, f2 + t, R + 16 * t + 8)
    for t in range(2):
        a('v_mov_b32 v%d, v%d', l2 + t, l1 + t)
    a('s_nop 0')
    for t in range(2):
        a('v_permlane32_swap_b32 v%d, v%d', l1 + t, l2 + t)
    for t in range(2):
        a('v_rcp_f32 v%d, v%d', l2 + t, l2 + t)
    a('s_waitcnt vmcnt(0) lgkmcnt(0)')
    for t in range(2):
        a('v_mul_f32 v%d, v%d, v%d', f1 + t, f1 + t, l2 + t)
        a('v_mul_f32 v%d, v%d, v%d', f2 + t, f2 + t, l2 + t)
    P = vO + 32
    for t in range(2):
        if OPT['pkmerge']:
            sel = 'op_sel:[%d,0] op_sel_hi:[%d,1]' % (t, t)
            sel3 = 'op_sel:[%d,0,0] op_sel_hi:[%d,1,1]' % (t, t)
            for r in range(0, 12, 2):
                a('v_pk_mul_f32 %s, %s, %s %s', v(vO + 16 * t + r, 2), v(f1, 2), v(vO + 16 * t + r, 2), sel)
            for r in range(0, 12, 2):
                a('v_pk_fma_f32 %s, %s, %s, %s %s', v(vO + 16 * t + r, 2), v(f2, 2), v(R + 16 * t + r, 2), v(vO + 16 * t + r, 2), sel3)
        else:
            for r in range(12):
                a('v_mul_f32 v%d, v%d, v%d', vO + 16 * t + r, f1 + t, vO + 16 * t + r)
            for r in range(12):
                a('v_fmac_f32 v%d, v%d, v%d', vO + 16 * t + r, f2 + t, R + 16 * t + r)
        for q in range(6):
            a('v_cvt_pk_bf16_f32 v%d, v%d, v%d', P + 8 * t + q, vO + 16 * t + 2 * q, vO + 16 * t + 2 * q + 1)
        a('buffer_store_dwordx4 %s, v%d, s[%d:%d], s%d offen sc1', v(P + 8 * t, 4), vMG + 6, RWS, RWS + 3, 41 + t)
    a('s_nop 0')
    a('v_permlane32_swap_b32 v%d, v%d', P + 4, P + 12)
    a('v_permlane32_swap_b32 v%d, v%d', P + 5, P + 13)
    a('buffer_store_dwordx2 %s, v%d, s[%d:%d], s40 offen offset:512 sc1', v(P + 4, 2), vMG + 7, RWS, RWS + 3)
    if OPT['tprio'] == 2:
        a('s_setprio 0')
    if OPT['pgate']:
        setpw(8, vT + 8)
        a('ds_read_b32 v%d, v%d', 99, vAPW)
    stamp('A', 'merge')

def p3_static(vA0, vA1, vOA, acc):
    EP = OPT['epoll']
    if not EP:
        a('s_waitcnt vmcnt(0)')
        stamp('A', 'odrain')
        setflag(43, 1)
    NB = 7
    def reads(ks):
        f = 100 + 20 * (ks % NB)
        base, off = (vA0, ks * 5120) if ks < 10 else (vA1, (ks - 10) * 5120)
        return ['ds_read_b64_tr_b16 %s, v%d offset:%d' % (v(f + 4 * j + 2 * rd, 2), base, off + 1280 * rd + 32 * j)
                for j in range(5) for rd in range(2)]
    pl = 'buffer_load_dword v252, v%d, s[%d:%d], s88 offen sc1' % (vOA + 1, RWS, RWS + 3)
    def oload(ks):
        a('buffer_load_dwordx4 %s, v%d, s[%d:%d], s85 offen offset:%d sc1', v(4 * ks, 4), vOA, RWS, RWS + 3, 1024 * (ks & 3))
        if ks & 3 == 3 and ks < 19:
            a('s_add_u32 s85, s85, 4096')
    LEAD = OPT['olead']
    touch_ = 'buffer_load_dword v251, v248, s[%d:%d], s85 offen sc1' % (RWS, RWS + 3)
    NP = OPT['npre'] if EP else 0
    rest = [r for ks in range(NP, NB) for r in reads(ks)]
    if EP:
        for ks in range(NP):
            for r in reads(ks):
                a(r)
        if OPT['pgate']:
            a('s_waitcnt lgkmcnt(0)')
            a('v_cmp_gt_u32 vcc, 8, v99')
            a('s_cbranch_vccz L_epoll')
            a('s_waitcnt vmcnt(0)')
            stamp('A', 'odrain')
            if DIAG:
                nstamp['A'].pop()
            setflag(43, 2)
            a('s_mov_b32 vcc_lo, -1')
            a('s_mov_b32 vcc_hi, 0')
            a('s_branch L_f4late')
            a.label('L_epoll')
        a('s_mov_b32 exec_hi, 0')
        a(pl)
        a('s_waitcnt vmcnt(1)')
        stamp('A', 'odrain')
        setflag(43, 2)
        a('s_mov_b32 exec_hi, 0')
        a('s_waitcnt vmcnt(1)')
        a('v_cmp_eq_u32 vcc, 0, v252')
        a('s_mov_b64 exec, -1')
        a('s_cbranch_vccnz L_f4late')
        stamp('A', 'f4')
        if DIAG:
            nstamp['A'].pop()
        a(touch_)
        k = 0
        for ks in range(LEAD):
            oload(ks)
            while k < len(rest) * (ks + 1) // LEAD:
                a(rest[k])
                k += 1
        a('s_branch L_p3go')
        a.label('L_f4late')
    for r in rest:
        a(r)
    if OPT['pgate']:
        a('s_mov_b64 s[38:39], vcc')
        waitpw(vAPW, 8, 99, sleep=1)
        a('s_mov_b64 vcc, s[38:39]')
    if EP:
        a('s_mov_b64 exec, vcc')
    else:
        a('s_mov_b32 exec_hi, 0')
    pollflags([pl], 252, sleep=OPT['psleep4'])
    stamp('A', 'f4')
    a(touch_)
    for ks in range(LEAD):
        oload(ks)
    a.label('L_p3go')
    a('s_waitcnt lgkmcnt(0)')
    nl = LEAD
    a('v_mov_b32 v248, 9')
    lq = []
    if nl == 20:
        a('ds_write_b32 v%d, v248', vPW)
    pend = []
    for ks in range(20):
        w_ = 's_waitcnt vmcnt(%d)' % (nl - 1 - ks)
        if ks in lq:
            idx = max(i for i, x in enumerate(lq) if x == ks)
            w_ += ' lgkmcnt(%d)' % min(15, len(lq) - 1 - idx)
        a(w_)
        if OPT['fine'] in (1, 2) and ks in (0, 10, 19):
            stamp('A', 'p3k%d' % ks)
        rr = reads(ks + NB) if ks + NB < 20 else []
        for j in range(5):
            a('v_mfma_f32_16x16x32_bf16 %s, %s, %s, %s', v(acc + 4 * j, 4), v(4 * ks, 4), v(100 + 20 * (ks % NB) + 4 * j, 4),
              '0' if ks == 0 else v(acc + 4 * j, 4))
            for tg, r in pend:
                a(r)
                lq.append(tg)
            pend = [(ks + NB, r) for r in rr[2 * j:2 * j + 2]]
            if j in (0, 3) and nl < 20 and (j == 0 or ks % 2 == 0):
                oload(nl)
                nl += 1
                if nl == 20:
                    a('ds_write_b32 v%d, v248', vPW)
                    lq.append('w')

def p3_groups(vA0, vOA, acc):
    WF, vAN = 100, 241
    sP, sG, sM, sKEY, sC = 4, 5, 6, 7, 8
    pl = 'buffer_load_dword v252, v%d, s[%d:%d], s88 offen sc1' % (vOA + 1, RWS, RWS + 3)
    for g in range(4):
        a('s_sub_u32 s%d, %d, s%d', sC + g, g, sOG)
        a('s_and_b32 s%d, s%d, 3', sC + g, sC + g)
        a('s_lshl2_add_u32 s%d, s%d, %d', sC + g, sC + g, g)
    a('v_mov_b32 v248, 9')
    a('s_waitcnt lgkmcnt(0)')
    a('v_cmp_gt_u32 vcc, 8, v99')
    a('s_cbranch_vccz L_epoll')
    a('s_waitcnt vmcnt(0)')
    stamp('A', 'odrain')
    if DIAG:
        nstamp['A'].pop()
    setflag(43, 2)
    waitpw(vAPW, 8, 99, sleep=1)
    a('s_mov_b32 exec_hi, 0')
    a(pl)
    a('s_waitcnt vmcnt(0)')
    a('s_branch L_polled')
    a.label('L_epoll')
    a('s_mov_b32 exec_hi, 0')
    a(pl)
    a('s_waitcnt vmcnt(1)')
    stamp('A', 'odrain')
    setflag(43, 2)
    a('s_mov_b32 exec_hi, 0')
    a('s_waitcnt vmcnt(1)')
    a.label('L_polled')
    a('v_cmp_eq_u32 vcc, 0, v252')
    a('s_mov_b64 exec, -1')
    a('s_mov_b32 s%d, vcc_lo', sP)
    def reads(k):
        return ['ds_read_b64_tr_b16 %s, v%d offset:%d' % (v(WF + 20 * k + 4 * j + 2 * rd, 2), vAN, 5120 * k + 1280 * rd + 32 * j)
                for j in range(5) for rd in range(2)]
    def issue(sl):
        for k in range(5):
            a('buffer_load_dwordx4 %s, v%d, s[%d:%d], s%d offen offset:%d sc1', v(20 * sl + 4 * k, 4), vOA, RWS, RWS + 3,
              12 if k < 4 else 13, 1024 * (k & 3))
        if sl == 3:
            a('ds_write_b32 v%d, v248', vPW)
    for sl in range(-1, 4):
        nx = sl + 1
        Lw, Lc, Ld = a.newlabel('gw'), a.newlabel('gc'), a.newlabel('gd')
        if nx < 4:
            for g in range(4):
                a('s_bfe_u32 s14, s%d, 0x%x', sP, (8 << 16) | (8 * g))
                a('s_bcnt1_i32_b32 s14, s14')
                if g == 0:
                    a('s_lshl4_add_u32 s%d, s14, s%d', sKEY, sC)
                else:
                    a('s_lshl4_add_u32 s14, s14, s%d', sC + g)
                    a('s_min_u32 s%d, s%d, s14', sKEY, sKEY)
            a('s_and_b32 s%d, s%d, 3', sG, sKEY)
            a('s_mul_i32 s12, s%d, 5120', sG)
            a('s_add_u32 s12, s12, s85')
            a('s_add_u32 s13, s12, 4096')
            a('s_cmp_lt_u32 s%d, 16', sKEY)
            a('s_cbranch_scc0 %s', Lw)
            issue(nx)
            if sl >= 0:
                a('s_waitcnt vmcnt(5)')
            a('s_branch %s', Lc)
            a.label(Lw)
            a('s_mov_b32 exec_lo, s%d', sP)
            a('s_mov_b32 exec_hi, 0')
            a(pl)
            a('s_mov_b64 exec, -1')
            if sl >= 0:
                a('s_waitcnt vmcnt(1)')
            a.label(Lc)
            a('s_mul_i32 s14, s%d, 25600', sG)
            a('v_add_u32 v%d, s14, v%d', vAN, vA0)
            if nx < 3:
                for g in range(4):
                    a('s_cmp_eq_u32 s%d, %d', sG, g)
                    a('s_cselect_b32 s%d, 0x1000, s%d', sC + g, sC + g)
        if sl < 0:
            for k in range(5):
                for r in reads(k):
                    a(r)
        else:
            pend = []
            for k in range(5):
                if nx == 4:
                    a('s_waitcnt vmcnt(%d) lgkmcnt(%d)', 4 - k, 0 if k >= 3 else 15)
                else:
                    a('s_waitcnt lgkmcnt(15)')
                rr = reads(k) if nx < 4 else []
                for j in range(5):
                    a('v_mfma_f32_16x16x32_bf16 %s, %s, %s, %s', v(acc + 4 * j, 4), v(20 * sl + 4 * k, 4), v(WF + 20 * k + 4 * j, 4),
                      '0' if (sl == 0 and k == 0) else v(acc + 4 * j, 4))
                    for r in pend:
                        a(r)
                    pend = rr[2 * j:2 * j + 2]
            for r in pend:
                a(r)
        if nx < 4:
            a('s_cmp_lt_u32 s%d, 16', sKEY)
            a('s_cbranch_scc1 %s', Ld)
            L1, L2 = a.newlabel('gp'), a.newlabel('gq')
            a('s_lshl_b32 s14, s%d, 3', sG)
            a('s_lshl_b32 s%d, 0xff, s14', sM)
            a('s_mov_b32 exec_lo, s%d', sP)
            a('s_mov_b32 exec_hi, 0')
            a.label(L1)
            a('s_waitcnt vmcnt(0)')
            a('v_cmp_eq_u32 vcc, 0, v252')
            a('s_and_b32 s14, vcc_lo, s%d', sM)
            a('s_cbranch_scc0 %s', L2)
            a('s_mov_b64 exec, vcc')
            if OPT['psleep4']:
                a('s_sleep %d', OPT['psleep4'])
            a(pl)
            a('s_sub_u32 s%d, s%d, 1', sSPIN, sSPIN)
            a('s_cbranch_scc0 %s', L1)
            a('s_endpgm')
            a.label(L2)
            a('s_mov_b32 s%d, vcc_lo', sP)
            a('s_mov_b64 exec, -1')
            issue(nx)
            a.label(Ld)
            if nx == 3:
                stamp('A', 'f4')

def a_outproj():
    vA0, vA1, vOA, vST = 240, 241, 242, 244
    a('v_lshrrev_b32 v1, 5, v%d', vLANE)
    a('v_bfe_u32 v2, v%d, 2, 3', vLANE)
    a('v_lshl_add_u32 v1, v1, 4, v2')
    a('v_mul_u32_u24 v1, 160, v1')
    a('v_and_b32 v2, 3, v%d', vLANE)
    a('v_lshl_add_u32 v%d, v2, 3, v1', vA0)
    a('v_add_u32 v%d, %d, v%d', vA1, 10 * 5120, vA0)
    a('v_lshlrev_b32 v%d, 4, v%d', vOA, vLANE)
    a('v_lshrrev_b32 v1, 4, v%d', vLANE)
    a('v_mul_u32_u24 v1, %d, v1', 4 * 5120)
    a('v_and_b32 v2, 15, v%d', vLANE)
    a('v_lshl_add_u32 v%d, v2, 2, v1', vST)
    for r in range(1, 4):
        a('v_add_u32 v%d, %d, v%d', vST + r, 5120 * r, vST)
    a('s_mul_i32 s84, s%d, 2560', sOG)
    a('v_min_u32 v248, 19, v%d', vLANE)
    a('v_lshl_add_u32 v248, v248, 7, s84')
    a('s_lshl2_add_u32 s84, s%d, s%d', sTB, sW)
    a('s_mul_i32 s85, s84, %d', OBLK)
    a('s_add_u32 s85, s85, 0x%x', WS_O)
    a('s_mul_i32 s86, s84, %d', 16 * 5120)
    a('s_mul_i32 s88, s%d, 320', sOG)
    a('s_add_u32 s86, s86, s88')
    a('v_lshlrev_b32 v%d, 7, v%d', vOA + 1, vLANE)
    a('s_lshl_b32 s88, s%d, 12', sTB)
    a('s_add_u32 s88, s88, 0x%x', F4)
    acc = 80
    if OPT['p3dyn']:
        p3_groups(vA0, vOA, acc)
    else:
        p3_static(vA0, vA1, vOA, acc)
    a('s_nop 3')
    for j in range(5):
        for r in range(4):
            a('buffer_store_dword v%d, v%d, s[%d:%d], s86 offen offset:%d%s', acc + 4 * j + r, vST + r, R4, R4 + 3, 64 * j, OSC)
    finish('A')

vXR, vBR, vA0PW = 96, 100, 107
vL, vE, vHW, vHR0, vHR1, vHS, vCH, vCHL, vHH, vP01, vTCH, vHINT = 146, 150, 151, 152, 153, 154, 155, 156, 157, 158, 159, 160
vDX, vDW, vDBX, vDBB = 161, 165, 169, 173
vZ, vWOA, vPAR = 176, 186, 200
vCA, vCR, vHA, vF3, vXO, vDO, vC16, vAM, vOA, vRA = 224, 226, 228, 229, 230, 231, 232, 233, 234, 235
vR1W, vR1R, vR2W, vPW1, vPW2, vS2PW, vHT, vCT = 237, 238, 239, 240, 241, 242, 243, 244
vSPW = 252
L_Z, L_H = L_HT + 1024, 124928
SENT = 0xffffffff

def s_stage(t, emit=None):
    out = []
    slot = (t % 4) * 32768
    if OPT['stag'] >= 5 and t < 10:
        base, size = {0: (0, 4), 1: (4, 4), 2: (8, 2)}[t // 4] if OPT['stag'] != 7 else ((0, 2) if t < 2 else ((2, 4) if t < 6 else (6, 4)))
        out += ['s_add_u32 s82, s81, %d' % t, 's_and_b32 s82, s82, %d' % (size - 1), 's_add_u32 s82, s82, %d' % base,
                's_add_u32 s82, s82, s85', 's_cmp_ge_u32 s82, 10', 's_cselect_b32 s83, 10, 0', 's_sub_u32 s82, s82, s83']
    out.append('s_add_u32 m0, s74, %d' % slot)
    out.append('s_lshl_b32 s83, s82, 7')
    out.append('s_add_u32 s76, s72, s83')
    if t < 10:
        out += [dma(vDX + i, R0, 76, 1024 * i) for i in range(4)]
        out.append('s_add_u32 m0, s74, %d' % (slot + 16384))
        out.append('s_mul_i32 s83, s82, 245760')
        out.append('s_add_u32 s76, s73, s83')
        out += [dma(vDW + i, R1, 76, 1024 * i) for i in range(4)]
    else:
        out += [dma(vDBX + i, R3, 76, 1024 * i) for i in range(4)]
        out.append('s_add_u32 m0, s75, %d' % (slot + 16384))
        out.append('s_add_u32 s76, s77, s83')
        out += [dma(vDBB + i, R4, 76, 1024 * i) for i in range(3)]
    out.append('s_add_u32 s82, s82, 1')
    out.append('s_cmp_eq_u32 s82, 10')
    out.append('s_cselect_b32 s82, 0, s82')
    if emit is None:
        L = a.newlabel('skip')
        if t < 10:
            a('s_cmp_eq_u32 s%d, 15', sCG)
            a('s_cbranch_scc1 %s', L)
        for o in out:
            a(o)
        if t < 10:
            a.label(L)
    return out

def ninstr(t):
    return 0 if t > 19 else (8 if t < 10 else 7)

def exp_acc(dst, x, t1, t2):
    L2E = math.log2(math.e)
    hi = struct.unpack('<f', struct.pack('<f', L2E))[0]
    a('s_mov_b32 s80, 0x%x', f2u(hi))
    a('v_mul_f32 v%d, s80, v%d', t1, x)
    a('v_fma_f32 v%d, v%d, s80, -v%d', t2, x, t1)
    a('v_fmac_f32 v%d, 0x%x, v%d', t2, f2u(L2E - hi), x)
    a('v_exp_f32 v%d, v%d', dst, t1)
    a('v_mul_f32 v%d, 0x%x, v%d', t2, f2u(math.log(2.0)), t2)
    a('v_fmac_f32 v%d, v%d, v%d', dst, dst, t2)

def s_setup():
    a.label('L_roleS')
    a('s_sub_u32 s%d, s%d, 4', sW, sW)
    a('v_lshrrev_b32 v1, 3, v%d', vLANE)
    a('v_and_b32 v2, 7, v%d', vLANE)
    a('v_lshrrev_b32 v3, 4, v%d', vLANE)
    a('v_xor_b32 v4, v2, v3')
    a('v_mul_u32_u24 v5, 1280, v1')
    a('v_lshl_add_u32 v%d, v4, 4, v5', vDX)
    a('v_xor_b32 v6, 64, v%d', vDX)
    a('v_add_u32 v%d, %d, v6', vDX + 1, 10240 - 1024)
    a('v_add_u32 v%d, %d, v%d', vDX + 2, 2 * (10240 - 1024), vDX)
    a('v_add_u32 v%d, %d, v6', vDX + 3, 3 * (10240 - 1024))
    a('v_and_b32 v7, 15, v%d', vLANE)
    a('v_lshlrev_b32 v8, 2, v3')
    a('v_xor_b32 v7, v7, v8')
    a('v_mul_u32_u24 v8, 3840, v3')
    a('v_lshl_add_u32 v%d, v7, 4, v8', vDW)
    for i in range(1, 4):
        a('v_add_u32 v%d, %d, v%d', vDW + i, (15360 - 1024) * i, vDW)
    a('s_lshl2_add_u32 s72, s%d, s%d', sRB, sW)
    a('s_mul_i32 s72, s72, %d', 32 * 1280)
    a('s_mul_i32 s73, s%d, %d', sW, 16 * 3840)
    a('s_lshl_b32 s70, s%d, 8', sCG)
    a('s_add_u32 s73, s73, s70')
    a('s_lshl_b32 s74, s%d, 12', sW)
    if OPT['stag'] == 4:
        stagger(82, 83, 0)
    elif OPT['stag'] == 0:
        a('s_mov_b32 s82, 0')
    elif OPT['stag'] in (2, 3):
        a('s_add_u32 s82, s%d, s%d', sI, sOG)
        a('s_and_b32 s82, s82, %d', 1 if OPT['stag'] == 2 else 3)
        a('s_mul_i32 s82, s82, 5')
        if OPT['stag'] == 3:
            a('s_lshr_b32 s82, s82, 1')
        a('s_add_u32 s83, s%d, 1', sXCD)
        a('s_lshr_b32 s83, s83, 1')
        a('s_add_u32 s82, s82, s83')
        a('s_cmp_ge_u32 s82, 10')
        a('s_cselect_b32 s83, 10, 0')
        a('s_sub_u32 s82, s82, s83')
    else:
        a('s_add_u32 s81, s%d, s%d', sI, sOG)
        a('s_add_u32 s85, s%d, 1', sXCD)
        a('s_lshr_b32 s85, s85, 1')
        a('s_mul_i32 s85, s85, %d', 2 if OPT['stag'] == 5 else 0)
    a('s_waitcnt lgkmcnt(0)')
    srd(R0, sAX, 2048 * 1280)
    srd(R1, sWQ, 640 * 3840)
    if DIAG:
        ws_setup()
    stamp('S', 'start')
    s_stage(0)
    if not DIAG:
        ws_setup()
    if OPT['fine'] == 1:
        stamp('S', 'iss0')
    a('s_mul_i32 s70, s%d, 40', sCG)
    a('v_min_u32 v9, 39, v%d', vLANE)
    a('v_add_lshl_u32 v9, v9, s70, 1')
    a('global_load_ushort v10, v9, s[%d:%d]', sLDT, sLDT + 1)
    a('global_load_ushort v11, v9, s[%d:%d]', sLRE, sLRE + 1)
    a('global_load_ushort v12, v9, s[%d:%d]', sLIM, sLIM + 1)
    b1_sources(R3, R4, vDBX, vDBB, 75, 77, 70)
    a('v_and_b32 v5, 3, v%d', vLANE)
    a('v_lshlrev_b32 v5, 8, v5')
    a('v_lshl_add_u32 v5, v%d, 2, v5', vLANE)
    a('v_add_u32 v%d, %d, v5', vSPW, L_PW + 1024)
    s_addresses()
    s_stage(1)
    if OPT['fine'] == 1:
        stamp('S', 'iss1')
    a('s_waitcnt vmcnt(11)')
    stamp('S', 'st0')
    a('s_barrier')
    s_stage(2)
    a('s_waitcnt vmcnt(8)')
    a('s_barrier')
    s_stage(3)
    s_stage(4)

def s_addresses():
    c, g, t0, t1, t2 = 40, 41, 42, 43, 44
    a('v_and_b32 v%d, 15, v%d', c, vLANE)
    a('v_lshrrev_b32 v%d, 4, v%d', g, vLANE)
    a('v_lshrrev_b32 v%d, 1, v%d', t0, c)
    a('v_xor_b32 v%d, v%d, v%d', t0, t0, g)
    a('v_lshlrev_b32 v%d, 4, v%d', t0, t0)
    a('v_lshl_add_u32 v%d, v%d, 7, v%d', t0, c, t0)
    a('v_xor_b32 v%d, 64, v%d', t1, t0)
    a('v_add_u32 v%d, s74, v%d', vXR, t0)
    a('v_add_u32 v%d, s74, v%d', vXR + 1, t1)
    a('s_mul_i32 s70, s%d, %d', sW, REGSZ)
    a('s_add_u32 s70, s70, %d', L_REG)
    a('v_add_u32 v%d, s70, v%d', vCR, t0)
    a('v_add_u32 v%d, s70, v%d', vCR + 1, t1)
    a('v_lshrrev_b32 v%d, 3, v%d', t2, c)
    a('v_lshl_add_u32 v%d, v%d, 12, v%d', t0, t2, t0)
    a('v_add_u32 v%d, 16384, v%d', vBR, t0)
    a('v_xor_b32 v%d, 64, v%d', vBR + 1, vBR)
    for k in range(2):
        a('v_add_u32 v%d, 0x10000, v%d', vXR + 2 + k, vXR + k)
        a('v_add_u32 v%d, 0x10000, v%d', vBR + 2 + k, vBR + k)
    a('v_and_b32 v%d, 7, v%d', t0, vLANE)
    a('v_lshlrev_b32 v%d, 2, v%d', t2, t2)
    a('v_lshl_add_u32 v%d, v%d, 3, v%d', t0, t0, t2)
    a('v_add_u32 v%d, %d, v%d', vHH, L_H, t0)
    a('v_mul_u32_u24 v%d, 320, v%d', t1, g)
    a('s_mul_i32 s71, s%d, 1280', sW)
    a('s_add_u32 s71, s71, %d', L_EL)
    a('v_add3_u32 v%d, v%d, v%d, s71', vE, t0, t1)
    a('v_lshlrev_b32 v%d, 3, v%d', vCH, vLANE)
    a('v_add_u32 v%d, %d, v%d', vCHL, L_H, vCH)
    a('v_lshlrev_b32 v%d, 9, v%d', vHINT, vLANE)
    a('v_lshlrev_b32 v%d, 2, v%d', vA0PW, vLANE)
    a('v_add_u32 v%d, %d, v%d', vA0PW, L_PW, vA0PW)
    a('v_add_u32 v%d, %d, v%d', vS2PW, 1024 + 512, vA0PW)
    a('v_and_b32 v%d, 0x%x, v%d', vP01, 0xffffffff ^ 512, vSPW)
    a('v_xor_b32 v%d, 256, v%d', vPW1, vPW)
    a('v_xor_b32 v%d, 512, v%d', vPW2, vPW)
    a('v_and_b32 v%d, 1, v%d', t0, vLANE)
    a('v_lshlrev_b32 v%d, 9, v%d', t0, t0)
    a('v_xor_b32 v%d, v%d, v%d', t0, t0, vPW)
    a('v_subrev_u32 v%d, 1024, v%d', vAM, t0)
    a('v_mov_b32 v%d, 16', vC16)
    a('v_bfe_u32 v%d, v%d, 1, 2', t0, vLANE)
    a('v_xor_b32 v%d, v%d, v%d', t0, t0, g)
    a('v_lshlrev_b32 v%d, 4, v%d', t0, t0)
    a('s_mul_i32 s71, s%d, 5120', sW)
    a('s_add_u32 s71, s71, %d', L_HT)
    a('v_lshl_add_u32 v%d, v%d, 6, v%d', t0, c, t0)
    a('v_add_u32 v%d, s71, v%d', vHW, t0)
    a('v_bfe_u32 v%d, v%d, 2, 2', t0, vLANE)
    a('v_lshrrev_b32 v%d, 5, v%d', t1, vLANE)
    a('v_lshl_add_u32 v%d, v%d, 3, v%d', vHR0, t1, t0)
    a('v_lshlrev_b32 v%d, 6, v%d', vHR0, vHR0)
    a('v_mul_u32_u24 v%d, %d, v%d', vHS, 80 * 256, t1)
    a('v_lshrrev_b32 v%d, 1, v%d', t0, t0)
    a('v_bfe_u32 v%d, v%d, 4, 1', t1, vLANE)
    a('v_bfe_u32 v%d, v%d, 1, 1', t2, vLANE)
    a('v_lshl_add_u32 v%d, v%d, 1, v%d', t2, t1, t2)
    a('v_xor_b32 v%d, v%d, v%d', t2, t2, t0)
    a('v_lshl_add_u32 v%d, v%d, 4, v%d', vHR0, t2, vHR0)
    a('v_and_b32 v%d, 1, v%d', t2, vLANE)
    a('v_lshl_add_u32 v%d, v%d, 3, v%d', vHR0, t2, vHR0)
    a('v_xor_b32 v%d, 32, v%d', vHR1, vHR0)
    a('v_add_u32 v%d, s71, v%d', vHR0, vHR0)
    a('v_add_u32 v%d, s71, v%d', vHR1, vHR1)
    a('v_mul_u32_u24 v%d, %d, v%d', t1, HBLK, t1)
    a('v_lshl_add_u32 v%d, v%d, 4, v%d', t1, c, t1)
    a('v_add_u32 v%d, v%d, v%d', vHS, vHS, t1)
    a('v_mov_b32 v%d, v%d', vCA, vDX)
    a('v_mov_b32 v%d, v%d', vCA + 1, vDX + 1)
    a('v_lshlrev_b32 v%d, 4, v%d', vHA, vLANE)
    a('v_lshlrev_b32 v%d, 7, v%d', vF3, vLANE)
    a('v_min_u32 v%d, %d, v%d', vHT, 39 * 128, vF3)
    a('v_min_u32 v%d, %d, v%d', vTCH, 24 * 128, vF3)
    a('s_lshl2_add_u32 s71, s%d, s%d', sI, sW)
    a('s_mul_i32 s71, s71, 6400')
    a('v_add_u32 v%d, s71, v%d', vTCH, vTCH)
    a('v_min_u32 v%d, %d, v%d', vCT, 49 * 128, vF3)
    a('v_cmp_le_u32 vcc, 25, v%d', vLANE)
    a('v_add_u32 v%d, 3200, v%d', t0, vCT)
    a('s_and_b32 s71, s%d, 1', sW)
    a('v_cndmask_b32 v%d, v%d, v%d, vcc', vCT, vCT, t0)
    a('s_lshl1_add_u32 s71, s%d, s71', sI)
    a('s_mul_i32 s71, s71, 12800')
    a('v_add_u32 v%d, s71, v%d', vCT, vCT)
    a('s_xor_b32 s92, s%d, 1', sW)
    a('s_mul_i32 s92, s92, %d', REGSZ)
    a('s_add_u32 s92, s92, %d', L_REG)
    a('s_xor_b32 s93, s%d, 3', sW)
    a('s_mul_i32 s93, s93, %d', REGSZ)
    a('s_add_u32 s93, s93, %d', L_REG + 16 * 336)
    a('v_add_u32 v%d, s70, v%d', vR1W, vHA)
    a('v_add_u32 v%d, s92, v%d', vR1R, vHA)
    a('v_mul_u32_u24 v%d, 336, v%d', t0, c)
    a('v_and_b32 v%d, 48, v%d', t1, vLANE)
    a('v_add3_u32 v%d, v%d, v%d, s92', vR2W, t0, t1)
    a('v_lshrrev_b32 v%d, 2, v%d', t0, vLANE)
    a('v_and_b32 v%d, 3, v%d', t1, vLANE)
    a('v_lshlrev_b32 v%d, 3, v%d', vDO, t1)
    a('v_mul_u32_u24 v%d, 1280, v%d', t2, t0)
    a('v_add_u32 v%d, v%d, v%d', vXO, t2, vDO)
    a('v_lshlrev_b32 v%d, 4, v%d', t1, t1)
    a('v_lshl_add_u32 v%d, v%d, 2, v%d', vOA, t2, t1)
    a('v_mul_u32_u24 v%d, 336, v%d', t2, t0)
    a('v_add3_u32 v%d, v%d, v%d, s92', vRA, t2, t1)
    a('v_add3_u32 v%d, v%d, v%d, s93', vRA + 1, t2, t1)
    if not OPT['wopack']:
        s_wooffs()

def s_params():
    a('s_cmp_eq_u32 s%d, 0', sW)
    a('s_cbranch_scc0 L_nopar')
    for r in (10, 11, 12):
        a('v_lshlrev_b32 v%d, 16, v%d', r, r)
    exp_acc(13, 10, 14, 15)
    a('v_cvt_pk_bf16_f32 v13, v13, v13')
    a('v_and_b32 v13, 0xffff0000, v13')
    a('v_mul_f32 v14, v13, v11')
    a('v_mul_f32 v15, v13, v12')
    exp_acc(16, 14, 17, 18)
    I2P = 1.0 / (2 * math.pi)
    hi = struct.unpack('<f', struct.pack('<f', I2P))[0]
    a('s_mov_b32 s80, 0x%x', f2u(hi))
    a('v_mul_f32 v17, s80, v15')
    a('v_rndne_f32 v17, v17')
    a('v_fma_f32 v17, v15, s80, -v17')
    a('v_fmac_f32 v17, 0x%x, v15', f2u(I2P - hi))
    a('v_cos_f32 v20, v17')
    a('v_sin_f32 v21, v17')
    a('v_mul_f32 v18, v11, v11')
    a('v_fmac_f32 v18, v12, v12')
    a('v_rcp_f32 v19, v18')
    a('v_mul_f32 v20, v16, v20')
    a('v_mul_f32 v21, v16, v21')
    a('v_fma_f32 v18, -v18, v19, 1.0')
    a('v_fmac_f32 v19, v19, v18')
    a('v_add_f32 v19, v19, v19')
    a('v_add_f32 v17, -1.0, v20')
    a('v_mul_f32 v22, v17, v11')
    a('v_fmac_f32 v22, v21, v12')
    a('v_mul_f32 v23, v17, v12')
    a('v_fma_f32 v23, -v21, v11, v23')
    a('v_mul_f32 v22, v22, v19')
    a('v_mul_f32 v23, v23, v19')
    a('v_lshlrev_b32 v9, 4, v%d', vLANE)
    a('v_add_u32 v9, %d, v9', L_PAR)
    a('ds_write_b128 v9, v[20:23]')
    a('v_mov_b32 v24, v20')
    a('v_sub_f32 v25, 0, v21')
    for k in range(3):
        a('v_mul_f32 v26, v25, v25')
        a('v_add_f32 v27, v24, v24')
        a('v_fma_f32 v24, v24, v24, -v26')
        a('v_mul_f32 v25, v27, v25')
    a.label('L_nopar')

def s_params2():
    a('s_cmp_eq_u32 s%d, 0', sW)
    a('s_cbranch_scc0 L_nopar2')
    a('s_mov_b32 exec_hi, 0xff')
    a('v_mov_b32 v14, 1.0')
    a('v_mov_b32 v15, 0')
    a('ds_write_b64 v%d, v[14:15] offset:%d', vCHL, L_Z - L_H)
    a('ds_write_b64 v%d, v[24:25] offset:%d', vCHL, L_Z - L_H + 320)
    src = 24
    for sg in range(2, 17):
        dst = 16 + 2 * (sg % 3)
        a('v_mul_f32 v%d, v24, v%d', dst, src)
        a('v_mul_f32 v%d, v24, v%d', dst + 1, src + 1)
        a('v_fma_f32 v%d, -v25, v%d, v%d', dst, src + 1, dst)
        a('v_fmac_f32 v%d, v25, v%d', dst + 1, src)
        a('ds_write_b64 v%d, %s offset:%d', vCHL, v(dst, 2), L_Z - L_H + 320 * sg)
        src = dst
    a('s_mov_b32 exec_hi, -1')
    a('s_waitcnt lgkmcnt(0)')
    a.label('L_nopar2')

def s_wooffs():
    for i in range(5):
        a('v_add_u32 v40, %d, v%d', 64 * i, vLANE)
        a('v_mul_u32_u24 v41, 6554, v40')
        a('v_lshrrev_b32 v41, 16, v41')
        a('v_mul_u32_u24 v42, 10, v41')
        a('v_sub_u32 v40, v40, v42')
        tau(42, 41, 43)
        a('v_mul_u32_u24 v42, 1280, v42')
        a('v_lshl_add_u32 v%d, v40, 4, v42', vWOA + i)
        if 0 < i < 4:
            a('v_subrev_u32 v%d, %d, v%d', vWOA + i, 1024 * i, vWOA + i)

def s_qloader():
    early = {1: {7: 10}, 2: {7: 10, 9: 11}, 3: {7: 10, 8: 11, 9: 12}, 0: {}}[OPT['st10']]
    q = [2] * 8 + [3] * 8 + [4] * 8
    for st in range(2, 10):
        a('s_waitcnt vmcnt(%d)', len(q) - 1 - max(i for i, x in enumerate(q) if x == st))
        if OPT['fine'] == 1 and st in (3, 5, 7, 9):
            stamp('S', 'st%d' % st)
        a('s_barrier')
        if st == 6:
            a('v_and_b32 v32, 15, v%d', vLANE)
            a('v_lshlrev_b32 v32, 4, v32')
            a('v_mov_b32 v33, 1')
            a('s_cmp_eq_u32 s%d, 3', sW)
            a('s_cbranch_scc0 L_nodbg')
            a(dbgload(32, 33))
            a.label('L_nodbg')
            a('s_cmp_eq_u32 s%d, 15', sCG)
            a('s_cbranch_scc0 L_cw')
            a('s_waitcnt vmcnt(0)')
            a.label('L_cw')
        if st <= 6:
            s_stage(st + 3)
            q += [st + 3] * 8
        if st == OPT['pretouch']:
            a('s_cmp_eq_u32 s%d, 2', sW)
            a('s_cselect_b32 s70, s%d, s%d', sBRE, sBIM)
            a('s_cselect_b32 s71, s%d, s%d', sBRE + 1, sBIM + 1)
            a('s_mul_i32 s83, s2, 3200')
            a('s_lshl1_add_u32 s84, s2, s%d', sW)
            a('s_mul_i32 s84, s84, 5120')
            a('s_cmp_lt_u32 s%d, 2', sW)
            a('s_cselect_b32 s70, s%d, s70', sBX)
            a('s_cselect_b32 s71, s%d, s71', sBX + 1)
            a('s_cselect_b32 s83, s84, s83')
            a('s_cselect_b32 s84, 39, 24')
            a('v_min_u32 v30, s84, v%d', vLANE)
            a('v_lshl_add_u32 v30, v30, 7, s83')
            a('global_load_dword v31, v30, s[70:71]')
            q.append('t')
        if st == 7 and OPT['flip']:
            stagger(82, 83, 0, 1)
        if st in early:
            s_stage(early[st])
            q += [early[st]] * 7
        if st == 7:
            s_params()
        if st == 8:
            s_params2()

    a('v_cmp_eq_u32 vcc, 0, v33')
    a('s_cbranch_vccz L_clrok')
    pollflags([dbgload(32, 33)], 33, sleep=8)
    a.label('L_clrok')
    a('s_barrier')
    stamp('S', 'qend')
    s_consts()

def s_consts():
    a('v_and_b32 v6, 7, v%d', vLANE)
    a('v_lshlrev_b32 v6, 4, v6')
    a('v_add_u32 v6, %d, v6', L_PAR)
    for j in range(5):
        a('ds_read_b128 %s, v6 offset:%d', v(vPAR + 4 * j, 4), 128 * j)
    a('v_and_b32 v7, -8, v%d', vE)
    a('v_subrev_u32 v7, %d, v7', L_EL - L_Z)
    for j in range(5):
        a('ds_read_b64 %s, v7 offset:%d', v(vZ + 2 * j, 2), 64 * j)
    a('s_cmp_eq_u32 s%d, 0', sW)
    a('s_cselect_b32 s70, 1, 16')
    a('s_mul_i32 s70, s70, 320')
    a('v_add_u32 v8, s70, v%d', vCHL)
    a('ds_read_b64 %s, v8 offset:%d', v(vL, 2), L_Z - L_H)
    a('v_bfe_u32 v5, v%d, 3, 1', vLANE)
    a('v_lshlrev_b32 v5, 31, v5')
    a('v_xor_b32 v4, 0x80000000, v5')
    a('s_waitcnt lgkmcnt(0)')
    for j in range(5):
        a('v_xor_b32 v%d, v5, v%d', vPAR + 4 * j + 1, vPAR + 4 * j + 1)
        a('v_xor_b32 v%d, v5, v%d', vPAR + 4 * j + 2, vPAR + 4 * j + 2)
        a('v_xor_b32 v%d, v4, v%d', vZ + 2 * j + 1, vZ + 2 * j + 1)

def touch(r, va=None):
    o = ['s_add_u32 s84, s%d, %d' % (sXCD, r),
         's_cmp_ge_u32 s84, 6', 's_cselect_b32 s85, 6, 0', 's_sub_u32 s84, s84, s85',
         's_cmp_ge_u32 s84, 6', 's_cselect_b32 s85, 6, 0', 's_sub_u32 s84, s84, s85',
         's_cmp_ge_u32 s84, 2',
         's_cselect_b32 s86, s%d, s%d' % (sCRE, sWO), 's_cselect_b32 s87, s%d, s%d' % (sCRE + 1, sWO + 1),
         's_cmp_ge_u32 s84, 4',
         's_cselect_b32 s86, s%d, s86' % sCIM, 's_cselect_b32 s87, s%d, s87' % (sCIM + 1),
         's_and_b32 s84, s84, 1', 's_mul_i32 s84, s84, 3200',
         's_add_u32 s86, s86, s84', 's_addc_u32 s87, s87, 0',
         'global_load_dword v109, v%d, s[86:87]' % (va or vTCH)]
    return o

def s_b1():
    F = [40, 68]
    def reads(t, ks, f):
        slot = t % 4
        hi, lo = slot >> 1, (slot & 1) * 32768
        r = ['ds_read_b128 %s, v%d offset:%d' % (v(f + 4 * T, 4), vXR + 2 * hi + ks, lo + 2048 * T) for T in range(2)]
        r += ['ds_read_b128 %s, v%d offset:%d' % (v(f + 8 + 4 * j, 4), vBR + 2 * hi + ks, lo + 1024 * j) for j in range(5)]
        return r
    def mfmas(f, first):
        return ['v_mfma_f32_16x16x32_bf16 %s, %s, %s, %s' % (v(8 * j + 4 * T, 4), v(f + 4 * T, 4), v(f + 8 + 4 * j, 4),
                '0' if first else v(8 * j + 4 * T, 4)) for j in range(5) for T in range(2)]
    def weave(ms, others):
        n = len(ms)
        k = 0
        for i_, m in enumerate(ms):
            a(m)
            while k < len(others) * (i_ + 1) // n:
                a(others[k])
                k += 1
    first = 10 + OPT['st10']
    a('s_lshl4_add_u32 s84, s%d, s%d', sCG, sRB)
    flagaddr(84, 84, F1, 85)
    a('s_waitcnt vmcnt(%d)', max(0, 7 * (first - 11)))
    a('s_barrier')
    for r in reads(10, 0, F[0]):
        a(r)
    for u in range(10):
        t = 10 + u
        if OPT['fine'] == 1 and u in (0, 2, 4, 6, 8):
            stamp('S', 'b1w%d' % u)
        a('s_waitcnt lgkmcnt(0)')
        m0_ = mfmas(F[0], u == 0)
        weave(m0_[:4], reads(t, 1, F[1]))
        for m in m0_[4:]:
            a(m)
        m1_ = mfmas(F[1], False)
        if u < 9:
            if t + 1 < first:
                a('s_waitcnt vmcnt(%d) lgkmcnt(0)', 7 * (first - t - 2))
            else:
                a('s_waitcnt lgkmcnt(0)')
            a('s_barrier')
            if t + 1 == first:
                a('s_cmp_eq_u32 s%d, 3', sW)
                a('s_cbranch_scc0 L_noflag')
                setflag(84, 104)
                a.label('L_noflag')
            weave(m1_[:4], reads(t + 1, 0, F[0]))
            for m in m1_[4:]:
                a(m)
        else:
            a('s_waitcnt lgkmcnt(0)')
            for m in m1_:
                a(m)
    stamp('S', 'b1gemm')

def rot5(dst, t):
    a('s_and_b32 s%d, s%d, 3', dst, sI)
    a('s_add_u32 s%d, s%d, s%d', dst, dst, sXCD)
    for _ in range(2):
        a('s_cmp_ge_u32 s%d, 5', dst)
        a('s_cselect_b32 s%d, 5, 0', t)
        a('s_sub_u32 s%d, s%d, s%d', dst, dst, t)
    if not OPT['rot5']:
        a('s_mov_b32 s%d, 0', dst)

def s_wo():
    if OPT['wopack']:
        a('s_mov_b32 s73, 0x%x', F1 + 15 * 16 * 128)
        a('s_mov_b64 exec, 0xffff')
        pollflags(['buffer_load_dword v40, v%d, s[%d:%d], s73 offen sc1' % (vF3, RWS, RWS + 3)], 40, sleep=4)
        rot5(83, 73)
        a('s_mul_i32 s75, s%d, 102400', sOG)
        a('s_add_u32 s75, s75, 0x%x', WS_WP)
        a('s_mov_b32 s77, 5')
        a.label('L_woloop')
        a('s_lshl2_add_u32 s78, s83, s%d', sW)
        a('s_mul_i32 s78, s78, 5120')
        a('s_add_u32 s79, s78, s75')
        a('s_mov_b32 m0, s78')
        for i in range(5):
            if i == 4:
                a('s_add_u32 m0, s78, 4096')
                a('s_add_u32 s79, s79, 4096')
            a('s_waitcnt vmcnt(%d)', OPT['thrw'])
            a(dma(vHA, RWS, 79, 1024 * (i & 3)).replace(' lds', ' sc1 lds'))
    else:
        srd(R0, sWO, 640 * 1280)
        rot5(83, 73)
        a('s_mul_i32 s75, s%d, 160', sOG)
        a('s_mov_b32 s77, 5')
        a.label('L_woloop')
        a('s_lshl2_add_u32 s78, s83, s%d', sW)
        a('s_mul_i32 s79, s78, 40960')
        a('s_add_u32 s79, s79, s75')
        a('s_mul_i32 s78, s78, 5120')
        a('s_mov_b32 m0, s78')
        a('s_add_u32 s73, s78, 4096')
        for i in range(5):
            if i == 4:
                a('s_mov_b32 m0, s73')
            a('s_waitcnt vmcnt(%d)', OPT['thrw'])
            a(dma(vWOA + i, R0, 79, 1024 * (i & 3)))
    a('s_add_u32 s83, s83, 1')
    a('s_cmp_eq_u32 s83, 5')
    a('s_cselect_b32 s83, 0, s83')
    a('s_sub_u32 s77, s77, 1')
    a('s_cmp_lg_u32 s77, 0')
    a('s_cbranch_scc1 L_woloop')
    for kp in range(5):
        a('s_lshl_b32 s73, s83, 7')
        a('s_add_u32 s%d, s72, s73', 4 + kp)
        a('s_lshl_b32 s%d, s83, 11', 12 + kp)
        a('s_add_u32 s83, s83, 1')
        a('s_cmp_eq_u32 s83, 5')
        a('s_cselect_b32 s83, 0, s83')

def s_scan():
    ROR = 'row_ror:8 row_mask:0xf bank_mask:0xf'
    a('s_setprio 1')
    a('s_lshl_b32 s70, s%d, 13', sCG)
    a('s_add_u32 s70, s70, 0x%x', WS_E)
    a('s_add_u32 s70, s70, s%d', sWS)
    a('s_addc_u32 s71, s%d, 0', sWS + 1)
    srd(R5, 70, 8192)
    a('s_sub_u32 s70, 15, s%d', sRB)
    a('s_lshl_b32 s70, s70, 9')
    a('s_add_u32 s71, s70, 4096')
    tmp = 40
    for j in range(5):
        for k in range(8):
            a('v_mul_f32_dpp v%d, v%d, v%d %s', tmp + k, 8 * j + k, vPAR + 4 * j + 3, ROR)
        for k in range(8):
            a('v_fma_f32 v%d, v%d, v%d, v%d', 8 * j + k, vPAR + 4 * j + 2, 8 * j + k, tmp + k)
    e = [[8 * j for j in range(5)], [50 + j for j in range(5)], [56 + j for j in range(5)]]
    cur = e[0]
    for k in range(1, 8):
        nx = e[1 + (k & 1)]
        for j in range(5):
            a('v_fma_f32 v%d, v%d, v%d, v%d', nx[j], vPAR + 4 * j, cur[j], 8 * j + k)
        for j in range(5):
            a('v_fmac_f32_dpp v%d, v%d, v%d %s', nx[j], cur[j], vPAR + 4 * j + 1, ROR)
        cur = nx
    for j in range(5):
        a('ds_write_b32 v%d, v%d offset:%d', vE, cur[j], 64 * j)
    setpw(11, 104)
    for r in range(10 - OPT['tstart'], 0 if OPT['tlate'] else 6):
        a('s_waitcnt vmcnt(0)')
        for o in touch(r):
            a(o)
    stamp('S', 'pass1')
    def chain(dst, src, add):
        a('v_fma_f32 v%d, v%d, v%d, v%d', dst, vL, src, add)
        a('v_fma_f32 v%d, v%d, v%d, v%d', dst + 1, vL, src + 1, add + 1)
        a('v_fma_f32 v%d, -v%d, v%d, v%d', dst, vL + 1, src + 1, dst)
        a('v_fmac_f32 v%d, v%d, v%d', dst + 1, vL + 1, src)
    ES = 110
    a('s_cmp_eq_u32 s%d, 1', sW)
    a('s_cbranch_scc1 L_wave1')
    a('s_cmp_eq_u32 s%d, 0', sW)
    a('s_cbranch_scc0 L_wave23')
    waitpw(vSPW, 11, 105, sleep=1)
    a('s_mov_b32 exec_hi, 0xff')
    for sg in range(16):
        a('ds_read_b64 %s, v%d offset:%d', v(ES + 2 * sg, 2), vCHL, L_EL - L_H + 320 * sg)
    a('v_mov_b32 v142, 0')
    a('v_mov_b32 v143, 0')
    a('s_waitcnt lgkmcnt(0)')
    a('ds_write_b64 v%d, v[142:143] offset:%d', vCHL, L_PL - L_H)
    for sg in range(1, 16):
        a('ds_write_b64 v%d, %s offset:%d', vCHL, v(ES + 2 * sg - 2, 2), L_PL - L_H + 320 * sg)
        chain(ES + 2 * sg, ES + 2 * sg - 2, ES + 2 * sg)
    a('v_min_u32 v%d, -2, v%d', ES + 30, ES + 30)
    a('v_min_u32 v%d, -2, v%d', ES + 31, ES + 31)
    a('buffer_store_dwordx2 %s, v%d, s[%d:%d], s70 offen sc1', v(ES + 30, 2), vCH, R5, R5 + 3)
    a('s_mov_b32 exec_hi, -1')
    setpw(12, 104)
    a('s_branch L_coldone')
    a.label('L_wave1')
    a.label('L_hint')
    a('buffer_load_dword v105, v%d, s[%d:%d], s70 offen offset:512 sc1', vHINT, R5, R5 + 3)
    a('s_waitcnt vmcnt(0)')
    a('v_cmp_eq_u32 vcc, -1, v105')
    a('s_cbranch_vccz L_hintok')
    a('s_mov_b64 exec, vcc')
    a('s_sleep 3')
    a.label('L_hint2')
    a('s_sub_u32 s%d, s%d, 1', sSPIN, sSPIN)
    a('s_cbranch_scc0 L_hint')
    a('s_endpgm')
    a.label('L_hintok')
    a('s_mov_b32 exec_lo, -1')
    a('s_mov_b32 exec_hi, 0xff')
    for k in range(15, 0, -1):
        a('buffer_load_dwordx2 %s, v%d, s[%d:%d], s%d offen offset:%d sc1', v(ES + 2 * (15 - k), 2), vCH, R5, R5 + 3,
          71 if k >= 8 else 70, 512 * (k & 7))
    a('s_waitcnt vmcnt(0)')
    a('v_max_u32 v105, v%d, v%d', ES, ES + 1)
    for n in range(1, 15):
        a('v_max3_u32 v105, v105, v%d, v%d', ES + 2 * n, ES + 2 * n + 1)
    a('v_cmp_eq_u32 vcc, -1, v105')
    a('s_cbranch_vccnz L_hint2')
    for n in range(1, 15):
        chain(ES + 2 * n, ES + 2 * n - 2, ES + 2 * n)
    a('ds_write_b64 v%d, %s', vCHL, v(ES + 28, 2))
    a('s_mov_b32 exec_hi, -1')
    setpw(12, 104)
    a('s_branch L_coldone')
    a.label('L_wave23')
    if OPT['gtouch']:
        a('s_cmp_eq_u32 s%d, 2', sW)
        a('s_cbranch_scc0 L_coldone')
        a('v_min_u32 v106, %d, v%d', 24 * 128, vF3)
        a('s_mul_i32 s78, s2, 3200')
        a('v_add_u32 v106, s78, v106')
        if OPT['gtouch'] == 1:
            waitpw(vA0PW, 5, 105, sleep=2)
        for p in (sCRE, sCIM, sWO):
            a('global_load_dword v109, v106, s[%d:%d]', p, p + 1)
    if OPT['tearly']:
        waitpw(vA0PW, 5, 105, sleep=2)
    for r in range(OPT['tearly']):
        for o in touch(r, vCT):
            a(o)
        if r + 1 < OPT['tearly']:
            a('s_waitcnt vmcnt(0)')
    a.label('L_coldone')
    a('s_lshl2_add_u32 s70, s%d, s%d', sRB, sW)
    a('s_mul_i32 s71, s70, %d', 2 * HBLK)
    a('s_mul_i32 s78, s%d, 1280', sCG)
    a('s_add_u32 s71, s71, s78')
    a('s_add_u32 s71, s71, 0x%x', WS_H)
    a('s_lshl4_add_u32 s70, s70, s%d', sCG)
    flagaddr(70, 70, F3, 78)
    waitpw(vP01, 12, 105, sleep=4)
    stamp('S', 'carry')
    for j in range(5):
        a('ds_read_b32 v%d, v%d offset:%d', 50 + j, vE, L_PL - L_EL + 64 * j)
        a('ds_read_b32 v%d, v%d offset:%d', 56 + j, vHH, 64 * j)
    a('s_waitcnt lgkmcnt(0)')
    for j in range(5):
        a('v_fmac_f32 v%d, v%d, v%d', 50 + j, vZ + 2 * j, 56 + j)
    for j in range(5):
        a('v_fmac_f32_dpp v%d, v%d, v%d %s', 50 + j, 56 + j, vZ + 2 * j + 1, ROR)
    for k in range(8):
        pr = [50 + j if k == 0 else 8 * j + k - 1 for j in range(5)]
        for j in range(5):
            a('v_fmac_f32 v%d, v%d, v%d', 8 * j + k, vPAR + 4 * j, pr[j])
        for j in range(5):
            a('v_fmac_f32_dpp v%d, v%d, v%d %s', 8 * j + k, pr[j], vPAR + 4 * j + 1, ROR)
    for j in range(5):
        for q in range(4):
            a('v_cvt_pk_bf16_f32 v%d, v%d, v%d', 64 + 4 * j + q, 8 * j + 2 * q, 8 * j + 2 * q + 1)
        a('ds_write_b128 v%d, %s offset:%d', vHW, v(64 + 4 * j, 4), 1024 * j)
        a('ds_read_b64_tr_b16 %s, v%d offset:%d', v(110 + 4 * j, 2), vHR0, 1024 * j)
        a('ds_read_b64_tr_b16 %s, v%d offset:%d', v(110 + 4 * j + 2, 2), vHR1, 1024 * j + 256)
    for j in range(5):
        a('s_waitcnt lgkmcnt(%d)', 12 - 3 * j)
        a('buffer_store_dwordx4 %s, v%d, s[%d:%d], s71 offen offset:%d sc1', v(110 + 4 * j, 4), vHS, RWS, RWS + 3, 256 * j)
    setpw(13, 104)

def s_b3():
    NS = 4
    acc, HF, CF = 0, 80, [208, 216]
    a('s_cmp_ge_u32 s%d, 2', sW)
    a('s_cselect_b32 s78, s%d, s%d', sCIM, sCRE)
    a('s_cselect_b32 s79, s%d, s%d', sCIM + 1, sCRE + 1)
    srd(R1, 78, 640 * 1280)
    srd(R6, sOUT, 2048 * 1280 * 4)
    a('s_mul_i32 s74, s%d, %d', sW, REGSZ)
    a('s_add_u32 s74, s74, %d', L_REG)
    a('s_and_b32 s78, s%d, 1', sW)
    a('s_mul_i32 s72, s%d, %d', sOG, 80 * 1280)
    a('s_mul_i32 s73, s78, 640')
    a('s_add_u32 s72, s72, s73')
    a('s_mul_i32 s79, s%d, %d', sW, 40 * 256)
    a('s_add_u32 s79, s79, 0x%x', WS_H)
    a('s_lshr_b32 s80, s%d, 1', sW)
    a('s_lshl1_add_u32 s78, s78, s80')
    for l in range(4):
        a('s_xor_b32 s80, s78, %d', l)
        a('s_lshl2_add_u32 s80, s%d, s80', sTB)
        a('s_mul_i32 s80, s80, %d', HBLK)
        a('s_add_u32 s%d, s80, s79', 84 + l)
    a('s_lshl_b32 s88, s%d, 12', sTB)
    a('s_add_u32 s88, s88, 0x%x', F3)
    a('s_lshl2_add_u32 s78, s%d, s78', sTB)
    a('s_mul_i32 s80, s78, %d', 16 * 1280)
    a('s_mul_i32 s81, s%d, 160', sOG)
    a('s_add_u32 s80, s80, s81')
    a('s_mul_i32 s82, s78, %d', 16 * 5120)
    a('s_lshl1_add_u32 s82, s81, s82')
    a('s_add_u32 s82, s82, 2560')
    a('s_add_u32 s90, s%d, s81', sDSK)
    a('s_addc_u32 s91, s%d, 0', sDSK + 1)
    a('s_lshl2_add_u32 s89, s%d, s%d', sOG, sW)
    a('s_mul_i32 s89, s89, 5120')
    a('s_mul_i32 s79, s%d, %d', sTB, 4 * HBLK)
    a('s_add_u32 s89, s89, s79')
    a('s_add_u32 s89, s89, 0x%x', WS_H)
    a('s_waitcnt vmcnt(0)')
    setflag(70, 40)
    stamp('S', 'hpub')
    if OPT['tlate']:
        for k in range(4):
            a('s_mov_b32 s%d, s%d', 4 + k, 84 + k)
        for r in range(OPT['tearly'], 6):
            for o in touch(r):
                a(o)
            a('s_waitcnt vmcnt(0)')
        for k in range(4):
            a('s_mov_b32 s%d, s%d', 84 + k, 4 + k)
    if OPT['newpre']:
        def cdma(n, pace=None):
            kp, j = divmod(n, 5)
            a('s_add_u32 m0, s74, %d', 2048 * (n % NS))
            a('s_add_u32 s76, s%d, %d', 4 + kp, 16 * 1280 * j)
            for k in range(2):
                if pace is not None:
                    a('s_waitcnt vmcnt(%d)', pace)
                a(dma(vCA + k, R1, 76, 1024 * k))
        def hload(l, ks):
            return 's_add_u32 s9, s%d, s%d\nbuffer_load_dwordx4 %s, v%d, s[%d:%d], s9 offen offset:%d sc1' % (
                84 + l, 12 + ks // 2, v(HF + 16 * (ks % 8) + 4 * l, 4), vHA, RWS, RWS + 3, 1024 * (ks & 1))
        srd(R0, sWO, 640 * 1280)
        rot5(83, 73)
        for kp in range(5):
            a('s_lshl_b32 s73, s83, 7')
            a('s_add_u32 s%d, s72, s73', 4 + kp)
            a('s_lshl_b32 s%d, s83, 11', 12 + kp)
            a('s_lshl2_add_u32 s%d, s83, s%d', 17 + kp, sW)
            a('s_add_u32 s83, s83, 1')
            a('s_cmp_eq_u32 s83, 5')
            a('s_cselect_b32 s83, 0, s83')
        a('s_mul_i32 s75, s%d, 160', sOG)
        waitpw(vSPW, 13, 41, sleep=2)
        for n in range(NS):
            cdma(n, OPT['thrw'] + 1)
        pl = 'buffer_load_dword v41, v%d, s[%d:%d], s88 offen sc1' % (vF3, RWS, RWS + 3)
        for it in range(5):
            if it == OPT['f3at']:
                a('s_mov_b32 exec_hi, 0')
                a(pl)
                a('s_mov_b32 exec_hi, -1')
            a('s_mul_i32 s79, s%d, 40960', 17 + it)
            a('s_add_u32 s79, s79, s75')
            a('s_mul_i32 s78, s%d, 5120', 17 + it)
            a('s_mov_b32 m0, s78')
            for i in range(5):
                if i == 4:
                    a('s_add_u32 m0, s78, 4096')
                a('s_waitcnt vmcnt(%d)', OPT['thrw'])
                a(dma(vWOA + i, R0, 79, 1024 * (i & 3)))
            if it == OPT['f3at']:
                a('s_mov_b32 exec_hi, 0')
                a('s_waitcnt vmcnt(5)')
                a('v_cmp_eq_u32 vcc, 0, v41')
                a('s_cbranch_vccz L_f3seen')
                a('s_mov_b64 exec, vcc')
                pollflags([pl], 41, sleep=4)
                a.label('L_f3seen')
                a('s_mov_b64 exec, -1')
                stamp('S', 'f3')
                a('buffer_load_dword v41, v%d, s[%d:%d], s89 offen sc1', vHT, RWS, RWS + 3)
        stamp('S', 'wo')
        a('v_mov_b32 v42, 14')
        for ks in range(2):
            for l in range(4):
                a('s_waitcnt vmcnt(%d)', OPT['thrw'] + 1)
                a(hload(l, ks))
        a('ds_write_b32 v%d, v42', vPW)
        a('s_setprio %d', OPT['b3prio'])
    else:
        stamp('S', 'touch')
        s_wo()
        waitpw(vSPW, 13, 40, sleep=2)
        def cdma(n):
            kp, j = divmod(n, 5)
            a('s_add_u32 m0, s74, %d', 2048 * (n % NS))
            a('s_add_u32 s76, s%d, %d', 4 + kp, 16 * 1280 * j)
            a(dma(vCA, R1, 76, 0))
            a(dma(vCA + 1, R1, 76, 1024))
        for n in range(NS):
            cdma(n)
            a('s_waitcnt vmcnt(%d)', 0 if n == NS - 1 else 4)
        setpw(14, 40)
        stamp('S', 'wo')
        a('s_cmp_eq_u32 s%d, 2', sW)
        a('s_cbranch_scc0 L_f3wait')
        a('s_mov_b32 exec_hi, 0')
        pollflags(['buffer_load_dword v40, v%d, s[%d:%d], s88 offen sc1' % (vF3, RWS, RWS + 3)], 40, sleep=4)
        setpw(15, 40)
        a.label('L_f3wait')
        waitpw(vS2PW, 15, 40, sleep=4)
        stamp('S', 'f3')
        a('s_setprio %d', OPT['b3prio'])
        def hload(l, ks):
            return 's_add_u32 s9, s%d, s%d\nbuffer_load_dwordx4 %s, v%d, s[%d:%d], s9 offen offset:%d sc1' % (
                84 + l, 12 + ks // 2, v(HF + 16 * (ks % 8) + 4 * l, 4), vHA, RWS, RWS + 3, 1024 * (ks & 1))
        a('buffer_load_dword v40, v%d, s[%d:%d], s89 offen sc1', vHT, RWS, RWS + 3)
        for ks in range(2):
            if ks:
                a('s_waitcnt vmcnt(0)')
            for l in range(4):
                a(hload(l, ks))
    def creads(n):
        return ['ds_read_b128 %s, v%d offset:%d' % (v(CF[n & 1] + 4 * k, 4), vCR + k, 2048 * (n % NS)) for k in range(2)]
    q = []
    def waitfor(tag):
        idx = max(i for i, x in enumerate(q) if x == tag)
        n = len(q) - 1 - idx
        del q[:idx + 1]
        return n
    for r in creads(0):
        a(r)
    a('s_waitcnt vmcnt(0) lgkmcnt(0)')
    stamp('S', 'b3go')
    cdma(NS)
    q += [NS, NS]
    vX, vD = HF + 32, HF + 42
    hq = [(l, ks) for ks in range(2, 10) for l in range(4)]
    STOP = OPT['b3stop']
    frag = {n: CF[n & 1] for n in range(25)}
    if STOP == 15:
        for k, n in enumerate(range(17, 21)):
            frag[n] = HF + 64 + 8 * k
    def creads(n):
        return ['ds_read_b128 %s, v%d offset:%d' % (v(frag[n] + 4 * k, 4), vCR + k, 2048 * (n % NS)) for k in range(2)]
    done = {0}
    def fetch(n):
        if n in q:
            a('s_waitcnt vmcnt(%d)', waitfor(n))
        for r in creads(n):
            a(r)
        done.add(n)
    issued = set(range(NS + 1))
    def refill(n):
        if n + NS < 25 and n + NS not in issued:
            cdma(n + NS)
            q.extend([n + NS, n + NS])
            issued.add(n + NS)
    for n in range(25):
        kp, j = divmod(n, 5)
        if n == STOP:
            last = 20 if STOP == 15 else n
            for m in range(n + 1, last + 1):
                fetch(m)
                a('s_waitcnt lgkmcnt(0)')
                refill(m)
            a('s_waitcnt vmcnt(0)')
            del q[:]
            stamp('S', 'b3stop')
            a('s_setprio 1')
            waitpw(vAM, OPT['b3res'], 245, sleep=2)
            stamp('S', 'b3res')
        nxt = n + 1
        while nxt in done:
            nxt += 1
        rd = nxt < 25 and (nxt == n + 1 or all(frag[nxt] != frag[m] for m in range(n, nxt)))
        if rd:
            fetch(nxt)
        if j == 0 and 'h%d' % kp in q:
            a('s_waitcnt vmcnt(%d)', waitfor('h%d' % kp))
        if OPT['fine'] >= 2 and n in (3, 6, 9, 12):
            stamp('S', 'u%d' % n)
        extra = []
        for _ in range(OPT['hrate']):
            if hq and (hq[0][1] < 8 or n >= 5):
                l, ks = hq.pop(0)
                extra.append(hload(l, ks))
                q.append('h%d' % (ks // 2))
        if 10 <= n < 15:
            i = n - 10
            extra += ['global_load_dwordx2 %s, v%d, s[90:91] offset:%d' % (v(vD + 2 * i, 2), vDO, 32 * i),
                      'buffer_load_dwordx2 %s, v%d, s[%d:%d], s80 offen offset:%d' % (v(vX + 2 * i, 2), vXO, R3, R3 + 3, 32 * i)]
            q += ['x', 'x']
        assert len(extra) <= 5
        cnt = 0
        for k in range(2):
            ks = 2 * kp + k
            for l in range(4):
                d = acc + 20 * l + 4 * j
                a('v_mfma_f32_16x16x32_bf16 %s, %s, %s, %s', v(d, 4), v(frag[n] + 4 * k, 4), v(HF + 16 * (ks % 8) + 4 * l, 4),
                  '0' if ks == 0 else v(d, 4))
                if cnt < len(extra):
                    a(extra[cnt])
                cnt += 1
                if cnt == 5 and rd:
                    a('s_waitcnt lgkmcnt(0)')
                    refill(nxt)
                if cnt == 5 and n == OPT['gate4']:
                    a('ds_write_b32 v%d, v%d', vPW, vC16)
    assert not hq
    stamp('S', 'b3gemm')
    T = 160
    a('s_setprio 1')
    waitpw(vAM, 7, T, sleep=2)
    for qd in range(10):
        a('ds_write_b128 v%d, %s offset:%d', vR1W, v(acc + 40 + 4 * qd, 4), 1024 * qd)
    setpw(17, T + 1)
    a('s_waitcnt vmcnt(0)')
    U = 180
    def skip(i):
        for hf in range(2):
            a('v_lshlrev_b32 v%d, 16, v%d', T + 4, vX + 2 * i + hf)
            a('v_lshlrev_b32 v%d, 16, v%d', T + 5, vD + 2 * i + hf)
            a('v_and_b32 v%d, 0xffff0000, v%d', T + 6, vX + 2 * i + hf)
            a('v_and_b32 v%d, 0xffff0000, v%d', T + 7, vD + 2 * i + hf)
            a('v_mul_f32 v%d, v%d, v%d', U + 4 * i + 2 * hf, T + 4, T + 5)
            a('v_mul_f32 v%d, v%d, v%d', U + 4 * i + 2 * hf + 1, T + 6, T + 7)
    skip(0)
    skip(1)
    waitpw(vPW1, 17, T + 1)
    for qd in (5, 6, 7, 8, 9, 0, 1, 2, 3, 4):
        a('ds_read_b128 %s, v%d offset:%d', v(acc + 40 + 4 * qd, 4), vR1R, 1024 * qd)
    skip(2)
    a('s_waitcnt lgkmcnt(0)')
    for qd in (5, 6, 7, 8, 9, 0, 1, 2, 3, 4):
        l, j = divmod(qd, 5)
        for e in range(4):
            a('v_add_f32 v%d, v%d, v%d', acc + 4 * qd + e, acc + 4 * qd + e, acc + 40 + 4 * qd + e)
        a('ds_write_b128 v%d, %s offset:%d', vR2W, v(acc + 4 * qd, 4), 16 * 336 * l + 64 * j)
        if qd == 9:
            setpw(18, T + 1)
    for i in range(5):
        a('ds_read_b128 %s, v%d offset:%d', v(acc + 40 + 8 * i, 4), vRA, 64 * i)
    skip(3)
    skip(4)
    waitpw(vPW2, 18, T + 1)
    for i in range(5):
        a('ds_read_b128 %s, v%d offset:%d', v(acc + 44 + 8 * i, 4), vRA + 1, 64 * i)
    for i in range(5):
        for e in range(4):
            a('v_add_f32 v%d, v%d, v%d', U + 4 * i + e, U + 4 * i + e, acc + 40 + 8 * i + e)
    for i in range(5):
        a('s_waitcnt lgkmcnt(%d)', 4 - i)
        for e in range(4):
            a('v_add_f32 v%d, v%d, v%d', U + 4 * i + e, U + 4 * i + e, acc + 44 + 8 * i + e)
    stamp('S', 'yrdy')
    if OPT['yhold']:
        a('v_subrev_u32 v%d, 1024, v%d', T + 2, vSPW)
        waitpw(T + 2, 9, T + 1, sleep=2)
    for i in range(5):
        a('buffer_store_dwordx4 %s, v%d, s[%d:%d], s82 offen offset:%d%s', v(U + 4 * i, 4), vOA, R6, R6 + 3, 64 * i, YSC)
    finish('S')

prologue()
s_setup()
s_qloader()
if OPT['sexit'] == 1:
    setpw(99, 40)
    finish('S')
s_b1()
if OPT['sexit'] == 2:
    setpw(99, 40)
    finish('S')
s_scan()
s_b3()
a_setup()
a_att_setup()
a_qphase()
a_handoff()
a_attention()
a_outproj()
a.label('L_codeend')

errs = check(a.lines)
for e_ in errs:
    print('HAZARD', e_, file=sys.stderr)

head = open('cdna_kernels/%s.s.ref' % NAME).read().split('; @launch')[0]
out = head + '; @launch grid=(256,1,1) block=(512,1,1) lds=%d\n' % LDS_BYTES
out += '''.amdgcn_target "amdgcn-amd-amdhsa--gfx950"
.text
.globl %s_kernel
.p2align 8
.type %s_kernel,@function
%s_kernel:
''' % (NAME, NAME, NAME)
out += a.text()
out += '''.section .rodata,"a"
.p2align 6
.amdhsa_kernel %s_kernel
  .amdhsa_next_free_vgpr 256
  .amdhsa_next_free_sgpr 102
  .amdhsa_accum_offset 256
  .amdhsa_group_segment_fixed_size 0
  .amdhsa_kernarg_size 120
  .amdhsa_user_sgpr_count 2
  .amdhsa_user_sgpr_kernarg_segment_ptr 1
  .amdhsa_system_sgpr_workgroup_id_x 1
.end_amdhsa_kernel
''' % NAME
open(sys.argv[1], 'w').write(out)
if DIAG:
    import json
    json.dump(nstamp, open(sys.argv[1] + '.stamps.json', 'w'))
import subprocess
r_ = subprocess.run(['clang', '-x', 'assembler', '-target', 'amdgcn-amd-amdhsa', '-mcpu=gfx950', '-c', sys.argv[1], '-o', 'chk.o'], capture_output=True, text=True)
if r_.returncode:
    print(r_.stderr[:2000])
    sys.exit(1)
if errs:
    sys.exit(1)
```

```python
import sys, math, struct
from asmlib import Asm, v, s, check

NAME = 'concat_heads__mha_block__ssm_conv_s5__prompt'
OPT = dict(diag=0, b3start=12, force_fb=0, psleep=2, fine=0, cpre=1, stag=5, b1dep=2, rot=1, thr=4, hold=3, codepre=2, psleep4=2, padto=0, outsc1=1, gate4=-1, early0=1, st10=2, b1prio=0, probe='', probewg=-1, sexit=0, b3prio=0, nocdma=0, mallpre=0, b3early=1, pretouch=-1, pace=0, pause=1, wolate=1, thrw=2, kvsplit=5, tstart=0, k2split=0, gate1='x', tlate=0, spread=1, pollat=17, tearly=0, b3stop=15, b3res=7, hrate=3, yhold=1, rot5=1, wopack=0, olead=20, allpoll=1, ysc=1, clrwide=0, nodup=1, onewait=0, vzero=1, lalign=6, lpad=0, epoll=1, npre=2, tprio=0, pgate=1, p3dyn=0, flip=1, newpre=1, f3at=2, gtouch=0, pkmerge=0, kvplain=0, acq=0, stagb=4)
for a_ in sys.argv[2:]:
    k_, v_ = a_.split('=')
    OPT[k_] = v_ if k_ in ('probe', 'gate1') else int(v_)
DIAG = OPT['diag']
OSC = ['', ' sc1', ' nt', ' sc1 nt'][OPT['outsc1']]
YSC = ['', ' sc1', ' nt', ' sc1 nt'][OPT['ysc']]

def f2u(x):
    return struct.unpack('<I', struct.pack('<f', x))[0]

BLK, VOFF, VROW = 247808, 164864, 10368
WS_H, HBLK = 0x800000, 40960
WS_O, OBLK = 0xD00000, 20480
WS_E = 0xF80000
WS_F = 0xFA0000
F1, F3, F4 = WS_F, WS_F + 0x8000, WS_F + 0x28000
WS_WP = 0x1000000
WS_END = WS_WP + 8 * 102400
WS_DIAG = 0x1100000
OOB = 0x7F000000
L_HT, L_EL, L_PL, L_PAR = 131072, 151552, 156672, 161024
L_PAR = 131072 + 0
L_WO = 0
L_REG, REGSZ = 102400, 14848
L_PW = 161792
LDS_BYTES = 163840
sAX, sWQ, sWO, sBX, sLRE, sLIM, sBRE, sBIM, sCRE, sCIM, sLDT, sDSK, sOUT, sDBG, sWS = range(4, 34, 2)
sW, sI, sXCD = 34, 35, 3
R0, R1, RWS, R3, R4, R5, R6 = 36, 40, 44, 48, 52, 56, 60
sRB, sCG, sHD, sQB, sTB, sOG = 64, 65, 66, 67, 68, 69
sSPIN = 96
sHI = 94
vLANE, vPW, vTS = 254, 253, 255
SPIN_MAX = 1 << 19

a = Asm()
nstamp = {}

def stamp(role, name):
    if OPT['probe'] == role + name:
        a('s_memrealtime s[98:99]')
        a('s_waitcnt lgkmcnt(0)')
        a('s_mov_b32 s97, s98')
    if not DIAG:
        return
    l = nstamp.setdefault(role, [])
    if DIAG == 2:
        l.append(name)
        if role + name == 'Aattpro':
            a('s_memrealtime s[98:99]')
            a('s_waitcnt lgkmcnt(0)')
            a('v_writelane_b32 v%d, s98, 29', vTS)
        return
    idx = len(l)
    l.append(name)
    a('s_memtime s[98:99]')
    a('s_memrealtime s[100:101]')
    a('s_waitcnt lgkmcnt(0)')
    a('v_writelane_b32 v%d, s98, %d', vTS, idx)
    a('v_writelane_b32 v%d, s100, %d', vTS, 32 + idx)

def srd(r, base, nbytes):
    a('s_mov_b32 s%d, s%d', r, base)
    a('s_mov_b32 s%d, s%d', r + 1, base + 1)
    if isinstance(nbytes, int):
        a('s_mov_b32 s%d, 0x%x', r + 2, nbytes)
    else:
        a('s_mov_b32 s%d, %s', r + 2, nbytes)
    a('s_mov_b32 s%d, 0x20000', r + 3)

def setpw(val, tmp):
    a('v_mov_b32 v%d, %d', tmp, val)
    a('ds_write_b32 v%d, v%d', vPW, tmp)

def waitpw(vaddr, val, tmp, sleep=0):
    L = a.newlabel('pw')
    D = a.newlabel('pwd')
    a.label(L)
    a('ds_read_b32 v%d, v%d', tmp, vaddr)
    a('s_waitcnt lgkmcnt(0)')
    a('v_cmp_gt_u32 vcc, %d, v%d', val, tmp)
    a('s_cbranch_vccz %s', D)
    if sleep:
        a('s_sleep %d', sleep)
    a('s_sub_u32 s%d, s%d, 1', sSPIN, sSPIN)
    a('s_cbranch_scc0 %s', L)
    a('s_endpgm')
    a.label(D)

def pollflags(loads, tmp, sleep=1):
    L = a.newlabel('pf')
    D = a.newlabel('pfd')
    a.label(L)
    for l in loads:
        a(l)
    a('s_waitcnt vmcnt(0)')
    for i in range(1, len(loads)):
        a('v_and_b32 v%d, v%d, v%d', tmp, tmp, tmp + i)
    a('v_cmp_eq_u32 vcc, 0, v%d', tmp)
    a('s_cbranch_vccz %s', D)
    a('s_mov_b64 exec, vcc')
    if sleep:
        a('s_sleep %d', sleep)
    a('s_sub_u32 s%d, s%d, 1', sSPIN, sSPIN)
    a('s_cbranch_scc0 %s', L)
    a('s_endpgm')
    a.label(D)
    a('s_mov_b64 exec, -1')

def dbgload(va, vd):
    return 'global_load_dword v%d, v%d, s[%d:%d] sc1' % (vd, va, sDBG, sDBG + 1)

def flagaddr(dst, idx, base, t):
    a('s_lshl_b32 s%d, s%d, 7', dst, idx)
    a('s_add_u32 s%d, s%d, 0x%x', dst, dst, base)

def setflag(soff, tmp):
    a('v_mov_b32 v%d, 1', tmp)
    a('s_mov_b64 exec, 1')
    a('buffer_store_dword v%d, off, s[%d:%d], s%d sc1', tmp, RWS, RWS + 3, soff)
    a('s_mov_b64 exec, -1')

def tau(dst, src, t):
    a('v_and_b32 v%d, 0x13, v%d', dst, src)
    a('v_and_b32 v%d, 4, v%d', t, src)
    a('v_lshl_or_b32 v%d, v%d, 1, v%d', dst, t, dst)
    a('v_and_b32 v%d, 8, v%d', t, src)
    a('v_lshrrev_b32 v%d, 1, v%d', t, t)
    a('v_or_b32 v%d, v%d, v%d', dst, t, dst)

def finish(role):
    if OPT['probe'][:1] == role:
        if OPT['probe'][1:] == 'drained':
            a('s_waitcnt vmcnt(0)')
            stamp(role, 'drained')
        a('s_sub_u32 s97, s97, s100')
        a('s_mul_i32 s97, s97, 10')
        a('s_add_u32 s97, s97, 10000')
        if OPT['probewg'] >= 0:
            a('s_and_b32 s98, s2, 31')
            a('s_cmp_eq_u32 s98, %d', OPT['probewg'])
            a('s_cselect_b32 s97, s97, 0')
        L = a.newlabel('pad')
        a.label(L)
        a('s_sleep 4')
        a('s_memrealtime s[98:99]')
        a('s_waitcnt lgkmcnt(0)')
        a('s_sub_u32 s98, s98, s100')
        a('s_cmp_lt_u32 s98, s97')
        a('s_cbranch_scc1 %s', L)
    if OPT['padto']:
        L = a.newlabel('pad')
        a.label(L)
        a('s_sleep 4')
        a('s_memrealtime s[98:99]')
        a('s_waitcnt lgkmcnt(0)')
        a('s_sub_u32 s98, s98, s100')
        a('s_cmp_lt_u32 s98, %d', OPT['padto'])
        a('s_cbranch_scc1 %s', L)
    if DIAG:
        stamp(role, 'end')
        a('s_waitcnt vmcnt(0)')
        stamp(role, 'drained')
        a('s_memrealtime s[98:99]')
        a('s_waitcnt lgkmcnt(0)')
        a('v_writelane_b32 v%d, s98, 31', vTS)
        a('s_lshl_b32 s70, s2, 3')
        a('s_add_u32 s70, s70, s%d', sW)
        if role == 'S':
            a('s_add_u32 s70, s70, 4')
        a('s_lshl_b32 s70, s70, 8')
        a('s_add_u32 s70, s70, 0x%x', WS_DIAG)
        a('v_lshlrev_b32 v0, 2, v%d', vLANE)
        a('buffer_store_dword v%d, v0, s[%d:%d], s70 offen', vTS, RWS, RWS + 3)
    a('s_endpgm')

def prologue():
    a('s_cmp_ge_u32 s2, 256')
    a('s_cbranch_scc0 L_go')
    a('s_endpgm')
    a.label('L_go')
    if OPT['padto'] or DIAG or OPT['probe']:
        a('s_memrealtime s[100:101]')
    a('s_load_dwordx16 s[4:19], s[0:1], 0')
    a('s_lshr_b32 s%d, s2, 3', sI)
    if OPT['codepre'] == 2:
        a.c('pull the code into L2: every half wave of an XCD touches one line')
        a('s_getpc_b64 s[76:77]')
        a('v_lshrrev_b32 v1, 5, v0')
        a('v_lshl_add_u32 v1, s%d, 4, v1', sI)
        a('v_min_u32 v1, (L_codeend - L_go) / 128 - 1, v1')
        a('v_lshlrev_b32 v1, 7, v1')
        a('global_load_dword v110, v1, s[76:77]')
    a('v_lshrrev_b32 v1, 6, v0')
    a('v_and_b32 v%d, 63, v0', vLANE)
    a('v_readfirstlane_b32 s%d, v1', sW)
    a('s_and_b32 s%d, s2, 7', sXCD)
    a('s_and_b32 s70, s%d, 3', sI)
    a('s_lshr_b32 s%d, s%d, 2', sOG, sI)
    a('s_lshr_b32 s71, s%d, 1', sXCD)
    a('s_lshl2_add_u32 s%d, s71, s70', sRB)
    a('s_and_b32 s71, s%d, 1', sXCD)
    a('s_lshl3_add_u32 s%d, s71, s%d', sCG, sOG)
    if DIAG:
        prologue2()
    a('s_cmp_ge_u32 s%d, 4', sW)
    a('s_cbranch_scc0 L_roleA')

def prologue2():
    a('s_load_dwordx8 s[20:27], s[0:1], 64')
    a('s_load_dwordx4 s[28:31], s[0:1], 96')
    a('s_load_dwordx2 s[32:33], s[0:1], 112')
    a('v_lshlrev_b32 v%d, 2, v0', vPW)
    a('v_add_u32 v%d, %d, v%d', vPW, L_PW, vPW)
    a('v_mov_b32 v0, 0')
    a('ds_write_b32 v%d, v0', vPW)
    a('s_lshr_b32 s71, s%d, 3', sI)
    a('s_lshl2_add_u32 s%d, s%d, s71', sHD, sXCD)
    a('s_and_b32 s%d, s%d, 7', sQB, sI)
    a('s_and_b32 s70, s%d, 3', sI)
    a('s_lshl2_add_u32 s%d, s%d, s70', sTB, sXCD)
    a('s_mov_b32 s%d, 0x%x', sSPIN, SPIN_MAX)
    a('s_mov_b32 s%d, 0', sHI)
    a('s_mov_b32 s%d, -1', sHI + 1)

def ws_setup():
    srd(RWS, sWS, WS_END if not DIAG else WS_DIAG + 0x100000)
    if DIAG:
        a('v_mov_b32 v%d, 0', vTS)
        a('v_writelane_b32 v%d, s100, 30', vTS)

def stagger(k, t, add, flp, mode):
    if mode == 4:
        a('s_and_b32 s%d, s%d, 3', k, sI)
        if flp:
            a('s_xor_b32 s%d, s%d, 1', k, k)
        a('s_mul_i32 s%d, s%d, 5', k, k)
        a('s_lshr_b32 s%d, s%d, 1', k, k)
        a('s_mul_i32 s%d, s%d, 5', t, sOG)
        a('s_lshr_b32 s%d, s%d, 2', t, t)
        a('s_add_u32 s%d, s%d, s%d', k, k, t)
    elif mode in (2, 3):
        a('s_add_u32 s%d, s%d, s%d', k, sI, sOG)
        if flp:
            a('s_xor_b32 s%d, s%d, 1', k, k)
        a('s_and_b32 s%d, s%d, %d', k, k, 1 if mode == 2 else 3)
        a('s_mul_i32 s%d, s%d, 5', k, k)
        if mode == 3:
            a('s_lshr_b32 s%d, s%d, 1', k, k)
    else:
        a('s_mov_b32 s%d, 0', k)
    if mode == 0:
        a('s_mov_b32 s%d, %d', k, add)
        return
    a('s_add_u32 s%d, s%d, %d', t, sXCD, 1 + 2 * add)
    a('s_lshr_b32 s%d, s%d, 1', t, t)
    if mode == 1:
        a('s_add_u32 s%d, s%d, %d', t, sXCD, add)
    a('s_add_u32 s%d, s%d, s%d', k, k, t)
    for _ in range(2 if add else 1):
        a('s_cmp_ge_u32 s%d, 10', k)
        a('s_cselect_b32 s%d, 10, 0', t)
        a('s_sub_u32 s%d, s%d, s%d', k, k, t)

def b1_sources(rx, rb, vx, vb, sm, sb, t, j0=2):
    srd(rx, sBX, 2048 * 1280)
    a('s_cmp_ge_u32 s%d, 2', sW)
    a('s_cselect_b32 s%d, s%d, s%d', t, sBIM, sBRE)
    a('s_cselect_b32 s%d, s%d, s%d', t + 1, sBIM + 1, sBRE + 1)
    srd(rb, t, 640 * 1280)
    a('v_lshrrev_b32 v1, 3, v%d', vLANE)
    a('v_and_b32 v2, 7, v%d', vLANE)
    a('v_lshrrev_b32 v3, 4, v%d', vLANE)
    a('v_xor_b32 v4, v2, v3')
    a('v_and_b32 v5, 3, v1')
    a('v_lshrrev_b32 v6, 2, v1')
    a('v_lshl_add_u32 v5, v6, 3, v5')
    a('v_mul_u32_u24 v5, 1280, v5')
    a('v_lshl_add_u32 v%d, v4, 4, v5', vx)
    a('v_xor_b32 v6, 64, v%d', vx)
    a('v_add_u32 v%d, %d, v6', vx + 1, 16 * 1280 - 1024)
    a('v_add_u32 v%d, %d, v%d', vx + 2, 4 * 1280 - 2048, vx)
    a('v_add_u32 v%d, %d, v6', vx + 3, 20 * 1280 - 3072)
    a('s_lshr_b32 s%d, s%d, 1', t, sW)
    a('s_lshl_b32 s%d, s%d, 6', t + 1, t)
    a('v_mul_u32_u24 v5, 1280, v1')
    a('v_lshl_add_u32 v5, v4, 4, v5')
    a('v_xor_b32 v%d, s%d, v5', vb, t + 1)
    for i in range(1, 3):
        a('v_add_u32 v%d, %d, v%d', vb + i, (10240 - 1024) * i, vb)
    a('s_and_b32 s%d, s%d, 1', t + 1, sW)
    a('s_mul_i32 s%d, s%d, 5120', sm, t)
    a('s_mul_i32 s%d, s%d, %d', sb, t + 1, 1024 * j0)
    a('s_add_u32 s%d, s%d, s%d', sm, sm, sb)
    a('s_mul_i32 s%d, s%d, %d', sb, sCG, 40 * 1280)
    a('s_mul_i32 s%d, s%d, %d', t + 1, t + 1, 8 * 1280 * j0)
    a('s_add_u32 s%d, s%d, s%d', sb, sb, t + 1)

def dma(voff, r, soff, imm):
    return 'buffer_load_dwordx4 v%d, s[%d:%d], s%d offen offset:%d lds' % (voff, r, r + 3, soff, imm)

def a_b1stage(t):
    slot = (t % 4) * 32768
    a('s_add_u32 m0, s6, %d', slot)
    a('s_lshl_b32 s9, s8, 7')
    a('s_add_u32 s12, s4, s9')
    for i in range(4):
        a(dma(112 + i, R5, 12, 1024 * i))
    a('s_add_u32 m0, s7, %d', slot + 16384)
    a('s_add_u32 s12, s5, s9')
    L = a.newlabel('b3rd')
    for i in range(3):
        if i == 2 and OPT['nodup']:
            a('s_cmp_eq_u32 s%d, 1', sCW)
            a('s_cbranch_scc1 %s', L)
        a(dma(116 + i, R6, 12, 1024 * i))
    a.label(L)
    a('s_add_u32 s8, s8, 1')
    a('s_cmp_eq_u32 s8, 10')
    a('s_cselect_b32 s8, 0, s8')

sTW, sCW = 72, 73
vXA, vWA = 96, 104
vF1A = 252
vAPW = 249

def a_setup():
    a.label('L_roleA')
    if not DIAG:
        prologue2()
    a('s_waitcnt lgkmcnt(0)')
    ws_setup()
    stamp('A', 'start')
    a('s_lshr_b32 s%d, s%d, 1', sTW, sW)
    a('s_and_b32 s%d, s%d, 1', sCW, sW)
    a('s_lshl1_add_u32 s75, s%d, s%d', sRB, sTW)
    a('s_mul_i32 s74, s75, %d', BLK)
    a.c('column group 15 has no GEMM tile: these workgroups clear the flags and write the constant blocks')
    a('s_cmp_eq_u32 s%d, 15', sCG)
    a('s_cbranch_scc0 L_noconst')
    a('s_lshl2_add_u32 s77, s%d, s%d', sRB, sW)
    if OPT['clrwide']:
        a('v_lshlrev_b32 v2, 4, v%d', vLANE)
        a('v_min_u32 v3, 496, v2')
        for i in range(4):
            a('v_mov_b32 v%d, 0', 4 + i)
        a('s_mul_i32 s76, s77, 4608')
        a('s_add_u32 s76, s76, 0x%x', WS_F)
        for i in range(4):
            a('buffer_store_dwordx4 v[4:7], v2, s[%d:%d], s76 offen offset:%d sc1', RWS, RWS + 3, 1024 * i)
        a('s_add_u32 s76, s76, 4096')
        a('buffer_store_dwordx4 v[4:7], v3, s[%d:%d], s76 offen sc1', RWS, RWS + 3)
    else:
        a('v_min_u32 v1, 35, v%d', vLANE)
        a('v_lshlrev_b32 v1, 7, v1')
        a('v_mov_b32 v4, 0')
        a('s_mul_i32 s76, s77, 4608')
        a('s_add_u32 s76, s76, 0x%x', WS_F)
        a('buffer_store_dword v4, v1, s[%d:%d], s76 offen sc1', RWS, RWS + 3)
        a('v_lshlrev_b32 v2, 4, v%d', vLANE)
    for i in range(4):
        a('v_mov_b32 v%d, -1', 20 + i)
    a('s_lshl_b32 s76, s77, 11')
    a('s_add_u32 s76, s76, 0x%x', WS_E)
    for i in range(2):
        a('buffer_store_dwordx4 v[20:23], v2, s[%d:%d], s76 offen offset:%d sc1', RWS, RWS + 3, 1024 * i)
    a('v_lshrrev_b32 v1, 3, v%d', vLANE)
    a('v_mul_u32_u24 v1, %d, v1', VROW - 128)
    a('v_add_u32 v1, %d, v1', VOFF + 640 * 16 - 160 * 1024)
    a('v_mul_lo_u32 v1, v1, s%d', sCW)
    a('v_add_u32 v1, v1, v2')
    a('s_mul_i32 s76, s%d, 0x3f803f80', sCW)
    a('v_mov_b32 v8, 0x3f803f80')
    a('v_mov_b32 v9, s76')
    a('v_mov_b32 v10, v8')
    a('v_mov_b32 v11, s76')
    a('s_add_u32 s76, s74, %d', 160 * 1024)
    a('buffer_store_dwordx4 v[8:11], v1, s[%d:%d], s76 offen sc1', RWS, RWS + 3)
    a.label('L_noconst')
    if OPT['codepre'] == 1:
        a.c('pull the code into L2: each wave of an XCD touches a few lines')
        a('s_getpc_b64 s[76:77]')
        a.label('L_pc')
        a('s_sub_u32 s76, s76, L_pc - L_go')
        a('s_subb_u32 s77, s77, 0')
        a('s_lshl2_add_u32 s78, s%d, s%d', sI, sW)
        a('s_mul_i32 s78, s78, 3')
        a('v_min_u32 v1, 2, v%d', vLANE)
        a('v_add_u32 v1, s78, v1')
        a('v_min_u32 v1, (L_codeend - L_go) / 128 - 1, v1')
        a('v_lshlrev_b32 v1, 7, v1')
        a('global_load_dword v110, v1, s[76:77]')
    a.c('LDS fragment addresses for the QKV GEMM')
    a('v_and_b32 v1, 31, v%d', vLANE)
    a('v_lshrrev_b32 v2, 5, v%d', vLANE)
    a('v_bfe_u32 v3, v1, 1, 3')
    a('v_xor_b32 v3, v3, v2')
    a('v_lshlrev_b32 v3, 4, v3')
    a('v_lshl_add_u32 v3, v1, 7, v3')
    a('s_lshl_b32 s76, s%d, 13', sTW)
    a('v_add_u32 v3, s76, v3')
    for ks in range(4):
        a('v_xor_b32 v%d, %d, v3', vXA + ks, ks << 5)
        a('v_add_u32 v%d, 0x10000, v%d', vXA + 4 + ks, vXA + ks)
    a('v_bfe_u32 v4, v%d, 2, 2', vLANE)
    a('v_lshl_add_u32 v5, v2, 3, v4')
    a('v_lshlrev_b32 v5, 8, v5')
    a('v_bfe_u32 v6, v%d, 4, 1', vLANE)
    a('v_and_b32 v7, 1, v%d', vLANE)
    a('v_lshl_add_u32 v6, v6, 1, v7')
    a('s_lshl_b32 s76, s%d, 3', sCW)
    a('v_add_u32 v6, s76, v6')
    a('v_lshlrev_b32 v4, 2, v4')
    a('v_xor_b32 v6, v6, v4')
    a('v_lshl_add_u32 v5, v6, 4, v5')
    a('v_bfe_u32 v7, v%d, 1, 1', vLANE)
    a('v_lshl_add_u32 v5, v7, 3, v5')
    a('v_add_u32 v%d, 16384, v5', vWA)
    a('v_xor_b32 v%d, 64, v%d', vWA + 1, vWA)
    a('v_add_u32 v%d, 0x10000, v%d', vWA + 2, vWA)
    a('v_add_u32 v%d, 0x10000, v%d', vWA + 3, vWA + 1)

def a_qloop(vt):
    F = [64, 80]
    def reads(st, ks, f):
        slot = st % 4
        hi, lo = slot >> 1, (slot & 1) * 32768
        r = []
        for T in range(2):
            r.append('ds_read_b128 %s, v%d offset:%d' % (v(f + 4 * T, 4), vXA + 4 * hi + ks, lo + 4096 * T))
        for Tc in range(2):
            for rd in range(2):
                r.append('ds_read_b64_tr_b16 %s, v%d offset:%d' % (v(f + 8 + 4 * Tc + 2 * rd, 2), vWA + 2 * hi + Tc,
                                                                  lo + (16 * ks + 4 * rd) * 256))
        return [r[0], r[2], r[3], r[1], r[4], r[5]]
    def mfma(f, i, j, first):
        acc = (2 * i + j) * 16
        A = f + 4 * i if vt else f + 8 + 4 * i
        B = f + 8 + 4 * j if vt else f + 4 * j
        return 'v_mfma_f32_32x32x16_bf16 %s, %s, %s, %s' % (v(acc, 16), v(A, 4), v(B, 4), '0' if first else v(acc, 16))
    a('s_barrier')
    for r in reads(0, 0, F[0]):
        a(r)
    for st in range(10):
        for ks in range(4):
            cur, nxt = F[ks & 1], F[(ks + 1) & 1]
            first = st == 0 and ks == 0
            a('s_waitcnt lgkmcnt(0)')
            if ks == 3:
                a('s_barrier')
                rr = reads(st + 1, 0, nxt) if st < 9 else []
            else:
                rr = reads(st, ks + 1, nxt)
            if st == 9 and ks == 3:
                a(mfma(cur, 0, 0, False))
                a(mfma(cur, 0, 1, False))
                return [mfma(nxt, 1, 1, False), mfma(cur, 1, 0, False), mfma(cur, 1, 1, False)]
            a(mfma(cur, 0, 0, first))
            for r in rr[:3]:
                a(r)
            a(mfma(cur, 0, 1, first))
            for r in rr[3:]:
                a(r)
            a(mfma(cur, 1, 0, first))
            if not (st == 9 and ks == 2):
                a(mfma(cur, 1, 1, first))

def tailweave(ms, work):
    a(ms[0])
    a('s_nop 6')
    a(ms[1])
    a('s_nop 1')
    for o in work[:6]:
        a(o)
    a(ms[2])
    for o in work[6:]:
        a(o)

def a_pack_wo():
    a('s_lshl2_add_u32 s76, s%d, s%d', sRB, sW)
    a('s_mul_i32 s77, s76, 12800')
    a('s_add_u32 s78, s14, s77')
    a('s_addc_u32 s79, s15, 0')
    a('s_mul_i32 s76, s76, 10')
    a('s_mov_b32 s80, 0x%x', WS_WP)
    for n in range(13):
        a('v_add_u32 v60, %d, v%d', 64 * n, vLANE)
        if n == 12:
            a('v_min_u32 v60, 799, v60')
        a('v_lshlrev_b32 v61, 4, v60')
        a('global_load_dwordx4 %s, v61, s[78:79]', v(4 * n, 4))
        a('v_mul_u32_u24 v61, 820, v60')
        a('v_lshrrev_b32 v61, 16, v61')
        a('v_mul_u32_u24 v62, 80, v61')
        a('v_sub_u32 v60, v60, v62')
        a('v_add_u32 v61, s76, v61')
        a('v_mul_u32_u24 v62, 6554, v60')
        a('v_lshrrev_b32 v62, 16, v62')
        a('v_mul_u32_u24 v62, %d, v62', 6400 - 10)
        a('v_add_u32 v60, v60, v62')
        a('v_and_b32 v62, 0xfff3, v61')
        a('v_and_b32 v63, 4, v61')
        a('v_lshl_or_b32 v62, v63, 1, v62')
        a('v_bfe_u32 v63, v61, 3, 1')
        a('v_lshl_or_b32 v62, v63, 2, v62')
        a('v_mul_u32_u24 v62, 10, v62')
        a('v_add_lshl_u32 v%d, v60, v62, 4', 64 + n)
    for n in range(13):
        a('s_waitcnt vmcnt(12)')
        a('buffer_store_dwordx4 %s, v%d, s[%d:%d], s80 offen sc1', v(4 * n, 4), 64 + n, RWS, RWS + 3)
    if OPT['wopack'] > 1:
        a('v_min_u32 v60, 49, v%d', vLANE)
        a('v_lshl_add_u32 v60, v60, 7, s77')
        a('v_add_u32 v61, 6400, v60')
        for p in (sCRE, sCIM):
            a('global_load_dword v111, v60, s[%d:%d]', p, p + 1)
            a('global_load_dword v111, v61, s[%d:%d]', p, p + 1)

def a_qphase():
    a('s_cmp_ge_u32 s%d, 10', sCG)
    a('s_cbranch_scc1 L_qV')
    a('v_and_b32 v1, 31, v%d', vLANE)
    a('v_lshrrev_b32 v2, 5, v%d', vLANE)
    a('v_lshlrev_b32 v1, 4, v1')
    a('v_lshl_add_u32 v108, v2, 10, v1')
    a('s_lshl1_add_u32 s76, s%d, s%d', sCG, sCW)
    a('s_lshl_b32 s77, s76, 13')
    a('s_add_u32 s77, s77, s74')
    a('s_add_u32 s78, s77, 4096')
    a('s_mul_i32 s79, s%d, 3', sCW)
    a('s_add_u32 s79, s79, s%d', sCG)
    for _ in range(2):
        a('s_cmp_ge_u32 s79, 5')
        a('s_cselect_b32 s80, 5, 0')
        a('s_sub_u32 s79, s79, s80')
    for Tc in range(2):
        for u in range(2):
            m = 16 + 2 * (2 * Tc + u)
            a('s_cmp_eq_u32 s79, %d', (2 - 4 * Tc - 2 * u) % 5)
            a('s_cselect_b32 s%d, -1, 0', m)
            a('s_cmp_eq_u32 s79, %d', (1 - 4 * Tc - 2 * u) % 5)
            a('s_cselect_b32 s%d, -1, 0', m + 1)
    c0 = f2u(math.log2(math.e) / math.sqrt(20.0))
    a('s_mov_b32 s80, 0x%x', c0)
    ms = a_qloop(False)
    def group(Tc, u, scale):
        o = []
        P = 120 + 8 * (2 * Tc + u)
        for T in range(2):
            acc = (2 * Tc + T) * 16 + 8 * u
            if scale:
                o += ['v_mul_f32 v%d, s80, v%d' % (acc + e, acc + e) for e in range(8)]
            o += ['v_cvt_pk_bf16_f32 v%d, v%d, v%d' % (P + 4 * T + q, acc + 2 * q, acc + 2 * q + 1) for q in range(4)]
        m = 16 + 2 * (2 * Tc + u)
        o.append('s_mov_b64 exec, s[%d:%d]\nv_swap_b32 v%d, v%d\nv_swap_b32 v%d, v%d\ns_mov_b64 exec, -1' % (m, m + 1, P + 2, P + 4, P + 3, P + 5))
        for T in range(2):
            o.append('buffer_store_dwordx4 %s, v108, s[%d:%d], s%d offen offset:%d sc1' % (v(P + 4 * T, 4), RWS, RWS + 3,
                     77 + Tc, 2048 * u + 512 * T))
        return o
    a('s_cmp_ge_u32 s%d, 5', sCG)
    a('s_cbranch_scc1 L_noscale')
    tailweave(ms, group(0, 0, True) + group(0, 1, True))
    a('s_mov_b32 s81, s80')
    for i in range(32, 64, 2):
        a('v_pk_mul_f32 %s, %s, s[80:81]', v(i, 2), v(i, 2))
    a('s_branch L_qk2')
    a.label('L_noscale')
    tailweave(ms, group(0, 0, False) + group(0, 1, False))
    a.label('L_qk2')
    for o in group(1, 0, False) + group(1, 1, False):
        a(o)
    stamp('A', 'qloop')
    a('s_branch L_qdone')
    a.label('L_qV')
    a('s_cmp_eq_u32 s%d, 15', sCG)
    a('s_cbranch_scc0 L_qV2')
    a('s_lshl_b32 s76, s%d, 4', sRB)
    a('v_mov_b32 v16, s76')
    a('v_mov_b32 v17, 1')
    a('s_waitcnt vmcnt(0)')
    a('s_barrier')
    a('s_cmp_eq_u32 s%d, 0', sW)
    a('s_cbranch_scc0 L_nosig')
    a('s_mov_b64 exec, 1')
    a('global_store_dword v16, v17, s[%d:%d] sc1', sDBG, sDBG + 1)
    a('s_mov_b64 exec, -1')
    a.label('L_nosig')
    if OPT['mallpre']:
        a('v_lshlrev_b32 v1, 7, v%d', vLANE)
        a('v_min_u32 v2, %d, v1', 39 * 128)
        a('s_lshl2_add_u32 s76, s%d, s%d', sRB, sW)
        a('s_mul_i32 s76, s76, 40960')
        a('s_lshl1_add_u32 s77, s%d, s%d', sRB, sCW)
        a('s_mul_i32 s77, s77, 25600')
        for k in range(OPT['mallpre']):
            a('buffer_load_dword v111, v2, s[%d:%d], s77 offen', R6, R6 + 3)
            a('buffer_load_dword v111, v1, s[%d:%d], s76 offen', R5, R5 + 3)
            a('s_add_u32 s77, s77, 5120')
            a('s_add_u32 s76, s76, 8192')
    if OPT['wopack']:
        a_pack_wo()
    for _ in range(10):
        a('s_barrier')
    if DIAG:
        nstamp['A'].pop()
    stamp('A', 'qloop')
    a('s_branch L_qdone')
    a.label('L_qV2')
    a('s_lshl1_add_u32 s76, s%d, s%d', sCG, sCW)
    a('v_and_b32 v1, 31, v%d', vLANE)
    tau(108, 1, 2)
    a('v_lshrrev_b32 v2, 5, v%d', vLANE)
    a('v_mul_u32_u24 v2, %d, v2', VROW)
    a('v_lshl_add_u32 v108, v108, 4, v2')
    a('s_sub_u32 s76, s76, 20')
    a('s_lshl_b32 s76, s76, 10')
    a('s_add_u32 s76, s76, s74')
    a('s_add_u32 s76, s76, %d', VOFF)
    for k in range(1, 4):
        a('s_add_u32 s%d, s76, %d', 76 + k, 2 * VROW * k)
    ms = a_qloop(True)
    work = []
    n = 0
    for T in range(2):
        for Tc in range(2):
            for m in range(2):
                P = 120 + 4 * n
                n += 1
                acc = (2 * T + Tc) * 16 + 8 * m
                work += ['v_cvt_pk_bf16_f32 v%d, v%d, v%d' % (P + q, acc + 2 * q, acc + 2 * q + 1) for q in range(4)]
                work.append('buffer_store_dwordx4 %s, v108, s[%d:%d], s%d offen offset:%d sc1' % (v(P, 4), RWS, RWS + 3, 76 + 2 * T + m, 512 * Tc))
    tailweave(ms, work)
    if DIAG:
        nstamp['A'].pop()
    stamp('A', 'qloop')
    a.label('L_qdone')

vO, vS = 0, 64
KV = [128, 156]
K1A, K1B, K2, VA0, VA1, VB0, VB1 = 0, 4, 8, 12, 16, 20, 24
vQ1, vQ2 = 184, 200
vK1, vK2, vV, vIDX, vNC, vM = 208, 209, 210, 214, 216, 220
vT = 224
vMG = 240
sQH, sKH, sODD, sP5, sOFF, sKV0, sPASS, sCNT = 76, 77, 78, 79, 80, 93, 82, 83
sKVB, sKVE = 70, 71

def a_att_setup():
    a('s_and_b32 s%d, s%d, 1', sQH, sW)
    a('s_lshr_b32 s%d, s%d, 1', sKH, sW)
    a('s_and_b32 s%d, s%d, 1', sODD, sHD)
    a('s_lshr_b32 s85, s%d, 1', sHD)
    a('s_mul_i32 s%d, s85, 5', sP5)
    a('s_mul_i32 s%d, s%d, %d', sKVB, sKH, 16 * BLK)
    a('s_add_u32 s%d, s%d, %d', sKVE, sKVB, 16 * BLK)
    a('s_mul_i32 s86, s%d, %d', sQB, 2 * BLK * OPT['rot'])
    a('s_add_u32 s%d, s%d, s86', sKV0, sKVB)
    srd(R3, sWS, 32 * BLK)
    srd(R4, sOUT, 2048 * 1280 * 4)
    a('s_mov_b32 s%d, 0', sPASS)
    i, h, t, x = vT, vT + 1, vT + 2, vT + 3
    a('v_and_b32 v%d, 31, v%d', i, vLANE)
    a('v_lshrrev_b32 v%d, 5, v%d', h, vLANE)
    tau(t, i, x)
    a('s_mul_i32 s86, s%d, 3', sODD)
    a('s_add_u32 s86, s86, s%d', sP5)
    a('s_lshl_b32 s87, s86, 10')
    a('v_lshl_add_u32 v%d, v%d, 10, s87', x, h)
    a('v_lshl_add_u32 v%d, v%d, 4, v%d', vT + 4, i, x)
    a('v_lshl_add_u32 v%d, v%d, 4, v%d', vK1, t, x)
    a('v_add_u32 v%d, %d, v%d', vK1, 80 * 1024, vK1)
    a('s_add_u32 s87, s%d, 2', sP5)
    a('s_lshl1_add_u32 s87, s87, s%d', sODD)
    a('s_lshl_b32 s87, s87, 9')
    a('v_lshl_add_u32 v%d, v%d, 4, s87', vT + 5, i)
    a('v_mov_b32 v%d, 0x%x', x, OOB)
    a('v_cndmask_b32 v%d, v%d, v%d, s[%d:%d]', vT + 5, vT + 5, x, sHI, sHI + 1)
    a('s_add_u32 s87, s87, %d', 80 * 1024)
    a('v_mov_b32 v%d, s87', vK2)
    a('v_mov_b32 v%d, %d', x, 160 * 1024)
    a('v_cndmask_b32 v%d, v%d, v%d, s[%d:%d]', vK2, vK2, x, sHI, sHI + 1)
    a('v_lshl_add_u32 v%d, v%d, 4, v%d', vK2, t, vK2)
    a('s_mul_i32 s86, s%d, 20', sHD)
    a('s_lshl2_add_u32 s87, s%d, s86', sODD)
    a('s_lshl_b32 s88, s%d, 4', sODD)
    a('s_sub_u32 s88, s86, s88')
    a('v_add_u32 v%d, s87, v%d', vV, t)
    a('v_add_u32 v%d, s88, v%d', x, i)
    a('v_cmp_le_u32 vcc, 16, v%d', i)
    a('v_add_u32 v%d, 620, v%d', vT + 6, i)
    a('s_nop 0')
    a('v_cndmask_b32 v%d, v%d, v%d, vcc', vV, vV, x)
    a('v_cmp_le_u32 vcc, 20, v%d', i)
    a('v_mul_u32_u24 v%d, %d, v%d', x, VROW, h)
    a('v_add_u32 v%d, %d, v%d', x, VOFF, x)
    a('v_cndmask_b32 v%d, v%d, v%d, vcc', vV, vV, vT + 6)
    a('v_lshl_add_u32 v%d, v%d, 4, v%d', vV, vV, x)
    a('v_cmp_le_u32 vcc, %d, v%d', 21 if OPT['vzero'] else 24, i)
    a('v_mov_b32 v%d, 0x%x', x, OOB)
    a('v_mov_b32 v%d, 0xdddd', vIDX)
    a('v_cndmask_b32 v%d, v%d, v%d, vcc', vV, vV, x)
    for k in range(1, 4):
        a('v_add_u32 v%d, %d, v%d', vV + k, 2 * VROW * k, vV)
    a('s_mul_i32 s87, s85, 40')
    a('s_lshl4_add_u32 s87, s%d, s87', sODD)
    a('s_add_u32 s88, s87, 23')
    a('s_lshr_b32 s87, s87, 7')
    a('s_lshr_b32 s88, s88, 7')
    a('s_add_u32 s89, s86, 19')
    a('s_lshr_b32 s86, s86, 7')
    a('s_lshr_b32 s89, s89, 7')
    a('v_lshrrev_b32 v%d, 4, v%d', x, vLANE)
    a('s_add_u32 s90, s87, 5')
    a('v_mov_b32 v%d, s90', vF1A)
    for sel, (reg, add) in enumerate(((88, 5), (86, 10), (89, 10))):
        a('s_add_u32 s90, s%d, %d', reg, add)
        a('v_cmp_eq_u32 vcc, %d, v%d', sel + 1, x)
        a('v_mov_b32 v%d, s90', vT + 6)
        a('s_nop 0')
        a('v_cndmask_b32 v%d, v%d, v%d, vcc', vF1A, vF1A, vT + 6)
    a('v_and_b32 v%d, 15, v%d', vT + 6, vLANE)
    a('v_lshl_add_u32 v%d, v%d, 4, v%d', vF1A, vF1A, vT + 6)
    a('v_lshlrev_b32 v%d, 7, v%d', vF1A, vF1A)
    a('v_mov_b32 v%d, s87', vF1A - 1)
    a('v_mov_b32 v%d, s88', vT + 6)
    a('v_cndmask_b32 v%d, v%d, v%d, s[%d:%d]', vF1A - 1, vF1A - 1, vT + 6, sHI, sHI + 1)
    a('v_bfe_u32 v%d, v%d, 4, 1', vT + 6, vLANE)
    a('v_lshl_add_u32 v%d, v%d, 4, v%d', vF1A - 1, vF1A - 1, vT + 6)
    a('s_lshl_b32 s90, s%d, 1', sQB)
    a('v_add_lshl_u32 v%d, v%d, s90, 7', vF1A - 1, vF1A - 1)
    a('v_and_b32 v%d, 3, v%d', vAPW, vLANE)
    a('v_lshlrev_b32 v%d, 8, v%d', vAPW, vAPW)
    a('v_lshlrev_b32 v%d, 2, v%d', vAPW + 1, vLANE)
    a('v_add_u32 v%d, %d, v%d', vAPW + 1, L_PW, vAPW + 1)
    a('v_add_u32 v%d, v%d, v%d', vAPW, vAPW, vAPW + 1)
    a('s_lshl1_add_u32 s90, s%d, s%d', sQB, sQH)
    a('s_lshl1_add_u32 s90, s90, s%d', sKH)
    a('s_mul_i32 s91, s90, %d', BLK)
    a('s_xor_b32 s92, s90, 1')
    a('s_mul_i32 s92, s92, %d', BLK)
    a('s_mul_i32 s36, s%d, %d', sW, REGSZ)
    a('s_add_u32 s36, s36, %d', L_REG + 8192)
    a('s_xor_b32 s37, s%d, 2', sW)
    a('s_mul_i32 s37, s37, %d', REGSZ)
    a('s_add_u32 s37, s37, %d', L_REG + 8192)
    a('v_lshl_add_u32 v%d, v%d, 4, s36', vMG, vLANE)
    a('v_lshl_add_u32 v%d, v%d, 3, s36', vMG + 1, vLANE)
    a('v_lshl_add_u32 v%d, v%d, 4, s37', vMG + 2, vLANE)
    a('v_lshl_add_u32 v%d, v%d, 3, s37', vMG + 3, vLANE)
    a('v_xor_b32 v%d, 512, v%d', vMG + 4, vPW)
    a('v_add_u32 v%d, 1024, v%d', vMG + 5, vAPW)
    a('v_bfe_u32 v%d, v%d, 4, 1', x, vLANE)
    a('v_mul_u32_u24 v%d, %d, v%d', x, OBLK, x)
    a('v_and_b32 v%d, 15, v%d', t, vLANE)
    a('v_lshl_add_u32 v%d, v%d, 4, v%d', x, t, x)
    a('v_mul_u32_u24 v%d, %d, v%d', t, 2 * OBLK, h)
    a('v_add_u32 v%d, v%d, v%d', vMG + 7, t, x)
    a('v_lshl_add_u32 v%d, v%d, 8, v%d', vMG + 6, h, x)
    a('s_mul_i32 s40, s90, %d', 4 * OBLK)
    a('s_add_u32 s40, s40, 0x%x', WS_O)
    a('s_lshl_b32 s41, s%d, 8', sP5)
    a('s_add_u32 s40, s40, s41')
    a('s_mul_i32 s41, s%d, 768', sODD)
    a('s_add_u32 s41, s41, s40')
    a('s_add_u32 s42, s41, %d', 2 * OBLK)
    a('s_lshl3_add_u32 s40, s%d, s40', sODD)
    a('s_lshl_b32 s43, s90, 5')
    a('s_add_u32 s43, s43, s%d', sHD)
    flagaddr(43, 43, F4, 0)
    a('s_mov_b64 s[14:15], s[%d:%d]', sWO, sWO + 1)
    b1_sources(R5, R6, 112, 116, 7, 5, 12, 3 if OPT['nodup'] else 2)
    a('s_lshl2_add_u32 s4, s%d, s%d', sRB, sW)
    a('s_mul_i32 s4, s4, %d', 32 * 1280)
    a('s_lshl_b32 s6, s%d, 12', sW)
    stagger(8, 9, OPT['st10'], OPT['flip'], OPT['stagb'])

def a_handoff():
    first = 10 + OPT['st10']
    nst = 8
    for t in range(10, first):
        a('s_barrier')
        if t == 10:
            for i_ in range(64):
                a('v_mov_b32 v%d, 0', vO + i_)
    a_b1stage(first)
    a_b1stage(first + 1)
    lds_ = ['buffer_load_dword v%d, v%d, s[%d:%d], s85 offen sc1' % (104 + k, vF1A - k, RWS, RWS + 3) for k in range(2)]
    a('s_mov_b32 s85, 0x%x', F1)
    for t in range(first, 20):
        a('s_waitcnt vmcnt(%d)', 7 - OPT['nodup'] if t < 19 else 0)
        if t == first:
            stamp('A', 'qdrain')
        if t == 19:
            a('s_cmp_eq_u32 s%d, 0', sW)
            a('s_cbranch_scc0 L_c19')
            a('v_and_b32 v104, v104, v105')
            a('v_cmp_eq_u32 vcc, 0, v104')
            a('s_cbranch_vccnz L_c19')
            setpw(4, 102)
            a('s_waitcnt lgkmcnt(0)')
            a.label('L_c19')
        a('s_barrier')
        if t + 2 <= 19:
            a_b1stage(t + 2)
        if t == OPT['pollat']:
            a('s_cmp_eq_u32 s%d, 0', sW)
            a('s_cbranch_scc0 L_nopoll')
            for l in lds_:
                a(l)
            a.label('L_nopoll')
    stamp('A', 'b1load')
    a('s_cmp_eq_u32 s%d, 0', sW)
    a('s_cbranch_scc0 L_f1wait')
    a('s_cbranch_vccz L_f1go')
    a('s_mov_b64 exec, vcc')
    pollflags(lds_, 104, sleep=OPT['psleep'])
    setpw(4, 102)
    a.label('L_f1wait')
    waitpw(vAPW + 1, 4, 102, sleep=1)
    a.label('L_f1go')
    stamp('A', 'f1')

def kvload0(st, what, soff):
    if what in (K1A, K1B):
        r = KV[st] + what
        return 'buffer_load_dwordx4 %s, v%d, s[%d:%d], s%d offen offset:%d sc1' % (v(r, 4), vK1, R3, R3 + 3, soff, 512 if what == K1B else 0)
    if what in ('2A', '2B'):
        tl = what == '2B'
        return 'buffer_load_dwordx2 %s, v%d, s[%d:%d], s%d offen offset:%d sc1' % (v(KV[st] + K2 + 2 * tl, 2), vK2, R3, R3 + 3, soff, 8 * tl)
    r = KV[st] + what
    if what == K2:
        return 'buffer_load_dwordx4 %s, v%d, s[%d:%d], s%d offen sc1' % (v(r, 4), vK2, R3, R3 + 3, soff)
    return 'buffer_load_dwordx4 %s, v%d, s[%d:%d], s%d offen sc1' % (v(r, 4), vV + (what - VA0) // 4, R3, R3 + 3, soff)

def kvload(st, what, soff):
    return kvload0(st, what, soff).replace(' sc1', [' sc1', '', ' sc1 nt'][OPT['kvplain']])

def qk1(st, tile, qt, sb):
    return 'v_mfma_f32_32x32x16_bf16 %s, %s, %s, 0' % (v(vS + 16 * sb, 16), v(KV[st] + (K1B if tile else K1A), 4), v(vQ1 + 4 * qt, 4))

def qk2(st, tile, qt, sb):
    return 'v_mfma_f32_32x32x8bf16_1k %s, %s, %s, %s' % (v(vS + 16 * sb, 16), v(KV[st] + K2 + 2 * tile, 2), v(vQ2 + 2 * qt, 2), v(vS + 16 * sb, 16))

def pv(st, tile, qt, m):
    return 'v_smfmac_f32_32x32x32_bf16 %s, %s, %s, v%d' % (v(vO + 16 * qt, 16), v(KV[st] + VA0 + 8 * tile + 4 * m, 4), v(vS + 16 * qt + 8 * m, 8), vIDX)

def maxtree(dst, src, acc):
    if acc:
        a('v_max3_f32 v%d, v%d, v%d, v%d', dst, dst, src, src + 1)
    else:
        a('v_max_f32 v%d, v%d, v%d', dst, src, src + 1)
    for k in range(2, 16, 2):
        a('v_max3_f32 v%d, v%d, v%d, v%d', dst, dst, src + k, src + k + 1)

def a_attention():
    if OPT['acq'] == 2:
        a('buffer_inv sc1')
    for lp in range(2):
        for T in range(2):
            a('buffer_load_dwordx4 %s, v%d, s[%d:%d], s%d offen offset:%d sc1', v(vQ1 + 8 * lp + 4 * T, 4), vT + 4, RWS, RWS + 3, 91 + lp, 512 * T)
    for lp in range(2):
        a('buffer_load_dwordx4 %s, v%d, s[%d:%d], s%d offen sc1', v(vQ2 + 4 * lp, 4), vT + 5, RWS, RWS + 3, 91 + lp)
    a.label('L_attload')
    a('s_mov_b32 s%d, 0x40000000', sCNT)
    a('s_add_u32 s%d, s%d, %d', sOFF, sKV0, BLK)
    for w_ in (K1A, K2):
        a(kvload0(0, w_, sKV0))
    for i in range(4):
        a('v_mov_b32 v%d, 0', KV[1] + VB1 + i)
    if OPT['kvsplit']:
        a('s_waitcnt vmcnt(%d)', OPT['kvsplit'] - 1)
    for w_ in (VA0, VA1, K1B, VB0, VB1):
        a(kvload0(0, w_, sKV0))
    for w_ in (K1A, VA0, VA1, K1B, K2, VB0):
        a(kvload0(1, w_, sOFF))
    if OPT['acq'] == 1:
        a('buffer_inv sc1')
    a('s_waitcnt vmcnt(%d)', 11 + (OPT['acq'] == 1))
    stamp('A', 'qkload')
    a('s_cmp_eq_u32 s%d, 0', sPASS)
    a('s_cbranch_scc0 L_setc')
    a.c('stand-in for the row maximum: the maximum over the first key tile (checked after the loop)')
    def tree(qt):
        src = vS + 16 * qt
        return ['v_max_f32 v%d, v%d, v%d' % (vM + qt, src, src + 1)] + \
               ['v_max3_f32 v%d, v%d, v%d, v%d' % (vM + qt, vM + qt, src + k, src + k + 1) for k in range(2, 16, 2)]
    for qt in range(3):
        a(qk1(0, 0, qt, qt))
        a(qk2(0, 0, qt, qt))
    a(qk1(0, 0, 3, 3))
    a('s_nop 6')
    for o in tree(0)[:4]:
        a(o)
    a(qk2(0, 0, 3, 3))
    for o in tree(0)[4:] + tree(1) + tree(2) + tree(3):
        a(o)
    a.label('L_setc')
    for qt in range(4):
        a('v_mov_b32 v%d, v%d', vT + 8 + qt, vM + qt)
    for qt in range(4):
        a('v_permlane32_swap_b32 v%d, v%d', vM + qt, vT + 8 + qt)
    for qt in range(4):
        a('v_min_f32 v%d, -v%d, -v%d', vM + qt, vM + qt, vT + 8 + qt)
    for qt in range(4):
        a('v_cvt_pk_bf16_f32 v%d, v%d, v%d', vT + 8 + qt, vM + qt, vM + qt)
    for qt in range(4):
        a('v_and_b32 v%d, 0xffff0000, v%d', vT + 8 + qt, vT + 8 + qt)
    for qt in range(4):
        a('v_sub_f32 v%d, v%d, v%d', vM + qt, vM + qt, vT + 8 + qt)
    for qt in range(4):
        a('v_cvt_pk_bf16_f32 v%d, v%d, v%d', vM + qt, vT + 8 + qt, vM + qt)
    for qt in range(4):
        a('v_cndmask_b32 v%d, v%d, v%d, s[%d:%d]', vQ2 + 2 * qt, vQ2 + 2 * qt, vM + qt, sHI, sHI + 1)
    a(qk1(0, 0, 0, 0))
    a(qk2(0, 0, 0, 0))
    for qt in range(4):
        a('v_and_b32 v%d, 0xffff0000, v%d', vM + qt, vM + qt)
    for qt in range(4):
        a('v_add_f32 v%d, v%d, v%d', vNC + qt, vM + qt, vT + 8 + qt)
    for i in range(8):
        a('v_mov_b32 v%d, 0', vS + 48 + 8 + i)
    a('s_waitcnt vmcnt(%d)', 8 + (OPT['acq'] == 1))
    if OPT['tearly'] or OPT['gtouch'] == 1:
        setpw(5, vT + 8)
    stamp('A', 'attpro')
    if OPT['fine'] == 3:
        base = len(nstamp['A'])
        nstamp['A'] += ['it%d' % i for i in range(16)]
        a('s_mov_b32 s24, %d', base)
    a('.p2align %d', OPT['lalign'])
    for _ in range(OPT['lpad']):
        a('s_nop 0')
    a.label('L_attloop')
    for st in range(2):
        for n in range(8):
            tile, qt = n >> 2, n & 3
            nst, ntile, nqt = (st, (n + 1) >> 2, (n + 1) & 3) if n < 7 else (st ^ 1, 0, 0)
            pst, ptile, pqt = (st, (n - 1) >> 2, (n - 1) & 3) if n > 0 else (st ^ 1, 1, 3)
            def ex(k):
                for e in range(4 * k, 4 * k + 4):
                    a('v_exp_f32 v%d, v%d', vS + 16 * qt + e, vS + 16 * qt + e)
            if n == 7:
                a('s_waitcnt vmcnt(7)')
            a(qk1(nst, ntile, nqt, nqt))
            if n == 1:
                a('s_add_u32 s%d, s%d, %d', sOFF, sOFF, BLK)
            if n == 2:
                a(kvload(st, K1A, sOFF))
            if n == 6:
                a(kvload(st, K1B, sOFF))
            if n == 5 and OPT['fine'] == 3:
                a('s_memtime s[98:99]')
                a('s_memrealtime s[100:101]')
            if n == 6 and OPT['fine'] == 3:
                a('s_waitcnt lgkmcnt(0)')
                a('s_mov_b32 m0, s24')
                a('s_add_u32 s25, s24, 32')
                a('v_writelane_b32 v%d, s98, m0', vTS)
                a('s_mov_b32 m0, s25')
                a('s_add_u32 s24, s24, 1')
                a('v_writelane_b32 v%d, s100, m0', vTS)
            ex(0)
            a(qk2(nst, ntile, nqt, nqt))
            if n == 6:
                a(kvload(st, K2, sOFF))
            if n == 1 and st == 0:
                a('s_cmp_eq_u32 s%d, s%d', sOFF, sKVE)
                a('s_cselect_b32 s%d, s%d, s%d', sOFF, sKVB, sOFF)
            ex(1)
            a(pv(pst, ptile, pqt, 1))
            if n == 0:
                a(kvload(st ^ 1, VB1, sOFF))
            if n == 4:
                a(kvload(st, VA1, sOFF))
            if n == 1 and st == 0:
                a('s_cmp_eq_u32 s%d, s%d', sOFF, sKV0)
                a('s_cselect_b32 s%d, s%d, s%d', sOFF, sCNT, sOFF)
            if st == 1 and n == 7:
                a('s_cmp_lt_u32 s%d, s%d', sOFF, sCNT)
            ex(2)
            if n == 4:
                a('s_waitcnt vmcnt(10)')
            a(pv(st, tile, qt, 0))
            if n == 3:
                a(kvload(st, VA0, sOFF))
            if n == 7:
                a(kvload(st, VB0, sOFF))
            ex(3)
    a('s_cbranch_scc1 L_attloop')
    a('s_nop 0')
    a(pv(1, 1, 3, 1))
    stamp('A', 'attloop')
    if OPT['tprio']:
        a('s_setprio 2')
    a('ds_read_b32 v%d, v%d', vT + 12, vMG + 5)
    a('s_mov_b32 s36, 0x%x', f2u(2.0 ** -4))
    a('s_mov_b32 s37, 0x%x', f2u(2.0 ** 96))
    a('s_cmp_eq_u32 s%d, 0', sPASS)
    a('s_cbranch_scc0 L_attok')
    a('v_min3_f32 v%d, v%d, v%d, v%d', vT + 8, vO + 8, vO + 24, vO + 40)
    a('v_add_f32 v%d, v%d, v%d', vT + 9, vO + 8, vO + 24)
    a('v_add_f32 v%d, v%d, v%d', vT + 9, vT + 9, vO + 40)
    a('s_nop 3')
    a('v_min_f32 v%d, v%d, v%d', vT + 8, vT + 8, vO + 56)
    a('v_add_f32 v%d, v%d, v%d', vT + 9, vT + 9, vO + 56)
    a('v_cmp_nle_f32 s[38:39], s36, v%d', vT + 8)
    a('v_cmp_nge_f32 vcc, s37, v%d', vT + 9)
    a('s_or_b32 s39, s39, vcc_hi')
    if OPT['force_fb']:
        a('s_cmp_eq_u32 s%d, 0', sPASS)
    a('s_cbranch_scc0 L_attok')
    a.c('fallback: exact row maximum over this wave\'s keys, then redo the pass')
    a('s_mov_b32 s%d, 1', sPASS)
    a('s_waitcnt vmcnt(0) lgkmcnt(0)')
    a('v_mov_b32 v%d, 0', vT + 8)
    for qt in range(4):
        a('v_cndmask_b32 v%d, v%d, v%d, s[%d:%d]', vQ2 + 2 * qt, vQ2 + 2 * qt, vT + 8, sHI, sHI + 1)
        a('v_mov_b32 v%d, 0xff800000', vM + qt)
    a('s_mov_b32 s%d, s%d', sOFF, sKVB)
    a('s_mov_b32 s%d, 16', sCNT)
    a.label('L_maxloop')
    for w_ in (K1A, K1B, K2):
        a(kvload(0, w_, sOFF))
    a('s_waitcnt vmcnt(0)')
    for tile in range(2):
        for qt in range(4):
            a(qk1(0, tile, qt, qt))
            a(qk2(0, tile, qt, qt))
        a('s_nop 5')
        for qt in range(4):
            maxtree(vM + qt, vS + 16 * qt, True)
    a('s_add_u32 s%d, s%d, %d', sOFF, sOFF, BLK)
    a('s_sub_u32 s%d, s%d, 1', sCNT, sCNT)
    a('s_cmp_lg_u32 s%d, 0', sCNT)
    a('s_cbranch_scc1 L_maxloop')
    for i in range(64):
        a('v_mov_b32 v%d, 0', vO + i)
    a('s_branch L_attload')
    a.label('L_attok')
    a('s_waitcnt lgkmcnt(0)')
    a('v_cmp_gt_u32 vcc, 14, v%d', vT + 12)
    a('s_cbranch_vccz L_sready')
    waitpw(vMG + 5, 14, vT + 8)
    a.label('L_sready')
    a('ds_write_b64 v%d, %s offset:6144', vMG + 1, v(vNC + 2, 2))
    for t in range(2):
        for q in range(3):
            a('ds_write_b128 v%d, %s offset:%d', vMG, v(vO + 32 + 16 * t + 4 * q, 4), 1024 * (3 * t + q))
    setpw(6, vT + 8)
    waitpw(vMG + 4, 6, vT + 8)
    R = vS
    NC2 = vS + 32
    a('ds_read_b64 %s, v%d offset:6144', v(NC2, 2), vMG + 3)
    for t in range(2):
        a('ds_read_b128 %s, v%d offset:%d', v(R + 16 * t + 8, 4), vMG + 2, 1024 * (3 * t + 2))
    for t in range(2):
        for q in range(2):
            a('ds_read_b128 %s, v%d offset:%d', v(R + 16 * t + 4 * q, 4), vMG + 2, 1024 * (3 * t + q))
    setpw(7, vT + 9)
    f1, f2, l1, l2 = vS + 34, vS + 36, vS + 38, vS + 40
    a('s_waitcnt lgkmcnt(7)')
    for t in range(2):
        a('v_min_f32 v%d, v%d, v%d', l1 + t, vNC + t, NC2 + t)
    for t in range(2):
        a('v_sub_f32 v%d, v%d, v%d', f1 + t, l1 + t, vNC + t)
        a('v_sub_f32 v%d, v%d, v%d', f2 + t, l1 + t, NC2 + t)
    for t in range(2):
        a('v_exp_f32 v%d, v%d', f1 + t, f1 + t)
        a('v_exp_f32 v%d, v%d', f2 + t, f2 + t)
    a('s_waitcnt lgkmcnt(5)')
    for t in range(2):
        a('v_mul_f32 v%d, v%d, v%d', l1 + t, f1 + t, vO + 16 * t + 8)
    for t in range(2):
        a('v_fmac_f32 v%d, v%d, v%d', l1 + t, f2 + t, R + 16 * t + 8)
    for t in range(2):
        a('v_mov_b32 v%d, v%d', l2 + t, l1 + t)
    a('s_nop 0')
    for t in range(2):
        a('v_permlane32_swap_b32 v%d, v%d', l1 + t, l2 + t)
    for t in range(2):
        a('v_rcp_f32 v%d, v%d', l2 + t, l2 + t)
    a('s_waitcnt vmcnt(0) lgkmcnt(0)')
    for t in range(2):
        a('v_mul_f32 v%d, v%d, v%d', f1 + t, f1 + t, l2 + t)
        a('v_mul_f32 v%d, v%d, v%d', f2 + t, f2 + t, l2 + t)
    P = vO + 32
    for t in range(2):
        if OPT['pkmerge']:
            sel = 'op_sel:[%d,0] op_sel_hi:[%d,1]' % (t, t)
            sel3 = 'op_sel:[%d,0,0] op_sel_hi:[%d,1,1]' % (t, t)
            for r in range(0, 12, 2):
                a('v_pk_mul_f32 %s, %s, %s %s', v(vO + 16 * t + r, 2), v(f1, 2), v(vO + 16 * t + r, 2), sel)
            for r in range(0, 12, 2):
                a('v_pk_fma_f32 %s, %s, %s, %s %s', v(vO + 16 * t + r, 2), v(f2, 2), v(R + 16 * t + r, 2), v(vO + 16 * t + r, 2), sel3)
        else:
            for r in range(12):
                a('v_mul_f32 v%d, v%d, v%d', vO + 16 * t + r, f1 + t, vO + 16 * t + r)
            for r in range(12):
                a('v_fmac_f32 v%d, v%d, v%d', vO + 16 * t + r, f2 + t, R + 16 * t + r)
        for q in range(6):
            a('v_cvt_pk_bf16_f32 v%d, v%d, v%d', P + 8 * t + q, vO + 16 * t + 2 * q, vO + 16 * t + 2 * q + 1)
        a('buffer_store_dwordx4 %s, v%d, s[%d:%d], s%d offen sc1', v(P + 8 * t, 4), vMG + 6, RWS, RWS + 3, 41 + t)
    a('s_nop 0')
    a('v_permlane32_swap_b32 v%d, v%d', P + 4, P + 12)
    a('v_permlane32_swap_b32 v%d, v%d', P + 5, P + 13)
    a('buffer_store_dwordx2 %s, v%d, s[%d:%d], s40 offen offset:512 sc1', v(P + 4, 2), vMG + 7, RWS, RWS + 3)
    if OPT['tprio'] == 2:
        a('s_setprio 0')
    if OPT['pgate']:
        setpw(8, vT + 8)
        a('ds_read_b32 v%d, v%d', 99, vAPW)
    stamp('A', 'merge')

def p3_static(vA0, vA1, vOA, acc):
    EP = OPT['epoll']
    if not EP:
        a('s_waitcnt vmcnt(0)')
        stamp('A', 'odrain')
        setflag(43, 1)
    NB = 7
    def reads(ks):
        f = 100 + 20 * (ks % NB)
        base, off = (vA0, ks * 5120) if ks < 10 else (vA1, (ks - 10) * 5120)
        return ['ds_read_b64_tr_b16 %s, v%d offset:%d' % (v(f + 4 * j + 2 * rd, 2), base, off + 1280 * rd + 32 * j)
                for j in range(5) for rd in range(2)]
    pl = 'buffer_load_dword v252, v%d, s[%d:%d], s88 offen sc1' % (vOA + 1, RWS, RWS + 3)
    def oload(ks):
        a('buffer_load_dwordx4 %s, v%d, s[%d:%d], s85 offen offset:%d sc1', v(4 * ks, 4), vOA, RWS, RWS + 3, 1024 * (ks & 3))
        if ks & 3 == 3 and ks < 19:
            a('s_add_u32 s85, s85, 4096')
    LEAD = OPT['olead']
    touch_ = 'buffer_load_dword v251, v248, s[%d:%d], s85 offen sc1' % (RWS, RWS + 3)
    NP = OPT['npre'] if EP else 0
    rest = [r for ks in range(NP, NB) for r in reads(ks)]
    if EP:
        for ks in range(NP):
            for r in reads(ks):
                a(r)
        if OPT['pgate']:
            a('s_waitcnt lgkmcnt(0)')
            a('v_cmp_gt_u32 vcc, 8, v99')
            a('s_cbranch_vccz L_epoll')
            a('s_waitcnt vmcnt(0)')
            stamp('A', 'odrain')
            if DIAG:
                nstamp['A'].pop()
            setflag(43, 2)
            a('s_mov_b32 vcc_lo, -1')
            a('s_mov_b32 vcc_hi, 0')
            a('s_branch L_f4late')
            a.label('L_epoll')
        a('s_mov_b32 exec_hi, 0')
        a(pl)
        a('s_waitcnt vmcnt(1)')
        stamp('A', 'odrain')
        setflag(43, 2)
        a('s_mov_b32 exec_hi, 0')
        a('s_waitcnt vmcnt(1)')
        a('v_cmp_eq_u32 vcc, 0, v252')
        a('s_mov_b64 exec, -1')
        a('s_cbranch_vccnz L_f4late')
        stamp('A', 'f4')
        if DIAG:
            nstamp['A'].pop()
        a(touch_)
        k = 0
        for ks in range(LEAD):
            oload(ks)
            while k < len(rest) * (ks + 1) // LEAD:
                a(rest[k])
                k += 1
        a('s_branch L_p3go')
        a.label('L_f4late')
    for r in rest:
        a(r)
    if OPT['pgate']:
        a('s_mov_b64 s[38:39], vcc')
        waitpw(vAPW, 8, 99, sleep=1)
        a('s_mov_b64 vcc, s[38:39]')
    if EP:
        a('s_mov_b64 exec, vcc')
    else:
        a('s_mov_b32 exec_hi, 0')
    pollflags([pl], 252, sleep=OPT['psleep4'])
    stamp('A', 'f4')
    a(touch_)
    for ks in range(LEAD):
        oload(ks)
    a.label('L_p3go')
    a('s_waitcnt lgkmcnt(0)')
    nl = LEAD
    a('v_mov_b32 v248, 9')
    lq = []
    if nl == 20:
        a('ds_write_b32 v%d, v248', vPW)
    pend = []
    for ks in range(20):
        w_ = 's_waitcnt vmcnt(%d)' % (nl - 1 - ks)
        if ks in lq:
            idx = max(i for i, x in enumerate(lq) if x == ks)
            w_ += ' lgkmcnt(%d)' % min(15, len(lq) - 1 - idx)
        a(w_)
        if OPT['fine'] in (1, 2) and ks in (0, 10, 19):
            stamp('A', 'p3k%d' % ks)
        rr = reads(ks + NB) if ks + NB < 20 else []
        for j in range(5):
            a('v_mfma_f32_16x16x32_bf16 %s, %s, %s, %s', v(acc + 4 * j, 4), v(4 * ks, 4), v(100 + 20 * (ks % NB) + 4 * j, 4),
              '0' if ks == 0 else v(acc + 4 * j, 4))
            for tg, r in pend:
                a(r)
                lq.append(tg)
            pend = [(ks + NB, r) for r in rr[2 * j:2 * j + 2]]
            if j in (0, 3) and nl < 20 and (j == 0 or ks % 2 == 0):
                oload(nl)
                nl += 1
                if nl == 20:
                    a('ds_write_b32 v%d, v248', vPW)
                    lq.append('w')

def p3_groups(vA0, vOA, acc):
    WF, vAN = 100, 241
    sP, sG, sM, sKEY, sC = 4, 5, 6, 7, 8
    pl = 'buffer_load_dword v252, v%d, s[%d:%d], s88 offen sc1' % (vOA + 1, RWS, RWS + 3)
    for g in range(4):
        a('s_sub_u32 s%d, %d, s%d', sC + g, g, sOG)
        a('s_and_b32 s%d, s%d, 3', sC + g, sC + g)
        a('s_lshl2_add_u32 s%d, s%d, %d', sC + g, sC + g, g)
    a('v_mov_b32 v248, 9')
    a('s_waitcnt lgkmcnt(0)')
    a('v_cmp_gt_u32 vcc, 8, v99')
    a('s_cbranch_vccz L_epoll')
    a('s_waitcnt vmcnt(0)')
    stamp('A', 'odrain')
    if DIAG:
        nstamp['A'].pop()
    setflag(43, 2)
    waitpw(vAPW, 8, 99, sleep=1)
    a('s_mov_b32 exec_hi, 0')
    a(pl)
    a('s_waitcnt vmcnt(0)')
    a('s_branch L_polled')
    a.label('L_epoll')
    a('s_mov_b32 exec_hi, 0')
    a(pl)
    a('s_waitcnt vmcnt(1)')
    stamp('A', 'odrain')
    setflag(43, 2)
    a('s_mov_b32 exec_hi, 0')
    a('s_waitcnt vmcnt(1)')
    a.label('L_polled')
    a('v_cmp_eq_u32 vcc, 0, v252')
    a('s_mov_b64 exec, -1')
    a('s_mov_b32 s%d, vcc_lo', sP)
    def reads(k):
        return ['ds_read_b64_tr_b16 %s, v%d offset:%d' % (v(WF + 20 * k + 4 * j + 2 * rd, 2), vAN, 5120 * k + 1280 * rd + 32 * j)
                for j in range(5) for rd in range(2)]
    def issue(sl):
        for k in range(5):
            a('buffer_load_dwordx4 %s, v%d, s[%d:%d], s%d offen offset:%d sc1', v(20 * sl + 4 * k, 4), vOA, RWS, RWS + 3,
              12 if k < 4 else 13, 1024 * (k & 3))
        if sl == 3:
            a('ds_write_b32 v%d, v248', vPW)
    for sl in range(-1, 4):
        nx = sl + 1
        Lw, Lc, Ld = a.newlabel('gw'), a.newlabel('gc'), a.newlabel('gd')
        if nx < 4:
            for g in range(4):
                a('s_bfe_u32 s14, s%d, 0x%x', sP, (8 << 16) | (8 * g))
                a('s_bcnt1_i32_b32 s14, s14')
                if g == 0:
                    a('s_lshl4_add_u32 s%d, s14, s%d', sKEY, sC)
                else:
                    a('s_lshl4_add_u32 s14, s14, s%d', sC + g)
                    a('s_min_u32 s%d, s%d, s14', sKEY, sKEY)
            a('s_and_b32 s%d, s%d, 3', sG, sKEY)
            a('s_mul_i32 s12, s%d, 5120', sG)
            a('s_add_u32 s12, s12, s85')
            a('s_add_u32 s13, s12, 4096')
            a('s_cmp_lt_u32 s%d, 16', sKEY)
            a('s_cbranch_scc0 %s', Lw)
            issue(nx)
            if sl >= 0:
                a('s_waitcnt vmcnt(5)')
            a('s_branch %s', Lc)
            a.label(Lw)
            a('s_mov_b32 exec_lo, s%d', sP)
            a('s_mov_b32 exec_hi, 0')
            a(pl)
            a('s_mov_b64 exec, -1')
            if sl >= 0:
                a('s_waitcnt vmcnt(1)')
            a.label(Lc)
            a('s_mul_i32 s14, s%d, 25600', sG)
            a('v_add_u32 v%d, s14, v%d', vAN, vA0)
            if nx < 3:
                for g in range(4):
                    a('s_cmp_eq_u32 s%d, %d', sG, g)
                    a('s_cselect_b32 s%d, 0x1000, s%d', sC + g, sC + g)
        if sl < 0:
            for k in range(5):
                for r in reads(k):
                    a(r)
        else:
            pend = []
            for k in range(5):
                if nx == 4:
                    a('s_waitcnt vmcnt(%d) lgkmcnt(%d)', 4 - k, 0 if k >= 3 else 15)
                else:
                    a('s_waitcnt lgkmcnt(15)')
                rr = reads(k) if nx < 4 else []
                for j in range(5):
                    a('v_mfma_f32_16x16x32_bf16 %s, %s, %s, %s', v(acc + 4 * j, 4), v(20 * sl + 4 * k, 4), v(WF + 20 * k + 4 * j, 4),
                      '0' if (sl == 0 and k == 0) else v(acc + 4 * j, 4))
                    for r in pend:
                        a(r)
                    pend = rr[2 * j:2 * j + 2]
            for r in pend:
                a(r)
        if nx < 4:
            a('s_cmp_lt_u32 s%d, 16', sKEY)
            a('s_cbranch_scc1 %s', Ld)
            L1, L2 = a.newlabel('gp'), a.newlabel('gq')
            a('s_lshl_b32 s14, s%d, 3', sG)
            a('s_lshl_b32 s%d, 0xff, s14', sM)
            a('s_mov_b32 exec_lo, s%d', sP)
            a('s_mov_b32 exec_hi, 0')
            a.label(L1)
            a('s_waitcnt vmcnt(0)')
            a('v_cmp_eq_u32 vcc, 0, v252')
            a('s_and_b32 s14, vcc_lo, s%d', sM)
            a('s_cbranch_scc0 %s', L2)
            a('s_mov_b64 exec, vcc')
            if OPT['psleep4']:
                a('s_sleep %d', OPT['psleep4'])
            a(pl)
            a('s_sub_u32 s%d, s%d, 1', sSPIN, sSPIN)
            a('s_cbranch_scc0 %s', L1)
            a('s_endpgm')
            a.label(L2)
            a('s_mov_b32 s%d, vcc_lo', sP)
            a('s_mov_b64 exec, -1')
            issue(nx)
            a.label(Ld)
            if nx == 3:
                stamp('A', 'f4')

def a_outproj():
    vA0, vA1, vOA, vST = 240, 241, 242, 244
    a('v_lshrrev_b32 v1, 5, v%d', vLANE)
    a('v_bfe_u32 v2, v%d, 2, 3', vLANE)
    a('v_lshl_add_u32 v1, v1, 4, v2')
    a('v_mul_u32_u24 v1, 160, v1')
    a('v_and_b32 v2, 3, v%d', vLANE)
    a('v_lshl_add_u32 v%d, v2, 3, v1', vA0)
    a('v_add_u32 v%d, %d, v%d', vA1, 10 * 5120, vA0)
    a('v_lshlrev_b32 v%d, 4, v%d', vOA, vLANE)
    a('v_lshrrev_b32 v1, 4, v%d', vLANE)
    a('v_mul_u32_u24 v1, %d, v1', 4 * 5120)
    a('v_and_b32 v2, 15, v%d', vLANE)
    a('v_lshl_add_u32 v%d, v2, 2, v1', vST)
    for r in range(1, 4):
        a('v_add_u32 v%d, %d, v%d', vST + r, 5120 * r, vST)
    a('s_mul_i32 s84, s%d, 2560', sOG)
    a('v_min_u32 v248, 19, v%d', vLANE)
    a('v_lshl_add_u32 v248, v248, 7, s84')
    a('s_lshl2_add_u32 s84, s%d, s%d', sTB, sW)
    a('s_mul_i32 s85, s84, %d', OBLK)
    a('s_add_u32 s85, s85, 0x%x', WS_O)
    a('s_mul_i32 s86, s84, %d', 16 * 5120)
    a('s_mul_i32 s88, s%d, 320', sOG)
    a('s_add_u32 s86, s86, s88')
    a('v_lshlrev_b32 v%d, 7, v%d', vOA + 1, vLANE)
    a('s_lshl_b32 s88, s%d, 12', sTB)
    a('s_add_u32 s88, s88, 0x%x', F4)
    acc = 80
    if OPT['p3dyn']:
        p3_groups(vA0, vOA, acc)
    else:
        p3_static(vA0, vA1, vOA, acc)
    a('s_nop 3')
    for j in range(5):
        for r in range(4):
            a('buffer_store_dword v%d, v%d, s[%d:%d], s86 offen offset:%d%s', acc + 4 * j + r, vST + r, R4, R4 + 3, 64 * j, OSC)
    finish('A')

vXR, vBR, vA0PW = 96, 100, 107
vL, vE, vHW, vHR0, vHR1, vHS, vCH, vCHL, vHH, vP01, vTCH, vHINT = 146, 150, 151, 152, 153, 154, 155, 156, 157, 158, 159, 160
vDX, vDW, vDBX, vDBB = 161, 165, 169, 173
vZ, vWOA, vPAR = 176, 186, 200
vCA, vCR, vHA, vF3, vXO, vDO, vC16, vAM, vOA, vRA = 224, 226, 228, 229, 230, 231, 232, 233, 234, 235
vR1W, vR1R, vR2W, vPW1, vPW2, vS2PW, vHT, vCT = 237, 238, 239, 240, 241, 242, 243, 244
vSPW = 252
L_Z, L_H = L_HT + 1024, 124928
SENT = 0xffffffff

def s_stage(t, emit=None):
    out = []
    slot = (t % 4) * 32768
    if OPT['stag'] >= 5 and t < 10:
        base, size = {0: (0, 4), 1: (4, 4), 2: (8, 2)}[t // 4] if OPT['stag'] != 7 else ((0, 2) if t < 2 else ((2, 4) if t < 6 else (6, 4)))
        out += ['s_add_u32 s82, s81, %d' % t, 's_and_b32 s82, s82, %d' % (size - 1), 's_add_u32 s82, s82, %d' % base,
                's_add_u32 s82, s82, s85', 's_cmp_ge_u32 s82, 10', 's_cselect_b32 s83, 10, 0', 's_sub_u32 s82, s82, s83']
    out.append('s_add_u32 m0, s74, %d' % slot)
    out.append('s_lshl_b32 s83, s82, 7')
    out.append('s_add_u32 s76, s72, s83')
    if t < 10:
        out += [dma(vDX + i, R0, 76, 1024 * i) for i in range(4)]
        out.append('s_add_u32 m0, s74, %d' % (slot + 16384))
        out.append('s_mul_i32 s83, s82, 245760')
        out.append('s_add_u32 s76, s73, s83')
        out += [dma(vDW + i, R1, 76, 1024 * i) for i in range(4)]
    else:
        out += [dma(vDBX + i, R3, 76, 1024 * i) for i in range(4)]
        out.append('s_add_u32 m0, s75, %d' % (slot + 16384))
        out.append('s_add_u32 s76, s77, s83')
        out += [dma(vDBB + i, R4, 76, 1024 * i) for i in range(3)]
    out.append('s_add_u32 s82, s82, 1')
    out.append('s_cmp_eq_u32 s82, 10')
    out.append('s_cselect_b32 s82, 0, s82')
    if emit is None:
        L = a.newlabel('skip')
        if t < 10:
            a('s_cmp_eq_u32 s%d, 15', sCG)
            a('s_cbranch_scc1 %s', L)
        for o in out:
            a(o)
        if t < 10:
            a.label(L)
    return out

def ninstr(t):
    return 0 if t > 19 else (8 if t < 10 else 7)

def exp_acc(dst, x, t1, t2):
    L2E = math.log2(math.e)
    hi = struct.unpack('<f', struct.pack('<f', L2E))[0]
    a('s_mov_b32 s80, 0x%x', f2u(hi))
    a('v_mul_f32 v%d, s80, v%d', t1, x)
    a('v_fma_f32 v%d, v%d, s80, -v%d', t2, x, t1)
    a('v_fmac_f32 v%d, 0x%x, v%d', t2, f2u(L2E - hi), x)
    a('v_exp_f32 v%d, v%d', dst, t1)
    a('v_mul_f32 v%d, 0x%x, v%d', t2, f2u(math.log(2.0)), t2)
    a('v_fmac_f32 v%d, v%d, v%d', dst, dst, t2)

def s_setup():
    a.label('L_roleS')
    a('s_sub_u32 s%d, s%d, 4', sW, sW)
    a('v_lshrrev_b32 v1, 3, v%d', vLANE)
    a('v_and_b32 v2, 7, v%d', vLANE)
    a('v_lshrrev_b32 v3, 4, v%d', vLANE)
    a('v_xor_b32 v4, v2, v3')
    a('v_mul_u32_u24 v5, 1280, v1')
    a('v_lshl_add_u32 v%d, v4, 4, v5', vDX)
    a('v_xor_b32 v6, 64, v%d', vDX)
    a('v_add_u32 v%d, %d, v6', vDX + 1, 10240 - 1024)
    a('v_add_u32 v%d, %d, v%d', vDX + 2, 2 * (10240 - 1024), vDX)
    a('v_add_u32 v%d, %d, v6', vDX + 3, 3 * (10240 - 1024))
    a('v_and_b32 v7, 15, v%d', vLANE)
    a('v_lshlrev_b32 v8, 2, v3')
    a('v_xor_b32 v7, v7, v8')
    a('v_mul_u32_u24 v8, 3840, v3')
    a('v_lshl_add_u32 v%d, v7, 4, v8', vDW)
    for i in range(1, 4):
        a('v_add_u32 v%d, %d, v%d', vDW + i, (15360 - 1024) * i, vDW)
    a('s_lshl2_add_u32 s72, s%d, s%d', sRB, sW)
    a('s_mul_i32 s72, s72, %d', 32 * 1280)
    a('s_mul_i32 s73, s%d, %d', sW, 16 * 3840)
    a('s_lshl_b32 s70, s%d, 8', sCG)
    a('s_add_u32 s73, s73, s70')
    a('s_lshl_b32 s74, s%d, 12', sW)
    if OPT['stag'] <= 4:
        stagger(82, 83, 0, 0, OPT['stag'])
    else:
        a('s_add_u32 s81, s%d, s%d', sI, sOG)
        a('s_add_u32 s85, s%d, 1', sXCD)
        a('s_lshr_b32 s85, s85, 1')
        a('s_mul_i32 s85, s85, %d', 2 if OPT['stag'] == 5 else 0)
    a('s_waitcnt lgkmcnt(0)')
    srd(R0, sAX, 2048 * 1280)
    srd(R1, sWQ, 640 * 3840)
    if DIAG:
        ws_setup()
    stamp('S', 'start')
    s_stage(0)
    if not DIAG:
        prologue2()
        a('s_waitcnt lgkmcnt(0)')
        ws_setup()
    if OPT['fine'] == 1:
        stamp('S', 'iss0')
    a('s_mul_i32 s70, s%d, 40', sCG)
    a('v_min_u32 v9, 39, v%d', vLANE)
    a('v_add_lshl_u32 v9, v9, s70, 1')
    a('global_load_ushort v10, v9, s[%d:%d]', sLDT, sLDT + 1)
    a('global_load_ushort v11, v9, s[%d:%d]', sLRE, sLRE + 1)
    a('global_load_ushort v12, v9, s[%d:%d]', sLIM, sLIM + 1)
    b1_sources(R3, R4, vDBX, vDBB, 75, 77, 70)
    a('v_and_b32 v5, 3, v%d', vLANE)
    a('v_lshlrev_b32 v5, 8, v5')
    a('v_lshl_add_u32 v5, v%d, 2, v5', vLANE)
    a('v_add_u32 v%d, %d, v5', vSPW, L_PW + 1024)
    s_addresses()
    s_stage(1)
    if OPT['fine'] == 1:
        stamp('S', 'iss1')
    a('s_waitcnt vmcnt(11)')
    stamp('S', 'st0')
    a('s_barrier')
    s_stage(2)
    a('s_waitcnt vmcnt(8)')
    a('s_barrier')
    s_stage(3)
    s_stage(4)

def s_addresses():
    c, g, t0, t1, t2 = 40, 41, 42, 43, 44
    a('v_and_b32 v%d, 15, v%d', c, vLANE)
    a('v_lshrrev_b32 v%d, 4, v%d', g, vLANE)
    a('v_lshrrev_b32 v%d, 1, v%d', t0, c)
    a('v_xor_b32 v%d, v%d, v%d', t0, t0, g)
    a('v_lshlrev_b32 v%d, 4, v%d', t0, t0)
    a('v_lshl_add_u32 v%d, v%d, 7, v%d', t0, c, t0)
    a('v_xor_b32 v%d, 64, v%d', t1, t0)
    a('v_add_u32 v%d, s74, v%d', vXR, t0)
    a('v_add_u32 v%d, s74, v%d', vXR + 1, t1)
    a('s_mul_i32 s70, s%d, %d', sW, REGSZ)
    a('s_add_u32 s70, s70, %d', L_REG)
    a('v_add_u32 v%d, s70, v%d', vCR, t0)
    a('v_add_u32 v%d, s70, v%d', vCR + 1, t1)
    a('v_lshrrev_b32 v%d, 3, v%d', t2, c)
    a('v_lshl_add_u32 v%d, v%d, 12, v%d', t0, t2, t0)
    a('v_add_u32 v%d, 16384, v%d', vBR, t0)
    a('v_xor_b32 v%d, 64, v%d', vBR + 1, vBR)
    for k in range(2):
        a('v_add_u32 v%d, 0x10000, v%d', vXR + 2 + k, vXR + k)
        a('v_add_u32 v%d, 0x10000, v%d', vBR + 2 + k, vBR + k)
    a('v_and_b32 v%d, 7, v%d', t0, vLANE)
    a('v_lshlrev_b32 v%d, 2, v%d', t2, t2)
    a('v_lshl_add_u32 v%d, v%d, 3, v%d', t0, t0, t2)
    a('v_add_u32 v%d, %d, v%d', vHH, L_H, t0)
    a('v_mul_u32_u24 v%d, 320, v%d', t1, g)
    a('s_mul_i32 s71, s%d, 1280', sW)
    a('s_add_u32 s71, s71, %d', L_EL)
    a('v_add3_u32 v%d, v%d, v%d, s71', vE, t0, t1)
    a('v_lshlrev_b32 v%d, 3, v%d', vCH, vLANE)
    a('v_add_u32 v%d, %d, v%d', vCHL, L_H, vCH)
    a('v_lshlrev_b32 v%d, 9, v%d', vHINT, vLANE)
    a('v_lshlrev_b32 v%d, 2, v%d', vA0PW, vLANE)
    a('v_add_u32 v%d, %d, v%d', vA0PW, L_PW, vA0PW)
    a('v_add_u32 v%d, %d, v%d', vS2PW, 1024 + 512, vA0PW)
    a('v_and_b32 v%d, 0x%x, v%d', vP01, 0xffffffff ^ 512, vSPW)
    a('v_xor_b32 v%d, 256, v%d', vPW1, vPW)
    a('v_xor_b32 v%d, 512, v%d', vPW2, vPW)
    a('v_and_b32 v%d, 1, v%d', t0, vLANE)
    a('v_lshlrev_b32 v%d, 9, v%d', t0, t0)
    a('v_xor_b32 v%d, v%d, v%d', t0, t0, vPW)
    a('v_subrev_u32 v%d, 1024, v%d', vAM, t0)
    a('v_mov_b32 v%d, 16', vC16)
    a('v_bfe_u32 v%d, v%d, 1, 2', t0, vLANE)
    a('v_xor_b32 v%d, v%d, v%d', t0, t0, g)
    a('v_lshlrev_b32 v%d, 4, v%d', t0, t0)
    a('s_mul_i32 s71, s%d, 5120', sW)
    a('s_add_u32 s71, s71, %d', L_HT)
    a('v_lshl_add_u32 v%d, v%d, 6, v%d', t0, c, t0)
    a('v_add_u32 v%d, s71, v%d', vHW, t0)
    a('v_bfe_u32 v%d, v%d, 2, 2', t0, vLANE)
    a('v_lshrrev_b32 v%d, 5, v%d', t1, vLANE)
    a('v_lshl_add_u32 v%d, v%d, 3, v%d', vHR0, t1, t0)
    a('v_lshlrev_b32 v%d, 6, v%d', vHR0, vHR0)
    a('v_mul_u32_u24 v%d, %d, v%d', vHS, 80 * 256, t1)
    a('v_lshrrev_b32 v%d, 1, v%d', t0, t0)
    a('v_bfe_u32 v%d, v%d, 4, 1', t1, vLANE)
    a('v_bfe_u32 v%d, v%d, 1, 1', t2, vLANE)
    a('v_lshl_add_u32 v%d, v%d, 1, v%d', t2, t1, t2)
    a('v_xor_b32 v%d, v%d, v%d', t2, t2, t0)
    a('v_lshl_add_u32 v%d, v%d, 4, v%d', vHR0, t2, vHR0)
    a('v_and_b32 v%d, 1, v%d', t2, vLANE)
    a('v_lshl_add_u32 v%d, v%d, 3, v%d', vHR0, t2, vHR0)
    a('v_xor_b32 v%d, 32, v%d', vHR1, vHR0)
    a('v_add_u32 v%d, s71, v%d', vHR0, vHR0)
    a('v_add_u32 v%d, s71, v%d', vHR1, vHR1)
    a('v_mul_u32_u24 v%d, %d, v%d', t1, HBLK, t1)
    a('v_lshl_add_u32 v%d, v%d, 4, v%d', t1, c, t1)
    a('v_add_u32 v%d, v%d, v%d', vHS, vHS, t1)
    a('v_mov_b32 v%d, v%d', vCA, vDX)
    a('v_mov_b32 v%d, v%d', vCA + 1, vDX + 1)
    a('v_lshlrev_b32 v%d, 4, v%d', vHA, vLANE)
    a('v_lshlrev_b32 v%d, 7, v%d', vF3, vLANE)
    a('v_min_u32 v%d, %d, v%d', vHT, 39 * 128, vF3)
    a('v_min_u32 v%d, %d, v%d', vTCH, 24 * 128, vF3)
    a('s_lshl2_add_u32 s71, s%d, s%d', sI, sW)
    a('s_mul_i32 s71, s71, 6400')
    a('v_add_u32 v%d, s71, v%d', vTCH, vTCH)
    a('v_min_u32 v%d, %d, v%d', vCT, 49 * 128, vF3)
    a('v_cmp_le_u32 vcc, 25, v%d', vLANE)
    a('v_add_u32 v%d, 3200, v%d', t0, vCT)
    a('s_and_b32 s71, s%d, 1', sW)
    a('v_cndmask_b32 v%d, v%d, v%d, vcc', vCT, vCT, t0)
    a('s_lshl1_add_u32 s71, s%d, s71', sI)
    a('s_mul_i32 s71, s71, 12800')
    a('v_add_u32 v%d, s71, v%d', vCT, vCT)
    a('s_xor_b32 s92, s%d, 1', sW)
    a('s_mul_i32 s92, s92, %d', REGSZ)
    a('s_add_u32 s92, s92, %d', L_REG)
    a('s_xor_b32 s93, s%d, 3', sW)
    a('s_mul_i32 s93, s93, %d', REGSZ)
    a('s_add_u32 s93, s93, %d', L_REG + 16 * 336)
    a('v_add_u32 v%d, s70, v%d', vR1W, vHA)
    a('v_add_u32 v%d, s92, v%d', vR1R, vHA)
    a('v_mul_u32_u24 v%d, 336, v%d', t0, c)
    a('v_and_b32 v%d, 48, v%d', t1, vLANE)
    a('v_add3_u32 v%d, v%d, v%d, s92', vR2W, t0, t1)
    a('v_lshrrev_b32 v%d, 2, v%d', t0, vLANE)
    a('v_and_b32 v%d, 3, v%d', t1, vLANE)
    a('v_lshlrev_b32 v%d, 3, v%d', vDO, t1)
    a('v_mul_u32_u24 v%d, 1280, v%d', t2, t0)
    a('v_add_u32 v%d, v%d, v%d', vXO, t2, vDO)
    a('v_lshlrev_b32 v%d, 4, v%d', t1, t1)
    a('v_lshl_add_u32 v%d, v%d, 2, v%d', vOA, t2, t1)
    a('v_mul_u32_u24 v%d, 336, v%d', t2, t0)
    a('v_add3_u32 v%d, v%d, v%d, s92', vRA, t2, t1)
    a('v_add3_u32 v%d, v%d, v%d, s93', vRA + 1, t2, t1)
    if not OPT['wopack']:
        s_wooffs()

def s_params():
    a('s_cmp_eq_u32 s%d, 0', sW)
    a('s_cbranch_scc0 L_nopar')
    for r in (10, 11, 12):
        a('v_lshlrev_b32 v%d, 16, v%d', r, r)
    exp_acc(13, 10, 14, 15)
    a('v_cvt_pk_bf16_f32 v13, v13, v13')
    a('v_and_b32 v13, 0xffff0000, v13')
    a('v_mul_f32 v14, v13, v11')
    a('v_mul_f32 v15, v13, v12')
    exp_acc(16, 14, 17, 18)
    I2P = 1.0 / (2 * math.pi)
    hi = struct.unpack('<f', struct.pack('<f', I2P))[0]
    a('s_mov_b32 s80, 0x%x', f2u(hi))
    a('v_mul_f32 v17, s80, v15')
    a('v_rndne_f32 v17, v17')
    a('v_fma_f32 v17, v15, s80, -v17')
    a('v_fmac_f32 v17, 0x%x, v15', f2u(I2P - hi))
    a('v_cos_f32 v20, v17')
    a('v_sin_f32 v21, v17')
    a('v_mul_f32 v18, v11, v11')
    a('v_fmac_f32 v18, v12, v12')
    a('v_rcp_f32 v19, v18')
    a('v_mul_f32 v20, v16, v20')
    a('v_mul_f32 v21, v16, v21')
    a('v_fma_f32 v18, -v18, v19, 1.0')
    a('v_fmac_f32 v19, v19, v18')
    a('v_add_f32 v19, v19, v19')
    a('v_add_f32 v17, -1.0, v20')
    a('v_mul_f32 v22, v17, v11')
    a('v_fmac_f32 v22, v21, v12')
    a('v_mul_f32 v23, v17, v12')
    a('v_fma_f32 v23, -v21, v11, v23')
    a('v_mul_f32 v22, v22, v19')
    a('v_mul_f32 v23, v23, v19')
    a('v_lshlrev_b32 v9, 4, v%d', vLANE)
    a('v_add_u32 v9, %d, v9', L_PAR)
    a('ds_write_b128 v9, v[20:23]')
    a('v_mov_b32 v24, v20')
    a('v_sub_f32 v25, 0, v21')
    for k in range(3):
        a('v_mul_f32 v26, v25, v25')
        a('v_add_f32 v27, v24, v24')
        a('v_fma_f32 v24, v24, v24, -v26')
        a('v_mul_f32 v25, v27, v25')
    a.label('L_nopar')

def s_params2():
    a('s_cmp_eq_u32 s%d, 0', sW)
    a('s_cbranch_scc0 L_nopar2')
    a('s_mov_b32 exec_hi, 0xff')
    a('v_mov_b32 v14, 1.0')
    a('v_mov_b32 v15, 0')
    a('ds_write_b64 v%d, v[14:15] offset:%d', vCHL, L_Z - L_H)
    a('ds_write_b64 v%d, v[24:25] offset:%d', vCHL, L_Z - L_H + 320)
    src = 24
    for sg in range(2, 17):
        dst = 16 + 2 * (sg % 3)
        a('v_mul_f32 v%d, v24, v%d', dst, src)
        a('v_mul_f32 v%d, v24, v%d', dst + 1, src + 1)
        a('v_fma_f32 v%d, -v25, v%d, v%d', dst, src + 1, dst)
        a('v_fmac_f32 v%d, v25, v%d', dst + 1, src)
        a('ds_write_b64 v%d, %s offset:%d', vCHL, v(dst, 2), L_Z - L_H + 320 * sg)
        src = dst
    a('s_mov_b32 exec_hi, -1')
    a('s_waitcnt lgkmcnt(0)')
    a.label('L_nopar2')

def s_wooffs():
    for i in range(5):
        a('v_add_u32 v40, %d, v%d', 64 * i, vLANE)
        a('v_mul_u32_u24 v41, 6554, v40')
        a('v_lshrrev_b32 v41, 16, v41')
        a('v_mul_u32_u24 v42, 10, v41')
        a('v_sub_u32 v40, v40, v42')
        tau(42, 41, 43)
        a('v_mul_u32_u24 v42, 1280, v42')
        a('v_lshl_add_u32 v%d, v40, 4, v42', vWOA + i)
        if 0 < i < 4:
            a('v_subrev_u32 v%d, %d, v%d', vWOA + i, 1024 * i, vWOA + i)

def s_qloader():
    early = {1: {7: 10}, 2: {7: 10, 9: 11}, 3: {7: 10, 8: 11, 9: 12}, 0: {}}[OPT['st10']]
    q = [2] * 8 + [3] * 8 + [4] * 8
    for st in range(2, 10):
        a('s_waitcnt vmcnt(%d)', len(q) - 1 - max(i for i, x in enumerate(q) if x == st))
        if OPT['fine'] == 1 and st in (3, 5, 7, 9):
            stamp('S', 'st%d' % st)
        a('s_barrier')
        if st == 6:
            a('v_and_b32 v32, 15, v%d', vLANE)
            a('v_lshlrev_b32 v32, 4, v32')
            a('v_mov_b32 v33, 1')
            a('s_cmp_eq_u32 s%d, 3', sW)
            a('s_cbranch_scc0 L_nodbg')
            a(dbgload(32, 33))
            a.label('L_nodbg')
            a('s_cmp_eq_u32 s%d, 15', sCG)
            a('s_cbranch_scc0 L_cw')
            a('s_waitcnt vmcnt(0)')
            a.label('L_cw')
        if st <= 6:
            s_stage(st + 3)
            q += [st + 3] * 8
        if st == OPT['pretouch']:
            a('s_cmp_eq_u32 s%d, 2', sW)
            a('s_cselect_b32 s70, s%d, s%d', sBRE, sBIM)
            a('s_cselect_b32 s71, s%d, s%d', sBRE + 1, sBIM + 1)
            a('s_mul_i32 s83, s2, 3200')
            a('s_lshl1_add_u32 s84, s2, s%d', sW)
            a('s_mul_i32 s84, s84, 5120')
            a('s_cmp_lt_u32 s%d, 2', sW)
            a('s_cselect_b32 s70, s%d, s70', sBX)
            a('s_cselect_b32 s71, s%d, s71', sBX + 1)
            a('s_cselect_b32 s83, s84, s83')
            a('s_cselect_b32 s84, 39, 24')
            a('v_min_u32 v30, s84, v%d', vLANE)
            a('v_lshl_add_u32 v30, v30, 7, s83')
            a('global_load_dword v31, v30, s[70:71]')
            q.append('t')
        if st == 7:
            stagger(82, 83, 0, OPT['flip'], OPT['stagb'])
        if st in early:
            s_stage(early[st])
            q += [early[st]] * 7
        if st == 7:
            s_params()
        if st == 8:
            s_params2()

    a('v_cmp_eq_u32 vcc, 0, v33')
    a('s_cbranch_vccz L_clrok')
    pollflags([dbgload(32, 33)], 33, sleep=8)
    a.label('L_clrok')
    a('s_barrier')
    stamp('S', 'qend')
    s_consts()

def s_consts():
    a('v_and_b32 v6, 7, v%d', vLANE)
    a('v_lshlrev_b32 v6, 4, v6')
    a('v_add_u32 v6, %d, v6', L_PAR)
    for j in range(5):
        a('ds_read_b128 %s, v6 offset:%d', v(vPAR + 4 * j, 4), 128 * j)
    a('v_and_b32 v7, -8, v%d', vE)
    a('v_subrev_u32 v7, %d, v7', L_EL - L_Z)
    for j in range(5):
        a('ds_read_b64 %s, v7 offset:%d', v(vZ + 2 * j, 2), 64 * j)
    a('s_cmp_eq_u32 s%d, 0', sW)
    a('s_cselect_b32 s70, 1, 16')
    a('s_mul_i32 s70, s70, 320')
    a('v_add_u32 v8, s70, v%d', vCHL)
    a('ds_read_b64 %s, v8 offset:%d', v(vL, 2), L_Z - L_H)
    a('v_bfe_u32 v5, v%d, 3, 1', vLANE)
    a('v_lshlrev_b32 v5, 31, v5')
    a('v_xor_b32 v4, 0x80000000, v5')
    a('s_waitcnt lgkmcnt(0)')
    for j in range(5):
        a('v_xor_b32 v%d, v5, v%d', vPAR + 4 * j + 1, vPAR + 4 * j + 1)
        a('v_xor_b32 v%d, v5, v%d', vPAR + 4 * j + 2, vPAR + 4 * j + 2)
        a('v_xor_b32 v%d, v4, v%d', vZ + 2 * j + 1, vZ + 2 * j + 1)

def touch(r, va=None):
    o = ['s_add_u32 s84, s%d, %d' % (sXCD, r),
         's_cmp_ge_u32 s84, 6', 's_cselect_b32 s85, 6, 0', 's_sub_u32 s84, s84, s85',
         's_cmp_ge_u32 s84, 6', 's_cselect_b32 s85, 6, 0', 's_sub_u32 s84, s84, s85',
         's_cmp_ge_u32 s84, 2',
         's_cselect_b32 s86, s%d, s%d' % (sCRE, sWO), 's_cselect_b32 s87, s%d, s%d' % (sCRE + 1, sWO + 1),
         's_cmp_ge_u32 s84, 4',
         's_cselect_b32 s86, s%d, s86' % sCIM, 's_cselect_b32 s87, s%d, s87' % (sCIM + 1),
         's_and_b32 s84, s84, 1', 's_mul_i32 s84, s84, 3200',
         's_add_u32 s86, s86, s84', 's_addc_u32 s87, s87, 0',
         'global_load_dword v109, v%d, s[86:87]' % (va or vTCH)]
    return o

def s_b1():
    F = [40, 68]
    def reads(t, ks, f):
        slot = t % 4
        hi, lo = slot >> 1, (slot & 1) * 32768
        r = ['ds_read_b128 %s, v%d offset:%d' % (v(f + 4 * T, 4), vXR + 2 * hi + ks, lo + 2048 * T) for T in range(2)]
        r += ['ds_read_b128 %s, v%d offset:%d' % (v(f + 8 + 4 * j, 4), vBR + 2 * hi + ks, lo + 1024 * j) for j in range(5)]
        return r
    def mfmas(f, first):
        return ['v_mfma_f32_16x16x32_bf16 %s, %s, %s, %s' % (v(8 * j + 4 * T, 4), v(f + 4 * T, 4), v(f + 8 + 4 * j, 4),
                '0' if first else v(8 * j + 4 * T, 4)) for j in range(5) for T in range(2)]
    def weave(ms, others):
        n = len(ms)
        k = 0
        for i_, m in enumerate(ms):
            a(m)
            while k < len(others) * (i_ + 1) // n:
                a(others[k])
                k += 1
    first = 10 + OPT['st10']
    a('s_lshl4_add_u32 s84, s%d, s%d', sCG, sRB)
    flagaddr(84, 84, F1, 85)
    a('s_waitcnt vmcnt(%d)', max(0, 7 * (first - 11)))
    a('s_barrier')
    for r in reads(10, 0, F[0]):
        a(r)
    for u in range(10):
        t = 10 + u
        if OPT['fine'] == 1 and u in (0, 2, 4, 6, 8):
            stamp('S', 'b1w%d' % u)
        a('s_waitcnt lgkmcnt(0)')
        m0_ = mfmas(F[0], u == 0)
        weave(m0_[:4], reads(t, 1, F[1]))
        for m in m0_[4:]:
            a(m)
        m1_ = mfmas(F[1], False)
        if u < 9:
            if t + 1 < first:
                a('s_waitcnt vmcnt(%d) lgkmcnt(0)', 7 * (first - t - 2))
            else:
                a('s_waitcnt lgkmcnt(0)')
            a('s_barrier')
            if t + 1 == first:
                a('s_cmp_eq_u32 s%d, 3', sW)
                a('s_cbranch_scc0 L_noflag')
                setflag(84, 104)
                a.label('L_noflag')
            weave(m1_[:4], reads(t + 1, 0, F[0]))
            for m in m1_[4:]:
                a(m)
        else:
            a('s_waitcnt lgkmcnt(0)')
            for m in m1_:
                a(m)
    stamp('S', 'b1gemm')

def rot5(dst, t):
    a('s_and_b32 s%d, s%d, 3', dst, sI)
    a('s_add_u32 s%d, s%d, s%d', dst, dst, sXCD)
    for _ in range(2):
        a('s_cmp_ge_u32 s%d, 5', dst)
        a('s_cselect_b32 s%d, 5, 0', t)
        a('s_sub_u32 s%d, s%d, s%d', dst, dst, t)
    if not OPT['rot5']:
        a('s_mov_b32 s%d, 0', dst)

def s_wo():
    if OPT['wopack']:
        a('s_mov_b32 s73, 0x%x', F1 + 15 * 16 * 128)
        a('s_mov_b64 exec, 0xffff')
        pollflags(['buffer_load_dword v40, v%d, s[%d:%d], s73 offen sc1' % (vF3, RWS, RWS + 3)], 40, sleep=4)
        rot5(83, 73)
        a('s_mul_i32 s75, s%d, 102400', sOG)
        a('s_add_u32 s75, s75, 0x%x', WS_WP)
        a('s_mov_b32 s77, 5')
        a.label('L_woloop')
        a('s_lshl2_add_u32 s78, s83, s%d', sW)
        a('s_mul_i32 s78, s78, 5120')
        a('s_add_u32 s79, s78, s75')
        a('s_mov_b32 m0, s78')
        for i in range(5):
            if i == 4:
                a('s_add_u32 m0, s78, 4096')
                a('s_add_u32 s79, s79, 4096')
            a('s_waitcnt vmcnt(%d)', OPT['thrw'])
            a(dma(vHA, RWS, 79, 1024 * (i & 3)).replace(' lds', ' sc1 lds'))
    else:
        srd(R0, sWO, 640 * 1280)
        rot5(83, 73)
        a('s_mul_i32 s75, s%d, 160', sOG)
        a('s_mov_b32 s77, 5')
        a.label('L_woloop')
        a('s_lshl2_add_u32 s78, s83, s%d', sW)
        a('s_mul_i32 s79, s78, 40960')
        a('s_add_u32 s79, s79, s75')
        a('s_mul_i32 s78, s78, 5120')
        a('s_mov_b32 m0, s78')
        a('s_add_u32 s73, s78, 4096')
        for i in range(5):
            if i == 4:
                a('s_mov_b32 m0, s73')
            a('s_waitcnt vmcnt(%d)', OPT['thrw'])
            a(dma(vWOA + i, R0, 79, 1024 * (i & 3)))
    a('s_add_u32 s83, s83, 1')
    a('s_cmp_eq_u32 s83, 5')
    a('s_cselect_b32 s83, 0, s83')
    a('s_sub_u32 s77, s77, 1')
    a('s_cmp_lg_u32 s77, 0')
    a('s_cbranch_scc1 L_woloop')
    for kp in range(5):
        a('s_lshl_b32 s73, s83, 7')
        a('s_add_u32 s%d, s72, s73', 4 + kp)
        a('s_lshl_b32 s%d, s83, 11', 12 + kp)
        a('s_add_u32 s83, s83, 1')
        a('s_cmp_eq_u32 s83, 5')
        a('s_cselect_b32 s83, 0, s83')

def s_scan():
    ROR = 'row_ror:8 row_mask:0xf bank_mask:0xf'
    a('s_setprio 1')
    a('s_lshl_b32 s70, s%d, 13', sCG)
    a('s_add_u32 s70, s70, 0x%x', WS_E)
    a('s_add_u32 s70, s70, s%d', sWS)
    a('s_addc_u32 s71, s%d, 0', sWS + 1)
    srd(R5, 70, 8192)
    a('s_sub_u32 s70, 15, s%d', sRB)
    a('s_lshl_b32 s70, s70, 9')
    a('s_add_u32 s71, s70, 4096')
    tmp = 40
    for j in range(5):
        for k in range(8):
            a('v_mul_f32_dpp v%d, v%d, v%d %s', tmp + k, 8 * j + k, vPAR + 4 * j + 3, ROR)
        for k in range(8):
            a('v_fma_f32 v%d, v%d, v%d, v%d', 8 * j + k, vPAR + 4 * j + 2, 8 * j + k, tmp + k)
    e = [[8 * j for j in range(5)], [50 + j for j in range(5)], [56 + j for j in range(5)]]
    cur = e[0]
    for k in range(1, 8):
        nx = e[1 + (k & 1)]
        for j in range(5):
            a('v_fma_f32 v%d, v%d, v%d, v%d', nx[j], vPAR + 4 * j, cur[j], 8 * j + k)
        for j in range(5):
            a('v_fmac_f32_dpp v%d, v%d, v%d %s', nx[j], cur[j], vPAR + 4 * j + 1, ROR)
        cur = nx
    for j in range(5):
        a('ds_write_b32 v%d, v%d offset:%d', vE, cur[j], 64 * j)
    setpw(11, 104)
    for r in range(10 - OPT['tstart'], 0 if OPT['tlate'] else 6):
        a('s_waitcnt vmcnt(0)')
        for o in touch(r):
            a(o)
    stamp('S', 'pass1')
    def chain(dst, src, add):
        a('v_fma_f32 v%d, v%d, v%d, v%d', dst, vL, src, add)
        a('v_fma_f32 v%d, v%d, v%d, v%d', dst + 1, vL, src + 1, add + 1)
        a('v_fma_f32 v%d, -v%d, v%d, v%d', dst, vL + 1, src + 1, dst)
        a('v_fmac_f32 v%d, v%d, v%d', dst + 1, vL + 1, src)
    ES = 110
    a('s_cmp_eq_u32 s%d, 1', sW)
    a('s_cbranch_scc1 L_wave1')
    a('s_cmp_eq_u32 s%d, 0', sW)
    a('s_cbranch_scc0 L_wave23')
    waitpw(vSPW, 11, 105, sleep=1)
    a('s_mov_b32 exec_hi, 0xff')
    for sg in range(16):
        a('ds_read_b64 %s, v%d offset:%d', v(ES + 2 * sg, 2), vCHL, L_EL - L_H + 320 * sg)
    a('v_mov_b32 v142, 0')
    a('v_mov_b32 v143, 0')
    a('s_waitcnt lgkmcnt(0)')
    a('ds_write_b64 v%d, v[142:143] offset:%d', vCHL, L_PL - L_H)
    for sg in range(1, 16):
        a('ds_write_b64 v%d, %s offset:%d', vCHL, v(ES + 2 * sg - 2, 2), L_PL - L_H + 320 * sg)
        chain(ES + 2 * sg, ES + 2 * sg - 2, ES + 2 * sg)
    a('v_min_u32 v%d, -2, v%d', ES + 30, ES + 30)
    a('v_min_u32 v%d, -2, v%d', ES + 31, ES + 31)
    a('buffer_store_dwordx2 %s, v%d, s[%d:%d], s70 offen sc1', v(ES + 30, 2), vCH, R5, R5 + 3)
    a('s_mov_b32 exec_hi, -1')
    setpw(12, 104)
    a('s_branch L_coldone')
    a.label('L_wave1')
    a.label('L_hint')
    a('buffer_load_dword v105, v%d, s[%d:%d], s70 offen offset:512 sc1', vHINT, R5, R5 + 3)
    a('s_waitcnt vmcnt(0)')
    a('v_cmp_eq_u32 vcc, -1, v105')
    a('s_cbranch_vccz L_hintok')
    a('s_mov_b64 exec, vcc')
    a('s_sleep 3')
    a.label('L_hint2')
    a('s_sub_u32 s%d, s%d, 1', sSPIN, sSPIN)
    a('s_cbranch_scc0 L_hint')
    a('s_endpgm')
    a.label('L_hintok')
    a('s_mov_b32 exec_lo, -1')
    a('s_mov_b32 exec_hi, 0xff')
    for k in range(15, 0, -1):
        a('buffer_load_dwordx2 %s, v%d, s[%d:%d], s%d offen offset:%d sc1', v(ES + 2 * (15 - k), 2), vCH, R5, R5 + 3,
          71 if k >= 8 else 70, 512 * (k & 7))
    a('s_waitcnt vmcnt(0)')
    a('v_max_u32 v105, v%d, v%d', ES, ES + 1)
    for n in range(1, 15):
        a('v_max3_u32 v105, v105, v%d, v%d', ES + 2 * n, ES + 2 * n + 1)
    a('v_cmp_eq_u32 vcc, -1, v105')
    a('s_cbranch_vccnz L_hint2')
    for n in range(1, 15):
        chain(ES + 2 * n, ES + 2 * n - 2, ES + 2 * n)
    a('ds_write_b64 v%d, %s', vCHL, v(ES + 28, 2))
    a('s_mov_b32 exec_hi, -1')
    setpw(12, 104)
    a('s_branch L_coldone')
    a.label('L_wave23')
    if OPT['gtouch']:
        a('s_cmp_eq_u32 s%d, 2', sW)
        a('s_cbranch_scc0 L_coldone')
        a('v_min_u32 v106, %d, v%d', 24 * 128, vF3)
        a('s_mul_i32 s78, s2, 3200')
        a('v_add_u32 v106, s78, v106')
        if OPT['gtouch'] == 1:
            waitpw(vA0PW, 5, 105, sleep=2)
        for p in (sCRE, sCIM, sWO):
            a('global_load_dword v109, v106, s[%d:%d]', p, p + 1)
    if OPT['tearly']:
        waitpw(vA0PW, 5, 105, sleep=2)
    for r in range(OPT['tearly']):
        for o in touch(r, vCT):
            a(o)
        if r + 1 < OPT['tearly']:
            a('s_waitcnt vmcnt(0)')
    a.label('L_coldone')
    a('s_lshl2_add_u32 s70, s%d, s%d', sRB, sW)
    a('s_mul_i32 s71, s70, %d', 2 * HBLK)
    a('s_mul_i32 s78, s%d, 1280', sCG)
    a('s_add_u32 s71, s71, s78')
    a('s_add_u32 s71, s71, 0x%x', WS_H)
    a('s_lshl4_add_u32 s70, s70, s%d', sCG)
    flagaddr(70, 70, F3, 78)
    waitpw(vP01, 12, 105, sleep=4)
    stamp('S', 'carry')
    for j in range(5):
        a('ds_read_b32 v%d, v%d offset:%d', 50 + j, vE, L_PL - L_EL + 64 * j)
        a('ds_read_b32 v%d, v%d offset:%d', 56 + j, vHH, 64 * j)
    a('s_waitcnt lgkmcnt(0)')
    for j in range(5):
        a('v_fmac_f32 v%d, v%d, v%d', 50 + j, vZ + 2 * j, 56 + j)
    for j in range(5):
        a('v_fmac_f32_dpp v%d, v%d, v%d %s', 50 + j, 56 + j, vZ + 2 * j + 1, ROR)
    for k in range(8):
        pr = [50 + j if k == 0 else 8 * j + k - 1 for j in range(5)]
        for j in range(5):
            a('v_fmac_f32 v%d, v%d, v%d', 8 * j + k, vPAR + 4 * j, pr[j])
        for j in range(5):
            a('v_fmac_f32_dpp v%d, v%d, v%d %s', 8 * j + k, pr[j], vPAR + 4 * j + 1, ROR)
    for j in range(5):
        for q in range(4):
            a('v_cvt_pk_bf16_f32 v%d, v%d, v%d', 64 + 4 * j + q, 8 * j + 2 * q, 8 * j + 2 * q + 1)
        a('ds_write_b128 v%d, %s offset:%d', vHW, v(64 + 4 * j, 4), 1024 * j)
        a('ds_read_b64_tr_b16 %s, v%d offset:%d', v(110 + 4 * j, 2), vHR0, 1024 * j)
        a('ds_read_b64_tr_b16 %s, v%d offset:%d', v(110 + 4 * j + 2, 2), vHR1, 1024 * j + 256)
    for j in range(5):
        a('s_waitcnt lgkmcnt(%d)', 12 - 3 * j)
        a('buffer_store_dwordx4 %s, v%d, s[%d:%d], s71 offen offset:%d sc1', v(110 + 4 * j, 4), vHS, RWS, RWS + 3, 256 * j)
    setpw(13, 104)

def s_b3():
    NS = 4
    acc, HF, CF = 0, 80, [208, 216]
    a('s_cmp_ge_u32 s%d, 2', sW)
    a('s_cselect_b32 s78, s%d, s%d', sCIM, sCRE)
    a('s_cselect_b32 s79, s%d, s%d', sCIM + 1, sCRE + 1)
    srd(R1, 78, 640 * 1280)
    srd(R6, sOUT, 2048 * 1280 * 4)
    a('s_mul_i32 s74, s%d, %d', sW, REGSZ)
    a('s_add_u32 s74, s74, %d', L_REG)
    a('s_and_b32 s78, s%d, 1', sW)
    a('s_mul_i32 s72, s%d, %d', sOG, 80 * 1280)
    a('s_mul_i32 s73, s78, 640')
    a('s_add_u32 s72, s72, s73')
    a('s_mul_i32 s79, s%d, %d', sW, 40 * 256)
    a('s_add_u32 s79, s79, 0x%x', WS_H)
    a('s_lshr_b32 s80, s%d, 1', sW)
    a('s_lshl1_add_u32 s78, s78, s80')
    for l in range(4):
        a('s_xor_b32 s80, s78, %d', l)
        a('s_lshl2_add_u32 s80, s%d, s80', sTB)
        a('s_mul_i32 s80, s80, %d', HBLK)
        a('s_add_u32 s%d, s80, s79', 84 + l)
    a('s_lshl_b32 s88, s%d, 12', sTB)
    a('s_add_u32 s88, s88, 0x%x', F3)
    a('s_lshl2_add_u32 s78, s%d, s78', sTB)
    a('s_mul_i32 s80, s78, %d', 16 * 1280)
    a('s_mul_i32 s81, s%d, 160', sOG)
    a('s_add_u32 s80, s80, s81')
    a('s_mul_i32 s82, s78, %d', 16 * 5120)
    a('s_lshl1_add_u32 s82, s81, s82')
    a('s_add_u32 s82, s82, 2560')
    a('s_add_u32 s90, s%d, s81', sDSK)
    a('s_addc_u32 s91, s%d, 0', sDSK + 1)
    a('s_lshl2_add_u32 s89, s%d, s%d', sOG, sW)
    a('s_mul_i32 s89, s89, 5120')
    a('s_mul_i32 s79, s%d, %d', sTB, 4 * HBLK)
    a('s_add_u32 s89, s89, s79')
    a('s_add_u32 s89, s89, 0x%x', WS_H)
    a('s_waitcnt vmcnt(0)')
    setflag(70, 40)
    stamp('S', 'hpub')
    if OPT['tlate']:
        for k in range(4):
            a('s_mov_b32 s%d, s%d', 4 + k, 84 + k)
        for r in range(OPT['tearly'], 6):
            for o in touch(r):
                a(o)
            a('s_waitcnt vmcnt(0)')
        for k in range(4):
            a('s_mov_b32 s%d, s%d', 84 + k, 4 + k)
    if OPT['newpre']:
        def cdma(n, pace=None):
            kp, j = divmod(n, 5)
            a('s_add_u32 m0, s74, %d', 2048 * (n % NS))
            a('s_add_u32 s76, s%d, %d', 4 + kp, 16 * 1280 * j)
            for k in range(2):
                if pace is not None:
                    a('s_waitcnt vmcnt(%d)', pace)
                a(dma(vCA + k, R1, 76, 1024 * k))
        def hload(l, ks):
            return 's_add_u32 s9, s%d, s%d\nbuffer_load_dwordx4 %s, v%d, s[%d:%d], s9 offen offset:%d sc1' % (
                84 + l, 12 + ks // 2, v(HF + 16 * (ks % 8) + 4 * l, 4), vHA, RWS, RWS + 3, 1024 * (ks & 1))
        srd(R0, sWO, 640 * 1280)
        rot5(83, 73)
        for kp in range(5):
            a('s_lshl_b32 s73, s83, 7')
            a('s_add_u32 s%d, s72, s73', 4 + kp)
            a('s_lshl_b32 s%d, s83, 11', 12 + kp)
            a('s_lshl2_add_u32 s%d, s83, s%d', 17 + kp, sW)
            a('s_add_u32 s83, s83, 1')
            a('s_cmp_eq_u32 s83, 5')
            a('s_cselect_b32 s83, 0, s83')
        a('s_mul_i32 s75, s%d, 160', sOG)
        waitpw(vSPW, 13, 41, sleep=2)
        for n in range(NS):
            cdma(n, OPT['thrw'] + 1)
        pl = 'buffer_load_dword v41, v%d, s[%d:%d], s88 offen sc1' % (vF3, RWS, RWS + 3)
        for it in range(5):
            if it == OPT['f3at']:
                a('s_mov_b32 exec_hi, 0')
                a(pl)
                a('s_mov_b32 exec_hi, -1')
            a('s_mul_i32 s79, s%d, 40960', 17 + it)
            a('s_add_u32 s79, s79, s75')
            a('s_mul_i32 s78, s%d, 5120', 17 + it)
            a('s_mov_b32 m0, s78')
            for i in range(5):
                if i == 4:
                    a('s_add_u32 m0, s78, 4096')
                a('s_waitcnt vmcnt(%d)', OPT['thrw'])
                a(dma(vWOA + i, R0, 79, 1024 * (i & 3)))
            if it == OPT['f3at']:
                a('s_mov_b32 exec_hi, 0')
                a('s_waitcnt vmcnt(5)')
                a('v_cmp_eq_u32 vcc, 0, v41')
                a('s_cbranch_vccz L_f3seen')
                a('s_mov_b64 exec, vcc')
                pollflags([pl], 41, sleep=4)
                a.label('L_f3seen')
                a('s_mov_b64 exec, -1')
                stamp('S', 'f3')
                a('buffer_load_dword v41, v%d, s[%d:%d], s89 offen sc1', vHT, RWS, RWS + 3)
        stamp('S', 'wo')
        a('v_mov_b32 v42, 14')
        for ks in range(2):
            for l in range(4):
                a('s_waitcnt vmcnt(%d)', OPT['thrw'] + 1)
                a(hload(l, ks))
        a('ds_write_b32 v%d, v42', vPW)
        a('s_setprio %d', OPT['b3prio'])
    else:
        stamp('S', 'touch')
        s_wo()
        waitpw(vSPW, 13, 40, sleep=2)
        def cdma(n):
            kp, j = divmod(n, 5)
            a('s_add_u32 m0, s74, %d', 2048 * (n % NS))
            a('s_add_u32 s76, s%d, %d', 4 + kp, 16 * 1280 * j)
            a(dma(vCA, R1, 76, 0))
            a(dma(vCA + 1, R1, 76, 1024))
        for n in range(NS):
            cdma(n)
            a('s_waitcnt vmcnt(%d)', 0 if n == NS - 1 else 4)
        setpw(14, 40)
        stamp('S', 'wo')
        a('s_cmp_eq_u32 s%d, 2', sW)
        a('s_cbranch_scc0 L_f3wait')
        a('s_mov_b32 exec_hi, 0')
        pollflags(['buffer_load_dword v40, v%d, s[%d:%d], s88 offen sc1' % (vF3, RWS, RWS + 3)], 40, sleep=4)
        setpw(15, 40)
        a.label('L_f3wait')
        waitpw(vS2PW, 15, 40, sleep=4)
        stamp('S', 'f3')
        a('s_setprio %d', OPT['b3prio'])
        def hload(l, ks):
            return 's_add_u32 s9, s%d, s%d\nbuffer_load_dwordx4 %s, v%d, s[%d:%d], s9 offen offset:%d sc1' % (
                84 + l, 12 + ks // 2, v(HF + 16 * (ks % 8) + 4 * l, 4), vHA, RWS, RWS + 3, 1024 * (ks & 1))
        a('buffer_load_dword v40, v%d, s[%d:%d], s89 offen sc1', vHT, RWS, RWS + 3)
        for ks in range(2):
            if ks:
                a('s_waitcnt vmcnt(0)')
            for l in range(4):
                a(hload(l, ks))
    def creads(n):
        return ['ds_read_b128 %s, v%d offset:%d' % (v(CF[n & 1] + 4 * k, 4), vCR + k, 2048 * (n % NS)) for k in range(2)]
    q = []
    def waitfor(tag):
        idx = max(i for i, x in enumerate(q) if x == tag)
        n = len(q) - 1 - idx
        del q[:idx + 1]
        return n
    for r in creads(0):
        a(r)
    a('s_waitcnt vmcnt(0) lgkmcnt(0)')
    stamp('S', 'b3go')
    cdma(NS)
    q += [NS, NS]
    vX, vD = HF + 32, HF + 42
    hq = [(l, ks) for ks in range(2, 10) for l in range(4)]
    STOP = OPT['b3stop']
    frag = {n: CF[n & 1] for n in range(25)}
    if STOP == 15:
        for k, n in enumerate(range(17, 21)):
            frag[n] = HF + 64 + 8 * k
    def creads(n):
        return ['ds_read_b128 %s, v%d offset:%d' % (v(frag[n] + 4 * k, 4), vCR + k, 2048 * (n % NS)) for k in range(2)]
    done = {0}
    def fetch(n):
        if n in q:
            a('s_waitcnt vmcnt(%d)', waitfor(n))
        for r in creads(n):
            a(r)
        done.add(n)
    issued = set(range(NS + 1))
    def refill(n):
        if n + NS < 25 and n + NS not in issued:
            cdma(n + NS)
            q.extend([n + NS, n + NS])
            issued.add(n + NS)
    for n in range(25):
        kp, j = divmod(n, 5)
        if n == STOP:
            last = 20 if STOP == 15 else n
            for m in range(n + 1, last + 1):
                fetch(m)
                a('s_waitcnt lgkmcnt(0)')
                refill(m)
            a('s_waitcnt vmcnt(0)')
            del q[:]
            stamp('S', 'b3stop')
            a('s_setprio 1')
            waitpw(vAM, OPT['b3res'], 245, sleep=2)
            stamp('S', 'b3res')
        nxt = n + 1
        while nxt in done:
            nxt += 1
        rd = nxt < 25 and (nxt == n + 1 or all(frag[nxt] != frag[m] for m in range(n, nxt)))
        if rd:
            fetch(nxt)
        if j == 0 and 'h%d' % kp in q:
            a('s_waitcnt vmcnt(%d)', waitfor('h%d' % kp))
        if OPT['fine'] >= 2 and n in (3, 6, 9, 12):
            stamp('S', 'u%d' % n)
        extra = []
        for _ in range(OPT['hrate']):
            if hq and (hq[0][1] < 8 or n >= 5):
                l, ks = hq.pop(0)
                extra.append(hload(l, ks))
                q.append('h%d' % (ks // 2))
        if 10 <= n < 15:
            i = n - 10
            extra += ['global_load_dwordx2 %s, v%d, s[90:91] offset:%d' % (v(vD + 2 * i, 2), vDO, 32 * i),
                      'buffer_load_dwordx2 %s, v%d, s[%d:%d], s80 offen offset:%d' % (v(vX + 2 * i, 2), vXO, R3, R3 + 3, 32 * i)]
            q += ['x', 'x']
        assert len(extra) <= 5
        cnt = 0
        for k in range(2):
            ks = 2 * kp + k
            for l in range(4):
                d = acc + 20 * l + 4 * j
                a('v_mfma_f32_16x16x32_bf16 %s, %s, %s, %s', v(d, 4), v(frag[n] + 4 * k, 4), v(HF + 16 * (ks % 8) + 4 * l, 4),
                  '0' if ks == 0 else v(d, 4))
                if cnt < len(extra):
                    a(extra[cnt])
                cnt += 1
                if cnt == 5 and rd:
                    a('s_waitcnt lgkmcnt(0)')
                    refill(nxt)
                if cnt == 5 and n == OPT['gate4']:
                    a('ds_write_b32 v%d, v%d', vPW, vC16)
    assert not hq
    stamp('S', 'b3gemm')
    T = 160
    a('s_setprio 1')
    waitpw(vAM, 7, T, sleep=2)
    for qd in range(10):
        a('ds_write_b128 v%d, %s offset:%d', vR1W, v(acc + 40 + 4 * qd, 4), 1024 * qd)
    setpw(17, T + 1)
    a('s_waitcnt vmcnt(0)')
    U = 180
    def skip(i):
        for hf in range(2):
            a('v_lshlrev_b32 v%d, 16, v%d', T + 4, vX + 2 * i + hf)
            a('v_lshlrev_b32 v%d, 16, v%d', T + 5, vD + 2 * i + hf)
            a('v_and_b32 v%d, 0xffff0000, v%d', T + 6, vX + 2 * i + hf)
            a('v_and_b32 v%d, 0xffff0000, v%d', T + 7, vD + 2 * i + hf)
            a('v_mul_f32 v%d, v%d, v%d', U + 4 * i + 2 * hf, T + 4, T + 5)
            a('v_mul_f32 v%d, v%d, v%d', U + 4 * i + 2 * hf + 1, T + 6, T + 7)
    skip(0)
    skip(1)
    waitpw(vPW1, 17, T + 1)
    for qd in (5, 6, 7, 8, 9, 0, 1, 2, 3, 4):
        a('ds_read_b128 %s, v%d offset:%d', v(acc + 40 + 4 * qd, 4), vR1R, 1024 * qd)
    skip(2)
    a('s_waitcnt lgkmcnt(0)')
    for qd in (5, 6, 7, 8, 9, 0, 1, 2, 3, 4):
        l, j = divmod(qd, 5)
        for e in range(4):
            a('v_add_f32 v%d, v%d, v%d', acc + 4 * qd + e, acc + 4 * qd + e, acc + 40 + 4 * qd + e)
        a('ds_write_b128 v%d, %s offset:%d', vR2W, v(acc + 4 * qd, 4), 16 * 336 * l + 64 * j)
        if qd == 9:
            setpw(18, T + 1)
    for i in range(5):
        a('ds_read_b128 %s, v%d offset:%d', v(acc + 40 + 8 * i, 4), vRA, 64 * i)
    skip(3)
    skip(4)
    waitpw(vPW2, 18, T + 1)
    for i in range(5):
        a('ds_read_b128 %s, v%d offset:%d', v(acc + 44 + 8 * i, 4), vRA + 1, 64 * i)
    for i in range(5):
        for e in range(4):
            a('v_add_f32 v%d, v%d, v%d', U + 4 * i + e, U + 4 * i + e, acc + 40 + 8 * i + e)
    for i in range(5):
        a('s_waitcnt lgkmcnt(%d)', 4 - i)
        for e in range(4):
            a('v_add_f32 v%d, v%d, v%d', U + 4 * i + e, U + 4 * i + e, acc + 44 + 8 * i + e)
    stamp('S', 'yrdy')
    if OPT['yhold']:
        a('v_subrev_u32 v%d, 1024, v%d', T + 2, vSPW)
        waitpw(T + 2, 9, T + 1, sleep=2)
    for i in range(5):
        a('buffer_store_dwordx4 %s, v%d, s[%d:%d], s82 offen offset:%d%s', v(U + 4 * i, 4), vOA, R6, R6 + 3, 64 * i, YSC)
    finish('S')

prologue()
s_setup()
s_qloader()
if OPT['sexit'] == 1:
    setpw(99, 40)
    finish('S')
s_b1()
if OPT['sexit'] == 2:
    setpw(99, 40)
    finish('S')
s_scan()
s_b3()
a_setup()
a_att_setup()
a_qphase()
a_handoff()
a_attention()
a_outproj()
a.label('L_codeend')

errs = check(a.lines)
for e_ in errs:
    print('HAZARD', e_, file=sys.stderr)

head = open('cdna_kernels/%s.s.ref' % NAME).read().split('; @launch')[0]
out = head + '; @launch grid=(256,1,1) block=(512,1,1) lds=%d\n' % LDS_BYTES
out += '''.amdgcn_target "amdgcn-amd-amdhsa--gfx950"
.text
.globl %s_kernel
.p2align 8
.type %s_kernel,@function
%s_kernel:
''' % (NAME, NAME, NAME)
out += a.text()
out += '''.section .rodata,"a"
.p2align 6
.amdhsa_kernel %s_kernel
  .amdhsa_next_free_vgpr 256
  .amdhsa_next_free_sgpr 102
  .amdhsa_accum_offset 256
  .amdhsa_group_segment_fixed_size 0
  .amdhsa_kernarg_size 120
  .amdhsa_user_sgpr_count 2
  .amdhsa_user_sgpr_kernarg_segment_ptr 1
  .amdhsa_system_sgpr_workgroup_id_x 1
.end_amdhsa_kernel
''' % NAME
open(sys.argv[1], 'w').write(out)
if DIAG:
    import json
    json.dump(nstamp, open(sys.argv[1] + '.stamps.json', 'w'))
import subprocess
r_ = subprocess.run(['clang', '-x', 'assembler', '-target', 'amdgcn-amd-amdhsa', '-mcpu=gfx950', '-c', sys.argv[1], '-o', 'chk.o'], capture_output=True, text=True)
if r_.returncode:
    print(r_.stderr[:2000])
    sys.exit(1)
if errs:
    sys.exit(1)
```

```python
import sys, math, struct
from asmlib import Asm, v, s, check

NAME = 'concat_heads__mha_block__ssm_conv_s5__prompt'
OPT = dict(diag=0, b3start=12, force_fb=0, psleep=2, fine=0, cpre=1, stag=5, b1dep=2, rot=1, thr=4, hold=3, codepre=2, psleep4=2, padto=0, outsc1=1, gate4=-1, early0=1, st10=2, b1prio=0, probe='', probewg=-1, sexit=0, b3prio=0, nocdma=0, mallpre=0, b3early=1, pretouch=-1, pace=0, pause=1, wolate=1, thrw=2, kvsplit=5, tstart=0, k2split=0, gate1='x', tlate=0, spread=1, pollat=17, tearly=0, b3stop=15, b3res=7, hrate=3, yhold=1, rot5=1, wopack=0, olead=20, allpoll=1, ysc=1, clrwide=0, nodup=1, onewait=0, vzero=1, lalign=6, lpad=0, epoll=1, npre=2, tprio=0, pgate=1, p3dyn=0, flip=1, newpre=1, f3at=2, gtouch=0, pkmerge=0, kvplain=0, acq=0, stagb=4, alate=1, slate=5)
for a_ in sys.argv[2:]:
    k_, v_ = a_.split('=')
    OPT[k_] = v_ if k_ in ('probe', 'gate1') else int(v_)
DIAG = OPT['diag']
OSC = ['', ' sc1', ' nt', ' sc1 nt'][OPT['outsc1']]
YSC = ['', ' sc1', ' nt', ' sc1 nt'][OPT['ysc']]

def f2u(x):
    return struct.unpack('<I', struct.pack('<f', x))[0]

BLK, VOFF, VROW = 247808, 164864, 10368
WS_H, HBLK = 0x800000, 40960
WS_O, OBLK = 0xD00000, 20480
WS_E = 0xF80000
WS_F = 0xFA0000
F1, F3, F4 = WS_F, WS_F + 0x8000, WS_F + 0x28000
WS_WP = 0x1000000
WS_END = WS_WP + 8 * 102400
WS_DIAG = 0x1100000
OOB = 0x7F000000
L_HT, L_EL, L_PL, L_PAR = 131072, 151552, 156672, 161024
L_PAR = 131072 + 0
L_WO = 0
L_REG, REGSZ = 102400, 14848
L_PW = 161792
LDS_BYTES = 163840
sAX, sWQ, sWO, sBX, sLRE, sLIM, sBRE, sBIM, sCRE, sCIM, sLDT, sDSK, sOUT, sDBG, sWS = range(4, 34, 2)
sW, sI, sXCD = 34, 35, 3
R0, R1, RWS, R3, R4, R5, R6 = 36, 40, 44, 48, 52, 56, 60
sRB, sCG, sHD, sQB, sTB, sOG = 64, 65, 66, 67, 68, 69
sSPIN = 96
sHI = 94
vLANE, vPW, vTS = 254, 253, 255
SPIN_MAX = 1 << 19

a = Asm()
nstamp = {}

def stamp(role, name):
    if OPT['probe'] == role + name:
        a('s_memrealtime s[98:99]')
        a('s_waitcnt lgkmcnt(0)')
        a('s_mov_b32 s97, s98')
    if not DIAG:
        return
    l = nstamp.setdefault(role, [])
    if DIAG == 2:
        l.append(name)
        if role + name == 'Aattpro':
            a('s_memrealtime s[98:99]')
            a('s_waitcnt lgkmcnt(0)')
            a('v_writelane_b32 v%d, s98, 29', vTS)
        return
    idx = len(l)
    l.append(name)
    a('s_memtime s[98:99]')
    a('s_memrealtime s[100:101]')
    a('s_waitcnt lgkmcnt(0)')
    a('v_writelane_b32 v%d, s98, %d', vTS, idx)
    a('v_writelane_b32 v%d, s100, %d', vTS, 32 + idx)

def srd(r, base, nbytes):
    a('s_mov_b32 s%d, s%d', r, base)
    a('s_mov_b32 s%d, s%d', r + 1, base + 1)
    if isinstance(nbytes, int):
        a('s_mov_b32 s%d, 0x%x', r + 2, nbytes)
    else:
        a('s_mov_b32 s%d, %s', r + 2, nbytes)
    a('s_mov_b32 s%d, 0x20000', r + 3)

def setpw(val, tmp):
    a('v_mov_b32 v%d, %d', tmp, val)
    a('ds_write_b32 v%d, v%d', vPW, tmp)

def waitpw(vaddr, val, tmp, sleep=0):
    L = a.newlabel('pw')
    D = a.newlabel('pwd')
    a.label(L)
    a('ds_read_b32 v%d, v%d', tmp, vaddr)
    a('s_waitcnt lgkmcnt(0)')
    a('v_cmp_gt_u32 vcc, %d, v%d', val, tmp)
    a('s_cbranch_vccz %s', D)
    if sleep:
        a('s_sleep %d', sleep)
    a('s_sub_u32 s%d, s%d, 1', sSPIN, sSPIN)
    a('s_cbranch_scc0 %s', L)
    a('s_endpgm')
    a.label(D)

def pollflags(loads, tmp, sleep=1):
    L = a.newlabel('pf')
    D = a.newlabel('pfd')
    a.label(L)
    for l in loads:
        a(l)
    a('s_waitcnt vmcnt(0)')
    for i in range(1, len(loads)):
        a('v_and_b32 v%d, v%d, v%d', tmp, tmp, tmp + i)
    a('v_cmp_eq_u32 vcc, 0, v%d', tmp)
    a('s_cbranch_vccz %s', D)
    a('s_mov_b64 exec, vcc')
    if sleep:
        a('s_sleep %d', sleep)
    a('s_sub_u32 s%d, s%d, 1', sSPIN, sSPIN)
    a('s_cbranch_scc0 %s', L)
    a('s_endpgm')
    a.label(D)
    a('s_mov_b64 exec, -1')

def dbgload(va, vd):
    return 'global_load_dword v%d, v%d, s[%d:%d] sc1' % (vd, va, sDBG, sDBG + 1)

def flagaddr(dst, idx, base, t):
    a('s_lshl_b32 s%d, s%d, 7', dst, idx)
    a('s_add_u32 s%d, s%d, 0x%x', dst, dst, base)

def setflag(soff, tmp):
    a('v_mov_b32 v%d, 1', tmp)
    a('s_mov_b64 exec, 1')
    a('buffer_store_dword v%d, off, s[%d:%d], s%d sc1', tmp, RWS, RWS + 3, soff)
    a('s_mov_b64 exec, -1')

def tau(dst, src, t):
    a('v_and_b32 v%d, 0x13, v%d', dst, src)
    a('v_and_b32 v%d, 4, v%d', t, src)
    a('v_lshl_or_b32 v%d, v%d, 1, v%d', dst, t, dst)
    a('v_and_b32 v%d, 8, v%d', t, src)
    a('v_lshrrev_b32 v%d, 1, v%d', t, t)
    a('v_or_b32 v%d, v%d, v%d', dst, t, dst)

def finish(role):
    if OPT['probe'][:1] == role:
        if OPT['probe'][1:] == 'drained':
            a('s_waitcnt vmcnt(0)')
            stamp(role, 'drained')
        a('s_sub_u32 s97, s97, s100')
        a('s_mul_i32 s97, s97, 10')
        a('s_add_u32 s97, s97, 10000')
        if OPT['probewg'] >= 0:
            a('s_and_b32 s98, s2, 31')
            a('s_cmp_eq_u32 s98, %d', OPT['probewg'])
            a('s_cselect_b32 s97, s97, 0')
        L = a.newlabel('pad')
        a.label(L)
        a('s_sleep 4')
        a('s_memrealtime s[98:99]')
        a('s_waitcnt lgkmcnt(0)')
        a('s_sub_u32 s98, s98, s100')
        a('s_cmp_lt_u32 s98, s97')
        a('s_cbranch_scc1 %s', L)
    if OPT['padto']:
        L = a.newlabel('pad')
        a.label(L)
        a('s_sleep 4')
        a('s_memrealtime s[98:99]')
        a('s_waitcnt lgkmcnt(0)')
        a('s_sub_u32 s98, s98, s100')
        a('s_cmp_lt_u32 s98, %d', OPT['padto'])
        a('s_cbranch_scc1 %s', L)
    if DIAG:
        stamp(role, 'end')
        a('s_waitcnt vmcnt(0)')
        stamp(role, 'drained')
        a('s_memrealtime s[98:99]')
        a('s_waitcnt lgkmcnt(0)')
        a('v_writelane_b32 v%d, s98, 31', vTS)
        a('s_lshl_b32 s70, s2, 3')
        a('s_add_u32 s70, s70, s%d', sW)
        if role == 'S':
            a('s_add_u32 s70, s70, 4')
        a('s_lshl_b32 s70, s70, 8')
        a('s_add_u32 s70, s70, 0x%x', WS_DIAG)
        a('v_lshlrev_b32 v0, 2, v%d', vLANE)
        a('buffer_store_dword v%d, v0, s[%d:%d], s70 offen', vTS, RWS, RWS + 3)
    a('s_endpgm')

def prologue():
    a('s_cmp_ge_u32 s2, 256')
    a('s_cbranch_scc0 L_go')
    a('s_endpgm')
    a.label('L_go')
    if OPT['padto'] or DIAG or OPT['probe']:
        a('s_memrealtime s[100:101]')
    a('s_load_dwordx16 s[4:19], s[0:1], 0')
    a('s_load_dwordx8 s[20:27], s[0:1], 64')
    a('s_load_dwordx4 s[28:31], s[0:1], 96')
    a('s_load_dwordx2 s[32:33], s[0:1], 112')
    a('s_lshr_b32 s%d, s2, 3', sI)
    if OPT['codepre'] == 2:
        a.c('pull the code into L2: every half wave of an XCD touches one line')
        a('s_getpc_b64 s[76:77]')
        a('v_lshrrev_b32 v1, 5, v0')
        a('v_lshl_add_u32 v1, s%d, 4, v1', sI)
        a('v_min_u32 v1, (L_codeend - L_go) / 128 - 1, v1')
        a('v_lshlrev_b32 v1, 7, v1')
        a('global_load_dword v110, v1, s[76:77]')
    a('v_lshrrev_b32 v1, 6, v0')
    a('v_and_b32 v%d, 63, v0', vLANE)
    a('v_readfirstlane_b32 s%d, v1', sW)
    a('s_and_b32 s%d, s2, 7', sXCD)
    a('s_and_b32 s70, s%d, 3', sI)
    a('s_lshr_b32 s%d, s%d, 2', sOG, sI)
    a('s_lshr_b32 s71, s%d, 1', sXCD)
    a('s_lshl2_add_u32 s%d, s71, s70', sRB)
    a('s_and_b32 s71, s%d, 1', sXCD)
    a('s_lshl3_add_u32 s%d, s71, s%d', sCG, sOG)
    if DIAG:
        prologue2()
    a('s_cmp_ge_u32 s%d, 4', sW)
    a('s_cbranch_scc0 L_roleA')

def prologue2():
    a('v_lshlrev_b32 v%d, 2, v0', vPW)
    a('v_add_u32 v%d, %d, v%d', vPW, L_PW, vPW)
    a('v_mov_b32 v0, 0')
    a('ds_write_b32 v%d, v0', vPW)
    a('s_lshr_b32 s71, s%d, 3', sI)
    a('s_lshl2_add_u32 s%d, s%d, s71', sHD, sXCD)
    a('s_and_b32 s%d, s%d, 7', sQB, sI)
    a('s_and_b32 s70, s%d, 3', sI)
    a('s_lshl2_add_u32 s%d, s%d, s70', sTB, sXCD)
    a('s_mov_b32 s%d, 0x%x', sSPIN, SPIN_MAX)
    a('s_mov_b32 s%d, 0', sHI)
    a('s_mov_b32 s%d, -1', sHI + 1)

def ws_setup():
    srd(RWS, sWS, WS_END if not DIAG else WS_DIAG + 0x100000)
    if DIAG:
        a('v_mov_b32 v%d, 0', vTS)
        a('v_writelane_b32 v%d, s100, 30', vTS)

def stagger(k, t, add, flp, mode):
    if mode == 4:
        a('s_and_b32 s%d, s%d, 3', k, sI)
        if flp:
            a('s_xor_b32 s%d, s%d, 1', k, k)
        a('s_mul_i32 s%d, s%d, 5', k, k)
        a('s_lshr_b32 s%d, s%d, 1', k, k)
        a('s_mul_i32 s%d, s%d, 5', t, sOG)
        a('s_lshr_b32 s%d, s%d, 2', t, t)
        a('s_add_u32 s%d, s%d, s%d', k, k, t)
    elif mode in (2, 3):
        a('s_add_u32 s%d, s%d, s%d', k, sI, sOG)
        if flp:
            a('s_xor_b32 s%d, s%d, 1', k, k)
        a('s_and_b32 s%d, s%d, %d', k, k, 1 if mode == 2 else 3)
        a('s_mul_i32 s%d, s%d, 5', k, k)
        if mode == 3:
            a('s_lshr_b32 s%d, s%d, 1', k, k)
    else:
        a('s_mov_b32 s%d, 0', k)
    if mode == 0:
        a('s_mov_b32 s%d, %d', k, add)
        return
    a('s_add_u32 s%d, s%d, %d', t, sXCD, 1 + 2 * add)
    a('s_lshr_b32 s%d, s%d, 1', t, t)
    if mode == 1:
        a('s_add_u32 s%d, s%d, %d', t, sXCD, add)
    a('s_add_u32 s%d, s%d, s%d', k, k, t)
    for _ in range(2 if add else 1):
        a('s_cmp_ge_u32 s%d, 10', k)
        a('s_cselect_b32 s%d, 10, 0', t)
        a('s_sub_u32 s%d, s%d, s%d', k, k, t)

def b1_sources(rx, rb, vx, vb, sm, sb, t, j0=2):
    srd(rx, sBX, 2048 * 1280)
    a('s_cmp_ge_u32 s%d, 2', sW)
    a('s_cselect_b32 s%d, s%d, s%d', t, sBIM, sBRE)
    a('s_cselect_b32 s%d, s%d, s%d', t + 1, sBIM + 1, sBRE + 1)
    srd(rb, t, 640 * 1280)
    a('v_lshrrev_b32 v1, 3, v%d', vLANE)
    a('v_and_b32 v2, 7, v%d', vLANE)
    a('v_lshrrev_b32 v3, 4, v%d', vLANE)
    a('v_xor_b32 v4, v2, v3')
    a('v_and_b32 v5, 3, v1')
    a('v_lshrrev_b32 v6, 2, v1')
    a('v_lshl_add_u32 v5, v6, 3, v5')
    a('v_mul_u32_u24 v5, 1280, v5')
    a('v_lshl_add_u32 v%d, v4, 4, v5', vx)
    a('v_xor_b32 v6, 64, v%d', vx)
    a('v_add_u32 v%d, %d, v6', vx + 1, 16 * 1280 - 1024)
    a('v_add_u32 v%d, %d, v%d', vx + 2, 4 * 1280 - 2048, vx)
    a('v_add_u32 v%d, %d, v6', vx + 3, 20 * 1280 - 3072)
    a('s_lshr_b32 s%d, s%d, 1', t, sW)
    a('s_lshl_b32 s%d, s%d, 6', t + 1, t)
    a('v_mul_u32_u24 v5, 1280, v1')
    a('v_lshl_add_u32 v5, v4, 4, v5')
    a('v_xor_b32 v%d, s%d, v5', vb, t + 1)
    for i in range(1, 3):
        a('v_add_u32 v%d, %d, v%d', vb + i, (10240 - 1024) * i, vb)
    a('s_and_b32 s%d, s%d, 1', t + 1, sW)
    a('s_mul_i32 s%d, s%d, 5120', sm, t)
    a('s_mul_i32 s%d, s%d, %d', sb, t + 1, 1024 * j0)
    a('s_add_u32 s%d, s%d, s%d', sm, sm, sb)
    a('s_mul_i32 s%d, s%d, %d', sb, sCG, 40 * 1280)
    a('s_mul_i32 s%d, s%d, %d', t + 1, t + 1, 8 * 1280 * j0)
    a('s_add_u32 s%d, s%d, s%d', sb, sb, t + 1)

def dma(voff, r, soff, imm):
    return 'buffer_load_dwordx4 v%d, s[%d:%d], s%d offen offset:%d lds' % (voff, r, r + 3, soff, imm)

def a_b1stage(t):
    slot = (t % 4) * 32768
    a('s_add_u32 m0, s6, %d', slot)
    a('s_lshl_b32 s9, s8, 7')
    a('s_add_u32 s12, s4, s9')
    for i in range(4):
        a(dma(112 + i, R5, 12, 1024 * i))
    a('s_add_u32 m0, s7, %d', slot + 16384)
    a('s_add_u32 s12, s5, s9')
    L = a.newlabel('b3rd')
    for i in range(3):
        if i == 2 and OPT['nodup']:
            a('s_cmp_eq_u32 s%d, 1', sCW)
            a('s_cbranch_scc1 %s', L)
        a(dma(116 + i, R6, 12, 1024 * i))
    a.label(L)
    a('s_add_u32 s8, s8, 1')
    a('s_cmp_eq_u32 s8, 10')
    a('s_cselect_b32 s8, 0, s8')

sTW, sCW = 72, 73
vXA, vWA = 96, 104
vF1A = 252
vAPW = 249

def a_setup():
    a.label('L_roleA')
    if not DIAG:
        prologue2()
    a('s_waitcnt lgkmcnt(0)')
    ws_setup()
    stamp('A', 'start')
    a('s_lshr_b32 s%d, s%d, 1', sTW, sW)
    a('s_and_b32 s%d, s%d, 1', sCW, sW)
    a('s_lshl1_add_u32 s75, s%d, s%d', sRB, sTW)
    a('s_mul_i32 s74, s75, %d', BLK)
    a.c('column group 15 has no GEMM tile: these workgroups clear the flags and write the constant blocks')
    a('s_cmp_eq_u32 s%d, 15', sCG)
    a('s_cbranch_scc0 L_noconst')
    a('s_lshl2_add_u32 s77, s%d, s%d', sRB, sW)
    if OPT['clrwide']:
        a('v_lshlrev_b32 v2, 4, v%d', vLANE)
        a('v_min_u32 v3, 496, v2')
        for i in range(4):
            a('v_mov_b32 v%d, 0', 4 + i)
        a('s_mul_i32 s76, s77, 4608')
        a('s_add_u32 s76, s76, 0x%x', WS_F)
        for i in range(4):
            a('buffer_store_dwordx4 v[4:7], v2, s[%d:%d], s76 offen offset:%d sc1', RWS, RWS + 3, 1024 * i)
        a('s_add_u32 s76, s76, 4096')
        a('buffer_store_dwordx4 v[4:7], v3, s[%d:%d], s76 offen sc1', RWS, RWS + 3)
    else:
        a('v_min_u32 v1, 35, v%d', vLANE)
        a('v_lshlrev_b32 v1, 7, v1')
        a('v_mov_b32 v4, 0')
        a('s_mul_i32 s76, s77, 4608')
        a('s_add_u32 s76, s76, 0x%x', WS_F)
        a('buffer_store_dword v4, v1, s[%d:%d], s76 offen sc1', RWS, RWS + 3)
        a('v_lshlrev_b32 v2, 4, v%d', vLANE)
    for i in range(4):
        a('v_mov_b32 v%d, -1', 20 + i)
    a('s_lshl_b32 s76, s77, 11')
    a('s_add_u32 s76, s76, 0x%x', WS_E)
    for i in range(2):
        a('buffer_store_dwordx4 v[20:23], v2, s[%d:%d], s76 offen offset:%d sc1', RWS, RWS + 3, 1024 * i)
    a('v_lshrrev_b32 v1, 3, v%d', vLANE)
    a('v_mul_u32_u24 v1, %d, v1', VROW - 128)
    a('v_add_u32 v1, %d, v1', VOFF + 640 * 16 - 160 * 1024)
    a('v_mul_lo_u32 v1, v1, s%d', sCW)
    a('v_add_u32 v1, v1, v2')
    a('s_mul_i32 s76, s%d, 0x3f803f80', sCW)
    a('v_mov_b32 v8, 0x3f803f80')
    a('v_mov_b32 v9, s76')
    a('v_mov_b32 v10, v8')
    a('v_mov_b32 v11, s76')
    a('s_add_u32 s76, s74, %d', 160 * 1024)
    a('buffer_store_dwordx4 v[8:11], v1, s[%d:%d], s76 offen sc1', RWS, RWS + 3)
    a.label('L_noconst')
    if OPT['codepre'] == 1:
        a.c('pull the code into L2: each wave of an XCD touches a few lines')
        a('s_getpc_b64 s[76:77]')
        a.label('L_pc')
        a('s_sub_u32 s76, s76, L_pc - L_go')
        a('s_subb_u32 s77, s77, 0')
        a('s_lshl2_add_u32 s78, s%d, s%d', sI, sW)
        a('s_mul_i32 s78, s78, 3')
        a('v_min_u32 v1, 2, v%d', vLANE)
        a('v_add_u32 v1, s78, v1')
        a('v_min_u32 v1, (L_codeend - L_go) / 128 - 1, v1')
        a('v_lshlrev_b32 v1, 7, v1')
        a('global_load_dword v110, v1, s[76:77]')
    a.c('LDS fragment addresses for the QKV GEMM')
    a('v_and_b32 v1, 31, v%d', vLANE)
    a('v_lshrrev_b32 v2, 5, v%d', vLANE)
    a('v_bfe_u32 v3, v1, 1, 3')
    a('v_xor_b32 v3, v3, v2')
    a('v_lshlrev_b32 v3, 4, v3')
    a('v_lshl_add_u32 v3, v1, 7, v3')
    a('s_lshl_b32 s76, s%d, 13', sTW)
    a('v_add_u32 v3, s76, v3')
    for ks in range(4):
        a('v_xor_b32 v%d, %d, v3', vXA + ks, ks << 5)
        a('v_add_u32 v%d, 0x10000, v%d', vXA + 4 + ks, vXA + ks)
    a('v_bfe_u32 v4, v%d, 2, 2', vLANE)
    a('v_lshl_add_u32 v5, v2, 3, v4')
    a('v_lshlrev_b32 v5, 8, v5')
    a('v_bfe_u32 v6, v%d, 4, 1', vLANE)
    a('v_and_b32 v7, 1, v%d', vLANE)
    a('v_lshl_add_u32 v6, v6, 1, v7')
    a('s_lshl_b32 s76, s%d, 3', sCW)
    a('v_add_u32 v6, s76, v6')
    a('v_lshlrev_b32 v4, 2, v4')
    a('v_xor_b32 v6, v6, v4')
    a('v_lshl_add_u32 v5, v6, 4, v5')
    a('v_bfe_u32 v7, v%d, 1, 1', vLANE)
    a('v_lshl_add_u32 v5, v7, 3, v5')
    a('v_add_u32 v%d, 16384, v5', vWA)
    a('v_xor_b32 v%d, 64, v%d', vWA + 1, vWA)
    a('v_add_u32 v%d, 0x10000, v%d', vWA + 2, vWA)
    a('v_add_u32 v%d, 0x10000, v%d', vWA + 3, vWA + 1)

def a_qloop(vt):
    F = [64, 80]
    def reads(st, ks, f):
        slot = st % 4
        hi, lo = slot >> 1, (slot & 1) * 32768
        r = []
        for T in range(2):
            r.append('ds_read_b128 %s, v%d offset:%d' % (v(f + 4 * T, 4), vXA + 4 * hi + ks, lo + 4096 * T))
        for Tc in range(2):
            for rd in range(2):
                r.append('ds_read_b64_tr_b16 %s, v%d offset:%d' % (v(f + 8 + 4 * Tc + 2 * rd, 2), vWA + 2 * hi + Tc,
                                                                  lo + (16 * ks + 4 * rd) * 256))
        return [r[0], r[2], r[3], r[1], r[4], r[5]]
    def mfma(f, i, j, first):
        acc = (2 * i + j) * 16
        A = f + 4 * i if vt else f + 8 + 4 * i
        B = f + 8 + 4 * j if vt else f + 4 * j
        return 'v_mfma_f32_32x32x16_bf16 %s, %s, %s, %s' % (v(acc, 16), v(A, 4), v(B, 4), '0' if first else v(acc, 16))
    a('s_barrier')
    for r in reads(0, 0, F[0]):
        a(r)
    for st in range(10):
        for ks in range(4):
            cur, nxt = F[ks & 1], F[(ks + 1) & 1]
            first = st == 0 and ks == 0
            a('s_waitcnt lgkmcnt(0)')
            if ks == 3:
                a('s_barrier')
                rr = reads(st + 1, 0, nxt) if st < 9 else []
            else:
                rr = reads(st, ks + 1, nxt)
            if st == 9 and ks == 3:
                a(mfma(cur, 0, 0, False))
                a(mfma(cur, 0, 1, False))
                return [mfma(nxt, 1, 1, False), mfma(cur, 1, 0, False), mfma(cur, 1, 1, False)]
            a(mfma(cur, 0, 0, first))
            for r in rr[:3]:
                a(r)
            a(mfma(cur, 0, 1, first))
            for r in rr[3:]:
                a(r)
            a(mfma(cur, 1, 0, first))
            if not (st == 9 and ks == 2):
                a(mfma(cur, 1, 1, first))

def tailweave(ms, work):
    a(ms[0])
    a('s_nop 6')
    a(ms[1])
    a('s_nop 1')
    for o in work[:6]:
        a(o)
    a(ms[2])
    for o in work[6:]:
        a(o)

def a_pack_wo():
    a('s_lshl2_add_u32 s76, s%d, s%d', sRB, sW)
    a('s_mul_i32 s77, s76, 12800')
    a('s_add_u32 s78, s14, s77')
    a('s_addc_u32 s79, s15, 0')
    a('s_mul_i32 s76, s76, 10')
    a('s_mov_b32 s80, 0x%x', WS_WP)
    for n in range(13):
        a('v_add_u32 v60, %d, v%d', 64 * n, vLANE)
        if n == 12:
            a('v_min_u32 v60, 799, v60')
        a('v_lshlrev_b32 v61, 4, v60')
        a('global_load_dwordx4 %s, v61, s[78:79]', v(4 * n, 4))
        a('v_mul_u32_u24 v61, 820, v60')
        a('v_lshrrev_b32 v61, 16, v61')
        a('v_mul_u32_u24 v62, 80, v61')
        a('v_sub_u32 v60, v60, v62')
        a('v_add_u32 v61, s76, v61')
        a('v_mul_u32_u24 v62, 6554, v60')
        a('v_lshrrev_b32 v62, 16, v62')
        a('v_mul_u32_u24 v62, %d, v62', 6400 - 10)
        a('v_add_u32 v60, v60, v62')
        a('v_and_b32 v62, 0xfff3, v61')
        a('v_and_b32 v63, 4, v61')
        a('v_lshl_or_b32 v62, v63, 1, v62')
        a('v_bfe_u32 v63, v61, 3, 1')
        a('v_lshl_or_b32 v62, v63, 2, v62')
        a('v_mul_u32_u24 v62, 10, v62')
        a('v_add_lshl_u32 v%d, v60, v62, 4', 64 + n)
    for n in range(13):
        a('s_waitcnt vmcnt(12)')
        a('buffer_store_dwordx4 %s, v%d, s[%d:%d], s80 offen sc1', v(4 * n, 4), 64 + n, RWS, RWS + 3)
    if OPT['wopack'] > 1:
        a('v_min_u32 v60, 49, v%d', vLANE)
        a('v_lshl_add_u32 v60, v60, 7, s77')
        a('v_add_u32 v61, 6400, v60')
        for p in (sCRE, sCIM):
            a('global_load_dword v111, v60, s[%d:%d]', p, p + 1)
            a('global_load_dword v111, v61, s[%d:%d]', p, p + 1)

def a_qphase():
    a('s_cmp_ge_u32 s%d, 10', sCG)
    a('s_cbranch_scc1 L_qV')
    a('v_and_b32 v1, 31, v%d', vLANE)
    a('v_lshrrev_b32 v2, 5, v%d', vLANE)
    a('v_lshlrev_b32 v1, 4, v1')
    a('v_lshl_add_u32 v108, v2, 10, v1')
    a('s_lshl1_add_u32 s76, s%d, s%d', sCG, sCW)
    a('s_lshl_b32 s77, s76, 13')
    a('s_add_u32 s77, s77, s74')
    a('s_add_u32 s78, s77, 4096')
    a('s_mul_i32 s79, s%d, 3', sCW)
    a('s_add_u32 s79, s79, s%d', sCG)
    for _ in range(2):
        a('s_cmp_ge_u32 s79, 5')
        a('s_cselect_b32 s80, 5, 0')
        a('s_sub_u32 s79, s79, s80')
    for Tc in range(2):
        for u in range(2):
            m = 20 + 2 * (2 * Tc + u)
            a('s_cmp_eq_u32 s79, %d', (2 - 4 * Tc - 2 * u) % 5)
            a('s_cselect_b32 s%d, -1, 0', m)
            a('s_cmp_eq_u32 s79, %d', (1 - 4 * Tc - 2 * u) % 5)
            a('s_cselect_b32 s%d, -1, 0', m + 1)
    c0 = f2u(math.log2(math.e) / math.sqrt(20.0))
    a('s_mov_b32 s80, 0x%x', c0)
    ms = a_qloop(False)
    def group(Tc, u, scale):
        o = []
        P = 120 + 8 * (2 * Tc + u)
        for T in range(2):
            acc = (2 * Tc + T) * 16 + 8 * u
            if scale:
                o += ['v_mul_f32 v%d, s80, v%d' % (acc + e, acc + e) for e in range(8)]
            o += ['v_cvt_pk_bf16_f32 v%d, v%d, v%d' % (P + 4 * T + q, acc + 2 * q, acc + 2 * q + 1) for q in range(4)]
        m = 20 + 2 * (2 * Tc + u)
        o.append('s_mov_b64 exec, s[%d:%d]\nv_swap_b32 v%d, v%d\nv_swap_b32 v%d, v%d\ns_mov_b64 exec, -1' % (m, m + 1, P + 2, P + 4, P + 3, P + 5))
        for T in range(2):
            o.append('buffer_store_dwordx4 %s, v108, s[%d:%d], s%d offen offset:%d sc1' % (v(P + 4 * T, 4), RWS, RWS + 3,
                     77 + Tc, 2048 * u + 512 * T))
        return o
    a('s_cmp_ge_u32 s%d, 5', sCG)
    a('s_cbranch_scc1 L_noscale')
    tailweave(ms, group(0, 0, True) + group(0, 1, True))
    a('s_mov_b32 s81, s80')
    for i in range(32, 64, 2):
        a('v_pk_mul_f32 %s, %s, s[80:81]', v(i, 2), v(i, 2))
    a('s_branch L_qk2')
    a.label('L_noscale')
    tailweave(ms, group(0, 0, False) + group(0, 1, False))
    a.label('L_qk2')
    for o in group(1, 0, False) + group(1, 1, False):
        a(o)
    stamp('A', 'qloop')
    a('s_branch L_qdone')
    a.label('L_qV')
    a('s_cmp_eq_u32 s%d, 15', sCG)
    a('s_cbranch_scc0 L_qV2')
    a('s_lshl_b32 s76, s%d, 4', sRB)
    a('v_mov_b32 v16, s76')
    a('v_mov_b32 v17, 1')
    a('s_waitcnt vmcnt(0)')
    a('s_barrier')
    a('s_cmp_eq_u32 s%d, 0', sW)
    a('s_cbranch_scc0 L_nosig')
    a('s_mov_b64 exec, 1')
    a('global_store_dword v16, v17, s[%d:%d] sc1', sDBG, sDBG + 1)
    a('s_mov_b64 exec, -1')
    a.label('L_nosig')
    if OPT['mallpre']:
        a('v_lshlrev_b32 v1, 7, v%d', vLANE)
        a('v_min_u32 v2, %d, v1', 39 * 128)
        a('s_lshl2_add_u32 s76, s%d, s%d', sRB, sW)
        a('s_mul_i32 s76, s76, 40960')
        a('s_lshl1_add_u32 s77, s%d, s%d', sRB, sCW)
        a('s_mul_i32 s77, s77, 25600')
        for k in range(OPT['mallpre']):
            a('buffer_load_dword v111, v2, s[%d:%d], s77 offen', R6, R6 + 3)
            a('buffer_load_dword v111, v1, s[%d:%d], s76 offen', R5, R5 + 3)
            a('s_add_u32 s77, s77, 5120')
            a('s_add_u32 s76, s76, 8192')
    if OPT['wopack']:
        a_pack_wo()
    for _ in range(10):
        a('s_barrier')
    if DIAG:
        nstamp['A'].pop()
    stamp('A', 'qloop')
    a('s_branch L_qdone')
    a.label('L_qV2')
    a('s_lshl1_add_u32 s76, s%d, s%d', sCG, sCW)
    a('v_and_b32 v1, 31, v%d', vLANE)
    tau(108, 1, 2)
    a('v_lshrrev_b32 v2, 5, v%d', vLANE)
    a('v_mul_u32_u24 v2, %d, v2', VROW)
    a('v_lshl_add_u32 v108, v108, 4, v2')
    a('s_sub_u32 s76, s76, 20')
    a('s_lshl_b32 s76, s76, 10')
    a('s_add_u32 s76, s76, s74')
    a('s_add_u32 s76, s76, %d', VOFF)
    for k in range(1, 4):
        a('s_add_u32 s%d, s76, %d', 76 + k, 2 * VROW * k)
    ms = a_qloop(True)
    work = []
    n = 0
    for T in range(2):
        for Tc in range(2):
            for m in range(2):
                P = 120 + 4 * n
                n += 1
                acc = (2 * T + Tc) * 16 + 8 * m
                work += ['v_cvt_pk_bf16_f32 v%d, v%d, v%d' % (P + q, acc + 2 * q, acc + 2 * q + 1) for q in range(4)]
                work.append('buffer_store_dwordx4 %s, v108, s[%d:%d], s%d offen offset:%d sc1' % (v(P, 4), RWS, RWS + 3, 76 + 2 * T + m, 512 * Tc))
    tailweave(ms, work)
    if DIAG:
        nstamp['A'].pop()
    stamp('A', 'qloop')
    a.label('L_qdone')

vO, vS = 0, 64
KV = [128, 156]
K1A, K1B, K2, VA0, VA1, VB0, VB1 = 0, 4, 8, 12, 16, 20, 24
vQ1, vQ2 = 184, 200
vK1, vK2, vV, vIDX, vNC, vM = 208, 209, 210, 214, 216, 220
vT = 224
vMG = 240
sQH, sKH, sODD, sP5, sOFF, sKV0, sPASS, sCNT = 76, 77, 78, 79, 80, 93, 82, 83
sKVB, sKVE = 70, 71

def a_att_setup():
    a('s_and_b32 s%d, s%d, 1', sQH, sW)
    a('s_lshr_b32 s%d, s%d, 1', sKH, sW)
    a('s_and_b32 s%d, s%d, 1', sODD, sHD)
    a('s_lshr_b32 s85, s%d, 1', sHD)
    a('s_mul_i32 s%d, s85, 5', sP5)
    a('s_mul_i32 s%d, s%d, %d', sKVB, sKH, 16 * BLK)
    a('s_add_u32 s%d, s%d, %d', sKVE, sKVB, 16 * BLK)
    a('s_mul_i32 s86, s%d, %d', sQB, 2 * BLK * OPT['rot'])
    a('s_add_u32 s%d, s%d, s86', sKV0, sKVB)
    srd(R3, sWS, 32 * BLK)
    srd(R4, sOUT, 2048 * 1280 * 4)
    a('s_mov_b32 s%d, 0', sPASS)
    i, h, t, x = vT, vT + 1, vT + 2, vT + 3
    a('v_and_b32 v%d, 31, v%d', i, vLANE)
    a('v_lshrrev_b32 v%d, 5, v%d', h, vLANE)
    tau(t, i, x)
    a('s_mul_i32 s86, s%d, 3', sODD)
    a('s_add_u32 s86, s86, s%d', sP5)
    a('s_lshl_b32 s87, s86, 10')
    a('v_lshl_add_u32 v%d, v%d, 10, s87', x, h)
    a('v_lshl_add_u32 v%d, v%d, 4, v%d', vT + 4, i, x)
    a('v_lshl_add_u32 v%d, v%d, 4, v%d', vK1, t, x)
    a('v_add_u32 v%d, %d, v%d', vK1, 80 * 1024, vK1)
    a('s_add_u32 s87, s%d, 2', sP5)
    a('s_lshl1_add_u32 s87, s87, s%d', sODD)
    a('s_lshl_b32 s87, s87, 9')
    a('v_lshl_add_u32 v%d, v%d, 4, s87', vT + 5, i)
    a('v_mov_b32 v%d, 0x%x', x, OOB)
    a('v_cndmask_b32 v%d, v%d, v%d, s[%d:%d]', vT + 5, vT + 5, x, sHI, sHI + 1)
    a('s_add_u32 s87, s87, %d', 80 * 1024)
    a('v_mov_b32 v%d, s87', vK2)
    a('v_mov_b32 v%d, %d', x, 160 * 1024)
    a('v_cndmask_b32 v%d, v%d, v%d, s[%d:%d]', vK2, vK2, x, sHI, sHI + 1)
    a('v_lshl_add_u32 v%d, v%d, 4, v%d', vK2, t, vK2)
    a('s_mul_i32 s86, s%d, 20', sHD)
    a('s_lshl2_add_u32 s87, s%d, s86', sODD)
    a('s_lshl_b32 s88, s%d, 4', sODD)
    a('s_sub_u32 s88, s86, s88')
    a('v_add_u32 v%d, s87, v%d', vV, t)
    a('v_add_u32 v%d, s88, v%d', x, i)
    a('v_cmp_le_u32 vcc, 16, v%d', i)
    a('v_add_u32 v%d, 620, v%d', vT + 6, i)
    a('s_nop 0')
    a('v_cndmask_b32 v%d, v%d, v%d, vcc', vV, vV, x)
    a('v_cmp_le_u32 vcc, 20, v%d', i)
    a('v_mul_u32_u24 v%d, %d, v%d', x, VROW, h)
    a('v_add_u32 v%d, %d, v%d', x, VOFF, x)
    a('v_cndmask_b32 v%d, v%d, v%d, vcc', vV, vV, vT + 6)
    a('v_lshl_add_u32 v%d, v%d, 4, v%d', vV, vV, x)
    a('v_cmp_le_u32 vcc, %d, v%d', 21 if OPT['vzero'] else 24, i)
    a('v_mov_b32 v%d, 0x%x', x, OOB)
    a('v_mov_b32 v%d, 0xdddd', vIDX)
    a('v_cndmask_b32 v%d, v%d, v%d, vcc', vV, vV, x)
    for k in range(1, 4):
        a('v_add_u32 v%d, %d, v%d', vV + k, 2 * VROW * k, vV)
    a('s_mul_i32 s87, s85, 40')
    a('s_lshl4_add_u32 s87, s%d, s87', sODD)
    a('s_add_u32 s88, s87, 23')
    a('s_lshr_b32 s87, s87, 7')
    a('s_lshr_b32 s88, s88, 7')
    a('s_add_u32 s89, s86, 19')
    a('s_lshr_b32 s86, s86, 7')
    a('s_lshr_b32 s89, s89, 7')
    a('v_lshrrev_b32 v%d, 4, v%d', x, vLANE)
    a('s_add_u32 s90, s87, 5')
    a('v_mov_b32 v%d, s90', vF1A)
    for sel, (reg, add) in enumerate(((88, 5), (86, 10), (89, 10))):
        a('s_add_u32 s90, s%d, %d', reg, add)
        a('v_cmp_eq_u32 vcc, %d, v%d', sel + 1, x)
        a('v_mov_b32 v%d, s90', vT + 6)
        a('s_nop 0')
        a('v_cndmask_b32 v%d, v%d, v%d, vcc', vF1A, vF1A, vT + 6)
    a('v_and_b32 v%d, 15, v%d', vT + 6, vLANE)
    a('v_lshl_add_u32 v%d, v%d, 4, v%d', vF1A, vF1A, vT + 6)
    a('v_lshlrev_b32 v%d, 7, v%d', vF1A, vF1A)
    a('v_mov_b32 v%d, s87', vF1A - 1)
    a('v_mov_b32 v%d, s88', vT + 6)
    a('v_cndmask_b32 v%d, v%d, v%d, s[%d:%d]', vF1A - 1, vF1A - 1, vT + 6, sHI, sHI + 1)
    a('v_bfe_u32 v%d, v%d, 4, 1', vT + 6, vLANE)
    a('v_lshl_add_u32 v%d, v%d, 4, v%d', vF1A - 1, vF1A - 1, vT + 6)
    a('s_lshl_b32 s90, s%d, 1', sQB)
    a('v_add_lshl_u32 v%d, v%d, s90, 7', vF1A - 1, vF1A - 1)
    a('v_and_b32 v%d, 3, v%d', vAPW, vLANE)
    a('v_lshlrev_b32 v%d, 8, v%d', vAPW, vAPW)
    a('v_lshlrev_b32 v%d, 2, v%d', vAPW + 1, vLANE)
    a('v_add_u32 v%d, %d, v%d', vAPW + 1, L_PW, vAPW + 1)
    a('v_add_u32 v%d, v%d, v%d', vAPW, vAPW, vAPW + 1)
    a('s_lshl1_add_u32 s90, s%d, s%d', sQB, sQH)
    a('s_lshl1_add_u32 s90, s90, s%d', sKH)
    a('s_mul_i32 s91, s90, %d', BLK)
    a('s_xor_b32 s92, s90, 1')
    a('s_mul_i32 s92, s92, %d', BLK)
    a('s_mul_i32 s36, s%d, %d', sW, REGSZ)
    a('s_add_u32 s36, s36, %d', L_REG + 8192)
    a('s_xor_b32 s37, s%d, 2', sW)
    a('s_mul_i32 s37, s37, %d', REGSZ)
    a('s_add_u32 s37, s37, %d', L_REG + 8192)
    a('v_lshl_add_u32 v%d, v%d, 4, s36', vMG, vLANE)
    a('v_lshl_add_u32 v%d, v%d, 3, s36', vMG + 1, vLANE)
    a('v_lshl_add_u32 v%d, v%d, 4, s37', vMG + 2, vLANE)
    a('v_lshl_add_u32 v%d, v%d, 3, s37', vMG + 3, vLANE)
    a('v_xor_b32 v%d, 512, v%d', vMG + 4, vPW)
    a('v_add_u32 v%d, 1024, v%d', vMG + 5, vAPW)
    a('v_bfe_u32 v%d, v%d, 4, 1', x, vLANE)
    a('v_mul_u32_u24 v%d, %d, v%d', x, OBLK, x)
    a('v_and_b32 v%d, 15, v%d', t, vLANE)
    a('v_lshl_add_u32 v%d, v%d, 4, v%d', x, t, x)
    a('v_mul_u32_u24 v%d, %d, v%d', t, 2 * OBLK, h)
    a('v_add_u32 v%d, v%d, v%d', vMG + 7, t, x)
    a('v_lshl_add_u32 v%d, v%d, 8, v%d', vMG + 6, h, x)
    a('s_mul_i32 s40, s90, %d', 4 * OBLK)
    a('s_add_u32 s40, s40, 0x%x', WS_O)
    a('s_lshl_b32 s41, s%d, 8', sP5)
    a('s_add_u32 s40, s40, s41')
    a('s_mul_i32 s41, s%d, 768', sODD)
    a('s_add_u32 s41, s41, s40')
    a('s_add_u32 s42, s41, %d', 2 * OBLK)
    a('s_lshl3_add_u32 s40, s%d, s40', sODD)
    a('s_lshl_b32 s43, s90, 5')
    a('s_add_u32 s43, s43, s%d', sHD)
    flagaddr(43, 43, F4, 0)

def a_b1_setup():
    a('s_mov_b64 s[14:15], s[%d:%d]', sWO, sWO + 1)
    b1_sources(R5, R6, 112, 116, 7, 5, 12, 3 if OPT['nodup'] else 2)
    a('s_lshl2_add_u32 s4, s%d, s%d', sRB, sW)
    a('s_mul_i32 s4, s4, %d', 32 * 1280)
    a('s_lshl_b32 s6, s%d, 12', sW)
    stagger(8, 9, OPT['st10'], OPT['flip'], OPT['stagb'])

def a_handoff():
    first = 10 + OPT['st10']
    nst = 8
    for t in range(10, first):
        a('s_barrier')
        if t == 10:
            if OPT['alate']:
                a_b1_setup()
            else:
                for i_ in range(64):
                    a('v_mov_b32 v%d, 0', vO + i_)
    a_b1stage(first)
    if OPT['alate']:
        a_att_setup()
        for i_ in range(64):
            a('v_mov_b32 v%d, 0', vO + i_)
    a_b1stage(first + 1)
    lds_ = ['buffer_load_dword v%d, v%d, s[%d:%d], s85 offen sc1' % (104 + k, vF1A - k, RWS, RWS + 3) for k in range(2)]
    a('s_mov_b32 s85, 0x%x', F1)
    for t in range(first, 20):
        a('s_waitcnt vmcnt(%d)', 7 - OPT['nodup'] if t < 19 else 0)
        if t == first:
            stamp('A', 'qdrain')
        if t == 19:
            a('s_cmp_eq_u32 s%d, 0', sW)
            a('s_cbranch_scc0 L_c19')
            a('v_and_b32 v104, v104, v105')
            a('v_cmp_eq_u32 vcc, 0, v104')
            a('s_cbranch_vccnz L_c19')
            setpw(4, 102)
            a('s_waitcnt lgkmcnt(0)')
            a.label('L_c19')
        a('s_barrier')
        if t + 2 <= 19:
            a_b1stage(t + 2)
        if t == OPT['pollat']:
            a('s_cmp_eq_u32 s%d, 0', sW)
            a('s_cbranch_scc0 L_nopoll')
            for l in lds_:
                a(l)
            a.label('L_nopoll')
    stamp('A', 'b1load')
    a('s_cmp_eq_u32 s%d, 0', sW)
    a('s_cbranch_scc0 L_f1wait')
    a('s_cbranch_vccz L_f1go')
    a('s_mov_b64 exec, vcc')
    pollflags(lds_, 104, sleep=OPT['psleep'])
    setpw(4, 102)
    a.label('L_f1wait')
    waitpw(vAPW + 1, 4, 102, sleep=1)
    a.label('L_f1go')
    stamp('A', 'f1')

def kvload0(st, what, soff):
    if what in (K1A, K1B):
        r = KV[st] + what
        return 'buffer_load_dwordx4 %s, v%d, s[%d:%d], s%d offen offset:%d sc1' % (v(r, 4), vK1, R3, R3 + 3, soff, 512 if what == K1B else 0)
    if what in ('2A', '2B'):
        tl = what == '2B'
        return 'buffer_load_dwordx2 %s, v%d, s[%d:%d], s%d offen offset:%d sc1' % (v(KV[st] + K2 + 2 * tl, 2), vK2, R3, R3 + 3, soff, 8 * tl)
    r = KV[st] + what
    if what == K2:
        return 'buffer_load_dwordx4 %s, v%d, s[%d:%d], s%d offen sc1' % (v(r, 4), vK2, R3, R3 + 3, soff)
    return 'buffer_load_dwordx4 %s, v%d, s[%d:%d], s%d offen sc1' % (v(r, 4), vV + (what - VA0) // 4, R3, R3 + 3, soff)

def kvload(st, what, soff):
    return kvload0(st, what, soff).replace(' sc1', [' sc1', '', ' sc1 nt'][OPT['kvplain']])

def qk1(st, tile, qt, sb):
    return 'v_mfma_f32_32x32x16_bf16 %s, %s, %s, 0' % (v(vS + 16 * sb, 16), v(KV[st] + (K1B if tile else K1A), 4), v(vQ1 + 4 * qt, 4))

def qk2(st, tile, qt, sb):
    return 'v_mfma_f32_32x32x8bf16_1k %s, %s, %s, %s' % (v(vS + 16 * sb, 16), v(KV[st] + K2 + 2 * tile, 2), v(vQ2 + 2 * qt, 2), v(vS + 16 * sb, 16))

def pv(st, tile, qt, m):
    return 'v_smfmac_f32_32x32x32_bf16 %s, %s, %s, v%d' % (v(vO + 16 * qt, 16), v(KV[st] + VA0 + 8 * tile + 4 * m, 4), v(vS + 16 * qt + 8 * m, 8), vIDX)

def maxtree(dst, src, acc):
    if acc:
        a('v_max3_f32 v%d, v%d, v%d, v%d', dst, dst, src, src + 1)
    else:
        a('v_max_f32 v%d, v%d, v%d', dst, src, src + 1)
    for k in range(2, 16, 2):
        a('v_max3_f32 v%d, v%d, v%d, v%d', dst, dst, src + k, src + k + 1)

def a_attention():
    if OPT['acq'] == 2:
        a('buffer_inv sc1')
    for lp in range(2):
        for T in range(2):
            a('buffer_load_dwordx4 %s, v%d, s[%d:%d], s%d offen offset:%d sc1', v(vQ1 + 8 * lp + 4 * T, 4), vT + 4, RWS, RWS + 3, 91 + lp, 512 * T)
    for lp in range(2):
        a('buffer_load_dwordx4 %s, v%d, s[%d:%d], s%d offen sc1', v(vQ2 + 4 * lp, 4), vT + 5, RWS, RWS + 3, 91 + lp)
    a.label('L_attload')
    a('s_mov_b32 s%d, 0x40000000', sCNT)
    a('s_add_u32 s%d, s%d, %d', sOFF, sKV0, BLK)
    for w_ in (K1A, K2):
        a(kvload0(0, w_, sKV0))
    for i in range(4):
        a('v_mov_b32 v%d, 0', KV[1] + VB1 + i)
    if OPT['kvsplit']:
        a('s_waitcnt vmcnt(%d)', OPT['kvsplit'] - 1)
    for w_ in (VA0, VA1, K1B, VB0, VB1):
        a(kvload0(0, w_, sKV0))
    for w_ in (K1A, VA0, VA1, K1B, K2, VB0):
        a(kvload0(1, w_, sOFF))
    if OPT['acq'] == 1:
        a('buffer_inv sc1')
    a('s_waitcnt vmcnt(%d)', 11 + (OPT['acq'] == 1))
    stamp('A', 'qkload')
    a('s_cmp_eq_u32 s%d, 0', sPASS)
    a('s_cbranch_scc0 L_setc')
    a.c('stand-in for the row maximum: the maximum over the first key tile (checked after the loop)')
    def tree(qt):
        src = vS + 16 * qt
        return ['v_max_f32 v%d, v%d, v%d' % (vM + qt, src, src + 1)] + \
               ['v_max3_f32 v%d, v%d, v%d, v%d' % (vM + qt, vM + qt, src + k, src + k + 1) for k in range(2, 16, 2)]
    for qt in range(3):
        a(qk1(0, 0, qt, qt))
        a(qk2(0, 0, qt, qt))
    a(qk1(0, 0, 3, 3))
    a('s_nop 6')
    for o in tree(0)[:4]:
        a(o)
    a(qk2(0, 0, 3, 3))
    for o in tree(0)[4:] + tree(1) + tree(2) + tree(3):
        a(o)
    a.label('L_setc')
    for qt in range(4):
        a('v_mov_b32 v%d, v%d', vT + 8 + qt, vM + qt)
    for qt in range(4):
        a('v_permlane32_swap_b32 v%d, v%d', vM + qt, vT + 8 + qt)
    for qt in range(4):
        a('v_min_f32 v%d, -v%d, -v%d', vM + qt, vM + qt, vT + 8 + qt)
    for qt in range(4):
        a('v_cvt_pk_bf16_f32 v%d, v%d, v%d', vT + 8 + qt, vM + qt, vM + qt)
    for qt in range(4):
        a('v_and_b32 v%d, 0xffff0000, v%d', vT + 8 + qt, vT + 8 + qt)
    for qt in range(4):
        a('v_sub_f32 v%d, v%d, v%d', vM + qt, vM + qt, vT + 8 + qt)
    for qt in range(4):
        a('v_cvt_pk_bf16_f32 v%d, v%d, v%d', vM + qt, vT + 8 + qt, vM + qt)
    for qt in range(4):
        a('v_cndmask_b32 v%d, v%d, v%d, s[%d:%d]', vQ2 + 2 * qt, vQ2 + 2 * qt, vM + qt, sHI, sHI + 1)
    a(qk1(0, 0, 0, 0))
    a(qk2(0, 0, 0, 0))
    for qt in range(4):
        a('v_and_b32 v%d, 0xffff0000, v%d', vM + qt, vM + qt)
    for qt in range(4):
        a('v_add_f32 v%d, v%d, v%d', vNC + qt, vM + qt, vT + 8 + qt)
    for i in range(8):
        a('v_mov_b32 v%d, 0', vS + 48 + 8 + i)
    a('s_waitcnt vmcnt(%d)', 8 + (OPT['acq'] == 1))
    if OPT['tearly'] or OPT['gtouch'] == 1:
        setpw(5, vT + 8)
    stamp('A', 'attpro')
    if OPT['fine'] == 3:
        base = len(nstamp['A'])
        nstamp['A'] += ['it%d' % i for i in range(16)]
        a('s_mov_b32 s24, %d', base)
    a('.p2align %d', OPT['lalign'])
    for _ in range(OPT['lpad']):
        a('s_nop 0')
    a.label('L_attloop')
    for st in range(2):
        for n in range(8):
            tile, qt = n >> 2, n & 3
            nst, ntile, nqt = (st, (n + 1) >> 2, (n + 1) & 3) if n < 7 else (st ^ 1, 0, 0)
            pst, ptile, pqt = (st, (n - 1) >> 2, (n - 1) & 3) if n > 0 else (st ^ 1, 1, 3)
            def ex(k):
                for e in range(4 * k, 4 * k + 4):
                    a('v_exp_f32 v%d, v%d', vS + 16 * qt + e, vS + 16 * qt + e)
            if n == 7:
                a('s_waitcnt vmcnt(7)')
            a(qk1(nst, ntile, nqt, nqt))
            if n == 1:
                a('s_add_u32 s%d, s%d, %d', sOFF, sOFF, BLK)
            if n == 2:
                a(kvload(st, K1A, sOFF))
            if n == 6:
                a(kvload(st, K1B, sOFF))
            if n == 5 and OPT['fine'] == 3:
                a('s_memtime s[98:99]')
                a('s_memrealtime s[100:101]')
            if n == 6 and OPT['fine'] == 3:
                a('s_waitcnt lgkmcnt(0)')
                a('s_mov_b32 m0, s24')
                a('s_add_u32 s25, s24, 32')
                a('v_writelane_b32 v%d, s98, m0', vTS)
                a('s_mov_b32 m0, s25')
                a('s_add_u32 s24, s24, 1')
                a('v_writelane_b32 v%d, s100, m0', vTS)
            ex(0)
            a(qk2(nst, ntile, nqt, nqt))
            if n == 6:
                a(kvload(st, K2, sOFF))
            if n == 1 and st == 0:
                a('s_cmp_eq_u32 s%d, s%d', sOFF, sKVE)
                a('s_cselect_b32 s%d, s%d, s%d', sOFF, sKVB, sOFF)
            ex(1)
            a(pv(pst, ptile, pqt, 1))
            if n == 0:
                a(kvload(st ^ 1, VB1, sOFF))
            if n == 4:
                a(kvload(st, VA1, sOFF))
            if n == 1 and st == 0:
                a('s_cmp_eq_u32 s%d, s%d', sOFF, sKV0)
                a('s_cselect_b32 s%d, s%d, s%d', sOFF, sCNT, sOFF)
            if st == 1 and n == 7:
                a('s_cmp_lt_u32 s%d, s%d', sOFF, sCNT)
            ex(2)
            if n == 4:
                a('s_waitcnt vmcnt(10)')
            a(pv(st, tile, qt, 0))
            if n == 3:
                a(kvload(st, VA0, sOFF))
            if n == 7:
                a(kvload(st, VB0, sOFF))
            ex(3)
    a('s_cbranch_scc1 L_attloop')
    a('s_nop 0')
    a(pv(1, 1, 3, 1))
    stamp('A', 'attloop')
    if OPT['tprio']:
        a('s_setprio 2')
    a('ds_read_b32 v%d, v%d', vT + 12, vMG + 5)
    a('s_mov_b32 s36, 0x%x', f2u(2.0 ** -4))
    a('s_mov_b32 s37, 0x%x', f2u(2.0 ** 96))
    a('s_cmp_eq_u32 s%d, 0', sPASS)
    a('s_cbranch_scc0 L_attok')
    a('v_min3_f32 v%d, v%d, v%d, v%d', vT + 8, vO + 8, vO + 24, vO + 40)
    a('v_add_f32 v%d, v%d, v%d', vT + 9, vO + 8, vO + 24)
    a('v_add_f32 v%d, v%d, v%d', vT + 9, vT + 9, vO + 40)
    a('s_nop 3')
    a('v_min_f32 v%d, v%d, v%d', vT + 8, vT + 8, vO + 56)
    a('v_add_f32 v%d, v%d, v%d', vT + 9, vT + 9, vO + 56)
    a('v_cmp_nle_f32 s[38:39], s36, v%d', vT + 8)
    a('v_cmp_nge_f32 vcc, s37, v%d', vT + 9)
    a('s_or_b32 s39, s39, vcc_hi')
    if OPT['force_fb']:
        a('s_cmp_eq_u32 s%d, 0', sPASS)
    a('s_cbranch_scc0 L_attok')
    a.c('fallback: exact row maximum over this wave\'s keys, then redo the pass')
    a('s_mov_b32 s%d, 1', sPASS)
    a('s_waitcnt vmcnt(0) lgkmcnt(0)')
    a('v_mov_b32 v%d, 0', vT + 8)
    for qt in range(4):
        a('v_cndmask_b32 v%d, v%d, v%d, s[%d:%d]', vQ2 + 2 * qt, vQ2 + 2 * qt, vT + 8, sHI, sHI + 1)
        a('v_mov_b32 v%d, 0xff800000', vM + qt)
    a('s_mov_b32 s%d, s%d', sOFF, sKVB)
    a('s_mov_b32 s%d, 16', sCNT)
    a.label('L_maxloop')
    for w_ in (K1A, K1B, K2):
        a(kvload(0, w_, sOFF))
    a('s_waitcnt vmcnt(0)')
    for tile in range(2):
        for qt in range(4):
            a(qk1(0, tile, qt, qt))
            a(qk2(0, tile, qt, qt))
        a('s_nop 5')
        for qt in range(4):
            maxtree(vM + qt, vS + 16 * qt, True)
    a('s_add_u32 s%d, s%d, %d', sOFF, sOFF, BLK)
    a('s_sub_u32 s%d, s%d, 1', sCNT, sCNT)
    a('s_cmp_lg_u32 s%d, 0', sCNT)
    a('s_cbranch_scc1 L_maxloop')
    for i in range(64):
        a('v_mov_b32 v%d, 0', vO + i)
    a('s_branch L_attload')
    a.label('L_attok')
    a('s_waitcnt lgkmcnt(0)')
    a('v_cmp_gt_u32 vcc, 14, v%d', vT + 12)
    a('s_cbranch_vccz L_sready')
    waitpw(vMG + 5, 14, vT + 8)
    a.label('L_sready')
    a('ds_write_b64 v%d, %s offset:6144', vMG + 1, v(vNC + 2, 2))
    for t in range(2):
        for q in range(3):
            a('ds_write_b128 v%d, %s offset:%d', vMG, v(vO + 32 + 16 * t + 4 * q, 4), 1024 * (3 * t + q))
    setpw(6, vT + 8)
    waitpw(vMG + 4, 6, vT + 8)
    R = vS
    NC2 = vS + 32
    a('ds_read_b64 %s, v%d offset:6144', v(NC2, 2), vMG + 3)
    for t in range(2):
        a('ds_read_b128 %s, v%d offset:%d', v(R + 16 * t + 8, 4), vMG + 2, 1024 * (3 * t + 2))
    for t in range(2):
        for q in range(2):
            a('ds_read_b128 %s, v%d offset:%d', v(R + 16 * t + 4 * q, 4), vMG + 2, 1024 * (3 * t + q))
    setpw(7, vT + 9)
    f1, f2, l1, l2 = vS + 34, vS + 36, vS + 38, vS + 40
    a('s_waitcnt lgkmcnt(7)')
    for t in range(2):
        a('v_min_f32 v%d, v%d, v%d', l1 + t, vNC + t, NC2 + t)
    for t in range(2):
        a('v_sub_f32 v%d, v%d, v%d', f1 + t, l1 + t, vNC + t)
        a('v_sub_f32 v%d, v%d, v%d', f2 + t, l1 + t, NC2 + t)
    for t in range(2):
        a('v_exp_f32 v%d, v%d', f1 + t, f1 + t)
        a('v_exp_f32 v%d, v%d', f2 + t, f2 + t)
    a('s_waitcnt lgkmcnt(5)')
    for t in range(2):
        a('v_mul_f32 v%d, v%d, v%d', l1 + t, f1 + t, vO + 16 * t + 8)
    for t in range(2):
        a('v_fmac_f32 v%d, v%d, v%d', l1 + t, f2 + t, R + 16 * t + 8)
    for t in range(2):
        a('v_mov_b32 v%d, v%d', l2 + t, l1 + t)
    a('s_nop 0')
    for t in range(2):
        a('v_permlane32_swap_b32 v%d, v%d', l1 + t, l2 + t)
    for t in range(2):
        a('v_rcp_f32 v%d, v%d', l2 + t, l2 + t)
    a('s_waitcnt vmcnt(0) lgkmcnt(0)')
    for t in range(2):
        a('v_mul_f32 v%d, v%d, v%d', f1 + t, f1 + t, l2 + t)
        a('v_mul_f32 v%d, v%d, v%d', f2 + t, f2 + t, l2 + t)
    P = vO + 32
    for t in range(2):
        if OPT['pkmerge']:
            sel = 'op_sel:[%d,0] op_sel_hi:[%d,1]' % (t, t)
            sel3 = 'op_sel:[%d,0,0] op_sel_hi:[%d,1,1]' % (t, t)
            for r in range(0, 12, 2):
                a('v_pk_mul_f32 %s, %s, %s %s', v(vO + 16 * t + r, 2), v(f1, 2), v(vO + 16 * t + r, 2), sel)
            for r in range(0, 12, 2):
                a('v_pk_fma_f32 %s, %s, %s, %s %s', v(vO + 16 * t + r, 2), v(f2, 2), v(R + 16 * t + r, 2), v(vO + 16 * t + r, 2), sel3)
        else:
            for r in range(12):
                a('v_mul_f32 v%d, v%d, v%d', vO + 16 * t + r, f1 + t, vO + 16 * t + r)
            for r in range(12):
                a('v_fmac_f32 v%d, v%d, v%d', vO + 16 * t + r, f2 + t, R + 16 * t + r)
        for q in range(6):
            a('v_cvt_pk_bf16_f32 v%d, v%d, v%d', P + 8 * t + q, vO + 16 * t + 2 * q, vO + 16 * t + 2 * q + 1)
        a('buffer_store_dwordx4 %s, v%d, s[%d:%d], s%d offen sc1', v(P + 8 * t, 4), vMG + 6, RWS, RWS + 3, 41 + t)
    a('s_nop 0')
    a('v_permlane32_swap_b32 v%d, v%d', P + 4, P + 12)
    a('v_permlane32_swap_b32 v%d, v%d', P + 5, P + 13)
    a('buffer_store_dwordx2 %s, v%d, s[%d:%d], s40 offen offset:512 sc1', v(P + 4, 2), vMG + 7, RWS, RWS + 3)
    if OPT['tprio'] == 2:
        a('s_setprio 0')
    if OPT['pgate']:
        setpw(8, vT + 8)
        a('ds_read_b32 v%d, v%d', 99, vAPW)
    stamp('A', 'merge')

def p3_static(vA0, vA1, vOA, acc):
    EP = OPT['epoll']
    if not EP:
        a('s_waitcnt vmcnt(0)')
        stamp('A', 'odrain')
        setflag(43, 1)
    NB = 7
    def reads(ks):
        f = 100 + 20 * (ks % NB)
        base, off = (vA0, ks * 5120) if ks < 10 else (vA1, (ks - 10) * 5120)
        return ['ds_read_b64_tr_b16 %s, v%d offset:%d' % (v(f + 4 * j + 2 * rd, 2), base, off + 1280 * rd + 32 * j)
                for j in range(5) for rd in range(2)]
    pl = 'buffer_load_dword v252, v%d, s[%d:%d], s88 offen sc1' % (vOA + 1, RWS, RWS + 3)
    def oload(ks):
        a('buffer_load_dwordx4 %s, v%d, s[%d:%d], s85 offen offset:%d sc1', v(4 * ks, 4), vOA, RWS, RWS + 3, 1024 * (ks & 3))
        if ks & 3 == 3 and ks < 19:
            a('s_add_u32 s85, s85, 4096')
    LEAD = OPT['olead']
    touch_ = 'buffer_load_dword v251, v248, s[%d:%d], s85 offen sc1' % (RWS, RWS + 3)
    NP = OPT['npre'] if EP else 0
    rest = [r for ks in range(NP, NB) for r in reads(ks)]
    if EP:
        for ks in range(NP):
            for r in reads(ks):
                a(r)
        if OPT['pgate']:
            a('s_waitcnt lgkmcnt(0)')
            a('v_cmp_gt_u32 vcc, 8, v99')
            a('s_cbranch_vccz L_epoll')
            a('s_waitcnt vmcnt(0)')
            stamp('A', 'odrain')
            if DIAG:
                nstamp['A'].pop()
            setflag(43, 2)
            a('s_mov_b32 vcc_lo, -1')
            a('s_mov_b32 vcc_hi, 0')
            a('s_branch L_f4late')
            a.label('L_epoll')
        a('s_mov_b32 exec_hi, 0')
        a(pl)
        a('s_waitcnt vmcnt(1)')
        stamp('A', 'odrain')
        setflag(43, 2)
        a('s_mov_b32 exec_hi, 0')
        a('s_waitcnt vmcnt(1)')
        a('v_cmp_eq_u32 vcc, 0, v252')
        a('s_mov_b64 exec, -1')
        a('s_cbranch_vccnz L_f4late')
        stamp('A', 'f4')
        if DIAG:
            nstamp['A'].pop()
        a(touch_)
        k = 0
        for ks in range(LEAD):
            oload(ks)
            while k < len(rest) * (ks + 1) // LEAD:
                a(rest[k])
                k += 1
        a('s_branch L_p3go')
        a.label('L_f4late')
    for r in rest:
        a(r)
    if OPT['pgate']:
        a('s_mov_b64 s[38:39], vcc')
        waitpw(vAPW, 8, 99, sleep=1)
        a('s_mov_b64 vcc, s[38:39]')
    if EP:
        a('s_mov_b64 exec, vcc')
    else:
        a('s_mov_b32 exec_hi, 0')
    pollflags([pl], 252, sleep=OPT['psleep4'])
    stamp('A', 'f4')
    a(touch_)
    for ks in range(LEAD):
        oload(ks)
    a.label('L_p3go')
    a('s_waitcnt lgkmcnt(0)')
    nl = LEAD
    a('v_mov_b32 v248, 9')
    lq = []
    if nl == 20:
        a('ds_write_b32 v%d, v248', vPW)
    pend = []
    for ks in range(20):
        w_ = 's_waitcnt vmcnt(%d)' % (nl - 1 - ks)
        if ks in lq:
            idx = max(i for i, x in enumerate(lq) if x == ks)
            w_ += ' lgkmcnt(%d)' % min(15, len(lq) - 1 - idx)
        a(w_)
        if OPT['fine'] in (1, 2) and ks in (0, 10, 19):
            stamp('A', 'p3k%d' % ks)
        rr = reads(ks + NB) if ks + NB < 20 else []
        for j in range(5):
            a('v_mfma_f32_16x16x32_bf16 %s, %s, %s, %s', v(acc + 4 * j, 4), v(4 * ks, 4), v(100 + 20 * (ks % NB) + 4 * j, 4),
              '0' if ks == 0 else v(acc + 4 * j, 4))
            for tg, r in pend:
                a(r)
                lq.append(tg)
            pend = [(ks + NB, r) for r in rr[2 * j:2 * j + 2]]
            if j in (0, 3) and nl < 20 and (j == 0 or ks % 2 == 0):
                oload(nl)
                nl += 1
                if nl == 20:
                    a('ds_write_b32 v%d, v248', vPW)
                    lq.append('w')

def p3_groups(vA0, vOA, acc):
    WF, vAN = 100, 241
    sP, sG, sM, sKEY, sC = 4, 5, 6, 7, 8
    pl = 'buffer_load_dword v252, v%d, s[%d:%d], s88 offen sc1' % (vOA + 1, RWS, RWS + 3)
    for g in range(4):
        a('s_sub_u32 s%d, %d, s%d', sC + g, g, sOG)
        a('s_and_b32 s%d, s%d, 3', sC + g, sC + g)
        a('s_lshl2_add_u32 s%d, s%d, %d', sC + g, sC + g, g)
    a('v_mov_b32 v248, 9')
    a('s_waitcnt lgkmcnt(0)')
    a('v_cmp_gt_u32 vcc, 8, v99')
    a('s_cbranch_vccz L_epoll')
    a('s_waitcnt vmcnt(0)')
    stamp('A', 'odrain')
    if DIAG:
        nstamp['A'].pop()
    setflag(43, 2)
    waitpw(vAPW, 8, 99, sleep=1)
    a('s_mov_b32 exec_hi, 0')
    a(pl)
    a('s_waitcnt vmcnt(0)')
    a('s_branch L_polled')
    a.label('L_epoll')
    a('s_mov_b32 exec_hi, 0')
    a(pl)
    a('s_waitcnt vmcnt(1)')
    stamp('A', 'odrain')
    setflag(43, 2)
    a('s_mov_b32 exec_hi, 0')
    a('s_waitcnt vmcnt(1)')
    a.label('L_polled')
    a('v_cmp_eq_u32 vcc, 0, v252')
    a('s_mov_b64 exec, -1')
    a('s_mov_b32 s%d, vcc_lo', sP)
    def reads(k):
        return ['ds_read_b64_tr_b16 %s, v%d offset:%d' % (v(WF + 20 * k + 4 * j + 2 * rd, 2), vAN, 5120 * k + 1280 * rd + 32 * j)
                for j in range(5) for rd in range(2)]
    def issue(sl):
        for k in range(5):
            a('buffer_load_dwordx4 %s, v%d, s[%d:%d], s%d offen offset:%d sc1', v(20 * sl + 4 * k, 4), vOA, RWS, RWS + 3,
              12 if k < 4 else 13, 1024 * (k & 3))
        if sl == 3:
            a('ds_write_b32 v%d, v248', vPW)
    for sl in range(-1, 4):
        nx = sl + 1
        Lw, Lc, Ld = a.newlabel('gw'), a.newlabel('gc'), a.newlabel('gd')
        if nx < 4:
            for g in range(4):
                a('s_bfe_u32 s14, s%d, 0x%x', sP, (8 << 16) | (8 * g))
                a('s_bcnt1_i32_b32 s14, s14')
                if g == 0:
                    a('s_lshl4_add_u32 s%d, s14, s%d', sKEY, sC)
                else:
                    a('s_lshl4_add_u32 s14, s14, s%d', sC + g)
                    a('s_min_u32 s%d, s%d, s14', sKEY, sKEY)
            a('s_and_b32 s%d, s%d, 3', sG, sKEY)
            a('s_mul_i32 s12, s%d, 5120', sG)
            a('s_add_u32 s12, s12, s85')
            a('s_add_u32 s13, s12, 4096')
            a('s_cmp_lt_u32 s%d, 16', sKEY)
            a('s_cbranch_scc0 %s', Lw)
            issue(nx)
            if sl >= 0:
                a('s_waitcnt vmcnt(5)')
            a('s_branch %s', Lc)
            a.label(Lw)
            a('s_mov_b32 exec_lo, s%d', sP)
            a('s_mov_b32 exec_hi, 0')
            a(pl)
            a('s_mov_b64 exec, -1')
            if sl >= 0:
                a('s_waitcnt vmcnt(1)')
            a.label(Lc)
            a('s_mul_i32 s14, s%d, 25600', sG)
            a('v_add_u32 v%d, s14, v%d', vAN, vA0)
            if nx < 3:
                for g in range(4):
                    a('s_cmp_eq_u32 s%d, %d', sG, g)
                    a('s_cselect_b32 s%d, 0x1000, s%d', sC + g, sC + g)
        if sl < 0:
            for k in range(5):
                for r in reads(k):
                    a(r)
        else:
            pend = []
            for k in range(5):
                if nx == 4:
                    a('s_waitcnt vmcnt(%d) lgkmcnt(%d)', 4 - k, 0 if k >= 3 else 15)
                else:
                    a('s_waitcnt lgkmcnt(15)')
                rr = reads(k) if nx < 4 else []
                for j in range(5):
                    a('v_mfma_f32_16x16x32_bf16 %s, %s, %s, %s', v(acc + 4 * j, 4), v(20 * sl + 4 * k, 4), v(WF + 20 * k + 4 * j, 4),
                      '0' if (sl == 0 and k == 0) else v(acc + 4 * j, 4))
                    for r in pend:
                        a(r)
                    pend = rr[2 * j:2 * j + 2]
            for r in pend:
                a(r)
        if nx < 4:
            a('s_cmp_lt_u32 s%d, 16', sKEY)
            a('s_cbranch_scc1 %s', Ld)
            L1, L2 = a.newlabel('gp'), a.newlabel('gq')
            a('s_lshl_b32 s14, s%d, 3', sG)
            a('s_lshl_b32 s%d, 0xff, s14', sM)
            a('s_mov_b32 exec_lo, s%d', sP)
            a('s_mov_b32 exec_hi, 0')
            a.label(L1)
            a('s_waitcnt vmcnt(0)')
            a('v_cmp_eq_u32 vcc, 0, v252')
            a('s_and_b32 s14, vcc_lo, s%d', sM)
            a('s_cbranch_scc0 %s', L2)
            a('s_mov_b64 exec, vcc')
            if OPT['psleep4']:
                a('s_sleep %d', OPT['psleep4'])
            a(pl)
            a('s_sub_u32 s%d, s%d, 1', sSPIN, sSPIN)
            a('s_cbranch_scc0 %s', L1)
            a('s_endpgm')
            a.label(L2)
            a('s_mov_b32 s%d, vcc_lo', sP)
            a('s_mov_b64 exec, -1')
            issue(nx)
            a.label(Ld)
            if nx == 3:
                stamp('A', 'f4')

def a_outproj():
    vA0, vA1, vOA, vST = 240, 241, 242, 244
    a('v_lshrrev_b32 v1, 5, v%d', vLANE)
    a('v_bfe_u32 v2, v%d, 2, 3', vLANE)
    a('v_lshl_add_u32 v1, v1, 4, v2')
    a('v_mul_u32_u24 v1, 160, v1')
    a('v_and_b32 v2, 3, v%d', vLANE)
    a('v_lshl_add_u32 v%d, v2, 3, v1', vA0)
    a('v_add_u32 v%d, %d, v%d', vA1, 10 * 5120, vA0)
    a('v_lshlrev_b32 v%d, 4, v%d', vOA, vLANE)
    a('v_lshrrev_b32 v1, 4, v%d', vLANE)
    a('v_mul_u32_u24 v1, %d, v1', 4 * 5120)
    a('v_and_b32 v2, 15, v%d', vLANE)
    a('v_lshl_add_u32 v%d, v2, 2, v1', vST)
    for r in range(1, 4):
        a('v_add_u32 v%d, %d, v%d', vST + r, 5120 * r, vST)
    a('s_mul_i32 s84, s%d, 2560', sOG)
    a('v_min_u32 v248, 19, v%d', vLANE)
    a('v_lshl_add_u32 v248, v248, 7, s84')
    a('s_lshl2_add_u32 s84, s%d, s%d', sTB, sW)
    a('s_mul_i32 s85, s84, %d', OBLK)
    a('s_add_u32 s85, s85, 0x%x', WS_O)
    a('s_mul_i32 s86, s84, %d', 16 * 5120)
    a('s_mul_i32 s88, s%d, 320', sOG)
    a('s_add_u32 s86, s86, s88')
    a('v_lshlrev_b32 v%d, 7, v%d', vOA + 1, vLANE)
    a('s_lshl_b32 s88, s%d, 12', sTB)
    a('s_add_u32 s88, s88, 0x%x', F4)
    acc = 80
    if OPT['p3dyn']:
        p3_groups(vA0, vOA, acc)
    else:
        p3_static(vA0, vA1, vOA, acc)
    a('s_nop 3')
    for j in range(5):
        for r in range(4):
            a('buffer_store_dword v%d, v%d, s[%d:%d], s86 offen offset:%d%s', acc + 4 * j + r, vST + r, R4, R4 + 3, 64 * j, OSC)
    finish('A')

vXR, vBR, vA0PW = 96, 100, 107
vL, vE, vHW, vHR0, vHR1, vHS, vCH, vCHL, vHH, vP01, vTCH, vHINT = 146, 150, 151, 152, 153, 154, 155, 156, 157, 158, 159, 160
vDX, vDW, vDBX, vDBB = 161, 165, 169, 173
vZ, vWOA, vPAR = 176, 186, 200
vCA, vCR, vHA, vF3, vXO, vDO, vC16, vAM, vOA, vRA = 224, 226, 228, 229, 230, 231, 232, 233, 234, 235
vR1W, vR1R, vR2W, vPW1, vPW2, vS2PW, vHT, vCT = 237, 238, 239, 240, 241, 242, 243, 244
vSPW = 252
L_Z, L_H = L_HT + 1024, 124928
SENT = 0xffffffff

def s_stage(t, emit=None):
    out = []
    slot = (t % 4) * 32768
    if OPT['stag'] >= 5 and t < 10:
        base, size = {0: (0, 4), 1: (4, 4), 2: (8, 2)}[t // 4] if OPT['stag'] != 7 else ((0, 2) if t < 2 else ((2, 4) if t < 6 else (6, 4)))
        out += ['s_add_u32 s82, s81, %d' % t, 's_and_b32 s82, s82, %d' % (size - 1), 's_add_u32 s82, s82, %d' % base,
                's_add_u32 s82, s82, s85', 's_cmp_ge_u32 s82, 10', 's_cselect_b32 s83, 10, 0', 's_sub_u32 s82, s82, s83']
    out.append('s_add_u32 m0, s74, %d' % slot)
    out.append('s_lshl_b32 s83, s82, 7')
    out.append('s_add_u32 s76, s72, s83')
    if t < 10:
        out += [dma(vDX + i, R0, 76, 1024 * i) for i in range(4)]
        out.append('s_add_u32 m0, s74, %d' % (slot + 16384))
        out.append('s_mul_i32 s83, s82, 245760')
        out.append('s_add_u32 s76, s73, s83')
        out += [dma(vDW + i, R1, 76, 1024 * i) for i in range(4)]
    else:
        out += [dma(vDBX + i, R3, 76, 1024 * i) for i in range(4)]
        out.append('s_add_u32 m0, s75, %d' % (slot + 16384))
        out.append('s_add_u32 s76, s77, s83')
        out += [dma(vDBB + i, R4, 76, 1024 * i) for i in range(3)]
    out.append('s_add_u32 s82, s82, 1')
    out.append('s_cmp_eq_u32 s82, 10')
    out.append('s_cselect_b32 s82, 0, s82')
    if emit is None:
        L = a.newlabel('skip')
        if t < 10:
            a('s_cmp_eq_u32 s%d, 15', sCG)
            a('s_cbranch_scc1 %s', L)
        for o in out:
            a(o)
        if t < 10:
            a.label(L)
    return out

def ninstr(t):
    return 0 if t > 19 else (8 if t < 10 else 7)

def exp_acc(dst, x, t1, t2):
    L2E = math.log2(math.e)
    hi = struct.unpack('<f', struct.pack('<f', L2E))[0]
    a('s_mov_b32 s80, 0x%x', f2u(hi))
    a('v_mul_f32 v%d, s80, v%d', t1, x)
    a('v_fma_f32 v%d, v%d, s80, -v%d', t2, x, t1)
    a('v_fmac_f32 v%d, 0x%x, v%d', t2, f2u(L2E - hi), x)
    a('v_exp_f32 v%d, v%d', dst, t1)
    a('v_mul_f32 v%d, 0x%x, v%d', t2, f2u(math.log(2.0)), t2)
    a('v_fmac_f32 v%d, v%d, v%d', dst, dst, t2)

def s_setup():
    a.label('L_roleS')
    a('s_sub_u32 s%d, s%d, 4', sW, sW)
    a('v_lshrrev_b32 v1, 3, v%d', vLANE)
    a('v_and_b32 v2, 7, v%d', vLANE)
    a('v_lshrrev_b32 v3, 4, v%d', vLANE)
    a('v_xor_b32 v4, v2, v3')
    a('v_mul_u32_u24 v5, 1280, v1')
    a('v_lshl_add_u32 v%d, v4, 4, v5', vDX)
    a('v_xor_b32 v6, 64, v%d', vDX)
    a('v_add_u32 v%d, %d, v6', vDX + 1, 10240 - 1024)
    a('v_add_u32 v%d, %d, v%d', vDX + 2, 2 * (10240 - 1024), vDX)
    a('v_add_u32 v%d, %d, v6', vDX + 3, 3 * (10240 - 1024))
    a('v_and_b32 v7, 15, v%d', vLANE)
    a('v_lshlrev_b32 v8, 2, v3')
    a('v_xor_b32 v7, v7, v8')
    a('v_mul_u32_u24 v8, 3840, v3')
    a('v_lshl_add_u32 v%d, v7, 4, v8', vDW)
    for i in range(1, 4):
        a('v_add_u32 v%d, %d, v%d', vDW + i, (15360 - 1024) * i, vDW)
    a('s_lshl2_add_u32 s72, s%d, s%d', sRB, sW)
    a('s_mul_i32 s72, s72, %d', 32 * 1280)
    a('s_mul_i32 s73, s%d, %d', sW, 16 * 3840)
    a('s_lshl_b32 s70, s%d, 8', sCG)
    a('s_add_u32 s73, s73, s70')
    a('s_lshl_b32 s74, s%d, 12', sW)
    if OPT['stag'] <= 4:
        stagger(82, 83, 0, 0, OPT['stag'])
    else:
        a('s_add_u32 s81, s%d, s%d', sI, sOG)
        a('s_add_u32 s85, s%d, 1', sXCD)
        a('s_lshr_b32 s85, s85, 1')
        a('s_mul_i32 s85, s85, %d', 2 if OPT['stag'] == 5 else 0)
    a('s_waitcnt lgkmcnt(0)')
    srd(R0, sAX, 2048 * 1280)
    srd(R1, sWQ, 640 * 3840)
    if DIAG:
        ws_setup()
    stamp('S', 'start')
    s_stage(0)
    if not DIAG:
        prologue2()
        ws_setup()
    if OPT['fine'] == 1:
        stamp('S', 'iss0')
    def params():
        a('s_mul_i32 s70, s%d, 40', sCG)
        a('v_min_u32 v9, 39, v%d', vLANE)
        a('v_add_lshl_u32 v9, v9, s70, 1')
        a('global_load_ushort v10, v9, s[%d:%d]', sLDT, sLDT + 1)
        a('global_load_ushort v11, v9, s[%d:%d]', sLRE, sLRE + 1)
        a('global_load_ushort v12, v9, s[%d:%d]', sLIM, sLIM + 1)
    params()
    n0 = len(a.lines)
    b1_sources(R3, R4, vDBX, vDBB, 75, 77, 70)
    a('v_and_b32 v5, 3, v%d', vLANE)
    a('v_lshlrev_b32 v5, 8, v5')
    a('v_lshl_add_u32 v5, v%d, 2, v5', vLANE)
    a('v_add_u32 v%d, %d, v5', vSPW, L_PW + 1024)
    s_addresses()
    if OPT['slate']:
        late = a.lines[n0:]
        del a.lines[n0:]
        k = 0
        nch = OPT['slate']
        for c in range(nch):
            e = len(late) * (c + 1) // nch
            while e < len(late) and ('cselect' in late[e] or 'cndmask' in late[e] or 'cndmask' in late[e + 1] or 'cndmask' in late[min(e + 2, len(late) - 1)]):
                e += 1
            SLATE.append(late[k:e])
            k = e
    s_stage(1)
    if OPT['fine'] == 1:
        stamp('S', 'iss1')
    a('s_waitcnt vmcnt(11) lgkmcnt(0)')
    stamp('S', 'st0')
    a('s_barrier')
    s_stage(2)
    slate()
    a('s_waitcnt vmcnt(8)')
    a('s_barrier')
    s_stage(3)
    s_stage(4)

SLATE = []

def slate():
    if SLATE:
        a.lines.extend(SLATE.pop(0))

def s_addresses():
    c, g, t0, t1, t2 = 40, 41, 42, 43, 44
    a('v_and_b32 v%d, 15, v%d', c, vLANE)
    a('v_lshrrev_b32 v%d, 4, v%d', g, vLANE)
    a('v_lshrrev_b32 v%d, 1, v%d', t0, c)
    a('v_xor_b32 v%d, v%d, v%d', t0, t0, g)
    a('v_lshlrev_b32 v%d, 4, v%d', t0, t0)
    a('v_lshl_add_u32 v%d, v%d, 7, v%d', t0, c, t0)
    a('v_xor_b32 v%d, 64, v%d', t1, t0)
    a('v_add_u32 v%d, s74, v%d', vXR, t0)
    a('v_add_u32 v%d, s74, v%d', vXR + 1, t1)
    a('s_mul_i32 s70, s%d, %d', sW, REGSZ)
    a('s_add_u32 s70, s70, %d', L_REG)
    a('v_add_u32 v%d, s70, v%d', vCR, t0)
    a('v_add_u32 v%d, s70, v%d', vCR + 1, t1)
    a('v_lshrrev_b32 v%d, 3, v%d', t2, c)
    a('v_lshl_add_u32 v%d, v%d, 12, v%d', t0, t2, t0)
    a('v_add_u32 v%d, 16384, v%d', vBR, t0)
    a('v_xor_b32 v%d, 64, v%d', vBR + 1, vBR)
    for k in range(2):
        a('v_add_u32 v%d, 0x10000, v%d', vXR + 2 + k, vXR + k)
        a('v_add_u32 v%d, 0x10000, v%d', vBR + 2 + k, vBR + k)
    a('v_and_b32 v%d, 7, v%d', t0, vLANE)
    a('v_lshlrev_b32 v%d, 2, v%d', t2, t2)
    a('v_lshl_add_u32 v%d, v%d, 3, v%d', t0, t0, t2)
    a('v_add_u32 v%d, %d, v%d', vHH, L_H, t0)
    a('v_mul_u32_u24 v%d, 320, v%d', t1, g)
    a('s_mul_i32 s71, s%d, 1280', sW)
    a('s_add_u32 s71, s71, %d', L_EL)
    a('v_add3_u32 v%d, v%d, v%d, s71', vE, t0, t1)
    a('v_lshlrev_b32 v%d, 3, v%d', vCH, vLANE)
    a('v_add_u32 v%d, %d, v%d', vCHL, L_H, vCH)
    a('v_lshlrev_b32 v%d, 9, v%d', vHINT, vLANE)
    a('v_lshlrev_b32 v%d, 2, v%d', vA0PW, vLANE)
    a('v_add_u32 v%d, %d, v%d', vA0PW, L_PW, vA0PW)
    a('v_add_u32 v%d, %d, v%d', vS2PW, 1024 + 512, vA0PW)
    a('v_and_b32 v%d, 0x%x, v%d', vP01, 0xffffffff ^ 512, vSPW)
    a('v_xor_b32 v%d, 256, v%d', vPW1, vPW)
    a('v_xor_b32 v%d, 512, v%d', vPW2, vPW)
    a('v_and_b32 v%d, 1, v%d', t0, vLANE)
    a('v_lshlrev_b32 v%d, 9, v%d', t0, t0)
    a('v_xor_b32 v%d, v%d, v%d', t0, t0, vPW)
    a('v_subrev_u32 v%d, 1024, v%d', vAM, t0)
    a('v_mov_b32 v%d, 16', vC16)
    a('v_bfe_u32 v%d, v%d, 1, 2', t0, vLANE)
    a('v_xor_b32 v%d, v%d, v%d', t0, t0, g)
    a('v_lshlrev_b32 v%d, 4, v%d', t0, t0)
    a('s_mul_i32 s71, s%d, 5120', sW)
    a('s_add_u32 s71, s71, %d', L_HT)
    a('v_lshl_add_u32 v%d, v%d, 6, v%d', t0, c, t0)
    a('v_add_u32 v%d, s71, v%d', vHW, t0)
    a('v_bfe_u32 v%d, v%d, 2, 2', t0, vLANE)
    a('v_lshrrev_b32 v%d, 5, v%d', t1, vLANE)
    a('v_lshl_add_u32 v%d, v%d, 3, v%d', vHR0, t1, t0)
    a('v_lshlrev_b32 v%d, 6, v%d', vHR0, vHR0)
    a('v_mul_u32_u24 v%d, %d, v%d', vHS, 80 * 256, t1)
    a('v_lshrrev_b32 v%d, 1, v%d', t0, t0)
    a('v_bfe_u32 v%d, v%d, 4, 1', t1, vLANE)
    a('v_bfe_u32 v%d, v%d, 1, 1', t2, vLANE)
    a('v_lshl_add_u32 v%d, v%d, 1, v%d', t2, t1, t2)
    a('v_xor_b32 v%d, v%d, v%d', t2, t2, t0)
    a('v_lshl_add_u32 v%d, v%d, 4, v%d', vHR0, t2, vHR0)
    a('v_and_b32 v%d, 1, v%d', t2, vLANE)
    a('v_lshl_add_u32 v%d, v%d, 3, v%d', vHR0, t2, vHR0)
    a('v_xor_b32 v%d, 32, v%d', vHR1, vHR0)
    a('v_add_u32 v%d, s71, v%d', vHR0, vHR0)
    a('v_add_u32 v%d, s71, v%d', vHR1, vHR1)
    a('v_mul_u32_u24 v%d, %d, v%d', t1, HBLK, t1)
    a('v_lshl_add_u32 v%d, v%d, 4, v%d', t1, c, t1)
    a('v_add_u32 v%d, v%d, v%d', vHS, vHS, t1)
    a('v_mov_b32 v%d, v%d', vCA, vDX)
    a('v_mov_b32 v%d, v%d', vCA + 1, vDX + 1)
    a('v_lshlrev_b32 v%d, 4, v%d', vHA, vLANE)
    a('v_lshlrev_b32 v%d, 7, v%d', vF3, vLANE)
    a('v_min_u32 v%d, %d, v%d', vHT, 39 * 128, vF3)
    a('v_min_u32 v%d, %d, v%d', vTCH, 24 * 128, vF3)
    a('s_lshl2_add_u32 s71, s%d, s%d', sI, sW)
    a('s_mul_i32 s71, s71, 6400')
    a('v_add_u32 v%d, s71, v%d', vTCH, vTCH)
    a('v_min_u32 v%d, %d, v%d', vCT, 49 * 128, vF3)
    a('v_cmp_le_u32 vcc, 25, v%d', vLANE)
    a('v_add_u32 v%d, 3200, v%d', t0, vCT)
    a('s_and_b32 s71, s%d, 1', sW)
    a('v_cndmask_b32 v%d, v%d, v%d, vcc', vCT, vCT, t0)
    a('s_lshl1_add_u32 s71, s%d, s71', sI)
    a('s_mul_i32 s71, s71, 12800')
    a('v_add_u32 v%d, s71, v%d', vCT, vCT)
    a('s_xor_b32 s92, s%d, 1', sW)
    a('s_mul_i32 s92, s92, %d', REGSZ)
    a('s_add_u32 s92, s92, %d', L_REG)
    a('s_xor_b32 s93, s%d, 3', sW)
    a('s_mul_i32 s93, s93, %d', REGSZ)
    a('s_add_u32 s93, s93, %d', L_REG + 16 * 336)
    a('v_add_u32 v%d, s70, v%d', vR1W, vHA)
    a('v_add_u32 v%d, s92, v%d', vR1R, vHA)
    a('v_mul_u32_u24 v%d, 336, v%d', t0, c)
    a('v_and_b32 v%d, 48, v%d', t1, vLANE)
    a('v_add3_u32 v%d, v%d, v%d, s92', vR2W, t0, t1)
    a('v_lshrrev_b32 v%d, 2, v%d', t0, vLANE)
    a('v_and_b32 v%d, 3, v%d', t1, vLANE)
    a('v_lshlrev_b32 v%d, 3, v%d', vDO, t1)
    a('v_mul_u32_u24 v%d, 1280, v%d', t2, t0)
    a('v_add_u32 v%d, v%d, v%d', vXO, t2, vDO)
    a('v_lshlrev_b32 v%d, 4, v%d', t1, t1)
    a('v_lshl_add_u32 v%d, v%d, 2, v%d', vOA, t2, t1)
    a('v_mul_u32_u24 v%d, 336, v%d', t2, t0)
    a('v_add3_u32 v%d, v%d, v%d, s92', vRA, t2, t1)
    a('v_add3_u32 v%d, v%d, v%d, s93', vRA + 1, t2, t1)
    if not OPT['wopack']:
        s_wooffs()

def s_params():
    a('s_cmp_eq_u32 s%d, 0', sW)
    a('s_cbranch_scc0 L_nopar')
    for r in (10, 11, 12):
        a('v_lshlrev_b32 v%d, 16, v%d', r, r)
    exp_acc(13, 10, 14, 15)
    a('v_cvt_pk_bf16_f32 v13, v13, v13')
    a('v_and_b32 v13, 0xffff0000, v13')
    a('v_mul_f32 v14, v13, v11')
    a('v_mul_f32 v15, v13, v12')
    exp_acc(16, 14, 17, 18)
    I2P = 1.0 / (2 * math.pi)
    hi = struct.unpack('<f', struct.pack('<f', I2P))[0]
    a('s_mov_b32 s80, 0x%x', f2u(hi))
    a('v_mul_f32 v17, s80, v15')
    a('v_rndne_f32 v17, v17')
    a('v_fma_f32 v17, v15, s80, -v17')
    a('v_fmac_f32 v17, 0x%x, v15', f2u(I2P - hi))
    a('v_cos_f32 v20, v17')
    a('v_sin_f32 v21, v17')
    a('v_mul_f32 v18, v11, v11')
    a('v_fmac_f32 v18, v12, v12')
    a('v_rcp_f32 v19, v18')
    a('v_mul_f32 v20, v16, v20')
    a('v_mul_f32 v21, v16, v21')
    a('v_fma_f32 v18, -v18, v19, 1.0')
    a('v_fmac_f32 v19, v19, v18')
    a('v_add_f32 v19, v19, v19')
    a('v_add_f32 v17, -1.0, v20')
    a('v_mul_f32 v22, v17, v11')
    a('v_fmac_f32 v22, v21, v12')
    a('v_mul_f32 v23, v17, v12')
    a('v_fma_f32 v23, -v21, v11, v23')
    a('v_mul_f32 v22, v22, v19')
    a('v_mul_f32 v23, v23, v19')
    a('v_lshlrev_b32 v9, 4, v%d', vLANE)
    a('v_add_u32 v9, %d, v9', L_PAR)
    a('ds_write_b128 v9, v[20:23]')
    a('v_mov_b32 v24, v20')
    a('v_sub_f32 v25, 0, v21')
    for k in range(3):
        a('v_mul_f32 v26, v25, v25')
        a('v_add_f32 v27, v24, v24')
        a('v_fma_f32 v24, v24, v24, -v26')
        a('v_mul_f32 v25, v27, v25')
    a.label('L_nopar')

def s_params2():
    a('s_cmp_eq_u32 s%d, 0', sW)
    a('s_cbranch_scc0 L_nopar2')
    a('s_mov_b32 exec_hi, 0xff')
    a('v_mov_b32 v14, 1.0')
    a('v_mov_b32 v15, 0')
    a('ds_write_b64 v%d, v[14:15] offset:%d', vCHL, L_Z - L_H)
    a('ds_write_b64 v%d, v[24:25] offset:%d', vCHL, L_Z - L_H + 320)
    src = 24
    for sg in range(2, 17):
        dst = 16 + 2 * (sg % 3)
        a('v_mul_f32 v%d, v24, v%d', dst, src)
        a('v_mul_f32 v%d, v24, v%d', dst + 1, src + 1)
        a('v_fma_f32 v%d, -v25, v%d, v%d', dst, src + 1, dst)
        a('v_fmac_f32 v%d, v25, v%d', dst + 1, src)
        a('ds_write_b64 v%d, %s offset:%d', vCHL, v(dst, 2), L_Z - L_H + 320 * sg)
        src = dst
    a('s_mov_b32 exec_hi, -1')
    a('s_waitcnt lgkmcnt(0)')
    a.label('L_nopar2')

def s_wooffs():
    for i in range(5):
        a('v_add_u32 v40, %d, v%d', 64 * i, vLANE)
        a('v_mul_u32_u24 v41, 6554, v40')
        a('v_lshrrev_b32 v41, 16, v41')
        a('v_mul_u32_u24 v42, 10, v41')
        a('v_sub_u32 v40, v40, v42')
        tau(42, 41, 43)
        a('v_mul_u32_u24 v42, 1280, v42')
        a('v_lshl_add_u32 v%d, v40, 4, v42', vWOA + i)
        if 0 < i < 4:
            a('v_subrev_u32 v%d, %d, v%d', vWOA + i, 1024 * i, vWOA + i)

def s_qloader():
    early = {1: {7: 10}, 2: {7: 10, 9: 11}, 3: {7: 10, 8: 11, 9: 12}, 0: {}}[OPT['st10']]
    q = [2] * 8 + [3] * 8 + [4] * 8
    for st in range(2, 10):
        a('s_waitcnt vmcnt(%d)', len(q) - 1 - max(i for i, x in enumerate(q) if x == st))
        if OPT['fine'] == 1 and st in (3, 5, 7, 9):
            stamp('S', 'st%d' % st)
        a('s_barrier')
        if st == 6:
            a('v_and_b32 v32, 15, v%d', vLANE)
            a('v_lshlrev_b32 v32, 4, v32')
            a('v_mov_b32 v33, 1')
            a('s_cmp_eq_u32 s%d, 3', sW)
            a('s_cbranch_scc0 L_nodbg')
            a(dbgload(32, 33))
            a.label('L_nodbg')
            a('s_cmp_eq_u32 s%d, 15', sCG)
            a('s_cbranch_scc0 L_cw')
            a('s_waitcnt vmcnt(0)')
            a.label('L_cw')
        if st <= 6:
            s_stage(st + 3)
            q += [st + 3] * 8
            slate()
        if st == OPT['pretouch']:
            a('s_cmp_eq_u32 s%d, 2', sW)
            a('s_cselect_b32 s70, s%d, s%d', sBRE, sBIM)
            a('s_cselect_b32 s71, s%d, s%d', sBRE + 1, sBIM + 1)
            a('s_mul_i32 s83, s2, 3200')
            a('s_lshl1_add_u32 s84, s2, s%d', sW)
            a('s_mul_i32 s84, s84, 5120')
            a('s_cmp_lt_u32 s%d, 2', sW)
            a('s_cselect_b32 s70, s%d, s70', sBX)
            a('s_cselect_b32 s71, s%d, s71', sBX + 1)
            a('s_cselect_b32 s83, s84, s83')
            a('s_cselect_b32 s84, 39, 24')
            a('v_min_u32 v30, s84, v%d', vLANE)
            a('v_lshl_add_u32 v30, v30, 7, s83')
            a('global_load_dword v31, v30, s[70:71]')
            q.append('t')
        if st == 7:
            stagger(82, 83, 0, OPT['flip'], OPT['stagb'])
        if st in early:
            s_stage(early[st])
            q += [early[st]] * 7
        if st == 7:
            s_params()
        if st == 8:
            s_params2()

    a('v_cmp_eq_u32 vcc, 0, v33')
    a('s_cbranch_vccz L_clrok')
    pollflags([dbgload(32, 33)], 33, sleep=8)
    a.label('L_clrok')
    a('s_barrier')
    stamp('S', 'qend')
    s_consts()

def s_consts():
    a('v_and_b32 v6, 7, v%d', vLANE)
    a('v_lshlrev_b32 v6, 4, v6')
    a('v_add_u32 v6, %d, v6', L_PAR)
    for j in range(5):
        a('ds_read_b128 %s, v6 offset:%d', v(vPAR + 4 * j, 4), 128 * j)
    a('v_and_b32 v7, -8, v%d', vE)
    a('v_subrev_u32 v7, %d, v7', L_EL - L_Z)
    for j in range(5):
        a('ds_read_b64 %s, v7 offset:%d', v(vZ + 2 * j, 2), 64 * j)
    a('s_cmp_eq_u32 s%d, 0', sW)
    a('s_cselect_b32 s70, 1, 16')
    a('s_mul_i32 s70, s70, 320')
    a('v_add_u32 v8, s70, v%d', vCHL)
    a('ds_read_b64 %s, v8 offset:%d', v(vL, 2), L_Z - L_H)
    a('v_bfe_u32 v5, v%d, 3, 1', vLANE)
    a('v_lshlrev_b32 v5, 31, v5')
    a('v_xor_b32 v4, 0x80000000, v5')
    a('s_waitcnt lgkmcnt(0)')
    for j in range(5):
        a('v_xor_b32 v%d, v5, v%d', vPAR + 4 * j + 1, vPAR + 4 * j + 1)
        a('v_xor_b32 v%d, v5, v%d', vPAR + 4 * j + 2, vPAR + 4 * j + 2)
        a('v_xor_b32 v%d, v4, v%d', vZ + 2 * j + 1, vZ + 2 * j + 1)

def touch(r, va=None):
    o = ['s_add_u32 s84, s%d, %d' % (sXCD, r),
         's_cmp_ge_u32 s84, 6', 's_cselect_b32 s85, 6, 0', 's_sub_u32 s84, s84, s85',
         's_cmp_ge_u32 s84, 6', 's_cselect_b32 s85, 6, 0', 's_sub_u32 s84, s84, s85',
         's_cmp_ge_u32 s84, 2',
         's_cselect_b32 s86, s%d, s%d' % (sCRE, sWO), 's_cselect_b32 s87, s%d, s%d' % (sCRE + 1, sWO + 1),
         's_cmp_ge_u32 s84, 4',
         's_cselect_b32 s86, s%d, s86' % sCIM, 's_cselect_b32 s87, s%d, s87' % (sCIM + 1),
         's_and_b32 s84, s84, 1', 's_mul_i32 s84, s84, 3200',
         's_add_u32 s86, s86, s84', 's_addc_u32 s87, s87, 0',
         'global_load_dword v109, v%d, s[86:87]' % (va or vTCH)]
    return o

def s_b1():
    F = [40, 68]
    def reads(t, ks, f):
        slot = t % 4
        hi, lo = slot >> 1, (slot & 1) * 32768
        r = ['ds_read_b128 %s, v%d offset:%d' % (v(f + 4 * T, 4), vXR + 2 * hi + ks, lo + 2048 * T) for T in range(2)]
        r += ['ds_read_b128 %s, v%d offset:%d' % (v(f + 8 + 4 * j, 4), vBR + 2 * hi + ks, lo + 1024 * j) for j in range(5)]
        return r
    def mfmas(f, first):
        return ['v_mfma_f32_16x16x32_bf16 %s, %s, %s, %s' % (v(8 * j + 4 * T, 4), v(f + 4 * T, 4), v(f + 8 + 4 * j, 4),
                '0' if first else v(8 * j + 4 * T, 4)) for j in range(5) for T in range(2)]
    def weave(ms, others):
        n = len(ms)
        k = 0
        for i_, m in enumerate(ms):
            a(m)
            while k < len(others) * (i_ + 1) // n:
                a(others[k])
                k += 1
    first = 10 + OPT['st10']
    a('s_lshl4_add_u32 s84, s%d, s%d', sCG, sRB)
    flagaddr(84, 84, F1, 85)
    a('s_waitcnt vmcnt(%d)', max(0, 7 * (first - 11)))
    a('s_barrier')
    for r in reads(10, 0, F[0]):
        a(r)
    for u in range(10):
        t = 10 + u
        if OPT['fine'] == 1 and u in (0, 2, 4, 6, 8):
            stamp('S', 'b1w%d' % u)
        a('s_waitcnt lgkmcnt(0)')
        m0_ = mfmas(F[0], u == 0)
        weave(m0_[:4], reads(t, 1, F[1]))
        for m in m0_[4:]:
            a(m)
        m1_ = mfmas(F[1], False)
        if u < 9:
            if t + 1 < first:
                a('s_waitcnt vmcnt(%d) lgkmcnt(0)', 7 * (first - t - 2))
            else:
                a('s_waitcnt lgkmcnt(0)')
            a('s_barrier')
            if t + 1 == first:
                a('s_cmp_eq_u32 s%d, 3', sW)
                a('s_cbranch_scc0 L_noflag')
                setflag(84, 104)
                a.label('L_noflag')
            weave(m1_[:4], reads(t + 1, 0, F[0]))
            for m in m1_[4:]:
                a(m)
        else:
            a('s_waitcnt lgkmcnt(0)')
            for m in m1_:
                a(m)
    stamp('S', 'b1gemm')

def rot5(dst, t):
    a('s_and_b32 s%d, s%d, 3', dst, sI)
    a('s_add_u32 s%d, s%d, s%d', dst, dst, sXCD)
    for _ in range(2):
        a('s_cmp_ge_u32 s%d, 5', dst)
        a('s_cselect_b32 s%d, 5, 0', t)
        a('s_sub_u32 s%d, s%d, s%d', dst, dst, t)
    if not OPT['rot5']:
        a('s_mov_b32 s%d, 0', dst)

def s_wo():
    if OPT['wopack']:
        a('s_mov_b32 s73, 0x%x', F1 + 15 * 16 * 128)
        a('s_mov_b64 exec, 0xffff')
        pollflags(['buffer_load_dword v40, v%d, s[%d:%d], s73 offen sc1' % (vF3, RWS, RWS + 3)], 40, sleep=4)
        rot5(83, 73)
        a('s_mul_i32 s75, s%d, 102400', sOG)
        a('s_add_u32 s75, s75, 0x%x', WS_WP)
        a('s_mov_b32 s77, 5')
        a.label('L_woloop')
        a('s_lshl2_add_u32 s78, s83, s%d', sW)
        a('s_mul_i32 s78, s78, 5120')
        a('s_add_u32 s79, s78, s75')
        a('s_mov_b32 m0, s78')
        for i in range(5):
            if i == 4:
                a('s_add_u32 m0, s78, 4096')
                a('s_add_u32 s79, s79, 4096')
            a('s_waitcnt vmcnt(%d)', OPT['thrw'])
            a(dma(vHA, RWS, 79, 1024 * (i & 3)).replace(' lds', ' sc1 lds'))
    else:
        srd(R0, sWO, 640 * 1280)
        rot5(83, 73)
        a('s_mul_i32 s75, s%d, 160', sOG)
        a('s_mov_b32 s77, 5')
        a.label('L_woloop')
        a('s_lshl2_add_u32 s78, s83, s%d', sW)
        a('s_mul_i32 s79, s78, 40960')
        a('s_add_u32 s79, s79, s75')
        a('s_mul_i32 s78, s78, 5120')
        a('s_mov_b32 m0, s78')
        a('s_add_u32 s73, s78, 4096')
        for i in range(5):
            if i == 4:
                a('s_mov_b32 m0, s73')
            a('s_waitcnt vmcnt(%d)', OPT['thrw'])
            a(dma(vWOA + i, R0, 79, 1024 * (i & 3)))
    a('s_add_u32 s83, s83, 1')
    a('s_cmp_eq_u32 s83, 5')
    a('s_cselect_b32 s83, 0, s83')
    a('s_sub_u32 s77, s77, 1')
    a('s_cmp_lg_u32 s77, 0')
    a('s_cbranch_scc1 L_woloop')
    for kp in range(5):
        a('s_lshl_b32 s73, s83, 7')
        a('s_add_u32 s%d, s72, s73', 4 + kp)
        a('s_lshl_b32 s%d, s83, 11', 12 + kp)
        a('s_add_u32 s83, s83, 1')
        a('s_cmp_eq_u32 s83, 5')
        a('s_cselect_b32 s83, 0, s83')

def s_scan():
    ROR = 'row_ror:8 row_mask:0xf bank_mask:0xf'
    a('s_setprio 1')
    a('s_lshl_b32 s70, s%d, 13', sCG)
    a('s_add_u32 s70, s70, 0x%x', WS_E)
    a('s_add_u32 s70, s70, s%d', sWS)
    a('s_addc_u32 s71, s%d, 0', sWS + 1)
    srd(R5, 70, 8192)
    a('s_sub_u32 s70, 15, s%d', sRB)
    a('s_lshl_b32 s70, s70, 9')
    a('s_add_u32 s71, s70, 4096')
    tmp = 40
    for j in range(5):
        for k in range(8):
            a('v_mul_f32_dpp v%d, v%d, v%d %s', tmp + k, 8 * j + k, vPAR + 4 * j + 3, ROR)
        for k in range(8):
            a('v_fma_f32 v%d, v%d, v%d, v%d', 8 * j + k, vPAR + 4 * j + 2, 8 * j + k, tmp + k)
    e = [[8 * j for j in range(5)], [50 + j for j in range(5)], [56 + j for j in range(5)]]
    cur = e[0]
    for k in range(1, 8):
        nx = e[1 + (k & 1)]
        for j in range(5):
            a('v_fma_f32 v%d, v%d, v%d, v%d', nx[j], vPAR + 4 * j, cur[j], 8 * j + k)
        for j in range(5):
            a('v_fmac_f32_dpp v%d, v%d, v%d %s', nx[j], cur[j], vPAR + 4 * j + 1, ROR)
        cur = nx
    for j in range(5):
        a('ds_write_b32 v%d, v%d offset:%d', vE, cur[j], 64 * j)
    setpw(11, 104)
    for r in range(10 - OPT['tstart'], 0 if OPT['tlate'] else 6):
        a('s_waitcnt vmcnt(0)')
        for o in touch(r):
            a(o)
    stamp('S', 'pass1')
    def chain(dst, src, add):
        a('v_fma_f32 v%d, v%d, v%d, v%d', dst, vL, src, add)
        a('v_fma_f32 v%d, v%d, v%d, v%d', dst + 1, vL, src + 1, add + 1)
        a('v_fma_f32 v%d, -v%d, v%d, v%d', dst, vL + 1, src + 1, dst)
        a('v_fmac_f32 v%d, v%d, v%d', dst + 1, vL + 1, src)
    ES = 110
    a('s_cmp_eq_u32 s%d, 1', sW)
    a('s_cbranch_scc1 L_wave1')
    a('s_cmp_eq_u32 s%d, 0', sW)
    a('s_cbranch_scc0 L_wave23')
    waitpw(vSPW, 11, 105, sleep=1)
    a('s_mov_b32 exec_hi, 0xff')
    for sg in range(16):
        a('ds_read_b64 %s, v%d offset:%d', v(ES + 2 * sg, 2), vCHL, L_EL - L_H + 320 * sg)
    a('v_mov_b32 v142, 0')
    a('v_mov_b32 v143, 0')
    a('s_waitcnt lgkmcnt(0)')
    a('ds_write_b64 v%d, v[142:143] offset:%d', vCHL, L_PL - L_H)
    for sg in range(1, 16):
        a('ds_write_b64 v%d, %s offset:%d', vCHL, v(ES + 2 * sg - 2, 2), L_PL - L_H + 320 * sg)
        chain(ES + 2 * sg, ES + 2 * sg - 2, ES + 2 * sg)
    a('v_min_u32 v%d, -2, v%d', ES + 30, ES + 30)
    a('v_min_u32 v%d, -2, v%d', ES + 31, ES + 31)
    a('buffer_store_dwordx2 %s, v%d, s[%d:%d], s70 offen sc1', v(ES + 30, 2), vCH, R5, R5 + 3)
    a('s_mov_b32 exec_hi, -1')
    setpw(12, 104)
    a('s_branch L_coldone')
    a.label('L_wave1')
    a.label('L_hint')
    a('buffer_load_dword v105, v%d, s[%d:%d], s70 offen offset:512 sc1', vHINT, R5, R5 + 3)
    a('s_waitcnt vmcnt(0)')
    a('v_cmp_eq_u32 vcc, -1, v105')
    a('s_cbranch_vccz L_hintok')
    a('s_mov_b64 exec, vcc')
    a('s_sleep 3')
    a.label('L_hint2')
    a('s_sub_u32 s%d, s%d, 1', sSPIN, sSPIN)
    a('s_cbranch_scc0 L_hint')
    a('s_endpgm')
    a.label('L_hintok')
    a('s_mov_b32 exec_lo, -1')
    a('s_mov_b32 exec_hi, 0xff')
    for k in range(15, 0, -1):
        a('buffer_load_dwordx2 %s, v%d, s[%d:%d], s%d offen offset:%d sc1', v(ES + 2 * (15 - k), 2), vCH, R5, R5 + 3,
          71 if k >= 8 else 70, 512 * (k & 7))
    a('s_waitcnt vmcnt(0)')
    a('v_max_u32 v105, v%d, v%d', ES, ES + 1)
    for n in range(1, 15):
        a('v_max3_u32 v105, v105, v%d, v%d', ES + 2 * n, ES + 2 * n + 1)
    a('v_cmp_eq_u32 vcc, -1, v105')
    a('s_cbranch_vccnz L_hint2')
    for n in range(1, 15):
        chain(ES + 2 * n, ES + 2 * n - 2, ES + 2 * n)
    a('ds_write_b64 v%d, %s', vCHL, v(ES + 28, 2))
    a('s_mov_b32 exec_hi, -1')
    setpw(12, 104)
    a('s_branch L_coldone')
    a.label('L_wave23')
    if OPT['gtouch']:
        a('s_cmp_eq_u32 s%d, 2', sW)
        a('s_cbranch_scc0 L_coldone')
        a('v_min_u32 v106, %d, v%d', 24 * 128, vF3)
        a('s_mul_i32 s78, s2, 3200')
        a('v_add_u32 v106, s78, v106')
        if OPT['gtouch'] == 1:
            waitpw(vA0PW, 5, 105, sleep=2)
        for p in (sCRE, sCIM, sWO):
            a('global_load_dword v109, v106, s[%d:%d]', p, p + 1)
    if OPT['tearly']:
        waitpw(vA0PW, 5, 105, sleep=2)
    for r in range(OPT['tearly']):
        for o in touch(r, vCT):
            a(o)
        if r + 1 < OPT['tearly']:
            a('s_waitcnt vmcnt(0)')
    a.label('L_coldone')
    a('s_lshl2_add_u32 s70, s%d, s%d', sRB, sW)
    a('s_mul_i32 s71, s70, %d', 2 * HBLK)
    a('s_mul_i32 s78, s%d, 1280', sCG)
    a('s_add_u32 s71, s71, s78')
    a('s_add_u32 s71, s71, 0x%x', WS_H)
    a('s_lshl4_add_u32 s70, s70, s%d', sCG)
    flagaddr(70, 70, F3, 78)
    waitpw(vP01, 12, 105, sleep=4)
    stamp('S', 'carry')
    for j in range(5):
        a('ds_read_b32 v%d, v%d offset:%d', 50 + j, vE, L_PL - L_EL + 64 * j)
        a('ds_read_b32 v%d, v%d offset:%d', 56 + j, vHH, 64 * j)
    a('s_waitcnt lgkmcnt(0)')
    for j in range(5):
        a('v_fmac_f32 v%d, v%d, v%d', 50 + j, vZ + 2 * j, 56 + j)
    for j in range(5):
        a('v_fmac_f32_dpp v%d, v%d, v%d %s', 50 + j, 56 + j, vZ + 2 * j + 1, ROR)
    for k in range(8):
        pr = [50 + j if k == 0 else 8 * j + k - 1 for j in range(5)]
        for j in range(5):
            a('v_fmac_f32 v%d, v%d, v%d', 8 * j + k, vPAR + 4 * j, pr[j])
        for j in range(5):
            a('v_fmac_f32_dpp v%d, v%d, v%d %s', 8 * j + k, pr[j], vPAR + 4 * j + 1, ROR)
    for j in range(5):
        for q in range(4):
            a('v_cvt_pk_bf16_f32 v%d, v%d, v%d', 64 + 4 * j + q, 8 * j + 2 * q, 8 * j + 2 * q + 1)
        a('ds_write_b128 v%d, %s offset:%d', vHW, v(64 + 4 * j, 4), 1024 * j)
        a('ds_read_b64_tr_b16 %s, v%d offset:%d', v(110 + 4 * j, 2), vHR0, 1024 * j)
        a('ds_read_b64_tr_b16 %s, v%d offset:%d', v(110 + 4 * j + 2, 2), vHR1, 1024 * j + 256)
    for j in range(5):
        a('s_waitcnt lgkmcnt(%d)', 12 - 3 * j)
        a('buffer_store_dwordx4 %s, v%d, s[%d:%d], s71 offen offset:%d sc1', v(110 + 4 * j, 4), vHS, RWS, RWS + 3, 256 * j)
    setpw(13, 104)

def s_b3():
    NS = 4
    acc, HF, CF = 0, 80, [208, 216]
    a('s_cmp_ge_u32 s%d, 2', sW)
    a('s_cselect_b32 s78, s%d, s%d', sCIM, sCRE)
    a('s_cselect_b32 s79, s%d, s%d', sCIM + 1, sCRE + 1)
    srd(R1, 78, 640 * 1280)
    srd(R6, sOUT, 2048 * 1280 * 4)
    a('s_mul_i32 s74, s%d, %d', sW, REGSZ)
    a('s_add_u32 s74, s74, %d', L_REG)
    a('s_and_b32 s78, s%d, 1', sW)
    a('s_mul_i32 s72, s%d, %d', sOG, 80 * 1280)
    a('s_mul_i32 s73, s78, 640')
    a('s_add_u32 s72, s72, s73')
    a('s_mul_i32 s79, s%d, %d', sW, 40 * 256)
    a('s_add_u32 s79, s79, 0x%x', WS_H)
    a('s_lshr_b32 s80, s%d, 1', sW)
    a('s_lshl1_add_u32 s78, s78, s80')
    for l in range(4):
        a('s_xor_b32 s80, s78, %d', l)
        a('s_lshl2_add_u32 s80, s%d, s80', sTB)
        a('s_mul_i32 s80, s80, %d', HBLK)
        a('s_add_u32 s%d, s80, s79', 84 + l)
    a('s_lshl_b32 s88, s%d, 12', sTB)
    a('s_add_u32 s88, s88, 0x%x', F3)
    a('s_lshl2_add_u32 s78, s%d, s78', sTB)
    a('s_mul_i32 s80, s78, %d', 16 * 1280)
    a('s_mul_i32 s81, s%d, 160', sOG)
    a('s_add_u32 s80, s80, s81')
    a('s_mul_i32 s82, s78, %d', 16 * 5120)
    a('s_lshl1_add_u32 s82, s81, s82')
    a('s_add_u32 s82, s82, 2560')
    a('s_add_u32 s90, s%d, s81', sDSK)
    a('s_addc_u32 s91, s%d, 0', sDSK + 1)
    a('s_lshl2_add_u32 s89, s%d, s%d', sOG, sW)
    a('s_mul_i32 s89, s89, 5120')
    a('s_mul_i32 s79, s%d, %d', sTB, 4 * HBLK)
    a('s_add_u32 s89, s89, s79')
    a('s_add_u32 s89, s89, 0x%x', WS_H)
    a('s_waitcnt vmcnt(0)')
    setflag(70, 40)
    stamp('S', 'hpub')
    if OPT['tlate']:
        for k in range(4):
            a('s_mov_b32 s%d, s%d', 4 + k, 84 + k)
        for r in range(OPT['tearly'], 6):
            for o in touch(r):
                a(o)
            a('s_waitcnt vmcnt(0)')
        for k in range(4):
            a('s_mov_b32 s%d, s%d', 84 + k, 4 + k)
    if OPT['newpre']:
        def cdma(n, pace=None):
            kp, j = divmod(n, 5)
            a('s_add_u32 m0, s74, %d', 2048 * (n % NS))
            a('s_add_u32 s76, s%d, %d', 4 + kp, 16 * 1280 * j)
            for k in range(2):
                if pace is not None:
                    a('s_waitcnt vmcnt(%d)', pace)
                a(dma(vCA + k, R1, 76, 1024 * k))
        def hload(l, ks):
            return 's_add_u32 s9, s%d, s%d\nbuffer_load_dwordx4 %s, v%d, s[%d:%d], s9 offen offset:%d sc1' % (
                84 + l, 12 + ks // 2, v(HF + 16 * (ks % 8) + 4 * l, 4), vHA, RWS, RWS + 3, 1024 * (ks & 1))
        srd(R0, sWO, 640 * 1280)
        rot5(83, 73)
        for kp in range(5):
            a('s_lshl_b32 s73, s83, 7')
            a('s_add_u32 s%d, s72, s73', 4 + kp)
            a('s_lshl_b32 s%d, s83, 11', 12 + kp)
            a('s_lshl2_add_u32 s%d, s83, s%d', 17 + kp, sW)
            a('s_add_u32 s83, s83, 1')
            a('s_cmp_eq_u32 s83, 5')
            a('s_cselect_b32 s83, 0, s83')
        a('s_mul_i32 s75, s%d, 160', sOG)
        waitpw(vSPW, 13, 41, sleep=2)
        for n in range(NS):
            cdma(n, OPT['thrw'] + 1)
        pl = 'buffer_load_dword v41, v%d, s[%d:%d], s88 offen sc1' % (vF3, RWS, RWS + 3)
        for it in range(5):
            if it == OPT['f3at']:
                a('s_mov_b32 exec_hi, 0')
                a(pl)
                a('s_mov_b32 exec_hi, -1')
            a('s_mul_i32 s79, s%d, 40960', 17 + it)
            a('s_add_u32 s79, s79, s75')
            a('s_mul_i32 s78, s%d, 5120', 17 + it)
            a('s_mov_b32 m0, s78')
            for i in range(5):
                if i == 4:
                    a('s_add_u32 m0, s78, 4096')
                a('s_waitcnt vmcnt(%d)', OPT['thrw'])
                a(dma(vWOA + i, R0, 79, 1024 * (i & 3)))
            if it == OPT['f3at']:
                a('s_mov_b32 exec_hi, 0')
                a('s_waitcnt vmcnt(5)')
                a('v_cmp_eq_u32 vcc, 0, v41')
                a('s_cbranch_vccz L_f3seen')
                a('s_mov_b64 exec, vcc')
                pollflags([pl], 41, sleep=4)
                a.label('L_f3seen')
                a('s_mov_b64 exec, -1')
                stamp('S', 'f3')
                a('buffer_load_dword v41, v%d, s[%d:%d], s89 offen sc1', vHT, RWS, RWS + 3)
        stamp('S', 'wo')
        a('v_mov_b32 v42, 14')
        for ks in range(2):
            for l in range(4):
                a('s_waitcnt vmcnt(%d)', OPT['thrw'] + 1)
                a(hload(l, ks))
        a('ds_write_b32 v%d, v42', vPW)
        a('s_setprio %d', OPT['b3prio'])
    else:
        stamp('S', 'touch')
        s_wo()
        waitpw(vSPW, 13, 40, sleep=2)
        def cdma(n):
            kp, j = divmod(n, 5)
            a('s_add_u32 m0, s74, %d', 2048 * (n % NS))
            a('s_add_u32 s76, s%d, %d', 4 + kp, 16 * 1280 * j)
            a(dma(vCA, R1, 76, 0))
            a(dma(vCA + 1, R1, 76, 1024))
        for n in range(NS):
            cdma(n)
            a('s_waitcnt vmcnt(%d)', 0 if n == NS - 1 else 4)
        setpw(14, 40)
        stamp('S', 'wo')
        a('s_cmp_eq_u32 s%d, 2', sW)
        a('s_cbranch_scc0 L_f3wait')
        a('s_mov_b32 exec_hi, 0')
        pollflags(['buffer_load_dword v40, v%d, s[%d:%d], s88 offen sc1' % (vF3, RWS, RWS + 3)], 40, sleep=4)
        setpw(15, 40)
        a.label('L_f3wait')
        waitpw(vS2PW, 15, 40, sleep=4)
        stamp('S', 'f3')
        a('s_setprio %d', OPT['b3prio'])
        def hload(l, ks):
            return 's_add_u32 s9, s%d, s%d\nbuffer_load_dwordx4 %s, v%d, s[%d:%d], s9 offen offset:%d sc1' % (
                84 + l, 12 + ks // 2, v(HF + 16 * (ks % 8) + 4 * l, 4), vHA, RWS, RWS + 3, 1024 * (ks & 1))
        a('buffer_load_dword v40, v%d, s[%d:%d], s89 offen sc1', vHT, RWS, RWS + 3)
        for ks in range(2):
            if ks:
                a('s_waitcnt vmcnt(0)')
            for l in range(4):
                a(hload(l, ks))
    def creads(n):
        return ['ds_read_b128 %s, v%d offset:%d' % (v(CF[n & 1] + 4 * k, 4), vCR + k, 2048 * (n % NS)) for k in range(2)]
    q = []
    def waitfor(tag):
        idx = max(i for i, x in enumerate(q) if x == tag)
        n = len(q) - 1 - idx
        del q[:idx + 1]
        return n
    for r in creads(0):
        a(r)
    a('s_waitcnt vmcnt(0) lgkmcnt(0)')
    stamp('S', 'b3go')
    cdma(NS)
    q += [NS, NS]
    vX, vD = HF + 32, HF + 42
    hq = [(l, ks) for ks in range(2, 10) for l in range(4)]
    STOP = OPT['b3stop']
    frag = {n: CF[n & 1] for n in range(25)}
    if STOP == 15:
        for k, n in enumerate(range(17, 21)):
            frag[n] = HF + 64 + 8 * k
    def creads(n):
        return ['ds_read_b128 %s, v%d offset:%d' % (v(frag[n] + 4 * k, 4), vCR + k, 2048 * (n % NS)) for k in range(2)]
    done = {0}
    def fetch(n):
        if n in q:
            a('s_waitcnt vmcnt(%d)', waitfor(n))
        for r in creads(n):
            a(r)
        done.add(n)
    issued = set(range(NS + 1))
    def refill(n):
        if n + NS < 25 and n + NS not in issued:
            cdma(n + NS)
            q.extend([n + NS, n + NS])
            issued.add(n + NS)
    for n in range(25):
        kp, j = divmod(n, 5)
        if n == STOP:
            last = 20 if STOP == 15 else n
            for m in range(n + 1, last + 1):
                fetch(m)
                a('s_waitcnt lgkmcnt(0)')
                refill(m)
            a('s_waitcnt vmcnt(0)')
            del q[:]
            stamp('S', 'b3stop')
            a('s_setprio 1')
            waitpw(vAM, OPT['b3res'], 245, sleep=2)
            stamp('S', 'b3res')
        nxt = n + 1
        while nxt in done:
            nxt += 1
        rd = nxt < 25 and (nxt == n + 1 or all(frag[nxt] != frag[m] for m in range(n, nxt)))
        if rd:
            fetch(nxt)
        if j == 0 and 'h%d' % kp in q:
            a('s_waitcnt vmcnt(%d)', waitfor('h%d' % kp))
        if OPT['fine'] >= 2 and n in (3, 6, 9, 12):
            stamp('S', 'u%d' % n)
        extra = []
        for _ in range(OPT['hrate']):
            if hq and (hq[0][1] < 8 or n >= 5):
                l, ks = hq.pop(0)
                extra.append(hload(l, ks))
                q.append('h%d' % (ks // 2))
        if 10 <= n < 15:
            i = n - 10
            extra += ['global_load_dwordx2 %s, v%d, s[90:91] offset:%d' % (v(vD + 2 * i, 2), vDO, 32 * i),
                      'buffer_load_dwordx2 %s, v%d, s[%d:%d], s80 offen offset:%d' % (v(vX + 2 * i, 2), vXO, R3, R3 + 3, 32 * i)]
            q += ['x', 'x']
        assert len(extra) <= 5
        cnt = 0
        for k in range(2):
            ks = 2 * kp + k
            for l in range(4):
                d = acc + 20 * l + 4 * j
                a('v_mfma_f32_16x16x32_bf16 %s, %s, %s, %s', v(d, 4), v(frag[n] + 4 * k, 4), v(HF + 16 * (ks % 8) + 4 * l, 4),
                  '0' if ks == 0 else v(d, 4))
                if cnt < len(extra):
                    a(extra[cnt])
                cnt += 1
                if cnt == 5 and rd:
                    a('s_waitcnt lgkmcnt(0)')
                    refill(nxt)
                if cnt == 5 and n == OPT['gate4']:
                    a('ds_write_b32 v%d, v%d', vPW, vC16)
    assert not hq
    stamp('S', 'b3gemm')
    T = 160
    a('s_setprio 1')
    waitpw(vAM, 7, T, sleep=2)
    for qd in range(10):
        a('ds_write_b128 v%d, %s offset:%d', vR1W, v(acc + 40 + 4 * qd, 4), 1024 * qd)
    setpw(17, T + 1)
    a('s_waitcnt vmcnt(0)')
    U = 180
    def skip(i):
        for hf in range(2):
            a('v_lshlrev_b32 v%d, 16, v%d', T + 4, vX + 2 * i + hf)
            a('v_lshlrev_b32 v%d, 16, v%d', T + 5, vD + 2 * i + hf)
            a('v_and_b32 v%d, 0xffff0000, v%d', T + 6, vX + 2 * i + hf)
            a('v_and_b32 v%d, 0xffff0000, v%d', T + 7, vD + 2 * i + hf)
            a('v_mul_f32 v%d, v%d, v%d', U + 4 * i + 2 * hf, T + 4, T + 5)
            a('v_mul_f32 v%d, v%d, v%d', U + 4 * i + 2 * hf + 1, T + 6, T + 7)
    skip(0)
    skip(1)
    waitpw(vPW1, 17, T + 1)
    for qd in (5, 6, 7, 8, 9, 0, 1, 2, 3, 4):
        a('ds_read_b128 %s, v%d offset:%d', v(acc + 40 + 4 * qd, 4), vR1R, 1024 * qd)
    skip(2)
    a('s_waitcnt lgkmcnt(0)')
    for qd in (5, 6, 7, 8, 9, 0, 1, 2, 3, 4):
        l, j = divmod(qd, 5)
        for e in range(4):
            a('v_add_f32 v%d, v%d, v%d', acc + 4 * qd + e, acc + 4 * qd + e, acc + 40 + 4 * qd + e)
        a('ds_write_b128 v%d, %s offset:%d', vR2W, v(acc + 4 * qd, 4), 16 * 336 * l + 64 * j)
        if qd == 9:
            setpw(18, T + 1)
    for i in range(5):
        a('ds_read_b128 %s, v%d offset:%d', v(acc + 40 + 8 * i, 4), vRA, 64 * i)
    skip(3)
    skip(4)
    waitpw(vPW2, 18, T + 1)
    for i in range(5):
        a('ds_read_b128 %s, v%d offset:%d', v(acc + 44 + 8 * i, 4), vRA + 1, 64 * i)
    for i in range(5):
        for e in range(4):
            a('v_add_f32 v%d, v%d, v%d', U + 4 * i + e, U + 4 * i + e, acc + 40 + 8 * i + e)
    for i in range(5):
        a('s_waitcnt lgkmcnt(%d)', 4 - i)
        for e in range(4):
            a('v_add_f32 v%d, v%d, v%d', U + 4 * i + e, U + 4 * i + e, acc + 44 + 8 * i + e)
    stamp('S', 'yrdy')
    if OPT['yhold']:
        a('v_subrev_u32 v%d, 1024, v%d', T + 2, vSPW)
        waitpw(T + 2, 9, T + 1, sleep=2)
    for i in range(5):
        a('buffer_store_dwordx4 %s, v%d, s[%d:%d], s82 offen offset:%d%s', v(U + 4 * i, 4), vOA, R6, R6 + 3, 64 * i, YSC)
    finish('S')

prologue()
s_setup()
s_qloader()
if OPT['sexit'] == 1:
    setpw(99, 40)
    finish('S')
s_b1()
if OPT['sexit'] == 2:
    setpw(99, 40)
    finish('S')
s_scan()
s_b3()
a_setup()
if not OPT['alate']:
    a_att_setup()
    a_b1_setup()
a_qphase()
a_handoff()
a_attention()
a_outproj()
a.label('L_codeend')

errs = check(a.lines)
for e_ in errs:
    print('HAZARD', e_, file=sys.stderr)

head = open('cdna_kernels/%s.s.ref' % NAME).read().split('; @launch')[0]
out = head + '; @launch grid=(256,1,1) block=(512,1,1) lds=%d\n' % LDS_BYTES
out += '''.amdgcn_target "amdgcn-amd-amdhsa--gfx950"
.text
.globl %s_kernel
.p2align 8
.type %s_kernel,@function
%s_kernel:
''' % (NAME, NAME, NAME)
out += a.text()
out += '''.section .rodata,"a"
.p2align 6
.amdhsa_kernel %s_kernel
  .amdhsa_next_free_vgpr 256
  .amdhsa_next_free_sgpr 102
  .amdhsa_accum_offset 256
  .amdhsa_group_segment_fixed_size 0
  .amdhsa_kernarg_size 120
  .amdhsa_user_sgpr_count 2
  .amdhsa_user_sgpr_kernarg_segment_ptr 1
  .amdhsa_system_sgpr_workgroup_id_x 1
.end_amdhsa_kernel
''' % NAME
open(sys.argv[1], 'w').write(out)
if DIAG:
    import json
    json.dump(nstamp, open(sys.argv[1] + '.stamps.json', 'w'))
import subprocess
r_ = subprocess.run(['clang', '-x', 'assembler', '-target', 'amdgcn-amd-amdhsa', '-mcpu=gfx950', '-c', sys.argv[1], '-o', 'chk.o'], capture_output=True, text=True)
if r_.returncode:
    print(r_.stderr[:2000])
    sys.exit(1)
if errs:
    sys.exit(1)
```

```python
import sys, math, struct
from asmlib import Asm, v, s, check

NAME = 'concat_heads__mha_block__ssm_conv_s5__prompt'
OPT = dict(diag=0, b3start=12, force_fb=0, psleep=2, fine=0, cpre=1, stag=5, b1dep=2, rot=1, thr=4, hold=3, codepre=2, psleep4=2, padto=0, outsc1=1, gate4=-1, early0=1, st10=2, b1prio=0, probe='', probewg=-1, sexit=0, b3prio=0, nocdma=0, mallpre=0, b3early=1, pretouch=-1, pace=0, pause=1, wolate=1, thrw=2, kvsplit=5, tstart=0, k2split=0, gate1='x', tlate=0, spread=1, pollat=17, tearly=0, b3stop=15, b3res=7, hrate=3, yhold=1, rot5=1, wopack=0, olead=20, allpoll=1, ysc=1, clrwide=0, nodup=1, onewait=0, vzero=1, lalign=6, lpad=0, epoll=1, npre=2, tprio=0, pgate=1, p3dyn=0, flip=1, newpre=1, f3at=2, gtouch=0, pkmerge=0, kvplain=0, acq=0, stagb=4, alate=1, slate=0, plate=1)
for a_ in sys.argv[2:]:
    k_, v_ = a_.split('=')
    OPT[k_] = v_ if k_ in ('probe', 'gate1') else int(v_)
DIAG = OPT['diag']
OSC = ['', ' sc1', ' nt', ' sc1 nt'][OPT['outsc1']]
YSC = ['', ' sc1', ' nt', ' sc1 nt'][OPT['ysc']]

def f2u(x):
    return struct.unpack('<I', struct.pack('<f', x))[0]

BLK, VOFF, VROW = 247808, 164864, 10368
WS_H, HBLK = 0x800000, 40960
WS_O, OBLK = 0xD00000, 20480
WS_E = 0xF80000
WS_F = 0xFA0000
F1, F3, F4 = WS_F, WS_F + 0x8000, WS_F + 0x28000
WS_WP = 0x1000000
WS_END = WS_WP + 8 * 102400
WS_DIAG = 0x1100000
OOB = 0x7F000000
L_HT, L_EL, L_PL, L_PAR = 131072, 151552, 156672, 161024
L_PAR = 131072 + 0
L_WO = 0
L_REG, REGSZ = 102400, 14848
L_PW = 161792
LDS_BYTES = 163840
sAX, sWQ, sWO, sBX, sLRE, sLIM, sBRE, sBIM, sCRE, sCIM, sLDT, sDSK, sOUT, sDBG, sWS = range(4, 34, 2)
sW, sI, sXCD = 34, 35, 3
R0, R1, RWS, R3, R4, R5, R6 = 36, 40, 44, 48, 52, 56, 60
sRB, sCG, sHD, sQB, sTB, sOG = 64, 65, 66, 67, 68, 69
sSPIN = 96
sHI = 94
vLANE, vPW, vTS = 254, 253, 255
SPIN_MAX = 1 << 19

a = Asm()
nstamp = {}

def stamp(role, name):
    if OPT['probe'] == role + name:
        a('s_memrealtime s[98:99]')
        a('s_waitcnt lgkmcnt(0)')
        a('s_mov_b32 s97, s98')
    if not DIAG:
        return
    l = nstamp.setdefault(role, [])
    if DIAG == 2:
        l.append(name)
        if role + name == 'Aattpro':
            a('s_memrealtime s[98:99]')
            a('s_waitcnt lgkmcnt(0)')
            a('v_writelane_b32 v%d, s98, 29', vTS)
        return
    idx = len(l)
    l.append(name)
    a('s_memtime s[98:99]')
    a('s_memrealtime s[100:101]')
    a('s_waitcnt lgkmcnt(0)')
    a('v_writelane_b32 v%d, s98, %d', vTS, idx)
    a('v_writelane_b32 v%d, s100, %d', vTS, 32 + idx)

def srd(r, base, nbytes):
    a('s_mov_b32 s%d, s%d', r, base)
    a('s_mov_b32 s%d, s%d', r + 1, base + 1)
    if isinstance(nbytes, int):
        a('s_mov_b32 s%d, 0x%x', r + 2, nbytes)
    else:
        a('s_mov_b32 s%d, %s', r + 2, nbytes)
    a('s_mov_b32 s%d, 0x20000', r + 3)

def setpw(val, tmp):
    a('v_mov_b32 v%d, %d', tmp, val)
    a('ds_write_b32 v%d, v%d', vPW, tmp)

def waitpw(vaddr, val, tmp, sleep=0):
    L = a.newlabel('pw')
    D = a.newlabel('pwd')
    a.label(L)
    a('ds_read_b32 v%d, v%d', tmp, vaddr)
    a('s_waitcnt lgkmcnt(0)')
    a('v_cmp_gt_u32 vcc, %d, v%d', val, tmp)
    a('s_cbranch_vccz %s', D)
    if sleep:
        a('s_sleep %d', sleep)
    a('s_sub_u32 s%d, s%d, 1', sSPIN, sSPIN)
    a('s_cbranch_scc0 %s', L)
    a('s_endpgm')
    a.label(D)

def pollflags(loads, tmp, sleep=1):
    L = a.newlabel('pf')
    D = a.newlabel('pfd')
    a.label(L)
    for l in loads:
        a(l)
    a('s_waitcnt vmcnt(0)')
    for i in range(1, len(loads)):
        a('v_and_b32 v%d, v%d, v%d', tmp, tmp, tmp + i)
    a('v_cmp_eq_u32 vcc, 0, v%d', tmp)
    a('s_cbranch_vccz %s', D)
    a('s_mov_b64 exec, vcc')
    if sleep:
        a('s_sleep %d', sleep)
    a('s_sub_u32 s%d, s%d, 1', sSPIN, sSPIN)
    a('s_cbranch_scc0 %s', L)
    a('s_endpgm')
    a.label(D)
    a('s_mov_b64 exec, -1')

def dbgload(va, vd):
    return 'global_load_dword v%d, v%d, s[%d:%d] sc1' % (vd, va, sDBG, sDBG + 1)

def flagaddr(dst, idx, base, t):
    a('s_lshl_b32 s%d, s%d, 7', dst, idx)
    a('s_add_u32 s%d, s%d, 0x%x', dst, dst, base)

def setflag(soff, tmp):
    a('v_mov_b32 v%d, 1', tmp)
    a('s_mov_b64 exec, 1')
    a('buffer_store_dword v%d, off, s[%d:%d], s%d sc1', tmp, RWS, RWS + 3, soff)
    a('s_mov_b64 exec, -1')

def tau(dst, src, t):
    a('v_and_b32 v%d, 0x13, v%d', dst, src)
    a('v_and_b32 v%d, 4, v%d', t, src)
    a('v_lshl_or_b32 v%d, v%d, 1, v%d', dst, t, dst)
    a('v_and_b32 v%d, 8, v%d', t, src)
    a('v_lshrrev_b32 v%d, 1, v%d', t, t)
    a('v_or_b32 v%d, v%d, v%d', dst, t, dst)

def finish(role):
    if OPT['probe'][:1] == role:
        if OPT['probe'][1:] == 'drained':
            a('s_waitcnt vmcnt(0)')
            stamp(role, 'drained')
        a('s_sub_u32 s97, s97, s100')
        a('s_mul_i32 s97, s97, 10')
        a('s_add_u32 s97, s97, 10000')
        if OPT['probewg'] >= 0:
            a('s_and_b32 s98, s2, 31')
            a('s_cmp_eq_u32 s98, %d', OPT['probewg'])
            a('s_cselect_b32 s97, s97, 0')
        L = a.newlabel('pad')
        a.label(L)
        a('s_sleep 4')
        a('s_memrealtime s[98:99]')
        a('s_waitcnt lgkmcnt(0)')
        a('s_sub_u32 s98, s98, s100')
        a('s_cmp_lt_u32 s98, s97')
        a('s_cbranch_scc1 %s', L)
    if OPT['padto']:
        L = a.newlabel('pad')
        a.label(L)
        a('s_sleep 4')
        a('s_memrealtime s[98:99]')
        a('s_waitcnt lgkmcnt(0)')
        a('s_sub_u32 s98, s98, s100')
        a('s_cmp_lt_u32 s98, %d', OPT['padto'])
        a('s_cbranch_scc1 %s', L)
    if DIAG:
        stamp(role, 'end')
        a('s_waitcnt vmcnt(0)')
        stamp(role, 'drained')
        a('s_memrealtime s[98:99]')
        a('s_waitcnt lgkmcnt(0)')
        a('v_writelane_b32 v%d, s98, 31', vTS)
        a('s_lshl_b32 s70, s2, 3')
        a('s_add_u32 s70, s70, s%d', sW)
        if role == 'S':
            a('s_add_u32 s70, s70, 4')
        a('s_lshl_b32 s70, s70, 8')
        a('s_add_u32 s70, s70, 0x%x', WS_DIAG)
        a('v_lshlrev_b32 v0, 2, v%d', vLANE)
        a('buffer_store_dword v%d, v0, s[%d:%d], s70 offen', vTS, RWS, RWS + 3)
    a('s_endpgm')

def prologue():
    a('s_cmp_ge_u32 s2, 256')
    a('s_cbranch_scc0 L_go')
    a('s_endpgm')
    a.label('L_go')
    if OPT['padto'] or DIAG or OPT['probe']:
        a('s_memrealtime s[100:101]')
    a('s_load_dwordx16 s[4:19], s[0:1], 0')
    a('s_load_dwordx8 s[20:27], s[0:1], 64')
    a('s_load_dwordx4 s[28:31], s[0:1], 96')
    a('s_load_dwordx2 s[32:33], s[0:1], 112')
    a('s_lshr_b32 s%d, s2, 3', sI)
    if OPT['codepre'] == 2:
        a.c('pull the code into L2: every half wave of an XCD touches one line')
        a('s_getpc_b64 s[76:77]')
        a('v_lshrrev_b32 v1, 5, v0')
        a('v_lshl_add_u32 v1, s%d, 4, v1', sI)
        a('v_min_u32 v1, (L_codeend - L_go) / 128 - 1, v1')
        a('v_lshlrev_b32 v1, 7, v1')
        a('global_load_dword v110, v1, s[76:77]')
    a('v_lshrrev_b32 v1, 6, v0')
    a('v_and_b32 v%d, 63, v0', vLANE)
    a('v_readfirstlane_b32 s%d, v1', sW)
    a('s_and_b32 s%d, s2, 7', sXCD)
    a('s_and_b32 s70, s%d, 3', sI)
    a('s_lshr_b32 s%d, s%d, 2', sOG, sI)
    a('s_lshr_b32 s71, s%d, 1', sXCD)
    a('s_lshl2_add_u32 s%d, s71, s70', sRB)
    a('s_and_b32 s71, s%d, 1', sXCD)
    a('s_lshl3_add_u32 s%d, s71, s%d', sCG, sOG)
    if DIAG:
        prologue2()
    a('s_cmp_ge_u32 s%d, 4', sW)
    a('s_cbranch_scc0 L_roleA')

def prologue2():
    a('v_lshlrev_b32 v%d, 2, v0', vPW)
    a('v_add_u32 v%d, %d, v%d', vPW, L_PW, vPW)
    a('v_mov_b32 v0, 0')
    a('ds_write_b32 v%d, v0', vPW)
    a('s_lshr_b32 s71, s%d, 3', sI)
    a('s_lshl2_add_u32 s%d, s%d, s71', sHD, sXCD)
    a('s_and_b32 s%d, s%d, 7', sQB, sI)
    a('s_and_b32 s70, s%d, 3', sI)
    a('s_lshl2_add_u32 s%d, s%d, s70', sTB, sXCD)
    a('s_mov_b32 s%d, 0x%x', sSPIN, SPIN_MAX)
    a('s_mov_b32 s%d, 0', sHI)
    a('s_mov_b32 s%d, -1', sHI + 1)

def ws_setup():
    srd(RWS, sWS, WS_END if not DIAG else WS_DIAG + 0x100000)
    if DIAG:
        a('v_mov_b32 v%d, 0', vTS)
        a('v_writelane_b32 v%d, s100, 30', vTS)

def stagger(k, t, add, flp, mode):
    if mode == 4:
        a('s_and_b32 s%d, s%d, 3', k, sI)
        if flp:
            a('s_xor_b32 s%d, s%d, 1', k, k)
        a('s_mul_i32 s%d, s%d, 5', k, k)
        a('s_lshr_b32 s%d, s%d, 1', k, k)
        a('s_mul_i32 s%d, s%d, 5', t, sOG)
        a('s_lshr_b32 s%d, s%d, 2', t, t)
        a('s_add_u32 s%d, s%d, s%d', k, k, t)
    elif mode in (2, 3):
        a('s_add_u32 s%d, s%d, s%d', k, sI, sOG)
        if flp:
            a('s_xor_b32 s%d, s%d, 1', k, k)
        a('s_and_b32 s%d, s%d, %d', k, k, 1 if mode == 2 else 3)
        a('s_mul_i32 s%d, s%d, 5', k, k)
        if mode == 3:
            a('s_lshr_b32 s%d, s%d, 1', k, k)
    else:
        a('s_mov_b32 s%d, 0', k)
    if mode == 0:
        a('s_mov_b32 s%d, %d', k, add)
        return
    a('s_add_u32 s%d, s%d, %d', t, sXCD, 1 + 2 * add)
    a('s_lshr_b32 s%d, s%d, 1', t, t)
    if mode == 1:
        a('s_add_u32 s%d, s%d, %d', t, sXCD, add)
    a('s_add_u32 s%d, s%d, s%d', k, k, t)
    for _ in range(2 if add else 1):
        a('s_cmp_ge_u32 s%d, 10', k)
        a('s_cselect_b32 s%d, 10, 0', t)
        a('s_sub_u32 s%d, s%d, s%d', k, k, t)

def b1_sources(rx, rb, vx, vb, sm, sb, t, j0=2):
    srd(rx, sBX, 2048 * 1280)
    a('s_cmp_ge_u32 s%d, 2', sW)
    a('s_cselect_b32 s%d, s%d, s%d', t, sBIM, sBRE)
    a('s_cselect_b32 s%d, s%d, s%d', t + 1, sBIM + 1, sBRE + 1)
    srd(rb, t, 640 * 1280)
    a('v_lshrrev_b32 v1, 3, v%d', vLANE)
    a('v_and_b32 v2, 7, v%d', vLANE)
    a('v_lshrrev_b32 v3, 4, v%d', vLANE)
    a('v_xor_b32 v4, v2, v3')
    a('v_and_b32 v5, 3, v1')
    a('v_lshrrev_b32 v6, 2, v1')
    a('v_lshl_add_u32 v5, v6, 3, v5')
    a('v_mul_u32_u24 v5, 1280, v5')
    a('v_lshl_add_u32 v%d, v4, 4, v5', vx)
    a('v_xor_b32 v6, 64, v%d', vx)
    a('v_add_u32 v%d, %d, v6', vx + 1, 16 * 1280 - 1024)
    a('v_add_u32 v%d, %d, v%d', vx + 2, 4 * 1280 - 2048, vx)
    a('v_add_u32 v%d, %d, v6', vx + 3, 20 * 1280 - 3072)
    a('s_lshr_b32 s%d, s%d, 1', t, sW)
    a('s_lshl_b32 s%d, s%d, 6', t + 1, t)
    a('v_mul_u32_u24 v5, 1280, v1')
    a('v_lshl_add_u32 v5, v4, 4, v5')
    a('v_xor_b32 v%d, s%d, v5', vb, t + 1)
    for i in range(1, 3):
        a('v_add_u32 v%d, %d, v%d', vb + i, (10240 - 1024) * i, vb)
    a('s_and_b32 s%d, s%d, 1', t + 1, sW)
    a('s_mul_i32 s%d, s%d, 5120', sm, t)
    a('s_mul_i32 s%d, s%d, %d', sb, t + 1, 1024 * j0)
    a('s_add_u32 s%d, s%d, s%d', sm, sm, sb)
    a('s_mul_i32 s%d, s%d, %d', sb, sCG, 40 * 1280)
    a('s_mul_i32 s%d, s%d, %d', t + 1, t + 1, 8 * 1280 * j0)
    a('s_add_u32 s%d, s%d, s%d', sb, sb, t + 1)

def dma(voff, r, soff, imm):
    return 'buffer_load_dwordx4 v%d, s[%d:%d], s%d offen offset:%d lds' % (voff, r, r + 3, soff, imm)

def a_b1stage(t):
    slot = (t % 4) * 32768
    a('s_add_u32 m0, s6, %d', slot)
    a('s_lshl_b32 s9, s8, 7')
    a('s_add_u32 s12, s4, s9')
    for i in range(4):
        a(dma(112 + i, R5, 12, 1024 * i))
    a('s_add_u32 m0, s7, %d', slot + 16384)
    a('s_add_u32 s12, s5, s9')
    L = a.newlabel('b3rd')
    for i in range(3):
        if i == 2 and OPT['nodup']:
            a('s_cmp_eq_u32 s%d, 1', sCW)
            a('s_cbranch_scc1 %s', L)
        a(dma(116 + i, R6, 12, 1024 * i))
    a.label(L)
    a('s_add_u32 s8, s8, 1')
    a('s_cmp_eq_u32 s8, 10')
    a('s_cselect_b32 s8, 0, s8')

sTW, sCW = 72, 73
vXA, vWA = 96, 104
vF1A = 252
vAPW = 249

def a_setup():
    a.label('L_roleA')
    if not DIAG:
        prologue2()
    a('s_waitcnt lgkmcnt(0)')
    ws_setup()
    stamp('A', 'start')
    a('s_lshr_b32 s%d, s%d, 1', sTW, sW)
    a('s_and_b32 s%d, s%d, 1', sCW, sW)
    a('s_lshl1_add_u32 s75, s%d, s%d', sRB, sTW)
    a('s_mul_i32 s74, s75, %d', BLK)
    a.c('column group 15 has no GEMM tile: these workgroups clear the flags and write the constant blocks')
    a('s_cmp_eq_u32 s%d, 15', sCG)
    a('s_cbranch_scc0 L_noconst')
    a('s_lshl2_add_u32 s77, s%d, s%d', sRB, sW)
    if OPT['clrwide']:
        a('v_lshlrev_b32 v2, 4, v%d', vLANE)
        a('v_min_u32 v3, 496, v2')
        for i in range(4):
            a('v_mov_b32 v%d, 0', 4 + i)
        a('s_mul_i32 s76, s77, 4608')
        a('s_add_u32 s76, s76, 0x%x', WS_F)
        for i in range(4):
            a('buffer_store_dwordx4 v[4:7], v2, s[%d:%d], s76 offen offset:%d sc1', RWS, RWS + 3, 1024 * i)
        a('s_add_u32 s76, s76, 4096')
        a('buffer_store_dwordx4 v[4:7], v3, s[%d:%d], s76 offen sc1', RWS, RWS + 3)
    else:
        a('v_min_u32 v1, 35, v%d', vLANE)
        a('v_lshlrev_b32 v1, 7, v1')
        a('v_mov_b32 v4, 0')
        a('s_mul_i32 s76, s77, 4608')
        a('s_add_u32 s76, s76, 0x%x', WS_F)
        a('buffer_store_dword v4, v1, s[%d:%d], s76 offen sc1', RWS, RWS + 3)
        a('v_lshlrev_b32 v2, 4, v%d', vLANE)
    for i in range(4):
        a('v_mov_b32 v%d, -1', 20 + i)
    a('s_lshl_b32 s76, s77, 11')
    a('s_add_u32 s76, s76, 0x%x', WS_E)
    for i in range(2):
        a('buffer_store_dwordx4 v[20:23], v2, s[%d:%d], s76 offen offset:%d sc1', RWS, RWS + 3, 1024 * i)
    a('v_lshrrev_b32 v1, 3, v%d', vLANE)
    a('v_mul_u32_u24 v1, %d, v1', VROW - 128)
    a('v_add_u32 v1, %d, v1', VOFF + 640 * 16 - 160 * 1024)
    a('v_mul_lo_u32 v1, v1, s%d', sCW)
    a('v_add_u32 v1, v1, v2')
    a('s_mul_i32 s76, s%d, 0x3f803f80', sCW)
    a('v_mov_b32 v8, 0x3f803f80')
    a('v_mov_b32 v9, s76')
    a('v_mov_b32 v10, v8')
    a('v_mov_b32 v11, s76')
    a('s_add_u32 s76, s74, %d', 160 * 1024)
    a('buffer_store_dwordx4 v[8:11], v1, s[%d:%d], s76 offen sc1', RWS, RWS + 3)
    a.label('L_noconst')
    if OPT['codepre'] == 1:
        a.c('pull the code into L2: each wave of an XCD touches a few lines')
        a('s_getpc_b64 s[76:77]')
        a.label('L_pc')
        a('s_sub_u32 s76, s76, L_pc - L_go')
        a('s_subb_u32 s77, s77, 0')
        a('s_lshl2_add_u32 s78, s%d, s%d', sI, sW)
        a('s_mul_i32 s78, s78, 3')
        a('v_min_u32 v1, 2, v%d', vLANE)
        a('v_add_u32 v1, s78, v1')
        a('v_min_u32 v1, (L_codeend - L_go) / 128 - 1, v1')
        a('v_lshlrev_b32 v1, 7, v1')
        a('global_load_dword v110, v1, s[76:77]')
    a.c('LDS fragment addresses for the QKV GEMM')
    a('v_and_b32 v1, 31, v%d', vLANE)
    a('v_lshrrev_b32 v2, 5, v%d', vLANE)
    a('v_bfe_u32 v3, v1, 1, 3')
    a('v_xor_b32 v3, v3, v2')
    a('v_lshlrev_b32 v3, 4, v3')
    a('v_lshl_add_u32 v3, v1, 7, v3')
    a('s_lshl_b32 s76, s%d, 13', sTW)
    a('v_add_u32 v3, s76, v3')
    for ks in range(4):
        a('v_xor_b32 v%d, %d, v3', vXA + ks, ks << 5)
        a('v_add_u32 v%d, 0x10000, v%d', vXA + 4 + ks, vXA + ks)
    a('v_bfe_u32 v4, v%d, 2, 2', vLANE)
    a('v_lshl_add_u32 v5, v2, 3, v4')
    a('v_lshlrev_b32 v5, 8, v5')
    a('v_bfe_u32 v6, v%d, 4, 1', vLANE)
    a('v_and_b32 v7, 1, v%d', vLANE)
    a('v_lshl_add_u32 v6, v6, 1, v7')
    a('s_lshl_b32 s76, s%d, 3', sCW)
    a('v_add_u32 v6, s76, v6')
    a('v_lshlrev_b32 v4, 2, v4')
    a('v_xor_b32 v6, v6, v4')
    a('v_lshl_add_u32 v5, v6, 4, v5')
    a('v_bfe_u32 v7, v%d, 1, 1', vLANE)
    a('v_lshl_add_u32 v5, v7, 3, v5')
    a('v_add_u32 v%d, 16384, v5', vWA)
    a('v_xor_b32 v%d, 64, v%d', vWA + 1, vWA)
    a('v_add_u32 v%d, 0x10000, v%d', vWA + 2, vWA)
    a('v_add_u32 v%d, 0x10000, v%d', vWA + 3, vWA + 1)

def a_qloop(vt):
    F = [64, 80]
    def reads(st, ks, f):
        slot = st % 4
        hi, lo = slot >> 1, (slot & 1) * 32768
        r = []
        for T in range(2):
            r.append('ds_read_b128 %s, v%d offset:%d' % (v(f + 4 * T, 4), vXA + 4 * hi + ks, lo + 4096 * T))
        for Tc in range(2):
            for rd in range(2):
                r.append('ds_read_b64_tr_b16 %s, v%d offset:%d' % (v(f + 8 + 4 * Tc + 2 * rd, 2), vWA + 2 * hi + Tc,
                                                                  lo + (16 * ks + 4 * rd) * 256))
        return [r[0], r[2], r[3], r[1], r[4], r[5]]
    def mfma(f, i, j, first):
        acc = (2 * i + j) * 16
        A = f + 4 * i if vt else f + 8 + 4 * i
        B = f + 8 + 4 * j if vt else f + 4 * j
        return 'v_mfma_f32_32x32x16_bf16 %s, %s, %s, %s' % (v(acc, 16), v(A, 4), v(B, 4), '0' if first else v(acc, 16))
    a('s_barrier')
    for r in reads(0, 0, F[0]):
        a(r)
    for st in range(10):
        for ks in range(4):
            cur, nxt = F[ks & 1], F[(ks + 1) & 1]
            first = st == 0 and ks == 0
            a('s_waitcnt lgkmcnt(0)')
            if ks == 3:
                a('s_barrier')
                rr = reads(st + 1, 0, nxt) if st < 9 else []
            else:
                rr = reads(st, ks + 1, nxt)
            if st == 9 and ks == 3:
                a(mfma(cur, 0, 0, False))
                a(mfma(cur, 0, 1, False))
                return [mfma(nxt, 1, 1, False), mfma(cur, 1, 0, False), mfma(cur, 1, 1, False)]
            a(mfma(cur, 0, 0, first))
            for r in rr[:3]:
                a(r)
            a(mfma(cur, 0, 1, first))
            for r in rr[3:]:
                a(r)
            a(mfma(cur, 1, 0, first))
            if not (st == 9 and ks == 2):
                a(mfma(cur, 1, 1, first))

def tailweave(ms, work):
    a(ms[0])
    a('s_nop 6')
    a(ms[1])
    a('s_nop 1')
    for o in work[:6]:
        a(o)
    a(ms[2])
    for o in work[6:]:
        a(o)

def a_pack_wo():
    a('s_lshl2_add_u32 s76, s%d, s%d', sRB, sW)
    a('s_mul_i32 s77, s76, 12800')
    a('s_add_u32 s78, s14, s77')
    a('s_addc_u32 s79, s15, 0')
    a('s_mul_i32 s76, s76, 10')
    a('s_mov_b32 s80, 0x%x', WS_WP)
    for n in range(13):
        a('v_add_u32 v60, %d, v%d', 64 * n, vLANE)
        if n == 12:
            a('v_min_u32 v60, 799, v60')
        a('v_lshlrev_b32 v61, 4, v60')
        a('global_load_dwordx4 %s, v61, s[78:79]', v(4 * n, 4))
        a('v_mul_u32_u24 v61, 820, v60')
        a('v_lshrrev_b32 v61, 16, v61')
        a('v_mul_u32_u24 v62, 80, v61')
        a('v_sub_u32 v60, v60, v62')
        a('v_add_u32 v61, s76, v61')
        a('v_mul_u32_u24 v62, 6554, v60')
        a('v_lshrrev_b32 v62, 16, v62')
        a('v_mul_u32_u24 v62, %d, v62', 6400 - 10)
        a('v_add_u32 v60, v60, v62')
        a('v_and_b32 v62, 0xfff3, v61')
        a('v_and_b32 v63, 4, v61')
        a('v_lshl_or_b32 v62, v63, 1, v62')
        a('v_bfe_u32 v63, v61, 3, 1')
        a('v_lshl_or_b32 v62, v63, 2, v62')
        a('v_mul_u32_u24 v62, 10, v62')
        a('v_add_lshl_u32 v%d, v60, v62, 4', 64 + n)
    for n in range(13):
        a('s_waitcnt vmcnt(12)')
        a('buffer_store_dwordx4 %s, v%d, s[%d:%d], s80 offen sc1', v(4 * n, 4), 64 + n, RWS, RWS + 3)
    if OPT['wopack'] > 1:
        a('v_min_u32 v60, 49, v%d', vLANE)
        a('v_lshl_add_u32 v60, v60, 7, s77')
        a('v_add_u32 v61, 6400, v60')
        for p in (sCRE, sCIM):
            a('global_load_dword v111, v60, s[%d:%d]', p, p + 1)
            a('global_load_dword v111, v61, s[%d:%d]', p, p + 1)

def a_qphase():
    a('s_cmp_ge_u32 s%d, 10', sCG)
    a('s_cbranch_scc1 L_qV')
    a('v_and_b32 v1, 31, v%d', vLANE)
    a('v_lshrrev_b32 v2, 5, v%d', vLANE)
    a('v_lshlrev_b32 v1, 4, v1')
    a('v_lshl_add_u32 v108, v2, 10, v1')
    a('s_lshl1_add_u32 s76, s%d, s%d', sCG, sCW)
    a('s_lshl_b32 s77, s76, 13')
    a('s_add_u32 s77, s77, s74')
    a('s_add_u32 s78, s77, 4096')
    a('s_mul_i32 s79, s%d, 3', sCW)
    a('s_add_u32 s79, s79, s%d', sCG)
    for _ in range(2):
        a('s_cmp_ge_u32 s79, 5')
        a('s_cselect_b32 s80, 5, 0')
        a('s_sub_u32 s79, s79, s80')
    for Tc in range(2):
        for u in range(2):
            m = 20 + 2 * (2 * Tc + u)
            a('s_cmp_eq_u32 s79, %d', (2 - 4 * Tc - 2 * u) % 5)
            a('s_cselect_b32 s%d, -1, 0', m)
            a('s_cmp_eq_u32 s79, %d', (1 - 4 * Tc - 2 * u) % 5)
            a('s_cselect_b32 s%d, -1, 0', m + 1)
    c0 = f2u(math.log2(math.e) / math.sqrt(20.0))
    a('s_mov_b32 s80, 0x%x', c0)
    ms = a_qloop(False)
    def group(Tc, u, scale):
        o = []
        P = 120 + 8 * (2 * Tc + u)
        for T in range(2):
            acc = (2 * Tc + T) * 16 + 8 * u
            if scale:
                o += ['v_mul_f32 v%d, s80, v%d' % (acc + e, acc + e) for e in range(8)]
            o += ['v_cvt_pk_bf16_f32 v%d, v%d, v%d' % (P + 4 * T + q, acc + 2 * q, acc + 2 * q + 1) for q in range(4)]
        m = 20 + 2 * (2 * Tc + u)
        o.append('s_mov_b64 exec, s[%d:%d]\nv_swap_b32 v%d, v%d\nv_swap_b32 v%d, v%d\ns_mov_b64 exec, -1' % (m, m + 1, P + 2, P + 4, P + 3, P + 5))
        for T in range(2):
            o.append('buffer_store_dwordx4 %s, v108, s[%d:%d], s%d offen offset:%d sc1' % (v(P + 4 * T, 4), RWS, RWS + 3,
                     77 + Tc, 2048 * u + 512 * T))
        return o
    a('s_cmp_ge_u32 s%d, 5', sCG)
    a('s_cbranch_scc1 L_noscale')
    tailweave(ms, group(0, 0, True) + group(0, 1, True))
    a('s_mov_b32 s81, s80')
    for i in range(32, 64, 2):
        a('v_pk_mul_f32 %s, %s, s[80:81]', v(i, 2), v(i, 2))
    a('s_branch L_qk2')
    a.label('L_noscale')
    tailweave(ms, group(0, 0, False) + group(0, 1, False))
    a.label('L_qk2')
    for o in group(1, 0, False) + group(1, 1, False):
        a(o)
    stamp('A', 'qloop')
    a('s_branch L_qdone')
    a.label('L_qV')
    a('s_cmp_eq_u32 s%d, 15', sCG)
    a('s_cbranch_scc0 L_qV2')
    a('s_lshl_b32 s76, s%d, 4', sRB)
    a('v_mov_b32 v16, s76')
    a('v_mov_b32 v17, 1')
    a('s_waitcnt vmcnt(0)')
    a('s_barrier')
    a('s_cmp_eq_u32 s%d, 0', sW)
    a('s_cbranch_scc0 L_nosig')
    a('s_mov_b64 exec, 1')
    a('global_store_dword v16, v17, s[%d:%d] sc1', sDBG, sDBG + 1)
    a('s_mov_b64 exec, -1')
    a.label('L_nosig')
    if OPT['mallpre']:
        a('v_lshlrev_b32 v1, 7, v%d', vLANE)
        a('v_min_u32 v2, %d, v1', 39 * 128)
        a('s_lshl2_add_u32 s76, s%d, s%d', sRB, sW)
        a('s_mul_i32 s76, s76, 40960')
        a('s_lshl1_add_u32 s77, s%d, s%d', sRB, sCW)
        a('s_mul_i32 s77, s77, 25600')
        for k in range(OPT['mallpre']):
            a('buffer_load_dword v111, v2, s[%d:%d], s77 offen', R6, R6 + 3)
            a('buffer_load_dword v111, v1, s[%d:%d], s76 offen', R5, R5 + 3)
            a('s_add_u32 s77, s77, 5120')
            a('s_add_u32 s76, s76, 8192')
    if OPT['wopack']:
        a_pack_wo()
    for _ in range(10):
        a('s_barrier')
    if DIAG:
        nstamp['A'].pop()
    stamp('A', 'qloop')
    a('s_branch L_qdone')
    a.label('L_qV2')
    a('s_lshl1_add_u32 s76, s%d, s%d', sCG, sCW)
    a('v_and_b32 v1, 31, v%d', vLANE)
    tau(108, 1, 2)
    a('v_lshrrev_b32 v2, 5, v%d', vLANE)
    a('v_mul_u32_u24 v2, %d, v2', VROW)
    a('v_lshl_add_u32 v108, v108, 4, v2')
    a('s_sub_u32 s76, s76, 20')
    a('s_lshl_b32 s76, s76, 10')
    a('s_add_u32 s76, s76, s74')
    a('s_add_u32 s76, s76, %d', VOFF)
    for k in range(1, 4):
        a('s_add_u32 s%d, s76, %d', 76 + k, 2 * VROW * k)
    ms = a_qloop(True)
    work = []
    n = 0
    for T in range(2):
        for Tc in range(2):
            for m in range(2):
                P = 120 + 4 * n
                n += 1
                acc = (2 * T + Tc) * 16 + 8 * m
                work += ['v_cvt_pk_bf16_f32 v%d, v%d, v%d' % (P + q, acc + 2 * q, acc + 2 * q + 1) for q in range(4)]
                work.append('buffer_store_dwordx4 %s, v108, s[%d:%d], s%d offen offset:%d sc1' % (v(P, 4), RWS, RWS + 3, 76 + 2 * T + m, 512 * Tc))
    tailweave(ms, work)
    if DIAG:
        nstamp['A'].pop()
    stamp('A', 'qloop')
    a.label('L_qdone')

vO, vS = 0, 64
KV = [128, 156]
K1A, K1B, K2, VA0, VA1, VB0, VB1 = 0, 4, 8, 12, 16, 20, 24
vQ1, vQ2 = 184, 200
vK1, vK2, vV, vIDX, vNC, vM = 208, 209, 210, 214, 216, 220
vT = 224
vMG = 240
sQH, sKH, sODD, sP5, sOFF, sKV0, sPASS, sCNT = 76, 77, 78, 79, 80, 93, 82, 83
sKVB, sKVE = 70, 71

def a_att_setup():
    a('s_and_b32 s%d, s%d, 1', sQH, sW)
    a('s_lshr_b32 s%d, s%d, 1', sKH, sW)
    a('s_and_b32 s%d, s%d, 1', sODD, sHD)
    a('s_lshr_b32 s85, s%d, 1', sHD)
    a('s_mul_i32 s%d, s85, 5', sP5)
    a('s_mul_i32 s%d, s%d, %d', sKVB, sKH, 16 * BLK)
    a('s_add_u32 s%d, s%d, %d', sKVE, sKVB, 16 * BLK)
    a('s_mul_i32 s86, s%d, %d', sQB, 2 * BLK * OPT['rot'])
    a('s_add_u32 s%d, s%d, s86', sKV0, sKVB)
    srd(R3, sWS, 32 * BLK)
    srd(R4, sOUT, 2048 * 1280 * 4)
    a('s_mov_b32 s%d, 0', sPASS)
    i, h, t, x = vT, vT + 1, vT + 2, vT + 3
    a('v_and_b32 v%d, 31, v%d', i, vLANE)
    a('v_lshrrev_b32 v%d, 5, v%d', h, vLANE)
    tau(t, i, x)
    a('s_mul_i32 s86, s%d, 3', sODD)
    a('s_add_u32 s86, s86, s%d', sP5)
    a('s_lshl_b32 s87, s86, 10')
    a('v_lshl_add_u32 v%d, v%d, 10, s87', x, h)
    a('v_lshl_add_u32 v%d, v%d, 4, v%d', vT + 4, i, x)
    a('v_lshl_add_u32 v%d, v%d, 4, v%d', vK1, t, x)
    a('v_add_u32 v%d, %d, v%d', vK1, 80 * 1024, vK1)
    a('s_add_u32 s87, s%d, 2', sP5)
    a('s_lshl1_add_u32 s87, s87, s%d', sODD)
    a('s_lshl_b32 s87, s87, 9')
    a('v_lshl_add_u32 v%d, v%d, 4, s87', vT + 5, i)
    a('v_mov_b32 v%d, 0x%x', x, OOB)
    a('v_cndmask_b32 v%d, v%d, v%d, s[%d:%d]', vT + 5, vT + 5, x, sHI, sHI + 1)
    a('s_add_u32 s87, s87, %d', 80 * 1024)
    a('v_mov_b32 v%d, s87', vK2)
    a('v_mov_b32 v%d, %d', x, 160 * 1024)
    a('v_cndmask_b32 v%d, v%d, v%d, s[%d:%d]', vK2, vK2, x, sHI, sHI + 1)
    a('v_lshl_add_u32 v%d, v%d, 4, v%d', vK2, t, vK2)
    a('s_mul_i32 s86, s%d, 20', sHD)
    a('s_lshl2_add_u32 s87, s%d, s86', sODD)
    a('s_lshl_b32 s88, s%d, 4', sODD)
    a('s_sub_u32 s88, s86, s88')
    a('v_add_u32 v%d, s87, v%d', vV, t)
    a('v_add_u32 v%d, s88, v%d', x, i)
    a('v_cmp_le_u32 vcc, 16, v%d', i)
    a('v_add_u32 v%d, 620, v%d', vT + 6, i)
    a('s_nop 0')
    a('v_cndmask_b32 v%d, v%d, v%d, vcc', vV, vV, x)
    a('v_cmp_le_u32 vcc, 20, v%d', i)
    a('v_mul_u32_u24 v%d, %d, v%d', x, VROW, h)
    a('v_add_u32 v%d, %d, v%d', x, VOFF, x)
    a('v_cndmask_b32 v%d, v%d, v%d, vcc', vV, vV, vT + 6)
    a('v_lshl_add_u32 v%d, v%d, 4, v%d', vV, vV, x)
    a('v_cmp_le_u32 vcc, %d, v%d', 21 if OPT['vzero'] else 24, i)
    a('v_mov_b32 v%d, 0x%x', x, OOB)
    a('v_mov_b32 v%d, 0xdddd', vIDX)
    a('v_cndmask_b32 v%d, v%d, v%d, vcc', vV, vV, x)
    for k in range(1, 4):
        a('v_add_u32 v%d, %d, v%d', vV + k, 2 * VROW * k, vV)
    a('s_mul_i32 s87, s85, 40')
    a('s_lshl4_add_u32 s87, s%d, s87', sODD)
    a('s_add_u32 s88, s87, 23')
    a('s_lshr_b32 s87, s87, 7')
    a('s_lshr_b32 s88, s88, 7')
    a('s_add_u32 s89, s86, 19')
    a('s_lshr_b32 s86, s86, 7')
    a('s_lshr_b32 s89, s89, 7')
    a('v_lshrrev_b32 v%d, 4, v%d', x, vLANE)
    a('s_add_u32 s90, s87, 5')
    a('v_mov_b32 v%d, s90', vF1A)
    for sel, (reg, add) in enumerate(((88, 5), (86, 10), (89, 10))):
        a('s_add_u32 s90, s%d, %d', reg, add)
        a('v_cmp_eq_u32 vcc, %d, v%d', sel + 1, x)
        a('v_mov_b32 v%d, s90', vT + 6)
        a('s_nop 0')
        a('v_cndmask_b32 v%d, v%d, v%d, vcc', vF1A, vF1A, vT + 6)
    a('v_and_b32 v%d, 15, v%d', vT + 6, vLANE)
    a('v_lshl_add_u32 v%d, v%d, 4, v%d', vF1A, vF1A, vT + 6)
    a('v_lshlrev_b32 v%d, 7, v%d', vF1A, vF1A)
    a('v_mov_b32 v%d, s87', vF1A - 1)
    a('v_mov_b32 v%d, s88', vT + 6)
    a('v_cndmask_b32 v%d, v%d, v%d, s[%d:%d]', vF1A - 1, vF1A - 1, vT + 6, sHI, sHI + 1)
    a('v_bfe_u32 v%d, v%d, 4, 1', vT + 6, vLANE)
    a('v_lshl_add_u32 v%d, v%d, 4, v%d', vF1A - 1, vF1A - 1, vT + 6)
    a('s_lshl_b32 s90, s%d, 1', sQB)
    a('v_add_lshl_u32 v%d, v%d, s90, 7', vF1A - 1, vF1A - 1)
    a('v_and_b32 v%d, 3, v%d', vAPW, vLANE)
    a('v_lshlrev_b32 v%d, 8, v%d', vAPW, vAPW)
    a('v_lshlrev_b32 v%d, 2, v%d', vAPW + 1, vLANE)
    a('v_add_u32 v%d, %d, v%d', vAPW + 1, L_PW, vAPW + 1)
    a('v_add_u32 v%d, v%d, v%d', vAPW, vAPW, vAPW + 1)
    a('s_lshl1_add_u32 s90, s%d, s%d', sQB, sQH)
    a('s_lshl1_add_u32 s90, s90, s%d', sKH)
    a('s_mul_i32 s91, s90, %d', BLK)
    a('s_xor_b32 s92, s90, 1')
    a('s_mul_i32 s92, s92, %d', BLK)
    a('s_mul_i32 s36, s%d, %d', sW, REGSZ)
    a('s_add_u32 s36, s36, %d', L_REG + 8192)
    a('s_xor_b32 s37, s%d, 2', sW)
    a('s_mul_i32 s37, s37, %d', REGSZ)
    a('s_add_u32 s37, s37, %d', L_REG + 8192)
    a('v_lshl_add_u32 v%d, v%d, 4, s36', vMG, vLANE)
    a('v_lshl_add_u32 v%d, v%d, 3, s36', vMG + 1, vLANE)
    a('v_lshl_add_u32 v%d, v%d, 4, s37', vMG + 2, vLANE)
    a('v_lshl_add_u32 v%d, v%d, 3, s37', vMG + 3, vLANE)
    a('v_xor_b32 v%d, 512, v%d', vMG + 4, vPW)
    a('v_add_u32 v%d, 1024, v%d', vMG + 5, vAPW)
    a('v_bfe_u32 v%d, v%d, 4, 1', x, vLANE)
    a('v_mul_u32_u24 v%d, %d, v%d', x, OBLK, x)
    a('v_and_b32 v%d, 15, v%d', t, vLANE)
    a('v_lshl_add_u32 v%d, v%d, 4, v%d', x, t, x)
    a('v_mul_u32_u24 v%d, %d, v%d', t, 2 * OBLK, h)
    a('v_add_u32 v%d, v%d, v%d', vMG + 7, t, x)
    a('v_lshl_add_u32 v%d, v%d, 8, v%d', vMG + 6, h, x)
    a('s_mul_i32 s40, s90, %d', 4 * OBLK)
    a('s_add_u32 s40, s40, 0x%x', WS_O)
    a('s_lshl_b32 s41, s%d, 8', sP5)
    a('s_add_u32 s40, s40, s41')
    a('s_mul_i32 s41, s%d, 768', sODD)
    a('s_add_u32 s41, s41, s40')
    a('s_add_u32 s42, s41, %d', 2 * OBLK)
    a('s_lshl3_add_u32 s40, s%d, s40', sODD)
    a('s_lshl_b32 s43, s90, 5')
    a('s_add_u32 s43, s43, s%d', sHD)
    flagaddr(43, 43, F4, 0)

def a_b1_setup():
    a('s_mov_b64 s[14:15], s[%d:%d]', sWO, sWO + 1)
    b1_sources(R5, R6, 112, 116, 7, 5, 12, 3 if OPT['nodup'] else 2)
    a('s_lshl2_add_u32 s4, s%d, s%d', sRB, sW)
    a('s_mul_i32 s4, s4, %d', 32 * 1280)
    a('s_lshl_b32 s6, s%d, 12', sW)
    stagger(8, 9, OPT['st10'], OPT['flip'], OPT['stagb'])

def a_handoff():
    first = 10 + OPT['st10']
    nst = 8
    for t in range(10, first):
        a('s_barrier')
        if t == 10:
            if OPT['alate']:
                a_b1_setup()
            else:
                for i_ in range(64):
                    a('v_mov_b32 v%d, 0', vO + i_)
    a_b1stage(first)
    if OPT['alate']:
        a_att_setup()
        for i_ in range(64):
            a('v_mov_b32 v%d, 0', vO + i_)
    a_b1stage(first + 1)
    lds_ = ['buffer_load_dword v%d, v%d, s[%d:%d], s85 offen sc1' % (104 + k, vF1A - k, RWS, RWS + 3) for k in range(2)]
    a('s_mov_b32 s85, 0x%x', F1)
    for t in range(first, 20):
        a('s_waitcnt vmcnt(%d)', 7 - OPT['nodup'] if t < 19 else 0)
        if t == first:
            stamp('A', 'qdrain')
        if t == 19:
            a('s_cmp_eq_u32 s%d, 0', sW)
            a('s_cbranch_scc0 L_c19')
            a('v_and_b32 v104, v104, v105')
            a('v_cmp_eq_u32 vcc, 0, v104')
            a('s_cbranch_vccnz L_c19')
            setpw(4, 102)
            a('s_waitcnt lgkmcnt(0)')
            a.label('L_c19')
        a('s_barrier')
        if t + 2 <= 19:
            a_b1stage(t + 2)
        if t == OPT['pollat']:
            a('s_cmp_eq_u32 s%d, 0', sW)
            a('s_cbranch_scc0 L_nopoll')
            for l in lds_:
                a(l)
            a.label('L_nopoll')
    stamp('A', 'b1load')
    a('s_cmp_eq_u32 s%d, 0', sW)
    a('s_cbranch_scc0 L_f1wait')
    a('s_cbranch_vccz L_f1go')
    a('s_mov_b64 exec, vcc')
    pollflags(lds_, 104, sleep=OPT['psleep'])
    setpw(4, 102)
    a.label('L_f1wait')
    waitpw(vAPW + 1, 4, 102, sleep=1)
    a.label('L_f1go')
    stamp('A', 'f1')

def kvload0(st, what, soff):
    if what in (K1A, K1B):
        r = KV[st] + what
        return 'buffer_load_dwordx4 %s, v%d, s[%d:%d], s%d offen offset:%d sc1' % (v(r, 4), vK1, R3, R3 + 3, soff, 512 if what == K1B else 0)
    if what in ('2A', '2B'):
        tl = what == '2B'
        return 'buffer_load_dwordx2 %s, v%d, s[%d:%d], s%d offen offset:%d sc1' % (v(KV[st] + K2 + 2 * tl, 2), vK2, R3, R3 + 3, soff, 8 * tl)
    r = KV[st] + what
    if what == K2:
        return 'buffer_load_dwordx4 %s, v%d, s[%d:%d], s%d offen sc1' % (v(r, 4), vK2, R3, R3 + 3, soff)
    return 'buffer_load_dwordx4 %s, v%d, s[%d:%d], s%d offen sc1' % (v(r, 4), vV + (what - VA0) // 4, R3, R3 + 3, soff)

def kvload(st, what, soff):
    return kvload0(st, what, soff).replace(' sc1', [' sc1', '', ' sc1 nt'][OPT['kvplain']])

def qk1(st, tile, qt, sb):
    return 'v_mfma_f32_32x32x16_bf16 %s, %s, %s, 0' % (v(vS + 16 * sb, 16), v(KV[st] + (K1B if tile else K1A), 4), v(vQ1 + 4 * qt, 4))

def qk2(st, tile, qt, sb):
    return 'v_mfma_f32_32x32x8bf16_1k %s, %s, %s, %s' % (v(vS + 16 * sb, 16), v(KV[st] + K2 + 2 * tile, 2), v(vQ2 + 2 * qt, 2), v(vS + 16 * sb, 16))

def pv(st, tile, qt, m):
    return 'v_smfmac_f32_32x32x32_bf16 %s, %s, %s, v%d' % (v(vO + 16 * qt, 16), v(KV[st] + VA0 + 8 * tile + 4 * m, 4), v(vS + 16 * qt + 8 * m, 8), vIDX)

def maxtree(dst, src, acc):
    if acc:
        a('v_max3_f32 v%d, v%d, v%d, v%d', dst, dst, src, src + 1)
    else:
        a('v_max_f32 v%d, v%d, v%d', dst, src, src + 1)
    for k in range(2, 16, 2):
        a('v_max3_f32 v%d, v%d, v%d, v%d', dst, dst, src + k, src + k + 1)

def a_attention():
    if OPT['acq'] == 2:
        a('buffer_inv sc1')
    for lp in range(2):
        for T in range(2):
            a('buffer_load_dwordx4 %s, v%d, s[%d:%d], s%d offen offset:%d sc1', v(vQ1 + 8 * lp + 4 * T, 4), vT + 4, RWS, RWS + 3, 91 + lp, 512 * T)
    for lp in range(2):
        a('buffer_load_dwordx4 %s, v%d, s[%d:%d], s%d offen sc1', v(vQ2 + 4 * lp, 4), vT + 5, RWS, RWS + 3, 91 + lp)
    a.label('L_attload')
    a('s_mov_b32 s%d, 0x40000000', sCNT)
    a('s_add_u32 s%d, s%d, %d', sOFF, sKV0, BLK)
    for w_ in (K1A, K2):
        a(kvload0(0, w_, sKV0))
    for i in range(4):
        a('v_mov_b32 v%d, 0', KV[1] + VB1 + i)
    if OPT['kvsplit']:
        a('s_waitcnt vmcnt(%d)', OPT['kvsplit'] - 1)
    for w_ in (VA0, VA1, K1B, VB0, VB1):
        a(kvload0(0, w_, sKV0))
    for w_ in (K1A, VA0, VA1, K1B, K2, VB0):
        a(kvload0(1, w_, sOFF))
    if OPT['acq'] == 1:
        a('buffer_inv sc1')
    a('s_waitcnt vmcnt(%d)', 11 + (OPT['acq'] == 1))
    stamp('A', 'qkload')
    a('s_cmp_eq_u32 s%d, 0', sPASS)
    a('s_cbranch_scc0 L_setc')
    a.c('stand-in for the row maximum: the maximum over the first key tile (checked after the loop)')
    def tree(qt):
        src = vS + 16 * qt
        return ['v_max_f32 v%d, v%d, v%d' % (vM + qt, src, src + 1)] + \
               ['v_max3_f32 v%d, v%d, v%d, v%d' % (vM + qt, vM + qt, src + k, src + k + 1) for k in range(2, 16, 2)]
    for qt in range(3):
        a(qk1(0, 0, qt, qt))
        a(qk2(0, 0, qt, qt))
    a(qk1(0, 0, 3, 3))
    a('s_nop 6')
    for o in tree(0)[:4]:
        a(o)
    a(qk2(0, 0, 3, 3))
    for o in tree(0)[4:] + tree(1) + tree(2) + tree(3):
        a(o)
    a.label('L_setc')
    for qt in range(4):
        a('v_mov_b32 v%d, v%d', vT + 8 + qt, vM + qt)
    for qt in range(4):
        a('v_permlane32_swap_b32 v%d, v%d', vM + qt, vT + 8 + qt)
    for qt in range(4):
        a('v_min_f32 v%d, -v%d, -v%d', vM + qt, vM + qt, vT + 8 + qt)
    for qt in range(4):
        a('v_cvt_pk_bf16_f32 v%d, v%d, v%d', vT + 8 + qt, vM + qt, vM + qt)
    for qt in range(4):
        a('v_and_b32 v%d, 0xffff0000, v%d', vT + 8 + qt, vT + 8 + qt)
    for qt in range(4):
        a('v_sub_f32 v%d, v%d, v%d', vM + qt, vM + qt, vT + 8 + qt)
    for qt in range(4):
        a('v_cvt_pk_bf16_f32 v%d, v%d, v%d', vM + qt, vT + 8 + qt, vM + qt)
    for qt in range(4):
        a('v_cndmask_b32 v%d, v%d, v%d, s[%d:%d]', vQ2 + 2 * qt, vQ2 + 2 * qt, vM + qt, sHI, sHI + 1)
    a(qk1(0, 0, 0, 0))
    a(qk2(0, 0, 0, 0))
    for qt in range(4):
        a('v_and_b32 v%d, 0xffff0000, v%d', vM + qt, vM + qt)
    for qt in range(4):
        a('v_add_f32 v%d, v%d, v%d', vNC + qt, vM + qt, vT + 8 + qt)
    for i in range(8):
        a('v_mov_b32 v%d, 0', vS + 48 + 8 + i)
    a('s_waitcnt vmcnt(%d)', 8 + (OPT['acq'] == 1))
    if OPT['tearly'] or OPT['gtouch'] == 1:
        setpw(5, vT + 8)
    stamp('A', 'attpro')
    if OPT['fine'] == 3:
        base = len(nstamp['A'])
        nstamp['A'] += ['it%d' % i for i in range(16)]
        a('s_mov_b32 s24, %d', base)
    a('.p2align %d', OPT['lalign'])
    for _ in range(OPT['lpad']):
        a('s_nop 0')
    a.label('L_attloop')
    for st in range(2):
        for n in range(8):
            tile, qt = n >> 2, n & 3
            nst, ntile, nqt = (st, (n + 1) >> 2, (n + 1) & 3) if n < 7 else (st ^ 1, 0, 0)
            pst, ptile, pqt = (st, (n - 1) >> 2, (n - 1) & 3) if n > 0 else (st ^ 1, 1, 3)
            def ex(k):
                for e in range(4 * k, 4 * k + 4):
                    a('v_exp_f32 v%d, v%d', vS + 16 * qt + e, vS + 16 * qt + e)
            if n == 7:
                a('s_waitcnt vmcnt(7)')
            a(qk1(nst, ntile, nqt, nqt))
            if n == 1:
                a('s_add_u32 s%d, s%d, %d', sOFF, sOFF, BLK)
            if n == 2:
                a(kvload(st, K1A, sOFF))
            if n == 6:
                a(kvload(st, K1B, sOFF))
            if n == 5 and OPT['fine'] == 3:
                a('s_memtime s[98:99]')
                a('s_memrealtime s[100:101]')
            if n == 6 and OPT['fine'] == 3:
                a('s_waitcnt lgkmcnt(0)')
                a('s_mov_b32 m0, s24')
                a('s_add_u32 s25, s24, 32')
                a('v_writelane_b32 v%d, s98, m0', vTS)
                a('s_mov_b32 m0, s25')
                a('s_add_u32 s24, s24, 1')
                a('v_writelane_b32 v%d, s100, m0', vTS)
            ex(0)
            a(qk2(nst, ntile, nqt, nqt))
            if n == 6:
                a(kvload(st, K2, sOFF))
            if n == 1 and st == 0:
                a('s_cmp_eq_u32 s%d, s%d', sOFF, sKVE)
                a('s_cselect_b32 s%d, s%d, s%d', sOFF, sKVB, sOFF)
            ex(1)
            a(pv(pst, ptile, pqt, 1))
            if n == 0:
                a(kvload(st ^ 1, VB1, sOFF))
            if n == 4:
                a(kvload(st, VA1, sOFF))
            if n == 1 and st == 0:
                a('s_cmp_eq_u32 s%d, s%d', sOFF, sKV0)
                a('s_cselect_b32 s%d, s%d, s%d', sOFF, sCNT, sOFF)
            if st == 1 and n == 7:
                a('s_cmp_lt_u32 s%d, s%d', sOFF, sCNT)
            ex(2)
            if n == 4:
                a('s_waitcnt vmcnt(10)')
            a(pv(st, tile, qt, 0))
            if n == 3:
                a(kvload(st, VA0, sOFF))
            if n == 7:
                a(kvload(st, VB0, sOFF))
            ex(3)
    a('s_cbranch_scc1 L_attloop')
    a('s_nop 0')
    a(pv(1, 1, 3, 1))
    stamp('A', 'attloop')
    if OPT['tprio']:
        a('s_setprio 2')
    a('ds_read_b32 v%d, v%d', vT + 12, vMG + 5)
    a('s_mov_b32 s36, 0x%x', f2u(2.0 ** -4))
    a('s_mov_b32 s37, 0x%x', f2u(2.0 ** 96))
    a('s_cmp_eq_u32 s%d, 0', sPASS)
    a('s_cbranch_scc0 L_attok')
    a('v_min3_f32 v%d, v%d, v%d, v%d', vT + 8, vO + 8, vO + 24, vO + 40)
    a('v_add_f32 v%d, v%d, v%d', vT + 9, vO + 8, vO + 24)
    a('v_add_f32 v%d, v%d, v%d', vT + 9, vT + 9, vO + 40)
    a('s_nop 3')
    a('v_min_f32 v%d, v%d, v%d', vT + 8, vT + 8, vO + 56)
    a('v_add_f32 v%d, v%d, v%d', vT + 9, vT + 9, vO + 56)
    a('v_cmp_nle_f32 s[38:39], s36, v%d', vT + 8)
    a('v_cmp_nge_f32 vcc, s37, v%d', vT + 9)
    a('s_or_b32 s39, s39, vcc_hi')
    if OPT['force_fb']:
        a('s_cmp_eq_u32 s%d, 0', sPASS)
    a('s_cbranch_scc0 L_attok')
    a.c('fallback: exact row maximum over this wave\'s keys, then redo the pass')
    a('s_mov_b32 s%d, 1', sPASS)
    a('s_waitcnt vmcnt(0) lgkmcnt(0)')
    a('v_mov_b32 v%d, 0', vT + 8)
    for qt in range(4):
        a('v_cndmask_b32 v%d, v%d, v%d, s[%d:%d]', vQ2 + 2 * qt, vQ2 + 2 * qt, vT + 8, sHI, sHI + 1)
        a('v_mov_b32 v%d, 0xff800000', vM + qt)
    a('s_mov_b32 s%d, s%d', sOFF, sKVB)
    a('s_mov_b32 s%d, 16', sCNT)
    a.label('L_maxloop')
    for w_ in (K1A, K1B, K2):
        a(kvload(0, w_, sOFF))
    a('s_waitcnt vmcnt(0)')
    for tile in range(2):
        for qt in range(4):
            a(qk1(0, tile, qt, qt))
            a(qk2(0, tile, qt, qt))
        a('s_nop 5')
        for qt in range(4):
            maxtree(vM + qt, vS + 16 * qt, True)
    a('s_add_u32 s%d, s%d, %d', sOFF, sOFF, BLK)
    a('s_sub_u32 s%d, s%d, 1', sCNT, sCNT)
    a('s_cmp_lg_u32 s%d, 0', sCNT)
    a('s_cbranch_scc1 L_maxloop')
    for i in range(64):
        a('v_mov_b32 v%d, 0', vO + i)
    a('s_branch L_attload')
    a.label('L_attok')
    a('s_waitcnt lgkmcnt(0)')
    a('v_cmp_gt_u32 vcc, 14, v%d', vT + 12)
    a('s_cbranch_vccz L_sready')
    waitpw(vMG + 5, 14, vT + 8)
    a.label('L_sready')
    a('ds_write_b64 v%d, %s offset:6144', vMG + 1, v(vNC + 2, 2))
    for t in range(2):
        for q in range(3):
            a('ds_write_b128 v%d, %s offset:%d', vMG, v(vO + 32 + 16 * t + 4 * q, 4), 1024 * (3 * t + q))
    setpw(6, vT + 8)
    waitpw(vMG + 4, 6, vT + 8)
    R = vS
    NC2 = vS + 32
    a('ds_read_b64 %s, v%d offset:6144', v(NC2, 2), vMG + 3)
    for t in range(2):
        a('ds_read_b128 %s, v%d offset:%d', v(R + 16 * t + 8, 4), vMG + 2, 1024 * (3 * t + 2))
    for t in range(2):
        for q in range(2):
            a('ds_read_b128 %s, v%d offset:%d', v(R + 16 * t + 4 * q, 4), vMG + 2, 1024 * (3 * t + q))
    setpw(7, vT + 9)
    f1, f2, l1, l2 = vS + 34, vS + 36, vS + 38, vS + 40
    a('s_waitcnt lgkmcnt(7)')
    for t in range(2):
        a('v_min_f32 v%d, v%d, v%d', l1 + t, vNC + t, NC2 + t)
    for t in range(2):
        a('v_sub_f32 v%d, v%d, v%d', f1 + t, l1 + t, vNC + t)
        a('v_sub_f32 v%d, v%d, v%d', f2 + t, l1 + t, NC2 + t)
    for t in range(2):
        a('v_exp_f32 v%d, v%d', f1 + t, f1 + t)
        a('v_exp_f32 v%d, v%d', f2 + t, f2 + t)
    a('s_waitcnt lgkmcnt(5)')
    for t in range(2):
        a('v_mul_f32 v%d, v%d, v%d', l1 + t, f1 + t, vO + 16 * t + 8)
    for t in range(2):
        a('v_fmac_f32 v%d, v%d, v%d', l1 + t, f2 + t, R + 16 * t + 8)
    for t in range(2):
        a('v_mov_b32 v%d, v%d', l2 + t, l1 + t)
    a('s_nop 0')
    for t in range(2):
        a('v_permlane32_swap_b32 v%d, v%d', l1 + t, l2 + t)
    for t in range(2):
        a('v_rcp_f32 v%d, v%d', l2 + t, l2 + t)
    a('s_waitcnt vmcnt(0) lgkmcnt(0)')
    for t in range(2):
        a('v_mul_f32 v%d, v%d, v%d', f1 + t, f1 + t, l2 + t)
        a('v_mul_f32 v%d, v%d, v%d', f2 + t, f2 + t, l2 + t)
    P = vO + 32
    for t in range(2):
        if OPT['pkmerge']:
            sel = 'op_sel:[%d,0] op_sel_hi:[%d,1]' % (t, t)
            sel3 = 'op_sel:[%d,0,0] op_sel_hi:[%d,1,1]' % (t, t)
            for r in range(0, 12, 2):
                a('v_pk_mul_f32 %s, %s, %s %s', v(vO + 16 * t + r, 2), v(f1, 2), v(vO + 16 * t + r, 2), sel)
            for r in range(0, 12, 2):
                a('v_pk_fma_f32 %s, %s, %s, %s %s', v(vO + 16 * t + r, 2), v(f2, 2), v(R + 16 * t + r, 2), v(vO + 16 * t + r, 2), sel3)
        else:
            for r in range(12):
                a('v_mul_f32 v%d, v%d, v%d', vO + 16 * t + r, f1 + t, vO + 16 * t + r)
            for r in range(12):
                a('v_fmac_f32 v%d, v%d, v%d', vO + 16 * t + r, f2 + t, R + 16 * t + r)
        for q in range(6):
            a('v_cvt_pk_bf16_f32 v%d, v%d, v%d', P + 8 * t + q, vO + 16 * t + 2 * q, vO + 16 * t + 2 * q + 1)
        a('buffer_store_dwordx4 %s, v%d, s[%d:%d], s%d offen sc1', v(P + 8 * t, 4), vMG + 6, RWS, RWS + 3, 41 + t)
    a('s_nop 0')
    a('v_permlane32_swap_b32 v%d, v%d', P + 4, P + 12)
    a('v_permlane32_swap_b32 v%d, v%d', P + 5, P + 13)
    a('buffer_store_dwordx2 %s, v%d, s[%d:%d], s40 offen offset:512 sc1', v(P + 4, 2), vMG + 7, RWS, RWS + 3)
    if OPT['tprio'] == 2:
        a('s_setprio 0')
    if OPT['pgate']:
        setpw(8, vT + 8)
        a('ds_read_b32 v%d, v%d', 99, vAPW)
    stamp('A', 'merge')

def p3_static(vA0, vA1, vOA, acc):
    EP = OPT['epoll']
    if not EP:
        a('s_waitcnt vmcnt(0)')
        stamp('A', 'odrain')
        setflag(43, 1)
    NB = 7
    def reads(ks):
        f = 100 + 20 * (ks % NB)
        base, off = (vA0, ks * 5120) if ks < 10 else (vA1, (ks - 10) * 5120)
        return ['ds_read_b64_tr_b16 %s, v%d offset:%d' % (v(f + 4 * j + 2 * rd, 2), base, off + 1280 * rd + 32 * j)
                for j in range(5) for rd in range(2)]
    pl = 'buffer_load_dword v252, v%d, s[%d:%d], s88 offen sc1' % (vOA + 1, RWS, RWS + 3)
    def oload(ks):
        a('buffer_load_dwordx4 %s, v%d, s[%d:%d], s85 offen offset:%d sc1', v(4 * ks, 4), vOA, RWS, RWS + 3, 1024 * (ks & 3))
        if ks & 3 == 3 and ks < 19:
            a('s_add_u32 s85, s85, 4096')
    LEAD = OPT['olead']
    touch_ = 'buffer_load_dword v251, v248, s[%d:%d], s85 offen sc1' % (RWS, RWS + 3)
    NP = OPT['npre'] if EP else 0
    rest = [r for ks in range(NP, NB) for r in reads(ks)]
    if EP:
        for ks in range(NP):
            for r in reads(ks):
                a(r)
        if OPT['pgate']:
            a('s_waitcnt lgkmcnt(0)')
            a('v_cmp_gt_u32 vcc, 8, v99')
            a('s_cbranch_vccz L_epoll')
            a('s_waitcnt vmcnt(0)')
            stamp('A', 'odrain')
            if DIAG:
                nstamp['A'].pop()
            setflag(43, 2)
            a('s_mov_b32 vcc_lo, -1')
            a('s_mov_b32 vcc_hi, 0')
            a('s_branch L_f4late')
            a.label('L_epoll')
        a('s_mov_b32 exec_hi, 0')
        a(pl)
        a('s_waitcnt vmcnt(1)')
        stamp('A', 'odrain')
        setflag(43, 2)
        a('s_mov_b32 exec_hi, 0')
        a('s_waitcnt vmcnt(1)')
        a('v_cmp_eq_u32 vcc, 0, v252')
        a('s_mov_b64 exec, -1')
        a('s_cbranch_vccnz L_f4late')
        stamp('A', 'f4')
        if DIAG:
            nstamp['A'].pop()
        a(touch_)
        k = 0
        for ks in range(LEAD):
            oload(ks)
            while k < len(rest) * (ks + 1) // LEAD:
                a(rest[k])
                k += 1
        a('s_branch L_p3go')
        a.label('L_f4late')
    for r in rest:
        a(r)
    if OPT['pgate']:
        a('s_mov_b64 s[38:39], vcc')
        waitpw(vAPW, 8, 99, sleep=1)
        a('s_mov_b64 vcc, s[38:39]')
    if EP:
        a('s_mov_b64 exec, vcc')
    else:
        a('s_mov_b32 exec_hi, 0')
    pollflags([pl], 252, sleep=OPT['psleep4'])
    stamp('A', 'f4')
    a(touch_)
    for ks in range(LEAD):
        oload(ks)
    a.label('L_p3go')
    a('s_waitcnt lgkmcnt(0)')
    nl = LEAD
    a('v_mov_b32 v248, 9')
    lq = []
    if nl == 20:
        a('ds_write_b32 v%d, v248', vPW)
    pend = []
    for ks in range(20):
        w_ = 's_waitcnt vmcnt(%d)' % (nl - 1 - ks)
        if ks in lq:
            idx = max(i for i, x in enumerate(lq) if x == ks)
            w_ += ' lgkmcnt(%d)' % min(15, len(lq) - 1 - idx)
        a(w_)
        if OPT['fine'] in (1, 2) and ks in (0, 10, 19):
            stamp('A', 'p3k%d' % ks)
        rr = reads(ks + NB) if ks + NB < 20 else []
        for j in range(5):
            a('v_mfma_f32_16x16x32_bf16 %s, %s, %s, %s', v(acc + 4 * j, 4), v(4 * ks, 4), v(100 + 20 * (ks % NB) + 4 * j, 4),
              '0' if ks == 0 else v(acc + 4 * j, 4))
            for tg, r in pend:
                a(r)
                lq.append(tg)
            pend = [(ks + NB, r) for r in rr[2 * j:2 * j + 2]]
            if j in (0, 3) and nl < 20 and (j == 0 or ks % 2 == 0):
                oload(nl)
                nl += 1
                if nl == 20:
                    a('ds_write_b32 v%d, v248', vPW)
                    lq.append('w')

def p3_groups(vA0, vOA, acc):
    WF, vAN = 100, 241
    sP, sG, sM, sKEY, sC = 4, 5, 6, 7, 8
    pl = 'buffer_load_dword v252, v%d, s[%d:%d], s88 offen sc1' % (vOA + 1, RWS, RWS + 3)
    for g in range(4):
        a('s_sub_u32 s%d, %d, s%d', sC + g, g, sOG)
        a('s_and_b32 s%d, s%d, 3', sC + g, sC + g)
        a('s_lshl2_add_u32 s%d, s%d, %d', sC + g, sC + g, g)
    a('v_mov_b32 v248, 9')
    a('s_waitcnt lgkmcnt(0)')
    a('v_cmp_gt_u32 vcc, 8, v99')
    a('s_cbranch_vccz L_epoll')
    a('s_waitcnt vmcnt(0)')
    stamp('A', 'odrain')
    if DIAG:
        nstamp['A'].pop()
    setflag(43, 2)
    waitpw(vAPW, 8, 99, sleep=1)
    a('s_mov_b32 exec_hi, 0')
    a(pl)
    a('s_waitcnt vmcnt(0)')
    a('s_branch L_polled')
    a.label('L_epoll')
    a('s_mov_b32 exec_hi, 0')
    a(pl)
    a('s_waitcnt vmcnt(1)')
    stamp('A', 'odrain')
    setflag(43, 2)
    a('s_mov_b32 exec_hi, 0')
    a('s_waitcnt vmcnt(1)')
    a.label('L_polled')
    a('v_cmp_eq_u32 vcc, 0, v252')
    a('s_mov_b64 exec, -1')
    a('s_mov_b32 s%d, vcc_lo', sP)
    def reads(k):
        return ['ds_read_b64_tr_b16 %s, v%d offset:%d' % (v(WF + 20 * k + 4 * j + 2 * rd, 2), vAN, 5120 * k + 1280 * rd + 32 * j)
                for j in range(5) for rd in range(2)]
    def issue(sl):
        for k in range(5):
            a('buffer_load_dwordx4 %s, v%d, s[%d:%d], s%d offen offset:%d sc1', v(20 * sl + 4 * k, 4), vOA, RWS, RWS + 3,
              12 if k < 4 else 13, 1024 * (k & 3))
        if sl == 3:
            a('ds_write_b32 v%d, v248', vPW)
    for sl in range(-1, 4):
        nx = sl + 1
        Lw, Lc, Ld = a.newlabel('gw'), a.newlabel('gc'), a.newlabel('gd')
        if nx < 4:
            for g in range(4):
                a('s_bfe_u32 s14, s%d, 0x%x', sP, (8 << 16) | (8 * g))
                a('s_bcnt1_i32_b32 s14, s14')
                if g == 0:
                    a('s_lshl4_add_u32 s%d, s14, s%d', sKEY, sC)
                else:
                    a('s_lshl4_add_u32 s14, s14, s%d', sC + g)
                    a('s_min_u32 s%d, s%d, s14', sKEY, sKEY)
            a('s_and_b32 s%d, s%d, 3', sG, sKEY)
            a('s_mul_i32 s12, s%d, 5120', sG)
            a('s_add_u32 s12, s12, s85')
            a('s_add_u32 s13, s12, 4096')
            a('s_cmp_lt_u32 s%d, 16', sKEY)
            a('s_cbranch_scc0 %s', Lw)
            issue(nx)
            if sl >= 0:
                a('s_waitcnt vmcnt(5)')
            a('s_branch %s', Lc)
            a.label(Lw)
            a('s_mov_b32 exec_lo, s%d', sP)
            a('s_mov_b32 exec_hi, 0')
            a(pl)
            a('s_mov_b64 exec, -1')
            if sl >= 0:
                a('s_waitcnt vmcnt(1)')
            a.label(Lc)
            a('s_mul_i32 s14, s%d, 25600', sG)
            a('v_add_u32 v%d, s14, v%d', vAN, vA0)
            if nx < 3:
                for g in range(4):
                    a('s_cmp_eq_u32 s%d, %d', sG, g)
                    a('s_cselect_b32 s%d, 0x1000, s%d', sC + g, sC + g)
        if sl < 0:
            for k in range(5):
                for r in reads(k):
                    a(r)
        else:
            pend = []
            for k in range(5):
                if nx == 4:
                    a('s_waitcnt vmcnt(%d) lgkmcnt(%d)', 4 - k, 0 if k >= 3 else 15)
                else:
                    a('s_waitcnt lgkmcnt(15)')
                rr = reads(k) if nx < 4 else []
                for j in range(5):
                    a('v_mfma_f32_16x16x32_bf16 %s, %s, %s, %s', v(acc + 4 * j, 4), v(20 * sl + 4 * k, 4), v(WF + 20 * k + 4 * j, 4),
                      '0' if (sl == 0 and k == 0) else v(acc + 4 * j, 4))
                    for r in pend:
                        a(r)
                    pend = rr[2 * j:2 * j + 2]
            for r in pend:
                a(r)
        if nx < 4:
            a('s_cmp_lt_u32 s%d, 16', sKEY)
            a('s_cbranch_scc1 %s', Ld)
            L1, L2 = a.newlabel('gp'), a.newlabel('gq')
            a('s_lshl_b32 s14, s%d, 3', sG)
            a('s_lshl_b32 s%d, 0xff, s14', sM)
            a('s_mov_b32 exec_lo, s%d', sP)
            a('s_mov_b32 exec_hi, 0')
            a.label(L1)
            a('s_waitcnt vmcnt(0)')
            a('v_cmp_eq_u32 vcc, 0, v252')
            a('s_and_b32 s14, vcc_lo, s%d', sM)
            a('s_cbranch_scc0 %s', L2)
            a('s_mov_b64 exec, vcc')
            if OPT['psleep4']:
                a('s_sleep %d', OPT['psleep4'])
            a(pl)
            a('s_sub_u32 s%d, s%d, 1', sSPIN, sSPIN)
            a('s_cbranch_scc0 %s', L1)
            a('s_endpgm')
            a.label(L2)
            a('s_mov_b32 s%d, vcc_lo', sP)
            a('s_mov_b64 exec, -1')
            issue(nx)
            a.label(Ld)
            if nx == 3:
                stamp('A', 'f4')

def a_outproj():
    vA0, vA1, vOA, vST = 240, 241, 242, 244
    a('v_lshrrev_b32 v1, 5, v%d', vLANE)
    a('v_bfe_u32 v2, v%d, 2, 3', vLANE)
    a('v_lshl_add_u32 v1, v1, 4, v2')
    a('v_mul_u32_u24 v1, 160, v1')
    a('v_and_b32 v2, 3, v%d', vLANE)
    a('v_lshl_add_u32 v%d, v2, 3, v1', vA0)
    a('v_add_u32 v%d, %d, v%d', vA1, 10 * 5120, vA0)
    a('v_lshlrev_b32 v%d, 4, v%d', vOA, vLANE)
    a('v_lshrrev_b32 v1, 4, v%d', vLANE)
    a('v_mul_u32_u24 v1, %d, v1', 4 * 5120)
    a('v_and_b32 v2, 15, v%d', vLANE)
    a('v_lshl_add_u32 v%d, v2, 2, v1', vST)
    for r in range(1, 4):
        a('v_add_u32 v%d, %d, v%d', vST + r, 5120 * r, vST)
    a('s_mul_i32 s84, s%d, 2560', sOG)
    a('v_min_u32 v248, 19, v%d', vLANE)
    a('v_lshl_add_u32 v248, v248, 7, s84')
    a('s_lshl2_add_u32 s84, s%d, s%d', sTB, sW)
    a('s_mul_i32 s85, s84, %d', OBLK)
    a('s_add_u32 s85, s85, 0x%x', WS_O)
    a('s_mul_i32 s86, s84, %d', 16 * 5120)
    a('s_mul_i32 s88, s%d, 320', sOG)
    a('s_add_u32 s86, s86, s88')
    a('v_lshlrev_b32 v%d, 7, v%d', vOA + 1, vLANE)
    a('s_lshl_b32 s88, s%d, 12', sTB)
    a('s_add_u32 s88, s88, 0x%x', F4)
    acc = 80
    if OPT['p3dyn']:
        p3_groups(vA0, vOA, acc)
    else:
        p3_static(vA0, vA1, vOA, acc)
    a('s_nop 3')
    for j in range(5):
        for r in range(4):
            a('buffer_store_dword v%d, v%d, s[%d:%d], s86 offen offset:%d%s', acc + 4 * j + r, vST + r, R4, R4 + 3, 64 * j, OSC)
    finish('A')

vXR, vBR, vA0PW = 96, 100, 107
vL, vE, vHW, vHR0, vHR1, vHS, vCH, vCHL, vHH, vP01, vTCH, vHINT = 146, 150, 151, 152, 153, 154, 155, 156, 157, 158, 159, 160
vDX, vDW, vDBX, vDBB = 161, 165, 169, 173
vZ, vWOA, vPAR = 176, 186, 200
vCA, vCR, vHA, vF3, vXO, vDO, vC16, vAM, vOA, vRA = 224, 226, 228, 229, 230, 231, 232, 233, 234, 235
vR1W, vR1R, vR2W, vPW1, vPW2, vS2PW, vHT, vCT = 237, 238, 239, 240, 241, 242, 243, 244
vSPW = 252
L_Z, L_H = L_HT + 1024, 124928
SENT = 0xffffffff

def s_stage(t, emit=None):
    out = []
    slot = (t % 4) * 32768
    if OPT['stag'] >= 5 and t < 10:
        base, size = {0: (0, 4), 1: (4, 4), 2: (8, 2)}[t // 4] if OPT['stag'] != 7 else ((0, 2) if t < 2 else ((2, 4) if t < 6 else (6, 4)))
        out += ['s_add_u32 s82, s81, %d' % t, 's_and_b32 s82, s82, %d' % (size - 1), 's_add_u32 s82, s82, %d' % base,
                's_add_u32 s82, s82, s85', 's_cmp_ge_u32 s82, 10', 's_cselect_b32 s83, 10, 0', 's_sub_u32 s82, s82, s83']
    out.append('s_add_u32 m0, s74, %d' % slot)
    out.append('s_lshl_b32 s83, s82, 7')
    out.append('s_add_u32 s76, s72, s83')
    if t < 10:
        out += [dma(vDX + i, R0, 76, 1024 * i) for i in range(4)]
        out.append('s_add_u32 m0, s74, %d' % (slot + 16384))
        out.append('s_mul_i32 s83, s82, 245760')
        out.append('s_add_u32 s76, s73, s83')
        out += [dma(vDW + i, R1, 76, 1024 * i) for i in range(4)]
    else:
        out += [dma(vDBX + i, R3, 76, 1024 * i) for i in range(4)]
        out.append('s_add_u32 m0, s75, %d' % (slot + 16384))
        out.append('s_add_u32 s76, s77, s83')
        out += [dma(vDBB + i, R4, 76, 1024 * i) for i in range(3)]
    out.append('s_add_u32 s82, s82, 1')
    out.append('s_cmp_eq_u32 s82, 10')
    out.append('s_cselect_b32 s82, 0, s82')
    if emit is None:
        L = a.newlabel('skip')
        if t < 10:
            a('s_cmp_eq_u32 s%d, 15', sCG)
            a('s_cbranch_scc1 %s', L)
        for o in out:
            a(o)
        if t < 10:
            a.label(L)
    return out

def ninstr(t):
    return 0 if t > 19 else (8 if t < 10 else 7)

def exp_acc(dst, x, t1, t2):
    L2E = math.log2(math.e)
    hi = struct.unpack('<f', struct.pack('<f', L2E))[0]
    a('s_mov_b32 s80, 0x%x', f2u(hi))
    a('v_mul_f32 v%d, s80, v%d', t1, x)
    a('v_fma_f32 v%d, v%d, s80, -v%d', t2, x, t1)
    a('v_fmac_f32 v%d, 0x%x, v%d', t2, f2u(L2E - hi), x)
    a('v_exp_f32 v%d, v%d', dst, t1)
    a('v_mul_f32 v%d, 0x%x, v%d', t2, f2u(math.log(2.0)), t2)
    a('v_fmac_f32 v%d, v%d, v%d', dst, dst, t2)

def s_setup():
    a.label('L_roleS')
    a('s_sub_u32 s%d, s%d, 4', sW, sW)
    a('v_lshrrev_b32 v1, 3, v%d', vLANE)
    a('v_and_b32 v2, 7, v%d', vLANE)
    a('v_lshrrev_b32 v3, 4, v%d', vLANE)
    a('v_xor_b32 v4, v2, v3')
    a('v_mul_u32_u24 v5, 1280, v1')
    a('v_lshl_add_u32 v%d, v4, 4, v5', vDX)
    a('v_xor_b32 v6, 64, v%d', vDX)
    a('v_add_u32 v%d, %d, v6', vDX + 1, 10240 - 1024)
    a('v_add_u32 v%d, %d, v%d', vDX + 2, 2 * (10240 - 1024), vDX)
    a('v_add_u32 v%d, %d, v6', vDX + 3, 3 * (10240 - 1024))
    a('v_and_b32 v7, 15, v%d', vLANE)
    a('v_lshlrev_b32 v8, 2, v3')
    a('v_xor_b32 v7, v7, v8')
    a('v_mul_u32_u24 v8, 3840, v3')
    a('v_lshl_add_u32 v%d, v7, 4, v8', vDW)
    for i in range(1, 4):
        a('v_add_u32 v%d, %d, v%d', vDW + i, (15360 - 1024) * i, vDW)
    a('s_lshl2_add_u32 s72, s%d, s%d', sRB, sW)
    a('s_mul_i32 s72, s72, %d', 32 * 1280)
    a('s_mul_i32 s73, s%d, %d', sW, 16 * 3840)
    a('s_lshl_b32 s70, s%d, 8', sCG)
    a('s_add_u32 s73, s73, s70')
    a('s_lshl_b32 s74, s%d, 12', sW)
    if OPT['stag'] <= 4:
        stagger(82, 83, 0, 0, OPT['stag'])
    else:
        a('s_add_u32 s81, s%d, s%d', sI, sOG)
        a('s_add_u32 s85, s%d, 1', sXCD)
        a('s_lshr_b32 s85, s85, 1')
        a('s_mul_i32 s85, s85, %d', 2 if OPT['stag'] == 5 else 0)
    a('s_waitcnt lgkmcnt(0)')
    srd(R0, sAX, 2048 * 1280)
    srd(R1, sWQ, 640 * 3840)
    if DIAG:
        ws_setup()
    stamp('S', 'start')
    s_stage(0)
    if not DIAG:
        prologue2()
        ws_setup()
    if OPT['fine'] == 1:
        stamp('S', 'iss0')
    def params():
        a('s_mul_i32 s70, s%d, 40', sCG)
        a('v_min_u32 v9, 39, v%d', vLANE)
        a('v_add_lshl_u32 v9, v9, s70, 1')
        a('global_load_ushort v10, v9, s[%d:%d]', sLDT, sLDT + 1)
        a('global_load_ushort v11, v9, s[%d:%d]', sLRE, sLRE + 1)
        a('global_load_ushort v12, v9, s[%d:%d]', sLIM, sLIM + 1)
    params()
    n0 = len(a.lines)
    b1_sources(R3, R4, vDBX, vDBB, 75, 77, 70)
    a('v_and_b32 v5, 3, v%d', vLANE)
    a('v_lshlrev_b32 v5, 8, v5')
    a('v_lshl_add_u32 v5, v%d, 2, v5', vLANE)
    a('v_add_u32 v%d, %d, v5', vSPW, L_PW + 1024)
    s_addresses()
    if OPT['slate']:
        late = a.lines[n0:]
        del a.lines[n0:]
        k = 0
        nch = OPT['slate']
        for c in range(nch):
            e = len(late) * (c + 1) // nch
            while e < len(late) and ('cselect' in late[e] or 'cndmask' in late[e] or 'cndmask' in late[e + 1] or 'cndmask' in late[min(e + 2, len(late) - 1)]):
                e += 1
            SLATE.append(late[k:e])
            k = e
    s_stage(1)
    if OPT['fine'] == 1:
        stamp('S', 'iss1')
    a('s_waitcnt vmcnt(11) lgkmcnt(0)')
    stamp('S', 'st0')
    a('s_barrier')
    s_stage(2)
    slate()
    a('s_waitcnt vmcnt(8)')
    a('s_barrier')
    s_stage(3)
    s_stage(4)

SLATE = []

def slate():
    if SLATE:
        a.lines.extend(SLATE.pop(0))

def s_addresses():
    c, g, t0, t1, t2 = 40, 41, 42, 43, 44
    a('v_and_b32 v%d, 15, v%d', c, vLANE)
    a('v_lshrrev_b32 v%d, 4, v%d', g, vLANE)
    a('v_lshrrev_b32 v%d, 1, v%d', t0, c)
    a('v_xor_b32 v%d, v%d, v%d', t0, t0, g)
    a('v_lshlrev_b32 v%d, 4, v%d', t0, t0)
    a('v_lshl_add_u32 v%d, v%d, 7, v%d', t0, c, t0)
    a('v_xor_b32 v%d, 64, v%d', t1, t0)
    a('v_add_u32 v%d, s74, v%d', vXR, t0)
    a('v_add_u32 v%d, s74, v%d', vXR + 1, t1)
    a('s_mul_i32 s70, s%d, %d', sW, REGSZ)
    a('s_add_u32 s70, s70, %d', L_REG)
    a('v_add_u32 v%d, s70, v%d', vCR, t0)
    a('v_add_u32 v%d, s70, v%d', vCR + 1, t1)
    a('v_lshrrev_b32 v%d, 3, v%d', t2, c)
    a('v_lshl_add_u32 v%d, v%d, 12, v%d', t0, t2, t0)
    a('v_add_u32 v%d, 16384, v%d', vBR, t0)
    a('v_xor_b32 v%d, 64, v%d', vBR + 1, vBR)
    for k in range(2):
        a('v_add_u32 v%d, 0x10000, v%d', vXR + 2 + k, vXR + k)
        a('v_add_u32 v%d, 0x10000, v%d', vBR + 2 + k, vBR + k)
    a('v_and_b32 v%d, 7, v%d', t0, vLANE)
    a('v_lshlrev_b32 v%d, 2, v%d', t2, t2)
    a('v_lshl_add_u32 v%d, v%d, 3, v%d', t0, t0, t2)
    a('v_add_u32 v%d, %d, v%d', vHH, L_H, t0)
    a('v_mul_u32_u24 v%d, 320, v%d', t1, g)
    a('s_mul_i32 s71, s%d, 1280', sW)
    a('s_add_u32 s71, s71, %d', L_EL)
    a('v_add3_u32 v%d, v%d, v%d, s71', vE, t0, t1)
    a('v_lshlrev_b32 v%d, 3, v%d', vCH, vLANE)
    a('v_add_u32 v%d, %d, v%d', vCHL, L_H, vCH)
    a('v_lshlrev_b32 v%d, 9, v%d', vHINT, vLANE)
    a('v_lshlrev_b32 v%d, 2, v%d', vA0PW, vLANE)
    a('v_add_u32 v%d, %d, v%d', vA0PW, L_PW, vA0PW)
    a('v_add_u32 v%d, %d, v%d', vS2PW, 1024 + 512, vA0PW)
    a('v_and_b32 v%d, 0x%x, v%d', vP01, 0xffffffff ^ 512, vSPW)
    a('v_xor_b32 v%d, 256, v%d', vPW1, vPW)
    a('v_xor_b32 v%d, 512, v%d', vPW2, vPW)
    a('v_and_b32 v%d, 1, v%d', t0, vLANE)
    a('v_lshlrev_b32 v%d, 9, v%d', t0, t0)
    a('v_xor_b32 v%d, v%d, v%d', t0, t0, vPW)
    a('v_subrev_u32 v%d, 1024, v%d', vAM, t0)
    a('v_mov_b32 v%d, 16', vC16)
    a('v_bfe_u32 v%d, v%d, 1, 2', t0, vLANE)
    a('v_xor_b32 v%d, v%d, v%d', t0, t0, g)
    a('v_lshlrev_b32 v%d, 4, v%d', t0, t0)
    a('s_mul_i32 s71, s%d, 5120', sW)
    a('s_add_u32 s71, s71, %d', L_HT)
    a('v_lshl_add_u32 v%d, v%d, 6, v%d', t0, c, t0)
    a('v_add_u32 v%d, s71, v%d', vHW, t0)
    a('v_bfe_u32 v%d, v%d, 2, 2', t0, vLANE)
    a('v_lshrrev_b32 v%d, 5, v%d', t1, vLANE)
    a('v_lshl_add_u32 v%d, v%d, 3, v%d', vHR0, t1, t0)
    a('v_lshlrev_b32 v%d, 6, v%d', vHR0, vHR0)
    a('v_mul_u32_u24 v%d, %d, v%d', vHS, 80 * 256, t1)
    a('v_lshrrev_b32 v%d, 1, v%d', t0, t0)
    a('v_bfe_u32 v%d, v%d, 4, 1', t1, vLANE)
    a('v_bfe_u32 v%d, v%d, 1, 1', t2, vLANE)
    a('v_lshl_add_u32 v%d, v%d, 1, v%d', t2, t1, t2)
    a('v_xor_b32 v%d, v%d, v%d', t2, t2, t0)
    a('v_lshl_add_u32 v%d, v%d, 4, v%d', vHR0, t2, vHR0)
    a('v_and_b32 v%d, 1, v%d', t2, vLANE)
    a('v_lshl_add_u32 v%d, v%d, 3, v%d', vHR0, t2, vHR0)
    a('v_xor_b32 v%d, 32, v%d', vHR1, vHR0)
    a('v_add_u32 v%d, s71, v%d', vHR0, vHR0)
    a('v_add_u32 v%d, s71, v%d', vHR1, vHR1)
    a('v_mul_u32_u24 v%d, %d, v%d', t1, HBLK, t1)
    a('v_lshl_add_u32 v%d, v%d, 4, v%d', t1, c, t1)
    a('v_add_u32 v%d, v%d, v%d', vHS, vHS, t1)
    a('v_mov_b32 v%d, v%d', vCA, vDX)
    a('v_mov_b32 v%d, v%d', vCA + 1, vDX + 1)
    a('v_lshlrev_b32 v%d, 4, v%d', vHA, vLANE)
    a('v_lshlrev_b32 v%d, 7, v%d', vF3, vLANE)
    a('v_min_u32 v%d, %d, v%d', vHT, 39 * 128, vF3)
    a('v_min_u32 v%d, %d, v%d', vTCH, 24 * 128, vF3)
    a('s_lshl2_add_u32 s71, s%d, s%d', sI, sW)
    a('s_mul_i32 s71, s71, 6400')
    a('v_add_u32 v%d, s71, v%d', vTCH, vTCH)
    a('v_min_u32 v%d, %d, v%d', vCT, 49 * 128, vF3)
    a('v_cmp_le_u32 vcc, 25, v%d', vLANE)
    a('v_add_u32 v%d, 3200, v%d', t0, vCT)
    a('s_and_b32 s71, s%d, 1', sW)
    a('v_cndmask_b32 v%d, v%d, v%d, vcc', vCT, vCT, t0)
    a('s_lshl1_add_u32 s71, s%d, s71', sI)
    a('s_mul_i32 s71, s71, 12800')
    a('v_add_u32 v%d, s71, v%d', vCT, vCT)
    a('s_xor_b32 s92, s%d, 1', sW)
    a('s_mul_i32 s92, s92, %d', REGSZ)
    a('s_add_u32 s92, s92, %d', L_REG)
    a('s_xor_b32 s93, s%d, 3', sW)
    a('s_mul_i32 s93, s93, %d', REGSZ)
    a('s_add_u32 s93, s93, %d', L_REG + 16 * 336)
    a('v_add_u32 v%d, s70, v%d', vR1W, vHA)
    a('v_add_u32 v%d, s92, v%d', vR1R, vHA)
    a('v_mul_u32_u24 v%d, 336, v%d', t0, c)
    a('v_and_b32 v%d, 48, v%d', t1, vLANE)
    a('v_add3_u32 v%d, v%d, v%d, s92', vR2W, t0, t1)
    a('v_lshrrev_b32 v%d, 2, v%d', t0, vLANE)
    a('v_and_b32 v%d, 3, v%d', t1, vLANE)
    a('v_lshlrev_b32 v%d, 3, v%d', vDO, t1)
    a('v_mul_u32_u24 v%d, 1280, v%d', t2, t0)
    a('v_add_u32 v%d, v%d, v%d', vXO, t2, vDO)
    a('v_lshlrev_b32 v%d, 4, v%d', t1, t1)
    a('v_lshl_add_u32 v%d, v%d, 2, v%d', vOA, t2, t1)
    a('v_mul_u32_u24 v%d, 336, v%d', t2, t0)
    a('v_add3_u32 v%d, v%d, v%d, s92', vRA, t2, t1)
    a('v_add3_u32 v%d, v%d, v%d, s93', vRA + 1, t2, t1)
    if not OPT['wopack']:
        s_wooffs()

def s_params():
    a('s_cmp_eq_u32 s%d, 0', sW)
    a('s_cbranch_scc0 L_nopar')
    for r in (10, 11, 12):
        a('v_lshlrev_b32 v%d, 16, v%d', r, r)
    exp_acc(13, 10, 14, 15)
    a('v_cvt_pk_bf16_f32 v13, v13, v13')
    a('v_and_b32 v13, 0xffff0000, v13')
    a('v_mul_f32 v14, v13, v11')
    a('v_mul_f32 v15, v13, v12')
    exp_acc(16, 14, 17, 18)
    I2P = 1.0 / (2 * math.pi)
    hi = struct.unpack('<f', struct.pack('<f', I2P))[0]
    a('s_mov_b32 s80, 0x%x', f2u(hi))
    a('v_mul_f32 v17, s80, v15')
    a('v_rndne_f32 v17, v17')
    a('v_fma_f32 v17, v15, s80, -v17')
    a('v_fmac_f32 v17, 0x%x, v15', f2u(I2P - hi))
    a('v_cos_f32 v20, v17')
    a('v_sin_f32 v21, v17')
    a('v_mul_f32 v18, v11, v11')
    a('v_fmac_f32 v18, v12, v12')
    a('v_rcp_f32 v19, v18')
    a('v_mul_f32 v20, v16, v20')
    a('v_mul_f32 v21, v16, v21')
    a('v_fma_f32 v18, -v18, v19, 1.0')
    a('v_fmac_f32 v19, v19, v18')
    a('v_add_f32 v19, v19, v19')
    a('v_add_f32 v17, -1.0, v20')
    a('v_mul_f32 v22, v17, v11')
    a('v_fmac_f32 v22, v21, v12')
    a('v_mul_f32 v23, v17, v12')
    a('v_fma_f32 v23, -v21, v11, v23')
    a('v_mul_f32 v22, v22, v19')
    a('v_mul_f32 v23, v23, v19')
    a('v_lshlrev_b32 v9, 4, v%d', vLANE)
    a('v_add_u32 v9, %d, v9', L_PAR)
    a('ds_write_b128 v9, v[20:23]')
    a('v_mov_b32 v24, v20')
    a('v_sub_f32 v25, 0, v21')
    for k in range(3):
        a('v_mul_f32 v26, v25, v25')
        a('v_add_f32 v27, v24, v24')
        a('v_fma_f32 v24, v24, v24, -v26')
        a('v_mul_f32 v25, v27, v25')
    a.label('L_nopar')

def s_params2():
    a('s_cmp_eq_u32 s%d, 0', sW)
    a('s_cbranch_scc0 L_nopar2')
    a('s_mov_b32 exec_hi, 0xff')
    a('v_mov_b32 v14, 1.0')
    a('v_mov_b32 v15, 0')
    a('ds_write_b64 v%d, v[14:15] offset:%d', vCHL, L_Z - L_H)
    a('ds_write_b64 v%d, v[24:25] offset:%d', vCHL, L_Z - L_H + 320)
    src = 24
    for sg in range(2, 17):
        dst = 16 + 2 * (sg % 3)
        a('v_mul_f32 v%d, v24, v%d', dst, src)
        a('v_mul_f32 v%d, v24, v%d', dst + 1, src + 1)
        a('v_fma_f32 v%d, -v25, v%d, v%d', dst, src + 1, dst)
        a('v_fmac_f32 v%d, v25, v%d', dst + 1, src)
        a('ds_write_b64 v%d, %s offset:%d', vCHL, v(dst, 2), L_Z - L_H + 320 * sg)
        src = dst
    a('s_mov_b32 exec_hi, -1')
    a('s_waitcnt lgkmcnt(0)')
    a.label('L_nopar2')

def s_wooffs():
    for i in range(5):
        a('v_add_u32 v40, %d, v%d', 64 * i, vLANE)
        a('v_mul_u32_u24 v41, 6554, v40')
        a('v_lshrrev_b32 v41, 16, v41')
        a('v_mul_u32_u24 v42, 10, v41')
        a('v_sub_u32 v40, v40, v42')
        tau(42, 41, 43)
        a('v_mul_u32_u24 v42, 1280, v42')
        a('v_lshl_add_u32 v%d, v40, 4, v42', vWOA + i)
        if 0 < i < 4:
            a('v_subrev_u32 v%d, %d, v%d', vWOA + i, 1024 * i, vWOA + i)

def s_qloader():
    early = {1: {7: 10}, 2: {7: 10, 9: 11}, 3: {7: 10, 8: 11, 9: 12}, 0: {}}[OPT['st10']]
    q = [2] * 8 + [3] * 8 + [4] * 8
    for st in range(2, 10):
        a('s_waitcnt vmcnt(%d)', len(q) - 1 - max(i for i, x in enumerate(q) if x == st))
        if OPT['fine'] == 1 and st in (3, 5, 7, 9):
            stamp('S', 'st%d' % st)
        a('s_barrier')
        if st == 6:
            a('v_and_b32 v32, 15, v%d', vLANE)
            a('v_lshlrev_b32 v32, 4, v32')
            a('v_mov_b32 v33, 1')
            a('s_cmp_eq_u32 s%d, 3', sW)
            a('s_cbranch_scc0 L_nodbg')
            a(dbgload(32, 33))
            a.label('L_nodbg')
            a('s_cmp_eq_u32 s%d, 15', sCG)
            a('s_cbranch_scc0 L_cw')
            a('s_waitcnt vmcnt(0)')
            a.label('L_cw')
        if st <= 6:
            s_stage(st + 3)
            q += [st + 3] * 8
            slate()
        if st == OPT['pretouch']:
            a('s_cmp_eq_u32 s%d, 2', sW)
            a('s_cselect_b32 s70, s%d, s%d', sBRE, sBIM)
            a('s_cselect_b32 s71, s%d, s%d', sBRE + 1, sBIM + 1)
            a('s_mul_i32 s83, s2, 3200')
            a('s_lshl1_add_u32 s84, s2, s%d', sW)
            a('s_mul_i32 s84, s84, 5120')
            a('s_cmp_lt_u32 s%d, 2', sW)
            a('s_cselect_b32 s70, s%d, s70', sBX)
            a('s_cselect_b32 s71, s%d, s71', sBX + 1)
            a('s_cselect_b32 s83, s84, s83')
            a('s_cselect_b32 s84, 39, 24')
            a('v_min_u32 v30, s84, v%d', vLANE)
            a('v_lshl_add_u32 v30, v30, 7, s83')
            a('global_load_dword v31, v30, s[70:71]')
            q.append('t')
        if st == 7:
            stagger(82, 83, 0, OPT['flip'], OPT['stagb'])
        if st in early:
            s_stage(early[st])
            q += [early[st]] * 7
        if st == 7 and not OPT['plate']:
            s_params()
        if st == 8 and not OPT['plate']:
            s_params2()

    a('v_cmp_eq_u32 vcc, 0, v33')
    a('s_cbranch_vccz L_clrok')
    pollflags([dbgload(32, 33)], 33, sleep=8)
    a.label('L_clrok')
    a('s_barrier')
    stamp('S', 'qend')
    if OPT['plate']:
        s_params()
        s_params2()
    else:
        s_consts()

def s_consts():
    a('v_and_b32 v104, 7, v%d', vLANE)
    a('v_lshlrev_b32 v104, 4, v104')
    a('v_add_u32 v104, %d, v104', L_PAR)
    for j in range(5):
        a('ds_read_b128 %s, v104 offset:%d', v(vPAR + 4 * j, 4), 128 * j)
    a('v_and_b32 v105, -8, v%d', vE)
    a('v_subrev_u32 v105, %d, v105', L_EL - L_Z)
    for j in range(5):
        a('ds_read_b64 %s, v105 offset:%d', v(vZ + 2 * j, 2), 64 * j)
    a('s_cmp_eq_u32 s%d, 0', sW)
    a('s_cselect_b32 s70, 1, 16')
    a('s_mul_i32 s70, s70, 320')
    a('v_add_u32 v106, s70, v%d', vCHL)
    a('ds_read_b64 %s, v106 offset:%d', v(vL, 2), L_Z - L_H)
    a('v_bfe_u32 v145, v%d, 3, 1', vLANE)
    a('v_lshlrev_b32 v145, 31, v145')
    a('v_xor_b32 v144, 0x80000000, v145')
    a('s_waitcnt lgkmcnt(0)')
    for j in range(5):
        a('v_xor_b32 v%d, v145, v%d', vPAR + 4 * j + 1, vPAR + 4 * j + 1)
        a('v_xor_b32 v%d, v145, v%d', vPAR + 4 * j + 2, vPAR + 4 * j + 2)
        a('v_xor_b32 v%d, v144, v%d', vZ + 2 * j + 1, vZ + 2 * j + 1)

def touch(r, va=None):
    o = ['s_add_u32 s84, s%d, %d' % (sXCD, r),
         's_cmp_ge_u32 s84, 6', 's_cselect_b32 s85, 6, 0', 's_sub_u32 s84, s84, s85',
         's_cmp_ge_u32 s84, 6', 's_cselect_b32 s85, 6, 0', 's_sub_u32 s84, s84, s85',
         's_cmp_ge_u32 s84, 2',
         's_cselect_b32 s86, s%d, s%d' % (sCRE, sWO), 's_cselect_b32 s87, s%d, s%d' % (sCRE + 1, sWO + 1),
         's_cmp_ge_u32 s84, 4',
         's_cselect_b32 s86, s%d, s86' % sCIM, 's_cselect_b32 s87, s%d, s87' % (sCIM + 1),
         's_and_b32 s84, s84, 1', 's_mul_i32 s84, s84, 3200',
         's_add_u32 s86, s86, s84', 's_addc_u32 s87, s87, 0',
         'global_load_dword v109, v%d, s[86:87]' % (va or vTCH)]
    return o

def s_b1():
    F = [40, 68]
    def reads(t, ks, f):
        slot = t % 4
        hi, lo = slot >> 1, (slot & 1) * 32768
        r = ['ds_read_b128 %s, v%d offset:%d' % (v(f + 4 * T, 4), vXR + 2 * hi + ks, lo + 2048 * T) for T in range(2)]
        r += ['ds_read_b128 %s, v%d offset:%d' % (v(f + 8 + 4 * j, 4), vBR + 2 * hi + ks, lo + 1024 * j) for j in range(5)]
        return r
    def mfmas(f, first):
        return ['v_mfma_f32_16x16x32_bf16 %s, %s, %s, %s' % (v(8 * j + 4 * T, 4), v(f + 4 * T, 4), v(f + 8 + 4 * j, 4),
                '0' if first else v(8 * j + 4 * T, 4)) for j in range(5) for T in range(2)]
    def weave(ms, others):
        n = len(ms)
        k = 0
        for i_, m in enumerate(ms):
            a(m)
            while k < len(others) * (i_ + 1) // n:
                a(others[k])
                k += 1
    first = 10 + OPT['st10']
    a('s_lshl4_add_u32 s84, s%d, s%d', sCG, sRB)
    flagaddr(84, 84, F1, 85)
    a('s_waitcnt vmcnt(%d)', max(0, 7 * (first - 11)))
    a('s_barrier')
    for r in reads(10, 0, F[0]):
        a(r)
    for u in range(10):
        t = 10 + u
        if OPT['fine'] == 1 and u in (0, 2, 4, 6, 8):
            stamp('S', 'b1w%d' % u)
        a('s_waitcnt lgkmcnt(0)')
        m0_ = mfmas(F[0], u == 0)
        weave(m0_[:4], reads(t, 1, F[1]))
        for m in m0_[4:]:
            a(m)
        m1_ = mfmas(F[1], False)
        if u < 9:
            if t + 1 < first:
                a('s_waitcnt vmcnt(%d) lgkmcnt(0)', 7 * (first - t - 2))
            else:
                if t + 1 == first and OPT['plate']:
                    s_consts()
                a('s_waitcnt lgkmcnt(0)')
            a('s_barrier')
            if t + 1 == first:
                a('s_cmp_eq_u32 s%d, 3', sW)
                a('s_cbranch_scc0 L_noflag')
                setflag(84, 104)
                a.label('L_noflag')
            weave(m1_[:4], reads(t + 1, 0, F[0]))
            for m in m1_[4:]:
                a(m)
        else:
            a('s_waitcnt lgkmcnt(0)')
            for m in m1_:
                a(m)
    stamp('S', 'b1gemm')

def rot5(dst, t):
    a('s_and_b32 s%d, s%d, 3', dst, sI)
    a('s_add_u32 s%d, s%d, s%d', dst, dst, sXCD)
    for _ in range(2):
        a('s_cmp_ge_u32 s%d, 5', dst)
        a('s_cselect_b32 s%d, 5, 0', t)
        a('s_sub_u32 s%d, s%d, s%d', dst, dst, t)
    if not OPT['rot5']:
        a('s_mov_b32 s%d, 0', dst)

def s_wo():
    if OPT['wopack']:
        a('s_mov_b32 s73, 0x%x', F1 + 15 * 16 * 128)
        a('s_mov_b64 exec, 0xffff')
        pollflags(['buffer_load_dword v40, v%d, s[%d:%d], s73 offen sc1' % (vF3, RWS, RWS + 3)], 40, sleep=4)
        rot5(83, 73)
        a('s_mul_i32 s75, s%d, 102400', sOG)
        a('s_add_u32 s75, s75, 0x%x', WS_WP)
        a('s_mov_b32 s77, 5')
        a.label('L_woloop')
        a('s_lshl2_add_u32 s78, s83, s%d', sW)
        a('s_mul_i32 s78, s78, 5120')
        a('s_add_u32 s79, s78, s75')
        a('s_mov_b32 m0, s78')
        for i in range(5):
            if i == 4:
                a('s_add_u32 m0, s78, 4096')
                a('s_add_u32 s79, s79, 4096')
            a('s_waitcnt vmcnt(%d)', OPT['thrw'])
            a(dma(vHA, RWS, 79, 1024 * (i & 3)).replace(' lds', ' sc1 lds'))
    else:
        srd(R0, sWO, 640 * 1280)
        rot5(83, 73)
        a('s_mul_i32 s75, s%d, 160', sOG)
        a('s_mov_b32 s77, 5')
        a.label('L_woloop')
        a('s_lshl2_add_u32 s78, s83, s%d', sW)
        a('s_mul_i32 s79, s78, 40960')
        a('s_add_u32 s79, s79, s75')
        a('s_mul_i32 s78, s78, 5120')
        a('s_mov_b32 m0, s78')
        a('s_add_u32 s73, s78, 4096')
        for i in range(5):
            if i == 4:
                a('s_mov_b32 m0, s73')
            a('s_waitcnt vmcnt(%d)', OPT['thrw'])
            a(dma(vWOA + i, R0, 79, 1024 * (i & 3)))
    a('s_add_u32 s83, s83, 1')
    a('s_cmp_eq_u32 s83, 5')
    a('s_cselect_b32 s83, 0, s83')
    a('s_sub_u32 s77, s77, 1')
    a('s_cmp_lg_u32 s77, 0')
    a('s_cbranch_scc1 L_woloop')
    for kp in range(5):
        a('s_lshl_b32 s73, s83, 7')
        a('s_add_u32 s%d, s72, s73', 4 + kp)
        a('s_lshl_b32 s%d, s83, 11', 12 + kp)
        a('s_add_u32 s83, s83, 1')
        a('s_cmp_eq_u32 s83, 5')
        a('s_cselect_b32 s83, 0, s83')

def s_scan():
    ROR = 'row_ror:8 row_mask:0xf bank_mask:0xf'
    a('s_setprio 1')
    a('s_lshl_b32 s70, s%d, 13', sCG)
    a('s_add_u32 s70, s70, 0x%x', WS_E)
    a('s_add_u32 s70, s70, s%d', sWS)
    a('s_addc_u32 s71, s%d, 0', sWS + 1)
    srd(R5, 70, 8192)
    a('s_sub_u32 s70, 15, s%d', sRB)
    a('s_lshl_b32 s70, s70, 9')
    a('s_add_u32 s71, s70, 4096')
    tmp = 40
    for j in range(5):
        for k in range(8):
            a('v_mul_f32_dpp v%d, v%d, v%d %s', tmp + k, 8 * j + k, vPAR + 4 * j + 3, ROR)
        for k in range(8):
            a('v_fma_f32 v%d, v%d, v%d, v%d', 8 * j + k, vPAR + 4 * j + 2, 8 * j + k, tmp + k)
    e = [[8 * j for j in range(5)], [50 + j for j in range(5)], [56 + j for j in range(5)]]
    cur = e[0]
    for k in range(1, 8):
        nx = e[1 + (k & 1)]
        for j in range(5):
            a('v_fma_f32 v%d, v%d, v%d, v%d', nx[j], vPAR + 4 * j, cur[j], 8 * j + k)
        for j in range(5):
            a('v_fmac_f32_dpp v%d, v%d, v%d %s', nx[j], cur[j], vPAR + 4 * j + 1, ROR)
        cur = nx
    for j in range(5):
        a('ds_write_b32 v%d, v%d offset:%d', vE, cur[j], 64 * j)
    setpw(11, 104)
    for r in range(10 - OPT['tstart'], 0 if OPT['tlate'] else 6):
        a('s_waitcnt vmcnt(0)')
        for o in touch(r):
            a(o)
    stamp('S', 'pass1')
    def chain(dst, src, add):
        a('v_fma_f32 v%d, v%d, v%d, v%d', dst, vL, src, add)
        a('v_fma_f32 v%d, v%d, v%d, v%d', dst + 1, vL, src + 1, add + 1)
        a('v_fma_f32 v%d, -v%d, v%d, v%d', dst, vL + 1, src + 1, dst)
        a('v_fmac_f32 v%d, v%d, v%d', dst + 1, vL + 1, src)
    ES = 110
    a('s_cmp_eq_u32 s%d, 1', sW)
    a('s_cbranch_scc1 L_wave1')
    a('s_cmp_eq_u32 s%d, 0', sW)
    a('s_cbranch_scc0 L_wave23')
    waitpw(vSPW, 11, 105, sleep=1)
    a('s_mov_b32 exec_hi, 0xff')
    for sg in range(16):
        a('ds_read_b64 %s, v%d offset:%d', v(ES + 2 * sg, 2), vCHL, L_EL - L_H + 320 * sg)
    a('v_mov_b32 v142, 0')
    a('v_mov_b32 v143, 0')
    a('s_waitcnt lgkmcnt(0)')
    a('ds_write_b64 v%d, v[142:143] offset:%d', vCHL, L_PL - L_H)
    for sg in range(1, 16):
        a('ds_write_b64 v%d, %s offset:%d', vCHL, v(ES + 2 * sg - 2, 2), L_PL - L_H + 320 * sg)
        chain(ES + 2 * sg, ES + 2 * sg - 2, ES + 2 * sg)
    a('v_min_u32 v%d, -2, v%d', ES + 30, ES + 30)
    a('v_min_u32 v%d, -2, v%d', ES + 31, ES + 31)
    a('buffer_store_dwordx2 %s, v%d, s[%d:%d], s70 offen sc1', v(ES + 30, 2), vCH, R5, R5 + 3)
    a('s_mov_b32 exec_hi, -1')
    setpw(12, 104)
    a('s_branch L_coldone')
    a.label('L_wave1')
    a.label('L_hint')
    a('buffer_load_dword v105, v%d, s[%d:%d], s70 offen offset:512 sc1', vHINT, R5, R5 + 3)
    a('s_waitcnt vmcnt(0)')
    a('v_cmp_eq_u32 vcc, -1, v105')
    a('s_cbranch_vccz L_hintok')
    a('s_mov_b64 exec, vcc')
    a('s_sleep 3')
    a.label('L_hint2')
    a('s_sub_u32 s%d, s%d, 1', sSPIN, sSPIN)
    a('s_cbranch_scc0 L_hint')
    a('s_endpgm')
    a.label('L_hintok')
    a('s_mov_b32 exec_lo, -1')
    a('s_mov_b32 exec_hi, 0xff')
    for k in range(15, 0, -1):
        a('buffer_load_dwordx2 %s, v%d, s[%d:%d], s%d offen offset:%d sc1', v(ES + 2 * (15 - k), 2), vCH, R5, R5 + 3,
          71 if k >= 8 else 70, 512 * (k & 7))
    a('s_waitcnt vmcnt(0)')
    a('v_max_u32 v105, v%d, v%d', ES, ES + 1)
    for n in range(1, 15):
        a('v_max3_u32 v105, v105, v%d, v%d', ES + 2 * n, ES + 2 * n + 1)
    a('v_cmp_eq_u32 vcc, -1, v105')
    a('s_cbranch_vccnz L_hint2')
    for n in range(1, 15):
        chain(ES + 2 * n, ES + 2 * n - 2, ES + 2 * n)
    a('ds_write_b64 v%d, %s', vCHL, v(ES + 28, 2))
    a('s_mov_b32 exec_hi, -1')
    setpw(12, 104)
    a('s_branch L_coldone')
    a.label('L_wave23')
    if OPT['gtouch']:
        a('s_cmp_eq_u32 s%d, 2', sW)
        a('s_cbranch_scc0 L_coldone')
        a('v_min_u32 v106, %d, v%d', 24 * 128, vF3)
        a('s_mul_i32 s78, s2, 3200')
        a('v_add_u32 v106, s78, v106')
        if OPT['gtouch'] == 1:
            waitpw(vA0PW, 5, 105, sleep=2)
        for p in (sCRE, sCIM, sWO):
            a('global_load_dword v109, v106, s[%d:%d]', p, p + 1)
    if OPT['tearly']:
        waitpw(vA0PW, 5, 105, sleep=2)
    for r in range(OPT['tearly']):
        for o in touch(r, vCT):
            a(o)
        if r + 1 < OPT['tearly']:
            a('s_waitcnt vmcnt(0)')
    a.label('L_coldone')
    a('s_lshl2_add_u32 s70, s%d, s%d', sRB, sW)
    a('s_mul_i32 s71, s70, %d', 2 * HBLK)
    a('s_mul_i32 s78, s%d, 1280', sCG)
    a('s_add_u32 s71, s71, s78')
    a('s_add_u32 s71, s71, 0x%x', WS_H)
    a('s_lshl4_add_u32 s70, s70, s%d', sCG)
    flagaddr(70, 70, F3, 78)
    waitpw(vP01, 12, 105, sleep=4)
    stamp('S', 'carry')
    for j in range(5):
        a('ds_read_b32 v%d, v%d offset:%d', 50 + j, vE, L_PL - L_EL + 64 * j)
        a('ds_read_b32 v%d, v%d offset:%d', 56 + j, vHH, 64 * j)
    a('s_waitcnt lgkmcnt(0)')
    for j in range(5):
        a('v_fmac_f32 v%d, v%d, v%d', 50 + j, vZ + 2 * j, 56 + j)
    for j in range(5):
        a('v_fmac_f32_dpp v%d, v%d, v%d %s', 50 + j, 56 + j, vZ + 2 * j + 1, ROR)
    for k in range(8):
        pr = [50 + j if k == 0 else 8 * j + k - 1 for j in range(5)]
        for j in range(5):
            a('v_fmac_f32 v%d, v%d, v%d', 8 * j + k, vPAR + 4 * j, pr[j])
        for j in range(5):
            a('v_fmac_f32_dpp v%d, v%d, v%d %s', 8 * j + k, pr[j], vPAR + 4 * j + 1, ROR)
    for j in range(5):
        for q in range(4):
            a('v_cvt_pk_bf16_f32 v%d, v%d, v%d', 64 + 4 * j + q, 8 * j + 2 * q, 8 * j + 2 * q + 1)
        a('ds_write_b128 v%d, %s offset:%d', vHW, v(64 + 4 * j, 4), 1024 * j)
        a('ds_read_b64_tr_b16 %s, v%d offset:%d', v(110 + 4 * j, 2), vHR0, 1024 * j)
        a('ds_read_b64_tr_b16 %s, v%d offset:%d', v(110 + 4 * j + 2, 2), vHR1, 1024 * j + 256)
    for j in range(5):
        a('s_waitcnt lgkmcnt(%d)', 12 - 3 * j)
        a('buffer_store_dwordx4 %s, v%d, s[%d:%d], s71 offen offset:%d sc1', v(110 + 4 * j, 4), vHS, RWS, RWS + 3, 256 * j)
    setpw(13, 104)

def s_b3():
    NS = 4
    acc, HF, CF = 0, 80, [208, 216]
    a('s_cmp_ge_u32 s%d, 2', sW)
    a('s_cselect_b32 s78, s%d, s%d', sCIM, sCRE)
    a('s_cselect_b32 s79, s%d, s%d', sCIM + 1, sCRE + 1)
    srd(R1, 78, 640 * 1280)
    srd(R6, sOUT, 2048 * 1280 * 4)
    a('s_mul_i32 s74, s%d, %d', sW, REGSZ)
    a('s_add_u32 s74, s74, %d', L_REG)
    a('s_and_b32 s78, s%d, 1', sW)
    a('s_mul_i32 s72, s%d, %d', sOG, 80 * 1280)
    a('s_mul_i32 s73, s78, 640')
    a('s_add_u32 s72, s72, s73')
    a('s_mul_i32 s79, s%d, %d', sW, 40 * 256)
    a('s_add_u32 s79, s79, 0x%x', WS_H)
    a('s_lshr_b32 s80, s%d, 1', sW)
    a('s_lshl1_add_u32 s78, s78, s80')
    for l in range(4):
        a('s_xor_b32 s80, s78, %d', l)
        a('s_lshl2_add_u32 s80, s%d, s80', sTB)
        a('s_mul_i32 s80, s80, %d', HBLK)
        a('s_add_u32 s%d, s80, s79', 84 + l)
    a('s_lshl_b32 s88, s%d, 12', sTB)
    a('s_add_u32 s88, s88, 0x%x', F3)
    a('s_lshl2_add_u32 s78, s%d, s78', sTB)
    a('s_mul_i32 s80, s78, %d', 16 * 1280)
    a('s_mul_i32 s81, s%d, 160', sOG)
    a('s_add_u32 s80, s80, s81')
    a('s_mul_i32 s82, s78, %d', 16 * 5120)
    a('s_lshl1_add_u32 s82, s81, s82')
    a('s_add_u32 s82, s82, 2560')
    a('s_add_u32 s90, s%d, s81', sDSK)
    a('s_addc_u32 s91, s%d, 0', sDSK + 1)
    a('s_lshl2_add_u32 s89, s%d, s%d', sOG, sW)
    a('s_mul_i32 s89, s89, 5120')
    a('s_mul_i32 s79, s%d, %d', sTB, 4 * HBLK)
    a('s_add_u32 s89, s89, s79')
    a('s_add_u32 s89, s89, 0x%x', WS_H)
    a('s_waitcnt vmcnt(0)')
    setflag(70, 40)
    stamp('S', 'hpub')
    if OPT['tlate']:
        for k in range(4):
            a('s_mov_b32 s%d, s%d', 4 + k, 84 + k)
        for r in range(OPT['tearly'], 6):
            for o in touch(r):
                a(o)
            a('s_waitcnt vmcnt(0)')
        for k in range(4):
            a('s_mov_b32 s%d, s%d', 84 + k, 4 + k)
    if OPT['newpre']:
        def cdma(n, pace=None):
            kp, j = divmod(n, 5)
            a('s_add_u32 m0, s74, %d', 2048 * (n % NS))
            a('s_add_u32 s76, s%d, %d', 4 + kp, 16 * 1280 * j)
            for k in range(2):
                if pace is not None:
                    a('s_waitcnt vmcnt(%d)', pace)
                a(dma(vCA + k, R1, 76, 1024 * k))
        def hload(l, ks):
            return 's_add_u32 s9, s%d, s%d\nbuffer_load_dwordx4 %s, v%d, s[%d:%d], s9 offen offset:%d sc1' % (
                84 + l, 12 + ks // 2, v(HF + 16 * (ks % 8) + 4 * l, 4), vHA, RWS, RWS + 3, 1024 * (ks & 1))
        srd(R0, sWO, 640 * 1280)
        rot5(83, 73)
        for kp in range(5):
            a('s_lshl_b32 s73, s83, 7')
            a('s_add_u32 s%d, s72, s73', 4 + kp)
            a('s_lshl_b32 s%d, s83, 11', 12 + kp)
            a('s_lshl2_add_u32 s%d, s83, s%d', 17 + kp, sW)
            a('s_add_u32 s83, s83, 1')
            a('s_cmp_eq_u32 s83, 5')
            a('s_cselect_b32 s83, 0, s83')
        a('s_mul_i32 s75, s%d, 160', sOG)
        waitpw(vSPW, 13, 41, sleep=2)
        for n in range(NS):
            cdma(n, OPT['thrw'] + 1)
        pl = 'buffer_load_dword v41, v%d, s[%d:%d], s88 offen sc1' % (vF3, RWS, RWS + 3)
        for it in range(5):
            if it == OPT['f3at']:
                a('s_mov_b32 exec_hi, 0')
                a(pl)
                a('s_mov_b32 exec_hi, -1')
            a('s_mul_i32 s79, s%d, 40960', 17 + it)
            a('s_add_u32 s79, s79, s75')
            a('s_mul_i32 s78, s%d, 5120', 17 + it)
            a('s_mov_b32 m0, s78')
            for i in range(5):
                if i == 4:
                    a('s_add_u32 m0, s78, 4096')
                a('s_waitcnt vmcnt(%d)', OPT['thrw'])
                a(dma(vWOA + i, R0, 79, 1024 * (i & 3)))
            if it == OPT['f3at']:
                a('s_mov_b32 exec_hi, 0')
                a('s_waitcnt vmcnt(5)')
                a('v_cmp_eq_u32 vcc, 0, v41')
                a('s_cbranch_vccz L_f3seen')
                a('s_mov_b64 exec, vcc')
                pollflags([pl], 41, sleep=4)
                a.label('L_f3seen')
                a('s_mov_b64 exec, -1')
                stamp('S', 'f3')
                a('buffer_load_dword v41, v%d, s[%d:%d], s89 offen sc1', vHT, RWS, RWS + 3)
        stamp('S', 'wo')
        a('v_mov_b32 v42, 14')
        for ks in range(2):
            for l in range(4):
                a('s_waitcnt vmcnt(%d)', OPT['thrw'] + 1)
                a(hload(l, ks))
        a('ds_write_b32 v%d, v42', vPW)
        a('s_setprio %d', OPT['b3prio'])
    else:
        stamp('S', 'touch')
        s_wo()
        waitpw(vSPW, 13, 40, sleep=2)
        def cdma(n):
            kp, j = divmod(n, 5)
            a('s_add_u32 m0, s74, %d', 2048 * (n % NS))
            a('s_add_u32 s76, s%d, %d', 4 + kp, 16 * 1280 * j)
            a(dma(vCA, R1, 76, 0))
            a(dma(vCA + 1, R1, 76, 1024))
        for n in range(NS):
            cdma(n)
            a('s_waitcnt vmcnt(%d)', 0 if n == NS - 1 else 4)
        setpw(14, 40)
        stamp('S', 'wo')
        a('s_cmp_eq_u32 s%d, 2', sW)
        a('s_cbranch_scc0 L_f3wait')
        a('s_mov_b32 exec_hi, 0')
        pollflags(['buffer_load_dword v40, v%d, s[%d:%d], s88 offen sc1' % (vF3, RWS, RWS + 3)], 40, sleep=4)
        setpw(15, 40)
        a.label('L_f3wait')
        waitpw(vS2PW, 15, 40, sleep=4)
        stamp('S', 'f3')
        a('s_setprio %d', OPT['b3prio'])
        def hload(l, ks):
            return 's_add_u32 s9, s%d, s%d\nbuffer_load_dwordx4 %s, v%d, s[%d:%d], s9 offen offset:%d sc1' % (
                84 + l, 12 + ks // 2, v(HF + 16 * (ks % 8) + 4 * l, 4), vHA, RWS, RWS + 3, 1024 * (ks & 1))
        a('buffer_load_dword v40, v%d, s[%d:%d], s89 offen sc1', vHT, RWS, RWS + 3)
        for ks in range(2):
            if ks:
                a('s_waitcnt vmcnt(0)')
            for l in range(4):
                a(hload(l, ks))
    def creads(n):
        return ['ds_read_b128 %s, v%d offset:%d' % (v(CF[n & 1] + 4 * k, 4), vCR + k, 2048 * (n % NS)) for k in range(2)]
    q = []
    def waitfor(tag):
        idx = max(i for i, x in enumerate(q) if x == tag)
        n = len(q) - 1 - idx
        del q[:idx + 1]
        return n
    for r in creads(0):
        a(r)
    a('s_waitcnt vmcnt(0) lgkmcnt(0)')
    stamp('S', 'b3go')
    cdma(NS)
    q += [NS, NS]
    vX, vD = HF + 32, HF + 42
    hq = [(l, ks) for ks in range(2, 10) for l in range(4)]
    STOP = OPT['b3stop']
    frag = {n: CF[n & 1] for n in range(25)}
    if STOP == 15:
        for k, n in enumerate(range(17, 21)):
            frag[n] = HF + 64 + 8 * k
    def creads(n):
        return ['ds_read_b128 %s, v%d offset:%d' % (v(frag[n] + 4 * k, 4), vCR + k, 2048 * (n % NS)) for k in range(2)]
    done = {0}
    def fetch(n):
        if n in q:
            a('s_waitcnt vmcnt(%d)', waitfor(n))
        for r in creads(n):
            a(r)
        done.add(n)
    issued = set(range(NS + 1))
    def refill(n):
        if n + NS < 25 and n + NS not in issued:
            cdma(n + NS)
            q.extend([n + NS, n + NS])
            issued.add(n + NS)
    for n in range(25):
        kp, j = divmod(n, 5)
        if n == STOP:
            last = 20 if STOP == 15 else n
            for m in range(n + 1, last + 1):
                fetch(m)
                a('s_waitcnt lgkmcnt(0)')
                refill(m)
            a('s_waitcnt vmcnt(0)')
            del q[:]
            stamp('S', 'b3stop')
            a('s_setprio 1')
            waitpw(vAM, OPT['b3res'], 245, sleep=2)
            stamp('S', 'b3res')
        nxt = n + 1
        while nxt in done:
            nxt += 1
        rd = nxt < 25 and (nxt == n + 1 or all(frag[nxt] != frag[m] for m in range(n, nxt)))
        if rd:
            fetch(nxt)
        if j == 0 and 'h%d' % kp in q:
            a('s_waitcnt vmcnt(%d)', waitfor('h%d' % kp))
        if OPT['fine'] >= 2 and n in (3, 6, 9, 12):
            stamp('S', 'u%d' % n)
        extra = []
        for _ in range(OPT['hrate']):
            if hq and (hq[0][1] < 8 or n >= 5):
                l, ks = hq.pop(0)
                extra.append(hload(l, ks))
                q.append('h%d' % (ks // 2))
        if 10 <= n < 15:
            i = n - 10
            extra += ['global_load_dwordx2 %s, v%d, s[90:91] offset:%d' % (v(vD + 2 * i, 2), vDO, 32 * i),
                      'buffer_load_dwordx2 %s, v%d, s[%d:%d], s80 offen offset:%d' % (v(vX + 2 * i, 2), vXO, R3, R3 + 3, 32 * i)]
            q += ['x', 'x']
        assert len(extra) <= 5
        cnt = 0
        for k in range(2):
            ks = 2 * kp + k
            for l in range(4):
                d = acc + 20 * l + 4 * j
                a('v_mfma_f32_16x16x32_bf16 %s, %s, %s, %s', v(d, 4), v(frag[n] + 4 * k, 4), v(HF + 16 * (ks % 8) + 4 * l, 4),
                  '0' if ks == 0 else v(d, 4))
                if cnt < len(extra):
                    a(extra[cnt])
                cnt += 1
                if cnt == 5 and rd:
                    a('s_waitcnt lgkmcnt(0)')
                    refill(nxt)
                if cnt == 5 and n == OPT['gate4']:
                    a('ds_write_b32 v%d, v%d', vPW, vC16)
    assert not hq
    stamp('S', 'b3gemm')
    T = 160
    a('s_setprio 1')
    waitpw(vAM, 7, T, sleep=2)
    for qd in range(10):
        a('ds_write_b128 v%d, %s offset:%d', vR1W, v(acc + 40 + 4 * qd, 4), 1024 * qd)
    setpw(17, T + 1)
    a('s_waitcnt vmcnt(0)')
    U = 180
    def skip(i):
        for hf in range(2):
            a('v_lshlrev_b32 v%d, 16, v%d', T + 4, vX + 2 * i + hf)
            a('v_lshlrev_b32 v%d, 16, v%d', T + 5, vD + 2 * i + hf)
            a('v_and_b32 v%d, 0xffff0000, v%d', T + 6, vX + 2 * i + hf)
            a('v_and_b32 v%d, 0xffff0000, v%d', T + 7, vD + 2 * i + hf)
            a('v_mul_f32 v%d, v%d, v%d', U + 4 * i + 2 * hf, T + 4, T + 5)
            a('v_mul_f32 v%d, v%d, v%d', U + 4 * i + 2 * hf + 1, T + 6, T + 7)
    skip(0)
    skip(1)
    waitpw(vPW1, 17, T + 1)
    for qd in (5, 6, 7, 8, 9, 0, 1, 2, 3, 4):
        a('ds_read_b128 %s, v%d offset:%d', v(acc + 40 + 4 * qd, 4), vR1R, 1024 * qd)
    skip(2)
    a('s_waitcnt lgkmcnt(0)')
    for qd in (5, 6, 7, 8, 9, 0, 1, 2, 3, 4):
        l, j = divmod(qd, 5)
        for e in range(4):
            a('v_add_f32 v%d, v%d, v%d', acc + 4 * qd + e, acc + 4 * qd + e, acc + 40 + 4 * qd + e)
        a('ds_write_b128 v%d, %s offset:%d', vR2W, v(acc + 4 * qd, 4), 16 * 336 * l + 64 * j)
        if qd == 9:
            setpw(18, T + 1)
    for i in range(5):
        a('ds_read_b128 %s, v%d offset:%d', v(acc + 40 + 8 * i, 4), vRA, 64 * i)
    skip(3)
    skip(4)
    waitpw(vPW2, 18, T + 1)
    for i in range(5):
        a('ds_read_b128 %s, v%d offset:%d', v(acc + 44 + 8 * i, 4), vRA + 1, 64 * i)
    for i in range(5):
        for e in range(4):
            a('v_add_f32 v%d, v%d, v%d', U + 4 * i + e, U + 4 * i + e, acc + 40 + 8 * i + e)
    for i in range(5):
        a('s_waitcnt lgkmcnt(%d)', 4 - i)
        for e in range(4):
            a('v_add_f32 v%d, v%d, v%d', U + 4 * i + e, U + 4 * i + e, acc + 44 + 8 * i + e)
    stamp('S', 'yrdy')
    if OPT['yhold']:
        a('v_subrev_u32 v%d, 1024, v%d', T + 2, vSPW)
        waitpw(T + 2, 9, T + 1, sleep=2)
    for i in range(5):
        a('buffer_store_dwordx4 %s, v%d, s[%d:%d], s82 offen offset:%d%s', v(U + 4 * i, 4), vOA, R6, R6 + 3, 64 * i, YSC)
    finish('S')

prologue()
s_setup()
s_qloader()
if OPT['sexit'] == 1:
    setpw(99, 40)
    finish('S')
s_b1()
if OPT['sexit'] == 2:
    setpw(99, 40)
    finish('S')
s_scan()
s_b3()
a_setup()
if not OPT['alate']:
    a_att_setup()
    a_b1_setup()
a_qphase()
a_handoff()
a_attention()
a_outproj()
a.label('L_codeend')

errs = check(a.lines)
for e_ in errs:
    print('HAZARD', e_, file=sys.stderr)

head = open('cdna_kernels/%s.s.ref' % NAME).read().split('; @launch')[0]
out = head + '; @launch grid=(256,1,1) block=(512,1,1) lds=%d\n' % LDS_BYTES
out += '''.amdgcn_target "amdgcn-amd-amdhsa--gfx950"
.text
.globl %s_kernel
.p2align 8
.type %s_kernel,@function
%s_kernel:
''' % (NAME, NAME, NAME)
out += a.text()
out += '''.section .rodata,"a"
.p2align 6
.amdhsa_kernel %s_kernel
  .amdhsa_next_free_vgpr 256
  .amdhsa_next_free_sgpr 102
  .amdhsa_accum_offset 256
  .amdhsa_group_segment_fixed_size 0
  .amdhsa_kernarg_size 120
  .amdhsa_user_sgpr_count 2
  .amdhsa_user_sgpr_kernarg_segment_ptr 1
  .amdhsa_system_sgpr_workgroup_id_x 1
.end_amdhsa_kernel
''' % NAME
open(sys.argv[1], 'w').write(out)
if DIAG:
    import json
    json.dump(nstamp, open(sys.argv[1] + '.stamps.json', 'w'))
import subprocess
r_ = subprocess.run(['clang', '-x', 'assembler', '-target', 'amdgcn-amd-amdhsa', '-mcpu=gfx950', '-c', sys.argv[1], '-o', 'chk.o'], capture_output=True, text=True)
if r_.returncode:
    print(r_.stderr[:2000])
    sys.exit(1)
if errs:
    sys.exit(1)
```

```python
import sys, math, struct
from asmlib import Asm, v, s, check

NAME = 'concat_heads__mha_block__ssm_conv_s5__prompt'
OPT = dict(diag=0, b3start=12, force_fb=0, psleep=0, fine=0, cpre=1, stag=5, b1dep=2, rot=1, thr=4, hold=3, codepre=2, psleep4=0, padto=0, outsc1=1, gate4=-1, early0=1, st10=2, b1prio=0, probe='', probewg=-1, sexit=0, b3prio=0, nocdma=0, mallpre=0, b3early=1, pretouch=-1, pace=0, pause=1, wolate=1, thrw=2, kvsplit=5, tstart=0, k2split=0, gate1='x', tlate=0, spread=1, pollat=17, tearly=0, b3stop=12, b3res=8, hrate=3, yhold=1, rot5=1, wopack=0, olead=20, allpoll=1, ysc=1, clrwide=0, nodup=1, onewait=0, vzero=1, lalign=6, lpad=0, epoll=0, npre=2, tprio=0, pgate=1, p3dyn=0, flip=1, newpre=1, f3at=2, gtouch=0, pkmerge=1, kvplain=0, acq=0, stagb=4, alate=2, slate=0, plate=1, seq='', unroll=2, lean=1, yearly=0, ysleep=2, cmap=1, l2pre=2, xpre=0, hack16=0, fastpro=1, gsleep=0, rsleep=2, xtail=1, ctail=0, hin=1, ahead=9, woe=0, thre=2)
for a_ in sys.argv[2:]:
    k_, v_ = a_.split('=')
    OPT[k_] = v_ if k_ in ('probe', 'gate1', 'seq') else int(v_)
DIAG = OPT['diag']
OSC = ['', ' sc1', ' nt', ' sc1 nt'][OPT['outsc1']]
YSC = ['', ' sc1', ' nt', ' sc1 nt'][OPT['ysc']]

def f2u(x):
    return struct.unpack('<I', struct.pack('<f', x))[0]

BLK, VOFF, VROW = 247808, 164864, 10368
WS_H, HBLK = 0x800000, 40960
WS_O, OBLK = 0xD00000, 20480
WS_E = 0xF80000
WS_F = 0xFA0000
F1, F3, F4 = WS_F, WS_F + 0x8000, WS_F + 0x28000
WS_WP = 0x1000000
WS_END = WS_WP + 8 * 102400
WS_DIAG = 0x1100000
OOB = 0x7F000000
L_HT, L_H, L_EL, L_PL = 65536, 86016, 86528, 91648
L_PAR, L_Z = 131072, 132096
L_WO = 0
L_REG, REGSZ = 102400, 14848
L_PW = 161792
LDS_BYTES = 163840
sAX, sWQ, sWO, sBX, sLRE, sLIM, sBRE, sBIM, sCRE, sCIM, sLDT, sDSK, sOUT, sDBG, sWS = range(4, 34, 2)
sW, sI, sXCD = 34, 35, 3
R0, R1, RWS, R3, R4, R5, R6 = 36, 40, 44, 48, 52, 56, 60
sRB, sCG, sHD, sQB, sTB, sOG = 64, 65, 66, 67, 68, 69
sG = 0
sSPIN = 96
sHI = 94
vLANE, vPW, vTS = 254, 253, 255
SPIN_MAX = 1 << 19

a = Asm()
nstamp = {}

def stamp(role, name):
    if OPT['probe'] == role + name:
        a('s_memrealtime s[98:99]')
        a('s_waitcnt lgkmcnt(0)')
        a('s_mov_b32 s97, s98')
    if not DIAG:
        return
    l = nstamp.setdefault(role, [])
    if DIAG == 2:
        l.append(name)
        if role + name == 'Aattpro':
            a('s_memrealtime s[98:99]')
            a('s_waitcnt lgkmcnt(0)')
            a('v_writelane_b32 v%d, s98, 29', vTS)
        return
    idx = len(l)
    l.append(name)
    a('s_memtime s[98:99]')
    a('s_memrealtime s[100:101]')
    a('s_waitcnt lgkmcnt(0)')
    a('v_writelane_b32 v%d, s98, %d', vTS, idx)
    a('v_writelane_b32 v%d, s100, %d', vTS, 32 + idx)

def srd(r, base, nbytes):
    a('s_mov_b32 s%d, s%d', r, base)
    a('s_mov_b32 s%d, s%d', r + 1, base + 1)
    if isinstance(nbytes, int):
        a('s_mov_b32 s%d, 0x%x', r + 2, nbytes)
    else:
        a('s_mov_b32 s%d, %s', r + 2, nbytes)
    a('s_mov_b32 s%d, 0x20000', r + 3)

def setpw(val, tmp):
    a('v_mov_b32 v%d, %d', tmp, val)
    a('ds_write_b32 v%d, v%d', vPW, tmp)

COLD = []

def retry(label, back, sleep, pre=()):
    COLD.append(label + ':')
    COLD.extend(pre)
    if sleep:
        COLD.append('s_sleep %d' % sleep)
    COLD.append('s_sub_u32 s%d, s%d, 1' % (sSPIN, sSPIN))
    COLD.append('s_cbranch_scc0 %s' % back)
    COLD.append('s_endpgm')

def flush_cold():
    a.lines.extend(COLD)
    del COLD[:]

def waitpw(vaddr, val, tmp, sleep=0, extra=()):
    L = a.newlabel('pw')
    D = a.newlabel('pwr')
    a.label(L)
    a('ds_read_b32 v%d, v%d', tmp, vaddr)
    for e in extra:
        a(e)
    if not sleep:
        a('s_sub_u32 s%d, s%d, 1', sSPIN, sSPIN)
        a('s_cbranch_scc1 L_exit')
    a('s_waitcnt lgkmcnt(%d)', len(extra))
    a('v_cmp_gt_u32 vcc, %d, v%d', val, tmp)
    if not sleep:
        a('s_cbranch_vccnz %s', L)
        return
    a('s_cbranch_vccnz %s', D)
    retry(D, L, sleep)

def pollflags(loads, tmp, sleep=1):
    L = a.newlabel('pf')
    D = a.newlabel('pfr')
    a.label(L)
    for l in loads:
        a(l)
    if not sleep:
        a('s_sub_u32 s%d, s%d, 1', sSPIN, sSPIN)
        a('s_cbranch_scc1 L_exit')
    a('s_waitcnt vmcnt(0)')
    for i in range(1, len(loads)):
        a('v_and_b32 v%d, v%d, v%d', tmp, tmp, tmp + i)
    a('v_cmp_eq_u32 vcc, 0, v%d', tmp)
    if not sleep:
        a('s_and_b64 exec, exec, vcc')
        a('s_cbranch_scc1 %s', L)
    else:
        a('s_cbranch_vccnz %s', D)
        retry(D, L, sleep, ['s_mov_b64 exec, vcc'])
    a('s_mov_b64 exec, -1')

def dbgload(va, vd):
    return 'global_load_dword v%d, v%d, s[%d:%d] sc1' % (vd, va, sDBG, sDBG + 1)

def flagaddr(dst, idx, base, t):
    a('s_lshl_b32 s%d, s%d, 7', dst, idx)
    a('s_add_u32 s%d, s%d, 0x%x', dst, dst, base)

def setflag(soff, tmp):
    a('v_mov_b32 v%d, 1', tmp)
    a('s_mov_b64 exec, 1')
    a('buffer_store_dword v%d, off, s[%d:%d], s%d sc1', tmp, RWS, RWS + 3, soff)
    a('s_mov_b64 exec, -1')

def tau(dst, src, t):
    a('v_and_b32 v%d, 0x13, v%d', dst, src)
    a('v_and_b32 v%d, 4, v%d', t, src)
    a('v_lshl_or_b32 v%d, v%d, 1, v%d', dst, t, dst)
    a('v_and_b32 v%d, 8, v%d', t, src)
    a('v_lshrrev_b32 v%d, 1, v%d', t, t)
    a('v_or_b32 v%d, v%d, v%d', dst, t, dst)

def finish(role):
    if OPT['probe'][:1] == role:
        if OPT['probe'][1:] == 'drained':
            a('s_waitcnt vmcnt(0)')
            stamp(role, 'drained')
        a('s_sub_u32 s97, s97, s100')
        a('s_mul_i32 s97, s97, 10')
        a('s_add_u32 s97, s97, 10000')
        if OPT['probewg'] >= 0:
            a('s_and_b32 s98, s2, 31')
            a('s_cmp_eq_u32 s98, %d', OPT['probewg'])
            a('s_cselect_b32 s97, s97, 0')
        L = a.newlabel('pad')
        a.label(L)
        a('s_sleep 4')
        a('s_memrealtime s[98:99]')
        a('s_waitcnt lgkmcnt(0)')
        a('s_sub_u32 s98, s98, s100')
        a('s_cmp_lt_u32 s98, s97')
        a('s_cbranch_scc1 %s', L)
    if OPT['padto']:
        L = a.newlabel('pad')
        a.label(L)
        a('s_sleep 4')
        a('s_memrealtime s[98:99]')
        a('s_waitcnt lgkmcnt(0)')
        a('s_sub_u32 s98, s98, s100')
        a('s_cmp_lt_u32 s98, %d', OPT['padto'])
        a('s_cbranch_scc1 %s', L)
    if DIAG:
        stamp(role, 'end')
        a('s_waitcnt vmcnt(0)')
        stamp(role, 'drained')
        a('s_memrealtime s[98:99]')
        a('s_waitcnt lgkmcnt(0)')
        a('v_writelane_b32 v%d, s98, 31', vTS)
        a('s_lshl_b32 s70, s2, 3')
        a('s_add_u32 s70, s70, s%d', sW)
        if role == 'S':
            a('s_add_u32 s70, s70, 4')
        a('s_lshl_b32 s70, s70, 8')
        a('s_add_u32 s70, s70, 0x%x', WS_DIAG)
        a('v_lshlrev_b32 v0, 2, v%d', vLANE)
        a('buffer_store_dword v%d, v0, s[%d:%d], s70 offen', vTS, RWS, RWS + 3)
    a('s_endpgm')

def prologue():
    a('s_cmp_ge_u32 s2, 256')
    a('s_cbranch_scc0 L_go')
    a('s_endpgm')
    a.label('L_go')
    if OPT['padto'] or DIAG or OPT['probe']:
        a('s_memrealtime s[100:101]')
    a('s_load_dwordx16 s[4:19], s[0:1], 0')
    a('s_load_dwordx8 s[20:27], s[0:1], 64')
    a('s_load_dwordx4 s[28:31], s[0:1], 96')
    a('s_load_dwordx2 s[32:33], s[0:1], 112')
    a('s_lshr_b32 s%d, s2, 3', sI)
    if OPT['codepre'] == 2:
        a.c('pull the code into L2: every half wave of an XCD touches one line')
        a('s_getpc_b64 s[76:77]')
        a('v_lshrrev_b32 v1, 5, v0')
        a('v_lshl_add_u32 v1, s%d, 4, v1', sI)
        a('v_min_u32 v1, (L_codeend - L_go) / 128 - 1, v1')
        a('v_lshlrev_b32 v1, 7, v1')
        a('global_load_dword v110, v1, s[76:77]')
    a('v_lshrrev_b32 v1, 6, v0')
    a('v_and_b32 v%d, 63, v0', vLANE)
    a('v_readfirstlane_b32 s%d, v1', sW)
    a('s_and_b32 s%d, s2, 7', sXCD)
    a('s_and_b32 s70, s%d, 3', sI)
    a('s_lshr_b32 s%d, s%d, 2', sOG, sI)
    a('s_lshr_b32 s71, s%d, 1', sXCD)
    a('s_lshl2_add_u32 s%d, s71, s70', sRB)
    a('s_and_b32 s71, s%d, 1', sXCD)
    a('s_lshl3_add_u32 s%d, s71, s%d', sG, sOG)
    a('s_cmp_ge_u32 s%d, %d', sI, 30 if OPT['cmap'] else 99)
    a('s_cselect_b32 s71, 8, 0')
    a('s_xor_b32 s%d, s%d, s71', sCG, sG)
    if DIAG:
        prologue2()
    a('s_cmp_ge_u32 s%d, 4', sW)
    a('s_cbranch_scc0 L_roleA')

def prologue2():
    a('v_lshlrev_b32 v%d, 2, v0', vPW)
    a('v_add_u32 v%d, %d, v%d', vPW, L_PW, vPW)
    a('v_mov_b32 v0, 0')
    a('ds_write_b32 v%d, v0', vPW)
    a('s_lshr_b32 s71, s%d, 3', sI)
    a('s_lshl2_add_u32 s%d, s%d, s71', sHD, sXCD)
    a('s_and_b32 s%d, s%d, 7', sQB, sI)
    a('s_and_b32 s70, s%d, 3', sI)
    a('s_lshl2_add_u32 s%d, s%d, s70', sTB, sXCD)
    a('s_mov_b32 s%d, 0x%x', sSPIN, SPIN_MAX)
    a('s_mov_b32 s%d, 0', sHI)
    a('s_mov_b32 s%d, -1', sHI + 1)

def ws_setup():
    srd(RWS, sWS, WS_END if not DIAG else WS_DIAG + 0x100000)
    if DIAG:
        a('v_mov_b32 v%d, 0', vTS)
        a('v_writelane_b32 v%d, s100, 30', vTS)

def stagger(k, t, add, flp, mode):
    if mode == 4:
        a('s_and_b32 s%d, s%d, 3', k, sI)
        if flp:
            a('s_xor_b32 s%d, s%d, 1', k, k)
        a('s_mul_i32 s%d, s%d, 5', k, k)
        a('s_lshr_b32 s%d, s%d, 1', k, k)
        a('s_mul_i32 s%d, s%d, 5', t, sOG)
        a('s_lshr_b32 s%d, s%d, 2', t, t)
        a('s_add_u32 s%d, s%d, s%d', k, k, t)
    elif mode in (2, 3):
        a('s_add_u32 s%d, s%d, s%d', k, sI, sOG)
        if flp:
            a('s_xor_b32 s%d, s%d, 1', k, k)
        a('s_and_b32 s%d, s%d, %d', k, k, 1 if mode == 2 else 3)
        a('s_mul_i32 s%d, s%d, 5', k, k)
        if mode == 3:
            a('s_lshr_b32 s%d, s%d, 1', k, k)
    else:
        a('s_mov_b32 s%d, 0', k)
    if mode == 0:
        a('s_mov_b32 s%d, %d', k, add)
        return
    a('s_add_u32 s%d, s%d, %d', t, sXCD, 1 + 2 * add)
    a('s_lshr_b32 s%d, s%d, 1', t, t)
    if mode == 1:
        a('s_add_u32 s%d, s%d, %d', t, sXCD, add)
    a('s_add_u32 s%d, s%d, s%d', k, k, t)
    for _ in range(2 if add else 1):
        a('s_cmp_ge_u32 s%d, 10', k)
        a('s_cselect_b32 s%d, 10, 0', t)
        a('s_sub_u32 s%d, s%d, s%d', k, k, t)

def b1_sources(rx, rb, vx, vb, sm, sb, t, j0=2):
    srd(rx, sBX, 2048 * 1280)
    a('s_cmp_ge_u32 s%d, 2', sW)
    a('s_cselect_b32 s%d, s%d, s%d', t, sBIM, sBRE)
    a('s_cselect_b32 s%d, s%d, s%d', t + 1, sBIM + 1, sBRE + 1)
    srd(rb, t, 640 * 1280)
    a('v_lshrrev_b32 v1, 3, v%d', vLANE)
    a('v_and_b32 v2, 7, v%d', vLANE)
    a('v_lshrrev_b32 v3, 4, v%d', vLANE)
    a('v_xor_b32 v4, v2, v3')
    a('v_and_b32 v5, 3, v1')
    a('v_lshrrev_b32 v6, 2, v1')
    a('v_lshl_add_u32 v5, v6, 3, v5')
    a('v_mul_u32_u24 v5, 1280, v5')
    a('v_lshl_add_u32 v%d, v4, 4, v5', vx)
    a('v_xor_b32 v6, 64, v%d', vx)
    a('v_add_u32 v%d, %d, v6', vx + 1, 16 * 1280 - 1024)
    a('v_add_u32 v%d, %d, v%d', vx + 2, 4 * 1280 - 2048, vx)
    a('v_add_u32 v%d, %d, v6', vx + 3, 20 * 1280 - 3072)
    a('s_lshr_b32 s%d, s%d, 1', t, sW)
    a('s_lshl_b32 s%d, s%d, 6', t + 1, t)
    a('v_mul_u32_u24 v5, 1280, v1')
    a('v_lshl_add_u32 v5, v4, 4, v5')
    a('v_xor_b32 v%d, s%d, v5', vb, t + 1)
    for i in range(1, 3):
        a('v_add_u32 v%d, %d, v%d', vb + i, (10240 - 1024) * i, vb)
    a('s_and_b32 s%d, s%d, 1', t + 1, sW)
    a('s_mul_i32 s%d, s%d, 5120', sm, t)
    a('s_mul_i32 s%d, s%d, %d', sb, t + 1, 1024 * j0)
    a('s_add_u32 s%d, s%d, s%d', sm, sm, sb)
    a('s_mul_i32 s%d, s%d, %d', sb, sG, 40 * 1280)
    a('s_mul_i32 s%d, s%d, %d', t + 1, t + 1, 8 * 1280 * j0)
    a('s_add_u32 s%d, s%d, s%d', sb, sb, t + 1)

def dma(voff, r, soff, imm):
    return 'buffer_load_dwordx4 v%d, s[%d:%d], s%d offen offset:%d lds' % (voff, r, r + 3, soff, imm)

def a_b1stage(t):
    slot = (t % 4) * 32768
    a('s_add_u32 m0, s6, %d', slot)
    a('s_lshl_b32 s9, s8, 7')
    a('s_add_u32 s12, s4, s9')
    for i in range(4):
        a(dma(112 + i, R5, 12, 1024 * i))
    a('s_add_u32 m0, s7, %d', slot + 16384)
    a('s_add_u32 s12, s5, s9')
    L = a.newlabel('b3rd')
    for i in range(3):
        if i == 2 and OPT['nodup']:
            a('s_cmp_eq_u32 s%d, 1', sCW)
            a('s_cbranch_scc1 %s', L)
        a(dma(116 + i, R6, 12, 1024 * i))
    a.label(L)
    a('s_add_u32 s8, s8, 1')
    a('s_cmp_eq_u32 s8, 10')
    a('s_cselect_b32 s8, 0, s8')

sTW, sCW = 72, 73
vXA, vWA = 96, 104
vF1A = 252
vAPW = 249

def a_setup():
    a.label('L_roleA')
    if not DIAG:
        prologue2()
    a('s_waitcnt lgkmcnt(0)')
    ws_setup()
    stamp('A', 'start')
    a('s_lshr_b32 s%d, s%d, 1', sTW, sW)
    a('s_and_b32 s%d, s%d, 1', sCW, sW)
    a('s_lshl1_add_u32 s75, s%d, s%d', sRB, sTW)
    a('s_mul_i32 s74, s75, %d', BLK)
    a.c('column group 15 has no GEMM tile: these workgroups clear the flags and write the constant blocks')
    a('s_cmp_eq_u32 s%d, 15', sCG)
    a('s_cbranch_scc0 L_noconst')
    a('s_lshl2_add_u32 s77, s%d, s%d', sRB, sW)
    if OPT['clrwide']:
        a('v_lshlrev_b32 v2, 4, v%d', vLANE)
        a('v_min_u32 v3, 496, v2')
        for i in range(4):
            a('v_mov_b32 v%d, 0', 4 + i)
        a('s_mul_i32 s76, s77, 4608')
        a('s_add_u32 s76, s76, 0x%x', WS_F)
        for i in range(4):
            a('buffer_store_dwordx4 v[4:7], v2, s[%d:%d], s76 offen offset:%d sc1', RWS, RWS + 3, 1024 * i)
        a('s_add_u32 s76, s76, 4096')
        a('buffer_store_dwordx4 v[4:7], v3, s[%d:%d], s76 offen sc1', RWS, RWS + 3)
    else:
        a('v_min_u32 v1, 35, v%d', vLANE)
        a('v_lshlrev_b32 v1, 7, v1')
        a('v_mov_b32 v4, 0')
        a('s_mul_i32 s76, s77, 4608')
        a('s_add_u32 s76, s76, 0x%x', WS_F)
        a('buffer_store_dword v4, v1, s[%d:%d], s76 offen sc1', RWS, RWS + 3)
        a('v_lshlrev_b32 v2, 4, v%d', vLANE)
    for i in range(4):
        a('v_mov_b32 v%d, -1', 20 + i)
    a('s_lshl_b32 s76, s77, 11')
    a('s_add_u32 s76, s76, 0x%x', WS_E)
    for i in range(2):
        a('buffer_store_dwordx4 v[20:23], v2, s[%d:%d], s76 offen offset:%d sc1', RWS, RWS + 3, 1024 * i)
    a('v_lshrrev_b32 v1, 3, v%d', vLANE)
    a('v_mul_u32_u24 v1, %d, v1', VROW - 128)
    a('v_add_u32 v1, %d, v1', VOFF + 640 * 16 - 160 * 1024)
    a('v_mul_lo_u32 v1, v1, s%d', sCW)
    a('v_add_u32 v1, v1, v2')
    a('s_mul_i32 s76, s%d, 0x3f803f80', sCW)
    a('v_mov_b32 v8, 0x3f803f80')
    a('v_mov_b32 v9, s76')
    a('v_mov_b32 v10, v8')
    a('v_mov_b32 v11, s76')
    a('s_add_u32 s76, s74, %d', 160 * 1024)
    a('buffer_store_dwordx4 v[8:11], v1, s[%d:%d], s76 offen sc1', RWS, RWS + 3)
    a.label('L_noconst')
    if OPT['codepre'] == 1:
        a.c('pull the code into L2: each wave of an XCD touches a few lines')
        a('s_getpc_b64 s[76:77]')
        a.label('L_pc')
        a('s_sub_u32 s76, s76, L_pc - L_go')
        a('s_subb_u32 s77, s77, 0')
        a('s_lshl2_add_u32 s78, s%d, s%d', sI, sW)
        a('s_mul_i32 s78, s78, 3')
        a('v_min_u32 v1, 2, v%d', vLANE)
        a('v_add_u32 v1, s78, v1')
        a('v_min_u32 v1, (L_codeend - L_go) / 128 - 1, v1')
        a('v_lshlrev_b32 v1, 7, v1')
        a('global_load_dword v110, v1, s[76:77]')
    a.c('LDS fragment addresses for the QKV GEMM')
    a('v_and_b32 v1, 31, v%d', vLANE)
    a('v_lshrrev_b32 v2, 5, v%d', vLANE)
    a('v_bfe_u32 v3, v1, 1, 3')
    a('v_xor_b32 v3, v3, v2')
    a('v_lshlrev_b32 v3, 4, v3')
    a('v_lshl_add_u32 v3, v1, 7, v3')
    a('s_lshl_b32 s76, s%d, 13', sTW)
    a('v_add_u32 v3, s76, v3')
    for ks in range(4):
        a('v_xor_b32 v%d, %d, v3', vXA + ks, ks << 5)
        a('v_add_u32 v%d, 0x10000, v%d', vXA + 4 + ks, vXA + ks)
    a('v_bfe_u32 v4, v%d, 2, 2', vLANE)
    a('v_lshl_add_u32 v5, v2, 3, v4')
    a('v_lshlrev_b32 v5, 8, v5')
    a('v_bfe_u32 v6, v%d, 4, 1', vLANE)
    a('v_and_b32 v7, 1, v%d', vLANE)
    a('v_lshl_add_u32 v6, v6, 1, v7')
    a('s_lshl_b32 s76, s%d, 3', sCW)
    a('v_add_u32 v6, s76, v6')
    a('v_lshlrev_b32 v4, 2, v4')
    a('v_xor_b32 v6, v6, v4')
    a('v_lshl_add_u32 v5, v6, 4, v5')
    a('v_bfe_u32 v7, v%d, 1, 1', vLANE)
    a('v_lshl_add_u32 v5, v7, 3, v5')
    a('v_add_u32 v%d, 16384, v5', vWA)
    a('v_xor_b32 v%d, 64, v%d', vWA + 1, vWA)
    a('v_add_u32 v%d, 0x10000, v%d', vWA + 2, vWA)
    a('v_add_u32 v%d, 0x10000, v%d', vWA + 3, vWA + 1)

def a_qloop(vt):
    F = [64, 80]
    def reads(st, ks, f):
        slot = st % 4
        hi, lo = slot >> 1, (slot & 1) * 32768
        r = []
        for T in range(2):
            r.append('ds_read_b128 %s, v%d offset:%d' % (v(f + 4 * T, 4), vXA + 4 * hi + ks, lo + 4096 * T))
        for Tc in range(2):
            for rd in range(2):
                r.append('ds_read_b64_tr_b16 %s, v%d offset:%d' % (v(f + 8 + 4 * Tc + 2 * rd, 2), vWA + 2 * hi + Tc,
                                                                  lo + (16 * ks + 4 * rd) * 256))
        return [r[0], r[2], r[3], r[1], r[4], r[5]]
    def mfma(f, i, j, first):
        acc = (2 * i + j) * 16
        A = f + 4 * i if vt else f + 8 + 4 * i
        B = f + 8 + 4 * j if vt else f + 4 * j
        if OPT['hack16']:
            o = 8 if f == F[1] else 0
            B2 = f + 8 + 4 * (1 - j) if vt else f + 4 * (1 - j)
            return 'v_mfma_f32_16x16x32_bf16 %s, %s, %s, %s\nv_mfma_f32_16x16x32_bf16 %s, %s, %s, %s' % (
                v(acc + o, 4), v(A, 4), v(B, 4), v(acc + o, 4), v(acc + o + 4, 4), v(A, 4), v(B2, 4), v(acc + o + 4, 4))
        return 'v_mfma_f32_32x32x16_bf16 %s, %s, %s, %s' % (v(acc, 16), v(A, 4), v(B, 4), '0' if first else v(acc, 16))
    if OPT['hack16']:
        for i_ in range(64):
            a('v_mov_b32 v%d, 0', i_)
    a('s_barrier')
    for r in reads(0, 0, F[0]):
        a(r)
    for st in range(10):
        for ks in range(4):
            cur, nxt = F[ks & 1], F[(ks + 1) & 1]
            first = st == 0 and ks == 0
            a('s_waitcnt lgkmcnt(0)')
            if ks == 3:
                a('s_barrier')
                rr = reads(st + 1, 0, nxt) if st < 9 else []
            else:
                rr = reads(st, ks + 1, nxt)
            if st == 9 and ks == 3:
                a(mfma(cur, 0, 0, False))
                a(mfma(cur, 0, 1, False))
                return [mfma(nxt, 1, 1, False), mfma(cur, 1, 0, False), mfma(cur, 1, 1, False)]
            a(mfma(cur, 0, 0, first))
            for r in rr[:3]:
                a(r)
            a(mfma(cur, 0, 1, first))
            for r in rr[3:]:
                a(r)
            a(mfma(cur, 1, 0, first))
            if not (st == 9 and ks == 2):
                a(mfma(cur, 1, 1, first))

def tailweave(ms, work):
    a(ms[0])
    a('s_nop 6')
    a(ms[1])
    a('s_nop 1')
    for o in work[:6]:
        a(o)
    a(ms[2])
    for o in work[6:]:
        a(o)

def a_pack_wo():
    a('s_lshl2_add_u32 s76, s%d, s%d', sRB, sW)
    a('s_mul_i32 s77, s76, 12800')
    a('s_add_u32 s78, s14, s77')
    a('s_addc_u32 s79, s15, 0')
    a('s_mul_i32 s76, s76, 10')
    a('s_mov_b32 s80, 0x%x', WS_WP)
    for n in range(13):
        a('v_add_u32 v60, %d, v%d', 64 * n, vLANE)
        if n == 12:
            a('v_min_u32 v60, 799, v60')
        a('v_lshlrev_b32 v61, 4, v60')
        a('global_load_dwordx4 %s, v61, s[78:79]', v(4 * n, 4))
        a('v_mul_u32_u24 v61, 820, v60')
        a('v_lshrrev_b32 v61, 16, v61')
        a('v_mul_u32_u24 v62, 80, v61')
        a('v_sub_u32 v60, v60, v62')
        a('v_add_u32 v61, s76, v61')
        a('v_mul_u32_u24 v62, 6554, v60')
        a('v_lshrrev_b32 v62, 16, v62')
        a('v_mul_u32_u24 v62, %d, v62', 6400 - 10)
        a('v_add_u32 v60, v60, v62')
        a('v_and_b32 v62, 0xfff3, v61')
        a('v_and_b32 v63, 4, v61')
        a('v_lshl_or_b32 v62, v63, 1, v62')
        a('v_bfe_u32 v63, v61, 3, 1')
        a('v_lshl_or_b32 v62, v63, 2, v62')
        a('v_mul_u32_u24 v62, 10, v62')
        a('v_add_lshl_u32 v%d, v60, v62, 4', 64 + n)
    for n in range(13):
        a('s_waitcnt vmcnt(12)')
        a('buffer_store_dwordx4 %s, v%d, s[%d:%d], s80 offen sc1', v(4 * n, 4), 64 + n, RWS, RWS + 3)
    if OPT['wopack'] > 1:
        a('v_min_u32 v60, 49, v%d', vLANE)
        a('v_lshl_add_u32 v60, v60, 7, s77')
        a('v_add_u32 v61, 6400, v60')
        for p in (sCRE, sCIM):
            a('global_load_dword v111, v60, s[%d:%d]', p, p + 1)
            a('global_load_dword v111, v61, s[%d:%d]', p, p + 1)

def a_qphase():
    a('s_cmp_ge_u32 s%d, 10', sCG)
    a('s_cbranch_scc1 L_qV')
    a('v_and_b32 v1, 31, v%d', vLANE)
    a('v_lshrrev_b32 v2, 5, v%d', vLANE)
    a('v_lshlrev_b32 v1, 4, v1')
    a('v_lshl_add_u32 v108, v2, 10, v1')
    a('s_lshl1_add_u32 s76, s%d, s%d', sCG, sCW)
    a('s_lshl_b32 s77, s76, 13')
    a('s_add_u32 s77, s77, s74')
    a('s_add_u32 s78, s77, 4096')
    a('s_mul_i32 s79, s%d, 3', sCW)
    a('s_add_u32 s79, s79, s%d', sCG)
    for _ in range(2):
        a('s_cmp_ge_u32 s79, 5')
        a('s_cselect_b32 s80, 5, 0')
        a('s_sub_u32 s79, s79, s80')
    for Tc in range(2):
        for u in range(2):
            m = 20 + 2 * (2 * Tc + u)
            a('s_cmp_eq_u32 s79, %d', (2 - 4 * Tc - 2 * u) % 5)
            a('s_cselect_b32 s%d, -1, 0', m)
            a('s_cmp_eq_u32 s79, %d', (1 - 4 * Tc - 2 * u) % 5)
            a('s_cselect_b32 s%d, -1, 0', m + 1)
    c0 = f2u(math.log2(math.e) / math.sqrt(20.0))
    a('s_mov_b32 s80, 0x%x', c0)
    ms = a_qloop(False)
    def group(Tc, u, scale):
        o = []
        P = 120 + 8 * (2 * Tc + u)
        for T in range(2):
            acc = (2 * Tc + T) * 16 + 8 * u
            if scale:
                o += ['v_mul_f32 v%d, s80, v%d' % (acc + e, acc + e) for e in range(8)]
            o += ['v_cvt_pk_bf16_f32 v%d, v%d, v%d' % (P + 4 * T + q, acc + 2 * q, acc + 2 * q + 1) for q in range(4)]
        m = 20 + 2 * (2 * Tc + u)
        o.append('s_mov_b64 exec, s[%d:%d]\nv_swap_b32 v%d, v%d\nv_swap_b32 v%d, v%d\ns_mov_b64 exec, -1' % (m, m + 1, P + 2, P + 4, P + 3, P + 5))
        for T in range(2):
            o.append('buffer_store_dwordx4 %s, v108, s[%d:%d], s%d offen offset:%d sc1' % (v(P + 4 * T, 4), RWS, RWS + 3,
                     77 + Tc, 2048 * u + 512 * T))
        return o
    a('s_cmp_ge_u32 s%d, 5', sCG)
    a('s_cbranch_scc1 L_noscale')
    tailweave(ms, group(0, 0, True) + group(0, 1, True))
    a('s_mov_b32 s81, s80')
    for i in range(32, 64, 2):
        a('v_pk_mul_f32 %s, %s, s[80:81]', v(i, 2), v(i, 2))
    a('s_branch L_qk2')
    a.label('L_noscale')
    tailweave(ms, group(0, 0, False) + group(0, 1, False))
    a.label('L_qk2')
    for o in group(1, 0, False) + group(1, 1, False):
        a(o)
    stamp('A', 'qloop')
    a('s_branch L_qdone')
    a.label('L_qV')
    a('s_cmp_eq_u32 s%d, 15', sCG)
    a('s_cbranch_scc0 L_qV2')
    a('s_lshl_b32 s76, s%d, 4', sRB)
    a('v_mov_b32 v16, s76')
    a('v_mov_b32 v17, 1')
    a('s_waitcnt vmcnt(0)')
    a('s_barrier')
    a('s_cmp_eq_u32 s%d, 0', sW)
    a('s_cbranch_scc0 L_nosig')
    a('s_mov_b64 exec, 1')
    a('global_store_dword v16, v17, s[%d:%d] sc1', sDBG, sDBG + 1)
    a('s_mov_b64 exec, -1')
    a.label('L_nosig')
    if OPT['l2pre']:
        a('s_barrier')
        a('s_and_b32 s76, s%d, 1', sI)
        a('s_lshl1_add_u32 s76, s76, s%d', sCW)
        a('s_and_b32 s77, s%d, 1', sXCD)
        a('s_lshl2_add_u32 s76, s77, s76')
        a('s_mul_i32 s76, s76, %d', 80 * 1280)
        a('v_min_u32 v1, 39, v%d', vLANE)
        a('v_mul_u32_u24 v1, 1280, v1')
        a('v_add_u32 v2, %d, v1', 40 * 1280)
        for hf in range(2):
            a('s_and_b32 s77, s%d, 1', sI)
            a('s_lshl1_add_u32 s77, s77, s%d', sCW)
            a('s_lshl1_add_u32 s77, s77, %d', hf)
            a('s_mul_i32 s77, s77, 5')
            a('s_lshr_b32 s77, s77, 2')
            a('s_add_u32 s78, s%d, 1', sXCD)
            a('s_lshr_b32 s78, s78, 1')
            a('s_add_u32 s%d, s77, s78', 80 + hf)
        for d in (4, 9, 1, 6, 3, 8)[:OPT['l2pre']]:
            for hf in range(2):
                a('s_add_u32 s77, s%d, %d', 80 + hf, d)
                for _ in range(2):
                    a('s_cmp_ge_u32 s77, 10')
                    a('s_cselect_b32 s78, 10, 0')
                    a('s_sub_u32 s77, s77, s78')
                a('s_lshl_b32 s77, s77, 7')
                a('s_add_u32 s77, s77, s76')
                a('buffer_load_dword v111, v%d, s[%d:%d], s77 offen', 1 + hf, R6, R6 + 3)
    if OPT['xpre']:
        a('s_and_b32 s76, s%d, 1', sI)
        a('s_lshl1_add_u32 s76, s76, s%d', sTW)
        a('s_xor_b32 s77, s76, %d', OPT['flip'])
        a('s_mul_i32 s77, s77, 5')
        a('s_lshr_b32 s77, s77, 1')
        a('s_add_u32 s78, s%d, 9', sXCD)
        a('s_lshr_b32 s78, s78, 1')
        a('s_add_u32 s77, s77, s78')
        a('s_mul_i32 s78, s%d, 5', sCW)
        a('s_add_u32 s77, s77, s78')
        for _ in range(2):
            a('s_cmp_ge_u32 s77, 10')
            a('s_cselect_b32 s78, 10, 0')
            a('s_sub_u32 s77, s77, s78')
        a('s_lshl_b32 s77, s77, 7')
        a('s_and_b32 s78, s%d, -4', sRB)
        a('s_add_u32 s76, s76, s78')
        a('s_mul_i32 s76, s76, %d', 128 * 1280)
        a('s_add_u32 s77, s77, s76')
        a('v_mul_u32_u24 v3, 1280, v%d', vLANE)
        a('buffer_load_dword v111, v3, s[%d:%d], s77 offen', R5, R5 + 3)
        a('s_add_u32 s77, s77, %d', 64 * 1280)
        a('buffer_load_dword v111, v3, s[%d:%d], s77 offen', R5, R5 + 3)
    if OPT['wopack']:
        a_pack_wo()
    for _ in range(9 if OPT['l2pre'] else 10):
        a('s_barrier')
    if DIAG:
        nstamp['A'].pop()
    stamp('A', 'qloop')
    a('s_branch L_qdone')
    a.label('L_qV2')
    a('s_lshl1_add_u32 s76, s%d, s%d', sCG, sCW)
    a('v_and_b32 v1, 31, v%d', vLANE)
    tau(108, 1, 2)
    a('v_lshrrev_b32 v2, 5, v%d', vLANE)
    a('v_mul_u32_u24 v2, %d, v2', VROW)
    a('v_lshl_add_u32 v108, v108, 4, v2')
    a('s_sub_u32 s76, s76, 20')
    a('s_lshl_b32 s76, s76, 10')
    a('s_add_u32 s76, s76, s74')
    a('s_add_u32 s76, s76, %d', VOFF)
    for k in range(1, 4):
        a('s_add_u32 s%d, s76, %d', 76 + k, 2 * VROW * k)
    ms = a_qloop(True)
    work = []
    n = 0
    for T in range(2):
        for Tc in range(2):
            for m in range(2):
                P = 120 + 4 * n
                n += 1
                acc = (2 * T + Tc) * 16 + 8 * m
                work += ['v_cvt_pk_bf16_f32 v%d, v%d, v%d' % (P + q, acc + 2 * q, acc + 2 * q + 1) for q in range(4)]
                work.append('buffer_store_dwordx4 %s, v108, s[%d:%d], s%d offen offset:%d sc1' % (v(P, 4), RWS, RWS + 3, 76 + 2 * T + m, 512 * Tc))
    tailweave(ms, work)
    if DIAG:
        nstamp['A'].pop()
    stamp('A', 'qloop')
    a.label('L_qdone')

vO, vS = 0, 64
KV = [128, 156]
K1A, K1B, K2, VA0, VA1, VB0, VB1 = 0, 4, 8, 12, 16, 20, 24
vQ1, vQ2 = 184, 200
vK1, vK2, vV, vIDX, vNC, vM = 208, 209, 210, 214, 216, 220
vT = 224
vMG = 240
sQH, sKH, sODD, sP5, sOFF, sKV0, sPASS, sCNT = 76, 77, 78, 79, 80, 93, 82, 83
sKVB, sKVE = 70, 71

def a_att_setup():
    a('s_and_b32 s%d, s%d, 1', sQH, sW)
    a('s_lshr_b32 s%d, s%d, 1', sKH, sW)
    a('s_and_b32 s%d, s%d, 1', sODD, sHD)
    a('s_lshr_b32 s85, s%d, 1', sHD)
    a('s_mul_i32 s%d, s85, 5', sP5)
    a('s_mul_i32 s%d, s%d, %d', sKVB, sKH, 16 * BLK)
    a('s_add_u32 s%d, s%d, %d', sKVE, sKVB, 16 * BLK)
    a('s_mul_i32 s86, s%d, %d', sQB, 2 * BLK * OPT['rot'])
    a('s_add_u32 s%d, s%d, s86', sKV0, sKVB)
    srd(R3, sWS, 's%d' % sKVE)
    srd(R4, sOUT, 2048 * 1280 * 4)
    a('s_mov_b32 s%d, 0', sPASS)
    i, h, t, x = vT, vT + 1, vT + 2, vT + 3
    a('v_and_b32 v%d, 31, v%d', i, vLANE)
    a('v_lshrrev_b32 v%d, 5, v%d', h, vLANE)
    tau(t, i, x)
    a('s_mul_i32 s86, s%d, 3', sODD)
    a('s_add_u32 s86, s86, s%d', sP5)
    a('s_lshl_b32 s87, s86, 10')
    a('v_lshl_add_u32 v%d, v%d, 10, s87', x, h)
    a('v_lshl_add_u32 v%d, v%d, 4, v%d', vT + 4, i, x)
    a('v_lshl_add_u32 v%d, v%d, 4, v%d', vK1, t, x)
    a('v_add_u32 v%d, %d, v%d', vK1, 80 * 1024, vK1)
    a('s_add_u32 s87, s%d, 2', sP5)
    a('s_lshl1_add_u32 s87, s87, s%d', sODD)
    a('s_lshl_b32 s87, s87, 9')
    a('v_lshl_add_u32 v%d, v%d, 4, s87', vT + 5, i)
    a('v_mov_b32 v%d, 0x%x', x, OOB)
    a('v_cndmask_b32 v%d, v%d, v%d, s[%d:%d]', vT + 5, vT + 5, x, sHI, sHI + 1)
    a('s_add_u32 s87, s87, %d', 80 * 1024)
    a('v_mov_b32 v%d, s87', vK2)
    a('v_mov_b32 v%d, %d', x, 160 * 1024)
    a('v_cndmask_b32 v%d, v%d, v%d, s[%d:%d]', vK2, vK2, x, sHI, sHI + 1)
    a('v_lshl_add_u32 v%d, v%d, 4, v%d', vK2, t, vK2)
    a('s_mul_i32 s86, s%d, 20', sHD)
    a('s_lshl2_add_u32 s87, s%d, s86', sODD)
    a('s_lshl_b32 s88, s%d, 4', sODD)
    a('s_sub_u32 s88, s86, s88')
    a('v_add_u32 v%d, s87, v%d', vV, t)
    a('v_add_u32 v%d, s88, v%d', x, i)
    a('v_cmp_le_u32 vcc, 16, v%d', i)
    a('v_add_u32 v%d, 620, v%d', vT + 6, i)
    a('s_nop 0')
    a('v_cndmask_b32 v%d, v%d, v%d, vcc', vV, vV, x)
    a('v_cmp_le_u32 vcc, 20, v%d', i)
    a('v_mul_u32_u24 v%d, %d, v%d', x, VROW, h)
    a('v_add_u32 v%d, %d, v%d', x, VOFF, x)
    a('v_cndmask_b32 v%d, v%d, v%d, vcc', vV, vV, vT + 6)
    a('v_lshl_add_u32 v%d, v%d, 4, v%d', vV, vV, x)
    a('v_cmp_le_u32 vcc, %d, v%d', 21 if OPT['vzero'] else 24, i)
    a('v_mov_b32 v%d, 0x%x', x, OOB)
    a('v_mov_b32 v%d, 0xdddd', vIDX)
    a('v_cndmask_b32 v%d, v%d, v%d, vcc', vV, vV, x)
    for k in range(1, 4):
        a('v_add_u32 v%d, %d, v%d', vV + k, 2 * VROW * k, vV)
    a('s_mul_i32 s87, s85, 40')
    a('s_lshl4_add_u32 s87, s%d, s87', sODD)
    a('s_add_u32 s88, s87, 23')
    a('s_lshr_b32 s87, s87, 7')
    a('s_lshr_b32 s88, s88, 7')
    a('s_add_u32 s89, s86, 19')
    a('s_lshr_b32 s86, s86, 7')
    a('s_lshr_b32 s89, s89, 7')
    a('v_lshrrev_b32 v%d, 4, v%d', x, vLANE)
    a('s_add_u32 s90, s87, 5')
    a('v_mov_b32 v%d, s90', vF1A)
    for sel, (reg, add) in enumerate(((88, 5), (86, 10), (89, 10))):
        a('s_add_u32 s90, s%d, %d', reg, add)
        a('v_cmp_eq_u32 vcc, %d, v%d', sel + 1, x)
        a('v_mov_b32 v%d, s90', vT + 6)
        a('s_nop 0')
        a('v_cndmask_b32 v%d, v%d, v%d, vcc', vF1A, vF1A, vT + 6)
    a('v_and_b32 v%d, 15, v%d', vT + 6, vLANE)
    a('v_lshl_add_u32 v%d, v%d, 4, v%d', vF1A, vF1A, vT + 6)
    a('v_lshlrev_b32 v%d, 7, v%d', vF1A, vF1A)
    a('v_mov_b32 v%d, s87', vF1A - 1)
    a('v_mov_b32 v%d, s88', vT + 6)
    a('v_cndmask_b32 v%d, v%d, v%d, s[%d:%d]', vF1A - 1, vF1A - 1, vT + 6, sHI, sHI + 1)
    a('v_bfe_u32 v%d, v%d, 4, 1', vT + 6, vLANE)
    a('v_lshl_add_u32 v%d, v%d, 4, v%d', vF1A - 1, vF1A - 1, vT + 6)
    a('s_lshl_b32 s90, s%d, 1', sQB)
    a('v_add_lshl_u32 v%d, v%d, s90, 7', vF1A - 1, vF1A - 1)
    a('v_and_b32 v%d, 3, v%d', vAPW, vLANE)
    a('v_lshlrev_b32 v%d, 8, v%d', vAPW, vAPW)
    a('v_lshlrev_b32 v%d, 2, v%d', vAPW + 1, vLANE)
    a('v_add_u32 v%d, %d, v%d', vAPW + 1, L_PW, vAPW + 1)
    a('v_add_u32 v%d, v%d, v%d', vAPW, vAPW, vAPW + 1)
    a('s_lshl1_add_u32 s90, s%d, s%d', sQB, sQH)
    a('s_lshl1_add_u32 s90, s90, s%d', sKH)
    a('s_mul_i32 s92, s90, %d', BLK)
    a('s_xor_b32 s91, s90, 1')
    a('s_mul_i32 s91, s91, %d', BLK)
    a('s_mov_b32 s10, 0x%x', f2u(2.0 ** -4))
    a('s_mov_b32 s11, 0x%x', f2u(2.0 ** 96))
    a('s_mul_i32 s36, s%d, %d', sW, REGSZ)
    a('s_add_u32 s36, s36, %d', L_REG + 8192)
    a('s_xor_b32 s37, s%d, 2', sW)
    a('s_mul_i32 s37, s37, %d', REGSZ)
    a('s_add_u32 s37, s37, %d', L_REG + 8192)
    a('v_lshl_add_u32 v%d, v%d, 4, s36', vMG, vLANE)
    a('v_lshl_add_u32 v%d, v%d, 3, s36', vMG + 1, vLANE)
    a('v_lshl_add_u32 v%d, v%d, 4, s37', vMG + 2, vLANE)
    a('v_lshl_add_u32 v%d, v%d, 3, s37', vMG + 3, vLANE)
    a('v_xor_b32 v%d, 512, v%d', vMG + 4, vPW)
    a('v_add_u32 v%d, 1024, v%d', vMG + 5, vAPW)
    a('v_bfe_u32 v%d, v%d, 4, 1', x, vLANE)
    a('v_mul_u32_u24 v%d, %d, v%d', x, OBLK, x)
    a('v_and_b32 v%d, 15, v%d', t, vLANE)
    a('v_lshl_add_u32 v%d, v%d, 4, v%d', x, t, x)
    a('v_mul_u32_u24 v%d, %d, v%d', t, 2 * OBLK, h)
    a('v_add_u32 v%d, v%d, v%d', vMG + 7, t, x)
    a('v_lshl_add_u32 v%d, v%d, 8, v%d', vMG + 6, h, x)
    a('s_mul_i32 s40, s90, %d', 4 * OBLK)
    a('s_add_u32 s40, s40, 0x%x', WS_O)
    a('s_lshl_b32 s41, s%d, 8', sP5)
    a('s_add_u32 s40, s40, s41')
    a('s_mul_i32 s41, s%d, 768', sODD)
    a('s_add_u32 s41, s41, s40')
    a('s_add_u32 s42, s41, %d', 2 * OBLK)
    a('s_lshl3_add_u32 s40, s%d, s40', sODD)
    a('s_lshl_b32 s43, s90, 5')
    a('s_add_u32 s43, s43, s%d', sHD)
    flagaddr(43, 43, F4, 0)

def a_b1_setup():
    a('s_mov_b64 s[14:15], s[%d:%d]', sWO, sWO + 1)
    b1_sources(R5, R6, 112, 116, 7, 5, 12, 3 if OPT['nodup'] else 2)
    a('s_lshl2_add_u32 s4, s%d, s%d', sRB, sW)
    a('s_mul_i32 s4, s4, %d', 32 * 1280)
    a('s_lshl_b32 s6, s%d, 12', sW)
    stagger(8, 9, OPT['st10'], OPT['flip'], OPT['stagb'])

def a_handoff():
    first = 10 + OPT['st10']
    nst = 8
    chunks = []
    if OPT['alate'] == 2:
        n0 = len(a.lines)
        a_att_setup()
        late = a.lines[n0:]
        del a.lines[n0:]
        nch = OPT['pollat'] - first
        k = 0
        for c in range(nch):
            e = len(late) * (c + 1) // nch
            while e < len(late) and any('cndmask' in x and 'vcc' in x for x in late[e:e + 3]):
                e += 1
            chunks.append(late[k:e])
            k = e
        chunks[-1].append('s_mov_b32 s85, 0x%x' % F1)
        nb = first - 10
        seq = OPT['seq'] or {1: 'bss', 2: 'bsbs', 3: 'bbsbs'}[nb]
        assert seq.count('b') == nb and seq.count('s') == 2
        kk = 0
        for ch in seq:
            if ch == 'b':
                a('s_barrier')
            else:
                if kk == 0 and OPT['fine'] == 1:
                    stamp('A', 'c11')
                a_b1stage(first + kk)
                if OPT['fine'] == 1:
                    stamp('A', 'iss%d' % (12 + kk))
                kk += 1
        for i_ in range(64):
            a('v_mov_b32 v%d, 0', vO + i_)
    else:
        for t in range(10, first):
            a('s_barrier')
            if t == 10:
                if OPT['alate']:
                    a_b1_setup()
                else:
                    for i_ in range(64):
                        a('v_mov_b32 v%d, 0', vO + i_)
        if OPT['fine'] == 1:
            stamp('A', 'c11')
        a_b1stage(first)
        if OPT['fine'] == 1:
            stamp('A', 'iss12')
        if OPT['alate']:
            a_att_setup()
            for i_ in range(64):
                a('v_mov_b32 v%d, 0', vO + i_)
        a_b1stage(first + 1)
        if OPT['fine'] == 1:
            stamp('A', 'iss13')
    lds_ = ['buffer_load_dword v%d, v%d, s[%d:%d], s85 offen sc1' % (104 + k, vF1A - k, RWS, RWS + 3) for k in range(2)]
    a('s_mov_b32 s85, 0x%x', F1)
    for t in range(first, 20):
        a('s_waitcnt vmcnt(%d)', 7 - OPT['nodup'] if t < 19 else 0)
        if t == first:
            stamp('A', 'qdrain')
        if t == 19:
            a('s_cmp_eq_u32 s%d, 0', sW)
            a('s_cbranch_scc0 L_c19')
            a('v_and_b32 v104, v104, v105')
            a('v_cmp_eq_u32 vcc, 0, v104')
            a('s_cbranch_vccnz L_c19')
            setpw(4, 102)
            a('s_waitcnt lgkmcnt(0)')
            a.label('L_c19')
        a('s_barrier')
        if t + 2 <= 19:
            a_b1stage(t + 2)
        if chunks:
            a.lines.extend(chunks.pop(0))
        if t == OPT['pollat']:
            a('s_cmp_eq_u32 s%d, 0', sW)
            a('s_cbranch_scc0 L_nopoll')
            for l in lds_:
                a(l)
            a.label('L_nopoll')
    stamp('A', 'b1load')
    a('s_cmp_eq_u32 s%d, 0', sW)
    a('s_cbranch_scc0 L_f1wait')
    a('s_cbranch_vccz L_f1go')
    a('s_mov_b64 exec, vcc')
    pollflags(lds_, 104, sleep=OPT['psleep'])
    setpw(4, 102)
    a.label('L_f1wait')
    waitpw(vAPW + 1, 4, 102, sleep=OPT['gsleep'])
    a.label('L_f1go')
    stamp('A', 'f1')

def kvload0(st, what, soff):
    if what in (K1A, K1B):
        r = KV[st] + what
        return 'buffer_load_dwordx4 %s, v%d, s[%d:%d], s%d offen offset:%d sc1' % (v(r, 4), vK1, R3, R3 + 3, soff, 512 if what == K1B else 0)
    if what in ('2A', '2B'):
        tl = what == '2B'
        return 'buffer_load_dwordx2 %s, v%d, s[%d:%d], s%d offen offset:%d sc1' % (v(KV[st] + K2 + 2 * tl, 2), vK2, R3, R3 + 3, soff, 8 * tl)
    r = KV[st] + what
    if what == K2:
        return 'buffer_load_dwordx4 %s, v%d, s[%d:%d], s%d offen sc1' % (v(r, 4), vK2, R3, R3 + 3, soff)
    return 'buffer_load_dwordx4 %s, v%d, s[%d:%d], s%d offen sc1' % (v(r, 4), vV + (what - VA0) // 4, R3, R3 + 3, soff)

def kvload(st, what, soff):
    return kvload0(st, what, soff).replace(' sc1', [' sc1', '', ' sc1 nt'][OPT['kvplain']])

def qk1(st, tile, qt, sb):
    return 'v_mfma_f32_32x32x16_bf16 %s, %s, %s, 0' % (v(vS + 16 * sb, 16), v(KV[st] + (K1B if tile else K1A), 4), v(vQ1 + 4 * qt, 4))

def qk2(st, tile, qt, sb):
    return 'v_mfma_f32_32x32x8bf16_1k %s, %s, %s, %s' % (v(vS + 16 * sb, 16), v(KV[st] + K2 + 2 * tile, 2), v(vQ2 + 2 * qt, 2), v(vS + 16 * sb, 16))

def pv(st, tile, qt, m):
    return 'v_smfmac_f32_32x32x32_bf16 %s, %s, %s, v%d' % (v(vO + 16 * qt, 16), v(KV[st] + VA0 + 8 * tile + 4 * m, 4), v(vS + 16 * qt + 8 * m, 8), vIDX)

def maxtree(dst, src, acc):
    if acc:
        a('v_max3_f32 v%d, v%d, v%d, v%d', dst, dst, src, src + 1)
    else:
        a('v_max_f32 v%d, v%d, v%d', dst, src, src + 1)
    for k in range(2, 16, 2):
        a('v_max3_f32 v%d, v%d, v%d, v%d', dst, dst, src + k, src + k + 1)

def a_attention():
    if OPT['acq'] == 2:
        a('buffer_inv sc1')
    for lp in range(2):
        for T in range(2):
            a('buffer_load_dwordx4 %s, v%d, s[%d:%d], s%d offen offset:%d sc1', v(vQ1 + 8 * lp + 4 * T, 4), vT + 4, RWS, RWS + 3, 91 + lp, 512 * T)
    for lp in range(2):
        a('buffer_load_dwordx4 %s, v%d, s[%d:%d], s%d offen sc1', v(vQ2 + 4 * lp, 4), vT + 5, RWS, RWS + 3, 91 + lp)
    a.label('L_attload')
    a('s_mov_b32 s%d, 0x40000000', sCNT)
    a('s_add_u32 s%d, s%d, %d', sOFF, sKV0, BLK)
    for w_ in (K1A, K2):
        a(kvload0(0, w_, sKV0))
    for i in range(4):
        a('v_mov_b32 v%d, 0', KV[1] + VB1 + i)
    if OPT['kvsplit']:
        a('s_waitcnt vmcnt(%d)', OPT['kvsplit'] - 1)
    for w_ in (VA0, VA1, K1B, VB0, VB1):
        a(kvload0(0, w_, sKV0))
    for w_ in (K1A, VA0, VA1, K1B, K2, VB0):
        a(kvload0(1, w_, sOFF))
    if OPT['acq'] == 1:
        a('buffer_inv sc1')
    a('s_waitcnt vmcnt(%d)', 11 + (OPT['acq'] == 1))
    stamp('A', 'qkload')
    a('s_cmp_eq_u32 s%d, 0', sPASS)
    a('s_cbranch_scc0 L_setc')
    if OPT['fastpro']:
        a.c('stand-in for the row maximum: the largest score among seven keys of the first tile (checked after the loop)')
        def ch(t):
            S, m, h = vS + 16 * t, vM + t, vT + 8 + t
            return ['v_max3_f32 v%d, v%d, v%d, v%d' % (m, S, S + 1, S + 2),
                    'v_max3_f32 v%d, v%d, v%d, v%d' % (m, m, S + 5, S + 8),
                    'v_max3_f32 v%d, v%d, v%d, v%d' % (m, m, S + 11, S + 14),
                    'v_cvt_pk_bf16_f32 v%d, -v%d, -v%d' % (h, m, m),
                    'v_and_b32 v%d, 0xffff0000, v%d' % (h, h),
                    'v_sub_f32 v%d, -v%d, v%d' % (m, m, h),
                    'v_cvt_pk_bf16_f32 v%d, v%d, v%d' % (m, h, m),
                    'v_cndmask_b32 v%d, v%d, v%d, s[%d:%d]' % (vQ2 + 2 * t, vQ2 + 2 * t, m, sHI, sHI + 1)]
        def nc(t):
            m, h = vM + t, vT + 8 + t
            return ['v_and_b32 v%d, 0xffff0000, v%d' % (m, m),
                    'v_add_f32 v%d, v%d, v%d' % (vNC + t, m, h),
                    'v_add_f32 v%d, v%d, v%d' % (m, m, h)]
        sw = lambda t: 'v_permlane32_swap_b32 v%d, v%d' % (vM + t, vNC + t)
        seq = [qk1(0, 0, 0, 0), qk2(0, 0, 0, 0), qk1(0, 0, 1, 1), qk2(0, 0, 1, 1), qk1(0, 0, 2, 2), 's_nop 6', qk2(0, 0, 2, 2), 's_nop 0']
        seq += ch(0)[:5] + [qk1(0, 0, 3, 3)] + ch(0)[5:] + ch(1)[:3] + [qk2(0, 0, 3, 3)] + ch(1)[3:] + nc(0)[:1]
        seq += [qk1(0, 0, 0, 0)] + ch(2)[:6] + [qk2(0, 0, 0, 0)] + ch(3)[:3]
        seq += ['v_mov_b32 v%d, 0' % (vS + 48 + 8 + i) for i in range(8)]
        seq += ch(2)[6:] + ch(3)[3:] + nc(0)[1:] + nc(1) + nc(2) + [sw(0)] + nc(3) + [sw(1), sw(2), sw(3)]
        for o in seq:
            a(o)
        a.label('L_loopentry')
    else:
        a.c('stand-in for the row maximum: the maximum over the first key tile (checked after the loop)')
        def tree(qt):
            src = vS + 16 * qt
            return ['v_max_f32 v%d, v%d, v%d' % (vM + qt, src, src + 1)] + \
                   ['v_max3_f32 v%d, v%d, v%d, v%d' % (vM + qt, vM + qt, src + k, src + k + 1) for k in range(2, 16, 2)]
        for qt in range(3):
            a(qk1(0, 0, qt, qt))
            a(qk2(0, 0, qt, qt))
        a(qk1(0, 0, 3, 3))
        a('s_nop 6')
        for o in tree(0)[:4]:
            a(o)
        a(qk2(0, 0, 3, 3))
        for o in tree(0)[4:] + tree(1) + tree(2) + tree(3):
            a(o)
        a.label('L_setc')
        for qt in range(4):
            a('v_mov_b32 v%d, v%d', vT + 8 + qt, vM + qt)
        for qt in range(4):
            a('v_permlane32_swap_b32 v%d, v%d', vM + qt, vT + 8 + qt)
        for qt in range(4):
            a('v_min_f32 v%d, -v%d, -v%d', vM + qt, vM + qt, vT + 8 + qt)
        for qt in range(4):
            a('v_cvt_pk_bf16_f32 v%d, v%d, v%d', vT + 8 + qt, vM + qt, vM + qt)
        for qt in range(4):
            a('v_and_b32 v%d, 0xffff0000, v%d', vT + 8 + qt, vT + 8 + qt)
        for qt in range(4):
            a('v_sub_f32 v%d, v%d, v%d', vM + qt, vM + qt, vT + 8 + qt)
        for qt in range(4):
            a('v_cvt_pk_bf16_f32 v%d, v%d, v%d', vM + qt, vT + 8 + qt, vM + qt)
        for qt in range(4):
            a('v_cndmask_b32 v%d, v%d, v%d, s[%d:%d]', vQ2 + 2 * qt, vQ2 + 2 * qt, vM + qt, sHI, sHI + 1)
        a(qk1(0, 0, 0, 0))
        a(qk2(0, 0, 0, 0))
        for qt in range(4):
            a('v_and_b32 v%d, 0xffff0000, v%d', vM + qt, vM + qt)
        for qt in range(4):
            a('v_add_f32 v%d, v%d, v%d', vNC + qt, vM + qt, vT + 8 + qt)
        for i in range(8):
            a('v_mov_b32 v%d, 0', vS + 48 + 8 + i)
    a('s_waitcnt vmcnt(%d)', 8 + (OPT['acq'] == 1))
    if OPT['tearly'] or OPT['gtouch'] == 1 or OPT['woe']:
        setpw(5, vT + 8)
    stamp('A', 'attpro')
    if OPT['fine'] == 3:
        base = len(nstamp['A'])
        nstamp['A'] += ['it%d' % i for i in range(16)]
        a('s_mov_b32 s24, %d', base)
    a('.p2align %d', OPT['lalign'])
    for _ in range(OPT['lpad']):
        a('s_nop 0')
    a.label('L_attloop')
    UN = OPT['unroll']
    LEAN = OPT['rot'] == 0 and OPT['lean']
    for dt in range(UN):
        st = dt & 1
        for n in range(8):
            tile, qt = n >> 2, n & 3
            nst, ntile, nqt = (st, (n + 1) >> 2, (n + 1) & 3) if n < 7 else (st ^ 1, 0, 0)
            pst, ptile, pqt = (st, (n - 1) >> 2, (n - 1) & 3) if n > 0 else (st ^ 1, 1, 3)
            def ex(k):
                for e in range(4 * k, 4 * k + 4):
                    a('v_exp_f32 v%d, v%d', vS + 16 * qt + e, vS + 16 * qt + e)
            if n == 7:
                a('s_waitcnt vmcnt(7)')
            a(qk1(nst, ntile, nqt, nqt))
            if n == 1:
                a('s_add_u32 s%d, s%d, %d', sOFF, sOFF, BLK)
            if n == 2:
                a(kvload(st, K1A, sOFF))
            if n == 6:
                a(kvload(st, K1B, sOFF))
            if n == 5 and OPT['fine'] == 3:
                a('s_memtime s[98:99]')
                a('s_memrealtime s[100:101]')
            if n == 6 and OPT['fine'] == 3:
                a('s_waitcnt lgkmcnt(0)')
                a('s_mov_b32 m0, s24')
                a('s_add_u32 s25, s24, 32')
                a('v_writelane_b32 v%d, s98, m0', vTS)
                a('s_mov_b32 m0, s25')
                a('s_add_u32 s24, s24, 1')
                a('v_writelane_b32 v%d, s100, m0', vTS)
            ex(0)
            a(qk2(nst, ntile, nqt, nqt))
            if n == 6:
                a(kvload(st, K2, sOFF))
            if n == 1 and st == 0 and not LEAN:
                a('s_cmp_eq_u32 s%d, s%d', sOFF, sKVE)
                a('s_cselect_b32 s%d, s%d, s%d', sOFF, sKVB, sOFF)
            ex(1)
            a(pv(pst, ptile, pqt, 1))
            if n == 0:
                a(kvload(st ^ 1, VB1, sOFF))
            if n == 4:
                a(kvload(st, VA1, sOFF))
            if n == 1 and dt == UN - 2 and not LEAN:
                a('s_cmp_eq_u32 s%d, s%d', sOFF, sKV0)
                a('s_cselect_b32 s%d, s%d, s%d', sOFF, sCNT, sOFF)
            if dt == UN - 1 and n == 7:
                a('s_cmp_lt_u32 s%d, s%d', sOFF, sKVE if LEAN else sCNT)
            ex(2)
            if n == 4:
                a('s_waitcnt vmcnt(10)')
            a(pv(st, tile, qt, 0))
            if n == 3:
                a(kvload(st, VA0, sOFF))
            if n == 7:
                a(kvload(st, VB0, sOFF))
            ex(3)
    a('s_cbranch_scc1 L_attloop')
    a('s_nop 0')
    a(pv(1, 1, 3, 1))
    stamp('A', 'attloop')
    if OPT['tprio']:
        a('s_setprio 2')
    a('ds_write_b64 v%d, %s offset:6144', vMG + 1, v(vNC, 2))
    for t in range(2):
        for q in range(3):
            a('ds_write_b128 v%d, %s offset:%d', vMG, v(vO + 16 * t + 4 * q, 4), 1024 * (3 * t + q))
    a('v_mov_b32 v%d, 6', vT + 10)
    a('v_mov_b32 v%d, 7', vT + 11)
    a('v_min3_f32 v%d, v%d, v%d, v%d', vT + 8, vO + 8, vO + 24, vO + 40)
    a('v_add_f32 v%d, v%d, v%d', vT + 9, vO + 8, vO + 24)
    a('v_add_f32 v%d, v%d, v%d', vT + 9, vT + 9, vO + 40)
    a('v_min_f32 v%d, v%d, v%d', vT + 8, vT + 8, vO + 56)
    a('v_add_f32 v%d, v%d, v%d', vT + 9, vT + 9, vO + 56)
    a('v_cmp_nle_f32 s[38:39], s10, v%d', vT + 8)
    a('v_cmp_nge_f32 vcc, s11, v%d', vT + 9)
    a('s_or_b32 s39, s39, vcc_hi')
    if OPT['force_fb']:
        a('s_cmp_eq_u32 s39, s39')
    a('s_cbranch_scc1 L_fallback')
    n0 = len(a.lines)
    a.label('L_fallback')
    a('s_cmp_eq_u32 s%d, 0', sPASS)
    a('s_cbranch_scc0 L_attok')
    a.c('fallback: exact row maximum over this wave\'s keys, then redo the pass')
    a('s_mov_b32 s%d, 1', sPASS)
    a('s_waitcnt vmcnt(0) lgkmcnt(0)')
    a('v_mov_b32 v%d, 0', vT + 8)
    for qt in range(4):
        a('v_cndmask_b32 v%d, v%d, v%d, s[%d:%d]', vQ2 + 2 * qt, vQ2 + 2 * qt, vT + 8, sHI, sHI + 1)
        a('v_mov_b32 v%d, 0xff800000', vM + qt)
    a('s_mov_b32 s%d, s%d', sOFF, sKVB)
    a('s_mov_b32 s%d, 16', sCNT)
    a.label('L_maxloop')
    for w_ in (K1A, K1B, K2):
        a(kvload(0, w_, sOFF))
    a('s_waitcnt vmcnt(0)')
    for tile in range(2):
        for qt in range(4):
            a(qk1(0, tile, qt, qt))
            a(qk2(0, tile, qt, qt))
        a('s_nop 5')
        for qt in range(4):
            maxtree(vM + qt, vS + 16 * qt, True)
    a('s_add_u32 s%d, s%d, %d', sOFF, sOFF, BLK)
    a('s_sub_u32 s%d, s%d, 1', sCNT, sCNT)
    a('s_cmp_lg_u32 s%d, 0', sCNT)
    a('s_cbranch_scc1 L_maxloop')
    for i in range(64):
        a('v_mov_b32 v%d, 0', vO + i)
    a('s_branch L_attload')
    if OPT['fastpro']:
        a.label('L_setc')
        for qt in range(4):
            a('v_mov_b32 v%d, v%d', vT + 8 + qt, vM + qt)
        for qt in range(4):
            a('v_permlane32_swap_b32 v%d, v%d', vM + qt, vT + 8 + qt)
        for qt in range(4):
            a('v_min_f32 v%d, -v%d, -v%d', vM + qt, vM + qt, vT + 8 + qt)
        for qt in range(4):
            a('v_cvt_pk_bf16_f32 v%d, v%d, v%d', vT + 8 + qt, vM + qt, vM + qt)
        for qt in range(4):
            a('v_and_b32 v%d, 0xffff0000, v%d', vT + 8 + qt, vT + 8 + qt)
        for qt in range(4):
            a('v_sub_f32 v%d, v%d, v%d', vM + qt, vM + qt, vT + 8 + qt)
        for qt in range(4):
            a('v_cvt_pk_bf16_f32 v%d, v%d, v%d', vM + qt, vT + 8 + qt, vM + qt)
        for qt in range(4):
            a('v_cndmask_b32 v%d, v%d, v%d, s[%d:%d]', vQ2 + 2 * qt, vQ2 + 2 * qt, vM + qt, sHI, sHI + 1)
        a(qk1(0, 0, 0, 0))
        a(qk2(0, 0, 0, 0))
        for qt in range(4):
            a('v_and_b32 v%d, 0xffff0000, v%d', vM + qt, vM + qt)
        for qt in range(4):
            a('v_add_f32 v%d, v%d, v%d', vNC + qt, vM + qt, vT + 8 + qt)
        for i in range(8):
            a('v_mov_b32 v%d, 0', vS + 48 + 8 + i)
        a('s_branch L_loopentry')
    COLD.extend(a.lines[n0:])
    del a.lines[n0:]
    a.label('L_attok')
    a('ds_write_b32 v%d, v%d', vPW, vT + 10)
    R = vS
    NC2 = vS + 32
    rd = ['ds_read_b64 %s, v%d offset:6144' % (v(NC2, 2), vMG + 3)]
    for t in range(2):
        rd.append('ds_read_b128 %s, v%d offset:%d' % (v(R + 16 * t + 8, 4), vMG + 2, 1024 * (3 * t + 2)))
    for t in range(2):
        for q in range(2):
            rd.append('ds_read_b128 %s, v%d offset:%d' % (v(R + 16 * t + 4 * q, 4), vMG + 2, 1024 * (3 * t + q)))
    waitpw(vMG + 4, 6, vT + 8, extra=rd)
    a('ds_write_b32 v%d, v%d', vPW, vT + 11)
    f1, f2, l1, l2 = vS + 34, vS + 36, vS + 38, vS + 40
    a('s_waitcnt lgkmcnt(7)')
    for t in range(2):
        a('v_min_f32 v%d, v%d, v%d', l1 + t, vNC + 2 + t, NC2 + t)
    for t in range(2):
        a('v_sub_f32 v%d, v%d, v%d', f1 + t, l1 + t, vNC + 2 + t)
        a('v_sub_f32 v%d, v%d, v%d', f2 + t, l1 + t, NC2 + t)
    for t in range(2):
        a('v_exp_f32 v%d, v%d', f1 + t, f1 + t)
        a('v_exp_f32 v%d, v%d', f2 + t, f2 + t)
    a('s_waitcnt lgkmcnt(5)')
    for t in range(2):
        a('v_mul_f32 v%d, v%d, v%d', l1 + t, f1 + t, vO + 32 + 16 * t + 8)
    for t in range(2):
        a('v_fmac_f32 v%d, v%d, v%d', l1 + t, f2 + t, R + 16 * t + 8)
    for t in range(2):
        a('v_mov_b32 v%d, v%d', l2 + t, l1 + t)
    a('s_nop 0')
    for t in range(2):
        a('v_permlane32_swap_b32 v%d, v%d', l1 + t, l2 + t)
    for t in range(2):
        a('v_rcp_f32 v%d, v%d', l2 + t, l2 + t)
    a('s_waitcnt vmcnt(0) lgkmcnt(0)')
    for t in range(2):
        a('v_mul_f32 v%d, v%d, v%d', f1 + t, f1 + t, l2 + t)
        a('v_mul_f32 v%d, v%d, v%d', f2 + t, f2 + t, l2 + t)
    P = vO
    for t in range(2):
        if OPT['pkmerge']:
            sel = 'op_sel:[%d,0] op_sel_hi:[%d,1]' % (t, t)
            sel3 = 'op_sel:[%d,0,0] op_sel_hi:[%d,1,1]' % (t, t)
            for r in range(0, 12, 2):
                a('v_pk_mul_f32 %s, %s, %s %s', v(vO + 32 + 16 * t + r, 2), v(f1, 2), v(vO + 32 + 16 * t + r, 2), sel)
            for r in range(0, 12, 2):
                a('v_pk_fma_f32 %s, %s, %s, %s %s', v(vO + 32 + 16 * t + r, 2), v(f2, 2), v(R + 16 * t + r, 2), v(vO + 32 + 16 * t + r, 2), sel3)
        else:
            for r in range(12):
                a('v_mul_f32 v%d, v%d, v%d', vO + 32 + 16 * t + r, f1 + t, vO + 32 + 16 * t + r)
            for r in range(12):
                a('v_fmac_f32 v%d, v%d, v%d', vO + 32 + 16 * t + r, f2 + t, R + 16 * t + r)
        for q in range(6):
            a('v_cvt_pk_bf16_f32 v%d, v%d, v%d', P + 8 * t + q, vO + 32 + 16 * t + 2 * q, vO + 32 + 16 * t + 2 * q + 1)
        a('buffer_store_dwordx4 %s, v%d, s[%d:%d], s%d offen sc1', v(P + 8 * t, 4), vMG + 6, RWS, RWS + 3, 41 + t)
    a('s_nop 0')
    a('v_permlane32_swap_b32 v%d, v%d', P + 4, P + 12)
    a('v_permlane32_swap_b32 v%d, v%d', P + 5, P + 13)
    a('buffer_store_dwordx2 %s, v%d, s[%d:%d], s40 offen offset:512 sc1', v(P + 4, 2), vMG + 7, RWS, RWS + 3)
    if OPT['tprio'] == 2:
        a('s_setprio 0')
    if OPT['pgate']:
        setpw(8, vT + 8)
        a('ds_read_b32 v%d, v%d', 99, vAPW)
    stamp('A', 'merge')

def p3_static(vA0, vA1, vOA, acc):
    EP = OPT['epoll']
    if not EP:
        a('s_waitcnt vmcnt(0)')
        stamp('A', 'odrain')
        setflag(43, 1)
    NB = 7
    def reads(ks):
        f = 100 + 20 * (ks % NB)
        base, off = (vA0, ks * 5120) if ks < 10 else (vA1, (ks - 10) * 5120)
        return ['ds_read_b64_tr_b16 %s, v%d offset:%d' % (v(f + 4 * j + 2 * rd, 2), base, off + 1280 * rd + 32 * j)
                for j in range(5) for rd in range(2)]
    pl = 'buffer_load_dword v252, v%d, s[%d:%d], s88 offen sc1' % (vOA + 1, RWS, RWS + 3)
    def oload(ks):
        a('buffer_load_dwordx4 %s, v%d, s[%d:%d], s85 offen offset:%d sc1', v(4 * ks, 4), vOA, RWS, RWS + 3, 1024 * (ks & 3))
        if ks & 3 == 3 and ks < 19:
            a('s_add_u32 s85, s85, 4096')
    LEAD = OPT['olead']
    touch_ = 'buffer_load_dword v251, v248, s[%d:%d], s85 offen sc1' % (RWS, RWS + 3)
    NP = OPT['npre'] if EP else 0
    rest = [r for ks in range(NP, NB) for r in reads(ks)]
    if EP:
        for ks in range(NP):
            for r in reads(ks):
                a(r)
        if OPT['pgate']:
            a('s_waitcnt lgkmcnt(0)')
            a('v_cmp_gt_u32 vcc, 8, v99')
            a('s_cbranch_vccz L_epoll')
            a('s_waitcnt vmcnt(0)')
            stamp('A', 'odrain')
            if DIAG:
                nstamp['A'].pop()
            setflag(43, 2)
            a('s_mov_b32 vcc_lo, -1')
            a('s_mov_b32 vcc_hi, 0')
            a('s_branch L_f4late')
            a.label('L_epoll')
        a('s_mov_b32 exec_hi, 0')
        a(pl)
        a('s_waitcnt vmcnt(1)')
        stamp('A', 'odrain')
        setflag(43, 2)
        a('s_mov_b32 exec_hi, 0')
        a('s_waitcnt vmcnt(1)')
        a('v_cmp_eq_u32 vcc, 0, v252')
        a('s_mov_b64 exec, -1')
        a('s_cbranch_vccnz L_f4late')
        stamp('A', 'f4')
        if DIAG:
            nstamp['A'].pop()
        a(touch_)
        k = 0
        for ks in range(LEAD):
            oload(ks)
            while k < len(rest) * (ks + 1) // LEAD:
                a(rest[k])
                k += 1
        a('s_branch L_p3go')
        a.label('L_f4late')
    for r in rest:
        a(r)
    if OPT['pgate']:
        a('s_mov_b64 s[38:39], vcc')
        waitpw(vAPW, 8, 99, sleep=OPT['gsleep'])
        a('s_mov_b64 vcc, s[38:39]')
    if EP:
        a('s_mov_b64 exec, vcc')
    else:
        a('s_mov_b32 exec_hi, 0')
    pollflags([pl], 252, sleep=OPT['psleep4'])
    stamp('A', 'f4')
    a(touch_)
    for ks in range(LEAD):
        oload(ks)
    a.label('L_p3go')
    a('s_waitcnt lgkmcnt(0)')
    nl = LEAD
    a('v_mov_b32 v248, 9')
    lq = []
    if nl == 20 or OPT['yearly']:
        a('ds_write_b32 v%d, v248', vPW)
    pend = []
    for ks in range(20):
        w_ = 's_waitcnt vmcnt(%d)' % (nl - 1 - ks)
        if ks in lq:
            idx = max(i for i, x in enumerate(lq) if x == ks)
            w_ += ' lgkmcnt(%d)' % min(15, len(lq) - 1 - idx)
        a(w_)
        if OPT['fine'] in (1, 2) and ks in (0, 10, 19):
            stamp('A', 'p3k%d' % ks)
        rr = reads(ks + NB) if ks + NB < 20 else []
        for j in range(5):
            a('v_mfma_f32_16x16x32_bf16 %s, %s, %s, %s', v(acc + 4 * j, 4), v(4 * ks, 4), v(100 + 20 * (ks % NB) + 4 * j, 4),
              '0' if ks == 0 else v(acc + 4 * j, 4))
            for tg, r in pend:
                a(r)
                lq.append(tg)
            pend = [(ks + NB, r) for r in rr[2 * j:2 * j + 2]]
            if j in (0, 3) and nl < 20 and (j == 0 or ks % 2 == 0):
                oload(nl)
                nl += 1
                if nl == 20 and not OPT['yearly']:
                    a('ds_write_b32 v%d, v248', vPW)
                    lq.append('w')

def p3_groups(vA0, vOA, acc):
    WF, vAN = 100, 241
    sP, sG, sM, sKEY, sC = 4, 5, 6, 7, 8
    pl = 'buffer_load_dword v252, v%d, s[%d:%d], s88 offen sc1' % (vOA + 1, RWS, RWS + 3)
    for g in range(4):
        a('s_sub_u32 s%d, %d, s%d', sC + g, g, sOG)
        a('s_and_b32 s%d, s%d, 3', sC + g, sC + g)
        a('s_lshl2_add_u32 s%d, s%d, %d', sC + g, sC + g, g)
    a('v_mov_b32 v248, 9')
    a('s_waitcnt lgkmcnt(0)')
    a('v_cmp_gt_u32 vcc, 8, v99')
    a('s_cbranch_vccz L_epoll')
    a('s_waitcnt vmcnt(0)')
    stamp('A', 'odrain')
    if DIAG:
        nstamp['A'].pop()
    setflag(43, 2)
    waitpw(vAPW, 8, 99, sleep=OPT['gsleep'])
    a('s_mov_b32 exec_hi, 0')
    a(pl)
    a('s_waitcnt vmcnt(0)')
    a('s_branch L_polled')
    a.label('L_epoll')
    a('s_mov_b32 exec_hi, 0')
    a(pl)
    a('s_waitcnt vmcnt(1)')
    stamp('A', 'odrain')
    setflag(43, 2)
    a('s_mov_b32 exec_hi, 0')
    a('s_waitcnt vmcnt(1)')
    a.label('L_polled')
    a('v_cmp_eq_u32 vcc, 0, v252')
    a('s_mov_b64 exec, -1')
    a('s_mov_b32 s%d, vcc_lo', sP)
    def reads(k):
        return ['ds_read_b64_tr_b16 %s, v%d offset:%d' % (v(WF + 20 * k + 4 * j + 2 * rd, 2), vAN, 5120 * k + 1280 * rd + 32 * j)
                for j in range(5) for rd in range(2)]
    def issue(sl):
        for k in range(5):
            a('buffer_load_dwordx4 %s, v%d, s[%d:%d], s%d offen offset:%d sc1', v(20 * sl + 4 * k, 4), vOA, RWS, RWS + 3,
              12 if k < 4 else 13, 1024 * (k & 3))
        if sl == 3:
            a('ds_write_b32 v%d, v248', vPW)
    for sl in range(-1, 4):
        nx = sl + 1
        Lw, Lc, Ld = a.newlabel('gw'), a.newlabel('gc'), a.newlabel('gd')
        if nx < 4:
            for g in range(4):
                a('s_bfe_u32 s14, s%d, 0x%x', sP, (8 << 16) | (8 * g))
                a('s_bcnt1_i32_b32 s14, s14')
                if g == 0:
                    a('s_lshl4_add_u32 s%d, s14, s%d', sKEY, sC)
                else:
                    a('s_lshl4_add_u32 s14, s14, s%d', sC + g)
                    a('s_min_u32 s%d, s%d, s14', sKEY, sKEY)
            a('s_and_b32 s%d, s%d, 3', sG, sKEY)
            a('s_mul_i32 s12, s%d, 5120', sG)
            a('s_add_u32 s12, s12, s85')
            a('s_add_u32 s13, s12, 4096')
            a('s_cmp_lt_u32 s%d, 16', sKEY)
            a('s_cbranch_scc0 %s', Lw)
            issue(nx)
            if sl >= 0:
                a('s_waitcnt vmcnt(5)')
            a('s_branch %s', Lc)
            a.label(Lw)
            a('s_mov_b32 exec_lo, s%d', sP)
            a('s_mov_b32 exec_hi, 0')
            a(pl)
            a('s_mov_b64 exec, -1')
            if sl >= 0:
                a('s_waitcnt vmcnt(1)')
            a.label(Lc)
            a('s_mul_i32 s14, s%d, 25600', sG)
            a('v_add_u32 v%d, s14, v%d', vAN, vA0)
            if nx < 3:
                for g in range(4):
                    a('s_cmp_eq_u32 s%d, %d', sG, g)
                    a('s_cselect_b32 s%d, 0x1000, s%d', sC + g, sC + g)
        if sl < 0:
            for k in range(5):
                for r in reads(k):
                    a(r)
        else:
            pend = []
            for k in range(5):
                if nx == 4:
                    a('s_waitcnt vmcnt(%d) lgkmcnt(%d)', 4 - k, 0 if k >= 3 else 15)
                else:
                    a('s_waitcnt lgkmcnt(15)')
                rr = reads(k) if nx < 4 else []
                for j in range(5):
                    a('v_mfma_f32_16x16x32_bf16 %s, %s, %s, %s', v(acc + 4 * j, 4), v(20 * sl + 4 * k, 4), v(WF + 20 * k + 4 * j, 4),
                      '0' if (sl == 0 and k == 0) else v(acc + 4 * j, 4))
                    for r in pend:
                        a(r)
                    pend = rr[2 * j:2 * j + 2]
            for r in pend:
                a(r)
        if nx < 4:
            a('s_cmp_lt_u32 s%d, 16', sKEY)
            a('s_cbranch_scc1 %s', Ld)
            L1, L2 = a.newlabel('gp'), a.newlabel('gq')
            a('s_lshl_b32 s14, s%d, 3', sG)
            a('s_lshl_b32 s%d, 0xff, s14', sM)
            a('s_mov_b32 exec_lo, s%d', sP)
            a('s_mov_b32 exec_hi, 0')
            a.label(L1)
            a('s_waitcnt vmcnt(0)')
            a('v_cmp_eq_u32 vcc, 0, v252')
            a('s_and_b32 s14, vcc_lo, s%d', sM)
            a('s_cbranch_scc0 %s', L2)
            a('s_mov_b64 exec, vcc')
            if OPT['psleep4']:
                a('s_sleep %d', OPT['psleep4'])
            a(pl)
            a('s_sub_u32 s%d, s%d, 1', sSPIN, sSPIN)
            a('s_cbranch_scc0 %s', L1)
            a('s_endpgm')
            a.label(L2)
            a('s_mov_b32 s%d, vcc_lo', sP)
            a('s_mov_b64 exec, -1')
            issue(nx)
            a.label(Ld)
            if nx == 3:
                stamp('A', 'f4')

def a_outproj():
    vA0, vA1, vOA, vST = 240, 241, 242, 244
    waitpw(vMG + 5, 14, 98, sleep=1)
    a('v_lshrrev_b32 v21, 5, v%d', vLANE)
    a('v_bfe_u32 v22, v%d, 2, 3', vLANE)
    a('v_lshl_add_u32 v21, v21, 4, v22')
    a('v_mul_u32_u24 v21, 160, v21')
    a('v_and_b32 v22, 3, v%d', vLANE)
    a('v_lshl_add_u32 v%d, v22, 3, v21', vA0)
    a('v_add_u32 v%d, %d, v%d', vA1, 10 * 5120, vA0)
    a('v_lshlrev_b32 v%d, 4, v%d', vOA, vLANE)
    a('v_lshrrev_b32 v21, 4, v%d', vLANE)
    a('v_mul_u32_u24 v21, %d, v21', 4 * 5120)
    a('v_and_b32 v22, 15, v%d', vLANE)
    a('v_lshl_add_u32 v%d, v22, 2, v21', vST)
    for r in range(1, 4):
        a('v_add_u32 v%d, %d, v%d', vST + r, 5120 * r, vST)
    a('s_mul_i32 s84, s%d, 2560', sOG)
    a('v_min_u32 v248, 19, v%d', vLANE)
    a('v_lshl_add_u32 v248, v248, 7, s84')
    a('s_lshl2_add_u32 s84, s%d, s%d', sTB, sW)
    a('s_mul_i32 s85, s84, %d', OBLK)
    a('s_add_u32 s85, s85, 0x%x', WS_O)
    a('s_mul_i32 s86, s84, %d', 16 * 5120)
    a('s_mul_i32 s88, s%d, 320', sOG)
    a('s_add_u32 s86, s86, s88')
    a('v_lshlrev_b32 v%d, 7, v%d', vOA + 1, vLANE)
    a('s_lshl_b32 s88, s%d, 12', sTB)
    a('s_add_u32 s88, s88, 0x%x', F4)
    acc = 80
    if OPT['p3dyn']:
        p3_groups(vA0, vOA, acc)
    else:
        p3_static(vA0, vA1, vOA, acc)
    a('s_nop 3')
    for j in range(5):
        for r in range(4):
            a('buffer_store_dword v%d, v%d, s[%d:%d], s86 offen offset:%d%s', acc + 4 * j + r, vST + r, R4, R4 + 3, 64 * j, OSC)
    finish('A')

vXR, vBR, vA0PW = 96, 100, 107
vL, vE, vHW, vHR0, vHR1, vHS, vCH, vCHL, vHH, vP01, vTCH, vHINT = 146, 150, 151, 152, 153, 154, 155, 156, 157, 158, 159, 160
vDX, vDW, vDBX, vDBB = 161, 165, 169, 173
vZ, vWOA, vPAR = 176, 186, 200
vCA, vCR, vHA = 248, 250, 252
vSPW, vF3, vHT = 191, 192, 193
vAM = 248
vXO, vDO, vOA, vRA, vR1W, vR1R, vR2W, vPW1, vPW2, vAP4 = 164, 165, 166, 167, 169, 170, 171, 172, 173, 174
SENT = 0xffffffff

def s_stage(t, emit=None):
    out = []
    slot = (t % 4) * 32768
    if OPT['stag'] >= 5 and t < 10:
        base, size = {0: (0, 4), 1: (4, 4), 2: (8, 2)}[t // 4] if OPT['stag'] != 7 else ((0, 2) if t < 2 else ((2, 4) if t < 6 else (6, 4)))
        out += ['s_add_u32 s82, s81, %d' % t, 's_and_b32 s82, s82, %d' % (size - 1), 's_add_u32 s82, s82, %d' % base,
                's_add_u32 s82, s82, s85', 's_cmp_ge_u32 s82, 10', 's_cselect_b32 s83, 10, 0', 's_sub_u32 s82, s82, s83']
    out.append('s_add_u32 m0, s74, %d' % slot)
    out.append('s_lshl_b32 s83, s82, 7')
    out.append('s_add_u32 s76, s72, s83')
    if t < 10:
        out += [dma(vDX + i, R0, 76, 1024 * i) for i in range(4)]
        out.append('s_add_u32 m0, s74, %d' % (slot + 16384))
        out.append('s_mul_i32 s83, s82, 245760')
        out.append('s_add_u32 s76, s73, s83')
        out += [dma(vDW + i, R1, 76, 1024 * i) for i in range(4)]
    else:
        out += [dma(vDBX + i, R3, 76, 1024 * i) for i in range(4)]
        out.append('s_add_u32 m0, s75, %d' % (slot + 16384))
        out.append('s_add_u32 s76, s77, s83')
        out += [dma(vDBB + i, R4, 76, 1024 * i) for i in range(3)]
    out.append('s_add_u32 s82, s82, 1')
    out.append('s_cmp_eq_u32 s82, 10')
    out.append('s_cselect_b32 s82, 0, s82')
    if emit is None:
        L = a.newlabel('skip')
        if t < 10:
            a('s_cmp_eq_u32 s%d, 15', sCG)
            a('s_cbranch_scc1 %s', L)
        for o in out:
            a(o)
        if t < 10:
            a.label(L)
    return out

def ninstr(t):
    return 0 if t > 19 else (8 if t < 10 else 7)

def exp_acc(dst, x, t1, t2):
    L2E = math.log2(math.e)
    hi = struct.unpack('<f', struct.pack('<f', L2E))[0]
    a('s_mov_b32 s80, 0x%x', f2u(hi))
    a('v_mul_f32 v%d, s80, v%d', t1, x)
    a('v_fma_f32 v%d, v%d, s80, -v%d', t2, x, t1)
    a('v_fmac_f32 v%d, 0x%x, v%d', t2, f2u(L2E - hi), x)
    a('v_exp_f32 v%d, v%d', dst, t1)
    a('v_mul_f32 v%d, 0x%x, v%d', t2, f2u(math.log(2.0)), t2)
    a('v_fmac_f32 v%d, v%d, v%d', dst, dst, t2)

def s_setup():
    a.label('L_roleS')
    a('s_sub_u32 s%d, s%d, 4', sW, sW)
    a('v_lshrrev_b32 v1, 3, v%d', vLANE)
    a('v_and_b32 v2, 7, v%d', vLANE)
    a('v_lshrrev_b32 v3, 4, v%d', vLANE)
    a('v_xor_b32 v4, v2, v3')
    a('v_mul_u32_u24 v5, 1280, v1')
    a('v_lshl_add_u32 v%d, v4, 4, v5', vDX)
    a('v_xor_b32 v6, 64, v%d', vDX)
    a('v_add_u32 v%d, %d, v6', vDX + 1, 10240 - 1024)
    a('v_add_u32 v%d, %d, v%d', vDX + 2, 2 * (10240 - 1024), vDX)
    a('v_add_u32 v%d, %d, v6', vDX + 3, 3 * (10240 - 1024))
    a('v_and_b32 v7, 15, v%d', vLANE)
    a('v_lshlrev_b32 v8, 2, v3')
    a('v_xor_b32 v7, v7, v8')
    a('v_mul_u32_u24 v8, 3840, v3')
    a('v_lshl_add_u32 v%d, v7, 4, v8', vDW)
    for i in range(1, 4):
        a('v_add_u32 v%d, %d, v%d', vDW + i, (15360 - 1024) * i, vDW)
    a('s_lshl2_add_u32 s72, s%d, s%d', sRB, sW)
    a('s_mul_i32 s72, s72, %d', 32 * 1280)
    a('s_mul_i32 s73, s%d, %d', sW, 16 * 3840)
    a('s_lshl_b32 s70, s%d, 8', sCG)
    a('s_add_u32 s73, s73, s70')
    a('s_lshl_b32 s74, s%d, 12', sW)
    if OPT['stag'] <= 4:
        stagger(82, 83, 0, 0, OPT['stag'])
    else:
        a('s_add_u32 s81, s%d, s%d', sI, sOG)
        a('s_add_u32 s85, s%d, 1', sXCD)
        a('s_lshr_b32 s85, s85, 1')
        a('s_mul_i32 s85, s85, %d', 2 if OPT['stag'] == 5 else 0)
    a('s_waitcnt lgkmcnt(0)')
    srd(R0, sAX, 2048 * 1280)
    srd(R1, sWQ, 640 * 3840)
    if DIAG:
        ws_setup()
    stamp('S', 'start')
    s_stage(0)
    if not DIAG:
        prologue2()
        ws_setup()
    if OPT['fine'] == 1:
        stamp('S', 'iss0')
    def params():
        a('s_mul_i32 s70, s%d, 40', sG)
        a('v_min_u32 v9, 39, v%d', vLANE)
        a('v_add_lshl_u32 v9, v9, s70, 1')
        a('global_load_ushort v10, v9, s[%d:%d]', sLDT, sLDT + 1)
        a('global_load_ushort v11, v9, s[%d:%d]', sLRE, sLRE + 1)
        a('global_load_ushort v12, v9, s[%d:%d]', sLIM, sLIM + 1)
    params()
    n0 = len(a.lines)
    b1_sources(R3, R4, vDBX, vDBB, 75, 77, 70)
    a('v_and_b32 v5, 3, v%d', vLANE)
    a('v_lshlrev_b32 v5, 8, v5')
    a('v_lshl_add_u32 v5, v%d, 2, v5', vLANE)
    a('v_add_u32 v%d, %d, v5', vSPW, L_PW + 1024)
    s_addresses()
    if OPT['slate']:
        late = a.lines[n0:]
        del a.lines[n0:]
        k = 0
        nch = OPT['slate']
        for c in range(nch):
            e = len(late) * (c + 1) // nch
            while e < len(late) and ('cselect' in late[e] or 'cndmask' in late[e] or 'cndmask' in late[e + 1] or 'cndmask' in late[min(e + 2, len(late) - 1)]):
                e += 1
            SLATE.append(late[k:e])
            k = e
    s_stage(1)
    if OPT['fine'] == 1:
        stamp('S', 'iss1')
    a('s_waitcnt vmcnt(11) lgkmcnt(0)')
    stamp('S', 'st0')
    a('s_barrier')
    s_stage(2)
    slate()
    a('s_waitcnt vmcnt(8)')
    a('s_barrier')
    s_stage(3)
    s_stage(4)

SLATE = []

def slate():
    if SLATE:
        a.lines.extend(SLATE.pop(0))

def s_addresses():
    c, g, t0, t1, t2 = 40, 41, 42, 43, 44
    a('v_and_b32 v%d, 15, v%d', c, vLANE)
    a('v_lshrrev_b32 v%d, 4, v%d', g, vLANE)
    a('v_lshrrev_b32 v%d, 1, v%d', t0, c)
    a('v_xor_b32 v%d, v%d, v%d', t0, t0, g)
    a('v_lshlrev_b32 v%d, 4, v%d', t0, t0)
    a('v_lshl_add_u32 v%d, v%d, 7, v%d', t0, c, t0)
    a('v_xor_b32 v%d, 64, v%d', t1, t0)
    a('v_add_u32 v%d, s74, v%d', vXR, t0)
    a('v_add_u32 v%d, s74, v%d', vXR + 1, t1)
    a('s_mul_i32 s70, s%d, %d', sW, REGSZ)
    a('s_add_u32 s70, s70, %d', L_REG)
    a('v_add_u32 v%d, s70, v%d', vCR, t0)
    a('v_add_u32 v%d, s70, v%d', vCR + 1, t1)
    a('v_lshrrev_b32 v%d, 3, v%d', t2, c)
    a('v_lshl_add_u32 v%d, v%d, 12, v%d', t0, t2, t0)
    a('v_add_u32 v%d, 16384, v%d', vBR, t0)
    a('v_xor_b32 v%d, 64, v%d', vBR + 1, vBR)
    for k in range(2):
        a('v_add_u32 v%d, 0x10000, v%d', vXR + 2 + k, vXR + k)
        a('v_add_u32 v%d, 0x10000, v%d', vBR + 2 + k, vBR + k)
    a('v_and_b32 v%d, 7, v%d', t0, vLANE)
    a('v_lshlrev_b32 v%d, 2, v%d', t2, t2)
    a('v_lshl_add_u32 v%d, v%d, 3, v%d', t0, t0, t2)
    a('v_add_u32 v%d, %d, v%d', vHH, L_H, t0)
    a('v_mul_u32_u24 v%d, 320, v%d', t1, g)
    a('s_mul_i32 s71, s%d, 1280', sW)
    a('s_add_u32 s71, s71, %d', L_EL)
    a('v_add3_u32 v%d, v%d, v%d, s71', vE, t0, t1)
    a('v_lshlrev_b32 v%d, 3, v%d', vCH, vLANE)
    a('v_add_u32 v%d, %d, v%d', vCHL, L_H, vCH)
    a('v_lshlrev_b32 v%d, 9, v%d', vHINT, vLANE)
    a('v_lshlrev_b32 v%d, 2, v%d', vA0PW, vLANE)
    a('v_add_u32 v%d, %d, v%d', vA0PW, L_PW, vA0PW)
    a('v_and_b32 v%d, 0x%x, v%d', vP01, 0xffffffff ^ 512, vSPW)
    a('v_bfe_u32 v%d, v%d, 1, 2', t0, vLANE)
    a('v_xor_b32 v%d, v%d, v%d', t0, t0, g)
    a('v_lshlrev_b32 v%d, 4, v%d', t0, t0)
    a('s_mul_i32 s71, s%d, 5120', sW)
    a('s_add_u32 s71, s71, %d', L_HT)
    a('v_lshl_add_u32 v%d, v%d, 6, v%d', t0, c, t0)
    a('v_add_u32 v%d, s71, v%d', vHW, t0)
    a('v_bfe_u32 v%d, v%d, 2, 2', t0, vLANE)
    a('v_lshrrev_b32 v%d, 5, v%d', t1, vLANE)
    a('v_lshl_add_u32 v%d, v%d, 3, v%d', vHR0, t1, t0)
    a('v_lshlrev_b32 v%d, 6, v%d', vHR0, vHR0)
    a('v_mul_u32_u24 v%d, %d, v%d', vHS, 80 * 256, t1)
    a('v_lshrrev_b32 v%d, 1, v%d', t0, t0)
    a('v_bfe_u32 v%d, v%d, 4, 1', t1, vLANE)
    a('v_bfe_u32 v%d, v%d, 1, 1', t2, vLANE)
    a('v_lshl_add_u32 v%d, v%d, 1, v%d', t2, t1, t2)
    a('v_xor_b32 v%d, v%d, v%d', t2, t2, t0)
    a('v_lshl_add_u32 v%d, v%d, 4, v%d', vHR0, t2, vHR0)
    a('v_and_b32 v%d, 1, v%d', t2, vLANE)
    a('v_lshl_add_u32 v%d, v%d, 3, v%d', vHR0, t2, vHR0)
    a('v_xor_b32 v%d, 32, v%d', vHR1, vHR0)
    a('v_add_u32 v%d, s71, v%d', vHR0, vHR0)
    a('v_add_u32 v%d, s71, v%d', vHR1, vHR1)
    a('v_mul_u32_u24 v%d, %d, v%d', t1, HBLK, t1)
    a('v_lshl_add_u32 v%d, v%d, 4, v%d', t1, c, t1)
    a('v_add_u32 v%d, v%d, v%d', vHS, vHS, t1)
    a('v_mov_b32 v%d, v%d', vCA, vDX)
    a('v_mov_b32 v%d, v%d', vCA + 1, vDX + 1)
    a('v_lshlrev_b32 v%d, 4, v%d', vHA, vLANE)
    a('v_lshlrev_b32 v%d, 7, v%d', vF3, vLANE)
    a('v_min_u32 v%d, %d, v%d', vHT, 39 * 128, vF3)
    a('s_xor_b32 s92, s%d, 1', sW)
    a('s_mul_i32 s92, s92, %d', REGSZ)
    a('s_add_u32 s92, s92, %d', L_REG)
    a('s_xor_b32 s93, s%d, 3', sW)
    a('s_mul_i32 s93, s93, %d', REGSZ)
    a('s_add_u32 s93, s93, %d', L_REG + 16 * 336)
    if not OPT['wopack']:
        s_wooffs()

def s_params():
    a('s_cmp_eq_u32 s%d, 0', sW)
    a('s_cbranch_scc0 L_nopar')
    for r in (10, 11, 12):
        a('v_lshlrev_b32 v%d, 16, v%d', r, r)
    exp_acc(13, 10, 14, 15)
    a('v_cvt_pk_bf16_f32 v13, v13, v13')
    a('v_and_b32 v13, 0xffff0000, v13')
    a('v_mul_f32 v14, v13, v11')
    a('v_mul_f32 v15, v13, v12')
    exp_acc(16, 14, 17, 18)
    I2P = 1.0 / (2 * math.pi)
    hi = struct.unpack('<f', struct.pack('<f', I2P))[0]
    a('s_mov_b32 s80, 0x%x', f2u(hi))
    a('v_mul_f32 v17, s80, v15')
    a('v_rndne_f32 v17, v17')
    a('v_fma_f32 v17, v15, s80, -v17')
    a('v_fmac_f32 v17, 0x%x, v15', f2u(I2P - hi))
    a('v_cos_f32 v20, v17')
    a('v_sin_f32 v21, v17')
    a('v_mul_f32 v18, v11, v11')
    a('v_fmac_f32 v18, v12, v12')
    a('v_rcp_f32 v19, v18')
    a('v_mul_f32 v20, v16, v20')
    a('v_mul_f32 v21, v16, v21')
    a('v_fma_f32 v18, -v18, v19, 1.0')
    a('v_fmac_f32 v19, v19, v18')
    a('v_add_f32 v19, v19, v19')
    a('v_add_f32 v17, -1.0, v20')
    a('v_mul_f32 v22, v17, v11')
    a('v_fmac_f32 v22, v21, v12')
    a('v_mul_f32 v23, v17, v12')
    a('v_fma_f32 v23, -v21, v11, v23')
    a('v_mul_f32 v22, v22, v19')
    a('v_mul_f32 v23, v23, v19')
    a('v_lshlrev_b32 v9, 4, v%d', vLANE)
    a('v_add_u32 v9, %d, v9', L_PAR)
    a('ds_write_b128 v9, v[20:23]')
    a('v_mov_b32 v24, v20')
    a('v_sub_f32 v25, 0, v21')
    for k in range(3):
        a('v_mul_f32 v26, v25, v25')
        a('v_add_f32 v27, v24, v24')
        a('v_fma_f32 v24, v24, v24, -v26')
        a('v_mul_f32 v25, v27, v25')
    a.label('L_nopar')

def s_params2():
    a('s_cmp_eq_u32 s%d, 0', sW)
    a('s_cbranch_scc0 L_nopar2')
    a('s_mov_b32 exec_hi, 0xff')
    a('v_mov_b32 v14, 1.0')
    a('v_mov_b32 v15, 0')
    a('ds_write_b64 v%d, v[14:15] offset:%d', vCHL, L_Z - L_H)
    a('ds_write_b64 v%d, v[24:25] offset:%d', vCHL, L_Z - L_H + 320)
    src = 24
    for sg in range(2, 17):
        dst = 16 + 2 * (sg % 3)
        a('v_mul_f32 v%d, v24, v%d', dst, src)
        a('v_mul_f32 v%d, v24, v%d', dst + 1, src + 1)
        a('v_fma_f32 v%d, -v25, v%d, v%d', dst, src + 1, dst)
        a('v_fmac_f32 v%d, v25, v%d', dst + 1, src)
        a('ds_write_b64 v%d, %s offset:%d', vCHL, v(dst, 2), L_Z - L_H + 320 * sg)
        src = dst
    a('s_mov_b32 exec_hi, -1')
    a('s_waitcnt lgkmcnt(0)')
    a.label('L_nopar2')

def s_wooffs():
    for i in range(5):
        a('v_add_u32 v40, %d, v%d', 64 * i, vLANE)
        a('v_mul_u32_u24 v41, 6554, v40')
        a('v_lshrrev_b32 v41, 16, v41')
        a('v_mul_u32_u24 v42, 10, v41')
        a('v_sub_u32 v40, v40, v42')
        tau(42, 41, 43)
        a('v_mul_u32_u24 v42, 1280, v42')
        a('v_lshl_add_u32 v%d, v40, 4, v42', vWOA + i)
        if 0 < i < 4:
            a('v_subrev_u32 v%d, %d, v%d', vWOA + i, 1024 * i, vWOA + i)

def s_qloader():
    early = {1: {7: 10}, 2: {7: 10, 9: 11}, 3: {7: 10, 8: 11, 9: 12}, 0: {}}[OPT['st10']]
    q = [2] * 8 + [3] * 8 + [4] * 8
    for st in range(2, 10):
        a('s_waitcnt vmcnt(%d)', len(q) - 1 - max(i for i, x in enumerate(q) if x == st))
        if OPT['fine'] == 1 and st in (2, 4, 6, 7, 8, 9):
            stamp('S', 'st%d' % st)
        a('s_barrier')
        if st == 6:
            a('v_and_b32 v32, 15, v%d', vLANE)
            a('v_lshlrev_b32 v32, 4, v32')
            a('v_mov_b32 v33, 1')
            a('s_cmp_eq_u32 s%d, 3', sW)
            a('s_cbranch_scc0 L_nodbg')
            a(dbgload(32, 33))
            a.label('L_nodbg')
            a('s_cmp_eq_u32 s%d, 15', sCG)
            a('s_cbranch_scc0 L_cw')
            a('s_waitcnt vmcnt(0)')
            a.label('L_cw')
        if st <= 6:
            s_stage(st + 3)
            q += [st + 3] * 8
            slate()
        if st == OPT['pretouch']:
            a('s_cmp_eq_u32 s%d, 2', sW)
            a('s_cselect_b32 s70, s%d, s%d', sBRE, sBIM)
            a('s_cselect_b32 s71, s%d, s%d', sBRE + 1, sBIM + 1)
            a('s_mul_i32 s83, s2, 3200')
            a('s_lshl1_add_u32 s84, s2, s%d', sW)
            a('s_mul_i32 s84, s84, 5120')
            a('s_cmp_lt_u32 s%d, 2', sW)
            a('s_cselect_b32 s70, s%d, s70', sBX)
            a('s_cselect_b32 s71, s%d, s71', sBX + 1)
            a('s_cselect_b32 s83, s84, s83')
            a('s_cselect_b32 s84, 39, 24')
            a('v_min_u32 v30, s84, v%d', vLANE)
            a('v_lshl_add_u32 v30, v30, 7, s83')
            a('global_load_dword v31, v30, s[70:71]')
            q.append('t')
        if st == 7:
            stagger(82, 83, 0, OPT['flip'], OPT['stagb'])
        if st in early:
            s_stage(early[st])
            q += [early[st]] * 7
        if st == 7 and not OPT['plate']:
            s_params()
        if st == 8 and not OPT['plate']:
            s_params2()

    a('v_cmp_eq_u32 vcc, 0, v33')
    a('s_cbranch_vccz L_clrok')
    pollflags([dbgload(32, 33)], 33, sleep=8)
    a.label('L_clrok')
    a('s_barrier')
    stamp('S', 'qend')
    if OPT['plate']:
        s_params()
        s_params2()
    else:
        s_consts()

def s_consts():
    a('v_and_b32 v104, 7, v%d', vLANE)
    a('v_lshlrev_b32 v104, 4, v104')
    a('v_add_u32 v104, %d, v104', L_PAR)
    for j in range(5):
        a('ds_read_b128 %s, v104 offset:%d', v(vPAR + 4 * j, 4), 128 * j)
    a('v_and_b32 v105, -8, v%d', vE)
    a('v_add_u32 v105, %d, v105', L_Z - L_EL)
    for j in range(5):
        a('ds_read_b64 %s, v105 offset:%d', v(vZ + 2 * j, 2), 64 * j)
    a('s_cmp_eq_u32 s%d, 0', sW)
    a('s_cselect_b32 s70, 1, 16')
    a('s_mul_i32 s70, s70, 320')
    a('v_add_u32 v106, s70, v%d', vCHL)
    a('ds_read_b64 %s, v106 offset:%d', v(vL, 2), L_Z - L_H)
    a('v_bfe_u32 v145, v%d, 3, 1', vLANE)
    a('v_lshlrev_b32 v145, 31, v145')
    a('v_xor_b32 v144, 0x80000000, v145')
    a('s_waitcnt lgkmcnt(0)')
    for j in range(5):
        a('v_xor_b32 v%d, v145, v%d', vPAR + 4 * j + 1, vPAR + 4 * j + 1)
        a('v_xor_b32 v%d, v145, v%d', vPAR + 4 * j + 2, vPAR + 4 * j + 2)
        a('v_xor_b32 v%d, v144, v%d', vZ + 2 * j + 1, vZ + 2 * j + 1)

def touch(r, va=None):
    o = ['s_add_u32 s84, s%d, %d' % (sXCD, r),
         's_cmp_ge_u32 s84, 6', 's_cselect_b32 s85, 6, 0', 's_sub_u32 s84, s84, s85',
         's_cmp_ge_u32 s84, 6', 's_cselect_b32 s85, 6, 0', 's_sub_u32 s84, s84, s85',
         's_cmp_ge_u32 s84, 2',
         's_cselect_b32 s86, s%d, s%d' % (sCRE, sWO), 's_cselect_b32 s87, s%d, s%d' % (sCRE + 1, sWO + 1),
         's_cmp_ge_u32 s84, 4',
         's_cselect_b32 s86, s%d, s86' % sCIM, 's_cselect_b32 s87, s%d, s87' % (sCIM + 1),
         's_and_b32 s84, s84, 1', 's_mul_i32 s84, s84, 3200',
         's_add_u32 s86, s86, s84', 's_addc_u32 s87, s87, 0',
         'global_load_dword v109, v%d, s[86:87]' % (va or vTCH)]
    return o

def s_b1():
    F = [40, 68]
    def reads(t, ks, f):
        slot = t % 4
        hi, lo = slot >> 1, (slot & 1) * 32768
        r = ['ds_read_b128 %s, v%d offset:%d' % (v(f + 4 * T, 4), vXR + 2 * hi + ks, lo + 2048 * T) for T in range(2)]
        r += ['ds_read_b128 %s, v%d offset:%d' % (v(f + 8 + 4 * j, 4), vBR + 2 * hi + ks, lo + 1024 * j) for j in range(5)]
        return r
    def mfmas(f, first):
        return ['v_mfma_f32_16x16x32_bf16 %s, %s, %s, %s' % (v(8 * j + 4 * T, 4), v(f + 4 * T, 4), v(f + 8 + 4 * j, 4),
                '0' if first else v(8 * j + 4 * T, 4)) for j in range(5) for T in range(2)]
    def weave(ms, others):
        n = len(ms)
        k = 0
        for i_, m in enumerate(ms):
            a(m)
            while k < len(others) * (i_ + 1) // n:
                a(others[k])
                k += 1
    first = 10 + OPT['st10']
    a('s_lshl4_add_u32 s84, s%d, s%d', sCG, sRB)
    flagaddr(84, 84, F1, 85)
    a('s_waitcnt vmcnt(%d)', max(0, 7 * (first - 11)))
    a('s_barrier')
    for r in reads(10, 0, F[0]):
        a(r)
    for u in range(10):
        t = 10 + u
        if OPT['fine'] == 1 and u in (0, 2, 3, 4, 8):
            stamp('S', 'b1w%d' % u)
        a('s_waitcnt lgkmcnt(0)')
        m0_ = mfmas(F[0], u == 0)
        weave(m0_[:4], reads(t, 1, F[1]))
        for m in m0_[4:]:
            a(m)
        m1_ = mfmas(F[1], False)
        if u < 9:
            if t + 1 < first:
                a('s_waitcnt vmcnt(%d) lgkmcnt(0)', 7 * (first - t - 2))
            else:
                if t + 1 == first and OPT['plate']:
                    s_consts()
                a('s_waitcnt lgkmcnt(0)')
            a('s_barrier')
            if t + 1 == first:
                a('s_cmp_eq_u32 s%d, 3', sW)
                a('s_cbranch_scc0 L_noflag')
                setflag(84, 104)
                a.label('L_noflag')
            weave(m1_[:4], reads(t + 1, 0, F[0]))
            for m in m1_[4:]:
                a(m)
        else:
            a('s_waitcnt lgkmcnt(0)')
            for m in m1_:
                a(m)
    stamp('S', 'b1gemm')

def rot5(dst, t):
    a('s_and_b32 s%d, s%d, 3', dst, sI)
    a('s_add_u32 s%d, s%d, s%d', dst, dst, sXCD)
    for _ in range(2):
        a('s_cmp_ge_u32 s%d, 5', dst)
        a('s_cselect_b32 s%d, 5, 0', t)
        a('s_sub_u32 s%d, s%d, s%d', dst, dst, t)
    if not OPT['rot5']:
        a('s_mov_b32 s%d, 0', dst)

def s_wo():
    if OPT['wopack']:
        a('s_mov_b32 s73, 0x%x', F1 + 15 * 16 * 128)
        a('s_mov_b64 exec, 0xffff')
        pollflags(['buffer_load_dword v40, v%d, s[%d:%d], s73 offen sc1' % (vF3, RWS, RWS + 3)], 40, sleep=4)
        rot5(83, 73)
        a('s_mul_i32 s75, s%d, 102400', sOG)
        a('s_add_u32 s75, s75, 0x%x', WS_WP)
        a('s_mov_b32 s77, 5')
        a.label('L_woloop')
        a('s_lshl2_add_u32 s78, s83, s%d', sW)
        a('s_mul_i32 s78, s78, 5120')
        a('s_add_u32 s79, s78, s75')
        a('s_mov_b32 m0, s78')
        for i in range(5):
            if i == 4:
                a('s_add_u32 m0, s78, 4096')
                a('s_add_u32 s79, s79, 4096')
            a('s_waitcnt vmcnt(%d)', OPT['thrw'])
            a(dma(vHA, RWS, 79, 1024 * (i & 3)).replace(' lds', ' sc1 lds'))
    else:
        srd(R0, sWO, 640 * 1280)
        rot5(83, 73)
        a('s_mul_i32 s75, s%d, 160', sOG)
        a('s_mov_b32 s77, 5')
        a.label('L_woloop')
        a('s_lshl2_add_u32 s78, s83, s%d', sW)
        a('s_mul_i32 s79, s78, 40960')
        a('s_add_u32 s79, s79, s75')
        a('s_mul_i32 s78, s78, 5120')
        a('s_mov_b32 m0, s78')
        a('s_add_u32 s73, s78, 4096')
        for i in range(5):
            if i == 4:
                a('s_mov_b32 m0, s73')
            a('s_waitcnt vmcnt(%d)', OPT['thrw'])
            a(dma(vWOA + i, R0, 79, 1024 * (i & 3)))
    a('s_add_u32 s83, s83, 1')
    a('s_cmp_eq_u32 s83, 5')
    a('s_cselect_b32 s83, 0, s83')
    a('s_sub_u32 s77, s77, 1')
    a('s_cmp_lg_u32 s77, 0')
    a('s_cbranch_scc1 L_woloop')
    for kp in range(5):
        a('s_lshl_b32 s73, s83, 7')
        a('s_add_u32 s%d, s72, s73', 4 + kp)
        a('s_lshl_b32 s%d, s83, 11', 12 + kp)
        a('s_add_u32 s83, s83, 1')
        a('s_cmp_eq_u32 s83, 5')
        a('s_cselect_b32 s83, 0, s83')

def s_scan():
    ROR = 'row_ror:8 row_mask:0xf bank_mask:0xf'
    a('s_setprio 1')
    a('s_lshl_b32 s70, s%d, 13', sG)
    a('s_add_u32 s70, s70, 0x%x', WS_E)
    a('s_add_u32 s70, s70, s%d', sWS)
    a('s_addc_u32 s71, s%d, 0', sWS + 1)
    srd(R5, 70, 8192)
    a('s_sub_u32 s70, 15, s%d', sRB)
    a('s_lshl_b32 s70, s70, 9')
    a('s_add_u32 s71, s70, 4096')
    tmp = 40
    for j in range(5):
        for k in range(8):
            a('v_mul_f32_dpp v%d, v%d, v%d %s', tmp + k, 8 * j + k, vPAR + 4 * j + 3, ROR)
        for k in range(8):
            a('v_fma_f32 v%d, v%d, v%d, v%d', 8 * j + k, vPAR + 4 * j + 2, 8 * j + k, tmp + k)
    e = [[8 * j for j in range(5)], [50 + j for j in range(5)], [56 + j for j in range(5)]]
    cur = e[0]
    for k in range(1, 8):
        nx = e[1 + (k & 1)]
        for j in range(5):
            a('v_fma_f32 v%d, v%d, v%d, v%d', nx[j], vPAR + 4 * j, cur[j], 8 * j + k)
        for j in range(5):
            a('v_fmac_f32_dpp v%d, v%d, v%d %s', nx[j], cur[j], vPAR + 4 * j + 1, ROR)
        cur = nx
    for j in range(5):
        a('ds_write_b32 v%d, v%d offset:%d', vE, cur[j], 64 * j)
    setpw(11, 104)
    for r in range(10 - OPT['tstart'], 0 if OPT['tlate'] else 6):
        a('s_waitcnt vmcnt(0)')
        for o in touch(r):
            a(o)
    stamp('S', 'pass1')
    def chain(dst, src, add):
        a('v_fma_f32 v%d, v%d, v%d, v%d', dst, vL, src, add)
        a('v_fma_f32 v%d, v%d, v%d, v%d', dst + 1, vL, src + 1, add + 1)
        a('v_fma_f32 v%d, -v%d, v%d, v%d', dst, vL + 1, src + 1, dst)
        a('v_fmac_f32 v%d, v%d, v%d', dst + 1, vL + 1, src)
    ES = 110
    a('s_cmp_eq_u32 s%d, 1', sW)
    a('s_cbranch_scc1 L_wave1')
    a('s_cmp_eq_u32 s%d, 0', sW)
    a('s_cbranch_scc0 L_wave23')
    waitpw(vSPW, 11, 105, sleep=1)
    a('s_mov_b32 exec_hi, 0xff')
    for sg in range(16):
        a('ds_read_b64 %s, v%d offset:%d', v(ES + 2 * sg, 2), vCHL, L_EL - L_H + 320 * sg)
    a('v_mov_b32 v142, 0')
    a('v_mov_b32 v143, 0')
    a('s_waitcnt lgkmcnt(0)')
    a('ds_write_b64 v%d, v[142:143] offset:%d', vCHL, L_PL - L_H)
    for sg in range(1, 16):
        a('ds_write_b64 v%d, %s offset:%d', vCHL, v(ES + 2 * sg - 2, 2), L_PL - L_H + 320 * sg)
        chain(ES + 2 * sg, ES + 2 * sg - 2, ES + 2 * sg)
    a('v_min_u32 v%d, -2, v%d', ES + 30, ES + 30)
    a('v_min_u32 v%d, -2, v%d', ES + 31, ES + 31)
    a('buffer_store_dwordx2 %s, v%d, s[%d:%d], s70 offen sc1', v(ES + 30, 2), vCH, R5, R5 + 3)
    a('s_mov_b32 exec_hi, -1')
    setpw(12, 104)
    a('s_branch L_coldone')
    a.label('L_wave1')
    a.label('L_hint')
    a('buffer_load_dword v105, v%d, s[%d:%d], s70 offen offset:512 sc1', vHINT, R5, R5 + 3)
    a('s_waitcnt vmcnt(0)')
    a('v_cmp_eq_u32 vcc, -1, v105')
    a('s_cbranch_vccz L_hintok')
    a('s_mov_b64 exec, vcc')
    a('s_sleep 3')
    a.label('L_hint2')
    a('s_sub_u32 s%d, s%d, 1', sSPIN, sSPIN)
    a('s_cbranch_scc0 L_hint')
    a('s_endpgm')
    a.label('L_hintok')
    a('s_mov_b32 exec_lo, -1')
    a('s_mov_b32 exec_hi, 0xff')
    for k in range(15, 0, -1):
        a('buffer_load_dwordx2 %s, v%d, s[%d:%d], s%d offen offset:%d sc1', v(ES + 2 * (15 - k), 2), vCH, R5, R5 + 3,
          71 if k >= 8 else 70, 512 * (k & 7))
    a('s_waitcnt vmcnt(0)')
    a('v_max_u32 v105, v%d, v%d', ES, ES + 1)
    for n in range(1, 15):
        a('v_max3_u32 v105, v105, v%d, v%d', ES + 2 * n, ES + 2 * n + 1)
    a('v_cmp_eq_u32 vcc, -1, v105')
    a('s_cbranch_vccnz L_hint2')
    for n in range(1, 15):
        chain(ES + 2 * n, ES + 2 * n - 2, ES + 2 * n)
    a('ds_write_b64 v%d, %s', vCHL, v(ES + 28, 2))
    a('s_mov_b32 exec_hi, -1')
    setpw(12, 104)
    a('s_branch L_coldone')
    a.label('L_wave23')
    if OPT['woe']:
        E = OPT['woe']
        srd(R0, sWO, 640 * 1280)
        a('s_mul_i32 s75, s%d, 160', sOG)
        a('s_and_b32 s83, s%d, 3', sI)
        a('s_add_u32 s83, s83, s%d', sXCD)
        waitpw(vA0PW, 5, 105, sleep=2)
        for it in range(E):
            a('s_add_u32 s78, s83, %d', it)
            a('s_and_b32 s78, s78, %d', E - 1)
            a('s_lshl1_add_u32 s78, s78, s%d', sW)
            a('s_sub_u32 s78, s78, 2')
            a('s_mul_i32 s79, s78, 40960')
            a('s_add_u32 s79, s79, s75')
            a('s_mul_i32 s78, s78, 5120')
            a('s_mov_b32 m0, s78')
            for i in range(5):
                if i == 4:
                    a('s_add_u32 m0, s78, 4096')
                a('s_waitcnt vmcnt(%d)', OPT['thre'])
                a(dma(vWOA + i, R0, 79, 1024 * (i & 3)))
    if OPT['gtouch']:
        a('s_cmp_eq_u32 s%d, 2', sW)
        a('s_cbranch_scc0 L_coldone')
        a('v_min_u32 v106, %d, v%d', 24 * 128, vF3)
        a('s_mul_i32 s78, s2, 3200')
        a('v_add_u32 v106, s78, v106')
        if OPT['gtouch'] == 1:
            waitpw(vA0PW, 5, 105, sleep=2)
        for p in (sCRE, sCIM, sWO):
            a('global_load_dword v109, v106, s[%d:%d]', p, p + 1)
    if OPT['tearly']:
        waitpw(vA0PW, 5, 105, sleep=2)
    for r in range(OPT['tearly']):
        for o in touch(r, vCT):
            a(o)
        if r + 1 < OPT['tearly']:
            a('s_waitcnt vmcnt(0)')
    a.label('L_coldone')
    a('s_lshl2_add_u32 s70, s%d, s%d', sRB, sW)
    a('s_mul_i32 s71, s70, %d', 2 * HBLK)
    a('s_mul_i32 s78, s%d, 1280', sG)
    a('s_add_u32 s71, s71, s78')
    a('s_add_u32 s71, s71, 0x%x', WS_H)
    a('s_lshl4_add_u32 s70, s70, s%d', sG)
    flagaddr(70, 70, F3, 78)
    waitpw(vP01, 12, 105, sleep=4)
    stamp('S', 'carry')
    for j in range(5):
        a('ds_read_b32 v%d, v%d offset:%d', 50 + j, vE, L_PL - L_EL + 64 * j)
        a('ds_read_b32 v%d, v%d offset:%d', 56 + j, vHH, 64 * j)
    a('s_waitcnt lgkmcnt(0)')
    for j in range(5):
        a('v_fmac_f32 v%d, v%d, v%d', 50 + j, vZ + 2 * j, 56 + j)
    for j in range(5):
        a('v_fmac_f32_dpp v%d, v%d, v%d %s', 50 + j, 56 + j, vZ + 2 * j + 1, ROR)
    for k in range(8):
        pr = [50 + j if k == 0 else 8 * j + k - 1 for j in range(5)]
        for j in range(5):
            a('v_fmac_f32 v%d, v%d, v%d', 8 * j + k, vPAR + 4 * j, pr[j])
        for j in range(5):
            a('v_fmac_f32_dpp v%d, v%d, v%d %s', 8 * j + k, pr[j], vPAR + 4 * j + 1, ROR)
    for j in range(5):
        for q in range(4):
            a('v_cvt_pk_bf16_f32 v%d, v%d, v%d', 64 + 4 * j + q, 8 * j + 2 * q, 8 * j + 2 * q + 1)
        a('ds_write_b128 v%d, %s offset:%d', vHW, v(64 + 4 * j, 4), 1024 * j)
        a('ds_read_b64_tr_b16 %s, v%d offset:%d', v(110 + 4 * j, 2), vHR0, 1024 * j)
        a('ds_read_b64_tr_b16 %s, v%d offset:%d', v(110 + 4 * j + 2, 2), vHR1, 1024 * j + 256)
    for j in range(5):
        a('s_waitcnt lgkmcnt(%d)', 12 - 3 * j)
        a('buffer_store_dwordx4 %s, v%d, s[%d:%d], s71 offen offset:%d sc1', v(110 + 4 * j, 4), vHS, RWS, RWS + 3, 256 * j)
    setpw(13, 104)

def s_b3():
    NS = 4
    acc, HF, CF = 0, 80, [208, 216]
    a('s_cmp_ge_u32 s%d, 2', sW)
    a('s_cselect_b32 s78, s%d, s%d', sCIM, sCRE)
    a('s_cselect_b32 s79, s%d, s%d', sCIM + 1, sCRE + 1)
    srd(R1, 78, 640 * 1280)
    srd(R6, sOUT, 2048 * 1280 * 4)
    a('s_mul_i32 s74, s%d, %d', sW, REGSZ)
    a('s_add_u32 s74, s74, %d', L_REG)
    a('s_and_b32 s78, s%d, 1', sW)
    a('s_mul_i32 s72, s%d, %d', sOG, 80 * 1280)
    a('s_mul_i32 s73, s78, 640')
    a('s_add_u32 s72, s72, s73')
    a('s_mul_i32 s79, s%d, %d', sW, 40 * 256)
    a('s_add_u32 s79, s79, 0x%x', WS_H)
    a('s_lshr_b32 s80, s%d, 1', sW)
    a('s_lshl1_add_u32 s78, s78, s80')
    for l in range(4):
        a('s_xor_b32 s80, s78, %d', l)
        a('s_lshl2_add_u32 s80, s%d, s80', sTB)
        a('s_mul_i32 s80, s80, %d', HBLK)
        a('s_add_u32 s%d, s80, s79', 84 + l)
    a('s_lshl_b32 s88, s%d, 12', sTB)
    a('s_add_u32 s88, s88, 0x%x', F3)
    a('s_lshl2_add_u32 s78, s%d, s78', sTB)
    a('s_mul_i32 s80, s78, %d', 16 * 1280)
    a('s_mul_i32 s81, s%d, 160', sOG)
    a('s_add_u32 s80, s80, s81')
    a('s_mul_i32 s82, s78, %d', 16 * 5120)
    a('s_lshl1_add_u32 s82, s81, s82')
    a('s_add_u32 s82, s82, 2560')
    a('s_add_u32 s90, s%d, s81', sDSK)
    a('s_addc_u32 s91, s%d, 0', sDSK + 1)
    a('s_lshl2_add_u32 s89, s%d, s%d', sOG, sW)
    a('s_mul_i32 s89, s89, 5120')
    a('s_mul_i32 s79, s%d, %d', sTB, 4 * HBLK)
    a('s_add_u32 s89, s89, s79')
    a('s_add_u32 s89, s89, 0x%x', WS_H)
    a('s_waitcnt vmcnt(0)')
    setflag(70, 40)
    stamp('S', 'hpub')
    if OPT['tlate']:
        for k in range(4):
            a('s_mov_b32 s%d, s%d', 4 + k, 84 + k)
        for r in range(OPT['tearly'], 6):
            for o in touch(r):
                a(o)
            a('s_waitcnt vmcnt(0)')
        for k in range(4):
            a('s_mov_b32 s%d, s%d', 84 + k, 4 + k)
    if OPT['newpre']:
        def cdma(n, pace=None):
            kp, j = divmod(n, 5)
            a('s_add_u32 m0, s74, %d', 2048 * (n % NS))
            a('s_add_u32 s76, s%d, %d', 4 + kp, 16 * 1280 * j)
            for k in range(2):
                if pace is not None:
                    a('s_waitcnt vmcnt(%d)', pace)
                a(dma(vCA + k, R1, 76, 1024 * k))
        def hload(l, ks):
            return 's_add_u32 s9, s%d, s%d\nbuffer_load_dwordx4 %s, v%d, s[%d:%d], s9 offen offset:%d sc1' % (
                84 + l, 12 + ks // 2, v(HF + 16 * (ks % 8) + 4 * l, 4), vHA, RWS, RWS + 3, 1024 * (ks & 1))
        srd(R0, sWO, 640 * 1280)
        rot5(83, 73)
        for kp in range(5):
            a('s_lshl_b32 s73, s83, 7')
            a('s_add_u32 s%d, s72, s73', 4 + kp)
            a('s_lshl_b32 s%d, s83, 11', 12 + kp)
            a('s_lshl2_add_u32 s%d, s83, s%d', 17 + kp, sW)
            a('s_add_u32 s83, s83, 1')
            a('s_cmp_eq_u32 s83, 5')
            a('s_cselect_b32 s83, 0, s83')
        NIT = 5 - OPT['woe'] // 2
        if OPT['woe']:
            a('s_cmp_ge_u32 s83, %d', NIT)
            a('s_cselect_b32 s73, %d, 0', NIT)
            a('s_sub_u32 s83, s83, s73')
            if NIT == 4:
                a('s_add_u32 s83, s%d, s%d', sI, sXCD)
                a('s_and_b32 s83, s83, 3')
            for it in range(NIT):
                a('s_lshl2_add_u32 s%d, s83, s%d', 17 + it, sW)
                a('s_add_u32 s%d, s%d, %d', 17 + it, 17 + it, 2 * OPT['woe'])
                a('s_add_u32 s83, s83, 1')
                a('s_cmp_eq_u32 s83, %d', NIT)
                a('s_cselect_b32 s83, 0, s83')
        a('s_mul_i32 s75, s%d, 160', sOG)
        waitpw(vSPW, 13, 41, sleep=2)
        for n in range(NS):
            cdma(n, OPT['thrw'] + 1)
        pl = 'buffer_load_dword v41, v%d, s[%d:%d], s88 offen sc1' % (vF3, RWS, RWS + 3)
        for it in range(NIT):
            if it == OPT['f3at']:
                a('s_mov_b32 exec_hi, 0')
                a(pl)
                a('s_mov_b32 exec_hi, -1')
            a('s_mul_i32 s79, s%d, 40960', 17 + it)
            a('s_add_u32 s79, s79, s75')
            a('s_mul_i32 s78, s%d, 5120', 17 + it)
            a('s_mov_b32 m0, s78')
            for i in range(5):
                if i == 4:
                    a('s_add_u32 m0, s78, 4096')
                a('s_waitcnt vmcnt(%d)', OPT['thrw'] + (1 if it == NIT - 1 and OPT['hin'] else 0))
                a(dma(vWOA + i, R0, 79, 1024 * (i & 3)))
                if it == NIT - 1 and OPT['hin'] and i < 4:
                    a(hload(i, 0))
                    a(hload(i, 1))
            if it == OPT['f3at']:
                a('s_mov_b32 exec_hi, 0')
                a('s_waitcnt vmcnt(5)')
                a('v_cmp_eq_u32 vcc, 0, v41')
                a('s_cbranch_vccz L_f3seen')
                a('s_mov_b64 exec, vcc')
                pollflags([pl], 41, sleep=4)
                a.label('L_f3seen')
                a('s_mov_b64 exec, -1')
                stamp('S', 'f3')
                a('buffer_load_dword v41, v%d, s[%d:%d], s89 offen sc1', vHT, RWS, RWS + 3)
        stamp('S', 'wo')
        a('v_mov_b32 v42, 14')
        for ks in range(0 if OPT['hin'] else 2):
            for l in range(4):
                a('s_waitcnt vmcnt(%d)', OPT['thrw'] + 1)
                a(hload(l, ks))
        if OPT['hin']:
            a('s_waitcnt vmcnt(0)')
        a('ds_write_b32 v%d, v42', vPW)
        a('s_setprio %d', OPT['b3prio'])
    else:
        stamp('S', 'touch')
        s_wo()
        waitpw(vSPW, 13, 40, sleep=2)
        def cdma(n):
            kp, j = divmod(n, 5)
            a('s_add_u32 m0, s74, %d', 2048 * (n % NS))
            a('s_add_u32 s76, s%d, %d', 4 + kp, 16 * 1280 * j)
            a(dma(vCA, R1, 76, 0))
            a(dma(vCA + 1, R1, 76, 1024))
        for n in range(NS):
            cdma(n)
            a('s_waitcnt vmcnt(%d)', 0 if n == NS - 1 else 4)
        setpw(14, 40)
        stamp('S', 'wo')
        a('s_cmp_eq_u32 s%d, 2', sW)
        a('s_cbranch_scc0 L_f3wait')
        a('s_mov_b32 exec_hi, 0')
        pollflags(['buffer_load_dword v40, v%d, s[%d:%d], s88 offen sc1' % (vF3, RWS, RWS + 3)], 40, sleep=4)
        setpw(15, 40)
        a.label('L_f3wait')
        waitpw(vS2PW, 15, 40, sleep=4)
        stamp('S', 'f3')
        a('s_setprio %d', OPT['b3prio'])
        def hload(l, ks):
            return 's_add_u32 s9, s%d, s%d\nbuffer_load_dwordx4 %s, v%d, s[%d:%d], s9 offen offset:%d sc1' % (
                84 + l, 12 + ks // 2, v(HF + 16 * (ks % 8) + 4 * l, 4), vHA, RWS, RWS + 3, 1024 * (ks & 1))
        a('buffer_load_dword v40, v%d, s[%d:%d], s89 offen sc1', vHT, RWS, RWS + 3)
        for ks in range(2):
            if ks:
                a('s_waitcnt vmcnt(0)')
            for l in range(4):
                a(hload(l, ks))
    def creads(n):
        return ['ds_read_b128 %s, v%d offset:%d' % (v(CF[n & 1] + 4 * k, 4), vCR + k, 2048 * (n % NS)) for k in range(2)]
    q = []
    def waitfor(tag):
        idx = max(i for i, x in enumerate(q) if x == tag)
        n = len(q) - 1 - idx
        del q[:idx + 1]
        return n
    for r in creads(0):
        a(r)
    a('s_waitcnt vmcnt(0) lgkmcnt(0)')
    stamp('S', 'b3go')
    cdma(NS)
    q += [NS, NS]
    vX, vD = HF + 64, HF + 74
    hq = [(l, ks) for ks in range(2, 10) for l in range(4)]
    STOP = OPT['b3stop']
    frag = {0: CF[0]}
    free = [216, 224, 232, 240]
    def creads(n):
        return ['ds_read_b128 %s, v%d offset:%d' % (v(frag[n] + 4 * k, 4), vCR + k, 2048 * (n % NS)) for k in range(2)]
    def fetch():
        n = len(frag)
        frag[n] = free.pop(0)
        if n in q:
            a('s_waitcnt vmcnt(%d)', waitfor(n))
        for r in creads(n):
            a(r)
        return n
    def refill(n):
        a('s_waitcnt lgkmcnt(0)')
        if n + NS < 25:
            cdma(n + NS)
            q.extend([n + NS, n + NS])
    t0, t1, t2 = 175, 249, vAP4
    addr = ['v_lshrrev_b32 v%d, 2, v%d' % (t0, vLANE),
            'v_and_b32 v%d, 3, v%d' % (t1, vLANE),
            'v_lshlrev_b32 v%d, 3, v%d' % (vDO, t1),
            'v_mul_u32_u24 v%d, 1280, v%d' % (t2, t0),
            'v_add_u32 v%d, v%d, v%d' % (vXO, t2, vDO),
            'v_lshlrev_b32 v%d, 4, v%d' % (t1, t1),
            'v_lshl_add_u32 v%d, v%d, 2, v%d' % (vOA, t2, t1),
            'v_mul_u32_u24 v%d, 336, v%d' % (t2, t0),
            'v_add3_u32 v%d, v%d, v%d, s92' % (vRA, t2, t1),
            'v_add3_u32 v%d, v%d, v%d, s93' % (vRA + 1, t2, t1),
            'v_lshlrev_b32 v%d, 4, v%d' % (t1, t1),
            'v_lshl_add_u32 v%d, v%d, 2, v%d' % (t1, vLANE, t1),
            'v_add_u32 v%d, %d, v%d' % (vAP4, L_PW, t1),
            'v_add_u32 v%d, s74, v%d' % (vR1W, vHA),
            'v_add_u32 v%d, s92, v%d' % (vR1R, vHA),
            'v_and_b32 v%d, 15, v%d' % (t0, vLANE),
            'v_mul_u32_u24 v%d, 336, v%d' % (t0, t0),
            'v_and_b32 v%d, 48, v%d' % (t1, vLANE),
            'v_add3_u32 v%d, v%d, v%d, s92' % (vR2W, t0, t1),
            'v_xor_b32 v%d, 256, v%d' % (vPW1, vPW),
            'v_xor_b32 v%d, 512, v%d' % (vPW2, vPW)]
    assert 10 <= STOP <= 15
    for n in range(25):
        kp, j = divmod(n, 5)
        if n == 10:
            free += [HF + 32 + 8 * k for k in range(4)]
        if n == STOP:
            while hq:
                l, ks = hq.pop(0)
                a(hload(l, ks))
                q.append('h%d' % (ks // 2))
            while len(frag) <= 20:
                refill(fetch())
            a('s_setprio 1')
            a('v_and_b32 v%d, 1, v%d', vAM, vLANE)
            a('v_lshlrev_b32 v%d, 9, v%d', vAM, vAM)
            a('v_xor_b32 v%d, v%d, v%d', vAM, vAM, vPW)
            a('v_subrev_u32 v%d, 1024, v%d', vAM, vAM)
            a('s_waitcnt vmcnt(0)')
            del q[:]
            stamp('S', 'b3stop')
            waitpw(vAM, OPT['b3res'], 249, sleep=OPT['rsleep'])
            stamp('S', 'b3res')
        want = n + 2 if n >= STOP else max(n + 2, 21 - OPT['ahead'] * (STOP - 1 - n))
        f1 = fetch() if (len(frag) < min(25, want) and free) else None
        if j == 0 and 'h%d' % kp in q:
            a('s_waitcnt vmcnt(%d)', waitfor('h%d' % kp))
        if OPT['fine'] >= 2 and n in (3, 6, 9):
            stamp('S', 'u%d' % n)
        extra = []
        for _ in range(OPT['hrate']):
            if hq and (hq[0][1] < 8 or n >= 5):
                l, ks = hq.pop(0)
                extra.append((hload(l, ks), 'h%d' % (ks // 2)))
        if 16 <= n < 21:
            i = n - 16
            extra += [('global_load_dwordx2 %s, v%d, s[90:91] offset:%d' % (v(vD + 2 * i, 2), vDO, 32 * i), 'x'),
                      ('buffer_load_dwordx2 %s, v%d, s[%d:%d], s80 offen offset:%d' % (v(vX + 2 * i, 2), vXO, R3, R3 + 3, 32 * i), 'x')]
        cnt = 0
        f2 = None
        for k in range(2):
            ks = 2 * kp + k
            for l in range(4):
                d = acc + 20 * l + 4 * j
                a('v_mfma_f32_16x16x32_bf16 %s, %s, %s, %s', v(d, 4), v(frag[n] + 4 * k, 4), v(HF + 16 * (ks % 8) + 4 * l, 4),
                  '0' if ks == 0 else v(d, 4))
                cnt += 1
                if cnt in (1, 2, 5, 6) and extra:
                    o, tg = extra.pop(0)
                    a(o)
                    q.append(tg)
                elif n >= 15 and addr:
                    a(addr.pop(0))
                if cnt == (4 if n < STOP else 6) and f1 is not None:
                    refill(f1)
                    if len(frag) < min(21, want) and free:
                        f2 = fetch()
                if cnt == 8 and f2 is not None:
                    refill(f2)
        assert not extra
        free.append(frag[n])
    assert not addr
    assert not hq
    stamp('S', 'b3gemm')
    T = 112
    if OPT['b3res'] < 7:
        waitpw(vAM, 7, T, sleep=2)
    else:
        a('s_nop 3')
    for qd in range(10):
        a('ds_write_b128 v%d, %s offset:%d', vR1W, v(acc + 40 + 4 * qd, 4), 1024 * qd)
    setpw(17, T + 1)
    a('s_waitcnt vmcnt(0)')
    U = 180
    def skip(i):
        for hf in range(2):
            a('v_lshlrev_b32 v%d, 16, v%d', T + 4, vX + 2 * i + hf)
            a('v_lshlrev_b32 v%d, 16, v%d', T + 5, vD + 2 * i + hf)
            a('v_and_b32 v%d, 0xffff0000, v%d', T + 6, vX + 2 * i + hf)
            a('v_and_b32 v%d, 0xffff0000, v%d', T + 7, vD + 2 * i + hf)
            a('v_mul_f32 v%d, v%d, v%d', U + 4 * i + 2 * hf, T + 4, T + 5)
            a('v_mul_f32 v%d, v%d, v%d', U + 4 * i + 2 * hf + 1, T + 6, T + 7)
    skip(0)
    skip(1)
    waitpw(vPW1, 17, T + 1)
    for qd in (5, 6, 7, 8, 9, 0, 1, 2, 3, 4):
        a('ds_read_b128 %s, v%d offset:%d', v(acc + 40 + 4 * qd, 4), vR1R, 1024 * qd)
    skip(2)
    a('s_waitcnt lgkmcnt(0)')
    for qd in (5, 6, 7, 8, 9, 0, 1, 2, 3, 4):
        l, j = divmod(qd, 5)
        for e in range(4):
            a('v_add_f32 v%d, v%d, v%d', acc + 4 * qd + e, acc + 4 * qd + e, acc + 40 + 4 * qd + e)
        a('ds_write_b128 v%d, %s offset:%d', vR2W, v(acc + 4 * qd, 4), 16 * 336 * l + 64 * j)
        if qd == 9:
            setpw(18, T + 1)
    for i in range(5):
        a('ds_read_b128 %s, v%d offset:%d', v(acc + 40 + 8 * i, 4), vRA, 64 * i)
    skip(3)
    skip(4)
    waitpw(vPW2, 18, T + 1)
    for i in range(5):
        a('ds_read_b128 %s, v%d offset:%d', v(acc + 44 + 8 * i, 4), vRA + 1, 64 * i)
    for i in range(5):
        for e in range(4):
            a('v_add_f32 v%d, v%d, v%d', U + 4 * i + e, U + 4 * i + e, acc + 40 + 8 * i + e)
    for i in range(5):
        a('s_waitcnt lgkmcnt(%d)', 4 - i)
        for e in range(4):
            a('v_add_f32 v%d, v%d, v%d', U + 4 * i + e, U + 4 * i + e, acc + 44 + 8 * i + e)
    stamp('S', 'yrdy')
    if OPT['yhold']:
        waitpw(vAP4, 9, T + 1, sleep=OPT['ysleep'])
    for i in range(5):
        a('buffer_store_dwordx4 %s, v%d, s[%d:%d], s82 offen offset:%d%s', v(U + 4 * i, 4), vOA, R6, R6 + 3, 64 * i, YSC)
    finish('S')

prologue()
s_setup()
s_qloader()
if OPT['sexit'] == 1:
    setpw(99, 40)
    finish('S')
s_b1()
if OPT['sexit'] == 2:
    setpw(99, 40)
    finish('S')
s_scan()
s_b3()
a.label('L_exit')
a('s_endpgm')
flush_cold()
a_setup()
if not OPT['alate']:
    a_att_setup()
if OPT['alate'] != 1:
    a_b1_setup()
a_qphase()
a_handoff()
a_attention()
a_outproj()
flush_cold()
a.label('L_codeend')

errs = check(a.lines)
for e_ in errs:
    print('HAZARD', e_, file=sys.stderr)

head = open('cdna_kernels/%s.s.ref' % NAME).read().split('; @launch')[0]
out = head + '; @launch grid=(256,1,1) block=(512,1,1) lds=%d\n' % LDS_BYTES
out += '''.amdgcn_target "amdgcn-amd-amdhsa--gfx950"
.text
.globl %s_kernel
.p2align 8
.type %s_kernel,@function
%s_kernel:
''' % (NAME, NAME, NAME)
out += a.text()
out += '''.section .rodata,"a"
.p2align 6
.amdhsa_kernel %s_kernel
  .amdhsa_next_free_vgpr 256
  .amdhsa_next_free_sgpr 102
  .amdhsa_accum_offset 256
  .amdhsa_group_segment_fixed_size 0
  .amdhsa_kernarg_size 120
  .amdhsa_user_sgpr_count 2
  .amdhsa_user_sgpr_kernarg_segment_ptr 1
  .amdhsa_system_sgpr_workgroup_id_x 1
.end_amdhsa_kernel
''' % NAME
open(sys.argv[1], 'w').write(out)
if DIAG:
    import json
    json.dump(nstamp, open(sys.argv[1] + '.stamps.json', 'w'))
import subprocess
r_ = subprocess.run(['clang', '-x', 'assembler', '-target', 'amdgcn-amd-amdhsa', '-mcpu=gfx950', '-c', sys.argv[1], '-o', 'chk.o'], capture_output=True, text=True)
if r_.returncode:
    print(r_.stderr[:2000])
    sys.exit(1)
if errs:
    sys.exit(1)
```

```python
import sys, math, struct
from asmlib import Asm, v, s, check

NAME = 'concat_heads__mha_block__ssm_conv_s5__prompt'
OPT = dict(diag=0, b3start=12, force_fb=0, psleep=0, fine=0, cpre=1, stag=10, b1dep=2, rot=1, thr=4, hold=3, codepre=2, psleep4=0, padto=0, outsc1=1, gate4=-1, early0=1, st10=2, b1prio=0, probe='', probewg=-1, sexit=0, b3prio=0, nocdma=0, mallpre=0, b3early=1, pretouch=-1, pace=0, pause=1, wolate=1, thrw=2, kvsplit=5, tstart=0, k2split=0, gate1='x', tlate=0, spread=1, pollat=17, tearly=0, b3stop=12, b3res=8, hrate=3, yhold=1, rot5=1, wopack=0, olead=20, allpoll=1, ysc=1, clrwide=0, nodup=1, onewait=0, vzero=1, lalign=6, lpad=0, epoll=0, npre=2, tprio=0, pgate=1, p3dyn=0, flip=1, newpre=1, f3at=2, gtouch=0, pkmerge=1, kvplain=0, acq=0, stagb=4, alate=2, slate=0, plate=1, seq='', unroll=2, lean=1, yearly=0, ysleep=2, cmap=1, l2pre=2, xpre=0, hack16=0, fastpro=1, gsleep=0, rsleep=2, xtail=1, ctail=0, hin=1, ahead=9, woe=0, thre=2, tlb=0, qsc=0, otag=0, amark=0, smark=0)
for a_ in sys.argv[2:]:
    k_, v_ = a_.split('=')
    OPT[k_] = v_ if k_ in ('probe', 'gate1', 'seq') else int(v_)
DIAG = OPT['diag']
OSC = ['', ' sc1', ' nt', ' sc1 nt'][OPT['outsc1']]
YSC = ['', ' sc1', ' nt', ' sc1 nt'][OPT['ysc']]

def f2u(x):
    return struct.unpack('<I', struct.pack('<f', x))[0]

BLK, VOFF, VROW = 247808, 164864, 10368
WS_H, HBLK = 0x800000, 40960
WS_O, OBLK = 0xD00000, 20480
WS_E = 0xF80000
WS_F = 0xFA0000
F1, F3, F4 = WS_F, WS_F + 0x8000, WS_F + 0x28000
WS_WP = 0x1000000
WS_END = WS_WP + 8 * 102400
WS_DIAG = 0x1100000
OOB = 0x7F000000
L_HT, L_H, L_EL, L_PL = 65536, 86016, 86528, 91648
L_PAR, L_Z = 131072, 132096
L_WO = 0
L_REG, REGSZ = 102400, 14848
L_PW = 161792
LDS_BYTES = 163840
sAX, sWQ, sWO, sBX, sLRE, sLIM, sBRE, sBIM, sCRE, sCIM, sLDT, sDSK, sOUT, sDBG, sWS = range(4, 34, 2)
sW, sI, sXCD = 34, 35, 3
R0, R1, RWS, R3, R4, R5, R6 = 36, 40, 44, 48, 52, 56, 60
sRB, sCG, sHD, sQB, sTB, sOG = 64, 65, 66, 67, 68, 69
sG = 0
sSPIN = 96
sHI = 94
vLANE, vPW, vTS = 254, 253, 255
SPIN_MAX = 1 << 19

a = Asm()
nstamp = {}

def stamp(role, name):
    if OPT['probe'] == role + name:
        a('s_memrealtime s[98:99]')
        a('s_waitcnt lgkmcnt(0)')
        a('s_mov_b32 s97, s98')
    if not DIAG:
        return
    l = nstamp.setdefault(role, [])
    if DIAG == 2:
        l.append(name)
        if role + name == 'Aattpro':
            a('s_memrealtime s[98:99]')
            a('s_waitcnt lgkmcnt(0)')
            a('v_writelane_b32 v%d, s98, 29', vTS)
        return
    idx = len(l)
    l.append(name)
    a('s_memtime s[98:99]')
    a('s_memrealtime s[100:101]')
    a('s_waitcnt lgkmcnt(0)')
    a('v_writelane_b32 v%d, s98, %d', vTS, idx)
    a('v_writelane_b32 v%d, s100, %d', vTS, 32 + idx)

def srd(r, base, nbytes):
    a('s_mov_b32 s%d, s%d', r, base)
    a('s_mov_b32 s%d, s%d', r + 1, base + 1)
    if isinstance(nbytes, int):
        a('s_mov_b32 s%d, 0x%x', r + 2, nbytes)
    else:
        a('s_mov_b32 s%d, %s', r + 2, nbytes)
    a('s_mov_b32 s%d, 0x20000', r + 3)

def setpw(val, tmp):
    a('v_mov_b32 v%d, %d', tmp, val)
    a('ds_write_b32 v%d, v%d', vPW, tmp)

COLD = []

def retry(label, back, sleep, pre=()):
    COLD.append(label + ':')
    COLD.extend(pre)
    if sleep:
        COLD.append('s_sleep %d' % sleep)
    COLD.append('s_sub_u32 s%d, s%d, 1' % (sSPIN, sSPIN))
    COLD.append('s_cbranch_scc0 %s' % back)
    COLD.append('s_endpgm')

def flush_cold():
    a.lines.extend(COLD)
    del COLD[:]

def waitpw(vaddr, val, tmp, sleep=0, extra=()):
    L = a.newlabel('pw')
    D = a.newlabel('pwr')
    a.label(L)
    a('ds_read_b32 v%d, v%d', tmp, vaddr)
    for e in extra:
        a(e)
    if not sleep:
        a('s_sub_u32 s%d, s%d, 1', sSPIN, sSPIN)
        a('s_cbranch_scc1 L_exit')
    a('s_waitcnt lgkmcnt(%d)', len(extra))
    a('v_cmp_gt_u32 vcc, %d, v%d', val, tmp)
    if not sleep:
        a('s_cbranch_vccnz %s', L)
        return
    a('s_cbranch_vccnz %s', D)
    retry(D, L, sleep)

def pollflags(loads, tmp, sleep=1):
    L = a.newlabel('pf')
    D = a.newlabel('pfr')
    a.label(L)
    for l in loads:
        a(l)
    if not sleep:
        a('s_sub_u32 s%d, s%d, 1', sSPIN, sSPIN)
        a('s_cbranch_scc1 L_exit')
    a('s_waitcnt vmcnt(0)')
    for i in range(1, len(loads)):
        a('v_and_b32 v%d, v%d, v%d', tmp, tmp, tmp + i)
    a('v_cmp_eq_u32 vcc, 0, v%d', tmp)
    if not sleep:
        a('s_and_b64 exec, exec, vcc')
        a('s_cbranch_scc1 %s', L)
    else:
        a('s_cbranch_vccnz %s', D)
        retry(D, L, sleep, ['s_mov_b64 exec, vcc'])
    a('s_mov_b64 exec, -1')

def dbgload(va, vd):
    return 'global_load_dword v%d, v%d, s[%d:%d] sc1' % (vd, va, sDBG, sDBG + 1)

def flagaddr(dst, idx, base, t):
    a('s_lshl_b32 s%d, s%d, 7', dst, idx)
    a('s_add_u32 s%d, s%d, 0x%x', dst, dst, base)

def setflag(soff, tmp):
    a('v_mov_b32 v%d, 1', tmp)
    a('s_mov_b64 exec, 1')
    a('buffer_store_dword v%d, off, s[%d:%d], s%d sc1', tmp, RWS, RWS + 3, soff)
    a('s_mov_b64 exec, -1')

def tau(dst, src, t):
    a('v_and_b32 v%d, 0x13, v%d', dst, src)
    a('v_and_b32 v%d, 4, v%d', t, src)
    a('v_lshl_or_b32 v%d, v%d, 1, v%d', dst, t, dst)
    a('v_and_b32 v%d, 8, v%d', t, src)
    a('v_lshrrev_b32 v%d, 1, v%d', t, t)
    a('v_or_b32 v%d, v%d, v%d', dst, t, dst)

def finish(role):
    if OPT['probe'][:1] == role:
        if OPT['probe'][1:] == 'drained':
            a('s_waitcnt vmcnt(0)')
            stamp(role, 'drained')
        a('s_sub_u32 s97, s97, s100')
        a('s_mul_i32 s97, s97, 10')
        a('s_add_u32 s97, s97, 10000')
        if OPT['probewg'] >= 0:
            a('s_and_b32 s98, s2, 31')
            a('s_cmp_eq_u32 s98, %d', OPT['probewg'])
            a('s_cselect_b32 s97, s97, 0')
        L = a.newlabel('pad')
        a.label(L)
        a('s_sleep 4')
        a('s_memrealtime s[98:99]')
        a('s_waitcnt lgkmcnt(0)')
        a('s_sub_u32 s98, s98, s100')
        a('s_cmp_lt_u32 s98, s97')
        a('s_cbranch_scc1 %s', L)
    if OPT['padto']:
        L = a.newlabel('pad')
        a.label(L)
        a('s_sleep 4')
        a('s_memrealtime s[98:99]')
        a('s_waitcnt lgkmcnt(0)')
        a('s_sub_u32 s98, s98, s100')
        a('s_cmp_lt_u32 s98, %d', OPT['padto'])
        a('s_cbranch_scc1 %s', L)
    if DIAG:
        stamp(role, 'end')
        a('s_waitcnt vmcnt(0)')
        stamp(role, 'drained')
        a('s_memrealtime s[98:99]')
        a('s_waitcnt lgkmcnt(0)')
        a('v_writelane_b32 v%d, s98, 31', vTS)
        a('s_lshl_b32 s70, s2, 3')
        a('s_add_u32 s70, s70, s%d', sW)
        if role == 'S':
            a('s_add_u32 s70, s70, 4')
        a('s_lshl_b32 s70, s70, 8')
        a('s_add_u32 s70, s70, 0x%x', WS_DIAG)
        a('v_lshlrev_b32 v0, 2, v%d', vLANE)
        a('buffer_store_dword v%d, v0, s[%d:%d], s70 offen', vTS, RWS, RWS + 3)
    a('s_endpgm')

def prologue():
    a('s_cmp_ge_u32 s2, 256')
    a('s_cbranch_scc0 L_go')
    a('s_endpgm')
    a.label('L_go')
    if OPT['padto'] or DIAG or OPT['probe']:
        a('s_memrealtime s[100:101]')
    a('s_load_dwordx16 s[4:19], s[0:1], 0')
    a('s_load_dwordx8 s[20:27], s[0:1], 64')
    a('s_load_dwordx4 s[28:31], s[0:1], 96')
    a('s_load_dwordx2 s[32:33], s[0:1], 112')
    a('s_lshr_b32 s%d, s2, 3', sI)
    if OPT['codepre'] == 2:
        a.c('pull the code into L2: every half wave of an XCD touches one line')
        a('s_getpc_b64 s[76:77]')
        a('v_lshrrev_b32 v1, 5, v0')
        a('v_lshl_add_u32 v1, s%d, 4, v1', sI)
        a('v_min_u32 v1, (L_codeend - L_go) / 128 - 1, v1')
        a('v_lshlrev_b32 v1, 7, v1')
        a('global_load_dword v110, v1, s[76:77]')
    a('v_lshrrev_b32 v1, 6, v0')
    a('v_and_b32 v%d, 63, v0', vLANE)
    a('v_readfirstlane_b32 s%d, v1', sW)
    a('s_and_b32 s%d, s2, 7', sXCD)
    a('s_and_b32 s70, s%d, 3', sI)
    a('s_lshr_b32 s%d, s%d, 2', sOG, sI)
    a('s_lshr_b32 s71, s%d, 1', sXCD)
    a('s_lshl2_add_u32 s%d, s71, s70', sRB)
    a('s_and_b32 s71, s%d, 1', sXCD)
    a('s_lshl3_add_u32 s%d, s71, s%d', sG, sOG)
    a('s_cmp_ge_u32 s%d, %d', sI, 30 if OPT['cmap'] else 99)
    a('s_cselect_b32 s71, 8, 0')
    a('s_xor_b32 s%d, s%d, s71', sCG, sG)
    if DIAG:
        prologue2()
    a('s_cmp_ge_u32 s%d, 4', sW)
    a('s_cbranch_scc0 L_roleA')

def prologue2():
    a('v_lshlrev_b32 v%d, 2, v0', vPW)
    a('v_add_u32 v%d, %d, v%d', vPW, L_PW, vPW)
    a('v_mov_b32 v0, 0')
    a('ds_write_b32 v%d, v0', vPW)
    a('s_lshr_b32 s71, s%d, 3', sI)
    a('s_lshl2_add_u32 s%d, s%d, s71', sHD, sXCD)
    a('s_and_b32 s%d, s%d, 7', sQB, sI)
    a('s_and_b32 s70, s%d, 3', sI)
    a('s_lshl2_add_u32 s%d, s%d, s70', sTB, sXCD)
    a('s_mov_b32 s%d, 0x%x', sSPIN, SPIN_MAX)
    a('s_mov_b32 s%d, 0', sHI)
    a('s_mov_b32 s%d, -1', sHI + 1)

def ws_setup():
    srd(RWS, sWS, WS_END if not DIAG else WS_DIAG + 0x100000)
    if DIAG:
        a('v_mov_b32 v%d, 0', vTS)
        a('v_writelane_b32 v%d, s100, 30', vTS)

def stagger(k, t, add, flp, mode):
    if mode == 4:
        a('s_and_b32 s%d, s%d, 3', k, sI)
        if flp:
            a('s_xor_b32 s%d, s%d, 1', k, k)
        a('s_mul_i32 s%d, s%d, 5', k, k)
        a('s_lshr_b32 s%d, s%d, 1', k, k)
        a('s_mul_i32 s%d, s%d, 5', t, sOG)
        a('s_lshr_b32 s%d, s%d, 2', t, t)
        a('s_add_u32 s%d, s%d, s%d', k, k, t)
    elif mode in (2, 3):
        a('s_add_u32 s%d, s%d, s%d', k, sI, sOG)
        if flp:
            a('s_xor_b32 s%d, s%d, 1', k, k)
        a('s_and_b32 s%d, s%d, %d', k, k, 1 if mode == 2 else 3)
        a('s_mul_i32 s%d, s%d, 5', k, k)
        if mode == 3:
            a('s_lshr_b32 s%d, s%d, 1', k, k)
    else:
        a('s_mov_b32 s%d, 0', k)
    if mode == 0:
        a('s_mov_b32 s%d, %d', k, add)
        return
    a('s_add_u32 s%d, s%d, %d', t, sXCD, 1 + 2 * add)
    a('s_lshr_b32 s%d, s%d, 1', t, t)
    if mode == 1:
        a('s_add_u32 s%d, s%d, %d', t, sXCD, add)
    a('s_add_u32 s%d, s%d, s%d', k, k, t)
    for _ in range(2 if add else 1):
        a('s_cmp_ge_u32 s%d, 10', k)
        a('s_cselect_b32 s%d, 10, 0', t)
        a('s_sub_u32 s%d, s%d, s%d', k, k, t)

def b1_sources(rx, rb, vx, vb, sm, sb, t, j0=2):
    srd(rx, sBX, 2048 * 1280)
    a('s_cmp_ge_u32 s%d, 2', sW)
    a('s_cselect_b32 s%d, s%d, s%d', t, sBIM, sBRE)
    a('s_cselect_b32 s%d, s%d, s%d', t + 1, sBIM + 1, sBRE + 1)
    srd(rb, t, 640 * 1280)
    a('v_lshrrev_b32 v1, 3, v%d', vLANE)
    a('v_and_b32 v2, 7, v%d', vLANE)
    a('v_lshrrev_b32 v3, 4, v%d', vLANE)
    a('v_xor_b32 v4, v2, v3')
    a('v_and_b32 v5, 3, v1')
    a('v_lshrrev_b32 v6, 2, v1')
    a('v_lshl_add_u32 v5, v6, 3, v5')
    a('v_mul_u32_u24 v5, 1280, v5')
    a('v_lshl_add_u32 v%d, v4, 4, v5', vx)
    a('v_xor_b32 v6, 64, v%d', vx)
    a('v_add_u32 v%d, %d, v6', vx + 1, 16 * 1280 - 1024)
    a('v_add_u32 v%d, %d, v%d', vx + 2, 4 * 1280 - 2048, vx)
    a('v_add_u32 v%d, %d, v6', vx + 3, 20 * 1280 - 3072)
    a('s_lshr_b32 s%d, s%d, 1', t, sW)
    a('s_lshl_b32 s%d, s%d, 6', t + 1, t)
    a('v_mul_u32_u24 v5, 1280, v1')
    a('v_lshl_add_u32 v5, v4, 4, v5')
    a('v_xor_b32 v%d, s%d, v5', vb, t + 1)
    for i in range(1, 3):
        a('v_add_u32 v%d, %d, v%d', vb + i, (10240 - 1024) * i, vb)
    a('s_and_b32 s%d, s%d, 1', t + 1, sW)
    a('s_mul_i32 s%d, s%d, 5120', sm, t)
    a('s_mul_i32 s%d, s%d, %d', sb, t + 1, 1024 * j0)
    a('s_add_u32 s%d, s%d, s%d', sm, sm, sb)
    a('s_mul_i32 s%d, s%d, %d', sb, sG, 40 * 1280)
    a('s_mul_i32 s%d, s%d, %d', t + 1, t + 1, 8 * 1280 * j0)
    a('s_add_u32 s%d, s%d, s%d', sb, sb, t + 1)

def dma(voff, r, soff, imm):
    return 'buffer_load_dwordx4 v%d, s[%d:%d], s%d offen offset:%d lds' % (voff, r, r + 3, soff, imm)

def a_b1stage(t):
    slot = (t % 4) * 32768
    a('s_add_u32 m0, s6, %d', slot)
    a('s_lshl_b32 s9, s8, 7')
    a('s_add_u32 s12, s4, s9')
    for i in range(4):
        a(dma(112 + i, R5, 12, 1024 * i))
    a('s_add_u32 m0, s7, %d', slot + 16384)
    a('s_add_u32 s12, s5, s9')
    L = a.newlabel('b3rd')
    for i in range(3):
        if i == 2 and OPT['nodup']:
            a('s_cmp_eq_u32 s%d, 1', sCW)
            a('s_cbranch_scc1 %s', L)
        a(dma(116 + i, R6, 12, 1024 * i))
    a.label(L)
    a('s_add_u32 s8, s8, 1')
    a('s_cmp_eq_u32 s8, 10')
    a('s_cselect_b32 s8, 0, s8')

sTW, sCW = 72, 73
vXA, vWA = 96, 104
vF1A = 252
vAPW = 249

def a_setup():
    a.label('L_roleA')
    if not DIAG:
        prologue2()
    a('s_waitcnt lgkmcnt(0)')
    ws_setup()
    stamp('A', 'start')
    a('s_lshr_b32 s%d, s%d, 1', sTW, sW)
    a('s_and_b32 s%d, s%d, 1', sCW, sW)
    a('s_lshl1_add_u32 s75, s%d, s%d', sRB, sTW)
    a('s_mul_i32 s74, s75, %d', BLK)
    if OPT['amark'] == 1:
        a_mark()
    a.c('column group 15 has no GEMM tile: these workgroups clear the flags and write the constant blocks')
    a('s_cmp_eq_u32 s%d, 15', sCG)
    a('s_cbranch_scc0 L_noconst')
    a('s_lshl2_add_u32 s77, s%d, s%d', sRB, sW)
    if OPT['clrwide']:
        a('v_lshlrev_b32 v2, 4, v%d', vLANE)
        a('v_min_u32 v3, 496, v2')
        for i in range(4):
            a('v_mov_b32 v%d, 0', 4 + i)
        a('s_mul_i32 s76, s77, 4608')
        a('s_add_u32 s76, s76, 0x%x', WS_F)
        for i in range(4):
            a('buffer_store_dwordx4 v[4:7], v2, s[%d:%d], s76 offen offset:%d sc1', RWS, RWS + 3, 1024 * i)
        a('s_add_u32 s76, s76, 4096')
        a('buffer_store_dwordx4 v[4:7], v3, s[%d:%d], s76 offen sc1', RWS, RWS + 3)
    else:
        a('v_min_u32 v1, 35, v%d', vLANE)
        a('v_lshlrev_b32 v1, 7, v1')
        a('v_mov_b32 v4, 0')
        a('s_mul_i32 s76, s77, 4608')
        a('s_add_u32 s76, s76, 0x%x', WS_F)
        a('buffer_store_dword v4, v1, s[%d:%d], s76 offen sc1', RWS, RWS + 3)
        a('v_lshlrev_b32 v2, 4, v%d', vLANE)
    for i in range(4):
        a('v_mov_b32 v%d, -1', 20 + i)
    a('s_lshl_b32 s76, s77, 11')
    a('s_add_u32 s76, s76, 0x%x', WS_E)
    for i in range(2):
        a('buffer_store_dwordx4 v[20:23], v2, s[%d:%d], s76 offen offset:%d sc1', RWS, RWS + 3, 1024 * i)
    a('v_lshrrev_b32 v1, 3, v%d', vLANE)
    a('v_mul_u32_u24 v1, %d, v1', VROW - 128)
    a('v_add_u32 v1, %d, v1', VOFF + 640 * 16 - 160 * 1024)
    a('v_mul_lo_u32 v1, v1, s%d', sCW)
    a('v_add_u32 v1, v1, v2')
    a('s_mul_i32 s76, s%d, 0x3f803f80', sCW)
    a('v_mov_b32 v8, 0x3f803f80')
    a('v_mov_b32 v9, s76')
    a('v_mov_b32 v10, v8')
    a('v_mov_b32 v11, s76')
    a('s_add_u32 s76, s74, %d', 160 * 1024)
    a('buffer_store_dwordx4 v[8:11], v1, s[%d:%d], s76 offen sc1', RWS, RWS + 3)
    a.label('L_noconst')
    if OPT['codepre'] == 1:
        a.c('pull the code into L2: each wave of an XCD touches a few lines')
        a('s_getpc_b64 s[76:77]')
        a.label('L_pc')
        a('s_sub_u32 s76, s76, L_pc - L_go')
        a('s_subb_u32 s77, s77, 0')
        a('s_lshl2_add_u32 s78, s%d, s%d', sI, sW)
        a('s_mul_i32 s78, s78, 3')
        a('v_min_u32 v1, 2, v%d', vLANE)
        a('v_add_u32 v1, s78, v1')
        a('v_min_u32 v1, (L_codeend - L_go) / 128 - 1, v1')
        a('v_lshlrev_b32 v1, 7, v1')
        a('global_load_dword v110, v1, s[76:77]')
    a.c('LDS fragment addresses for the QKV GEMM')
    a('v_and_b32 v1, 31, v%d', vLANE)
    a('v_lshrrev_b32 v2, 5, v%d', vLANE)
    a('v_bfe_u32 v3, v1, 1, 3')
    a('v_xor_b32 v3, v3, v2')
    a('v_lshlrev_b32 v3, 4, v3')
    a('v_lshl_add_u32 v3, v1, 7, v3')
    a('s_lshl_b32 s76, s%d, 13', sTW)
    a('v_add_u32 v3, s76, v3')
    for ks in range(4):
        a('v_xor_b32 v%d, %d, v3', vXA + ks, ks << 5)
        a('v_add_u32 v%d, 0x10000, v%d', vXA + 4 + ks, vXA + ks)
    a('v_bfe_u32 v4, v%d, 2, 2', vLANE)
    a('v_lshl_add_u32 v5, v2, 3, v4')
    a('v_lshlrev_b32 v5, 8, v5')
    a('v_bfe_u32 v6, v%d, 4, 1', vLANE)
    a('v_and_b32 v7, 1, v%d', vLANE)
    a('v_lshl_add_u32 v6, v6, 1, v7')
    a('s_lshl_b32 s76, s%d, 3', sCW)
    a('v_add_u32 v6, s76, v6')
    a('v_lshlrev_b32 v4, 2, v4')
    a('v_xor_b32 v6, v6, v4')
    a('v_lshl_add_u32 v5, v6, 4, v5')
    a('v_bfe_u32 v7, v%d, 1, 1', vLANE)
    a('v_lshl_add_u32 v5, v7, 3, v5')
    a('v_add_u32 v%d, 16384, v5', vWA)
    a('v_xor_b32 v%d, 64, v%d', vWA + 1, vWA)
    a('v_add_u32 v%d, 0x10000, v%d', vWA + 2, vWA)
    a('v_add_u32 v%d, 0x10000, v%d', vWA + 3, vWA + 1)

def a_qloop(vt):
    F = [64, 80]
    def reads(st, ks, f):
        slot = st % 4
        hi, lo = slot >> 1, (slot & 1) * 32768
        r = []
        for T in range(2):
            r.append('ds_read_b128 %s, v%d offset:%d' % (v(f + 4 * T, 4), vXA + 4 * hi + ks, lo + 4096 * T))
        for Tc in range(2):
            for rd in range(2):
                r.append('ds_read_b64_tr_b16 %s, v%d offset:%d' % (v(f + 8 + 4 * Tc + 2 * rd, 2), vWA + 2 * hi + Tc,
                                                                  lo + (16 * ks + 4 * rd) * 256))
        return [r[0], r[2], r[3], r[1], r[4], r[5]]
    def mfma(f, i, j, first):
        acc = (2 * i + j) * 16
        A = f + 4 * i if vt else f + 8 + 4 * i
        B = f + 8 + 4 * j if vt else f + 4 * j
        if OPT['hack16']:
            o = 8 if f == F[1] else 0
            B2 = f + 8 + 4 * (1 - j) if vt else f + 4 * (1 - j)
            return 'v_mfma_f32_16x16x32_bf16 %s, %s, %s, %s\nv_mfma_f32_16x16x32_bf16 %s, %s, %s, %s' % (
                v(acc + o, 4), v(A, 4), v(B, 4), v(acc + o, 4), v(acc + o + 4, 4), v(A, 4), v(B2, 4), v(acc + o + 4, 4))
        return 'v_mfma_f32_32x32x16_bf16 %s, %s, %s, %s' % (v(acc, 16), v(A, 4), v(B, 4), '0' if first else v(acc, 16))
    if OPT['hack16']:
        for i_ in range(64):
            a('v_mov_b32 v%d, 0', i_)
    a('s_barrier')
    for r in reads(0, 0, F[0]):
        a(r)
    for st in range(10):
        for ks in range(4):
            cur, nxt = F[ks & 1], F[(ks + 1) & 1]
            first = st == 0 and ks == 0
            a('s_waitcnt lgkmcnt(0)')
            if ks == 3:
                a('s_barrier')
                rr = reads(st + 1, 0, nxt) if st < 9 else []
            else:
                rr = reads(st, ks + 1, nxt)
            if st == 9 and ks == 3:
                a(mfma(cur, 0, 0, False))
                a(mfma(cur, 0, 1, False))
                return [mfma(nxt, 1, 1, False), mfma(cur, 1, 0, False), mfma(cur, 1, 1, False)]
            a(mfma(cur, 0, 0, first))
            for r in rr[:3]:
                a(r)
            a(mfma(cur, 0, 1, first))
            for r in rr[3:]:
                a(r)
            a(mfma(cur, 1, 0, first))
            if not (st == 9 and ks == 2):
                a(mfma(cur, 1, 1, first))

def tailweave(ms, work):
    a(ms[0])
    a('s_nop 6')
    a(ms[1])
    a('s_nop 1')
    for o in work[:6]:
        a(o)
    a(ms[2])
    for o in work[6:]:
        a(o)

def a_pack_wo():
    a('s_lshl2_add_u32 s76, s%d, s%d', sRB, sW)
    a('s_mul_i32 s77, s76, 12800')
    a('s_add_u32 s78, s14, s77')
    a('s_addc_u32 s79, s15, 0')
    a('s_mul_i32 s76, s76, 10')
    a('s_mov_b32 s80, 0x%x', WS_WP)
    for n in range(13):
        a('v_add_u32 v60, %d, v%d', 64 * n, vLANE)
        if n == 12:
            a('v_min_u32 v60, 799, v60')
        a('v_lshlrev_b32 v61, 4, v60')
        a('global_load_dwordx4 %s, v61, s[78:79]', v(4 * n, 4))
        a('v_mul_u32_u24 v61, 820, v60')
        a('v_lshrrev_b32 v61, 16, v61')
        a('v_mul_u32_u24 v62, 80, v61')
        a('v_sub_u32 v60, v60, v62')
        a('v_add_u32 v61, s76, v61')
        a('v_mul_u32_u24 v62, 6554, v60')
        a('v_lshrrev_b32 v62, 16, v62')
        a('v_mul_u32_u24 v62, %d, v62', 6400 - 10)
        a('v_add_u32 v60, v60, v62')
        a('v_and_b32 v62, 0xfff3, v61')
        a('v_and_b32 v63, 4, v61')
        a('v_lshl_or_b32 v62, v63, 1, v62')
        a('v_bfe_u32 v63, v61, 3, 1')
        a('v_lshl_or_b32 v62, v63, 2, v62')
        a('v_mul_u32_u24 v62, 10, v62')
        a('v_add_lshl_u32 v%d, v60, v62, 4', 64 + n)
    for n in range(13):
        a('s_waitcnt vmcnt(12)')
        a('buffer_store_dwordx4 %s, v%d, s[%d:%d], s80 offen sc1', v(4 * n, 4), 64 + n, RWS, RWS + 3)
    if OPT['wopack'] > 1:
        a('v_min_u32 v60, 49, v%d', vLANE)
        a('v_lshl_add_u32 v60, v60, 7, s77')
        a('v_add_u32 v61, 6400, v60')
        for p in (sCRE, sCIM):
            a('global_load_dword v111, v60, s[%d:%d]', p, p + 1)
            a('global_load_dword v111, v61, s[%d:%d]', p, p + 1)

def a_qphase():
    a('s_cmp_ge_u32 s%d, 10', sCG)
    a('s_cbranch_scc1 L_qV')
    a('v_and_b32 v1, 31, v%d', vLANE)
    a('v_lshrrev_b32 v2, 5, v%d', vLANE)
    a('v_lshlrev_b32 v1, 4, v1')
    a('v_lshl_add_u32 v108, v2, 10, v1')
    a('s_lshl1_add_u32 s76, s%d, s%d', sCG, sCW)
    a('s_lshl_b32 s77, s76, 13')
    a('s_add_u32 s77, s77, s74')
    a('s_add_u32 s78, s77, 4096')
    a('s_mul_i32 s79, s%d, 3', sCW)
    a('s_add_u32 s79, s79, s%d', sCG)
    for _ in range(2):
        a('s_cmp_ge_u32 s79, 5')
        a('s_cselect_b32 s80, 5, 0')
        a('s_sub_u32 s79, s79, s80')
    for Tc in range(2):
        for u in range(2):
            m = 20 + 2 * (2 * Tc + u)
            a('s_cmp_eq_u32 s79, %d', (2 - 4 * Tc - 2 * u) % 5)
            a('s_cselect_b32 s%d, -1, 0', m)
            a('s_cmp_eq_u32 s79, %d', (1 - 4 * Tc - 2 * u) % 5)
            a('s_cselect_b32 s%d, -1, 0', m + 1)
    c0 = f2u(math.log2(math.e) / math.sqrt(20.0))
    a('s_mov_b32 s80, 0x%x', c0)
    ms = a_qloop(False)
    def group(Tc, u, scale):
        o = []
        P = 120 + 8 * (2 * Tc + u)
        for T in range(2):
            acc = (2 * Tc + T) * 16 + 8 * u
            if scale:
                o += ['v_mul_f32 v%d, s80, v%d' % (acc + e, acc + e) for e in range(8)]
            o += ['v_cvt_pk_bf16_f32 v%d, v%d, v%d' % (P + 4 * T + q, acc + 2 * q, acc + 2 * q + 1) for q in range(4)]
        m = 20 + 2 * (2 * Tc + u)
        o.append('s_mov_b64 exec, s[%d:%d]\nv_swap_b32 v%d, v%d\nv_swap_b32 v%d, v%d\ns_mov_b64 exec, -1' % (m, m + 1, P + 2, P + 4, P + 3, P + 5))
        for T in range(2):
            o.append('buffer_store_dwordx4 %s, v108, s[%d:%d], s%d offen offset:%d QSC' % (v(P + 4 * T, 4), RWS, RWS + 3,
                     77 + Tc, 2048 * u + 512 * T))
        return o
    a('s_cmp_ge_u32 s%d, 5', sCG)
    a('s_cbranch_scc1 L_noscale')
    tailweave(ms, group(0, 0, True) + group(0, 1, True))
    a('s_mov_b32 s81, s80')
    for i in range(32, 64, 2):
        a('v_pk_mul_f32 %s, %s, s[80:81]', v(i, 2), v(i, 2))
    a('s_branch L_qk2')
    a.label('L_noscale')
    tailweave(ms, group(0, 0, False) + group(0, 1, False))
    a.label('L_qk2')
    for o in group(1, 0, False) + group(1, 1, False):
        a(o)
    stamp('A', 'qloop')
    a('s_branch L_qdone')
    a.label('L_qV')
    a('s_cmp_eq_u32 s%d, 15', sCG)
    a('s_cbranch_scc0 L_qV2')
    a('s_lshl_b32 s76, s%d, 4', sRB)
    a('v_mov_b32 v16, s76')
    a('v_mov_b32 v17, 1')
    a('s_waitcnt vmcnt(0)')
    a('s_barrier')
    a('s_cmp_eq_u32 s%d, 0', sW)
    a('s_cbranch_scc0 L_nosig')
    a('s_mov_b64 exec, 1')
    a('global_store_dword v16, v17, s[%d:%d] sc1', sDBG, sDBG + 1)
    a('s_mov_b64 exec, -1')
    a.label('L_nosig')
    if OPT['tlb']:
        a('v_lshlrev_b32 v1, %d, v%d', OPT['tlb'], vLANE)
        a('s_lshl_b32 s76, s%d, %d', sW, OPT['tlb'] + 6)
        srd(R4, sOUT, 2048 * 1280 * 4)
        a('buffer_load_dword v111, v1, s[%d:%d], s76 offen sc1', RWS, RWS + 3)
        a('buffer_load_dword v111, v1, s[%d:%d], s76 offen sc1', R4, R4 + 3)
        a('v_min_u32 v1, 12, v%d', vLANE)
        a('v_lshlrev_b32 v1, 16, v1')
        a('v_mov_b32 v2, 0')
        for p in (14, sCRE, sCIM):
            a('global_load_dword v111, v1, s[%d:%d]', p, p + 1)
        a('global_load_dword v111, v2, s[%d:%d]', sDSK, sDSK + 1)
    if OPT['l2pre']:
        a('s_barrier')
        a('s_and_b32 s76, s%d, 1', sI)
        a('s_lshl1_add_u32 s76, s76, s%d', sCW)
        a('s_and_b32 s77, s%d, 1', sXCD)
        a('s_lshl2_add_u32 s76, s77, s76')
        a('s_mul_i32 s76, s76, %d', 80 * 1280)
        a('v_min_u32 v1, 39, v%d', vLANE)
        a('v_mul_u32_u24 v1, 1280, v1')
        a('v_add_u32 v2, %d, v1', 40 * 1280)
        for hf in range(2):
            a('s_and_b32 s77, s%d, 1', sI)
            a('s_lshl1_add_u32 s77, s77, s%d', sCW)
            a('s_lshl1_add_u32 s77, s77, %d', hf)
            a('s_mul_i32 s77, s77, 5')
            a('s_lshr_b32 s77, s77, 2')
            a('s_add_u32 s78, s%d, 1', sXCD)
            a('s_lshr_b32 s78, s78, 1')
            a('s_add_u32 s%d, s77, s78', 80 + hf)
        for d in (4, 9, 1, 6, 3, 8)[:OPT['l2pre']]:
            for hf in range(2):
                a('s_add_u32 s77, s%d, %d', 80 + hf, d)
                for _ in range(2):
                    a('s_cmp_ge_u32 s77, 10')
                    a('s_cselect_b32 s78, 10, 0')
                    a('s_sub_u32 s77, s77, s78')
                a('s_lshl_b32 s77, s77, 7')
                a('s_add_u32 s77, s77, s76')
                a('buffer_load_dword v111, v%d, s[%d:%d], s77 offen', 1 + hf, R6, R6 + 3)
    if OPT['xpre']:
        a('s_and_b32 s76, s%d, 1', sI)
        a('s_lshl1_add_u32 s76, s76, s%d', sTW)
        a('s_xor_b32 s77, s76, %d', OPT['flip'])
        a('s_mul_i32 s77, s77, 5')
        a('s_lshr_b32 s77, s77, 1')
        a('s_add_u32 s78, s%d, 9', sXCD)
        a('s_lshr_b32 s78, s78, 1')
        a('s_add_u32 s77, s77, s78')
        a('s_mul_i32 s78, s%d, 5', sCW)
        a('s_add_u32 s77, s77, s78')
        for _ in range(2):
            a('s_cmp_ge_u32 s77, 10')
            a('s_cselect_b32 s78, 10, 0')
            a('s_sub_u32 s77, s77, s78')
        a('s_lshl_b32 s77, s77, 7')
        a('s_and_b32 s78, s%d, -4', sRB)
        a('s_add_u32 s76, s76, s78')
        a('s_mul_i32 s76, s76, %d', 128 * 1280)
        a('s_add_u32 s77, s77, s76')
        a('v_mul_u32_u24 v3, 1280, v%d', vLANE)
        a('buffer_load_dword v111, v3, s[%d:%d], s77 offen', R5, R5 + 3)
        a('s_add_u32 s77, s77, %d', 64 * 1280)
        a('buffer_load_dword v111, v3, s[%d:%d], s77 offen', R5, R5 + 3)
    if OPT['wopack']:
        a_pack_wo()
    for _ in range(9 if OPT['l2pre'] else 10):
        a('s_barrier')
    if DIAG:
        nstamp['A'].pop()
    stamp('A', 'qloop')
    a('s_branch L_qdone')
    a.label('L_qV2')
    a('s_lshl1_add_u32 s76, s%d, s%d', sCG, sCW)
    a('v_and_b32 v1, 31, v%d', vLANE)
    tau(108, 1, 2)
    a('v_lshrrev_b32 v2, 5, v%d', vLANE)
    a('v_mul_u32_u24 v2, %d, v2', VROW)
    a('v_lshl_add_u32 v108, v108, 4, v2')
    a('s_sub_u32 s76, s76, 20')
    a('s_lshl_b32 s76, s76, 10')
    a('s_add_u32 s76, s76, s74')
    a('s_add_u32 s76, s76, %d', VOFF)
    for k in range(1, 4):
        a('s_add_u32 s%d, s76, %d', 76 + k, 2 * VROW * k)
    ms = a_qloop(True)
    work = []
    n = 0
    for T in range(2):
        for Tc in range(2):
            for m in range(2):
                P = 120 + 4 * n
                n += 1
                acc = (2 * T + Tc) * 16 + 8 * m
                work += ['v_cvt_pk_bf16_f32 v%d, v%d, v%d' % (P + q, acc + 2 * q, acc + 2 * q + 1) for q in range(4)]
                work.append('buffer_store_dwordx4 %s, v108, s[%d:%d], s%d offen offset:%d QSC' % (v(P, 4), RWS, RWS + 3, 76 + 2 * T + m, 512 * Tc))
    tailweave(ms, work)
    if DIAG:
        nstamp['A'].pop()
    stamp('A', 'qloop')
    a.label('L_qdone')
    if OPT['amark'] == 2:
        a_mark()

vO, vS = 0, 64
KV = [128, 156]
K1A, K1B, K2, VA0, VA1, VB0, VB1 = 0, 4, 8, 12, 16, 20, 24
vQ1, vQ2 = 184, 200
vK1, vK2, vV, vIDX, vNC, vM = 208, 209, 210, 214, 216, 220
vT = 224
vMG = 240
sQH, sKH, sODD, sP5, sOFF, sKV0, sPASS, sCNT = 76, 77, 78, 79, 80, 93, 82, 83
sKVB, sKVE = 70, 71

def a_att_setup():
    a('s_and_b32 s%d, s%d, 1', sQH, sW)
    a('s_lshr_b32 s%d, s%d, 1', sKH, sW)
    a('s_and_b32 s%d, s%d, 1', sODD, sHD)
    a('s_lshr_b32 s85, s%d, 1', sHD)
    a('s_mul_i32 s%d, s85, 5', sP5)
    a('s_mul_i32 s%d, s%d, %d', sKVB, sKH, 16 * BLK)
    a('s_add_u32 s%d, s%d, %d', sKVE, sKVB, 16 * BLK)
    a('s_mul_i32 s86, s%d, %d', sQB, 2 * BLK * OPT['rot'])
    a('s_add_u32 s%d, s%d, s86', sKV0, sKVB)
    srd(R3, sWS, 's%d' % sKVE)
    srd(R4, sOUT, 2048 * 1280 * 4)
    a('s_mov_b32 s%d, 0', sPASS)
    i, h, t, x = vT, vT + 1, vT + 2, vT + 3
    a('v_and_b32 v%d, 31, v%d', i, vLANE)
    a('v_lshrrev_b32 v%d, 5, v%d', h, vLANE)
    tau(t, i, x)
    a('s_mul_i32 s86, s%d, 3', sODD)
    a('s_add_u32 s86, s86, s%d', sP5)
    a('s_lshl_b32 s87, s86, 10')
    a('v_lshl_add_u32 v%d, v%d, 10, s87', x, h)
    a('v_lshl_add_u32 v%d, v%d, 4, v%d', vT + 4, i, x)
    a('v_lshl_add_u32 v%d, v%d, 4, v%d', vK1, t, x)
    a('v_add_u32 v%d, %d, v%d', vK1, 80 * 1024, vK1)
    a('s_add_u32 s87, s%d, 2', sP5)
    a('s_lshl1_add_u32 s87, s87, s%d', sODD)
    a('s_lshl_b32 s87, s87, 9')
    a('v_lshl_add_u32 v%d, v%d, 4, s87', vT + 5, i)
    a('v_mov_b32 v%d, 0x%x', x, OOB)
    a('v_cndmask_b32 v%d, v%d, v%d, s[%d:%d]', vT + 5, vT + 5, x, sHI, sHI + 1)
    a('s_add_u32 s87, s87, %d', 80 * 1024)
    a('v_lshl_add_u32 v%d, v%d, 4, s87', vK2, t)
    a('v_mov_b32 v%d, %d', x, 160 * 1024)
    a('v_cndmask_b32 v%d, v%d, v%d, s[%d:%d]', vK2, vK2, x, sHI, sHI + 1)
    a('s_mul_i32 s86, s%d, 20', sHD)
    a('s_lshl2_add_u32 s87, s%d, s86', sODD)
    a('s_lshl_b32 s88, s%d, 4', sODD)
    a('s_sub_u32 s88, s86, s88')
    a('v_add_u32 v%d, s87, v%d', vV, t)
    a('v_add_u32 v%d, s88, v%d', x, i)
    a('v_cmp_le_u32 vcc, 16, v%d', i)
    a('v_mov_b32 v%d, %d', vT + 6, VOFF + 640 * 16)
    a('s_nop 0')
    a('v_cndmask_b32 v%d, v%d, v%d, vcc', vV, vV, x)
    a('v_cmp_le_u32 vcc, 20, v%d', i)
    a('v_mul_u32_u24 v%d, %d, v%d', x, VROW, h)
    a('v_add_u32 v%d, %d, v%d', x, VOFF, x)
    a('v_lshl_add_u32 v%d, v%d, 4, v%d', vV, vV, x)
    a('v_cndmask_b32 v%d, v%d, v%d, vcc', vV, vV, vT + 6)
    a('v_cmp_le_u32 vcc, %d, v%d', 21 if OPT['vzero'] else 24, i)
    a('v_mov_b32 v%d, 0x%x', x, OOB)
    a('v_mov_b32 v%d, 0xdddd', vIDX)
    a('v_cndmask_b32 v%d, v%d, v%d, vcc', vV, vV, x)
    for k in range(1, 4):
        a('v_add_u32 v%d, %d, v%d', vV + k, 2 * VROW * k, vV)
    a('s_mul_i32 s87, s85, 40')
    a('s_lshl4_add_u32 s87, s%d, s87', sODD)
    a('s_add_u32 s88, s87, 23')
    a('s_lshr_b32 s87, s87, 7')
    a('s_lshr_b32 s88, s88, 7')
    a('s_add_u32 s89, s86, 19')
    a('s_lshr_b32 s86, s86, 7')
    a('s_lshr_b32 s89, s89, 7')
    a('v_lshrrev_b32 v%d, 4, v%d', x, vLANE)
    a('s_add_u32 s90, s87, 5')
    a('v_mov_b32 v%d, s90', vF1A)
    for sel, (reg, add) in enumerate(((88, 5), (86, 10), (89, 10))):
        a('s_add_u32 s90, s%d, %d', reg, add)
        a('v_cmp_eq_u32 vcc, %d, v%d', sel + 1, x)
        a('v_mov_b32 v%d, s90', vT + 6)
        a('s_nop 0')
        a('v_cndmask_b32 v%d, v%d, v%d, vcc', vF1A, vF1A, vT + 6)
    a('v_and_b32 v%d, 15, v%d', vT + 6, vLANE)
    a('v_lshl_add_u32 v%d, v%d, 4, v%d', vF1A, vF1A, vT + 6)
    a('v_lshlrev_b32 v%d, 7, v%d', vF1A, vF1A)
    a('v_mov_b32 v%d, s87', vF1A - 1)
    a('v_mov_b32 v%d, s88', vT + 6)
    a('v_cndmask_b32 v%d, v%d, v%d, s[%d:%d]', vF1A - 1, vF1A - 1, vT + 6, sHI, sHI + 1)
    a('v_bfe_u32 v%d, v%d, 4, 1', vT + 6, vLANE)
    a('v_lshl_add_u32 v%d, v%d, 4, v%d', vF1A - 1, vF1A - 1, vT + 6)
    a('s_lshl_b32 s90, s%d, 1', sQB)
    a('v_add_lshl_u32 v%d, v%d, s90, 7', vF1A - 1, vF1A - 1)
    a('v_and_b32 v%d, 3, v%d', vAPW, vLANE)
    a('v_lshlrev_b32 v%d, 8, v%d', vAPW, vAPW)
    a('v_lshlrev_b32 v%d, 2, v%d', vAPW + 1, vLANE)
    a('v_add_u32 v%d, %d, v%d', vAPW + 1, L_PW, vAPW + 1)
    a('v_add_u32 v%d, v%d, v%d', vAPW, vAPW, vAPW + 1)
    a('s_lshl1_add_u32 s90, s%d, s%d', sQB, sQH)
    a('s_lshl1_add_u32 s90, s90, s%d', sKH)
    a('s_mul_i32 s92, s90, %d', BLK)
    a('s_xor_b32 s91, s90, 1')
    a('s_mul_i32 s91, s91, %d', BLK)
    a('s_mov_b32 s10, 0x%x', f2u(2.0 ** -4))
    a('s_mov_b32 s11, 0x%x', f2u(2.0 ** 96))
    a('s_mul_i32 s36, s%d, %d', sW, REGSZ)
    a('s_add_u32 s36, s36, %d', L_REG + 8192)
    a('s_xor_b32 s37, s%d, 2', sW)
    a('s_mul_i32 s37, s37, %d', REGSZ)
    a('s_add_u32 s37, s37, %d', L_REG + 8192)
    a('v_lshl_add_u32 v%d, v%d, 4, s36', vMG, vLANE)
    a('v_lshl_add_u32 v%d, v%d, 3, s36', vMG + 1, vLANE)
    a('v_lshl_add_u32 v%d, v%d, 4, s37', vMG + 2, vLANE)
    a('v_lshl_add_u32 v%d, v%d, 3, s37', vMG + 3, vLANE)
    a('v_xor_b32 v%d, 512, v%d', vMG + 4, vPW)
    a('v_add_u32 v%d, 1024, v%d', vMG + 5, vAPW)
    if not OPT['amark']:
        a('v_bfe_u32 v%d, v%d, 4, 1', x, vLANE)
        a('v_mul_u32_u24 v%d, %d, v%d', x, OBLK, x)
        a('v_and_b32 v%d, 15, v%d', t, vLANE)
        a('v_lshl_add_u32 v%d, v%d, 4, v%d', x, t, x)
        a('v_mul_u32_u24 v%d, %d, v%d', t, 2 * OBLK, h)
        a('v_add_u32 v%d, v%d, v%d', vMG + 7, t, x)
        a('v_lshl_add_u32 v%d, v%d, 8, v%d', vMG + 6, h, x)
        a('s_mul_i32 s40, s90, %d', 4 * OBLK)
        a('s_add_u32 s40, s40, 0x%x', WS_O)
        a('s_lshl_b32 s41, s%d, 8', sP5)
        a('s_add_u32 s40, s40, s41')
        a('s_mul_i32 s41, s%d, 768', sODD)
        a('s_add_u32 s41, s41, s40')
        a('s_add_u32 s42, s41, %d', 2 * OBLK)
        a('s_lshl3_add_u32 s40, s%d, s40', sODD)
    a('s_lshl_b32 s43, s90, 5')
    a('s_add_u32 s43, s43, s%d', sHD)
    flagaddr(43, 43, F4, 0)

def a_mark():
    i, h, t, x = vT, vT + 1, vT + 2, vT + 3
    a('s_lshl1_add_u32 s90, s%d, s%d', sQB, sCW)
    a('s_lshl1_add_u32 s90, s90, s%d', sTW)
    a('s_and_b32 s%d, s%d, 1', sODD, sHD)
    a('s_lshr_b32 s85, s%d, 1', sHD)
    a('s_mul_i32 s%d, s85, 5', sP5)
    a('v_lshrrev_b32 v%d, 5, v%d', h, vLANE)
    a('v_bfe_u32 v%d, v%d, 4, 1', x, vLANE)
    a('v_mul_u32_u24 v%d, %d, v%d', x, OBLK, x)
    a('v_and_b32 v%d, 15, v%d', t, vLANE)
    a('v_lshl_add_u32 v%d, v%d, 4, v%d', x, t, x)
    a('v_mul_u32_u24 v%d, %d, v%d', t, 2 * OBLK, h)
    a('v_add_u32 v%d, v%d, v%d', vMG + 7, t, x)
    a('v_lshl_add_u32 v%d, v%d, 8, v%d', vMG + 6, h, x)
    a('s_mul_i32 s40, s90, %d', 4 * OBLK)
    a('s_add_u32 s40, s40, 0x%x', WS_O)
    a('s_lshl_b32 s41, s%d, 8', sP5)
    a('s_add_u32 s40, s40, s41')
    a('s_mul_i32 s41, s%d, 768', sODD)
    a('s_add_u32 s41, s41, s40')
    a('s_add_u32 s42, s41, %d', 2 * OBLK)
    a('s_lshl3_add_u32 s40, s%d, s40', sODD)
    for k in range(4):
        a('v_mov_b32 v%d, -1', 24 + k)
    a('buffer_store_dwordx4 v[24:27], v%d, s[%d:%d], s41 offen sc1', vMG + 6, RWS, RWS + 3)
    a('buffer_store_dwordx4 v[24:27], v%d, s[%d:%d], s42 offen sc1', vMG + 6, RWS, RWS + 3)
    a('buffer_store_dwordx2 v[24:25], v%d, s[%d:%d], s40 offen offset:512 sc1', vMG + 7, RWS, RWS + 3)

def a_b1_setup():
    a('s_mov_b64 s[14:15], s[%d:%d]', sWO, sWO + 1)
    b1_sources(R5, R6, 112, 116, 7, 5, 12, 3 if OPT['nodup'] else 2)
    a('s_lshl2_add_u32 s4, s%d, s%d', sRB, sW)
    a('s_mul_i32 s4, s4, %d', 32 * 1280)
    a('s_lshl_b32 s6, s%d, 12', sW)
    stagger(8, 9, OPT['st10'], OPT['flip'], OPT['stagb'])

def a_handoff():
    first = 10 + OPT['st10']
    nst = 8
    chunks = []
    if OPT['alate'] == 2:
        n0 = len(a.lines)
        a_att_setup()
        late = a.lines[n0:]
        del a.lines[n0:]
        nch = OPT['pollat'] - first
        k = 0
        for c in range(nch):
            e = len(late) * (c + 1) // nch
            while e < len(late) and any('cndmask' in x and 'vcc' in x for x in late[e:e + 4]):
                e += 1
            chunks.append(late[k:e])
            k = e
        chunks[-1].append('s_mov_b32 s85, 0x%x' % F1)
        nb = first - 10
        seq = OPT['seq'] or {1: 'bss', 2: 'bsbs', 3: 'bbsbs'}[nb]
        assert seq.count('b') == nb and seq.count('s') == 2
        kk = 0
        for ch in seq:
            if ch == 'b':
                a('s_barrier')
            else:
                if kk == 0 and OPT['fine'] == 1:
                    stamp('A', 'c11')
                a_b1stage(first + kk)
                if OPT['fine'] == 1:
                    stamp('A', 'iss%d' % (12 + kk))
                kk += 1
        for i_ in range(64):
            a('v_mov_b32 v%d, 0', vO + i_)
    else:
        for t in range(10, first):
            a('s_barrier')
            if t == 10:
                if OPT['alate']:
                    a_b1_setup()
                else:
                    for i_ in range(64):
                        a('v_mov_b32 v%d, 0', vO + i_)
        if OPT['fine'] == 1:
            stamp('A', 'c11')
        a_b1stage(first)
        if OPT['fine'] == 1:
            stamp('A', 'iss12')
        if OPT['alate']:
            a_att_setup()
            for i_ in range(64):
                a('v_mov_b32 v%d, 0', vO + i_)
        a_b1stage(first + 1)
        if OPT['fine'] == 1:
            stamp('A', 'iss13')
    lds_ = ['buffer_load_dword v%d, v%d, s[%d:%d], s85 offen sc1' % (104 + k, vF1A - k, RWS, RWS + 3) for k in range(2)]
    a('s_mov_b32 s85, 0x%x', F1)
    for t in range(first, 20):
        a('s_waitcnt vmcnt(%d)', 7 - OPT['nodup'] if t < 19 else 0)
        if t == first:
            stamp('A', 'qdrain')
        if t == 19:
            a('s_cmp_eq_u32 s%d, 0', sW)
            a('s_cbranch_scc0 L_c19')
            a('v_and_b32 v104, v104, v105')
            a('v_cmp_eq_u32 vcc, 0, v104')
            a('s_cbranch_vccnz L_c19')
            setpw(4, 102)
            a('s_waitcnt lgkmcnt(0)')
            a.label('L_c19')
        a('s_barrier')
        if t + 2 <= 19:
            a_b1stage(t + 2)
        if chunks:
            a.lines.extend(chunks.pop(0))
        if t == OPT['pollat']:
            a('s_cmp_eq_u32 s%d, 0', sW)
            a('s_cbranch_scc0 L_nopoll')
            for l in lds_:
                a(l)
            a.label('L_nopoll')
    stamp('A', 'b1load')
    a('s_cmp_eq_u32 s%d, 0', sW)
    a('s_cbranch_scc0 L_f1wait')
    a('s_cbranch_vccz L_f1go')
    a('s_mov_b64 exec, vcc')
    pollflags(lds_, 104, sleep=OPT['psleep'])
    setpw(4, 102)
    a.label('L_f1wait')
    waitpw(vAPW + 1, 4, 102, sleep=OPT['gsleep'])
    a.label('L_f1go')
    stamp('A', 'f1')

def kvload0(st, what, soff):
    if what in (K1A, K1B):
        r = KV[st] + what
        return 'buffer_load_dwordx4 %s, v%d, s[%d:%d], s%d offen offset:%d sc1' % (v(r, 4), vK1, R3, R3 + 3, soff, 512 if what == K1B else 0)
    if what in ('2A', '2B'):
        tl = what == '2B'
        return 'buffer_load_dwordx2 %s, v%d, s[%d:%d], s%d offen offset:%d sc1' % (v(KV[st] + K2 + 2 * tl, 2), vK2, R3, R3 + 3, soff, 8 * tl)
    r = KV[st] + what
    if what == K2:
        return 'buffer_load_dwordx4 %s, v%d, s[%d:%d], s%d offen sc1' % (v(r, 4), vK2, R3, R3 + 3, soff)
    return 'buffer_load_dwordx4 %s, v%d, s[%d:%d], s%d offen sc1' % (v(r, 4), vV + (what - VA0) // 4, R3, R3 + 3, soff)

def kvload(st, what, soff):
    return kvload0(st, what, soff).replace(' sc1', [' sc1', '', ' sc1 nt'][OPT['kvplain']])

def qk1(st, tile, qt, sb):
    return 'v_mfma_f32_32x32x16_bf16 %s, %s, %s, 0' % (v(vS + 16 * sb, 16), v(KV[st] + (K1B if tile else K1A), 4), v(vQ1 + 4 * qt, 4))

def qk2(st, tile, qt, sb):
    return 'v_mfma_f32_32x32x8bf16_1k %s, %s, %s, %s' % (v(vS + 16 * sb, 16), v(KV[st] + K2 + 2 * tile, 2), v(vQ2 + 2 * qt, 2), v(vS + 16 * sb, 16))

def pv(st, tile, qt, m):
    return 'v_smfmac_f32_32x32x32_bf16 %s, %s, %s, v%d' % (v(vO + 16 * qt, 16), v(KV[st] + VA0 + 8 * tile + 4 * m, 4), v(vS + 16 * qt + 8 * m, 8), vIDX)

def maxtree(dst, src, acc):
    if acc:
        a('v_max3_f32 v%d, v%d, v%d, v%d', dst, dst, src, src + 1)
    else:
        a('v_max_f32 v%d, v%d, v%d', dst, src, src + 1)
    for k in range(2, 16, 2):
        a('v_max3_f32 v%d, v%d, v%d, v%d', dst, dst, src + k, src + k + 1)

def a_attention():
    if OPT['acq'] == 2:
        a('buffer_inv sc1')
    for lp in range(2):
        for T in range(2):
            a('buffer_load_dwordx4 %s, v%d, s[%d:%d], s%d offen offset:%d sc1', v(vQ1 + 8 * lp + 4 * T, 4), vT + 4, RWS, RWS + 3, 91 + lp, 512 * T)
    for lp in range(2):
        a('buffer_load_dwordx4 %s, v%d, s[%d:%d], s%d offen sc1', v(vQ2 + 4 * lp, 4), vT + 5, RWS, RWS + 3, 91 + lp)
    a.label('L_attload')
    a('s_mov_b32 s%d, 0x40000000', sCNT)
    a('s_add_u32 s%d, s%d, %d', sOFF, sKV0, BLK)
    for w_ in (K1A, K2):
        a(kvload0(0, w_, sKV0))
    for i in range(4):
        a('v_mov_b32 v%d, 0', KV[1] + VB1 + i)
    if OPT['kvsplit']:
        a('s_waitcnt vmcnt(%d)', OPT['kvsplit'] - 1)
    for w_ in (VA0, VA1, K1B, VB0, VB1):
        a(kvload0(0, w_, sKV0))
    for w_ in (K1A, VA0, VA1, K1B, K2, VB0):
        a(kvload0(1, w_, sOFF))
    if OPT['acq'] == 1:
        a('buffer_inv sc1')
    a('s_waitcnt vmcnt(%d)', 11 + (OPT['acq'] == 1))
    stamp('A', 'qkload')
    a('s_cmp_eq_u32 s%d, 0', sPASS)
    a('s_cbranch_scc0 L_setc')
    if OPT['fastpro']:
        a.c('stand-in for the row maximum: the largest score among seven keys of the first tile (checked after the loop)')
        def ch(t):
            S, m, h = vS + 16 * t, vM + t, vT + 8 + t
            return ['v_max3_f32 v%d, v%d, v%d, v%d' % (m, S, S + 1, S + 2),
                    'v_max3_f32 v%d, v%d, v%d, v%d' % (m, m, S + 5, S + 8),
                    'v_max3_f32 v%d, v%d, v%d, v%d' % (m, m, S + 11, S + 14),
                    'v_cvt_pk_bf16_f32 v%d, -v%d, -v%d' % (h, m, m),
                    'v_and_b32 v%d, 0xffff0000, v%d' % (h, h),
                    'v_sub_f32 v%d, -v%d, v%d' % (m, m, h),
                    'v_cvt_pk_bf16_f32 v%d, v%d, v%d' % (m, h, m),
                    'v_cndmask_b32 v%d, v%d, v%d, s[%d:%d]' % (vQ2 + 2 * t, vQ2 + 2 * t, m, sHI, sHI + 1)]
        def nc(t):
            m, h = vM + t, vT + 8 + t
            return ['v_and_b32 v%d, 0xffff0000, v%d' % (m, m),
                    'v_add_f32 v%d, v%d, v%d' % (vNC + t, m, h),
                    'v_add_f32 v%d, v%d, v%d' % (m, m, h)]
        sw = lambda t: 'v_permlane32_swap_b32 v%d, v%d' % (vM + t, vNC + t)
        seq = [qk1(0, 0, 0, 0), qk2(0, 0, 0, 0), qk1(0, 0, 1, 1), qk2(0, 0, 1, 1), qk1(0, 0, 2, 2), 's_nop 6', qk2(0, 0, 2, 2), 's_nop 0']
        seq += ch(0)[:5] + [qk1(0, 0, 3, 3)] + ch(0)[5:] + ch(1)[:3] + [qk2(0, 0, 3, 3)] + ch(1)[3:] + nc(0)[:1]
        seq += [qk1(0, 0, 0, 0)] + ch(2)[:6] + [qk2(0, 0, 0, 0)] + ch(3)[:3]
        seq += ['v_mov_b32 v%d, 0' % (vS + 48 + 8 + i) for i in range(8)]
        seq += ch(2)[6:] + ch(3)[3:] + nc(0)[1:] + nc(1) + nc(2) + [sw(0)] + nc(3) + [sw(1), sw(2), sw(3)]
        for o in seq:
            a(o)
        a.label('L_loopentry')
    else:
        a.c('stand-in for the row maximum: the maximum over the first key tile (checked after the loop)')
        def tree(qt):
            src = vS + 16 * qt
            return ['v_max_f32 v%d, v%d, v%d' % (vM + qt, src, src + 1)] + \
                   ['v_max3_f32 v%d, v%d, v%d, v%d' % (vM + qt, vM + qt, src + k, src + k + 1) for k in range(2, 16, 2)]
        for qt in range(3):
            a(qk1(0, 0, qt, qt))
            a(qk2(0, 0, qt, qt))
        a(qk1(0, 0, 3, 3))
        a('s_nop 6')
        for o in tree(0)[:4]:
            a(o)
        a(qk2(0, 0, 3, 3))
        for o in tree(0)[4:] + tree(1) + tree(2) + tree(3):
            a(o)
        a.label('L_setc')
        for qt in range(4):
            a('v_mov_b32 v%d, v%d', vT + 8 + qt, vM + qt)
        for qt in range(4):
            a('v_permlane32_swap_b32 v%d, v%d', vM + qt, vT + 8 + qt)
        for qt in range(4):
            a('v_min_f32 v%d, -v%d, -v%d', vM + qt, vM + qt, vT + 8 + qt)
        for qt in range(4):
            a('v_cvt_pk_bf16_f32 v%d, v%d, v%d', vT + 8 + qt, vM + qt, vM + qt)
        for qt in range(4):
            a('v_and_b32 v%d, 0xffff0000, v%d', vT + 8 + qt, vT + 8 + qt)
        for qt in range(4):
            a('v_sub_f32 v%d, v%d, v%d', vM + qt, vM + qt, vT + 8 + qt)
        for qt in range(4):
            a('v_cvt_pk_bf16_f32 v%d, v%d, v%d', vM + qt, vT + 8 + qt, vM + qt)
        for qt in range(4):
            a('v_cndmask_b32 v%d, v%d, v%d, s[%d:%d]', vQ2 + 2 * qt, vQ2 + 2 * qt, vM + qt, sHI, sHI + 1)
        a(qk1(0, 0, 0, 0))
        a(qk2(0, 0, 0, 0))
        for qt in range(4):
            a('v_and_b32 v%d, 0xffff0000, v%d', vM + qt, vM + qt)
        for qt in range(4):
            a('v_add_f32 v%d, v%d, v%d', vNC + qt, vM + qt, vT + 8 + qt)
        for i in range(8):
            a('v_mov_b32 v%d, 0', vS + 48 + 8 + i)
    a('s_waitcnt vmcnt(%d)', 8 + (OPT['acq'] == 1))
    if OPT['tearly'] or OPT['gtouch'] == 1 or OPT['woe'] or OPT['smark'] == 1:
        setpw(5, vT + 8)
    stamp('A', 'attpro')
    if OPT['fine'] == 3:
        base = len(nstamp['A'])
        nstamp['A'] += ['it%d' % i for i in range(16)]
        a('s_mov_b32 s24, %d', base)
    a('.p2align %d', OPT['lalign'])
    for _ in range(OPT['lpad']):
        a('s_nop 0')
    a.label('L_attloop')
    UN = OPT['unroll']
    LEAN = OPT['rot'] == 0 and OPT['lean']
    for dt in range(UN):
        st = dt & 1
        for n in range(8):
            tile, qt = n >> 2, n & 3
            nst, ntile, nqt = (st, (n + 1) >> 2, (n + 1) & 3) if n < 7 else (st ^ 1, 0, 0)
            pst, ptile, pqt = (st, (n - 1) >> 2, (n - 1) & 3) if n > 0 else (st ^ 1, 1, 3)
            def ex(k):
                for e in range(4 * k, 4 * k + 4):
                    a('v_exp_f32 v%d, v%d', vS + 16 * qt + e, vS + 16 * qt + e)
            if n == 7:
                a('s_waitcnt vmcnt(7)')
            a(qk1(nst, ntile, nqt, nqt))
            if n == 1:
                a('s_add_u32 s%d, s%d, %d', sOFF, sOFF, BLK)
            if n == 2:
                a(kvload(st, K1A, sOFF))
            if n == 6:
                a(kvload(st, K1B, sOFF))
            if n == 5 and OPT['fine'] == 3:
                a('s_memtime s[98:99]')
                a('s_memrealtime s[100:101]')
            if n == 6 and OPT['fine'] == 3:
                a('s_waitcnt lgkmcnt(0)')
                a('s_mov_b32 m0, s24')
                a('s_add_u32 s25, s24, 32')
                a('v_writelane_b32 v%d, s98, m0', vTS)
                a('s_mov_b32 m0, s25')
                a('s_add_u32 s24, s24, 1')
                a('v_writelane_b32 v%d, s100, m0', vTS)
            ex(0)
            a(qk2(nst, ntile, nqt, nqt))
            if n == 6:
                a(kvload(st, K2, sOFF))
            if n == 1 and st == 0 and not LEAN:
                a('s_cmp_eq_u32 s%d, s%d', sOFF, sKVE)
                a('s_cselect_b32 s%d, s%d, s%d', sOFF, sKVB, sOFF)
            ex(1)
            a(pv(pst, ptile, pqt, 1))
            if n == 0:
                a(kvload(st ^ 1, VB1, sOFF))
            if n == 4:
                a(kvload(st, VA1, sOFF))
            if n == 1 and dt == UN - 2 and not LEAN:
                a('s_cmp_eq_u32 s%d, s%d', sOFF, sKV0)
                a('s_cselect_b32 s%d, s%d, s%d', sOFF, sCNT, sOFF)
            if dt == UN - 1 and n == 7:
                a('s_cmp_lt_u32 s%d, s%d', sOFF, sKVE if LEAN else sCNT)
            ex(2)
            if n == 4:
                a('s_waitcnt vmcnt(10)')
            a(pv(st, tile, qt, 0))
            if n == 3:
                a(kvload(st, VA0, sOFF))
            if n == 7:
                a(kvload(st, VB0, sOFF))
            ex(3)
    a('s_cbranch_scc1 L_attloop')
    a('s_nop 0')
    a(pv(1, 1, 3, 1))
    stamp('A', 'attloop')
    if OPT['tprio']:
        a('s_setprio 2')
    a('ds_write_b64 v%d, %s offset:6144', vMG + 1, v(vNC, 2))
    for t in range(2):
        for q in range(3):
            a('ds_write_b128 v%d, %s offset:%d', vMG, v(vO + 16 * t + 4 * q, 4), 1024 * (3 * t + q))
    a('v_mov_b32 v%d, 6', vT + 10)
    a('v_mov_b32 v%d, 7', vT + 11)
    a('v_min3_f32 v%d, v%d, v%d, v%d', vT + 8, vO + 8, vO + 24, vO + 40)
    a('v_add_f32 v%d, v%d, v%d', vT + 9, vO + 8, vO + 24)
    a('v_add_f32 v%d, v%d, v%d', vT + 9, vT + 9, vO + 40)
    a('v_min_f32 v%d, v%d, v%d', vT + 8, vT + 8, vO + 56)
    a('v_add_f32 v%d, v%d, v%d', vT + 9, vT + 9, vO + 56)
    a('v_cmp_nle_f32 s[38:39], s10, v%d', vT + 8)
    a('v_cmp_nge_f32 vcc, s11, v%d', vT + 9)
    a('s_or_b32 s39, s39, vcc_hi')
    if OPT['force_fb']:
        a('s_cmp_eq_u32 s39, s39')
    a('s_cbranch_scc1 L_fallback')
    n0 = len(a.lines)
    a.label('L_fallback')
    a('s_cmp_eq_u32 s%d, 0', sPASS)
    a('s_cbranch_scc0 L_attok')
    a.c('fallback: exact row maximum over this wave\'s keys, then redo the pass')
    a('s_mov_b32 s%d, 1', sPASS)
    a('s_waitcnt vmcnt(0) lgkmcnt(0)')
    a('v_mov_b32 v%d, 0', vT + 8)
    for qt in range(4):
        a('v_cndmask_b32 v%d, v%d, v%d, s[%d:%d]', vQ2 + 2 * qt, vQ2 + 2 * qt, vT + 8, sHI, sHI + 1)
        a('v_mov_b32 v%d, 0xff800000', vM + qt)
    a('s_mov_b32 s%d, s%d', sOFF, sKVB)
    a('s_mov_b32 s%d, 16', sCNT)
    a.label('L_maxloop')
    for w_ in (K1A, K1B, K2):
        a(kvload(0, w_, sOFF))
    a('s_waitcnt vmcnt(0)')
    for tile in range(2):
        for qt in range(4):
            a(qk1(0, tile, qt, qt))
            a(qk2(0, tile, qt, qt))
        a('s_nop 5')
        for qt in range(4):
            maxtree(vM + qt, vS + 16 * qt, True)
    a('s_add_u32 s%d, s%d, %d', sOFF, sOFF, BLK)
    a('s_sub_u32 s%d, s%d, 1', sCNT, sCNT)
    a('s_cmp_lg_u32 s%d, 0', sCNT)
    a('s_cbranch_scc1 L_maxloop')
    for i in range(64):
        a('v_mov_b32 v%d, 0', vO + i)
    a('s_branch L_attload')
    if OPT['fastpro']:
        a.label('L_setc')
        for qt in range(4):
            a('v_mov_b32 v%d, v%d', vT + 8 + qt, vM + qt)
        for qt in range(4):
            a('v_permlane32_swap_b32 v%d, v%d', vM + qt, vT + 8 + qt)
        for qt in range(4):
            a('v_min_f32 v%d, -v%d, -v%d', vM + qt, vM + qt, vT + 8 + qt)
        for qt in range(4):
            a('v_cvt_pk_bf16_f32 v%d, v%d, v%d', vT + 8 + qt, vM + qt, vM + qt)
        for qt in range(4):
            a('v_and_b32 v%d, 0xffff0000, v%d', vT + 8 + qt, vT + 8 + qt)
        for qt in range(4):
            a('v_sub_f32 v%d, v%d, v%d', vM + qt, vM + qt, vT + 8 + qt)
        for qt in range(4):
            a('v_cvt_pk_bf16_f32 v%d, v%d, v%d', vM + qt, vT + 8 + qt, vM + qt)
        for qt in range(4):
            a('v_cndmask_b32 v%d, v%d, v%d, s[%d:%d]', vQ2 + 2 * qt, vQ2 + 2 * qt, vM + qt, sHI, sHI + 1)
        a(qk1(0, 0, 0, 0))
        a(qk2(0, 0, 0, 0))
        for qt in range(4):
            a('v_and_b32 v%d, 0xffff0000, v%d', vM + qt, vM + qt)
        for qt in range(4):
            a('v_add_f32 v%d, v%d, v%d', vNC + qt, vM + qt, vT + 8 + qt)
        for i in range(8):
            a('v_mov_b32 v%d, 0', vS + 48 + 8 + i)
        a('s_branch L_loopentry')
    COLD.extend(a.lines[n0:])
    del a.lines[n0:]
    a.label('L_attok')
    a('ds_write_b32 v%d, v%d', vPW, vT + 10)
    R = vS
    NC2 = vS + 32
    rd = ['ds_read_b64 %s, v%d offset:6144' % (v(NC2, 2), vMG + 3)]
    for t in range(2):
        rd.append('ds_read_b128 %s, v%d offset:%d' % (v(R + 16 * t + 8, 4), vMG + 2, 1024 * (3 * t + 2)))
    for t in range(2):
        for q in range(2):
            rd.append('ds_read_b128 %s, v%d offset:%d' % (v(R + 16 * t + 4 * q, 4), vMG + 2, 1024 * (3 * t + q)))
    if OPT['otag'] and not OPT['amark']:
        a('ds_read_b32 v%d, v%d', vT + 12, vMG + 5)
    waitpw(vMG + 4, 6, vT + 8, extra=rd)
    a('ds_write_b32 v%d, v%d', vPW, vT + 11)
    if OPT['otag'] and not OPT['amark']:
        a('v_cmp_gt_u32 vcc, 14, v%d', vT + 12)
        a('s_cbranch_vccnz L_swait')
        n0 = len(a.lines)
        a.label('L_swait')
        waitpw(vMG + 5, 14, vT + 12)
        a('s_branch L_sready')
        COLD.extend(a.lines[n0:])
        del a.lines[n0:]
        a.label('L_sready')
    f1, f2, l1, l2 = vS + 34, vS + 36, vS + 38, vS + 40
    a('s_waitcnt lgkmcnt(7)')
    for t in range(2):
        a('v_min_f32 v%d, v%d, v%d', l1 + t, vNC + 2 + t, NC2 + t)
    for t in range(2):
        a('v_sub_f32 v%d, v%d, v%d', f1 + t, l1 + t, vNC + 2 + t)
        a('v_sub_f32 v%d, v%d, v%d', f2 + t, l1 + t, NC2 + t)
    for t in range(2):
        a('v_exp_f32 v%d, v%d', f1 + t, f1 + t)
        a('v_exp_f32 v%d, v%d', f2 + t, f2 + t)
    a('s_waitcnt lgkmcnt(5)')
    for t in range(2):
        a('v_mul_f32 v%d, v%d, v%d', l1 + t, f1 + t, vO + 32 + 16 * t + 8)
    for t in range(2):
        a('v_fmac_f32 v%d, v%d, v%d', l1 + t, f2 + t, R + 16 * t + 8)
    for t in range(2):
        a('v_mov_b32 v%d, v%d', l2 + t, l1 + t)
    a('s_nop 0')
    for t in range(2):
        a('v_permlane32_swap_b32 v%d, v%d', l1 + t, l2 + t)
    for t in range(2):
        a('v_rcp_f32 v%d, v%d', l2 + t, l2 + t)
    a('s_waitcnt vmcnt(0) lgkmcnt(0)')
    for t in range(2):
        a('v_mul_f32 v%d, v%d, v%d', f1 + t, f1 + t, l2 + t)
        a('v_mul_f32 v%d, v%d, v%d', f2 + t, f2 + t, l2 + t)
    P = vO
    for t in range(2):
        if OPT['pkmerge']:
            sel = 'op_sel:[%d,0] op_sel_hi:[%d,1]' % (t, t)
            sel3 = 'op_sel:[%d,0,0] op_sel_hi:[%d,1,1]' % (t, t)
            for r in range(0, 12, 2):
                a('v_pk_mul_f32 %s, %s, %s %s', v(vO + 32 + 16 * t + r, 2), v(f1, 2), v(vO + 32 + 16 * t + r, 2), sel)
            for r in range(0, 12, 2):
                a('v_pk_fma_f32 %s, %s, %s, %s %s', v(vO + 32 + 16 * t + r, 2), v(f2, 2), v(R + 16 * t + r, 2), v(vO + 32 + 16 * t + r, 2), sel3)
        else:
            for r in range(12):
                a('v_mul_f32 v%d, v%d, v%d', vO + 32 + 16 * t + r, f1 + t, vO + 32 + 16 * t + r)
            for r in range(12):
                a('v_fmac_f32 v%d, v%d, v%d', vO + 32 + 16 * t + r, f2 + t, R + 16 * t + r)
        for q in range(6):
            a('v_cvt_pk_bf16_f32 v%d, v%d, v%d', P + 8 * t + q, vO + 32 + 16 * t + 2 * q, vO + 32 + 16 * t + 2 * q + 1)
        if OPT['otag']:
            for q in range(4):
                a('v_min_u32 v%d, -2, v%d', P + 8 * t + q, P + 8 * t + q)
        a('buffer_store_dwordx4 %s, v%d, s[%d:%d], s%d offen sc1', v(P + 8 * t, 4), vMG + 6, RWS, RWS + 3, 41 + t)
    if not OPT['otag']:
        a('s_nop 0')
    a('v_permlane32_swap_b32 v%d, v%d', P + 4, P + 12)
    a('v_permlane32_swap_b32 v%d, v%d', P + 5, P + 13)
    if OPT['otag']:
        a('v_min_u32 v%d, -2, v%d', P + 4, P + 4)
        a('v_min_u32 v%d, -2, v%d', P + 5, P + 5)
    a('buffer_store_dwordx2 %s, v%d, s[%d:%d], s40 offen offset:512 sc1', v(P + 4, 2), vMG + 7, RWS, RWS + 3)
    if OPT['otag']:
        setflag(43, 20)
    if OPT['tprio'] == 2:
        a('s_setprio 0')
    if OPT['pgate']:
        setpw(8, vT + 8)
        a('ds_read_b32 v%d, v%d', 99, vAPW)
    stamp('A', 'merge')

def p3_static(vA0, vA1, vOA, acc):
    EP = OPT['epoll']
    TAG = OPT['otag']
    if TAG:
        stamp('A', 'odrain')
        a.label('L_p3redo')
    elif not EP:
        a('s_waitcnt vmcnt(0)')
        stamp('A', 'odrain')
        setflag(43, 1)
    NB = 7
    def reads(ks):
        f = 100 + 20 * (ks % NB)
        base, off = (vA0, ks * 5120) if ks < 10 else (vA1, (ks - 10) * 5120)
        return ['ds_read_b64_tr_b16 %s, v%d offset:%d' % (v(f + 4 * j + 2 * rd, 2), base, off + 1280 * rd + 32 * j)
                for j in range(5) for rd in range(2)]
    pl = 'buffer_load_dword v252, v%d, s[%d:%d], s88 offen sc1' % (vOA + 1, RWS, RWS + 3)
    def oload(ks):
        a('buffer_load_dwordx4 %s, v%d, s[%d:%d], s85 offen offset:%d sc1', v(4 * ks, 4), vOA, RWS, RWS + 3, 1024 * (ks & 3))
        if ks & 3 == 3 and ks < 19:
            a('s_add_u32 s85, s85, 4096')
    LEAD = OPT['olead']
    touch_ = 'buffer_load_dword v251, v248, s[%d:%d], s85 offen sc1' % (RWS, RWS + 3)
    NP = OPT['npre'] if EP else 0
    rest = [r for ks in range(NP, NB) for r in reads(ks)]
    if EP:
        for ks in range(NP):
            for r in reads(ks):
                a(r)
        if OPT['pgate']:
            a('s_waitcnt lgkmcnt(0)')
            a('v_cmp_gt_u32 vcc, 8, v99')
            a('s_cbranch_vccz L_epoll')
            a('s_waitcnt vmcnt(0)')
            stamp('A', 'odrain')
            if DIAG:
                nstamp['A'].pop()
            setflag(43, 2)
            a('s_mov_b32 vcc_lo, -1')
            a('s_mov_b32 vcc_hi, 0')
            a('s_branch L_f4late')
            a.label('L_epoll')
        a('s_mov_b32 exec_hi, 0')
        a(pl)
        a('s_waitcnt vmcnt(1)')
        stamp('A', 'odrain')
        setflag(43, 2)
        a('s_mov_b32 exec_hi, 0')
        a('s_waitcnt vmcnt(1)')
        a('v_cmp_eq_u32 vcc, 0, v252')
        a('s_mov_b64 exec, -1')
        a('s_cbranch_vccnz L_f4late')
        stamp('A', 'f4')
        if DIAG:
            nstamp['A'].pop()
        a(touch_)
        k = 0
        for ks in range(LEAD):
            oload(ks)
            while k < len(rest) * (ks + 1) // LEAD:
                a(rest[k])
                k += 1
        a('s_branch L_p3go')
        a.label('L_f4late')
    for r in rest:
        a(r)
    if OPT['pgate'] and TAG != 1:
        a('s_mov_b64 s[38:39], vcc')
        waitpw(vAPW, 8, 99, sleep=OPT['gsleep'])
        a('s_mov_b64 vcc, s[38:39]')
    if EP:
        a('s_mov_b64 exec, vcc')
    else:
        a('s_mov_b32 exec_hi, 0')
    pollflags([pl], 252, sleep=OPT['psleep4'])
    stamp('A', 'f4')
    a(touch_)
    for ks in range(LEAD):
        oload(ks)
    a.label('L_p3go')
    a('s_waitcnt lgkmcnt(0)')
    nl = LEAD
    a('v_mov_b32 v250, 9')
    lq = []
    if nl == 20 or OPT['yearly']:
        a('ds_write_b32 v%d, v250', vPW)
    pend = []
    nck = 0
    for ks in range(20):
        w_ = 's_waitcnt vmcnt(%d)' % (nl - 1 - ks)
        if ks in lq:
            idx = max(i for i, x in enumerate(lq) if x == ks)
            w_ += ' lgkmcnt(%d)' % min(15, len(lq) - 1 - idx)
        a(w_)
        if OPT['fine'] in (1, 2) and ks in (0, 10, 19):
            stamp('A', 'p3k%d' % ks)
        rr = reads(ks + NB) if ks + NB < 20 else []
        for j in range(5):
            a('v_mfma_f32_16x16x32_bf16 %s, %s, %s, %s', v(acc + 4 * j, 4), v(4 * ks, 4), v(100 + 20 * (ks % NB) + 4 * j, 4),
              '0' if ks == 0 else v(acc + 4 * j, 4))
            for tg, r in pend:
                a(r)
                lq.append(tg)
            if TAG and not pend and ks >= 13:
                for _ in range(2):
                    if nck < 4 * ks + 4:
                        if nck == 0:
                            a('v_max_u32 v252, v0, v1')
                        else:
                            a('v_max3_u32 v252, v252, v%d, v%d', nck, nck + 1)
                        nck += 2
            pend = [(ks + NB, r) for r in rr[2 * j:2 * j + 2]]
            if j in (0, 3) and nl < 20 and (j == 0 or ks % 2 == 0):
                oload(nl)
                nl += 1
                if nl == 20 and not OPT['yearly']:
                    a('ds_write_b32 v%d, v250', vPW)
                    lq.append('w')
    if TAG:
        assert nck == 80
        a('v_cmp_eq_u32 vcc, -1, v252')
        a('s_cbranch_vccnz L_p3again')
        retry('L_p3again', 'L_p3redo', 0, ['s_sub_u32 s85, s85, 16384'])

def p3_groups(vA0, vOA, acc):
    WF, vAN = 100, 241
    sP, sG, sM, sKEY, sC = 4, 5, 6, 7, 8
    pl = 'buffer_load_dword v252, v%d, s[%d:%d], s88 offen sc1' % (vOA + 1, RWS, RWS + 3)
    for g in range(4):
        a('s_sub_u32 s%d, %d, s%d', sC + g, g, sOG)
        a('s_and_b32 s%d, s%d, 3', sC + g, sC + g)
        a('s_lshl2_add_u32 s%d, s%d, %d', sC + g, sC + g, g)
    a('v_mov_b32 v248, 9')
    a('s_waitcnt lgkmcnt(0)')
    a('v_cmp_gt_u32 vcc, 8, v99')
    a('s_cbranch_vccz L_epoll')
    a('s_waitcnt vmcnt(0)')
    stamp('A', 'odrain')
    if DIAG:
        nstamp['A'].pop()
    setflag(43, 2)
    waitpw(vAPW, 8, 99, sleep=OPT['gsleep'])
    a('s_mov_b32 exec_hi, 0')
    a(pl)
    a('s_waitcnt vmcnt(0)')
    a('s_branch L_polled')
    a.label('L_epoll')
    a('s_mov_b32 exec_hi, 0')
    a(pl)
    a('s_waitcnt vmcnt(1)')
    stamp('A', 'odrain')
    setflag(43, 2)
    a('s_mov_b32 exec_hi, 0')
    a('s_waitcnt vmcnt(1)')
    a.label('L_polled')
    a('v_cmp_eq_u32 vcc, 0, v252')
    a('s_mov_b64 exec, -1')
    a('s_mov_b32 s%d, vcc_lo', sP)
    def reads(k):
        return ['ds_read_b64_tr_b16 %s, v%d offset:%d' % (v(WF + 20 * k + 4 * j + 2 * rd, 2), vAN, 5120 * k + 1280 * rd + 32 * j)
                for j in range(5) for rd in range(2)]
    def issue(sl):
        for k in range(5):
            a('buffer_load_dwordx4 %s, v%d, s[%d:%d], s%d offen offset:%d sc1', v(20 * sl + 4 * k, 4), vOA, RWS, RWS + 3,
              12 if k < 4 else 13, 1024 * (k & 3))
        if sl == 3:
            a('ds_write_b32 v%d, v248', vPW)
    for sl in range(-1, 4):
        nx = sl + 1
        Lw, Lc, Ld = a.newlabel('gw'), a.newlabel('gc'), a.newlabel('gd')
        if nx < 4:
            for g in range(4):
                a('s_bfe_u32 s14, s%d, 0x%x', sP, (8 << 16) | (8 * g))
                a('s_bcnt1_i32_b32 s14, s14')
                if g == 0:
                    a('s_lshl4_add_u32 s%d, s14, s%d', sKEY, sC)
                else:
                    a('s_lshl4_add_u32 s14, s14, s%d', sC + g)
                    a('s_min_u32 s%d, s%d, s14', sKEY, sKEY)
            a('s_and_b32 s%d, s%d, 3', sG, sKEY)
            a('s_mul_i32 s12, s%d, 5120', sG)
            a('s_add_u32 s12, s12, s85')
            a('s_add_u32 s13, s12, 4096')
            a('s_cmp_lt_u32 s%d, 16', sKEY)
            a('s_cbranch_scc0 %s', Lw)
            issue(nx)
            if sl >= 0:
                a('s_waitcnt vmcnt(5)')
            a('s_branch %s', Lc)
            a.label(Lw)
            a('s_mov_b32 exec_lo, s%d', sP)
            a('s_mov_b32 exec_hi, 0')
            a(pl)
            a('s_mov_b64 exec, -1')
            if sl >= 0:
                a('s_waitcnt vmcnt(1)')
            a.label(Lc)
            a('s_mul_i32 s14, s%d, 25600', sG)
            a('v_add_u32 v%d, s14, v%d', vAN, vA0)
            if nx < 3:
                for g in range(4):
                    a('s_cmp_eq_u32 s%d, %d', sG, g)
                    a('s_cselect_b32 s%d, 0x1000, s%d', sC + g, sC + g)
        if sl < 0:
            for k in range(5):
                for r in reads(k):
                    a(r)
        else:
            pend = []
            for k in range(5):
                if nx == 4:
                    a('s_waitcnt vmcnt(%d) lgkmcnt(%d)', 4 - k, 0 if k >= 3 else 15)
                else:
                    a('s_waitcnt lgkmcnt(15)')
                rr = reads(k) if nx < 4 else []
                for j in range(5):
                    a('v_mfma_f32_16x16x32_bf16 %s, %s, %s, %s', v(acc + 4 * j, 4), v(20 * sl + 4 * k, 4), v(WF + 20 * k + 4 * j, 4),
                      '0' if (sl == 0 and k == 0) else v(acc + 4 * j, 4))
                    for r in pend:
                        a(r)
                    pend = rr[2 * j:2 * j + 2]
            for r in pend:
                a(r)
        if nx < 4:
            a('s_cmp_lt_u32 s%d, 16', sKEY)
            a('s_cbranch_scc1 %s', Ld)
            L1, L2 = a.newlabel('gp'), a.newlabel('gq')
            a('s_lshl_b32 s14, s%d, 3', sG)
            a('s_lshl_b32 s%d, 0xff, s14', sM)
            a('s_mov_b32 exec_lo, s%d', sP)
            a('s_mov_b32 exec_hi, 0')
            a.label(L1)
            a('s_waitcnt vmcnt(0)')
            a('v_cmp_eq_u32 vcc, 0, v252')
            a('s_and_b32 s14, vcc_lo, s%d', sM)
            a('s_cbranch_scc0 %s', L2)
            a('s_mov_b64 exec, vcc')
            if OPT['psleep4']:
                a('s_sleep %d', OPT['psleep4'])
            a(pl)
            a('s_sub_u32 s%d, s%d, 1', sSPIN, sSPIN)
            a('s_cbranch_scc0 %s', L1)
            a('s_endpgm')
            a.label(L2)
            a('s_mov_b32 s%d, vcc_lo', sP)
            a('s_mov_b64 exec, -1')
            issue(nx)
            a.label(Ld)
            if nx == 3:
                stamp('A', 'f4')

def a_outproj():
    vA0, vA1, vOA, vST = 240, 241, 242, 244
    if not OPT['otag'] or OPT['amark']:
        waitpw(vMG + 5, 14, 98, sleep=1)
    a('v_lshrrev_b32 v21, 5, v%d', vLANE)
    a('v_bfe_u32 v22, v%d, 2, 3', vLANE)
    a('v_lshl_add_u32 v21, v21, 4, v22')
    a('v_mul_u32_u24 v21, 160, v21')
    a('v_and_b32 v22, 3, v%d', vLANE)
    a('v_lshl_add_u32 v%d, v22, 3, v21', vA0)
    a('v_add_u32 v%d, %d, v%d', vA1, 10 * 5120, vA0)
    a('v_lshlrev_b32 v%d, 4, v%d', vOA, vLANE)
    a('v_lshrrev_b32 v21, 4, v%d', vLANE)
    a('v_mul_u32_u24 v21, %d, v21', 4 * 5120)
    a('v_and_b32 v22, 15, v%d', vLANE)
    a('v_lshl_add_u32 v%d, v22, 2, v21', vST)
    for r in range(1, 4):
        a('v_add_u32 v%d, %d, v%d', vST + r, 5120 * r, vST)
    a('s_mul_i32 s84, s%d, 2560', sOG)
    a('v_min_u32 v248, 19, v%d', vLANE)
    a('v_lshl_add_u32 v248, v248, 7, s84')
    a('s_lshl2_add_u32 s84, s%d, s%d', sTB, sW)
    a('s_mul_i32 s85, s84, %d', OBLK)
    a('s_add_u32 s85, s85, 0x%x', WS_O)
    a('s_mul_i32 s86, s84, %d', 16 * 5120)
    a('s_mul_i32 s88, s%d, 320', sOG)
    a('s_add_u32 s86, s86, s88')
    a('v_lshlrev_b32 v%d, 7, v%d', vOA + 1, vLANE)
    a('s_lshl_b32 s88, s%d, 12', sTB)
    a('s_add_u32 s88, s88, 0x%x', F4)
    acc = 80
    if OPT['p3dyn']:
        p3_groups(vA0, vOA, acc)
    else:
        p3_static(vA0, vA1, vOA, acc)
    a('s_nop 3')
    for j in range(5):
        for r in range(4):
            a('buffer_store_dword v%d, v%d, s[%d:%d], s86 offen offset:%d%s', acc + 4 * j + r, vST + r, R4, R4 + 3, 64 * j, OSC)
    finish('A')

vXR, vBR, vA0PW = 96, 100, 107
vL, vE, vHW, vHR0, vHR1, vHS, vCH, vCHL, vHH, vP01, vTCH, vHINT = 146, 150, 151, 152, 153, 154, 155, 156, 157, 158, 159, 160
vDX, vDW, vDBX, vDBB = 161, 165, 169, 173
vZ, vWOA, vPAR = 176, 186, 200
vCA, vCR, vHA = 248, 250, 252
vOS = 194
vSPW, vF3, vHT = 191, 192, 193
vAM = 248
vXO, vDO, vOA, vRA, vR1W, vR1R, vR2W, vPW1, vPW2, vAP4 = 164, 165, 166, 167, 169, 170, 171, 172, 173, 174
SENT = 0xffffffff

def s_stage(t, emit=None):
    out = []
    slot = (t % 4) * 32768
    if OPT['stag'] >= 8 and t < 10:
        out += ['s_bfe_u32 s82, s%d, 0x%x' % (86 + t // 8, (4 << 16) | (4 * (t % 8))),
                's_add_u32 s82, s82, s85', 's_cmp_ge_u32 s82, 10', 's_cselect_b32 s83, 10, 0', 's_sub_u32 s82, s82, s83']
    elif OPT['stag'] >= 5 and t < 10:
        base, size = {0: (0, 4), 1: (4, 4), 2: (8, 2)}[t // 4] if OPT['stag'] != 7 else ((0, 2) if t < 2 else ((2, 4) if t < 6 else (6, 4)))
        out += ['s_add_u32 s82, s81, %d' % t, 's_and_b32 s82, s82, %d' % (size - 1), 's_add_u32 s82, s82, %d' % base,
                's_add_u32 s82, s82, s85', 's_cmp_ge_u32 s82, 10', 's_cselect_b32 s83, 10, 0', 's_sub_u32 s82, s82, s83']
    out.append('s_add_u32 m0, s74, %d' % slot)
    out.append('s_lshl_b32 s83, s82, 7')
    out.append('s_add_u32 s76, s72, s83')
    if t < 10:
        out += [dma(vDX + i, R0, 76, 1024 * i) for i in range(4)]
        out.append('s_add_u32 m0, s74, %d' % (slot + 16384))
        out.append('s_mul_i32 s83, s82, 245760')
        out.append('s_add_u32 s76, s73, s83')
        out += [dma(vDW + i, R1, 76, 1024 * i) for i in range(4)]
    else:
        out += [dma(vDBX + i, R3, 76, 1024 * i) for i in range(4)]
        out.append('s_add_u32 m0, s75, %d' % (slot + 16384))
        out.append('s_add_u32 s76, s77, s83')
        out += [dma(vDBB + i, R4, 76, 1024 * i) for i in range(3)]
    if not (OPT['stag'] >= 5 and t < 10):
        out.append('s_add_u32 s82, s82, 1')
        out.append('s_cmp_eq_u32 s82, 10')
        out.append('s_cselect_b32 s82, 0, s82')
    if emit is None:
        L = a.newlabel('skip')
        if t < 10:
            a('s_cmp_eq_u32 s%d, 15', sCG)
            a('s_cbranch_scc1 %s', L)
        for o in out:
            a(o)
        if t < 10:
            a.label(L)
    return out

def ninstr(t):
    return 0 if t > 19 else (8 if t < 10 else 7)

def exp_acc(dst, x, t1, t2):
    L2E = math.log2(math.e)
    hi = struct.unpack('<f', struct.pack('<f', L2E))[0]
    a('s_mov_b32 s80, 0x%x', f2u(hi))
    a('v_mul_f32 v%d, s80, v%d', t1, x)
    a('v_fma_f32 v%d, v%d, s80, -v%d', t2, x, t1)
    a('v_fmac_f32 v%d, 0x%x, v%d', t2, f2u(L2E - hi), x)
    a('v_exp_f32 v%d, v%d', dst, t1)
    a('v_mul_f32 v%d, 0x%x, v%d', t2, f2u(math.log(2.0)), t2)
    a('v_fmac_f32 v%d, v%d, v%d', dst, dst, t2)

def s_setup():
    a.label('L_roleS')
    a('s_sub_u32 s%d, s%d, 4', sW, sW)
    a('v_lshrrev_b32 v1, 3, v%d', vLANE)
    a('v_and_b32 v2, 7, v%d', vLANE)
    a('v_lshrrev_b32 v3, 4, v%d', vLANE)
    a('v_xor_b32 v4, v2, v3')
    a('v_mul_u32_u24 v5, 1280, v1')
    a('v_lshl_add_u32 v%d, v4, 4, v5', vDX)
    a('v_xor_b32 v6, 64, v%d', vDX)
    a('v_add_u32 v%d, %d, v6', vDX + 1, 10240 - 1024)
    a('v_add_u32 v%d, %d, v%d', vDX + 2, 2 * (10240 - 1024), vDX)
    a('v_add_u32 v%d, %d, v6', vDX + 3, 3 * (10240 - 1024))
    a('v_and_b32 v7, 15, v%d', vLANE)
    a('v_lshlrev_b32 v8, 2, v3')
    a('v_xor_b32 v7, v7, v8')
    a('v_mul_u32_u24 v8, 3840, v3')
    a('v_lshl_add_u32 v%d, v7, 4, v8', vDW)
    for i in range(1, 4):
        a('v_add_u32 v%d, %d, v%d', vDW + i, (15360 - 1024) * i, vDW)
    a('s_lshl2_add_u32 s72, s%d, s%d', sRB, sW)
    a('s_mul_i32 s72, s72, %d', 32 * 1280)
    a('s_mul_i32 s73, s%d, %d', sW, 16 * 3840)
    a('s_lshl_b32 s70, s%d, 8', sCG)
    a('s_add_u32 s73, s73, s70')
    a('s_lshl_b32 s74, s%d, 12', sW)
    if OPT['stag'] <= 4:
        stagger(82, 83, 0, 0, OPT['stag'])
    else:
        a('s_add_u32 s81, s%d, s%d', sI, sOG)
        a('s_add_u32 s85, s%d, 1', sXCD)
        a('s_lshr_b32 s85, s85, 1')
        a('s_mul_i32 s85, s85, %d', 2 if OPT['stag'] in (5, 8, 9, 10, 11) else 0)
        if OPT['stag'] >= 8:
            T = {8: ['0412385679', '1253049678', '2306145789', '3012745689'],
                 9: ['0142385679', '1253094678', '2306145789', '3017245689'],
                 10: ['0124358679', '1235049678', '2301645789', '3012745689'],
                 11: ['0412835679', '1523904678', '2360145789', '3071245689']}[OPT['stag']]
            for r in T:
                assert sorted(r) == list('0123456789')
            lo = [int(r[:8][::-1], 16) for r in T]
            hi = sum(int(r[8:][::-1], 16) << (8 * c) for c, r in enumerate(T))
            a('s_and_b32 s81, s81, 3')
            a('s_mov_b32 s86, 0x%x', lo[0])
            for c in range(1, 4):
                a('s_cmp_eq_u32 s81, %d', c)
                a('s_cselect_b32 s86, 0x%x, s86', lo[c])
            a('s_lshl_b32 s81, s81, 3')
            a('s_lshr_b32 s87, 0x%x, s81', hi)
    a('s_mov_b32 s%d, 0x%x', R0 + 2, 2048 * 1280)
    a('s_mov_b32 s%d, 0x20000', R0 + 3)
    a('s_mov_b32 s%d, 0x%x', R1 + 2, 640 * 3840)
    a('s_mov_b32 s%d, 0x20000', R1 + 3)
    st0 = s_stage(0, emit=False)
    k = next(i for i, o in enumerate(st0) if o.startswith('buffer_load'))
    for o in st0[:k]:
        a(o)
    a('s_cmp_eq_u32 s%d, 15', sCG)
    a('s_waitcnt lgkmcnt(0)')
    a('s_mov_b64 s[%d:%d], s[%d:%d]', R0, R0 + 1, sAX, sAX + 1)
    a('s_mov_b64 s[%d:%d], s[%d:%d]', R1, R1 + 1, sWQ, sWQ + 1)
    if DIAG:
        ws_setup()
    stamp('S', 'start')
    a('s_cbranch_scc1 L_skip0')
    for o in st0[k:]:
        a(o)
    a.label('L_skip0')
    if not DIAG:
        prologue2()
        ws_setup()
    if OPT['fine'] == 1:
        stamp('S', 'iss0')
    def params():
        a('s_mul_i32 s70, s%d, 40', sG)
        a('v_min_u32 v9, 39, v%d', vLANE)
        a('v_add_lshl_u32 v9, v9, s70, 1')
        a('global_load_ushort v10, v9, s[%d:%d]', sLDT, sLDT + 1)
        a('global_load_ushort v11, v9, s[%d:%d]', sLRE, sLRE + 1)
        a('global_load_ushort v12, v9, s[%d:%d]', sLIM, sLIM + 1)
    params()
    n0 = len(a.lines)
    b1_sources(R3, R4, vDBX, vDBB, 75, 77, 70)
    a('v_and_b32 v5, 3, v%d', vLANE)
    a('v_lshlrev_b32 v5, 8, v5')
    a('v_lshl_add_u32 v5, v%d, 2, v5', vLANE)
    a('v_add_u32 v%d, %d, v5', vSPW, L_PW + 1024)
    s_addresses()
    if OPT['slate']:
        late = a.lines[n0:]
        del a.lines[n0:]
        k = 0
        nch = OPT['slate']
        for c in range(nch):
            e = len(late) * (c + 1) // nch
            while e < len(late) and ('cselect' in late[e] or 'cndmask' in late[e] or 'cndmask' in late[e + 1] or 'cndmask' in late[min(e + 2, len(late) - 1)]):
                e += 1
            SLATE.append(late[k:e])
            k = e
    s_stage(1)
    if OPT['fine'] == 1:
        stamp('S', 'iss1')
    a('s_waitcnt vmcnt(11) lgkmcnt(0)')
    stamp('S', 'st0')
    a('s_barrier')
    s_stage(2)
    slate()
    a('s_waitcnt vmcnt(8)')
    a('s_barrier')
    s_stage(3)
    s_stage(4)

SLATE = []

def slate():
    if SLATE:
        a.lines.extend(SLATE.pop(0))

def s_addresses():
    c, g, t0, t1, t2 = 40, 41, 42, 43, 44
    a('v_and_b32 v%d, 15, v%d', c, vLANE)
    a('v_lshrrev_b32 v%d, 4, v%d', g, vLANE)
    a('v_lshrrev_b32 v%d, 1, v%d', t0, c)
    a('v_xor_b32 v%d, v%d, v%d', t0, t0, g)
    a('v_lshlrev_b32 v%d, 4, v%d', t0, t0)
    a('v_lshl_add_u32 v%d, v%d, 7, v%d', t0, c, t0)
    a('v_xor_b32 v%d, 64, v%d', t1, t0)
    a('v_add_u32 v%d, s74, v%d', vXR, t0)
    a('v_add_u32 v%d, s74, v%d', vXR + 1, t1)
    a('s_mul_i32 s70, s%d, %d', sW, REGSZ)
    a('s_add_u32 s70, s70, %d', L_REG)
    a('v_add_u32 v%d, s70, v%d', vCR, t0)
    a('v_add_u32 v%d, s70, v%d', vCR + 1, t1)
    a('v_lshrrev_b32 v%d, 3, v%d', t2, c)
    a('v_lshl_add_u32 v%d, v%d, 12, v%d', t0, t2, t0)
    a('v_add_u32 v%d, 16384, v%d', vBR, t0)
    a('v_xor_b32 v%d, 64, v%d', vBR + 1, vBR)
    for k in range(2):
        a('v_add_u32 v%d, 0x10000, v%d', vXR + 2 + k, vXR + k)
        a('v_add_u32 v%d, 0x10000, v%d', vBR + 2 + k, vBR + k)
    a('v_and_b32 v%d, 7, v%d', t0, vLANE)
    a('v_lshlrev_b32 v%d, 2, v%d', t2, t2)
    a('v_lshl_add_u32 v%d, v%d, 3, v%d', t0, t0, t2)
    a('v_add_u32 v%d, %d, v%d', vHH, L_H, t0)
    a('v_mul_u32_u24 v%d, 320, v%d', t1, g)
    a('s_mul_i32 s71, s%d, 1280', sW)
    a('s_add_u32 s71, s71, %d', L_EL)
    a('v_add3_u32 v%d, v%d, v%d, s71', vE, t0, t1)
    a('v_lshlrev_b32 v%d, 3, v%d', vCH, vLANE)
    a('v_add_u32 v%d, %d, v%d', vCHL, L_H, vCH)
    a('v_lshlrev_b32 v%d, 9, v%d', vHINT, vLANE)
    a('v_lshlrev_b32 v%d, 2, v%d', vA0PW, vLANE)
    a('v_add_u32 v%d, %d, v%d', vA0PW, L_PW, vA0PW)
    a('v_and_b32 v%d, 0x%x, v%d', vP01, 0xffffffff ^ 512, vSPW)
    a('v_bfe_u32 v%d, v%d, 1, 2', t0, vLANE)
    a('v_xor_b32 v%d, v%d, v%d', t0, t0, g)
    a('v_lshlrev_b32 v%d, 4, v%d', t0, t0)
    a('s_mul_i32 s71, s%d, 5120', sW)
    a('s_add_u32 s71, s71, %d', L_HT)
    a('v_lshl_add_u32 v%d, v%d, 6, v%d', t0, c, t0)
    a('v_add_u32 v%d, s71, v%d', vHW, t0)
    a('v_bfe_u32 v%d, v%d, 2, 2', t0, vLANE)
    a('v_lshrrev_b32 v%d, 5, v%d', t1, vLANE)
    a('v_lshl_add_u32 v%d, v%d, 3, v%d', vHR0, t1, t0)
    a('v_lshlrev_b32 v%d, 6, v%d', vHR0, vHR0)
    a('v_mul_u32_u24 v%d, %d, v%d', vHS, 80 * 256, t1)
    a('v_lshrrev_b32 v%d, 1, v%d', t0, t0)
    a('v_bfe_u32 v%d, v%d, 4, 1', t1, vLANE)
    a('v_bfe_u32 v%d, v%d, 1, 1', t2, vLANE)
    a('v_lshl_add_u32 v%d, v%d, 1, v%d', t2, t1, t2)
    a('v_xor_b32 v%d, v%d, v%d', t2, t2, t0)
    a('v_lshl_add_u32 v%d, v%d, 4, v%d', vHR0, t2, vHR0)
    a('v_and_b32 v%d, 1, v%d', t2, vLANE)
    a('v_lshl_add_u32 v%d, v%d, 3, v%d', vHR0, t2, vHR0)
    a('v_xor_b32 v%d, 32, v%d', vHR1, vHR0)
    a('v_add_u32 v%d, s71, v%d', vHR0, vHR0)
    a('v_add_u32 v%d, s71, v%d', vHR1, vHR1)
    a('v_mul_u32_u24 v%d, %d, v%d', t1, HBLK, t1)
    a('v_lshl_add_u32 v%d, v%d, 4, v%d', t1, c, t1)
    a('v_add_u32 v%d, v%d, v%d', vHS, vHS, t1)
    if OPT['otag'] and not OPT['amark']:
        a('v_bfe_u32 v%d, v%d, 4, 1', t0, vLANE)
        a('v_mul_u32_u24 v%d, %d, v%d', t0, OBLK, t0)
        a('v_lshl_add_u32 v%d, v%d, 4, v%d', t0, c, t0)
        a('v_lshrrev_b32 v%d, 5, v%d', t1, vLANE)
        a('v_mul_u32_u24 v%d, %d, v%d', t2, 2 * OBLK, t1)
        a('v_add_u32 v%d, v%d, v%d', vOS + 1, t2, t0)
        a('v_lshl_add_u32 v%d, v%d, 8, v%d', vOS, t1, t0)
        for k in range(4):
            a('v_mov_b32 v%d, -1', vOS + 2 + k)
    a('v_mov_b32 v%d, v%d', vCA, vDX)
    a('v_mov_b32 v%d, v%d', vCA + 1, vDX + 1)
    a('v_lshlrev_b32 v%d, 4, v%d', vHA, vLANE)
    a('v_lshlrev_b32 v%d, 7, v%d', vF3, vLANE)
    a('v_min_u32 v%d, %d, v%d', vHT, 39 * 128, vF3)
    a('s_xor_b32 s92, s%d, 1', sW)
    a('s_mul_i32 s92, s92, %d', REGSZ)
    a('s_add_u32 s92, s92, %d', L_REG)
    a('s_xor_b32 s93, s%d, 3', sW)
    a('s_mul_i32 s93, s93, %d', REGSZ)
    a('s_add_u32 s93, s93, %d', L_REG + 16 * 336)
    if not OPT['wopack']:
        s_wooffs()

def s_params():
    a('s_cmp_eq_u32 s%d, 0', sW)
    a('s_cbranch_scc0 L_nopar')
    for r in (10, 11, 12):
        a('v_lshlrev_b32 v%d, 16, v%d', r, r)
    exp_acc(13, 10, 14, 15)
    a('v_cvt_pk_bf16_f32 v13, v13, v13')
    a('v_and_b32 v13, 0xffff0000, v13')
    a('v_mul_f32 v14, v13, v11')
    a('v_mul_f32 v15, v13, v12')
    exp_acc(16, 14, 17, 18)
    I2P = 1.0 / (2 * math.pi)
    hi = struct.unpack('<f', struct.pack('<f', I2P))[0]
    a('s_mov_b32 s80, 0x%x', f2u(hi))
    a('v_mul_f32 v17, s80, v15')
    a('v_rndne_f32 v17, v17')
    a('v_fma_f32 v17, v15, s80, -v17')
    a('v_fmac_f32 v17, 0x%x, v15', f2u(I2P - hi))
    a('v_cos_f32 v20, v17')
    a('v_sin_f32 v21, v17')
    a('v_mul_f32 v18, v11, v11')
    a('v_fmac_f32 v18, v12, v12')
    a('v_rcp_f32 v19, v18')
    a('v_mul_f32 v20, v16, v20')
    a('v_mul_f32 v21, v16, v21')
    a('v_fma_f32 v18, -v18, v19, 1.0')
    a('v_fmac_f32 v19, v19, v18')
    a('v_add_f32 v19, v19, v19')
    a('v_add_f32 v17, -1.0, v20')
    a('v_mul_f32 v22, v17, v11')
    a('v_fmac_f32 v22, v21, v12')
    a('v_mul_f32 v23, v17, v12')
    a('v_fma_f32 v23, -v21, v11, v23')
    a('v_mul_f32 v22, v22, v19')
    a('v_mul_f32 v23, v23, v19')
    a('v_lshlrev_b32 v9, 4, v%d', vLANE)
    a('v_add_u32 v9, %d, v9', L_PAR)
    a('ds_write_b128 v9, v[20:23]')
    a('v_mov_b32 v24, v20')
    a('v_sub_f32 v25, 0, v21')
    for k in range(3):
        a('v_mul_f32 v26, v25, v25')
        a('v_add_f32 v27, v24, v24')
        a('v_fma_f32 v24, v24, v24, -v26')
        a('v_mul_f32 v25, v27, v25')
    a.label('L_nopar')

def s_params2():
    a('s_cmp_eq_u32 s%d, 0', sW)
    a('s_cbranch_scc0 L_nopar2')
    a('s_mov_b32 exec_hi, 0xff')
    a('v_mov_b32 v14, 1.0')
    a('v_mov_b32 v15, 0')
    a('ds_write_b64 v%d, v[14:15] offset:%d', vCHL, L_Z - L_H)
    a('ds_write_b64 v%d, v[24:25] offset:%d', vCHL, L_Z - L_H + 320)
    src = 24
    for sg in range(2, 17):
        dst = 16 + 2 * (sg % 3)
        a('v_mul_f32 v%d, v24, v%d', dst, src)
        a('v_mul_f32 v%d, v24, v%d', dst + 1, src + 1)
        a('v_fma_f32 v%d, -v25, v%d, v%d', dst, src + 1, dst)
        a('v_fmac_f32 v%d, v25, v%d', dst + 1, src)
        a('ds_write_b64 v%d, %s offset:%d', vCHL, v(dst, 2), L_Z - L_H + 320 * sg)
        src = dst
    a('s_mov_b32 exec_hi, -1')
    a('s_waitcnt lgkmcnt(0)')
    a.label('L_nopar2')

def s_wooffs():
    for i in range(5):
        a('v_add_u32 v40, %d, v%d', 64 * i, vLANE)
        a('v_mul_u32_u24 v41, 6554, v40')
        a('v_lshrrev_b32 v41, 16, v41')
        a('v_mul_u32_u24 v42, 10, v41')
        a('v_sub_u32 v40, v40, v42')
        tau(42, 41, 43)
        a('v_mul_u32_u24 v42, 1280, v42')
        a('v_lshl_add_u32 v%d, v40, 4, v42', vWOA + i)
        if 0 < i < 4:
            a('v_subrev_u32 v%d, %d, v%d', vWOA + i, 1024 * i, vWOA + i)

def s_qloader():
    early = {1: {7: 10}, 2: {7: 10, 9: 11}, 3: {7: 10, 8: 11, 9: 12}, 0: {}}[OPT['st10']]
    q = [2] * 8 + [3] * 8 + [4] * 8
    for st in range(2, 10):
        a('s_waitcnt vmcnt(%d)', len(q) - 1 - max(i for i, x in enumerate(q) if x == st))
        if OPT['fine'] == 1 and st in (2, 4, 6, 7, 8, 9):
            stamp('S', 'st%d' % st)
        a('s_barrier')
        if st == 6:
            a('v_and_b32 v32, 15, v%d', vLANE)
            a('v_lshlrev_b32 v32, 4, v32')
            a('v_mov_b32 v33, 1')
            a('s_cmp_eq_u32 s%d, 3', sW)
            a('s_cbranch_scc0 L_nodbg')
            a(dbgload(32, 33))
            a.label('L_nodbg')
            a('s_cmp_eq_u32 s%d, 15', sCG)
            a('s_cbranch_scc0 L_cw')
            a('s_waitcnt vmcnt(0)')
            a.label('L_cw')
        if st <= 6:
            s_stage(st + 3)
            q += [st + 3] * 8
            slate()
        if st == OPT['pretouch']:
            a('s_cmp_eq_u32 s%d, 2', sW)
            a('s_cselect_b32 s70, s%d, s%d', sBRE, sBIM)
            a('s_cselect_b32 s71, s%d, s%d', sBRE + 1, sBIM + 1)
            a('s_mul_i32 s83, s2, 3200')
            a('s_lshl1_add_u32 s84, s2, s%d', sW)
            a('s_mul_i32 s84, s84, 5120')
            a('s_cmp_lt_u32 s%d, 2', sW)
            a('s_cselect_b32 s70, s%d, s70', sBX)
            a('s_cselect_b32 s71, s%d, s71', sBX + 1)
            a('s_cselect_b32 s83, s84, s83')
            a('s_cselect_b32 s84, 39, 24')
            a('v_min_u32 v30, s84, v%d', vLANE)
            a('v_lshl_add_u32 v30, v30, 7, s83')
            a('global_load_dword v31, v30, s[70:71]')
            q.append('t')
        if st == 7:
            stagger(82, 83, 0, OPT['flip'], OPT['stagb'])
        if st in early:
            s_stage(early[st])
            q += [early[st]] * 7
        if st == 7 and not OPT['plate']:
            s_params()
        if st == 8 and not OPT['plate']:
            s_params2()

    a('v_cmp_eq_u32 vcc, 0, v33')
    a('s_cbranch_vccz L_clrok')
    pollflags([dbgload(32, 33)], 33, sleep=8)
    a.label('L_clrok')
    a('s_barrier')
    stamp('S', 'qend')
    if OPT['plate']:
        s_params()
        s_params2()
    else:
        s_consts()

def s_consts():
    a('v_and_b32 v104, 7, v%d', vLANE)
    a('v_lshlrev_b32 v104, 4, v104')
    a('v_add_u32 v104, %d, v104', L_PAR)
    for j in range(5):
        a('ds_read_b128 %s, v104 offset:%d', v(vPAR + 4 * j, 4), 128 * j)
    a('v_and_b32 v105, -8, v%d', vE)
    a('v_add_u32 v105, %d, v105', L_Z - L_EL)
    for j in range(5):
        a('ds_read_b64 %s, v105 offset:%d', v(vZ + 2 * j, 2), 64 * j)
    a('s_cmp_eq_u32 s%d, 0', sW)
    a('s_cselect_b32 s70, 1, 16')
    a('s_mul_i32 s70, s70, 320')
    a('v_add_u32 v106, s70, v%d', vCHL)
    a('ds_read_b64 %s, v106 offset:%d', v(vL, 2), L_Z - L_H)
    a('v_bfe_u32 v145, v%d, 3, 1', vLANE)
    a('v_lshlrev_b32 v145, 31, v145')
    a('v_xor_b32 v144, 0x80000000, v145')
    a('s_waitcnt lgkmcnt(0)')
    for j in range(5):
        a('v_xor_b32 v%d, v145, v%d', vPAR + 4 * j + 1, vPAR + 4 * j + 1)
        a('v_xor_b32 v%d, v145, v%d', vPAR + 4 * j + 2, vPAR + 4 * j + 2)
        a('v_xor_b32 v%d, v144, v%d', vZ + 2 * j + 1, vZ + 2 * j + 1)

def touch(r, va=None):
    o = ['s_add_u32 s84, s%d, %d' % (sXCD, r),
         's_cmp_ge_u32 s84, 6', 's_cselect_b32 s85, 6, 0', 's_sub_u32 s84, s84, s85',
         's_cmp_ge_u32 s84, 6', 's_cselect_b32 s85, 6, 0', 's_sub_u32 s84, s84, s85',
         's_cmp_ge_u32 s84, 2',
         's_cselect_b32 s86, s%d, s%d' % (sCRE, sWO), 's_cselect_b32 s87, s%d, s%d' % (sCRE + 1, sWO + 1),
         's_cmp_ge_u32 s84, 4',
         's_cselect_b32 s86, s%d, s86' % sCIM, 's_cselect_b32 s87, s%d, s87' % (sCIM + 1),
         's_and_b32 s84, s84, 1', 's_mul_i32 s84, s84, 3200',
         's_add_u32 s86, s86, s84', 's_addc_u32 s87, s87, 0',
         'global_load_dword v109, v%d, s[86:87]' % (va or vTCH)]
    return o

def s_b1():
    F = [40, 68]
    def reads(t, ks, f):
        slot = t % 4
        hi, lo = slot >> 1, (slot & 1) * 32768
        r = ['ds_read_b128 %s, v%d offset:%d' % (v(f + 4 * T, 4), vXR + 2 * hi + ks, lo + 2048 * T) for T in range(2)]
        r += ['ds_read_b128 %s, v%d offset:%d' % (v(f + 8 + 4 * j, 4), vBR + 2 * hi + ks, lo + 1024 * j) for j in range(5)]
        return r
    def mfmas(f, first):
        return ['v_mfma_f32_16x16x32_bf16 %s, %s, %s, %s' % (v(8 * j + 4 * T, 4), v(f + 4 * T, 4), v(f + 8 + 4 * j, 4),
                '0' if first else v(8 * j + 4 * T, 4)) for j in range(5) for T in range(2)]
    def weave(ms, others):
        n = len(ms)
        k = 0
        for i_, m in enumerate(ms):
            a(m)
            while k < len(others) * (i_ + 1) // n:
                a(others[k])
                k += 1
    first = 10 + OPT['st10']
    a('s_lshl4_add_u32 s84, s%d, s%d', sCG, sRB)
    flagaddr(84, 84, F1, 85)
    a('s_waitcnt vmcnt(%d)', max(0, 7 * (first - 11)))
    a('s_barrier')
    for r in reads(10, 0, F[0]):
        a(r)
    for u in range(10):
        t = 10 + u
        if OPT['fine'] == 1 and u in (0, 2, 3, 4, 8):
            stamp('S', 'b1w%d' % u)
        a('s_waitcnt lgkmcnt(0)')
        m0_ = mfmas(F[0], u == 0)
        weave(m0_[:4], reads(t, 1, F[1]))
        for m in m0_[4:]:
            a(m)
        m1_ = mfmas(F[1], False)
        if u < 9:
            if t + 1 < first:
                a('s_waitcnt vmcnt(%d) lgkmcnt(0)', 7 * (first - t - 2))
            else:
                if t + 1 == first and OPT['plate']:
                    s_consts()
                a('s_waitcnt lgkmcnt(0)')
            a('s_barrier')
            if t + 1 == first:
                a('s_cmp_eq_u32 s%d, 3', sW)
                a('s_cbranch_scc0 L_noflag')
                setflag(84, 104)
                a.label('L_noflag')
            weave(m1_[:4], reads(t + 1, 0, F[0]))
            for m in m1_[4:]:
                a(m)
        else:
            a('s_waitcnt lgkmcnt(0)')
            for m in m1_:
                a(m)
    stamp('S', 'b1gemm')

def rot5(dst, t):
    a('s_and_b32 s%d, s%d, 3', dst, sI)
    a('s_add_u32 s%d, s%d, s%d', dst, dst, sXCD)
    for _ in range(2):
        a('s_cmp_ge_u32 s%d, 5', dst)
        a('s_cselect_b32 s%d, 5, 0', t)
        a('s_sub_u32 s%d, s%d, s%d', dst, dst, t)
    if not OPT['rot5']:
        a('s_mov_b32 s%d, 0', dst)

def s_wo():
    if OPT['wopack']:
        a('s_mov_b32 s73, 0x%x', F1 + 15 * 16 * 128)
        a('s_mov_b64 exec, 0xffff')
        pollflags(['buffer_load_dword v40, v%d, s[%d:%d], s73 offen sc1' % (vF3, RWS, RWS + 3)], 40, sleep=4)
        rot5(83, 73)
        a('s_mul_i32 s75, s%d, 102400', sOG)
        a('s_add_u32 s75, s75, 0x%x', WS_WP)
        a('s_mov_b32 s77, 5')
        a.label('L_woloop')
        a('s_lshl2_add_u32 s78, s83, s%d', sW)
        a('s_mul_i32 s78, s78, 5120')
        a('s_add_u32 s79, s78, s75')
        a('s_mov_b32 m0, s78')
        for i in range(5):
            if i == 4:
                a('s_add_u32 m0, s78, 4096')
                a('s_add_u32 s79, s79, 4096')
            a('s_waitcnt vmcnt(%d)', OPT['thrw'])
            a(dma(vHA, RWS, 79, 1024 * (i & 3)).replace(' lds', ' sc1 lds'))
    else:
        srd(R0, sWO, 640 * 1280)
        rot5(83, 73)
        a('s_mul_i32 s75, s%d, 160', sOG)
        a('s_mov_b32 s77, 5')
        a.label('L_woloop')
        a('s_lshl2_add_u32 s78, s83, s%d', sW)
        a('s_mul_i32 s79, s78, 40960')
        a('s_add_u32 s79, s79, s75')
        a('s_mul_i32 s78, s78, 5120')
        a('s_mov_b32 m0, s78')
        a('s_add_u32 s73, s78, 4096')
        for i in range(5):
            if i == 4:
                a('s_mov_b32 m0, s73')
            a('s_waitcnt vmcnt(%d)', OPT['thrw'])
            a(dma(vWOA + i, R0, 79, 1024 * (i & 3)))
    a('s_add_u32 s83, s83, 1')
    a('s_cmp_eq_u32 s83, 5')
    a('s_cselect_b32 s83, 0, s83')
    a('s_sub_u32 s77, s77, 1')
    a('s_cmp_lg_u32 s77, 0')
    a('s_cbranch_scc1 L_woloop')
    for kp in range(5):
        a('s_lshl_b32 s73, s83, 7')
        a('s_add_u32 s%d, s72, s73', 4 + kp)
        a('s_lshl_b32 s%d, s83, 11', 12 + kp)
        a('s_add_u32 s83, s83, 1')
        a('s_cmp_eq_u32 s83, 5')
        a('s_cselect_b32 s83, 0, s83')

def s_mark(both):
    a('s_and_b32 s78, s%d, 1', sW)
    a('s_lshl1_add_u32 s78, s%d, s78', sQB)
    a('s_lshr_b32 s79, s%d, 1', sW)
    a('s_lshl1_add_u32 s78, s78, s79')
    a('s_mul_i32 s78, s78, %d', 4 * OBLK)
    a('s_lshr_b32 s79, s%d, 1', sHD)
    a('s_mul_i32 s79, s79, 1280')
    a('s_add_u32 s78, s78, s79')
    a('s_add_u32 s78, s78, 0x%x', WS_O)
    a('s_and_b32 s79, s%d, 1', sHD)
    a('s_mul_i32 s73, s79, 768')
    a('s_add_u32 s73, s73, s78')
    a('s_add_u32 s75, s73, %d', 2 * OBLK)
    a('s_lshl3_add_u32 s78, s79, s78')
    for k in range(2 if both else 1):
        if k:
            for r in (73, 75, 78):
                a('s_sub_u32 s%d, s%d, %d', r, r, 4 * OBLK)
        a('buffer_store_dwordx4 %s, v%d, s[%d:%d], s73 offen sc1', v(vOS + 2, 4), vOS, RWS, RWS + 3)
        a('buffer_store_dwordx4 %s, v%d, s[%d:%d], s75 offen sc1', v(vOS + 2, 4), vOS, RWS, RWS + 3)
        a('buffer_store_dwordx2 %s, v%d, s[%d:%d], s78 offen offset:512 sc1', v(vOS + 2, 2), vOS + 1, RWS, RWS + 3)

def s_scan():
    ROR = 'row_ror:8 row_mask:0xf bank_mask:0xf'
    a('s_setprio 1')
    a('s_lshl_b32 s70, s%d, 13', sG)
    a('s_add_u32 s70, s70, 0x%x', WS_E)
    a('s_add_u32 s70, s70, s%d', sWS)
    a('s_addc_u32 s71, s%d, 0', sWS + 1)
    srd(R5, 70, 8192)
    a('s_sub_u32 s70, 15, s%d', sRB)
    a('s_lshl_b32 s70, s70, 9')
    a('s_add_u32 s71, s70, 4096')
    tmp = 40
    for j in range(5):
        for k in range(8):
            a('v_mul_f32_dpp v%d, v%d, v%d %s', tmp + k, 8 * j + k, vPAR + 4 * j + 3, ROR)
        for k in range(8):
            a('v_fma_f32 v%d, v%d, v%d, v%d', 8 * j + k, vPAR + 4 * j + 2, 8 * j + k, tmp + k)
    e = [[8 * j for j in range(5)], [50 + j for j in range(5)], [56 + j for j in range(5)]]
    cur = e[0]
    for k in range(1, 8):
        nx = e[1 + (k & 1)]
        for j in range(5):
            a('v_fma_f32 v%d, v%d, v%d, v%d', nx[j], vPAR + 4 * j, cur[j], 8 * j + k)
        for j in range(5):
            a('v_fmac_f32_dpp v%d, v%d, v%d %s', nx[j], cur[j], vPAR + 4 * j + 1, ROR)
        cur = nx
    for j in range(5):
        a('ds_write_b32 v%d, v%d offset:%d', vE, cur[j], 64 * j)
    setpw(11, 104)
    for r in range(10 - OPT['tstart'], 0 if OPT['tlate'] else 6):
        a('s_waitcnt vmcnt(0)')
        for o in touch(r):
            a(o)
    stamp('S', 'pass1')
    def chain(dst, src, add):
        a('v_fma_f32 v%d, v%d, v%d, v%d', dst, vL, src, add)
        a('v_fma_f32 v%d, v%d, v%d, v%d', dst + 1, vL, src + 1, add + 1)
        a('v_fma_f32 v%d, -v%d, v%d, v%d', dst, vL + 1, src + 1, dst)
        a('v_fmac_f32 v%d, v%d, v%d', dst + 1, vL + 1, src)
    ES = 110
    a('s_cmp_eq_u32 s%d, 1', sW)
    a('s_cbranch_scc1 L_wave1')
    a('s_cmp_eq_u32 s%d, 0', sW)
    a('s_cbranch_scc0 L_wave23')
    waitpw(vSPW, 11, 105, sleep=1)
    a('s_mov_b32 exec_hi, 0xff')
    for sg in range(16):
        a('ds_read_b64 %s, v%d offset:%d', v(ES + 2 * sg, 2), vCHL, L_EL - L_H + 320 * sg)
    a('v_mov_b32 v142, 0')
    a('v_mov_b32 v143, 0')
    a('s_waitcnt lgkmcnt(0)')
    a('ds_write_b64 v%d, v[142:143] offset:%d', vCHL, L_PL - L_H)
    for sg in range(1, 16):
        a('ds_write_b64 v%d, %s offset:%d', vCHL, v(ES + 2 * sg - 2, 2), L_PL - L_H + 320 * sg)
        chain(ES + 2 * sg, ES + 2 * sg - 2, ES + 2 * sg)
    a('v_min_u32 v%d, -2, v%d', ES + 30, ES + 30)
    a('v_min_u32 v%d, -2, v%d', ES + 31, ES + 31)
    a('buffer_store_dwordx2 %s, v%d, s[%d:%d], s70 offen sc1', v(ES + 30, 2), vCH, R5, R5 + 3)
    a('s_mov_b32 exec_hi, -1')
    setpw(12, 104)
    a('s_branch L_coldone')
    a.label('L_wave1')
    a.label('L_hint')
    a('buffer_load_dword v105, v%d, s[%d:%d], s70 offen offset:512 sc1', vHINT, R5, R5 + 3)
    a('s_waitcnt vmcnt(0)')
    a('v_cmp_eq_u32 vcc, -1, v105')
    a('s_cbranch_vccz L_hintok')
    a('s_mov_b64 exec, vcc')
    a('s_sleep 3')
    a.label('L_hint2')
    a('s_sub_u32 s%d, s%d, 1', sSPIN, sSPIN)
    a('s_cbranch_scc0 L_hint')
    a('s_endpgm')
    a.label('L_hintok')
    a('s_mov_b32 exec_lo, -1')
    a('s_mov_b32 exec_hi, 0xff')
    for k in range(15, 0, -1):
        a('buffer_load_dwordx2 %s, v%d, s[%d:%d], s%d offen offset:%d sc1', v(ES + 2 * (15 - k), 2), vCH, R5, R5 + 3,
          71 if k >= 8 else 70, 512 * (k & 7))
    a('s_waitcnt vmcnt(0)')
    a('v_max_u32 v105, v%d, v%d', ES, ES + 1)
    for n in range(1, 15):
        a('v_max3_u32 v105, v105, v%d, v%d', ES + 2 * n, ES + 2 * n + 1)
    a('v_cmp_eq_u32 vcc, -1, v105')
    a('s_cbranch_vccnz L_hint2')
    for n in range(1, 15):
        chain(ES + 2 * n, ES + 2 * n - 2, ES + 2 * n)
    a('ds_write_b64 v%d, %s', vCHL, v(ES + 28, 2))
    a('s_mov_b32 exec_hi, -1')
    setpw(12, 104)
    a('s_branch L_coldone')
    a.label('L_wave23')
    if OPT['otag'] and not OPT['amark'] and OPT['smark']:
        if OPT['smark'] == 1:
            waitpw(vA0PW, 5, 105, sleep=2)
        s_mark(True)
    if OPT['woe']:
        E = OPT['woe']
        srd(R0, sWO, 640 * 1280)
        a('s_mul_i32 s75, s%d, 160', sOG)
        a('s_and_b32 s83, s%d, 3', sI)
        a('s_add_u32 s83, s83, s%d', sXCD)
        waitpw(vA0PW, 5, 105, sleep=2)
        for it in range(E):
            a('s_add_u32 s78, s83, %d', it)
            a('s_and_b32 s78, s78, %d', E - 1)
            a('s_lshl1_add_u32 s78, s78, s%d', sW)
            a('s_sub_u32 s78, s78, 2')
            a('s_mul_i32 s79, s78, 40960')
            a('s_add_u32 s79, s79, s75')
            a('s_mul_i32 s78, s78, 5120')
            a('s_mov_b32 m0, s78')
            for i in range(5):
                if i == 4:
                    a('s_add_u32 m0, s78, 4096')
                a('s_waitcnt vmcnt(%d)', OPT['thre'])
                a(dma(vWOA + i, R0, 79, 1024 * (i & 3)))
    if OPT['gtouch']:
        a('s_cmp_eq_u32 s%d, 2', sW)
        a('s_cbranch_scc0 L_coldone')
        a('v_min_u32 v106, %d, v%d', 24 * 128, vF3)
        a('s_mul_i32 s78, s2, 3200')
        a('v_add_u32 v106, s78, v106')
        if OPT['gtouch'] == 1:
            waitpw(vA0PW, 5, 105, sleep=2)
        for p in (sCRE, sCIM, sWO):
            a('global_load_dword v109, v106, s[%d:%d]', p, p + 1)
    if OPT['tearly']:
        waitpw(vA0PW, 5, 105, sleep=2)
    for r in range(OPT['tearly']):
        for o in touch(r, vCT):
            a(o)
        if r + 1 < OPT['tearly']:
            a('s_waitcnt vmcnt(0)')
    a.label('L_coldone')
    a('s_lshl2_add_u32 s70, s%d, s%d', sRB, sW)
    a('s_mul_i32 s71, s70, %d', 2 * HBLK)
    a('s_mul_i32 s78, s%d, 1280', sG)
    a('s_add_u32 s71, s71, s78')
    a('s_add_u32 s71, s71, 0x%x', WS_H)
    a('s_lshl4_add_u32 s70, s70, s%d', sG)
    flagaddr(70, 70, F3, 78)
    waitpw(vP01, 12, 105, sleep=4)
    stamp('S', 'carry')
    for j in range(5):
        a('ds_read_b32 v%d, v%d offset:%d', 50 + j, vE, L_PL - L_EL + 64 * j)
        a('ds_read_b32 v%d, v%d offset:%d', 56 + j, vHH, 64 * j)
    a('s_waitcnt lgkmcnt(0)')
    for j in range(5):
        a('v_fmac_f32 v%d, v%d, v%d', 50 + j, vZ + 2 * j, 56 + j)
    for j in range(5):
        a('v_fmac_f32_dpp v%d, v%d, v%d %s', 50 + j, 56 + j, vZ + 2 * j + 1, ROR)
    for k in range(8):
        pr = [50 + j if k == 0 else 8 * j + k - 1 for j in range(5)]
        for j in range(5):
            a('v_fmac_f32 v%d, v%d, v%d', 8 * j + k, vPAR + 4 * j, pr[j])
        for j in range(5):
            a('v_fmac_f32_dpp v%d, v%d, v%d %s', 8 * j + k, pr[j], vPAR + 4 * j + 1, ROR)
    for j in range(5):
        for q in range(4):
            a('v_cvt_pk_bf16_f32 v%d, v%d, v%d', 64 + 4 * j + q, 8 * j + 2 * q, 8 * j + 2 * q + 1)
        a('ds_write_b128 v%d, %s offset:%d', vHW, v(64 + 4 * j, 4), 1024 * j)
        a('ds_read_b64_tr_b16 %s, v%d offset:%d', v(110 + 4 * j, 2), vHR0, 1024 * j)
        a('ds_read_b64_tr_b16 %s, v%d offset:%d', v(110 + 4 * j + 2, 2), vHR1, 1024 * j + 256)
    for j in range(5):
        a('s_waitcnt lgkmcnt(%d)', 12 - 3 * j)
        a('buffer_store_dwordx4 %s, v%d, s[%d:%d], s71 offen offset:%d sc1', v(110 + 4 * j, 4), vHS, RWS, RWS + 3, 256 * j)
    setpw(13, 104)

def s_b3():
    NS = 4
    acc, HF, CF = 0, 80, [208, 216]
    a('s_cmp_ge_u32 s%d, 2', sW)
    a('s_cselect_b32 s78, s%d, s%d', sCIM, sCRE)
    a('s_cselect_b32 s79, s%d, s%d', sCIM + 1, sCRE + 1)
    srd(R1, 78, 640 * 1280)
    srd(R6, sOUT, 2048 * 1280 * 4)
    a('s_mul_i32 s74, s%d, %d', sW, REGSZ)
    a('s_add_u32 s74, s74, %d', L_REG)
    a('s_and_b32 s78, s%d, 1', sW)
    a('s_mul_i32 s72, s%d, %d', sOG, 80 * 1280)
    a('s_mul_i32 s73, s78, 640')
    a('s_add_u32 s72, s72, s73')
    a('s_mul_i32 s79, s%d, %d', sW, 40 * 256)
    a('s_add_u32 s79, s79, 0x%x', WS_H)
    a('s_lshr_b32 s80, s%d, 1', sW)
    a('s_lshl1_add_u32 s78, s78, s80')
    for l in range(4):
        a('s_xor_b32 s80, s78, %d', l)
        a('s_lshl2_add_u32 s80, s%d, s80', sTB)
        a('s_mul_i32 s80, s80, %d', HBLK)
        a('s_add_u32 s%d, s80, s79', 84 + l)
    a('s_lshl_b32 s88, s%d, 12', sTB)
    a('s_add_u32 s88, s88, 0x%x', F3)
    a('s_lshl2_add_u32 s78, s%d, s78', sTB)
    a('s_mul_i32 s80, s78, %d', 16 * 1280)
    a('s_mul_i32 s81, s%d, 160', sOG)
    a('s_add_u32 s80, s80, s81')
    a('s_mul_i32 s82, s78, %d', 16 * 5120)
    a('s_lshl1_add_u32 s82, s81, s82')
    a('s_add_u32 s82, s82, 2560')
    a('s_add_u32 s90, s%d, s81', sDSK)
    a('s_addc_u32 s91, s%d, 0', sDSK + 1)
    a('s_lshl2_add_u32 s89, s%d, s%d', sOG, sW)
    a('s_mul_i32 s89, s89, 5120')
    a('s_mul_i32 s79, s%d, %d', sTB, 4 * HBLK)
    a('s_add_u32 s89, s89, s79')
    a('s_add_u32 s89, s89, 0x%x', WS_H)
    a('s_waitcnt vmcnt(0)')
    setflag(70, 40)
    if OPT['otag'] and not OPT['amark'] and not OPT['smark']:
        s_mark(False)
    stamp('S', 'hpub')
    if OPT['tlate']:
        for k in range(4):
            a('s_mov_b32 s%d, s%d', 4 + k, 84 + k)
        for r in range(OPT['tearly'], 6):
            for o in touch(r):
                a(o)
            a('s_waitcnt vmcnt(0)')
        for k in range(4):
            a('s_mov_b32 s%d, s%d', 84 + k, 4 + k)
    if OPT['newpre']:
        def cdma(n, pace=None):
            kp, j = divmod(n, 5)
            a('s_add_u32 m0, s74, %d', 2048 * (n % NS))
            a('s_add_u32 s76, s%d, %d', 4 + kp, 16 * 1280 * j)
            for k in range(2):
                if pace is not None:
                    a('s_waitcnt vmcnt(%d)', pace)
                a(dma(vCA + k, R1, 76, 1024 * k))
        def hload(l, ks):
            return 's_add_u32 s9, s%d, s%d\nbuffer_load_dwordx4 %s, v%d, s[%d:%d], s9 offen offset:%d sc1' % (
                84 + l, 12 + ks // 2, v(HF + 16 * (ks % 8) + 4 * l, 4), vHA, RWS, RWS + 3, 1024 * (ks & 1))
        srd(R0, sWO, 640 * 1280)
        rot5(83, 73)
        for kp in range(5):
            a('s_lshl_b32 s73, s83, 7')
            a('s_add_u32 s%d, s72, s73', 4 + kp)
            a('s_lshl_b32 s%d, s83, 11', 12 + kp)
            a('s_lshl2_add_u32 s%d, s83, s%d', 17 + kp, sW)
            a('s_add_u32 s83, s83, 1')
            a('s_cmp_eq_u32 s83, 5')
            a('s_cselect_b32 s83, 0, s83')
        NIT = 5 - OPT['woe'] // 2
        if OPT['woe']:
            a('s_cmp_ge_u32 s83, %d', NIT)
            a('s_cselect_b32 s73, %d, 0', NIT)
            a('s_sub_u32 s83, s83, s73')
            if NIT == 4:
                a('s_add_u32 s83, s%d, s%d', sI, sXCD)
                a('s_and_b32 s83, s83, 3')
            for it in range(NIT):
                a('s_lshl2_add_u32 s%d, s83, s%d', 17 + it, sW)
                a('s_add_u32 s%d, s%d, %d', 17 + it, 17 + it, 2 * OPT['woe'])
                a('s_add_u32 s83, s83, 1')
                a('s_cmp_eq_u32 s83, %d', NIT)
                a('s_cselect_b32 s83, 0, s83')
        a('s_mul_i32 s75, s%d, 160', sOG)
        waitpw(vSPW, 13, 41, sleep=2)
        for n in range(NS):
            cdma(n, OPT['thrw'] + 1)
        pl = 'buffer_load_dword v41, v%d, s[%d:%d], s88 offen sc1' % (vF3, RWS, RWS + 3)
        for it in range(NIT):
            if it == OPT['f3at']:
                a('s_mov_b32 exec_hi, 0')
                a(pl)
                a('s_mov_b32 exec_hi, -1')
            a('s_mul_i32 s79, s%d, 40960', 17 + it)
            a('s_add_u32 s79, s79, s75')
            a('s_mul_i32 s78, s%d, 5120', 17 + it)
            a('s_mov_b32 m0, s78')
            for i in range(5):
                if i == 4:
                    a('s_add_u32 m0, s78, 4096')
                a('s_waitcnt vmcnt(%d)', OPT['thrw'] + (1 if it == NIT - 1 and OPT['hin'] else 0))
                a(dma(vWOA + i, R0, 79, 1024 * (i & 3)))
                if it == NIT - 1 and OPT['hin'] and i < 4:
                    a(hload(i, 0))
                    a(hload(i, 1))
            if it == OPT['f3at']:
                a('s_mov_b32 exec_hi, 0')
                a('s_waitcnt vmcnt(5)')
                a('v_cmp_eq_u32 vcc, 0, v41')
                a('s_cbranch_vccz L_f3seen')
                a('s_mov_b64 exec, vcc')
                pollflags([pl], 41, sleep=4)
                a.label('L_f3seen')
                a('s_mov_b64 exec, -1')
                stamp('S', 'f3')
                a('buffer_load_dword v41, v%d, s[%d:%d], s89 offen sc1', vHT, RWS, RWS + 3)
        stamp('S', 'wo')
        a('v_mov_b32 v42, 14')
        for ks in range(0 if OPT['hin'] else 2):
            for l in range(4):
                a('s_waitcnt vmcnt(%d)', OPT['thrw'] + 1)
                a(hload(l, ks))
        if OPT['hin']:
            a('s_waitcnt vmcnt(0)')
        a('ds_write_b32 v%d, v42', vPW)
        a('s_setprio %d', OPT['b3prio'])
    else:
        stamp('S', 'touch')
        s_wo()
        waitpw(vSPW, 13, 40, sleep=2)
        def cdma(n):
            kp, j = divmod(n, 5)
            a('s_add_u32 m0, s74, %d', 2048 * (n % NS))
            a('s_add_u32 s76, s%d, %d', 4 + kp, 16 * 1280 * j)
            a(dma(vCA, R1, 76, 0))
            a(dma(vCA + 1, R1, 76, 1024))
        for n in range(NS):
            cdma(n)
            a('s_waitcnt vmcnt(%d)', 0 if n == NS - 1 else 4)
        setpw(14, 40)
        stamp('S', 'wo')
        a('s_cmp_eq_u32 s%d, 2', sW)
        a('s_cbranch_scc0 L_f3wait')
        a('s_mov_b32 exec_hi, 0')
        pollflags(['buffer_load_dword v40, v%d, s[%d:%d], s88 offen sc1' % (vF3, RWS, RWS + 3)], 40, sleep=4)
        setpw(15, 40)
        a.label('L_f3wait')
        waitpw(vS2PW, 15, 40, sleep=4)
        stamp('S', 'f3')
        a('s_setprio %d', OPT['b3prio'])
        def hload(l, ks):
            return 's_add_u32 s9, s%d, s%d\nbuffer_load_dwordx4 %s, v%d, s[%d:%d], s9 offen offset:%d sc1' % (
                84 + l, 12 + ks // 2, v(HF + 16 * (ks % 8) + 4 * l, 4), vHA, RWS, RWS + 3, 1024 * (ks & 1))
        a('buffer_load_dword v40, v%d, s[%d:%d], s89 offen sc1', vHT, RWS, RWS + 3)
        for ks in range(2):
            if ks:
                a('s_waitcnt vmcnt(0)')
            for l in range(4):
                a(hload(l, ks))
    def creads(n):
        return ['ds_read_b128 %s, v%d offset:%d' % (v(CF[n & 1] + 4 * k, 4), vCR + k, 2048 * (n % NS)) for k in range(2)]
    q = []
    def waitfor(tag):
        idx = max(i for i, x in enumerate(q) if x == tag)
        n = len(q) - 1 - idx
        del q[:idx + 1]
        return n
    for r in creads(0):
        a(r)
    a('s_waitcnt vmcnt(0) lgkmcnt(0)')
    stamp('S', 'b3go')
    cdma(NS)
    q += [NS, NS]
    vX, vD = HF + 64, HF + 74
    hq = [(l, ks) for ks in range(2, 10) for l in range(4)]
    STOP = OPT['b3stop']
    frag = {0: CF[0]}
    free = [216, 224, 232, 240]
    def creads(n):
        return ['ds_read_b128 %s, v%d offset:%d' % (v(frag[n] + 4 * k, 4), vCR + k, 2048 * (n % NS)) for k in range(2)]
    def fetch():
        n = len(frag)
        frag[n] = free.pop(0)
        if n in q:
            a('s_waitcnt vmcnt(%d)', waitfor(n))
        for r in creads(n):
            a(r)
        return n
    def refill(n):
        a('s_waitcnt lgkmcnt(0)')
        if n + NS < 25:
            cdma(n + NS)
            q.extend([n + NS, n + NS])
    t0, t1, t2 = 175, 249, vAP4
    addr = ['v_lshrrev_b32 v%d, 2, v%d' % (t0, vLANE),
            'v_and_b32 v%d, 3, v%d' % (t1, vLANE),
            'v_lshlrev_b32 v%d, 3, v%d' % (vDO, t1),
            'v_mul_u32_u24 v%d, 1280, v%d' % (t2, t0),
            'v_add_u32 v%d, v%d, v%d' % (vXO, t2, vDO),
            'v_lshlrev_b32 v%d, 4, v%d' % (t1, t1),
            'v_lshl_add_u32 v%d, v%d, 2, v%d' % (vOA, t2, t1),
            'v_mul_u32_u24 v%d, 336, v%d' % (t2, t0),
            'v_add3_u32 v%d, v%d, v%d, s92' % (vRA, t2, t1),
            'v_add3_u32 v%d, v%d, v%d, s93' % (vRA + 1, t2, t1),
            'v_lshlrev_b32 v%d, 4, v%d' % (t1, t1),
            'v_lshl_add_u32 v%d, v%d, 2, v%d' % (t1, vLANE, t1),
            'v_add_u32 v%d, %d, v%d' % (vAP4, L_PW, t1),
            'v_add_u32 v%d, s74, v%d' % (vR1W, vHA),
            'v_add_u32 v%d, s92, v%d' % (vR1R, vHA),
            'v_and_b32 v%d, 15, v%d' % (t0, vLANE),
            'v_mul_u32_u24 v%d, 336, v%d' % (t0, t0),
            'v_and_b32 v%d, 48, v%d' % (t1, vLANE),
            'v_add3_u32 v%d, v%d, v%d, s92' % (vR2W, t0, t1),
            'v_xor_b32 v%d, 256, v%d' % (vPW1, vPW),
            'v_xor_b32 v%d, 512, v%d' % (vPW2, vPW)]
    assert 10 <= STOP <= 15
    for n in range(25):
        kp, j = divmod(n, 5)
        if n == 10:
            free += [HF + 32 + 8 * k for k in range(4)]
        if n == STOP:
            while hq:
                l, ks = hq.pop(0)
                a(hload(l, ks))
                q.append('h%d' % (ks // 2))
            while len(frag) <= 20:
                refill(fetch())
            a('s_setprio 1')
            a('v_and_b32 v%d, 1, v%d', vAM, vLANE)
            a('v_lshlrev_b32 v%d, 9, v%d', vAM, vAM)
            a('v_xor_b32 v%d, v%d, v%d', vAM, vAM, vPW)
            a('v_subrev_u32 v%d, 1024, v%d', vAM, vAM)
            a('s_waitcnt vmcnt(0)')
            del q[:]
            stamp('S', 'b3stop')
            waitpw(vAM, OPT['b3res'], 249, sleep=OPT['rsleep'])
            stamp('S', 'b3res')
        want = n + 2 if n >= STOP else max(n + 2, 21 - OPT['ahead'] * (STOP - 1 - n))
        f1 = fetch() if (len(frag) < min(25, want) and free) else None
        if j == 0 and 'h%d' % kp in q:
            a('s_waitcnt vmcnt(%d)', waitfor('h%d' % kp))
        if OPT['fine'] >= 2 and n in (3, 6, 9):
            stamp('S', 'u%d' % n)
        extra = []
        for _ in range(OPT['hrate']):
            if hq and (hq[0][1] < 8 or n >= 5):
                l, ks = hq.pop(0)
                extra.append((hload(l, ks), 'h%d' % (ks // 2)))
        if 16 <= n < 21:
            i = n - 16
            extra += [('global_load_dwordx2 %s, v%d, s[90:91] offset:%d' % (v(vD + 2 * i, 2), vDO, 32 * i), 'x'),
                      ('buffer_load_dwordx2 %s, v%d, s[%d:%d], s80 offen offset:%d' % (v(vX + 2 * i, 2), vXO, R3, R3 + 3, 32 * i), 'x')]
        cnt = 0
        f2 = None
        for k in range(2):
            ks = 2 * kp + k
            for l in range(4):
                d = acc + 20 * l + 4 * j
                a('v_mfma_f32_16x16x32_bf16 %s, %s, %s, %s', v(d, 4), v(frag[n] + 4 * k, 4), v(HF + 16 * (ks % 8) + 4 * l, 4),
                  '0' if ks == 0 else v(d, 4))
                cnt += 1
                if cnt in (1, 2, 5, 6) and extra:
                    o, tg = extra.pop(0)
                    a(o)
                    q.append(tg)
                elif n >= 15 and addr:
                    a(addr.pop(0))
                if cnt == (4 if n < STOP else 6) and f1 is not None:
                    refill(f1)
                    if len(frag) < min(21, want) and free:
                        f2 = fetch()
                if cnt == 8 and f2 is not None:
                    refill(f2)
        assert not extra
        free.append(frag[n])
    assert not addr
    assert not hq
    stamp('S', 'b3gemm')
    T = 112
    if OPT['b3res'] < 7:
        waitpw(vAM, 7, T, sleep=2)
    else:
        a('s_nop 3')
    for qd in range(10):
        a('ds_write_b128 v%d, %s offset:%d', vR1W, v(acc + 40 + 4 * qd, 4), 1024 * qd)
    setpw(17, T + 1)
    if OPT['fine'] == 2:
        stamp('S', 'w1')
    a('s_waitcnt vmcnt(0)')
    if OPT['fine'] == 2:
        stamp('S', 'xw')
    U = 180
    def skip(i):
        for hf in range(2):
            a('v_lshlrev_b32 v%d, 16, v%d', T + 4, vX + 2 * i + hf)
            a('v_lshlrev_b32 v%d, 16, v%d', T + 5, vD + 2 * i + hf)
            a('v_and_b32 v%d, 0xffff0000, v%d', T + 6, vX + 2 * i + hf)
            a('v_and_b32 v%d, 0xffff0000, v%d', T + 7, vD + 2 * i + hf)
            a('v_mul_f32 v%d, v%d, v%d', U + 4 * i + 2 * hf, T + 4, T + 5)
            a('v_mul_f32 v%d, v%d, v%d', U + 4 * i + 2 * hf + 1, T + 6, T + 7)
    skip(0)
    skip(1)
    if OPT['fine'] == 2:
        stamp('S', 'r1w')
    waitpw(vPW1, 17, T + 1)
    if OPT['fine'] == 2:
        stamp('S', 'r1s')
    for qd in (5, 6, 7, 8, 9, 0, 1, 2, 3, 4):
        a('ds_read_b128 %s, v%d offset:%d', v(acc + 40 + 4 * qd, 4), vR1R, 1024 * qd)
    skip(2)
    a('s_waitcnt lgkmcnt(0)')
    for qd in (5, 6, 7, 8, 9, 0, 1, 2, 3, 4):
        l, j = divmod(qd, 5)
        for e in range(4):
            a('v_add_f32 v%d, v%d, v%d', acc + 4 * qd + e, acc + 4 * qd + e, acc + 40 + 4 * qd + e)
        a('ds_write_b128 v%d, %s offset:%d', vR2W, v(acc + 4 * qd, 4), 16 * 336 * l + 64 * j)
        if qd == 9:
            setpw(18, T + 1)
    for i in range(5):
        a('ds_read_b128 %s, v%d offset:%d', v(acc + 40 + 8 * i, 4), vRA, 64 * i)
    skip(3)
    skip(4)
    if OPT['fine'] == 2:
        stamp('S', 'r2w')
    waitpw(vPW2, 18, T + 1)
    if OPT['fine'] == 2:
        stamp('S', 'r2s')
    for i in range(5):
        a('ds_read_b128 %s, v%d offset:%d', v(acc + 44 + 8 * i, 4), vRA + 1, 64 * i)
    for i in range(5):
        for e in range(4):
            a('v_add_f32 v%d, v%d, v%d', U + 4 * i + e, U + 4 * i + e, acc + 40 + 8 * i + e)
    for i in range(5):
        a('s_waitcnt lgkmcnt(%d)', 4 - i)
        for e in range(4):
            a('v_add_f32 v%d, v%d, v%d', U + 4 * i + e, U + 4 * i + e, acc + 44 + 8 * i + e)
    stamp('S', 'yrdy')
    if OPT['yhold']:
        waitpw(vAP4, 9, T + 1, sleep=OPT['ysleep'])
    for i in range(5):
        a('buffer_store_dwordx4 %s, v%d, s[%d:%d], s82 offen offset:%d%s', v(U + 4 * i, 4), vOA, R6, R6 + 3, 64 * i, YSC)
    finish('S')

prologue()
s_setup()
s_qloader()
if OPT['sexit'] == 1:
    setpw(99, 40)
    finish('S')
s_b1()
if OPT['sexit'] == 2:
    setpw(99, 40)
    finish('S')
s_scan()
s_b3()
a.label('L_exit')
a('s_endpgm')
flush_cold()
a_setup()
if not OPT['alate']:
    a_att_setup()
if OPT['alate'] != 1:
    a_b1_setup()
a_qphase()
a_handoff()
a_attention()
a_outproj()
flush_cold()
a.label('L_codeend')

errs = check(a.lines)
for e_ in errs:
    print('HAZARD', e_, file=sys.stderr)

head = open('cdna_kernels/%s.s.ref' % NAME).read().split('; @launch')[0]
out = head + '; @launch grid=(256,1,1) block=(512,1,1) lds=%d\n' % LDS_BYTES
out += '''.amdgcn_target "amdgcn-amd-amdhsa--gfx950"
.text
.globl %s_kernel
.p2align 8
.type %s_kernel,@function
%s_kernel:
''' % (NAME, NAME, NAME)
out += a.text().replace('QSC', ['sc1', 'sc0 sc1', 'sc1 nt', 'sc0 sc1 nt'][OPT['qsc']])
out += '''.section .rodata,"a"
.p2align 6
.amdhsa_kernel %s_kernel
  .amdhsa_next_free_vgpr 256
  .amdhsa_next_free_sgpr 102
  .amdhsa_accum_offset 256
  .amdhsa_group_segment_fixed_size 0
  .amdhsa_kernarg_size 120
  .amdhsa_user_sgpr_count 2
  .amdhsa_user_sgpr_kernarg_segment_ptr 1
  .amdhsa_system_sgpr_workgroup_id_x 1
.end_amdhsa_kernel
''' % NAME
open(sys.argv[1], 'w').write(out)
if DIAG:
    import json
    json.dump(nstamp, open(sys.argv[1] + '.stamps.json', 'w'))
import subprocess
r_ = subprocess.run(['clang', '-x', 'assembler', '-target', 'amdgcn-amd-amdhsa', '-mcpu=gfx950', '-c', sys.argv[1], '-o', 'chk.o'], capture_output=True, text=True)
if r_.returncode:
    print(r_.stderr[:2000])
    sys.exit(1)
if errs:
    sys.exit(1)
```

```python
import sys, math, struct
from asmlib import Asm, v, s, check

NAME = 'concat_heads__mha_block__ssm_conv_s5__prompt'
OPT = dict(diag=0, b3start=12, force_fb=0, psleep=0, fine=0, cpre=1, stag=10, b1dep=2, rot=1, thr=4, hold=3, codepre=2, psleep4=0, padto=0, outsc1=1, gate4=-1, early0=1, st10=2, b1prio=0, probe='', probewg=-1, sexit=0, b3prio=0, nocdma=0, mallpre=0, b3early=1, pretouch=-1, pace=0, pause=1, wolate=1, thrw=2, kvsplit=5, tstart=0, k2split=0, gate1='x', tlate=0, spread=1, pollat=17, tearly=0, b3stop=12, b3res=8, hrate=3, yhold=1, rot5=1, wopack=0, olead=20, allpoll=1, ysc=1, clrwide=0, nodup=1, onewait=0, vzero=1, lalign=6, lpad=0, epoll=0, npre=2, tprio=0, pgate=1, p3dyn=0, flip=1, newpre=1, f3at=2, gtouch=0, pkmerge=1, kvplain=0, acq=0, stagb=4, alate=2, slate=0, plate=1, seq='', unroll=2, lean=1, yearly=0, ysleep=2, cmap=1, l2pre=2, xpre=0, hack16=0, fastpro=1, gsleep=0, rsleep=2, xtail=1, ctail=0, hin=1, ahead=9, woe=0, thre=2, tlb=0, qsc=0, otag=0, amark=0, smark=0, x8first=1, pgalign=1, aearly=0)
for a_ in sys.argv[2:]:
    k_, v_ = a_.split('=')
    OPT[k_] = v_ if k_ in ('probe', 'gate1', 'seq') else int(v_)
DIAG = OPT['diag']
OSC = ['', ' sc1', ' nt', ' sc1 nt'][OPT['outsc1']]
YSC = ['', ' sc1', ' nt', ' sc1 nt'][OPT['ysc']]

def f2u(x):
    return struct.unpack('<I', struct.pack('<f', x))[0]

BLK, VOFF, VROW = 247808, 164864, 10368
WS_H, HBLK = 0x800000, 40960
WS_O, OBLK = 0xD00000, 20480
WS_E = 0xF80000
WS_F = 0xFA0000
F1, F3, F4 = WS_F, WS_F + 0x8000, WS_F + 0x28000
WS_WP = 0x1000000
WS_END = WS_WP + 8 * 102400
WS_DIAG = 0x1100000
OOB = 0x7F000000
L_HT, L_H, L_EL, L_PL = 65536, 86016, 86528, 91648
L_PAR, L_Z = 131072, 132096
L_WO = 0
L_REG, REGSZ = 102400, 14848
L_PW = 161792
LDS_BYTES = 163840
sAX, sWQ, sWO, sBX, sLRE, sLIM, sBRE, sBIM, sCRE, sCIM, sLDT, sDSK, sOUT, sDBG, sWS = range(4, 34, 2)
sW, sI, sXCD = 34, 35, 3
R0, R1, RWS, R3, R4, R5, R6 = 36, 40, 44, 48, 52, 56, 60
sRB, sCG, sHD, sQB, sTB, sOG = 64, 65, 66, 67, 68, 69
sG = 97
sSPIN = 96
sHI = 94
vLANE, vPW, vTS = 254, 253, 255
SPIN_MAX = 1 << 19

a = Asm()
nstamp = {}

def stamp(role, name):
    if OPT['probe'] == role + name:
        a('s_memrealtime s[98:99]')
        a('s_waitcnt lgkmcnt(0)')
        a('s_mov_b32 s101, s98')
    if not DIAG:
        return
    l = nstamp.setdefault(role, [])
    if DIAG == 2:
        l.append(name)
        if role + name == 'Aattpro':
            a('s_memrealtime s[98:99]')
            a('s_waitcnt lgkmcnt(0)')
            a('v_writelane_b32 v%d, s98, 29', vTS)
        return
    idx = len(l)
    l.append(name)
    a('s_memtime s[98:99]')
    a('s_memrealtime s[100:101]')
    a('s_waitcnt lgkmcnt(0)')
    a('v_writelane_b32 v%d, s98, %d', vTS, idx)
    a('v_writelane_b32 v%d, s100, %d', vTS, 32 + idx)

def srd(r, base, nbytes):
    a('s_mov_b32 s%d, s%d', r, base)
    a('s_mov_b32 s%d, s%d', r + 1, base + 1)
    if isinstance(nbytes, int):
        a('s_mov_b32 s%d, 0x%x', r + 2, nbytes)
    else:
        a('s_mov_b32 s%d, %s', r + 2, nbytes)
    a('s_mov_b32 s%d, 0x20000', r + 3)

def setpw(val, tmp):
    a('v_mov_b32 v%d, %d', tmp, val)
    a('ds_write_b32 v%d, v%d', vPW, tmp)

COLD = []

def retry(label, back, sleep, pre=()):
    COLD.append(label + ':')
    COLD.extend(pre)
    if sleep:
        COLD.append('s_sleep %d' % sleep)
    COLD.append('s_sub_u32 s%d, s%d, 1' % (sSPIN, sSPIN))
    COLD.append('s_cbranch_scc0 %s' % back)
    COLD.append('s_endpgm')

def flush_cold():
    a.lines.extend(COLD)
    del COLD[:]

def waitpw(vaddr, val, tmp, sleep=0, extra=()):
    L = a.newlabel('pw')
    D = a.newlabel('pwr')
    a.label(L)
    a('ds_read_b32 v%d, v%d', tmp, vaddr)
    for e in extra:
        a(e)
    if not sleep:
        a('s_sub_u32 s%d, s%d, 1', sSPIN, sSPIN)
        a('s_cbranch_scc1 L_exit')
    a('s_waitcnt lgkmcnt(%d)', len(extra))
    a('v_cmp_gt_u32 vcc, %d, v%d', val, tmp)
    if not sleep:
        a('s_cbranch_vccnz %s', L)
        return
    a('s_cbranch_vccnz %s', D)
    retry(D, L, sleep)

def pollflags(loads, tmp, sleep=1):
    L = a.newlabel('pf')
    D = a.newlabel('pfr')
    a.label(L)
    for l in loads:
        a(l)
    if not sleep:
        a('s_sub_u32 s%d, s%d, 1', sSPIN, sSPIN)
        a('s_cbranch_scc1 L_exit')
    a('s_waitcnt vmcnt(0)')
    for i in range(1, len(loads)):
        a('v_and_b32 v%d, v%d, v%d', tmp, tmp, tmp + i)
    a('v_cmp_eq_u32 vcc, 0, v%d', tmp)
    if not sleep:
        a('s_and_b64 exec, exec, vcc')
        a('s_cbranch_scc1 %s', L)
    else:
        a('s_cbranch_vccnz %s', D)
        retry(D, L, sleep, ['s_mov_b64 exec, vcc'])
    a('s_mov_b64 exec, -1')

def dbgload(va, vd):
    return 'global_load_dword v%d, v%d, s[%d:%d] sc1' % (vd, va, sDBG, sDBG + 1)

def flagaddr(dst, idx, base, t):
    a('s_lshl_b32 s%d, s%d, 7', dst, idx)
    a('s_add_u32 s%d, s%d, 0x%x', dst, dst, base)

def setflag(soff, tmp):
    a('v_mov_b32 v%d, 1', tmp)
    a('s_mov_b64 exec, 1')
    a('buffer_store_dword v%d, off, s[%d:%d], s%d sc1', tmp, RWS, RWS + 3, soff)
    a('s_mov_b64 exec, -1')

def tau(dst, src, t):
    a('v_and_b32 v%d, 0x13, v%d', dst, src)
    a('v_and_b32 v%d, 4, v%d', t, src)
    a('v_lshl_or_b32 v%d, v%d, 1, v%d', dst, t, dst)
    a('v_and_b32 v%d, 8, v%d', t, src)
    a('v_lshrrev_b32 v%d, 1, v%d', t, t)
    a('v_or_b32 v%d, v%d, v%d', dst, t, dst)

def finish(role):
    if OPT['probe'][:1] == role:
        if OPT['probe'][1:] == 'drained':
            a('s_waitcnt vmcnt(0)')
            stamp(role, 'drained')
        a('s_sub_u32 s101, s101, s100')
        a('s_mul_i32 s101, s101, 10')
        a('s_add_u32 s101, s101, 10000')
        if OPT['probewg'] >= 0:
            a('s_and_b32 s98, s2, 31')
            a('s_cmp_eq_u32 s98, %d', OPT['probewg'])
            a('s_cselect_b32 s101, s101, 0')
        L = a.newlabel('pad')
        a.label(L)
        a('s_sleep 4')
        a('s_memrealtime s[98:99]')
        a('s_waitcnt lgkmcnt(0)')
        a('s_sub_u32 s98, s98, s100')
        a('s_cmp_lt_u32 s98, s101')
        a('s_cbranch_scc1 %s', L)
    if OPT['padto']:
        L = a.newlabel('pad')
        a.label(L)
        a('s_sleep 4')
        a('s_memrealtime s[98:99]')
        a('s_waitcnt lgkmcnt(0)')
        a('s_sub_u32 s98, s98, s100')
        a('s_cmp_lt_u32 s98, %d', OPT['padto'])
        a('s_cbranch_scc1 %s', L)
    if DIAG:
        stamp(role, 'end')
        a('s_waitcnt vmcnt(0)')
        stamp(role, 'drained')
        a('s_memrealtime s[98:99]')
        a('s_waitcnt lgkmcnt(0)')
        a('v_writelane_b32 v%d, s98, 31', vTS)
        a('s_lshl_b32 s70, s2, 3')
        a('s_add_u32 s70, s70, s%d', sW)
        if role == 'S':
            a('s_add_u32 s70, s70, 4')
        a('s_lshl_b32 s70, s70, 8')
        a('s_add_u32 s70, s70, 0x%x', WS_DIAG)
        a('v_lshlrev_b32 v0, 2, v%d', vLANE)
        a('buffer_store_dword v%d, v0, s[%d:%d], s70 offen', vTS, RWS, RWS + 3)
    a('s_endpgm')

def prologue():
    a('s_cmp_ge_u32 s2, 256')
    a('s_cbranch_scc0 L_go')
    a('s_endpgm')
    a.label('L_go')
    if OPT['padto'] or DIAG or OPT['probe']:
        a('s_memrealtime s[100:101]')
    a('s_load_dwordx16 s[4:19], s[0:1], 0')
    a('s_load_dwordx8 s[20:27], s[0:1], 64')
    a('s_load_dwordx4 s[28:31], s[0:1], 96')
    a('s_load_dwordx2 s[32:33], s[0:1], 112')
    a('s_lshr_b32 s%d, s2, 3', sI)
    if OPT['codepre'] == 2:
        a.c('pull the code into L2: every half wave of an XCD touches one line')
        a('s_getpc_b64 s[76:77]')
        a('v_lshrrev_b32 v1, 5, v0')
        a('v_lshl_add_u32 v1, s%d, 4, v1', sI)
        a('v_min_u32 v1, (L_codeend - L_go) / 128 - 1, v1')
        a('v_lshlrev_b32 v1, 7, v1')
        a('global_load_dword v110, v1, s[76:77]')
    a('v_lshrrev_b32 v1, 6, v0')
    a('v_and_b32 v%d, 63, v0', vLANE)
    a('v_readfirstlane_b32 s%d, v1', sW)
    a('s_and_b32 s%d, s2, 7', sXCD)
    a('s_and_b32 s70, s%d, 3', sI)
    a('s_lshr_b32 s%d, s%d, 2', sOG, sI)
    a('s_lshr_b32 s71, s%d, 1', sXCD)
    a('s_lshl2_add_u32 s%d, s71, s70', sRB)
    a('s_and_b32 s71, s%d, 1', sXCD)
    a('s_lshl3_add_u32 s%d, s71, s%d', sG, sOG)
    a('s_cmp_ge_u32 s%d, %d', sI, 30 if OPT['cmap'] else 99)
    a('s_cselect_b32 s71, 8, 0')
    a('s_xor_b32 s%d, s%d, s71', sCG, sG)
    if DIAG:
        prologue2()
    a('s_cmp_ge_u32 s%d, 4', sW)
    a('s_cbranch_scc0 L_roleA')

def prologue2():
    a('v_lshlrev_b32 v%d, 2, v0', vPW)
    a('v_add_u32 v%d, %d, v%d', vPW, L_PW, vPW)
    a('v_mov_b32 v0, 0')
    a('ds_write_b32 v%d, v0', vPW)
    a('s_lshr_b32 s71, s%d, 3', sI)
    a('s_lshl2_add_u32 s%d, s%d, s71', sHD, sXCD)
    a('s_and_b32 s%d, s%d, 7', sQB, sI)
    a('s_and_b32 s70, s%d, 3', sI)
    a('s_lshl2_add_u32 s%d, s%d, s70', sTB, sXCD)
    a('s_mov_b32 s%d, 0x%x', sSPIN, SPIN_MAX)
    a('s_mov_b32 s%d, 0', sHI)
    a('s_mov_b32 s%d, -1', sHI + 1)

def ws_setup():
    srd(RWS, sWS, WS_END if not DIAG else WS_DIAG + 0x100000)
    if DIAG:
        a('v_mov_b32 v%d, 0', vTS)
        a('v_writelane_b32 v%d, s100, 30', vTS)

def stagger(k, t, add, flp, mode):
    if mode == 4:
        a('s_and_b32 s%d, s%d, 3', k, sI)
        if flp:
            a('s_xor_b32 s%d, s%d, 1', k, k)
        a('s_mul_i32 s%d, s%d, 5', k, k)
        a('s_lshr_b32 s%d, s%d, 1', k, k)
        a('s_mul_i32 s%d, s%d, 5', t, sOG)
        a('s_lshr_b32 s%d, s%d, 2', t, t)
        a('s_add_u32 s%d, s%d, s%d', k, k, t)
    elif mode in (2, 3):
        a('s_add_u32 s%d, s%d, s%d', k, sI, sOG)
        if flp:
            a('s_xor_b32 s%d, s%d, 1', k, k)
        a('s_and_b32 s%d, s%d, %d', k, k, 1 if mode == 2 else 3)
        a('s_mul_i32 s%d, s%d, 5', k, k)
        if mode == 3:
            a('s_lshr_b32 s%d, s%d, 1', k, k)
    else:
        a('s_mov_b32 s%d, 0', k)
    if mode == 0:
        a('s_mov_b32 s%d, %d', k, add)
        return
    a('s_add_u32 s%d, s%d, %d', t, sXCD, 1 + 2 * add)
    a('s_lshr_b32 s%d, s%d, 1', t, t)
    if mode == 1:
        a('s_add_u32 s%d, s%d, %d', t, sXCD, add)
    a('s_add_u32 s%d, s%d, s%d', k, k, t)
    for _ in range(2 if add else 1):
        a('s_cmp_ge_u32 s%d, 10', k)
        a('s_cselect_b32 s%d, 10, 0', t)
        a('s_sub_u32 s%d, s%d, s%d', k, k, t)

def b1_sources(rx, rb, vx, vb, sm, sb, t, j0=2):
    srd(rx, sBX, 2048 * 1280)
    a('s_cmp_ge_u32 s%d, 2', sW)
    a('s_cselect_b32 s%d, s%d, s%d', t, sBIM, sBRE)
    a('s_cselect_b32 s%d, s%d, s%d', t + 1, sBIM + 1, sBRE + 1)
    srd(rb, t, 640 * 1280)
    a('v_lshrrev_b32 v1, 3, v%d', vLANE)
    a('v_and_b32 v2, 7, v%d', vLANE)
    a('v_lshrrev_b32 v3, 4, v%d', vLANE)
    a('v_xor_b32 v4, v2, v3')
    a('v_and_b32 v5, 3, v1')
    a('v_lshrrev_b32 v6, 2, v1')
    a('v_lshl_add_u32 v5, v6, 3, v5')
    a('v_mul_u32_u24 v5, 1280, v5')
    a('v_lshl_add_u32 v%d, v4, 4, v5', vx)
    a('v_xor_b32 v6, 64, v%d', vx)
    a('v_add_u32 v%d, %d, v6', vx + 1, 16 * 1280 - 1024)
    a('v_add_u32 v%d, %d, v%d', vx + 2, 4 * 1280 - 2048, vx)
    a('v_add_u32 v%d, %d, v6', vx + 3, 20 * 1280 - 3072)
    a('s_lshr_b32 s%d, s%d, 1', t, sW)
    a('s_lshl_b32 s%d, s%d, 6', t + 1, t)
    a('v_mul_u32_u24 v5, 1280, v1')
    a('v_lshl_add_u32 v5, v4, 4, v5')
    a('v_xor_b32 v%d, s%d, v5', vb, t + 1)
    for i in range(1, 3):
        a('v_add_u32 v%d, %d, v%d', vb + i, (10240 - 1024) * i, vb)
    a('s_and_b32 s%d, s%d, 1', t + 1, sW)
    a('s_mul_i32 s%d, s%d, 5120', sm, t)
    a('s_mul_i32 s%d, s%d, %d', sb, t + 1, 1024 * j0)
    a('s_add_u32 s%d, s%d, s%d', sm, sm, sb)
    a('s_mul_i32 s%d, s%d, %d', sb, sG, 40 * 1280)
    a('s_mul_i32 s%d, s%d, %d', t + 1, t + 1, 8 * 1280 * j0)
    a('s_add_u32 s%d, s%d, s%d', sb, sb, t + 1)

def dma(voff, r, soff, imm):
    return 'buffer_load_dwordx4 v%d, s[%d:%d], s%d offen offset:%d lds' % (voff, r, r + 3, soff, imm)

def a_b1stage(t):
    slot = ((t + 1) % 4) * 32768
    a('s_add_u32 m0, s6, %d', slot)
    a('s_lshl_b32 s9, s8, 7')
    a('s_add_u32 s12, s4, s9')
    for i in range(4):
        a(dma(112 + i, R5, 12, 1024 * i))
    a('s_add_u32 m0, s7, %d', slot + 16384)
    a('s_add_u32 s12, s5, s9')
    L = a.newlabel('b3rd')
    for i in range(3):
        if i == 2 and OPT['nodup']:
            a('s_cmp_eq_u32 s%d, 1', sCW)
            a('s_cbranch_scc1 %s', L)
        a(dma(116 + i, R6, 12, 1024 * i))
    a.label(L)
    a('s_add_u32 s8, s8, 1')
    a('s_cmp_eq_u32 s8, 10')
    a('s_cselect_b32 s8, 0, s8')

sTW, sCW = 72, 73
vXA, vWA = 96, 104
vF1A = 252
vAPW = 249

def a_setup():
    a('.PAD L_roleA L_pgQ')
    a.label('L_roleA')
    if not DIAG:
        prologue2()
    a('s_waitcnt lgkmcnt(0)')
    ws_setup()
    stamp('A', 'start')
    a('s_lshr_b32 s%d, s%d, 1', sTW, sW)
    a('s_and_b32 s%d, s%d, 1', sCW, sW)
    a('s_lshl1_add_u32 s75, s%d, s%d', sRB, sTW)
    a('s_mul_i32 s74, s75, %d', BLK)
    if OPT['amark'] == 1:
        a_mark()
    a.c('column group 15 has no GEMM tile: these workgroups clear the flags and write the constant blocks')
    a('s_cmp_eq_u32 s%d, 15', sCG)
    a('s_cbranch_scc0 L_noconst')
    a('s_lshl2_add_u32 s77, s%d, s%d', sRB, sW)
    if OPT['clrwide']:
        a('v_lshlrev_b32 v2, 4, v%d', vLANE)
        a('v_min_u32 v3, 496, v2')
        for i in range(4):
            a('v_mov_b32 v%d, 0', 4 + i)
        a('s_mul_i32 s76, s77, 4608')
        a('s_add_u32 s76, s76, 0x%x', WS_F)
        for i in range(4):
            a('buffer_store_dwordx4 v[4:7], v2, s[%d:%d], s76 offen offset:%d sc1', RWS, RWS + 3, 1024 * i)
        a('s_add_u32 s76, s76, 4096')
        a('buffer_store_dwordx4 v[4:7], v3, s[%d:%d], s76 offen sc1', RWS, RWS + 3)
    else:
        a('v_min_u32 v1, 35, v%d', vLANE)
        a('v_lshlrev_b32 v1, 7, v1')
        a('v_mov_b32 v4, 0')
        a('s_mul_i32 s76, s77, 4608')
        a('s_add_u32 s76, s76, 0x%x', WS_F)
        a('buffer_store_dword v4, v1, s[%d:%d], s76 offen sc1', RWS, RWS + 3)
        a('v_lshlrev_b32 v2, 4, v%d', vLANE)
    for i in range(4):
        a('v_mov_b32 v%d, -1', 20 + i)
    a('s_lshl_b32 s76, s77, 11')
    a('s_add_u32 s76, s76, 0x%x', WS_E)
    for i in range(2):
        a('buffer_store_dwordx4 v[20:23], v2, s[%d:%d], s76 offen offset:%d sc1', RWS, RWS + 3, 1024 * i)
    a('v_lshrrev_b32 v1, 3, v%d', vLANE)
    a('v_mul_u32_u24 v1, %d, v1', VROW - 128)
    a('v_add_u32 v1, %d, v1', VOFF + 640 * 16 - 160 * 1024)
    a('v_mul_lo_u32 v1, v1, s%d', sCW)
    a('v_add_u32 v1, v1, v2')
    a('s_mul_i32 s76, s%d, 0x3f803f80', sCW)
    a('v_mov_b32 v8, 0x3f803f80')
    a('v_mov_b32 v9, s76')
    a('v_mov_b32 v10, v8')
    a('v_mov_b32 v11, s76')
    a('s_add_u32 s76, s74, %d', 160 * 1024)
    a('buffer_store_dwordx4 v[8:11], v1, s[%d:%d], s76 offen sc1', RWS, RWS + 3)
    a.label('L_noconst')
    if OPT['codepre'] == 1:
        a.c('pull the code into L2: each wave of an XCD touches a few lines')
        a('s_getpc_b64 s[76:77]')
        a.label('L_pc')
        a('s_sub_u32 s76, s76, L_pc - L_go')
        a('s_subb_u32 s77, s77, 0')
        a('s_lshl2_add_u32 s78, s%d, s%d', sI, sW)
        a('s_mul_i32 s78, s78, 3')
        a('v_min_u32 v1, 2, v%d', vLANE)
        a('v_add_u32 v1, s78, v1')
        a('v_min_u32 v1, (L_codeend - L_go) / 128 - 1, v1')
        a('v_lshlrev_b32 v1, 7, v1')
        a('global_load_dword v110, v1, s[76:77]')
    a.c('LDS fragment addresses for the QKV GEMM')
    a('v_and_b32 v1, 31, v%d', vLANE)
    a('v_lshrrev_b32 v2, 5, v%d', vLANE)
    a('v_bfe_u32 v3, v1, 1, 3')
    a('v_xor_b32 v3, v3, v2')
    a('v_lshlrev_b32 v3, 4, v3')
    a('v_lshl_add_u32 v3, v1, 7, v3')
    a('s_lshl_b32 s76, s%d, 13', sTW)
    a('v_add_u32 v3, s76, v3')
    for ks in range(4):
        a('v_xor_b32 v%d, %d, v3', vXA + ks, ks << 5)
        a('v_add_u32 v%d, 0x10000, v%d', vXA + 4 + ks, vXA + ks)
    a('v_bfe_u32 v4, v%d, 2, 2', vLANE)
    a('v_lshl_add_u32 v5, v2, 3, v4')
    a('v_lshlrev_b32 v5, 8, v5')
    a('v_bfe_u32 v6, v%d, 4, 1', vLANE)
    a('v_and_b32 v7, 1, v%d', vLANE)
    a('v_lshl_add_u32 v6, v6, 1, v7')
    a('s_lshl_b32 s76, s%d, 3', sCW)
    a('v_add_u32 v6, s76, v6')
    a('v_lshlrev_b32 v4, 2, v4')
    a('v_xor_b32 v6, v6, v4')
    a('v_lshl_add_u32 v5, v6, 4, v5')
    a('v_bfe_u32 v7, v%d, 1, 1', vLANE)
    a('v_lshl_add_u32 v5, v7, 3, v5')
    a('v_add_u32 v%d, 16384, v5', vWA)
    a('v_xor_b32 v%d, 64, v%d', vWA + 1, vWA)
    a('v_add_u32 v%d, 0x10000, v%d', vWA + 2, vWA)
    a('v_add_u32 v%d, 0x10000, v%d', vWA + 3, vWA + 1)

def a_qloop(vt):
    F = [64, 80]
    def reads(st, ks, f):
        slot = (st + 1) % 4
        hi, lo = slot >> 1, (slot & 1) * 32768
        r = []
        for T in range(2):
            r.append('ds_read_b128 %s, v%d offset:%d' % (v(f + 4 * T, 4), vXA + 4 * hi + ks, lo + 4096 * T))
        for Tc in range(2):
            for rd in range(2):
                r.append('ds_read_b64_tr_b16 %s, v%d offset:%d' % (v(f + 8 + 4 * Tc + 2 * rd, 2), vWA + 2 * hi + Tc,
                                                                  lo + (16 * ks + 4 * rd) * 256))
        return [r[0], r[2], r[3], r[1], r[4], r[5]]
    def mfma(f, i, j, first):
        acc = (2 * i + j) * 16
        A = f + 4 * i if vt else f + 8 + 4 * i
        B = f + 8 + 4 * j if vt else f + 4 * j
        if OPT['hack16']:
            o = 8 if f == F[1] else 0
            B2 = f + 8 + 4 * (1 - j) if vt else f + 4 * (1 - j)
            return 'v_mfma_f32_16x16x32_bf16 %s, %s, %s, %s\nv_mfma_f32_16x16x32_bf16 %s, %s, %s, %s' % (
                v(acc + o, 4), v(A, 4), v(B, 4), v(acc + o, 4), v(acc + o + 4, 4), v(A, 4), v(B2, 4), v(acc + o + 4, 4))
        return 'v_mfma_f32_32x32x16_bf16 %s, %s, %s, %s' % (v(acc, 16), v(A, 4), v(B, 4), '0' if first else v(acc, 16))
    if OPT['hack16']:
        for i_ in range(64):
            a('v_mov_b32 v%d, 0', i_)
    a('s_barrier')
    for r in reads(0, 0, F[0]):
        a(r)
    for st in range(10):
        for ks in range(4):
            cur, nxt = F[ks & 1], F[(ks + 1) & 1]
            first = st == 0 and ks == 0
            if st == 0 and ks == 3:
                a.label('L_pgV' if vt else 'L_pgQ')
            a('s_waitcnt lgkmcnt(0)')
            if ks == 3:
                a('s_barrier')
                rr = reads(st + 1, 0, nxt) if st < 9 else []
            else:
                rr = reads(st, ks + 1, nxt)
            if st == 9 and ks == 3:
                a(mfma(cur, 0, 0, False))
                a(mfma(cur, 0, 1, False))
                return [mfma(nxt, 1, 1, False), mfma(cur, 1, 0, False), mfma(cur, 1, 1, False)]
            a(mfma(cur, 0, 0, first))
            for r in rr[:3]:
                a(r)
            a(mfma(cur, 0, 1, first))
            for r in rr[3:]:
                a(r)
            a(mfma(cur, 1, 0, first))
            if not (st == 9 and ks == 2):
                a(mfma(cur, 1, 1, first))

def tailweave(ms, work):
    a(ms[0])
    a('s_nop 6')
    a(ms[1])
    a('s_nop 1')
    for o in work[:6]:
        a(o)
    a(ms[2])
    for o in work[6:]:
        a(o)

def a_pack_wo():
    a('s_lshl2_add_u32 s76, s%d, s%d', sRB, sW)
    a('s_mul_i32 s77, s76, 12800')
    a('s_add_u32 s78, s14, s77')
    a('s_addc_u32 s79, s15, 0')
    a('s_mul_i32 s76, s76, 10')
    a('s_mov_b32 s80, 0x%x', WS_WP)
    for n in range(13):
        a('v_add_u32 v60, %d, v%d', 64 * n, vLANE)
        if n == 12:
            a('v_min_u32 v60, 799, v60')
        a('v_lshlrev_b32 v61, 4, v60')
        a('global_load_dwordx4 %s, v61, s[78:79]', v(4 * n, 4))
        a('v_mul_u32_u24 v61, 820, v60')
        a('v_lshrrev_b32 v61, 16, v61')
        a('v_mul_u32_u24 v62, 80, v61')
        a('v_sub_u32 v60, v60, v62')
        a('v_add_u32 v61, s76, v61')
        a('v_mul_u32_u24 v62, 6554, v60')
        a('v_lshrrev_b32 v62, 16, v62')
        a('v_mul_u32_u24 v62, %d, v62', 6400 - 10)
        a('v_add_u32 v60, v60, v62')
        a('v_and_b32 v62, 0xfff3, v61')
        a('v_and_b32 v63, 4, v61')
        a('v_lshl_or_b32 v62, v63, 1, v62')
        a('v_bfe_u32 v63, v61, 3, 1')
        a('v_lshl_or_b32 v62, v63, 2, v62')
        a('v_mul_u32_u24 v62, 10, v62')
        a('v_add_lshl_u32 v%d, v60, v62, 4', 64 + n)
    for n in range(13):
        a('s_waitcnt vmcnt(12)')
        a('buffer_store_dwordx4 %s, v%d, s[%d:%d], s80 offen sc1', v(4 * n, 4), 64 + n, RWS, RWS + 3)
    if OPT['wopack'] > 1:
        a('v_min_u32 v60, 49, v%d', vLANE)
        a('v_lshl_add_u32 v60, v60, 7, s77')
        a('v_add_u32 v61, 6400, v60')
        for p in (sCRE, sCIM):
            a('global_load_dword v111, v60, s[%d:%d]', p, p + 1)
            a('global_load_dword v111, v61, s[%d:%d]', p, p + 1)

def a_qphase():
    a('s_cmp_ge_u32 s%d, 10', sCG)
    a('s_cbranch_scc1 L_qV')
    a('v_and_b32 v1, 31, v%d', vLANE)
    a('v_lshrrev_b32 v2, 5, v%d', vLANE)
    a('v_lshlrev_b32 v1, 4, v1')
    a('v_lshl_add_u32 v108, v2, 10, v1')
    a('s_lshl1_add_u32 s76, s%d, s%d', sCG, sCW)
    a('s_lshl_b32 s77, s76, 13')
    a('s_add_u32 s77, s77, s74')
    a('s_add_u32 s78, s77, 4096')
    a('s_mul_i32 s79, s%d, 3', sCW)
    a('s_add_u32 s79, s79, s%d', sCG)
    for _ in range(2):
        a('s_cmp_ge_u32 s79, 5')
        a('s_cselect_b32 s80, 5, 0')
        a('s_sub_u32 s79, s79, s80')
    for Tc in range(2):
        for u in range(2):
            m = 20 + 2 * (2 * Tc + u)
            a('s_cmp_eq_u32 s79, %d', (2 - 4 * Tc - 2 * u) % 5)
            a('s_cselect_b32 s%d, -1, 0', m)
            a('s_cmp_eq_u32 s79, %d', (1 - 4 * Tc - 2 * u) % 5)
            a('s_cselect_b32 s%d, -1, 0', m + 1)
    c0 = f2u(math.log2(math.e) / math.sqrt(20.0))
    a('s_mov_b32 s80, 0x%x', c0)
    ms = a_qloop(False)
    def group(Tc, u, scale):
        o = []
        P = 120 + 8 * (2 * Tc + u)
        for T in range(2):
            acc = (2 * Tc + T) * 16 + 8 * u
            if scale:
                o += ['v_mul_f32 v%d, s80, v%d' % (acc + e, acc + e) for e in range(8)]
            o += ['v_cvt_pk_bf16_f32 v%d, v%d, v%d' % (P + 4 * T + q, acc + 2 * q, acc + 2 * q + 1) for q in range(4)]
        m = 20 + 2 * (2 * Tc + u)
        o.append('s_mov_b64 exec, s[%d:%d]\nv_swap_b32 v%d, v%d\nv_swap_b32 v%d, v%d\ns_mov_b64 exec, -1' % (m, m + 1, P + 2, P + 4, P + 3, P + 5))
        for T in range(2):
            o.append('buffer_store_dwordx4 %s, v108, s[%d:%d], s%d offen offset:%d QSC' % (v(P + 4 * T, 4), RWS, RWS + 3,
                     77 + Tc, 2048 * u + 512 * T))
        return o
    a('s_cmp_ge_u32 s%d, 5', sCG)
    a('s_cbranch_scc1 L_noscale')
    tailweave(ms, group(0, 0, True) + group(0, 1, True))
    a('s_mov_b32 s81, s80')
    for i in range(32, 64, 2):
        a('v_pk_mul_f32 %s, %s, s[80:81]', v(i, 2), v(i, 2))
    a('s_branch L_qk2')
    a.label('L_noscale')
    tailweave(ms, group(0, 0, False) + group(0, 1, False))
    a.label('L_qk2')
    for o in group(1, 0, False) + group(1, 1, False):
        a(o)
    stamp('A', 'qloop')
    a('s_branch L_qdone')
    a('.PAD L_qV L_pgV')
    a.label('L_qV')
    a('s_cmp_eq_u32 s%d, 15', sCG)
    a('s_cbranch_scc0 L_qV2')
    a('s_lshl_b32 s76, s%d, 4', sRB)
    a('v_mov_b32 v16, s76')
    a('v_mov_b32 v17, 1')
    a('s_waitcnt vmcnt(0)')
    a('s_barrier')
    a('s_cmp_eq_u32 s%d, 0', sW)
    a('s_cbranch_scc0 L_nosig')
    a('s_mov_b64 exec, 1')
    a('global_store_dword v16, v17, s[%d:%d] sc1', sDBG, sDBG + 1)
    a('s_mov_b64 exec, -1')
    a.label('L_nosig')
    if OPT['tlb']:
        a('v_lshlrev_b32 v1, %d, v%d', OPT['tlb'], vLANE)
        a('s_lshl_b32 s76, s%d, %d', sW, OPT['tlb'] + 6)
        srd(R4, sOUT, 2048 * 1280 * 4)
        a('buffer_load_dword v111, v1, s[%d:%d], s76 offen sc1', RWS, RWS + 3)
        a('buffer_load_dword v111, v1, s[%d:%d], s76 offen sc1', R4, R4 + 3)
        a('v_min_u32 v1, 12, v%d', vLANE)
        a('v_lshlrev_b32 v1, 16, v1')
        a('v_mov_b32 v2, 0')
        for p in (14, sCRE, sCIM):
            a('global_load_dword v111, v1, s[%d:%d]', p, p + 1)
        a('global_load_dword v111, v2, s[%d:%d]', sDSK, sDSK + 1)
    if OPT['l2pre']:
        a('s_barrier')
        a('s_and_b32 s76, s%d, 1', sI)
        a('s_lshl1_add_u32 s76, s76, s%d', sCW)
        a('s_and_b32 s77, s%d, 1', sXCD)
        a('s_lshl2_add_u32 s76, s77, s76')
        a('s_mul_i32 s76, s76, %d', 80 * 1280)
        a('v_min_u32 v1, 39, v%d', vLANE)
        a('v_mul_u32_u24 v1, 1280, v1')
        a('v_add_u32 v2, %d, v1', 40 * 1280)
        for hf in range(2):
            a('s_and_b32 s77, s%d, 1', sI)
            a('s_lshl1_add_u32 s77, s77, s%d', sCW)
            a('s_lshl1_add_u32 s77, s77, %d', hf)
            a('s_mul_i32 s77, s77, 5')
            a('s_lshr_b32 s77, s77, 2')
            a('s_add_u32 s78, s%d, 1', sXCD)
            a('s_lshr_b32 s78, s78, 1')
            a('s_add_u32 s%d, s77, s78', 80 + hf)
        for d in (4, 9, 1, 6, 3, 8)[:OPT['l2pre']]:
            for hf in range(2):
                a('s_add_u32 s77, s%d, %d', 80 + hf, d)
                for _ in range(2):
                    a('s_cmp_ge_u32 s77, 10')
                    a('s_cselect_b32 s78, 10, 0')
                    a('s_sub_u32 s77, s77, s78')
                a('s_lshl_b32 s77, s77, 7')
                a('s_add_u32 s77, s77, s76')
                a('buffer_load_dword v111, v%d, s[%d:%d], s77 offen', 1 + hf, R6, R6 + 3)
    if OPT['xpre']:
        a('s_and_b32 s76, s%d, 1', sI)
        a('s_lshl1_add_u32 s76, s76, s%d', sTW)
        a('s_xor_b32 s77, s76, %d', OPT['flip'])
        a('s_mul_i32 s77, s77, 5')
        a('s_lshr_b32 s77, s77, 1')
        a('s_add_u32 s78, s%d, 9', sXCD)
        a('s_lshr_b32 s78, s78, 1')
        a('s_add_u32 s77, s77, s78')
        a('s_mul_i32 s78, s%d, 5', sCW)
        a('s_add_u32 s77, s77, s78')
        for _ in range(2):
            a('s_cmp_ge_u32 s77, 10')
            a('s_cselect_b32 s78, 10, 0')
            a('s_sub_u32 s77, s77, s78')
        a('s_lshl_b32 s77, s77, 7')
        a('s_and_b32 s78, s%d, -4', sRB)
        a('s_add_u32 s76, s76, s78')
        a('s_mul_i32 s76, s76, %d', 128 * 1280)
        a('s_add_u32 s77, s77, s76')
        a('v_mul_u32_u24 v3, 1280, v%d', vLANE)
        a('buffer_load_dword v111, v3, s[%d:%d], s77 offen', R5, R5 + 3)
        a('s_add_u32 s77, s77, %d', 64 * 1280)
        a('buffer_load_dword v111, v3, s[%d:%d], s77 offen', R5, R5 + 3)
    if OPT['wopack']:
        a_pack_wo()
    for _ in range(9 if OPT['l2pre'] else 10):
        a('s_barrier')
    if DIAG:
        nstamp['A'].pop()
    stamp('A', 'qloop')
    a('s_branch L_qdone')
    a.label('L_qV2')
    a('s_lshl1_add_u32 s76, s%d, s%d', sCG, sCW)
    a('v_and_b32 v1, 31, v%d', vLANE)
    tau(108, 1, 2)
    a('v_lshrrev_b32 v2, 5, v%d', vLANE)
    a('v_mul_u32_u24 v2, %d, v2', VROW)
    a('v_lshl_add_u32 v108, v108, 4, v2')
    a('s_sub_u32 s76, s76, 20')
    a('s_lshl_b32 s76, s76, 10')
    a('s_add_u32 s76, s76, s74')
    a('s_add_u32 s76, s76, %d', VOFF)
    for k in range(1, 4):
        a('s_add_u32 s%d, s76, %d', 76 + k, 2 * VROW * k)
    ms = a_qloop(True)
    work = []
    n = 0
    for T in range(2):
        for Tc in range(2):
            for m in range(2):
                P = 120 + 4 * n
                n += 1
                acc = (2 * T + Tc) * 16 + 8 * m
                work += ['v_cvt_pk_bf16_f32 v%d, v%d, v%d' % (P + q, acc + 2 * q, acc + 2 * q + 1) for q in range(4)]
                work.append('buffer_store_dwordx4 %s, v108, s[%d:%d], s%d offen offset:%d QSC' % (v(P, 4), RWS, RWS + 3, 76 + 2 * T + m, 512 * Tc))
    tailweave(ms, work)
    if DIAG:
        nstamp['A'].pop()
    stamp('A', 'qloop')
    if OPT['pgalign']:
        a('s_branch L_qdone')
    a('.PAD L_qdone L_pgO')
    a.label('L_qdone')
    if OPT['amark'] == 2:
        a_mark()

vO, vS = 0, 64
KV = [128, 156]
K1A, K1B, K2, VA0, VA1, VB0, VB1 = 0, 4, 8, 12, 16, 20, 24
vQ1, vQ2 = 184, 200
vK1, vK2, vV, vIDX, vNC, vM = 208, 209, 210, 214, 216, 220
vT = 224
vMG = 240
sQH, sKH, sODD, sP5, sOFF, sKV0, sPASS, sCNT = 76, 77, 78, 79, 80, 93, 82, 83
sKVB, sKVE = 70, 71

def a_att_setup():
    a('s_and_b32 s%d, s%d, 1', sQH, sW)
    a('s_lshr_b32 s%d, s%d, 1', sKH, sW)
    a('s_and_b32 s%d, s%d, 1', sODD, sHD)
    a('s_lshr_b32 s85, s%d, 1', sHD)
    a('s_mul_i32 s%d, s85, 5', sP5)
    a('s_mul_i32 s%d, s%d, %d', sKVB, sKH, 16 * BLK)
    a('s_add_u32 s%d, s%d, %d', sKVE, sKVB, 16 * BLK)
    a('s_mul_i32 s86, s%d, %d', sQB, 2 * BLK * OPT['rot'])
    a('s_add_u32 s%d, s%d, s86', sKV0, sKVB)
    srd(R3, sWS, 's%d' % sKVE)
    srd(R4, sOUT, 2048 * 1280 * 4)
    a('s_mov_b32 s%d, 0', sPASS)
    i, h, t, x = vT, vT + 1, vT + 2, vT + 3
    a('v_and_b32 v%d, 31, v%d', i, vLANE)
    a('v_lshrrev_b32 v%d, 5, v%d', h, vLANE)
    tau(t, i, x)
    a('s_mul_i32 s86, s%d, 3', sODD)
    a('s_add_u32 s86, s86, s%d', sP5)
    a('s_lshl_b32 s87, s86, 10')
    a('v_lshl_add_u32 v%d, v%d, 10, s87', x, h)
    a('v_lshl_add_u32 v%d, v%d, 4, v%d', vT + 4, i, x)
    a('v_lshl_add_u32 v%d, v%d, 4, v%d', vK1, t, x)
    a('v_add_u32 v%d, %d, v%d', vK1, 80 * 1024, vK1)
    a('s_add_u32 s87, s%d, 2', sP5)
    a('s_lshl1_add_u32 s87, s87, s%d', sODD)
    a('s_lshl_b32 s87, s87, 9')
    a('v_lshl_add_u32 v%d, v%d, 4, s87', vT + 5, i)
    a('v_mov_b32 v%d, 0x%x', x, OOB)
    a('v_cndmask_b32 v%d, v%d, v%d, s[%d:%d]', vT + 5, vT + 5, x, sHI, sHI + 1)
    a('s_add_u32 s87, s87, %d', 80 * 1024)
    a('v_lshl_add_u32 v%d, v%d, 4, s87', vK2, t)
    a('v_mov_b32 v%d, %d', x, 160 * 1024)
    a('v_cndmask_b32 v%d, v%d, v%d, s[%d:%d]', vK2, vK2, x, sHI, sHI + 1)
    a('s_mul_i32 s86, s%d, 20', sHD)
    a('s_lshl2_add_u32 s87, s%d, s86', sODD)
    a('s_lshl_b32 s88, s%d, 4', sODD)
    a('s_sub_u32 s88, s86, s88')
    a('v_add_u32 v%d, s87, v%d', vV, t)
    a('v_add_u32 v%d, s88, v%d', x, i)
    a('v_cmp_le_u32 vcc, 16, v%d', i)
    a('v_mov_b32 v%d, %d', vT + 6, VOFF + 640 * 16)
    a('s_nop 0')
    a('v_cndmask_b32 v%d, v%d, v%d, vcc', vV, vV, x)
    a('v_cmp_le_u32 vcc, 20, v%d', i)
    a('v_mul_u32_u24 v%d, %d, v%d', x, VROW, h)
    a('v_add_u32 v%d, %d, v%d', x, VOFF, x)
    a('v_lshl_add_u32 v%d, v%d, 4, v%d', vV, vV, x)
    a('v_cndmask_b32 v%d, v%d, v%d, vcc', vV, vV, vT + 6)
    a('v_cmp_le_u32 vcc, %d, v%d', 21 if OPT['vzero'] else 24, i)
    a('v_mov_b32 v%d, 0x%x', x, OOB)
    a('v_mov_b32 v%d, 0xdddd', vIDX)
    a('v_cndmask_b32 v%d, v%d, v%d, vcc', vV, vV, x)
    for k in range(1, 4):
        a('v_add_u32 v%d, %d, v%d', vV + k, 2 * VROW * k, vV)
    a('s_mul_i32 s87, s85, 40')
    a('s_lshl4_add_u32 s87, s%d, s87', sODD)
    a('s_add_u32 s88, s87, 23')
    a('s_lshr_b32 s87, s87, 7')
    a('s_lshr_b32 s88, s88, 7')
    a('s_add_u32 s89, s86, 19')
    a('s_lshr_b32 s86, s86, 7')
    a('s_lshr_b32 s89, s89, 7')
    a('v_lshrrev_b32 v%d, 4, v%d', x, vLANE)
    a('s_add_u32 s90, s87, 5')
    a('v_mov_b32 v%d, s90', vF1A)
    for sel, (reg, add) in enumerate(((88, 5), (86, 10), (89, 10))):
        a('s_add_u32 s90, s%d, %d', reg, add)
        a('v_cmp_eq_u32 vcc, %d, v%d', sel + 1, x)
        a('v_mov_b32 v%d, s90', vT + 6)
        a('s_nop 0')
        a('v_cndmask_b32 v%d, v%d, v%d, vcc', vF1A, vF1A, vT + 6)
    a('v_and_b32 v%d, 15, v%d', vT + 6, vLANE)
    a('v_lshl_add_u32 v%d, v%d, 4, v%d', vF1A, vF1A, vT + 6)
    a('v_lshlrev_b32 v%d, 7, v%d', vF1A, vF1A)
    a('v_mov_b32 v%d, s87', vF1A - 1)
    a('v_mov_b32 v%d, s88', vT + 6)
    a('v_cndmask_b32 v%d, v%d, v%d, s[%d:%d]', vF1A - 1, vF1A - 1, vT + 6, sHI, sHI + 1)
    a('v_bfe_u32 v%d, v%d, 4, 1', vT + 6, vLANE)
    a('v_lshl_add_u32 v%d, v%d, 4, v%d', vF1A - 1, vF1A - 1, vT + 6)
    a('s_lshl_b32 s90, s%d, 1', sQB)
    a('v_add_lshl_u32 v%d, v%d, s90, 7', vF1A - 1, vF1A - 1)
    a('v_and_b32 v%d, 3, v%d', vAPW, vLANE)
    a('v_lshlrev_b32 v%d, 8, v%d', vAPW, vAPW)
    a('v_lshlrev_b32 v%d, 2, v%d', vAPW + 1, vLANE)
    a('v_add_u32 v%d, %d, v%d', vAPW + 1, L_PW, vAPW + 1)
    a('v_add_u32 v%d, v%d, v%d', vAPW, vAPW, vAPW + 1)
    a('s_lshl1_add_u32 s90, s%d, s%d', sQB, sQH)
    a('s_lshl1_add_u32 s90, s90, s%d', sKH)
    a('s_mul_i32 s92, s90, %d', BLK)
    a('s_xor_b32 s91, s90, 1')
    a('s_mul_i32 s91, s91, %d', BLK)
    a('s_mov_b32 s10, 0x%x', f2u(2.0 ** -4))
    a('s_mov_b32 s11, 0x%x', f2u(2.0 ** 96))
    a('s_mul_i32 s36, s%d, %d', sW, REGSZ)
    a('s_add_u32 s36, s36, %d', L_REG + 8192)
    a('s_xor_b32 s37, s%d, 2', sW)
    a('s_mul_i32 s37, s37, %d', REGSZ)
    a('s_add_u32 s37, s37, %d', L_REG + 8192)
    a('v_lshl_add_u32 v%d, v%d, 4, s36', vMG, vLANE)
    a('v_lshl_add_u32 v%d, v%d, 3, s36', vMG + 1, vLANE)
    a('v_lshl_add_u32 v%d, v%d, 4, s37', vMG + 2, vLANE)
    a('v_lshl_add_u32 v%d, v%d, 3, s37', vMG + 3, vLANE)
    a('v_xor_b32 v%d, 512, v%d', vMG + 4, vPW)
    a('v_add_u32 v%d, 1024, v%d', vMG + 5, vAPW)
    if not OPT['amark']:
        a('v_bfe_u32 v%d, v%d, 4, 1', x, vLANE)
        a('v_mul_u32_u24 v%d, %d, v%d', x, OBLK, x)
        a('v_and_b32 v%d, 15, v%d', t, vLANE)
        a('v_lshl_add_u32 v%d, v%d, 4, v%d', x, t, x)
        a('v_mul_u32_u24 v%d, %d, v%d', t, 2 * OBLK, h)
        a('v_add_u32 v%d, v%d, v%d', vMG + 7, t, x)
        a('v_lshl_add_u32 v%d, v%d, 8, v%d', vMG + 6, h, x)
        a('s_mul_i32 s40, s90, %d', 4 * OBLK)
        a('s_add_u32 s40, s40, 0x%x', WS_O)
        a('s_lshl_b32 s41, s%d, 8', sP5)
        a('s_add_u32 s40, s40, s41')
        a('s_mul_i32 s41, s%d, 768', sODD)
        a('s_add_u32 s41, s41, s40')
        a('s_add_u32 s42, s41, %d', 2 * OBLK)
        a('s_lshl3_add_u32 s40, s%d, s40', sODD)
    a('s_lshl_b32 s43, s90, 5')
    a('s_add_u32 s43, s43, s%d', sHD)
    flagaddr(43, 43, F4, 0)

def a_mark():
    i, h, t, x = vT, vT + 1, vT + 2, vT + 3
    a('s_lshl1_add_u32 s90, s%d, s%d', sQB, sCW)
    a('s_lshl1_add_u32 s90, s90, s%d', sTW)
    a('s_and_b32 s%d, s%d, 1', sODD, sHD)
    a('s_lshr_b32 s85, s%d, 1', sHD)
    a('s_mul_i32 s%d, s85, 5', sP5)
    a('v_lshrrev_b32 v%d, 5, v%d', h, vLANE)
    a('v_bfe_u32 v%d, v%d, 4, 1', x, vLANE)
    a('v_mul_u32_u24 v%d, %d, v%d', x, OBLK, x)
    a('v_and_b32 v%d, 15, v%d', t, vLANE)
    a('v_lshl_add_u32 v%d, v%d, 4, v%d', x, t, x)
    a('v_mul_u32_u24 v%d, %d, v%d', t, 2 * OBLK, h)
    a('v_add_u32 v%d, v%d, v%d', vMG + 7, t, x)
    a('v_lshl_add_u32 v%d, v%d, 8, v%d', vMG + 6, h, x)
    a('s_mul_i32 s40, s90, %d', 4 * OBLK)
    a('s_add_u32 s40, s40, 0x%x', WS_O)
    a('s_lshl_b32 s41, s%d, 8', sP5)
    a('s_add_u32 s40, s40, s41')
    a('s_mul_i32 s41, s%d, 768', sODD)
    a('s_add_u32 s41, s41, s40')
    a('s_add_u32 s42, s41, %d', 2 * OBLK)
    a('s_lshl3_add_u32 s40, s%d, s40', sODD)
    for k in range(4):
        a('v_mov_b32 v%d, -1', 24 + k)
    a('buffer_store_dwordx4 v[24:27], v%d, s[%d:%d], s41 offen sc1', vMG + 6, RWS, RWS + 3)
    a('buffer_store_dwordx4 v[24:27], v%d, s[%d:%d], s42 offen sc1', vMG + 6, RWS, RWS + 3)
    a('buffer_store_dwordx2 v[24:25], v%d, s[%d:%d], s40 offen offset:512 sc1', vMG + 7, RWS, RWS + 3)

def a_b1_setup():
    a('s_mov_b64 s[14:15], s[%d:%d]', sWO, sWO + 1)
    b1_sources(R5, R6, 112, 116, 7, 5, 12, 3 if OPT['nodup'] else 2)
    a('s_lshl2_add_u32 s4, s%d, s%d', sRB, sW)
    a('s_mul_i32 s4, s4, %d', 32 * 1280)
    a('s_lshl_b32 s6, s%d, 12', sW)
    stagger(8, 9, OPT['st10'], OPT['flip'], OPT['stagb'])

def a_handoff():
    first = 10 + OPT['st10']
    nst = 8
    chunks = []
    if OPT['alate'] == 2:
        n0 = len(a.lines)
        a_att_setup()
        late = a.lines[n0:]
        del a.lines[n0:]
        if OPT['aearly']:
            late = late[:5] + late[OPT['aearly']:]
        nch = OPT['pollat'] - first
        k = 0
        for c in range(nch):
            e = len(late) * (c + 1) // nch
            while e < len(late) and any('cndmask' in x and 'vcc' in x for x in late[e:e + 4]):
                e += 1
            chunks.append(late[k:e])
            k = e
        chunks[-1].append('s_mov_b32 s85, 0x%x' % F1)
        nb = first - 10
        seq = OPT['seq'] or {1: 'bss', 2: 'bsbs', 3: 'bbsbs'}[nb]
        assert seq.count('b') == nb and seq.count('s') == 2
        kk = 0
        for ch in seq:
            if ch == 'b':
                a('s_barrier')
            else:
                if kk == 0 and OPT['fine'] == 1:
                    stamp('A', 'c11')
                a_b1stage(first + kk)
                if OPT['fine'] == 1:
                    stamp('A', 'iss%d' % (12 + kk))
                kk += 1
        for i_ in range(64):
            a('v_mov_b32 v%d, 0', vO + i_)
    else:
        for t in range(10, first):
            a('s_barrier')
            if t == 10:
                if OPT['alate']:
                    a_b1_setup()
                else:
                    for i_ in range(64):
                        a('v_mov_b32 v%d, 0', vO + i_)
        if OPT['fine'] == 1:
            stamp('A', 'c11')
        a_b1stage(first)
        if OPT['fine'] == 1:
            stamp('A', 'iss12')
        if OPT['alate']:
            a_att_setup()
            for i_ in range(64):
                a('v_mov_b32 v%d, 0', vO + i_)
        a_b1stage(first + 1)
        if OPT['fine'] == 1:
            stamp('A', 'iss13')
    lds_ = ['buffer_load_dword v%d, v%d, s[%d:%d], s85 offen sc1' % (104 + k, vF1A - k, RWS, RWS + 3) for k in range(2)]
    a('s_mov_b32 s85, 0x%x', F1)
    for t in range(first, 20):
        a('s_waitcnt vmcnt(%d)', 7 - OPT['nodup'] if t < 19 else 0)
        if t == first:
            stamp('A', 'qdrain')
        if t == 19:
            a('s_cmp_eq_u32 s%d, 0', sW)
            a('s_cbranch_scc0 L_c19')
            a('v_and_b32 v104, v104, v105')
            a('v_cmp_eq_u32 vcc, 0, v104')
            a('s_cbranch_vccnz L_c19')
            setpw(4, 102)
            a('s_waitcnt lgkmcnt(0)')
            a.label('L_c19')
        a('s_barrier')
        if t + 2 <= 19:
            a_b1stage(t + 2)
        if chunks:
            a.lines.extend(chunks.pop(0))
        if t == OPT['pollat']:
            a('s_cmp_eq_u32 s%d, 0', sW)
            a('s_cbranch_scc0 L_nopoll')
            for l in lds_:
                a(l)
            a.label('L_nopoll')
    stamp('A', 'b1load')
    a('s_cmp_eq_u32 s%d, 0', sW)
    a('s_cbranch_scc0 L_f1wait')
    a('s_cbranch_vccz L_f1go')
    a('s_mov_b64 exec, vcc')
    pollflags(lds_, 104, sleep=OPT['psleep'])
    setpw(4, 102)
    a.label('L_f1wait')
    waitpw(vAPW + 1, 4, 102, sleep=OPT['gsleep'])
    a.label('L_f1go')
    stamp('A', 'f1')

def kvload0(st, what, soff):
    if what in (K1A, K1B):
        r = KV[st] + what
        return 'buffer_load_dwordx4 %s, v%d, s[%d:%d], s%d offen offset:%d sc1' % (v(r, 4), vK1, R3, R3 + 3, soff, 512 if what == K1B else 0)
    if what in ('2A', '2B'):
        tl = what == '2B'
        return 'buffer_load_dwordx2 %s, v%d, s[%d:%d], s%d offen offset:%d sc1' % (v(KV[st] + K2 + 2 * tl, 2), vK2, R3, R3 + 3, soff, 8 * tl)
    r = KV[st] + what
    if what == K2:
        return 'buffer_load_dwordx4 %s, v%d, s[%d:%d], s%d offen sc1' % (v(r, 4), vK2, R3, R3 + 3, soff)
    return 'buffer_load_dwordx4 %s, v%d, s[%d:%d], s%d offen sc1' % (v(r, 4), vV + (what - VA0) // 4, R3, R3 + 3, soff)

def kvload(st, what, soff):
    return kvload0(st, what, soff).replace(' sc1', [' sc1', '', ' sc1 nt'][OPT['kvplain']])

def qk1(st, tile, qt, sb, first=True):
    return 'v_mfma_f32_32x32x16_bf16 %s, %s, %s, %s' % (v(vS + 16 * sb, 16), v(KV[st] + (K1B if tile else K1A), 4), v(vQ1 + 4 * qt, 4),
                                                       '0' if first else v(vS + 16 * sb, 16))

def qk2(st, tile, qt, sb, first=False):
    return 'v_mfma_f32_32x32x8bf16_1k %s, %s, %s, %s' % (v(vS + 16 * sb, 16), v(KV[st] + K2 + 2 * tile, 2), v(vQ2 + 2 * qt, 2),
                                                        '0' if first else v(vS + 16 * sb, 16))

def pv(st, tile, qt, m):
    return 'v_smfmac_f32_32x32x32_bf16 %s, %s, %s, v%d' % (v(vO + 16 * qt, 16), v(KV[st] + VA0 + 8 * tile + 4 * m, 4), v(vS + 16 * qt + 8 * m, 8), vIDX)

def maxtree(dst, src, acc):
    if acc:
        a('v_max3_f32 v%d, v%d, v%d, v%d', dst, dst, src, src + 1)
    else:
        a('v_max_f32 v%d, v%d, v%d', dst, src, src + 1)
    for k in range(2, 16, 2):
        a('v_max3_f32 v%d, v%d, v%d, v%d', dst, dst, src + k, src + k + 1)

def a_attention():
    if OPT['acq'] == 2:
        a('buffer_inv sc1')
    for lp in range(2):
        for T in range(2):
            a('buffer_load_dwordx4 %s, v%d, s[%d:%d], s%d offen offset:%d sc1', v(vQ1 + 8 * lp + 4 * T, 4), vT + 4, RWS, RWS + 3, 91 + lp, 512 * T)
    for lp in range(2):
        a('buffer_load_dwordx4 %s, v%d, s[%d:%d], s%d offen sc1', v(vQ2 + 4 * lp, 4), vT + 5, RWS, RWS + 3, 91 + lp)
    a.label('L_attload')
    a('s_mov_b32 s%d, 0x40000000', sCNT)
    a('s_add_u32 s%d, s%d, %d', sOFF, sKV0, BLK)
    for w_ in (K1A, K2):
        a(kvload0(0, w_, sKV0))
    for i in range(4):
        a('v_mov_b32 v%d, 0', KV[1] + VB1 + i)
    if OPT['kvsplit']:
        a('s_waitcnt vmcnt(%d)', OPT['kvsplit'] - 1)
    for w_ in (VA0, VA1, K1B, VB0, VB1):
        a(kvload0(0, w_, sKV0))
    for w_ in (K1A, VA0, VA1, K1B, K2, VB0):
        a(kvload0(1, w_, sOFF))
    if OPT['acq'] == 1:
        a('buffer_inv sc1')
    a('s_waitcnt vmcnt(%d)', 11 + (OPT['acq'] == 1))
    stamp('A', 'qkload')
    a('s_cmp_eq_u32 s%d, 0', sPASS)
    a('s_cbranch_scc0 L_setc')
    if OPT['fastpro']:
        a.c('stand-in for the row maximum: the largest score among seven keys of the first tile (checked after the loop)')
        def ch(t):
            S, m, h = vS + 16 * t, vM + t, vT + 8 + t
            return ['v_max3_f32 v%d, v%d, v%d, v%d' % (m, S, S + 1, S + 2),
                    'v_max3_f32 v%d, v%d, v%d, v%d' % (m, m, S + 5, S + 8),
                    'v_max3_f32 v%d, v%d, v%d, v%d' % (m, m, S + 11, S + 14),
                    'v_cvt_pk_bf16_f32 v%d, -v%d, -v%d' % (h, m, m),
                    'v_and_b32 v%d, 0xffff0000, v%d' % (h, h),
                    'v_sub_f32 v%d, -v%d, v%d' % (m, m, h),
                    'v_cvt_pk_bf16_f32 v%d, v%d, v%d' % (m, h, m),
                    'v_cndmask_b32 v%d, v%d, v%d, s[%d:%d]' % (vQ2 + 2 * t, vQ2 + 2 * t, m, sHI, sHI + 1)]
        def nc(t):
            m, h = vM + t, vT + 8 + t
            return ['v_and_b32 v%d, 0xffff0000, v%d' % (m, m),
                    'v_add_f32 v%d, v%d, v%d' % (vNC + t, m, h),
                    'v_add_f32 v%d, v%d, v%d' % (m, m, h)]
        sw = lambda t: 'v_permlane32_swap_b32 v%d, v%d' % (vM + t, vNC + t)
        seq = [qk1(0, 0, 0, 0), qk2(0, 0, 0, 0), qk1(0, 0, 1, 1), qk2(0, 0, 1, 1), qk1(0, 0, 2, 2), 's_nop 6', qk2(0, 0, 2, 2), 's_nop 0']
        seq += ch(0)[:5] + [qk1(0, 0, 3, 3)] + ch(0)[5:] + ch(1)[:3] + [qk2(0, 0, 3, 3)] + ch(1)[3:] + nc(0)[:1]
        seq += [qk1(0, 0, 0, 0)] + ch(2)[:6] + [qk2(0, 0, 0, 0)] + ch(3)[:3]
        seq += ['v_mov_b32 v%d, 0' % (vS + 48 + 8 + i) for i in range(8)]
        seq += ch(2)[6:] + ch(3)[3:] + nc(0)[1:] + nc(1) + nc(2) + [sw(0)] + nc(3) + [sw(1), sw(2), sw(3)]
        for o in seq:
            a(o)
        a.label('L_loopentry')
    else:
        a.c('stand-in for the row maximum: the maximum over the first key tile (checked after the loop)')
        def tree(qt):
            src = vS + 16 * qt
            return ['v_max_f32 v%d, v%d, v%d' % (vM + qt, src, src + 1)] + \
                   ['v_max3_f32 v%d, v%d, v%d, v%d' % (vM + qt, vM + qt, src + k, src + k + 1) for k in range(2, 16, 2)]
        for qt in range(3):
            a(qk1(0, 0, qt, qt))
            a(qk2(0, 0, qt, qt))
        a(qk1(0, 0, 3, 3))
        a('s_nop 6')
        for o in tree(0)[:4]:
            a(o)
        a(qk2(0, 0, 3, 3))
        for o in tree(0)[4:] + tree(1) + tree(2) + tree(3):
            a(o)
        a.label('L_setc')
        for qt in range(4):
            a('v_mov_b32 v%d, v%d', vT + 8 + qt, vM + qt)
        for qt in range(4):
            a('v_permlane32_swap_b32 v%d, v%d', vM + qt, vT + 8 + qt)
        for qt in range(4):
            a('v_min_f32 v%d, -v%d, -v%d', vM + qt, vM + qt, vT + 8 + qt)
        for qt in range(4):
            a('v_cvt_pk_bf16_f32 v%d, v%d, v%d', vT + 8 + qt, vM + qt, vM + qt)
        for qt in range(4):
            a('v_and_b32 v%d, 0xffff0000, v%d', vT + 8 + qt, vT + 8 + qt)
        for qt in range(4):
            a('v_sub_f32 v%d, v%d, v%d', vM + qt, vM + qt, vT + 8 + qt)
        for qt in range(4):
            a('v_cvt_pk_bf16_f32 v%d, v%d, v%d', vM + qt, vT + 8 + qt, vM + qt)
        for qt in range(4):
            a('v_cndmask_b32 v%d, v%d, v%d, s[%d:%d]', vQ2 + 2 * qt, vQ2 + 2 * qt, vM + qt, sHI, sHI + 1)
        a(qk1(0, 0, 0, 0))
        a(qk2(0, 0, 0, 0))
        for qt in range(4):
            a('v_and_b32 v%d, 0xffff0000, v%d', vM + qt, vM + qt)
        for qt in range(4):
            a('v_add_f32 v%d, v%d, v%d', vNC + qt, vM + qt, vT + 8 + qt)
        for i in range(8):
            a('v_mov_b32 v%d, 0', vS + 48 + 8 + i)
    a('s_waitcnt vmcnt(%d)', 8 + (OPT['acq'] == 1))
    if OPT['tearly'] or OPT['gtouch'] == 1 or OPT['woe'] or OPT['smark'] == 1:
        setpw(5, vT + 8)
    stamp('A', 'attpro')
    if OPT['fine'] == 3:
        base = len(nstamp['A'])
        nstamp['A'] += ['it%d' % i for i in range(16)]
        a('s_mov_b32 s24, %d', base)
    a('.p2align %d', OPT['lalign'])
    for _ in range(OPT['lpad']):
        a('s_nop 0')
    a.label('L_attloop')
    UN = OPT['unroll']
    LEAN = OPT['rot'] == 0 and OPT['lean']
    for dt in range(UN):
        st = dt & 1
        for n in range(8):
            tile, qt = n >> 2, n & 3
            nst, ntile, nqt = (st, (n + 1) >> 2, (n + 1) & 3) if n < 7 else (st ^ 1, 0, 0)
            pst, ptile, pqt = (st, (n - 1) >> 2, (n - 1) & 3) if n > 0 else (st ^ 1, 1, 3)
            def ex(k):
                for e in range(4 * k, 4 * k + 4):
                    a('v_exp_f32 v%d, v%d', vS + 16 * qt + e, vS + 16 * qt + e)
            if n == 7:
                a('s_waitcnt vmcnt(7)')
            X8 = OPT['x8first']
            a(qk2(nst, ntile, nqt, nqt, True) if X8 else qk1(nst, ntile, nqt, nqt))
            if n == 1:
                a('s_add_u32 s%d, s%d, %d', sOFF, sOFF, BLK)
            if n == 2 and not X8:
                a(kvload(st, K1A, sOFF))
            if n == 6:
                a(kvload(st, K2 if X8 else K1B, sOFF))
            if n == 5 and OPT['fine'] == 3:
                a('s_memtime s[98:99]')
                a('s_memrealtime s[100:101]')
            if n == 6 and OPT['fine'] == 3:
                a('s_waitcnt lgkmcnt(0)')
                a('s_mov_b32 m0, s24')
                a('s_add_u32 s25, s24, 32')
                a('v_writelane_b32 v%d, s98, m0', vTS)
                a('s_mov_b32 m0, s25')
                a('s_add_u32 s24, s24, 1')
                a('v_writelane_b32 v%d, s100, m0', vTS)
            ex(0)
            a(qk1(nst, ntile, nqt, nqt, False) if X8 else qk2(nst, ntile, nqt, nqt))
            if n == 2 and X8:
                a(kvload(st, K1A, sOFF))
            if n == 6:
                a(kvload(st, K1B if X8 else K2, sOFF))
            if n == 1 and st == 0 and not LEAN:
                a('s_cmp_eq_u32 s%d, s%d', sOFF, sKVE)
                a('s_cselect_b32 s%d, s%d, s%d', sOFF, sKVB, sOFF)
            ex(1)
            a(pv(pst, ptile, pqt, 1))
            if n == 0:
                a(kvload(st ^ 1, VB1, sOFF))
            if n == 4:
                a(kvload(st, VA1, sOFF))
            if n == 1 and dt == UN - 2 and not LEAN:
                a('s_cmp_eq_u32 s%d, s%d', sOFF, sKV0)
                a('s_cselect_b32 s%d, s%d, s%d', sOFF, sCNT, sOFF)
            if dt == UN - 1 and n == 7:
                a('s_cmp_lt_u32 s%d, s%d', sOFF, sKVE if LEAN else sCNT)
            ex(2)
            if n == 4:
                a('s_waitcnt vmcnt(10)')
            a(pv(st, tile, qt, 0))
            if n == 3:
                a(kvload(st, VA0, sOFF))
            if n == 7:
                a(kvload(st, VB0, sOFF))
            ex(3)
    a('s_cbranch_scc1 L_attloop')
    a('s_nop 0')
    a(pv(1, 1, 3, 1))
    stamp('A', 'attloop')
    if OPT['tprio']:
        a('s_setprio 2')
    a('ds_write_b64 v%d, %s offset:6144', vMG + 1, v(vNC, 2))
    for t in range(2):
        for q in range(3):
            a('ds_write_b128 v%d, %s offset:%d', vMG, v(vO + 16 * t + 4 * q, 4), 1024 * (3 * t + q))
    a('v_mov_b32 v%d, 6', vT + 10)
    a('v_mov_b32 v%d, 7', vT + 11)
    a('v_min3_f32 v%d, v%d, v%d, v%d', vT + 8, vO + 8, vO + 24, vO + 40)
    a('v_add_f32 v%d, v%d, v%d', vT + 9, vO + 8, vO + 24)
    a('v_add_f32 v%d, v%d, v%d', vT + 9, vT + 9, vO + 40)
    a('v_min_f32 v%d, v%d, v%d', vT + 8, vT + 8, vO + 56)
    a('v_add_f32 v%d, v%d, v%d', vT + 9, vT + 9, vO + 56)
    a('v_cmp_nle_f32 s[38:39], s10, v%d', vT + 8)
    a('v_cmp_nge_f32 vcc, s11, v%d', vT + 9)
    a('s_or_b32 s39, s39, vcc_hi')
    if OPT['force_fb']:
        a('s_cmp_eq_u32 s39, s39')
    a('s_cbranch_scc1 L_fallback')
    n0 = len(a.lines)
    a.label('L_fallback')
    a('s_cmp_eq_u32 s%d, 0', sPASS)
    a('s_cbranch_scc0 L_attok')
    a.c('fallback: exact row maximum over this wave\'s keys, then redo the pass')
    a('s_mov_b32 s%d, 1', sPASS)
    a('s_waitcnt vmcnt(0) lgkmcnt(0)')
    a('v_mov_b32 v%d, 0', vT + 8)
    for qt in range(4):
        a('v_cndmask_b32 v%d, v%d, v%d, s[%d:%d]', vQ2 + 2 * qt, vQ2 + 2 * qt, vT + 8, sHI, sHI + 1)
        a('v_mov_b32 v%d, 0xff800000', vM + qt)
    a('s_mov_b32 s%d, s%d', sOFF, sKVB)
    a('s_mov_b32 s%d, 16', sCNT)
    a.label('L_maxloop')
    for w_ in (K1A, K1B, K2):
        a(kvload(0, w_, sOFF))
    a('s_waitcnt vmcnt(0)')
    for tile in range(2):
        for qt in range(4):
            a(qk1(0, tile, qt, qt))
            a(qk2(0, tile, qt, qt))
        a('s_nop 5')
        for qt in range(4):
            maxtree(vM + qt, vS + 16 * qt, True)
    a('s_add_u32 s%d, s%d, %d', sOFF, sOFF, BLK)
    a('s_sub_u32 s%d, s%d, 1', sCNT, sCNT)
    a('s_cmp_lg_u32 s%d, 0', sCNT)
    a('s_cbranch_scc1 L_maxloop')
    for i in range(64):
        a('v_mov_b32 v%d, 0', vO + i)
    a('s_branch L_attload')
    if OPT['fastpro']:
        a.label('L_setc')
        for qt in range(4):
            a('v_mov_b32 v%d, v%d', vT + 8 + qt, vM + qt)
        for qt in range(4):
            a('v_permlane32_swap_b32 v%d, v%d', vM + qt, vT + 8 + qt)
        for qt in range(4):
            a('v_min_f32 v%d, -v%d, -v%d', vM + qt, vM + qt, vT + 8 + qt)
        for qt in range(4):
            a('v_cvt_pk_bf16_f32 v%d, v%d, v%d', vT + 8 + qt, vM + qt, vM + qt)
        for qt in range(4):
            a('v_and_b32 v%d, 0xffff0000, v%d', vT + 8 + qt, vT + 8 + qt)
        for qt in range(4):
            a('v_sub_f32 v%d, v%d, v%d', vM + qt, vM + qt, vT + 8 + qt)
        for qt in range(4):
            a('v_cvt_pk_bf16_f32 v%d, v%d, v%d', vM + qt, vT + 8 + qt, vM + qt)
        for qt in range(4):
            a('v_cndmask_b32 v%d, v%d, v%d, s[%d:%d]', vQ2 + 2 * qt, vQ2 + 2 * qt, vM + qt, sHI, sHI + 1)
        a(qk1(0, 0, 0, 0))
        a(qk2(0, 0, 0, 0))
        for qt in range(4):
            a('v_and_b32 v%d, 0xffff0000, v%d', vM + qt, vM + qt)
        for qt in range(4):
            a('v_add_f32 v%d, v%d, v%d', vNC + qt, vM + qt, vT + 8 + qt)
        for i in range(8):
            a('v_mov_b32 v%d, 0', vS + 48 + 8 + i)
        a('s_branch L_loopentry')
    COLD.extend(a.lines[n0:])
    del a.lines[n0:]
    a.label('L_attok')
    a('ds_write_b32 v%d, v%d', vPW, vT + 10)
    R = vS
    NC2 = vS + 32
    rd = ['ds_read_b64 %s, v%d offset:6144' % (v(NC2, 2), vMG + 3)]
    for t in range(2):
        rd.append('ds_read_b128 %s, v%d offset:%d' % (v(R + 16 * t + 8, 4), vMG + 2, 1024 * (3 * t + 2)))
    for t in range(2):
        for q in range(2):
            rd.append('ds_read_b128 %s, v%d offset:%d' % (v(R + 16 * t + 4 * q, 4), vMG + 2, 1024 * (3 * t + q)))
    if OPT['otag'] and not OPT['amark']:
        a('ds_read_b32 v%d, v%d', vT + 12, vMG + 5)
    waitpw(vMG + 4, 6, vT + 8, extra=rd)
    a('ds_write_b32 v%d, v%d', vPW, vT + 11)
    if OPT['otag'] and not OPT['amark']:
        a('v_cmp_gt_u32 vcc, 14, v%d', vT + 12)
        a('s_cbranch_vccnz L_swait')
        n0 = len(a.lines)
        a.label('L_swait')
        waitpw(vMG + 5, 14, vT + 12)
        a('s_branch L_sready')
        COLD.extend(a.lines[n0:])
        del a.lines[n0:]
        a.label('L_sready')
    f1, f2, l1, l2 = vS + 34, vS + 36, vS + 38, vS + 40
    a('s_waitcnt lgkmcnt(7)')
    for t in range(2):
        a('v_min_f32 v%d, v%d, v%d', l1 + t, vNC + 2 + t, NC2 + t)
    for t in range(2):
        a('v_sub_f32 v%d, v%d, v%d', f1 + t, l1 + t, vNC + 2 + t)
        a('v_sub_f32 v%d, v%d, v%d', f2 + t, l1 + t, NC2 + t)
    for t in range(2):
        a('v_exp_f32 v%d, v%d', f1 + t, f1 + t)
        a('v_exp_f32 v%d, v%d', f2 + t, f2 + t)
    a('s_waitcnt lgkmcnt(5)')
    for t in range(2):
        a('v_mul_f32 v%d, v%d, v%d', l1 + t, f1 + t, vO + 32 + 16 * t + 8)
    for t in range(2):
        a('v_fmac_f32 v%d, v%d, v%d', l1 + t, f2 + t, R + 16 * t + 8)
    for t in range(2):
        a('v_mov_b32 v%d, v%d', l2 + t, l1 + t)
    a('s_nop 0')
    for t in range(2):
        a('v_permlane32_swap_b32 v%d, v%d', l1 + t, l2 + t)
    for t in range(2):
        a('v_rcp_f32 v%d, v%d', l2 + t, l2 + t)
    a('s_waitcnt vmcnt(0) lgkmcnt(0)')
    for t in range(2):
        a('v_mul_f32 v%d, v%d, v%d', f1 + t, f1 + t, l2 + t)
        a('v_mul_f32 v%d, v%d, v%d', f2 + t, f2 + t, l2 + t)
    P = vO
    for t in range(2):
        if OPT['pkmerge']:
            sel = 'op_sel:[%d,0] op_sel_hi:[%d,1]' % (t, t)
            sel3 = 'op_sel:[%d,0,0] op_sel_hi:[%d,1,1]' % (t, t)
            for r in range(0, 12, 2):
                a('v_pk_mul_f32 %s, %s, %s %s', v(vO + 32 + 16 * t + r, 2), v(f1, 2), v(vO + 32 + 16 * t + r, 2), sel)
            for r in range(0, 12, 2):
                a('v_pk_fma_f32 %s, %s, %s, %s %s', v(vO + 32 + 16 * t + r, 2), v(f2, 2), v(R + 16 * t + r, 2), v(vO + 32 + 16 * t + r, 2), sel3)
        else:
            for r in range(12):
                a('v_mul_f32 v%d, v%d, v%d', vO + 32 + 16 * t + r, f1 + t, vO + 32 + 16 * t + r)
            for r in range(12):
                a('v_fmac_f32 v%d, v%d, v%d', vO + 32 + 16 * t + r, f2 + t, R + 16 * t + r)
        for q in range(6):
            a('v_cvt_pk_bf16_f32 v%d, v%d, v%d', P + 8 * t + q, vO + 32 + 16 * t + 2 * q, vO + 32 + 16 * t + 2 * q + 1)
        if OPT['otag']:
            for q in range(4):
                a('v_min_u32 v%d, -2, v%d', P + 8 * t + q, P + 8 * t + q)
        a('buffer_store_dwordx4 %s, v%d, s[%d:%d], s%d offen sc1', v(P + 8 * t, 4), vMG + 6, RWS, RWS + 3, 41 + t)
    if not OPT['otag']:
        a('s_nop 0')
    a('v_permlane32_swap_b32 v%d, v%d', P + 4, P + 12)
    a('v_permlane32_swap_b32 v%d, v%d', P + 5, P + 13)
    if OPT['otag']:
        a('v_min_u32 v%d, -2, v%d', P + 4, P + 4)
        a('v_min_u32 v%d, -2, v%d', P + 5, P + 5)
    a('buffer_store_dwordx2 %s, v%d, s[%d:%d], s40 offen offset:512 sc1', v(P + 4, 2), vMG + 7, RWS, RWS + 3)
    if OPT['otag']:
        setflag(43, 20)
    if OPT['tprio'] == 2:
        a('s_setprio 0')
    if OPT['pgate']:
        setpw(8, vT + 8)
        a('ds_read_b32 v%d, v%d', 99, vAPW)
    stamp('A', 'merge')

def p3_static(vA0, vA1, vOA, acc):
    EP = OPT['epoll']
    TAG = OPT['otag']
    if TAG:
        stamp('A', 'odrain')
        a.label('L_p3redo')
    elif not EP:
        a('s_waitcnt vmcnt(0)')
        stamp('A', 'odrain')
        setflag(43, 1)
    NB = 7
    def reads(ks):
        f = 100 + 20 * (ks % NB)
        base, off = (vA0, ks * 5120) if ks < 10 else (vA1, (ks - 10) * 5120)
        return ['ds_read_b64_tr_b16 %s, v%d offset:%d' % (v(f + 4 * j + 2 * rd, 2), base, off + 1280 * rd + 32 * j)
                for j in range(5) for rd in range(2)]
    pl = 'buffer_load_dword v252, v%d, s[%d:%d], s88 offen sc1' % (vOA + 1, RWS, RWS + 3)
    def oload(ks):
        a('buffer_load_dwordx4 %s, v%d, s[%d:%d], s85 offen offset:%d sc1', v(4 * ks, 4), vOA, RWS, RWS + 3, 1024 * (ks & 3))
        if ks & 3 == 3 and ks < 19:
            a('s_add_u32 s85, s85, 4096')
    LEAD = OPT['olead']
    touch_ = 'buffer_load_dword v251, v248, s[%d:%d], s85 offen sc1' % (RWS, RWS + 3)
    NP = OPT['npre'] if EP else 0
    rest = [r for ks in range(NP, NB) for r in reads(ks)]
    if EP:
        for ks in range(NP):
            for r in reads(ks):
                a(r)
        if OPT['pgate']:
            a('s_waitcnt lgkmcnt(0)')
            a('v_cmp_gt_u32 vcc, 8, v99')
            a('s_cbranch_vccz L_epoll')
            a('s_waitcnt vmcnt(0)')
            stamp('A', 'odrain')
            if DIAG:
                nstamp['A'].pop()
            setflag(43, 2)
            a('s_mov_b32 vcc_lo, -1')
            a('s_mov_b32 vcc_hi, 0')
            a('s_branch L_f4late')
            a.label('L_epoll')
        a('s_mov_b32 exec_hi, 0')
        a(pl)
        a('s_waitcnt vmcnt(1)')
        stamp('A', 'odrain')
        setflag(43, 2)
        a('s_mov_b32 exec_hi, 0')
        a('s_waitcnt vmcnt(1)')
        a('v_cmp_eq_u32 vcc, 0, v252')
        a('s_mov_b64 exec, -1')
        a('s_cbranch_vccnz L_f4late')
        stamp('A', 'f4')
        if DIAG:
            nstamp['A'].pop()
        a(touch_)
        k = 0
        for ks in range(LEAD):
            oload(ks)
            while k < len(rest) * (ks + 1) // LEAD:
                a(rest[k])
                k += 1
        a('s_branch L_p3go')
        a.label('L_f4late')
    for r in rest:
        a(r)
    if OPT['pgate'] and TAG != 1:
        a('s_mov_b64 s[38:39], vcc')
        waitpw(vAPW, 8, 99, sleep=OPT['gsleep'])
        a('s_mov_b64 vcc, s[38:39]')
    if EP:
        a('s_mov_b64 exec, vcc')
    else:
        a('s_mov_b32 exec_hi, 0')
    pollflags([pl], 252, sleep=OPT['psleep4'])
    stamp('A', 'f4')
    a(touch_)
    for ks in range(LEAD):
        oload(ks)
    a.label('L_p3go')
    a('s_waitcnt lgkmcnt(0)')
    nl = LEAD
    a('v_mov_b32 v250, 9')
    lq = []
    if nl == 20 or OPT['yearly']:
        a('ds_write_b32 v%d, v250', vPW)
    pend = []
    nck = 0
    for ks in range(20):
        w_ = 's_waitcnt vmcnt(%d)' % (nl - 1 - ks)
        if ks in lq:
            idx = max(i for i, x in enumerate(lq) if x == ks)
            w_ += ' lgkmcnt(%d)' % min(15, len(lq) - 1 - idx)
        a(w_)
        if OPT['fine'] in (1, 2) and ks in (0, 10, 19):
            stamp('A', 'p3k%d' % ks)
        rr = reads(ks + NB) if ks + NB < 20 else []
        for j in range(5):
            a('v_mfma_f32_16x16x32_bf16 %s, %s, %s, %s', v(acc + 4 * j, 4), v(4 * ks, 4), v(100 + 20 * (ks % NB) + 4 * j, 4),
              '0' if ks == 0 else v(acc + 4 * j, 4))
            for tg, r in pend:
                a(r)
                lq.append(tg)
            if TAG and not pend and ks >= 13:
                for _ in range(2):
                    if nck < 4 * ks + 4:
                        if nck == 0:
                            a('v_max_u32 v252, v0, v1')
                        else:
                            a('v_max3_u32 v252, v252, v%d, v%d', nck, nck + 1)
                        nck += 2
            pend = [(ks + NB, r) for r in rr[2 * j:2 * j + 2]]
            if j in (0, 3) and nl < 20 and (j == 0 or ks % 2 == 0):
                oload(nl)
                nl += 1
                if nl == 20 and not OPT['yearly']:
                    a('ds_write_b32 v%d, v250', vPW)
                    lq.append('w')
    if TAG:
        assert nck == 80
        a('v_cmp_eq_u32 vcc, -1, v252')
        a('s_cbranch_vccnz L_p3again')
        retry('L_p3again', 'L_p3redo', 0, ['s_sub_u32 s85, s85, 16384'])

def p3_groups(vA0, vOA, acc):
    WF, vAN = 100, 241
    sP, sG, sM, sKEY, sC = 4, 5, 6, 7, 8
    pl = 'buffer_load_dword v252, v%d, s[%d:%d], s88 offen sc1' % (vOA + 1, RWS, RWS + 3)
    for g in range(4):
        a('s_sub_u32 s%d, %d, s%d', sC + g, g, sOG)
        a('s_and_b32 s%d, s%d, 3', sC + g, sC + g)
        a('s_lshl2_add_u32 s%d, s%d, %d', sC + g, sC + g, g)
    a('v_mov_b32 v248, 9')
    a('s_waitcnt lgkmcnt(0)')
    a('v_cmp_gt_u32 vcc, 8, v99')
    a('s_cbranch_vccz L_epoll')
    a('s_waitcnt vmcnt(0)')
    stamp('A', 'odrain')
    if DIAG:
        nstamp['A'].pop()
    setflag(43, 2)
    waitpw(vAPW, 8, 99, sleep=OPT['gsleep'])
    a('s_mov_b32 exec_hi, 0')
    a(pl)
    a('s_waitcnt vmcnt(0)')
    a('s_branch L_polled')
    a.label('L_epoll')
    a('s_mov_b32 exec_hi, 0')
    a(pl)
    a('s_waitcnt vmcnt(1)')
    stamp('A', 'odrain')
    setflag(43, 2)
    a('s_mov_b32 exec_hi, 0')
    a('s_waitcnt vmcnt(1)')
    a.label('L_polled')
    a('v_cmp_eq_u32 vcc, 0, v252')
    a('s_mov_b64 exec, -1')
    a('s_mov_b32 s%d, vcc_lo', sP)
    def reads(k):
        return ['ds_read_b64_tr_b16 %s, v%d offset:%d' % (v(WF + 20 * k + 4 * j + 2 * rd, 2), vAN, 5120 * k + 1280 * rd + 32 * j)
                for j in range(5) for rd in range(2)]
    def issue(sl):
        for k in range(5):
            a('buffer_load_dwordx4 %s, v%d, s[%d:%d], s%d offen offset:%d sc1', v(20 * sl + 4 * k, 4), vOA, RWS, RWS + 3,
              12 if k < 4 else 13, 1024 * (k & 3))
        if sl == 3:
            a('ds_write_b32 v%d, v248', vPW)
    for sl in range(-1, 4):
        nx = sl + 1
        Lw, Lc, Ld = a.newlabel('gw'), a.newlabel('gc'), a.newlabel('gd')
        if nx < 4:
            for g in range(4):
                a('s_bfe_u32 s14, s%d, 0x%x', sP, (8 << 16) | (8 * g))
                a('s_bcnt1_i32_b32 s14, s14')
                if g == 0:
                    a('s_lshl4_add_u32 s%d, s14, s%d', sKEY, sC)
                else:
                    a('s_lshl4_add_u32 s14, s14, s%d', sC + g)
                    a('s_min_u32 s%d, s%d, s14', sKEY, sKEY)
            a('s_and_b32 s%d, s%d, 3', sG, sKEY)
            a('s_mul_i32 s12, s%d, 5120', sG)
            a('s_add_u32 s12, s12, s85')
            a('s_add_u32 s13, s12, 4096')
            a('s_cmp_lt_u32 s%d, 16', sKEY)
            a('s_cbranch_scc0 %s', Lw)
            issue(nx)
            if sl >= 0:
                a('s_waitcnt vmcnt(5)')
            a('s_branch %s', Lc)
            a.label(Lw)
            a('s_mov_b32 exec_lo, s%d', sP)
            a('s_mov_b32 exec_hi, 0')
            a(pl)
            a('s_mov_b64 exec, -1')
            if sl >= 0:
                a('s_waitcnt vmcnt(1)')
            a.label(Lc)
            a('s_mul_i32 s14, s%d, 25600', sG)
            a('v_add_u32 v%d, s14, v%d', vAN, vA0)
            if nx < 3:
                for g in range(4):
                    a('s_cmp_eq_u32 s%d, %d', sG, g)
                    a('s_cselect_b32 s%d, 0x1000, s%d', sC + g, sC + g)
        if sl < 0:
            for k in range(5):
                for r in reads(k):
                    a(r)
        else:
            pend = []
            for k in range(5):
                if nx == 4:
                    a('s_waitcnt vmcnt(%d) lgkmcnt(%d)', 4 - k, 0 if k >= 3 else 15)
                else:
                    a('s_waitcnt lgkmcnt(15)')
                rr = reads(k) if nx < 4 else []
                for j in range(5):
                    a('v_mfma_f32_16x16x32_bf16 %s, %s, %s, %s', v(acc + 4 * j, 4), v(20 * sl + 4 * k, 4), v(WF + 20 * k + 4 * j, 4),
                      '0' if (sl == 0 and k == 0) else v(acc + 4 * j, 4))
                    for r in pend:
                        a(r)
                    pend = rr[2 * j:2 * j + 2]
            for r in pend:
                a(r)
        if nx < 4:
            a('s_cmp_lt_u32 s%d, 16', sKEY)
            a('s_cbranch_scc1 %s', Ld)
            L1, L2 = a.newlabel('gp'), a.newlabel('gq')
            a('s_lshl_b32 s14, s%d, 3', sG)
            a('s_lshl_b32 s%d, 0xff, s14', sM)
            a('s_mov_b32 exec_lo, s%d', sP)
            a('s_mov_b32 exec_hi, 0')
            a.label(L1)
            a('s_waitcnt vmcnt(0)')
            a('v_cmp_eq_u32 vcc, 0, v252')
            a('s_and_b32 s14, vcc_lo, s%d', sM)
            a('s_cbranch_scc0 %s', L2)
            a('s_mov_b64 exec, vcc')
            if OPT['psleep4']:
                a('s_sleep %d', OPT['psleep4'])
            a(pl)
            a('s_sub_u32 s%d, s%d, 1', sSPIN, sSPIN)
            a('s_cbranch_scc0 %s', L1)
            a('s_endpgm')
            a.label(L2)
            a('s_mov_b32 s%d, vcc_lo', sP)
            a('s_mov_b64 exec, -1')
            issue(nx)
            a.label(Ld)
            if nx == 3:
                stamp('A', 'f4')

def a_outproj():
    vA0, vA1, vOA, vST = 240, 241, 242, 244
    if not OPT['otag'] or OPT['amark']:
        waitpw(vMG + 5, 14, 98, sleep=1)
    a('v_lshrrev_b32 v21, 5, v%d', vLANE)
    a('v_bfe_u32 v22, v%d, 2, 3', vLANE)
    a('v_lshl_add_u32 v21, v21, 4, v22')
    a('v_mul_u32_u24 v21, 160, v21')
    a('v_and_b32 v22, 3, v%d', vLANE)
    a('v_lshl_add_u32 v%d, v22, 3, v21', vA0)
    a('v_add_u32 v%d, %d, v%d', vA1, 10 * 5120, vA0)
    a('v_lshlrev_b32 v%d, 4, v%d', vOA, vLANE)
    a('v_lshrrev_b32 v21, 4, v%d', vLANE)
    a('v_mul_u32_u24 v21, %d, v21', 4 * 5120)
    a('v_and_b32 v22, 15, v%d', vLANE)
    a('v_lshl_add_u32 v%d, v22, 2, v21', vST)
    for r in range(1, 4):
        a('v_add_u32 v%d, %d, v%d', vST + r, 5120 * r, vST)
    a('s_mul_i32 s84, s%d, 2560', sOG)
    a('v_min_u32 v248, 19, v%d', vLANE)
    a('v_lshl_add_u32 v248, v248, 7, s84')
    a('s_lshl2_add_u32 s84, s%d, s%d', sTB, sW)
    a('s_mul_i32 s85, s84, %d', OBLK)
    a('s_add_u32 s85, s85, 0x%x', WS_O)
    a('s_mul_i32 s86, s84, %d', 16 * 5120)
    a('s_mul_i32 s88, s%d, 320', sOG)
    a('s_add_u32 s86, s86, s88')
    a('v_lshlrev_b32 v%d, 7, v%d', vOA + 1, vLANE)
    a('s_lshl_b32 s88, s%d, 12', sTB)
    a('s_add_u32 s88, s88, 0x%x', F4)
    acc = 80
    a.label('L_pgO')
    if OPT['p3dyn']:
        p3_groups(vA0, vOA, acc)
    else:
        p3_static(vA0, vA1, vOA, acc)
    a('s_nop 3')
    for j in range(5):
        for r in range(4):
            a('buffer_store_dword v%d, v%d, s[%d:%d], s86 offen offset:%d%s', acc + 4 * j + r, vST + r, R4, R4 + 3, 64 * j, OSC)
    finish('A')

vXR, vBR, vA0PW = 96, 100, 107
vL, vE, vHW, vHR0, vHR1, vHS, vCH, vCHL, vHH, vP01, vTCH, vHINT = 146, 150, 151, 152, 153, 154, 155, 156, 157, 158, 159, 160
vDX, vDW, vDBX, vDBB = 161, 165, 169, 173
vZ, vWOA, vPAR = 176, 186, 200
vCA, vCR, vHA = 248, 250, 252
vOS = 194
vSPW, vF3, vHT = 191, 192, 193
vAM = 248
vXO, vDO, vOA, vRA, vR1W, vR1R, vR2W, vPW1, vPW2, vAP4 = 164, 165, 166, 167, 169, 170, 171, 172, 173, 174
SENT = 0xffffffff

def s_stage(t, emit=None):
    out = []
    slot = ((t + 1) % 4) * 32768
    if OPT['stag'] >= 8 and t < 10:
        out += ['s_bfe_u32 s82, s%d, 0x%x' % (86 + t // 8, (4 << 16) | (4 * (t % 8))),
                's_add_u32 s82, s82, s85', 's_cmp_ge_u32 s82, 10', 's_cselect_b32 s83, 10, 0', 's_sub_u32 s82, s82, s83']
    elif OPT['stag'] >= 5 and t < 10:
        base, size = {0: (0, 4), 1: (4, 4), 2: (8, 2)}[t // 4] if OPT['stag'] != 7 else ((0, 2) if t < 2 else ((2, 4) if t < 6 else (6, 4)))
        out += ['s_add_u32 s82, s81, %d' % t, 's_and_b32 s82, s82, %d' % (size - 1), 's_add_u32 s82, s82, %d' % base,
                's_add_u32 s82, s82, s85', 's_cmp_ge_u32 s82, 10', 's_cselect_b32 s83, 10, 0', 's_sub_u32 s82, s82, s83']
    out.append('s_add_u32 m0, s74, %d' % slot)
    out.append('s_lshl_b32 s83, s82, 7')
    out.append('s_add_u32 s76, s72, s83')
    if t < 10:
        out += [dma(vDX + i, R0, 76, 1024 * i) for i in range(4)]
        out.append('s_add_u32 m0, s74, %d' % (slot + 16384))
        out.append('s_mul_i32 s83, s82, 245760')
        out.append('s_add_u32 s76, s73, s83')
        out += [dma(vDW + i, R1, 76, 1024 * i) for i in range(4)]
    else:
        out += [dma(vDBX + i, R3, 76, 1024 * i) for i in range(4)]
        out.append('s_add_u32 m0, s75, %d' % (slot + 16384))
        out.append('s_add_u32 s76, s77, s83')
        out += [dma(vDBB + i, R4, 76, 1024 * i) for i in range(3)]
    if not (OPT['stag'] >= 5 and t < 10):
        out.append('s_add_u32 s82, s82, 1')
        out.append('s_cmp_eq_u32 s82, 10')
        out.append('s_cselect_b32 s82, 0, s82')
    if emit is None:
        L = a.newlabel('skip')
        if t < 10:
            a('s_cmp_eq_u32 s%d, 15', sCG)
            a('s_cbranch_scc1 %s', L)
        for o in out:
            a(o)
        if t < 10:
            a.label(L)
    return out

def ninstr(t):
    return 0 if t > 19 else (8 if t < 10 else 7)

def exp_acc(dst, x, t1, t2):
    L2E = math.log2(math.e)
    hi = struct.unpack('<f', struct.pack('<f', L2E))[0]
    a('s_mov_b32 s80, 0x%x', f2u(hi))
    a('v_mul_f32 v%d, s80, v%d', t1, x)
    a('v_fma_f32 v%d, v%d, s80, -v%d', t2, x, t1)
    a('v_fmac_f32 v%d, 0x%x, v%d', t2, f2u(L2E - hi), x)
    a('v_exp_f32 v%d, v%d', dst, t1)
    a('v_mul_f32 v%d, 0x%x, v%d', t2, f2u(math.log(2.0)), t2)
    a('v_fmac_f32 v%d, v%d, v%d', dst, dst, t2)

def s_setup():
    a.label('L_roleS')
    a('s_sub_u32 s%d, s%d, 4', sW, sW)
    a('v_lshrrev_b32 v1, 3, v%d', vLANE)
    a('v_and_b32 v2, 7, v%d', vLANE)
    a('v_lshrrev_b32 v3, 4, v%d', vLANE)
    a('v_xor_b32 v4, v2, v3')
    a('v_mul_u32_u24 v5, 1280, v1')
    a('v_lshl_add_u32 v%d, v4, 4, v5', vDX)
    a('v_xor_b32 v6, 64, v%d', vDX)
    a('v_add_u32 v%d, %d, v6', vDX + 1, 10240 - 1024)
    a('v_add_u32 v%d, %d, v%d', vDX + 2, 2 * (10240 - 1024), vDX)
    a('v_add_u32 v%d, %d, v6', vDX + 3, 3 * (10240 - 1024))
    a('v_and_b32 v7, 15, v%d', vLANE)
    a('v_lshlrev_b32 v8, 2, v3')
    a('v_xor_b32 v7, v7, v8')
    a('v_mul_u32_u24 v8, 3840, v3')
    a('v_lshl_add_u32 v%d, v7, 4, v8', vDW)
    for i in range(1, 4):
        a('v_add_u32 v%d, %d, v%d', vDW + i, (15360 - 1024) * i, vDW)
    a('s_lshl2_add_u32 s72, s%d, s%d', sRB, sW)
    a('s_mul_i32 s72, s72, %d', 32 * 1280)
    a('s_mul_i32 s73, s%d, %d', sW, 16 * 3840)
    a('s_lshl_b32 s70, s%d, 8', sCG)
    a('s_add_u32 s73, s73, s70')
    a('s_lshl_b32 s74, s%d, 12', sW)
    if OPT['stag'] <= 4:
        stagger(82, 83, 0, 0, OPT['stag'])
    else:
        a('s_add_u32 s81, s%d, s%d', sI, sOG)
        a('s_add_u32 s85, s%d, 1', sXCD)
        a('s_lshr_b32 s85, s85, 1')
        a('s_mul_i32 s85, s85, %d', 2 if OPT['stag'] in (5, 8, 9, 10, 11) else 0)
        if OPT['stag'] >= 8:
            T = {8: ['0412385679', '1253049678', '2306145789', '3012745689'],
                 9: ['0142385679', '1253094678', '2306145789', '3017245689'],
                 10: ['0124358679', '1235049678', '2301645789', '3012745689'],
                 11: ['0412835679', '1523904678', '2360145789', '3071245689']}[OPT['stag']]
            for r in T:
                assert sorted(r) == list('0123456789')
            lo = [int(r[:8][::-1], 16) for r in T]
            hi = sum(int(r[8:][::-1], 16) << (8 * c) for c, r in enumerate(T))
            a('s_and_b32 s81, s81, 3')
            a('s_mov_b32 s86, 0x%x', lo[0])
            for c in range(1, 4):
                a('s_cmp_eq_u32 s81, %d', c)
                a('s_cselect_b32 s86, 0x%x, s86', lo[c])
            a('s_lshl_b32 s81, s81, 3')
            a('s_lshr_b32 s87, 0x%x, s81', hi)
    a('s_mov_b32 s%d, 0x%x', R0 + 2, 2048 * 1280)
    a('s_mov_b32 s%d, 0x20000', R0 + 3)
    a('s_mov_b32 s%d, 0x%x', R1 + 2, 640 * 3840)
    a('s_mov_b32 s%d, 0x20000', R1 + 3)
    st0 = s_stage(0, emit=False)
    k = next(i for i, o in enumerate(st0) if o.startswith('buffer_load'))
    for o in st0[:k]:
        a(o)
    a('s_cmp_eq_u32 s%d, 15', sCG)
    a('s_waitcnt lgkmcnt(0)')
    a('s_mov_b64 s[%d:%d], s[%d:%d]', R0, R0 + 1, sAX, sAX + 1)
    a('s_mov_b64 s[%d:%d], s[%d:%d]', R1, R1 + 1, sWQ, sWQ + 1)
    if DIAG:
        ws_setup()
    stamp('S', 'start')
    a('s_cbranch_scc1 L_skip0')
    for o in st0[k:]:
        a(o)
    a.label('L_skip0')
    if not DIAG:
        prologue2()
        ws_setup()
    if OPT['fine'] == 1:
        stamp('S', 'iss0')
    def params():
        a('s_mul_i32 s70, s%d, 40', sG)
        a('v_min_u32 v9, 39, v%d', vLANE)
        a('v_add_lshl_u32 v9, v9, s70, 1')
        a('global_load_ushort v10, v9, s[%d:%d]', sLDT, sLDT + 1)
        a('global_load_ushort v11, v9, s[%d:%d]', sLRE, sLRE + 1)
        a('global_load_ushort v12, v9, s[%d:%d]', sLIM, sLIM + 1)
    params()
    n0 = len(a.lines)
    b1_sources(R3, R4, vDBX, vDBB, 75, 77, 70)
    a('v_and_b32 v5, 3, v%d', vLANE)
    a('v_lshlrev_b32 v5, 8, v5')
    a('v_lshl_add_u32 v5, v%d, 2, v5', vLANE)
    a('v_add_u32 v%d, %d, v5', vSPW, L_PW + 1024)
    s_addresses()
    if OPT['slate']:
        late = a.lines[n0:]
        del a.lines[n0:]
        k = 0
        nch = OPT['slate']
        for c in range(nch):
            e = len(late) * (c + 1) // nch
            while e < len(late) and ('cselect' in late[e] or 'cndmask' in late[e] or 'cndmask' in late[e + 1] or 'cndmask' in late[min(e + 2, len(late) - 1)]):
                e += 1
            SLATE.append(late[k:e])
            k = e
    s_stage(1)
    if OPT['fine'] == 1:
        stamp('S', 'iss1')
    a('s_waitcnt vmcnt(11) lgkmcnt(0)')
    stamp('S', 'st0')
    a('s_barrier')
    s_stage(2)
    slate()
    a('s_waitcnt vmcnt(8)')
    a('s_barrier')
    s_stage(3)
    s_stage(4)

SLATE = []

def slate():
    if SLATE:
        a.lines.extend(SLATE.pop(0))

def s_addresses():
    c, g, t0, t1, t2 = 40, 41, 42, 43, 44
    a('v_and_b32 v%d, 15, v%d', c, vLANE)
    a('v_lshrrev_b32 v%d, 4, v%d', g, vLANE)
    a('v_lshrrev_b32 v%d, 1, v%d', t0, c)
    a('v_xor_b32 v%d, v%d, v%d', t0, t0, g)
    a('v_lshlrev_b32 v%d, 4, v%d', t0, t0)
    a('v_lshl_add_u32 v%d, v%d, 7, v%d', t0, c, t0)
    a('v_xor_b32 v%d, 64, v%d', t1, t0)
    a('v_add_u32 v%d, s74, v%d', vXR, t0)
    a('v_add_u32 v%d, s74, v%d', vXR + 1, t1)
    a('s_mul_i32 s70, s%d, %d', sW, REGSZ)
    a('s_add_u32 s70, s70, %d', L_REG)
    a('v_add_u32 v%d, s70, v%d', vCR, t0)
    a('v_add_u32 v%d, s70, v%d', vCR + 1, t1)
    a('v_lshrrev_b32 v%d, 3, v%d', t2, c)
    a('v_lshl_add_u32 v%d, v%d, 12, v%d', t0, t2, t0)
    a('v_add_u32 v%d, 16384, v%d', vBR, t0)
    a('v_xor_b32 v%d, 64, v%d', vBR + 1, vBR)
    for k in range(2):
        a('v_add_u32 v%d, 0x10000, v%d', vXR + 2 + k, vXR + k)
        a('v_add_u32 v%d, 0x10000, v%d', vBR + 2 + k, vBR + k)
    a('v_and_b32 v%d, 7, v%d', t0, vLANE)
    a('v_lshlrev_b32 v%d, 2, v%d', t2, t2)
    a('v_lshl_add_u32 v%d, v%d, 3, v%d', t0, t0, t2)
    a('v_add_u32 v%d, %d, v%d', vHH, L_H, t0)
    a('v_mul_u32_u24 v%d, 320, v%d', t1, g)
    a('s_mul_i32 s71, s%d, 1280', sW)
    a('s_add_u32 s71, s71, %d', L_EL)
    a('v_add3_u32 v%d, v%d, v%d, s71', vE, t0, t1)
    a('v_lshlrev_b32 v%d, 3, v%d', vCH, vLANE)
    a('v_add_u32 v%d, %d, v%d', vCHL, L_H, vCH)
    a('v_lshlrev_b32 v%d, 9, v%d', vHINT, vLANE)
    a('v_lshlrev_b32 v%d, 2, v%d', vA0PW, vLANE)
    a('v_add_u32 v%d, %d, v%d', vA0PW, L_PW, vA0PW)
    a('v_and_b32 v%d, 0x%x, v%d', vP01, 0xffffffff ^ 512, vSPW)
    a('v_bfe_u32 v%d, v%d, 1, 2', t0, vLANE)
    a('v_xor_b32 v%d, v%d, v%d', t0, t0, g)
    a('v_lshlrev_b32 v%d, 4, v%d', t0, t0)
    a('s_mul_i32 s71, s%d, 5120', sW)
    a('s_add_u32 s71, s71, %d', L_HT)
    a('v_lshl_add_u32 v%d, v%d, 6, v%d', t0, c, t0)
    a('v_add_u32 v%d, s71, v%d', vHW, t0)
    a('v_bfe_u32 v%d, v%d, 2, 2', t0, vLANE)
    a('v_lshrrev_b32 v%d, 5, v%d', t1, vLANE)
    a('v_lshl_add_u32 v%d, v%d, 3, v%d', vHR0, t1, t0)
    a('v_lshlrev_b32 v%d, 6, v%d', vHR0, vHR0)
    a('v_mul_u32_u24 v%d, %d, v%d', vHS, 80 * 256, t1)
    a('v_lshrrev_b32 v%d, 1, v%d', t0, t0)
    a('v_bfe_u32 v%d, v%d, 4, 1', t1, vLANE)
    a('v_bfe_u32 v%d, v%d, 1, 1', t2, vLANE)
    a('v_lshl_add_u32 v%d, v%d, 1, v%d', t2, t1, t2)
    a('v_xor_b32 v%d, v%d, v%d', t2, t2, t0)
    a('v_lshl_add_u32 v%d, v%d, 4, v%d', vHR0, t2, vHR0)
    a('v_and_b32 v%d, 1, v%d', t2, vLANE)
    a('v_lshl_add_u32 v%d, v%d, 3, v%d', vHR0, t2, vHR0)
    a('v_xor_b32 v%d, 32, v%d', vHR1, vHR0)
    a('v_add_u32 v%d, s71, v%d', vHR0, vHR0)
    a('v_add_u32 v%d, s71, v%d', vHR1, vHR1)
    a('v_mul_u32_u24 v%d, %d, v%d', t1, HBLK, t1)
    a('v_lshl_add_u32 v%d, v%d, 4, v%d', t1, c, t1)
    a('v_add_u32 v%d, v%d, v%d', vHS, vHS, t1)
    if OPT['otag'] and not OPT['amark']:
        a('v_bfe_u32 v%d, v%d, 4, 1', t0, vLANE)
        a('v_mul_u32_u24 v%d, %d, v%d', t0, OBLK, t0)
        a('v_lshl_add_u32 v%d, v%d, 4, v%d', t0, c, t0)
        a('v_lshrrev_b32 v%d, 5, v%d', t1, vLANE)
        a('v_mul_u32_u24 v%d, %d, v%d', t2, 2 * OBLK, t1)
        a('v_add_u32 v%d, v%d, v%d', vOS + 1, t2, t0)
        a('v_lshl_add_u32 v%d, v%d, 8, v%d', vOS, t1, t0)
        for k in range(4):
            a('v_mov_b32 v%d, -1', vOS + 2 + k)
    a('v_mov_b32 v%d, v%d', vCA, vDX)
    a('v_mov_b32 v%d, v%d', vCA + 1, vDX + 1)
    a('v_lshlrev_b32 v%d, 4, v%d', vHA, vLANE)
    a('v_lshlrev_b32 v%d, 7, v%d', vF3, vLANE)
    a('v_min_u32 v%d, %d, v%d', vHT, 39 * 128, vF3)
    a('s_xor_b32 s92, s%d, 1', sW)
    a('s_mul_i32 s92, s92, %d', REGSZ)
    a('s_add_u32 s92, s92, %d', L_REG)
    a('s_xor_b32 s93, s%d, 3', sW)
    a('s_mul_i32 s93, s93, %d', REGSZ)
    a('s_add_u32 s93, s93, %d', L_REG + 16 * 336)
    if not OPT['wopack']:
        s_wooffs()

def s_params():
    a('s_cmp_eq_u32 s%d, 0', sW)
    a('s_cbranch_scc0 L_nopar')
    for r in (10, 11, 12):
        a('v_lshlrev_b32 v%d, 16, v%d', r, r)
    exp_acc(13, 10, 14, 15)
    a('v_cvt_pk_bf16_f32 v13, v13, v13')
    a('v_and_b32 v13, 0xffff0000, v13')
    a('v_mul_f32 v14, v13, v11')
    a('v_mul_f32 v15, v13, v12')
    exp_acc(16, 14, 17, 18)
    I2P = 1.0 / (2 * math.pi)
    hi = struct.unpack('<f', struct.pack('<f', I2P))[0]
    a('s_mov_b32 s80, 0x%x', f2u(hi))
    a('v_mul_f32 v17, s80, v15')
    a('v_rndne_f32 v17, v17')
    a('v_fma_f32 v17, v15, s80, -v17')
    a('v_fmac_f32 v17, 0x%x, v15', f2u(I2P - hi))
    a('v_cos_f32 v20, v17')
    a('v_sin_f32 v21, v17')
    a('v_mul_f32 v18, v11, v11')
    a('v_fmac_f32 v18, v12, v12')
    a('v_rcp_f32 v19, v18')
    a('v_mul_f32 v20, v16, v20')
    a('v_mul_f32 v21, v16, v21')
    a('v_fma_f32 v18, -v18, v19, 1.0')
    a('v_fmac_f32 v19, v19, v18')
    a('v_add_f32 v19, v19, v19')
    a('v_add_f32 v17, -1.0, v20')
    a('v_mul_f32 v22, v17, v11')
    a('v_fmac_f32 v22, v21, v12')
    a('v_mul_f32 v23, v17, v12')
    a('v_fma_f32 v23, -v21, v11, v23')
    a('v_mul_f32 v22, v22, v19')
    a('v_mul_f32 v23, v23, v19')
    a('v_lshlrev_b32 v9, 4, v%d', vLANE)
    a('v_add_u32 v9, %d, v9', L_PAR)
    a('ds_write_b128 v9, v[20:23]')
    a('v_mov_b32 v24, v20')
    a('v_sub_f32 v25, 0, v21')
    for k in range(3):
        a('v_mul_f32 v26, v25, v25')
        a('v_add_f32 v27, v24, v24')
        a('v_fma_f32 v24, v24, v24, -v26')
        a('v_mul_f32 v25, v27, v25')
    a.label('L_nopar')

def s_params2():
    a('s_cmp_eq_u32 s%d, 0', sW)
    a('s_cbranch_scc0 L_nopar2')
    a('s_mov_b32 exec_hi, 0xff')
    a('v_mov_b32 v14, 1.0')
    a('v_mov_b32 v15, 0')
    a('ds_write_b64 v%d, v[14:15] offset:%d', vCHL, L_Z - L_H)
    a('ds_write_b64 v%d, v[24:25] offset:%d', vCHL, L_Z - L_H + 320)
    src = 24
    for sg in range(2, 17):
        dst = 16 + 2 * (sg % 3)
        a('v_mul_f32 v%d, v24, v%d', dst, src)
        a('v_mul_f32 v%d, v24, v%d', dst + 1, src + 1)
        a('v_fma_f32 v%d, -v25, v%d, v%d', dst, src + 1, dst)
        a('v_fmac_f32 v%d, v25, v%d', dst + 1, src)
        a('ds_write_b64 v%d, %s offset:%d', vCHL, v(dst, 2), L_Z - L_H + 320 * sg)
        src = dst
    a('s_mov_b32 exec_hi, -1')
    a('s_waitcnt lgkmcnt(0)')
    a.label('L_nopar2')

def s_wooffs():
    for i in range(5):
        a('v_add_u32 v40, %d, v%d', 64 * i, vLANE)
        a('v_mul_u32_u24 v41, 6554, v40')
        a('v_lshrrev_b32 v41, 16, v41')
        a('v_mul_u32_u24 v42, 10, v41')
        a('v_sub_u32 v40, v40, v42')
        tau(42, 41, 43)
        a('v_mul_u32_u24 v42, 1280, v42')
        a('v_lshl_add_u32 v%d, v40, 4, v42', vWOA + i)
        if 0 < i < 4:
            a('v_subrev_u32 v%d, %d, v%d', vWOA + i, 1024 * i, vWOA + i)

def s_qloader():
    early = {1: {7: 10}, 2: {7: 10, 9: 11}, 3: {7: 10, 8: 11, 9: 12}, 0: {}}[OPT['st10']]
    q = [2] * 8 + [3] * 8 + [4] * 8
    for st in range(2, 10):
        a('s_waitcnt vmcnt(%d)', len(q) - 1 - max(i for i, x in enumerate(q) if x == st))
        if OPT['fine'] == 1 and st in (2, 4, 6, 7, 8, 9):
            stamp('S', 'st%d' % st)
        a('s_barrier')
        if st == 6:
            a('v_and_b32 v32, 15, v%d', vLANE)
            a('v_lshlrev_b32 v32, 4, v32')
            a('v_mov_b32 v33, 1')
            a('s_cmp_eq_u32 s%d, 3', sW)
            a('s_cbranch_scc0 L_nodbg')
            a(dbgload(32, 33))
            a.label('L_nodbg')
            a('s_cmp_eq_u32 s%d, 15', sCG)
            a('s_cbranch_scc0 L_cw')
            a('s_waitcnt vmcnt(0)')
            a.label('L_cw')
        if st <= 6:
            s_stage(st + 3)
            q += [st + 3] * 8
            slate()
        if st == OPT['pretouch']:
            a('s_cmp_eq_u32 s%d, 2', sW)
            a('s_cselect_b32 s70, s%d, s%d', sBRE, sBIM)
            a('s_cselect_b32 s71, s%d, s%d', sBRE + 1, sBIM + 1)
            a('s_mul_i32 s83, s2, 3200')
            a('s_lshl1_add_u32 s84, s2, s%d', sW)
            a('s_mul_i32 s84, s84, 5120')
            a('s_cmp_lt_u32 s%d, 2', sW)
            a('s_cselect_b32 s70, s%d, s70', sBX)
            a('s_cselect_b32 s71, s%d, s71', sBX + 1)
            a('s_cselect_b32 s83, s84, s83')
            a('s_cselect_b32 s84, 39, 24')
            a('v_min_u32 v30, s84, v%d', vLANE)
            a('v_lshl_add_u32 v30, v30, 7, s83')
            a('global_load_dword v31, v30, s[70:71]')
            q.append('t')
        if st == 7:
            stagger(82, 83, 0, OPT['flip'], OPT['stagb'])
        if st in early:
            s_stage(early[st])
            q += [early[st]] * 7
        if st == 7 and not OPT['plate']:
            s_params()
        if st == 8 and not OPT['plate']:
            s_params2()

    a('v_cmp_eq_u32 vcc, 0, v33')
    a('s_cbranch_vccz L_clrok')
    pollflags([dbgload(32, 33)], 33, sleep=8)
    a.label('L_clrok')
    a('s_barrier')
    stamp('S', 'qend')
    if OPT['plate']:
        s_params()
        s_params2()
    else:
        s_consts()

def s_consts():
    a('v_and_b32 v104, 7, v%d', vLANE)
    a('v_lshlrev_b32 v104, 4, v104')
    a('v_add_u32 v104, %d, v104', L_PAR)
    for j in range(5):
        a('ds_read_b128 %s, v104 offset:%d', v(vPAR + 4 * j, 4), 128 * j)
    a('v_and_b32 v105, -8, v%d', vE)
    a('v_add_u32 v105, %d, v105', L_Z - L_EL)
    for j in range(5):
        a('ds_read_b64 %s, v105 offset:%d', v(vZ + 2 * j, 2), 64 * j)
    a('s_cmp_eq_u32 s%d, 0', sW)
    a('s_cselect_b32 s70, 1, 16')
    a('s_mul_i32 s70, s70, 320')
    a('v_add_u32 v106, s70, v%d', vCHL)
    a('ds_read_b64 %s, v106 offset:%d', v(vL, 2), L_Z - L_H)
    a('v_bfe_u32 v145, v%d, 3, 1', vLANE)
    a('v_lshlrev_b32 v145, 31, v145')
    a('v_xor_b32 v144, 0x80000000, v145')
    a('s_waitcnt lgkmcnt(0)')
    for j in range(5):
        a('v_xor_b32 v%d, v145, v%d', vPAR + 4 * j + 1, vPAR + 4 * j + 1)
        a('v_xor_b32 v%d, v145, v%d', vPAR + 4 * j + 2, vPAR + 4 * j + 2)
        a('v_xor_b32 v%d, v144, v%d', vZ + 2 * j + 1, vZ + 2 * j + 1)

def touch(r, va=None):
    o = ['s_add_u32 s84, s%d, %d' % (sXCD, r),
         's_cmp_ge_u32 s84, 6', 's_cselect_b32 s85, 6, 0', 's_sub_u32 s84, s84, s85',
         's_cmp_ge_u32 s84, 6', 's_cselect_b32 s85, 6, 0', 's_sub_u32 s84, s84, s85',
         's_cmp_ge_u32 s84, 2',
         's_cselect_b32 s86, s%d, s%d' % (sCRE, sWO), 's_cselect_b32 s87, s%d, s%d' % (sCRE + 1, sWO + 1),
         's_cmp_ge_u32 s84, 4',
         's_cselect_b32 s86, s%d, s86' % sCIM, 's_cselect_b32 s87, s%d, s87' % (sCIM + 1),
         's_and_b32 s84, s84, 1', 's_mul_i32 s84, s84, 3200',
         's_add_u32 s86, s86, s84', 's_addc_u32 s87, s87, 0',
         'global_load_dword v109, v%d, s[86:87]' % (va or vTCH)]
    return o

def s_b1():
    F = [40, 68]
    def reads(t, ks, f):
        slot = (t + 1) % 4
        hi, lo = slot >> 1, (slot & 1) * 32768
        r = ['ds_read_b128 %s, v%d offset:%d' % (v(f + 4 * T, 4), vXR + 2 * hi + ks, lo + 2048 * T) for T in range(2)]
        r += ['ds_read_b128 %s, v%d offset:%d' % (v(f + 8 + 4 * j, 4), vBR + 2 * hi + ks, lo + 1024 * j) for j in range(5)]
        return r
    def mfmas(f, first):
        return ['v_mfma_f32_16x16x32_bf16 %s, %s, %s, %s' % (v(8 * j + 4 * T, 4), v(f + 4 * T, 4), v(f + 8 + 4 * j, 4),
                '0' if first else v(8 * j + 4 * T, 4)) for j in range(5) for T in range(2)]
    def weave(ms, others):
        n = len(ms)
        k = 0
        for i_, m in enumerate(ms):
            a(m)
            while k < len(others) * (i_ + 1) // n:
                a(others[k])
                k += 1
    first = 10 + OPT['st10']
    a('s_lshl4_add_u32 s84, s%d, s%d', sCG, sRB)
    flagaddr(84, 84, F1, 85)
    a('s_waitcnt vmcnt(%d)', max(0, 7 * (first - 11)))
    a('s_barrier')
    for r in reads(10, 0, F[0]):
        a(r)
    for u in range(10):
        t = 10 + u
        if OPT['fine'] == 1 and u in (0, 2, 3, 4, 8):
            stamp('S', 'b1w%d' % u)
        a('s_waitcnt lgkmcnt(0)')
        m0_ = mfmas(F[0], u == 0)
        weave(m0_[:4], reads(t, 1, F[1]))
        for m in m0_[4:]:
            a(m)
        m1_ = mfmas(F[1], False)
        if u < 9:
            if t + 1 < first:
                a('s_waitcnt vmcnt(%d) lgkmcnt(0)', 7 * (first - t - 2))
            else:
                if t + 1 == first and OPT['plate']:
                    s_consts()
                a('s_waitcnt lgkmcnt(0)')
            a('s_barrier')
            if t + 1 == first:
                a('s_cmp_eq_u32 s%d, 3', sW)
                a('s_cbranch_scc0 L_noflag')
                setflag(84, 104)
                a.label('L_noflag')
            weave(m1_[:4], reads(t + 1, 0, F[0]))
            for m in m1_[4:]:
                a(m)
        else:
            a('s_waitcnt lgkmcnt(0)')
            for m in m1_:
                a(m)
    stamp('S', 'b1gemm')

def rot5(dst, t):
    a('s_and_b32 s%d, s%d, 3', dst, sI)
    a('s_add_u32 s%d, s%d, s%d', dst, dst, sXCD)
    for _ in range(2):
        a('s_cmp_ge_u32 s%d, 5', dst)
        a('s_cselect_b32 s%d, 5, 0', t)
        a('s_sub_u32 s%d, s%d, s%d', dst, dst, t)
    if not OPT['rot5']:
        a('s_mov_b32 s%d, 0', dst)

def s_wo():
    if OPT['wopack']:
        a('s_mov_b32 s73, 0x%x', F1 + 15 * 16 * 128)
        a('s_mov_b64 exec, 0xffff')
        pollflags(['buffer_load_dword v40, v%d, s[%d:%d], s73 offen sc1' % (vF3, RWS, RWS + 3)], 40, sleep=4)
        rot5(83, 73)
        a('s_mul_i32 s75, s%d, 102400', sOG)
        a('s_add_u32 s75, s75, 0x%x', WS_WP)
        a('s_mov_b32 s77, 5')
        a.label('L_woloop')
        a('s_lshl2_add_u32 s78, s83, s%d', sW)
        a('s_mul_i32 s78, s78, 5120')
        a('s_add_u32 s79, s78, s75')
        a('s_mov_b32 m0, s78')
        for i in range(5):
            if i == 4:
                a('s_add_u32 m0, s78, 4096')
                a('s_add_u32 s79, s79, 4096')
            a('s_waitcnt vmcnt(%d)', OPT['thrw'])
            a(dma(vHA, RWS, 79, 1024 * (i & 3)).replace(' lds', ' sc1 lds'))
    else:
        srd(R0, sWO, 640 * 1280)
        rot5(83, 73)
        a('s_mul_i32 s75, s%d, 160', sOG)
        a('s_mov_b32 s77, 5')
        a.label('L_woloop')
        a('s_lshl2_add_u32 s78, s83, s%d', sW)
        a('s_mul_i32 s79, s78, 40960')
        a('s_add_u32 s79, s79, s75')
        a('s_mul_i32 s78, s78, 5120')
        a('s_mov_b32 m0, s78')
        a('s_add_u32 s73, s78, 4096')
        for i in range(5):
            if i == 4:
                a('s_mov_b32 m0, s73')
            a('s_waitcnt vmcnt(%d)', OPT['thrw'])
            a(dma(vWOA + i, R0, 79, 1024 * (i & 3)))
    a('s_add_u32 s83, s83, 1')
    a('s_cmp_eq_u32 s83, 5')
    a('s_cselect_b32 s83, 0, s83')
    a('s_sub_u32 s77, s77, 1')
    a('s_cmp_lg_u32 s77, 0')
    a('s_cbranch_scc1 L_woloop')
    for kp in range(5):
        a('s_lshl_b32 s73, s83, 7')
        a('s_add_u32 s%d, s72, s73', 4 + kp)
        a('s_lshl_b32 s%d, s83, 11', 12 + kp)
        a('s_add_u32 s83, s83, 1')
        a('s_cmp_eq_u32 s83, 5')
        a('s_cselect_b32 s83, 0, s83')

def s_mark(both):
    a('s_and_b32 s78, s%d, 1', sW)
    a('s_lshl1_add_u32 s78, s%d, s78', sQB)
    a('s_lshr_b32 s79, s%d, 1', sW)
    a('s_lshl1_add_u32 s78, s78, s79')
    a('s_mul_i32 s78, s78, %d', 4 * OBLK)
    a('s_lshr_b32 s79, s%d, 1', sHD)
    a('s_mul_i32 s79, s79, 1280')
    a('s_add_u32 s78, s78, s79')
    a('s_add_u32 s78, s78, 0x%x', WS_O)
    a('s_and_b32 s79, s%d, 1', sHD)
    a('s_mul_i32 s73, s79, 768')
    a('s_add_u32 s73, s73, s78')
    a('s_add_u32 s75, s73, %d', 2 * OBLK)
    a('s_lshl3_add_u32 s78, s79, s78')
    for k in range(2 if both else 1):
        if k:
            for r in (73, 75, 78):
                a('s_sub_u32 s%d, s%d, %d', r, r, 4 * OBLK)
        a('buffer_store_dwordx4 %s, v%d, s[%d:%d], s73 offen sc1', v(vOS + 2, 4), vOS, RWS, RWS + 3)
        a('buffer_store_dwordx4 %s, v%d, s[%d:%d], s75 offen sc1', v(vOS + 2, 4), vOS, RWS, RWS + 3)
        a('buffer_store_dwordx2 %s, v%d, s[%d:%d], s78 offen offset:512 sc1', v(vOS + 2, 2), vOS + 1, RWS, RWS + 3)

def s_scan():
    ROR = 'row_ror:8 row_mask:0xf bank_mask:0xf'
    a('s_setprio 1')
    a('s_lshl_b32 s70, s%d, 13', sG)
    a('s_add_u32 s70, s70, 0x%x', WS_E)
    a('s_add_u32 s70, s70, s%d', sWS)
    a('s_addc_u32 s71, s%d, 0', sWS + 1)
    srd(R5, 70, 8192)
    a('s_sub_u32 s70, 15, s%d', sRB)
    a('s_lshl_b32 s70, s70, 9')
    a('s_add_u32 s71, s70, 4096')
    tmp = 40
    for j in range(5):
        for k in range(8):
            a('v_mul_f32_dpp v%d, v%d, v%d %s', tmp + k, 8 * j + k, vPAR + 4 * j + 3, ROR)
        for k in range(8):
            a('v_fma_f32 v%d, v%d, v%d, v%d', 8 * j + k, vPAR + 4 * j + 2, 8 * j + k, tmp + k)
    e = [[8 * j for j in range(5)], [50 + j for j in range(5)], [56 + j for j in range(5)]]
    cur = e[0]
    for k in range(1, 8):
        nx = e[1 + (k & 1)]
        for j in range(5):
            a('v_fma_f32 v%d, v%d, v%d, v%d', nx[j], vPAR + 4 * j, cur[j], 8 * j + k)
        for j in range(5):
            a('v_fmac_f32_dpp v%d, v%d, v%d %s', nx[j], cur[j], vPAR + 4 * j + 1, ROR)
        cur = nx
    for j in range(5):
        a('ds_write_b32 v%d, v%d offset:%d', vE, cur[j], 64 * j)
    setpw(11, 104)
    for r in range(10 - OPT['tstart'], 0 if OPT['tlate'] else 6):
        a('s_waitcnt vmcnt(0)')
        for o in touch(r):
            a(o)
    stamp('S', 'pass1')
    def chain(dst, src, add):
        a('v_fma_f32 v%d, v%d, v%d, v%d', dst, vL, src, add)
        a('v_fma_f32 v%d, v%d, v%d, v%d', dst + 1, vL, src + 1, add + 1)
        a('v_fma_f32 v%d, -v%d, v%d, v%d', dst, vL + 1, src + 1, dst)
        a('v_fmac_f32 v%d, v%d, v%d', dst + 1, vL + 1, src)
    ES = 110
    a('s_cmp_eq_u32 s%d, 1', sW)
    a('s_cbranch_scc1 L_wave1')
    a('s_cmp_eq_u32 s%d, 0', sW)
    a('s_cbranch_scc0 L_wave23')
    waitpw(vSPW, 11, 105, sleep=1)
    a('s_mov_b32 exec_hi, 0xff')
    for sg in range(16):
        a('ds_read_b64 %s, v%d offset:%d', v(ES + 2 * sg, 2), vCHL, L_EL - L_H + 320 * sg)
    a('v_mov_b32 v142, 0')
    a('v_mov_b32 v143, 0')
    a('s_waitcnt lgkmcnt(0)')
    a('ds_write_b64 v%d, v[142:143] offset:%d', vCHL, L_PL - L_H)
    for sg in range(1, 16):
        a('ds_write_b64 v%d, %s offset:%d', vCHL, v(ES + 2 * sg - 2, 2), L_PL - L_H + 320 * sg)
        chain(ES + 2 * sg, ES + 2 * sg - 2, ES + 2 * sg)
    a('v_min_u32 v%d, -2, v%d', ES + 30, ES + 30)
    a('v_min_u32 v%d, -2, v%d', ES + 31, ES + 31)
    a('buffer_store_dwordx2 %s, v%d, s[%d:%d], s70 offen sc1', v(ES + 30, 2), vCH, R5, R5 + 3)
    a('s_mov_b32 exec_hi, -1')
    setpw(12, 104)
    a('s_branch L_coldone')
    a.label('L_wave1')
    a.label('L_hint')
    a('buffer_load_dword v105, v%d, s[%d:%d], s70 offen offset:512 sc1', vHINT, R5, R5 + 3)
    a('s_waitcnt vmcnt(0)')
    a('v_cmp_eq_u32 vcc, -1, v105')
    a('s_cbranch_vccz L_hintok')
    a('s_mov_b64 exec, vcc')
    a('s_sleep 3')
    a.label('L_hint2')
    a('s_sub_u32 s%d, s%d, 1', sSPIN, sSPIN)
    a('s_cbranch_scc0 L_hint')
    a('s_endpgm')
    a.label('L_hintok')
    a('s_mov_b32 exec_lo, -1')
    a('s_mov_b32 exec_hi, 0xff')
    for k in range(15, 0, -1):
        a('buffer_load_dwordx2 %s, v%d, s[%d:%d], s%d offen offset:%d sc1', v(ES + 2 * (15 - k), 2), vCH, R5, R5 + 3,
          71 if k >= 8 else 70, 512 * (k & 7))
    a('s_waitcnt vmcnt(0)')
    a('v_max_u32 v105, v%d, v%d', ES, ES + 1)
    for n in range(1, 15):
        a('v_max3_u32 v105, v105, v%d, v%d', ES + 2 * n, ES + 2 * n + 1)
    a('v_cmp_eq_u32 vcc, -1, v105')
    a('s_cbranch_vccnz L_hint2')
    for n in range(1, 15):
        chain(ES + 2 * n, ES + 2 * n - 2, ES + 2 * n)
    a('ds_write_b64 v%d, %s', vCHL, v(ES + 28, 2))
    a('s_mov_b32 exec_hi, -1')
    setpw(12, 104)
    a('s_branch L_coldone')
    a.label('L_wave23')
    if OPT['otag'] and not OPT['amark'] and OPT['smark']:
        if OPT['smark'] == 1:
            waitpw(vA0PW, 5, 105, sleep=2)
        s_mark(True)
    if OPT['woe']:
        E = OPT['woe']
        srd(R0, sWO, 640 * 1280)
        a('s_mul_i32 s75, s%d, 160', sOG)
        a('s_and_b32 s83, s%d, 3', sI)
        a('s_add_u32 s83, s83, s%d', sXCD)
        waitpw(vA0PW, 5, 105, sleep=2)
        for it in range(E):
            a('s_add_u32 s78, s83, %d', it)
            a('s_and_b32 s78, s78, %d', E - 1)
            a('s_lshl1_add_u32 s78, s78, s%d', sW)
            a('s_sub_u32 s78, s78, 2')
            a('s_mul_i32 s79, s78, 40960')
            a('s_add_u32 s79, s79, s75')
            a('s_mul_i32 s78, s78, 5120')
            a('s_mov_b32 m0, s78')
            for i in range(5):
                if i == 4:
                    a('s_add_u32 m0, s78, 4096')
                a('s_waitcnt vmcnt(%d)', OPT['thre'])
                a(dma(vWOA + i, R0, 79, 1024 * (i & 3)))
    if OPT['gtouch']:
        a('s_cmp_eq_u32 s%d, 2', sW)
        a('s_cbranch_scc0 L_coldone')
        a('v_min_u32 v106, %d, v%d', 24 * 128, vF3)
        a('s_mul_i32 s78, s2, 3200')
        a('v_add_u32 v106, s78, v106')
        if OPT['gtouch'] == 1:
            waitpw(vA0PW, 5, 105, sleep=2)
        for p in (sCRE, sCIM, sWO):
            a('global_load_dword v109, v106, s[%d:%d]', p, p + 1)
    if OPT['tearly']:
        waitpw(vA0PW, 5, 105, sleep=2)
    for r in range(OPT['tearly']):
        for o in touch(r, vCT):
            a(o)
        if r + 1 < OPT['tearly']:
            a('s_waitcnt vmcnt(0)')
    a.label('L_coldone')
    a('s_lshl2_add_u32 s70, s%d, s%d', sRB, sW)
    a('s_mul_i32 s71, s70, %d', 2 * HBLK)
    a('s_mul_i32 s78, s%d, 1280', sG)
    a('s_add_u32 s71, s71, s78')
    a('s_add_u32 s71, s71, 0x%x', WS_H)
    a('s_lshl4_add_u32 s70, s70, s%d', sG)
    flagaddr(70, 70, F3, 78)
    waitpw(vP01, 12, 105, sleep=4)
    stamp('S', 'carry')
    for j in range(5):
        a('ds_read_b32 v%d, v%d offset:%d', 50 + j, vE, L_PL - L_EL + 64 * j)
        a('ds_read_b32 v%d, v%d offset:%d', 56 + j, vHH, 64 * j)
    a('s_waitcnt lgkmcnt(0)')
    for j in range(5):
        a('v_fmac_f32 v%d, v%d, v%d', 50 + j, vZ + 2 * j, 56 + j)
    for j in range(5):
        a('v_fmac_f32_dpp v%d, v%d, v%d %s', 50 + j, 56 + j, vZ + 2 * j + 1, ROR)
    for k in range(8):
        pr = [50 + j if k == 0 else 8 * j + k - 1 for j in range(5)]
        for j in range(5):
            a('v_fmac_f32 v%d, v%d, v%d', 8 * j + k, vPAR + 4 * j, pr[j])
        for j in range(5):
            a('v_fmac_f32_dpp v%d, v%d, v%d %s', 8 * j + k, pr[j], vPAR + 4 * j + 1, ROR)
    for j in range(5):
        for q in range(4):
            a('v_cvt_pk_bf16_f32 v%d, v%d, v%d', 64 + 4 * j + q, 8 * j + 2 * q, 8 * j + 2 * q + 1)
        a('ds_write_b128 v%d, %s offset:%d', vHW, v(64 + 4 * j, 4), 1024 * j)
        a('ds_read_b64_tr_b16 %s, v%d offset:%d', v(110 + 4 * j, 2), vHR0, 1024 * j)
        a('ds_read_b64_tr_b16 %s, v%d offset:%d', v(110 + 4 * j + 2, 2), vHR1, 1024 * j + 256)
    for j in range(5):
        a('s_waitcnt lgkmcnt(%d)', 12 - 3 * j)
        a('buffer_store_dwordx4 %s, v%d, s[%d:%d], s71 offen offset:%d sc1', v(110 + 4 * j, 4), vHS, RWS, RWS + 3, 256 * j)
    setpw(13, 104)

def s_b3():
    NS = 4
    acc, HF, CF = 0, 80, [208, 216]
    a('s_cmp_ge_u32 s%d, 2', sW)
    a('s_cselect_b32 s78, s%d, s%d', sCIM, sCRE)
    a('s_cselect_b32 s79, s%d, s%d', sCIM + 1, sCRE + 1)
    srd(R1, 78, 640 * 1280)
    srd(R6, sOUT, 2048 * 1280 * 4)
    a('s_mul_i32 s74, s%d, %d', sW, REGSZ)
    a('s_add_u32 s74, s74, %d', L_REG)
    a('s_and_b32 s78, s%d, 1', sW)
    a('s_mul_i32 s72, s%d, %d', sOG, 80 * 1280)
    a('s_mul_i32 s73, s78, 640')
    a('s_add_u32 s72, s72, s73')
    a('s_mul_i32 s79, s%d, %d', sW, 40 * 256)
    a('s_add_u32 s79, s79, 0x%x', WS_H)
    a('s_lshr_b32 s80, s%d, 1', sW)
    a('s_lshl1_add_u32 s78, s78, s80')
    for l in range(4):
        a('s_xor_b32 s80, s78, %d', l)
        a('s_lshl2_add_u32 s80, s%d, s80', sTB)
        a('s_mul_i32 s80, s80, %d', HBLK)
        a('s_add_u32 s%d, s80, s79', 84 + l)
    a('s_lshl_b32 s88, s%d, 12', sTB)
    a('s_add_u32 s88, s88, 0x%x', F3)
    a('s_lshl2_add_u32 s78, s%d, s78', sTB)
    a('s_mul_i32 s80, s78, %d', 16 * 1280)
    a('s_mul_i32 s81, s%d, 160', sOG)
    a('s_add_u32 s80, s80, s81')
    a('s_mul_i32 s82, s78, %d', 16 * 5120)
    a('s_lshl1_add_u32 s82, s81, s82')
    a('s_add_u32 s82, s82, 2560')
    a('s_add_u32 s90, s%d, s81', sDSK)
    a('s_addc_u32 s91, s%d, 0', sDSK + 1)
    a('s_lshl2_add_u32 s89, s%d, s%d', sOG, sW)
    a('s_mul_i32 s89, s89, 5120')
    a('s_mul_i32 s79, s%d, %d', sTB, 4 * HBLK)
    a('s_add_u32 s89, s89, s79')
    a('s_add_u32 s89, s89, 0x%x', WS_H)
    a('s_waitcnt vmcnt(0)')
    setflag(70, 40)
    if OPT['otag'] and not OPT['amark'] and not OPT['smark']:
        s_mark(False)
    stamp('S', 'hpub')
    if OPT['tlate']:
        for k in range(4):
            a('s_mov_b32 s%d, s%d', 4 + k, 84 + k)
        for r in range(OPT['tearly'], 6):
            for o in touch(r):
                a(o)
            a('s_waitcnt vmcnt(0)')
        for k in range(4):
            a('s_mov_b32 s%d, s%d', 84 + k, 4 + k)
    if OPT['newpre']:
        def cdma(n, pace=None):
            kp, j = divmod(n, 5)
            a('s_add_u32 m0, s74, %d', 2048 * (n % NS))
            a('s_add_u32 s76, s%d, %d', 4 + kp, 16 * 1280 * j)
            for k in range(2):
                if pace is not None:
                    a('s_waitcnt vmcnt(%d)', pace)
                a(dma(vCA + k, R1, 76, 1024 * k))
        def hload(l, ks):
            return 's_add_u32 s9, s%d, s%d\nbuffer_load_dwordx4 %s, v%d, s[%d:%d], s9 offen offset:%d sc1' % (
                84 + l, 12 + ks // 2, v(HF + 16 * (ks % 8) + 4 * l, 4), vHA, RWS, RWS + 3, 1024 * (ks & 1))
        srd(R0, sWO, 640 * 1280)
        rot5(83, 73)
        for kp in range(5):
            a('s_lshl_b32 s73, s83, 7')
            a('s_add_u32 s%d, s72, s73', 4 + kp)
            a('s_lshl_b32 s%d, s83, 11', 12 + kp)
            a('s_lshl2_add_u32 s%d, s83, s%d', 17 + kp, sW)
            a('s_add_u32 s83, s83, 1')
            a('s_cmp_eq_u32 s83, 5')
            a('s_cselect_b32 s83, 0, s83')
        NIT = 5 - OPT['woe'] // 2
        if OPT['woe']:
            a('s_cmp_ge_u32 s83, %d', NIT)
            a('s_cselect_b32 s73, %d, 0', NIT)
            a('s_sub_u32 s83, s83, s73')
            if NIT == 4:
                a('s_add_u32 s83, s%d, s%d', sI, sXCD)
                a('s_and_b32 s83, s83, 3')
            for it in range(NIT):
                a('s_lshl2_add_u32 s%d, s83, s%d', 17 + it, sW)
                a('s_add_u32 s%d, s%d, %d', 17 + it, 17 + it, 2 * OPT['woe'])
                a('s_add_u32 s83, s83, 1')
                a('s_cmp_eq_u32 s83, %d', NIT)
                a('s_cselect_b32 s83, 0, s83')
        a('s_mul_i32 s75, s%d, 160', sOG)
        waitpw(vSPW, 13, 41, sleep=2)
        for n in range(NS):
            cdma(n, OPT['thrw'] + 1)
        pl = 'buffer_load_dword v41, v%d, s[%d:%d], s88 offen sc1' % (vF3, RWS, RWS + 3)
        for it in range(NIT):
            if it == OPT['f3at']:
                a('s_mov_b32 exec_hi, 0')
                a(pl)
                a('s_mov_b32 exec_hi, -1')
            a('s_mul_i32 s79, s%d, 40960', 17 + it)
            a('s_add_u32 s79, s79, s75')
            a('s_mul_i32 s78, s%d, 5120', 17 + it)
            a('s_mov_b32 m0, s78')
            for i in range(5):
                if i == 4:
                    a('s_add_u32 m0, s78, 4096')
                a('s_waitcnt vmcnt(%d)', OPT['thrw'] + (1 if it == NIT - 1 and OPT['hin'] else 0))
                a(dma(vWOA + i, R0, 79, 1024 * (i & 3)))
                if it == NIT - 1 and OPT['hin'] and i < 4:
                    a(hload(i, 0))
                    a(hload(i, 1))
            if it == OPT['f3at']:
                a('s_mov_b32 exec_hi, 0')
                a('s_waitcnt vmcnt(5)')
                a('v_cmp_eq_u32 vcc, 0, v41')
                a('s_cbranch_vccz L_f3seen')
                a('s_mov_b64 exec, vcc')
                pollflags([pl], 41, sleep=4)
                a.label('L_f3seen')
                a('s_mov_b64 exec, -1')
                stamp('S', 'f3')
                a('buffer_load_dword v41, v%d, s[%d:%d], s89 offen sc1', vHT, RWS, RWS + 3)
        stamp('S', 'wo')
        a('v_mov_b32 v42, 14')
        for ks in range(0 if OPT['hin'] else 2):
            for l in range(4):
                a('s_waitcnt vmcnt(%d)', OPT['thrw'] + 1)
                a(hload(l, ks))
        if OPT['hin']:
            a('s_waitcnt vmcnt(0)')
        a('ds_write_b32 v%d, v42', vPW)
        a('s_setprio %d', OPT['b3prio'])
    else:
        stamp('S', 'touch')
        s_wo()
        waitpw(vSPW, 13, 40, sleep=2)
        def cdma(n):
            kp, j = divmod(n, 5)
            a('s_add_u32 m0, s74, %d', 2048 * (n % NS))
            a('s_add_u32 s76, s%d, %d', 4 + kp, 16 * 1280 * j)
            a(dma(vCA, R1, 76, 0))
            a(dma(vCA + 1, R1, 76, 1024))
        for n in range(NS):
            cdma(n)
            a('s_waitcnt vmcnt(%d)', 0 if n == NS - 1 else 4)
        setpw(14, 40)
        stamp('S', 'wo')
        a('s_cmp_eq_u32 s%d, 2', sW)
        a('s_cbranch_scc0 L_f3wait')
        a('s_mov_b32 exec_hi, 0')
        pollflags(['buffer_load_dword v40, v%d, s[%d:%d], s88 offen sc1' % (vF3, RWS, RWS + 3)], 40, sleep=4)
        setpw(15, 40)
        a.label('L_f3wait')
        waitpw(vS2PW, 15, 40, sleep=4)
        stamp('S', 'f3')
        a('s_setprio %d', OPT['b3prio'])
        def hload(l, ks):
            return 's_add_u32 s9, s%d, s%d\nbuffer_load_dwordx4 %s, v%d, s[%d:%d], s9 offen offset:%d sc1' % (
                84 + l, 12 + ks // 2, v(HF + 16 * (ks % 8) + 4 * l, 4), vHA, RWS, RWS + 3, 1024 * (ks & 1))
        a('buffer_load_dword v40, v%d, s[%d:%d], s89 offen sc1', vHT, RWS, RWS + 3)
        for ks in range(2):
            if ks:
                a('s_waitcnt vmcnt(0)')
            for l in range(4):
                a(hload(l, ks))
    def creads(n):
        return ['ds_read_b128 %s, v%d offset:%d' % (v(CF[n & 1] + 4 * k, 4), vCR + k, 2048 * (n % NS)) for k in range(2)]
    q = []
    def waitfor(tag):
        idx = max(i for i, x in enumerate(q) if x == tag)
        n = len(q) - 1 - idx
        del q[:idx + 1]
        return n
    for r in creads(0):
        a(r)
    a('s_waitcnt vmcnt(0) lgkmcnt(0)')
    stamp('S', 'b3go')
    cdma(NS)
    q += [NS, NS]
    vX, vD = HF + 64, HF + 74
    hq = [(l, ks) for ks in range(2, 10) for l in range(4)]
    STOP = OPT['b3stop']
    frag = {0: CF[0]}
    free = [216, 224, 232, 240]
    def creads(n):
        return ['ds_read_b128 %s, v%d offset:%d' % (v(frag[n] + 4 * k, 4), vCR + k, 2048 * (n % NS)) for k in range(2)]
    def fetch():
        n = len(frag)
        frag[n] = free.pop(0)
        if n in q:
            a('s_waitcnt vmcnt(%d)', waitfor(n))
        for r in creads(n):
            a(r)
        return n
    def refill(n):
        a('s_waitcnt lgkmcnt(0)')
        if n + NS < 25:
            cdma(n + NS)
            q.extend([n + NS, n + NS])
    t0, t1, t2 = 175, 249, vAP4
    addr = ['v_lshrrev_b32 v%d, 2, v%d' % (t0, vLANE),
            'v_and_b32 v%d, 3, v%d' % (t1, vLANE),
            'v_lshlrev_b32 v%d, 3, v%d' % (vDO, t1),
            'v_mul_u32_u24 v%d, 1280, v%d' % (t2, t0),
            'v_add_u32 v%d, v%d, v%d' % (vXO, t2, vDO),
            'v_lshlrev_b32 v%d, 4, v%d' % (t1, t1),
            'v_lshl_add_u32 v%d, v%d, 2, v%d' % (vOA, t2, t1),
            'v_mul_u32_u24 v%d, 336, v%d' % (t2, t0),
            'v_add3_u32 v%d, v%d, v%d, s92' % (vRA, t2, t1),
            'v_add3_u32 v%d, v%d, v%d, s93' % (vRA + 1, t2, t1),
            'v_lshlrev_b32 v%d, 4, v%d' % (t1, t1),
            'v_lshl_add_u32 v%d, v%d, 2, v%d' % (t1, vLANE, t1),
            'v_add_u32 v%d, %d, v%d' % (vAP4, L_PW, t1),
            'v_add_u32 v%d, s74, v%d' % (vR1W, vHA),
            'v_add_u32 v%d, s92, v%d' % (vR1R, vHA),
            'v_and_b32 v%d, 15, v%d' % (t0, vLANE),
            'v_mul_u32_u24 v%d, 336, v%d' % (t0, t0),
            'v_and_b32 v%d, 48, v%d' % (t1, vLANE),
            'v_add3_u32 v%d, v%d, v%d, s92' % (vR2W, t0, t1),
            'v_xor_b32 v%d, 256, v%d' % (vPW1, vPW),
            'v_xor_b32 v%d, 512, v%d' % (vPW2, vPW)]
    assert 10 <= STOP <= 15
    for n in range(25):
        kp, j = divmod(n, 5)
        if n == 10:
            free += [HF + 32 + 8 * k for k in range(4)]
        if n == STOP:
            while hq:
                l, ks = hq.pop(0)
                a(hload(l, ks))
                q.append('h%d' % (ks // 2))
            while len(frag) <= 20:
                refill(fetch())
            a('s_setprio 1')
            a('v_and_b32 v%d, 1, v%d', vAM, vLANE)
            a('v_lshlrev_b32 v%d, 9, v%d', vAM, vAM)
            a('v_xor_b32 v%d, v%d, v%d', vAM, vAM, vPW)
            a('v_subrev_u32 v%d, 1024, v%d', vAM, vAM)
            a('s_waitcnt vmcnt(0)')
            del q[:]
            stamp('S', 'b3stop')
            waitpw(vAM, OPT['b3res'], 249, sleep=OPT['rsleep'])
            stamp('S', 'b3res')
        want = n + 2 if n >= STOP else max(n + 2, 21 - OPT['ahead'] * (STOP - 1 - n))
        f1 = fetch() if (len(frag) < min(25, want) and free) else None
        if j == 0 and 'h%d' % kp in q:
            a('s_waitcnt vmcnt(%d)', waitfor('h%d' % kp))
        if OPT['fine'] >= 2 and n in (3, 6, 9):
            stamp('S', 'u%d' % n)
        extra = []
        for _ in range(OPT['hrate']):
            if hq and (hq[0][1] < 8 or n >= 5):
                l, ks = hq.pop(0)
                extra.append((hload(l, ks), 'h%d' % (ks // 2)))
        if 16 <= n < 21:
            i = n - 16
            extra += [('global_load_dwordx2 %s, v%d, s[90:91] offset:%d' % (v(vD + 2 * i, 2), vDO, 32 * i), 'x'),
                      ('buffer_load_dwordx2 %s, v%d, s[%d:%d], s80 offen offset:%d' % (v(vX + 2 * i, 2), vXO, R3, R3 + 3, 32 * i), 'x')]
        cnt = 0
        f2 = None
        for k in range(2):
            ks = 2 * kp + k
            for l in range(4):
                d = acc + 20 * l + 4 * j
                a('v_mfma_f32_16x16x32_bf16 %s, %s, %s, %s', v(d, 4), v(frag[n] + 4 * k, 4), v(HF + 16 * (ks % 8) + 4 * l, 4),
                  '0' if ks == 0 else v(d, 4))
                cnt += 1
                if cnt in (1, 2, 5, 6) and extra:
                    o, tg = extra.pop(0)
                    a(o)
                    q.append(tg)
                elif n >= 15 and addr:
                    a(addr.pop(0))
                if cnt == (4 if n < STOP else 6) and f1 is not None:
                    refill(f1)
                    if len(frag) < min(21, want) and free:
                        f2 = fetch()
                if cnt == 8 and f2 is not None:
                    refill(f2)
        assert not extra
        free.append(frag[n])
    assert not addr
    assert not hq
    stamp('S', 'b3gemm')
    T = 112
    if OPT['b3res'] < 7:
        waitpw(vAM, 7, T, sleep=2)
    else:
        a('s_nop 3')
    for qd in range(10):
        a('ds_write_b128 v%d, %s offset:%d', vR1W, v(acc + 40 + 4 * qd, 4), 1024 * qd)
    setpw(17, T + 1)
    if OPT['fine'] == 2:
        stamp('S', 'w1')
    a('s_waitcnt vmcnt(0)')
    if OPT['fine'] == 2:
        stamp('S', 'xw')
    U = 180
    def skip(i):
        for hf in range(2):
            a('v_lshlrev_b32 v%d, 16, v%d', T + 4, vX + 2 * i + hf)
            a('v_lshlrev_b32 v%d, 16, v%d', T + 5, vD + 2 * i + hf)
            a('v_and_b32 v%d, 0xffff0000, v%d', T + 6, vX + 2 * i + hf)
            a('v_and_b32 v%d, 0xffff0000, v%d', T + 7, vD + 2 * i + hf)
            a('v_mul_f32 v%d, v%d, v%d', U + 4 * i + 2 * hf, T + 4, T + 5)
            a('v_mul_f32 v%d, v%d, v%d', U + 4 * i + 2 * hf + 1, T + 6, T + 7)
    skip(0)
    skip(1)
    if OPT['fine'] == 2:
        stamp('S', 'r1w')
    waitpw(vPW1, 17, T + 1)
    if OPT['fine'] == 2:
        stamp('S', 'r1s')
    for qd in (5, 6, 7, 8, 9, 0, 1, 2, 3, 4):
        a('ds_read_b128 %s, v%d offset:%d', v(acc + 40 + 4 * qd, 4), vR1R, 1024 * qd)
    skip(2)
    a('s_waitcnt lgkmcnt(0)')
    for qd in (5, 6, 7, 8, 9, 0, 1, 2, 3, 4):
        l, j = divmod(qd, 5)
        for e in range(4):
            a('v_add_f32 v%d, v%d, v%d', acc + 4 * qd + e, acc + 4 * qd + e, acc + 40 + 4 * qd + e)
        a('ds_write_b128 v%d, %s offset:%d', vR2W, v(acc + 4 * qd, 4), 16 * 336 * l + 64 * j)
        if qd == 9:
            setpw(18, T + 1)
    for i in range(5):
        a('ds_read_b128 %s, v%d offset:%d', v(acc + 40 + 8 * i, 4), vRA, 64 * i)
    skip(3)
    skip(4)
    if OPT['fine'] == 2:
        stamp('S', 'r2w')
    waitpw(vPW2, 18, T + 1)
    if OPT['fine'] == 2:
        stamp('S', 'r2s')
    for i in range(5):
        a('ds_read_b128 %s, v%d offset:%d', v(acc + 44 + 8 * i, 4), vRA + 1, 64 * i)
    for i in range(5):
        for e in range(4):
            a('v_add_f32 v%d, v%d, v%d', U + 4 * i + e, U + 4 * i + e, acc + 40 + 8 * i + e)
    for i in range(5):
        a('s_waitcnt lgkmcnt(%d)', 4 - i)
        for e in range(4):
            a('v_add_f32 v%d, v%d, v%d', U + 4 * i + e, U + 4 * i + e, acc + 44 + 8 * i + e)
    stamp('S', 'yrdy')
    if OPT['yhold']:
        waitpw(vAP4, 9, T + 1, sleep=OPT['ysleep'])
    for i in range(5):
        a('buffer_store_dwordx4 %s, v%d, s[%d:%d], s82 offen offset:%d%s', v(U + 4 * i, 4), vOA, R6, R6 + 3, 64 * i, YSC)
    finish('S')

prologue()
s_setup()
s_qloader()
if OPT['sexit'] == 1:
    setpw(99, 40)
    finish('S')
s_b1()
if OPT['sexit'] == 2:
    setpw(99, 40)
    finish('S')
s_scan()
s_b3()
a.label('L_exit')
a('s_endpgm')
flush_cold()
a_setup()
if OPT['alate'] != 1:
    a_b1_setup()
if not OPT['alate']:
    a_att_setup()
if OPT['aearly']:
    n0_ = len(a.lines)
    a_att_setup()
    del a.lines[n0_ + OPT['aearly']:]
a_qphase()
a_handoff()
a_attention()
a_outproj()
flush_cold()
a.label('L_codeend')

errs = check(a.lines)
for e_ in errs:
    print('HAZARD', e_, file=sys.stderr)

head = open('cdna_kernels/%s.s.ref' % NAME).read().split('; @launch')[0]
out = head + '; @launch grid=(256,1,1) block=(512,1,1) lds=%d\n' % LDS_BYTES
out += '''.amdgcn_target "amdgcn-amd-amdhsa--gfx950"
.text
.globl %s_kernel
.p2align 8
.type %s_kernel,@function
%s_kernel:
''' % (NAME, NAME, NAME)
body = a.text().replace('QSC', ['sc1', 'sc0 sc1', 'sc1 nt', 'sc0 sc1 nt'][OPT['qsc']])
foot = '''.section .rodata,"a"
.p2align 6
.amdhsa_kernel %s_kernel
  .amdhsa_next_free_vgpr 256
  .amdhsa_next_free_sgpr 102
  .amdhsa_accum_offset 256
  .amdhsa_group_segment_fixed_size 0
  .amdhsa_kernarg_size 120
  .amdhsa_user_sgpr_count 2
  .amdhsa_user_sgpr_kernarg_segment_ptr 1
  .amdhsa_system_sgpr_workgroup_id_x 1
.end_amdhsa_kernel
''' % NAME
import re, subprocess
def render(pads):
    def f(m):
        if not OPT['pgalign']:
            return ''
        return '.p2align 12\n.fill %d, 4, 0xbf810000' % (pads.get(m.group(1), 0) // 4)
    return out + re.sub(r'\.PAD (\w+) (\w+)', f, body) + foot
pads = {}
for _ in range(3 if OPT['pgalign'] else 0):
    open('pad.s', 'w').write(render(pads))
    subprocess.run(['clang', '-x', 'assembler', '-target', 'amdgcn-amd-amdhsa', '-mcpu=gfx950', '-c', 'pad.s', '-o', 'pad.o'], check=True)
    sym = {l.split()[-1]: int(l.split()[0], 16) for l in subprocess.run(['llvm-objdump', '-t', 'pad.o'], capture_output=True, text=True).stdout.splitlines() if ' L_' in l}
    for st_, tg_ in re.findall(r'\.PAD (\w+) (\w+)', body):
        d = (-(sym[tg_] - sym[st_])) % 4096
        pads[st_] = (d + 63) // 64 * 64 % 4096
open(sys.argv[1], 'w').write(render(pads))
if DIAG:
    import json
    json.dump(nstamp, open(sys.argv[1] + '.stamps.json', 'w'))
import subprocess
r_ = subprocess.run(['clang', '-x', 'assembler', '-target', 'amdgcn-amd-amdhsa', '-mcpu=gfx950', '-c', sys.argv[1], '-o', 'chk.o'], capture_output=True, text=True)
if r_.returncode:
    print(r_.stderr[:2000])
    sys.exit(1)
if errs:
    sys.exit(1)
```

```python
import sys, math, struct
from asmlib import Asm, v, s, check

NAME = 'concat_heads__mha_block__ssm_conv_s5__prompt'
OPT = dict(diag=0, b3start=12, force_fb=0, psleep=0, fine=0, cpre=1, stag=10, b1dep=2, rot=1, thr=4, hold=3, codepre=2, psleep4=0, padto=0, outsc1=1, gate4=-1, early0=1, st10=2, b1prio=0, probe='', probewg=-1, sexit=0, b3prio=0, nocdma=0, mallpre=0, b3early=1, pretouch=-1, pace=0, pause=1, wolate=1, thrw=2, kvsplit=5, tstart=0, k2split=0, gate1='x', tlate=0, spread=1, pollat=17, tearly=0, b3stop=12, b3res=8, hrate=3, yhold=1, rot5=1, wopack=0, olead=20, allpoll=1, ysc=1, clrwide=0, nodup=1, onewait=0, vzero=1, lalign=6, lpad=0, epoll=0, npre=2, tprio=0, pgate=1, p3dyn=0, flip=1, newpre=1, f3at=2, gtouch=0, pkmerge=1, kvplain=0, acq=0, stagb=4, alate=2, slate=0, plate=1, seq='', unroll=2, lean=1, yearly=0, ysleep=2, cmap=1, l2pre=2, xpre=0, hack16=0, fastpro=1, gsleep=0, rsleep=2, xtail=1, ctail=0, hin=1, ahead=9, woe=0, thre=2, tlb=0, qsc=0, otag=0, amark=0, smark=0, x8first=1, pgalign=1, aearly=0, adep=2, eb=0, s1late=1, rotm=7)
for a_ in sys.argv[2:]:
    k_, v_ = a_.split('=')
    OPT[k_] = v_ if k_ in ('probe', 'gate1', 'seq') else int(v_)
DIAG = OPT['diag']
OSC = ['', ' sc1', ' nt', ' sc1 nt'][OPT['outsc1']]
YSC = ['', ' sc1', ' nt', ' sc1 nt'][OPT['ysc']]

def f2u(x):
    return struct.unpack('<I', struct.pack('<f', x))[0]

BLK, VOFF, VROW = 247808, 164864, 10368
WS_H, HBLK = 0x800000, 40960
WS_O, OBLK = 0xD00000, 20480
WS_E = 0xF80000
WS_F = 0xFA0000
F1, F3, F4 = WS_F, WS_F + 0x8000, WS_F + 0x28000
WS_WP = 0x1000000
WS_END = WS_WP + 8 * 102400
WS_DIAG = 0x1100000
OOB = 0x7F000000
L_HT, L_H, L_EL, L_PL = 65536, 86016, 86528, 91648
L_PAR, L_Z = 131072, 132096
L_WO = 0
L_REG, REGSZ = 102400, 14848
L_PW = 161792
LDS_BYTES = 163840
sAX, sWQ, sWO, sBX, sLRE, sLIM, sBRE, sBIM, sCRE, sCIM, sLDT, sDSK, sOUT, sDBG, sWS = range(4, 34, 2)
sW, sI, sXCD = 34, 35, 3
R0, R1, RWS, R3, R4, R5, R6 = 36, 40, 44, 48, 52, 56, 60
sRB, sCG, sHD, sQB, sTB, sOG = 64, 65, 66, 67, 68, 69
sG = 97
sSPIN = 96
sHI = 94
vLANE, vPW, vTS = 254, 253, 255
SPIN_MAX = 1 << 19

a = Asm()
nstamp = {}

def stamp(role, name):
    if OPT['probe'] == role + name:
        a('s_memrealtime s[98:99]')
        a('s_waitcnt lgkmcnt(0)')
        a('s_mov_b32 s101, s98')
    if not DIAG:
        return
    l = nstamp.setdefault(role, [])
    if DIAG == 2:
        l.append(name)
        if role + name == 'Aattpro':
            a('s_memrealtime s[98:99]')
            a('s_waitcnt lgkmcnt(0)')
            a('v_writelane_b32 v%d, s98, 29', vTS)
        return
    idx = len(l)
    l.append(name)
    a('s_memtime s[98:99]')
    a('s_memrealtime s[100:101]')
    a('s_waitcnt lgkmcnt(0)')
    a('v_writelane_b32 v%d, s98, %d', vTS, idx)
    a('v_writelane_b32 v%d, s100, %d', vTS, 32 + idx)

def srd(r, base, nbytes):
    a('s_mov_b32 s%d, s%d', r, base)
    a('s_mov_b32 s%d, s%d', r + 1, base + 1)
    if isinstance(nbytes, int):
        a('s_mov_b32 s%d, 0x%x', r + 2, nbytes)
    else:
        a('s_mov_b32 s%d, %s', r + 2, nbytes)
    a('s_mov_b32 s%d, 0x20000', r + 3)

def setpw(val, tmp):
    a('v_mov_b32 v%d, %d', tmp, val)
    a('ds_write_b32 v%d, v%d', vPW, tmp)

COLD = []

def retry(label, back, sleep, pre=()):
    COLD.append(label + ':')
    COLD.extend(pre)
    if sleep:
        COLD.append('s_sleep %d' % sleep)
    COLD.append('s_sub_u32 s%d, s%d, 1' % (sSPIN, sSPIN))
    COLD.append('s_cbranch_scc0 %s' % back)
    COLD.append('s_endpgm')

def flush_cold():
    a.lines.extend(COLD)
    del COLD[:]

def waitpw(vaddr, val, tmp, sleep=0, extra=()):
    L = a.newlabel('pw')
    D = a.newlabel('pwr')
    a.label(L)
    a('ds_read_b32 v%d, v%d', tmp, vaddr)
    for e in extra:
        a(e)
    if not sleep:
        a('s_sub_u32 s%d, s%d, 1', sSPIN, sSPIN)
        a('s_cbranch_scc1 L_exit')
    a('s_waitcnt lgkmcnt(%d)', len(extra))
    a('v_cmp_gt_u32 vcc, %d, v%d', val, tmp)
    if not sleep:
        a('s_cbranch_vccnz %s', L)
        return
    a('s_cbranch_vccnz %s', D)
    retry(D, L, sleep)

def pollflags(loads, tmp, sleep=1):
    L = a.newlabel('pf')
    D = a.newlabel('pfr')
    a.label(L)
    for l in loads:
        a(l)
    if not sleep:
        a('s_sub_u32 s%d, s%d, 1', sSPIN, sSPIN)
        a('s_cbranch_scc1 L_exit')
    a('s_waitcnt vmcnt(0)')
    for i in range(1, len(loads)):
        a('v_and_b32 v%d, v%d, v%d', tmp, tmp, tmp + i)
    a('v_cmp_eq_u32 vcc, 0, v%d', tmp)
    if not sleep:
        a('s_and_b64 exec, exec, vcc')
        a('s_cbranch_scc1 %s', L)
    else:
        a('s_cbranch_vccnz %s', D)
        retry(D, L, sleep, ['s_mov_b64 exec, vcc'])
    a('s_mov_b64 exec, -1')

def dbgload(va, vd):
    return 'global_load_dword v%d, v%d, s[%d:%d] sc1' % (vd, va, sDBG, sDBG + 1)

def flagaddr(dst, idx, base, t):
    a('s_lshl_b32 s%d, s%d, 7', dst, idx)
    a('s_add_u32 s%d, s%d, 0x%x', dst, dst, base)

def setflag(soff, tmp):
    a('v_mov_b32 v%d, 1', tmp)
    a('s_mov_b64 exec, 1')
    a('buffer_store_dword v%d, off, s[%d:%d], s%d sc1', tmp, RWS, RWS + 3, soff)
    a('s_mov_b64 exec, -1')

def tau(dst, src, t):
    a('v_and_b32 v%d, 0x13, v%d', dst, src)
    a('v_and_b32 v%d, 4, v%d', t, src)
    a('v_lshl_or_b32 v%d, v%d, 1, v%d', dst, t, dst)
    a('v_and_b32 v%d, 8, v%d', t, src)
    a('v_lshrrev_b32 v%d, 1, v%d', t, t)
    a('v_or_b32 v%d, v%d, v%d', dst, t, dst)

def finish(role):
    if OPT['probe'][:1] == role:
        if OPT['probe'][1:] == 'drained':
            a('s_waitcnt vmcnt(0)')
            stamp(role, 'drained')
        a('s_sub_u32 s101, s101, s100')
        a('s_mul_i32 s101, s101, 10')
        a('s_add_u32 s101, s101, 10000')
        if OPT['probewg'] >= 0:
            a('s_and_b32 s98, s2, 31')
            a('s_cmp_eq_u32 s98, %d', OPT['probewg'])
            a('s_cselect_b32 s101, s101, 0')
        L = a.newlabel('pad')
        a.label(L)
        a('s_sleep 4')
        a('s_memrealtime s[98:99]')
        a('s_waitcnt lgkmcnt(0)')
        a('s_sub_u32 s98, s98, s100')
        a('s_cmp_lt_u32 s98, s101')
        a('s_cbranch_scc1 %s', L)
    if OPT['padto']:
        L = a.newlabel('pad')
        a.label(L)
        a('s_sleep 4')
        a('s_memrealtime s[98:99]')
        a('s_waitcnt lgkmcnt(0)')
        a('s_sub_u32 s98, s98, s100')
        a('s_cmp_lt_u32 s98, %d', OPT['padto'])
        a('s_cbranch_scc1 %s', L)
    if DIAG:
        stamp(role, 'end')
        a('s_waitcnt vmcnt(0)')
        stamp(role, 'drained')
        a('s_memrealtime s[98:99]')
        a('s_waitcnt lgkmcnt(0)')
        a('v_writelane_b32 v%d, s98, 31', vTS)
        a('s_lshl_b32 s70, s2, 3')
        a('s_add_u32 s70, s70, s%d', sW)
        if role == 'S':
            a('s_add_u32 s70, s70, 4')
        a('s_lshl_b32 s70, s70, 8')
        a('s_add_u32 s70, s70, 0x%x', WS_DIAG)
        a('v_lshlrev_b32 v0, 2, v%d', vLANE)
        a('buffer_store_dword v%d, v0, s[%d:%d], s70 offen', vTS, RWS, RWS + 3)
    a('s_endpgm')

def prologue():
    a('s_cmp_ge_u32 s2, 256')
    a('s_cbranch_scc0 L_go')
    a('s_endpgm')
    a.label('L_go')
    if OPT['padto'] or DIAG or OPT['probe']:
        a('s_memrealtime s[100:101]')
    a('s_load_dwordx16 s[4:19], s[0:1], 0')
    a('s_load_dwordx8 s[20:27], s[0:1], 64')
    a('s_load_dwordx4 s[28:31], s[0:1], 96')
    a('s_load_dwordx2 s[32:33], s[0:1], 112')
    a('s_lshr_b32 s%d, s2, 3', sI)
    if OPT['codepre'] == 2:
        a.c('pull the code into L2: every half wave of an XCD touches one line')
        a('s_getpc_b64 s[76:77]')
        a('v_lshrrev_b32 v1, 5, v0')
        a('v_lshl_add_u32 v1, s%d, 4, v1', sI)
        a('v_min_u32 v1, (L_codeend - L_go) / 128 - 1, v1')
        a('v_lshlrev_b32 v1, 7, v1')
        a('global_load_dword v110, v1, s[76:77]')
    a('v_lshrrev_b32 v1, 6, v0')
    a('v_and_b32 v%d, 63, v0', vLANE)
    a('v_readfirstlane_b32 s%d, v1', sW)
    a('s_and_b32 s%d, s2, 7', sXCD)
    a('s_and_b32 s70, s%d, 3', sI)
    a('s_lshr_b32 s%d, s%d, 2', sOG, sI)
    a('s_lshr_b32 s71, s%d, 1', sXCD)
    a('s_lshl2_add_u32 s%d, s71, s70', sRB)
    a('s_and_b32 s71, s%d, 1', sXCD)
    a('s_lshl3_add_u32 s%d, s71, s%d', sG, sOG)
    a('s_cmp_ge_u32 s%d, %d', sI, 30 if OPT['cmap'] else 99)
    a('s_cselect_b32 s71, 8, 0')
    a('s_xor_b32 s%d, s%d, s71', sCG, sG)
    if DIAG:
        prologue2()
    a('s_cmp_ge_u32 s%d, 4', sW)
    a('s_cbranch_scc0 L_roleA')

def prologue2():
    a('v_lshlrev_b32 v%d, 2, v0', vPW)
    a('v_add_u32 v%d, %d, v%d', vPW, L_PW, vPW)
    a('v_mov_b32 v0, 0')
    a('ds_write_b32 v%d, v0', vPW)
    a('s_lshr_b32 s71, s%d, 3', sI)
    a('s_lshl2_add_u32 s%d, s%d, s71', sHD, sXCD)
    a('s_and_b32 s%d, s%d, 7', sQB, sI)
    a('s_and_b32 s70, s%d, 3', sI)
    a('s_lshl2_add_u32 s%d, s%d, s70', sTB, sXCD)
    a('s_mov_b32 s%d, 0x%x', sSPIN, SPIN_MAX)
    a('s_mov_b32 s%d, 0', sHI)
    a('s_mov_b32 s%d, -1', sHI + 1)

def ws_setup():
    srd(RWS, sWS, WS_END if not DIAG else WS_DIAG + 0x100000)
    if DIAG:
        a('v_mov_b32 v%d, 0', vTS)
        a('v_writelane_b32 v%d, s100, 30', vTS)

def stagger(k, t, add, flp, mode):
    if mode == 4:
        a('s_and_b32 s%d, s%d, 3', k, sI)
        if flp:
            a('s_xor_b32 s%d, s%d, 1', k, k)
        a('s_mul_i32 s%d, s%d, 5', k, k)
        a('s_lshr_b32 s%d, s%d, 1', k, k)
        a('s_mul_i32 s%d, s%d, 5', t, sOG)
        a('s_lshr_b32 s%d, s%d, 2', t, t)
        a('s_add_u32 s%d, s%d, s%d', k, k, t)
    elif mode in (2, 3):
        a('s_add_u32 s%d, s%d, s%d', k, sI, sOG)
        if flp:
            a('s_xor_b32 s%d, s%d, 1', k, k)
        a('s_and_b32 s%d, s%d, %d', k, k, 1 if mode == 2 else 3)
        a('s_mul_i32 s%d, s%d, 5', k, k)
        if mode == 3:
            a('s_lshr_b32 s%d, s%d, 1', k, k)
    else:
        a('s_mov_b32 s%d, 0', k)
    if mode == 0:
        a('s_mov_b32 s%d, %d', k, add)
        return
    a('s_add_u32 s%d, s%d, %d', t, sXCD, 1 + 2 * add)
    a('s_lshr_b32 s%d, s%d, 1', t, t)
    if mode == 1:
        a('s_add_u32 s%d, s%d, %d', t, sXCD, add)
    a('s_add_u32 s%d, s%d, s%d', k, k, t)
    for _ in range(2 if add else 1):
        a('s_cmp_ge_u32 s%d, 10', k)
        a('s_cselect_b32 s%d, 10, 0', t)
        a('s_sub_u32 s%d, s%d, s%d', k, k, t)

def b1_sources(rx, rb, vx, vb, sm, sb, t, j0=2):
    srd(rx, sBX, 2048 * 1280)
    a('s_cmp_ge_u32 s%d, 2', sW)
    a('s_cselect_b32 s%d, s%d, s%d', t, sBIM, sBRE)
    a('s_cselect_b32 s%d, s%d, s%d', t + 1, sBIM + 1, sBRE + 1)
    srd(rb, t, 640 * 1280)
    a('v_lshrrev_b32 v1, 3, v%d', vLANE)
    a('v_and_b32 v2, 7, v%d', vLANE)
    a('v_lshrrev_b32 v3, 4, v%d', vLANE)
    a('v_xor_b32 v4, v2, v3')
    a('v_and_b32 v5, 3, v1')
    a('v_lshrrev_b32 v6, 2, v1')
    a('v_lshl_add_u32 v5, v6, 3, v5')
    a('v_mul_u32_u24 v5, 1280, v5')
    a('v_lshl_add_u32 v%d, v4, 4, v5', vx)
    a('v_xor_b32 v6, 64, v%d', vx)
    a('v_add_u32 v%d, %d, v6', vx + 1, 16 * 1280 - 1024)
    a('v_add_u32 v%d, %d, v%d', vx + 2, 4 * 1280 - 2048, vx)
    a('v_add_u32 v%d, %d, v6', vx + 3, 20 * 1280 - 3072)
    a('s_lshr_b32 s%d, s%d, 1', t, sW)
    a('s_lshl_b32 s%d, s%d, 6', t + 1, t)
    a('v_mul_u32_u24 v5, 1280, v1')
    a('v_lshl_add_u32 v5, v4, 4, v5')
    a('v_xor_b32 v%d, s%d, v5', vb, t + 1)
    for i in range(1, 3):
        a('v_add_u32 v%d, %d, v%d', vb + i, (10240 - 1024) * i, vb)
    a('s_and_b32 s%d, s%d, 1', t + 1, sW)
    a('s_mul_i32 s%d, s%d, 5120', sm, t)
    a('s_mul_i32 s%d, s%d, %d', sb, t + 1, 1024 * j0)
    a('s_add_u32 s%d, s%d, s%d', sm, sm, sb)
    a('s_mul_i32 s%d, s%d, %d', sb, sG, 40 * 1280)
    a('s_mul_i32 s%d, s%d, %d', t + 1, t + 1, 8 * 1280 * j0)
    a('s_add_u32 s%d, s%d, s%d', sb, sb, t + 1)

def dma(voff, r, soff, imm):
    return 'buffer_load_dwordx4 v%d, s[%d:%d], s%d offen offset:%d lds' % (voff, r, r + 3, soff, imm)

def a_b1stage(t):
    slot = ((t + 1) % 4) * 32768
    a('s_add_u32 m0, s6, %d', slot)
    a('s_lshl_b32 s9, s8, 7')
    a('s_add_u32 s12, s4, s9')
    for i in range(4):
        a(dma(112 + i, R5, 12, 1024 * i))
    a('s_add_u32 m0, s7, %d', slot + 16384)
    a('s_add_u32 s12, s5, s9')
    L = a.newlabel('b3rd')
    for i in range(3):
        if i == 2 and OPT['nodup']:
            a('s_cmp_eq_u32 s%d, 1', sCW)
            a('s_cbranch_scc1 %s', L)
        a(dma(116 + i, R6, 12, 1024 * i))
    a.label(L)
    a('s_add_u32 s8, s8, 1')
    a('s_cmp_eq_u32 s8, 10')
    a('s_cselect_b32 s8, 0, s8')

sTW, sCW = 72, 73
vXA, vWA = 96, 104
vF1A = 252
vAPW = 249

def a_setup():
    a('.PAD L_roleA L_pgQ')
    a.label('L_roleA')
    if not DIAG:
        prologue2()
    a('s_waitcnt lgkmcnt(0)')
    ws_setup()
    stamp('A', 'start')
    a('s_lshr_b32 s%d, s%d, 1', sTW, sW)
    a('s_and_b32 s%d, s%d, 1', sCW, sW)
    a('s_lshl1_add_u32 s75, s%d, s%d', sRB, sTW)
    a('s_mul_i32 s74, s75, %d', BLK)
    if OPT['amark'] == 1:
        a_mark()
    a.c('column group 15 has no GEMM tile: these workgroups clear the flags and write the constant blocks')
    a('s_cmp_eq_u32 s%d, 15', sCG)
    a('s_cbranch_scc0 L_noconst')
    a('s_lshl2_add_u32 s77, s%d, s%d', sRB, sW)
    if OPT['clrwide']:
        a('v_lshlrev_b32 v2, 4, v%d', vLANE)
        a('v_min_u32 v3, 496, v2')
        for i in range(4):
            a('v_mov_b32 v%d, 0', 4 + i)
        a('s_mul_i32 s76, s77, 4608')
        a('s_add_u32 s76, s76, 0x%x', WS_F)
        for i in range(4):
            a('buffer_store_dwordx4 v[4:7], v2, s[%d:%d], s76 offen offset:%d sc1', RWS, RWS + 3, 1024 * i)
        a('s_add_u32 s76, s76, 4096')
        a('buffer_store_dwordx4 v[4:7], v3, s[%d:%d], s76 offen sc1', RWS, RWS + 3)
    else:
        a('v_min_u32 v1, 35, v%d', vLANE)
        a('v_lshlrev_b32 v1, 7, v1')
        a('v_mov_b32 v4, 0')
        a('s_mul_i32 s76, s77, 4608')
        a('s_add_u32 s76, s76, 0x%x', WS_F)
        a('buffer_store_dword v4, v1, s[%d:%d], s76 offen sc1', RWS, RWS + 3)
        a('v_lshlrev_b32 v2, 4, v%d', vLANE)
    for i in range(4):
        a('v_mov_b32 v%d, -1', 20 + i)
    a('s_lshl_b32 s76, s77, 11')
    a('s_add_u32 s76, s76, 0x%x', WS_E)
    for i in range(2):
        a('buffer_store_dwordx4 v[20:23], v2, s[%d:%d], s76 offen offset:%d sc1', RWS, RWS + 3, 1024 * i)
    a('v_lshrrev_b32 v1, 3, v%d', vLANE)
    a('v_mul_u32_u24 v1, %d, v1', VROW - 128)
    a('v_add_u32 v1, %d, v1', VOFF + 640 * 16 - 160 * 1024)
    a('v_mul_lo_u32 v1, v1, s%d', sCW)
    a('v_add_u32 v1, v1, v2')
    a('s_mul_i32 s76, s%d, 0x3f803f80', sCW)
    a('v_mov_b32 v8, 0x3f803f80')
    a('v_mov_b32 v9, s76')
    a('v_mov_b32 v10, v8')
    a('v_mov_b32 v11, s76')
    a('s_add_u32 s76, s74, %d', 160 * 1024)
    a('buffer_store_dwordx4 v[8:11], v1, s[%d:%d], s76 offen sc1', RWS, RWS + 3)
    a.label('L_noconst')
    if OPT['codepre'] == 1:
        a.c('pull the code into L2: each wave of an XCD touches a few lines')
        a('s_getpc_b64 s[76:77]')
        a.label('L_pc')
        a('s_sub_u32 s76, s76, L_pc - L_go')
        a('s_subb_u32 s77, s77, 0')
        a('s_lshl2_add_u32 s78, s%d, s%d', sI, sW)
        a('s_mul_i32 s78, s78, 3')
        a('v_min_u32 v1, 2, v%d', vLANE)
        a('v_add_u32 v1, s78, v1')
        a('v_min_u32 v1, (L_codeend - L_go) / 128 - 1, v1')
        a('v_lshlrev_b32 v1, 7, v1')
        a('global_load_dword v110, v1, s[76:77]')
    a.c('LDS fragment addresses for the QKV GEMM')
    a('v_and_b32 v1, 31, v%d', vLANE)
    a('v_lshrrev_b32 v2, 5, v%d', vLANE)
    a('v_bfe_u32 v3, v1, 1, 3')
    a('v_xor_b32 v3, v3, v2')
    a('v_lshlrev_b32 v3, 4, v3')
    a('v_lshl_add_u32 v3, v1, 7, v3')
    a('s_lshl_b32 s76, s%d, 13', sTW)
    a('v_add_u32 v3, s76, v3')
    for ks in range(4):
        a('v_xor_b32 v%d, %d, v3', vXA + ks, ks << 5)
        a('v_add_u32 v%d, 0x10000, v%d', vXA + 4 + ks, vXA + ks)
    a('v_bfe_u32 v4, v%d, 2, 2', vLANE)
    a('v_lshl_add_u32 v5, v2, 3, v4')
    a('v_lshlrev_b32 v5, 8, v5')
    a('v_bfe_u32 v6, v%d, 4, 1', vLANE)
    a('v_and_b32 v7, 1, v%d', vLANE)
    a('v_lshl_add_u32 v6, v6, 1, v7')
    a('s_lshl_b32 s76, s%d, 3', sCW)
    a('v_add_u32 v6, s76, v6')
    a('v_lshlrev_b32 v4, 2, v4')
    a('v_xor_b32 v6, v6, v4')
    a('v_lshl_add_u32 v5, v6, 4, v5')
    a('v_bfe_u32 v7, v%d, 1, 1', vLANE)
    a('v_lshl_add_u32 v5, v7, 3, v5')
    a('v_add_u32 v%d, 16384, v5', vWA)
    a('v_xor_b32 v%d, 64, v%d', vWA + 1, vWA)
    a('v_add_u32 v%d, 0x10000, v%d', vWA + 2, vWA)
    a('v_add_u32 v%d, 0x10000, v%d', vWA + 3, vWA + 1)

def a_qloop(vt):
    F = [64, 80]
    def reads(st, ks, f):
        slot = (st + 1) % 4
        hi, lo = slot >> 1, (slot & 1) * 32768
        r = []
        for T in range(2):
            r.append('ds_read_b128 %s, v%d offset:%d' % (v(f + 4 * T, 4), vXA + 4 * hi + ks, lo + 4096 * T))
        for Tc in range(2):
            for rd in range(2):
                r.append('ds_read_b64_tr_b16 %s, v%d offset:%d' % (v(f + 8 + 4 * Tc + 2 * rd, 2), vWA + 2 * hi + Tc,
                                                                  lo + (16 * ks + 4 * rd) * 256))
        return [r[0], r[2], r[3], r[1], r[4], r[5]]
    def mfma(f, i, j, first):
        acc = (2 * i + j) * 16
        A = f + 4 * i if vt else f + 8 + 4 * i
        B = f + 8 + 4 * j if vt else f + 4 * j
        if OPT['hack16']:
            o = 8 if f == F[1] else 0
            B2 = f + 8 + 4 * (1 - j) if vt else f + 4 * (1 - j)
            return 'v_mfma_f32_16x16x32_bf16 %s, %s, %s, %s\nv_mfma_f32_16x16x32_bf16 %s, %s, %s, %s' % (
                v(acc + o, 4), v(A, 4), v(B, 4), v(acc + o, 4), v(acc + o + 4, 4), v(A, 4), v(B2, 4), v(acc + o + 4, 4))
        return 'v_mfma_f32_32x32x16_bf16 %s, %s, %s, %s' % (v(acc, 16), v(A, 4), v(B, 4), '0' if first else v(acc, 16))
    if OPT['hack16']:
        for i_ in range(64):
            a('v_mov_b32 v%d, 0', i_)
    a('s_barrier')
    for r in reads(0, 0, F[0]):
        a(r)
    for st in range(10):
        for ks in range(4):
            cur, nxt = F[ks & 1], F[(ks + 1) & 1]
            first = st == 0 and ks == 0
            if st == 0 and ks == 3:
                a.label('L_pgV' if vt else 'L_pgQ')
            a('s_waitcnt lgkmcnt(0)')
            if ks == 3:
                a('s_barrier')
                rr = reads(st + 1, 0, nxt) if st < 9 else []
            else:
                rr = reads(st, ks + 1, nxt)
            if st == 9 and ks == 3:
                a(mfma(cur, 0, 0, False))
                a(mfma(cur, 0, 1, False))
                return [mfma(nxt, 1, 1, False), mfma(cur, 1, 0, False), mfma(cur, 1, 1, False)]
            a(mfma(cur, 0, 0, first))
            for r in rr[:3]:
                a(r)
            a(mfma(cur, 0, 1, first))
            for r in rr[3:]:
                a(r)
            a(mfma(cur, 1, 0, first))
            if not (st == 9 and ks == 2):
                a(mfma(cur, 1, 1, first))

def tailweave(ms, work):
    a(ms[0])
    a('s_nop 6')
    a(ms[1])
    a('s_nop 1')
    for o in work[:6]:
        a(o)
    a(ms[2])
    for o in work[6:]:
        a(o)

def a_pack_wo():
    a('s_lshl2_add_u32 s76, s%d, s%d', sRB, sW)
    a('s_mul_i32 s77, s76, 12800')
    a('s_add_u32 s78, s14, s77')
    a('s_addc_u32 s79, s15, 0')
    a('s_mul_i32 s76, s76, 10')
    a('s_mov_b32 s80, 0x%x', WS_WP)
    for n in range(13):
        a('v_add_u32 v60, %d, v%d', 64 * n, vLANE)
        if n == 12:
            a('v_min_u32 v60, 799, v60')
        a('v_lshlrev_b32 v61, 4, v60')
        a('global_load_dwordx4 %s, v61, s[78:79]', v(4 * n, 4))
        a('v_mul_u32_u24 v61, 820, v60')
        a('v_lshrrev_b32 v61, 16, v61')
        a('v_mul_u32_u24 v62, 80, v61')
        a('v_sub_u32 v60, v60, v62')
        a('v_add_u32 v61, s76, v61')
        a('v_mul_u32_u24 v62, 6554, v60')
        a('v_lshrrev_b32 v62, 16, v62')
        a('v_mul_u32_u24 v62, %d, v62', 6400 - 10)
        a('v_add_u32 v60, v60, v62')
        a('v_and_b32 v62, 0xfff3, v61')
        a('v_and_b32 v63, 4, v61')
        a('v_lshl_or_b32 v62, v63, 1, v62')
        a('v_bfe_u32 v63, v61, 3, 1')
        a('v_lshl_or_b32 v62, v63, 2, v62')
        a('v_mul_u32_u24 v62, 10, v62')
        a('v_add_lshl_u32 v%d, v60, v62, 4', 64 + n)
    for n in range(13):
        a('s_waitcnt vmcnt(12)')
        a('buffer_store_dwordx4 %s, v%d, s[%d:%d], s80 offen sc1', v(4 * n, 4), 64 + n, RWS, RWS + 3)
    if OPT['wopack'] > 1:
        a('v_min_u32 v60, 49, v%d', vLANE)
        a('v_lshl_add_u32 v60, v60, 7, s77')
        a('v_add_u32 v61, 6400, v60')
        for p in (sCRE, sCIM):
            a('global_load_dword v111, v60, s[%d:%d]', p, p + 1)
            a('global_load_dword v111, v61, s[%d:%d]', p, p + 1)

def a_qphase():
    a('s_cmp_ge_u32 s%d, 10', sCG)
    a('s_cbranch_scc1 L_qV')
    a('v_and_b32 v1, 31, v%d', vLANE)
    a('v_lshrrev_b32 v2, 5, v%d', vLANE)
    a('v_lshlrev_b32 v1, 4, v1')
    a('v_lshl_add_u32 v108, v2, 10, v1')
    a('s_lshl1_add_u32 s76, s%d, s%d', sCG, sCW)
    a('s_lshl_b32 s77, s76, 13')
    a('s_add_u32 s77, s77, s74')
    a('s_add_u32 s78, s77, 4096')
    a('s_mul_i32 s79, s%d, 3', sCW)
    a('s_add_u32 s79, s79, s%d', sCG)
    for _ in range(2):
        a('s_cmp_ge_u32 s79, 5')
        a('s_cselect_b32 s80, 5, 0')
        a('s_sub_u32 s79, s79, s80')
    for Tc in range(2):
        for u in range(2):
            m = 20 + 2 * (2 * Tc + u)
            a('s_cmp_eq_u32 s79, %d', (2 - 4 * Tc - 2 * u) % 5)
            a('s_cselect_b32 s%d, -1, 0', m)
            a('s_cmp_eq_u32 s79, %d', (1 - 4 * Tc - 2 * u) % 5)
            a('s_cselect_b32 s%d, -1, 0', m + 1)
    c0 = f2u(math.log2(math.e) / math.sqrt(20.0))
    a('s_mov_b32 s80, 0x%x', c0)
    ms = a_qloop(False)
    def group(Tc, u, scale):
        o = []
        P = 120 + 8 * (2 * Tc + u)
        for T in range(2):
            acc = (2 * Tc + T) * 16 + 8 * u
            if scale:
                o += ['v_mul_f32 v%d, s80, v%d' % (acc + e, acc + e) for e in range(8)]
            o += ['v_cvt_pk_bf16_f32 v%d, v%d, v%d' % (P + 4 * T + q, acc + 2 * q, acc + 2 * q + 1) for q in range(4)]
        m = 20 + 2 * (2 * Tc + u)
        o.append('s_mov_b64 exec, s[%d:%d]\nv_swap_b32 v%d, v%d\nv_swap_b32 v%d, v%d\ns_mov_b64 exec, -1' % (m, m + 1, P + 2, P + 4, P + 3, P + 5))
        for T in range(2):
            o.append('buffer_store_dwordx4 %s, v108, s[%d:%d], s%d offen offset:%d QSC' % (v(P + 4 * T, 4), RWS, RWS + 3,
                     77 + Tc, 2048 * u + 512 * T))
        return o
    a('s_cmp_ge_u32 s%d, 5', sCG)
    a('s_cbranch_scc1 L_noscale')
    tailweave(ms, group(0, 0, True) + group(0, 1, True))
    a('s_mov_b32 s81, s80')
    for i in range(32, 64, 2):
        a('v_pk_mul_f32 %s, %s, s[80:81]', v(i, 2), v(i, 2))
    a('s_branch L_qk2')
    a.label('L_noscale')
    tailweave(ms, group(0, 0, False) + group(0, 1, False))
    a.label('L_qk2')
    for o in group(1, 0, False) + group(1, 1, False):
        a(o)
    stamp('A', 'qloop')
    a('s_branch L_qdone')
    a('.PAD L_qV L_pgV')
    a.label('L_qV')
    a('s_cmp_eq_u32 s%d, 15', sCG)
    a('s_cbranch_scc0 L_qV2')
    a('s_lshl_b32 s76, s%d, 4', sRB)
    a('v_mov_b32 v16, s76')
    a('v_mov_b32 v17, 1')
    a('s_waitcnt vmcnt(0)')
    a('s_barrier')
    a('s_cmp_eq_u32 s%d, 0', sW)
    a('s_cbranch_scc0 L_nosig')
    a('s_mov_b64 exec, 1')
    a('global_store_dword v16, v17, s[%d:%d] sc1', sDBG, sDBG + 1)
    a('s_mov_b64 exec, -1')
    a.label('L_nosig')
    if OPT['tlb']:
        a('v_lshlrev_b32 v1, %d, v%d', OPT['tlb'], vLANE)
        a('s_lshl_b32 s76, s%d, %d', sW, OPT['tlb'] + 6)
        srd(R4, sOUT, 2048 * 1280 * 4)
        a('buffer_load_dword v111, v1, s[%d:%d], s76 offen sc1', RWS, RWS + 3)
        a('buffer_load_dword v111, v1, s[%d:%d], s76 offen sc1', R4, R4 + 3)
        a('v_min_u32 v1, 12, v%d', vLANE)
        a('v_lshlrev_b32 v1, 16, v1')
        a('v_mov_b32 v2, 0')
        for p in (14, sCRE, sCIM):
            a('global_load_dword v111, v1, s[%d:%d]', p, p + 1)
        a('global_load_dword v111, v2, s[%d:%d]', sDSK, sDSK + 1)
    if OPT['l2pre']:
        a('s_barrier')
        a('s_and_b32 s76, s%d, 1', sI)
        a('s_lshl1_add_u32 s76, s76, s%d', sCW)
        a('s_and_b32 s77, s%d, 1', sXCD)
        a('s_lshl2_add_u32 s76, s77, s76')
        a('s_mul_i32 s76, s76, %d', 80 * 1280)
        a('v_min_u32 v1, 39, v%d', vLANE)
        a('v_mul_u32_u24 v1, 1280, v1')
        a('v_add_u32 v2, %d, v1', 40 * 1280)
        for hf in range(2):
            a('s_and_b32 s77, s%d, 1', sI)
            a('s_lshl1_add_u32 s77, s77, s%d', sCW)
            a('s_lshl1_add_u32 s77, s77, %d', hf)
            a('s_mul_i32 s77, s77, 5')
            a('s_lshr_b32 s77, s77, 2')
            a('s_add_u32 s78, s%d, 1', sXCD)
            a('s_lshr_b32 s78, s78, 1')
            a('s_add_u32 s%d, s77, s78', 80 + hf)
        for d in (4, 9, 1, 6, 3, 8)[:OPT['l2pre']]:
            for hf in range(2):
                a('s_add_u32 s77, s%d, %d', 80 + hf, d)
                for _ in range(2):
                    a('s_cmp_ge_u32 s77, 10')
                    a('s_cselect_b32 s78, 10, 0')
                    a('s_sub_u32 s77, s77, s78')
                a('s_lshl_b32 s77, s77, 7')
                a('s_add_u32 s77, s77, s76')
                a('buffer_load_dword v111, v%d, s[%d:%d], s77 offen', 1 + hf, R6, R6 + 3)
    if OPT['xpre']:
        a('s_and_b32 s76, s%d, 1', sI)
        a('s_lshl1_add_u32 s76, s76, s%d', sTW)
        a('s_xor_b32 s77, s76, %d', OPT['flip'])
        a('s_mul_i32 s77, s77, 5')
        a('s_lshr_b32 s77, s77, 1')
        a('s_add_u32 s78, s%d, 9', sXCD)
        a('s_lshr_b32 s78, s78, 1')
        a('s_add_u32 s77, s77, s78')
        a('s_mul_i32 s78, s%d, 5', sCW)
        a('s_add_u32 s77, s77, s78')
        for _ in range(2):
            a('s_cmp_ge_u32 s77, 10')
            a('s_cselect_b32 s78, 10, 0')
            a('s_sub_u32 s77, s77, s78')
        a('s_lshl_b32 s77, s77, 7')
        a('s_and_b32 s78, s%d, -4', sRB)
        a('s_add_u32 s76, s76, s78')
        a('s_mul_i32 s76, s76, %d', 128 * 1280)
        a('s_add_u32 s77, s77, s76')
        a('v_mul_u32_u24 v3, 1280, v%d', vLANE)
        a('buffer_load_dword v111, v3, s[%d:%d], s77 offen', R5, R5 + 3)
        a('s_add_u32 s77, s77, %d', 64 * 1280)
        a('buffer_load_dword v111, v3, s[%d:%d], s77 offen', R5, R5 + 3)
    if OPT['wopack']:
        a_pack_wo()
    for _ in range(9 if OPT['l2pre'] else 10):
        a('s_barrier')
    if DIAG:
        nstamp['A'].pop()
    stamp('A', 'qloop')
    a('s_branch L_qdone')
    a.label('L_qV2')
    a('s_lshl1_add_u32 s76, s%d, s%d', sCG, sCW)
    a('v_and_b32 v1, 31, v%d', vLANE)
    tau(108, 1, 2)
    a('v_lshrrev_b32 v2, 5, v%d', vLANE)
    a('v_mul_u32_u24 v2, %d, v2', VROW)
    a('v_lshl_add_u32 v108, v108, 4, v2')
    a('s_sub_u32 s76, s76, 20')
    a('s_lshl_b32 s76, s76, 10')
    a('s_add_u32 s76, s76, s74')
    a('s_add_u32 s76, s76, %d', VOFF)
    for k in range(1, 4):
        a('s_add_u32 s%d, s76, %d', 76 + k, 2 * VROW * k)
    ms = a_qloop(True)
    work = []
    n = 0
    for T in range(2):
        for Tc in range(2):
            for m in range(2):
                P = 120 + 4 * n
                n += 1
                acc = (2 * T + Tc) * 16 + 8 * m
                work += ['v_cvt_pk_bf16_f32 v%d, v%d, v%d' % (P + q, acc + 2 * q, acc + 2 * q + 1) for q in range(4)]
                work.append('buffer_store_dwordx4 %s, v108, s[%d:%d], s%d offen offset:%d QSC' % (v(P, 4), RWS, RWS + 3, 76 + 2 * T + m, 512 * Tc))
    tailweave(ms, work)
    if DIAG:
        nstamp['A'].pop()
    stamp('A', 'qloop')
    if OPT['pgalign']:
        a('s_branch L_qdone')
    a('.PAD L_qdone L_pgO')
    a.label('L_qdone')
    if OPT['amark'] == 2:
        a_mark()

vO, vS = 0, 64
KV = [128, 156]
K1A, K1B, K2, VA0, VA1, VB0, VB1 = 0, 4, 8, 12, 16, 20, 24
vQ1, vQ2 = 184, 200
vK1, vK2, vV, vIDX, vNC, vM = 208, 209, 210, 214, 216, 220
vT = 224
vMG = 240
sQH, sKH, sODD, sP5, sOFF, sKV0, sPASS, sCNT = 76, 77, 78, 79, 80, 93, 82, 83
sKVB, sKVE = 70, 71

def a_att_setup():
    a('s_and_b32 s%d, s%d, 1', sQH, sW)
    a('s_lshr_b32 s%d, s%d, 1', sKH, sW)
    a('s_and_b32 s%d, s%d, 1', sODD, sHD)
    a('s_lshr_b32 s85, s%d, 1', sHD)
    a('s_mul_i32 s%d, s85, 5', sP5)
    a('s_mul_i32 s%d, s%d, %d', sKVB, sKH, 16 * BLK)
    a('s_add_u32 s%d, s%d, %d', sKVE, sKVB, 16 * BLK)
    a('s_and_b32 s86, s%d, %d', sQB, OPT['rotm'])
    a('s_mul_i32 s86, s86, %d', 2 * BLK * OPT['rot'])
    a('s_add_u32 s%d, s%d, s86', sKV0, sKVB)
    srd(R3, sWS, 's%d' % sKVE)
    srd(R4, sOUT, 2048 * 1280 * 4)
    a('s_mov_b32 s%d, 0', sPASS)
    i, h, t, x = vT, vT + 1, vT + 2, vT + 3
    a('v_and_b32 v%d, 31, v%d', i, vLANE)
    a('v_lshrrev_b32 v%d, 5, v%d', h, vLANE)
    tau(t, i, x)
    a('s_mul_i32 s86, s%d, 3', sODD)
    a('s_add_u32 s86, s86, s%d', sP5)
    a('s_lshl_b32 s87, s86, 10')
    a('v_lshl_add_u32 v%d, v%d, 10, s87', x, h)
    a('v_lshl_add_u32 v%d, v%d, 4, v%d', vT + 4, i, x)
    a('v_lshl_add_u32 v%d, v%d, 4, v%d', vK1, t, x)
    a('v_add_u32 v%d, %d, v%d', vK1, 80 * 1024, vK1)
    a('s_add_u32 s87, s%d, 2', sP5)
    a('s_lshl1_add_u32 s87, s87, s%d', sODD)
    a('s_lshl_b32 s87, s87, 9')
    a('v_lshl_add_u32 v%d, v%d, 4, s87', vT + 5, i)
    a('v_mov_b32 v%d, 0x%x', x, OOB)
    a('v_cndmask_b32 v%d, v%d, v%d, s[%d:%d]', vT + 5, vT + 5, x, sHI, sHI + 1)
    a('s_add_u32 s87, s87, %d', 80 * 1024)
    a('v_lshl_add_u32 v%d, v%d, 4, s87', vK2, t)
    a('v_mov_b32 v%d, %d', x, 160 * 1024)
    a('v_cndmask_b32 v%d, v%d, v%d, s[%d:%d]', vK2, vK2, x, sHI, sHI + 1)
    a('s_mul_i32 s86, s%d, 20', sHD)
    a('s_lshl2_add_u32 s87, s%d, s86', sODD)
    a('s_lshl_b32 s88, s%d, 4', sODD)
    a('s_sub_u32 s88, s86, s88')
    a('v_add_u32 v%d, s87, v%d', vV, t)
    a('v_add_u32 v%d, s88, v%d', x, i)
    a('v_cmp_le_u32 vcc, 16, v%d', i)
    a('v_mov_b32 v%d, %d', vT + 6, VOFF + 640 * 16)
    a('s_nop 0')
    a('v_cndmask_b32 v%d, v%d, v%d, vcc', vV, vV, x)
    a('v_cmp_le_u32 vcc, 20, v%d', i)
    a('v_mul_u32_u24 v%d, %d, v%d', x, VROW, h)
    a('v_add_u32 v%d, %d, v%d', x, VOFF, x)
    a('v_lshl_add_u32 v%d, v%d, 4, v%d', vV, vV, x)
    a('v_cndmask_b32 v%d, v%d, v%d, vcc', vV, vV, vT + 6)
    a('v_cmp_le_u32 vcc, %d, v%d', 21 if OPT['vzero'] else 24, i)
    a('v_mov_b32 v%d, 0x%x', x, OOB)
    a('v_mov_b32 v%d, 0xdddd', vIDX)
    a('v_cndmask_b32 v%d, v%d, v%d, vcc', vV, vV, x)
    for k in range(1, 4):
        a('v_add_u32 v%d, %d, v%d', vV + k, 2 * VROW * k, vV)
    a('s_mul_i32 s87, s85, 40')
    a('s_lshl4_add_u32 s87, s%d, s87', sODD)
    a('s_add_u32 s88, s87, 23')
    a('s_lshr_b32 s87, s87, 7')
    a('s_lshr_b32 s88, s88, 7')
    a('s_add_u32 s89, s86, 19')
    a('s_lshr_b32 s86, s86, 7')
    a('s_lshr_b32 s89, s89, 7')
    a('v_lshrrev_b32 v%d, 4, v%d', x, vLANE)
    a('s_add_u32 s90, s87, 5')
    a('v_mov_b32 v%d, s90', vF1A)
    for sel, (reg, add) in enumerate(((88, 5), (86, 10), (89, 10))):
        a('s_add_u32 s90, s%d, %d', reg, add)
        a('v_cmp_eq_u32 vcc, %d, v%d', sel + 1, x)
        a('v_mov_b32 v%d, s90', vT + 6)
        a('s_nop 0')
        a('v_cndmask_b32 v%d, v%d, v%d, vcc', vF1A, vF1A, vT + 6)
    a('v_and_b32 v%d, 15, v%d', vT + 6, vLANE)
    a('v_lshl_add_u32 v%d, v%d, 4, v%d', vF1A, vF1A, vT + 6)
    a('v_lshlrev_b32 v%d, 7, v%d', vF1A, vF1A)
    a('v_mov_b32 v%d, s87', vF1A - 1)
    a('v_mov_b32 v%d, s88', vT + 6)
    a('v_cndmask_b32 v%d, v%d, v%d, s[%d:%d]', vF1A - 1, vF1A - 1, vT + 6, sHI, sHI + 1)
    a('v_bfe_u32 v%d, v%d, 4, 1', vT + 6, vLANE)
    a('v_lshl_add_u32 v%d, v%d, 4, v%d', vF1A - 1, vF1A - 1, vT + 6)
    a('s_lshl_b32 s90, s%d, 1', sQB)
    a('v_add_lshl_u32 v%d, v%d, s90, 7', vF1A - 1, vF1A - 1)
    a('v_and_b32 v%d, 3, v%d', vAPW, vLANE)
    a('v_lshlrev_b32 v%d, 8, v%d', vAPW, vAPW)
    a('v_lshlrev_b32 v%d, 2, v%d', vAPW + 1, vLANE)
    a('v_add_u32 v%d, %d, v%d', vAPW + 1, L_PW, vAPW + 1)
    a('v_add_u32 v%d, v%d, v%d', vAPW, vAPW, vAPW + 1)
    a('s_lshl1_add_u32 s90, s%d, s%d', sQB, sQH)
    a('s_lshl1_add_u32 s90, s90, s%d', sKH)
    a('s_mul_i32 s92, s90, %d', BLK)
    a('s_xor_b32 s91, s90, 1')
    a('s_mul_i32 s91, s91, %d', BLK)
    a('s_mov_b32 s10, 0x%x', f2u(2.0 ** -4))
    a('s_mov_b32 s11, 0x%x', f2u(2.0 ** 96))
    a('s_mul_i32 s36, s%d, %d', sW, REGSZ)
    a('s_add_u32 s36, s36, %d', L_REG + 8192)
    a('s_xor_b32 s37, s%d, 2', sW)
    a('s_mul_i32 s37, s37, %d', REGSZ)
    a('s_add_u32 s37, s37, %d', L_REG + 8192)
    a('v_lshl_add_u32 v%d, v%d, 4, s36', vMG, vLANE)
    a('v_lshl_add_u32 v%d, v%d, 3, s36', vMG + 1, vLANE)
    a('v_lshl_add_u32 v%d, v%d, 4, s37', vMG + 2, vLANE)
    a('v_lshl_add_u32 v%d, v%d, 3, s37', vMG + 3, vLANE)
    a('v_xor_b32 v%d, 512, v%d', vMG + 4, vPW)
    a('v_add_u32 v%d, 1024, v%d', vMG + 5, vAPW)
    if not OPT['amark']:
        a('v_bfe_u32 v%d, v%d, 4, 1', x, vLANE)
        a('v_mul_u32_u24 v%d, %d, v%d', x, OBLK, x)
        a('v_and_b32 v%d, 15, v%d', t, vLANE)
        a('v_lshl_add_u32 v%d, v%d, 4, v%d', x, t, x)
        a('v_mul_u32_u24 v%d, %d, v%d', t, 2 * OBLK, h)
        a('v_add_u32 v%d, v%d, v%d', vMG + 7, t, x)
        a('v_lshl_add_u32 v%d, v%d, 8, v%d', vMG + 6, h, x)
        a('s_mul_i32 s40, s90, %d', 4 * OBLK)
        a('s_add_u32 s40, s40, 0x%x', WS_O)
        a('s_lshl_b32 s41, s%d, 8', sP5)
        a('s_add_u32 s40, s40, s41')
        a('s_mul_i32 s41, s%d, 768', sODD)
        a('s_add_u32 s41, s41, s40')
        a('s_add_u32 s42, s41, %d', 2 * OBLK)
        a('s_lshl3_add_u32 s40, s%d, s40', sODD)
    a('s_lshl_b32 s43, s90, 5')
    a('s_add_u32 s43, s43, s%d', sHD)
    flagaddr(43, 43, F4, 0)

def a_mark():
    i, h, t, x = vT, vT + 1, vT + 2, vT + 3
    a('s_lshl1_add_u32 s90, s%d, s%d', sQB, sCW)
    a('s_lshl1_add_u32 s90, s90, s%d', sTW)
    a('s_and_b32 s%d, s%d, 1', sODD, sHD)
    a('s_lshr_b32 s85, s%d, 1', sHD)
    a('s_mul_i32 s%d, s85, 5', sP5)
    a('v_lshrrev_b32 v%d, 5, v%d', h, vLANE)
    a('v_bfe_u32 v%d, v%d, 4, 1', x, vLANE)
    a('v_mul_u32_u24 v%d, %d, v%d', x, OBLK, x)
    a('v_and_b32 v%d, 15, v%d', t, vLANE)
    a('v_lshl_add_u32 v%d, v%d, 4, v%d', x, t, x)
    a('v_mul_u32_u24 v%d, %d, v%d', t, 2 * OBLK, h)
    a('v_add_u32 v%d, v%d, v%d', vMG + 7, t, x)
    a('v_lshl_add_u32 v%d, v%d, 8, v%d', vMG + 6, h, x)
    a('s_mul_i32 s40, s90, %d', 4 * OBLK)
    a('s_add_u32 s40, s40, 0x%x', WS_O)
    a('s_lshl_b32 s41, s%d, 8', sP5)
    a('s_add_u32 s40, s40, s41')
    a('s_mul_i32 s41, s%d, 768', sODD)
    a('s_add_u32 s41, s41, s40')
    a('s_add_u32 s42, s41, %d', 2 * OBLK)
    a('s_lshl3_add_u32 s40, s%d, s40', sODD)
    for k in range(4):
        a('v_mov_b32 v%d, -1', 24 + k)
    a('buffer_store_dwordx4 v[24:27], v%d, s[%d:%d], s41 offen sc1', vMG + 6, RWS, RWS + 3)
    a('buffer_store_dwordx4 v[24:27], v%d, s[%d:%d], s42 offen sc1', vMG + 6, RWS, RWS + 3)
    a('buffer_store_dwordx2 v[24:25], v%d, s[%d:%d], s40 offen offset:512 sc1', vMG + 7, RWS, RWS + 3)

def a_b1_setup():
    a('s_mov_b64 s[14:15], s[%d:%d]', sWO, sWO + 1)
    b1_sources(R5, R6, 112, 116, 7, 5, 12, 3 if OPT['nodup'] else 2)
    a('s_lshl2_add_u32 s4, s%d, s%d', sRB, sW)
    a('s_mul_i32 s4, s4, %d', 32 * 1280)
    a('s_lshl_b32 s6, s%d, 12', sW)
    stagger(8, 9, OPT['st10'], OPT['flip'], OPT['stagb'])

def a_handoff():
    first = 10 + OPT['st10']
    nst = 8
    chunks = []
    if OPT['alate'] == 2:
        n0 = len(a.lines)
        a_att_setup()
        late = a.lines[n0:]
        del a.lines[n0:]
        if OPT['aearly']:
            late = late[:5] + late[OPT['aearly']:]
        nch = (OPT['eb'] - OPT['adep'] + 1 if OPT['eb'] else OPT['pollat']) - first
        k = 0
        for c in range(nch):
            e = len(late) * (c + 1) // nch
            while e < len(late) and any('cndmask' in x and 'vcc' in x for x in late[e:e + 4]):
                e += 1
            chunks.append(late[k:e])
            k = e
        chunks[-1].append('s_mov_b32 s85, 0x%x' % F1)
        nb = first - 10
        seq = OPT['seq'] or {1: 'bss', 2: 'bsbs', 3: 'bbsbs'}[nb]
        assert seq.count('b') == nb and seq.count('s') == 2
        kk = 0
        for ch in seq:
            if ch == 'b':
                a('s_barrier')
            else:
                if kk == 0 and OPT['fine'] == 1:
                    stamp('A', 'c11')
                a_b1stage(first + kk)
                if OPT['fine'] == 1:
                    stamp('A', 'iss%d' % (12 + kk))
                kk += 1
        for i_ in range(64):
            a('v_mov_b32 v%d, 0', vO + i_)
    else:
        for t in range(10, first):
            a('s_barrier')
            if t == 10:
                if OPT['alate']:
                    a_b1_setup()
                else:
                    for i_ in range(64):
                        a('v_mov_b32 v%d, 0', vO + i_)
        if OPT['fine'] == 1:
            stamp('A', 'c11')
        a_b1stage(first)
        if OPT['fine'] == 1:
            stamp('A', 'iss12')
        if OPT['alate']:
            a_att_setup()
            for i_ in range(64):
                a('v_mov_b32 v%d, 0', vO + i_)
        a_b1stage(first + 1)
        if OPT['fine'] == 1:
            stamp('A', 'iss13')
    lds_ = ['buffer_load_dword v%d, v%d, s[%d:%d], s85 offen sc1' % (104 + k, vF1A - k, RWS, RWS + 3) for k in range(2)]
    a('s_mov_b32 s85, 0x%x', F1)
    NI = 7 - OPT['nodup']
    last = first + 1
    EB = OPT['eb']
    def look(tag):
        a('s_cmp_eq_u32 s%d, 0', sW)
        a('s_cbranch_scc0 L_nopoll%s', tag)
        for l in lds_:
            a(l)
        a.label('L_nopoll%s' % tag)
    def publish(tag):
        a('s_cmp_eq_u32 s%d, 0', sW)
        a('s_cbranch_scc0 L_c%s', tag)
        a('v_and_b32 v104, v104, v105')
        a('v_cmp_eq_u32 vcc, 0, v104')
        a('s_cbranch_vccnz L_c%s', tag)
        setpw(4, 102)
        a('s_waitcnt lgkmcnt(0)')
        a.label('L_c%s' % tag)
    for t in range(first, 20):
        a('s_waitcnt vmcnt(%d)', NI * (last - t))
        if t == first:
            stamp('A', 'qdrain')
        if t == 19:
            publish('19')
        if EB and t == EB:
            publish('e')
        a('s_barrier')
        if EB and t == EB:
            assert last == 19 and not chunks
            a('ds_read_b32 v102, v%d', vAPW + 1)
            a('s_waitcnt lgkmcnt(0)')
            a('v_cmp_gt_u32 vcc, 4, v102')
            a('s_cbranch_vccnz L_notyet')
            batch1()
            for t2 in range(t + 1, 20):
                a('s_waitcnt vmcnt(%d)', NI * (19 - t2) + 8)
                a('s_barrier')
            stamp('A', 'b1load')
            stamp('A', 'f1')
            if DIAG:
                del nstamp['A'][-2:]
            a('s_branch L_att2')
            a.label('L_notyet')
        if EB and t == EB - OPT['adep'] + 1:
            look('e')
        while last < min(19, t + OPT['adep']):
            last += 1
            a_b1stage(last)
        if chunks:
            a.lines.extend(chunks.pop(0))
        if t == OPT['pollat']:
            look('')
    stamp('A', 'b1load')
    a('s_cmp_eq_u32 s%d, 0', sW)
    a('s_cbranch_scc0 L_f1wait')
    a('s_cbranch_vccz L_f1go')
    a('s_mov_b64 exec, vcc')
    pollflags(lds_, 104, sleep=OPT['psleep'])
    setpw(4, 102)
    a.label('L_f1wait')
    waitpw(vAPW + 1, 4, 102, sleep=OPT['gsleep'])
    a.label('L_f1go')
    stamp('A', 'f1')

def kvload0(st, what, soff):
    if what in (K1A, K1B):
        r = KV[st] + what
        return 'buffer_load_dwordx4 %s, v%d, s[%d:%d], s%d offen offset:%d sc1' % (v(r, 4), vK1, R3, R3 + 3, soff, 512 if what == K1B else 0)
    if what in ('2A', '2B'):
        tl = what == '2B'
        return 'buffer_load_dwordx2 %s, v%d, s[%d:%d], s%d offen offset:%d sc1' % (v(KV[st] + K2 + 2 * tl, 2), vK2, R3, R3 + 3, soff, 8 * tl)
    r = KV[st] + what
    if what == K2:
        return 'buffer_load_dwordx4 %s, v%d, s[%d:%d], s%d offen sc1' % (v(r, 4), vK2, R3, R3 + 3, soff)
    return 'buffer_load_dwordx4 %s, v%d, s[%d:%d], s%d offen sc1' % (v(r, 4), vV + (what - VA0) // 4, R3, R3 + 3, soff)

def kvload(st, what, soff):
    return kvload0(st, what, soff).replace(' sc1', [' sc1', '', ' sc1 nt'][OPT['kvplain']])

def qk1(st, tile, qt, sb, first=True):
    return 'v_mfma_f32_32x32x16_bf16 %s, %s, %s, %s' % (v(vS + 16 * sb, 16), v(KV[st] + (K1B if tile else K1A), 4), v(vQ1 + 4 * qt, 4),
                                                       '0' if first else v(vS + 16 * sb, 16))

def qk2(st, tile, qt, sb, first=False):
    return 'v_mfma_f32_32x32x8bf16_1k %s, %s, %s, %s' % (v(vS + 16 * sb, 16), v(KV[st] + K2 + 2 * tile, 2), v(vQ2 + 2 * qt, 2),
                                                        '0' if first else v(vS + 16 * sb, 16))

def pv(st, tile, qt, m):
    return 'v_smfmac_f32_32x32x32_bf16 %s, %s, %s, v%d' % (v(vO + 16 * qt, 16), v(KV[st] + VA0 + 8 * tile + 4 * m, 4), v(vS + 16 * qt + 8 * m, 8), vIDX)

def maxtree(dst, src, acc):
    if acc:
        a('v_max3_f32 v%d, v%d, v%d, v%d', dst, dst, src, src + 1)
    else:
        a('v_max_f32 v%d, v%d, v%d', dst, src, src + 1)
    for k in range(2, 16, 2):
        a('v_max3_f32 v%d, v%d, v%d, v%d', dst, dst, src + k, src + k + 1)

def qloads():
    for lp in range(2):
        for T in range(2):
            a('buffer_load_dwordx4 %s, v%d, s[%d:%d], s%d offen offset:%d sc1', v(vQ1 + 8 * lp + 4 * T, 4), vT + 4, RWS, RWS + 3, 91 + lp, 512 * T)
    for lp in range(2):
        a('buffer_load_dwordx4 %s, v%d, s[%d:%d], s%d offen sc1', v(vQ2 + 4 * lp, 4), vT + 5, RWS, RWS + 3, 91 + lp)

def batch1():
    qloads()
    for w_ in (K1A, K2):
        a(kvload0(0, w_, sKV0))

def a_attention():
    qloads()
    a.label('L_attload')
    for w_ in (K1A, K2):
        a(kvload0(0, w_, sKV0))
    a.label('L_att2')
    a('s_mov_b32 s%d, 0x40000000', sCNT)
    a('s_add_u32 s%d, s%d, %d', sOFF, sKV0, BLK)
    for i in range(4):
        a('v_mov_b32 v%d, 0', KV[1] + VB1 + i)
    if OPT['kvsplit']:
        a('s_waitcnt vmcnt(%d)', OPT['kvsplit'] - 1)
    for w_ in (VA0, VA1, K1B, VB0, VB1):
        a(kvload0(0, w_, sKV0))
    if not OPT['s1late']:
        for w_ in (K1A, VA0, VA1, K1B, K2, VB0):
            a(kvload0(1, w_, sOFF))
    a('s_waitcnt vmcnt(%d)', 5 if OPT['s1late'] else 11)
    stamp('A', 'qkload')
    a('s_cmp_eq_u32 s%d, 0', sPASS)
    a('s_cbranch_scc0 L_setc')
    if OPT['fastpro']:
        a.c('stand-in for the row maximum: the largest score among seven keys of the first tile (checked after the loop)')
        def ch(t):
            S, m, h = vS + 16 * t, vM + t, vT + 8 + t
            return ['v_max3_f32 v%d, v%d, v%d, v%d' % (m, S, S + 1, S + 2),
                    'v_max3_f32 v%d, v%d, v%d, v%d' % (m, m, S + 5, S + 8),
                    'v_max3_f32 v%d, v%d, v%d, v%d' % (m, m, S + 11, S + 14),
                    'v_cvt_pk_bf16_f32 v%d, -v%d, -v%d' % (h, m, m),
                    'v_and_b32 v%d, 0xffff0000, v%d' % (h, h),
                    'v_sub_f32 v%d, -v%d, v%d' % (m, m, h),
                    'v_cvt_pk_bf16_f32 v%d, v%d, v%d' % (m, h, m),
                    'v_cndmask_b32 v%d, v%d, v%d, s[%d:%d]' % (vQ2 + 2 * t, vQ2 + 2 * t, m, sHI, sHI + 1)]
        def nc(t):
            m, h = vM + t, vT + 8 + t
            return ['v_and_b32 v%d, 0xffff0000, v%d' % (m, m),
                    'v_add_f32 v%d, v%d, v%d' % (vNC + t, m, h),
                    'v_add_f32 v%d, v%d, v%d' % (m, m, h)]
        sw = lambda t: 'v_permlane32_swap_b32 v%d, v%d' % (vM + t, vNC + t)
        seq = [qk1(0, 0, 0, 0), qk2(0, 0, 0, 0), qk1(0, 0, 1, 1), qk2(0, 0, 1, 1), qk1(0, 0, 2, 2), 's_nop 6', qk2(0, 0, 2, 2), 's_nop 0']
        seq += ch(0)[:5] + [qk1(0, 0, 3, 3)] + ch(0)[5:] + ch(1)[:3] + [qk2(0, 0, 3, 3)] + ch(1)[3:] + nc(0)[:1]
        seq += [qk1(0, 0, 0, 0)] + ch(2)[:6] + [qk2(0, 0, 0, 0)] + ch(3)[:3]
        seq += ['v_mov_b32 v%d, 0' % (vS + 48 + 8 + i) for i in range(8)]
        seq += ch(2)[6:] + ch(3)[3:] + nc(0)[1:] + nc(1) + nc(2) + [sw(0)] + nc(3) + [sw(1), sw(2), sw(3)]
        for o in seq:
            a(o)
        a.label('L_loopentry')
    else:
        a.c('stand-in for the row maximum: the maximum over the first key tile (checked after the loop)')
        def tree(qt):
            src = vS + 16 * qt
            return ['v_max_f32 v%d, v%d, v%d' % (vM + qt, src, src + 1)] + \
                   ['v_max3_f32 v%d, v%d, v%d, v%d' % (vM + qt, vM + qt, src + k, src + k + 1) for k in range(2, 16, 2)]
        for qt in range(3):
            a(qk1(0, 0, qt, qt))
            a(qk2(0, 0, qt, qt))
        a(qk1(0, 0, 3, 3))
        a('s_nop 6')
        for o in tree(0)[:4]:
            a(o)
        a(qk2(0, 0, 3, 3))
        for o in tree(0)[4:] + tree(1) + tree(2) + tree(3):
            a(o)
        a.label('L_setc')
        for qt in range(4):
            a('v_mov_b32 v%d, v%d', vT + 8 + qt, vM + qt)
        for qt in range(4):
            a('v_permlane32_swap_b32 v%d, v%d', vM + qt, vT + 8 + qt)
        for qt in range(4):
            a('v_min_f32 v%d, -v%d, -v%d', vM + qt, vM + qt, vT + 8 + qt)
        for qt in range(4):
            a('v_cvt_pk_bf16_f32 v%d, v%d, v%d', vT + 8 + qt, vM + qt, vM + qt)
        for qt in range(4):
            a('v_and_b32 v%d, 0xffff0000, v%d', vT + 8 + qt, vT + 8 + qt)
        for qt in range(4):
            a('v_sub_f32 v%d, v%d, v%d', vM + qt, vM + qt, vT + 8 + qt)
        for qt in range(4):
            a('v_cvt_pk_bf16_f32 v%d, v%d, v%d', vM + qt, vT + 8 + qt, vM + qt)
        for qt in range(4):
            a('v_cndmask_b32 v%d, v%d, v%d, s[%d:%d]', vQ2 + 2 * qt, vQ2 + 2 * qt, vM + qt, sHI, sHI + 1)
        a(qk1(0, 0, 0, 0))
        a(qk2(0, 0, 0, 0))
        for qt in range(4):
            a('v_and_b32 v%d, 0xffff0000, v%d', vM + qt, vM + qt)
        for qt in range(4):
            a('v_add_f32 v%d, v%d, v%d', vNC + qt, vM + qt, vT + 8 + qt)
        for i in range(8):
            a('v_mov_b32 v%d, 0', vS + 48 + 8 + i)
    if OPT['s1late'] == 2:
        a('s_waitcnt vmcnt(2)')
    if OPT['s1late']:
        for w_ in (K1A, VA0, VA1, K1B, K2, VB0):
            a(kvload0(1, w_, sOFF))
    if OPT['s1late'] != 2:
        a('s_waitcnt vmcnt(8)')
    if OPT['tearly'] or OPT['gtouch'] == 1 or OPT['woe'] or OPT['smark'] == 1:
        setpw(5, vT + 8)
    stamp('A', 'attpro')
    if OPT['fine'] == 3:
        base = len(nstamp['A'])
        nstamp['A'] += ['it%d' % i for i in range(16)]
        a('s_mov_b32 s24, %d', base)
    a('.p2align %d', OPT['lalign'])
    for _ in range(OPT['lpad']):
        a('s_nop 0')
    a.label('L_attloop')
    UN = OPT['unroll']
    LEAN = OPT['rot'] == 0 and OPT['lean']
    for dt in range(UN):
        st = dt & 1
        for n in range(8):
            tile, qt = n >> 2, n & 3
            nst, ntile, nqt = (st, (n + 1) >> 2, (n + 1) & 3) if n < 7 else (st ^ 1, 0, 0)
            pst, ptile, pqt = (st, (n - 1) >> 2, (n - 1) & 3) if n > 0 else (st ^ 1, 1, 3)
            def ex(k):
                for e in range(4 * k, 4 * k + 4):
                    a('v_exp_f32 v%d, v%d', vS + 16 * qt + e, vS + 16 * qt + e)
            if n == 7:
                a('s_waitcnt vmcnt(7)')
            X8 = OPT['x8first']
            a(qk2(nst, ntile, nqt, nqt, True) if X8 else qk1(nst, ntile, nqt, nqt))
            if n == 1:
                a('s_add_u32 s%d, s%d, %d', sOFF, sOFF, BLK)
            if n == 2 and not X8:
                a(kvload(st, K1A, sOFF))
            if n == 6:
                a(kvload(st, K2 if X8 else K1B, sOFF))
            if n == 5 and OPT['fine'] == 3:
                a('s_memtime s[98:99]')
                a('s_memrealtime s[100:101]')
            if n == 6 and OPT['fine'] == 3:
                a('s_waitcnt lgkmcnt(0)')
                a('s_mov_b32 m0, s24')
                a('s_add_u32 s25, s24, 32')
                a('v_writelane_b32 v%d, s98, m0', vTS)
                a('s_mov_b32 m0, s25')
                a('s_add_u32 s24, s24, 1')
                a('v_writelane_b32 v%d, s100, m0', vTS)
            ex(0)
            a(qk1(nst, ntile, nqt, nqt, False) if X8 else qk2(nst, ntile, nqt, nqt))
            if n == 2 and X8:
                a(kvload(st, K1A, sOFF))
            if n == 6:
                a(kvload(st, K1B if X8 else K2, sOFF))
            if n == 1 and st == 0 and not LEAN:
                a('s_cmp_eq_u32 s%d, s%d', sOFF, sKVE)
                a('s_cselect_b32 s%d, s%d, s%d', sOFF, sKVB, sOFF)
            ex(1)
            a(pv(pst, ptile, pqt, 1))
            if n == 0:
                a(kvload(st ^ 1, VB1, sOFF))
            if n == 4:
                a(kvload(st, VA1, sOFF))
            if n == 1 and dt == UN - 2 and not LEAN:
                a('s_cmp_eq_u32 s%d, s%d', sOFF, sKV0)
                a('s_cselect_b32 s%d, s%d, s%d', sOFF, sCNT, sOFF)
            if dt == UN - 1 and n == 7:
                a('s_cmp_lt_u32 s%d, s%d', sOFF, sKVE if LEAN else sCNT)
            ex(2)
            if n == 4:
                a('s_waitcnt vmcnt(10)')
            a(pv(st, tile, qt, 0))
            if n == 3:
                a(kvload(st, VA0, sOFF))
            if n == 7:
                a(kvload(st, VB0, sOFF))
            ex(3)
    a('s_cbranch_scc1 L_attloop')
    a('s_nop 0')
    a(pv(1, 1, 3, 1))
    stamp('A', 'attloop')
    if OPT['tprio']:
        a('s_setprio 2')
    a('ds_write_b64 v%d, %s offset:6144', vMG + 1, v(vNC, 2))
    for t in range(2):
        for q in range(3):
            a('ds_write_b128 v%d, %s offset:%d', vMG, v(vO + 16 * t + 4 * q, 4), 1024 * (3 * t + q))
    a('v_mov_b32 v%d, 6', vT + 10)
    a('v_mov_b32 v%d, 7', vT + 11)
    a('v_min3_f32 v%d, v%d, v%d, v%d', vT + 8, vO + 8, vO + 24, vO + 40)
    a('v_add_f32 v%d, v%d, v%d', vT + 9, vO + 8, vO + 24)
    a('v_add_f32 v%d, v%d, v%d', vT + 9, vT + 9, vO + 40)
    a('v_min_f32 v%d, v%d, v%d', vT + 8, vT + 8, vO + 56)
    a('v_add_f32 v%d, v%d, v%d', vT + 9, vT + 9, vO + 56)
    a('v_cmp_nle_f32 s[38:39], s10, v%d', vT + 8)
    a('v_cmp_nge_f32 vcc, s11, v%d', vT + 9)
    a('s_or_b32 s39, s39, vcc_hi')
    if OPT['force_fb']:
        a('s_cmp_eq_u32 s39, s39')
    a('s_cbranch_scc1 L_fallback')
    n0 = len(a.lines)
    a.label('L_fallback')
    a('s_cmp_eq_u32 s%d, 0', sPASS)
    a('s_cbranch_scc0 L_attok')
    a.c('fallback: exact row maximum over this wave\'s keys, then redo the pass')
    a('s_mov_b32 s%d, 1', sPASS)
    a('s_waitcnt vmcnt(0) lgkmcnt(0)')
    a('v_mov_b32 v%d, 0', vT + 8)
    for qt in range(4):
        a('v_cndmask_b32 v%d, v%d, v%d, s[%d:%d]', vQ2 + 2 * qt, vQ2 + 2 * qt, vT + 8, sHI, sHI + 1)
        a('v_mov_b32 v%d, 0xff800000', vM + qt)
    a('s_mov_b32 s%d, s%d', sOFF, sKVB)
    a('s_mov_b32 s%d, 16', sCNT)
    a.label('L_maxloop')
    for w_ in (K1A, K1B, K2):
        a(kvload(0, w_, sOFF))
    a('s_waitcnt vmcnt(0)')
    for tile in range(2):
        for qt in range(4):
            a(qk1(0, tile, qt, qt))
            a(qk2(0, tile, qt, qt))
        a('s_nop 5')
        for qt in range(4):
            maxtree(vM + qt, vS + 16 * qt, True)
    a('s_add_u32 s%d, s%d, %d', sOFF, sOFF, BLK)
    a('s_sub_u32 s%d, s%d, 1', sCNT, sCNT)
    a('s_cmp_lg_u32 s%d, 0', sCNT)
    a('s_cbranch_scc1 L_maxloop')
    for i in range(64):
        a('v_mov_b32 v%d, 0', vO + i)
    a('s_branch L_attload')
    if OPT['fastpro']:
        a.label('L_setc')
        for qt in range(4):
            a('v_mov_b32 v%d, v%d', vT + 8 + qt, vM + qt)
        for qt in range(4):
            a('v_permlane32_swap_b32 v%d, v%d', vM + qt, vT + 8 + qt)
        for qt in range(4):
            a('v_min_f32 v%d, -v%d, -v%d', vM + qt, vM + qt, vT + 8 + qt)
        for qt in range(4):
            a('v_cvt_pk_bf16_f32 v%d, v%d, v%d', vT + 8 + qt, vM + qt, vM + qt)
        for qt in range(4):
            a('v_and_b32 v%d, 0xffff0000, v%d', vT + 8 + qt, vT + 8 + qt)
        for qt in range(4):
            a('v_sub_f32 v%d, v%d, v%d', vM + qt, vM + qt, vT + 8 + qt)
        for qt in range(4):
            a('v_cvt_pk_bf16_f32 v%d, v%d, v%d', vM + qt, vT + 8 + qt, vM + qt)
        for qt in range(4):
            a('v_cndmask_b32 v%d, v%d, v%d, s[%d:%d]', vQ2 + 2 * qt, vQ2 + 2 * qt, vM + qt, sHI, sHI + 1)
        a(qk1(0, 0, 0, 0))
        a(qk2(0, 0, 0, 0))
        for qt in range(4):
            a('v_and_b32 v%d, 0xffff0000, v%d', vM + qt, vM + qt)
        for qt in range(4):
            a('v_add_f32 v%d, v%d, v%d', vNC + qt, vM + qt, vT + 8 + qt)
        for i in range(8):
            a('v_mov_b32 v%d, 0', vS + 48 + 8 + i)
        a('s_branch L_loopentry')
    COLD.extend(a.lines[n0:])
    del a.lines[n0:]
    a.label('L_attok')
    a('ds_write_b32 v%d, v%d', vPW, vT + 10)
    R = vS
    NC2 = vS + 32
    rd = ['ds_read_b64 %s, v%d offset:6144' % (v(NC2, 2), vMG + 3)]
    for t in range(2):
        rd.append('ds_read_b128 %s, v%d offset:%d' % (v(R + 16 * t + 8, 4), vMG + 2, 1024 * (3 * t + 2)))
    for t in range(2):
        for q in range(2):
            rd.append('ds_read_b128 %s, v%d offset:%d' % (v(R + 16 * t + 4 * q, 4), vMG + 2, 1024 * (3 * t + q)))
    if OPT['otag'] and not OPT['amark']:
        a('ds_read_b32 v%d, v%d', vT + 12, vMG + 5)
    waitpw(vMG + 4, 6, vT + 8, extra=rd)
    a('ds_write_b32 v%d, v%d', vPW, vT + 11)
    if OPT['otag'] and not OPT['amark']:
        a('v_cmp_gt_u32 vcc, 14, v%d', vT + 12)
        a('s_cbranch_vccnz L_swait')
        n0 = len(a.lines)
        a.label('L_swait')
        waitpw(vMG + 5, 14, vT + 12)
        a('s_branch L_sready')
        COLD.extend(a.lines[n0:])
        del a.lines[n0:]
        a.label('L_sready')
    f1, f2, l1, l2 = vS + 34, vS + 36, vS + 38, vS + 40
    a('s_waitcnt lgkmcnt(7)')
    for t in range(2):
        a('v_min_f32 v%d, v%d, v%d', l1 + t, vNC + 2 + t, NC2 + t)
    for t in range(2):
        a('v_sub_f32 v%d, v%d, v%d', f1 + t, l1 + t, vNC + 2 + t)
        a('v_sub_f32 v%d, v%d, v%d', f2 + t, l1 + t, NC2 + t)
    for t in range(2):
        a('v_exp_f32 v%d, v%d', f1 + t, f1 + t)
        a('v_exp_f32 v%d, v%d', f2 + t, f2 + t)
    a('s_waitcnt lgkmcnt(5)')
    for t in range(2):
        a('v_mul_f32 v%d, v%d, v%d', l1 + t, f1 + t, vO + 32 + 16 * t + 8)
    for t in range(2):
        a('v_fmac_f32 v%d, v%d, v%d', l1 + t, f2 + t, R + 16 * t + 8)
    for t in range(2):
        a('v_mov_b32 v%d, v%d', l2 + t, l1 + t)
    a('s_nop 0')
    for t in range(2):
        a('v_permlane32_swap_b32 v%d, v%d', l1 + t, l2 + t)
    for t in range(2):
        a('v_rcp_f32 v%d, v%d', l2 + t, l2 + t)
    a('s_waitcnt vmcnt(0) lgkmcnt(0)')
    for t in range(2):
        a('v_mul_f32 v%d, v%d, v%d', f1 + t, f1 + t, l2 + t)
        a('v_mul_f32 v%d, v%d, v%d', f2 + t, f2 + t, l2 + t)
    P = vO
    for t in range(2):
        if OPT['pkmerge']:
            sel = 'op_sel:[%d,0] op_sel_hi:[%d,1]' % (t, t)
            sel3 = 'op_sel:[%d,0,0] op_sel_hi:[%d,1,1]' % (t, t)
            for r in range(0, 12, 2):
                a('v_pk_mul_f32 %s, %s, %s %s', v(vO + 32 + 16 * t + r, 2), v(f1, 2), v(vO + 32 + 16 * t + r, 2), sel)
            for r in range(0, 12, 2):
                a('v_pk_fma_f32 %s, %s, %s, %s %s', v(vO + 32 + 16 * t + r, 2), v(f2, 2), v(R + 16 * t + r, 2), v(vO + 32 + 16 * t + r, 2), sel3)
        else:
            for r in range(12):
                a('v_mul_f32 v%d, v%d, v%d', vO + 32 + 16 * t + r, f1 + t, vO + 32 + 16 * t + r)
            for r in range(12):
                a('v_fmac_f32 v%d, v%d, v%d', vO + 32 + 16 * t + r, f2 + t, R + 16 * t + r)
        for q in range(6):
            a('v_cvt_pk_bf16_f32 v%d, v%d, v%d', P + 8 * t + q, vO + 32 + 16 * t + 2 * q, vO + 32 + 16 * t + 2 * q + 1)
        if OPT['otag']:
            for q in range(4):
                a('v_min_u32 v%d, -2, v%d', P + 8 * t + q, P + 8 * t + q)
        a('buffer_store_dwordx4 %s, v%d, s[%d:%d], s%d offen sc1', v(P + 8 * t, 4), vMG + 6, RWS, RWS + 3, 41 + t)
    if not OPT['otag']:
        a('s_nop 0')
    a('v_permlane32_swap_b32 v%d, v%d', P + 4, P + 12)
    a('v_permlane32_swap_b32 v%d, v%d', P + 5, P + 13)
    if OPT['otag']:
        a('v_min_u32 v%d, -2, v%d', P + 4, P + 4)
        a('v_min_u32 v%d, -2, v%d', P + 5, P + 5)
    a('buffer_store_dwordx2 %s, v%d, s[%d:%d], s40 offen offset:512 sc1', v(P + 4, 2), vMG + 7, RWS, RWS + 3)
    if OPT['otag']:
        setflag(43, 20)
    if OPT['tprio'] == 2:
        a('s_setprio 0')
    if OPT['pgate']:
        setpw(8, vT + 8)
        a('ds_read_b32 v%d, v%d', 99, vAPW)
    stamp('A', 'merge')

def p3_static(vA0, vA1, vOA, acc):
    EP = OPT['epoll']
    TAG = OPT['otag']
    if TAG:
        stamp('A', 'odrain')
        a.label('L_p3redo')
    elif not EP:
        a('s_waitcnt vmcnt(0)')
        stamp('A', 'odrain')
        setflag(43, 1)
    NB = 7
    def reads(ks):
        f = 100 + 20 * (ks % NB)
        base, off = (vA0, ks * 5120) if ks < 10 else (vA1, (ks - 10) * 5120)
        return ['ds_read_b64_tr_b16 %s, v%d offset:%d' % (v(f + 4 * j + 2 * rd, 2), base, off + 1280 * rd + 32 * j)
                for j in range(5) for rd in range(2)]
    pl = 'buffer_load_dword v252, v%d, s[%d:%d], s88 offen sc1' % (vOA + 1, RWS, RWS + 3)
    def oload(ks):
        a('buffer_load_dwordx4 %s, v%d, s[%d:%d], s85 offen offset:%d sc1', v(4 * ks, 4), vOA, RWS, RWS + 3, 1024 * (ks & 3))
        if ks & 3 == 3 and ks < 19:
            a('s_add_u32 s85, s85, 4096')
    LEAD = OPT['olead']
    touch_ = 'buffer_load_dword v251, v248, s[%d:%d], s85 offen sc1' % (RWS, RWS + 3)
    NP = OPT['npre'] if EP else 0
    rest = [r for ks in range(NP, NB) for r in reads(ks)]
    if EP:
        for ks in range(NP):
            for r in reads(ks):
                a(r)
        if OPT['pgate']:
            a('s_waitcnt lgkmcnt(0)')
            a('v_cmp_gt_u32 vcc, 8, v99')
            a('s_cbranch_vccz L_epoll')
            a('s_waitcnt vmcnt(0)')
            stamp('A', 'odrain')
            if DIAG:
                nstamp['A'].pop()
            setflag(43, 2)
            a('s_mov_b32 vcc_lo, -1')
            a('s_mov_b32 vcc_hi, 0')
            a('s_branch L_f4late')
            a.label('L_epoll')
        a('s_mov_b32 exec_hi, 0')
        a(pl)
        a('s_waitcnt vmcnt(1)')
        stamp('A', 'odrain')
        setflag(43, 2)
        a('s_mov_b32 exec_hi, 0')
        a('s_waitcnt vmcnt(1)')
        a('v_cmp_eq_u32 vcc, 0, v252')
        a('s_mov_b64 exec, -1')
        a('s_cbranch_vccnz L_f4late')
        stamp('A', 'f4')
        if DIAG:
            nstamp['A'].pop()
        a(touch_)
        k = 0
        for ks in range(LEAD):
            oload(ks)
            while k < len(rest) * (ks + 1) // LEAD:
                a(rest[k])
                k += 1
        a('s_branch L_p3go')
        a.label('L_f4late')
    for r in rest:
        a(r)
    if OPT['pgate'] and TAG != 1:
        a('s_mov_b64 s[38:39], vcc')
        waitpw(vAPW, 8, 99, sleep=OPT['gsleep'])
        a('s_mov_b64 vcc, s[38:39]')
    if EP:
        a('s_mov_b64 exec, vcc')
    else:
        a('s_mov_b32 exec_hi, 0')
    pollflags([pl], 252, sleep=OPT['psleep4'])
    stamp('A', 'f4')
    a(touch_)
    for ks in range(LEAD):
        oload(ks)
    a.label('L_p3go')
    a('s_waitcnt lgkmcnt(0)')
    nl = LEAD
    a('v_mov_b32 v250, 9')
    lq = []
    if nl == 20 or OPT['yearly']:
        a('ds_write_b32 v%d, v250', vPW)
    pend = []
    nck = 0
    for ks in range(20):
        w_ = 's_waitcnt vmcnt(%d)' % (nl - 1 - ks)
        if ks in lq:
            idx = max(i for i, x in enumerate(lq) if x == ks)
            w_ += ' lgkmcnt(%d)' % min(15, len(lq) - 1 - idx)
        a(w_)
        if OPT['fine'] in (1, 2) and ks in (0, 10, 19):
            stamp('A', 'p3k%d' % ks)
        rr = reads(ks + NB) if ks + NB < 20 else []
        for j in range(5):
            a('v_mfma_f32_16x16x32_bf16 %s, %s, %s, %s', v(acc + 4 * j, 4), v(4 * ks, 4), v(100 + 20 * (ks % NB) + 4 * j, 4),
              '0' if ks == 0 else v(acc + 4 * j, 4))
            for tg, r in pend:
                a(r)
                lq.append(tg)
            if TAG and not pend and ks >= 13:
                for _ in range(2):
                    if nck < 4 * ks + 4:
                        if nck == 0:
                            a('v_max_u32 v252, v0, v1')
                        else:
                            a('v_max3_u32 v252, v252, v%d, v%d', nck, nck + 1)
                        nck += 2
            pend = [(ks + NB, r) for r in rr[2 * j:2 * j + 2]]
            if j in (0, 3) and nl < 20 and (j == 0 or ks % 2 == 0):
                oload(nl)
                nl += 1
                if nl == 20 and not OPT['yearly']:
                    a('ds_write_b32 v%d, v250', vPW)
                    lq.append('w')
    if TAG:
        assert nck == 80
        a('v_cmp_eq_u32 vcc, -1, v252')
        a('s_cbranch_vccnz L_p3again')
        retry('L_p3again', 'L_p3redo', 0, ['s_sub_u32 s85, s85, 16384'])

def p3_groups(vA0, vOA, acc):
    WF, vAN = 100, 241
    sP, sG, sM, sKEY, sC = 4, 5, 6, 7, 8
    pl = 'buffer_load_dword v252, v%d, s[%d:%d], s88 offen sc1' % (vOA + 1, RWS, RWS + 3)
    for g in range(4):
        a('s_sub_u32 s%d, %d, s%d', sC + g, g, sOG)
        a('s_and_b32 s%d, s%d, 3', sC + g, sC + g)
        a('s_lshl2_add_u32 s%d, s%d, %d', sC + g, sC + g, g)
    a('v_mov_b32 v248, 9')
    a('s_waitcnt lgkmcnt(0)')
    a('v_cmp_gt_u32 vcc, 8, v99')
    a('s_cbranch_vccz L_epoll')
    a('s_waitcnt vmcnt(0)')
    stamp('A', 'odrain')
    if DIAG:
        nstamp['A'].pop()
    setflag(43, 2)
    waitpw(vAPW, 8, 99, sleep=OPT['gsleep'])
    a('s_mov_b32 exec_hi, 0')
    a(pl)
    a('s_waitcnt vmcnt(0)')
    a('s_branch L_polled')
    a.label('L_epoll')
    a('s_mov_b32 exec_hi, 0')
    a(pl)
    a('s_waitcnt vmcnt(1)')
    stamp('A', 'odrain')
    setflag(43, 2)
    a('s_mov_b32 exec_hi, 0')
    a('s_waitcnt vmcnt(1)')
    a.label('L_polled')
    a('v_cmp_eq_u32 vcc, 0, v252')
    a('s_mov_b64 exec, -1')
    a('s_mov_b32 s%d, vcc_lo', sP)
    def reads(k):
        return ['ds_read_b64_tr_b16 %s, v%d offset:%d' % (v(WF + 20 * k + 4 * j + 2 * rd, 2), vAN, 5120 * k + 1280 * rd + 32 * j)
                for j in range(5) for rd in range(2)]
    def issue(sl):
        for k in range(5):
            a('buffer_load_dwordx4 %s, v%d, s[%d:%d], s%d offen offset:%d sc1', v(20 * sl + 4 * k, 4), vOA, RWS, RWS + 3,
              12 if k < 4 else 13, 1024 * (k & 3))
        if sl == 3:
            a('ds_write_b32 v%d, v248', vPW)
    for sl in range(-1, 4):
        nx = sl + 1
        Lw, Lc, Ld = a.newlabel('gw'), a.newlabel('gc'), a.newlabel('gd')
        if nx < 4:
            for g in range(4):
                a('s_bfe_u32 s14, s%d, 0x%x', sP, (8 << 16) | (8 * g))
                a('s_bcnt1_i32_b32 s14, s14')
                if g == 0:
                    a('s_lshl4_add_u32 s%d, s14, s%d', sKEY, sC)
                else:
                    a('s_lshl4_add_u32 s14, s14, s%d', sC + g)
                    a('s_min_u32 s%d, s%d, s14', sKEY, sKEY)
            a('s_and_b32 s%d, s%d, 3', sG, sKEY)
            a('s_mul_i32 s12, s%d, 5120', sG)
            a('s_add_u32 s12, s12, s85')
            a('s_add_u32 s13, s12, 4096')
            a('s_cmp_lt_u32 s%d, 16', sKEY)
            a('s_cbranch_scc0 %s', Lw)
            issue(nx)
            if sl >= 0:
                a('s_waitcnt vmcnt(5)')
            a('s_branch %s', Lc)
            a.label(Lw)
            a('s_mov_b32 exec_lo, s%d', sP)
            a('s_mov_b32 exec_hi, 0')
            a(pl)
            a('s_mov_b64 exec, -1')
            if sl >= 0:
                a('s_waitcnt vmcnt(1)')
            a.label(Lc)
            a('s_mul_i32 s14, s%d, 25600', sG)
            a('v_add_u32 v%d, s14, v%d', vAN, vA0)
            if nx < 3:
                for g in range(4):
                    a('s_cmp_eq_u32 s%d, %d', sG, g)
                    a('s_cselect_b32 s%d, 0x1000, s%d', sC + g, sC + g)
        if sl < 0:
            for k in range(5):
                for r in reads(k):
                    a(r)
        else:
            pend = []
            for k in range(5):
                if nx == 4:
                    a('s_waitcnt vmcnt(%d) lgkmcnt(%d)', 4 - k, 0 if k >= 3 else 15)
                else:
                    a('s_waitcnt lgkmcnt(15)')
                rr = reads(k) if nx < 4 else []
                for j in range(5):
                    a('v_mfma_f32_16x16x32_bf16 %s, %s, %s, %s', v(acc + 4 * j, 4), v(20 * sl + 4 * k, 4), v(WF + 20 * k + 4 * j, 4),
                      '0' if (sl == 0 and k == 0) else v(acc + 4 * j, 4))
                    for r in pend:
                        a(r)
                    pend = rr[2 * j:2 * j + 2]
            for r in pend:
                a(r)
        if nx < 4:
            a('s_cmp_lt_u32 s%d, 16', sKEY)
            a('s_cbranch_scc1 %s', Ld)
            L1, L2 = a.newlabel('gp'), a.newlabel('gq')
            a('s_lshl_b32 s14, s%d, 3', sG)
            a('s_lshl_b32 s%d, 0xff, s14', sM)
            a('s_mov_b32 exec_lo, s%d', sP)
            a('s_mov_b32 exec_hi, 0')
            a.label(L1)
            a('s_waitcnt vmcnt(0)')
            a('v_cmp_eq_u32 vcc, 0, v252')
            a('s_and_b32 s14, vcc_lo, s%d', sM)
            a('s_cbranch_scc0 %s', L2)
            a('s_mov_b64 exec, vcc')
            if OPT['psleep4']:
                a('s_sleep %d', OPT['psleep4'])
            a(pl)
            a('s_sub_u32 s%d, s%d, 1', sSPIN, sSPIN)
            a('s_cbranch_scc0 %s', L1)
            a('s_endpgm')
            a.label(L2)
            a('s_mov_b32 s%d, vcc_lo', sP)
            a('s_mov_b64 exec, -1')
            issue(nx)
            a.label(Ld)
            if nx == 3:
                stamp('A', 'f4')

def a_outproj():
    vA0, vA1, vOA, vST = 240, 241, 242, 244
    if not OPT['otag'] or OPT['amark']:
        waitpw(vMG + 5, 14, 98, sleep=1)
    a('v_lshrrev_b32 v21, 5, v%d', vLANE)
    a('v_bfe_u32 v22, v%d, 2, 3', vLANE)
    a('v_lshl_add_u32 v21, v21, 4, v22')
    a('v_mul_u32_u24 v21, 160, v21')
    a('v_and_b32 v22, 3, v%d', vLANE)
    a('v_lshl_add_u32 v%d, v22, 3, v21', vA0)
    a('v_add_u32 v%d, %d, v%d', vA1, 10 * 5120, vA0)
    a('v_lshlrev_b32 v%d, 4, v%d', vOA, vLANE)
    a('v_lshrrev_b32 v21, 4, v%d', vLANE)
    a('v_mul_u32_u24 v21, %d, v21', 4 * 5120)
    a('v_and_b32 v22, 15, v%d', vLANE)
    a('v_lshl_add_u32 v%d, v22, 2, v21', vST)
    for r in range(1, 4):
        a('v_add_u32 v%d, %d, v%d', vST + r, 5120 * r, vST)
    a('s_mul_i32 s84, s%d, 2560', sOG)
    a('v_min_u32 v248, 19, v%d', vLANE)
    a('v_lshl_add_u32 v248, v248, 7, s84')
    a('s_lshl2_add_u32 s84, s%d, s%d', sTB, sW)
    a('s_mul_i32 s85, s84, %d', OBLK)
    a('s_add_u32 s85, s85, 0x%x', WS_O)
    a('s_mul_i32 s86, s84, %d', 16 * 5120)
    a('s_mul_i32 s88, s%d, 320', sOG)
    a('s_add_u32 s86, s86, s88')
    a('v_lshlrev_b32 v%d, 7, v%d', vOA + 1, vLANE)
    a('s_lshl_b32 s88, s%d, 12', sTB)
    a('s_add_u32 s88, s88, 0x%x', F4)
    acc = 80
    a.label('L_pgO')
    if OPT['p3dyn']:
        p3_groups(vA0, vOA, acc)
    else:
        p3_static(vA0, vA1, vOA, acc)
    a('s_nop 3')
    for j in range(5):
        for r in range(4):
            a('buffer_store_dword v%d, v%d, s[%d:%d], s86 offen offset:%d%s', acc + 4 * j + r, vST + r, R4, R4 + 3, 64 * j, OSC)
    finish('A')

vXR, vBR, vA0PW = 96, 100, 107
vL, vE, vHW, vHR0, vHR1, vHS, vCH, vCHL, vHH, vP01, vTCH, vHINT = 146, 150, 151, 152, 153, 154, 155, 156, 157, 158, 159, 160
vDX, vDW, vDBX, vDBB = 161, 165, 169, 173
vZ, vWOA, vPAR = 176, 186, 200
vCA, vCR, vHA = 248, 250, 252
vOS = 194
vSPW, vF3, vHT = 191, 192, 193
vAM = 248
vXO, vDO, vOA, vRA, vR1W, vR1R, vR2W, vPW1, vPW2, vAP4 = 164, 165, 166, 167, 169, 170, 171, 172, 173, 174
SENT = 0xffffffff

def s_stage(t, emit=None):
    out = []
    slot = ((t + 1) % 4) * 32768
    if OPT['stag'] >= 8 and t < 10:
        out += ['s_bfe_u32 s82, s%d, 0x%x' % (86 + t // 8, (4 << 16) | (4 * (t % 8))),
                's_add_u32 s82, s82, s85', 's_cmp_ge_u32 s82, 10', 's_cselect_b32 s83, 10, 0', 's_sub_u32 s82, s82, s83']
    elif OPT['stag'] >= 5 and t < 10:
        base, size = {0: (0, 4), 1: (4, 4), 2: (8, 2)}[t // 4] if OPT['stag'] != 7 else ((0, 2) if t < 2 else ((2, 4) if t < 6 else (6, 4)))
        out += ['s_add_u32 s82, s81, %d' % t, 's_and_b32 s82, s82, %d' % (size - 1), 's_add_u32 s82, s82, %d' % base,
                's_add_u32 s82, s82, s85', 's_cmp_ge_u32 s82, 10', 's_cselect_b32 s83, 10, 0', 's_sub_u32 s82, s82, s83']
    out.append('s_add_u32 m0, s74, %d' % slot)
    out.append('s_lshl_b32 s83, s82, 7')
    out.append('s_add_u32 s76, s72, s83')
    if t < 10:
        out += [dma(vDX + i, R0, 76, 1024 * i) for i in range(4)]
        out.append('s_add_u32 m0, s74, %d' % (slot + 16384))
        out.append('s_mul_i32 s83, s82, 245760')
        out.append('s_add_u32 s76, s73, s83')
        out += [dma(vDW + i, R1, 76, 1024 * i) for i in range(4)]
    else:
        out += [dma(vDBX + i, R3, 76, 1024 * i) for i in range(4)]
        out.append('s_add_u32 m0, s75, %d' % (slot + 16384))
        out.append('s_add_u32 s76, s77, s83')
        out += [dma(vDBB + i, R4, 76, 1024 * i) for i in range(3)]
    if not (OPT['stag'] >= 5 and t < 10):
        out.append('s_add_u32 s82, s82, 1')
        out.append('s_cmp_eq_u32 s82, 10')
        out.append('s_cselect_b32 s82, 0, s82')
    if emit is None:
        L = a.newlabel('skip')
        if t < 10:
            a('s_cmp_eq_u32 s%d, 15', sCG)
            a('s_cbranch_scc1 %s', L)
        for o in out:
            a(o)
        if t < 10:
            a.label(L)
    return out

def ninstr(t):
    return 0 if t > 19 else (8 if t < 10 else 7)

def exp_acc(dst, x, t1, t2):
    L2E = math.log2(math.e)
    hi = struct.unpack('<f', struct.pack('<f', L2E))[0]
    a('s_mov_b32 s80, 0x%x', f2u(hi))
    a('v_mul_f32 v%d, s80, v%d', t1, x)
    a('v_fma_f32 v%d, v%d, s80, -v%d', t2, x, t1)
    a('v_fmac_f32 v%d, 0x%x, v%d', t2, f2u(L2E - hi), x)
    a('v_exp_f32 v%d, v%d', dst, t1)
    a('v_mul_f32 v%d, 0x%x, v%d', t2, f2u(math.log(2.0)), t2)
    a('v_fmac_f32 v%d, v%d, v%d', dst, dst, t2)

def s_setup():
    a.label('L_roleS')
    a('s_sub_u32 s%d, s%d, 4', sW, sW)
    a('v_lshrrev_b32 v1, 3, v%d', vLANE)
    a('v_and_b32 v2, 7, v%d', vLANE)
    a('v_lshrrev_b32 v3, 4, v%d', vLANE)
    a('v_xor_b32 v4, v2, v3')
    a('v_mul_u32_u24 v5, 1280, v1')
    a('v_lshl_add_u32 v%d, v4, 4, v5', vDX)
    a('v_xor_b32 v6, 64, v%d', vDX)
    a('v_add_u32 v%d, %d, v6', vDX + 1, 10240 - 1024)
    a('v_add_u32 v%d, %d, v%d', vDX + 2, 2 * (10240 - 1024), vDX)
    a('v_add_u32 v%d, %d, v6', vDX + 3, 3 * (10240 - 1024))
    a('v_and_b32 v7, 15, v%d', vLANE)
    a('v_lshlrev_b32 v8, 2, v3')
    a('v_xor_b32 v7, v7, v8')
    a('v_mul_u32_u24 v8, 3840, v3')
    a('v_lshl_add_u32 v%d, v7, 4, v8', vDW)
    for i in range(1, 4):
        a('v_add_u32 v%d, %d, v%d', vDW + i, (15360 - 1024) * i, vDW)
    a('s_lshl2_add_u32 s72, s%d, s%d', sRB, sW)
    a('s_mul_i32 s72, s72, %d', 32 * 1280)
    a('s_mul_i32 s73, s%d, %d', sW, 16 * 3840)
    a('s_lshl_b32 s70, s%d, 8', sCG)
    a('s_add_u32 s73, s73, s70')
    a('s_lshl_b32 s74, s%d, 12', sW)
    if OPT['stag'] <= 4:
        stagger(82, 83, 0, 0, OPT['stag'])
    else:
        a('s_add_u32 s81, s%d, s%d', sI, sOG)
        a('s_add_u32 s85, s%d, 1', sXCD)
        a('s_lshr_b32 s85, s85, 1')
        a('s_mul_i32 s85, s85, %d', 2 if OPT['stag'] in (5, 8, 9, 10, 11) else 0)
        if OPT['stag'] >= 8:
            T = {8: ['0412385679', '1253049678', '2306145789', '3012745689'],
                 9: ['0142385679', '1253094678', '2306145789', '3017245689'],
                 10: ['0124358679', '1235049678', '2301645789', '3012745689'],
                 11: ['0412835679', '1523904678', '2360145789', '3071245689']}[OPT['stag']]
            for r in T:
                assert sorted(r) == list('0123456789')
            lo = [int(r[:8][::-1], 16) for r in T]
            hi = sum(int(r[8:][::-1], 16) << (8 * c) for c, r in enumerate(T))
            a('s_and_b32 s81, s81, 3')
            a('s_mov_b32 s86, 0x%x', lo[0])
            for c in range(1, 4):
                a('s_cmp_eq_u32 s81, %d', c)
                a('s_cselect_b32 s86, 0x%x, s86', lo[c])
            a('s_lshl_b32 s81, s81, 3')
            a('s_lshr_b32 s87, 0x%x, s81', hi)
    a('s_mov_b32 s%d, 0x%x', R0 + 2, 2048 * 1280)
    a('s_mov_b32 s%d, 0x20000', R0 + 3)
    a('s_mov_b32 s%d, 0x%x', R1 + 2, 640 * 3840)
    a('s_mov_b32 s%d, 0x20000', R1 + 3)
    st0 = s_stage(0, emit=False)
    k = next(i for i, o in enumerate(st0) if o.startswith('buffer_load'))
    for o in st0[:k]:
        a(o)
    a('s_cmp_eq_u32 s%d, 15', sCG)
    a('s_waitcnt lgkmcnt(0)')
    a('s_mov_b64 s[%d:%d], s[%d:%d]', R0, R0 + 1, sAX, sAX + 1)
    a('s_mov_b64 s[%d:%d], s[%d:%d]', R1, R1 + 1, sWQ, sWQ + 1)
    if DIAG:
        ws_setup()
    stamp('S', 'start')
    a('s_cbranch_scc1 L_skip0')
    for o in st0[k:]:
        a(o)
    a.label('L_skip0')
    if not DIAG:
        prologue2()
        ws_setup()
    if OPT['fine'] == 1:
        stamp('S', 'iss0')
    def params():
        a('s_mul_i32 s70, s%d, 40', sG)
        a('v_min_u32 v9, 39, v%d', vLANE)
        a('v_add_lshl_u32 v9, v9, s70, 1')
        a('global_load_ushort v10, v9, s[%d:%d]', sLDT, sLDT + 1)
        a('global_load_ushort v11, v9, s[%d:%d]', sLRE, sLRE + 1)
        a('global_load_ushort v12, v9, s[%d:%d]', sLIM, sLIM + 1)
    params()
    n0 = len(a.lines)
    b1_sources(R3, R4, vDBX, vDBB, 75, 77, 70)
    a('v_and_b32 v5, 3, v%d', vLANE)
    a('v_lshlrev_b32 v5, 8, v5')
    a('v_lshl_add_u32 v5, v%d, 2, v5', vLANE)
    a('v_add_u32 v%d, %d, v5', vSPW, L_PW + 1024)
    s_addresses()
    if OPT['slate']:
        late = a.lines[n0:]
        del a.lines[n0:]
        k = 0
        nch = OPT['slate']
        for c in range(nch):
            e = len(late) * (c + 1) // nch
            while e < len(late) and ('cselect' in late[e] or 'cndmask' in late[e] or 'cndmask' in late[e + 1] or 'cndmask' in late[min(e + 2, len(late) - 1)]):
                e += 1
            SLATE.append(late[k:e])
            k = e
    s_stage(1)
    if OPT['fine'] == 1:
        stamp('S', 'iss1')
    a('s_waitcnt vmcnt(11) lgkmcnt(0)')
    stamp('S', 'st0')
    a('s_barrier')
    s_stage(2)
    slate()
    a('s_waitcnt vmcnt(8)')
    a('s_barrier')
    s_stage(3)
    s_stage(4)

SLATE = []

def slate():
    if SLATE:
        a.lines.extend(SLATE.pop(0))

def s_addresses():
    c, g, t0, t1, t2 = 40, 41, 42, 43, 44
    a('v_and_b32 v%d, 15, v%d', c, vLANE)
    a('v_lshrrev_b32 v%d, 4, v%d', g, vLANE)
    a('v_lshrrev_b32 v%d, 1, v%d', t0, c)
    a('v_xor_b32 v%d, v%d, v%d', t0, t0, g)
    a('v_lshlrev_b32 v%d, 4, v%d', t0, t0)
    a('v_lshl_add_u32 v%d, v%d, 7, v%d', t0, c, t0)
    a('v_xor_b32 v%d, 64, v%d', t1, t0)
    a('v_add_u32 v%d, s74, v%d', vXR, t0)
    a('v_add_u32 v%d, s74, v%d', vXR + 1, t1)
    a('s_mul_i32 s70, s%d, %d', sW, REGSZ)
    a('s_add_u32 s70, s70, %d', L_REG)
    a('v_add_u32 v%d, s70, v%d', vCR, t0)
    a('v_add_u32 v%d, s70, v%d', vCR + 1, t1)
    a('v_lshrrev_b32 v%d, 3, v%d', t2, c)
    a('v_lshl_add_u32 v%d, v%d, 12, v%d', t0, t2, t0)
    a('v_add_u32 v%d, 16384, v%d', vBR, t0)
    a('v_xor_b32 v%d, 64, v%d', vBR + 1, vBR)
    for k in range(2):
        a('v_add_u32 v%d, 0x10000, v%d', vXR + 2 + k, vXR + k)
        a('v_add_u32 v%d, 0x10000, v%d', vBR + 2 + k, vBR + k)
    a('v_and_b32 v%d, 7, v%d', t0, vLANE)
    a('v_lshlrev_b32 v%d, 2, v%d', t2, t2)
    a('v_lshl_add_u32 v%d, v%d, 3, v%d', t0, t0, t2)
    a('v_add_u32 v%d, %d, v%d', vHH, L_H, t0)
    a('v_mul_u32_u24 v%d, 320, v%d', t1, g)
    a('s_mul_i32 s71, s%d, 1280', sW)
    a('s_add_u32 s71, s71, %d', L_EL)
    a('v_add3_u32 v%d, v%d, v%d, s71', vE, t0, t1)
    a('v_lshlrev_b32 v%d, 3, v%d', vCH, vLANE)
    a('v_add_u32 v%d, %d, v%d', vCHL, L_H, vCH)
    a('v_lshlrev_b32 v%d, 9, v%d', vHINT, vLANE)
    a('v_lshlrev_b32 v%d, 2, v%d', vA0PW, vLANE)
    a('v_add_u32 v%d, %d, v%d', vA0PW, L_PW, vA0PW)
    a('v_and_b32 v%d, 0x%x, v%d', vP01, 0xffffffff ^ 512, vSPW)
    a('v_bfe_u32 v%d, v%d, 1, 2', t0, vLANE)
    a('v_xor_b32 v%d, v%d, v%d', t0, t0, g)
    a('v_lshlrev_b32 v%d, 4, v%d', t0, t0)
    a('s_mul_i32 s71, s%d, 5120', sW)
    a('s_add_u32 s71, s71, %d', L_HT)
    a('v_lshl_add_u32 v%d, v%d, 6, v%d', t0, c, t0)
    a('v_add_u32 v%d, s71, v%d', vHW, t0)
    a('v_bfe_u32 v%d, v%d, 2, 2', t0, vLANE)
    a('v_lshrrev_b32 v%d, 5, v%d', t1, vLANE)
    a('v_lshl_add_u32 v%d, v%d, 3, v%d', vHR0, t1, t0)
    a('v_lshlrev_b32 v%d, 6, v%d', vHR0, vHR0)
    a('v_mul_u32_u24 v%d, %d, v%d', vHS, 80 * 256, t1)
    a('v_lshrrev_b32 v%d, 1, v%d', t0, t0)
    a('v_bfe_u32 v%d, v%d, 4, 1', t1, vLANE)
    a('v_bfe_u32 v%d, v%d, 1, 1', t2, vLANE)
    a('v_lshl_add_u32 v%d, v%d, 1, v%d', t2, t1, t2)
    a('v_xor_b32 v%d, v%d, v%d', t2, t2, t0)
    a('v_lshl_add_u32 v%d, v%d, 4, v%d', vHR0, t2, vHR0)
    a('v_and_b32 v%d, 1, v%d', t2, vLANE)
    a('v_lshl_add_u32 v%d, v%d, 3, v%d', vHR0, t2, vHR0)
    a('v_xor_b32 v%d, 32, v%d', vHR1, vHR0)
    a('v_add_u32 v%d, s71, v%d', vHR0, vHR0)
    a('v_add_u32 v%d, s71, v%d', vHR1, vHR1)
    a('v_mul_u32_u24 v%d, %d, v%d', t1, HBLK, t1)
    a('v_lshl_add_u32 v%d, v%d, 4, v%d', t1, c, t1)
    a('v_add_u32 v%d, v%d, v%d', vHS, vHS, t1)
    if OPT['otag'] and not OPT['amark']:
        a('v_bfe_u32 v%d, v%d, 4, 1', t0, vLANE)
        a('v_mul_u32_u24 v%d, %d, v%d', t0, OBLK, t0)
        a('v_lshl_add_u32 v%d, v%d, 4, v%d', t0, c, t0)
        a('v_lshrrev_b32 v%d, 5, v%d', t1, vLANE)
        a('v_mul_u32_u24 v%d, %d, v%d', t2, 2 * OBLK, t1)
        a('v_add_u32 v%d, v%d, v%d', vOS + 1, t2, t0)
        a('v_lshl_add_u32 v%d, v%d, 8, v%d', vOS, t1, t0)
        for k in range(4):
            a('v_mov_b32 v%d, -1', vOS + 2 + k)
    a('v_mov_b32 v%d, v%d', vCA, vDX)
    a('v_mov_b32 v%d, v%d', vCA + 1, vDX + 1)
    a('v_lshlrev_b32 v%d, 4, v%d', vHA, vLANE)
    a('v_lshlrev_b32 v%d, 7, v%d', vF3, vLANE)
    a('v_min_u32 v%d, %d, v%d', vHT, 39 * 128, vF3)
    a('s_xor_b32 s92, s%d, 1', sW)
    a('s_mul_i32 s92, s92, %d', REGSZ)
    a('s_add_u32 s92, s92, %d', L_REG)
    a('s_xor_b32 s93, s%d, 3', sW)
    a('s_mul_i32 s93, s93, %d', REGSZ)
    a('s_add_u32 s93, s93, %d', L_REG + 16 * 336)
    if not OPT['wopack']:
        s_wooffs()

def s_params():
    a('s_cmp_eq_u32 s%d, 0', sW)
    a('s_cbranch_scc0 L_nopar')
    for r in (10, 11, 12):
        a('v_lshlrev_b32 v%d, 16, v%d', r, r)
    exp_acc(13, 10, 14, 15)
    a('v_cvt_pk_bf16_f32 v13, v13, v13')
    a('v_and_b32 v13, 0xffff0000, v13')
    a('v_mul_f32 v14, v13, v11')
    a('v_mul_f32 v15, v13, v12')
    exp_acc(16, 14, 17, 18)
    I2P = 1.0 / (2 * math.pi)
    hi = struct.unpack('<f', struct.pack('<f', I2P))[0]
    a('s_mov_b32 s80, 0x%x', f2u(hi))
    a('v_mul_f32 v17, s80, v15')
    a('v_rndne_f32 v17, v17')
    a('v_fma_f32 v17, v15, s80, -v17')
    a('v_fmac_f32 v17, 0x%x, v15', f2u(I2P - hi))
    a('v_cos_f32 v20, v17')
    a('v_sin_f32 v21, v17')
    a('v_mul_f32 v18, v11, v11')
    a('v_fmac_f32 v18, v12, v12')
    a('v_rcp_f32 v19, v18')
    a('v_mul_f32 v20, v16, v20')
    a('v_mul_f32 v21, v16, v21')
    a('v_fma_f32 v18, -v18, v19, 1.0')
    a('v_fmac_f32 v19, v19, v18')
    a('v_add_f32 v19, v19, v19')
    a('v_add_f32 v17, -1.0, v20')
    a('v_mul_f32 v22, v17, v11')
    a('v_fmac_f32 v22, v21, v12')
    a('v_mul_f32 v23, v17, v12')
    a('v_fma_f32 v23, -v21, v11, v23')
    a('v_mul_f32 v22, v22, v19')
    a('v_mul_f32 v23, v23, v19')
    a('v_lshlrev_b32 v9, 4, v%d', vLANE)
    a('v_add_u32 v9, %d, v9', L_PAR)
    a('ds_write_b128 v9, v[20:23]')
    a('v_mov_b32 v24, v20')
    a('v_sub_f32 v25, 0, v21')
    for k in range(3):
        a('v_mul_f32 v26, v25, v25')
        a('v_add_f32 v27, v24, v24')
        a('v_fma_f32 v24, v24, v24, -v26')
        a('v_mul_f32 v25, v27, v25')
    a.label('L_nopar')

def s_params2():
    a('s_cmp_eq_u32 s%d, 0', sW)
    a('s_cbranch_scc0 L_nopar2')
    a('s_mov_b32 exec_hi, 0xff')
    a('v_mov_b32 v14, 1.0')
    a('v_mov_b32 v15, 0')
    a('ds_write_b64 v%d, v[14:15] offset:%d', vCHL, L_Z - L_H)
    a('ds_write_b64 v%d, v[24:25] offset:%d', vCHL, L_Z - L_H + 320)
    src = 24
    for sg in range(2, 17):
        dst = 16 + 2 * (sg % 3)
        a('v_mul_f32 v%d, v24, v%d', dst, src)
        a('v_mul_f32 v%d, v24, v%d', dst + 1, src + 1)
        a('v_fma_f32 v%d, -v25, v%d, v%d', dst, src + 1, dst)
        a('v_fmac_f32 v%d, v25, v%d', dst + 1, src)
        a('ds_write_b64 v%d, %s offset:%d', vCHL, v(dst, 2), L_Z - L_H + 320 * sg)
        src = dst
    a('s_mov_b32 exec_hi, -1')
    a('s_waitcnt lgkmcnt(0)')
    a.label('L_nopar2')

def s_wooffs():
    for i in range(5):
        a('v_add_u32 v40, %d, v%d', 64 * i, vLANE)
        a('v_mul_u32_u24 v41, 6554, v40')
        a('v_lshrrev_b32 v41, 16, v41')
        a('v_mul_u32_u24 v42, 10, v41')
        a('v_sub_u32 v40, v40, v42')
        tau(42, 41, 43)
        a('v_mul_u32_u24 v42, 1280, v42')
        a('v_lshl_add_u32 v%d, v40, 4, v42', vWOA + i)
        if 0 < i < 4:
            a('v_subrev_u32 v%d, %d, v%d', vWOA + i, 1024 * i, vWOA + i)

def s_qloader():
    early = {1: {7: 10}, 2: {7: 10, 9: 11}, 3: {7: 10, 8: 11, 9: 12}, 0: {}}[OPT['st10']]
    q = [2] * 8 + [3] * 8 + [4] * 8
    for st in range(2, 10):
        a('s_waitcnt vmcnt(%d)', len(q) - 1 - max(i for i, x in enumerate(q) if x == st))
        if OPT['fine'] == 1 and st in (2, 4, 6, 7, 8, 9):
            stamp('S', 'st%d' % st)
        a('s_barrier')
        if st == 6:
            a('v_and_b32 v32, 15, v%d', vLANE)
            a('v_lshlrev_b32 v32, 4, v32')
            a('v_mov_b32 v33, 1')
            a('s_cmp_eq_u32 s%d, 3', sW)
            a('s_cbranch_scc0 L_nodbg')
            a(dbgload(32, 33))
            a.label('L_nodbg')
            a('s_cmp_eq_u32 s%d, 15', sCG)
            a('s_cbranch_scc0 L_cw')
            a('s_waitcnt vmcnt(0)')
            a.label('L_cw')
        if st <= 6:
            s_stage(st + 3)
            q += [st + 3] * 8
            slate()
        if st == OPT['pretouch']:
            a('s_cmp_eq_u32 s%d, 2', sW)
            a('s_cselect_b32 s70, s%d, s%d', sBRE, sBIM)
            a('s_cselect_b32 s71, s%d, s%d', sBRE + 1, sBIM + 1)
            a('s_mul_i32 s83, s2, 3200')
            a('s_lshl1_add_u32 s84, s2, s%d', sW)
            a('s_mul_i32 s84, s84, 5120')
            a('s_cmp_lt_u32 s%d, 2', sW)
            a('s_cselect_b32 s70, s%d, s70', sBX)
            a('s_cselect_b32 s71, s%d, s71', sBX + 1)
            a('s_cselect_b32 s83, s84, s83')
            a('s_cselect_b32 s84, 39, 24')
            a('v_min_u32 v30, s84, v%d', vLANE)
            a('v_lshl_add_u32 v30, v30, 7, s83')
            a('global_load_dword v31, v30, s[70:71]')
            q.append('t')
        if st == 7:
            stagger(82, 83, 0, OPT['flip'], OPT['stagb'])
        if st in early:
            s_stage(early[st])
            q += [early[st]] * 7
        if st == 7 and not OPT['plate']:
            s_params()
        if st == 8 and not OPT['plate']:
            s_params2()

    a('v_cmp_eq_u32 vcc, 0, v33')
    a('s_cbranch_vccz L_clrok')
    pollflags([dbgload(32, 33)], 33, sleep=8)
    a.label('L_clrok')
    a('s_barrier')
    stamp('S', 'qend')
    if OPT['plate']:
        s_params()
        s_params2()
    else:
        s_consts()

def s_consts():
    a('v_and_b32 v104, 7, v%d', vLANE)
    a('v_lshlrev_b32 v104, 4, v104')
    a('v_add_u32 v104, %d, v104', L_PAR)
    for j in range(5):
        a('ds_read_b128 %s, v104 offset:%d', v(vPAR + 4 * j, 4), 128 * j)
    a('v_and_b32 v105, -8, v%d', vE)
    a('v_add_u32 v105, %d, v105', L_Z - L_EL)
    for j in range(5):
        a('ds_read_b64 %s, v105 offset:%d', v(vZ + 2 * j, 2), 64 * j)
    a('s_cmp_eq_u32 s%d, 0', sW)
    a('s_cselect_b32 s70, 1, 16')
    a('s_mul_i32 s70, s70, 320')
    a('v_add_u32 v106, s70, v%d', vCHL)
    a('ds_read_b64 %s, v106 offset:%d', v(vL, 2), L_Z - L_H)
    a('v_bfe_u32 v145, v%d, 3, 1', vLANE)
    a('v_lshlrev_b32 v145, 31, v145')
    a('v_xor_b32 v144, 0x80000000, v145')
    a('s_waitcnt lgkmcnt(0)')
    for j in range(5):
        a('v_xor_b32 v%d, v145, v%d', vPAR + 4 * j + 1, vPAR + 4 * j + 1)
        a('v_xor_b32 v%d, v145, v%d', vPAR + 4 * j + 2, vPAR + 4 * j + 2)
        a('v_xor_b32 v%d, v144, v%d', vZ + 2 * j + 1, vZ + 2 * j + 1)

def touch(r, va=None):
    o = ['s_add_u32 s84, s%d, %d' % (sXCD, r),
         's_cmp_ge_u32 s84, 6', 's_cselect_b32 s85, 6, 0', 's_sub_u32 s84, s84, s85',
         's_cmp_ge_u32 s84, 6', 's_cselect_b32 s85, 6, 0', 's_sub_u32 s84, s84, s85',
         's_cmp_ge_u32 s84, 2',
         's_cselect_b32 s86, s%d, s%d' % (sCRE, sWO), 's_cselect_b32 s87, s%d, s%d' % (sCRE + 1, sWO + 1),
         's_cmp_ge_u32 s84, 4',
         's_cselect_b32 s86, s%d, s86' % sCIM, 's_cselect_b32 s87, s%d, s87' % (sCIM + 1),
         's_and_b32 s84, s84, 1', 's_mul_i32 s84, s84, 3200',
         's_add_u32 s86, s86, s84', 's_addc_u32 s87, s87, 0',
         'global_load_dword v109, v%d, s[86:87]' % (va or vTCH)]
    return o

def s_b1():
    F = [40, 68]
    def reads(t, ks, f):
        slot = (t + 1) % 4
        hi, lo = slot >> 1, (slot & 1) * 32768
        r = ['ds_read_b128 %s, v%d offset:%d' % (v(f + 4 * T, 4), vXR + 2 * hi + ks, lo + 2048 * T) for T in range(2)]
        r += ['ds_read_b128 %s, v%d offset:%d' % (v(f + 8 + 4 * j, 4), vBR + 2 * hi + ks, lo + 1024 * j) for j in range(5)]
        return r
    def mfmas(f, first):
        return ['v_mfma_f32_16x16x32_bf16 %s, %s, %s, %s' % (v(8 * j + 4 * T, 4), v(f + 4 * T, 4), v(f + 8 + 4 * j, 4),
                '0' if first else v(8 * j + 4 * T, 4)) for j in range(5) for T in range(2)]
    def weave(ms, others):
        n = len(ms)
        k = 0
        for i_, m in enumerate(ms):
            a(m)
            while k < len(others) * (i_ + 1) // n:
                a(others[k])
                k += 1
    first = 10 + OPT['st10']
    a('s_lshl4_add_u32 s84, s%d, s%d', sCG, sRB)
    flagaddr(84, 84, F1, 85)
    a('s_waitcnt vmcnt(%d)', max(0, 7 * (first - 11)))
    a('s_barrier')
    for r in reads(10, 0, F[0]):
        a(r)
    for u in range(10):
        t = 10 + u
        if OPT['fine'] == 1 and u in (0, 2, 3, 4, 8):
            stamp('S', 'b1w%d' % u)
        a('s_waitcnt lgkmcnt(0)')
        m0_ = mfmas(F[0], u == 0)
        weave(m0_[:4], reads(t, 1, F[1]))
        for m in m0_[4:]:
            a(m)
        m1_ = mfmas(F[1], False)
        if u < 9:
            if t + 1 < first:
                a('s_waitcnt vmcnt(%d) lgkmcnt(0)', 7 * (first - t - 2))
            else:
                if t + 1 == first and OPT['plate']:
                    s_consts()
                a('s_waitcnt lgkmcnt(0)')
            a('s_barrier')
            if t + 1 == first:
                a('s_cmp_eq_u32 s%d, 3', sW)
                a('s_cbranch_scc0 L_noflag')
                setflag(84, 104)
                a.label('L_noflag')
            weave(m1_[:4], reads(t + 1, 0, F[0]))
            for m in m1_[4:]:
                a(m)
        else:
            a('s_waitcnt lgkmcnt(0)')
            for m in m1_:
                a(m)
    stamp('S', 'b1gemm')

def rot5(dst, t):
    a('s_and_b32 s%d, s%d, 3', dst, sI)
    a('s_add_u32 s%d, s%d, s%d', dst, dst, sXCD)
    for _ in range(2):
        a('s_cmp_ge_u32 s%d, 5', dst)
        a('s_cselect_b32 s%d, 5, 0', t)
        a('s_sub_u32 s%d, s%d, s%d', dst, dst, t)
    if not OPT['rot5']:
        a('s_mov_b32 s%d, 0', dst)

def s_wo():
    if OPT['wopack']:
        a('s_mov_b32 s73, 0x%x', F1 + 15 * 16 * 128)
        a('s_mov_b64 exec, 0xffff')
        pollflags(['buffer_load_dword v40, v%d, s[%d:%d], s73 offen sc1' % (vF3, RWS, RWS + 3)], 40, sleep=4)
        rot5(83, 73)
        a('s_mul_i32 s75, s%d, 102400', sOG)
        a('s_add_u32 s75, s75, 0x%x', WS_WP)
        a('s_mov_b32 s77, 5')
        a.label('L_woloop')
        a('s_lshl2_add_u32 s78, s83, s%d', sW)
        a('s_mul_i32 s78, s78, 5120')
        a('s_add_u32 s79, s78, s75')
        a('s_mov_b32 m0, s78')
        for i in range(5):
            if i == 4:
                a('s_add_u32 m0, s78, 4096')
                a('s_add_u32 s79, s79, 4096')
            a('s_waitcnt vmcnt(%d)', OPT['thrw'])
            a(dma(vHA, RWS, 79, 1024 * (i & 3)).replace(' lds', ' sc1 lds'))
    else:
        srd(R0, sWO, 640 * 1280)
        rot5(83, 73)
        a('s_mul_i32 s75, s%d, 160', sOG)
        a('s_mov_b32 s77, 5')
        a.label('L_woloop')
        a('s_lshl2_add_u32 s78, s83, s%d', sW)
        a('s_mul_i32 s79, s78, 40960')
        a('s_add_u32 s79, s79, s75')
        a('s_mul_i32 s78, s78, 5120')
        a('s_mov_b32 m0, s78')
        a('s_add_u32 s73, s78, 4096')
        for i in range(5):
            if i == 4:
                a('s_mov_b32 m0, s73')
            a('s_waitcnt vmcnt(%d)', OPT['thrw'])
            a(dma(vWOA + i, R0, 79, 1024 * (i & 3)))
    a('s_add_u32 s83, s83, 1')
    a('s_cmp_eq_u32 s83, 5')
    a('s_cselect_b32 s83, 0, s83')
    a('s_sub_u32 s77, s77, 1')
    a('s_cmp_lg_u32 s77, 0')
    a('s_cbranch_scc1 L_woloop')
    for kp in range(5):
        a('s_lshl_b32 s73, s83, 7')
        a('s_add_u32 s%d, s72, s73', 4 + kp)
        a('s_lshl_b32 s%d, s83, 11', 12 + kp)
        a('s_add_u32 s83, s83, 1')
        a('s_cmp_eq_u32 s83, 5')
        a('s_cselect_b32 s83, 0, s83')

def s_mark(both):
    a('s_and_b32 s78, s%d, 1', sW)
    a('s_lshl1_add_u32 s78, s%d, s78', sQB)
    a('s_lshr_b32 s79, s%d, 1', sW)
    a('s_lshl1_add_u32 s78, s78, s79')
    a('s_mul_i32 s78, s78, %d', 4 * OBLK)
    a('s_lshr_b32 s79, s%d, 1', sHD)
    a('s_mul_i32 s79, s79, 1280')
    a('s_add_u32 s78, s78, s79')
    a('s_add_u32 s78, s78, 0x%x', WS_O)
    a('s_and_b32 s79, s%d, 1', sHD)
    a('s_mul_i32 s73, s79, 768')
    a('s_add_u32 s73, s73, s78')
    a('s_add_u32 s75, s73, %d', 2 * OBLK)
    a('s_lshl3_add_u32 s78, s79, s78')
    for k in range(2 if both else 1):
        if k:
            for r in (73, 75, 78):
                a('s_sub_u32 s%d, s%d, %d', r, r, 4 * OBLK)
        a('buffer_store_dwordx4 %s, v%d, s[%d:%d], s73 offen sc1', v(vOS + 2, 4), vOS, RWS, RWS + 3)
        a('buffer_store_dwordx4 %s, v%d, s[%d:%d], s75 offen sc1', v(vOS + 2, 4), vOS, RWS, RWS + 3)
        a('buffer_store_dwordx2 %s, v%d, s[%d:%d], s78 offen offset:512 sc1', v(vOS + 2, 2), vOS + 1, RWS, RWS + 3)

def s_scan():
    ROR = 'row_ror:8 row_mask:0xf bank_mask:0xf'
    a('s_setprio 1')
    a('s_lshl_b32 s70, s%d, 13', sG)
    a('s_add_u32 s70, s70, 0x%x', WS_E)
    a('s_add_u32 s70, s70, s%d', sWS)
    a('s_addc_u32 s71, s%d, 0', sWS + 1)
    srd(R5, 70, 8192)
    a('s_sub_u32 s70, 15, s%d', sRB)
    a('s_lshl_b32 s70, s70, 9')
    a('s_add_u32 s71, s70, 4096')
    tmp = 40
    for j in range(5):
        for k in range(8):
            a('v_mul_f32_dpp v%d, v%d, v%d %s', tmp + k, 8 * j + k, vPAR + 4 * j + 3, ROR)
        for k in range(8):
            a('v_fma_f32 v%d, v%d, v%d, v%d', 8 * j + k, vPAR + 4 * j + 2, 8 * j + k, tmp + k)
    e = [[8 * j for j in range(5)], [50 + j for j in range(5)], [56 + j for j in range(5)]]
    cur = e[0]
    for k in range(1, 8):
        nx = e[1 + (k & 1)]
        for j in range(5):
            a('v_fma_f32 v%d, v%d, v%d, v%d', nx[j], vPAR + 4 * j, cur[j], 8 * j + k)
        for j in range(5):
            a('v_fmac_f32_dpp v%d, v%d, v%d %s', nx[j], cur[j], vPAR + 4 * j + 1, ROR)
        cur = nx
    for j in range(5):
        a('ds_write_b32 v%d, v%d offset:%d', vE, cur[j], 64 * j)
    setpw(11, 104)
    for r in range(10 - OPT['tstart'], 0 if OPT['tlate'] else 6):
        a('s_waitcnt vmcnt(0)')
        for o in touch(r):
            a(o)
    stamp('S', 'pass1')
    def chain(dst, src, add):
        a('v_fma_f32 v%d, v%d, v%d, v%d', dst, vL, src, add)
        a('v_fma_f32 v%d, v%d, v%d, v%d', dst + 1, vL, src + 1, add + 1)
        a('v_fma_f32 v%d, -v%d, v%d, v%d', dst, vL + 1, src + 1, dst)
        a('v_fmac_f32 v%d, v%d, v%d', dst + 1, vL + 1, src)
    ES = 110
    a('s_cmp_eq_u32 s%d, 1', sW)
    a('s_cbranch_scc1 L_wave1')
    a('s_cmp_eq_u32 s%d, 0', sW)
    a('s_cbranch_scc0 L_wave23')
    waitpw(vSPW, 11, 105, sleep=1)
    a('s_mov_b32 exec_hi, 0xff')
    for sg in range(16):
        a('ds_read_b64 %s, v%d offset:%d', v(ES + 2 * sg, 2), vCHL, L_EL - L_H + 320 * sg)
    a('v_mov_b32 v142, 0')
    a('v_mov_b32 v143, 0')
    a('s_waitcnt lgkmcnt(0)')
    a('ds_write_b64 v%d, v[142:143] offset:%d', vCHL, L_PL - L_H)
    for sg in range(1, 16):
        a('ds_write_b64 v%d, %s offset:%d', vCHL, v(ES + 2 * sg - 2, 2), L_PL - L_H + 320 * sg)
        chain(ES + 2 * sg, ES + 2 * sg - 2, ES + 2 * sg)
    a('v_min_u32 v%d, -2, v%d', ES + 30, ES + 30)
    a('v_min_u32 v%d, -2, v%d', ES + 31, ES + 31)
    a('buffer_store_dwordx2 %s, v%d, s[%d:%d], s70 offen sc1', v(ES + 30, 2), vCH, R5, R5 + 3)
    a('s_mov_b32 exec_hi, -1')
    setpw(12, 104)
    a('s_branch L_coldone')
    a.label('L_wave1')
    a.label('L_hint')
    a('buffer_load_dword v105, v%d, s[%d:%d], s70 offen offset:512 sc1', vHINT, R5, R5 + 3)
    a('s_waitcnt vmcnt(0)')
    a('v_cmp_eq_u32 vcc, -1, v105')
    a('s_cbranch_vccz L_hintok')
    a('s_mov_b64 exec, vcc')
    a('s_sleep 3')
    a.label('L_hint2')
    a('s_sub_u32 s%d, s%d, 1', sSPIN, sSPIN)
    a('s_cbranch_scc0 L_hint')
    a('s_endpgm')
    a.label('L_hintok')
    a('s_mov_b32 exec_lo, -1')
    a('s_mov_b32 exec_hi, 0xff')
    for k in range(15, 0, -1):
        a('buffer_load_dwordx2 %s, v%d, s[%d:%d], s%d offen offset:%d sc1', v(ES + 2 * (15 - k), 2), vCH, R5, R5 + 3,
          71 if k >= 8 else 70, 512 * (k & 7))
    a('s_waitcnt vmcnt(0)')
    a('v_max_u32 v105, v%d, v%d', ES, ES + 1)
    for n in range(1, 15):
        a('v_max3_u32 v105, v105, v%d, v%d', ES + 2 * n, ES + 2 * n + 1)
    a('v_cmp_eq_u32 vcc, -1, v105')
    a('s_cbranch_vccnz L_hint2')
    for n in range(1, 15):
        chain(ES + 2 * n, ES + 2 * n - 2, ES + 2 * n)
    a('ds_write_b64 v%d, %s', vCHL, v(ES + 28, 2))
    a('s_mov_b32 exec_hi, -1')
    setpw(12, 104)
    a('s_branch L_coldone')
    a.label('L_wave23')
    if OPT['otag'] and not OPT['amark'] and OPT['smark']:
        if OPT['smark'] == 1:
            waitpw(vA0PW, 5, 105, sleep=2)
        s_mark(True)
    if OPT['woe']:
        E = OPT['woe']
        srd(R0, sWO, 640 * 1280)
        a('s_mul_i32 s75, s%d, 160', sOG)
        a('s_and_b32 s83, s%d, 3', sI)
        a('s_add_u32 s83, s83, s%d', sXCD)
        waitpw(vA0PW, 5, 105, sleep=2)
        for it in range(E):
            a('s_add_u32 s78, s83, %d', it)
            a('s_and_b32 s78, s78, %d', E - 1)
            a('s_lshl1_add_u32 s78, s78, s%d', sW)
            a('s_sub_u32 s78, s78, 2')
            a('s_mul_i32 s79, s78, 40960')
            a('s_add_u32 s79, s79, s75')
            a('s_mul_i32 s78, s78, 5120')
            a('s_mov_b32 m0, s78')
            for i in range(5):
                if i == 4:
                    a('s_add_u32 m0, s78, 4096')
                a('s_waitcnt vmcnt(%d)', OPT['thre'])
                a(dma(vWOA + i, R0, 79, 1024 * (i & 3)))
    if OPT['gtouch']:
        a('s_cmp_eq_u32 s%d, 2', sW)
        a('s_cbranch_scc0 L_coldone')
        a('v_min_u32 v106, %d, v%d', 24 * 128, vF3)
        a('s_mul_i32 s78, s2, 3200')
        a('v_add_u32 v106, s78, v106')
        if OPT['gtouch'] == 1:
            waitpw(vA0PW, 5, 105, sleep=2)
        for p in (sCRE, sCIM, sWO):
            a('global_load_dword v109, v106, s[%d:%d]', p, p + 1)
    if OPT['tearly']:
        waitpw(vA0PW, 5, 105, sleep=2)
    for r in range(OPT['tearly']):
        for o in touch(r, vCT):
            a(o)
        if r + 1 < OPT['tearly']:
            a('s_waitcnt vmcnt(0)')
    a.label('L_coldone')
    a('s_lshl2_add_u32 s70, s%d, s%d', sRB, sW)
    a('s_mul_i32 s71, s70, %d', 2 * HBLK)
    a('s_mul_i32 s78, s%d, 1280', sG)
    a('s_add_u32 s71, s71, s78')
    a('s_add_u32 s71, s71, 0x%x', WS_H)
    a('s_lshl4_add_u32 s70, s70, s%d', sG)
    flagaddr(70, 70, F3, 78)
    waitpw(vP01, 12, 105, sleep=4)
    stamp('S', 'carry')
    for j in range(5):
        a('ds_read_b32 v%d, v%d offset:%d', 50 + j, vE, L_PL - L_EL + 64 * j)
        a('ds_read_b32 v%d, v%d offset:%d', 56 + j, vHH, 64 * j)
    a('s_waitcnt lgkmcnt(0)')
    for j in range(5):
        a('v_fmac_f32 v%d, v%d, v%d', 50 + j, vZ + 2 * j, 56 + j)
    for j in range(5):
        a('v_fmac_f32_dpp v%d, v%d, v%d %s', 50 + j, 56 + j, vZ + 2 * j + 1, ROR)
    for k in range(8):
        pr = [50 + j if k == 0 else 8 * j + k - 1 for j in range(5)]
        for j in range(5):
            a('v_fmac_f32 v%d, v%d, v%d', 8 * j + k, vPAR + 4 * j, pr[j])
        for j in range(5):
            a('v_fmac_f32_dpp v%d, v%d, v%d %s', 8 * j + k, pr[j], vPAR + 4 * j + 1, ROR)
    for j in range(5):
        for q in range(4):
            a('v_cvt_pk_bf16_f32 v%d, v%d, v%d', 64 + 4 * j + q, 8 * j + 2 * q, 8 * j + 2 * q + 1)
        a('ds_write_b128 v%d, %s offset:%d', vHW, v(64 + 4 * j, 4), 1024 * j)
        a('ds_read_b64_tr_b16 %s, v%d offset:%d', v(110 + 4 * j, 2), vHR0, 1024 * j)
        a('ds_read_b64_tr_b16 %s, v%d offset:%d', v(110 + 4 * j + 2, 2), vHR1, 1024 * j + 256)
    for j in range(5):
        a('s_waitcnt lgkmcnt(%d)', 12 - 3 * j)
        a('buffer_store_dwordx4 %s, v%d, s[%d:%d], s71 offen offset:%d sc1', v(110 + 4 * j, 4), vHS, RWS, RWS + 3, 256 * j)
    setpw(13, 104)

def s_b3():
    NS = 4
    acc, HF, CF = 0, 80, [208, 216]
    a('s_cmp_ge_u32 s%d, 2', sW)
    a('s_cselect_b32 s78, s%d, s%d', sCIM, sCRE)
    a('s_cselect_b32 s79, s%d, s%d', sCIM + 1, sCRE + 1)
    srd(R1, 78, 640 * 1280)
    srd(R6, sOUT, 2048 * 1280 * 4)
    a('s_mul_i32 s74, s%d, %d', sW, REGSZ)
    a('s_add_u32 s74, s74, %d', L_REG)
    a('s_and_b32 s78, s%d, 1', sW)
    a('s_mul_i32 s72, s%d, %d', sOG, 80 * 1280)
    a('s_mul_i32 s73, s78, 640')
    a('s_add_u32 s72, s72, s73')
    a('s_mul_i32 s79, s%d, %d', sW, 40 * 256)
    a('s_add_u32 s79, s79, 0x%x', WS_H)
    a('s_lshr_b32 s80, s%d, 1', sW)
    a('s_lshl1_add_u32 s78, s78, s80')
    for l in range(4):
        a('s_xor_b32 s80, s78, %d', l)
        a('s_lshl2_add_u32 s80, s%d, s80', sTB)
        a('s_mul_i32 s80, s80, %d', HBLK)
        a('s_add_u32 s%d, s80, s79', 84 + l)
    a('s_lshl_b32 s88, s%d, 12', sTB)
    a('s_add_u32 s88, s88, 0x%x', F3)
    a('s_lshl2_add_u32 s78, s%d, s78', sTB)
    a('s_mul_i32 s80, s78, %d', 16 * 1280)
    a('s_mul_i32 s81, s%d, 160', sOG)
    a('s_add_u32 s80, s80, s81')
    a('s_mul_i32 s82, s78, %d', 16 * 5120)
    a('s_lshl1_add_u32 s82, s81, s82')
    a('s_add_u32 s82, s82, 2560')
    a('s_add_u32 s90, s%d, s81', sDSK)
    a('s_addc_u32 s91, s%d, 0', sDSK + 1)
    a('s_lshl2_add_u32 s89, s%d, s%d', sOG, sW)
    a('s_mul_i32 s89, s89, 5120')
    a('s_mul_i32 s79, s%d, %d', sTB, 4 * HBLK)
    a('s_add_u32 s89, s89, s79')
    a('s_add_u32 s89, s89, 0x%x', WS_H)
    a('s_waitcnt vmcnt(0)')
    setflag(70, 40)
    if OPT['otag'] and not OPT['amark'] and not OPT['smark']:
        s_mark(False)
    stamp('S', 'hpub')
    if OPT['tlate']:
        for k in range(4):
            a('s_mov_b32 s%d, s%d', 4 + k, 84 + k)
        for r in range(OPT['tearly'], 6):
            for o in touch(r):
                a(o)
            a('s_waitcnt vmcnt(0)')
        for k in range(4):
            a('s_mov_b32 s%d, s%d', 84 + k, 4 + k)
    if OPT['newpre']:
        def cdma(n, pace=None):
            kp, j = divmod(n, 5)
            a('s_add_u32 m0, s74, %d', 2048 * (n % NS))
            a('s_add_u32 s76, s%d, %d', 4 + kp, 16 * 1280 * j)
            for k in range(2):
                if pace is not None:
                    a('s_waitcnt vmcnt(%d)', pace)
                a(dma(vCA + k, R1, 76, 1024 * k))
        def hload(l, ks):
            return 's_add_u32 s9, s%d, s%d\nbuffer_load_dwordx4 %s, v%d, s[%d:%d], s9 offen offset:%d sc1' % (
                84 + l, 12 + ks // 2, v(HF + 16 * (ks % 8) + 4 * l, 4), vHA, RWS, RWS + 3, 1024 * (ks & 1))
        srd(R0, sWO, 640 * 1280)
        rot5(83, 73)
        for kp in range(5):
            a('s_lshl_b32 s73, s83, 7')
            a('s_add_u32 s%d, s72, s73', 4 + kp)
            a('s_lshl_b32 s%d, s83, 11', 12 + kp)
            a('s_lshl2_add_u32 s%d, s83, s%d', 17 + kp, sW)
            a('s_add_u32 s83, s83, 1')
            a('s_cmp_eq_u32 s83, 5')
            a('s_cselect_b32 s83, 0, s83')
        NIT = 5 - OPT['woe'] // 2
        if OPT['woe']:
            a('s_cmp_ge_u32 s83, %d', NIT)
            a('s_cselect_b32 s73, %d, 0', NIT)
            a('s_sub_u32 s83, s83, s73')
            if NIT == 4:
                a('s_add_u32 s83, s%d, s%d', sI, sXCD)
                a('s_and_b32 s83, s83, 3')
            for it in range(NIT):
                a('s_lshl2_add_u32 s%d, s83, s%d', 17 + it, sW)
                a('s_add_u32 s%d, s%d, %d', 17 + it, 17 + it, 2 * OPT['woe'])
                a('s_add_u32 s83, s83, 1')
                a('s_cmp_eq_u32 s83, %d', NIT)
                a('s_cselect_b32 s83, 0, s83')
        a('s_mul_i32 s75, s%d, 160', sOG)
        waitpw(vSPW, 13, 41, sleep=2)
        for n in range(NS):
            cdma(n, OPT['thrw'] + 1)
        pl = 'buffer_load_dword v41, v%d, s[%d:%d], s88 offen sc1' % (vF3, RWS, RWS + 3)
        for it in range(NIT):
            if it == OPT['f3at']:
                a('s_mov_b32 exec_hi, 0')
                a(pl)
                a('s_mov_b32 exec_hi, -1')
            a('s_mul_i32 s79, s%d, 40960', 17 + it)
            a('s_add_u32 s79, s79, s75')
            a('s_mul_i32 s78, s%d, 5120', 17 + it)
            a('s_mov_b32 m0, s78')
            for i in range(5):
                if i == 4:
                    a('s_add_u32 m0, s78, 4096')
                a('s_waitcnt vmcnt(%d)', OPT['thrw'] + (1 if it == NIT - 1 and OPT['hin'] else 0))
                a(dma(vWOA + i, R0, 79, 1024 * (i & 3)))
                if it == NIT - 1 and OPT['hin'] and i < 4:
                    a(hload(i, 0))
                    a(hload(i, 1))
            if it == OPT['f3at']:
                a('s_mov_b32 exec_hi, 0')
                a('s_waitcnt vmcnt(5)')
                a('v_cmp_eq_u32 vcc, 0, v41')
                a('s_cbranch_vccz L_f3seen')
                a('s_mov_b64 exec, vcc')
                pollflags([pl], 41, sleep=4)
                a.label('L_f3seen')
                a('s_mov_b64 exec, -1')
                stamp('S', 'f3')
                a('buffer_load_dword v41, v%d, s[%d:%d], s89 offen sc1', vHT, RWS, RWS + 3)
        stamp('S', 'wo')
        a('v_mov_b32 v42, 14')
        for ks in range(0 if OPT['hin'] else 2):
            for l in range(4):
                a('s_waitcnt vmcnt(%d)', OPT['thrw'] + 1)
                a(hload(l, ks))
        if OPT['hin']:
            a('s_waitcnt vmcnt(0)')
        a('ds_write_b32 v%d, v42', vPW)
        a('s_setprio %d', OPT['b3prio'])
    else:
        stamp('S', 'touch')
        s_wo()
        waitpw(vSPW, 13, 40, sleep=2)
        def cdma(n):
            kp, j = divmod(n, 5)
            a('s_add_u32 m0, s74, %d', 2048 * (n % NS))
            a('s_add_u32 s76, s%d, %d', 4 + kp, 16 * 1280 * j)
            a(dma(vCA, R1, 76, 0))
            a(dma(vCA + 1, R1, 76, 1024))
        for n in range(NS):
            cdma(n)
            a('s_waitcnt vmcnt(%d)', 0 if n == NS - 1 else 4)
        setpw(14, 40)
        stamp('S', 'wo')
        a('s_cmp_eq_u32 s%d, 2', sW)
        a('s_cbranch_scc0 L_f3wait')
        a('s_mov_b32 exec_hi, 0')
        pollflags(['buffer_load_dword v40, v%d, s[%d:%d], s88 offen sc1' % (vF3, RWS, RWS + 3)], 40, sleep=4)
        setpw(15, 40)
        a.label('L_f3wait')
        waitpw(vS2PW, 15, 40, sleep=4)
        stamp('S', 'f3')
        a('s_setprio %d', OPT['b3prio'])
        def hload(l, ks):
            return 's_add_u32 s9, s%d, s%d\nbuffer_load_dwordx4 %s, v%d, s[%d:%d], s9 offen offset:%d sc1' % (
                84 + l, 12 + ks // 2, v(HF + 16 * (ks % 8) + 4 * l, 4), vHA, RWS, RWS + 3, 1024 * (ks & 1))
        a('buffer_load_dword v40, v%d, s[%d:%d], s89 offen sc1', vHT, RWS, RWS + 3)
        for ks in range(2):
            if ks:
                a('s_waitcnt vmcnt(0)')
            for l in range(4):
                a(hload(l, ks))
    def creads(n):
        return ['ds_read_b128 %s, v%d offset:%d' % (v(CF[n & 1] + 4 * k, 4), vCR + k, 2048 * (n % NS)) for k in range(2)]
    q = []
    def waitfor(tag):
        idx = max(i for i, x in enumerate(q) if x == tag)
        n = len(q) - 1 - idx
        del q[:idx + 1]
        return n
    for r in creads(0):
        a(r)
    a('s_waitcnt vmcnt(0) lgkmcnt(0)')
    stamp('S', 'b3go')
    cdma(NS)
    q += [NS, NS]
    vX, vD = HF + 64, HF + 74
    hq = [(l, ks) for ks in range(2, 10) for l in range(4)]
    STOP = OPT['b3stop']
    frag = {0: CF[0]}
    free = [216, 224, 232, 240]
    def creads(n):
        return ['ds_read_b128 %s, v%d offset:%d' % (v(frag[n] + 4 * k, 4), vCR + k, 2048 * (n % NS)) for k in range(2)]
    def fetch():
        n = len(frag)
        frag[n] = free.pop(0)
        if n in q:
            a('s_waitcnt vmcnt(%d)', waitfor(n))
        for r in creads(n):
            a(r)
        return n
    def refill(n):
        a('s_waitcnt lgkmcnt(0)')
        if n + NS < 25:
            cdma(n + NS)
            q.extend([n + NS, n + NS])
    t0, t1, t2 = 175, 249, vAP4
    addr = ['v_lshrrev_b32 v%d, 2, v%d' % (t0, vLANE),
            'v_and_b32 v%d, 3, v%d' % (t1, vLANE),
            'v_lshlrev_b32 v%d, 3, v%d' % (vDO, t1),
            'v_mul_u32_u24 v%d, 1280, v%d' % (t2, t0),
            'v_add_u32 v%d, v%d, v%d' % (vXO, t2, vDO),
            'v_lshlrev_b32 v%d, 4, v%d' % (t1, t1),
            'v_lshl_add_u32 v%d, v%d, 2, v%d' % (vOA, t2, t1),
            'v_mul_u32_u24 v%d, 336, v%d' % (t2, t0),
            'v_add3_u32 v%d, v%d, v%d, s92' % (vRA, t2, t1),
            'v_add3_u32 v%d, v%d, v%d, s93' % (vRA + 1, t2, t1),
            'v_lshlrev_b32 v%d, 4, v%d' % (t1, t1),
            'v_lshl_add_u32 v%d, v%d, 2, v%d' % (t1, vLANE, t1),
            'v_add_u32 v%d, %d, v%d' % (vAP4, L_PW, t1),
            'v_add_u32 v%d, s74, v%d' % (vR1W, vHA),
            'v_add_u32 v%d, s92, v%d' % (vR1R, vHA),
            'v_and_b32 v%d, 15, v%d' % (t0, vLANE),
            'v_mul_u32_u24 v%d, 336, v%d' % (t0, t0),
            'v_and_b32 v%d, 48, v%d' % (t1, vLANE),
            'v_add3_u32 v%d, v%d, v%d, s92' % (vR2W, t0, t1),
            'v_xor_b32 v%d, 256, v%d' % (vPW1, vPW),
            'v_xor_b32 v%d, 512, v%d' % (vPW2, vPW)]
    assert 10 <= STOP <= 15
    for n in range(25):
        kp, j = divmod(n, 5)
        if n == 10:
            free += [HF + 32 + 8 * k for k in range(4)]
        if n == STOP:
            while hq:
                l, ks = hq.pop(0)
                a(hload(l, ks))
                q.append('h%d' % (ks // 2))
            while len(frag) <= 20:
                refill(fetch())
            a('s_setprio 1')
            a('v_and_b32 v%d, 1, v%d', vAM, vLANE)
            a('v_lshlrev_b32 v%d, 9, v%d', vAM, vAM)
            a('v_xor_b32 v%d, v%d, v%d', vAM, vAM, vPW)
            a('v_subrev_u32 v%d, 1024, v%d', vAM, vAM)
            a('s_waitcnt vmcnt(0)')
            del q[:]
            stamp('S', 'b3stop')
            waitpw(vAM, OPT['b3res'], 249, sleep=OPT['rsleep'])
            stamp('S', 'b3res')
        want = n + 2 if n >= STOP else max(n + 2, 21 - OPT['ahead'] * (STOP - 1 - n))
        f1 = fetch() if (len(frag) < min(25, want) and free) else None
        if j == 0 and 'h%d' % kp in q:
            a('s_waitcnt vmcnt(%d)', waitfor('h%d' % kp))
        if OPT['fine'] >= 2 and n in (3, 6, 9):
            stamp('S', 'u%d' % n)
        extra = []
        for _ in range(OPT['hrate']):
            if hq and (hq[0][1] < 8 or n >= 5):
                l, ks = hq.pop(0)
                extra.append((hload(l, ks), 'h%d' % (ks // 2)))
        if 16 <= n < 21:
            i = n - 16
            extra += [('global_load_dwordx2 %s, v%d, s[90:91] offset:%d' % (v(vD + 2 * i, 2), vDO, 32 * i), 'x'),
                      ('buffer_load_dwordx2 %s, v%d, s[%d:%d], s80 offen offset:%d' % (v(vX + 2 * i, 2), vXO, R3, R3 + 3, 32 * i), 'x')]
        cnt = 0
        f2 = None
        for k in range(2):
            ks = 2 * kp + k
            for l in range(4):
                d = acc + 20 * l + 4 * j
                a('v_mfma_f32_16x16x32_bf16 %s, %s, %s, %s', v(d, 4), v(frag[n] + 4 * k, 4), v(HF + 16 * (ks % 8) + 4 * l, 4),
                  '0' if ks == 0 else v(d, 4))
                cnt += 1
                if cnt in (1, 2, 5, 6) and extra:
                    o, tg = extra.pop(0)
                    a(o)
                    q.append(tg)
                elif n >= 15 and addr:
                    a(addr.pop(0))
                if cnt == (4 if n < STOP else 6) and f1 is not None:
                    refill(f1)
                    if len(frag) < min(21, want) and free:
                        f2 = fetch()
                if cnt == 8 and f2 is not None:
                    refill(f2)
        assert not extra
        free.append(frag[n])
    assert not addr
    assert not hq
    stamp('S', 'b3gemm')
    T = 112
    if OPT['b3res'] < 7:
        waitpw(vAM, 7, T, sleep=2)
    else:
        a('s_nop 3')
    for qd in range(10):
        a('ds_write_b128 v%d, %s offset:%d', vR1W, v(acc + 40 + 4 * qd, 4), 1024 * qd)
    setpw(17, T + 1)
    if OPT['fine'] == 2:
        stamp('S', 'w1')
    a('s_waitcnt vmcnt(0)')
    if OPT['fine'] == 2:
        stamp('S', 'xw')
    U = 180
    def skip(i):
        for hf in range(2):
            a('v_lshlrev_b32 v%d, 16, v%d', T + 4, vX + 2 * i + hf)
            a('v_lshlrev_b32 v%d, 16, v%d', T + 5, vD + 2 * i + hf)
            a('v_and_b32 v%d, 0xffff0000, v%d', T + 6, vX + 2 * i + hf)
            a('v_and_b32 v%d, 0xffff0000, v%d', T + 7, vD + 2 * i + hf)
            a('v_mul_f32 v%d, v%d, v%d', U + 4 * i + 2 * hf, T + 4, T + 5)
            a('v_mul_f32 v%d, v%d, v%d', U + 4 * i + 2 * hf + 1, T + 6, T + 7)
    skip(0)
    skip(1)
    if OPT['fine'] == 2:
        stamp('S', 'r1w')
    waitpw(vPW1, 17, T + 1)
    if OPT['fine'] == 2:
        stamp('S', 'r1s')
    for qd in (5, 6, 7, 8, 9, 0, 1, 2, 3, 4):
        a('ds_read_b128 %s, v%d offset:%d', v(acc + 40 + 4 * qd, 4), vR1R, 1024 * qd)
    skip(2)
    a('s_waitcnt lgkmcnt(0)')
    for qd in (5, 6, 7, 8, 9, 0, 1, 2, 3, 4):
        l, j = divmod(qd, 5)
        for e in range(4):
            a('v_add_f32 v%d, v%d, v%d', acc + 4 * qd + e, acc + 4 * qd + e, acc + 40 + 4 * qd + e)
        a('ds_write_b128 v%d, %s offset:%d', vR2W, v(acc + 4 * qd, 4), 16 * 336 * l + 64 * j)
        if qd == 9:
            setpw(18, T + 1)
    for i in range(5):
        a('ds_read_b128 %s, v%d offset:%d', v(acc + 40 + 8 * i, 4), vRA, 64 * i)
    skip(3)
    skip(4)
    if OPT['fine'] == 2:
        stamp('S', 'r2w')
    waitpw(vPW2, 18, T + 1)
    if OPT['fine'] == 2:
        stamp('S', 'r2s')
    for i in range(5):
        a('ds_read_b128 %s, v%d offset:%d', v(acc + 44 + 8 * i, 4), vRA + 1, 64 * i)
    for i in range(5):
        for e in range(4):
            a('v_add_f32 v%d, v%d, v%d', U + 4 * i + e, U + 4 * i + e, acc + 40 + 8 * i + e)
    for i in range(5):
        a('s_waitcnt lgkmcnt(%d)', 4 - i)
        for e in range(4):
            a('v_add_f32 v%d, v%d, v%d', U + 4 * i + e, U + 4 * i + e, acc + 44 + 8 * i + e)
    stamp('S', 'yrdy')
    if OPT['yhold']:
        waitpw(vAP4, 9, T + 1, sleep=OPT['ysleep'])
    for i in range(5):
        a('buffer_store_dwordx4 %s, v%d, s[%d:%d], s82 offen offset:%d%s', v(U + 4 * i, 4), vOA, R6, R6 + 3, 64 * i, YSC)
    finish('S')

prologue()
s_setup()
s_qloader()
if OPT['sexit'] == 1:
    setpw(99, 40)
    finish('S')
s_b1()
if OPT['sexit'] == 2:
    setpw(99, 40)
    finish('S')
s_scan()
s_b3()
a.label('L_exit')
a('s_endpgm')
flush_cold()
a_setup()
if OPT['alate'] != 1:
    a_b1_setup()
if not OPT['alate']:
    a_att_setup()
if OPT['aearly']:
    n0_ = len(a.lines)
    a_att_setup()
    del a.lines[n0_ + OPT['aearly']:]
a_qphase()
a_handoff()
a_attention()
a_outproj()
flush_cold()
a.label('L_codeend')

errs = check(a.lines)
for e_ in errs:
    print('HAZARD', e_, file=sys.stderr)

head = open('cdna_kernels/%s.s.ref' % NAME).read().split('; @launch')[0]
out = head + '; @launch grid=(256,1,1) block=(512,1,1) lds=%d\n' % LDS_BYTES
out += '''.amdgcn_target "amdgcn-amd-amdhsa--gfx950"
.text
.globl %s_kernel
.p2align 8
.type %s_kernel,@function
%s_kernel:
''' % (NAME, NAME, NAME)
body = a.text().replace('QSC', ['sc1', 'sc0 sc1', 'sc1 nt', 'sc0 sc1 nt'][OPT['qsc']])
foot = '''.section .rodata,"a"
.p2align 6
.amdhsa_kernel %s_kernel
  .amdhsa_next_free_vgpr 256
  .amdhsa_next_free_sgpr 102
  .amdhsa_accum_offset 256
  .amdhsa_group_segment_fixed_size 0
  .amdhsa_kernarg_size 120
  .amdhsa_user_sgpr_count 2
  .amdhsa_user_sgpr_kernarg_segment_ptr 1
  .amdhsa_system_sgpr_workgroup_id_x 1
.end_amdhsa_kernel
''' % NAME
import re, subprocess
def render(pads):
    def f(m):
        if not OPT['pgalign']:
            return ''
        return '.p2align 12\n.fill %d, 4, 0xbf810000' % (pads.get(m.group(1), 0) // 4)
    return out + re.sub(r'\.PAD (\w+) (\w+)', f, body) + foot
pads = {}
for _ in range(3 if OPT['pgalign'] else 0):
    open('pad.s', 'w').write(render(pads))
    subprocess.run(['clang', '-x', 'assembler', '-target', 'amdgcn-amd-amdhsa', '-mcpu=gfx950', '-c', 'pad.s', '-o', 'pad.o'], check=True)
    sym = {l.split()[-1]: int(l.split()[0], 16) for l in subprocess.run(['llvm-objdump', '-t', 'pad.o'], capture_output=True, text=True).stdout.splitlines() if ' L_' in l}
    for st_, tg_ in re.findall(r'\.PAD (\w+) (\w+)', body):
        d = (-(sym[tg_] - sym[st_])) % 4096
        pads[st_] = (d + 63) // 64 * 64 % 4096
open(sys.argv[1], 'w').write(render(pads))
if DIAG:
    import json
    json.dump(nstamp, open(sys.argv[1] + '.stamps.json', 'w'))
import subprocess
r_ = subprocess.run(['clang', '-x', 'assembler', '-target', 'amdgcn-amd-amdhsa', '-mcpu=gfx950', '-c', sys.argv[1], '-o', 'chk.o'], capture_output=True, text=True)
if r_.returncode:
    print(r_.stderr[:2000])
    sys.exit(1)
if errs:
    sys.exit(1)
```

```python
import sys, math, struct
from asmlib import Asm, v, s, check

NAME = 'concat_heads__mha_block__ssm_conv_s5__prompt'
OPT = dict(diag=0, b3start=12, force_fb=0, psleep=0, fine=0, cpre=1, stag=10, b1dep=2, rot=1, thr=4, hold=3, codepre=2, psleep4=0, padto=0, outsc1=1, gate4=-1, early0=1, st10=2, b1prio=0, probe='', probewg=-1, sexit=0, b3prio=0, nocdma=0, mallpre=0, b3early=1, pretouch=-1, pace=0, pause=1, wolate=1, thrw=2, kvsplit=5, tstart=0, k2split=0, gate1='x', tlate=0, spread=1, pollat=17, tearly=0, b3stop=12, b3res=8, hrate=2, yhold=1, rot5=1, wopack=0, olead=20, allpoll=1, ysc=1, clrwide=0, nodup=1, onewait=0, vzero=1, lalign=6, lpad=0, epoll=0, npre=2, tprio=0, pgate=1, p3dyn=0, flip=1, newpre=1, f3at=2, gtouch=3, pkmerge=1, kvplain=0, acq=0, stagb=4, alate=2, slate=0, plate=1, seq='', unroll=2, lean=1, yearly=0, ysleep=2, cmap=1, l2pre=2, xpre=0, hack16=0, fastpro=1, gsleep=0, rsleep=2, xtail=1, ctail=0, hin=1, ahead=9, woe=0, thre=2, tlb=0, qsc=0, otag=0, amark=0, smark=0, x8first=1, pgalign=1, aearly=0, adep=2, eb=0, s1late=1, rotm=7, nowait=0, hsplit=2, thrc=3, even=1, jout=0, fline=3, klin=3)
for a_ in sys.argv[2:]:
    k_, v_ = a_.split('=')
    OPT[k_] = v_ if k_ in ('probe', 'gate1', 'seq') else int(v_)
DIAG = OPT['diag']
OSC = ['', ' sc1', ' nt', ' sc1 nt'][OPT['outsc1']]
YSC = ['', ' sc1', ' nt', ' sc1 nt'][OPT['ysc']]

def f2u(x):
    return struct.unpack('<I', struct.pack('<f', x))[0]

BLK, VOFF, VROW = 247808, 164864, 10368
WS_H, HBLK = 0x800000, 40960
WS_O, OBLK = 0xD00000, 20480
WS_E = 0xF80000
WS_F = 0xFA0000
F1, F3, F4 = WS_F, WS_F + 0x8000, WS_F + 0x28000
WS_WP = 0x1000000
WS_END = WS_WP + 8 * 102400
WS_DIAG = 0x1100000
OOB = 0x7F000000
L_HT, L_H, L_EL, L_PL = 65536, 86016, 86528, 91648
L_PAR, L_Z = 131072, 132096
L_WO = 0
L_REG, REGSZ = 102400, 14848
L_PW = 161792
LDS_BYTES = 163840
sAX, sWQ, sWO, sBX, sLRE, sLIM, sBRE, sBIM, sCRE, sCIM, sLDT, sDSK, sOUT, sDBG, sWS = range(4, 34, 2)
sW, sI, sXCD = 34, 35, 3
R0, R1, RWS, R3, R4, R5, R6 = 36, 40, 44, 48, 52, 56, 60
sRB, sCG, sHD, sQB, sTB, sOG = 64, 65, 66, 67, 68, 69
sG = 97
sSPIN = 96
sHI = 94
vLANE, vPW, vTS = 254, 253, 255
SPIN_MAX = 1 << 19

a = Asm()
nstamp = {}

def stamp(role, name):
    if OPT['probe'] == role + name:
        a('s_memrealtime s[98:99]')
        a('s_waitcnt lgkmcnt(0)')
        a('s_mov_b32 s101, s98')
    if not DIAG:
        return
    l = nstamp.setdefault(role, [])
    if DIAG == 2:
        l.append(name)
        if role + name == 'Aattpro':
            a('s_memrealtime s[98:99]')
            a('s_waitcnt lgkmcnt(0)')
            a('v_writelane_b32 v%d, s98, 29', vTS)
        return
    idx = len(l)
    l.append(name)
    a('s_memtime s[98:99]')
    a('s_memrealtime s[100:101]')
    a('s_waitcnt lgkmcnt(0)')
    a('v_writelane_b32 v%d, s98, %d', vTS, idx)
    a('v_writelane_b32 v%d, s100, %d', vTS, 32 + idx)

def srd(r, base, nbytes):
    a('s_mov_b32 s%d, s%d', r, base)
    a('s_mov_b32 s%d, s%d', r + 1, base + 1)
    if isinstance(nbytes, int):
        a('s_mov_b32 s%d, 0x%x', r + 2, nbytes)
    else:
        a('s_mov_b32 s%d, %s', r + 2, nbytes)
    a('s_mov_b32 s%d, 0x20000', r + 3)

def setpw(val, tmp):
    a('v_mov_b32 v%d, %d', tmp, val)
    a('ds_write_b32 v%d, v%d', vPW, tmp)

COLD = []

def retry(label, back, sleep, pre=()):
    COLD.append(label + ':')
    COLD.extend(pre)
    if sleep:
        COLD.append('s_sleep %d' % sleep)
    COLD.append('s_sub_u32 s%d, s%d, 1' % (sSPIN, sSPIN))
    COLD.append('s_cbranch_scc0 %s' % back)
    COLD.append('s_endpgm')

def flush_cold():
    a.lines.extend(COLD)
    del COLD[:]

def waitpw(vaddr, val, tmp, sleep=0, extra=()):
    L = a.newlabel('pw')
    D = a.newlabel('pwr')
    a.label(L)
    a('ds_read_b32 v%d, v%d', tmp, vaddr)
    for e in extra:
        a(e)
    if not sleep:
        a('s_sub_u32 s%d, s%d, 1', sSPIN, sSPIN)
        a('s_cbranch_scc1 L_exit')
    a('s_waitcnt lgkmcnt(%d)', len(extra))
    a('v_cmp_gt_u32 vcc, %d, v%d', val, tmp)
    if not sleep:
        a('s_cbranch_vccnz %s', L)
        return
    a('s_cbranch_vccnz %s', D)
    retry(D, L, sleep)

def pollflags(loads, tmp, sleep=1):
    L = a.newlabel('pf')
    D = a.newlabel('pfr')
    a.label(L)
    for l in loads:
        a(l)
    if not sleep:
        a('s_sub_u32 s%d, s%d, 1', sSPIN, sSPIN)
        a('s_cbranch_scc1 L_exit')
    a('s_waitcnt vmcnt(0)')
    for i in range(1, len(loads)):
        a('v_and_b32 v%d, v%d, v%d', tmp, tmp, tmp + i)
    a('v_cmp_eq_u32 vcc, 0, v%d', tmp)
    if not sleep:
        a('s_and_b64 exec, exec, vcc')
        a('s_cbranch_scc1 %s', L)
    else:
        a('s_cbranch_vccnz %s', D)
        retry(D, L, sleep, ['s_mov_b64 exec, vcc'])
    a('s_mov_b64 exec, -1')

def dbgload(va, vd):
    return 'global_load_dword v%d, v%d, s[%d:%d] sc1' % (vd, va, sDBG, sDBG + 1)

def flagaddr(dst, idx, base, t):
    a('s_lshl_b32 s%d, s%d, 7', dst, idx)
    a('s_add_u32 s%d, s%d, 0x%x', dst, dst, base)

def setflag(soff, tmp):
    a('v_mov_b32 v%d, 1', tmp)
    a('s_mov_b64 exec, 1')
    a('buffer_store_dword v%d, off, s[%d:%d], s%d sc1', tmp, RWS, RWS + 3, soff)
    a('s_mov_b64 exec, -1')

def tau(dst, src, t):
    a('v_and_b32 v%d, 0x13, v%d', dst, src)
    a('v_and_b32 v%d, 4, v%d', t, src)
    a('v_lshl_or_b32 v%d, v%d, 1, v%d', dst, t, dst)
    a('v_and_b32 v%d, 8, v%d', t, src)
    a('v_lshrrev_b32 v%d, 1, v%d', t, t)
    a('v_or_b32 v%d, v%d, v%d', dst, t, dst)

def finish(role):
    if OPT['probe'][:1] == role:
        if OPT['probe'][1:] == 'drained':
            a('s_waitcnt vmcnt(0)')
            stamp(role, 'drained')
        a('s_sub_u32 s101, s101, s100')
        a('s_mul_i32 s101, s101, 10')
        a('s_add_u32 s101, s101, 10000')
        if OPT['probewg'] >= 0:
            a('s_and_b32 s98, s2, 31')
            a('s_cmp_eq_u32 s98, %d', OPT['probewg'])
            a('s_cselect_b32 s101, s101, 0')
        L = a.newlabel('pad')
        a.label(L)
        a('s_sleep 4')
        a('s_memrealtime s[98:99]')
        a('s_waitcnt lgkmcnt(0)')
        a('s_sub_u32 s98, s98, s100')
        a('s_cmp_lt_u32 s98, s101')
        a('s_cbranch_scc1 %s', L)
    if OPT['padto']:
        L = a.newlabel('pad')
        a.label(L)
        a('s_sleep 4')
        a('s_memrealtime s[98:99]')
        a('s_waitcnt lgkmcnt(0)')
        a('s_sub_u32 s98, s98, s100')
        a('s_cmp_lt_u32 s98, %d', OPT['padto'])
        a('s_cbranch_scc1 %s', L)
    if DIAG:
        stamp(role, 'end')
        a('s_waitcnt vmcnt(0)')
        stamp(role, 'drained')
        a('s_memrealtime s[98:99]')
        a('s_waitcnt lgkmcnt(0)')
        a('v_writelane_b32 v%d, s98, 31', vTS)
        a('s_lshl_b32 s70, s2, 3')
        a('s_add_u32 s70, s70, s%d', sW)
        if role == 'S':
            a('s_add_u32 s70, s70, 4')
        a('s_lshl_b32 s70, s70, 8')
        a('s_add_u32 s70, s70, 0x%x', WS_DIAG)
        a('v_lshlrev_b32 v0, 2, v%d', vLANE)
        a('buffer_store_dword v%d, v0, s[%d:%d], s70 offen', vTS, RWS, RWS + 3)
    a('s_endpgm')

def prologue():
    a('s_cmp_ge_u32 s2, 256')
    a('s_cbranch_scc0 L_go')
    a('s_endpgm')
    a.label('L_go')
    if OPT['padto'] or DIAG or OPT['probe']:
        a('s_memrealtime s[100:101]')
    a('s_load_dwordx16 s[4:19], s[0:1], 0')
    a('s_load_dwordx8 s[20:27], s[0:1], 64')
    a('s_load_dwordx4 s[28:31], s[0:1], 96')
    a('s_load_dwordx2 s[32:33], s[0:1], 112')
    a('s_lshr_b32 s%d, s2, 3', sI)
    if OPT['codepre'] == 2:
        a.c('pull the code into L2: every half wave of an XCD touches one line')
        a('s_getpc_b64 s[76:77]')
        a('v_lshrrev_b32 v1, 5, v0')
        a('v_lshl_add_u32 v1, s%d, 4, v1', sI)
        a('v_min_u32 v1, (L_codeend - L_go) / 128 - 1, v1')
        a('v_lshlrev_b32 v1, 7, v1')
        a('global_load_dword v110, v1, s[76:77]')
    a('v_lshrrev_b32 v1, 6, v0')
    a('v_and_b32 v%d, 63, v0', vLANE)
    a('v_readfirstlane_b32 s%d, v1', sW)
    a('s_and_b32 s%d, s2, 7', sXCD)
    a('s_and_b32 s70, s%d, 3', sI)
    a('s_lshr_b32 s%d, s%d, 2', sOG, sI)
    a('s_lshr_b32 s71, s%d, 1', sXCD)
    a('s_lshl2_add_u32 s%d, s71, s70', sRB)
    a('s_and_b32 s71, s%d, 1', sXCD)
    a('s_lshl3_add_u32 s%d, s71, s%d', sG, sOG)
    a('s_cmp_ge_u32 s%d, %d', sI, 30 if OPT['cmap'] else 99)
    a('s_cselect_b32 s71, 8, 0')
    a('s_xor_b32 s%d, s%d, s71', sCG, sG)
    if DIAG:
        prologue2()
    a('s_cmp_ge_u32 s%d, 4', sW)
    a('s_cbranch_scc0 L_roleA')

def prologue2():
    a('v_lshlrev_b32 v%d, 2, v0', vPW)
    a('v_add_u32 v%d, %d, v%d', vPW, L_PW, vPW)
    a('v_mov_b32 v0, 0')
    a('ds_write_b32 v%d, v0', vPW)
    a('s_lshr_b32 s71, s%d, 3', sI)
    a('s_lshl2_add_u32 s%d, s%d, s71', sHD, sXCD)
    a('s_and_b32 s%d, s%d, 7', sQB, sI)
    a('s_and_b32 s70, s%d, 3', sI)
    a('s_lshl2_add_u32 s%d, s%d, s70', sTB, sXCD)
    a('s_mov_b32 s%d, 0x%x', sSPIN, SPIN_MAX)
    a('s_mov_b32 s%d, 0', sHI)
    a('s_mov_b32 s%d, -1', sHI + 1)

def ws_setup():
    srd(RWS, sWS, WS_END if not DIAG else WS_DIAG + 0x100000)
    if DIAG:
        a('v_mov_b32 v%d, 0', vTS)
        a('v_writelane_b32 v%d, s100, 30', vTS)

def stagger(k, t, add, flp, mode):
    if mode == 4:
        a('s_and_b32 s%d, s%d, 3', k, sI)
        if flp:
            a('s_xor_b32 s%d, s%d, 1', k, k)
        a('s_mul_i32 s%d, s%d, 5', k, k)
        a('s_lshr_b32 s%d, s%d, 1', k, k)
        a('s_mul_i32 s%d, s%d, 5', t, sOG)
        a('s_lshr_b32 s%d, s%d, 2', t, t)
        a('s_add_u32 s%d, s%d, s%d', k, k, t)
    elif mode in (2, 3):
        a('s_add_u32 s%d, s%d, s%d', k, sI, sOG)
        if flp:
            a('s_xor_b32 s%d, s%d, 1', k, k)
        a('s_and_b32 s%d, s%d, %d', k, k, 1 if mode == 2 else 3)
        a('s_mul_i32 s%d, s%d, 5', k, k)
        if mode == 3:
            a('s_lshr_b32 s%d, s%d, 1', k, k)
    else:
        a('s_mov_b32 s%d, 0', k)
    if mode == 0:
        a('s_mov_b32 s%d, %d', k, add)
        return
    a('s_add_u32 s%d, s%d, %d', t, sXCD, 1 + 2 * add)
    a('s_lshr_b32 s%d, s%d, 1', t, t)
    if mode == 1:
        a('s_add_u32 s%d, s%d, %d', t, sXCD, add)
    a('s_add_u32 s%d, s%d, s%d', k, k, t)
    for _ in range(2 if add else 1):
        a('s_cmp_ge_u32 s%d, 10', k)
        a('s_cselect_b32 s%d, 10, 0', t)
        a('s_sub_u32 s%d, s%d, s%d', k, k, t)

def b1_sources(rx, rb, vx, vb, sm, sb, t, j0=2):
    srd(rx, sBX, 2048 * 1280)
    a('s_cmp_ge_u32 s%d, 2', sW)
    a('s_cselect_b32 s%d, s%d, s%d', t, sBIM, sBRE)
    a('s_cselect_b32 s%d, s%d, s%d', t + 1, sBIM + 1, sBRE + 1)
    srd(rb, t, 640 * 1280)
    a('v_lshrrev_b32 v1, 3, v%d', vLANE)
    a('v_and_b32 v2, 7, v%d', vLANE)
    a('v_lshrrev_b32 v3, 4, v%d', vLANE)
    a('v_xor_b32 v4, v2, v3')
    a('v_and_b32 v5, 3, v1')
    a('v_lshrrev_b32 v6, 2, v1')
    a('v_lshl_add_u32 v5, v6, 3, v5')
    a('v_mul_u32_u24 v5, 1280, v5')
    a('v_lshl_add_u32 v%d, v4, 4, v5', vx)
    a('v_xor_b32 v6, 64, v%d', vx)
    a('v_add_u32 v%d, %d, v6', vx + 1, 16 * 1280 - 1024)
    a('v_add_u32 v%d, %d, v%d', vx + 2, 4 * 1280 - 2048, vx)
    a('v_add_u32 v%d, %d, v6', vx + 3, 20 * 1280 - 3072)
    a('s_lshr_b32 s%d, s%d, 1', t, sW)
    a('s_lshl_b32 s%d, s%d, 6', t + 1, t)
    a('v_mul_u32_u24 v5, 1280, v1')
    a('v_lshl_add_u32 v5, v4, 4, v5')
    a('v_xor_b32 v%d, s%d, v5', vb, t + 1)
    for i in range(1, 3):
        a('v_add_u32 v%d, %d, v%d', vb + i, (10240 - 1024) * i, vb)
    a('s_and_b32 s%d, s%d, 1', t + 1, sW)
    a('s_mul_i32 s%d, s%d, 5120', sm, t)
    a('s_mul_i32 s%d, s%d, %d', sb, t + 1, 1024 * j0)
    a('s_add_u32 s%d, s%d, s%d', sm, sm, sb)
    a('s_mul_i32 s%d, s%d, %d', sb, sG, 40 * 1280)
    a('s_mul_i32 s%d, s%d, %d', t + 1, t + 1, 8 * 1280 * j0)
    a('s_add_u32 s%d, s%d, s%d', sb, sb, t + 1)

def dma(voff, r, soff, imm):
    return 'buffer_load_dwordx4 v%d, s[%d:%d], s%d offen offset:%d lds' % (voff, r, r + 3, soff, imm)

def a_b1stage(t):
    slot = ((t + 1) % 4) * 32768
    a('s_add_u32 m0, s6, %d', slot)
    a('s_lshl_b32 s9, s8, 7')
    a('s_add_u32 s12, s4, s9')
    for i in range(4):
        a(dma(112 + i, R5, 12, 1024 * i))
    a('s_add_u32 m0, s7, %d', slot + 16384)
    a('s_add_u32 s12, s5, s9')
    L = a.newlabel('b3rd')
    for i in range(3):
        if i == 2 and OPT['nodup']:
            a('s_cmp_eq_u32 s%d, 1', sCW)
            a('s_cbranch_scc1 %s', L)
        a(dma(116 + i, R6, 12, 1024 * i))
    a.label(L)
    a('s_add_u32 s8, s8, 1')
    a('s_cmp_eq_u32 s8, 10')
    a('s_cselect_b32 s8, 0, s8')

sTW, sCW = 72, 73
vXA, vWA = 96, 104
vF1A = 252
vAPW = 249

def a_setup():
    a('.PAD L_roleA L_pgQ')
    a.label('L_roleA')
    if not DIAG:
        prologue2()
    a('s_waitcnt lgkmcnt(0)')
    ws_setup()
    stamp('A', 'start')
    a('s_lshr_b32 s%d, s%d, 1', sTW, sW)
    a('s_and_b32 s%d, s%d, 1', sCW, sW)
    a('s_lshl1_add_u32 s75, s%d, s%d', sRB, sTW)
    a('s_mul_i32 s74, s75, %d', BLK)
    if OPT['amark'] == 1:
        a_mark()
    a.c('column group 15 has no GEMM tile: these workgroups clear the flags and write the constant blocks')
    a('s_cmp_eq_u32 s%d, 15', sCG)
    a('s_cbranch_scc0 L_noconst')
    a('s_lshl2_add_u32 s77, s%d, s%d', sRB, sW)
    if OPT['clrwide']:
        a('v_lshlrev_b32 v2, 4, v%d', vLANE)
        a('v_min_u32 v3, 496, v2')
        for i in range(4):
            a('v_mov_b32 v%d, 0', 4 + i)
        a('s_mul_i32 s76, s77, 4608')
        a('s_add_u32 s76, s76, 0x%x', WS_F)
        for i in range(4):
            a('buffer_store_dwordx4 v[4:7], v2, s[%d:%d], s76 offen offset:%d sc1', RWS, RWS + 3, 1024 * i)
        a('s_add_u32 s76, s76, 4096')
        a('buffer_store_dwordx4 v[4:7], v3, s[%d:%d], s76 offen sc1', RWS, RWS + 3)
    else:
        a('v_min_u32 v1, 35, v%d', vLANE)
        a('v_lshlrev_b32 v1, 7, v1')
        a('v_mov_b32 v4, 0')
        a('s_mul_i32 s76, s77, 4608')
        a('s_add_u32 s76, s76, 0x%x', WS_F)
        a('buffer_store_dword v4, v1, s[%d:%d], s76 offen sc1', RWS, RWS + 3)
        a('v_lshlrev_b32 v2, 4, v%d', vLANE)
    for i in range(4):
        a('v_mov_b32 v%d, -1', 20 + i)
    a('s_lshl_b32 s76, s77, 11')
    a('s_add_u32 s76, s76, 0x%x', WS_E)
    for i in range(2):
        a('buffer_store_dwordx4 v[20:23], v2, s[%d:%d], s76 offen offset:%d sc1', RWS, RWS + 3, 1024 * i)
    a('v_lshrrev_b32 v1, 3, v%d', vLANE)
    a('v_mul_u32_u24 v1, %d, v1', VROW - 128)
    a('v_add_u32 v1, %d, v1', VOFF + 640 * 16 - 160 * 1024)
    a('v_mul_lo_u32 v1, v1, s%d', sCW)
    a('v_add_u32 v1, v1, v2')
    a('s_mul_i32 s76, s%d, 0x3f803f80', sCW)
    a('v_mov_b32 v8, 0x3f803f80')
    a('v_mov_b32 v9, s76')
    a('v_mov_b32 v10, v8')
    a('v_mov_b32 v11, s76')
    a('s_add_u32 s76, s74, %d', 160 * 1024)
    a('buffer_store_dwordx4 v[8:11], v1, s[%d:%d], s76 offen sc1', RWS, RWS + 3)
    a.label('L_noconst')
    if OPT['codepre'] == 1:
        a.c('pull the code into L2: each wave of an XCD touches a few lines')
        a('s_getpc_b64 s[76:77]')
        a.label('L_pc')
        a('s_sub_u32 s76, s76, L_pc - L_go')
        a('s_subb_u32 s77, s77, 0')
        a('s_lshl2_add_u32 s78, s%d, s%d', sI, sW)
        a('s_mul_i32 s78, s78, 3')
        a('v_min_u32 v1, 2, v%d', vLANE)
        a('v_add_u32 v1, s78, v1')
        a('v_min_u32 v1, (L_codeend - L_go) / 128 - 1, v1')
        a('v_lshlrev_b32 v1, 7, v1')
        a('global_load_dword v110, v1, s[76:77]')
    a.c('LDS fragment addresses for the QKV GEMM')
    a('v_and_b32 v1, 31, v%d', vLANE)
    a('v_lshrrev_b32 v2, 5, v%d', vLANE)
    a('v_bfe_u32 v3, v1, 1, 3')
    a('v_xor_b32 v3, v3, v2')
    a('v_lshlrev_b32 v3, 4, v3')
    a('v_lshl_add_u32 v3, v1, 7, v3')
    a('s_lshl_b32 s76, s%d, 13', sTW)
    a('v_add_u32 v3, s76, v3')
    for ks in range(4):
        a('v_xor_b32 v%d, %d, v3', vXA + ks, ks << 5)
        a('v_add_u32 v%d, 0x10000, v%d', vXA + 4 + ks, vXA + ks)
    a('v_bfe_u32 v4, v%d, 2, 2', vLANE)
    a('v_lshl_add_u32 v5, v2, 3, v4')
    a('v_lshlrev_b32 v5, 8, v5')
    a('v_bfe_u32 v6, v%d, 4, 1', vLANE)
    a('v_and_b32 v7, 1, v%d', vLANE)
    a('v_lshl_add_u32 v6, v6, 1, v7')
    a('s_lshl_b32 s76, s%d, 3', sCW)
    a('v_add_u32 v6, s76, v6')
    a('v_lshlrev_b32 v4, 2, v4')
    a('v_xor_b32 v6, v6, v4')
    a('v_lshl_add_u32 v5, v6, 4, v5')
    a('v_bfe_u32 v7, v%d, 1, 1', vLANE)
    a('v_lshl_add_u32 v5, v7, 3, v5')
    a('v_add_u32 v%d, 16384, v5', vWA)
    a('v_xor_b32 v%d, 64, v%d', vWA + 1, vWA)
    a('v_add_u32 v%d, 0x10000, v%d', vWA + 2, vWA)
    a('v_add_u32 v%d, 0x10000, v%d', vWA + 3, vWA + 1)

def a_qloop(vt):
    F = [64, 80]
    def reads(st, ks, f):
        slot = (st + 1) % 4
        hi, lo = slot >> 1, (slot & 1) * 32768
        r = []
        for T in range(2):
            r.append('ds_read_b128 %s, v%d offset:%d' % (v(f + 4 * T, 4), vXA + 4 * hi + ks, lo + 4096 * T))
        for Tc in range(2):
            for rd in range(2):
                r.append('ds_read_b64_tr_b16 %s, v%d offset:%d' % (v(f + 8 + 4 * Tc + 2 * rd, 2), vWA + 2 * hi + Tc,
                                                                  lo + (16 * ks + 4 * rd) * 256))
        return [r[0], r[2], r[3], r[1], r[4], r[5]]
    def mfma(f, i, j, first):
        acc = (2 * i + j) * 16
        A = f + 4 * i if vt else f + 8 + 4 * i
        B = f + 8 + 4 * j if vt else f + 4 * j
        if OPT['hack16']:
            o = 8 if f == F[1] else 0
            B2 = f + 8 + 4 * (1 - j) if vt else f + 4 * (1 - j)
            return 'v_mfma_f32_16x16x32_bf16 %s, %s, %s, %s\nv_mfma_f32_16x16x32_bf16 %s, %s, %s, %s' % (
                v(acc + o, 4), v(A, 4), v(B, 4), v(acc + o, 4), v(acc + o + 4, 4), v(A, 4), v(B2, 4), v(acc + o + 4, 4))
        return 'v_mfma_f32_32x32x16_bf16 %s, %s, %s, %s' % (v(acc, 16), v(A, 4), v(B, 4), '0' if first else v(acc, 16))
    if OPT['hack16']:
        for i_ in range(64):
            a('v_mov_b32 v%d, 0', i_)
    a('s_barrier')
    for r in reads(0, 0, F[0]):
        a(r)
    for st in range(10):
        for ks in range(4):
            cur, nxt = F[ks & 1], F[(ks + 1) & 1]
            first = st == 0 and ks == 0
            if st == 0 and ks == 3:
                a.label('L_pgV' if vt else 'L_pgQ')
            a('s_waitcnt lgkmcnt(0)')
            if ks == 3:
                a('s_barrier')
                rr = reads(st + 1, 0, nxt) if st < 9 else []
            else:
                rr = reads(st, ks + 1, nxt)
            if st == 9 and ks == 3:
                a(mfma(cur, 0, 0, False))
                a(mfma(cur, 0, 1, False))
                return [mfma(nxt, 1, 1, False), mfma(cur, 1, 0, False), mfma(cur, 1, 1, False)]
            a(mfma(cur, 0, 0, first))
            for r in rr[:3]:
                a(r)
            a(mfma(cur, 0, 1, first))
            for r in rr[3:]:
                a(r)
            a(mfma(cur, 1, 0, first))
            if not (st == 9 and ks == 2):
                a(mfma(cur, 1, 1, first))

def tailweave(ms, work):
    a(ms[0])
    a('s_nop 6')
    a(ms[1])
    a('s_nop 1')
    for o in work[:6]:
        a(o)
    a(ms[2])
    for o in work[6:]:
        a(o)

def a_pack_wo():
    a('s_lshl2_add_u32 s76, s%d, s%d', sRB, sW)
    a('s_mul_i32 s77, s76, 12800')
    a('s_add_u32 s78, s14, s77')
    a('s_addc_u32 s79, s15, 0')
    a('s_mul_i32 s76, s76, 10')
    a('s_mov_b32 s80, 0x%x', WS_WP)
    for n in range(13):
        a('v_add_u32 v60, %d, v%d', 64 * n, vLANE)
        if n == 12:
            a('v_min_u32 v60, 799, v60')
        a('v_lshlrev_b32 v61, 4, v60')
        a('global_load_dwordx4 %s, v61, s[78:79]', v(4 * n, 4))
        a('v_mul_u32_u24 v61, 820, v60')
        a('v_lshrrev_b32 v61, 16, v61')
        a('v_mul_u32_u24 v62, 80, v61')
        a('v_sub_u32 v60, v60, v62')
        a('v_add_u32 v61, s76, v61')
        a('v_mul_u32_u24 v62, 6554, v60')
        a('v_lshrrev_b32 v62, 16, v62')
        a('v_mul_u32_u24 v62, %d, v62', 6400 - 10)
        a('v_add_u32 v60, v60, v62')
        a('v_and_b32 v62, 0xfff3, v61')
        a('v_and_b32 v63, 4, v61')
        a('v_lshl_or_b32 v62, v63, 1, v62')
        a('v_bfe_u32 v63, v61, 3, 1')
        a('v_lshl_or_b32 v62, v63, 2, v62')
        a('v_mul_u32_u24 v62, 10, v62')
        a('v_add_lshl_u32 v%d, v60, v62, 4', 64 + n)
    for n in range(13):
        a('s_waitcnt vmcnt(12)')
        a('buffer_store_dwordx4 %s, v%d, s[%d:%d], s80 offen sc1', v(4 * n, 4), 64 + n, RWS, RWS + 3)
    if OPT['wopack'] > 1:
        a('v_min_u32 v60, 49, v%d', vLANE)
        a('v_lshl_add_u32 v60, v60, 7, s77')
        a('v_add_u32 v61, 6400, v60')
        for p in (sCRE, sCIM):
            a('global_load_dword v111, v60, s[%d:%d]', p, p + 1)
            a('global_load_dword v111, v61, s[%d:%d]', p, p + 1)

def a_qphase():
    a('s_cmp_ge_u32 s%d, 10', sCG)
    a('s_cbranch_scc1 L_qV')
    a('v_and_b32 v1, 31, v%d', vLANE)
    a('v_lshrrev_b32 v2, 5, v%d', vLANE)
    a('v_lshlrev_b32 v1, 4, v1')
    a('v_lshl_add_u32 v108, v2, 10, v1')
    a('s_lshl1_add_u32 s76, s%d, s%d', sCG, sCW)
    a('s_lshl_b32 s77, s76, 13')
    a('s_add_u32 s77, s77, s74')
    a('s_add_u32 s78, s77, 4096')
    a('s_mul_i32 s79, s%d, 3', sCW)
    a('s_add_u32 s79, s79, s%d', sCG)
    for _ in range(2):
        a('s_cmp_ge_u32 s79, 5')
        a('s_cselect_b32 s80, 5, 0')
        a('s_sub_u32 s79, s79, s80')
    for Tc in range(2):
        for u in range(2):
            m = 20 + 2 * (2 * Tc + u)
            a('s_cmp_eq_u32 s79, %d', (2 - 4 * Tc - 2 * u) % 5)
            a('s_cselect_b32 s%d, -1, 0', m)
            a('s_cmp_eq_u32 s79, %d', (1 - 4 * Tc - 2 * u) % 5)
            a('s_cselect_b32 s%d, -1, 0', m + 1)
    c0 = f2u(math.log2(math.e) / math.sqrt(20.0))
    a('s_mov_b32 s80, 0x%x', c0)
    ms = a_qloop(False)
    def group(Tc, u, scale):
        o = []
        P = 120 + 8 * (2 * Tc + u)
        for T in range(2):
            acc = (2 * Tc + T) * 16 + 8 * u
            if scale:
                o += ['v_mul_f32 v%d, s80, v%d' % (acc + e, acc + e) for e in range(8)]
            o += ['v_cvt_pk_bf16_f32 v%d, v%d, v%d' % (P + 4 * T + q, acc + 2 * q, acc + 2 * q + 1) for q in range(4)]
        m = 20 + 2 * (2 * Tc + u)
        o.append('s_mov_b64 exec, s[%d:%d]\nv_swap_b32 v%d, v%d\nv_swap_b32 v%d, v%d\ns_mov_b64 exec, -1' % (m, m + 1, P + 2, P + 4, P + 3, P + 5))
        for T in range(2):
            o.append('buffer_store_dwordx4 %s, v108, s[%d:%d], s%d offen offset:%d QSC' % (v(P + 4 * T, 4), RWS, RWS + 3,
                     77 + Tc, 2048 * u + 512 * T))
        return o
    a('s_cmp_ge_u32 s%d, 5', sCG)
    a('s_cbranch_scc1 L_noscale')
    tailweave(ms, group(0, 0, True) + group(0, 1, True))
    a('s_mov_b32 s81, s80')
    for i in range(32, 64, 2):
        a('v_pk_mul_f32 %s, %s, s[80:81]', v(i, 2), v(i, 2))
    a('s_branch L_qk2')
    a.label('L_noscale')
    tailweave(ms, group(0, 0, False) + group(0, 1, False))
    a.label('L_qk2')
    for o in group(1, 0, False) + group(1, 1, False):
        a(o)
    stamp('A', 'qloop')
    a('s_branch L_qdone')
    a('.PAD L_qV L_pgV')
    a.label('L_qV')
    a('s_cmp_eq_u32 s%d, 15', sCG)
    a('s_cbranch_scc0 L_qV2')
    a('s_lshl_b32 s76, s%d, 4', sRB)
    a('v_mov_b32 v16, s76')
    a('v_mov_b32 v17, 1')
    a('s_waitcnt vmcnt(0)')
    a('s_barrier')
    a('s_cmp_eq_u32 s%d, 0', sW)
    a('s_cbranch_scc0 L_nosig')
    a('s_mov_b64 exec, 1')
    a('global_store_dword v16, v17, s[%d:%d] sc1', sDBG, sDBG + 1)
    a('s_mov_b64 exec, -1')
    a.label('L_nosig')
    if OPT['tlb']:
        a('v_lshlrev_b32 v1, %d, v%d', OPT['tlb'], vLANE)
        a('s_lshl_b32 s76, s%d, %d', sW, OPT['tlb'] + 6)
        srd(R4, sOUT, 2048 * 1280 * 4)
        a('buffer_load_dword v111, v1, s[%d:%d], s76 offen sc1', RWS, RWS + 3)
        a('buffer_load_dword v111, v1, s[%d:%d], s76 offen sc1', R4, R4 + 3)
        a('v_min_u32 v1, 12, v%d', vLANE)
        a('v_lshlrev_b32 v1, 16, v1')
        a('v_mov_b32 v2, 0')
        for p in (14, sCRE, sCIM):
            a('global_load_dword v111, v1, s[%d:%d]', p, p + 1)
        a('global_load_dword v111, v2, s[%d:%d]', sDSK, sDSK + 1)
    if OPT['l2pre']:
        a('s_barrier')
        a('s_and_b32 s76, s%d, 1', sI)
        a('s_lshl1_add_u32 s76, s76, s%d', sCW)
        a('s_and_b32 s77, s%d, 1', sXCD)
        a('s_lshl2_add_u32 s76, s77, s76')
        a('s_mul_i32 s76, s76, %d', 80 * 1280)
        a('v_min_u32 v1, 39, v%d', vLANE)
        a('v_mul_u32_u24 v1, 1280, v1')
        a('v_add_u32 v2, %d, v1', 40 * 1280)
        for hf in range(2):
            a('s_and_b32 s77, s%d, 1', sI)
            a('s_lshl1_add_u32 s77, s77, s%d', sCW)
            a('s_lshl1_add_u32 s77, s77, %d', hf)
            a('s_mul_i32 s77, s77, 5')
            a('s_lshr_b32 s77, s77, 2')
            a('s_add_u32 s78, s%d, 1', sXCD)
            a('s_lshr_b32 s78, s78, 1')
            a('s_add_u32 s%d, s77, s78', 80 + hf)
        for d in (4, 9, 1, 6, 3, 8)[:OPT['l2pre']]:
            for hf in range(2):
                a('s_add_u32 s77, s%d, %d', 80 + hf, d)
                for _ in range(2):
                    a('s_cmp_ge_u32 s77, 10')
                    a('s_cselect_b32 s78, 10, 0')
                    a('s_sub_u32 s77, s77, s78')
                a('s_lshl_b32 s77, s77, 7')
                a('s_add_u32 s77, s77, s76')
                a('buffer_load_dword v111, v%d, s[%d:%d], s77 offen', 1 + hf, R6, R6 + 3)
    if OPT['xpre']:
        a('s_and_b32 s76, s%d, 1', sI)
        a('s_lshl1_add_u32 s76, s76, s%d', sTW)
        a('s_xor_b32 s77, s76, %d', OPT['flip'])
        a('s_mul_i32 s77, s77, 5')
        a('s_lshr_b32 s77, s77, 1')
        a('s_add_u32 s78, s%d, 9', sXCD)
        a('s_lshr_b32 s78, s78, 1')
        a('s_add_u32 s77, s77, s78')
        a('s_mul_i32 s78, s%d, 5', sCW)
        a('s_add_u32 s77, s77, s78')
        for _ in range(2):
            a('s_cmp_ge_u32 s77, 10')
            a('s_cselect_b32 s78, 10, 0')
            a('s_sub_u32 s77, s77, s78')
        a('s_lshl_b32 s77, s77, 7')
        a('s_and_b32 s78, s%d, -4', sRB)
        a('s_add_u32 s76, s76, s78')
        a('s_mul_i32 s76, s76, %d', 128 * 1280)
        a('s_add_u32 s77, s77, s76')
        a('v_mul_u32_u24 v3, 1280, v%d', vLANE)
        a('buffer_load_dword v111, v3, s[%d:%d], s77 offen', R5, R5 + 3)
        a('s_add_u32 s77, s77, %d', 64 * 1280)
        a('buffer_load_dword v111, v3, s[%d:%d], s77 offen', R5, R5 + 3)
    if OPT['wopack']:
        a_pack_wo()
    for _ in range(9 if OPT['l2pre'] else 10):
        a('s_barrier')
    if DIAG:
        nstamp['A'].pop()
    stamp('A', 'qloop')
    a('s_branch L_qdone')
    a.label('L_qV2')
    a('s_lshl1_add_u32 s76, s%d, s%d', sCG, sCW)
    a('v_and_b32 v1, 31, v%d', vLANE)
    tau(108, 1, 2)
    if OPT['klin']:
        a('v_xor_b32 v3, v108, v1')
        a('v_mul_u32_u24 v3, 136, v3')
        for k in range(8):
            a('v_xor_b32 v%d, v3, v%d', vXA + k, vXA + k)
    if OPT['klin'] & 2:
        a('v_bfe_u32 v3, v%d, 1, 1', vLANE)
        a('v_xor_b32 v3, v3, v%d', vLANE)
        a('v_and_b32 v3, 1, v3')
        a('v_mul_u32_u24 v3, 24, v3')
        for k in range(4):
            a('v_xor_b32 v%d, v3, v%d', vWA + k, vWA + k)
        a('v_mov_b32 v108, v1')
    a('v_lshrrev_b32 v2, 5, v%d', vLANE)
    a('v_mul_u32_u24 v2, %d, v2', VROW)
    a('v_lshl_add_u32 v108, v108, 4, v2')
    a('s_sub_u32 s76, s76, 20')
    a('s_lshl_b32 s76, s76, 10')
    a('s_add_u32 s76, s76, s74')
    a('s_add_u32 s76, s76, %d', VOFF)
    for k in range(1, 4):
        a('s_add_u32 s%d, s76, %d', 76 + k, 2 * VROW * k)
    ms = a_qloop(True)
    work = []
    n = 0
    for T in range(2):
        for Tc in range(2):
            for m in range(2):
                P = 120 + 4 * n
                n += 1
                acc = (2 * T + Tc) * 16 + 8 * m
                work += ['v_cvt_pk_bf16_f32 v%d, v%d, v%d' % (P + q, acc + 2 * q, acc + 2 * q + 1) for q in range(4)]
                work.append('buffer_store_dwordx4 %s, v108, s[%d:%d], s%d offen offset:%d QSC' % (v(P, 4), RWS, RWS + 3, 76 + 2 * T + m, 512 * Tc))
    tailweave(ms, work)
    if DIAG:
        nstamp['A'].pop()
    stamp('A', 'qloop')
    if OPT['pgalign']:
        a('s_branch L_qdone')
    a('.PAD L_qdone L_pgO')
    a.label('L_qdone')
    if OPT['amark'] == 2:
        a_mark()

vO, vS = 0, 64
KV = [128, 156]
K1A, K1B, K2, VA0, VA1, VB0, VB1 = 0, 4, 8, 12, 16, 20, 24
vQ1, vQ2 = 184, 200
vK1, vK2, vV, vIDX, vNC, vM = 208, 209, 210, 214, 216, 220
vT = 224
vMG = 240
sQH, sKH, sODD, sP5, sOFF, sKV0, sPASS, sCNT = 76, 77, 78, 79, 80, 93, 82, 83
sKVB, sKVE = 70, 71

def a_att_setup():
    a('s_and_b32 s%d, s%d, 1', sQH, sW)
    a('s_lshr_b32 s%d, s%d, 1', sKH, sW)
    a('s_and_b32 s%d, s%d, 1', sODD, sHD)
    a('s_lshr_b32 s85, s%d, 1', sHD)
    a('s_mul_i32 s%d, s85, 5', sP5)
    a('s_mul_i32 s%d, s%d, %d', sKVB, sKH, 16 * BLK)
    a('s_add_u32 s%d, s%d, %d', sKVE, sKVB, 16 * BLK)
    a('s_and_b32 s86, s%d, %d', sQB, OPT['rotm'])
    a('s_mul_i32 s86, s86, %d', 2 * BLK * OPT['rot'])
    a('s_add_u32 s%d, s%d, s86', sKV0, sKVB)
    srd(R3, sWS, 's%d' % sKVE)
    srd(R4, sOUT, 2048 * 1280 * 4)
    a('s_mov_b32 s%d, 0', sPASS)
    i, h, t, x = vT, vT + 1, vT + 2, vT + 3
    a('v_and_b32 v%d, 31, v%d', i, vLANE)
    a('v_lshrrev_b32 v%d, 5, v%d', h, vLANE)
    tau(t, i, x)
    a('s_mul_i32 s86, s%d, 3', sODD)
    a('s_add_u32 s86, s86, s%d', sP5)
    a('s_lshl_b32 s87, s86, 10')
    a('v_lshl_add_u32 v%d, v%d, 10, s87', x, h)
    a('v_lshl_add_u32 v%d, v%d, 4, v%d', vT + 4, i, x)
    a('v_lshl_add_u32 v%d, v%d, 4, v%d', vK1, i if OPT['klin'] else t, x)
    a('v_add_u32 v%d, %d, v%d', vK1, 80 * 1024, vK1)
    a('s_add_u32 s87, s%d, 2', sP5)
    a('s_lshl1_add_u32 s87, s87, s%d', sODD)
    a('s_lshl_b32 s87, s87, 9')
    a('v_lshl_add_u32 v%d, v%d, 4, s87', vT + 5, i)
    a('v_mov_b32 v%d, 0x%x', x, OOB)
    a('v_cndmask_b32 v%d, v%d, v%d, s[%d:%d]', vT + 5, vT + 5, x, sHI, sHI + 1)
    a('s_add_u32 s87, s87, %d', 80 * 1024)
    a('v_lshl_add_u32 v%d, v%d, 4, s87', vK2, i if OPT['klin'] else t)
    a('v_mov_b32 v%d, %d', x, 160 * 1024)
    a('v_cndmask_b32 v%d, v%d, v%d, s[%d:%d]', vK2, vK2, x, sHI, sHI + 1)
    a('s_mul_i32 s86, s%d, 20', sHD)
    a('s_lshl2_add_u32 s87, s%d, s86', sODD)
    a('s_lshl_b32 s88, s%d, 4', sODD)
    a('s_sub_u32 s88, s86, s88')
    a('v_add_u32 v%d, s87, v%d', vV, t)
    a('v_add_u32 v%d, s88, v%d', x, i)
    a('v_cmp_le_u32 vcc, 16, v%d', i)
    a('v_mov_b32 v%d, %d', vT + 6, VOFF + 640 * 16)
    a('s_nop 0')
    a('v_cndmask_b32 v%d, v%d, v%d, vcc', vV, vV, x)
    a('v_cmp_le_u32 vcc, 20, v%d', i)
    a('v_mul_u32_u24 v%d, %d, v%d', x, VROW, h)
    a('v_add_u32 v%d, %d, v%d', x, VOFF, x)
    a('v_lshl_add_u32 v%d, v%d, 4, v%d', vV, vV, x)
    a('v_cndmask_b32 v%d, v%d, v%d, vcc', vV, vV, vT + 6)
    a('v_cmp_le_u32 vcc, %d, v%d', 21 if OPT['vzero'] else 24, i)
    a('v_mov_b32 v%d, 0x%x', x, OOB)
    a('v_mov_b32 v%d, 0xdddd', vIDX)
    a('v_cndmask_b32 v%d, v%d, v%d, vcc', vV, vV, x)
    for k in range(1, 4):
        a('v_add_u32 v%d, %d, v%d', vV + k, 2 * VROW * k, vV)
    a('s_mul_i32 s87, s85, 40')
    a('s_lshl4_add_u32 s87, s%d, s87', sODD)
    a('s_add_u32 s88, s87, 23')
    a('s_lshr_b32 s87, s87, 7')
    a('s_lshr_b32 s88, s88, 7')
    a('s_add_u32 s89, s86, 19')
    a('s_lshr_b32 s86, s86, 7')
    a('s_lshr_b32 s89, s89, 7')
    a('v_lshrrev_b32 v%d, 4, v%d', x, vLANE)
    a('s_add_u32 s90, s87, 5')
    a('v_mov_b32 v%d, s90', vF1A)
    for sel, (reg, add) in enumerate(((88, 5), (86, 10), (89, 10))):
        a('s_add_u32 s90, s%d, %d', reg, add)
        a('v_cmp_eq_u32 vcc, %d, v%d', sel + 1, x)
        a('v_mov_b32 v%d, s90', vT + 6)
        a('s_nop 0')
        a('v_cndmask_b32 v%d, v%d, v%d, vcc', vF1A, vF1A, vT + 6)
    a('v_and_b32 v%d, 15, v%d', vT + 6, vLANE)
    a('v_lshl_add_u32 v%d, v%d, 4, v%d', vF1A, vF1A, vT + 6)
    a('v_lshlrev_b32 v%d, 7, v%d', vF1A, vF1A)
    a('v_mov_b32 v%d, s87', vF1A - 1)
    a('v_mov_b32 v%d, s88', vT + 6)
    a('v_cndmask_b32 v%d, v%d, v%d, s[%d:%d]', vF1A - 1, vF1A - 1, vT + 6, sHI, sHI + 1)
    a('v_bfe_u32 v%d, v%d, 4, 1', vT + 6, vLANE)
    a('v_lshl_add_u32 v%d, v%d, 4, v%d', vF1A - 1, vF1A - 1, vT + 6)
    a('s_lshl_b32 s90, s%d, 1', sQB)
    a('v_add_lshl_u32 v%d, v%d, s90, 7', vF1A - 1, vF1A - 1)
    a('v_and_b32 v%d, 3, v%d', vAPW, vLANE)
    a('v_lshlrev_b32 v%d, 8, v%d', vAPW, vAPW)
    a('v_lshlrev_b32 v%d, 2, v%d', vAPW + 1, vLANE)
    a('v_add_u32 v%d, %d, v%d', vAPW + 1, L_PW, vAPW + 1)
    a('v_add_u32 v%d, v%d, v%d', vAPW, vAPW, vAPW + 1)
    a('s_lshl1_add_u32 s90, s%d, s%d', sQB, sQH)
    a('s_lshl1_add_u32 s90, s90, s%d', sKH)
    a('s_mul_i32 s92, s90, %d', BLK)
    a('s_xor_b32 s91, s90, 1')
    a('s_mul_i32 s91, s91, %d', BLK)
    a('s_mov_b32 s10, 0x%x', f2u(2.0 ** -4))
    a('s_mov_b32 s11, 0x%x', f2u(2.0 ** 72))
    a('s_mul_i32 s36, s%d, %d', sW, REGSZ)
    a('s_add_u32 s36, s36, %d', L_REG + 8192)
    a('s_xor_b32 s37, s%d, 2', sW)
    a('s_mul_i32 s37, s37, %d', REGSZ)
    a('s_add_u32 s37, s37, %d', L_REG + 8192)
    a('v_lshl_add_u32 v%d, v%d, 4, s36', vMG, vLANE)
    a('v_lshl_add_u32 v%d, v%d, 3, s36', vMG + 1, vLANE)
    a('v_lshl_add_u32 v%d, v%d, 4, s37', vMG + 2, vLANE)
    a('v_lshl_add_u32 v%d, v%d, 3, s37', vMG + 3, vLANE)
    a('v_xor_b32 v%d, 512, v%d', vMG + 4, vPW)
    a('v_add_u32 v%d, 1024, v%d', vMG + 5, vAPW)
    if not OPT['amark']:
        a('v_bfe_u32 v%d, v%d, 4, 1', x, vLANE)
        a('v_mul_u32_u24 v%d, %d, v%d', x, OBLK, x)
        a('v_and_b32 v%d, 15, v%d', t, vLANE)
        a('v_lshl_add_u32 v%d, v%d, 4, v%d', x, t, x)
        a('v_mul_u32_u24 v%d, %d, v%d', t, 2 * OBLK, h)
        a('v_add_u32 v%d, v%d, v%d', vMG + 7, t, x)
        a('v_lshl_add_u32 v%d, v%d, 8, v%d', vMG + 6, h, x)
        a('s_mul_i32 s40, s90, %d', 4 * OBLK)
        a('s_add_u32 s40, s40, 0x%x', WS_O)
        a('s_lshl_b32 s41, s%d, 8', sP5)
        a('s_add_u32 s40, s40, s41')
        a('s_mul_i32 s41, s%d, 768', sODD)
        a('s_add_u32 s41, s41, s40')
        a('s_add_u32 s42, s41, %d', 2 * OBLK)
        a('s_lshl3_add_u32 s40, s%d, s40', sODD)
    a('s_lshl_b32 s43, s90, 5')
    a('s_add_u32 s43, s43, s%d', sHD)
    flagaddr(43, 43, F4, 0)

def a_mark():
    i, h, t, x = vT, vT + 1, vT + 2, vT + 3
    a('s_lshl1_add_u32 s90, s%d, s%d', sQB, sCW)
    a('s_lshl1_add_u32 s90, s90, s%d', sTW)
    a('s_and_b32 s%d, s%d, 1', sODD, sHD)
    a('s_lshr_b32 s85, s%d, 1', sHD)
    a('s_mul_i32 s%d, s85, 5', sP5)
    a('v_lshrrev_b32 v%d, 5, v%d', h, vLANE)
    a('v_bfe_u32 v%d, v%d, 4, 1', x, vLANE)
    a('v_mul_u32_u24 v%d, %d, v%d', x, OBLK, x)
    a('v_and_b32 v%d, 15, v%d', t, vLANE)
    a('v_lshl_add_u32 v%d, v%d, 4, v%d', x, t, x)
    a('v_mul_u32_u24 v%d, %d, v%d', t, 2 * OBLK, h)
    a('v_add_u32 v%d, v%d, v%d', vMG + 7, t, x)
    a('v_lshl_add_u32 v%d, v%d, 8, v%d', vMG + 6, h, x)
    a('s_mul_i32 s40, s90, %d', 4 * OBLK)
    a('s_add_u32 s40, s40, 0x%x', WS_O)
    a('s_lshl_b32 s41, s%d, 8', sP5)
    a('s_add_u32 s40, s40, s41')
    a('s_mul_i32 s41, s%d, 768', sODD)
    a('s_add_u32 s41, s41, s40')
    a('s_add_u32 s42, s41, %d', 2 * OBLK)
    a('s_lshl3_add_u32 s40, s%d, s40', sODD)
    for k in range(4):
        a('v_mov_b32 v%d, -1', 24 + k)
    a('buffer_store_dwordx4 v[24:27], v%d, s[%d:%d], s41 offen sc1', vMG + 6, RWS, RWS + 3)
    a('buffer_store_dwordx4 v[24:27], v%d, s[%d:%d], s42 offen sc1', vMG + 6, RWS, RWS + 3)
    a('buffer_store_dwordx2 v[24:25], v%d, s[%d:%d], s40 offen offset:512 sc1', vMG + 7, RWS, RWS + 3)

def a_b1_setup():
    a('s_mov_b64 s[14:15], s[%d:%d]', sWO, sWO + 1)
    b1_sources(R5, R6, 112, 116, 7, 5, 12, 3 if OPT['nodup'] else 2)
    a('s_lshl2_add_u32 s4, s%d, s%d', sRB, sW)
    a('s_mul_i32 s4, s4, %d', 32 * 1280)
    a('s_lshl_b32 s6, s%d, 12', sW)
    stagger(8, 9, OPT['st10'], OPT['flip'], OPT['stagb'])

def a_handoff():
    first = 10 + OPT['st10']
    nst = 8
    chunks = []
    if OPT['alate'] == 2:
        n0 = len(a.lines)
        a_att_setup()
        late = a.lines[n0:]
        del a.lines[n0:]
        if OPT['aearly']:
            late = late[:5] + late[OPT['aearly']:]
        nch = (OPT['eb'] - OPT['adep'] + 1 if OPT['eb'] else OPT['pollat']) - first
        k = 0
        for c in range(nch):
            e = len(late) * (c + 1) // nch
            while e < len(late) and any('cndmask' in x and 'vcc' in x for x in late[e:e + 4]):
                e += 1
            chunks.append(late[k:e])
            k = e
        chunks[-1].append('s_mov_b32 s85, 0x%x' % F1)
        nb = first - 10
        seq = OPT['seq'] or {1: 'bss', 2: 'bsbs', 3: 'bbsbs'}[nb]
        assert seq.count('b') == nb and seq.count('s') == 2
        kk = 0
        for ch in seq:
            if ch == 'b':
                a('s_barrier')
            else:
                if kk == 0 and OPT['fine'] == 1:
                    stamp('A', 'c11')
                a_b1stage(first + kk)
                if OPT['fine'] == 1:
                    stamp('A', 'iss%d' % (12 + kk))
                kk += 1
        for i_ in range(64):
            a('v_mov_b32 v%d, 0', vO + i_)
    else:
        for t in range(10, first):
            a('s_barrier')
            if t == 10:
                if OPT['alate']:
                    a_b1_setup()
                else:
                    for i_ in range(64):
                        a('v_mov_b32 v%d, 0', vO + i_)
        if OPT['fine'] == 1:
            stamp('A', 'c11')
        a_b1stage(first)
        if OPT['fine'] == 1:
            stamp('A', 'iss12')
        if OPT['alate']:
            a_att_setup()
            for i_ in range(64):
                a('v_mov_b32 v%d, 0', vO + i_)
        a_b1stage(first + 1)
        if OPT['fine'] == 1:
            stamp('A', 'iss13')
    lds_ = ['buffer_load_dword v%d, v%d, s[%d:%d], s85 offen sc1' % (104 + k, vF1A - k, RWS, RWS + 3) for k in range(2)]
    a('s_mov_b32 s85, 0x%x', F1)
    NI = 7 - OPT['nodup']
    last = first + 1
    EB = OPT['eb']
    def look(tag):
        a('s_cmp_eq_u32 s%d, 0', sW)
        a('s_cbranch_scc0 L_nopoll%s', tag)
        for l in lds_:
            a(l)
        a.label('L_nopoll%s' % tag)
    def publish(tag):
        a('s_cmp_eq_u32 s%d, 0', sW)
        a('s_cbranch_scc0 L_c%s', tag)
        a('v_and_b32 v104, v104, v105')
        a('v_cmp_eq_u32 vcc, 0, v104')
        a('s_cbranch_vccnz L_c%s', tag)
        setpw(4, 102)
        a('s_waitcnt lgkmcnt(0)')
        a.label('L_c%s' % tag)
    for t in range(first, 20):
        a('s_waitcnt vmcnt(%d)', NI * (last - t))
        if t == first:
            stamp('A', 'qdrain')
        if t == 19:
            publish('19')
        if EB and t == EB:
            publish('e')
        a('s_barrier')
        if EB and t == EB:
            assert last == 19 and not chunks
            a('ds_read_b32 v102, v%d', vAPW + 1)
            a('s_waitcnt lgkmcnt(0)')
            a('v_cmp_gt_u32 vcc, 4, v102')
            a('s_cbranch_vccnz L_notyet')
            batch1()
            for t2 in range(t + 1, 20):
                a('s_waitcnt vmcnt(%d)', NI * (19 - t2) + 8)
                a('s_barrier')
            stamp('A', 'b1load')
            stamp('A', 'f1')
            if DIAG:
                del nstamp['A'][-2:]
            a('s_branch L_att2')
            a.label('L_notyet')
        if EB and t == EB - OPT['adep'] + 1:
            look('e')
        while last < min(19, t + OPT['adep']):
            last += 1
            a_b1stage(last)
        if chunks:
            a.lines.extend(chunks.pop(0))
        if t == OPT['pollat']:
            look('')
    stamp('A', 'b1load')
    a('s_cmp_eq_u32 s%d, 0', sW)
    a('s_cbranch_scc0 L_f1wait')
    a('s_cbranch_vccz L_f1go')
    a('s_mov_b64 exec, vcc')
    pollflags(lds_, 104, sleep=OPT['psleep'])
    setpw(4, 102)
    a.label('L_f1wait')
    waitpw(vAPW + 1, 4, 102, sleep=OPT['gsleep'])
    a.label('L_f1go')
    stamp('A', 'f1')

def kvload0(st, what, soff):
    if what in (K1A, K1B):
        r = KV[st] + what
        return 'buffer_load_dwordx4 %s, v%d, s[%d:%d], s%d offen offset:%d sc1' % (v(r, 4), vK1, R3, R3 + 3, soff, 512 if what == K1B else 0)
    if what in ('2A', '2B'):
        tl = what == '2B'
        return 'buffer_load_dwordx2 %s, v%d, s[%d:%d], s%d offen offset:%d sc1' % (v(KV[st] + K2 + 2 * tl, 2), vK2, R3, R3 + 3, soff, 8 * tl)
    r = KV[st] + what
    if what == K2:
        return 'buffer_load_dwordx4 %s, v%d, s[%d:%d], s%d offen sc1' % (v(r, 4), vK2, R3, R3 + 3, soff)
    return 'buffer_load_dwordx4 %s, v%d, s[%d:%d], s%d offen sc1' % (v(r, 4), vV + (what - VA0) // 4, R3, R3 + 3, soff)

def kvload(st, what, soff):
    return kvload0(st, what, soff).replace(' sc1', [' sc1', '', ' sc1 nt'][OPT['kvplain']])

def qk1(st, tile, qt, sb, first=True):
    return 'v_mfma_f32_32x32x16_bf16 %s, %s, %s, %s' % (v(vS + 16 * sb, 16), v(KV[st] + (K1B if tile else K1A), 4), v(vQ1 + 4 * qt, 4),
                                                       '0' if first else v(vS + 16 * sb, 16))

def qk2(st, tile, qt, sb, first=False):
    return 'v_mfma_f32_32x32x8bf16_1k %s, %s, %s, %s' % (v(vS + 16 * sb, 16), v(KV[st] + K2 + 2 * tile, 2), v(vQ2 + 2 * qt, 2),
                                                        '0' if first else v(vS + 16 * sb, 16))

def pv(st, tile, qt, m):
    return 'v_smfmac_f32_32x32x32_bf16 %s, %s, %s, v%d' % (v(vO + 16 * qt, 16), v(KV[st] + VA0 + 8 * tile + 4 * m, 4), v(vS + 16 * qt + 8 * m, 8), vIDX)

def maxtree(dst, src, acc):
    if acc:
        a('v_max3_f32 v%d, v%d, v%d, v%d', dst, dst, src, src + 1)
    else:
        a('v_max_f32 v%d, v%d, v%d', dst, src, src + 1)
    for k in range(2, 16, 2):
        a('v_max3_f32 v%d, v%d, v%d, v%d', dst, dst, src + k, src + k + 1)

def qloads():
    for lp in range(2):
        for T in range(2):
            a('buffer_load_dwordx4 %s, v%d, s[%d:%d], s%d offen offset:%d sc1', v(vQ1 + 8 * lp + 4 * T, 4), vT + 4, RWS, RWS + 3, 91 + lp, 512 * T)
    for lp in range(2):
        a('buffer_load_dwordx4 %s, v%d, s[%d:%d], s%d offen sc1', v(vQ2 + 4 * lp, 4), vT + 5, RWS, RWS + 3, 91 + lp)

def batch1():
    qloads()
    for w_ in (K1A, K2):
        a(kvload0(0, w_, sKV0))

def a_attention():
    qloads()
    a.label('L_attload')
    for w_ in (K1A, K2):
        a(kvload0(0, w_, sKV0))
    a.label('L_att2')
    a('s_mov_b32 s%d, 0x40000000', sCNT)
    a('s_add_u32 s%d, s%d, %d', sOFF, sKV0, BLK)
    for i in range(4):
        a('v_mov_b32 v%d, 0', KV[1] + VB1 + i)
    if OPT['kvsplit']:
        a('s_waitcnt vmcnt(%d)', OPT['kvsplit'] - 1)
    for w_ in (VA0, VA1, K1B, VB0, VB1):
        a(kvload0(0, w_, sKV0))
    if not OPT['s1late']:
        for w_ in (K1A, VA0, VA1, K1B, K2, VB0):
            a(kvload0(1, w_, sOFF))
    a('s_waitcnt vmcnt(%d)', 5 if OPT['s1late'] else 11)
    stamp('A', 'qkload')
    a('s_cmp_eq_u32 s%d, 0', sPASS)
    a('s_cbranch_scc0 L_setc')
    if OPT['fastpro']:
        a.c('stand-in for the row maximum: the largest score among seven keys of the first tile (checked after the loop)')
        def ch(t):
            S, m, h = vS + 16 * t, vM + t, vT + 8 + t
            return ['v_max3_f32 v%d, v%d, v%d, v%d' % (m, S, S + 1, S + 2),
                    'v_max3_f32 v%d, v%d, v%d, v%d' % (m, m, S + 5, S + 8),
                    'v_max3_f32 v%d, v%d, v%d, v%d' % (m, m, S + 11, S + 14),
                    'v_cvt_pk_bf16_f32 v%d, -v%d, -v%d' % (h, m, m),
                    'v_and_b32 v%d, 0xffff0000, v%d' % (h, h),
                    'v_sub_f32 v%d, -v%d, v%d' % (m, m, h),
                    'v_cvt_pk_bf16_f32 v%d, v%d, v%d' % (m, h, m),
                    'v_cndmask_b32 v%d, v%d, v%d, s[%d:%d]' % (vQ2 + 2 * t, vQ2 + 2 * t, m, sHI, sHI + 1)]
        def nc(t):
            m, h = vM + t, vT + 8 + t
            return ['v_and_b32 v%d, 0xffff0000, v%d' % (m, m),
                    'v_add_f32 v%d, v%d, v%d' % (vNC + t, m, h),
                    'v_add_f32 v%d, v%d, v%d' % (m, m, h)]
        sw = lambda t: 'v_permlane32_swap_b32 v%d, v%d' % (vM + t, vNC + t)
        seq = [qk1(0, 0, 0, 0), qk2(0, 0, 0, 0), qk1(0, 0, 1, 1), qk2(0, 0, 1, 1), qk1(0, 0, 2, 2), 's_nop 6', qk2(0, 0, 2, 2), 's_nop 0']
        seq += ch(0)[:5] + [qk1(0, 0, 3, 3)] + ch(0)[5:] + ch(1)[:3] + [qk2(0, 0, 3, 3)] + ch(1)[3:] + nc(0)[:1]
        seq += [qk1(0, 0, 0, 0)] + ch(2)[:6] + [qk2(0, 0, 0, 0)] + ch(3)[:3]
        seq += ['v_mov_b32 v%d, 0' % (vS + 48 + 8 + i) for i in range(8)]
        seq += ch(2)[6:] + ch(3)[3:] + nc(0)[1:] + nc(1) + nc(2) + [sw(0)] + nc(3) + [sw(1), sw(2), sw(3)]
        for o in seq:
            a(o)
        a.label('L_loopentry')
    else:
        a.c('stand-in for the row maximum: the maximum over the first key tile (checked after the loop)')
        def tree(qt):
            src = vS + 16 * qt
            return ['v_max_f32 v%d, v%d, v%d' % (vM + qt, src, src + 1)] + \
                   ['v_max3_f32 v%d, v%d, v%d, v%d' % (vM + qt, vM + qt, src + k, src + k + 1) for k in range(2, 16, 2)]
        for qt in range(3):
            a(qk1(0, 0, qt, qt))
            a(qk2(0, 0, qt, qt))
        a(qk1(0, 0, 3, 3))
        a('s_nop 6')
        for o in tree(0)[:4]:
            a(o)
        a(qk2(0, 0, 3, 3))
        for o in tree(0)[4:] + tree(1) + tree(2) + tree(3):
            a(o)
        a.label('L_setc')
        for qt in range(4):
            a('v_mov_b32 v%d, v%d', vT + 8 + qt, vM + qt)
        for qt in range(4):
            a('v_permlane32_swap_b32 v%d, v%d', vM + qt, vT + 8 + qt)
        for qt in range(4):
            a('v_min_f32 v%d, -v%d, -v%d', vM + qt, vM + qt, vT + 8 + qt)
        for qt in range(4):
            a('v_cvt_pk_bf16_f32 v%d, v%d, v%d', vT + 8 + qt, vM + qt, vM + qt)
        for qt in range(4):
            a('v_and_b32 v%d, 0xffff0000, v%d', vT + 8 + qt, vT + 8 + qt)
        for qt in range(4):
            a('v_sub_f32 v%d, v%d, v%d', vM + qt, vM + qt, vT + 8 + qt)
        for qt in range(4):
            a('v_cvt_pk_bf16_f32 v%d, v%d, v%d', vM + qt, vT + 8 + qt, vM + qt)
        for qt in range(4):
            a('v_cndmask_b32 v%d, v%d, v%d, s[%d:%d]', vQ2 + 2 * qt, vQ2 + 2 * qt, vM + qt, sHI, sHI + 1)
        a(qk1(0, 0, 0, 0))
        a(qk2(0, 0, 0, 0))
        for qt in range(4):
            a('v_and_b32 v%d, 0xffff0000, v%d', vM + qt, vM + qt)
        for qt in range(4):
            a('v_add_f32 v%d, v%d, v%d', vNC + qt, vM + qt, vT + 8 + qt)
        for i in range(8):
            a('v_mov_b32 v%d, 0', vS + 48 + 8 + i)
    if OPT['s1late'] == 2:
        a('s_waitcnt vmcnt(2)')
    if OPT['s1late']:
        for w_ in (K1A, VA0, VA1, K1B, K2, VB0):
            a(kvload0(1, w_, sOFF))
    if OPT['s1late'] != 2:
        a('s_waitcnt vmcnt(8)')
    if OPT['tearly'] or OPT['gtouch'] == 1 or OPT['woe'] or OPT['smark'] == 1:
        setpw(5, vT + 8)
    stamp('A', 'attpro')
    if OPT['fine'] == 3:
        base = len(nstamp['A'])
        nstamp['A'] += ['it%d' % i for i in range(16)]
        a('s_mov_b32 s24, %d', base)
    a('.p2align %d', OPT['lalign'])
    for _ in range(OPT['lpad']):
        a('s_nop 0')
    a.label('L_attloop')
    UN = OPT['unroll']
    LEAN = OPT['rot'] == 0 and OPT['lean']
    for dt in range(UN):
        st = dt & 1
        for n in range(8):
            tile, qt = n >> 2, n & 3
            nst, ntile, nqt = (st, (n + 1) >> 2, (n + 1) & 3) if n < 7 else (st ^ 1, 0, 0)
            pst, ptile, pqt = (st, (n - 1) >> 2, (n - 1) & 3) if n > 0 else (st ^ 1, 1, 3)
            def ex(k):
                for e in range(4 * k, 4 * k + 4):
                    a('v_exp_f32 v%d, v%d', vS + 16 * qt + e, vS + 16 * qt + e)
            if n == 7:
                a('s_waitcnt vmcnt(%d)', 40 if OPT['nowait'] else 7)
            X8 = OPT['x8first']
            a(qk2(nst, ntile, nqt, nqt, True) if X8 else qk1(nst, ntile, nqt, nqt))
            if n == 1:
                a('s_add_u32 s%d, s%d, %d', sOFF, sOFF, BLK)
            if n == 2 and not X8:
                a(kvload(st, K1A, sOFF))
            if n == 6:
                a(kvload(st, K2 if X8 else K1B, sOFF))
            if n == 5 and OPT['fine'] == 3:
                a('s_memtime s[98:99]')
                a('s_memrealtime s[100:101]')
            if n == 6 and OPT['fine'] == 3:
                a('s_waitcnt lgkmcnt(0)')
                a('s_mov_b32 m0, s24')
                a('s_add_u32 s25, s24, 32')
                a('v_writelane_b32 v%d, s98, m0', vTS)
                a('s_mov_b32 m0, s25')
                a('s_add_u32 s24, s24, 1')
                a('v_writelane_b32 v%d, s100, m0', vTS)
            ex(0)
            a(qk1(nst, ntile, nqt, nqt, False) if X8 else qk2(nst, ntile, nqt, nqt))
            if n == 2 and X8:
                a(kvload(st, K1A, sOFF))
            if n == 6:
                a(kvload(st, K1B if X8 else K2, sOFF))
            if n == 1 and st == 0 and not LEAN:
                a('s_cmp_eq_u32 s%d, s%d', sOFF, sKVE)
                a('s_cselect_b32 s%d, s%d, s%d', sOFF, sKVB, sOFF)
            ex(1)
            a(pv(pst, ptile, pqt, 1))
            if n == 0:
                a(kvload(st ^ 1, VB1, sOFF))
            if n == 4:
                a(kvload(st, VA1, sOFF))
            if n == 1 and dt == UN - 2 and not LEAN:
                a('s_cmp_eq_u32 s%d, s%d', sOFF, sKV0)
                a('s_cselect_b32 s%d, s%d, s%d', sOFF, sCNT, sOFF)
            if dt == UN - 1 and n == 7:
                a('s_cmp_lt_u32 s%d, s%d', sOFF, sKVE if LEAN else sCNT)
            ex(2)
            if n == 4:
                a('s_waitcnt vmcnt(%d)', 40 if OPT['nowait'] else 10)
            a(pv(st, tile, qt, 0))
            if n == 3:
                a(kvload(st, VA0, sOFF))
            if n == 7:
                a(kvload(st, VB0, sOFF))
            ex(3)
    a('s_cbranch_scc1 L_attloop')
    a('s_nop 0')
    a(pv(1, 1, 3, 1))
    stamp('A', 'attloop')
    if OPT['tprio']:
        a('s_setprio 2')
    a('ds_write_b64 v%d, %s offset:6144', vMG + 1, v(vNC, 2))
    for t in range(2):
        for q in range(3):
            a('ds_write_b128 v%d, %s offset:%d', vMG, v(vO + 16 * t + 4 * q, 4), 1024 * (3 * t + q))
    a('v_mov_b32 v%d, 6', vT + 10)
    a('v_mov_b32 v%d, 7', vT + 11)
    a('v_min3_f32 v%d, v%d, v%d, v%d', vT + 8, vO + 8, vO + 24, vO + 40)
    a('v_add_f32 v%d, v%d, v%d', vT + 9, vO + 8, vO + 24)
    a('v_add_f32 v%d, v%d, v%d', vT + 9, vT + 9, vO + 40)
    a('v_min_f32 v%d, v%d, v%d', vT + 8, vT + 8, vO + 56)
    a('v_add_f32 v%d, v%d, v%d', vT + 9, vT + 9, vO + 56)
    a('v_cmp_nle_f32 s[38:39], s10, v%d', vT + 8)
    a('v_cmp_nge_f32 vcc, s11, v%d', vT + 9)
    a('s_or_b32 s39, s39, vcc_hi')
    if OPT['force_fb']:
        a('s_cmp_eq_u32 s39, s39')
    a('s_cbranch_scc1 L_fallback')
    n0 = len(a.lines)
    a.label('L_fallback')
    a('s_cmp_eq_u32 s%d, 0', sPASS)
    a('s_cbranch_scc0 L_attok')
    a.c('fallback: exact row maximum over this wave\'s keys, then redo the pass')
    a('s_mov_b32 s%d, 1', sPASS)
    a('s_waitcnt vmcnt(0) lgkmcnt(0)')
    a('v_mov_b32 v%d, 0', vT + 8)
    for qt in range(4):
        a('v_cndmask_b32 v%d, v%d, v%d, s[%d:%d]', vQ2 + 2 * qt, vQ2 + 2 * qt, vT + 8, sHI, sHI + 1)
        a('v_mov_b32 v%d, 0xff800000', vM + qt)
    a('s_mov_b32 s%d, s%d', sOFF, sKVB)
    a('s_mov_b32 s%d, 16', sCNT)
    a.label('L_maxloop')
    for w_ in (K1A, K1B, K2):
        a(kvload(0, w_, sOFF))
    a('s_waitcnt vmcnt(0)')
    for tile in range(2):
        for qt in range(4):
            a(qk1(0, tile, qt, qt))
            a(qk2(0, tile, qt, qt))
        a('s_nop 5')
        for qt in range(4):
            maxtree(vM + qt, vS + 16 * qt, True)
    a('s_add_u32 s%d, s%d, %d', sOFF, sOFF, BLK)
    a('s_sub_u32 s%d, s%d, 1', sCNT, sCNT)
    a('s_cmp_lg_u32 s%d, 0', sCNT)
    a('s_cbranch_scc1 L_maxloop')
    for i in range(64):
        a('v_mov_b32 v%d, 0', vO + i)
    a('s_branch L_attload')
    if OPT['fastpro']:
        a.label('L_setc')
        for qt in range(4):
            a('v_mov_b32 v%d, v%d', vT + 8 + qt, vM + qt)
        for qt in range(4):
            a('v_permlane32_swap_b32 v%d, v%d', vM + qt, vT + 8 + qt)
        for qt in range(4):
            a('v_min_f32 v%d, -v%d, -v%d', vM + qt, vM + qt, vT + 8 + qt)
        for qt in range(4):
            a('v_cvt_pk_bf16_f32 v%d, v%d, v%d', vT + 8 + qt, vM + qt, vM + qt)
        for qt in range(4):
            a('v_and_b32 v%d, 0xffff0000, v%d', vT + 8 + qt, vT + 8 + qt)
        for qt in range(4):
            a('v_sub_f32 v%d, v%d, v%d', vM + qt, vM + qt, vT + 8 + qt)
        for qt in range(4):
            a('v_cvt_pk_bf16_f32 v%d, v%d, v%d', vM + qt, vT + 8 + qt, vM + qt)
        for qt in range(4):
            a('v_cndmask_b32 v%d, v%d, v%d, s[%d:%d]', vQ2 + 2 * qt, vQ2 + 2 * qt, vM + qt, sHI, sHI + 1)
        a(qk1(0, 0, 0, 0))
        a(qk2(0, 0, 0, 0))
        for qt in range(4):
            a('v_and_b32 v%d, 0xffff0000, v%d', vM + qt, vM + qt)
        for qt in range(4):
            a('v_add_f32 v%d, v%d, v%d', vNC + qt, vM + qt, vT + 8 + qt)
        for i in range(8):
            a('v_mov_b32 v%d, 0', vS + 48 + 8 + i)
        a('s_branch L_loopentry')
    COLD.extend(a.lines[n0:])
    del a.lines[n0:]
    a.label('L_attok')
    a('ds_write_b32 v%d, v%d', vPW, vT + 10)
    R = vS
    NC2 = vS + 32
    rd = ['ds_read_b64 %s, v%d offset:6144' % (v(NC2, 2), vMG + 3)]
    for t in range(2):
        rd.append('ds_read_b128 %s, v%d offset:%d' % (v(R + 16 * t + 8, 4), vMG + 2, 1024 * (3 * t + 2)))
    for t in range(2):
        for q in range(2):
            rd.append('ds_read_b128 %s, v%d offset:%d' % (v(R + 16 * t + 4 * q, 4), vMG + 2, 1024 * (3 * t + q)))
    if OPT['otag'] and not OPT['amark']:
        a('ds_read_b32 v%d, v%d', vT + 12, vMG + 5)
    waitpw(vMG + 4, 6, vT + 8, extra=rd)
    a('ds_write_b32 v%d, v%d', vPW, vT + 11)
    if OPT['otag'] and not OPT['amark']:
        a('v_cmp_gt_u32 vcc, 14, v%d', vT + 12)
        a('s_cbranch_vccnz L_swait')
        n0 = len(a.lines)
        a.label('L_swait')
        waitpw(vMG + 5, 14, vT + 12)
        a('s_branch L_sready')
        COLD.extend(a.lines[n0:])
        del a.lines[n0:]
        a.label('L_sready')
    f1, f2, l1, l2 = vS + 34, vS + 36, vS + 38, vS + 40
    a('s_waitcnt lgkmcnt(7)')
    for t in range(2):
        a('v_min_f32 v%d, v%d, v%d', l1 + t, vNC + 2 + t, NC2 + t)
    for t in range(2):
        a('v_sub_f32 v%d, v%d, v%d', f1 + t, l1 + t, vNC + 2 + t)
        a('v_sub_f32 v%d, v%d, v%d', f2 + t, l1 + t, NC2 + t)
    for t in range(2):
        a('v_exp_f32 v%d, v%d', f1 + t, f1 + t)
        a('v_exp_f32 v%d, v%d', f2 + t, f2 + t)
    a('s_waitcnt lgkmcnt(5)')
    for t in range(2):
        a('v_mul_f32 v%d, v%d, v%d', l1 + t, f1 + t, vO + 32 + 16 * t + 8)
    for t in range(2):
        a('v_fmac_f32 v%d, v%d, v%d', l1 + t, f2 + t, R + 16 * t + 8)
    for t in range(2):
        a('v_mov_b32 v%d, v%d', l2 + t, l1 + t)
    a('s_nop 0')
    for t in range(2):
        a('v_permlane32_swap_b32 v%d, v%d', l1 + t, l2 + t)
    for t in range(2):
        a('v_rcp_f32 v%d, v%d', l2 + t, l2 + t)
    a('s_waitcnt vmcnt(0) lgkmcnt(0)')
    for t in range(2):
        a('v_mul_f32 v%d, v%d, v%d', f1 + t, f1 + t, l2 + t)
        a('v_mul_f32 v%d, v%d, v%d', f2 + t, f2 + t, l2 + t)
    P = vO
    for t in range(2):
        if OPT['pkmerge']:
            sel = 'op_sel:[%d,0] op_sel_hi:[%d,1]' % (t, t)
            sel3 = 'op_sel:[%d,0,0] op_sel_hi:[%d,1,1]' % (t, t)
            for r in range(0, 12, 2):
                a('v_pk_mul_f32 %s, %s, %s %s', v(vO + 32 + 16 * t + r, 2), v(f1, 2), v(vO + 32 + 16 * t + r, 2), sel)
            for r in range(0, 12, 2):
                a('v_pk_fma_f32 %s, %s, %s, %s %s', v(vO + 32 + 16 * t + r, 2), v(f2, 2), v(R + 16 * t + r, 2), v(vO + 32 + 16 * t + r, 2), sel3)
        else:
            for r in range(12):
                a('v_mul_f32 v%d, v%d, v%d', vO + 32 + 16 * t + r, f1 + t, vO + 32 + 16 * t + r)
            for r in range(12):
                a('v_fmac_f32 v%d, v%d, v%d', vO + 32 + 16 * t + r, f2 + t, R + 16 * t + r)
        for q in range(6):
            a('v_cvt_pk_bf16_f32 v%d, v%d, v%d', P + 8 * t + q, vO + 32 + 16 * t + 2 * q, vO + 32 + 16 * t + 2 * q + 1)
        if OPT['otag']:
            for q in range(4):
                a('v_min_u32 v%d, -2, v%d', P + 8 * t + q, P + 8 * t + q)
        a('buffer_store_dwordx4 %s, v%d, s[%d:%d], s%d offen sc1', v(P + 8 * t, 4), vMG + 6, RWS, RWS + 3, 41 + t)
    if not OPT['otag']:
        a('s_nop 0')
    a('v_permlane32_swap_b32 v%d, v%d', P + 4, P + 12)
    a('v_permlane32_swap_b32 v%d, v%d', P + 5, P + 13)
    if OPT['otag']:
        a('v_min_u32 v%d, -2, v%d', P + 4, P + 4)
        a('v_min_u32 v%d, -2, v%d', P + 5, P + 5)
    a('buffer_store_dwordx2 %s, v%d, s[%d:%d], s40 offen offset:512 sc1', v(P + 4, 2), vMG + 7, RWS, RWS + 3)
    if OPT['otag']:
        setflag(43, 20)
    if OPT['tprio'] == 2:
        a('s_setprio 0')
    if OPT['pgate']:
        setpw(8, vT + 8)
        a('ds_read_b32 v%d, v%d', 99, vAPW)
    stamp('A', 'merge')

def ostore(j, r):
    return 'buffer_store_dword v%d, v%d, s[%d:%d], s86 offen offset:%d%s' % (80 + 4 * j + r, 244 + r, R4, R4 + 3, 64 * j, OSC)

def p3_static(vA0, vA1, vOA, acc):
    EP = OPT['epoll']
    TAG = OPT['otag']
    if TAG:
        stamp('A', 'odrain')
        a.label('L_p3redo')
    elif not EP:
        a('s_waitcnt vmcnt(0)')
        stamp('A', 'odrain')
        setflag(43, 1)
    NB = 7
    def reads(ks):
        f = 100 + 20 * (ks % NB)
        base, off = (vA0, ks * 5120) if ks < 10 else (vA1, (ks - 10) * 5120)
        if OPT['fline'] & 1:
            return ['ds_read_b64_tr_b16 %s, v%d offset:%d' % (v(f + 4 * j + 2 * rd, 2), base + (6 if j == 4 else 0),
                                                             off + 1280 * rd + 32 * (j & 3)) for j in range(5) for rd in range(2)]
        return ['ds_read_b64_tr_b16 %s, v%d offset:%d' % (v(f + 4 * j + 2 * rd, 2), base, off + 1280 * rd + 32 * j)
                for j in range(5) for rd in range(2)]
    pl = 'buffer_load_dword v252, v%d, s[%d:%d], s88 offen sc1' % (vOA + 1, RWS, RWS + 3)
    def oload(ks):
        a('buffer_load_dwordx4 %s, v%d, s[%d:%d], s85 offen offset:%d sc1', v(4 * ks, 4), vOA, RWS, RWS + 3, 1024 * (ks & 3))
        if ks & 3 == 3 and ks < 19:
            a('s_add_u32 s85, s85, 4096')
    LEAD = OPT['olead']
    touch_ = 'buffer_load_dword v251, v248, s[%d:%d], s85 offen sc1' % (RWS, RWS + 3)
    NP = OPT['npre'] if EP else 0
    rest = [r for ks in range(NP, NB) for r in reads(ks)]
    if EP:
        for ks in range(NP):
            for r in reads(ks):
                a(r)
        if OPT['pgate']:
            a('s_waitcnt lgkmcnt(0)')
            a('v_cmp_gt_u32 vcc, 8, v99')
            a('s_cbranch_vccz L_epoll')
            a('s_waitcnt vmcnt(0)')
            stamp('A', 'odrain')
            if DIAG:
                nstamp['A'].pop()
            setflag(43, 2)
            a('s_mov_b32 vcc_lo, -1')
            a('s_mov_b32 vcc_hi, 0')
            a('s_branch L_f4late')
            a.label('L_epoll')
        a('s_mov_b32 exec_hi, 0')
        a(pl)
        a('s_waitcnt vmcnt(1)')
        stamp('A', 'odrain')
        setflag(43, 2)
        a('s_mov_b32 exec_hi, 0')
        a('s_waitcnt vmcnt(1)')
        a('v_cmp_eq_u32 vcc, 0, v252')
        a('s_mov_b64 exec, -1')
        a('s_cbranch_vccnz L_f4late')
        stamp('A', 'f4')
        if DIAG:
            nstamp['A'].pop()
        a(touch_)
        k = 0
        for ks in range(LEAD):
            oload(ks)
            while k < len(rest) * (ks + 1) // LEAD:
                a(rest[k])
                k += 1
        a('s_branch L_p3go')
        a.label('L_f4late')
    for r in rest:
        a(r)
    if OPT['pgate'] and TAG != 1:
        a('s_mov_b64 s[38:39], vcc')
        waitpw(vAPW, 8, 99, sleep=OPT['gsleep'])
        a('s_mov_b64 vcc, s[38:39]')
    if EP:
        a('s_mov_b64 exec, vcc')
    else:
        a('s_mov_b32 exec_hi, 0')
    pollflags([pl], 252, sleep=OPT['psleep4'])
    stamp('A', 'f4')
    a(touch_)
    for ks in range(LEAD):
        oload(ks)
    a.label('L_p3go')
    a('s_waitcnt lgkmcnt(0)')
    nl = LEAD
    a('v_mov_b32 v250, 9')
    lq = []
    if nl == 20 or OPT['yearly']:
        a('ds_write_b32 v%d, v250', vPW)
    pend = []
    nck = 0
    JO = OPT['jout'] or 20
    for ks in range(JO):
        w_ = 's_waitcnt vmcnt(%d)' % (nl - 1 - ks)
        if ks in lq:
            idx = max(i for i, x in enumerate(lq) if x == ks)
            w_ += ' lgkmcnt(%d)' % min(15, len(lq) - 1 - idx)
        a(w_)
        if OPT['fine'] in (1, 2) and ks in (0, 10, 19):
            stamp('A', 'p3k%d' % ks)
        rr = reads(ks + NB) if ks + NB < 20 else []
        for j in range(5):
            a('v_mfma_f32_16x16x32_bf16 %s, %s, %s, %s', v(acc + 4 * j, 4), v(4 * ks, 4), v(100 + 20 * (ks % NB) + 4 * j, 4),
              '0' if ks == 0 else v(acc + 4 * j, 4))
            for tg, r in pend:
                a(r)
                lq.append(tg)
            if TAG and not pend and ks >= 13:
                for _ in range(2):
                    if nck < 4 * ks + 4:
                        if nck == 0:
                            a('v_max_u32 v252, v0, v1')
                        else:
                            a('v_max3_u32 v252, v252, v%d, v%d', nck, nck + 1)
                        nck += 2
            pend = [(ks + NB, r) for r in rr[2 * j:2 * j + 2]]
            if j in (0, 3) and nl < 20 and (j == 0 or ks % 2 == 0):
                oload(nl)
                nl += 1
                if nl == 20 and not OPT['yearly']:
                    a('ds_write_b32 v%d, v250', vPW)
                    lq.append('w')
    if JO < 20:
        assert not TAG and nl == 20 and not pend
        a('s_waitcnt vmcnt(0) lgkmcnt(0)')
        for j in range(5):
            for i, ks in enumerate(range(JO, 20)):
                a('v_mfma_f32_16x16x32_bf16 %s, %s, %s, %s', v(acc + 4 * j, 4), v(4 * ks, 4), v(100 + 20 * (ks % NB) + 4 * j, 4), v(acc + 4 * j, 4))
                if j and i < 2:
                    a('s_nop 2')
                elif j and i < 6:
                    a(ostore(j - 1, i - 2))
        if OPT['fine'] in (1, 2):
            stamp('A', 'p3k19')
        a('s_nop 6')
        for r in range(4):
            a(ostore(4, r))
    if TAG:
        assert nck == 80
        a('v_cmp_eq_u32 vcc, -1, v252')
        a('s_cbranch_vccnz L_p3again')
        retry('L_p3again', 'L_p3redo', 0, ['s_sub_u32 s85, s85, 16384'])

def p3_groups(vA0, vOA, acc):
    WF, vAN = 100, 241
    sP, sG, sM, sKEY, sC = 4, 5, 6, 7, 8
    pl = 'buffer_load_dword v252, v%d, s[%d:%d], s88 offen sc1' % (vOA + 1, RWS, RWS + 3)
    for g in range(4):
        a('s_sub_u32 s%d, %d, s%d', sC + g, g, sOG)
        a('s_and_b32 s%d, s%d, 3', sC + g, sC + g)
        a('s_lshl2_add_u32 s%d, s%d, %d', sC + g, sC + g, g)
    a('v_mov_b32 v248, 9')
    a('s_waitcnt lgkmcnt(0)')
    a('v_cmp_gt_u32 vcc, 8, v99')
    a('s_cbranch_vccz L_epoll')
    a('s_waitcnt vmcnt(0)')
    stamp('A', 'odrain')
    if DIAG:
        nstamp['A'].pop()
    setflag(43, 2)
    waitpw(vAPW, 8, 99, sleep=OPT['gsleep'])
    a('s_mov_b32 exec_hi, 0')
    a(pl)
    a('s_waitcnt vmcnt(0)')
    a('s_branch L_polled')
    a.label('L_epoll')
    a('s_mov_b32 exec_hi, 0')
    a(pl)
    a('s_waitcnt vmcnt(1)')
    stamp('A', 'odrain')
    setflag(43, 2)
    a('s_mov_b32 exec_hi, 0')
    a('s_waitcnt vmcnt(1)')
    a.label('L_polled')
    a('v_cmp_eq_u32 vcc, 0, v252')
    a('s_mov_b64 exec, -1')
    a('s_mov_b32 s%d, vcc_lo', sP)
    def reads(k):
        return ['ds_read_b64_tr_b16 %s, v%d offset:%d' % (v(WF + 20 * k + 4 * j + 2 * rd, 2), vAN, 5120 * k + 1280 * rd + 32 * j)
                for j in range(5) for rd in range(2)]
    def issue(sl):
        for k in range(5):
            a('buffer_load_dwordx4 %s, v%d, s[%d:%d], s%d offen offset:%d sc1', v(20 * sl + 4 * k, 4), vOA, RWS, RWS + 3,
              12 if k < 4 else 13, 1024 * (k & 3))
        if sl == 3:
            a('ds_write_b32 v%d, v248', vPW)
    for sl in range(-1, 4):
        nx = sl + 1
        Lw, Lc, Ld = a.newlabel('gw'), a.newlabel('gc'), a.newlabel('gd')
        if nx < 4:
            for g in range(4):
                a('s_bfe_u32 s14, s%d, 0x%x', sP, (8 << 16) | (8 * g))
                a('s_bcnt1_i32_b32 s14, s14')
                if g == 0:
                    a('s_lshl4_add_u32 s%d, s14, s%d', sKEY, sC)
                else:
                    a('s_lshl4_add_u32 s14, s14, s%d', sC + g)
                    a('s_min_u32 s%d, s%d, s14', sKEY, sKEY)
            a('s_and_b32 s%d, s%d, 3', sG, sKEY)
            a('s_mul_i32 s12, s%d, 5120', sG)
            a('s_add_u32 s12, s12, s85')
            a('s_add_u32 s13, s12, 4096')
            a('s_cmp_lt_u32 s%d, 16', sKEY)
            a('s_cbranch_scc0 %s', Lw)
            issue(nx)
            if sl >= 0:
                a('s_waitcnt vmcnt(5)')
            a('s_branch %s', Lc)
            a.label(Lw)
            a('s_mov_b32 exec_lo, s%d', sP)
            a('s_mov_b32 exec_hi, 0')
            a(pl)
            a('s_mov_b64 exec, -1')
            if sl >= 0:
                a('s_waitcnt vmcnt(1)')
            a.label(Lc)
            a('s_mul_i32 s14, s%d, 25600', sG)
            a('v_add_u32 v%d, s14, v%d', vAN, vA0)
            if nx < 3:
                for g in range(4):
                    a('s_cmp_eq_u32 s%d, %d', sG, g)
                    a('s_cselect_b32 s%d, 0x1000, s%d', sC + g, sC + g)
        if sl < 0:
            for k in range(5):
                for r in reads(k):
                    a(r)
        else:
            pend = []
            for k in range(5):
                if nx == 4:
                    a('s_waitcnt vmcnt(%d) lgkmcnt(%d)', 4 - k, 0 if k >= 3 else 15)
                else:
                    a('s_waitcnt lgkmcnt(15)')
                rr = reads(k) if nx < 4 else []
                for j in range(5):
                    a('v_mfma_f32_16x16x32_bf16 %s, %s, %s, %s', v(acc + 4 * j, 4), v(20 * sl + 4 * k, 4), v(WF + 20 * k + 4 * j, 4),
                      '0' if (sl == 0 and k == 0) else v(acc + 4 * j, 4))
                    for r in pend:
                        a(r)
                    pend = rr[2 * j:2 * j + 2]
            for r in pend:
                a(r)
        if nx < 4:
            a('s_cmp_lt_u32 s%d, 16', sKEY)
            a('s_cbranch_scc1 %s', Ld)
            L1, L2 = a.newlabel('gp'), a.newlabel('gq')
            a('s_lshl_b32 s14, s%d, 3', sG)
            a('s_lshl_b32 s%d, 0xff, s14', sM)
            a('s_mov_b32 exec_lo, s%d', sP)
            a('s_mov_b32 exec_hi, 0')
            a.label(L1)
            a('s_waitcnt vmcnt(0)')
            a('v_cmp_eq_u32 vcc, 0, v252')
            a('s_and_b32 s14, vcc_lo, s%d', sM)
            a('s_cbranch_scc0 %s', L2)
            a('s_mov_b64 exec, vcc')
            if OPT['psleep4']:
                a('s_sleep %d', OPT['psleep4'])
            a(pl)
            a('s_sub_u32 s%d, s%d, 1', sSPIN, sSPIN)
            a('s_cbranch_scc0 %s', L1)
            a('s_endpgm')
            a.label(L2)
            a('s_mov_b32 s%d, vcc_lo', sP)
            a('s_mov_b64 exec, -1')
            issue(nx)
            a.label(Ld)
            if nx == 3:
                stamp('A', 'f4')

def a_outproj():
    vA0, vA1, vOA, vST = 240, 241, 242, 244
    if not OPT['otag'] or OPT['amark']:
        waitpw(vMG + 5, 14, 98, sleep=1)
    a('v_lshrrev_b32 v21, 5, v%d', vLANE)
    a('v_bfe_u32 v22, v%d, 2, 3', vLANE)
    a('v_lshl_add_u32 v21, v21, 4, v22')
    a('v_mul_u32_u24 v21, 160, v21')
    a('v_and_b32 v22, 3, v%d', vLANE)
    a('v_lshl_add_u32 v%d, v22, 3, v21', vA0)
    a('v_add_u32 v%d, %d, v%d', vA1, 10 * 5120, vA0)
    a('v_lshlrev_b32 v%d, 4, v%d', vOA, vLANE)
    a('v_lshrrev_b32 v21, 4, v%d', vLANE)
    a('v_mul_u32_u24 v21, %d, v21', 4 * 5120)
    a('v_and_b32 v22, 15, v%d', vLANE)
    a('v_lshl_add_u32 v%d, v22, 2, v21', vST)
    if OPT['fline'] & 1:
        a('s_and_b32 s12, s%d, 1', sOG)
        a('s_xor_b32 s13, s12, 1')
        a('s_lshl_b32 s14, s13, 7')
        a('v_add_u32 v%d, s14, v%d', vA0 + 6, vA0)
        a('v_add_u32 v%d, s14, v%d', vA1 + 6, vA1)
        a('s_lshl_b32 s14, s12, 5')
        a('v_add_u32 v%d, s14, v%d', vA0, vA0)
        a('v_add_u32 v%d, s14, v%d', vA1, vA1)
        a('s_lshl_b32 s14, s13, 8')
        a('v_add_u32 v%d, s14, v%d', vST, vST)
        a('v_lshrrev_b32 v21, 5, v%d', vLANE)
        a('v_mul_u32_u24 v21, %d, v21', 8 * 5120)
        a('v_and_b32 v22, 31, v%d', vLANE)
        a('v_lshl_add_u32 v21, v22, 2, v21')
        a('s_lshl_b32 s14, s12, 6')
        a('v_add_u32 v%d, s14, v21', vST + 1)
    else:
        for r in range(1, 4):
            a('v_add_u32 v%d, %d, v%d', vST + r, 5120 * r, vST)
    a('s_mul_i32 s84, s%d, 2560', sOG)
    a('v_min_u32 v248, 19, v%d', vLANE)
    a('v_lshl_add_u32 v248, v248, 7, s84')
    a('s_lshl2_add_u32 s84, s%d, s%d', sTB, sW)
    a('s_mul_i32 s85, s84, %d', OBLK)
    a('s_add_u32 s85, s85, 0x%x', WS_O)
    a('s_mul_i32 s86, s84, %d', 16 * 5120)
    a('s_mul_i32 s88, s%d, 320', sOG)
    a('s_add_u32 s86, s86, s88')
    if OPT['fline'] & 1:
        for r in range(8):
            a('s_add_u32 s%d, s86, %d', 4 + r, 5120 * r)
    a('v_lshlrev_b32 v%d, 7, v%d', vOA + 1, vLANE)
    a('s_lshl_b32 s88, s%d, 12', sTB)
    a('s_add_u32 s88, s88, 0x%x', F4)
    acc = 80
    a.label('L_pgO')
    if OPT['p3dyn']:
        p3_groups(vA0, vOA, acc)
    else:
        p3_static(vA0, vA1, vOA, acc)
    if OPT['fline'] & 1:
        a('s_nop 4')
        for p in range(2):
            for r in range(4):
                a('v_permlane16_swap_b32 v%d, v%d', acc + 8 * p + r, acc + 8 * p + 4 + r)
            for r in range(8):
                a('buffer_store_dword v%d, v%d, s[%d:%d], s%d offen offset:%d%s', acc + 8 * p + r, vST + 1, R4, R4 + 3, 4 + r, 128 * p, OSC)
        for r in range(4):
            a('buffer_store_dword v%d, v%d, s[%d:%d], s%d offen%s', acc + 16 + r, vST, R4, R4 + 3, 4 + r, OSC)
    elif not OPT['jout']:
        a('s_nop 3')
        for j in range(5):
            for r in range(4):
                a(ostore(j, r))
    finish('A')

vXR, vBR, vA0PW = 96, 100, 107
vL, vE, vHW, vHR0, vHR1, vHS, vCH, vCHL, vHH, vP01, vTCH, vHINT = 146, 150, 151, 152, 153, 154, 155, 156, 157, 158, 159, 160
vDX, vDW, vDBX, vDBB = 161, 165, 169, 173
vZ, vWOA, vPAR = 176, 186, 200
vCA, vCR, vHA = 248, 250, 252
vOS = 194
vSPW, vF3, vHT = 191, 192, 193
vAM = 248
vXO, vDO, vOA, vRA, vR1W, vR1R, vR2W, vPW1, vPW2, vAP4 = 164, 165, 166, 167, 169, 170, 171, 172, 173, 174
SENT = 0xffffffff

def s_stage(t, emit=None):
    out = []
    slot = ((t + 1) % 4) * 32768
    if OPT['stag'] >= 8 and t < 10:
        out += ['s_bfe_u32 s82, s%d, 0x%x' % (86 + t // 8, (4 << 16) | (4 * (t % 8))),
                's_add_u32 s82, s82, s85', 's_cmp_ge_u32 s82, 10', 's_cselect_b32 s83, 10, 0', 's_sub_u32 s82, s82, s83']
    elif OPT['stag'] >= 5 and t < 10:
        base, size = {0: (0, 4), 1: (4, 4), 2: (8, 2)}[t // 4] if OPT['stag'] != 7 else ((0, 2) if t < 2 else ((2, 4) if t < 6 else (6, 4)))
        out += ['s_add_u32 s82, s81, %d' % t, 's_and_b32 s82, s82, %d' % (size - 1), 's_add_u32 s82, s82, %d' % base,
                's_add_u32 s82, s82, s85', 's_cmp_ge_u32 s82, 10', 's_cselect_b32 s83, 10, 0', 's_sub_u32 s82, s82, s83']
    out.append('s_add_u32 m0, s74, %d' % slot)
    out.append('s_lshl_b32 s83, s82, 7')
    out.append('s_add_u32 s76, s72, s83')
    if t < 10:
        out += [dma(vDX + i, R0, 76, 1024 * i) for i in range(4)]
        out.append('s_add_u32 m0, s74, %d' % (slot + 16384))
        out.append('s_mul_i32 s83, s82, 245760')
        out.append('s_add_u32 s76, s73, s83')
        out += [dma(vDW + i, R1, 76, 1024 * i) for i in range(4)]
    else:
        out += [dma(vDBX + i, R3, 76, 1024 * i) for i in range(4)]
        out.append('s_add_u32 m0, s75, %d' % (slot + 16384))
        out.append('s_add_u32 s76, s77, s83')
        out += [dma(vDBB + i, R4, 76, 1024 * i) for i in range(3)]
    if not (OPT['stag'] >= 5 and t < 10):
        out.append('s_add_u32 s82, s82, 1')
        out.append('s_cmp_eq_u32 s82, 10')
        out.append('s_cselect_b32 s82, 0, s82')
    if emit is None:
        L = a.newlabel('skip')
        if t < 10:
            a('s_cmp_eq_u32 s%d, 15', sCG)
            a('s_cbranch_scc1 %s', L)
        for o in out:
            a(o)
        if t < 10:
            a.label(L)
    return out

def ninstr(t):
    return 0 if t > 19 else (8 if t < 10 else 7)

def exp_acc(dst, x, t1, t2):
    L2E = math.log2(math.e)
    hi = struct.unpack('<f', struct.pack('<f', L2E))[0]
    a('s_mov_b32 s80, 0x%x', f2u(hi))
    a('v_mul_f32 v%d, s80, v%d', t1, x)
    a('v_fma_f32 v%d, v%d, s80, -v%d', t2, x, t1)
    a('v_fmac_f32 v%d, 0x%x, v%d', t2, f2u(L2E - hi), x)
    a('v_exp_f32 v%d, v%d', dst, t1)
    a('v_mul_f32 v%d, 0x%x, v%d', t2, f2u(math.log(2.0)), t2)
    a('v_fmac_f32 v%d, v%d, v%d', dst, dst, t2)

def s_setup():
    a.label('L_roleS')
    a('s_sub_u32 s%d, s%d, 4', sW, sW)
    a('v_lshrrev_b32 v1, 3, v%d', vLANE)
    a('v_and_b32 v2, 7, v%d', vLANE)
    a('v_lshrrev_b32 v3, 4, v%d', vLANE)
    a('v_xor_b32 v4, v2, v3')
    a('v_mul_u32_u24 v5, 1280, v1')
    a('v_lshl_add_u32 v%d, v4, 4, v5', vDX)
    a('v_xor_b32 v6, 64, v%d', vDX)
    a('v_add_u32 v%d, %d, v6', vDX + 1, 10240 - 1024)
    a('v_add_u32 v%d, %d, v%d', vDX + 2, 2 * (10240 - 1024), vDX)
    a('v_add_u32 v%d, %d, v6', vDX + 3, 3 * (10240 - 1024))
    a('v_and_b32 v7, 15, v%d', vLANE)
    a('v_lshlrev_b32 v8, 2, v3')
    a('v_xor_b32 v7, v7, v8')
    a('v_mul_u32_u24 v8, 3840, v3')
    a('v_lshl_add_u32 v%d, v7, 4, v8', vDW)
    for i in range(1, 4):
        a('v_add_u32 v%d, %d, v%d', vDW + i, (15360 - 1024) * i, vDW)
    a('s_lshl2_add_u32 s72, s%d, s%d', sRB, sW)
    a('s_mul_i32 s72, s72, %d', 32 * 1280)
    a('s_mul_i32 s73, s%d, %d', sW, 16 * 3840)
    a('s_lshl_b32 s70, s%d, 8', sCG)
    a('s_add_u32 s73, s73, s70')
    a('s_lshl_b32 s74, s%d, 12', sW)
    if OPT['stag'] <= 4:
        stagger(82, 83, 0, 0, OPT['stag'])
    else:
        a('s_add_u32 s81, s%d, s%d', sI, sOG)
        a('s_add_u32 s85, s%d, 1', sXCD)
        a('s_lshr_b32 s85, s85, 1')
        a('s_mul_i32 s85, s85, %d', 2 if OPT['stag'] in (5, 8, 9, 10, 11) else 0)
        if OPT['stag'] >= 8:
            T = {8: ['0412385679', '1253049678', '2306145789', '3012745689'],
                 9: ['0142385679', '1253094678', '2306145789', '3017245689'],
                 10: ['0124358679', '1235049678', '2301645789', '3012745689'],
                 11: ['0412835679', '1523904678', '2360145789', '3071245689']}[OPT['stag']]
            for r in T:
                assert sorted(r) == list('0123456789')
            lo = [int(r[:8][::-1], 16) for r in T]
            hi = sum(int(r[8:][::-1], 16) << (8 * c) for c, r in enumerate(T))
            a('s_and_b32 s81, s81, 3')
            a('s_mov_b32 s86, 0x%x', lo[0])
            for c in range(1, 4):
                a('s_cmp_eq_u32 s81, %d', c)
                a('s_cselect_b32 s86, 0x%x, s86', lo[c])
            a('s_lshl_b32 s81, s81, 3')
            a('s_lshr_b32 s87, 0x%x, s81', hi)
    a('s_mov_b32 s%d, 0x%x', R0 + 2, 2048 * 1280)
    a('s_mov_b32 s%d, 0x20000', R0 + 3)
    a('s_mov_b32 s%d, 0x%x', R1 + 2, 640 * 3840)
    a('s_mov_b32 s%d, 0x20000', R1 + 3)
    st0 = s_stage(0, emit=False)
    k = next(i for i, o in enumerate(st0) if o.startswith('buffer_load'))
    for o in st0[:k]:
        a(o)
    a('s_cmp_eq_u32 s%d, 15', sCG)
    a('s_waitcnt lgkmcnt(0)')
    a('s_mov_b64 s[%d:%d], s[%d:%d]', R0, R0 + 1, sAX, sAX + 1)
    a('s_mov_b64 s[%d:%d], s[%d:%d]', R1, R1 + 1, sWQ, sWQ + 1)
    if DIAG:
        ws_setup()
    stamp('S', 'start')
    a('s_cbranch_scc1 L_skip0')
    for o in st0[k:]:
        a(o)
    a.label('L_skip0')
    if not DIAG:
        prologue2()
        ws_setup()
    if OPT['fine'] == 1:
        stamp('S', 'iss0')
    def params():
        a('s_mul_i32 s70, s%d, 40', sG)
        a('v_min_u32 v9, 39, v%d', vLANE)
        a('v_add_lshl_u32 v9, v9, s70, 1')
        a('global_load_ushort v10, v9, s[%d:%d]', sLDT, sLDT + 1)
        a('global_load_ushort v11, v9, s[%d:%d]', sLRE, sLRE + 1)
        a('global_load_ushort v12, v9, s[%d:%d]', sLIM, sLIM + 1)
    params()
    n0 = len(a.lines)
    b1_sources(R3, R4, vDBX, vDBB, 75, 77, 70)
    a('v_and_b32 v5, 3, v%d', vLANE)
    a('v_lshlrev_b32 v5, 8, v5')
    a('v_lshl_add_u32 v5, v%d, 2, v5', vLANE)
    a('v_add_u32 v%d, %d, v5', vSPW, L_PW + 1024)
    s_addresses()
    if OPT['slate']:
        late = a.lines[n0:]
        del a.lines[n0:]
        k = 0
        nch = OPT['slate']
        for c in range(nch):
            e = len(late) * (c + 1) // nch
            while e < len(late) and ('cselect' in late[e] or 'cndmask' in late[e] or 'cndmask' in late[e + 1] or 'cndmask' in late[min(e + 2, len(late) - 1)]):
                e += 1
            SLATE.append(late[k:e])
            k = e
    s_stage(1)
    if OPT['fine'] == 1:
        stamp('S', 'iss1')
    a('s_waitcnt vmcnt(11) lgkmcnt(0)')
    stamp('S', 'st0')
    a('s_barrier')
    s_stage(2)
    slate()
    a('s_waitcnt vmcnt(8)')
    a('s_barrier')
    s_stage(3)
    s_stage(4)

SLATE = []

def slate():
    if SLATE:
        a.lines.extend(SLATE.pop(0))

def s_addresses():
    c, g, t0, t1, t2 = 40, 41, 42, 43, 44
    a('v_and_b32 v%d, 15, v%d', c, vLANE)
    a('v_lshrrev_b32 v%d, 4, v%d', g, vLANE)
    a('v_lshrrev_b32 v%d, 1, v%d', t0, c)
    a('v_xor_b32 v%d, v%d, v%d', t0, t0, g)
    a('v_lshlrev_b32 v%d, 4, v%d', t0, t0)
    a('v_lshl_add_u32 v%d, v%d, 7, v%d', t0, c, t0)
    a('v_xor_b32 v%d, 64, v%d', t1, t0)
    a('v_add_u32 v%d, s74, v%d', vXR, t0)
    a('v_add_u32 v%d, s74, v%d', vXR + 1, t1)
    a('s_mul_i32 s70, s%d, %d', sW, REGSZ)
    a('s_add_u32 s70, s70, %d', L_REG)
    a('v_add_u32 v%d, s70, v%d', vCR, t0)
    a('v_add_u32 v%d, s70, v%d', vCR + 1, t1)
    a('v_lshrrev_b32 v%d, 3, v%d', t2, c)
    a('v_lshl_add_u32 v%d, v%d, 12, v%d', t0, t2, t0)
    a('v_add_u32 v%d, 16384, v%d', vBR, t0)
    a('v_xor_b32 v%d, 64, v%d', vBR + 1, vBR)
    for k in range(2):
        a('v_add_u32 v%d, 0x10000, v%d', vXR + 2 + k, vXR + k)
        a('v_add_u32 v%d, 0x10000, v%d', vBR + 2 + k, vBR + k)
    a('v_and_b32 v%d, 7, v%d', t0, vLANE)
    a('v_lshlrev_b32 v%d, 2, v%d', t2, t2)
    a('v_lshl_add_u32 v%d, v%d, 3, v%d', t0, t0, t2)
    a('v_add_u32 v%d, %d, v%d', vHH, L_H, t0)
    a('v_mul_u32_u24 v%d, 320, v%d', t1, g)
    a('s_mul_i32 s71, s%d, 1280', sW)
    a('s_add_u32 s71, s71, %d', L_EL)
    a('v_add3_u32 v%d, v%d, v%d, s71', vE, t0, t1)
    a('v_lshlrev_b32 v%d, 3, v%d', vCH, vLANE)
    a('v_add_u32 v%d, %d, v%d', vCHL, L_H, vCH)
    a('v_lshlrev_b32 v%d, 9, v%d', vHINT, vLANE)
    a('v_lshlrev_b32 v%d, 2, v%d', vA0PW, vLANE)
    a('v_add_u32 v%d, %d, v%d', vA0PW, L_PW, vA0PW)
    a('v_and_b32 v%d, 0x%x, v%d', vP01, 0xffffffff ^ 512, vSPW)
    a('v_bfe_u32 v%d, v%d, 1, 2', t0, vLANE)
    a('v_xor_b32 v%d, v%d, v%d', t0, t0, g)
    a('v_lshlrev_b32 v%d, 4, v%d', t0, t0)
    a('s_mul_i32 s71, s%d, 5120', sW)
    a('s_add_u32 s71, s71, %d', L_HT)
    a('v_lshl_add_u32 v%d, v%d, 6, v%d', t0, c, t0)
    a('v_add_u32 v%d, s71, v%d', vHW, t0)
    a('v_bfe_u32 v%d, v%d, 2, 2', t0, vLANE)
    a('v_lshrrev_b32 v%d, 5, v%d', t1, vLANE)
    a('v_lshl_add_u32 v%d, v%d, 3, v%d', vHR0, t1, t0)
    a('v_lshlrev_b32 v%d, 6, v%d', vHR0, vHR0)
    a('v_mul_u32_u24 v%d, %d, v%d', vHS, 80 * 256, t1)
    a('v_lshrrev_b32 v%d, 1, v%d', t0, t0)
    a('v_bfe_u32 v%d, v%d, 4, 1', t1, vLANE)
    a('v_bfe_u32 v%d, v%d, 1, 1', t2, vLANE)
    a('v_lshl_add_u32 v%d, v%d, 1, v%d', t2, t1, t2)
    a('v_xor_b32 v%d, v%d, v%d', t2, t2, t0)
    a('v_lshl_add_u32 v%d, v%d, 4, v%d', vHR0, t2, vHR0)
    a('v_and_b32 v%d, 1, v%d', t2, vLANE)
    a('v_lshl_add_u32 v%d, v%d, 3, v%d', vHR0, t2, vHR0)
    a('v_xor_b32 v%d, 32, v%d', vHR1, vHR0)
    a('v_add_u32 v%d, s71, v%d', vHR0, vHR0)
    a('v_add_u32 v%d, s71, v%d', vHR1, vHR1)
    a('v_mul_u32_u24 v%d, %d, v%d', t1, HBLK, t1)
    a('v_lshl_add_u32 v%d, v%d, 4, v%d', t1, c, t1)
    a('v_add_u32 v%d, v%d, v%d', vHS, vHS, t1)
    if OPT['otag'] and not OPT['amark']:
        a('v_bfe_u32 v%d, v%d, 4, 1', t0, vLANE)
        a('v_mul_u32_u24 v%d, %d, v%d', t0, OBLK, t0)
        a('v_lshl_add_u32 v%d, v%d, 4, v%d', t0, c, t0)
        a('v_lshrrev_b32 v%d, 5, v%d', t1, vLANE)
        a('v_mul_u32_u24 v%d, %d, v%d', t2, 2 * OBLK, t1)
        a('v_add_u32 v%d, v%d, v%d', vOS + 1, t2, t0)
        a('v_lshl_add_u32 v%d, v%d, 8, v%d', vOS, t1, t0)
        for k in range(4):
            a('v_mov_b32 v%d, -1', vOS + 2 + k)
    a('v_mov_b32 v%d, v%d', vCA, vDX)
    a('v_mov_b32 v%d, v%d', vCA + 1, vDX + 1)
    a('v_lshlrev_b32 v%d, 4, v%d', vHA, vLANE)
    a('v_lshlrev_b32 v%d, 7, v%d', vF3, vLANE)
    a('v_min_u32 v%d, %d, v%d', vHT, 39 * 128, vF3)
    a('s_xor_b32 s92, s%d, 1', sW)
    a('s_mul_i32 s92, s92, %d', REGSZ)
    a('s_add_u32 s92, s92, %d', L_REG)
    a('s_xor_b32 s93, s%d, 3', sW)
    a('s_mul_i32 s93, s93, %d', REGSZ)
    a('s_add_u32 s93, s93, %d', L_REG + 16 * 336)
    if not OPT['wopack']:
        s_wooffs()

def s_params():
    a('s_cmp_eq_u32 s%d, 0', sW)
    a('s_cbranch_scc0 L_nopar')
    for r in (10, 11, 12):
        a('v_lshlrev_b32 v%d, 16, v%d', r, r)
    exp_acc(13, 10, 14, 15)
    a('v_cvt_pk_bf16_f32 v13, v13, v13')
    a('v_and_b32 v13, 0xffff0000, v13')
    a('v_mul_f32 v14, v13, v11')
    a('v_mul_f32 v15, v13, v12')
    exp_acc(16, 14, 17, 18)
    I2P = 1.0 / (2 * math.pi)
    hi = struct.unpack('<f', struct.pack('<f', I2P))[0]
    a('s_mov_b32 s80, 0x%x', f2u(hi))
    a('v_mul_f32 v17, s80, v15')
    a('v_rndne_f32 v17, v17')
    a('v_fma_f32 v17, v15, s80, -v17')
    a('v_fmac_f32 v17, 0x%x, v15', f2u(I2P - hi))
    a('v_cos_f32 v20, v17')
    a('v_sin_f32 v21, v17')
    a('v_mul_f32 v18, v11, v11')
    a('v_fmac_f32 v18, v12, v12')
    a('v_rcp_f32 v19, v18')
    a('v_mul_f32 v20, v16, v20')
    a('v_mul_f32 v21, v16, v21')
    a('v_fma_f32 v18, -v18, v19, 1.0')
    a('v_fmac_f32 v19, v19, v18')
    a('v_add_f32 v19, v19, v19')
    a('v_add_f32 v17, -1.0, v20')
    a('v_mul_f32 v22, v17, v11')
    a('v_fmac_f32 v22, v21, v12')
    a('v_mul_f32 v23, v17, v12')
    a('v_fma_f32 v23, -v21, v11, v23')
    a('v_mul_f32 v22, v22, v19')
    a('v_mul_f32 v23, v23, v19')
    a('v_lshlrev_b32 v9, 4, v%d', vLANE)
    a('v_add_u32 v9, %d, v9', L_PAR)
    a('ds_write_b128 v9, v[20:23]')
    a('v_mov_b32 v24, v20')
    a('v_sub_f32 v25, 0, v21')
    for k in range(3):
        a('v_mul_f32 v26, v25, v25')
        a('v_add_f32 v27, v24, v24')
        a('v_fma_f32 v24, v24, v24, -v26')
        a('v_mul_f32 v25, v27, v25')
    a.label('L_nopar')

def s_params2():
    a('s_cmp_eq_u32 s%d, 0', sW)
    a('s_cbranch_scc0 L_nopar2')
    a('s_mov_b32 exec_hi, 0xff')
    a('v_mov_b32 v14, 1.0')
    a('v_mov_b32 v15, 0')
    a('ds_write_b64 v%d, v[14:15] offset:%d', vCHL, L_Z - L_H)
    a('ds_write_b64 v%d, v[24:25] offset:%d', vCHL, L_Z - L_H + 320)
    src = 24
    for sg in range(2, 17):
        dst = 16 + 2 * (sg % 3)
        a('v_mul_f32 v%d, v24, v%d', dst, src)
        a('v_mul_f32 v%d, v24, v%d', dst + 1, src + 1)
        a('v_fma_f32 v%d, -v25, v%d, v%d', dst, src + 1, dst)
        a('v_fmac_f32 v%d, v25, v%d', dst + 1, src)
        a('ds_write_b64 v%d, %s offset:%d', vCHL, v(dst, 2), L_Z - L_H + 320 * sg)
        src = dst
    a('s_mov_b32 exec_hi, -1')
    a('s_waitcnt lgkmcnt(0)')
    a.label('L_nopar2')

def s_wooffs():
    for i in range(5):
        a('v_add_u32 v40, %d, v%d', 64 * i, vLANE)
        a('v_mul_u32_u24 v41, 6554, v40')
        a('v_lshrrev_b32 v41, 16, v41')
        a('v_mul_u32_u24 v42, 10, v41')
        a('v_sub_u32 v40, v40, v42')
        tau(42, 41, 43)
        a('v_mul_u32_u24 v42, 1280, v42')
        a('v_lshl_add_u32 v%d, v40, 4, v42', vWOA + i)
        if 0 < i < 4:
            a('v_subrev_u32 v%d, %d, v%d', vWOA + i, 1024 * i, vWOA + i)

def s_qloader():
    early = {1: {7: 10}, 2: {7: 10, 9: 11}, 3: {7: 10, 8: 11, 9: 12}, 0: {}}[OPT['st10']]
    q = [2] * 8 + [3] * 8 + [4] * 8
    for st in range(2, 10):
        a('s_waitcnt vmcnt(%d)', len(q) - 1 - max(i for i, x in enumerate(q) if x == st))
        if OPT['fine'] == 1 and st in (2, 4, 6, 7, 8, 9):
            stamp('S', 'st%d' % st)
        a('s_barrier')
        if st == 6:
            a('v_and_b32 v32, 15, v%d', vLANE)
            a('v_lshlrev_b32 v32, 4, v32')
            a('v_mov_b32 v33, 1')
            a('s_cmp_eq_u32 s%d, 3', sW)
            a('s_cbranch_scc0 L_nodbg')
            a(dbgload(32, 33))
            a.label('L_nodbg')
            a('s_cmp_eq_u32 s%d, 15', sCG)
            a('s_cbranch_scc0 L_cw')
            a('s_waitcnt vmcnt(0)')
            a.label('L_cw')
        if st <= 6:
            s_stage(st + 3)
            q += [st + 3] * 8
            slate()
        if st == OPT['pretouch']:
            a('s_cmp_eq_u32 s%d, 2', sW)
            a('s_cselect_b32 s70, s%d, s%d', sBRE, sBIM)
            a('s_cselect_b32 s71, s%d, s%d', sBRE + 1, sBIM + 1)
            a('s_mul_i32 s83, s2, 3200')
            a('s_lshl1_add_u32 s84, s2, s%d', sW)
            a('s_mul_i32 s84, s84, 5120')
            a('s_cmp_lt_u32 s%d, 2', sW)
            a('s_cselect_b32 s70, s%d, s70', sBX)
            a('s_cselect_b32 s71, s%d, s71', sBX + 1)
            a('s_cselect_b32 s83, s84, s83')
            a('s_cselect_b32 s84, 39, 24')
            a('v_min_u32 v30, s84, v%d', vLANE)
            a('v_lshl_add_u32 v30, v30, 7, s83')
            a('global_load_dword v31, v30, s[70:71]')
            q.append('t')
        if st == 7:
            stagger(82, 83, 0, OPT['flip'], OPT['stagb'])
        if st in early:
            s_stage(early[st])
            q += [early[st]] * 7
        if st == 7 and not OPT['plate']:
            s_params()
        if st == 8 and not OPT['plate']:
            s_params2()

    a('v_cmp_eq_u32 vcc, 0, v33')
    a('s_cbranch_vccz L_clrok')
    pollflags([dbgload(32, 33)], 33, sleep=8)
    a.label('L_clrok')
    a('s_barrier')
    stamp('S', 'qend')
    if OPT['plate']:
        s_params()
        s_params2()
    else:
        s_consts()

def s_consts():
    a('v_and_b32 v104, 7, v%d', vLANE)
    a('v_lshlrev_b32 v104, 4, v104')
    a('v_add_u32 v104, %d, v104', L_PAR)
    for j in range(5):
        a('ds_read_b128 %s, v104 offset:%d', v(vPAR + 4 * j, 4), 128 * j)
    a('v_and_b32 v105, -8, v%d', vE)
    a('v_add_u32 v105, %d, v105', L_Z - L_EL)
    for j in range(5):
        a('ds_read_b64 %s, v105 offset:%d', v(vZ + 2 * j, 2), 64 * j)
    a('s_cmp_eq_u32 s%d, 0', sW)
    a('s_cselect_b32 s70, 1, 16')
    a('s_mul_i32 s70, s70, 320')
    a('v_add_u32 v106, s70, v%d', vCHL)
    a('ds_read_b64 %s, v106 offset:%d', v(vL, 2), L_Z - L_H)
    a('v_bfe_u32 v145, v%d, 3, 1', vLANE)
    a('v_lshlrev_b32 v145, 31, v145')
    a('v_xor_b32 v144, 0x80000000, v145')
    a('s_waitcnt lgkmcnt(0)')
    for j in range(5):
        a('v_xor_b32 v%d, v145, v%d', vPAR + 4 * j + 1, vPAR + 4 * j + 1)
        a('v_xor_b32 v%d, v145, v%d', vPAR + 4 * j + 2, vPAR + 4 * j + 2)
        a('v_xor_b32 v%d, v144, v%d', vZ + 2 * j + 1, vZ + 2 * j + 1)

def touch(r, va=None):
    o = ['s_add_u32 s84, s%d, %d' % (sXCD, r),
         's_cmp_ge_u32 s84, 6', 's_cselect_b32 s85, 6, 0', 's_sub_u32 s84, s84, s85',
         's_cmp_ge_u32 s84, 6', 's_cselect_b32 s85, 6, 0', 's_sub_u32 s84, s84, s85',
         's_cmp_ge_u32 s84, 2',
         's_cselect_b32 s86, s%d, s%d' % (sCRE, sWO), 's_cselect_b32 s87, s%d, s%d' % (sCRE + 1, sWO + 1),
         's_cmp_ge_u32 s84, 4',
         's_cselect_b32 s86, s%d, s86' % sCIM, 's_cselect_b32 s87, s%d, s87' % (sCIM + 1),
         's_and_b32 s84, s84, 1', 's_mul_i32 s84, s84, 3200',
         's_add_u32 s86, s86, s84', 's_addc_u32 s87, s87, 0',
         'global_load_dword v109, v%d, s[86:87]' % (va or vTCH)]
    return o

def s_b1():
    F = [40, 68]
    def reads(t, ks, f):
        slot = (t + 1) % 4
        hi, lo = slot >> 1, (slot & 1) * 32768
        r = ['ds_read_b128 %s, v%d offset:%d' % (v(f + 4 * T, 4), vXR + 2 * hi + ks, lo + 2048 * T) for T in range(2)]
        r += ['ds_read_b128 %s, v%d offset:%d' % (v(f + 8 + 4 * j, 4), vBR + 2 * hi + ks, lo + 1024 * j) for j in range(5)]
        return r
    def mfmas(f, first):
        return ['v_mfma_f32_16x16x32_bf16 %s, %s, %s, %s' % (v(8 * j + 4 * T, 4), v(f + 4 * T, 4), v(f + 8 + 4 * j, 4),
                '0' if first else v(8 * j + 4 * T, 4)) for j in range(5) for T in range(2)]
    def weave(ms, others):
        n = len(ms)
        k = 0
        for i_, m in enumerate(ms):
            a(m)
            while k < len(others) * (i_ + 1) // n:
                a(others[k])
                k += 1
    first = 10 + OPT['st10']
    a('s_lshl4_add_u32 s84, s%d, s%d', sCG, sRB)
    flagaddr(84, 84, F1, 85)
    a('s_waitcnt vmcnt(%d)', max(0, 7 * (first - 11)))
    a('s_barrier')
    for r in reads(10, 0, F[0]):
        a(r)
    for u in range(10):
        t = 10 + u
        if OPT['fine'] == 1 and u in (0, 2, 3, 4, 8):
            stamp('S', 'b1w%d' % u)
        a('s_waitcnt lgkmcnt(0)')
        m0_ = mfmas(F[0], u == 0)
        weave(m0_[:4], reads(t, 1, F[1]))
        for m in m0_[4:]:
            a(m)
        m1_ = mfmas(F[1], False)
        if u < 9:
            if t + 1 < first:
                a('s_waitcnt vmcnt(%d) lgkmcnt(0)', 7 * (first - t - 2))
            else:
                if t + 1 == first and OPT['plate']:
                    s_consts()
                a('s_waitcnt lgkmcnt(0)')
            a('s_barrier')
            if t + 1 == first:
                a('s_cmp_eq_u32 s%d, 3', sW)
                a('s_cbranch_scc0 L_noflag')
                setflag(84, 104)
                a.label('L_noflag')
            weave(m1_[:4], reads(t + 1, 0, F[0]))
            for m in m1_[4:]:
                a(m)
        else:
            a('s_waitcnt lgkmcnt(0)')
            for m in m1_:
                a(m)
    stamp('S', 'b1gemm')

def rot5(dst, t):
    a('s_and_b32 s%d, s%d, 3', dst, sI)
    a('s_add_u32 s%d, s%d, s%d', dst, dst, sXCD)
    for _ in range(2):
        a('s_cmp_ge_u32 s%d, 5', dst)
        a('s_cselect_b32 s%d, 5, 0', t)
        a('s_sub_u32 s%d, s%d, s%d', dst, dst, t)
    if not OPT['rot5']:
        a('s_mov_b32 s%d, 0', dst)

def s_wo():
    if OPT['wopack']:
        a('s_mov_b32 s73, 0x%x', F1 + 15 * 16 * 128)
        a('s_mov_b64 exec, 0xffff')
        pollflags(['buffer_load_dword v40, v%d, s[%d:%d], s73 offen sc1' % (vF3, RWS, RWS + 3)], 40, sleep=4)
        rot5(83, 73)
        a('s_mul_i32 s75, s%d, 102400', sOG)
        a('s_add_u32 s75, s75, 0x%x', WS_WP)
        a('s_mov_b32 s77, 5')
        a.label('L_woloop')
        a('s_lshl2_add_u32 s78, s83, s%d', sW)
        a('s_mul_i32 s78, s78, 5120')
        a('s_add_u32 s79, s78, s75')
        a('s_mov_b32 m0, s78')
        for i in range(5):
            if i == 4:
                a('s_add_u32 m0, s78, 4096')
                a('s_add_u32 s79, s79, 4096')
            a('s_waitcnt vmcnt(%d)', OPT['thrw'])
            a(dma(vHA, RWS, 79, 1024 * (i & 3)).replace(' lds', ' sc1 lds'))
    else:
        srd(R0, sWO, 640 * 1280)
        rot5(83, 73)
        a('s_mul_i32 s75, s%d, 160', sOG)
        a('s_mov_b32 s77, 5')
        a.label('L_woloop')
        a('s_lshl2_add_u32 s78, s83, s%d', sW)
        a('s_mul_i32 s79, s78, 40960')
        a('s_add_u32 s79, s79, s75')
        a('s_mul_i32 s78, s78, 5120')
        a('s_mov_b32 m0, s78')
        a('s_add_u32 s73, s78, 4096')
        for i in range(5):
            if i == 4:
                a('s_mov_b32 m0, s73')
            a('s_waitcnt vmcnt(%d)', OPT['thrw'])
            a(dma(vWOA + i, R0, 79, 1024 * (i & 3)))
    a('s_add_u32 s83, s83, 1')
    a('s_cmp_eq_u32 s83, 5')
    a('s_cselect_b32 s83, 0, s83')
    a('s_sub_u32 s77, s77, 1')
    a('s_cmp_lg_u32 s77, 0')
    a('s_cbranch_scc1 L_woloop')
    for kp in range(5):
        a('s_lshl_b32 s73, s83, 7')
        a('s_add_u32 s%d, s72, s73', 4 + kp)
        a('s_lshl_b32 s%d, s83, 11', 12 + kp)
        a('s_add_u32 s83, s83, 1')
        a('s_cmp_eq_u32 s83, 5')
        a('s_cselect_b32 s83, 0, s83')

def s_mark(both):
    a('s_and_b32 s78, s%d, 1', sW)
    a('s_lshl1_add_u32 s78, s%d, s78', sQB)
    a('s_lshr_b32 s79, s%d, 1', sW)
    a('s_lshl1_add_u32 s78, s78, s79')
    a('s_mul_i32 s78, s78, %d', 4 * OBLK)
    a('s_lshr_b32 s79, s%d, 1', sHD)
    a('s_mul_i32 s79, s79, 1280')
    a('s_add_u32 s78, s78, s79')
    a('s_add_u32 s78, s78, 0x%x', WS_O)
    a('s_and_b32 s79, s%d, 1', sHD)
    a('s_mul_i32 s73, s79, 768')
    a('s_add_u32 s73, s73, s78')
    a('s_add_u32 s75, s73, %d', 2 * OBLK)
    a('s_lshl3_add_u32 s78, s79, s78')
    for k in range(2 if both else 1):
        if k:
            for r in (73, 75, 78):
                a('s_sub_u32 s%d, s%d, %d', r, r, 4 * OBLK)
        a('buffer_store_dwordx4 %s, v%d, s[%d:%d], s73 offen sc1', v(vOS + 2, 4), vOS, RWS, RWS + 3)
        a('buffer_store_dwordx4 %s, v%d, s[%d:%d], s75 offen sc1', v(vOS + 2, 4), vOS, RWS, RWS + 3)
        a('buffer_store_dwordx2 %s, v%d, s[%d:%d], s78 offen offset:512 sc1', v(vOS + 2, 2), vOS + 1, RWS, RWS + 3)

def s_scan():
    ROR = 'row_ror:8 row_mask:0xf bank_mask:0xf'
    a('s_setprio 1')
    a('s_lshl_b32 s70, s%d, 13', sG)
    a('s_add_u32 s70, s70, 0x%x', WS_E)
    a('s_add_u32 s70, s70, s%d', sWS)
    a('s_addc_u32 s71, s%d, 0', sWS + 1)
    srd(R5, 70, 8192)
    a('s_sub_u32 s70, 15, s%d', sRB)
    a('s_lshl_b32 s70, s70, 9')
    a('s_add_u32 s71, s70, 4096')
    tmp = 40
    for j in range(5):
        for k in range(8):
            a('v_mul_f32_dpp v%d, v%d, v%d %s', tmp + k, 8 * j + k, vPAR + 4 * j + 3, ROR)
        for k in range(8):
            a('v_fma_f32 v%d, v%d, v%d, v%d', 8 * j + k, vPAR + 4 * j + 2, 8 * j + k, tmp + k)
    e = [[8 * j for j in range(5)], [50 + j for j in range(5)], [56 + j for j in range(5)]]
    cur = e[0]
    for k in range(1, 8):
        nx = e[1 + (k & 1)]
        for j in range(5):
            a('v_fma_f32 v%d, v%d, v%d, v%d', nx[j], vPAR + 4 * j, cur[j], 8 * j + k)
        for j in range(5):
            a('v_fmac_f32_dpp v%d, v%d, v%d %s', nx[j], cur[j], vPAR + 4 * j + 1, ROR)
        cur = nx
    for j in range(5):
        a('ds_write_b32 v%d, v%d offset:%d', vE, cur[j], 64 * j)
    setpw(11, 104)
    for r in range(10 - OPT['tstart'], 0 if OPT['tlate'] else 6):
        a('s_waitcnt vmcnt(0)')
        for o in touch(r):
            a(o)
    stamp('S', 'pass1')
    def chain(dst, src, add):
        a('v_fma_f32 v%d, v%d, v%d, v%d', dst, vL, src, add)
        a('v_fma_f32 v%d, v%d, v%d, v%d', dst + 1, vL, src + 1, add + 1)
        a('v_fma_f32 v%d, -v%d, v%d, v%d', dst, vL + 1, src + 1, dst)
        a('v_fmac_f32 v%d, v%d, v%d', dst + 1, vL + 1, src)
    ES = 110
    a('s_cmp_eq_u32 s%d, 1', sW)
    a('s_cbranch_scc1 L_wave1')
    a('s_cmp_eq_u32 s%d, 0', sW)
    a('s_cbranch_scc0 L_wave23')
    waitpw(vSPW, 11, 105, sleep=1)
    a('s_mov_b32 exec_hi, 0xff')
    for sg in range(16):
        a('ds_read_b64 %s, v%d offset:%d', v(ES + 2 * sg, 2), vCHL, L_EL - L_H + 320 * sg)
    a('v_mov_b32 v142, 0')
    a('v_mov_b32 v143, 0')
    a('s_waitcnt lgkmcnt(0)')
    a('ds_write_b64 v%d, v[142:143] offset:%d', vCHL, L_PL - L_H)
    for sg in range(1, 16):
        a('ds_write_b64 v%d, %s offset:%d', vCHL, v(ES + 2 * sg - 2, 2), L_PL - L_H + 320 * sg)
        chain(ES + 2 * sg, ES + 2 * sg - 2, ES + 2 * sg)
    a('v_min_u32 v%d, -2, v%d', ES + 30, ES + 30)
    a('v_min_u32 v%d, -2, v%d', ES + 31, ES + 31)
    a('buffer_store_dwordx2 %s, v%d, s[%d:%d], s70 offen sc1', v(ES + 30, 2), vCH, R5, R5 + 3)
    a('s_mov_b32 exec_hi, -1')
    setpw(12, 104)
    a('s_branch L_coldone')
    a.label('L_wave1')
    a.label('L_hint')
    a('buffer_load_dword v105, v%d, s[%d:%d], s70 offen offset:512 sc1', vHINT, R5, R5 + 3)
    a('s_waitcnt vmcnt(0)')
    a('v_cmp_eq_u32 vcc, -1, v105')
    a('s_cbranch_vccz L_hintok')
    a('s_mov_b64 exec, vcc')
    a('s_sleep 3')
    a.label('L_hint2')
    a('s_sub_u32 s%d, s%d, 1', sSPIN, sSPIN)
    a('s_cbranch_scc0 L_hint')
    a('s_endpgm')
    a.label('L_hintok')
    a('s_mov_b32 exec_lo, -1')
    a('s_mov_b32 exec_hi, 0xff')
    for k in range(15, 0, -1):
        a('buffer_load_dwordx2 %s, v%d, s[%d:%d], s%d offen offset:%d sc1', v(ES + 2 * (15 - k), 2), vCH, R5, R5 + 3,
          71 if k >= 8 else 70, 512 * (k & 7))
    a('s_waitcnt vmcnt(0)')
    a('v_max_u32 v105, v%d, v%d', ES, ES + 1)
    for n in range(1, 15):
        a('v_max3_u32 v105, v105, v%d, v%d', ES + 2 * n, ES + 2 * n + 1)
    a('v_cmp_eq_u32 vcc, -1, v105')
    a('s_cbranch_vccnz L_hint2')
    for n in range(1, 15):
        chain(ES + 2 * n, ES + 2 * n - 2, ES + 2 * n)
    a('ds_write_b64 v%d, %s', vCHL, v(ES + 28, 2))
    a('s_mov_b32 exec_hi, -1')
    setpw(12, 104)
    a('s_branch L_coldone')
    a.label('L_wave23')
    if OPT['otag'] and not OPT['amark'] and OPT['smark']:
        if OPT['smark'] == 1:
            waitpw(vA0PW, 5, 105, sleep=2)
        s_mark(True)
    if OPT['woe']:
        E = OPT['woe']
        srd(R0, sWO, 640 * 1280)
        a('s_mul_i32 s75, s%d, 160', sOG)
        a('s_and_b32 s83, s%d, 3', sI)
        a('s_add_u32 s83, s83, s%d', sXCD)
        waitpw(vA0PW, 5, 105, sleep=2)
        for it in range(E):
            a('s_add_u32 s78, s83, %d', it)
            a('s_and_b32 s78, s78, %d', E - 1)
            a('s_lshl1_add_u32 s78, s78, s%d', sW)
            a('s_sub_u32 s78, s78, 2')
            a('s_mul_i32 s79, s78, 40960')
            a('s_add_u32 s79, s79, s75')
            a('s_mul_i32 s78, s78, 5120')
            a('s_mov_b32 m0, s78')
            for i in range(5):
                if i == 4:
                    a('s_add_u32 m0, s78, 4096')
                a('s_waitcnt vmcnt(%d)', OPT['thre'])
                a(dma(vWOA + i, R0, 79, 1024 * (i & 3)))
    if OPT['gtouch'] in (1, 2):
        a('s_cmp_eq_u32 s%d, 2', sW)
        a('s_cbranch_scc0 L_coldone')
        a('v_min_u32 v106, %d, v%d', 24 * 128, vF3)
        a('s_mul_i32 s78, s2, 3200')
        a('v_add_u32 v106, s78, v106')
        if OPT['gtouch'] == 1:
            waitpw(vA0PW, 5, 105, sleep=2)
        for p in (sCRE, sCIM, sWO):
            a('global_load_dword v109, v106, s[%d:%d]', p, p + 1)
    if OPT['tearly']:
        waitpw(vA0PW, 5, 105, sleep=2)
    for r in range(OPT['tearly']):
        for o in touch(r, vCT):
            a(o)
        if r + 1 < OPT['tearly']:
            a('s_waitcnt vmcnt(0)')
    a.label('L_coldone')
    a('s_lshl2_add_u32 s70, s%d, s%d', sRB, sW)
    a('s_mul_i32 s71, s70, %d', 2 * HBLK)
    a('s_mul_i32 s78, s%d, 1280', sG)
    a('s_add_u32 s71, s71, s78')
    a('s_add_u32 s71, s71, 0x%x', WS_H)
    a('s_lshl4_add_u32 s70, s70, s%d', sG)
    flagaddr(70, 70, F3, 78)
    waitpw(vP01, 12, 105, sleep=4)
    stamp('S', 'carry')
    if OPT['gtouch'] == 3:
        a('s_cmp_eq_u32 s%d, 1', sW)
        a('s_cselect_b32 s78, s%d, s%d', sCRE, sCIM)
        a('s_cselect_b32 s79, s%d, s%d', sCRE + 1, sCIM + 1)
        a('s_cmp_eq_u32 s%d, 2', sW)
        a('s_cselect_b32 s78, s%d, s78', sWO)
        a('s_cselect_b32 s79, s%d, s79', sWO + 1)
        a('s_mul_i32 s80, s2, 3200')
        a('s_add_u32 s78, s78, s80')
        a('s_addc_u32 s79, s79, 0')
        a('s_cmp_eq_u32 s%d, 0', sW)
        a('s_cbranch_scc1 L_notouch')
        a('s_mov_b64 exec, 0x1ffffff')
        a('global_load_dword v109, v%d, s[78:79]', vF3)
        a('s_mov_b64 exec, -1')
        a.label('L_notouch')
    for j in range(5):
        a('ds_read_b32 v%d, v%d offset:%d', 50 + j, vE, L_PL - L_EL + 64 * j)
        a('ds_read_b32 v%d, v%d offset:%d', 56 + j, vHH, 64 * j)
    a('s_waitcnt lgkmcnt(0)')
    for j in range(5):
        a('v_fmac_f32 v%d, v%d, v%d', 50 + j, vZ + 2 * j, 56 + j)
    for j in range(5):
        a('v_fmac_f32_dpp v%d, v%d, v%d %s', 50 + j, 56 + j, vZ + 2 * j + 1, ROR)
    for k in range(8):
        pr = [50 + j if k == 0 else 8 * j + k - 1 for j in range(5)]
        for j in range(5):
            a('v_fmac_f32 v%d, v%d, v%d', 8 * j + k, vPAR + 4 * j, pr[j])
        for j in range(5):
            a('v_fmac_f32_dpp v%d, v%d, v%d %s', 8 * j + k, pr[j], vPAR + 4 * j + 1, ROR)
    for j in range(5):
        for q in range(4):
            a('v_cvt_pk_bf16_f32 v%d, v%d, v%d', 64 + 4 * j + q, 8 * j + 2 * q, 8 * j + 2 * q + 1)
        a('ds_write_b128 v%d, %s offset:%d', vHW, v(64 + 4 * j, 4), 1024 * j)
        a('ds_read_b64_tr_b16 %s, v%d offset:%d', v(110 + 4 * j, 2), vHR0, 1024 * j)
        a('ds_read_b64_tr_b16 %s, v%d offset:%d', v(110 + 4 * j + 2, 2), vHR1, 1024 * j + 256)
    HS = OPT['hsplit']
    for j in range(5):
        if HS and j == HS:
            a('s_waitcnt lgkmcnt(0)')
            setpw(13, 104)
        if HS and j >= HS:
            a('s_waitcnt vmcnt(%d)', HS - 1)
        else:
            a('s_waitcnt lgkmcnt(%d)', 12 - 3 * j)
        a('buffer_store_dwordx4 %s, v%d, s[%d:%d], s71 offen offset:%d sc1', v(110 + 4 * j, 4), vHS, RWS, RWS + 3, 256 * j)
    if not HS:
        setpw(13, 104)

def s_b3():
    NS = 4
    acc, HF, CF = 0, 80, [208, 216]
    a('s_cmp_ge_u32 s%d, 2', sW)
    a('s_cselect_b32 s78, s%d, s%d', sCIM, sCRE)
    a('s_cselect_b32 s79, s%d, s%d', sCIM + 1, sCRE + 1)
    srd(R1, 78, 640 * 1280)
    srd(R6, sOUT, 2048 * 1280 * 4)
    a('s_mul_i32 s74, s%d, %d', sW, REGSZ)
    a('s_add_u32 s74, s74, %d', L_REG)
    a('s_and_b32 s78, s%d, 1', sW)
    a('s_mul_i32 s72, s%d, %d', sOG, 80 * 1280)
    a('s_mul_i32 s73, s78, 640')
    a('s_add_u32 s72, s72, s73')
    a('s_mul_i32 s79, s%d, %d', sW, 40 * 256)
    a('s_add_u32 s79, s79, 0x%x', WS_H)
    a('s_lshr_b32 s80, s%d, 1', sW)
    a('s_lshl1_add_u32 s78, s78, s80')
    for l in range(4):
        a('s_xor_b32 s80, s78, %d', l)
        a('s_lshl2_add_u32 s80, s%d, s80', sTB)
        a('s_mul_i32 s80, s80, %d', HBLK)
        a('s_add_u32 s%d, s80, s79', 84 + l)
    a('s_lshl_b32 s88, s%d, 12', sTB)
    a('s_add_u32 s88, s88, 0x%x', F3)
    a('s_lshl2_add_u32 s78, s%d, s78', sTB)
    a('s_mul_i32 s80, s78, %d', 16 * 1280)
    a('s_mul_i32 s81, s%d, 160', sOG)
    a('s_add_u32 s80, s80, s81')
    a('s_mul_i32 s82, s78, %d', 16 * 5120)
    a('s_lshl1_add_u32 s82, s81, s82')
    a('s_add_u32 s82, s82, 2560')
    a('s_add_u32 s90, s%d, s81', sDSK)
    a('s_addc_u32 s91, s%d, 0', sDSK + 1)
    a('s_lshl2_add_u32 s89, s%d, s%d', sOG, sW)
    a('s_mul_i32 s89, s89, 5120')
    a('s_mul_i32 s79, s%d, %d', sTB, 4 * HBLK)
    a('s_add_u32 s89, s89, s79')
    a('s_add_u32 s89, s89, 0x%x', WS_H)
    a('s_waitcnt vmcnt(0)')
    setflag(70, 40)
    if OPT['otag'] and not OPT['amark'] and not OPT['smark']:
        s_mark(False)
    stamp('S', 'hpub')
    if OPT['tlate']:
        for k in range(4):
            a('s_mov_b32 s%d, s%d', 4 + k, 84 + k)
        for r in range(OPT['tearly'], 6):
            for o in touch(r):
                a(o)
            a('s_waitcnt vmcnt(0)')
        for k in range(4):
            a('s_mov_b32 s%d, s%d', 84 + k, 4 + k)
    if OPT['newpre']:
        def cdma(n, pace=None):
            kp, j = divmod(n, 5)
            a('s_add_u32 m0, s74, %d', 2048 * (n % NS))
            a('s_add_u32 s76, s%d, %d', 4 + kp, 16 * 1280 * j)
            for k in range(2):
                if pace is not None:
                    a('s_waitcnt vmcnt(%d)', pace)
                a(dma(vCA + k, R1, 76, 1024 * k))
        def hload(l, ks):
            return 's_add_u32 s9, s%d, s%d\nbuffer_load_dwordx4 %s, v%d, s[%d:%d], s9 offen offset:%d sc1' % (
                84 + l, 12 + ks // 2, v(HF + 16 * (ks % 8) + 4 * l, 4), vHA, RWS, RWS + 3, 1024 * (ks & 1))
        srd(R0, sWO, 640 * 1280)
        rot5(83, 73)
        for kp in range(5):
            a('s_lshl_b32 s73, s83, 7')
            a('s_add_u32 s%d, s72, s73', 4 + kp)
            a('s_lshl_b32 s%d, s83, 11', 12 + kp)
            a('s_lshl2_add_u32 s%d, s83, s%d', 17 + kp, sW)
            a('s_add_u32 s83, s83, 1')
            a('s_cmp_eq_u32 s83, 5')
            a('s_cselect_b32 s83, 0, s83')
        NIT = 5 - OPT['woe'] // 2
        if OPT['woe']:
            a('s_cmp_ge_u32 s83, %d', NIT)
            a('s_cselect_b32 s73, %d, 0', NIT)
            a('s_sub_u32 s83, s83, s73')
            if NIT == 4:
                a('s_add_u32 s83, s%d, s%d', sI, sXCD)
                a('s_and_b32 s83, s83, 3')
            for it in range(NIT):
                a('s_lshl2_add_u32 s%d, s83, s%d', 17 + it, sW)
                a('s_add_u32 s%d, s%d, %d', 17 + it, 17 + it, 2 * OPT['woe'])
                a('s_add_u32 s83, s83, 1')
                a('s_cmp_eq_u32 s83, %d', NIT)
                a('s_cselect_b32 s83, 0, s83')
        a('s_mul_i32 s75, s%d, 160', sOG)
        waitpw(vSPW, 13, 41, sleep=2)
        for n in range(NS):
            cdma(n, OPT['thrc'])
        pl = 'buffer_load_dword v41, v%d, s[%d:%d], s88 offen sc1' % (vF3, RWS, RWS + 3)
        for it in range(NIT):
            if it == OPT['f3at']:
                a('s_mov_b32 exec_hi, 0')
                a(pl)
                a('s_mov_b32 exec_hi, -1')
            a('s_mul_i32 s79, s%d, 40960', 17 + it)
            a('s_add_u32 s79, s79, s75')
            a('s_mul_i32 s78, s%d, 5120', 17 + it)
            a('s_mov_b32 m0, s78')
            for i in range(5):
                if i == 4:
                    a('s_add_u32 m0, s78, 4096')
                a('s_waitcnt vmcnt(%d)', OPT['thrw'] + (1 if it == NIT - 1 and OPT['hin'] else 0))
                a(dma(vWOA + i, R0, 79, 1024 * (i & 3)))
                if it == NIT - 1 and OPT['hin'] and i < 4:
                    a(hload(i, 0))
                    a(hload(i, 1))
            if it == OPT['f3at']:
                a('s_mov_b32 exec_hi, 0')
                a('s_waitcnt vmcnt(5)')
                a('v_cmp_eq_u32 vcc, 0, v41')
                a('s_cbranch_vccz L_f3seen')
                a('s_mov_b64 exec, vcc')
                pollflags([pl], 41, sleep=4)
                a.label('L_f3seen')
                a('s_mov_b64 exec, -1')
                stamp('S', 'f3')
                a('buffer_load_dword v41, v%d, s[%d:%d], s89 offen sc1', vHT, RWS, RWS + 3)
        stamp('S', 'wo')
        a('v_mov_b32 v42, 14')
        for ks in range(0 if OPT['hin'] else 2):
            for l in range(4):
                a('s_waitcnt vmcnt(%d)', OPT['thrw'] + 1)
                a(hload(l, ks))
        if OPT['hin']:
            a('s_waitcnt vmcnt(0)')
        a('ds_write_b32 v%d, v42', vPW)
        a('s_setprio %d', OPT['b3prio'])
    else:
        stamp('S', 'touch')
        s_wo()
        waitpw(vSPW, 13, 40, sleep=2)
        def cdma(n):
            kp, j = divmod(n, 5)
            a('s_add_u32 m0, s74, %d', 2048 * (n % NS))
            a('s_add_u32 s76, s%d, %d', 4 + kp, 16 * 1280 * j)
            a(dma(vCA, R1, 76, 0))
            a(dma(vCA + 1, R1, 76, 1024))
        for n in range(NS):
            cdma(n)
            a('s_waitcnt vmcnt(%d)', 0 if n == NS - 1 else 4)
        setpw(14, 40)
        stamp('S', 'wo')
        a('s_cmp_eq_u32 s%d, 2', sW)
        a('s_cbranch_scc0 L_f3wait')
        a('s_mov_b32 exec_hi, 0')
        pollflags(['buffer_load_dword v40, v%d, s[%d:%d], s88 offen sc1' % (vF3, RWS, RWS + 3)], 40, sleep=4)
        setpw(15, 40)
        a.label('L_f3wait')
        waitpw(vS2PW, 15, 40, sleep=4)
        stamp('S', 'f3')
        a('s_setprio %d', OPT['b3prio'])
        def hload(l, ks):
            return 's_add_u32 s9, s%d, s%d\nbuffer_load_dwordx4 %s, v%d, s[%d:%d], s9 offen offset:%d sc1' % (
                84 + l, 12 + ks // 2, v(HF + 16 * (ks % 8) + 4 * l, 4), vHA, RWS, RWS + 3, 1024 * (ks & 1))
        a('buffer_load_dword v40, v%d, s[%d:%d], s89 offen sc1', vHT, RWS, RWS + 3)
        for ks in range(2):
            if ks:
                a('s_waitcnt vmcnt(0)')
            for l in range(4):
                a(hload(l, ks))
    def creads(n):
        return ['ds_read_b128 %s, v%d offset:%d' % (v(CF[n & 1] + 4 * k, 4), vCR + k, 2048 * (n % NS)) for k in range(2)]
    q = []
    def waitfor(tag):
        idx = max(i for i, x in enumerate(q) if x == tag)
        n = len(q) - 1 - idx
        del q[:idx + 1]
        return n
    for r in creads(0):
        a(r)
    a('s_waitcnt vmcnt(0) lgkmcnt(0)')
    stamp('S', 'b3go')
    cdma(NS)
    q += [NS, NS]
    vX, vD = HF + 64, HF + 74
    hq = [(l, ks) for ks in range(2, 10) for l in range(4)]
    STOP = OPT['b3stop']
    frag = {0: CF[0]}
    free = [216, 224, 232, 240]
    def creads(n):
        return ['ds_read_b128 %s, v%d offset:%d' % (v(frag[n] + 4 * k, 4), vCR + k, 2048 * (n % NS)) for k in range(2)]
    def fetch():
        n = len(frag)
        frag[n] = free.pop(0)
        if n in q:
            a('s_waitcnt vmcnt(%d)', waitfor(n))
        for r in creads(n):
            a(r)
        return n
    def refill(n, defer=False):
        a('s_waitcnt lgkmcnt(0)')
        if n + NS < 25:
            cdma(n + NS)
            if defer:
                q.append(n + NS)
                return (a.lines.pop(), n + NS)
            q.extend([n + NS, n + NS])
    t0, t1, t2 = 175, 249, vAP4
    addr = ['v_lshrrev_b32 v%d, 2, v%d' % (t0, vLANE),
            'v_and_b32 v%d, 3, v%d' % (t1, vLANE),
            'v_lshlrev_b32 v%d, 3, v%d' % (vDO, t1),
            'v_mul_u32_u24 v%d, 1280, v%d' % (t2, t0),
            'v_add_u32 v%d, v%d, v%d' % (vXO, t2, vDO),
            'v_lshlrev_b32 v%d, 4, v%d' % (t1, t1),
            'v_lshl_add_u32 v%d, v%d, 2, v%d' % (vOA, t2, t1),
            'v_mul_u32_u24 v%d, 336, v%d' % (t2, t0),
            'v_add3_u32 v%d, v%d, v%d, s92' % (vRA, t2, t1),
            'v_add3_u32 v%d, v%d, v%d, s93' % (vRA + 1, t2, t1),
            'v_lshlrev_b32 v%d, 4, v%d' % (t1, t1),
            'v_lshl_add_u32 v%d, v%d, 2, v%d' % (t1, vLANE, t1),
            'v_add_u32 v%d, %d, v%d' % (vAP4, L_PW, t1),
            'v_add_u32 v%d, s74, v%d' % (vR1W, vHA),
            'v_add_u32 v%d, s92, v%d' % (vR1R, vHA),
            'v_and_b32 v%d, 15, v%d' % (t0, vLANE),
            'v_mul_u32_u24 v%d, 336, v%d' % (t0, t0),
            'v_and_b32 v%d, 48, v%d' % (t1, vLANE),
            'v_add3_u32 v%d, v%d, v%d, s92' % (vR2W, t0, t1),
            'v_xor_b32 v%d, 256, v%d' % (vPW1, vPW),
            'v_xor_b32 v%d, 512, v%d' % (vPW2, vPW)]
    FL = OPT['fline'] & 2
    if FL:
        pXO, pDO, pOA, pRA = 160, 161, 162, (163, 175)
        a('s_and_b32 s22, s%d, 1', sOG)
        a('s_xor_b32 s23, s22, 1')
        a('s_lshl_b32 s22, s22, 2')
        a('s_lshl_b32 s23, s23, 4')
        a('s_add_u32 s24, s80, %d', 8 * 1280)
        a('s_add_u32 s25, s82, %d', 8 * 5120)
        def aset(sh, mask, so, xo, do, oa, ra):
            return ['v_and_b32 v%d, %d, v%d' % (t1, mask, vLANE),
                    'v_add_lshl_u32 v%d, v%d, s%d, 3' % (do, t1, so),
                    'v_lshrrev_b32 v%d, %d, v%d' % (t1, sh, vLANE),
                    'v_mul_u32_u24 v%d, 1280, v%d' % (t2, t1),
                    'v_add_u32 v%d, v%d, v%d' % (xo, t2, do),
                    'v_add_lshl_u32 v%d, v%d, v%d, 1' % (oa, t2, xo),
                    'v_mul_u32_u24 v%d, 168, v%d' % (t2, t1),
                    'v_add_lshl_u32 v%d, v%d, v%d, 1' % (t2, t2, do),
                    'v_add_u32 v%d, s92, v%d' % (ra[0], t2),
                    'v_add_u32 v%d, s93, v%d' % (ra[1], t2)]
        addr = aset(3, 7, 22, pXO, pDO, pOA, pRA) + aset(2, 3, 23, vXO, vDO, vOA, (vRA, vRA + 1)) + [
            'v_add_u32 v%d, s74, v%d' % (vR1W, vHA),
            'v_add_u32 v%d, s92, v%d' % (vR1R, vHA),
            'v_and_b32 v%d, 15, v%d' % (t2, vLANE),
            'v_mul_u32_u24 v%d, 336, v%d' % (t2, t2),
            'v_and_b32 v%d, 48, v%d' % (t1, vLANE),
            'v_add3_u32 v%d, v%d, v%d, s92' % (vR2W, t2, t1),
            'v_xor_b32 v%d, 256, v%d' % (vPW1, vPW),
            'v_xor_b32 v%d, 512, v%d' % (vPW2, vPW),
            'v_and_b32 v%d, 3, v%d' % (t1, vLANE),
            'v_lshlrev_b32 v%d, 8, v%d' % (t1, t1),
            'v_lshl_add_u32 v%d, v%d, 2, v%d' % (t1, vLANE, t1),
            'v_add_u32 v%d, %d, v%d' % (vAP4, L_PW, t1)]
    dsel = (lambda i: (i & 1) if i < 4 else 2) if FL else (lambda i: i)
    assert 10 <= STOP <= 15
    for n in range(25):
        kp, j = divmod(n, 5)
        if n == 10:
            free += [HF + 32 + 8 * k for k in range(4)]
        if n == STOP:
            while len(frag) <= 20 or hq:
                for _ in range(1 if OPT['even'] else 99):
                    if hq:
                        l, ks = hq.pop(0)
                        a(hload(l, ks))
                        q.append('h%d' % (ks // 2))
                if len(frag) <= 20:
                    refill(fetch())
            a('s_setprio 1')
            a('v_and_b32 v%d, 1, v%d', vAM, vLANE)
            a('v_lshlrev_b32 v%d, 9, v%d', vAM, vAM)
            a('v_xor_b32 v%d, v%d, v%d', vAM, vAM, vPW)
            a('v_subrev_u32 v%d, 1024, v%d', vAM, vAM)
            a('s_waitcnt vmcnt(0)')
            del q[:]
            stamp('S', 'b3stop')
            waitpw(vAM, OPT['b3res'], 249, sleep=OPT['rsleep'])
            stamp('S', 'b3res')
        want = n + 2 if n >= STOP else max(n + 2, 21 - OPT['ahead'] * (STOP - 1 - n))
        f1 = fetch() if (len(frag) < min(25, want) and free) else None
        if j == 0 and 'h%d' % kp in q:
            a('s_waitcnt vmcnt(%d)', waitfor('h%d' % kp))
        if OPT['fine'] >= 2 and n in (3, 6, 9):
            stamp('S', 'u%d' % n)
        extra = []
        for _ in range(OPT['hrate']):
            if hq and (hq[0][1] < 8 or n >= 5):
                l, ks = hq.pop(0)
                extra.append((hload(l, ks), 'h%d' % (ks // 2)))
        if 16 <= n < 21 and FL:
            i = n - 16
            if i in (0, 1, 4):
                extra.append(('global_load_dwordx2 %s, v%d, s[90:91] offset:%d' % (v(vD + 2 * dsel(i), 2), pDO if i < 4 else vDO, 64 * (i & 1)), 'x'))
            extra.append(('buffer_load_dwordx2 %s, v%d, s[%d:%d], s%d offen offset:%d' % (v(vX + 2 * i, 2), pXO if i < 4 else vXO, R3, R3 + 3,
                                                                                     24 if i in (2, 3) else 80, 64 * (i & 1)), 'x'))
        elif 16 <= n < 21:
            i = n - 16
            extra += [('global_load_dwordx2 %s, v%d, s[90:91] offset:%d' % (v(vD + 2 * i, 2), vDO, 32 * i), 'x'),
                      ('buffer_load_dwordx2 %s, v%d, s[%d:%d], s80 offen offset:%d' % (v(vX + 2 * i, 2), vXO, R3, R3 + 3, 32 * i), 'x')]
        cnt = 0
        f2 = None
        for k in range(2):
            ks = 2 * kp + k
            for l in range(4):
                d = acc + 20 * l + 4 * j
                a('v_mfma_f32_16x16x32_bf16 %s, %s, %s, %s', v(d, 4), v(frag[n] + 4 * k, 4), v(HF + 16 * (ks % 8) + 4 * l, 4),
                  '0' if ks == 0 else v(d, 4))
                cnt += 1
                EV = OPT['even'] and n < STOP - 1 and OPT['hrate'] == 2
                if EV:
                    if cnt == 3:
                        second = refill(f1, True)
                    if cnt == 7:
                        assert second
                        a(second[0])
                        q.append(second[1])
                    if cnt in (1, 5) and extra:
                        o, tg = extra.pop(0)
                        a(o)
                        q.append(tg)
                    continue
                if cnt in (1, 2, 5, 6) and extra:
                    o, tg = extra.pop(0)
                    a(o)
                    q.append(tg)
                elif n >= 15 and addr:
                    a(addr.pop(0))
                if cnt == (4 if n < STOP else 6) and f1 is not None:
                    refill(f1)
                    if len(frag) < min(21, want) and free:
                        f2 = fetch()
                if cnt == 8 and f2 is not None:
                    refill(f2)
        assert not extra
        free.append(frag[n])
    assert not addr
    assert not hq
    stamp('S', 'b3gemm')
    T = 112
    if OPT['b3res'] < 7:
        waitpw(vAM, 7, T, sleep=2)
    else:
        a('s_nop 3')
    for qd in range(10):
        a('ds_write_b128 v%d, %s offset:%d', vR1W, v(acc + 40 + 4 * qd, 4), 1024 * qd)
    setpw(17, T + 1)
    if OPT['fine'] == 2:
        stamp('S', 'w1')
    a('s_waitcnt vmcnt(0)')
    if OPT['fine'] == 2:
        stamp('S', 'xw')
    U = 180
    def rsel(i, b):
        if not FL:
            return vRA + b, 64 * i
        return (pRA[b], 8 * 336 * (i >> 1) + 128 * (i & 1)) if i < 4 else (vRA + b, 0)
    def skip(i):
        for hf in range(2):
            a('v_lshlrev_b32 v%d, 16, v%d', T + 4, vX + 2 * i + hf)
            a('v_lshlrev_b32 v%d, 16, v%d', T + 5, vD + 2 * dsel(i) + hf)
            a('v_and_b32 v%d, 0xffff0000, v%d', T + 6, vX + 2 * i + hf)
            a('v_and_b32 v%d, 0xffff0000, v%d', T + 7, vD + 2 * dsel(i) + hf)
            a('v_mul_f32 v%d, v%d, v%d', U + 4 * i + 2 * hf, T + 4, T + 5)
            a('v_mul_f32 v%d, v%d, v%d', U + 4 * i + 2 * hf + 1, T + 6, T + 7)
    skip(0)
    skip(1)
    if OPT['fine'] == 2:
        stamp('S', 'r1w')
    waitpw(vPW1, 17, T + 1)
    if OPT['fine'] == 2:
        stamp('S', 'r1s')
    for qd in (5, 6, 7, 8, 9, 0, 1, 2, 3, 4):
        a('ds_read_b128 %s, v%d offset:%d', v(acc + 40 + 4 * qd, 4), vR1R, 1024 * qd)
    skip(2)
    a('s_waitcnt lgkmcnt(0)')
    for qd in (5, 6, 7, 8, 9, 0, 1, 2, 3, 4):
        l, j = divmod(qd, 5)
        for e in range(4):
            a('v_add_f32 v%d, v%d, v%d', acc + 4 * qd + e, acc + 4 * qd + e, acc + 40 + 4 * qd + e)
        a('ds_write_b128 v%d, %s offset:%d', vR2W, v(acc + 4 * qd, 4), 16 * 336 * l + 64 * j)
        if qd == 9:
            setpw(18, T + 1)
    for i in range(5):
        a('ds_read_b128 %s, v%d offset:%d', v(acc + 40 + 8 * i, 4), *rsel(i, 0))
    skip(3)
    skip(4)
    if OPT['fine'] == 2:
        stamp('S', 'r2w')
    waitpw(vPW2, 18, T + 1)
    if OPT['fine'] == 2:
        stamp('S', 'r2s')
    for i in range(5):
        a('ds_read_b128 %s, v%d offset:%d', v(acc + 44 + 8 * i, 4), *rsel(i, 1))
    for i in range(5):
        for e in range(4):
            a('v_add_f32 v%d, v%d, v%d', U + 4 * i + e, U + 4 * i + e, acc + 40 + 8 * i + e)
    for i in range(5):
        a('s_waitcnt lgkmcnt(%d)', 4 - i)
        for e in range(4):
            a('v_add_f32 v%d, v%d, v%d', U + 4 * i + e, U + 4 * i + e, acc + 44 + 8 * i + e)
    stamp('S', 'yrdy')
    if OPT['yhold']:
        waitpw(vAP4, 9, T + 1, sleep=OPT['ysleep'])
    for i in range(5):
        if FL:
            a('buffer_store_dwordx4 %s, v%d, s[%d:%d], s%d offen offset:%d%s', v(U + 4 * i, 4), pOA if i < 4 else vOA, R6, R6 + 3,
              25 if i in (2, 3) else 82, 128 * (i & 1), YSC)
        else:
            a('buffer_store_dwordx4 %s, v%d, s[%d:%d], s82 offen offset:%d%s', v(U + 4 * i, 4), vOA, R6, R6 + 3, 64 * i, YSC)
    finish('S')

prologue()
a.c('======== S role: set-up, first stages of the QKV GEMM')
s_setup()
a.c('======== S role: loader of the QKV GEMM')
s_qloader()
if OPT['sexit'] == 1:
    setpw(99, 40)
    finish('S')
a.c('======== S role: SSM input GEMM')
s_b1()
if OPT['sexit'] == 2:
    setpw(99, 40)
    finish('S')
a.c('======== S role: scan')
s_scan()
a.c('======== S role: SSM output GEMM')
s_b3()
a.label('L_exit')
a('s_endpgm')
flush_cold()
a.c('======== A role: set-up')
a_setup()
if OPT['alate'] != 1:
    a_b1_setup()
if not OPT['alate']:
    a_att_setup()
if OPT['aearly']:
    n0_ = len(a.lines)
    a_att_setup()
    del a.lines[n0_ + OPT['aearly']:]
a.c('======== A role: QKV GEMM')
a_qphase()
a.c('======== A role: loader of the SSM input GEMM, wait for Q/K/V')
a_handoff()
a.c('======== A role: attention')
a_attention()
a.c('======== A role: output projection')
a_outproj()
flush_cold()
a.label('L_codeend')

DOC = '; ---------------------------------------------------------------------------------------------------------------\n; Hand-offs between workgroups: write-through (sc1) stores, s_waitcnt vmcnt, then a flag on its own line; readers poll\n; and load with sc1.  Flags are cleared in this launch before use (signalled through d_debug).  All waits are bounded.\n; ---------------------------------------------------------------------------------------------------------------\n'
errs = check(a.lines)
for e_ in errs:
    print('HAZARD', e_, file=sys.stderr)

head = open('cdna_kernels/%s.s.ref' % NAME).read().split('; @launch')[0]
out = head + '; @launch grid=(256,1,1) block=(512,1,1) lds=%d\n' % LDS_BYTES
out += DOC
out += '''.amdgcn_target "amdgcn-amd-amdhsa--gfx950"
.text
.globl %s_kernel
.p2align 8
.type %s_kernel,@function
%s_kernel:
''' % (NAME, NAME, NAME)
body = a.text().replace('QSC', ['sc1', 'sc0 sc1', 'sc1 nt', 'sc0 sc1 nt'][OPT['qsc']])
foot = '''.section .rodata,"a"
.p2align 6
.amdhsa_kernel %s_kernel
  .amdhsa_next_free_vgpr 256
  .amdhsa_next_free_sgpr 102
  .amdhsa_accum_offset 256
  .amdhsa_group_segment_fixed_size 0
  .amdhsa_kernarg_size 120
  .amdhsa_user_sgpr_count 2
  .amdhsa_user_sgpr_kernarg_segment_ptr 1
  .amdhsa_system_sgpr_workgroup_id_x 1
.end_amdhsa_kernel
''' % NAME
import re, subprocess
def render(pads):
    def f(m):
        if not OPT['pgalign']:
            return ''
        return '.p2align 12\n.fill %d, 4, 0xbf810000' % (pads.get(m.group(1), 0) // 4)
    return out + re.sub(r'\.PAD (\w+) (\w+)', f, body) + foot
pads = {}
for _ in range(3 if OPT['pgalign'] else 0):
    open('pad.s', 'w').write(render(pads))
    subprocess.run(['clang', '-x', 'assembler', '-target', 'amdgcn-amd-amdhsa', '-mcpu=gfx950', '-c', 'pad.s', '-o', 'pad.o'], check=True)
    sym = {l.split()[-1]: int(l.split()[0], 16) for l in subprocess.run(['llvm-objdump', '-t', 'pad.o'], capture_output=True, text=True).stdout.splitlines() if ' L_' in l}
    for st_, tg_ in re.findall(r'\.PAD (\w+) (\w+)', body):
        d = (-(sym[tg_] - sym[st_])) % 4096
        pads[st_] = (d + 63) // 64 * 64 % 4096
open(sys.argv[1], 'w').write(render(pads))
if DIAG:
    import json
    json.dump(nstamp, open(sys.argv[1] + '.stamps.json', 'w'))
import subprocess
r_ = subprocess.run(['clang', '-x', 'assembler', '-target', 'amdgcn-amd-amdhsa', '-mcpu=gfx950', '-c', sys.argv[1], '-o', 'chk.o'], capture_output=True, text=True)
if r_.returncode:
    print(r_.stderr[:2000])
    sys.exit(1)
if errs:
    sys.exit(1)
```

```python
import sys, math, struct
from asmlib import Asm, v, s, check

NAME = 'concat_heads__mha_block__ssm_conv_s5__prompt'
OPT = dict(diag=0, b3start=12, force_fb=0, psleep=0, fine=0, cpre=1, stag=10, b1dep=2, rot=1, thr=4, hold=3, codepre=2, psleep4=0, padto=0, outsc1=1, gate4=-1, early0=1, st10=3, b1prio=0, probe='', probewg=-1, sexit=0, b3prio=0, nocdma=0, mallpre=0, b3early=1, pretouch=-1, pace=0, pause=1, wolate=1, thrw=2, kvsplit=5, tstart=0, k2split=0, gate1='x', tlate=0, spread=1, pollat=17, tearly=0, b3stop=12, b3res=8, hrate=2, yhold=1, rot5=1, wopack=0, olead=20, allpoll=1, ysc=1, clrwide=0, nodup=1, onewait=0, vzero=1, lalign=6, lpad=0, epoll=0, npre=2, tprio=0, pgate=1, p3dyn=0, flip=1, newpre=1, f3at=2, gtouch=3, pkmerge=1, kvplain=0, acq=0, stagb=4, alate=2, slate=0, plate=1, seq='', unroll=2, lean=1, yearly=0, ysleep=2, cmap=1, l2pre=2, xpre=0, hack16=0, fastpro=1, gsleep=0, rsleep=2, xtail=1, ctail=0, hin=1, ahead=9, woe=0, thre=2, tlb=0, qsc=0, otag=0, amark=0, smark=0, x8first=1, pgalign=1, aearly=0, adep=2, eb=0, s1late=1, rotm=7, nowait=0, hsplit=2, thrc=3, even=1, jout=0, fline=3, klin=3, fastred=0, snodup=0)
for a_ in sys.argv[2:]:
    k_, v_ = a_.split('=')
    OPT[k_] = v_ if k_ in ('probe', 'gate1', 'seq') else int(v_)
DIAG = OPT['diag']
OSC = ['', ' sc1', ' nt', ' sc1 nt'][OPT['outsc1']]
YSC = ['', ' sc1', ' nt', ' sc1 nt'][OPT['ysc']]

def f2u(x):
    return struct.unpack('<I', struct.pack('<f', x))[0]

BLK, VOFF, VROW = 247808, 164864, 10368
WS_H, HBLK = 0x800000, 40960
WS_O, OBLK = 0xD00000, 20480
WS_E = 0xF80000
WS_F = 0xFA0000
F1, F3, F4 = WS_F, WS_F + 0x8000, WS_F + 0x28000
WS_WP = 0x1000000
WS_END = WS_WP + 8 * 102400
WS_DIAG = 0x1100000
OOB = 0x7F000000
L_HT, L_H, L_EL, L_PL = 65536, 86016, 86528, 91648
L_PAR, L_Z = 131072, 132096
L_WO = 0
L_REG, REGSZ = 102400, 14848
L_PW = 161792
LDS_BYTES = 163840
sAX, sWQ, sWO, sBX, sLRE, sLIM, sBRE, sBIM, sCRE, sCIM, sLDT, sDSK, sOUT, sDBG, sWS = range(4, 34, 2)
sW, sI, sXCD = 34, 35, 3
R0, R1, RWS, R3, R4, R5, R6 = 36, 40, 44, 48, 52, 56, 60
sRB, sCG, sHD, sQB, sTB, sOG = 64, 65, 66, 67, 68, 69
sG = 97
sSPIN = 96
sHI = 94
vLANE, vPW, vTS = 254, 253, 255
SPIN_MAX = 1 << 19

a = Asm()
nstamp = {}

def stamp(role, name):
    if OPT['probe'] == role + name:
        a('s_memrealtime s[98:99]')
        a('s_waitcnt lgkmcnt(0)')
        a('s_mov_b32 s101, s98')
    if not DIAG:
        return
    l = nstamp.setdefault(role, [])
    if DIAG == 2:
        l.append(name)
        if role + name == 'Aattpro':
            a('s_memrealtime s[98:99]')
            a('s_waitcnt lgkmcnt(0)')
            a('v_writelane_b32 v%d, s98, 29', vTS)
        return
    idx = len(l)
    l.append(name)
    a('s_memtime s[98:99]')
    a('s_memrealtime s[100:101]')
    a('s_waitcnt lgkmcnt(0)')
    a('v_writelane_b32 v%d, s98, %d', vTS, idx)
    a('v_writelane_b32 v%d, s100, %d', vTS, 32 + idx)

def srd(r, base, nbytes):
    a('s_mov_b32 s%d, s%d', r, base)
    a('s_mov_b32 s%d, s%d', r + 1, base + 1)
    if isinstance(nbytes, int):
        a('s_mov_b32 s%d, 0x%x', r + 2, nbytes)
    else:
        a('s_mov_b32 s%d, %s', r + 2, nbytes)
    a('s_mov_b32 s%d, 0x20000', r + 3)

def setpw(val, tmp):
    a('v_mov_b32 v%d, %d', tmp, val)
    a('ds_write_b32 v%d, v%d', vPW, tmp)

COLD = []

def retry(label, back, sleep, pre=()):
    COLD.append(label + ':')
    COLD.extend(pre)
    if sleep:
        COLD.append('s_sleep %d' % sleep)
    COLD.append('s_sub_u32 s%d, s%d, 1' % (sSPIN, sSPIN))
    COLD.append('s_cbranch_scc0 %s' % back)
    COLD.append('s_endpgm')

def flush_cold():
    a.lines.extend(COLD)
    del COLD[:]

def waitpw(vaddr, val, tmp, sleep=0, extra=()):
    L = a.newlabel('pw')
    D = a.newlabel('pwr')
    a.label(L)
    a('ds_read_b32 v%d, v%d', tmp, vaddr)
    for e in extra:
        a(e)
    if not sleep:
        a('s_sub_u32 s%d, s%d, 1', sSPIN, sSPIN)
        a('s_cbranch_scc1 L_exit')
    a('s_waitcnt lgkmcnt(%d)', len(extra))
    a('v_cmp_gt_u32 vcc, %d, v%d', val, tmp)
    if not sleep:
        a('s_cbranch_vccnz %s', L)
        return
    a('s_cbranch_vccnz %s', D)
    retry(D, L, sleep)

def pollflags(loads, tmp, sleep=1):
    L = a.newlabel('pf')
    D = a.newlabel('pfr')
    a.label(L)
    for l in loads:
        a(l)
    if not sleep:
        a('s_sub_u32 s%d, s%d, 1', sSPIN, sSPIN)
        a('s_cbranch_scc1 L_exit')
    a('s_waitcnt vmcnt(0)')
    for i in range(1, len(loads)):
        a('v_and_b32 v%d, v%d, v%d', tmp, tmp, tmp + i)
    a('v_cmp_eq_u32 vcc, 0, v%d', tmp)
    if not sleep:
        a('s_and_b64 exec, exec, vcc')
        a('s_cbranch_scc1 %s', L)
    else:
        a('s_cbranch_vccnz %s', D)
        retry(D, L, sleep, ['s_mov_b64 exec, vcc'])
    a('s_mov_b64 exec, -1')

def dbgload(va, vd):
    return 'global_load_dword v%d, v%d, s[%d:%d] sc1' % (vd, va, sDBG, sDBG + 1)

def flagaddr(dst, idx, base, t):
    a('s_lshl_b32 s%d, s%d, 7', dst, idx)
    a('s_add_u32 s%d, s%d, 0x%x', dst, dst, base)

def setflag(soff, tmp):
    a('v_mov_b32 v%d, 1', tmp)
    a('s_mov_b64 exec, 1')
    a('buffer_store_dword v%d, off, s[%d:%d], s%d sc1', tmp, RWS, RWS + 3, soff)
    a('s_mov_b64 exec, -1')

def tau(dst, src, t):
    a('v_and_b32 v%d, 0x13, v%d', dst, src)
    a('v_and_b32 v%d, 4, v%d', t, src)
    a('v_lshl_or_b32 v%d, v%d, 1, v%d', dst, t, dst)
    a('v_and_b32 v%d, 8, v%d', t, src)
    a('v_lshrrev_b32 v%d, 1, v%d', t, t)
    a('v_or_b32 v%d, v%d, v%d', dst, t, dst)

def finish(role):
    if OPT['probe'][:1] == role:
        if OPT['probe'][1:] == 'drained':
            a('s_waitcnt vmcnt(0)')
            stamp(role, 'drained')
        a('s_sub_u32 s101, s101, s100')
        a('s_mul_i32 s101, s101, 10')
        a('s_add_u32 s101, s101, 10000')
        if OPT['probewg'] >= 0:
            a('s_and_b32 s98, s2, 31')
            a('s_cmp_eq_u32 s98, %d', OPT['probewg'])
            a('s_cselect_b32 s101, s101, 0')
        L = a.newlabel('pad')
        a.label(L)
        a('s_sleep 4')
        a('s_memrealtime s[98:99]')
        a('s_waitcnt lgkmcnt(0)')
        a('s_sub_u32 s98, s98, s100')
        a('s_cmp_lt_u32 s98, s101')
        a('s_cbranch_scc1 %s', L)
    if OPT['padto']:
        L = a.newlabel('pad')
        a.label(L)
        a('s_sleep 4')
        a('s_memrealtime s[98:99]')
        a('s_waitcnt lgkmcnt(0)')
        a('s_sub_u32 s98, s98, s100')
        a('s_cmp_lt_u32 s98, %d', OPT['padto'])
        a('s_cbranch_scc1 %s', L)
    if DIAG:
        stamp(role, 'end')
        a('s_waitcnt vmcnt(0)')
        stamp(role, 'drained')
        a('s_memrealtime s[98:99]')
        a('s_waitcnt lgkmcnt(0)')
        a('v_writelane_b32 v%d, s98, 31', vTS)
        a('s_lshl_b32 s70, s2, 3')
        a('s_add_u32 s70, s70, s%d', sW)
        if role == 'S':
            a('s_add_u32 s70, s70, 4')
        a('s_lshl_b32 s70, s70, 8')
        a('s_add_u32 s70, s70, 0x%x', WS_DIAG)
        a('v_lshlrev_b32 v0, 2, v%d', vLANE)
        a('buffer_store_dword v%d, v0, s[%d:%d], s70 offen', vTS, RWS, RWS + 3)
    a('s_endpgm')

def prologue():
    a('s_cmp_ge_u32 s2, 256')
    a('s_cbranch_scc0 L_go')
    a('s_endpgm')
    a.label('L_go')
    if OPT['padto'] or DIAG or OPT['probe']:
        a('s_memrealtime s[100:101]')
    a('s_load_dwordx16 s[4:19], s[0:1], 0')
    a('s_load_dwordx8 s[20:27], s[0:1], 64')
    a('s_load_dwordx4 s[28:31], s[0:1], 96')
    a('s_load_dwordx2 s[32:33], s[0:1], 112')
    a('s_lshr_b32 s%d, s2, 3', sI)
    if OPT['codepre'] == 2:
        a.c('pull the code into L2: every half wave of an XCD touches one line')
        a('s_getpc_b64 s[76:77]')
        a('v_lshrrev_b32 v1, 5, v0')
        a('v_lshl_add_u32 v1, s%d, 4, v1', sI)
        a('v_min_u32 v1, (L_codeend - L_go) / 128 - 1, v1')
        a('v_lshlrev_b32 v1, 7, v1')
        a('global_load_dword v110, v1, s[76:77]')
    a('v_lshrrev_b32 v1, 6, v0')
    a('v_and_b32 v%d, 63, v0', vLANE)
    a('v_readfirstlane_b32 s%d, v1', sW)
    a('s_and_b32 s%d, s2, 7', sXCD)
    a('s_and_b32 s70, s%d, 3', sI)
    a('s_lshr_b32 s%d, s%d, 2', sOG, sI)
    a('s_lshr_b32 s71, s%d, 1', sXCD)
    a('s_lshl2_add_u32 s%d, s71, s70', sRB)
    a('s_and_b32 s71, s%d, 1', sXCD)
    a('s_lshl3_add_u32 s%d, s71, s%d', sG, sOG)
    a('s_cmp_ge_u32 s%d, %d', sI, 30 if OPT['cmap'] else 99)
    a('s_cselect_b32 s71, 8, 0')
    a('s_xor_b32 s%d, s%d, s71', sCG, sG)
    if DIAG:
        prologue2()
    a('s_cmp_ge_u32 s%d, 4', sW)
    a('s_cbranch_scc0 L_roleA')

def prologue2():
    a('v_lshlrev_b32 v%d, 2, v0', vPW)
    a('v_add_u32 v%d, %d, v%d', vPW, L_PW, vPW)
    a('v_mov_b32 v0, 0')
    a('ds_write_b32 v%d, v0', vPW)
    a('s_lshr_b32 s71, s%d, 3', sI)
    a('s_lshl2_add_u32 s%d, s%d, s71', sHD, sXCD)
    a('s_and_b32 s%d, s%d, 7', sQB, sI)
    a('s_and_b32 s70, s%d, 3', sI)
    a('s_lshl2_add_u32 s%d, s%d, s70', sTB, sXCD)
    a('s_mov_b32 s%d, 0x%x', sSPIN, SPIN_MAX)
    a('s_mov_b32 s%d, 0', sHI)
    a('s_mov_b32 s%d, -1', sHI + 1)

def ws_setup():
    srd(RWS, sWS, WS_END if not DIAG else WS_DIAG + 0x100000)
    if DIAG:
        a('v_mov_b32 v%d, 0', vTS)
        a('v_writelane_b32 v%d, s100, 30', vTS)

def stagger(k, t, add, flp, mode):
    if mode == 4:
        a('s_and_b32 s%d, s%d, 3', k, sI)
        if flp:
            a('s_xor_b32 s%d, s%d, 1', k, k)
        a('s_mul_i32 s%d, s%d, 5', k, k)
        a('s_lshr_b32 s%d, s%d, 1', k, k)
        a('s_mul_i32 s%d, s%d, 5', t, sOG)
        a('s_lshr_b32 s%d, s%d, 2', t, t)
        a('s_add_u32 s%d, s%d, s%d', k, k, t)
    elif mode in (2, 3):
        a('s_add_u32 s%d, s%d, s%d', k, sI, sOG)
        if flp:
            a('s_xor_b32 s%d, s%d, 1', k, k)
        a('s_and_b32 s%d, s%d, %d', k, k, 1 if mode == 2 else 3)
        a('s_mul_i32 s%d, s%d, 5', k, k)
        if mode == 3:
            a('s_lshr_b32 s%d, s%d, 1', k, k)
    else:
        a('s_mov_b32 s%d, 0', k)
    if mode == 0:
        a('s_mov_b32 s%d, %d', k, add)
        return
    a('s_add_u32 s%d, s%d, %d', t, sXCD, 1 + 2 * add)
    a('s_lshr_b32 s%d, s%d, 1', t, t)
    if mode == 1:
        a('s_add_u32 s%d, s%d, %d', t, sXCD, add)
    a('s_add_u32 s%d, s%d, s%d', k, k, t)
    for _ in range(2 if add else 1):
        a('s_cmp_ge_u32 s%d, 10', k)
        a('s_cselect_b32 s%d, 10, 0', t)
        a('s_sub_u32 s%d, s%d, s%d', k, k, t)

def b1_sources(rx, rb, vx, vb, sm, sb, t, j0=2):
    srd(rx, sBX, 2048 * 1280)
    a('s_cmp_ge_u32 s%d, 2', sW)
    a('s_cselect_b32 s%d, s%d, s%d', t, sBIM, sBRE)
    a('s_cselect_b32 s%d, s%d, s%d', t + 1, sBIM + 1, sBRE + 1)
    srd(rb, t, 640 * 1280)
    a('v_lshrrev_b32 v1, 3, v%d', vLANE)
    a('v_and_b32 v2, 7, v%d', vLANE)
    a('v_lshrrev_b32 v3, 4, v%d', vLANE)
    a('v_xor_b32 v4, v2, v3')
    a('v_and_b32 v5, 3, v1')
    a('v_lshrrev_b32 v6, 2, v1')
    a('v_lshl_add_u32 v5, v6, 3, v5')
    a('v_mul_u32_u24 v5, 1280, v5')
    a('v_lshl_add_u32 v%d, v4, 4, v5', vx)
    a('v_xor_b32 v6, 64, v%d', vx)
    a('v_add_u32 v%d, %d, v6', vx + 1, 16 * 1280 - 1024)
    a('v_add_u32 v%d, %d, v%d', vx + 2, 4 * 1280 - 2048, vx)
    a('v_add_u32 v%d, %d, v6', vx + 3, 20 * 1280 - 3072)
    a('s_lshr_b32 s%d, s%d, 1', t, sW)
    a('s_lshl_b32 s%d, s%d, 6', t + 1, t)
    a('v_mul_u32_u24 v5, 1280, v1')
    a('v_lshl_add_u32 v5, v4, 4, v5')
    a('v_xor_b32 v%d, s%d, v5', vb, t + 1)
    for i in range(1, 3):
        a('v_add_u32 v%d, %d, v%d', vb + i, (10240 - 1024) * i, vb)
    a('s_and_b32 s%d, s%d, 1', t + 1, sW)
    a('s_mul_i32 s%d, s%d, 5120', sm, t)
    a('s_mul_i32 s%d, s%d, %d', sb, t + 1, 1024 * j0)
    a('s_add_u32 s%d, s%d, s%d', sm, sm, sb)
    a('s_mul_i32 s%d, s%d, %d', sb, sG, 40 * 1280)
    a('s_mul_i32 s%d, s%d, %d', t + 1, t + 1, 8 * 1280 * j0)
    a('s_add_u32 s%d, s%d, s%d', sb, sb, t + 1)

def dma(voff, r, soff, imm):
    return 'buffer_load_dwordx4 v%d, s[%d:%d], s%d offen offset:%d lds' % (voff, r, r + 3, soff, imm)

def a_b1stage(t):
    slot = ((t + 1) % 4) * 32768
    a('s_add_u32 m0, s6, %d', slot)
    a('s_lshl_b32 s9, s8, 7')
    a('s_add_u32 s12, s4, s9')
    for i in range(4):
        a(dma(112 + i, R5, 12, 1024 * i))
    a('s_add_u32 m0, s7, %d', slot + 16384)
    a('s_add_u32 s12, s5, s9')
    L = a.newlabel('b3rd')
    for i in range(3):
        if i == 2 and OPT['nodup']:
            a('s_cmp_eq_u32 s%d, 1', sCW)
            a('s_cbranch_scc1 %s', L)
        a(dma(116 + i, R6, 12, 1024 * i))
    a.label(L)
    a('s_add_u32 s8, s8, 1')
    a('s_cmp_eq_u32 s8, 10')
    a('s_cselect_b32 s8, 0, s8')

sTW, sCW = 72, 73
vXA, vWA = 96, 104
vF1A = 252
vAPW = 249

def a_setup():
    a('.PAD L_roleA L_pgQ')
    a.label('L_roleA')
    if not DIAG:
        prologue2()
    a('s_waitcnt lgkmcnt(0)')
    ws_setup()
    stamp('A', 'start')
    a('s_lshr_b32 s%d, s%d, 1', sTW, sW)
    a('s_and_b32 s%d, s%d, 1', sCW, sW)
    a('s_lshl1_add_u32 s75, s%d, s%d', sRB, sTW)
    a('s_mul_i32 s74, s75, %d', BLK)
    if OPT['amark'] == 1:
        a_mark()
    a.c('column group 15 has no GEMM tile: these workgroups clear the flags and write the constant blocks')
    a('s_cmp_eq_u32 s%d, 15', sCG)
    a('s_cbranch_scc0 L_noconst')
    a('s_lshl2_add_u32 s77, s%d, s%d', sRB, sW)
    if OPT['clrwide']:
        a('v_lshlrev_b32 v2, 4, v%d', vLANE)
        a('v_min_u32 v3, 496, v2')
        for i in range(4):
            a('v_mov_b32 v%d, 0', 4 + i)
        a('s_mul_i32 s76, s77, 4608')
        a('s_add_u32 s76, s76, 0x%x', WS_F)
        for i in range(4):
            a('buffer_store_dwordx4 v[4:7], v2, s[%d:%d], s76 offen offset:%d sc1', RWS, RWS + 3, 1024 * i)
        a('s_add_u32 s76, s76, 4096')
        a('buffer_store_dwordx4 v[4:7], v3, s[%d:%d], s76 offen sc1', RWS, RWS + 3)
    else:
        a('v_min_u32 v1, 35, v%d', vLANE)
        a('v_lshlrev_b32 v1, 7, v1')
        a('v_mov_b32 v4, 0')
        a('s_mul_i32 s76, s77, 4608')
        a('s_add_u32 s76, s76, 0x%x', WS_F)
        a('buffer_store_dword v4, v1, s[%d:%d], s76 offen sc1', RWS, RWS + 3)
        a('v_lshlrev_b32 v2, 4, v%d', vLANE)
    for i in range(4):
        a('v_mov_b32 v%d, -1', 20 + i)
    a('s_lshl_b32 s76, s77, 11')
    a('s_add_u32 s76, s76, 0x%x', WS_E)
    for i in range(2):
        a('buffer_store_dwordx4 v[20:23], v2, s[%d:%d], s76 offen offset:%d sc1', RWS, RWS + 3, 1024 * i)
    a('v_lshrrev_b32 v1, 3, v%d', vLANE)
    a('v_mul_u32_u24 v1, %d, v1', VROW - 128)
    a('v_add_u32 v1, %d, v1', VOFF + 640 * 16 - 160 * 1024)
    a('v_mul_lo_u32 v1, v1, s%d', sCW)
    a('v_add_u32 v1, v1, v2')
    a('s_mul_i32 s76, s%d, 0x3f803f80', sCW)
    a('v_mov_b32 v8, 0x3f803f80')
    a('v_mov_b32 v9, s76')
    a('v_mov_b32 v10, v8')
    a('v_mov_b32 v11, s76')
    a('s_add_u32 s76, s74, %d', 160 * 1024)
    a('buffer_store_dwordx4 v[8:11], v1, s[%d:%d], s76 offen sc1', RWS, RWS + 3)
    a.label('L_noconst')
    if OPT['codepre'] == 1:
        a.c('pull the code into L2: each wave of an XCD touches a few lines')
        a('s_getpc_b64 s[76:77]')
        a.label('L_pc')
        a('s_sub_u32 s76, s76, L_pc - L_go')
        a('s_subb_u32 s77, s77, 0')
        a('s_lshl2_add_u32 s78, s%d, s%d', sI, sW)
        a('s_mul_i32 s78, s78, 3')
        a('v_min_u32 v1, 2, v%d', vLANE)
        a('v_add_u32 v1, s78, v1')
        a('v_min_u32 v1, (L_codeend - L_go) / 128 - 1, v1')
        a('v_lshlrev_b32 v1, 7, v1')
        a('global_load_dword v110, v1, s[76:77]')
    a.c('LDS fragment addresses for the QKV GEMM')
    a('v_and_b32 v1, 31, v%d', vLANE)
    a('v_lshrrev_b32 v2, 5, v%d', vLANE)
    a('v_bfe_u32 v3, v1, 1, 3')
    a('v_xor_b32 v3, v3, v2')
    a('v_lshlrev_b32 v3, 4, v3')
    a('v_lshl_add_u32 v3, v1, 7, v3')
    a('s_lshl_b32 s76, s%d, 13', sTW)
    a('v_add_u32 v3, s76, v3')
    for ks in range(4):
        a('v_xor_b32 v%d, %d, v3', vXA + ks, ks << 5)
        a('v_add_u32 v%d, 0x10000, v%d', vXA + 4 + ks, vXA + ks)
    a('v_bfe_u32 v4, v%d, 2, 2', vLANE)
    a('v_lshl_add_u32 v5, v2, 3, v4')
    a('v_lshlrev_b32 v5, 8, v5')
    a('v_bfe_u32 v6, v%d, 4, 1', vLANE)
    a('v_and_b32 v7, 1, v%d', vLANE)
    a('v_lshl_add_u32 v6, v6, 1, v7')
    a('s_lshl_b32 s76, s%d, 3', sCW)
    a('v_add_u32 v6, s76, v6')
    a('v_lshlrev_b32 v4, 2, v4')
    a('v_xor_b32 v6, v6, v4')
    a('v_lshl_add_u32 v5, v6, 4, v5')
    a('v_bfe_u32 v7, v%d, 1, 1', vLANE)
    a('v_lshl_add_u32 v5, v7, 3, v5')
    a('v_add_u32 v%d, 16384, v5', vWA)
    a('v_xor_b32 v%d, 64, v%d', vWA + 1, vWA)
    a('v_add_u32 v%d, 0x10000, v%d', vWA + 2, vWA)
    a('v_add_u32 v%d, 0x10000, v%d', vWA + 3, vWA + 1)

def a_qloop(vt):
    F = [64, 80]
    def reads(st, ks, f):
        slot = (st + 1) % 4
        hi, lo = slot >> 1, (slot & 1) * 32768
        r = []
        for T in range(2):
            r.append('ds_read_b128 %s, v%d offset:%d' % (v(f + 4 * T, 4), vXA + 4 * hi + ks, lo + 4096 * T))
        for Tc in range(2):
            for rd in range(2):
                r.append('ds_read_b64_tr_b16 %s, v%d offset:%d' % (v(f + 8 + 4 * Tc + 2 * rd, 2), vWA + 2 * hi + Tc,
                                                                  lo + (16 * ks + 4 * rd) * 256))
        return [r[0], r[2], r[3], r[1], r[4], r[5]]
    def mfma(f, i, j, first):
        acc = (2 * i + j) * 16
        A = f + 4 * i if vt else f + 8 + 4 * i
        B = f + 8 + 4 * j if vt else f + 4 * j
        if OPT['hack16']:
            o = 8 if f == F[1] else 0
            B2 = f + 8 + 4 * (1 - j) if vt else f + 4 * (1 - j)
            return 'v_mfma_f32_16x16x32_bf16 %s, %s, %s, %s\nv_mfma_f32_16x16x32_bf16 %s, %s, %s, %s' % (
                v(acc + o, 4), v(A, 4), v(B, 4), v(acc + o, 4), v(acc + o + 4, 4), v(A, 4), v(B2, 4), v(acc + o + 4, 4))
        return 'v_mfma_f32_32x32x16_bf16 %s, %s, %s, %s' % (v(acc, 16), v(A, 4), v(B, 4), '0' if first else v(acc, 16))
    if OPT['hack16']:
        for i_ in range(64):
            a('v_mov_b32 v%d, 0', i_)
    a('s_barrier')
    for r in reads(0, 0, F[0]):
        a(r)
    for st in range(10):
        for ks in range(4):
            cur, nxt = F[ks & 1], F[(ks + 1) & 1]
            first = st == 0 and ks == 0
            if st == 0 and ks == 3:
                a.label('L_pgV' if vt else 'L_pgQ')
            a('s_waitcnt lgkmcnt(0)')
            if ks == 3:
                a('s_barrier')
                rr = reads(st + 1, 0, nxt) if st < 9 else []
            else:
                rr = reads(st, ks + 1, nxt)
            if st == 9 and ks == 3:
                a(mfma(cur, 0, 0, False))
                a(mfma(cur, 0, 1, False))
                return [mfma(nxt, 1, 1, False), mfma(cur, 1, 0, False), mfma(cur, 1, 1, False)]
            a(mfma(cur, 0, 0, first))
            for r in rr[:3]:
                a(r)
            a(mfma(cur, 0, 1, first))
            for r in rr[3:]:
                a(r)
            a(mfma(cur, 1, 0, first))
            if not (st == 9 and ks == 2):
                a(mfma(cur, 1, 1, first))

def tailweave(ms, work):
    a(ms[0])
    a('s_nop 6')
    a(ms[1])
    a('s_nop 1')
    for o in work[:6]:
        a(o)
    a(ms[2])
    for o in work[6:]:
        a(o)

def a_pack_wo():
    a('s_lshl2_add_u32 s76, s%d, s%d', sRB, sW)
    a('s_mul_i32 s77, s76, 12800')
    a('s_add_u32 s78, s14, s77')
    a('s_addc_u32 s79, s15, 0')
    a('s_mul_i32 s76, s76, 10')
    a('s_mov_b32 s80, 0x%x', WS_WP)
    for n in range(13):
        a('v_add_u32 v60, %d, v%d', 64 * n, vLANE)
        if n == 12:
            a('v_min_u32 v60, 799, v60')
        a('v_lshlrev_b32 v61, 4, v60')
        a('global_load_dwordx4 %s, v61, s[78:79]', v(4 * n, 4))
        a('v_mul_u32_u24 v61, 820, v60')
        a('v_lshrrev_b32 v61, 16, v61')
        a('v_mul_u32_u24 v62, 80, v61')
        a('v_sub_u32 v60, v60, v62')
        a('v_add_u32 v61, s76, v61')
        a('v_mul_u32_u24 v62, 6554, v60')
        a('v_lshrrev_b32 v62, 16, v62')
        a('v_mul_u32_u24 v62, %d, v62', 6400 - 10)
        a('v_add_u32 v60, v60, v62')
        a('v_and_b32 v62, 0xfff3, v61')
        a('v_and_b32 v63, 4, v61')
        a('v_lshl_or_b32 v62, v63, 1, v62')
        a('v_bfe_u32 v63, v61, 3, 1')
        a('v_lshl_or_b32 v62, v63, 2, v62')
        a('v_mul_u32_u24 v62, 10, v62')
        a('v_add_lshl_u32 v%d, v60, v62, 4', 64 + n)
    for n in range(13):
        a('s_waitcnt vmcnt(12)')
        a('buffer_store_dwordx4 %s, v%d, s[%d:%d], s80 offen sc1', v(4 * n, 4), 64 + n, RWS, RWS + 3)
    if OPT['wopack'] > 1:
        a('v_min_u32 v60, 49, v%d', vLANE)
        a('v_lshl_add_u32 v60, v60, 7, s77')
        a('v_add_u32 v61, 6400, v60')
        for p in (sCRE, sCIM):
            a('global_load_dword v111, v60, s[%d:%d]', p, p + 1)
            a('global_load_dword v111, v61, s[%d:%d]', p, p + 1)

def a_qphase():
    a('s_cmp_ge_u32 s%d, 10', sCG)
    a('s_cbranch_scc1 L_qV')
    a('v_and_b32 v1, 31, v%d', vLANE)
    a('v_lshrrev_b32 v2, 5, v%d', vLANE)
    a('v_lshlrev_b32 v1, 4, v1')
    a('v_lshl_add_u32 v108, v2, 10, v1')
    a('s_lshl1_add_u32 s76, s%d, s%d', sCG, sCW)
    a('s_lshl_b32 s77, s76, 13')
    a('s_add_u32 s77, s77, s74')
    a('s_add_u32 s78, s77, 4096')
    a('s_mul_i32 s79, s%d, 3', sCW)
    a('s_add_u32 s79, s79, s%d', sCG)
    for _ in range(2):
        a('s_cmp_ge_u32 s79, 5')
        a('s_cselect_b32 s80, 5, 0')
        a('s_sub_u32 s79, s79, s80')
    for Tc in range(2):
        for u in range(2):
            m = 20 + 2 * (2 * Tc + u)
            a('s_cmp_eq_u32 s79, %d', (2 - 4 * Tc - 2 * u) % 5)
            a('s_cselect_b32 s%d, -1, 0', m)
            a('s_cmp_eq_u32 s79, %d', (1 - 4 * Tc - 2 * u) % 5)
            a('s_cselect_b32 s%d, -1, 0', m + 1)
    c0 = f2u(math.log2(math.e) / math.sqrt(20.0))
    a('s_mov_b32 s80, 0x%x', c0)
    ms = a_qloop(False)
    def group(Tc, u, scale):
        o = []
        P = 120 + 8 * (2 * Tc + u)
        for T in range(2):
            acc = (2 * Tc + T) * 16 + 8 * u
            if scale:
                o += ['v_mul_f32 v%d, s80, v%d' % (acc + e, acc + e) for e in range(8)]
            o += ['v_cvt_pk_bf16_f32 v%d, v%d, v%d' % (P + 4 * T + q, acc + 2 * q, acc + 2 * q + 1) for q in range(4)]
        m = 20 + 2 * (2 * Tc + u)
        o.append('s_mov_b64 exec, s[%d:%d]\nv_swap_b32 v%d, v%d\nv_swap_b32 v%d, v%d\ns_mov_b64 exec, -1' % (m, m + 1, P + 2, P + 4, P + 3, P + 5))
        for T in range(2):
            o.append('buffer_store_dwordx4 %s, v108, s[%d:%d], s%d offen offset:%d QSC' % (v(P + 4 * T, 4), RWS, RWS + 3,
                     77 + Tc, 2048 * u + 512 * T))
        return o
    a('s_cmp_ge_u32 s%d, 5', sCG)
    a('s_cbranch_scc1 L_noscale')
    tailweave(ms, group(0, 0, True) + group(0, 1, True))
    a('s_mov_b32 s81, s80')
    for i in range(32, 64, 2):
        a('v_pk_mul_f32 %s, %s, s[80:81]', v(i, 2), v(i, 2))
    a('s_branch L_qk2')
    a.label('L_noscale')
    tailweave(ms, group(0, 0, False) + group(0, 1, False))
    a.label('L_qk2')
    for o in group(1, 0, False) + group(1, 1, False):
        a(o)
    stamp('A', 'qloop')
    a('s_branch L_qdone')
    a('.PAD L_qV L_pgV')
    a.label('L_qV')
    a('s_cmp_eq_u32 s%d, 15', sCG)
    a('s_cbranch_scc0 L_qV2')
    a('s_lshl_b32 s76, s%d, 4', sRB)
    a('v_mov_b32 v16, s76')
    a('v_mov_b32 v17, 1')
    a('s_waitcnt vmcnt(0)')
    a('s_barrier')
    a('s_cmp_eq_u32 s%d, 0', sW)
    a('s_cbranch_scc0 L_nosig')
    a('s_mov_b64 exec, 1')
    a('global_store_dword v16, v17, s[%d:%d] sc1', sDBG, sDBG + 1)
    a('s_mov_b64 exec, -1')
    a.label('L_nosig')
    if OPT['tlb']:
        a('v_lshlrev_b32 v1, %d, v%d', OPT['tlb'], vLANE)
        a('s_lshl_b32 s76, s%d, %d', sW, OPT['tlb'] + 6)
        srd(R4, sOUT, 2048 * 1280 * 4)
        a('buffer_load_dword v111, v1, s[%d:%d], s76 offen sc1', RWS, RWS + 3)
        a('buffer_load_dword v111, v1, s[%d:%d], s76 offen sc1', R4, R4 + 3)
        a('v_min_u32 v1, 12, v%d', vLANE)
        a('v_lshlrev_b32 v1, 16, v1')
        a('v_mov_b32 v2, 0')
        for p in (14, sCRE, sCIM):
            a('global_load_dword v111, v1, s[%d:%d]', p, p + 1)
        a('global_load_dword v111, v2, s[%d:%d]', sDSK, sDSK + 1)
    if OPT['l2pre']:
        a('s_barrier')
        a('s_and_b32 s76, s%d, 1', sI)
        a('s_lshl1_add_u32 s76, s76, s%d', sCW)
        a('s_and_b32 s77, s%d, 1', sXCD)
        a('s_lshl2_add_u32 s76, s77, s76')
        a('s_mul_i32 s76, s76, %d', 80 * 1280)
        a('v_min_u32 v1, 39, v%d', vLANE)
        a('v_mul_u32_u24 v1, 1280, v1')
        a('v_add_u32 v2, %d, v1', 40 * 1280)
        for hf in range(2):
            a('s_and_b32 s77, s%d, 1', sI)
            a('s_lshl1_add_u32 s77, s77, s%d', sCW)
            a('s_lshl1_add_u32 s77, s77, %d', hf)
            a('s_mul_i32 s77, s77, 5')
            a('s_lshr_b32 s77, s77, 2')
            a('s_add_u32 s78, s%d, 1', sXCD)
            a('s_lshr_b32 s78, s78, 1')
            a('s_add_u32 s%d, s77, s78', 80 + hf)
        for d in (4, 9, 1, 6, 3, 8)[:OPT['l2pre']]:
            for hf in range(2):
                a('s_add_u32 s77, s%d, %d', 80 + hf, d)
                for _ in range(2):
                    a('s_cmp_ge_u32 s77, 10')
                    a('s_cselect_b32 s78, 10, 0')
                    a('s_sub_u32 s77, s77, s78')
                a('s_lshl_b32 s77, s77, 7')
                a('s_add_u32 s77, s77, s76')
                a('buffer_load_dword v111, v%d, s[%d:%d], s77 offen', 1 + hf, R6, R6 + 3)
    if OPT['xpre']:
        a('s_and_b32 s76, s%d, 1', sI)
        a('s_lshl1_add_u32 s76, s76, s%d', sTW)
        a('s_xor_b32 s77, s76, %d', OPT['flip'])
        a('s_mul_i32 s77, s77, 5')
        a('s_lshr_b32 s77, s77, 1')
        a('s_add_u32 s78, s%d, 9', sXCD)
        a('s_lshr_b32 s78, s78, 1')
        a('s_add_u32 s77, s77, s78')
        a('s_mul_i32 s78, s%d, 5', sCW)
        a('s_add_u32 s77, s77, s78')
        for _ in range(2):
            a('s_cmp_ge_u32 s77, 10')
            a('s_cselect_b32 s78, 10, 0')
            a('s_sub_u32 s77, s77, s78')
        a('s_lshl_b32 s77, s77, 7')
        a('s_and_b32 s78, s%d, -4', sRB)
        a('s_add_u32 s76, s76, s78')
        a('s_mul_i32 s76, s76, %d', 128 * 1280)
        a('s_add_u32 s77, s77, s76')
        a('v_mul_u32_u24 v3, 1280, v%d', vLANE)
        a('buffer_load_dword v111, v3, s[%d:%d], s77 offen', R5, R5 + 3)
        a('s_add_u32 s77, s77, %d', 64 * 1280)
        a('buffer_load_dword v111, v3, s[%d:%d], s77 offen', R5, R5 + 3)
    if OPT['wopack']:
        a_pack_wo()
    for _ in range(9 if OPT['l2pre'] else 10):
        a('s_barrier')
    if DIAG:
        nstamp['A'].pop()
    stamp('A', 'qloop')
    a('s_branch L_qdone')
    a.label('L_qV2')
    a('s_lshl1_add_u32 s76, s%d, s%d', sCG, sCW)
    a('v_and_b32 v1, 31, v%d', vLANE)
    tau(108, 1, 2)
    if OPT['klin']:
        a('v_xor_b32 v3, v108, v1')
        a('v_mul_u32_u24 v3, 136, v3')
        for k in range(8):
            a('v_xor_b32 v%d, v3, v%d', vXA + k, vXA + k)
    if OPT['klin'] & 2:
        a('v_bfe_u32 v3, v%d, 1, 1', vLANE)
        a('v_xor_b32 v3, v3, v%d', vLANE)
        a('v_and_b32 v3, 1, v3')
        a('v_mul_u32_u24 v3, 24, v3')
        for k in range(4):
            a('v_xor_b32 v%d, v3, v%d', vWA + k, vWA + k)
        a('v_mov_b32 v108, v1')
    a('v_lshrrev_b32 v2, 5, v%d', vLANE)
    a('v_mul_u32_u24 v2, %d, v2', VROW)
    a('v_lshl_add_u32 v108, v108, 4, v2')
    a('s_sub_u32 s76, s76, 20')
    a('s_lshl_b32 s76, s76, 10')
    a('s_add_u32 s76, s76, s74')
    a('s_add_u32 s76, s76, %d', VOFF)
    for k in range(1, 4):
        a('s_add_u32 s%d, s76, %d', 76 + k, 2 * VROW * k)
    ms = a_qloop(True)
    work = []
    n = 0
    for T in range(2):
        for Tc in range(2):
            for m in range(2):
                P = 120 + 4 * n
                n += 1
                acc = (2 * T + Tc) * 16 + 8 * m
                work += ['v_cvt_pk_bf16_f32 v%d, v%d, v%d' % (P + q, acc + 2 * q, acc + 2 * q + 1) for q in range(4)]
                work.append('buffer_store_dwordx4 %s, v108, s[%d:%d], s%d offen offset:%d QSC' % (v(P, 4), RWS, RWS + 3, 76 + 2 * T + m, 512 * Tc))
    tailweave(ms, work)
    if DIAG:
        nstamp['A'].pop()
    stamp('A', 'qloop')
    if OPT['pgalign']:
        a('s_branch L_qdone')
    a('.PAD L_qdone L_pgO')
    a.label('L_qdone')
    if OPT['amark'] == 2:
        a_mark()

vO, vS = 0, 64
KV = [128, 156]
K1A, K1B, K2, VA0, VA1, VB0, VB1 = 0, 4, 8, 12, 16, 20, 24
vQ1, vQ2 = 184, 200
vK1, vK2, vV, vIDX, vNC, vM = 208, 209, 210, 214, 216, 220
vT = 224
vMG = 240
sQH, sKH, sODD, sP5, sOFF, sKV0, sPASS, sCNT = 76, 77, 78, 79, 80, 93, 82, 83
sKVB, sKVE = 70, 71

def a_att_setup():
    a('s_and_b32 s%d, s%d, 1', sQH, sW)
    a('s_lshr_b32 s%d, s%d, 1', sKH, sW)
    a('s_and_b32 s%d, s%d, 1', sODD, sHD)
    a('s_lshr_b32 s85, s%d, 1', sHD)
    a('s_mul_i32 s%d, s85, 5', sP5)
    a('s_mul_i32 s%d, s%d, %d', sKVB, sKH, 16 * BLK)
    a('s_add_u32 s%d, s%d, %d', sKVE, sKVB, 16 * BLK)
    a('s_and_b32 s86, s%d, %d', sQB, OPT['rotm'])
    a('s_mul_i32 s86, s86, %d', 2 * BLK * OPT['rot'])
    a('s_add_u32 s%d, s%d, s86', sKV0, sKVB)
    srd(R3, sWS, 's%d' % sKVE)
    srd(R4, sOUT, 2048 * 1280 * 4)
    a('s_mov_b32 s%d, 0', sPASS)
    i, h, t, x = vT, vT + 1, vT + 2, vT + 3
    a('v_and_b32 v%d, 31, v%d', i, vLANE)
    a('v_lshrrev_b32 v%d, 5, v%d', h, vLANE)
    tau(t, i, x)
    a('s_mul_i32 s86, s%d, 3', sODD)
    a('s_add_u32 s86, s86, s%d', sP5)
    a('s_lshl_b32 s87, s86, 10')
    a('v_lshl_add_u32 v%d, v%d, 10, s87', x, h)
    a('v_lshl_add_u32 v%d, v%d, 4, v%d', vT + 4, i, x)
    a('v_lshl_add_u32 v%d, v%d, 4, v%d', vK1, i if OPT['klin'] else t, x)
    a('v_add_u32 v%d, %d, v%d', vK1, 80 * 1024, vK1)
    a('s_add_u32 s87, s%d, 2', sP5)
    a('s_lshl1_add_u32 s87, s87, s%d', sODD)
    a('s_lshl_b32 s87, s87, 9')
    a('v_lshl_add_u32 v%d, v%d, 4, s87', vT + 5, i)
    a('v_mov_b32 v%d, 0x%x', x, OOB)
    a('v_cndmask_b32 v%d, v%d, v%d, s[%d:%d]', vT + 5, vT + 5, x, sHI, sHI + 1)
    a('s_add_u32 s87, s87, %d', 80 * 1024)
    a('v_lshl_add_u32 v%d, v%d, 4, s87', vK2, i if OPT['klin'] else t)
    a('v_mov_b32 v%d, %d', x, 160 * 1024)
    a('v_cndmask_b32 v%d, v%d, v%d, s[%d:%d]', vK2, vK2, x, sHI, sHI + 1)
    a('s_mul_i32 s86, s%d, 20', sHD)
    a('s_lshl2_add_u32 s87, s%d, s86', sODD)
    a('s_lshl_b32 s88, s%d, 4', sODD)
    a('s_sub_u32 s88, s86, s88')
    a('v_add_u32 v%d, s87, v%d', vV, t)
    a('v_add_u32 v%d, s88, v%d', x, i)
    a('v_cmp_le_u32 vcc, 16, v%d', i)
    a('v_mov_b32 v%d, %d', vT + 6, VOFF + 640 * 16)
    a('s_nop 0')
    a('v_cndmask_b32 v%d, v%d, v%d, vcc', vV, vV, x)
    a('v_cmp_le_u32 vcc, 20, v%d', i)
    a('v_mul_u32_u24 v%d, %d, v%d', x, VROW, h)
    a('v_add_u32 v%d, %d, v%d', x, VOFF, x)
    a('v_lshl_add_u32 v%d, v%d, 4, v%d', vV, vV, x)
    a('v_cndmask_b32 v%d, v%d, v%d, vcc', vV, vV, vT + 6)
    a('v_cmp_le_u32 vcc, %d, v%d', 21 if OPT['vzero'] else 24, i)
    a('v_mov_b32 v%d, 0x%x', x, OOB)
    a('v_mov_b32 v%d, 0xdddd', vIDX)
    a('v_cndmask_b32 v%d, v%d, v%d, vcc', vV, vV, x)
    for k in range(1, 4):
        a('v_add_u32 v%d, %d, v%d', vV + k, 2 * VROW * k, vV)
    a('s_mul_i32 s87, s85, 40')
    a('s_lshl4_add_u32 s87, s%d, s87', sODD)
    a('s_add_u32 s88, s87, 23')
    a('s_lshr_b32 s87, s87, 7')
    a('s_lshr_b32 s88, s88, 7')
    a('s_add_u32 s89, s86, 19')
    a('s_lshr_b32 s86, s86, 7')
    a('s_lshr_b32 s89, s89, 7')
    a('v_lshrrev_b32 v%d, 4, v%d', x, vLANE)
    a('s_add_u32 s90, s87, 5')
    a('v_mov_b32 v%d, s90', vF1A)
    for sel, (reg, add) in enumerate(((88, 5), (86, 10), (89, 10))):
        a('s_add_u32 s90, s%d, %d', reg, add)
        a('v_cmp_eq_u32 vcc, %d, v%d', sel + 1, x)
        a('v_mov_b32 v%d, s90', vT + 6)
        a('s_nop 0')
        a('v_cndmask_b32 v%d, v%d, v%d, vcc', vF1A, vF1A, vT + 6)
    a('v_and_b32 v%d, 15, v%d', vT + 6, vLANE)
    a('v_lshl_add_u32 v%d, v%d, 4, v%d', vF1A, vF1A, vT + 6)
    a('v_lshlrev_b32 v%d, 7, v%d', vF1A, vF1A)
    a('v_mov_b32 v%d, s87', vF1A - 1)
    a('v_mov_b32 v%d, s88', vT + 6)
    a('v_cndmask_b32 v%d, v%d, v%d, s[%d:%d]', vF1A - 1, vF1A - 1, vT + 6, sHI, sHI + 1)
    a('v_bfe_u32 v%d, v%d, 4, 1', vT + 6, vLANE)
    a('v_lshl_add_u32 v%d, v%d, 4, v%d', vF1A - 1, vF1A - 1, vT + 6)
    a('s_lshl_b32 s90, s%d, 1', sQB)
    a('v_add_lshl_u32 v%d, v%d, s90, 7', vF1A - 1, vF1A - 1)
    a('v_and_b32 v%d, 3, v%d', vAPW, vLANE)
    a('v_lshlrev_b32 v%d, 8, v%d', vAPW, vAPW)
    a('v_lshlrev_b32 v%d, 2, v%d', vAPW + 1, vLANE)
    a('v_add_u32 v%d, %d, v%d', vAPW + 1, L_PW, vAPW + 1)
    a('v_add_u32 v%d, v%d, v%d', vAPW, vAPW, vAPW + 1)
    a('s_lshl1_add_u32 s90, s%d, s%d', sQB, sQH)
    a('s_lshl1_add_u32 s90, s90, s%d', sKH)
    a('s_mul_i32 s92, s90, %d', BLK)
    a('s_xor_b32 s91, s90, 1')
    a('s_mul_i32 s91, s91, %d', BLK)
    a('s_mov_b32 s10, 0x%x', f2u(2.0 ** -4))
    a('s_mov_b32 s11, 0x%x', f2u(2.0 ** 72))
    a('s_mul_i32 s36, s%d, %d', sW, REGSZ)
    a('s_add_u32 s36, s36, %d', L_REG + 8192)
    a('s_xor_b32 s37, s%d, 2', sW)
    a('s_mul_i32 s37, s37, %d', REGSZ)
    a('s_add_u32 s37, s37, %d', L_REG + 8192)
    a('v_lshl_add_u32 v%d, v%d, 4, s36', vMG, vLANE)
    a('v_lshl_add_u32 v%d, v%d, 3, s36', vMG + 1, vLANE)
    a('v_lshl_add_u32 v%d, v%d, 4, s37', vMG + 2, vLANE)
    a('v_lshl_add_u32 v%d, v%d, 3, s37', vMG + 3, vLANE)
    a('v_xor_b32 v%d, 512, v%d', vMG + 4, vPW)
    a('v_add_u32 v%d, 1024, v%d', vMG + 5, vAPW)
    if not OPT['amark']:
        a('v_bfe_u32 v%d, v%d, 4, 1', x, vLANE)
        a('v_mul_u32_u24 v%d, %d, v%d', x, OBLK, x)
        a('v_and_b32 v%d, 15, v%d', t, vLANE)
        a('v_lshl_add_u32 v%d, v%d, 4, v%d', x, t, x)
        a('v_mul_u32_u24 v%d, %d, v%d', t, 2 * OBLK, h)
        a('v_add_u32 v%d, v%d, v%d', vMG + 7, t, x)
        a('v_lshl_add_u32 v%d, v%d, 8, v%d', vMG + 6, h, x)
        a('s_mul_i32 s40, s90, %d', 4 * OBLK)
        a('s_add_u32 s40, s40, 0x%x', WS_O)
        a('s_lshl_b32 s41, s%d, 8', sP5)
        a('s_add_u32 s40, s40, s41')
        a('s_mul_i32 s41, s%d, 768', sODD)
        a('s_add_u32 s41, s41, s40')
        a('s_add_u32 s42, s41, %d', 2 * OBLK)
        a('s_lshl3_add_u32 s40, s%d, s40', sODD)
    a('s_lshl_b32 s43, s90, 5')
    a('s_add_u32 s43, s43, s%d', sHD)
    flagaddr(43, 43, F4, 0)

def a_mark():
    i, h, t, x = vT, vT + 1, vT + 2, vT + 3
    a('s_lshl1_add_u32 s90, s%d, s%d', sQB, sCW)
    a('s_lshl1_add_u32 s90, s90, s%d', sTW)
    a('s_and_b32 s%d, s%d, 1', sODD, sHD)
    a('s_lshr_b32 s85, s%d, 1', sHD)
    a('s_mul_i32 s%d, s85, 5', sP5)
    a('v_lshrrev_b32 v%d, 5, v%d', h, vLANE)
    a('v_bfe_u32 v%d, v%d, 4, 1', x, vLANE)
    a('v_mul_u32_u24 v%d, %d, v%d', x, OBLK, x)
    a('v_and_b32 v%d, 15, v%d', t, vLANE)
    a('v_lshl_add_u32 v%d, v%d, 4, v%d', x, t, x)
    a('v_mul_u32_u24 v%d, %d, v%d', t, 2 * OBLK, h)
    a('v_add_u32 v%d, v%d, v%d', vMG + 7, t, x)
    a('v_lshl_add_u32 v%d, v%d, 8, v%d', vMG + 6, h, x)
    a('s_mul_i32 s40, s90, %d', 4 * OBLK)
    a('s_add_u32 s40, s40, 0x%x', WS_O)
    a('s_lshl_b32 s41, s%d, 8', sP5)
    a('s_add_u32 s40, s40, s41')
    a('s_mul_i32 s41, s%d, 768', sODD)
    a('s_add_u32 s41, s41, s40')
    a('s_add_u32 s42, s41, %d', 2 * OBLK)
    a('s_lshl3_add_u32 s40, s%d, s40', sODD)
    for k in range(4):
        a('v_mov_b32 v%d, -1', 24 + k)
    a('buffer_store_dwordx4 v[24:27], v%d, s[%d:%d], s41 offen sc1', vMG + 6, RWS, RWS + 3)
    a('buffer_store_dwordx4 v[24:27], v%d, s[%d:%d], s42 offen sc1', vMG + 6, RWS, RWS + 3)
    a('buffer_store_dwordx2 v[24:25], v%d, s[%d:%d], s40 offen offset:512 sc1', vMG + 7, RWS, RWS + 3)

def a_b1_setup():
    a('s_mov_b64 s[14:15], s[%d:%d]', sWO, sWO + 1)
    b1_sources(R5, R6, 112, 116, 7, 5, 12, 3 if OPT['nodup'] else 2)
    a('s_lshl2_add_u32 s4, s%d, s%d', sRB, sW)
    a('s_mul_i32 s4, s4, %d', 32 * 1280)
    a('s_lshl_b32 s6, s%d, 12', sW)
    stagger(8, 9, OPT['st10'], OPT['flip'], OPT['stagb'])

def a_handoff():
    first = 10 + OPT['st10']
    nst = 8
    chunks = []
    if OPT['alate'] == 2:
        n0 = len(a.lines)
        a_att_setup()
        late = a.lines[n0:]
        del a.lines[n0:]
        if OPT['aearly']:
            late = late[:5] + late[OPT['aearly']:]
        nch = (OPT['eb'] - OPT['adep'] + 1 if OPT['eb'] else OPT['pollat']) - first
        k = 0
        for c in range(nch):
            e = len(late) * (c + 1) // nch
            while e < len(late) and any('cndmask' in x and 'vcc' in x for x in late[e:e + 4]):
                e += 1
            chunks.append(late[k:e])
            k = e
        chunks[-1].append('s_mov_b32 s85, 0x%x' % F1)
        nb = first - 10
        seq = OPT['seq'] or {1: 'bss', 2: 'bsbs', 3: 'bbsbs', 4: 'bbsbsb'}[nb]
        assert seq.count('b') == nb and seq.count('s') == 2
        kk = 0
        for ch in seq:
            if ch == 'b':
                a('s_barrier')
            else:
                if kk == 0 and OPT['fine'] == 1:
                    stamp('A', 'c11')
                a_b1stage(first + kk)
                if OPT['fine'] == 1:
                    stamp('A', 'iss%d' % (12 + kk))
                kk += 1
        for i_ in range(64):
            a('v_mov_b32 v%d, 0', vO + i_)
    else:
        for t in range(10, first):
            a('s_barrier')
            if t == 10:
                if OPT['alate']:
                    a_b1_setup()
                else:
                    for i_ in range(64):
                        a('v_mov_b32 v%d, 0', vO + i_)
        if OPT['fine'] == 1:
            stamp('A', 'c11')
        a_b1stage(first)
        if OPT['fine'] == 1:
            stamp('A', 'iss12')
        if OPT['alate']:
            a_att_setup()
            for i_ in range(64):
                a('v_mov_b32 v%d, 0', vO + i_)
        a_b1stage(first + 1)
        if OPT['fine'] == 1:
            stamp('A', 'iss13')
    lds_ = ['buffer_load_dword v%d, v%d, s[%d:%d], s85 offen sc1' % (104 + k, vF1A - k, RWS, RWS + 3) for k in range(2)]
    a('s_mov_b32 s85, 0x%x', F1)
    NI = 7 - OPT['nodup']
    last = first + 1
    EB = OPT['eb']
    def look(tag):
        a('s_cmp_eq_u32 s%d, 0', sW)
        a('s_cbranch_scc0 L_nopoll%s', tag)
        for l in lds_:
            a(l)
        a.label('L_nopoll%s' % tag)
    def publish(tag):
        a('s_cmp_eq_u32 s%d, 0', sW)
        a('s_cbranch_scc0 L_c%s', tag)
        a('v_and_b32 v104, v104, v105')
        a('v_cmp_eq_u32 vcc, 0, v104')
        a('s_cbranch_vccnz L_c%s', tag)
        setpw(4, 102)
        a('s_waitcnt lgkmcnt(0)')
        a.label('L_c%s' % tag)
    for t in range(first, 20):
        a('s_waitcnt vmcnt(%d)', NI * (last - t))
        if t == first:
            stamp('A', 'qdrain')
        if t == 19:
            publish('19')
        if EB and t == EB:
            publish('e')
        a('s_barrier')
        if EB and t == EB:
            assert last == 19 and not chunks
            a('ds_read_b32 v102, v%d', vAPW + 1)
            a('s_waitcnt lgkmcnt(0)')
            a('v_cmp_gt_u32 vcc, 4, v102')
            a('s_cbranch_vccnz L_notyet')
            batch1()
            for t2 in range(t + 1, 20):
                a('s_waitcnt vmcnt(%d)', NI * (19 - t2) + 8)
                a('s_barrier')
            stamp('A', 'b1load')
            stamp('A', 'f1')
            if DIAG:
                del nstamp['A'][-2:]
            a('s_branch L_att2')
            a.label('L_notyet')
        if EB and t == EB - OPT['adep'] + 1:
            look('e')
        while last < min(19, t + OPT['adep']):
            last += 1
            a_b1stage(last)
        if chunks:
            a.lines.extend(chunks.pop(0))
        if t == OPT['pollat']:
            look('')
    stamp('A', 'b1load')
    a('s_cmp_eq_u32 s%d, 0', sW)
    a('s_cbranch_scc0 L_f1wait')
    a('s_cbranch_vccz L_f1go')
    a('s_mov_b64 exec, vcc')
    pollflags(lds_, 104, sleep=OPT['psleep'])
    setpw(4, 102)
    a.label('L_f1wait')
    waitpw(vAPW + 1, 4, 102, sleep=OPT['gsleep'])
    a.label('L_f1go')
    stamp('A', 'f1')

def kvload0(st, what, soff):
    if what in (K1A, K1B):
        r = KV[st] + what
        return 'buffer_load_dwordx4 %s, v%d, s[%d:%d], s%d offen offset:%d sc1' % (v(r, 4), vK1, R3, R3 + 3, soff, 512 if what == K1B else 0)
    if what in ('2A', '2B'):
        tl = what == '2B'
        return 'buffer_load_dwordx2 %s, v%d, s[%d:%d], s%d offen offset:%d sc1' % (v(KV[st] + K2 + 2 * tl, 2), vK2, R3, R3 + 3, soff, 8 * tl)
    r = KV[st] + what
    if what == K2:
        return 'buffer_load_dwordx4 %s, v%d, s[%d:%d], s%d offen sc1' % (v(r, 4), vK2, R3, R3 + 3, soff)
    return 'buffer_load_dwordx4 %s, v%d, s[%d:%d], s%d offen sc1' % (v(r, 4), vV + (what - VA0) // 4, R3, R3 + 3, soff)

def kvload(st, what, soff):
    return kvload0(st, what, soff).replace(' sc1', [' sc1', '', ' sc1 nt'][OPT['kvplain']])

def qk1(st, tile, qt, sb, first=True):
    return 'v_mfma_f32_32x32x16_bf16 %s, %s, %s, %s' % (v(vS + 16 * sb, 16), v(KV[st] + (K1B if tile else K1A), 4), v(vQ1 + 4 * qt, 4),
                                                       '0' if first else v(vS + 16 * sb, 16))

def qk2(st, tile, qt, sb, first=False):
    return 'v_mfma_f32_32x32x8bf16_1k %s, %s, %s, %s' % (v(vS + 16 * sb, 16), v(KV[st] + K2 + 2 * tile, 2), v(vQ2 + 2 * qt, 2),
                                                        '0' if first else v(vS + 16 * sb, 16))

def pv(st, tile, qt, m):
    return 'v_smfmac_f32_32x32x32_bf16 %s, %s, %s, v%d' % (v(vO + 16 * qt, 16), v(KV[st] + VA0 + 8 * tile + 4 * m, 4), v(vS + 16 * qt + 8 * m, 8), vIDX)

def maxtree(dst, src, acc):
    if acc:
        a('v_max3_f32 v%d, v%d, v%d, v%d', dst, dst, src, src + 1)
    else:
        a('v_max_f32 v%d, v%d, v%d', dst, src, src + 1)
    for k in range(2, 16, 2):
        a('v_max3_f32 v%d, v%d, v%d, v%d', dst, dst, src + k, src + k + 1)

def qloads():
    for lp in range(2):
        for T in range(2):
            a('buffer_load_dwordx4 %s, v%d, s[%d:%d], s%d offen offset:%d sc1', v(vQ1 + 8 * lp + 4 * T, 4), vT + 4, RWS, RWS + 3, 91 + lp, 512 * T)
    for lp in range(2):
        a('buffer_load_dwordx4 %s, v%d, s[%d:%d], s%d offen sc1', v(vQ2 + 4 * lp, 4), vT + 5, RWS, RWS + 3, 91 + lp)

def batch1():
    qloads()
    for w_ in (K1A, K2):
        a(kvload0(0, w_, sKV0))

def a_attention():
    qloads()
    a.label('L_attload')
    for w_ in (K1A, K2):
        a(kvload0(0, w_, sKV0))
    a.label('L_att2')
    a('s_mov_b32 s%d, 0x40000000', sCNT)
    a('s_add_u32 s%d, s%d, %d', sOFF, sKV0, BLK)
    for i in range(4):
        a('v_mov_b32 v%d, 0', KV[1] + VB1 + i)
    if OPT['kvsplit']:
        a('s_waitcnt vmcnt(%d)', OPT['kvsplit'] - 1)
    for w_ in (VA0, VA1, K1B, VB0, VB1):
        a(kvload0(0, w_, sKV0))
    if not OPT['s1late']:
        for w_ in (K1A, VA0, VA1, K1B, K2, VB0):
            a(kvload0(1, w_, sOFF))
    a('s_waitcnt vmcnt(%d)', 5 if OPT['s1late'] else 11)
    stamp('A', 'qkload')
    a('s_cmp_eq_u32 s%d, 0', sPASS)
    a('s_cbranch_scc0 L_setc')
    if OPT['fastpro']:
        a.c('stand-in for the row maximum: the largest score among seven keys of the first tile (checked after the loop)')
        def ch(t):
            S, m, h = vS + 16 * t, vM + t, vT + 8 + t
            return ['v_max3_f32 v%d, v%d, v%d, v%d' % (m, S, S + 1, S + 2),
                    'v_max3_f32 v%d, v%d, v%d, v%d' % (m, m, S + 5, S + 8),
                    'v_max3_f32 v%d, v%d, v%d, v%d' % (m, m, S + 11, S + 14),
                    'v_cvt_pk_bf16_f32 v%d, -v%d, -v%d' % (h, m, m),
                    'v_and_b32 v%d, 0xffff0000, v%d' % (h, h),
                    'v_sub_f32 v%d, -v%d, v%d' % (m, m, h),
                    'v_cvt_pk_bf16_f32 v%d, v%d, v%d' % (m, h, m),
                    'v_cndmask_b32 v%d, v%d, v%d, s[%d:%d]' % (vQ2 + 2 * t, vQ2 + 2 * t, m, sHI, sHI + 1)]
        def nc(t):
            m, h = vM + t, vT + 8 + t
            return ['v_and_b32 v%d, 0xffff0000, v%d' % (m, m),
                    'v_add_f32 v%d, v%d, v%d' % (vNC + t, m, h),
                    'v_add_f32 v%d, v%d, v%d' % (m, m, h)]
        sw = lambda t: 'v_permlane32_swap_b32 v%d, v%d' % (vM + t, vNC + t)
        seq = [qk1(0, 0, 0, 0), qk2(0, 0, 0, 0), qk1(0, 0, 1, 1), qk2(0, 0, 1, 1), qk1(0, 0, 2, 2), 's_nop 6', qk2(0, 0, 2, 2), 's_nop 0']
        seq += ch(0)[:5] + [qk1(0, 0, 3, 3)] + ch(0)[5:] + ch(1)[:3] + [qk2(0, 0, 3, 3)] + ch(1)[3:] + nc(0)[:1]
        seq += [qk1(0, 0, 0, 0)] + ch(2)[:6] + [qk2(0, 0, 0, 0)] + ch(3)[:3]
        seq += ['v_mov_b32 v%d, 0' % (vS + 48 + 8 + i) for i in range(8)]
        seq += ch(2)[6:] + ch(3)[3:] + nc(0)[1:] + nc(1) + nc(2) + [sw(0)] + nc(3) + [sw(1), sw(2), sw(3)]
        for o in seq:
            a(o)
        a.label('L_loopentry')
    else:
        a.c('stand-in for the row maximum: the maximum over the first key tile (checked after the loop)')
        def tree(qt):
            src = vS + 16 * qt
            return ['v_max_f32 v%d, v%d, v%d' % (vM + qt, src, src + 1)] + \
                   ['v_max3_f32 v%d, v%d, v%d, v%d' % (vM + qt, vM + qt, src + k, src + k + 1) for k in range(2, 16, 2)]
        for qt in range(3):
            a(qk1(0, 0, qt, qt))
            a(qk2(0, 0, qt, qt))
        a(qk1(0, 0, 3, 3))
        a('s_nop 6')
        for o in tree(0)[:4]:
            a(o)
        a(qk2(0, 0, 3, 3))
        for o in tree(0)[4:] + tree(1) + tree(2) + tree(3):
            a(o)
        a.label('L_setc')
        for qt in range(4):
            a('v_mov_b32 v%d, v%d', vT + 8 + qt, vM + qt)
        for qt in range(4):
            a('v_permlane32_swap_b32 v%d, v%d', vM + qt, vT + 8 + qt)
        for qt in range(4):
            a('v_min_f32 v%d, -v%d, -v%d', vM + qt, vM + qt, vT + 8 + qt)
        for qt in range(4):
            a('v_cvt_pk_bf16_f32 v%d, v%d, v%d', vT + 8 + qt, vM + qt, vM + qt)
        for qt in range(4):
            a('v_and_b32 v%d, 0xffff0000, v%d', vT + 8 + qt, vT + 8 + qt)
        for qt in range(4):
            a('v_sub_f32 v%d, v%d, v%d', vM + qt, vM + qt, vT + 8 + qt)
        for qt in range(4):
            a('v_cvt_pk_bf16_f32 v%d, v%d, v%d', vM + qt, vT + 8 + qt, vM + qt)
        for qt in range(4):
            a('v_cndmask_b32 v%d, v%d, v%d, s[%d:%d]', vQ2 + 2 * qt, vQ2 + 2 * qt, vM + qt, sHI, sHI + 1)
        a(qk1(0, 0, 0, 0))
        a(qk2(0, 0, 0, 0))
        for qt in range(4):
            a('v_and_b32 v%d, 0xffff0000, v%d', vM + qt, vM + qt)
        for qt in range(4):
            a('v_add_f32 v%d, v%d, v%d', vNC + qt, vM + qt, vT + 8 + qt)
        for i in range(8):
            a('v_mov_b32 v%d, 0', vS + 48 + 8 + i)
    if OPT['s1late'] == 2:
        a('s_waitcnt vmcnt(2)')
    if OPT['s1late']:
        for w_ in (K1A, VA0, VA1, K1B, K2, VB0):
            a(kvload0(1, w_, sOFF))
    if OPT['s1late'] != 2:
        a('s_waitcnt vmcnt(8)')
    if OPT['tearly'] or OPT['gtouch'] == 1 or OPT['woe'] or OPT['smark'] == 1:
        setpw(5, vT + 8)
    stamp('A', 'attpro')
    if OPT['fine'] == 3:
        base = len(nstamp['A'])
        nstamp['A'] += ['it%d' % i for i in range(16)]
        a('s_mov_b32 s24, %d', base)
    a('.p2align %d', OPT['lalign'])
    for _ in range(OPT['lpad']):
        a('s_nop 0')
    a.label('L_attloop')
    UN = OPT['unroll']
    LEAN = OPT['rot'] == 0 and OPT['lean']
    for dt in range(UN):
        st = dt & 1
        for n in range(8):
            tile, qt = n >> 2, n & 3
            nst, ntile, nqt = (st, (n + 1) >> 2, (n + 1) & 3) if n < 7 else (st ^ 1, 0, 0)
            pst, ptile, pqt = (st, (n - 1) >> 2, (n - 1) & 3) if n > 0 else (st ^ 1, 1, 3)
            def ex(k):
                for e in range(4 * k, 4 * k + 4):
                    a('v_exp_f32 v%d, v%d', vS + 16 * qt + e, vS + 16 * qt + e)
            if n == 7:
                a('s_waitcnt vmcnt(%d)', 40 if OPT['nowait'] else 7)
            X8 = OPT['x8first']
            a(qk2(nst, ntile, nqt, nqt, True) if X8 else qk1(nst, ntile, nqt, nqt))
            if n == 1:
                a('s_add_u32 s%d, s%d, %d', sOFF, sOFF, BLK)
            if n == 2 and not X8:
                a(kvload(st, K1A, sOFF))
            if n == 6:
                a(kvload(st, K2 if X8 else K1B, sOFF))
            if n == 5 and OPT['fine'] == 3:
                a('s_memtime s[98:99]')
                a('s_memrealtime s[100:101]')
            if n == 6 and OPT['fine'] == 3:
                a('s_waitcnt lgkmcnt(0)')
                a('s_mov_b32 m0, s24')
                a('s_add_u32 s25, s24, 32')
                a('v_writelane_b32 v%d, s98, m0', vTS)
                a('s_mov_b32 m0, s25')
                a('s_add_u32 s24, s24, 1')
                a('v_writelane_b32 v%d, s100, m0', vTS)
            ex(0)
            a(qk1(nst, ntile, nqt, nqt, False) if X8 else qk2(nst, ntile, nqt, nqt))
            if n == 2 and X8:
                a(kvload(st, K1A, sOFF))
            if n == 6:
                a(kvload(st, K1B if X8 else K2, sOFF))
            if n == 1 and st == 0 and not LEAN:
                a('s_cmp_eq_u32 s%d, s%d', sOFF, sKVE)
                a('s_cselect_b32 s%d, s%d, s%d', sOFF, sKVB, sOFF)
            ex(1)
            a(pv(pst, ptile, pqt, 1))
            if n == 0:
                a(kvload(st ^ 1, VB1, sOFF))
            if n == 4:
                a(kvload(st, VA1, sOFF))
            if n == 1 and dt == UN - 2 and not LEAN:
                a('s_cmp_eq_u32 s%d, s%d', sOFF, sKV0)
                a('s_cselect_b32 s%d, s%d, s%d', sOFF, sCNT, sOFF)
            if dt == UN - 1 and n == 7:
                a('s_cmp_lt_u32 s%d, s%d', sOFF, sKVE if LEAN else sCNT)
            ex(2)
            if n == 4:
                a('s_waitcnt vmcnt(%d)', 40 if OPT['nowait'] else 10)
            a(pv(st, tile, qt, 0))
            if n == 3:
                a(kvload(st, VA0, sOFF))
            if n == 7:
                a(kvload(st, VB0, sOFF))
            ex(3)
    a('s_cbranch_scc1 L_attloop')
    a('s_nop 0')
    a(pv(1, 1, 3, 1))
    stamp('A', 'attloop')
    if OPT['tprio']:
        a('s_setprio 2')
    a('ds_write_b64 v%d, %s offset:6144', vMG + 1, v(vNC, 2))
    for t in range(2):
        for q in range(3):
            a('ds_write_b128 v%d, %s offset:%d', vMG, v(vO + 16 * t + 4 * q, 4), 1024 * (3 * t + q))
    a('v_mov_b32 v%d, 6', vT + 10)
    a('v_mov_b32 v%d, 7', vT + 11)
    a('v_min3_f32 v%d, v%d, v%d, v%d', vT + 8, vO + 8, vO + 24, vO + 40)
    a('v_add_f32 v%d, v%d, v%d', vT + 9, vO + 8, vO + 24)
    a('v_add_f32 v%d, v%d, v%d', vT + 9, vT + 9, vO + 40)
    a('v_min_f32 v%d, v%d, v%d', vT + 8, vT + 8, vO + 56)
    a('v_add_f32 v%d, v%d, v%d', vT + 9, vT + 9, vO + 56)
    a('v_cmp_nle_f32 s[38:39], s10, v%d', vT + 8)
    a('v_cmp_nge_f32 vcc, s11, v%d', vT + 9)
    a('s_or_b32 s39, s39, vcc_hi')
    if OPT['force_fb']:
        a('s_cmp_eq_u32 s39, s39')
    a('s_cbranch_scc1 L_fallback')
    n0 = len(a.lines)
    a.label('L_fallback')
    a('s_cmp_eq_u32 s%d, 0', sPASS)
    a('s_cbranch_scc0 L_attok')
    a.c('fallback: exact row maximum over this wave\'s keys, then redo the pass')
    a('s_mov_b32 s%d, 1', sPASS)
    a('s_waitcnt vmcnt(0) lgkmcnt(0)')
    a('v_mov_b32 v%d, 0', vT + 8)
    for qt in range(4):
        a('v_cndmask_b32 v%d, v%d, v%d, s[%d:%d]', vQ2 + 2 * qt, vQ2 + 2 * qt, vT + 8, sHI, sHI + 1)
        a('v_mov_b32 v%d, 0xff800000', vM + qt)
    a('s_mov_b32 s%d, s%d', sOFF, sKVB)
    a('s_mov_b32 s%d, 16', sCNT)
    a.label('L_maxloop')
    for w_ in (K1A, K1B, K2):
        a(kvload(0, w_, sOFF))
    a('s_waitcnt vmcnt(0)')
    for tile in range(2):
        for qt in range(4):
            a(qk1(0, tile, qt, qt))
            a(qk2(0, tile, qt, qt))
        a('s_nop 5')
        for qt in range(4):
            maxtree(vM + qt, vS + 16 * qt, True)
    a('s_add_u32 s%d, s%d, %d', sOFF, sOFF, BLK)
    a('s_sub_u32 s%d, s%d, 1', sCNT, sCNT)
    a('s_cmp_lg_u32 s%d, 0', sCNT)
    a('s_cbranch_scc1 L_maxloop')
    for i in range(64):
        a('v_mov_b32 v%d, 0', vO + i)
    a('s_branch L_attload')
    if OPT['fastpro']:
        a.label('L_setc')
        for qt in range(4):
            a('v_mov_b32 v%d, v%d', vT + 8 + qt, vM + qt)
        for qt in range(4):
            a('v_permlane32_swap_b32 v%d, v%d', vM + qt, vT + 8 + qt)
        for qt in range(4):
            a('v_min_f32 v%d, -v%d, -v%d', vM + qt, vM + qt, vT + 8 + qt)
        for qt in range(4):
            a('v_cvt_pk_bf16_f32 v%d, v%d, v%d', vT + 8 + qt, vM + qt, vM + qt)
        for qt in range(4):
            a('v_and_b32 v%d, 0xffff0000, v%d', vT + 8 + qt, vT + 8 + qt)
        for qt in range(4):
            a('v_sub_f32 v%d, v%d, v%d', vM + qt, vM + qt, vT + 8 + qt)
        for qt in range(4):
            a('v_cvt_pk_bf16_f32 v%d, v%d, v%d', vM + qt, vT + 8 + qt, vM + qt)
        for qt in range(4):
            a('v_cndmask_b32 v%d, v%d, v%d, s[%d:%d]', vQ2 + 2 * qt, vQ2 + 2 * qt, vM + qt, sHI, sHI + 1)
        a(qk1(0, 0, 0, 0))
        a(qk2(0, 0, 0, 0))
        for qt in range(4):
            a('v_and_b32 v%d, 0xffff0000, v%d', vM + qt, vM + qt)
        for qt in range(4):
            a('v_add_f32 v%d, v%d, v%d', vNC + qt, vM + qt, vT + 8 + qt)
        for i in range(8):
            a('v_mov_b32 v%d, 0', vS + 48 + 8 + i)
        a('s_branch L_loopentry')
    COLD.extend(a.lines[n0:])
    del a.lines[n0:]
    a.label('L_attok')
    a('ds_write_b32 v%d, v%d', vPW, vT + 10)
    R = vS
    NC2 = vS + 32
    rd = ['ds_read_b64 %s, v%d offset:6144' % (v(NC2, 2), vMG + 3)]
    for t in range(2):
        rd.append('ds_read_b128 %s, v%d offset:%d' % (v(R + 16 * t + 8, 4), vMG + 2, 1024 * (3 * t + 2)))
    for t in range(2):
        for q in range(2):
            rd.append('ds_read_b128 %s, v%d offset:%d' % (v(R + 16 * t + 4 * q, 4), vMG + 2, 1024 * (3 * t + q)))
    if OPT['otag'] and not OPT['amark']:
        a('ds_read_b32 v%d, v%d', vT + 12, vMG + 5)
    waitpw(vMG + 4, 6, vT + 8, extra=rd)
    a('ds_write_b32 v%d, v%d', vPW, vT + 11)
    if OPT['otag'] and not OPT['amark']:
        a('v_cmp_gt_u32 vcc, 14, v%d', vT + 12)
        a('s_cbranch_vccnz L_swait')
        n0 = len(a.lines)
        a.label('L_swait')
        waitpw(vMG + 5, 14, vT + 12)
        a('s_branch L_sready')
        COLD.extend(a.lines[n0:])
        del a.lines[n0:]
        a.label('L_sready')
    f1, f2, l1, l2 = vS + 34, vS + 36, vS + 38, vS + 40
    a('s_waitcnt lgkmcnt(7)')
    for t in range(2):
        a('v_min_f32 v%d, v%d, v%d', l1 + t, vNC + 2 + t, NC2 + t)
    for t in range(2):
        a('v_sub_f32 v%d, v%d, v%d', f1 + t, l1 + t, vNC + 2 + t)
        a('v_sub_f32 v%d, v%d, v%d', f2 + t, l1 + t, NC2 + t)
    for t in range(2):
        a('v_exp_f32 v%d, v%d', f1 + t, f1 + t)
        a('v_exp_f32 v%d, v%d', f2 + t, f2 + t)
    a('s_waitcnt lgkmcnt(5)')
    for t in range(2):
        a('v_mul_f32 v%d, v%d, v%d', l1 + t, f1 + t, vO + 32 + 16 * t + 8)
    for t in range(2):
        a('v_fmac_f32 v%d, v%d, v%d', l1 + t, f2 + t, R + 16 * t + 8)
    for t in range(2):
        a('v_mov_b32 v%d, v%d', l2 + t, l1 + t)
    a('s_nop 0')
    for t in range(2):
        a('v_permlane32_swap_b32 v%d, v%d', l1 + t, l2 + t)
    for t in range(2):
        a('v_rcp_f32 v%d, v%d', l2 + t, l2 + t)
    a('s_waitcnt vmcnt(0) lgkmcnt(0)')
    for t in range(2):
        a('v_mul_f32 v%d, v%d, v%d', f1 + t, f1 + t, l2 + t)
        a('v_mul_f32 v%d, v%d, v%d', f2 + t, f2 + t, l2 + t)
    P = vO
    for t in range(2):
        if OPT['pkmerge']:
            sel = 'op_sel:[%d,0] op_sel_hi:[%d,1]' % (t, t)
            sel3 = 'op_sel:[%d,0,0] op_sel_hi:[%d,1,1]' % (t, t)
            for r in range(0, 12, 2):
                a('v_pk_mul_f32 %s, %s, %s %s', v(vO + 32 + 16 * t + r, 2), v(f1, 2), v(vO + 32 + 16 * t + r, 2), sel)
            for r in range(0, 12, 2):
                a('v_pk_fma_f32 %s, %s, %s, %s %s', v(vO + 32 + 16 * t + r, 2), v(f2, 2), v(R + 16 * t + r, 2), v(vO + 32 + 16 * t + r, 2), sel3)
        else:
            for r in range(12):
                a('v_mul_f32 v%d, v%d, v%d', vO + 32 + 16 * t + r, f1 + t, vO + 32 + 16 * t + r)
            for r in range(12):
                a('v_fmac_f32 v%d, v%d, v%d', vO + 32 + 16 * t + r, f2 + t, R + 16 * t + r)
        for q in range(6):
            a('v_cvt_pk_bf16_f32 v%d, v%d, v%d', P + 8 * t + q, vO + 32 + 16 * t + 2 * q, vO + 32 + 16 * t + 2 * q + 1)
        if OPT['otag']:
            for q in range(4):
                a('v_min_u32 v%d, -2, v%d', P + 8 * t + q, P + 8 * t + q)
        a('buffer_store_dwordx4 %s, v%d, s[%d:%d], s%d offen sc1', v(P + 8 * t, 4), vMG + 6, RWS, RWS + 3, 41 + t)
    if not OPT['otag']:
        a('s_nop 0')
    a('v_permlane32_swap_b32 v%d, v%d', P + 4, P + 12)
    a('v_permlane32_swap_b32 v%d, v%d', P + 5, P + 13)
    if OPT['otag']:
        a('v_min_u32 v%d, -2, v%d', P + 4, P + 4)
        a('v_min_u32 v%d, -2, v%d', P + 5, P + 5)
    a('buffer_store_dwordx2 %s, v%d, s[%d:%d], s40 offen offset:512 sc1', v(P + 4, 2), vMG + 7, RWS, RWS + 3)
    if OPT['otag']:
        setflag(43, 20)
    if OPT['tprio'] == 2:
        a('s_setprio 0')
    if OPT['pgate']:
        setpw(8, vT + 8)
        a('ds_read_b32 v%d, v%d', 99, vAPW)
    stamp('A', 'merge')

def ostore(j, r):
    return 'buffer_store_dword v%d, v%d, s[%d:%d], s86 offen offset:%d%s' % (80 + 4 * j + r, 244 + r, R4, R4 + 3, 64 * j, OSC)

def p3_static(vA0, vA1, vOA, acc):
    EP = OPT['epoll']
    TAG = OPT['otag']
    if TAG:
        stamp('A', 'odrain')
        a.label('L_p3redo')
    elif not EP:
        a('s_waitcnt vmcnt(0)')
        stamp('A', 'odrain')
        setflag(43, 1)
    NB = 7
    def reads(ks):
        f = 100 + 20 * (ks % NB)
        base, off = (vA0, ks * 5120) if ks < 10 else (vA1, (ks - 10) * 5120)
        if OPT['fline'] & 1:
            return ['ds_read_b64_tr_b16 %s, v%d offset:%d' % (v(f + 4 * j + 2 * rd, 2), base + (6 if j == 4 else 0),
                                                             off + 1280 * rd + 32 * (j & 3)) for j in range(5) for rd in range(2)]
        return ['ds_read_b64_tr_b16 %s, v%d offset:%d' % (v(f + 4 * j + 2 * rd, 2), base, off + 1280 * rd + 32 * j)
                for j in range(5) for rd in range(2)]
    pl = 'buffer_load_dword v252, v%d, s[%d:%d], s88 offen sc1' % (vOA + 1, RWS, RWS + 3)
    def oload(ks):
        a('buffer_load_dwordx4 %s, v%d, s[%d:%d], s85 offen offset:%d sc1', v(4 * ks, 4), vOA, RWS, RWS + 3, 1024 * (ks & 3))
        if ks & 3 == 3 and ks < 19:
            a('s_add_u32 s85, s85, 4096')
    LEAD = OPT['olead']
    touch_ = 'buffer_load_dword v251, v248, s[%d:%d], s85 offen sc1' % (RWS, RWS + 3)
    NP = OPT['npre'] if EP else 0
    rest = [r for ks in range(NP, NB) for r in reads(ks)]
    if EP:
        for ks in range(NP):
            for r in reads(ks):
                a(r)
        if OPT['pgate']:
            a('s_waitcnt lgkmcnt(0)')
            a('v_cmp_gt_u32 vcc, 8, v99')
            a('s_cbranch_vccz L_epoll')
            a('s_waitcnt vmcnt(0)')
            stamp('A', 'odrain')
            if DIAG:
                nstamp['A'].pop()
            setflag(43, 2)
            a('s_mov_b32 vcc_lo, -1')
            a('s_mov_b32 vcc_hi, 0')
            a('s_branch L_f4late')
            a.label('L_epoll')
        a('s_mov_b32 exec_hi, 0')
        a(pl)
        a('s_waitcnt vmcnt(1)')
        stamp('A', 'odrain')
        setflag(43, 2)
        a('s_mov_b32 exec_hi, 0')
        a('s_waitcnt vmcnt(1)')
        a('v_cmp_eq_u32 vcc, 0, v252')
        a('s_mov_b64 exec, -1')
        a('s_cbranch_vccnz L_f4late')
        stamp('A', 'f4')
        if DIAG:
            nstamp['A'].pop()
        a(touch_)
        k = 0
        for ks in range(LEAD):
            oload(ks)
            while k < len(rest) * (ks + 1) // LEAD:
                a(rest[k])
                k += 1
        a('s_branch L_p3go')
        a.label('L_f4late')
    for r in rest:
        a(r)
    if OPT['pgate'] and TAG != 1:
        a('s_mov_b64 s[38:39], vcc')
        waitpw(vAPW, 8, 99, sleep=OPT['gsleep'])
        a('s_mov_b64 vcc, s[38:39]')
    if EP:
        a('s_mov_b64 exec, vcc')
    else:
        a('s_mov_b32 exec_hi, 0')
    pollflags([pl], 252, sleep=OPT['psleep4'])
    stamp('A', 'f4')
    a(touch_)
    for ks in range(LEAD):
        oload(ks)
    a.label('L_p3go')
    a('s_waitcnt lgkmcnt(0)')
    nl = LEAD
    a('v_mov_b32 v250, 9')
    lq = []
    if nl == 20 or OPT['yearly']:
        a('ds_write_b32 v%d, v250', vPW)
    pend = []
    nck = 0
    JO = OPT['jout'] or 20
    for ks in range(JO):
        w_ = 's_waitcnt vmcnt(%d)' % (nl - 1 - ks)
        if ks in lq:
            idx = max(i for i, x in enumerate(lq) if x == ks)
            w_ += ' lgkmcnt(%d)' % min(15, len(lq) - 1 - idx)
        a(w_)
        if OPT['fine'] in (1, 2) and ks in (0, 10, 19):
            stamp('A', 'p3k%d' % ks)
        rr = reads(ks + NB) if ks + NB < 20 else []
        for j in range(5):
            a('v_mfma_f32_16x16x32_bf16 %s, %s, %s, %s', v(acc + 4 * j, 4), v(4 * ks, 4), v(100 + 20 * (ks % NB) + 4 * j, 4),
              '0' if ks == 0 else v(acc + 4 * j, 4))
            for tg, r in pend:
                a(r)
                lq.append(tg)
            if TAG and not pend and ks >= 13:
                for _ in range(2):
                    if nck < 4 * ks + 4:
                        if nck == 0:
                            a('v_max_u32 v252, v0, v1')
                        else:
                            a('v_max3_u32 v252, v252, v%d, v%d', nck, nck + 1)
                        nck += 2
            pend = [(ks + NB, r) for r in rr[2 * j:2 * j + 2]]
            if j in (0, 3) and nl < 20 and (j == 0 or ks % 2 == 0):
                oload(nl)
                nl += 1
                if nl == 20 and not OPT['yearly']:
                    a('ds_write_b32 v%d, v250', vPW)
                    lq.append('w')
    if JO < 20:
        assert not TAG and nl == 20 and not pend
        a('s_waitcnt vmcnt(0) lgkmcnt(0)')
        for j in range(5):
            for i, ks in enumerate(range(JO, 20)):
                a('v_mfma_f32_16x16x32_bf16 %s, %s, %s, %s', v(acc + 4 * j, 4), v(4 * ks, 4), v(100 + 20 * (ks % NB) + 4 * j, 4), v(acc + 4 * j, 4))
                if j and i < 2:
                    a('s_nop 2')
                elif j and i < 6:
                    a(ostore(j - 1, i - 2))
        if OPT['fine'] in (1, 2):
            stamp('A', 'p3k19')
        a('s_nop 6')
        for r in range(4):
            a(ostore(4, r))
    if TAG:
        assert nck == 80
        a('v_cmp_eq_u32 vcc, -1, v252')
        a('s_cbranch_vccnz L_p3again')
        retry('L_p3again', 'L_p3redo', 0, ['s_sub_u32 s85, s85, 16384'])

def p3_groups(vA0, vOA, acc):
    WF, vAN = 100, 241
    sP, sG, sM, sKEY, sC = 4, 5, 6, 7, 8
    pl = 'buffer_load_dword v252, v%d, s[%d:%d], s88 offen sc1' % (vOA + 1, RWS, RWS + 3)
    for g in range(4):
        a('s_sub_u32 s%d, %d, s%d', sC + g, g, sOG)
        a('s_and_b32 s%d, s%d, 3', sC + g, sC + g)
        a('s_lshl2_add_u32 s%d, s%d, %d', sC + g, sC + g, g)
    a('v_mov_b32 v248, 9')
    a('s_waitcnt lgkmcnt(0)')
    a('v_cmp_gt_u32 vcc, 8, v99')
    a('s_cbranch_vccz L_epoll')
    a('s_waitcnt vmcnt(0)')
    stamp('A', 'odrain')
    if DIAG:
        nstamp['A'].pop()
    setflag(43, 2)
    waitpw(vAPW, 8, 99, sleep=OPT['gsleep'])
    a('s_mov_b32 exec_hi, 0')
    a(pl)
    a('s_waitcnt vmcnt(0)')
    a('s_branch L_polled')
    a.label('L_epoll')
    a('s_mov_b32 exec_hi, 0')
    a(pl)
    a('s_waitcnt vmcnt(1)')
    stamp('A', 'odrain')
    setflag(43, 2)
    a('s_mov_b32 exec_hi, 0')
    a('s_waitcnt vmcnt(1)')
    a.label('L_polled')
    a('v_cmp_eq_u32 vcc, 0, v252')
    a('s_mov_b64 exec, -1')
    a('s_mov_b32 s%d, vcc_lo', sP)
    def reads(k):
        return ['ds_read_b64_tr_b16 %s, v%d offset:%d' % (v(WF + 20 * k + 4 * j + 2 * rd, 2), vAN, 5120 * k + 1280 * rd + 32 * j)
                for j in range(5) for rd in range(2)]
    def issue(sl):
        for k in range(5):
            a('buffer_load_dwordx4 %s, v%d, s[%d:%d], s%d offen offset:%d sc1', v(20 * sl + 4 * k, 4), vOA, RWS, RWS + 3,
              12 if k < 4 else 13, 1024 * (k & 3))
        if sl == 3:
            a('ds_write_b32 v%d, v248', vPW)
    for sl in range(-1, 4):
        nx = sl + 1
        Lw, Lc, Ld = a.newlabel('gw'), a.newlabel('gc'), a.newlabel('gd')
        if nx < 4:
            for g in range(4):
                a('s_bfe_u32 s14, s%d, 0x%x', sP, (8 << 16) | (8 * g))
                a('s_bcnt1_i32_b32 s14, s14')
                if g == 0:
                    a('s_lshl4_add_u32 s%d, s14, s%d', sKEY, sC)
                else:
                    a('s_lshl4_add_u32 s14, s14, s%d', sC + g)
                    a('s_min_u32 s%d, s%d, s14', sKEY, sKEY)
            a('s_and_b32 s%d, s%d, 3', sG, sKEY)
            a('s_mul_i32 s12, s%d, 5120', sG)
            a('s_add_u32 s12, s12, s85')
            a('s_add_u32 s13, s12, 4096')
            a('s_cmp_lt_u32 s%d, 16', sKEY)
            a('s_cbranch_scc0 %s', Lw)
            issue(nx)
            if sl >= 0:
                a('s_waitcnt vmcnt(5)')
            a('s_branch %s', Lc)
            a.label(Lw)
            a('s_mov_b32 exec_lo, s%d', sP)
            a('s_mov_b32 exec_hi, 0')
            a(pl)
            a('s_mov_b64 exec, -1')
            if sl >= 0:
                a('s_waitcnt vmcnt(1)')
            a.label(Lc)
            a('s_mul_i32 s14, s%d, 25600', sG)
            a('v_add_u32 v%d, s14, v%d', vAN, vA0)
            if nx < 3:
                for g in range(4):
                    a('s_cmp_eq_u32 s%d, %d', sG, g)
                    a('s_cselect_b32 s%d, 0x1000, s%d', sC + g, sC + g)
        if sl < 0:
            for k in range(5):
                for r in reads(k):
                    a(r)
        else:
            pend = []
            for k in range(5):
                if nx == 4:
                    a('s_waitcnt vmcnt(%d) lgkmcnt(%d)', 4 - k, 0 if k >= 3 else 15)
                else:
                    a('s_waitcnt lgkmcnt(15)')
                rr = reads(k) if nx < 4 else []
                for j in range(5):
                    a('v_mfma_f32_16x16x32_bf16 %s, %s, %s, %s', v(acc + 4 * j, 4), v(20 * sl + 4 * k, 4), v(WF + 20 * k + 4 * j, 4),
                      '0' if (sl == 0 and k == 0) else v(acc + 4 * j, 4))
                    for r in pend:
                        a(r)
                    pend = rr[2 * j:2 * j + 2]
            for r in pend:
                a(r)
        if nx < 4:
            a('s_cmp_lt_u32 s%d, 16', sKEY)
            a('s_cbranch_scc1 %s', Ld)
            L1, L2 = a.newlabel('gp'), a.newlabel('gq')
            a('s_lshl_b32 s14, s%d, 3', sG)
            a('s_lshl_b32 s%d, 0xff, s14', sM)
            a('s_mov_b32 exec_lo, s%d', sP)
            a('s_mov_b32 exec_hi, 0')
            a.label(L1)
            a('s_waitcnt vmcnt(0)')
            a('v_cmp_eq_u32 vcc, 0, v252')
            a('s_and_b32 s14, vcc_lo, s%d', sM)
            a('s_cbranch_scc0 %s', L2)
            a('s_mov_b64 exec, vcc')
            if OPT['psleep4']:
                a('s_sleep %d', OPT['psleep4'])
            a(pl)
            a('s_sub_u32 s%d, s%d, 1', sSPIN, sSPIN)
            a('s_cbranch_scc0 %s', L1)
            a('s_endpgm')
            a.label(L2)
            a('s_mov_b32 s%d, vcc_lo', sP)
            a('s_mov_b64 exec, -1')
            issue(nx)
            a.label(Ld)
            if nx == 3:
                stamp('A', 'f4')

def a_outproj():
    vA0, vA1, vOA, vST = 240, 241, 242, 244
    if not OPT['otag'] or OPT['amark']:
        waitpw(vMG + 5, 14, 98, sleep=1)
    a('v_lshrrev_b32 v21, 5, v%d', vLANE)
    a('v_bfe_u32 v22, v%d, 2, 3', vLANE)
    a('v_lshl_add_u32 v21, v21, 4, v22')
    a('v_mul_u32_u24 v21, 160, v21')
    a('v_and_b32 v22, 3, v%d', vLANE)
    a('v_lshl_add_u32 v%d, v22, 3, v21', vA0)
    a('v_add_u32 v%d, %d, v%d', vA1, 10 * 5120, vA0)
    a('v_lshlrev_b32 v%d, 4, v%d', vOA, vLANE)
    a('v_lshrrev_b32 v21, 4, v%d', vLANE)
    a('v_mul_u32_u24 v21, %d, v21', 4 * 5120)
    a('v_and_b32 v22, 15, v%d', vLANE)
    a('v_lshl_add_u32 v%d, v22, 2, v21', vST)
    if OPT['fline'] & 1:
        a('s_and_b32 s12, s%d, 1', sOG)
        a('s_xor_b32 s13, s12, 1')
        a('s_lshl_b32 s14, s13, 7')
        a('v_add_u32 v%d, s14, v%d', vA0 + 6, vA0)
        a('v_add_u32 v%d, s14, v%d', vA1 + 6, vA1)
        a('s_lshl_b32 s14, s12, 5')
        a('v_add_u32 v%d, s14, v%d', vA0, vA0)
        a('v_add_u32 v%d, s14, v%d', vA1, vA1)
        a('s_lshl_b32 s14, s13, 8')
        a('v_add_u32 v%d, s14, v%d', vST, vST)
        a('v_lshrrev_b32 v21, 5, v%d', vLANE)
        a('v_mul_u32_u24 v21, %d, v21', 8 * 5120)
        a('v_and_b32 v22, 31, v%d', vLANE)
        a('v_lshl_add_u32 v21, v22, 2, v21')
        a('s_lshl_b32 s14, s12, 6')
        a('v_add_u32 v%d, s14, v21', vST + 1)
    else:
        for r in range(1, 4):
            a('v_add_u32 v%d, %d, v%d', vST + r, 5120 * r, vST)
    a('s_mul_i32 s84, s%d, 2560', sOG)
    a('v_min_u32 v248, 19, v%d', vLANE)
    a('v_lshl_add_u32 v248, v248, 7, s84')
    a('s_lshl2_add_u32 s84, s%d, s%d', sTB, sW)
    a('s_mul_i32 s85, s84, %d', OBLK)
    a('s_add_u32 s85, s85, 0x%x', WS_O)
    a('s_mul_i32 s86, s84, %d', 16 * 5120)
    a('s_mul_i32 s88, s%d, 320', sOG)
    a('s_add_u32 s86, s86, s88')
    if OPT['fline'] & 1:
        for r in range(8):
            a('s_add_u32 s%d, s86, %d', 4 + r, 5120 * r)
    a('v_lshlrev_b32 v%d, 7, v%d', vOA + 1, vLANE)
    a('s_lshl_b32 s88, s%d, 12', sTB)
    a('s_add_u32 s88, s88, 0x%x', F4)
    acc = 80
    a.label('L_pgO')
    if OPT['p3dyn']:
        p3_groups(vA0, vOA, acc)
    else:
        p3_static(vA0, vA1, vOA, acc)
    if OPT['fline'] & 1:
        a('s_nop 4')
        for p in range(2):
            for r in range(4):
                a('v_permlane16_swap_b32 v%d, v%d', acc + 8 * p + r, acc + 8 * p + 4 + r)
            for r in range(8):
                a('buffer_store_dword v%d, v%d, s[%d:%d], s%d offen offset:%d%s', acc + 8 * p + r, vST + 1, R4, R4 + 3, 4 + r, 128 * p, OSC)
        for r in range(4):
            a('buffer_store_dword v%d, v%d, s[%d:%d], s%d offen%s', acc + 16 + r, vST, R4, R4 + 3, 4 + r, OSC)
    elif not OPT['jout']:
        a('s_nop 3')
        for j in range(5):
            for r in range(4):
                a(ostore(j, r))
    finish('A')

vXR, vBR, vA0PW = 96, 100, 107
vL, vE, vHW, vHR0, vHR1, vHS, vCH, vCHL, vHH, vP01, vTCH, vHINT = 146, 150, 151, 152, 153, 154, 155, 156, 157, 158, 159, 160
vDX, vDW, vDBX, vDBB = 161, 165, 169, 173
vZ, vWOA, vPAR = 176, 186, 200
vCA, vCR, vHA = 248, 250, 252
vOS = 194
vSPW, vF3, vHT = 191, 192, 193
vAM = 248
vXO, vDO, vOA, vRA, vR1W, vR1R, vR2W, vPW1, vPW2, vAP4 = 164, 165, 166, 167, 169, 170, 171, 172, 173, 174
SENT = 0xffffffff

def s_stage(t, emit=None):
    out = []
    slot = ((t + 1) % 4) * 32768
    if OPT['stag'] >= 8 and t < 10:
        out += ['s_bfe_u32 s82, s%d, 0x%x' % (86 + t // 8, (4 << 16) | (4 * (t % 8))),
                's_add_u32 s82, s82, s85', 's_cmp_ge_u32 s82, 10', 's_cselect_b32 s83, 10, 0', 's_sub_u32 s82, s82, s83']
    elif OPT['stag'] >= 5 and t < 10:
        base, size = {0: (0, 4), 1: (4, 4), 2: (8, 2)}[t // 4] if OPT['stag'] != 7 else ((0, 2) if t < 2 else ((2, 4) if t < 6 else (6, 4)))
        out += ['s_add_u32 s82, s81, %d' % t, 's_and_b32 s82, s82, %d' % (size - 1), 's_add_u32 s82, s82, %d' % base,
                's_add_u32 s82, s82, s85', 's_cmp_ge_u32 s82, 10', 's_cselect_b32 s83, 10, 0', 's_sub_u32 s82, s82, s83']
    out.append('s_add_u32 m0, s74, %d' % slot)
    out.append('s_lshl_b32 s83, s82, 7')
    out.append('s_add_u32 s76, s72, s83')
    if t < 10:
        out += [dma(vDX + i, R0, 76, 1024 * i) for i in range(4)]
        out.append('s_add_u32 m0, s74, %d' % (slot + 16384))
        out.append('s_mul_i32 s83, s82, 245760')
        out.append('s_add_u32 s76, s73, s83')
        out += [dma(vDW + i, R1, 76, 1024 * i) for i in range(4)]
    else:
        out += [dma(vDBX + i, R3, 76, 1024 * i) for i in range(4)]
        out.append('s_add_u32 m0, s75, %d' % (slot + 16384))
        out.append('s_add_u32 s76, s77, s83')
        out += [dma(vDBB + i, R4, 76, 1024 * i) for i in range(2)]
        if OPT['snodup']:
            L3 = a.newlabel('s3rd')
            out += ['s_bitcmp1_b32 s%d, 0' % sW, 's_cbranch_scc1 %s' % L3, dma(vDBB + 2, R4, 76, 2048), L3 + ':']
        else:
            out.append(dma(vDBB + 2, R4, 76, 2048))
    if not (OPT['stag'] >= 5 and t < 10):
        out.append('s_add_u32 s82, s82, 1')
        out.append('s_cmp_eq_u32 s82, 10')
        out.append('s_cselect_b32 s82, 0, s82')
    if emit is None:
        L = a.newlabel('skip')
        if t < 10:
            a('s_cmp_eq_u32 s%d, 15', sCG)
            a('s_cbranch_scc1 %s', L)
        for o in out:
            a(o)
        if t < 10:
            a.label(L)
    return out

def ninstr(t):
    return 0 if t > 19 else (8 if t < 10 else 7)

def exp_acc(dst, x, t1, t2):
    L2E = math.log2(math.e)
    hi = struct.unpack('<f', struct.pack('<f', L2E))[0]
    a('s_mov_b32 s80, 0x%x', f2u(hi))
    a('v_mul_f32 v%d, s80, v%d', t1, x)
    a('v_fma_f32 v%d, v%d, s80, -v%d', t2, x, t1)
    a('v_fmac_f32 v%d, 0x%x, v%d', t2, f2u(L2E - hi), x)
    a('v_exp_f32 v%d, v%d', dst, t1)
    a('v_mul_f32 v%d, 0x%x, v%d', t2, f2u(math.log(2.0)), t2)
    a('v_fmac_f32 v%d, v%d, v%d', dst, dst, t2)

def s_setup():
    a.label('L_roleS')
    a('s_sub_u32 s%d, s%d, 4', sW, sW)
    a('v_lshrrev_b32 v1, 3, v%d', vLANE)
    a('v_and_b32 v2, 7, v%d', vLANE)
    a('v_lshrrev_b32 v3, 4, v%d', vLANE)
    a('v_xor_b32 v4, v2, v3')
    a('v_mul_u32_u24 v5, 1280, v1')
    a('v_lshl_add_u32 v%d, v4, 4, v5', vDX)
    a('v_xor_b32 v6, 64, v%d', vDX)
    a('v_add_u32 v%d, %d, v6', vDX + 1, 10240 - 1024)
    a('v_add_u32 v%d, %d, v%d', vDX + 2, 2 * (10240 - 1024), vDX)
    a('v_add_u32 v%d, %d, v6', vDX + 3, 3 * (10240 - 1024))
    a('v_and_b32 v7, 15, v%d', vLANE)
    a('v_lshlrev_b32 v8, 2, v3')
    a('v_xor_b32 v7, v7, v8')
    a('v_mul_u32_u24 v8, 3840, v3')
    a('v_lshl_add_u32 v%d, v7, 4, v8', vDW)
    for i in range(1, 4):
        a('v_add_u32 v%d, %d, v%d', vDW + i, (15360 - 1024) * i, vDW)
    a('s_lshl2_add_u32 s72, s%d, s%d', sRB, sW)
    a('s_mul_i32 s72, s72, %d', 32 * 1280)
    a('s_mul_i32 s73, s%d, %d', sW, 16 * 3840)
    a('s_lshl_b32 s70, s%d, 8', sCG)
    a('s_add_u32 s73, s73, s70')
    a('s_lshl_b32 s74, s%d, 12', sW)
    if OPT['stag'] <= 4:
        stagger(82, 83, 0, 0, OPT['stag'])
    else:
        a('s_add_u32 s81, s%d, s%d', sI, sOG)
        a('s_add_u32 s85, s%d, 1', sXCD)
        a('s_lshr_b32 s85, s85, 1')
        a('s_mul_i32 s85, s85, %d', 2 if OPT['stag'] in (5, 8, 9, 10, 11) else 0)
        if OPT['stag'] >= 8:
            T = {8: ['0412385679', '1253049678', '2306145789', '3012745689'],
                 9: ['0142385679', '1253094678', '2306145789', '3017245689'],
                 10: ['0124358679', '1235049678', '2301645789', '3012745689'],
                 11: ['0412835679', '1523904678', '2360145789', '3071245689']}[OPT['stag']]
            for r in T:
                assert sorted(r) == list('0123456789')
            lo = [int(r[:8][::-1], 16) for r in T]
            hi = sum(int(r[8:][::-1], 16) << (8 * c) for c, r in enumerate(T))
            a('s_and_b32 s81, s81, 3')
            a('s_mov_b32 s86, 0x%x', lo[0])
            for c in range(1, 4):
                a('s_cmp_eq_u32 s81, %d', c)
                a('s_cselect_b32 s86, 0x%x, s86', lo[c])
            a('s_lshl_b32 s81, s81, 3')
            a('s_lshr_b32 s87, 0x%x, s81', hi)
    a('s_mov_b32 s%d, 0x%x', R0 + 2, 2048 * 1280)
    a('s_mov_b32 s%d, 0x20000', R0 + 3)
    a('s_mov_b32 s%d, 0x%x', R1 + 2, 640 * 3840)
    a('s_mov_b32 s%d, 0x20000', R1 + 3)
    st0 = s_stage(0, emit=False)
    k = next(i for i, o in enumerate(st0) if o.startswith('buffer_load'))
    for o in st0[:k]:
        a(o)
    a('s_cmp_eq_u32 s%d, 15', sCG)
    a('s_waitcnt lgkmcnt(0)')
    a('s_mov_b64 s[%d:%d], s[%d:%d]', R0, R0 + 1, sAX, sAX + 1)
    a('s_mov_b64 s[%d:%d], s[%d:%d]', R1, R1 + 1, sWQ, sWQ + 1)
    if DIAG:
        ws_setup()
    stamp('S', 'start')
    a('s_cbranch_scc1 L_skip0')
    for o in st0[k:]:
        a(o)
    a.label('L_skip0')
    if not DIAG:
        prologue2()
        ws_setup()
    if OPT['fine'] == 1:
        stamp('S', 'iss0')
    def params():
        a('s_mul_i32 s70, s%d, 40', sG)
        a('v_min_u32 v9, 39, v%d', vLANE)
        a('v_add_lshl_u32 v9, v9, s70, 1')
        a('global_load_ushort v10, v9, s[%d:%d]', sLDT, sLDT + 1)
        a('global_load_ushort v11, v9, s[%d:%d]', sLRE, sLRE + 1)
        a('global_load_ushort v12, v9, s[%d:%d]', sLIM, sLIM + 1)
    params()
    n0 = len(a.lines)
    b1_sources(R3, R4, vDBX, vDBB, 75, 77, 70, 3 if OPT['snodup'] else 2)
    a('v_and_b32 v5, 3, v%d', vLANE)
    a('v_lshlrev_b32 v5, 8, v5')
    a('v_lshl_add_u32 v5, v%d, 2, v5', vLANE)
    a('v_add_u32 v%d, %d, v5', vSPW, L_PW + 1024)
    s_addresses()
    if OPT['slate']:
        late = a.lines[n0:]
        del a.lines[n0:]
        k = 0
        nch = OPT['slate']
        for c in range(nch):
            e = len(late) * (c + 1) // nch
            while e < len(late) and ('cselect' in late[e] or 'cndmask' in late[e] or 'cndmask' in late[e + 1] or 'cndmask' in late[min(e + 2, len(late) - 1)]):
                e += 1
            SLATE.append(late[k:e])
            k = e
    s_stage(1)
    if OPT['fine'] == 1:
        stamp('S', 'iss1')
    a('s_waitcnt vmcnt(11) lgkmcnt(0)')
    stamp('S', 'st0')
    a('s_barrier')
    s_stage(2)
    slate()
    a('s_waitcnt vmcnt(8)')
    a('s_barrier')
    s_stage(3)
    s_stage(4)

SLATE = []

def slate():
    if SLATE:
        a.lines.extend(SLATE.pop(0))

def s_addresses():
    c, g, t0, t1, t2 = 40, 41, 42, 43, 44
    a('v_and_b32 v%d, 15, v%d', c, vLANE)
    a('v_lshrrev_b32 v%d, 4, v%d', g, vLANE)
    a('v_lshrrev_b32 v%d, 1, v%d', t0, c)
    a('v_xor_b32 v%d, v%d, v%d', t0, t0, g)
    a('v_lshlrev_b32 v%d, 4, v%d', t0, t0)
    a('v_lshl_add_u32 v%d, v%d, 7, v%d', t0, c, t0)
    a('v_xor_b32 v%d, 64, v%d', t1, t0)
    a('v_add_u32 v%d, s74, v%d', vXR, t0)
    a('v_add_u32 v%d, s74, v%d', vXR + 1, t1)
    a('s_mul_i32 s70, s%d, %d', sW, REGSZ)
    a('s_add_u32 s70, s70, %d', L_REG)
    a('v_add_u32 v%d, s70, v%d', vCR, t0)
    a('v_add_u32 v%d, s70, v%d', vCR + 1, t1)
    a('v_lshrrev_b32 v%d, 3, v%d', t2, c)
    a('v_lshl_add_u32 v%d, v%d, 12, v%d', t0, t2, t0)
    a('v_add_u32 v%d, 16384, v%d', vBR, t0)
    a('v_xor_b32 v%d, 64, v%d', vBR + 1, vBR)
    for k in range(2):
        a('v_add_u32 v%d, 0x10000, v%d', vXR + 2 + k, vXR + k)
        a('v_add_u32 v%d, 0x10000, v%d', vBR + 2 + k, vBR + k)
    a('v_and_b32 v%d, 7, v%d', t0, vLANE)
    a('v_lshlrev_b32 v%d, 2, v%d', t2, t2)
    a('v_lshl_add_u32 v%d, v%d, 3, v%d', t0, t0, t2)
    a('v_add_u32 v%d, %d, v%d', vHH, L_H, t0)
    a('v_mul_u32_u24 v%d, 320, v%d', t1, g)
    a('s_mul_i32 s71, s%d, 1280', sW)
    a('s_add_u32 s71, s71, %d', L_EL)
    a('v_add3_u32 v%d, v%d, v%d, s71', vE, t0, t1)
    a('v_lshlrev_b32 v%d, 3, v%d', vCH, vLANE)
    a('v_add_u32 v%d, %d, v%d', vCHL, L_H, vCH)
    a('v_lshlrev_b32 v%d, 9, v%d', vHINT, vLANE)
    a('v_lshlrev_b32 v%d, 2, v%d', vA0PW, vLANE)
    a('v_add_u32 v%d, %d, v%d', vA0PW, L_PW, vA0PW)
    a('v_and_b32 v%d, 0x%x, v%d', vP01, 0xffffffff ^ 512, vSPW)
    a('v_bfe_u32 v%d, v%d, 1, 2', t0, vLANE)
    a('v_xor_b32 v%d, v%d, v%d', t0, t0, g)
    a('v_lshlrev_b32 v%d, 4, v%d', t0, t0)
    a('s_mul_i32 s71, s%d, 5120', sW)
    a('s_add_u32 s71, s71, %d', L_HT)
    a('v_lshl_add_u32 v%d, v%d, 6, v%d', t0, c, t0)
    a('v_add_u32 v%d, s71, v%d', vHW, t0)
    a('v_bfe_u32 v%d, v%d, 2, 2', t0, vLANE)
    a('v_lshrrev_b32 v%d, 5, v%d', t1, vLANE)
    a('v_lshl_add_u32 v%d, v%d, 3, v%d', vHR0, t1, t0)
    a('v_lshlrev_b32 v%d, 6, v%d', vHR0, vHR0)
    a('v_mul_u32_u24 v%d, %d, v%d', vHS, 80 * 256, t1)
    a('v_lshrrev_b32 v%d, 1, v%d', t0, t0)
    a('v_bfe_u32 v%d, v%d, 4, 1', t1, vLANE)
    a('v_bfe_u32 v%d, v%d, 1, 1', t2, vLANE)
    a('v_lshl_add_u32 v%d, v%d, 1, v%d', t2, t1, t2)
    a('v_xor_b32 v%d, v%d, v%d', t2, t2, t0)
    a('v_lshl_add_u32 v%d, v%d, 4, v%d', vHR0, t2, vHR0)
    a('v_and_b32 v%d, 1, v%d', t2, vLANE)
    a('v_lshl_add_u32 v%d, v%d, 3, v%d', vHR0, t2, vHR0)
    a('v_xor_b32 v%d, 32, v%d', vHR1, vHR0)
    a('v_add_u32 v%d, s71, v%d', vHR0, vHR0)
    a('v_add_u32 v%d, s71, v%d', vHR1, vHR1)
    a('v_mul_u32_u24 v%d, %d, v%d', t1, HBLK, t1)
    a('v_lshl_add_u32 v%d, v%d, 4, v%d', t1, c, t1)
    a('v_add_u32 v%d, v%d, v%d', vHS, vHS, t1)
    if OPT['otag'] and not OPT['amark']:
        a('v_bfe_u32 v%d, v%d, 4, 1', t0, vLANE)
        a('v_mul_u32_u24 v%d, %d, v%d', t0, OBLK, t0)
        a('v_lshl_add_u32 v%d, v%d, 4, v%d', t0, c, t0)
        a('v_lshrrev_b32 v%d, 5, v%d', t1, vLANE)
        a('v_mul_u32_u24 v%d, %d, v%d', t2, 2 * OBLK, t1)
        a('v_add_u32 v%d, v%d, v%d', vOS + 1, t2, t0)
        a('v_lshl_add_u32 v%d, v%d, 8, v%d', vOS, t1, t0)
        for k in range(4):
            a('v_mov_b32 v%d, -1', vOS + 2 + k)
    a('v_mov_b32 v%d, v%d', vCA, vDX)
    a('v_mov_b32 v%d, v%d', vCA + 1, vDX + 1)
    a('v_lshlrev_b32 v%d, 4, v%d', vHA, vLANE)
    a('v_lshlrev_b32 v%d, 7, v%d', vF3, vLANE)
    a('v_min_u32 v%d, %d, v%d', vHT, 39 * 128, vF3)
    a('s_xor_b32 s92, s%d, 1', sW)
    a('s_mul_i32 s92, s92, %d', REGSZ)
    a('s_add_u32 s92, s92, %d', L_REG)
    a('s_xor_b32 s93, s%d, 3', sW)
    a('s_mul_i32 s93, s93, %d', REGSZ)
    a('s_add_u32 s93, s93, %d', L_REG + 16 * 336)
    if not OPT['wopack']:
        s_wooffs()

def s_params():
    a('s_cmp_eq_u32 s%d, 0', sW)
    a('s_cbranch_scc0 L_nopar')
    for r in (10, 11, 12):
        a('v_lshlrev_b32 v%d, 16, v%d', r, r)
    exp_acc(13, 10, 14, 15)
    a('v_cvt_pk_bf16_f32 v13, v13, v13')
    a('v_and_b32 v13, 0xffff0000, v13')
    a('v_mul_f32 v14, v13, v11')
    a('v_mul_f32 v15, v13, v12')
    exp_acc(16, 14, 17, 18)
    I2P = 1.0 / (2 * math.pi)
    hi = struct.unpack('<f', struct.pack('<f', I2P))[0]
    a('s_mov_b32 s80, 0x%x', f2u(hi))
    a('v_mul_f32 v17, s80, v15')
    a('v_rndne_f32 v17, v17')
    a('v_fma_f32 v17, v15, s80, -v17')
    a('v_fmac_f32 v17, 0x%x, v15', f2u(I2P - hi))
    a('v_cos_f32 v20, v17')
    a('v_sin_f32 v21, v17')
    a('v_mul_f32 v18, v11, v11')
    a('v_fmac_f32 v18, v12, v12')
    a('v_rcp_f32 v19, v18')
    a('v_mul_f32 v20, v16, v20')
    a('v_mul_f32 v21, v16, v21')
    a('v_fma_f32 v18, -v18, v19, 1.0')
    a('v_fmac_f32 v19, v19, v18')
    a('v_add_f32 v19, v19, v19')
    a('v_add_f32 v17, -1.0, v20')
    a('v_mul_f32 v22, v17, v11')
    a('v_fmac_f32 v22, v21, v12')
    a('v_mul_f32 v23, v17, v12')
    a('v_fma_f32 v23, -v21, v11, v23')
    a('v_mul_f32 v22, v22, v19')
    a('v_mul_f32 v23, v23, v19')
    a('v_lshlrev_b32 v9, 4, v%d', vLANE)
    a('v_add_u32 v9, %d, v9', L_PAR)
    a('ds_write_b128 v9, v[20:23]')
    a('v_mov_b32 v24, v20')
    a('v_sub_f32 v25, 0, v21')
    for k in range(3):
        a('v_mul_f32 v26, v25, v25')
        a('v_add_f32 v27, v24, v24')
        a('v_fma_f32 v24, v24, v24, -v26')
        a('v_mul_f32 v25, v27, v25')
    a.label('L_nopar')

def s_params2():
    a('s_cmp_eq_u32 s%d, 0', sW)
    a('s_cbranch_scc0 L_nopar2')
    a('s_mov_b32 exec_hi, 0xff')
    a('v_mov_b32 v14, 1.0')
    a('v_mov_b32 v15, 0')
    a('ds_write_b64 v%d, v[14:15] offset:%d', vCHL, L_Z - L_H)
    a('ds_write_b64 v%d, v[24:25] offset:%d', vCHL, L_Z - L_H + 320)
    src = 24
    for sg in range(2, 17):
        dst = 16 + 2 * (sg % 3)
        a('v_mul_f32 v%d, v24, v%d', dst, src)
        a('v_mul_f32 v%d, v24, v%d', dst + 1, src + 1)
        a('v_fma_f32 v%d, -v25, v%d, v%d', dst, src + 1, dst)
        a('v_fmac_f32 v%d, v25, v%d', dst + 1, src)
        a('ds_write_b64 v%d, %s offset:%d', vCHL, v(dst, 2), L_Z - L_H + 320 * sg)
        src = dst
    a('s_mov_b32 exec_hi, -1')
    a('s_waitcnt lgkmcnt(0)')
    a.label('L_nopar2')

def s_wooffs():
    for i in range(5):
        a('v_add_u32 v40, %d, v%d', 64 * i, vLANE)
        a('v_mul_u32_u24 v41, 6554, v40')
        a('v_lshrrev_b32 v41, 16, v41')
        a('v_mul_u32_u24 v42, 10, v41')
        a('v_sub_u32 v40, v40, v42')
        tau(42, 41, 43)
        a('v_mul_u32_u24 v42, 1280, v42')
        a('v_lshl_add_u32 v%d, v40, 4, v42', vWOA + i)
        if 0 < i < 4:
            a('v_subrev_u32 v%d, %d, v%d', vWOA + i, 1024 * i, vWOA + i)

def s_qloader():
    early = {1: {7: 10}, 2: {7: 10, 9: 11}, 3: {7: 10, 8: 11, 9: 12}, 4: {7: 10, 8: 11, 9: 12}, 0: {}}[OPT['st10']]
    q = [2] * 8 + [3] * 8 + [4] * 8
    for st in range(2, 10):
        a('s_waitcnt vmcnt(%d)', len(q) - 1 - max(i for i, x in enumerate(q) if x == st))
        if OPT['fine'] == 1 and st in (2, 4, 6, 7, 8, 9):
            stamp('S', 'st%d' % st)
        a('s_barrier')
        if st == 6:
            a('v_and_b32 v32, 15, v%d', vLANE)
            a('v_lshlrev_b32 v32, 4, v32')
            a('v_mov_b32 v33, 1')
            a('s_cmp_eq_u32 s%d, 3', sW)
            a('s_cbranch_scc0 L_nodbg')
            a(dbgload(32, 33))
            a.label('L_nodbg')
            a('s_cmp_eq_u32 s%d, 15', sCG)
            a('s_cbranch_scc0 L_cw')
            a('s_waitcnt vmcnt(0)')
            a.label('L_cw')
        if st <= 6:
            s_stage(st + 3)
            q += [st + 3] * 8
            slate()
        if st == OPT['pretouch']:
            a('s_cmp_eq_u32 s%d, 2', sW)
            a('s_cselect_b32 s70, s%d, s%d', sBRE, sBIM)
            a('s_cselect_b32 s71, s%d, s%d', sBRE + 1, sBIM + 1)
            a('s_mul_i32 s83, s2, 3200')
            a('s_lshl1_add_u32 s84, s2, s%d', sW)
            a('s_mul_i32 s84, s84, 5120')
            a('s_cmp_lt_u32 s%d, 2', sW)
            a('s_cselect_b32 s70, s%d, s70', sBX)
            a('s_cselect_b32 s71, s%d, s71', sBX + 1)
            a('s_cselect_b32 s83, s84, s83')
            a('s_cselect_b32 s84, 39, 24')
            a('v_min_u32 v30, s84, v%d', vLANE)
            a('v_lshl_add_u32 v30, v30, 7, s83')
            a('global_load_dword v31, v30, s[70:71]')
            q.append('t')
        if st == 7:
            stagger(82, 83, 0, OPT['flip'], OPT['stagb'])
        if st in early:
            s_stage(early[st])
            q += [early[st]] * (7 - OPT['snodup'])
        if st == 7 and not OPT['plate']:
            s_params()
        if st == 8 and not OPT['plate']:
            s_params2()

    a('v_cmp_eq_u32 vcc, 0, v33')
    a('s_cbranch_vccz L_clrok')
    pollflags([dbgload(32, 33)], 33, sleep=8)
    a.label('L_clrok')
    a('s_barrier')
    stamp('S', 'qend')
    if OPT['st10'] == 4:
        s_stage(13)
    if OPT['plate']:
        s_params()
        s_params2()
    else:
        s_consts()

def s_consts():
    a('v_and_b32 v104, 7, v%d', vLANE)
    a('v_lshlrev_b32 v104, 4, v104')
    a('v_add_u32 v104, %d, v104', L_PAR)
    for j in range(5):
        a('ds_read_b128 %s, v104 offset:%d', v(vPAR + 4 * j, 4), 128 * j)
    a('v_and_b32 v105, -8, v%d', vE)
    a('v_add_u32 v105, %d, v105', L_Z - L_EL)
    for j in range(5):
        a('ds_read_b64 %s, v105 offset:%d', v(vZ + 2 * j, 2), 64 * j)
    a('s_cmp_eq_u32 s%d, 0', sW)
    a('s_cselect_b32 s70, 1, 16')
    a('s_mul_i32 s70, s70, 320')
    a('v_add_u32 v106, s70, v%d', vCHL)
    a('ds_read_b64 %s, v106 offset:%d', v(vL, 2), L_Z - L_H)
    a('v_bfe_u32 v145, v%d, 3, 1', vLANE)
    a('v_lshlrev_b32 v145, 31, v145')
    a('v_xor_b32 v144, 0x80000000, v145')
    a('s_waitcnt lgkmcnt(0)')
    for j in range(5):
        a('v_xor_b32 v%d, v145, v%d', vPAR + 4 * j + 1, vPAR + 4 * j + 1)
        a('v_xor_b32 v%d, v145, v%d', vPAR + 4 * j + 2, vPAR + 4 * j + 2)
        a('v_xor_b32 v%d, v144, v%d', vZ + 2 * j + 1, vZ + 2 * j + 1)

def touch(r, va=None):
    o = ['s_add_u32 s84, s%d, %d' % (sXCD, r),
         's_cmp_ge_u32 s84, 6', 's_cselect_b32 s85, 6, 0', 's_sub_u32 s84, s84, s85',
         's_cmp_ge_u32 s84, 6', 's_cselect_b32 s85, 6, 0', 's_sub_u32 s84, s84, s85',
         's_cmp_ge_u32 s84, 2',
         's_cselect_b32 s86, s%d, s%d' % (sCRE, sWO), 's_cselect_b32 s87, s%d, s%d' % (sCRE + 1, sWO + 1),
         's_cmp_ge_u32 s84, 4',
         's_cselect_b32 s86, s%d, s86' % sCIM, 's_cselect_b32 s87, s%d, s87' % (sCIM + 1),
         's_and_b32 s84, s84, 1', 's_mul_i32 s84, s84, 3200',
         's_add_u32 s86, s86, s84', 's_addc_u32 s87, s87, 0',
         'global_load_dword v109, v%d, s[86:87]' % (va or vTCH)]
    return o

def s_b1():
    F = [40, 68]
    def reads(t, ks, f):
        slot = (t + 1) % 4
        hi, lo = slot >> 1, (slot & 1) * 32768
        r = ['ds_read_b128 %s, v%d offset:%d' % (v(f + 4 * T, 4), vXR + 2 * hi + ks, lo + 2048 * T) for T in range(2)]
        r += ['ds_read_b128 %s, v%d offset:%d' % (v(f + 8 + 4 * j, 4), vBR + 2 * hi + ks, lo + 1024 * j) for j in range(5)]
        return r
    def mfmas(f, first):
        return ['v_mfma_f32_16x16x32_bf16 %s, %s, %s, %s' % (v(8 * j + 4 * T, 4), v(f + 4 * T, 4), v(f + 8 + 4 * j, 4),
                '0' if first else v(8 * j + 4 * T, 4)) for j in range(5) for T in range(2)]
    def weave(ms, others):
        n = len(ms)
        k = 0
        for i_, m in enumerate(ms):
            a(m)
            while k < len(others) * (i_ + 1) // n:
                a(others[k])
                k += 1
    first = 10 + OPT['st10']
    a('s_lshl4_add_u32 s84, s%d, s%d', sCG, sRB)
    flagaddr(84, 84, F1, 85)
    a('s_waitcnt vmcnt(%d)', max(0, (7 - OPT['snodup']) * (first - 11)))
    a('s_barrier')
    for r in reads(10, 0, F[0]):
        a(r)
    for u in range(10):
        t = 10 + u
        if OPT['fine'] == 1 and u in (0, 2, 3, 4, 8):
            stamp('S', 'b1w%d' % u)
        a('s_waitcnt lgkmcnt(0)')
        m0_ = mfmas(F[0], u == 0)
        weave(m0_[:4], reads(t, 1, F[1]))
        for m in m0_[4:]:
            a(m)
        m1_ = mfmas(F[1], False)
        if u < 9:
            if t + 1 < first:
                a('s_waitcnt vmcnt(%d) lgkmcnt(0)', (7 - OPT['snodup']) * (first - t - 2))
            else:
                if t + 1 == first and OPT['plate']:
                    s_consts()
                a('s_waitcnt lgkmcnt(0)')
            a('s_barrier')
            if t + 1 == first:
                a('s_cmp_eq_u32 s%d, 3', sW)
                a('s_cbranch_scc0 L_noflag')
                setflag(84, 104)
                a.label('L_noflag')
            weave(m1_[:4], reads(t + 1, 0, F[0]))
            for m in m1_[4:]:
                a(m)
        else:
            a('s_waitcnt lgkmcnt(0)')
            for m in m1_:
                a(m)
    stamp('S', 'b1gemm')

def rot5(dst, t):
    a('s_and_b32 s%d, s%d, 3', dst, sI)
    a('s_add_u32 s%d, s%d, s%d', dst, dst, sXCD)
    for _ in range(2):
        a('s_cmp_ge_u32 s%d, 5', dst)
        a('s_cselect_b32 s%d, 5, 0', t)
        a('s_sub_u32 s%d, s%d, s%d', dst, dst, t)
    if not OPT['rot5']:
        a('s_mov_b32 s%d, 0', dst)

def s_wo():
    if OPT['wopack']:
        a('s_mov_b32 s73, 0x%x', F1 + 15 * 16 * 128)
        a('s_mov_b64 exec, 0xffff')
        pollflags(['buffer_load_dword v40, v%d, s[%d:%d], s73 offen sc1' % (vF3, RWS, RWS + 3)], 40, sleep=4)
        rot5(83, 73)
        a('s_mul_i32 s75, s%d, 102400', sOG)
        a('s_add_u32 s75, s75, 0x%x', WS_WP)
        a('s_mov_b32 s77, 5')
        a.label('L_woloop')
        a('s_lshl2_add_u32 s78, s83, s%d', sW)
        a('s_mul_i32 s78, s78, 5120')
        a('s_add_u32 s79, s78, s75')
        a('s_mov_b32 m0, s78')
        for i in range(5):
            if i == 4:
                a('s_add_u32 m0, s78, 4096')
                a('s_add_u32 s79, s79, 4096')
            a('s_waitcnt vmcnt(%d)', OPT['thrw'])
            a(dma(vHA, RWS, 79, 1024 * (i & 3)).replace(' lds', ' sc1 lds'))
    else:
        srd(R0, sWO, 640 * 1280)
        rot5(83, 73)
        a('s_mul_i32 s75, s%d, 160', sOG)
        a('s_mov_b32 s77, 5')
        a.label('L_woloop')
        a('s_lshl2_add_u32 s78, s83, s%d', sW)
        a('s_mul_i32 s79, s78, 40960')
        a('s_add_u32 s79, s79, s75')
        a('s_mul_i32 s78, s78, 5120')
        a('s_mov_b32 m0, s78')
        a('s_add_u32 s73, s78, 4096')
        for i in range(5):
            if i == 4:
                a('s_mov_b32 m0, s73')
            a('s_waitcnt vmcnt(%d)', OPT['thrw'])
            a(dma(vWOA + i, R0, 79, 1024 * (i & 3)))
    a('s_add_u32 s83, s83, 1')
    a('s_cmp_eq_u32 s83, 5')
    a('s_cselect_b32 s83, 0, s83')
    a('s_sub_u32 s77, s77, 1')
    a('s_cmp_lg_u32 s77, 0')
    a('s_cbranch_scc1 L_woloop')
    for kp in range(5):
        a('s_lshl_b32 s73, s83, 7')
        a('s_add_u32 s%d, s72, s73', 4 + kp)
        a('s_lshl_b32 s%d, s83, 11', 12 + kp)
        a('s_add_u32 s83, s83, 1')
        a('s_cmp_eq_u32 s83, 5')
        a('s_cselect_b32 s83, 0, s83')

def s_mark(both):
    a('s_and_b32 s78, s%d, 1', sW)
    a('s_lshl1_add_u32 s78, s%d, s78', sQB)
    a('s_lshr_b32 s79, s%d, 1', sW)
    a('s_lshl1_add_u32 s78, s78, s79')
    a('s_mul_i32 s78, s78, %d', 4 * OBLK)
    a('s_lshr_b32 s79, s%d, 1', sHD)
    a('s_mul_i32 s79, s79, 1280')
    a('s_add_u32 s78, s78, s79')
    a('s_add_u32 s78, s78, 0x%x', WS_O)
    a('s_and_b32 s79, s%d, 1', sHD)
    a('s_mul_i32 s73, s79, 768')
    a('s_add_u32 s73, s73, s78')
    a('s_add_u32 s75, s73, %d', 2 * OBLK)
    a('s_lshl3_add_u32 s78, s79, s78')
    for k in range(2 if both else 1):
        if k:
            for r in (73, 75, 78):
                a('s_sub_u32 s%d, s%d, %d', r, r, 4 * OBLK)
        a('buffer_store_dwordx4 %s, v%d, s[%d:%d], s73 offen sc1', v(vOS + 2, 4), vOS, RWS, RWS + 3)
        a('buffer_store_dwordx4 %s, v%d, s[%d:%d], s75 offen sc1', v(vOS + 2, 4), vOS, RWS, RWS + 3)
        a('buffer_store_dwordx2 %s, v%d, s[%d:%d], s78 offen offset:512 sc1', v(vOS + 2, 2), vOS + 1, RWS, RWS + 3)

def s_scan():
    ROR = 'row_ror:8 row_mask:0xf bank_mask:0xf'
    a('s_setprio 1')
    a('s_lshl_b32 s70, s%d, 13', sG)
    a('s_add_u32 s70, s70, 0x%x', WS_E)
    a('s_add_u32 s70, s70, s%d', sWS)
    a('s_addc_u32 s71, s%d, 0', sWS + 1)
    srd(R5, 70, 8192)
    a('s_sub_u32 s70, 15, s%d', sRB)
    a('s_lshl_b32 s70, s70, 9')
    a('s_add_u32 s71, s70, 4096')
    tmp = 40
    for j in range(5):
        for k in range(8):
            a('v_mul_f32_dpp v%d, v%d, v%d %s', tmp + k, 8 * j + k, vPAR + 4 * j + 3, ROR)
        for k in range(8):
            a('v_fma_f32 v%d, v%d, v%d, v%d', 8 * j + k, vPAR + 4 * j + 2, 8 * j + k, tmp + k)
    e = [[8 * j for j in range(5)], [50 + j for j in range(5)], [56 + j for j in range(5)]]
    cur = e[0]
    for k in range(1, 8):
        nx = e[1 + (k & 1)]
        for j in range(5):
            a('v_fma_f32 v%d, v%d, v%d, v%d', nx[j], vPAR + 4 * j, cur[j], 8 * j + k)
        for j in range(5):
            a('v_fmac_f32_dpp v%d, v%d, v%d %s', nx[j], cur[j], vPAR + 4 * j + 1, ROR)
        cur = nx
    for j in range(5):
        a('ds_write_b32 v%d, v%d offset:%d', vE, cur[j], 64 * j)
    setpw(11, 104)
    for r in range(10 - OPT['tstart'], 0 if OPT['tlate'] else 6):
        a('s_waitcnt vmcnt(0)')
        for o in touch(r):
            a(o)
    stamp('S', 'pass1')
    def chain(dst, src, add):
        a('v_fma_f32 v%d, v%d, v%d, v%d', dst, vL, src, add)
        a('v_fma_f32 v%d, v%d, v%d, v%d', dst + 1, vL, src + 1, add + 1)
        a('v_fma_f32 v%d, -v%d, v%d, v%d', dst, vL + 1, src + 1, dst)
        a('v_fmac_f32 v%d, v%d, v%d', dst + 1, vL + 1, src)
    ES = 110
    a('s_cmp_eq_u32 s%d, 1', sW)
    a('s_cbranch_scc1 L_wave1')
    a('s_cmp_eq_u32 s%d, 0', sW)
    a('s_cbranch_scc0 L_wave23')
    waitpw(vSPW, 11, 105, sleep=1)
    a('s_mov_b32 exec_hi, 0xff')
    for sg in range(16):
        a('ds_read_b64 %s, v%d offset:%d', v(ES + 2 * sg, 2), vCHL, L_EL - L_H + 320 * sg)
    a('v_mov_b32 v142, 0')
    a('v_mov_b32 v143, 0')
    a('s_waitcnt lgkmcnt(0)')
    a('ds_write_b64 v%d, v[142:143] offset:%d', vCHL, L_PL - L_H)
    for sg in range(1, 16):
        a('ds_write_b64 v%d, %s offset:%d', vCHL, v(ES + 2 * sg - 2, 2), L_PL - L_H + 320 * sg)
        chain(ES + 2 * sg, ES + 2 * sg - 2, ES + 2 * sg)
    a('v_min_u32 v%d, -2, v%d', ES + 30, ES + 30)
    a('v_min_u32 v%d, -2, v%d', ES + 31, ES + 31)
    a('buffer_store_dwordx2 %s, v%d, s[%d:%d], s70 offen sc1', v(ES + 30, 2), vCH, R5, R5 + 3)
    a('s_mov_b32 exec_hi, -1')
    setpw(12, 104)
    a('s_branch L_coldone')
    a.label('L_wave1')
    a.label('L_hint')
    a('buffer_load_dword v105, v%d, s[%d:%d], s70 offen offset:512 sc1', vHINT, R5, R5 + 3)
    a('s_waitcnt vmcnt(0)')
    a('v_cmp_eq_u32 vcc, -1, v105')
    a('s_cbranch_vccz L_hintok')
    a('s_mov_b64 exec, vcc')
    a('s_sleep 3')
    a.label('L_hint2')
    a('s_sub_u32 s%d, s%d, 1', sSPIN, sSPIN)
    a('s_cbranch_scc0 L_hint')
    a('s_endpgm')
    a.label('L_hintok')
    a('s_mov_b32 exec_lo, -1')
    a('s_mov_b32 exec_hi, 0xff')
    for k in range(15, 0, -1):
        a('buffer_load_dwordx2 %s, v%d, s[%d:%d], s%d offen offset:%d sc1', v(ES + 2 * (15 - k), 2), vCH, R5, R5 + 3,
          71 if k >= 8 else 70, 512 * (k & 7))
    a('s_waitcnt vmcnt(0)')
    a('v_max_u32 v105, v%d, v%d', ES, ES + 1)
    for n in range(1, 15):
        a('v_max3_u32 v105, v105, v%d, v%d', ES + 2 * n, ES + 2 * n + 1)
    a('v_cmp_eq_u32 vcc, -1, v105')
    a('s_cbranch_vccnz L_hint2')
    for n in range(1, 15):
        chain(ES + 2 * n, ES + 2 * n - 2, ES + 2 * n)
    a('ds_write_b64 v%d, %s', vCHL, v(ES + 28, 2))
    a('s_mov_b32 exec_hi, -1')
    setpw(12, 104)
    a('s_branch L_coldone')
    a.label('L_wave23')
    if OPT['otag'] and not OPT['amark'] and OPT['smark']:
        if OPT['smark'] == 1:
            waitpw(vA0PW, 5, 105, sleep=2)
        s_mark(True)
    if OPT['woe']:
        E = OPT['woe']
        srd(R0, sWO, 640 * 1280)
        a('s_mul_i32 s75, s%d, 160', sOG)
        a('s_and_b32 s83, s%d, 3', sI)
        a('s_add_u32 s83, s83, s%d', sXCD)
        waitpw(vA0PW, 5, 105, sleep=2)
        for it in range(E):
            a('s_add_u32 s78, s83, %d', it)
            a('s_and_b32 s78, s78, %d', E - 1)
            a('s_lshl1_add_u32 s78, s78, s%d', sW)
            a('s_sub_u32 s78, s78, 2')
            a('s_mul_i32 s79, s78, 40960')
            a('s_add_u32 s79, s79, s75')
            a('s_mul_i32 s78, s78, 5120')
            a('s_mov_b32 m0, s78')
            for i in range(5):
                if i == 4:
                    a('s_add_u32 m0, s78, 4096')
                a('s_waitcnt vmcnt(%d)', OPT['thre'])
                a(dma(vWOA + i, R0, 79, 1024 * (i & 3)))
    if OPT['gtouch'] in (1, 2):
        a('s_cmp_eq_u32 s%d, 2', sW)
        a('s_cbranch_scc0 L_coldone')
        a('v_min_u32 v106, %d, v%d', 24 * 128, vF3)
        a('s_mul_i32 s78, s2, 3200')
        a('v_add_u32 v106, s78, v106')
        if OPT['gtouch'] == 1:
            waitpw(vA0PW, 5, 105, sleep=2)
        for p in (sCRE, sCIM, sWO):
            a('global_load_dword v109, v106, s[%d:%d]', p, p + 1)
    if OPT['tearly']:
        waitpw(vA0PW, 5, 105, sleep=2)
    for r in range(OPT['tearly']):
        for o in touch(r, vCT):
            a(o)
        if r + 1 < OPT['tearly']:
            a('s_waitcnt vmcnt(0)')
    a.label('L_coldone')
    a('s_lshl2_add_u32 s70, s%d, s%d', sRB, sW)
    a('s_mul_i32 s71, s70, %d', 2 * HBLK)
    a('s_mul_i32 s78, s%d, 1280', sG)
    a('s_add_u32 s71, s71, s78')
    a('s_add_u32 s71, s71, 0x%x', WS_H)
    a('s_lshl4_add_u32 s70, s70, s%d', sG)
    flagaddr(70, 70, F3, 78)
    waitpw(vP01, 12, 105, sleep=4)
    stamp('S', 'carry')
    if OPT['gtouch'] == 3:
        a('s_cmp_eq_u32 s%d, 1', sW)
        a('s_cselect_b32 s78, s%d, s%d', sCRE, sCIM)
        a('s_cselect_b32 s79, s%d, s%d', sCRE + 1, sCIM + 1)
        a('s_cmp_eq_u32 s%d, 2', sW)
        a('s_cselect_b32 s78, s%d, s78', sWO)
        a('s_cselect_b32 s79, s%d, s79', sWO + 1)
        a('s_mul_i32 s80, s2, 3200')
        a('s_add_u32 s78, s78, s80')
        a('s_addc_u32 s79, s79, 0')
        a('s_cmp_eq_u32 s%d, 0', sW)
        a('s_cbranch_scc1 L_notouch')
        a('s_mov_b64 exec, 0x1ffffff')
        a('global_load_dword v109, v%d, s[78:79]', vF3)
        a('s_mov_b64 exec, -1')
        a.label('L_notouch')
    for j in range(5):
        a('ds_read_b32 v%d, v%d offset:%d', 50 + j, vE, L_PL - L_EL + 64 * j)
        a('ds_read_b32 v%d, v%d offset:%d', 56 + j, vHH, 64 * j)
    a('s_waitcnt lgkmcnt(0)')
    for j in range(5):
        a('v_fmac_f32 v%d, v%d, v%d', 50 + j, vZ + 2 * j, 56 + j)
    for j in range(5):
        a('v_fmac_f32_dpp v%d, v%d, v%d %s', 50 + j, 56 + j, vZ + 2 * j + 1, ROR)
    for k in range(8):
        pr = [50 + j if k == 0 else 8 * j + k - 1 for j in range(5)]
        for j in range(5):
            a('v_fmac_f32 v%d, v%d, v%d', 8 * j + k, vPAR + 4 * j, pr[j])
        for j in range(5):
            a('v_fmac_f32_dpp v%d, v%d, v%d %s', 8 * j + k, pr[j], vPAR + 4 * j + 1, ROR)
    for j in range(5):
        for q in range(4):
            a('v_cvt_pk_bf16_f32 v%d, v%d, v%d', 64 + 4 * j + q, 8 * j + 2 * q, 8 * j + 2 * q + 1)
        a('ds_write_b128 v%d, %s offset:%d', vHW, v(64 + 4 * j, 4), 1024 * j)
        a('ds_read_b64_tr_b16 %s, v%d offset:%d', v(110 + 4 * j, 2), vHR0, 1024 * j)
        a('ds_read_b64_tr_b16 %s, v%d offset:%d', v(110 + 4 * j + 2, 2), vHR1, 1024 * j + 256)
    HS = OPT['hsplit']
    for j in range(5):
        if HS and j == HS:
            a('s_waitcnt lgkmcnt(0)')
            setpw(13, 104)
        if HS and j >= HS:
            a('s_waitcnt vmcnt(%d)', HS - 1)
        else:
            a('s_waitcnt lgkmcnt(%d)', 12 - 3 * j)
        a('buffer_store_dwordx4 %s, v%d, s[%d:%d], s71 offen offset:%d sc1', v(110 + 4 * j, 4), vHS, RWS, RWS + 3, 256 * j)
    if not HS:
        setpw(13, 104)

def s_b3():
    NS = 4
    acc, HF, CF = 0, 80, [208, 216]
    a('s_cmp_ge_u32 s%d, 2', sW)
    a('s_cselect_b32 s78, s%d, s%d', sCIM, sCRE)
    a('s_cselect_b32 s79, s%d, s%d', sCIM + 1, sCRE + 1)
    srd(R1, 78, 640 * 1280)
    srd(R6, sOUT, 2048 * 1280 * 4)
    a('s_mul_i32 s74, s%d, %d', sW, REGSZ)
    a('s_add_u32 s74, s74, %d', L_REG)
    a('s_and_b32 s78, s%d, 1', sW)
    a('s_mul_i32 s72, s%d, %d', sOG, 80 * 1280)
    a('s_mul_i32 s73, s78, 640')
    a('s_add_u32 s72, s72, s73')
    a('s_mul_i32 s79, s%d, %d', sW, 40 * 256)
    a('s_add_u32 s79, s79, 0x%x', WS_H)
    a('s_lshr_b32 s80, s%d, 1', sW)
    a('s_lshl1_add_u32 s78, s78, s80')
    for l in range(4):
        a('s_xor_b32 s80, s78, %d', l)
        a('s_lshl2_add_u32 s80, s%d, s80', sTB)
        a('s_mul_i32 s80, s80, %d', HBLK)
        a('s_add_u32 s%d, s80, s79', 84 + l)
    a('s_lshl_b32 s88, s%d, 12', sTB)
    a('s_add_u32 s88, s88, 0x%x', F3)
    a('s_lshl2_add_u32 s78, s%d, s78', sTB)
    a('s_mul_i32 s80, s78, %d', 16 * 1280)
    a('s_mul_i32 s81, s%d, 160', sOG)
    a('s_add_u32 s80, s80, s81')
    a('s_mul_i32 s82, s78, %d', 16 * 5120)
    a('s_lshl1_add_u32 s82, s81, s82')
    a('s_add_u32 s82, s82, 2560')
    a('s_add_u32 s90, s%d, s81', sDSK)
    a('s_addc_u32 s91, s%d, 0', sDSK + 1)
    a('s_lshl2_add_u32 s89, s%d, s%d', sOG, sW)
    a('s_mul_i32 s89, s89, 5120')
    a('s_mul_i32 s79, s%d, %d', sTB, 4 * HBLK)
    a('s_add_u32 s89, s89, s79')
    a('s_add_u32 s89, s89, 0x%x', WS_H)
    a('s_waitcnt vmcnt(0)')
    setflag(70, 40)
    if OPT['otag'] and not OPT['amark'] and not OPT['smark']:
        s_mark(False)
    stamp('S', 'hpub')
    if OPT['tlate']:
        for k in range(4):
            a('s_mov_b32 s%d, s%d', 4 + k, 84 + k)
        for r in range(OPT['tearly'], 6):
            for o in touch(r):
                a(o)
            a('s_waitcnt vmcnt(0)')
        for k in range(4):
            a('s_mov_b32 s%d, s%d', 84 + k, 4 + k)
    if OPT['newpre']:
        def cdma(n, pace=None):
            kp, j = divmod(n, 5)
            a('s_add_u32 m0, s74, %d', 2048 * (n % NS))
            a('s_add_u32 s76, s%d, %d', 4 + kp, 16 * 1280 * j)
            for k in range(2):
                if pace is not None:
                    a('s_waitcnt vmcnt(%d)', pace)
                a(dma(vCA + k, R1, 76, 1024 * k))
        def hload(l, ks):
            return 's_add_u32 s9, s%d, s%d\nbuffer_load_dwordx4 %s, v%d, s[%d:%d], s9 offen offset:%d sc1' % (
                84 + l, 12 + ks // 2, v(HF + 16 * (ks % 8) + 4 * l, 4), vHA, RWS, RWS + 3, 1024 * (ks & 1))
        srd(R0, sWO, 640 * 1280)
        rot5(83, 73)
        for kp in range(5):
            a('s_lshl_b32 s73, s83, 7')
            a('s_add_u32 s%d, s72, s73', 4 + kp)
            a('s_lshl_b32 s%d, s83, 11', 12 + kp)
            a('s_lshl2_add_u32 s%d, s83, s%d', 17 + kp, sW)
            a('s_add_u32 s83, s83, 1')
            a('s_cmp_eq_u32 s83, 5')
            a('s_cselect_b32 s83, 0, s83')
        NIT = 5 - OPT['woe'] // 2
        if OPT['woe']:
            a('s_cmp_ge_u32 s83, %d', NIT)
            a('s_cselect_b32 s73, %d, 0', NIT)
            a('s_sub_u32 s83, s83, s73')
            if NIT == 4:
                a('s_add_u32 s83, s%d, s%d', sI, sXCD)
                a('s_and_b32 s83, s83, 3')
            for it in range(NIT):
                a('s_lshl2_add_u32 s%d, s83, s%d', 17 + it, sW)
                a('s_add_u32 s%d, s%d, %d', 17 + it, 17 + it, 2 * OPT['woe'])
                a('s_add_u32 s83, s83, 1')
                a('s_cmp_eq_u32 s83, %d', NIT)
                a('s_cselect_b32 s83, 0, s83')
        a('s_mul_i32 s75, s%d, 160', sOG)
        waitpw(vSPW, 13, 41, sleep=2)
        for n in range(NS):
            cdma(n, OPT['thrc'])
        pl = 'buffer_load_dword v41, v%d, s[%d:%d], s88 offen sc1' % (vF3, RWS, RWS + 3)
        for it in range(NIT):
            if it == OPT['f3at']:
                a('s_mov_b32 exec_hi, 0')
                a(pl)
                a('s_mov_b32 exec_hi, -1')
            a('s_mul_i32 s79, s%d, 40960', 17 + it)
            a('s_add_u32 s79, s79, s75')
            a('s_mul_i32 s78, s%d, 5120', 17 + it)
            a('s_mov_b32 m0, s78')
            for i in range(5):
                if i == 4:
                    a('s_add_u32 m0, s78, 4096')
                a('s_waitcnt vmcnt(%d)', OPT['thrw'] + (1 if it == NIT - 1 and OPT['hin'] else 0))
                a(dma(vWOA + i, R0, 79, 1024 * (i & 3)))
                if it == NIT - 1 and OPT['hin'] and i < 4:
                    a(hload(i, 0))
                    a(hload(i, 1))
            if it == OPT['f3at']:
                a('s_mov_b32 exec_hi, 0')
                a('s_waitcnt vmcnt(5)')
                a('v_cmp_eq_u32 vcc, 0, v41')
                a('s_cbranch_vccz L_f3seen')
                a('s_mov_b64 exec, vcc')
                pollflags([pl], 41, sleep=4)
                a.label('L_f3seen')
                a('s_mov_b64 exec, -1')
                stamp('S', 'f3')
                a('buffer_load_dword v41, v%d, s[%d:%d], s89 offen sc1', vHT, RWS, RWS + 3)
        stamp('S', 'wo')
        a('v_mov_b32 v42, 14')
        for ks in range(0 if OPT['hin'] else 2):
            for l in range(4):
                a('s_waitcnt vmcnt(%d)', OPT['thrw'] + 1)
                a(hload(l, ks))
        if OPT['hin']:
            a('s_waitcnt vmcnt(0)')
        a('ds_write_b32 v%d, v42', vPW)
        a('s_setprio %d', OPT['b3prio'])
    else:
        stamp('S', 'touch')
        s_wo()
        waitpw(vSPW, 13, 40, sleep=2)
        def cdma(n):
            kp, j = divmod(n, 5)
            a('s_add_u32 m0, s74, %d', 2048 * (n % NS))
            a('s_add_u32 s76, s%d, %d', 4 + kp, 16 * 1280 * j)
            a(dma(vCA, R1, 76, 0))
            a(dma(vCA + 1, R1, 76, 1024))
        for n in range(NS):
            cdma(n)
            a('s_waitcnt vmcnt(%d)', 0 if n == NS - 1 else 4)
        setpw(14, 40)
        stamp('S', 'wo')
        a('s_cmp_eq_u32 s%d, 2', sW)
        a('s_cbranch_scc0 L_f3wait')
        a('s_mov_b32 exec_hi, 0')
        pollflags(['buffer_load_dword v40, v%d, s[%d:%d], s88 offen sc1' % (vF3, RWS, RWS + 3)], 40, sleep=4)
        setpw(15, 40)
        a.label('L_f3wait')
        waitpw(vS2PW, 15, 40, sleep=4)
        stamp('S', 'f3')
        a('s_setprio %d', OPT['b3prio'])
        def hload(l, ks):
            return 's_add_u32 s9, s%d, s%d\nbuffer_load_dwordx4 %s, v%d, s[%d:%d], s9 offen offset:%d sc1' % (
                84 + l, 12 + ks // 2, v(HF + 16 * (ks % 8) + 4 * l, 4), vHA, RWS, RWS + 3, 1024 * (ks & 1))
        a('buffer_load_dword v40, v%d, s[%d:%d], s89 offen sc1', vHT, RWS, RWS + 3)
        for ks in range(2):
            if ks:
                a('s_waitcnt vmcnt(0)')
            for l in range(4):
                a(hload(l, ks))
    def creads(n):
        return ['ds_read_b128 %s, v%d offset:%d' % (v(CF[n & 1] + 4 * k, 4), vCR + k, 2048 * (n % NS)) for k in range(2)]
    q = []
    def waitfor(tag):
        idx = max(i for i, x in enumerate(q) if x == tag)
        n = len(q) - 1 - idx
        del q[:idx + 1]
        return n
    for r in creads(0):
        a(r)
    a('s_waitcnt vmcnt(0) lgkmcnt(0)')
    stamp('S', 'b3go')
    cdma(NS)
    q += [NS, NS]
    vX, vD = HF + 64, HF + 74
    hq = [(l, ks) for ks in range(2, 10) for l in range(4)]
    STOP = OPT['b3stop']
    frag = {0: CF[0]}
    free = [216, 224, 232, 240]
    def creads(n):
        return ['ds_read_b128 %s, v%d offset:%d' % (v(frag[n] + 4 * k, 4), vCR + k, 2048 * (n % NS)) for k in range(2)]
    def fetch():
        n = len(frag)
        frag[n] = free.pop(0)
        if n in q:
            a('s_waitcnt vmcnt(%d)', waitfor(n))
        for r in creads(n):
            a(r)
        return n
    def refill(n, defer=False):
        a('s_waitcnt lgkmcnt(0)')
        if n + NS < 25:
            cdma(n + NS)
            if defer:
                q.append(n + NS)
                return (a.lines.pop(), n + NS)
            q.extend([n + NS, n + NS])
    t0, t1, t2 = 175, 249, vAP4
    addr = ['v_lshrrev_b32 v%d, 2, v%d' % (t0, vLANE),
            'v_and_b32 v%d, 3, v%d' % (t1, vLANE),
            'v_lshlrev_b32 v%d, 3, v%d' % (vDO, t1),
            'v_mul_u32_u24 v%d, 1280, v%d' % (t2, t0),
            'v_add_u32 v%d, v%d, v%d' % (vXO, t2, vDO),
            'v_lshlrev_b32 v%d, 4, v%d' % (t1, t1),
            'v_lshl_add_u32 v%d, v%d, 2, v%d' % (vOA, t2, t1),
            'v_mul_u32_u24 v%d, 336, v%d' % (t2, t0),
            'v_add3_u32 v%d, v%d, v%d, s92' % (vRA, t2, t1),
            'v_add3_u32 v%d, v%d, v%d, s93' % (vRA + 1, t2, t1),
            'v_lshlrev_b32 v%d, 4, v%d' % (t1, t1),
            'v_lshl_add_u32 v%d, v%d, 2, v%d' % (t1, vLANE, t1),
            'v_add_u32 v%d, %d, v%d' % (vAP4, L_PW, t1),
            'v_add_u32 v%d, s74, v%d' % (vR1W, vHA),
            'v_add_u32 v%d, s92, v%d' % (vR1R, vHA),
            'v_and_b32 v%d, 15, v%d' % (t0, vLANE),
            'v_mul_u32_u24 v%d, 336, v%d' % (t0, t0),
            'v_and_b32 v%d, 48, v%d' % (t1, vLANE),
            'v_add3_u32 v%d, v%d, v%d, s92' % (vR2W, t0, t1),
            'v_xor_b32 v%d, 256, v%d' % (vPW1, vPW),
            'v_xor_b32 v%d, 512, v%d' % (vPW2, vPW)]
    FL = OPT['fline'] & 2
    if FL:
        pXO, pDO, pOA, pRA = 160, 161, 162, (163, 175)
        a('s_and_b32 s22, s%d, 1', sOG)
        a('s_xor_b32 s23, s22, 1')
        a('s_lshl_b32 s22, s22, 2')
        a('s_lshl_b32 s23, s23, 4')
        a('s_add_u32 s24, s80, %d', 8 * 1280)
        a('s_add_u32 s25, s82, %d', 8 * 5120)
        def aset(sh, mask, so, xo, do, oa, ra):
            return ['v_and_b32 v%d, %d, v%d' % (t1, mask, vLANE),
                    'v_add_lshl_u32 v%d, v%d, s%d, 3' % (do, t1, so),
                    'v_lshrrev_b32 v%d, %d, v%d' % (t1, sh, vLANE),
                    'v_mul_u32_u24 v%d, 1280, v%d' % (t2, t1),
                    'v_add_u32 v%d, v%d, v%d' % (xo, t2, do),
                    'v_add_lshl_u32 v%d, v%d, v%d, 1' % (oa, t2, xo),
                    'v_mul_u32_u24 v%d, 168, v%d' % (t2, t1),
                    'v_add_lshl_u32 v%d, v%d, v%d, 1' % (t2, t2, do),
                    'v_add_u32 v%d, s92, v%d' % (ra[0], t2),
                    'v_add_u32 v%d, s93, v%d' % (ra[1], t2)]
        addr = aset(3, 7, 22, pXO, pDO, pOA, pRA) + aset(2, 3, 23, vXO, vDO, vOA, (vRA, vRA + 1)) + [
            'v_add_u32 v%d, s74, v%d' % (vR1W, vHA),
            'v_add_u32 v%d, s92, v%d' % (vR1R, vHA),
            'v_and_b32 v%d, 15, v%d' % (t2, vLANE),
            'v_mul_u32_u24 v%d, 336, v%d' % (t2, t2),
            'v_and_b32 v%d, 48, v%d' % (t1, vLANE),
            'v_add3_u32 v%d, v%d, v%d, s92' % (vR2W, t2, t1),
            'v_xor_b32 v%d, 256, v%d' % (vPW1, vPW),
            'v_xor_b32 v%d, 512, v%d' % (vPW2, vPW),
            'v_and_b32 v%d, 3, v%d' % (t1, vLANE),
            'v_lshlrev_b32 v%d, 8, v%d' % (t1, t1),
            'v_lshl_add_u32 v%d, v%d, 2, v%d' % (t1, vLANE, t1),
            'v_add_u32 v%d, %d, v%d' % (vAP4, L_PW, t1)]
    dsel = (lambda i: (i & 1) if i < 4 else 2) if FL else (lambda i: i)
    FR = OPT['fastred']
    U = 180
    def skipops(i, t):
        o = []
        for hf in range(2):
            o += ['v_lshlrev_b32 v%d, 16, v%d' % (t, vX + 2 * i + hf),
                  'v_lshlrev_b32 v%d, 16, v%d' % (t + 1, vD + 2 * dsel(i) + hf),
                  'v_and_b32 v%d, 0xffff0000, v%d' % (t + 2, vX + 2 * i + hf),
                  'v_and_b32 v%d, 0xffff0000, v%d' % (t + 3, vD + 2 * dsel(i) + hf),
                  'v_mul_f32 v%d, v%d, v%d' % (U + 4 * i + 2 * hf, t, t + 1),
                  'v_mul_f32 v%d, v%d, v%d' % (U + 4 * i + 2 * hf + 1, t + 2, t + 3)]
        return o
    w1 = lambda qd: 'ds_write_b128 v%d, %s offset:%d' % (vR1W, v(acc + 40 + 4 * qd, 4), 1024 * qd)
    if FR:
        assert FL and OPT['b3res'] >= 7
        def xl(i):
            o = []
            if i in (0, 1, 4):
                o.append('global_load_dwordx2 %s, v%d, s[90:91] offset:%d' % (v(vD + 2 * dsel(i), 2), pDO if i < 4 else vDO, 64 * (i & 1)))
            o.append('buffer_load_dwordx2 %s, v%d, s[%d:%d], s%d offen offset:%d' % (v(vX + 2 * i, 2), pXO if i < 4 else vXO, R3, R3 + 3,
                                                                                  24 if i in (2, 3) else 80, 64 * (i & 1)))
            return o
        addr = addr[:5] + xl(0) + xl(1) + xl(2) + xl(3) + addr[5:15] + xl(4) + addr[15:]
        skq = [o for i in range(5) for o in skipops(i, 176)]
    assert 10 <= STOP <= 15
    for n in range(25):
        kp, j = divmod(n, 5)
        if n == 10:
            free += [HF + 32 + 8 * k for k in range(4)]
        if n == STOP:
            while len(frag) <= 20 or hq:
                for _ in range(1 if OPT['even'] else 99):
                    if hq:
                        l, ks = hq.pop(0)
                        a(hload(l, ks))
                        q.append('h%d' % (ks // 2))
                if len(frag) <= 20:
                    refill(fetch())
            a('s_setprio 1')
            a('v_and_b32 v%d, 1, v%d', vAM, vLANE)
            a('v_lshlrev_b32 v%d, 9, v%d', vAM, vAM)
            a('v_xor_b32 v%d, v%d, v%d', vAM, vAM, vPW)
            a('v_subrev_u32 v%d, 1024, v%d', vAM, vAM)
            a('s_waitcnt vmcnt(0)')
            del q[:]
            stamp('S', 'b3stop')
            waitpw(vAM, OPT['b3res'], 249, sleep=OPT['rsleep'])
            stamp('S', 'b3res')
        want = (25 if FR else n + 2) if n >= STOP else max(n + 2, 21 - OPT['ahead'] * (STOP - 1 - n))
        f1 = fetch() if (len(frag) < min(25, want) and free) else None
        if j == 0 and 'h%d' % kp in q:
            a('s_waitcnt vmcnt(%d)', waitfor('h%d' % kp))
        if OPT['fine'] >= 2 and n in (3, 6, 9):
            stamp('S', 'u%d' % n)
        extra = []
        for _ in range(OPT['hrate']):
            if hq and (hq[0][1] < 8 or n >= 5):
                l, ks = hq.pop(0)
                extra.append((hload(l, ks), 'h%d' % (ks // 2)))
        if FR:
            if n == FR:
                a('s_waitcnt vmcnt(0)')
        elif 16 <= n < 21 and FL:
            i = n - 16
            if i in (0, 1, 4):
                extra.append(('global_load_dwordx2 %s, v%d, s[90:91] offset:%d' % (v(vD + 2 * dsel(i), 2), pDO if i < 4 else vDO, 64 * (i & 1)), 'x'))
            extra.append(('buffer_load_dwordx2 %s, v%d, s[%d:%d], s%d offen offset:%d' % (v(vX + 2 * i, 2), pXO if i < 4 else vXO, R3, R3 + 3,
                                                                                     24 if i in (2, 3) else 80, 64 * (i & 1)), 'x'))
        elif 16 <= n < 21:
            i = n - 16
            extra += [('global_load_dwordx2 %s, v%d, s[90:91] offset:%d' % (v(vD + 2 * i, 2), vDO, 32 * i), 'x'),
                      ('buffer_load_dwordx2 %s, v%d, s[%d:%d], s80 offen offset:%d' % (v(vX + 2 * i, 2), vXO, R3, R3 + 3, 32 * i), 'x')]
        cnt = 0
        f2 = None
        for k in range(2):
            ks = 2 * kp + k
            for l in ((2, 3, 0, 1) if FR and n >= 20 else range(4)):
                d = acc + 20 * l + 4 * j
                a('v_mfma_f32_16x16x32_bf16 %s, %s, %s, %s', v(d, 4), v(frag[n] + 4 * k, 4), v(HF + 16 * (ks % 8) + 4 * l, 4),
                  '0' if ks == 0 else v(d, 4))
                cnt += 1
                if FR and n >= 15:
                    if n >= 21 and cnt in (6, 7):
                        assert len(frag) == 25
                        a(w1((n - 21) + 5 * (cnt - 6)))
                    else:
                        for _ in range(2):
                            if addr:
                                a(addr.pop(0))
                            elif n >= FR and skq:
                                a(skq.pop(0))
                    if cnt == 6 and f1 is not None:
                        refill(f1)
                    continue
                EV = OPT['even'] and n < STOP - 1 and OPT['hrate'] == 2
                if EV:
                    if cnt == 3:
                        second = refill(f1, True)
                    if cnt == 7:
                        assert second
                        a(second[0])
                        q.append(second[1])
                    if cnt in (1, 5) and extra:
                        o, tg = extra.pop(0)
                        a(o)
                        q.append(tg)
                    continue
                if cnt in (1, 2, 5, 6) and extra:
                    o, tg = extra.pop(0)
                    a(o)
                    q.append(tg)
                elif n >= 15 and addr:
                    a(addr.pop(0))
                if cnt == (4 if n < STOP else 6) and f1 is not None:
                    refill(f1)
                    if len(frag) < min(21, want) and free:
                        f2 = fetch()
                if cnt == 8 and f2 is not None:
                    refill(f2)
        assert not extra
        free.append(frag[n])
    assert not addr
    assert not hq
    stamp('S', 'b3gemm')
    T = 112
    def rsel(i, b):
        if not FL:
            return vRA + b, 64 * i
        return (pRA[b], 8 * 336 * (i >> 1) + 128 * (i & 1)) if i < 4 else (vRA + b, 0)
    if FR:
        a('v_mov_b32 v%d, 17', T + 2)
        a('v_mov_b32 v%d, 18', T + 3)
        for o in skq[:3]:
            a(o)
        a(w1(4))
        a(w1(9))
        a('ds_write_b32 v%d, v%d', vPW, T + 2)
        for nm in ('w1', 'xw'):
            if OPT['fine'] == 2:
                stamp('S', nm)
        half = 3 + (len(skq) - 3) // 2
        for o in skq[3:half]:
            a(o)
        if OPT['fine'] == 2:
            stamp('S', 'r1w')
        order = (5, 6, 7, 8, 9, 0, 1, 2, 3, 4)
        waitpw(vPW1, 17, T + 1, extra=['ds_read_b128 %s, v%d offset:%d' % (v(acc + 40 + 4 * qd, 4), vR1R, 1024 * qd) for qd in order])
        if OPT['fine'] == 2:
            stamp('S', 'r1s')
        for i, qd in enumerate(order):
            l, j = divmod(qd, 5)
            a('s_waitcnt lgkmcnt(%d)', 9 if i < 5 else 10)
            for e in range(4):
                a('v_add_f32 v%d, v%d, v%d', acc + 4 * qd + e, acc + 4 * qd + e, acc + 40 + 4 * qd + e)
            a('ds_write_b128 v%d, %s offset:%d', vR2W, v(acc + 4 * qd, 4), 16 * 336 * l + 64 * j)
            if qd == 9:
                a('ds_write_b32 v%d, v%d', vPW, T + 3)
        for i in range(5):
            a('ds_read_b128 %s, v%d offset:%d', v(acc + 40 + 8 * i, 4), *rsel(i, 0))
        for o in skq[half:]:
            a(o)
    else:
        if OPT['b3res'] < 7:
            waitpw(vAM, 7, T, sleep=2)
        else:
            a('s_nop 3')
        for qd in range(10):
            a('ds_write_b128 v%d, %s offset:%d', vR1W, v(acc + 40 + 4 * qd, 4), 1024 * qd)
        setpw(17, T + 1)
        if OPT['fine'] == 2:
            stamp('S', 'w1')
        a('s_waitcnt vmcnt(0)')
        if OPT['fine'] == 2:
            stamp('S', 'xw')
        U = 180
        def rsel(i, b):
            if not FL:
                return vRA + b, 64 * i
            return (pRA[b], 8 * 336 * (i >> 1) + 128 * (i & 1)) if i < 4 else (vRA + b, 0)
        def skip(i):
            for hf in range(2):
                a('v_lshlrev_b32 v%d, 16, v%d', T + 4, vX + 2 * i + hf)
                a('v_lshlrev_b32 v%d, 16, v%d', T + 5, vD + 2 * dsel(i) + hf)
                a('v_and_b32 v%d, 0xffff0000, v%d', T + 6, vX + 2 * i + hf)
                a('v_and_b32 v%d, 0xffff0000, v%d', T + 7, vD + 2 * dsel(i) + hf)
                a('v_mul_f32 v%d, v%d, v%d', U + 4 * i + 2 * hf, T + 4, T + 5)
                a('v_mul_f32 v%d, v%d, v%d', U + 4 * i + 2 * hf + 1, T + 6, T + 7)
        skip(0)
        skip(1)
        if OPT['fine'] == 2:
            stamp('S', 'r1w')
        waitpw(vPW1, 17, T + 1)
        if OPT['fine'] == 2:
            stamp('S', 'r1s')
        for qd in (5, 6, 7, 8, 9, 0, 1, 2, 3, 4):
            a('ds_read_b128 %s, v%d offset:%d', v(acc + 40 + 4 * qd, 4), vR1R, 1024 * qd)
        skip(2)
        a('s_waitcnt lgkmcnt(0)')
        for qd in (5, 6, 7, 8, 9, 0, 1, 2, 3, 4):
            l, j = divmod(qd, 5)
            for e in range(4):
                a('v_add_f32 v%d, v%d, v%d', acc + 4 * qd + e, acc + 4 * qd + e, acc + 40 + 4 * qd + e)
            a('ds_write_b128 v%d, %s offset:%d', vR2W, v(acc + 4 * qd, 4), 16 * 336 * l + 64 * j)
            if qd == 9:
                setpw(18, T + 1)
        for i in range(5):
            a('ds_read_b128 %s, v%d offset:%d', v(acc + 40 + 8 * i, 4), *rsel(i, 0))
        skip(3)
        skip(4)
    if OPT['fine'] == 2:
        stamp('S', 'r2w')
    rd2 = ['ds_read_b128 %s, v%d offset:%d' % ((v(acc + 44 + 8 * i, 4),) + tuple(rsel(i, 1))) for i in range(5)]
    waitpw(vPW2, 18, T + 1, extra=rd2 if FR else ())
    if OPT['fine'] == 2:
        stamp('S', 'r2s')
    if not FR:
        for o in rd2:
            a(o)
    for i in range(5):
        for e in range(4):
            a('v_add_f32 v%d, v%d, v%d', U + 4 * i + e, U + 4 * i + e, acc + 40 + 8 * i + e)
    for i in range(5):
        a('s_waitcnt lgkmcnt(%d)', 4 - i)
        for e in range(4):
            a('v_add_f32 v%d, v%d, v%d', U + 4 * i + e, U + 4 * i + e, acc + 44 + 8 * i + e)
    stamp('S', 'yrdy')
    if OPT['yhold']:
        waitpw(vAP4, 9, T + 1, sleep=OPT['ysleep'])
    for i in range(5):
        if FL:
            a('buffer_store_dwordx4 %s, v%d, s[%d:%d], s%d offen offset:%d%s', v(U + 4 * i, 4), pOA if i < 4 else vOA, R6, R6 + 3,
              25 if i in (2, 3) else 82, 128 * (i & 1), YSC)
        else:
            a('buffer_store_dwordx4 %s, v%d, s[%d:%d], s82 offen offset:%d%s', v(U + 4 * i, 4), vOA, R6, R6 + 3, 64 * i, YSC)
    finish('S')

prologue()
a.c('======== S role: set-up, first stages of the QKV GEMM')
s_setup()
a.c('======== S role: loader of the QKV GEMM')
s_qloader()
if OPT['sexit'] == 1:
    setpw(99, 40)
    finish('S')
a.c('======== S role: SSM input GEMM')
s_b1()
if OPT['sexit'] == 2:
    setpw(99, 40)
    finish('S')
a.c('======== S role: scan')
s_scan()
a.c('======== S role: SSM output GEMM')
s_b3()
a.label('L_exit')
a('s_endpgm')
flush_cold()
a.c('======== A role: set-up')
a_setup()
if OPT['alate'] != 1:
    a_b1_setup()
if not OPT['alate']:
    a_att_setup()
if OPT['aearly']:
    n0_ = len(a.lines)
    a_att_setup()
    del a.lines[n0_ + OPT['aearly']:]
a.c('======== A role: QKV GEMM')
a_qphase()
a.c('======== A role: loader of the SSM input GEMM, wait for Q/K/V')
a_handoff()
a.c('======== A role: attention')
a_attention()
a.c('======== A role: output projection')
a_outproj()
flush_cold()
a.label('L_codeend')

DOC = '; ---------------------------------------------------------------------------------------------------------------\n; Hand-offs between workgroups: write-through (sc1) stores, s_waitcnt vmcnt, then a flag on its own line; readers poll\n; and load with sc1.  Flags are cleared in this launch before use (signalled through d_debug).  All waits are bounded.\n; ---------------------------------------------------------------------------------------------------------------\n'
errs = check(a.lines)
for e_ in errs:
    print('HAZARD', e_, file=sys.stderr)

head = open('cdna_kernels/%s.s.ref' % NAME).read().split('; @launch')[0]
out = head + '; @launch grid=(256,1,1) block=(512,1,1) lds=%d\n' % LDS_BYTES
out += DOC
out += '''.amdgcn_target "amdgcn-amd-amdhsa--gfx950"
.text
.globl %s_kernel
.p2align 8
.type %s_kernel,@function
%s_kernel:
''' % (NAME, NAME, NAME)
body = a.text().replace('QSC', ['sc1', 'sc0 sc1', 'sc1 nt', 'sc0 sc1 nt'][OPT['qsc']])
foot = '''.section .rodata,"a"
.p2align 6
.amdhsa_kernel %s_kernel
  .amdhsa_next_free_vgpr 256
  .amdhsa_next_free_sgpr 102
  .amdhsa_accum_offset 256
  .amdhsa_group_segment_fixed_size 0
  .amdhsa_kernarg_size 120
  .amdhsa_user_sgpr_count 2
  .amdhsa_user_sgpr_kernarg_segment_ptr 1
  .amdhsa_system_sgpr_workgroup_id_x 1
.end_amdhsa_kernel
''' % NAME
import re, subprocess
def render(pads):
    def f(m):
        if not OPT['pgalign']:
            return ''
        return '.p2align 12\n.fill %d, 4, 0xbf810000' % (pads.get(m.group(1), 0) // 4)
    return out + re.sub(r'\.PAD (\w+) (\w+)', f, body) + foot
pads = {}
for _ in range(3 if OPT['pgalign'] else 0):
    open('pad.s', 'w').write(render(pads))
    subprocess.run(['clang', '-x', 'assembler', '-target', 'amdgcn-amd-amdhsa', '-mcpu=gfx950', '-c', 'pad.s', '-o', 'pad.o'], check=True)
    sym = {l.split()[-1]: int(l.split()[0], 16) for l in subprocess.run(['llvm-objdump', '-t', 'pad.o'], capture_output=True, text=True).stdout.splitlines() if ' L_' in l}
    for st_, tg_ in re.findall(r'\.PAD (\w+) (\w+)', body):
        d = (-(sym[tg_] - sym[st_])) % 4096
        pads[st_] = (d + 63) // 64 * 64 % 4096
open(sys.argv[1], 'w').write(render(pads))
if DIAG:
    import json
    json.dump(nstamp, open(sys.argv[1] + '.stamps.json', 'w'))
import subprocess
r_ = subprocess.run(['clang', '-x', 'assembler', '-target', 'amdgcn-amd-amdhsa', '-mcpu=gfx950', '-c', sys.argv[1], '-o', 'chk.o'], capture_output=True, text=True)
if r_.returncode:
    print(r_.stderr[:2000])
    sys.exit(1)
if errs:
    sys.exit(1)
```

```python
import sys, math, struct
from asmlib import Asm, v, s, check

NAME = 'concat_heads__mha_block__ssm_conv_s5__prompt'
OPT = dict(diag=0, b3start=12, force_fb=0, psleep=0, fine=0, cpre=1, stag=10, b1dep=2, rot=1, thr=4, hold=3, codepre=2, psleep4=0, padto=0, outsc1=1, gate4=-1, early0=1, st10=3, b1prio=0, probe='', probewg=-1, sexit=0, b3prio=0, nocdma=0, mallpre=0, b3early=1, pretouch=-1, pace=0, pause=1, wolate=1, thrw=2, kvsplit=5, tstart=0, k2split=0, gate1='x', tlate=0, spread=1, pollat=17, tearly=0, b3stop=12, b3res=8, hrate=2, yhold=1, rot5=1, wopack=0, olead=20, allpoll=1, ysc=1, clrwide=0, nodup=1, onewait=0, vzero=1, lalign=6, lpad=0, epoll=0, npre=2, tprio=0, pgate=1, p3dyn=0, flip=1, newpre=1, f3at=2, gtouch=3, pkmerge=1, kvplain=0, acq=0, stagb=4, alate=2, slate=0, plate=1, seq='', unroll=2, lean=1, yearly=0, ysleep=2, cmap=1, l2pre=2, xpre=0, hack16=0, fastpro=1, gsleep=0, rsleep=2, xtail=1, ctail=0, hin=1, ahead=9, woe=0, thre=2, tlb=0, qsc=0, otag=0, amark=0, smark=0, x8first=1, pgalign=1, aearly=109, adep=2, eb=0, s1late=1, rotm=7, nowait=0, hsplit=2, thrc=3, even=1, jout=0, fline=3, klin=3, fastred=0, snodup=0, w7pre=0, otouch=1, htouch=1, orot=0, q16=1, qspread=8, pgst=4, snake=0)
for a_ in sys.argv[2:]:
    k_, v_ = a_.split('=')
    OPT[k_] = v_ if k_ in ('probe', 'gate1', 'seq') else int(v_)
DIAG = OPT['diag']
OSC = ['', ' sc1', ' nt', ' sc1 nt'][OPT['outsc1']]
YSC = ['', ' sc1', ' nt', ' sc1 nt'][OPT['ysc']]

def f2u(x):
    return struct.unpack('<I', struct.pack('<f', x))[0]

BLK, VOFF, VROW = 247808, 164864, 10368
WS_H, HBLK = 0x800000, 40960
WS_O, OBLK = 0xD00000, 20480
WS_E = 0xF80000
WS_F = 0xFA0000
F1, F3, F4 = WS_F, WS_F + 0x8000, WS_F + 0x28000
WS_WP = 0x1000000
WS_END = WS_WP + 8 * 102400
WS_DIAG = 0x1100000
OOB = 0x7F000000
L_HT, L_H, L_EL, L_PL = 65536, 86016, 86528, 91648
L_PAR, L_Z = 131072, 132096
L_WO = 0
L_REG, REGSZ = 102400, 14848
L_PW = 161792
LDS_BYTES = 163840
sAX, sWQ, sWO, sBX, sLRE, sLIM, sBRE, sBIM, sCRE, sCIM, sLDT, sDSK, sOUT, sDBG, sWS = range(4, 34, 2)
sW, sI, sXCD = 34, 35, 3
R0, R1, RWS, R3, R4, R5, R6 = 36, 40, 44, 48, 52, 56, 60
sRB, sCG, sHD, sQB, sTB, sOG = 64, 65, 66, 67, 68, 69
sG = 97
sSPIN = 96
sHI = 94
vLANE, vPW, vTS = 254, 253, 255
SPIN_MAX = 1 << 19

a = Asm()
nstamp = {}

def stamp(role, name):
    if OPT['probe'] == role + name:
        a('s_memrealtime s[98:99]')
        a('s_waitcnt lgkmcnt(0)')
        a('s_mov_b32 s101, s98')
    if not DIAG:
        return
    l = nstamp.setdefault(role, [])
    if DIAG == 2:
        l.append(name)
        if role + name == 'Aattpro':
            a('s_memrealtime s[98:99]')
            a('s_waitcnt lgkmcnt(0)')
            a('v_writelane_b32 v%d, s98, 29', vTS)
        return
    idx = len(l)
    l.append(name)
    a('s_memtime s[98:99]')
    a('s_memrealtime s[100:101]')
    a('s_waitcnt lgkmcnt(0)')
    a('v_writelane_b32 v%d, s98, %d', vTS, idx)
    a('v_writelane_b32 v%d, s100, %d', vTS, 32 + idx)

def srd(r, base, nbytes):
    a('s_mov_b32 s%d, s%d', r, base)
    a('s_mov_b32 s%d, s%d', r + 1, base + 1)
    if isinstance(nbytes, int):
        a('s_mov_b32 s%d, 0x%x', r + 2, nbytes)
    else:
        a('s_mov_b32 s%d, %s', r + 2, nbytes)
    a('s_mov_b32 s%d, 0x20000', r + 3)

def setpw(val, tmp):
    a('v_mov_b32 v%d, %d', tmp, val)
    a('ds_write_b32 v%d, v%d', vPW, tmp)

COLD = []

def retry(label, back, sleep, pre=()):
    COLD.append(label + ':')
    COLD.extend(pre)
    if sleep:
        COLD.append('s_sleep %d' % sleep)
    COLD.append('s_sub_u32 s%d, s%d, 1' % (sSPIN, sSPIN))
    COLD.append('s_cbranch_scc0 %s' % back)
    COLD.append('s_endpgm')

def flush_cold():
    a.lines.extend(COLD)
    del COLD[:]

def waitpw(vaddr, val, tmp, sleep=0, extra=()):
    L = a.newlabel('pw')
    D = a.newlabel('pwr')
    a.label(L)
    a('ds_read_b32 v%d, v%d', tmp, vaddr)
    for e in extra:
        a(e)
    if not sleep:
        a('s_sub_u32 s%d, s%d, 1', sSPIN, sSPIN)
        a('s_cbranch_scc1 L_exit')
    a('s_waitcnt lgkmcnt(%d)', len(extra))
    a('v_cmp_gt_u32 vcc, %d, v%d', val, tmp)
    if not sleep:
        a('s_cbranch_vccnz %s', L)
        return
    a('s_cbranch_vccnz %s', D)
    retry(D, L, sleep)

def pollflags(loads, tmp, sleep=1):
    L = a.newlabel('pf')
    D = a.newlabel('pfr')
    a.label(L)
    for l in loads:
        a(l)
    if not sleep:
        a('s_sub_u32 s%d, s%d, 1', sSPIN, sSPIN)
        a('s_cbranch_scc1 L_exit')
    a('s_waitcnt vmcnt(0)')
    for i in range(1, len(loads)):
        a('v_and_b32 v%d, v%d, v%d', tmp, tmp, tmp + i)
    a('v_cmp_eq_u32 vcc, 0, v%d', tmp)
    if not sleep:
        a('s_and_b64 exec, exec, vcc')
        a('s_cbranch_scc1 %s', L)
    else:
        a('s_cbranch_vccnz %s', D)
        retry(D, L, sleep, ['s_mov_b64 exec, vcc'])
    a('s_mov_b64 exec, -1')

def dbgload(va, vd):
    return 'global_load_dword v%d, v%d, s[%d:%d] sc1' % (vd, va, sDBG, sDBG + 1)

def flagaddr(dst, idx, base, t):
    a('s_lshl_b32 s%d, s%d, 7', dst, idx)
    a('s_add_u32 s%d, s%d, 0x%x', dst, dst, base)

def setflag(soff, tmp):
    a('v_mov_b32 v%d, 1', tmp)
    a('s_mov_b64 exec, 1')
    a('buffer_store_dword v%d, off, s[%d:%d], s%d sc1', tmp, RWS, RWS + 3, soff)
    a('s_mov_b64 exec, -1')

def tau(dst, src, t):
    a('v_and_b32 v%d, 0x13, v%d', dst, src)
    a('v_and_b32 v%d, 4, v%d', t, src)
    a('v_lshl_or_b32 v%d, v%d, 1, v%d', dst, t, dst)
    a('v_and_b32 v%d, 8, v%d', t, src)
    a('v_lshrrev_b32 v%d, 1, v%d', t, t)
    a('v_or_b32 v%d, v%d, v%d', dst, t, dst)

def finish(role):
    if OPT['probe'][:1] == role:
        if OPT['probe'][1:] == 'drained':
            a('s_waitcnt vmcnt(0)')
            stamp(role, 'drained')
        a('s_sub_u32 s101, s101, s100')
        a('s_mul_i32 s101, s101, 10')
        a('s_add_u32 s101, s101, 10000')
        if OPT['probewg'] >= 0:
            a('s_and_b32 s98, s2, 31')
            a('s_cmp_eq_u32 s98, %d', OPT['probewg'])
            a('s_cselect_b32 s101, s101, 0')
        L = a.newlabel('pad')
        a.label(L)
        a('s_sleep 4')
        a('s_memrealtime s[98:99]')
        a('s_waitcnt lgkmcnt(0)')
        a('s_sub_u32 s98, s98, s100')
        a('s_cmp_lt_u32 s98, s101')
        a('s_cbranch_scc1 %s', L)
    if OPT['padto']:
        L = a.newlabel('pad')
        a.label(L)
        a('s_sleep 4')
        a('s_memrealtime s[98:99]')
        a('s_waitcnt lgkmcnt(0)')
        a('s_sub_u32 s98, s98, s100')
        a('s_cmp_lt_u32 s98, %d', OPT['padto'])
        a('s_cbranch_scc1 %s', L)
    if DIAG:
        stamp(role, 'end')
        a('s_waitcnt vmcnt(0)')
        stamp(role, 'drained')
        a('s_memrealtime s[98:99]')
        a('s_waitcnt lgkmcnt(0)')
        a('v_writelane_b32 v%d, s98, 31', vTS)
        a('s_lshl_b32 s70, s2, 3')
        a('s_add_u32 s70, s70, s%d', sW)
        if role == 'S':
            a('s_add_u32 s70, s70, 4')
        a('s_lshl_b32 s70, s70, 8')
        a('s_add_u32 s70, s70, 0x%x', WS_DIAG)
        a('v_lshlrev_b32 v0, 2, v%d', vLANE)
        a('buffer_store_dword v%d, v0, s[%d:%d], s70 offen', vTS, RWS, RWS + 3)
    a('s_endpgm')

def prologue():
    a('s_cmp_ge_u32 s2, 256')
    a('s_cbranch_scc0 L_go')
    a('s_endpgm')
    a.label('L_go')
    if OPT['padto'] or DIAG or OPT['probe']:
        a('s_memrealtime s[100:101]')
    a('s_load_dwordx16 s[4:19], s[0:1], 0')
    a('s_load_dwordx8 s[20:27], s[0:1], 64')
    a('s_load_dwordx4 s[28:31], s[0:1], 96')
    a('s_load_dwordx2 s[32:33], s[0:1], 112')
    a('s_lshr_b32 s%d, s2, 3', sI)
    if OPT['codepre'] == 2:
        a.c('pull the code into L2: every half wave of an XCD touches one line')
        a('s_getpc_b64 s[76:77]')
        a('v_lshrrev_b32 v1, 5, v0')
        a('v_lshl_add_u32 v1, s%d, 4, v1', sI)
        a('v_min_u32 v1, (L_codeend - L_go) / 128 - 1, v1')
        a('v_lshlrev_b32 v1, 7, v1')
        a('global_load_dword v%d, v1, s[76:77]', 149 if OPT['q16'] else 110)
    a('v_lshrrev_b32 v1, 6, v0')
    a('v_and_b32 v%d, 63, v0', vLANE)
    a('v_readfirstlane_b32 s%d, v1', sW)
    a('s_and_b32 s%d, s2, 7', sXCD)
    a('s_and_b32 s70, s%d, 3', sI)
    a('s_lshr_b32 s%d, s%d, 2', sOG, sI)
    a('s_lshr_b32 s71, s%d, 1', sXCD)
    a('s_lshl2_add_u32 s%d, s71, s70', sRB)
    a('s_and_b32 s71, s%d, 1', sXCD)
    a('s_lshl3_add_u32 s%d, s71, s%d', sG, sOG)
    a('s_cmp_ge_u32 s%d, %d', sI, 30 if OPT['cmap'] else 99)
    a('s_cselect_b32 s71, 8, 0')
    a('s_xor_b32 s%d, s%d, s71', sCG, sG)
    if DIAG:
        prologue2()
    a('s_cmp_ge_u32 s%d, 4', sW)
    a('s_cbranch_scc0 L_roleA')

def prologue2():
    a('v_lshlrev_b32 v%d, 2, v0', vPW)
    a('v_add_u32 v%d, %d, v%d', vPW, L_PW, vPW)
    a('v_mov_b32 v0, 0')
    a('ds_write_b32 v%d, v0', vPW)
    a('s_lshr_b32 s71, s%d, 3', sI)
    a('s_lshl2_add_u32 s%d, s%d, s71', sHD, sXCD)
    a('s_and_b32 s%d, s%d, 7', sQB, sI)
    a('s_and_b32 s70, s%d, 3', sI)
    a('s_lshl2_add_u32 s%d, s%d, s70', sTB, sXCD)
    a('s_mov_b32 s%d, 0x%x', sSPIN, SPIN_MAX)
    a('s_mov_b32 s%d, 0', sHI)
    a('s_mov_b32 s%d, -1', sHI + 1)

def ws_setup():
    srd(RWS, sWS, WS_END if not DIAG else WS_DIAG + 0x100000)
    if DIAG:
        a('v_mov_b32 v%d, 0', vTS)
        a('v_writelane_b32 v%d, s100, 30', vTS)

def stagger(k, t, add, flp, mode):
    if mode == 4:
        a('s_and_b32 s%d, s%d, 3', k, sI)
        if flp:
            a('s_xor_b32 s%d, s%d, 1', k, k)
        a('s_mul_i32 s%d, s%d, 5', k, k)
        a('s_lshr_b32 s%d, s%d, 1', k, k)
        a('s_mul_i32 s%d, s%d, 5', t, sOG)
        a('s_lshr_b32 s%d, s%d, 2', t, t)
        a('s_add_u32 s%d, s%d, s%d', k, k, t)
    elif mode in (2, 3):
        a('s_add_u32 s%d, s%d, s%d', k, sI, sOG)
        if flp:
            a('s_xor_b32 s%d, s%d, 1', k, k)
        a('s_and_b32 s%d, s%d, %d', k, k, 1 if mode == 2 else 3)
        a('s_mul_i32 s%d, s%d, 5', k, k)
        if mode == 3:
            a('s_lshr_b32 s%d, s%d, 1', k, k)
    else:
        a('s_mov_b32 s%d, 0', k)
    if mode == 0:
        a('s_mov_b32 s%d, %d', k, add)
        return
    a('s_add_u32 s%d, s%d, %d', t, sXCD, 1 + 2 * add)
    a('s_lshr_b32 s%d, s%d, 1', t, t)
    if mode == 1:
        a('s_add_u32 s%d, s%d, %d', t, sXCD, add)
    a('s_add_u32 s%d, s%d, s%d', k, k, t)
    for _ in range(2 if add else 1):
        a('s_cmp_ge_u32 s%d, 10', k)
        a('s_cselect_b32 s%d, 10, 0', t)
        a('s_sub_u32 s%d, s%d, s%d', k, k, t)

def b1_sources(rx, rb, vx, vb, sm, sb, t, j0=2):
    srd(rx, sBX, 2048 * 1280)
    a('s_cmp_ge_u32 s%d, 2', sW)
    a('s_cselect_b32 s%d, s%d, s%d', t, sBIM, sBRE)
    a('s_cselect_b32 s%d, s%d, s%d', t + 1, sBIM + 1, sBRE + 1)
    srd(rb, t, 640 * 1280)
    a('v_lshrrev_b32 v1, 3, v%d', vLANE)
    a('v_and_b32 v2, 7, v%d', vLANE)
    a('v_lshrrev_b32 v3, 4, v%d', vLANE)
    a('v_xor_b32 v4, v2, v3')
    a('v_and_b32 v5, 3, v1')
    a('v_lshrrev_b32 v6, 2, v1')
    a('v_lshl_add_u32 v5, v6, 3, v5')
    a('v_mul_u32_u24 v5, 1280, v5')
    a('v_lshl_add_u32 v%d, v4, 4, v5', vx)
    a('v_xor_b32 v6, 64, v%d', vx)
    a('v_add_u32 v%d, %d, v6', vx + 1, 16 * 1280 - 1024)
    a('v_add_u32 v%d, %d, v%d', vx + 2, 4 * 1280 - 2048, vx)
    a('v_add_u32 v%d, %d, v6', vx + 3, 20 * 1280 - 3072)
    a('s_lshr_b32 s%d, s%d, 1', t, sW)
    a('s_lshl_b32 s%d, s%d, 6', t + 1, t)
    a('v_mul_u32_u24 v5, 1280, v1')
    a('v_lshl_add_u32 v5, v4, 4, v5')
    a('v_xor_b32 v%d, s%d, v5', vb, t + 1)
    for i in range(1, 3):
        a('v_add_u32 v%d, %d, v%d', vb + i, (10240 - 1024) * i, vb)
    a('s_and_b32 s%d, s%d, 1', t + 1, sW)
    a('s_mul_i32 s%d, s%d, 5120', sm, t)
    a('s_mul_i32 s%d, s%d, %d', sb, t + 1, 1024 * j0)
    a('s_add_u32 s%d, s%d, s%d', sm, sm, sb)
    a('s_mul_i32 s%d, s%d, %d', sb, sG, 40 * 1280)
    a('s_mul_i32 s%d, s%d, %d', t + 1, t + 1, 8 * 1280 * j0)
    a('s_add_u32 s%d, s%d, s%d', sb, sb, t + 1)

def dma(voff, r, soff, imm):
    return 'buffer_load_dwordx4 v%d, s[%d:%d], s%d offen offset:%d lds' % (voff, r, r + 3, soff, imm)

vAB = 141 if OPT['q16'] else 112

def a_b1stage(t):
    slot = ((t + 1) % 4) * 32768
    a('s_add_u32 m0, s6, %d', slot)
    a('s_lshl_b32 s9, s8, 7')
    a('s_add_u32 s12, s4, s9')
    for i in range(4):
        a(dma(vAB + i, R5, 12, 1024 * i))
    a('s_add_u32 m0, s7, %d', slot + 16384)
    a('s_add_u32 s12, s5, s9')
    L = a.newlabel('b3rd')
    for i in range(3):
        if i == 2 and OPT['nodup']:
            a('s_cmp_eq_u32 s%d, 1', sCW)
            a('s_cbranch_scc1 %s', L)
        a(dma(vAB + 4 + i, R6, 12, 1024 * i))
    a.label(L)
    a('s_add_u32 s8, s8, 1')
    a('s_cmp_eq_u32 s8, 10')
    a('s_cselect_b32 s8, 0, s8')

sTW, sCW = 72, 73
vXA, vWA = 96, 104
vF1A = 252
vAPW = 249

def a_setup():
    a('.PAD L_roleA L_pgQ')
    a.label('L_roleA')
    if not DIAG:
        prologue2()
    a('s_waitcnt lgkmcnt(0)')
    ws_setup()
    stamp('A', 'start')
    a('s_lshr_b32 s%d, s%d, 1', sTW, sW)
    a('s_and_b32 s%d, s%d, 1', sCW, sW)
    a('s_lshl1_add_u32 s75, s%d, s%d', sRB, sTW)
    a('s_mul_i32 s74, s75, %d', BLK)
    if OPT['amark'] == 1:
        a_mark()
    a.c('column group 15 has no GEMM tile: these workgroups clear the flags and write the constant blocks')
    a('s_cmp_eq_u32 s%d, 15', sCG)
    a('s_cbranch_scc0 L_noconst')
    a('s_lshl2_add_u32 s77, s%d, s%d', sRB, sW)
    if OPT['clrwide']:
        a('v_lshlrev_b32 v2, 4, v%d', vLANE)
        a('v_min_u32 v3, 496, v2')
        for i in range(4):
            a('v_mov_b32 v%d, 0', 4 + i)
        a('s_mul_i32 s76, s77, 4608')
        a('s_add_u32 s76, s76, 0x%x', WS_F)
        for i in range(4):
            a('buffer_store_dwordx4 v[4:7], v2, s[%d:%d], s76 offen offset:%d sc1', RWS, RWS + 3, 1024 * i)
        a('s_add_u32 s76, s76, 4096')
        a('buffer_store_dwordx4 v[4:7], v3, s[%d:%d], s76 offen sc1', RWS, RWS + 3)
    else:
        a('v_min_u32 v1, 35, v%d', vLANE)
        a('v_lshlrev_b32 v1, 7, v1')
        a('v_mov_b32 v4, 0')
        a('s_mul_i32 s76, s77, 4608')
        a('s_add_u32 s76, s76, 0x%x', WS_F)
        a('buffer_store_dword v4, v1, s[%d:%d], s76 offen sc1', RWS, RWS + 3)
        a('v_lshlrev_b32 v2, 4, v%d', vLANE)
    for i in range(4):
        a('v_mov_b32 v%d, -1', 20 + i)
    a('s_lshl_b32 s76, s77, 11')
    a('s_add_u32 s76, s76, 0x%x', WS_E)
    for i in range(2):
        a('buffer_store_dwordx4 v[20:23], v2, s[%d:%d], s76 offen offset:%d sc1', RWS, RWS + 3, 1024 * i)
    a('v_lshrrev_b32 v1, 3, v%d', vLANE)
    a('v_mul_u32_u24 v1, %d, v1', VROW - 128)
    a('v_add_u32 v1, %d, v1', VOFF + 640 * 16 - 160 * 1024)
    a('v_mul_lo_u32 v1, v1, s%d', sCW)
    a('v_add_u32 v1, v1, v2')
    a('s_mul_i32 s76, s%d, 0x3f803f80', sCW)
    a('v_mov_b32 v8, 0x3f803f80')
    a('v_mov_b32 v9, s76')
    a('v_mov_b32 v10, v8')
    a('v_mov_b32 v11, s76')
    a('s_add_u32 s76, s74, %d', 160 * 1024)
    a('buffer_store_dwordx4 v[8:11], v1, s[%d:%d], s76 offen sc1', RWS, RWS + 3)
    if OPT['w7pre']:
        srd(R3, sWQ, 640 * 3840)
        a('s_bitcmp1_b32 s%d, 0', sXCD)
        a('s_mov_b32 s76, 0x96521')
        a('s_cselect_b32 s76, 0x87430, s76')
        a('s_add_u32 s77, s%d, 1', sXCD)
        a('s_and_b32 s77, s77, -2')
        a('s_and_b32 s78, s%d, 1', sI)
        a('s_lshl2_add_u32 s78, s78, s%d', sW)
        a('s_mul_i32 s78, s78, %d', 8 * 3840)
        a('s_add_u32 s78, s78, %d', 7 * 256)
        a('v_bfe_u32 v13, v%d, 1, 3', vLANE)
        a('v_mul_u32_u24 v13, 3840, v13')
        a('v_and_b32 v14, 1, v%d', vLANE)
        a('v_lshl_add_u32 v13, v14, 7, v13')
        a('v_lshrrev_b32 v14, 4, v%d', vLANE)
        a('v_lshlrev_b32 v14, 2, v14')
        for k in range(2):
            if k:
                a('v_mov_b32 v14, 16')
            a('v_bfe_u32 v15, s76, v14, 4')
            a('v_add_u32 v15, s77, v15')
            a('v_subrev_u32 v12, 10, v15')
            a('v_min_u32 v15, v15, v12')
            a('v_mul_u32_u24 v15, 245760, v15')
            a('v_add_u32 v15, v15, v13')
            a('buffer_load_dword v111, v15, s[%d:%d], s78 offen', R3, R3 + 3)
    a.label('L_noconst')
    if OPT['codepre'] == 1:
        a.c('pull the code into L2: each wave of an XCD touches a few lines')
        a('s_getpc_b64 s[76:77]')
        a.label('L_pc')
        a('s_sub_u32 s76, s76, L_pc - L_go')
        a('s_subb_u32 s77, s77, 0')
        a('s_lshl2_add_u32 s78, s%d, s%d', sI, sW)
        a('s_mul_i32 s78, s78, 3')
        a('v_min_u32 v1, 2, v%d', vLANE)
        a('v_add_u32 v1, s78, v1')
        a('v_min_u32 v1, (L_codeend - L_go) / 128 - 1, v1')
        a('v_lshlrev_b32 v1, 7, v1')
        a('global_load_dword v110, v1, s[76:77]')
    a.c('LDS fragment addresses for the QKV GEMM')
    if OPT['q16']:
        a('v_and_b32 v1, 15, v%d', vLANE)
        a('v_lshrrev_b32 v2, 4, v%d', vLANE)
        a('v_lshrrev_b32 v3, 1, v1')
        a('v_xor_b32 v3, v3, v2')
        a('v_lshlrev_b32 v3, 4, v3')
        a('v_lshl_add_u32 v3, v1, 7, v3')
        a('s_lshl_b32 s76, s%d, 13', sTW)
        a('v_add_u32 v128, s76, v3')
        a('v_xor_b32 v129, 64, v128')
        a('v_add_u32 v130, 0x10000, v128')
        a('v_add_u32 v131, 0x10000, v129')
        a('v_bfe_u32 v4, v%d, 2, 2', vLANE)
        a('v_lshl_add_u32 v5, v2, 3, v4')
        a('v_lshlrev_b32 v5, 8, v5')
        a('v_and_b32 v6, 1, v2')
        a('v_mul_u32_u24 v6, 3, v6')
        a('v_lshl_or_b32 v6, v4, 2, v6')
        a('s_lshl_b32 s76, s%d, 3', sCW)
        a('v_xor_b32 v6, s76, v6')
        a('v_lshl_add_u32 v5, v6, 4, v5')
        a('v_and_b32 v6, 1, v%d', vLANE)
        a('v_lshl_add_u32 v5, v6, 3, v5')
        a('v_add_u32 v132, 16384, v5')
        return
    a('v_and_b32 v1, 31, v%d', vLANE)
    a('v_lshrrev_b32 v2, 5, v%d', vLANE)
    a('v_bfe_u32 v3, v1, 1, 3')
    a('v_xor_b32 v3, v3, v2')
    a('v_lshlrev_b32 v3, 4, v3')
    a('v_lshl_add_u32 v3, v1, 7, v3')
    a('s_lshl_b32 s76, s%d, 13', sTW)
    a('v_add_u32 v3, s76, v3')
    for ks in range(4):
        a('v_xor_b32 v%d, %d, v3', vXA + ks, ks << 5)
        a('v_add_u32 v%d, 0x10000, v%d', vXA + 4 + ks, vXA + ks)
    a('v_bfe_u32 v4, v%d, 2, 2', vLANE)
    a('v_lshl_add_u32 v5, v2, 3, v4')
    a('v_lshlrev_b32 v5, 8, v5')
    a('v_bfe_u32 v6, v%d, 4, 1', vLANE)
    a('v_and_b32 v7, 1, v%d', vLANE)
    a('v_lshl_add_u32 v6, v6, 1, v7')
    a('s_lshl_b32 s76, s%d, 3', sCW)
    a('v_add_u32 v6, s76, v6')
    a('v_lshlrev_b32 v4, 2, v4')
    a('v_xor_b32 v6, v6, v4')
    a('v_lshl_add_u32 v5, v6, 4, v5')
    a('v_bfe_u32 v7, v%d, 1, 1', vLANE)
    a('v_lshl_add_u32 v5, v7, 3, v5')
    a('v_add_u32 v%d, 16384, v5', vWA)
    a('v_xor_b32 v%d, 64, v%d', vWA + 1, vWA)
    a('v_add_u32 v%d, 0x10000, v%d', vWA + 2, vWA)
    a('v_add_u32 v%d, 0x10000, v%d', vWA + 3, vWA + 1)

def a_qloop(vt):
    F = [64, 80]
    def reads(st, ks, f):
        slot = (st + 1) % 4
        hi, lo = slot >> 1, (slot & 1) * 32768
        r = []
        for T in range(2):
            r.append('ds_read_b128 %s, v%d offset:%d' % (v(f + 4 * T, 4), vXA + 4 * hi + ks, lo + 4096 * T))
        for Tc in range(2):
            for rd in range(2):
                r.append('ds_read_b64_tr_b16 %s, v%d offset:%d' % (v(f + 8 + 4 * Tc + 2 * rd, 2), vWA + 2 * hi + Tc,
                                                                  lo + (16 * ks + 4 * rd) * 256))
        return [r[0], r[2], r[3], r[1], r[4], r[5]]
    def mfma(f, i, j, first):
        acc = (2 * i + j) * 16
        A = f + 4 * i if vt else f + 8 + 4 * i
        B = f + 8 + 4 * j if vt else f + 4 * j
        if OPT['hack16']:
            o = 8 if f == F[1] else 0
            B2 = f + 8 + 4 * (1 - j) if vt else f + 4 * (1 - j)
            return 'v_mfma_f32_16x16x32_bf16 %s, %s, %s, %s\nv_mfma_f32_16x16x32_bf16 %s, %s, %s, %s' % (
                v(acc + o, 4), v(A, 4), v(B, 4), v(acc + o, 4), v(acc + o + 4, 4), v(A, 4), v(B2, 4), v(acc + o + 4, 4))
        return 'v_mfma_f32_32x32x16_bf16 %s, %s, %s, %s' % (v(acc, 16), v(A, 4), v(B, 4), '0' if first else v(acc, 16))
    if OPT['hack16']:
        for i_ in range(64):
            a('v_mov_b32 v%d, 0', i_)
    a('s_barrier')
    for r in reads(0, 0, F[0]):
        a(r)
    for st in range(10):
        for ks in range(4):
            cur, nxt = F[ks & 1], F[(ks + 1) & 1]
            first = st == 0 and ks == 0
            if st == 0 and ks == 3:
                a.label('L_pgV' if vt else 'L_pgQ')
            a('s_waitcnt lgkmcnt(0)')
            if ks == 3:
                a('s_barrier')
                rr = reads(st + 1, 0, nxt) if st < 9 else []
            else:
                rr = reads(st, ks + 1, nxt)
            if st == 9 and ks == 3:
                a(mfma(cur, 0, 0, False))
                a(mfma(cur, 0, 1, False))
                return [mfma(nxt, 1, 1, False), mfma(cur, 1, 0, False), mfma(cur, 1, 1, False)]
            if OPT['hack16'] == 2 and not (st == 9 and ks >= 2):
                ms = '\n'.join(mfma(cur, i, j, first) for i in range(2) for j in range(2)).split('\n')
                for i, m in enumerate(ms):
                    a(m)
                    for r in rr[2 * i:2 * i + 2]:
                        a(r)
                continue
            a(mfma(cur, 0, 0, first))
            for r in rr[:3]:
                a(r)
            a(mfma(cur, 0, 1, first))
            for r in rr[3:]:
                a(r)
            a(mfma(cur, 1, 0, first))
            if not (st == 9 and ks == 2):
                a(mfma(cur, 1, 1, first))

def tailweave(ms, work):
    a(ms[0])
    a('s_nop 6')
    a(ms[1])
    a('s_nop 1')
    for o in work[:6]:
        a(o)
    a(ms[2])
    for o in work[6:]:
        a(o)

def a_pack_wo():
    a('s_lshl2_add_u32 s76, s%d, s%d', sRB, sW)
    a('s_mul_i32 s77, s76, 12800')
    a('s_add_u32 s78, s14, s77')
    a('s_addc_u32 s79, s15, 0')
    a('s_mul_i32 s76, s76, 10')
    a('s_mov_b32 s80, 0x%x', WS_WP)
    for n in range(13):
        a('v_add_u32 v60, %d, v%d', 64 * n, vLANE)
        if n == 12:
            a('v_min_u32 v60, 799, v60')
        a('v_lshlrev_b32 v61, 4, v60')
        a('global_load_dwordx4 %s, v61, s[78:79]', v(4 * n, 4))
        a('v_mul_u32_u24 v61, 820, v60')
        a('v_lshrrev_b32 v61, 16, v61')
        a('v_mul_u32_u24 v62, 80, v61')
        a('v_sub_u32 v60, v60, v62')
        a('v_add_u32 v61, s76, v61')
        a('v_mul_u32_u24 v62, 6554, v60')
        a('v_lshrrev_b32 v62, 16, v62')
        a('v_mul_u32_u24 v62, %d, v62', 6400 - 10)
        a('v_add_u32 v60, v60, v62')
        a('v_and_b32 v62, 0xfff3, v61')
        a('v_and_b32 v63, 4, v61')
        a('v_lshl_or_b32 v62, v63, 1, v62')
        a('v_bfe_u32 v63, v61, 3, 1')
        a('v_lshl_or_b32 v62, v63, 2, v62')
        a('v_mul_u32_u24 v62, 10, v62')
        a('v_add_lshl_u32 v%d, v60, v62, 4', 64 + n)
    for n in range(13):
        a('s_waitcnt vmcnt(12)')
        a('buffer_store_dwordx4 %s, v%d, s[%d:%d], s80 offen sc1', v(4 * n, 4), 64 + n, RWS, RWS + 3)
    if OPT['wopack'] > 1:
        a('v_min_u32 v60, 49, v%d', vLANE)
        a('v_lshl_add_u32 v60, v60, 7, s77')
        a('v_add_u32 v61, 6400, v60')
        for p in (sCRE, sCIM):
            a('global_load_dword v111, v60, s[%d:%d]', p, p + 1)
            a('global_load_dword v111, v61, s[%d:%d]', p, p + 1)

def q16_waddr(vt):
    if vt:
        a('v_bfe_u32 v1, v%d, 1, 1', vLANE)
    else:
        a('v_and_b32 v1, 3, v%d', vLANE)
    a('v_lshlrev_b32 v1, 4, v1')
    a('v_xor_b32 v132, v1, v132')
    for C in range(1, 4):
        a('v_xor_b32 v%d, %d, v132', 132 + C, 32 * C if vt else 64 * (C >> 1) + 8 * (C & 1))
    for C in range(4):
        a('v_add_u32 v%d, 0x10000, v%d', 136 + C, 132 + C)

def q16_loop(vt):
    F = [64, 96]
    def reads(st, ks, f):
        slot = (st + 1) % 4
        hi, lo = slot >> 1, (slot & 1) * 32768
        x = ['ds_read_b128 %s, v%d offset:%d' % (v(f + 4 * T, 4), 128 + 2 * hi + ks, lo + 2048 * T) for T in range(4)]
        w = ['ds_read_b64_tr_b16 %s, v%d offset:%d' % (v(f + 16 + 4 * C + 2 * rd, 2), 132 + 4 * hi + C, lo + (32 * ks + 4 * rd) * 256)
             for C in range(4) for rd in range(2)]
        return [x[0], w[0], w[1], x[1], w[2], w[3], x[2], w[4], w[5], x[3], w[6], w[7]]
    def mfmas(f, first):
        o = []
        order = [(i, (3 - j if (i & 1) and OPT['snake'] == 1 else j)) for i in range(4) for j in range(4)]
        if OPT['snake'] == 2:
            order = [(2 * p + (s_ ^ (j & 1)), j) for p in range(2) for j in range(4) for s_ in range(2)]
        for i, j in order:
            if True:
                acc = 16 * i + 4 * j
                A = f + 4 * i if vt else f + 16 + 4 * i
                B = f + 16 + 4 * j if vt else f + 4 * j
                o.append('v_mfma_f32_16x16x32_bf16 %s, %s, %s, %s' % (v(acc, 4), v(A, 4), v(B, 4), '0' if first else v(acc, 4)))
        return o
    a('s_barrier')
    for r in reads(0, 0, F[0]):
        a(r)
    for st in range(10):
        for ks in range(2):
            if st == OPT['pgst'] and ks == 1:
                a.label('L_pgV' if vt else 'L_pgQ')
            a('s_waitcnt lgkmcnt(0)')
            if ks == 1:
                a('s_barrier')
                rr = reads(st + 1, 0, F[0]) if st < 9 else []
            else:
                rr = reads(st, 1, F[1])
            ms = mfmas(F[ks], st == 0 and ks == 0)
            if st == 9 and ks == 1:
                for m in ms[:8]:
                    a(m)
                return ms[8:]
            k = 0
            for i, m in enumerate(ms):
                a(m)
                while k < min(12, (i + 1) * 12 // OPT['qspread']):
                    a(rr[k])
                    k += 1

def q16_tail(ms, work):
    k = 0
    for i, m in enumerate(ms):
        a(m)
        if i < (3 if OPT['snake'] == 1 else 2):
            a('s_nop 1')
            continue
        for _ in range(2):
            if '\n' not in work[k]:
                a(work[k])
                k += 1
    for o in work[k:]:
        a(o)

def q16_qk():
    q16_waddr(False)
    a('v_and_b32 v1, 15, v%d', vLANE)
    a('v_lshrrev_b32 v2, 4, v%d', vLANE)
    a('v_lshlrev_b32 v1, 4, v1')
    a('v_lshl_add_u32 v140, v2, 10, v1')
    a('s_lshl1_add_u32 s76, s%d, s%d', sCG, sCW)
    a('s_lshl_b32 s77, s76, 13')
    a('s_add_u32 s77, s77, s74')
    a('s_add_u32 s78, s77, 4096')
    a('s_mul_i32 s79, s%d, 3', sCW)
    a('s_add_u32 s79, s79, s%d', sCG)
    for P in range(2):
        a('s_sub_u32 s80, %d, s79', 17 + P)
        a('s_mul_i32 s81, s80, 52')
        a('s_lshr_b32 s81, s81, 8')
        a('s_mul_i32 s81, s81, 5')
        a('s_sub_u32 s80, s80, s81')
        a('s_lshl_b32 s81, s80, 4')
        a('s_bfm_b64 s[%d:%d], 16, s81', 20 + 2 * P, 21 + 2 * P)
        a('s_cmp_lt_u32 s80, 4')
        a('s_cselect_b64 s[%d:%d], s[%d:%d], 0', 20 + 2 * P, 21 + 2 * P, 20 + 2 * P, 21 + 2 * P)
    a('s_mov_b32 s80, 0x%x', f2u(math.log2(math.e) / math.sqrt(20.0)))
    ms = q16_loop(False)
    def group(P, u, scale):
        o = []
        R = 152 + 8 * (2 * P + u)
        for k, T in enumerate((u, u + 2)):
            for s_ in range(2):
                acc = 16 * (2 * P + s_) + 4 * T
                if scale:
                    o += ['v_mul_f32 v%d, s80, v%d' % (acc + e, acc + e) for e in range(4)]
                o += ['v_cvt_pk_bf16_f32 v%d, v%d, v%d' % (R + 4 * k + 2 * s_ + q, acc + 2 * q, acc + 2 * q + 1) for q in range(2)]
        o.append('s_mov_b64 exec, s[%d:%d]\nv_swap_b32 v%d, v%d\nv_swap_b32 v%d, v%d\ns_mov_b64 exec, -1' % (20 + 2 * P, 21 + 2 * P, R + 2, R + 4, R + 3, R + 5))
        for k, T in enumerate((u, u + 2)):
            o.append('buffer_store_dwordx4 %s, v140, s[%d:%d], s%d offen offset:%d QSC' % (v(R + 4 * k, 4), RWS, RWS + 3, 77 + P, 256 * T))
        return o
    a('s_cmp_ge_u32 s%d, 5', sCG)
    a('s_cbranch_scc1 L_noscale')
    q16_tail(ms, group(0, 0, True) + group(0, 1, True))
    a('s_mov_b32 s81, s80')
    for i in range(32, 64, 2):
        a('v_pk_mul_f32 %s, %s, s[80:81]', v(i, 2), v(i, 2))
    a('s_branch L_qk2')
    a.label('L_noscale')
    q16_tail(ms, group(0, 0, False) + group(0, 1, False))
    a.label('L_qk2')
    for o in group(1, 0, False) + group(1, 1, False):
        a(o)
    stamp('A', 'qloop')

def q16_v():
    q16_waddr(True)
    a('s_lshl1_add_u32 s76, s%d, s%d', sCG, sCW)
    a('v_and_b32 v1, 15, v%d', vLANE)
    a('v_lshrrev_b32 v2, 4, v%d', vLANE)
    a('v_mul_u32_u24 v2, %d, v2', VROW)
    a('v_lshl_add_u32 v140, v1, 4, v2')
    a('s_sub_u32 s76, s76, 20')
    a('s_lshl_b32 s76, s76, 10')
    a('s_add_u32 s76, s76, s74')
    a('s_add_u32 s76, s76, %d', VOFF)
    a('s_add_u32 s77, s76, %d', 4 * VROW)
    ms = q16_loop(True)
    work = []
    for P in range(2):
        for C in range(4):
            R = 152 + 4 * (4 * P + C)
            for s_ in range(2):
                acc = 16 * (2 * P + s_) + 4 * C
                work += ['v_cvt_pk_bf16_f32 v%d, v%d, v%d' % (R + 2 * s_ + q, acc + 2 * q, acc + 2 * q + 1) for q in range(2)]
            work.append('buffer_store_dwordx4 %s, v140, s[%d:%d], s%d offen offset:%d QSC' % (v(R, 4), RWS, RWS + 3, 76 + P, 256 * C))
    q16_tail(ms, work)
    if DIAG:
        nstamp['A'].pop()
    stamp('A', 'qloop')

def q32_qk():
    a('v_and_b32 v1, 31, v%d', vLANE)
    a('v_lshrrev_b32 v2, 5, v%d', vLANE)
    a('v_lshlrev_b32 v1, 4, v1')
    a('v_lshl_add_u32 v108, v2, 10, v1')
    a('s_lshl1_add_u32 s76, s%d, s%d', sCG, sCW)
    a('s_lshl_b32 s77, s76, 13')
    a('s_add_u32 s77, s77, s74')
    a('s_add_u32 s78, s77, 4096')
    a('s_mul_i32 s79, s%d, 3', sCW)
    a('s_add_u32 s79, s79, s%d', sCG)
    for _ in range(2):
        a('s_cmp_ge_u32 s79, 5')
        a('s_cselect_b32 s80, 5, 0')
        a('s_sub_u32 s79, s79, s80')
    for Tc in range(2):
        for u in range(2):
            m = 20 + 2 * (2 * Tc + u)
            a('s_cmp_eq_u32 s79, %d', (2 - 4 * Tc - 2 * u) % 5)
            a('s_cselect_b32 s%d, -1, 0', m)
            a('s_cmp_eq_u32 s79, %d', (1 - 4 * Tc - 2 * u) % 5)
            a('s_cselect_b32 s%d, -1, 0', m + 1)
    c0 = f2u(math.log2(math.e) / math.sqrt(20.0))
    a('s_mov_b32 s80, 0x%x', c0)
    ms = a_qloop(False)
    def group(Tc, u, scale):
        o = []
        P = 120 + 8 * (2 * Tc + u)
        for T in range(2):
            acc = (2 * Tc + T) * 16 + 8 * u
            if scale:
                o += ['v_mul_f32 v%d, s80, v%d' % (acc + e, acc + e) for e in range(8)]
            o += ['v_cvt_pk_bf16_f32 v%d, v%d, v%d' % (P + 4 * T + q, acc + 2 * q, acc + 2 * q + 1) for q in range(4)]
        m = 20 + 2 * (2 * Tc + u)
        o.append('s_mov_b64 exec, s[%d:%d]\nv_swap_b32 v%d, v%d\nv_swap_b32 v%d, v%d\ns_mov_b64 exec, -1' % (m, m + 1, P + 2, P + 4, P + 3, P + 5))
        for T in range(2):
            o.append('buffer_store_dwordx4 %s, v108, s[%d:%d], s%d offen offset:%d QSC' % (v(P + 4 * T, 4), RWS, RWS + 3,
                     77 + Tc, 2048 * u + 512 * T))
        return o
    a('s_cmp_ge_u32 s%d, 5', sCG)
    a('s_cbranch_scc1 L_noscale')
    tailweave(ms, group(0, 0, True) + group(0, 1, True))
    a('s_mov_b32 s81, s80')
    for i in range(32, 64, 2):
        a('v_pk_mul_f32 %s, %s, s[80:81]', v(i, 2), v(i, 2))
    a('s_branch L_qk2')
    a.label('L_noscale')
    tailweave(ms, group(0, 0, False) + group(0, 1, False))
    a.label('L_qk2')
    for o in group(1, 0, False) + group(1, 1, False):
        a(o)
    stamp('A', 'qloop')

def q32_v():
    a('s_lshl1_add_u32 s76, s%d, s%d', sCG, sCW)
    a('v_and_b32 v1, 31, v%d', vLANE)
    tau(108, 1, 2)
    if OPT['klin']:
        a('v_xor_b32 v3, v108, v1')
        a('v_mul_u32_u24 v3, 136, v3')
        for k in range(8):
            a('v_xor_b32 v%d, v3, v%d', vXA + k, vXA + k)
    if OPT['klin'] & 2:
        a('v_bfe_u32 v3, v%d, 1, 1', vLANE)
        a('v_xor_b32 v3, v3, v%d', vLANE)
        a('v_and_b32 v3, 1, v3')
        a('v_mul_u32_u24 v3, 24, v3')
        for k in range(4):
            a('v_xor_b32 v%d, v3, v%d', vWA + k, vWA + k)
        a('v_mov_b32 v108, v1')
    a('v_lshrrev_b32 v2, 5, v%d', vLANE)
    a('v_mul_u32_u24 v2, %d, v2', VROW)
    a('v_lshl_add_u32 v108, v108, 4, v2')
    a('s_sub_u32 s76, s76, 20')
    a('s_lshl_b32 s76, s76, 10')
    a('s_add_u32 s76, s76, s74')
    a('s_add_u32 s76, s76, %d', VOFF)
    for k in range(1, 4):
        a('s_add_u32 s%d, s76, %d', 76 + k, 2 * VROW * k)
    ms = a_qloop(True)
    work = []
    n = 0
    for T in range(2):
        for Tc in range(2):
            for m in range(2):
                P = 120 + 4 * n
                n += 1
                acc = (2 * T + Tc) * 16 + 8 * m
                work += ['v_cvt_pk_bf16_f32 v%d, v%d, v%d' % (P + q, acc + 2 * q, acc + 2 * q + 1) for q in range(4)]
                work.append('buffer_store_dwordx4 %s, v108, s[%d:%d], s%d offen offset:%d QSC' % (v(P, 4), RWS, RWS + 3, 76 + 2 * T + m, 512 * Tc))
    tailweave(ms, work)
    if DIAG:
        nstamp['A'].pop()
    stamp('A', 'qloop')

def a_qphase():
    a('s_cmp_ge_u32 s%d, 10', sCG)
    a('s_cbranch_scc1 L_qV')
    if OPT['q16']:
        q16_qk()
    else:
        q32_qk()
    a('s_branch L_qdone')
    a('.PAD L_qV L_pgV')
    a.label('L_qV')
    a('s_cmp_eq_u32 s%d, 15', sCG)
    a('s_cbranch_scc0 L_qV2')
    a('s_lshl_b32 s76, s%d, 4', sRB)
    a('v_mov_b32 v16, s76')
    a('v_mov_b32 v17, 1')
    a('s_waitcnt vmcnt(%d)', 2 if OPT['w7pre'] else 0)
    a('s_barrier')
    a('s_cmp_eq_u32 s%d, 0', sW)
    a('s_cbranch_scc0 L_nosig')
    a('s_mov_b64 exec, 1')
    a('global_store_dword v16, v17, s[%d:%d] sc1', sDBG, sDBG + 1)
    a('s_mov_b64 exec, -1')
    a.label('L_nosig')
    if OPT['tlb']:
        a('v_lshlrev_b32 v1, %d, v%d', OPT['tlb'], vLANE)
        a('s_lshl_b32 s76, s%d, %d', sW, OPT['tlb'] + 6)
        srd(R4, sOUT, 2048 * 1280 * 4)
        a('buffer_load_dword v111, v1, s[%d:%d], s76 offen sc1', RWS, RWS + 3)
        a('buffer_load_dword v111, v1, s[%d:%d], s76 offen sc1', R4, R4 + 3)
        a('v_min_u32 v1, 12, v%d', vLANE)
        a('v_lshlrev_b32 v1, 16, v1')
        a('v_mov_b32 v2, 0')
        for p in (14, sCRE, sCIM):
            a('global_load_dword v111, v1, s[%d:%d]', p, p + 1)
        a('global_load_dword v111, v2, s[%d:%d]', sDSK, sDSK + 1)
    if OPT['l2pre']:
        a('s_barrier')
        a('s_and_b32 s76, s%d, 1', sI)
        a('s_lshl1_add_u32 s76, s76, s%d', sCW)
        a('s_and_b32 s77, s%d, 1', sXCD)
        a('s_lshl2_add_u32 s76, s77, s76')
        a('s_mul_i32 s76, s76, %d', 80 * 1280)
        a('v_min_u32 v1, 39, v%d', vLANE)
        a('v_mul_u32_u24 v1, 1280, v1')
        a('v_add_u32 v2, %d, v1', 40 * 1280)
        for hf in range(2):
            a('s_and_b32 s77, s%d, 1', sI)
            a('s_lshl1_add_u32 s77, s77, s%d', sCW)
            a('s_lshl1_add_u32 s77, s77, %d', hf)
            a('s_mul_i32 s77, s77, 5')
            a('s_lshr_b32 s77, s77, 2')
            a('s_add_u32 s78, s%d, 1', sXCD)
            a('s_lshr_b32 s78, s78, 1')
            a('s_add_u32 s%d, s77, s78', 80 + hf)
        for d in (4, 9, 1, 6, 3, 8)[:OPT['l2pre']]:
            for hf in range(2):
                a('s_add_u32 s77, s%d, %d', 80 + hf, d)
                for _ in range(2):
                    a('s_cmp_ge_u32 s77, 10')
                    a('s_cselect_b32 s78, 10, 0')
                    a('s_sub_u32 s77, s77, s78')
                a('s_lshl_b32 s77, s77, 7')
                a('s_add_u32 s77, s77, s76')
                a('buffer_load_dword v111, v%d, s[%d:%d], s77 offen', 1 + hf, R6, R6 + 3)
    if OPT['xpre']:
        a('s_and_b32 s76, s%d, 1', sI)
        a('s_lshl1_add_u32 s76, s76, s%d', sTW)
        a('s_xor_b32 s77, s76, %d', OPT['flip'])
        a('s_mul_i32 s77, s77, 5')
        a('s_lshr_b32 s77, s77, 1')
        a('s_add_u32 s78, s%d, 9', sXCD)
        a('s_lshr_b32 s78, s78, 1')
        a('s_add_u32 s77, s77, s78')
        a('s_mul_i32 s78, s%d, 5', sCW)
        a('s_add_u32 s77, s77, s78')
        for _ in range(2):
            a('s_cmp_ge_u32 s77, 10')
            a('s_cselect_b32 s78, 10, 0')
            a('s_sub_u32 s77, s77, s78')
        a('s_lshl_b32 s77, s77, 7')
        a('s_and_b32 s78, s%d, -4', sRB)
        a('s_add_u32 s76, s76, s78')
        a('s_mul_i32 s76, s76, %d', 128 * 1280)
        a('s_add_u32 s77, s77, s76')
        a('v_mul_u32_u24 v3, 1280, v%d', vLANE)
        a('buffer_load_dword v111, v3, s[%d:%d], s77 offen', R5, R5 + 3)
        a('s_add_u32 s77, s77, %d', 64 * 1280)
        a('buffer_load_dword v111, v3, s[%d:%d], s77 offen', R5, R5 + 3)
    if OPT['wopack']:
        a_pack_wo()
    for _ in range(9 if OPT['l2pre'] else 10):
        a('s_barrier')
    if DIAG:
        nstamp['A'].pop()
    stamp('A', 'qloop')
    a('s_branch L_qdone')
    a.label('L_qV2')
    if OPT['q16']:
        q16_v()
    else:
        q32_v()
    if OPT['pgalign']:
        a('s_branch L_qdone')
    a('.PAD L_qdone L_pgO')
    a.label('L_qdone')
    if OPT['amark'] == 2:
        a_mark()

vO, vS = 0, 64
KV = [128, 156]
K1A, K1B, K2, VA0, VA1, VB0, VB1 = 0, 4, 8, 12, 16, 20, 24
vQ1, vQ2 = 184, 200
vK1, vK2, vV, vIDX, vNC, vM = 208, 209, 210, 214, 216, 220
vT = 224
vMG = 240
sQH, sKH, sODD, sP5, sOFF, sKV0, sPASS, sCNT = 76, 77, 78, 79, 80, 93, 82, 83
sKVB, sKVE = 70, 71

def a_att_setup():
    a('s_and_b32 s%d, s%d, 1', sQH, sW)
    a('s_lshr_b32 s%d, s%d, 1', sKH, sW)
    a('s_and_b32 s%d, s%d, 1', sODD, sHD)
    a('s_lshr_b32 s85, s%d, 1', sHD)
    a('s_mul_i32 s%d, s85, 5', sP5)
    a('s_mul_i32 s%d, s%d, %d', sKVB, sKH, 16 * BLK)
    a('s_add_u32 s%d, s%d, %d', sKVE, sKVB, 16 * BLK)
    a('s_and_b32 s86, s%d, %d', sQB, OPT['rotm'])
    a('s_mul_i32 s86, s86, %d', 2 * BLK * OPT['rot'])
    a('s_add_u32 s%d, s%d, s86', sKV0, sKVB)
    srd(R3, sWS, 's%d' % sKVE)
    srd(R4, sOUT, 2048 * 1280 * 4)
    a('s_mov_b32 s%d, 0', sPASS)
    i, h, t, x = vT, vT + 1, vT + 2, vT + 3
    a('v_and_b32 v%d, 31, v%d', i, vLANE)
    a('v_lshrrev_b32 v%d, 5, v%d', h, vLANE)
    tau(t, i, x)
    a('s_mul_i32 s86, s%d, 3', sODD)
    a('s_add_u32 s86, s86, s%d', sP5)
    a('s_lshl_b32 s87, s86, 10')
    a('v_lshl_add_u32 v%d, v%d, 10, s87', x, h)
    a('v_lshl_add_u32 v%d, v%d, 4, v%d', vT + 4, i, x)
    a('v_lshl_add_u32 v%d, v%d, 4, v%d', vK1, i if OPT['klin'] else t, x)
    a('v_add_u32 v%d, %d, v%d', vK1, 80 * 1024, vK1)
    a('s_add_u32 s87, s%d, 2', sP5)
    if OPT['q16']:
        a('s_xor_b32 s88, s87, s%d', sODD)
        a('s_and_b32 s88, s88, 1')
        a('s_lshl1_add_u32 s87, s87, s88')
    else:
        a('s_lshl1_add_u32 s87, s87, s%d', sODD)
    a('s_lshl_b32 s87, s87, 9')
    a('v_lshl_add_u32 v%d, v%d, 4, s87', vT + 5, i)
    a('v_mov_b32 v%d, 0x%x', x, OOB)
    a('v_cndmask_b32 v%d, v%d, v%d, s[%d:%d]', vT + 5, vT + 5, x, sHI, sHI + 1)
    a('s_add_u32 s87, s87, %d', 80 * 1024)
    a('v_lshl_add_u32 v%d, v%d, 4, s87', vK2, i if OPT['klin'] else t)
    a('v_mov_b32 v%d, %d', x, 160 * 1024)
    a('v_cndmask_b32 v%d, v%d, v%d, s[%d:%d]', vK2, vK2, x, sHI, sHI + 1)
    a('s_mul_i32 s86, s%d, 20', sHD)
    a('s_lshl2_add_u32 s87, s%d, s86', sODD)
    a('s_lshl_b32 s88, s%d, 4', sODD)
    a('s_sub_u32 s88, s86, s88')
    a('v_add_u32 v%d, s87, v%d', vV, t)
    a('v_add_u32 v%d, s88, v%d', x, i)
    a('v_cmp_le_u32 vcc, 16, v%d', i)
    a('v_mov_b32 v%d, %d', vT + 6, VOFF + 640 * 16)
    a('s_nop 0')
    a('v_cndmask_b32 v%d, v%d, v%d, vcc', vV, vV, x)
    a('v_cmp_le_u32 vcc, 20, v%d', i)
    a('v_mul_u32_u24 v%d, %d, v%d', x, VROW, h)
    a('v_add_u32 v%d, %d, v%d', x, VOFF, x)
    a('v_lshl_add_u32 v%d, v%d, 4, v%d', vV, vV, x)
    a('v_cndmask_b32 v%d, v%d, v%d, vcc', vV, vV, vT + 6)
    a('v_cmp_le_u32 vcc, %d, v%d', 21 if OPT['vzero'] else 24, i)
    a('v_mov_b32 v%d, 0x%x', x, OOB)
    a('v_mov_b32 v%d, 0xdddd', vIDX)
    a('v_cndmask_b32 v%d, v%d, v%d, vcc', vV, vV, x)
    for k in range(1, 4):
        a('v_add_u32 v%d, %d, v%d', vV + k, 2 * VROW * k, vV)
    a('s_mul_i32 s87, s85, 40')
    a('s_lshl4_add_u32 s87, s%d, s87', sODD)
    a('s_add_u32 s88, s87, 23')
    a('s_lshr_b32 s87, s87, 7')
    a('s_lshr_b32 s88, s88, 7')
    a('s_add_u32 s89, s86, 19')
    a('s_lshr_b32 s86, s86, 7')
    a('s_lshr_b32 s89, s89, 7')
    a('v_lshrrev_b32 v%d, 4, v%d', x, vLANE)
    a('s_add_u32 s90, s87, 5')
    a('v_mov_b32 v%d, s90', vF1A)
    for sel, (reg, add) in enumerate(((88, 5), (86, 10), (89, 10))):
        a('s_add_u32 s90, s%d, %d', reg, add)
        a('v_cmp_eq_u32 vcc, %d, v%d', sel + 1, x)
        a('v_mov_b32 v%d, s90', vT + 6)
        a('s_nop 0')
        a('v_cndmask_b32 v%d, v%d, v%d, vcc', vF1A, vF1A, vT + 6)
    a('v_and_b32 v%d, 15, v%d', vT + 6, vLANE)
    a('v_lshl_add_u32 v%d, v%d, 4, v%d', vF1A, vF1A, vT + 6)
    a('v_lshlrev_b32 v%d, 7, v%d', vF1A, vF1A)
    a('v_mov_b32 v%d, s87', vF1A - 1)
    a('v_mov_b32 v%d, s88', vT + 6)
    a('v_cndmask_b32 v%d, v%d, v%d, s[%d:%d]', vF1A - 1, vF1A - 1, vT + 6, sHI, sHI + 1)
    a('v_bfe_u32 v%d, v%d, 4, 1', vT + 6, vLANE)
    a('v_lshl_add_u32 v%d, v%d, 4, v%d', vF1A - 1, vF1A - 1, vT + 6)
    a('s_lshl_b32 s90, s%d, 1', sQB)
    a('v_add_lshl_u32 v%d, v%d, s90, 7', vF1A - 1, vF1A - 1)
    a('v_and_b32 v%d, 3, v%d', vAPW, vLANE)
    a('v_lshlrev_b32 v%d, 8, v%d', vAPW, vAPW)
    a('v_lshlrev_b32 v%d, 2, v%d', vAPW + 1, vLANE)
    a('v_add_u32 v%d, %d, v%d', vAPW + 1, L_PW, vAPW + 1)
    a('v_add_u32 v%d, v%d, v%d', vAPW, vAPW, vAPW + 1)
    a('s_lshl1_add_u32 s90, s%d, s%d', sQB, sQH)
    a('s_lshl1_add_u32 s90, s90, s%d', sKH)
    a('s_mul_i32 s92, s90, %d', BLK)
    a('s_xor_b32 s91, s90, 1')
    a('s_mul_i32 s91, s91, %d', BLK)
    a('s_mov_b32 s10, 0x%x', f2u(2.0 ** -4))
    a('s_mov_b32 s11, 0x%x', f2u(2.0 ** 72))
    a('s_mul_i32 s36, s%d, %d', sW, REGSZ)
    a('s_add_u32 s36, s36, %d', L_REG + 8192)
    a('s_xor_b32 s37, s%d, 2', sW)
    a('s_mul_i32 s37, s37, %d', REGSZ)
    a('s_add_u32 s37, s37, %d', L_REG + 8192)
    a('v_lshl_add_u32 v%d, v%d, 4, s36', vMG, vLANE)
    a('v_lshl_add_u32 v%d, v%d, 3, s36', vMG + 1, vLANE)
    a('v_lshl_add_u32 v%d, v%d, 4, s37', vMG + 2, vLANE)
    a('v_lshl_add_u32 v%d, v%d, 3, s37', vMG + 3, vLANE)
    a('v_xor_b32 v%d, 512, v%d', vMG + 4, vPW)
    a('v_add_u32 v%d, 1024, v%d', vMG + 5, vAPW)
    if not OPT['amark']:
        a('v_bfe_u32 v%d, v%d, 4, 1', x, vLANE)
        a('v_mul_u32_u24 v%d, %d, v%d', x, OBLK, x)
        a('v_and_b32 v%d, 15, v%d', t, vLANE)
        a('v_lshl_add_u32 v%d, v%d, 4, v%d', x, t, x)
        a('v_mul_u32_u24 v%d, %d, v%d', t, 2 * OBLK, h)
        a('v_add_u32 v%d, v%d, v%d', vMG + 7, t, x)
        a('v_lshl_add_u32 v%d, v%d, 8, v%d', vMG + 6, h, x)
        a('s_mul_i32 s40, s90, %d', 4 * OBLK)
        a('s_add_u32 s40, s40, 0x%x', WS_O)
        a('s_lshl_b32 s41, s%d, 8', sP5)
        a('s_add_u32 s40, s40, s41')
        a('s_mul_i32 s41, s%d, 768', sODD)
        a('s_add_u32 s41, s41, s40')
        a('s_add_u32 s42, s41, %d', 2 * OBLK)
        a('s_lshl3_add_u32 s40, s%d, s40', sODD)
    a('s_lshl_b32 s43, s90, 5')
    a('s_add_u32 s43, s43, s%d', sHD)
    flagaddr(43, 43, F4, 0)

def a_mark():
    i, h, t, x = vT, vT + 1, vT + 2, vT + 3
    a('s_lshl1_add_u32 s90, s%d, s%d', sQB, sCW)
    a('s_lshl1_add_u32 s90, s90, s%d', sTW)
    a('s_and_b32 s%d, s%d, 1', sODD, sHD)
    a('s_lshr_b32 s85, s%d, 1', sHD)
    a('s_mul_i32 s%d, s85, 5', sP5)
    a('v_lshrrev_b32 v%d, 5, v%d', h, vLANE)
    a('v_bfe_u32 v%d, v%d, 4, 1', x, vLANE)
    a('v_mul_u32_u24 v%d, %d, v%d', x, OBLK, x)
    a('v_and_b32 v%d, 15, v%d', t, vLANE)
    a('v_lshl_add_u32 v%d, v%d, 4, v%d', x, t, x)
    a('v_mul_u32_u24 v%d, %d, v%d', t, 2 * OBLK, h)
    a('v_add_u32 v%d, v%d, v%d', vMG + 7, t, x)
    a('v_lshl_add_u32 v%d, v%d, 8, v%d', vMG + 6, h, x)
    a('s_mul_i32 s40, s90, %d', 4 * OBLK)
    a('s_add_u32 s40, s40, 0x%x', WS_O)
    a('s_lshl_b32 s41, s%d, 8', sP5)
    a('s_add_u32 s40, s40, s41')
    a('s_mul_i32 s41, s%d, 768', sODD)
    a('s_add_u32 s41, s41, s40')
    a('s_add_u32 s42, s41, %d', 2 * OBLK)
    a('s_lshl3_add_u32 s40, s%d, s40', sODD)
    for k in range(4):
        a('v_mov_b32 v%d, -1', 24 + k)
    a('buffer_store_dwordx4 v[24:27], v%d, s[%d:%d], s41 offen sc1', vMG + 6, RWS, RWS + 3)
    a('buffer_store_dwordx4 v[24:27], v%d, s[%d:%d], s42 offen sc1', vMG + 6, RWS, RWS + 3)
    a('buffer_store_dwordx2 v[24:25], v%d, s[%d:%d], s40 offen offset:512 sc1', vMG + 7, RWS, RWS + 3)

def a_b1_setup():
    a('s_mov_b64 s[14:15], s[%d:%d]', sWO, sWO + 1)
    b1_sources(R5, R6, vAB, vAB + 4, 7, 5, 12, 3 if OPT['nodup'] else 2)
    a('s_lshl2_add_u32 s4, s%d, s%d', sRB, sW)
    a('s_mul_i32 s4, s4, %d', 32 * 1280)
    a('s_lshl_b32 s6, s%d, 12', sW)
    stagger(8, 9, OPT['st10'], OPT['flip'], OPT['stagb'])

def a_handoff():
    first = 10 + OPT['st10']
    nst = 8
    chunks = []
    if OPT['alate'] == 2:
        n0 = len(a.lines)
        a_att_setup()
        late = a.lines[n0:]
        del a.lines[n0:]
        if OPT['aearly']:
            late = late[:5] + late[OPT['aearly']:]
        nch = (OPT['eb'] - OPT['adep'] + 1 if OPT['eb'] else OPT['pollat']) - first
        k = 0
        for c in range(nch):
            e = len(late) * (c + 1) // nch
            while e < len(late) and any('cndmask' in x and 'vcc' in x for x in late[e:e + 4]):
                e += 1
            chunks.append(late[k:e])
            k = e
        chunks[-1].append('s_mov_b32 s85, 0x%x' % F1)
        nb = first - 10
        seq = OPT['seq'] or {1: 'bss', 2: 'bsbs', 3: 'bbsbs', 4: 'bbsbsb'}[nb]
        assert seq.count('b') == nb and seq.count('s') == 2
        kk = 0
        for ch in seq:
            if ch == 'b':
                a('s_barrier')
            elif ch == 'z':
                for i_ in range(64):
                    a('v_mov_b32 v%d, 0', vO + i_)
            else:
                if kk == 0 and OPT['fine'] == 1:
                    stamp('A', 'c11')
                a_b1stage(first + kk)
                if OPT['fine'] == 1:
                    stamp('A', 'iss%d' % (12 + kk))
                kk += 1
        if 'z' not in seq:
            for i_ in range(64):
                a('v_mov_b32 v%d, 0', vO + i_)
    else:
        for t in range(10, first):
            a('s_barrier')
            if t == 10:
                if OPT['alate']:
                    a_b1_setup()
                else:
                    for i_ in range(64):
                        a('v_mov_b32 v%d, 0', vO + i_)
        if OPT['fine'] == 1:
            stamp('A', 'c11')
        a_b1stage(first)
        if OPT['fine'] == 1:
            stamp('A', 'iss12')
        if OPT['alate']:
            a_att_setup()
            for i_ in range(64):
                a('v_mov_b32 v%d, 0', vO + i_)
        a_b1stage(first + 1)
        if OPT['fine'] == 1:
            stamp('A', 'iss13')
    lds_ = ['buffer_load_dword v%d, v%d, s[%d:%d], s85 offen sc1' % (104 + k, vF1A - k, RWS, RWS + 3) for k in range(2)]
    a('s_mov_b32 s85, 0x%x', F1)
    NI = 7 - OPT['nodup']
    last = first + 1
    EB = OPT['eb']
    def look(tag):
        a('s_cmp_eq_u32 s%d, 0', sW)
        a('s_cbranch_scc0 L_nopoll%s', tag)
        for l in lds_:
            a(l)
        a.label('L_nopoll%s' % tag)
    def publish(tag):
        a('s_cmp_eq_u32 s%d, 0', sW)
        a('s_cbranch_scc0 L_c%s', tag)
        a('v_and_b32 v104, v104, v105')
        a('v_cmp_eq_u32 vcc, 0, v104')
        a('s_cbranch_vccnz L_c%s', tag)
        setpw(4, 102)
        a('s_waitcnt lgkmcnt(0)')
        a.label('L_c%s' % tag)
    for t in range(first, 20):
        a('s_waitcnt vmcnt(%d)', NI * (last - t))
        if t == first:
            stamp('A', 'qdrain')
        if t == 19:
            publish('19')
        if EB and t == EB:
            publish('e')
        a('s_barrier')
        if EB and t == EB:
            assert last == 19 and not chunks
            a('ds_read_b32 v102, v%d', vAPW + 1)
            a('s_waitcnt lgkmcnt(0)')
            a('v_cmp_gt_u32 vcc, 4, v102')
            a('s_cbranch_vccnz L_notyet')
            batch1()
            for t2 in range(t + 1, 20):
                a('s_waitcnt vmcnt(%d)', NI * (19 - t2) + 8)
                a('s_barrier')
            stamp('A', 'b1load')
            stamp('A', 'f1')
            if DIAG:
                del nstamp['A'][-2:]
            a('s_branch L_att2')
            a.label('L_notyet')
        if EB and t == EB - OPT['adep'] + 1:
            look('e')
        while last < min(19, t + OPT['adep']):
            last += 1
            a_b1stage(last)
        if chunks:
            a.lines.extend(chunks.pop(0))
        if t == OPT['pollat']:
            look('')
    stamp('A', 'b1load')
    a('s_cmp_eq_u32 s%d, 0', sW)
    a('s_cbranch_scc0 L_f1wait')
    a('s_cbranch_vccz L_f1go')
    a('s_mov_b64 exec, vcc')
    pollflags(lds_, 104, sleep=OPT['psleep'])
    setpw(4, 102)
    a.label('L_f1wait')
    waitpw(vAPW + 1, 4, 102, sleep=OPT['gsleep'])
    a.label('L_f1go')
    stamp('A', 'f1')

def kvload0(st, what, soff):
    if what in (K1A, K1B):
        r = KV[st] + what
        return 'buffer_load_dwordx4 %s, v%d, s[%d:%d], s%d offen offset:%d sc1' % (v(r, 4), vK1, R3, R3 + 3, soff, 512 if what == K1B else 0)
    if what in ('2A', '2B'):
        tl = what == '2B'
        return 'buffer_load_dwordx2 %s, v%d, s[%d:%d], s%d offen offset:%d sc1' % (v(KV[st] + K2 + 2 * tl, 2), vK2, R3, R3 + 3, soff, 8 * tl)
    r = KV[st] + what
    if what == K2:
        return 'buffer_load_dwordx4 %s, v%d, s[%d:%d], s%d offen sc1' % (v(r, 4), vK2, R3, R3 + 3, soff)
    return 'buffer_load_dwordx4 %s, v%d, s[%d:%d], s%d offen sc1' % (v(r, 4), vV + (what - VA0) // 4, R3, R3 + 3, soff)

def kvload(st, what, soff):
    return kvload0(st, what, soff).replace(' sc1', [' sc1', '', ' sc1 nt'][OPT['kvplain']])

def qk1(st, tile, qt, sb, first=True):
    return 'v_mfma_f32_32x32x16_bf16 %s, %s, %s, %s' % (v(vS + 16 * sb, 16), v(KV[st] + (K1B if tile else K1A), 4), v(vQ1 + 4 * qt, 4),
                                                       '0' if first else v(vS + 16 * sb, 16))

def qk2(st, tile, qt, sb, first=False):
    return 'v_mfma_f32_32x32x8bf16_1k %s, %s, %s, %s' % (v(vS + 16 * sb, 16), v(KV[st] + K2 + 2 * tile, 2), v(vQ2 + 2 * qt, 2),
                                                        '0' if first else v(vS + 16 * sb, 16))

def pv(st, tile, qt, m):
    return 'v_smfmac_f32_32x32x32_bf16 %s, %s, %s, v%d' % (v(vO + 16 * qt, 16), v(KV[st] + VA0 + 8 * tile + 4 * m, 4), v(vS + 16 * qt + 8 * m, 8), vIDX)

def maxtree(dst, src, acc):
    if acc:
        a('v_max3_f32 v%d, v%d, v%d, v%d', dst, dst, src, src + 1)
    else:
        a('v_max_f32 v%d, v%d, v%d', dst, src, src + 1)
    for k in range(2, 16, 2):
        a('v_max3_f32 v%d, v%d, v%d, v%d', dst, dst, src + k, src + k + 1)

def qloads():
    for lp in range(2):
        for T in range(2):
            a('buffer_load_dwordx4 %s, v%d, s[%d:%d], s%d offen offset:%d sc1', v(vQ1 + 8 * lp + 4 * T, 4), vT + 4, RWS, RWS + 3, 91 + lp, 512 * T)
    for lp in range(2):
        a('buffer_load_dwordx4 %s, v%d, s[%d:%d], s%d offen sc1', v(vQ2 + 4 * lp, 4), vT + 5, RWS, RWS + 3, 91 + lp)

def batch1():
    qloads()
    for w_ in (K1A, K2):
        a(kvload0(0, w_, sKV0))

def a_attention():
    qloads()
    a.label('L_attload')
    for w_ in (K1A, K2):
        a(kvload0(0, w_, sKV0))
    a.label('L_att2')
    a('s_mov_b32 s%d, 0x40000000', sCNT)
    a('s_add_u32 s%d, s%d, %d', sOFF, sKV0, BLK)
    for i in range(4):
        a('v_mov_b32 v%d, 0', KV[1] + VB1 + i)
    if OPT['kvsplit']:
        a('s_waitcnt vmcnt(%d)', OPT['kvsplit'] - 1)
    for w_ in (VA0, VA1, K1B, VB0, VB1):
        a(kvload0(0, w_, sKV0))
    if not OPT['s1late']:
        for w_ in (K1A, VA0, VA1, K1B, K2, VB0):
            a(kvload0(1, w_, sOFF))
    a('s_waitcnt vmcnt(%d)', 5 if OPT['s1late'] else 11)
    stamp('A', 'qkload')
    a('s_cmp_eq_u32 s%d, 0', sPASS)
    a('s_cbranch_scc0 L_setc')
    if OPT['fastpro']:
        a.c('stand-in for the row maximum: the largest score among seven keys of the first tile (checked after the loop)')
        def ch(t):
            S, m, h = vS + 16 * t, vM + t, vT + 8 + t
            return ['v_max3_f32 v%d, v%d, v%d, v%d' % (m, S, S + 1, S + 2),
                    'v_max3_f32 v%d, v%d, v%d, v%d' % (m, m, S + 5, S + 8),
                    'v_max3_f32 v%d, v%d, v%d, v%d' % (m, m, S + 11, S + 14),
                    'v_cvt_pk_bf16_f32 v%d, -v%d, -v%d' % (h, m, m),
                    'v_and_b32 v%d, 0xffff0000, v%d' % (h, h),
                    'v_sub_f32 v%d, -v%d, v%d' % (m, m, h),
                    'v_cvt_pk_bf16_f32 v%d, v%d, v%d' % (m, h, m),
                    'v_cndmask_b32 v%d, v%d, v%d, s[%d:%d]' % (vQ2 + 2 * t, vQ2 + 2 * t, m, sHI, sHI + 1)]
        def nc(t):
            m, h = vM + t, vT + 8 + t
            return ['v_and_b32 v%d, 0xffff0000, v%d' % (m, m),
                    'v_add_f32 v%d, v%d, v%d' % (vNC + t, m, h),
                    'v_add_f32 v%d, v%d, v%d' % (m, m, h)]
        sw = lambda t: 'v_permlane32_swap_b32 v%d, v%d' % (vM + t, vNC + t)
        seq = [qk1(0, 0, 0, 0), qk2(0, 0, 0, 0), qk1(0, 0, 1, 1), qk2(0, 0, 1, 1), qk1(0, 0, 2, 2), 's_nop 6', qk2(0, 0, 2, 2), 's_nop 0']
        seq += ch(0)[:5] + [qk1(0, 0, 3, 3)] + ch(0)[5:] + ch(1)[:3] + [qk2(0, 0, 3, 3)] + ch(1)[3:] + nc(0)[:1]
        seq += [qk1(0, 0, 0, 0)] + ch(2)[:6] + [qk2(0, 0, 0, 0)] + ch(3)[:3]
        seq += ['v_mov_b32 v%d, 0' % (vS + 48 + 8 + i) for i in range(8)]
        seq += ch(2)[6:] + ch(3)[3:] + nc(0)[1:] + nc(1) + nc(2) + [sw(0)] + nc(3) + [sw(1), sw(2), sw(3)]
        for o in seq:
            a(o)
        a.label('L_loopentry')
    else:
        a.c('stand-in for the row maximum: the maximum over the first key tile (checked after the loop)')
        def tree(qt):
            src = vS + 16 * qt
            return ['v_max_f32 v%d, v%d, v%d' % (vM + qt, src, src + 1)] + \
                   ['v_max3_f32 v%d, v%d, v%d, v%d' % (vM + qt, vM + qt, src + k, src + k + 1) for k in range(2, 16, 2)]
        for qt in range(3):
            a(qk1(0, 0, qt, qt))
            a(qk2(0, 0, qt, qt))
        a(qk1(0, 0, 3, 3))
        a('s_nop 6')
        for o in tree(0)[:4]:
            a(o)
        a(qk2(0, 0, 3, 3))
        for o in tree(0)[4:] + tree(1) + tree(2) + tree(3):
            a(o)
        a.label('L_setc')
        for qt in range(4):
            a('v_mov_b32 v%d, v%d', vT + 8 + qt, vM + qt)
        for qt in range(4):
            a('v_permlane32_swap_b32 v%d, v%d', vM + qt, vT + 8 + qt)
        for qt in range(4):
            a('v_min_f32 v%d, -v%d, -v%d', vM + qt, vM + qt, vT + 8 + qt)
        for qt in range(4):
            a('v_cvt_pk_bf16_f32 v%d, v%d, v%d', vT + 8 + qt, vM + qt, vM + qt)
        for qt in range(4):
            a('v_and_b32 v%d, 0xffff0000, v%d', vT + 8 + qt, vT + 8 + qt)
        for qt in range(4):
            a('v_sub_f32 v%d, v%d, v%d', vM + qt, vM + qt, vT + 8 + qt)
        for qt in range(4):
            a('v_cvt_pk_bf16_f32 v%d, v%d, v%d', vM + qt, vT + 8 + qt, vM + qt)
        for qt in range(4):
            a('v_cndmask_b32 v%d, v%d, v%d, s[%d:%d]', vQ2 + 2 * qt, vQ2 + 2 * qt, vM + qt, sHI, sHI + 1)
        a(qk1(0, 0, 0, 0))
        a(qk2(0, 0, 0, 0))
        for qt in range(4):
            a('v_and_b32 v%d, 0xffff0000, v%d', vM + qt, vM + qt)
        for qt in range(4):
            a('v_add_f32 v%d, v%d, v%d', vNC + qt, vM + qt, vT + 8 + qt)
        for i in range(8):
            a('v_mov_b32 v%d, 0', vS + 48 + 8 + i)
    if OPT['s1late'] == 2:
        a('s_waitcnt vmcnt(2)')
    if OPT['s1late']:
        for w_ in (K1A, VA0, VA1, K1B, K2, VB0):
            a(kvload0(1, w_, sOFF))
    if OPT['s1late'] != 2:
        a('s_waitcnt vmcnt(8)')
    if OPT['tearly'] or OPT['gtouch'] == 1 or OPT['woe'] or OPT['smark'] == 1:
        setpw(5, vT + 8)
    stamp('A', 'attpro')
    if OPT['fine'] == 3:
        base = len(nstamp['A'])
        nstamp['A'] += ['it%d' % i for i in range(16)]
        a('s_mov_b32 s24, %d', base)
    a('.p2align %d', OPT['lalign'])
    for _ in range(OPT['lpad']):
        a('s_nop 0')
    a.label('L_attloop')
    UN = OPT['unroll']
    LEAN = OPT['rot'] == 0 and OPT['lean']
    for dt in range(UN):
        st = dt & 1
        for n in range(8):
            tile, qt = n >> 2, n & 3
            nst, ntile, nqt = (st, (n + 1) >> 2, (n + 1) & 3) if n < 7 else (st ^ 1, 0, 0)
            pst, ptile, pqt = (st, (n - 1) >> 2, (n - 1) & 3) if n > 0 else (st ^ 1, 1, 3)
            def ex(k):
                for e in range(4 * k, 4 * k + 4):
                    a('v_exp_f32 v%d, v%d', vS + 16 * qt + e, vS + 16 * qt + e)
            if n == 7:
                a('s_waitcnt vmcnt(%d)', 40 if OPT['nowait'] else 7)
            X8 = OPT['x8first']
            a(qk2(nst, ntile, nqt, nqt, True) if X8 else qk1(nst, ntile, nqt, nqt))
            if n == 1:
                a('s_add_u32 s%d, s%d, %d', sOFF, sOFF, BLK)
            if n == 2 and not X8:
                a(kvload(st, K1A, sOFF))
            if n == 6:
                a(kvload(st, K2 if X8 else K1B, sOFF))
            if n == 5 and OPT['fine'] == 3:
                a('s_memtime s[98:99]')
                a('s_memrealtime s[100:101]')
            if n == 6 and OPT['fine'] == 3:
                a('s_waitcnt lgkmcnt(0)')
                a('s_mov_b32 m0, s24')
                a('s_add_u32 s25, s24, 32')
                a('v_writelane_b32 v%d, s98, m0', vTS)
                a('s_mov_b32 m0, s25')
                a('s_add_u32 s24, s24, 1')
                a('v_writelane_b32 v%d, s100, m0', vTS)
            ex(0)
            a(qk1(nst, ntile, nqt, nqt, False) if X8 else qk2(nst, ntile, nqt, nqt))
            if n == 2 and X8:
                a(kvload(st, K1A, sOFF))
            if n == 6:
                a(kvload(st, K1B if X8 else K2, sOFF))
            if n == 1 and st == 0 and not LEAN:
                a('s_cmp_eq_u32 s%d, s%d', sOFF, sKVE)
                a('s_cselect_b32 s%d, s%d, s%d', sOFF, sKVB, sOFF)
            ex(1)
            a(pv(pst, ptile, pqt, 1))
            if n == 0:
                a(kvload(st ^ 1, VB1, sOFF))
            if n == 4:
                a(kvload(st, VA1, sOFF))
            if n == 1 and dt == UN - 2 and not LEAN:
                a('s_cmp_eq_u32 s%d, s%d', sOFF, sKV0)
                a('s_cselect_b32 s%d, s%d, s%d', sOFF, sCNT, sOFF)
            if dt == UN - 1 and n == 7:
                a('s_cmp_lt_u32 s%d, s%d', sOFF, sKVE if LEAN else sCNT)
            ex(2)
            if n == 4:
                a('s_waitcnt vmcnt(%d)', 40 if OPT['nowait'] else 10)
            a(pv(st, tile, qt, 0))
            if n == 3:
                a(kvload(st, VA0, sOFF))
            if n == 7:
                a(kvload(st, VB0, sOFF))
            ex(3)
    a('s_cbranch_scc1 L_attloop')
    a('s_nop 0')
    a(pv(1, 1, 3, 1))
    stamp('A', 'attloop')
    if OPT['tprio']:
        a('s_setprio 2')
    a('ds_write_b64 v%d, %s offset:6144', vMG + 1, v(vNC, 2))
    for t in range(2):
        for q in range(3):
            a('ds_write_b128 v%d, %s offset:%d', vMG, v(vO + 16 * t + 4 * q, 4), 1024 * (3 * t + q))
    a('v_mov_b32 v%d, 6', vT + 10)
    a('v_mov_b32 v%d, 7', vT + 11)
    a('v_min3_f32 v%d, v%d, v%d, v%d', vT + 8, vO + 8, vO + 24, vO + 40)
    a('v_add_f32 v%d, v%d, v%d', vT + 9, vO + 8, vO + 24)
    a('v_add_f32 v%d, v%d, v%d', vT + 9, vT + 9, vO + 40)
    a('v_min_f32 v%d, v%d, v%d', vT + 8, vT + 8, vO + 56)
    a('v_add_f32 v%d, v%d, v%d', vT + 9, vT + 9, vO + 56)
    a('v_cmp_nle_f32 s[38:39], s10, v%d', vT + 8)
    a('v_cmp_nge_f32 vcc, s11, v%d', vT + 9)
    a('s_or_b32 s39, s39, vcc_hi')
    if OPT['force_fb']:
        a('s_cmp_eq_u32 s39, s39')
    a('s_cbranch_scc1 L_fallback')
    n0 = len(a.lines)
    a.label('L_fallback')
    a('s_cmp_eq_u32 s%d, 0', sPASS)
    a('s_cbranch_scc0 L_attok')
    a.c('fallback: exact row maximum over this wave\'s keys, then redo the pass')
    a('s_mov_b32 s%d, 1', sPASS)
    a('s_waitcnt vmcnt(0) lgkmcnt(0)')
    a('v_mov_b32 v%d, 0', vT + 8)
    for qt in range(4):
        a('v_cndmask_b32 v%d, v%d, v%d, s[%d:%d]', vQ2 + 2 * qt, vQ2 + 2 * qt, vT + 8, sHI, sHI + 1)
        a('v_mov_b32 v%d, 0xff800000', vM + qt)
    a('s_mov_b32 s%d, s%d', sOFF, sKVB)
    a('s_mov_b32 s%d, 16', sCNT)
    a.label('L_maxloop')
    for w_ in (K1A, K1B, K2):
        a(kvload(0, w_, sOFF))
    a('s_waitcnt vmcnt(0)')
    for tile in range(2):
        for qt in range(4):
            a(qk1(0, tile, qt, qt))
            a(qk2(0, tile, qt, qt))
        a('s_nop 5')
        for qt in range(4):
            maxtree(vM + qt, vS + 16 * qt, True)
    a('s_add_u32 s%d, s%d, %d', sOFF, sOFF, BLK)
    a('s_sub_u32 s%d, s%d, 1', sCNT, sCNT)
    a('s_cmp_lg_u32 s%d, 0', sCNT)
    a('s_cbranch_scc1 L_maxloop')
    for i in range(64):
        a('v_mov_b32 v%d, 0', vO + i)
    a('s_branch L_attload')
    if OPT['fastpro']:
        a.label('L_setc')
        for qt in range(4):
            a('v_mov_b32 v%d, v%d', vT + 8 + qt, vM + qt)
        for qt in range(4):
            a('v_permlane32_swap_b32 v%d, v%d', vM + qt, vT + 8 + qt)
        for qt in range(4):
            a('v_min_f32 v%d, -v%d, -v%d', vM + qt, vM + qt, vT + 8 + qt)
        for qt in range(4):
            a('v_cvt_pk_bf16_f32 v%d, v%d, v%d', vT + 8 + qt, vM + qt, vM + qt)
        for qt in range(4):
            a('v_and_b32 v%d, 0xffff0000, v%d', vT + 8 + qt, vT + 8 + qt)
        for qt in range(4):
            a('v_sub_f32 v%d, v%d, v%d', vM + qt, vM + qt, vT + 8 + qt)
        for qt in range(4):
            a('v_cvt_pk_bf16_f32 v%d, v%d, v%d', vM + qt, vT + 8 + qt, vM + qt)
        for qt in range(4):
            a('v_cndmask_b32 v%d, v%d, v%d, s[%d:%d]', vQ2 + 2 * qt, vQ2 + 2 * qt, vM + qt, sHI, sHI + 1)
        a(qk1(0, 0, 0, 0))
        a(qk2(0, 0, 0, 0))
        for qt in range(4):
            a('v_and_b32 v%d, 0xffff0000, v%d', vM + qt, vM + qt)
        for qt in range(4):
            a('v_add_f32 v%d, v%d, v%d', vNC + qt, vM + qt, vT + 8 + qt)
        for i in range(8):
            a('v_mov_b32 v%d, 0', vS + 48 + 8 + i)
        a('s_branch L_loopentry')
    COLD.extend(a.lines[n0:])
    del a.lines[n0:]
    a.label('L_attok')
    a('ds_write_b32 v%d, v%d', vPW, vT + 10)
    R = vS
    NC2 = vS + 32
    rd = ['ds_read_b64 %s, v%d offset:6144' % (v(NC2, 2), vMG + 3)]
    for t in range(2):
        rd.append('ds_read_b128 %s, v%d offset:%d' % (v(R + 16 * t + 8, 4), vMG + 2, 1024 * (3 * t + 2)))
    for t in range(2):
        for q in range(2):
            rd.append('ds_read_b128 %s, v%d offset:%d' % (v(R + 16 * t + 4 * q, 4), vMG + 2, 1024 * (3 * t + q)))
    if OPT['otag'] and not OPT['amark']:
        a('ds_read_b32 v%d, v%d', vT + 12, vMG + 5)
    waitpw(vMG + 4, 6, vT + 8, extra=rd)
    a('ds_write_b32 v%d, v%d', vPW, vT + 11)
    if OPT['otag'] and not OPT['amark']:
        a('v_cmp_gt_u32 vcc, 14, v%d', vT + 12)
        a('s_cbranch_vccnz L_swait')
        n0 = len(a.lines)
        a.label('L_swait')
        waitpw(vMG + 5, 14, vT + 12)
        a('s_branch L_sready')
        COLD.extend(a.lines[n0:])
        del a.lines[n0:]
        a.label('L_sready')
    f1, f2, l1, l2 = vS + 34, vS + 36, vS + 38, vS + 40
    a('s_waitcnt lgkmcnt(7)')
    for t in range(2):
        a('v_min_f32 v%d, v%d, v%d', l1 + t, vNC + 2 + t, NC2 + t)
    for t in range(2):
        a('v_sub_f32 v%d, v%d, v%d', f1 + t, l1 + t, vNC + 2 + t)
        a('v_sub_f32 v%d, v%d, v%d', f2 + t, l1 + t, NC2 + t)
    for t in range(2):
        a('v_exp_f32 v%d, v%d', f1 + t, f1 + t)
        a('v_exp_f32 v%d, v%d', f2 + t, f2 + t)
    a('s_waitcnt lgkmcnt(5)')
    for t in range(2):
        a('v_mul_f32 v%d, v%d, v%d', l1 + t, f1 + t, vO + 32 + 16 * t + 8)
    for t in range(2):
        a('v_fmac_f32 v%d, v%d, v%d', l1 + t, f2 + t, R + 16 * t + 8)
    for t in range(2):
        a('v_mov_b32 v%d, v%d', l2 + t, l1 + t)
    a('s_nop 0')
    for t in range(2):
        a('v_permlane32_swap_b32 v%d, v%d', l1 + t, l2 + t)
    for t in range(2):
        a('v_rcp_f32 v%d, v%d', l2 + t, l2 + t)
    a('s_waitcnt vmcnt(0) lgkmcnt(0)')
    for t in range(2):
        a('v_mul_f32 v%d, v%d, v%d', f1 + t, f1 + t, l2 + t)
        a('v_mul_f32 v%d, v%d, v%d', f2 + t, f2 + t, l2 + t)
    P = vO
    for t in range(2):
        if OPT['pkmerge']:
            sel = 'op_sel:[%d,0] op_sel_hi:[%d,1]' % (t, t)
            sel3 = 'op_sel:[%d,0,0] op_sel_hi:[%d,1,1]' % (t, t)
            for r in range(0, 12, 2):
                a('v_pk_mul_f32 %s, %s, %s %s', v(vO + 32 + 16 * t + r, 2), v(f1, 2), v(vO + 32 + 16 * t + r, 2), sel)
            for r in range(0, 12, 2):
                a('v_pk_fma_f32 %s, %s, %s, %s %s', v(vO + 32 + 16 * t + r, 2), v(f2, 2), v(R + 16 * t + r, 2), v(vO + 32 + 16 * t + r, 2), sel3)
        else:
            for r in range(12):
                a('v_mul_f32 v%d, v%d, v%d', vO + 32 + 16 * t + r, f1 + t, vO + 32 + 16 * t + r)
            for r in range(12):
                a('v_fmac_f32 v%d, v%d, v%d', vO + 32 + 16 * t + r, f2 + t, R + 16 * t + r)
        for q in range(6):
            a('v_cvt_pk_bf16_f32 v%d, v%d, v%d', P + 8 * t + q, vO + 32 + 16 * t + 2 * q, vO + 32 + 16 * t + 2 * q + 1)
        if OPT['otag']:
            for q in range(4):
                a('v_min_u32 v%d, -2, v%d', P + 8 * t + q, P + 8 * t + q)
        a('buffer_store_dwordx4 %s, v%d, s[%d:%d], s%d offen sc1', v(P + 8 * t, 4), vMG + 6, RWS, RWS + 3, 41 + t)
    if not OPT['otag']:
        a('s_nop 0')
    a('v_permlane32_swap_b32 v%d, v%d', P + 4, P + 12)
    a('v_permlane32_swap_b32 v%d, v%d', P + 5, P + 13)
    if OPT['otag']:
        a('v_min_u32 v%d, -2, v%d', P + 4, P + 4)
        a('v_min_u32 v%d, -2, v%d', P + 5, P + 5)
    a('buffer_store_dwordx2 %s, v%d, s[%d:%d], s40 offen offset:512 sc1', v(P + 4, 2), vMG + 7, RWS, RWS + 3)
    if OPT['otag']:
        setflag(43, 20)
    if OPT['tprio'] == 2:
        a('s_setprio 0')
    if OPT['pgate']:
        setpw(8, vT + 8)
        a('ds_read_b32 v%d, v%d', 99, vAPW)
    stamp('A', 'merge')

def ostore(j, r):
    return 'buffer_store_dword v%d, v%d, s[%d:%d], s86 offen offset:%d%s' % (80 + 4 * j + r, 244 + r, R4, R4 + 3, 64 * j, OSC)

def p3_static(vA0, vA1, vOA, acc):
    EP = OPT['epoll']
    TAG = OPT['otag']
    if TAG:
        stamp('A', 'odrain')
        a.label('L_p3redo')
    elif not EP:
        a('s_waitcnt vmcnt(0)')
        stamp('A', 'odrain')
        setflag(43, 1)
    NB = 7
    def reads(ks):
        f = 100 + 20 * (ks % NB)
        base, off = (vA0, ks * 5120) if ks < 10 else (vA1, (ks - 10) * 5120)
        if OPT['fline'] & 1:
            return ['ds_read_b64_tr_b16 %s, v%d offset:%d' % (v(f + 4 * j + 2 * rd, 2), base + (6 if j == 4 else 0),
                                                             off + 1280 * rd + 32 * (j & 3)) for j in range(5) for rd in range(2)]
        return ['ds_read_b64_tr_b16 %s, v%d offset:%d' % (v(f + 4 * j + 2 * rd, 2), base, off + 1280 * rd + 32 * j)
                for j in range(5) for rd in range(2)]
    pl = 'buffer_load_dword v252, v%d, s[%d:%d], s88 offen sc1' % (vOA + 1, RWS, RWS + 3)
    def oload(ks):
        a('buffer_load_dwordx4 %s, v%d, s[%d:%d], s85 offen offset:%d sc1', v(4 * ks, 4), vOA, RWS, RWS + 3, 1024 * (ks & 3))
        if ks & 3 == 3 and ks < 19:
            a('s_add_u32 s85, s85, 4096')
    LEAD = OPT['olead']
    touch_ = 'buffer_load_dword v251, v248, s[%d:%d], s85 offen sc1' % (RWS, RWS + 3)
    NP = OPT['npre'] if EP else 0
    rest = [r for ks in range(NP, NB) for r in reads(ks)]
    if EP:
        for ks in range(NP):
            for r in reads(ks):
                a(r)
        if OPT['pgate']:
            a('s_waitcnt lgkmcnt(0)')
            a('v_cmp_gt_u32 vcc, 8, v99')
            a('s_cbranch_vccz L_epoll')
            a('s_waitcnt vmcnt(0)')
            stamp('A', 'odrain')
            if DIAG:
                nstamp['A'].pop()
            setflag(43, 2)
            a('s_mov_b32 vcc_lo, -1')
            a('s_mov_b32 vcc_hi, 0')
            a('s_branch L_f4late')
            a.label('L_epoll')
        a('s_mov_b32 exec_hi, 0')
        a(pl)
        a('s_waitcnt vmcnt(1)')
        stamp('A', 'odrain')
        setflag(43, 2)
        a('s_mov_b32 exec_hi, 0')
        a('s_waitcnt vmcnt(1)')
        a('v_cmp_eq_u32 vcc, 0, v252')
        a('s_mov_b64 exec, -1')
        a('s_cbranch_vccnz L_f4late')
        stamp('A', 'f4')
        if DIAG:
            nstamp['A'].pop()
        a(touch_)
        k = 0
        for ks in range(LEAD):
            oload(ks)
            while k < len(rest) * (ks + 1) // LEAD:
                a(rest[k])
                k += 1
        a('s_branch L_p3go')
        a.label('L_f4late')
    for r in rest:
        a(r)
    if OPT['pgate'] and TAG != 1:
        a('s_mov_b64 s[38:39], vcc')
        waitpw(vAPW, 8, 99, sleep=OPT['gsleep'])
        a('s_mov_b64 vcc, s[38:39]')
    if EP:
        a('s_mov_b64 exec, vcc')
    else:
        a('s_mov_b32 exec_hi, 0')
    pollflags([pl], 252, sleep=OPT['psleep4'])
    stamp('A', 'f4')
    if OPT['otouch']:
        a(touch_)
    for ks in range(LEAD):
        oload(ks)
    a.label('L_p3go')
    a('s_waitcnt lgkmcnt(0)')
    nl = LEAD
    a('v_mov_b32 v250, 9')
    lq = []
    if nl == 20 or OPT['yearly']:
        a('ds_write_b32 v%d, v250', vPW)
    pend = []
    nck = 0
    JO = OPT['jout'] or 20
    for ks in range(JO):
        w_ = 's_waitcnt vmcnt(%d)' % (nl - 1 - ks)
        if ks in lq:
            idx = max(i for i, x in enumerate(lq) if x == ks)
            w_ += ' lgkmcnt(%d)' % min(15, len(lq) - 1 - idx)
        a(w_)
        if OPT['fine'] in (1, 2) and ks in (0, 10, 19):
            stamp('A', 'p3k%d' % ks)
        rr = reads(ks + NB) if ks + NB < 20 else []
        for j in range(5):
            a('v_mfma_f32_16x16x32_bf16 %s, %s, %s, %s', v(acc + 4 * j, 4), v(4 * ks, 4), v(100 + 20 * (ks % NB) + 4 * j, 4),
              '0' if ks == 0 else v(acc + 4 * j, 4))
            for tg, r in pend:
                a(r)
                lq.append(tg)
            if TAG and not pend and ks >= 13:
                for _ in range(2):
                    if nck < 4 * ks + 4:
                        if nck == 0:
                            a('v_max_u32 v252, v0, v1')
                        else:
                            a('v_max3_u32 v252, v252, v%d, v%d', nck, nck + 1)
                        nck += 2
            pend = [(ks + NB, r) for r in rr[2 * j:2 * j + 2]]
            if j in (0, 3) and nl < 20 and (j == 0 or ks % 2 == 0):
                oload(nl)
                nl += 1
                if nl == 20 and not OPT['yearly']:
                    a('ds_write_b32 v%d, v250', vPW)
                    lq.append('w')
    if JO < 20:
        assert not TAG and nl == 20 and not pend
        a('s_waitcnt vmcnt(0) lgkmcnt(0)')
        for j in range(5):
            for i, ks in enumerate(range(JO, 20)):
                a('v_mfma_f32_16x16x32_bf16 %s, %s, %s, %s', v(acc + 4 * j, 4), v(4 * ks, 4), v(100 + 20 * (ks % NB) + 4 * j, 4), v(acc + 4 * j, 4))
                if j and i < 2:
                    a('s_nop 2')
                elif j and i < 6:
                    a(ostore(j - 1, i - 2))
        if OPT['fine'] in (1, 2):
            stamp('A', 'p3k19')
        a('s_nop 6')
        for r in range(4):
            a(ostore(4, r))
    if TAG:
        assert nck == 80
        a('v_cmp_eq_u32 vcc, -1, v252')
        a('s_cbranch_vccnz L_p3again')
        retry('L_p3again', 'L_p3redo', 0, ['s_sub_u32 s85, s85, 16384'])

def p3_groups(vA0, vOA, acc):
    WF, vAN = 100, 241
    sP, sG, sM, sKEY, sC = 4, 5, 6, 7, 8
    pl = 'buffer_load_dword v252, v%d, s[%d:%d], s88 offen sc1' % (vOA + 1, RWS, RWS + 3)
    for g in range(4):
        a('s_sub_u32 s%d, %d, s%d', sC + g, g, sOG)
        a('s_and_b32 s%d, s%d, 3', sC + g, sC + g)
        a('s_lshl2_add_u32 s%d, s%d, %d', sC + g, sC + g, g)
    a('v_mov_b32 v248, 9')
    a('s_waitcnt lgkmcnt(0)')
    a('v_cmp_gt_u32 vcc, 8, v99')
    a('s_cbranch_vccz L_epoll')
    a('s_waitcnt vmcnt(0)')
    stamp('A', 'odrain')
    if DIAG:
        nstamp['A'].pop()
    setflag(43, 2)
    waitpw(vAPW, 8, 99, sleep=OPT['gsleep'])
    a('s_mov_b32 exec_hi, 0')
    a(pl)
    a('s_waitcnt vmcnt(0)')
    a('s_branch L_polled')
    a.label('L_epoll')
    a('s_mov_b32 exec_hi, 0')
    a(pl)
    a('s_waitcnt vmcnt(1)')
    stamp('A', 'odrain')
    setflag(43, 2)
    a('s_mov_b32 exec_hi, 0')
    a('s_waitcnt vmcnt(1)')
    a.label('L_polled')
    a('v_cmp_eq_u32 vcc, 0, v252')
    a('s_mov_b64 exec, -1')
    a('s_mov_b32 s%d, vcc_lo', sP)
    def reads(k):
        return ['ds_read_b64_tr_b16 %s, v%d offset:%d' % (v(WF + 20 * k + 4 * j + 2 * rd, 2), vAN, 5120 * k + 1280 * rd + 32 * j)
                for j in range(5) for rd in range(2)]
    def issue(sl):
        for k in range(5):
            a('buffer_load_dwordx4 %s, v%d, s[%d:%d], s%d offen offset:%d sc1', v(20 * sl + 4 * k, 4), vOA, RWS, RWS + 3,
              12 if k < 4 else 13, 1024 * (k & 3))
        if sl == 3:
            a('ds_write_b32 v%d, v248', vPW)
    for sl in range(-1, 4):
        nx = sl + 1
        Lw, Lc, Ld = a.newlabel('gw'), a.newlabel('gc'), a.newlabel('gd')
        if nx < 4:
            for g in range(4):
                a('s_bfe_u32 s14, s%d, 0x%x', sP, (8 << 16) | (8 * g))
                a('s_bcnt1_i32_b32 s14, s14')
                if g == 0:
                    a('s_lshl4_add_u32 s%d, s14, s%d', sKEY, sC)
                else:
                    a('s_lshl4_add_u32 s14, s14, s%d', sC + g)
                    a('s_min_u32 s%d, s%d, s14', sKEY, sKEY)
            a('s_and_b32 s%d, s%d, 3', sG, sKEY)
            a('s_mul_i32 s12, s%d, 5120', sG)
            a('s_add_u32 s12, s12, s85')
            a('s_add_u32 s13, s12, 4096')
            a('s_cmp_lt_u32 s%d, 16', sKEY)
            a('s_cbranch_scc0 %s', Lw)
            issue(nx)
            if sl >= 0:
                a('s_waitcnt vmcnt(5)')
            a('s_branch %s', Lc)
            a.label(Lw)
            a('s_mov_b32 exec_lo, s%d', sP)
            a('s_mov_b32 exec_hi, 0')
            a(pl)
            a('s_mov_b64 exec, -1')
            if sl >= 0:
                a('s_waitcnt vmcnt(1)')
            a.label(Lc)
            a('s_mul_i32 s14, s%d, 25600', sG)
            a('v_add_u32 v%d, s14, v%d', vAN, vA0)
            if nx < 3:
                for g in range(4):
                    a('s_cmp_eq_u32 s%d, %d', sG, g)
                    a('s_cselect_b32 s%d, 0x1000, s%d', sC + g, sC + g)
        if sl < 0:
            for k in range(5):
                for r in reads(k):
                    a(r)
        else:
            pend = []
            for k in range(5):
                if nx == 4:
                    a('s_waitcnt vmcnt(%d) lgkmcnt(%d)', 4 - k, 0 if k >= 3 else 15)
                else:
                    a('s_waitcnt lgkmcnt(15)')
                rr = reads(k) if nx < 4 else []
                for j in range(5):
                    a('v_mfma_f32_16x16x32_bf16 %s, %s, %s, %s', v(acc + 4 * j, 4), v(20 * sl + 4 * k, 4), v(WF + 20 * k + 4 * j, 4),
                      '0' if (sl == 0 and k == 0) else v(acc + 4 * j, 4))
                    for r in pend:
                        a(r)
                    pend = rr[2 * j:2 * j + 2]
            for r in pend:
                a(r)
        if nx < 4:
            a('s_cmp_lt_u32 s%d, 16', sKEY)
            a('s_cbranch_scc1 %s', Ld)
            L1, L2 = a.newlabel('gp'), a.newlabel('gq')
            a('s_lshl_b32 s14, s%d, 3', sG)
            a('s_lshl_b32 s%d, 0xff, s14', sM)
            a('s_mov_b32 exec_lo, s%d', sP)
            a('s_mov_b32 exec_hi, 0')
            a.label(L1)
            a('s_waitcnt vmcnt(0)')
            a('v_cmp_eq_u32 vcc, 0, v252')
            a('s_and_b32 s14, vcc_lo, s%d', sM)
            a('s_cbranch_scc0 %s', L2)
            a('s_mov_b64 exec, vcc')
            if OPT['psleep4']:
                a('s_sleep %d', OPT['psleep4'])
            a(pl)
            a('s_sub_u32 s%d, s%d, 1', sSPIN, sSPIN)
            a('s_cbranch_scc0 %s', L1)
            a('s_endpgm')
            a.label(L2)
            a('s_mov_b32 s%d, vcc_lo', sP)
            a('s_mov_b64 exec, -1')
            issue(nx)
            a.label(Ld)
            if nx == 3:
                stamp('A', 'f4')

def a_outproj():
    vA0, vA1, vOA, vST = 240, 241, 242, 244
    if not OPT['otag'] or OPT['amark']:
        waitpw(vMG + 5, 14, 98, sleep=1)
    a('v_lshrrev_b32 v21, 5, v%d', vLANE)
    a('v_bfe_u32 v22, v%d, 2, 3', vLANE)
    a('v_lshl_add_u32 v21, v21, 4, v22')
    a('v_mul_u32_u24 v21, 160, v21')
    a('v_and_b32 v22, 3, v%d', vLANE)
    a('v_lshl_add_u32 v%d, v22, 3, v21', vA0)
    a('v_add_u32 v%d, %d, v%d', vA1, 10 * 5120, vA0)
    a('v_lshlrev_b32 v%d, 4, v%d', vOA, vLANE)
    a('v_lshrrev_b32 v21, 4, v%d', vLANE)
    a('v_mul_u32_u24 v21, %d, v21', 4 * 5120)
    a('v_and_b32 v22, 15, v%d', vLANE)
    a('v_lshl_add_u32 v%d, v22, 2, v21', vST)
    if OPT['fline'] & 1:
        a('s_and_b32 s12, s%d, 1', sOG)
        a('s_xor_b32 s13, s12, 1')
        a('s_lshl_b32 s14, s13, 7')
        a('v_add_u32 v%d, s14, v%d', vA0 + 6, vA0)
        a('v_add_u32 v%d, s14, v%d', vA1 + 6, vA1)
        a('s_lshl_b32 s14, s12, 5')
        a('v_add_u32 v%d, s14, v%d', vA0, vA0)
        a('v_add_u32 v%d, s14, v%d', vA1, vA1)
        a('s_lshl_b32 s14, s13, 8')
        a('v_add_u32 v%d, s14, v%d', vST, vST)
        a('v_lshrrev_b32 v21, 5, v%d', vLANE)
        a('v_mul_u32_u24 v21, %d, v21', 8 * 5120)
        a('v_and_b32 v22, 31, v%d', vLANE)
        a('v_lshl_add_u32 v21, v22, 2, v21')
        a('s_lshl_b32 s14, s12, 6')
        a('v_add_u32 v%d, s14, v21', vST + 1)
    else:
        for r in range(1, 4):
            a('v_add_u32 v%d, %d, v%d', vST + r, 5120 * r, vST)
    if OPT['otouch'] or OPT['epoll']:
        a('s_mul_i32 s84, s%d, 2560', sOG)
        a('v_min_u32 v248, 19, v%d', vLANE)
        a('v_lshl_add_u32 v248, v248, 7, s84')
    if OPT['orot']:
        a('s_add_u32 s84, s%d, s%d', sW, sOG)
        a('s_and_b32 s84, s84, 3')
        a('s_lshl2_add_u32 s84, s%d, s84', sTB)
    else:
        a('s_lshl2_add_u32 s84, s%d, s%d', sTB, sW)
    a('s_mul_i32 s85, s84, %d', OBLK)
    a('s_add_u32 s85, s85, 0x%x', WS_O)
    a('s_mul_i32 s86, s84, %d', 16 * 5120)
    a('s_mul_i32 s88, s%d, 320', sOG)
    a('s_add_u32 s86, s86, s88')
    if OPT['fline'] & 1:
        for r in range(8):
            a('s_add_u32 s%d, s86, %d', 4 + r, 5120 * r)
    a('v_lshlrev_b32 v%d, 7, v%d', vOA + 1, vLANE)
    a('s_lshl_b32 s88, s%d, 12', sTB)
    a('s_add_u32 s88, s88, 0x%x', F4)
    acc = 80
    a.label('L_pgO')
    if OPT['p3dyn']:
        p3_groups(vA0, vOA, acc)
    else:
        p3_static(vA0, vA1, vOA, acc)
    if OPT['fline'] & 1:
        a('s_nop 4')
        for p in range(2):
            for r in range(4):
                a('v_permlane16_swap_b32 v%d, v%d', acc + 8 * p + r, acc + 8 * p + 4 + r)
            for r in range(8):
                a('buffer_store_dword v%d, v%d, s[%d:%d], s%d offen offset:%d%s', acc + 8 * p + r, vST + 1, R4, R4 + 3, 4 + r, 128 * p, OSC)
        for r in range(4):
            a('buffer_store_dword v%d, v%d, s[%d:%d], s%d offen%s', acc + 16 + r, vST, R4, R4 + 3, 4 + r, OSC)
    elif not OPT['jout']:
        a('s_nop 3')
        for j in range(5):
            for r in range(4):
                a(ostore(j, r))
    finish('A')

vXR, vBR, vA0PW = 96, 100, 107
vL, vE, vHW, vHR0, vHR1, vHS, vCH, vCHL, vHH, vP01, vTCH, vHINT = 146, 150, 151, 152, 153, 154, 155, 156, 157, 158, 159, 160
vDX, vDW, vDBX, vDBB = 161, 165, 169, 173
vZ, vWOA, vPAR = 176, 186, 200
vCA, vCR, vHA = 248, 250, 252
vOS = 194
vSPW, vF3, vHT = 191, 192, 193
vAM = 248
vXO, vDO, vOA, vRA, vR1W, vR1R, vR2W, vPW1, vPW2, vAP4 = 164, 165, 166, 167, 169, 170, 171, 172, 173, 174
SENT = 0xffffffff

def s_stage(t, emit=None):
    out = []
    slot = ((t + 1) % 4) * 32768
    if OPT['stag'] >= 8 and t < 10:
        out += ['s_bfe_u32 s82, s%d, 0x%x' % (86 + t // 8, (4 << 16) | (4 * (t % 8))),
                's_add_u32 s82, s82, s85', 's_cmp_ge_u32 s82, 10', 's_cselect_b32 s83, 10, 0', 's_sub_u32 s82, s82, s83']
    elif OPT['stag'] >= 5 and t < 10:
        base, size = {0: (0, 4), 1: (4, 4), 2: (8, 2)}[t // 4] if OPT['stag'] != 7 else ((0, 2) if t < 2 else ((2, 4) if t < 6 else (6, 4)))
        out += ['s_add_u32 s82, s81, %d' % t, 's_and_b32 s82, s82, %d' % (size - 1), 's_add_u32 s82, s82, %d' % base,
                's_add_u32 s82, s82, s85', 's_cmp_ge_u32 s82, 10', 's_cselect_b32 s83, 10, 0', 's_sub_u32 s82, s82, s83']
    out.append('s_add_u32 m0, s74, %d' % slot)
    out.append('s_lshl_b32 s83, s82, 7')
    out.append('s_add_u32 s76, s72, s83')
    if t < 10:
        out += [dma(vDX + i, R0, 76, 1024 * i) for i in range(4)]
        out.append('s_add_u32 m0, s74, %d' % (slot + 16384))
        out.append('s_mul_i32 s83, s82, 245760')
        out.append('s_add_u32 s76, s73, s83')
        out += [dma(vDW + i, R1, 76, 1024 * i) for i in range(4)]
    else:
        out += [dma(vDBX + i, R3, 76, 1024 * i) for i in range(4)]
        out.append('s_add_u32 m0, s75, %d' % (slot + 16384))
        out.append('s_add_u32 s76, s77, s83')
        out += [dma(vDBB + i, R4, 76, 1024 * i) for i in range(2)]
        if OPT['snodup']:
            L3 = a.newlabel('s3rd')
            out += ['s_bitcmp1_b32 s%d, 0' % sW, 's_cbranch_scc1 %s' % L3, dma(vDBB + 2, R4, 76, 2048), L3 + ':']
        else:
            out.append(dma(vDBB + 2, R4, 76, 2048))
    if not (OPT['stag'] >= 5 and t < 10):
        out.append('s_add_u32 s82, s82, 1')
        out.append('s_cmp_eq_u32 s82, 10')
        out.append('s_cselect_b32 s82, 0, s82')
    if emit is None:
        L = a.newlabel('skip')
        if t < 10:
            a('s_cmp_eq_u32 s%d, 15', sCG)
            a('s_cbranch_scc1 %s', L)
        for o in out:
            a(o)
        if t < 10:
            a.label(L)
    return out

def ninstr(t):
    return 0 if t > 19 else (8 if t < 10 else 7)

def exp_acc(dst, x, t1, t2):
    L2E = math.log2(math.e)
    hi = struct.unpack('<f', struct.pack('<f', L2E))[0]
    a('s_mov_b32 s80, 0x%x', f2u(hi))
    a('v_mul_f32 v%d, s80, v%d', t1, x)
    a('v_fma_f32 v%d, v%d, s80, -v%d', t2, x, t1)
    a('v_fmac_f32 v%d, 0x%x, v%d', t2, f2u(L2E - hi), x)
    a('v_exp_f32 v%d, v%d', dst, t1)
    a('v_mul_f32 v%d, 0x%x, v%d', t2, f2u(math.log(2.0)), t2)
    a('v_fmac_f32 v%d, v%d, v%d', dst, dst, t2)

def s_setup():
    a.label('L_roleS')
    a('s_sub_u32 s%d, s%d, 4', sW, sW)
    a('v_lshrrev_b32 v1, 3, v%d', vLANE)
    a('v_and_b32 v2, 7, v%d', vLANE)
    a('v_lshrrev_b32 v3, 4, v%d', vLANE)
    a('v_xor_b32 v4, v2, v3')
    if OPT['q16']:
        a('s_cmp_ge_u32 s%d, 10', sCG)
        a('s_cselect_b32 s70, 4, 0')
        a('s_cselect_b32 s71, 19, 9')
        a('s_cselect_b32 s75, 3, 18')
        a('v_and_b32 v5, s70, v1')
        a('v_add_u32 v5, v5, v1')
        a('v_mul_u32_u24 v5, 1280, v5')
        a('v_lshl_add_u32 v%d, v4, 4, v5', vDX)
        a('v_xor_b32 v6, 64, v%d', vDX)
        a('v_lshl_add_u32 v%d, s71, 10, v6', vDX + 1)
        a('v_lshl_add_u32 v%d, s75, 10, v%d', vDX + 2, vDX)
        a('v_lshl_add_u32 v%d, s75, 10, v%d', vDX + 3, vDX + 1)
    else:
        a('v_mul_u32_u24 v5, 1280, v1')
        a('v_lshl_add_u32 v%d, v4, 4, v5', vDX)
        a('v_xor_b32 v6, 64, v%d', vDX)
        a('v_add_u32 v%d, %d, v6', vDX + 1, 10240 - 1024)
        a('v_add_u32 v%d, %d, v%d', vDX + 2, 2 * (10240 - 1024), vDX)
        a('v_add_u32 v%d, %d, v6', vDX + 3, 3 * (10240 - 1024))
    a('v_and_b32 v7, 15, v%d', vLANE)
    a('v_lshlrev_b32 v8, 2, v3')
    a('v_xor_b32 v7, v7, v8')
    a('v_mul_u32_u24 v8, 3840, v3')
    a('v_lshl_add_u32 v%d, v7, 4, v8', vDW)
    if OPT['q16']:
        a('v_xor_b32 v7, 48, v%d', vDW)
    for i in range(1, 4):
        a('v_add_u32 v%d, %d, v%d', vDW + i, (15360 - 1024) * i, 7 if OPT['q16'] and i >= 2 else vDW)
    a('s_lshl2_add_u32 s72, s%d, s%d', sRB, sW)
    a('s_mul_i32 s72, s72, %d', 32 * 1280)
    a('s_mul_i32 s73, s%d, %d', sW, 16 * 3840)
    a('s_lshl_b32 s70, s%d, 8', sCG)
    a('s_add_u32 s73, s73, s70')
    a('s_lshl_b32 s74, s%d, 12', sW)
    if OPT['stag'] <= 4:
        stagger(82, 83, 0, 0, OPT['stag'])
    else:
        a('s_add_u32 s81, s%d, s%d', sI, sOG)
        a('s_add_u32 s85, s%d, 1', sXCD)
        a('s_lshr_b32 s85, s85, 1')
        a('s_mul_i32 s85, s85, %d', 2 if OPT['stag'] in (5, 8, 9, 10, 11, 12, 13) else 0)
        if OPT['stag'] >= 8:
            T = {8: ['0412385679', '1253049678', '2306145789', '3012745689'],
                 9: ['0142385679', '1253094678', '2306145789', '3017245689'],
                 10: ['0124358679', '1235049678', '2301645789', '3012745689'],
                 11: ['0412835679', '1523904678', '2360145789', '3071245689'],
                 12: ['0124358769', '1235049678', '2301645789', '3012754698'],
                 13: ['0142385769', '1253094678', '2306145789', '3017254698']}[OPT['stag']]
            for r in T:
                assert sorted(r) == list('0123456789')
            lo = [int(r[:8][::-1], 16) for r in T]
            hi = sum(int(r[8:][::-1], 16) << (8 * c) for c, r in enumerate(T))
            a('s_and_b32 s81, s81, 3')
            a('s_mov_b32 s86, 0x%x', lo[0])
            for c in range(1, 4):
                a('s_cmp_eq_u32 s81, %d', c)
                a('s_cselect_b32 s86, 0x%x, s86', lo[c])
            a('s_lshl_b32 s81, s81, 3')
            a('s_lshr_b32 s87, 0x%x, s81', hi)
    a('s_mov_b32 s%d, 0x%x', R0 + 2, 2048 * 1280)
    a('s_mov_b32 s%d, 0x20000', R0 + 3)
    a('s_mov_b32 s%d, 0x%x', R1 + 2, 640 * 3840)
    a('s_mov_b32 s%d, 0x20000', R1 + 3)
    st0 = s_stage(0, emit=False)
    k = next(i for i, o in enumerate(st0) if o.startswith('buffer_load'))
    for o in st0[:k]:
        a(o)
    a('s_cmp_eq_u32 s%d, 15', sCG)
    a('s_waitcnt lgkmcnt(0)')
    a('s_mov_b64 s[%d:%d], s[%d:%d]', R0, R0 + 1, sAX, sAX + 1)
    a('s_mov_b64 s[%d:%d], s[%d:%d]', R1, R1 + 1, sWQ, sWQ + 1)
    if DIAG:
        ws_setup()
    stamp('S', 'start')
    a('s_cbranch_scc1 L_skip0')
    for o in st0[k:]:
        a(o)
    a.label('L_skip0')
    if not DIAG:
        prologue2()
        ws_setup()
    if OPT['fine'] == 1:
        stamp('S', 'iss0')
    def params():
        a('s_mul_i32 s70, s%d, 40', sG)
        a('v_min_u32 v9, 39, v%d', vLANE)
        a('v_add_lshl_u32 v9, v9, s70, 1')
        a('global_load_ushort v10, v9, s[%d:%d]', sLDT, sLDT + 1)
        a('global_load_ushort v11, v9, s[%d:%d]', sLRE, sLRE + 1)
        a('global_load_ushort v12, v9, s[%d:%d]', sLIM, sLIM + 1)
    params()
    n0 = len(a.lines)
    b1_sources(R3, R4, vDBX, vDBB, 75, 77, 70, 3 if OPT['snodup'] else 2)
    a('v_and_b32 v5, 3, v%d', vLANE)
    a('v_lshlrev_b32 v5, 8, v5')
    a('v_lshl_add_u32 v5, v%d, 2, v5', vLANE)
    a('v_add_u32 v%d, %d, v5', vSPW, L_PW + 1024)
    s_addresses()
    if OPT['slate']:
        late = a.lines[n0:]
        del a.lines[n0:]
        k = 0
        nch = OPT['slate']
        for c in range(nch):
            e = len(late) * (c + 1) // nch
            while e < len(late) and ('cselect' in late[e] or 'cndmask' in late[e] or 'cndmask' in late[e + 1] or 'cndmask' in late[min(e + 2, len(late) - 1)]):
                e += 1
            SLATE.append(late[k:e])
            k = e
    s_stage(1)
    if OPT['fine'] == 1:
        stamp('S', 'iss1')
    a('s_waitcnt vmcnt(11) lgkmcnt(0)')
    stamp('S', 'st0')
    a('s_barrier')
    s_stage(2)
    slate()
    a('s_waitcnt vmcnt(8)')
    a('s_barrier')
    s_stage(3)
    s_stage(4)

SLATE = []

def slate():
    if SLATE:
        a.lines.extend(SLATE.pop(0))

def s_addresses():
    c, g, t0, t1, t2 = 40, 41, 42, 43, 44
    a('v_and_b32 v%d, 15, v%d', c, vLANE)
    a('v_lshrrev_b32 v%d, 4, v%d', g, vLANE)
    a('v_lshrrev_b32 v%d, 1, v%d', t0, c)
    a('v_xor_b32 v%d, v%d, v%d', t0, t0, g)
    a('v_lshlrev_b32 v%d, 4, v%d', t0, t0)
    a('v_lshl_add_u32 v%d, v%d, 7, v%d', t0, c, t0)
    a('v_xor_b32 v%d, 64, v%d', t1, t0)
    a('v_add_u32 v%d, s74, v%d', vXR, t0)
    a('v_add_u32 v%d, s74, v%d', vXR + 1, t1)
    a('s_mul_i32 s70, s%d, %d', sW, REGSZ)
    a('s_add_u32 s70, s70, %d', L_REG)
    a('v_add_u32 v%d, s70, v%d', vCR, t0)
    a('v_add_u32 v%d, s70, v%d', vCR + 1, t1)
    a('v_lshrrev_b32 v%d, 3, v%d', t2, c)
    a('v_lshl_add_u32 v%d, v%d, 12, v%d', t0, t2, t0)
    a('v_add_u32 v%d, 16384, v%d', vBR, t0)
    a('v_xor_b32 v%d, 64, v%d', vBR + 1, vBR)
    for k in range(2):
        a('v_add_u32 v%d, 0x10000, v%d', vXR + 2 + k, vXR + k)
        a('v_add_u32 v%d, 0x10000, v%d', vBR + 2 + k, vBR + k)
    a('v_and_b32 v%d, 7, v%d', t0, vLANE)
    a('v_lshlrev_b32 v%d, 2, v%d', t2, t2)
    a('v_lshl_add_u32 v%d, v%d, 3, v%d', t0, t0, t2)
    a('v_add_u32 v%d, %d, v%d', vHH, L_H, t0)
    a('v_mul_u32_u24 v%d, 320, v%d', t1, g)
    a('s_mul_i32 s71, s%d, 1280', sW)
    a('s_add_u32 s71, s71, %d', L_EL)
    a('v_add3_u32 v%d, v%d, v%d, s71', vE, t0, t1)
    a('v_lshlrev_b32 v%d, 3, v%d', vCH, vLANE)
    a('v_add_u32 v%d, %d, v%d', vCHL, L_H, vCH)
    a('v_lshlrev_b32 v%d, 9, v%d', vHINT, vLANE)
    a('v_lshlrev_b32 v%d, 2, v%d', vA0PW, vLANE)
    a('v_add_u32 v%d, %d, v%d', vA0PW, L_PW, vA0PW)
    a('v_and_b32 v%d, 0x%x, v%d', vP01, 0xffffffff ^ 512, vSPW)
    a('v_bfe_u32 v%d, v%d, 1, 2', t0, vLANE)
    a('v_xor_b32 v%d, v%d, v%d', t0, t0, g)
    a('v_lshlrev_b32 v%d, 4, v%d', t0, t0)
    a('s_mul_i32 s71, s%d, 5120', sW)
    a('s_add_u32 s71, s71, %d', L_HT)
    a('v_lshl_add_u32 v%d, v%d, 6, v%d', t0, c, t0)
    a('v_add_u32 v%d, s71, v%d', vHW, t0)
    a('v_bfe_u32 v%d, v%d, 2, 2', t0, vLANE)
    a('v_lshrrev_b32 v%d, 5, v%d', t1, vLANE)
    a('v_lshl_add_u32 v%d, v%d, 3, v%d', vHR0, t1, t0)
    a('v_lshlrev_b32 v%d, 6, v%d', vHR0, vHR0)
    a('v_mul_u32_u24 v%d, %d, v%d', vHS, 80 * 256, t1)
    a('v_lshrrev_b32 v%d, 1, v%d', t0, t0)
    a('v_bfe_u32 v%d, v%d, 4, 1', t1, vLANE)
    a('v_bfe_u32 v%d, v%d, 1, 1', t2, vLANE)
    a('v_lshl_add_u32 v%d, v%d, 1, v%d', t2, t1, t2)
    a('v_xor_b32 v%d, v%d, v%d', t2, t2, t0)
    a('v_lshl_add_u32 v%d, v%d, 4, v%d', vHR0, t2, vHR0)
    a('v_and_b32 v%d, 1, v%d', t2, vLANE)
    a('v_lshl_add_u32 v%d, v%d, 3, v%d', vHR0, t2, vHR0)
    a('v_xor_b32 v%d, 32, v%d', vHR1, vHR0)
    a('v_add_u32 v%d, s71, v%d', vHR0, vHR0)
    a('v_add_u32 v%d, s71, v%d', vHR1, vHR1)
    a('v_mul_u32_u24 v%d, %d, v%d', t1, HBLK, t1)
    a('v_lshl_add_u32 v%d, v%d, 4, v%d', t1, c, t1)
    a('v_add_u32 v%d, v%d, v%d', vHS, vHS, t1)
    if OPT['otag'] and not OPT['amark']:
        a('v_bfe_u32 v%d, v%d, 4, 1', t0, vLANE)
        a('v_mul_u32_u24 v%d, %d, v%d', t0, OBLK, t0)
        a('v_lshl_add_u32 v%d, v%d, 4, v%d', t0, c, t0)
        a('v_lshrrev_b32 v%d, 5, v%d', t1, vLANE)
        a('v_mul_u32_u24 v%d, %d, v%d', t2, 2 * OBLK, t1)
        a('v_add_u32 v%d, v%d, v%d', vOS + 1, t2, t0)
        a('v_lshl_add_u32 v%d, v%d, 8, v%d', vOS, t1, t0)
        for k in range(4):
            a('v_mov_b32 v%d, -1', vOS + 2 + k)
    if OPT['q16']:
        a('v_mul_u32_u24 v%d, 1280, v1', t0)
        a('v_lshl_add_u32 v%d, v4, 4, v%d', vCA, t0)
        a('v_xor_b32 v%d, 64, v%d', t0, vCA)
        a('v_add_u32 v%d, %d, v%d', vCA + 1, 10240 - 1024, t0)
    else:
        a('v_mov_b32 v%d, v%d', vCA, vDX)
        a('v_mov_b32 v%d, v%d', vCA + 1, vDX + 1)
    a('v_lshlrev_b32 v%d, 4, v%d', vHA, vLANE)
    a('v_lshlrev_b32 v%d, 7, v%d', vF3, vLANE)
    a('v_min_u32 v%d, %d, v%d', vHT, 39 * 128, vF3)
    a('s_xor_b32 s92, s%d, 1', sW)
    a('s_mul_i32 s92, s92, %d', REGSZ)
    a('s_add_u32 s92, s92, %d', L_REG)
    a('s_xor_b32 s93, s%d, 3', sW)
    a('s_mul_i32 s93, s93, %d', REGSZ)
    a('s_add_u32 s93, s93, %d', L_REG + 16 * 336)
    if not OPT['wopack']:
        s_wooffs()

def s_params():
    a('s_cmp_eq_u32 s%d, 0', sW)
    a('s_cbranch_scc0 L_nopar')
    for r in (10, 11, 12):
        a('v_lshlrev_b32 v%d, 16, v%d', r, r)
    exp_acc(13, 10, 14, 15)
    a('v_cvt_pk_bf16_f32 v13, v13, v13')
    a('v_and_b32 v13, 0xffff0000, v13')
    a('v_mul_f32 v14, v13, v11')
    a('v_mul_f32 v15, v13, v12')
    exp_acc(16, 14, 17, 18)
    I2P = 1.0 / (2 * math.pi)
    hi = struct.unpack('<f', struct.pack('<f', I2P))[0]
    a('s_mov_b32 s80, 0x%x', f2u(hi))
    a('v_mul_f32 v17, s80, v15')
    a('v_rndne_f32 v17, v17')
    a('v_fma_f32 v17, v15, s80, -v17')
    a('v_fmac_f32 v17, 0x%x, v15', f2u(I2P - hi))
    a('v_cos_f32 v20, v17')
    a('v_sin_f32 v21, v17')
    a('v_mul_f32 v18, v11, v11')
    a('v_fmac_f32 v18, v12, v12')
    a('v_rcp_f32 v19, v18')
    a('v_mul_f32 v20, v16, v20')
    a('v_mul_f32 v21, v16, v21')
    a('v_fma_f32 v18, -v18, v19, 1.0')
    a('v_fmac_f32 v19, v19, v18')
    a('v_add_f32 v19, v19, v19')
    a('v_add_f32 v17, -1.0, v20')
    a('v_mul_f32 v22, v17, v11')
    a('v_fmac_f32 v22, v21, v12')
    a('v_mul_f32 v23, v17, v12')
    a('v_fma_f32 v23, -v21, v11, v23')
    a('v_mul_f32 v22, v22, v19')
    a('v_mul_f32 v23, v23, v19')
    a('v_lshlrev_b32 v9, 4, v%d', vLANE)
    a('v_add_u32 v9, %d, v9', L_PAR)
    a('ds_write_b128 v9, v[20:23]')
    a('v_mov_b32 v24, v20')
    a('v_sub_f32 v25, 0, v21')
    for k in range(3):
        a('v_mul_f32 v26, v25, v25')
        a('v_add_f32 v27, v24, v24')
        a('v_fma_f32 v24, v24, v24, -v26')
        a('v_mul_f32 v25, v27, v25')
    a.label('L_nopar')

def s_params2():
    a('s_cmp_eq_u32 s%d, 0', sW)
    a('s_cbranch_scc0 L_nopar2')
    a('s_mov_b32 exec_hi, 0xff')
    a('v_mov_b32 v14, 1.0')
    a('v_mov_b32 v15, 0')
    a('ds_write_b64 v%d, v[14:15] offset:%d', vCHL, L_Z - L_H)
    a('ds_write_b64 v%d, v[24:25] offset:%d', vCHL, L_Z - L_H + 320)
    src = 24
    for sg in range(2, 17):
        dst = 16 + 2 * (sg % 3)
        a('v_mul_f32 v%d, v24, v%d', dst, src)
        a('v_mul_f32 v%d, v24, v%d', dst + 1, src + 1)
        a('v_fma_f32 v%d, -v25, v%d, v%d', dst, src + 1, dst)
        a('v_fmac_f32 v%d, v25, v%d', dst + 1, src)
        a('ds_write_b64 v%d, %s offset:%d', vCHL, v(dst, 2), L_Z - L_H + 320 * sg)
        src = dst
    a('s_mov_b32 exec_hi, -1')
    a('s_waitcnt lgkmcnt(0)')
    a.label('L_nopar2')

def s_wooffs():
    for i in range(5):
        a('v_add_u32 v40, %d, v%d', 64 * i, vLANE)
        a('v_mul_u32_u24 v41, 6554, v40')
        a('v_lshrrev_b32 v41, 16, v41')
        a('v_mul_u32_u24 v42, 10, v41')
        a('v_sub_u32 v40, v40, v42')
        tau(42, 41, 43)
        a('v_mul_u32_u24 v42, 1280, v42')
        a('v_lshl_add_u32 v%d, v40, 4, v42', vWOA + i)
        if 0 < i < 4:
            a('v_subrev_u32 v%d, %d, v%d', vWOA + i, 1024 * i, vWOA + i)

def s_qloader():
    early = {1: {7: 10}, 2: {7: 10, 9: 11}, 3: {7: 10, 8: 11, 9: 12}, 4: {7: 10, 8: 11, 9: 12}, 0: {}}[OPT['st10']]
    q = [2] * 8 + [3] * 8 + [4] * 8
    for st in range(2, 10):
        a('s_waitcnt vmcnt(%d)', len(q) - 1 - max(i for i, x in enumerate(q) if x == st))
        if OPT['fine'] == 1 and st in (2, 4, 6, 7, 8, 9):
            stamp('S', 'st%d' % st)
        a('s_barrier')
        if st == 6:
            a('v_and_b32 v32, 15, v%d', vLANE)
            a('v_lshlrev_b32 v32, 4, v32')
            a('v_mov_b32 v33, 1')
            a('s_cmp_eq_u32 s%d, 3', sW)
            a('s_cbranch_scc0 L_nodbg')
            a(dbgload(32, 33))
            a.label('L_nodbg')
            a('s_cmp_eq_u32 s%d, 15', sCG)
            a('s_cbranch_scc0 L_cw')
            a('s_waitcnt vmcnt(0)')
            a.label('L_cw')
        if st <= 6:
            s_stage(st + 3)
            q += [st + 3] * 8
            slate()
        if st == OPT['pretouch']:
            a('s_cmp_eq_u32 s%d, 2', sW)
            a('s_cselect_b32 s70, s%d, s%d', sBRE, sBIM)
            a('s_cselect_b32 s71, s%d, s%d', sBRE + 1, sBIM + 1)
            a('s_mul_i32 s83, s2, 3200')
            a('s_lshl1_add_u32 s84, s2, s%d', sW)
            a('s_mul_i32 s84, s84, 5120')
            a('s_cmp_lt_u32 s%d, 2', sW)
            a('s_cselect_b32 s70, s%d, s70', sBX)
            a('s_cselect_b32 s71, s%d, s71', sBX + 1)
            a('s_cselect_b32 s83, s84, s83')
            a('s_cselect_b32 s84, 39, 24')
            a('v_min_u32 v30, s84, v%d', vLANE)
            a('v_lshl_add_u32 v30, v30, 7, s83')
            a('global_load_dword v31, v30, s[70:71]')
            q.append('t')
        if st == 7:
            stagger(82, 83, 0, OPT['flip'], OPT['stagb'])
        if st in early:
            s_stage(early[st])
            q += [early[st]] * (7 - OPT['snodup'])
        if st == 7 and not OPT['plate']:
            s_params()
        if st == 8 and not OPT['plate']:
            s_params2()

    a('v_cmp_eq_u32 vcc, 0, v33')
    a('s_cbranch_vccz L_clrok')
    pollflags([dbgload(32, 33)], 33, sleep=8)
    a.label('L_clrok')
    a('s_barrier')
    stamp('S', 'qend')
    if OPT['st10'] == 4:
        s_stage(13)
    if OPT['plate']:
        s_params()
        s_params2()
    else:
        s_consts()

def s_consts():
    a('v_and_b32 v104, 7, v%d', vLANE)
    a('v_lshlrev_b32 v104, 4, v104')
    a('v_add_u32 v104, %d, v104', L_PAR)
    for j in range(5):
        a('ds_read_b128 %s, v104 offset:%d', v(vPAR + 4 * j, 4), 128 * j)
    a('v_and_b32 v105, -8, v%d', vE)
    a('v_add_u32 v105, %d, v105', L_Z - L_EL)
    for j in range(5):
        a('ds_read_b64 %s, v105 offset:%d', v(vZ + 2 * j, 2), 64 * j)
    a('s_cmp_eq_u32 s%d, 0', sW)
    a('s_cselect_b32 s70, 1, 16')
    a('s_mul_i32 s70, s70, 320')
    a('v_add_u32 v106, s70, v%d', vCHL)
    a('ds_read_b64 %s, v106 offset:%d', v(vL, 2), L_Z - L_H)
    a('v_bfe_u32 v145, v%d, 3, 1', vLANE)
    a('v_lshlrev_b32 v145, 31, v145')
    a('v_xor_b32 v144, 0x80000000, v145')
    a('s_waitcnt lgkmcnt(0)')
    for j in range(5):
        a('v_xor_b32 v%d, v145, v%d', vPAR + 4 * j + 1, vPAR + 4 * j + 1)
        a('v_xor_b32 v%d, v145, v%d', vPAR + 4 * j + 2, vPAR + 4 * j + 2)
        a('v_xor_b32 v%d, v144, v%d', vZ + 2 * j + 1, vZ + 2 * j + 1)

def touch(r, va=None):
    o = ['s_add_u32 s84, s%d, %d' % (sXCD, r),
         's_cmp_ge_u32 s84, 6', 's_cselect_b32 s85, 6, 0', 's_sub_u32 s84, s84, s85',
         's_cmp_ge_u32 s84, 6', 's_cselect_b32 s85, 6, 0', 's_sub_u32 s84, s84, s85',
         's_cmp_ge_u32 s84, 2',
         's_cselect_b32 s86, s%d, s%d' % (sCRE, sWO), 's_cselect_b32 s87, s%d, s%d' % (sCRE + 1, sWO + 1),
         's_cmp_ge_u32 s84, 4',
         's_cselect_b32 s86, s%d, s86' % sCIM, 's_cselect_b32 s87, s%d, s87' % (sCIM + 1),
         's_and_b32 s84, s84, 1', 's_mul_i32 s84, s84, 3200',
         's_add_u32 s86, s86, s84', 's_addc_u32 s87, s87, 0',
         'global_load_dword v109, v%d, s[86:87]' % (va or vTCH)]
    return o

def s_b1():
    F = [40, 68]
    def reads(t, ks, f):
        slot = (t + 1) % 4
        hi, lo = slot >> 1, (slot & 1) * 32768
        r = ['ds_read_b128 %s, v%d offset:%d' % (v(f + 4 * T, 4), vXR + 2 * hi + ks, lo + 2048 * T) for T in range(2)]
        r += ['ds_read_b128 %s, v%d offset:%d' % (v(f + 8 + 4 * j, 4), vBR + 2 * hi + ks, lo + 1024 * j) for j in range(5)]
        return r
    def mfmas(f, first):
        return ['v_mfma_f32_16x16x32_bf16 %s, %s, %s, %s' % (v(8 * j + 4 * T, 4), v(f + 4 * T, 4), v(f + 8 + 4 * j, 4),
                '0' if first else v(8 * j + 4 * T, 4)) for j in range(5) for T in range(2)]
    def weave(ms, others):
        n = len(ms)
        k = 0
        for i_, m in enumerate(ms):
            a(m)
            while k < len(others) * (i_ + 1) // n:
                a(others[k])
                k += 1
    first = 10 + OPT['st10']
    a('s_lshl4_add_u32 s84, s%d, s%d', sCG, sRB)
    flagaddr(84, 84, F1, 85)
    a('s_waitcnt vmcnt(%d)', max(0, (7 - OPT['snodup']) * (first - 11)))
    a('s_barrier')
    for r in reads(10, 0, F[0]):
        a(r)
    for u in range(10):
        t = 10 + u
        if OPT['fine'] == 1 and u in (0, 2, 3, 4, 8):
            stamp('S', 'b1w%d' % u)
        a('s_waitcnt lgkmcnt(0)')
        m0_ = mfmas(F[0], u == 0)
        weave(m0_[:4], reads(t, 1, F[1]))
        for m in m0_[4:]:
            a(m)
        m1_ = mfmas(F[1], False)
        if u < 9:
            if t + 1 < first:
                a('s_waitcnt vmcnt(%d) lgkmcnt(0)', (7 - OPT['snodup']) * (first - t - 2))
            else:
                if t + 1 == first and OPT['plate']:
                    s_consts()
                a('s_waitcnt lgkmcnt(0)')
            a('s_barrier')
            if t + 1 == first:
                a('s_cmp_eq_u32 s%d, 3', sW)
                a('s_cbranch_scc0 L_noflag')
                setflag(84, 104)
                a.label('L_noflag')
            weave(m1_[:4], reads(t + 1, 0, F[0]))
            for m in m1_[4:]:
                a(m)
        else:
            a('s_waitcnt lgkmcnt(0)')
            for m in m1_:
                a(m)
    stamp('S', 'b1gemm')

def rot5(dst, t):
    a('s_and_b32 s%d, s%d, 3', dst, sI)
    a('s_add_u32 s%d, s%d, s%d', dst, dst, sXCD)
    for _ in range(2):
        a('s_cmp_ge_u32 s%d, 5', dst)
        a('s_cselect_b32 s%d, 5, 0', t)
        a('s_sub_u32 s%d, s%d, s%d', dst, dst, t)
    if not OPT['rot5']:
        a('s_mov_b32 s%d, 0', dst)

def s_wo():
    if OPT['wopack']:
        a('s_mov_b32 s73, 0x%x', F1 + 15 * 16 * 128)
        a('s_mov_b64 exec, 0xffff')
        pollflags(['buffer_load_dword v40, v%d, s[%d:%d], s73 offen sc1' % (vF3, RWS, RWS + 3)], 40, sleep=4)
        rot5(83, 73)
        a('s_mul_i32 s75, s%d, 102400', sOG)
        a('s_add_u32 s75, s75, 0x%x', WS_WP)
        a('s_mov_b32 s77, 5')
        a.label('L_woloop')
        a('s_lshl2_add_u32 s78, s83, s%d', sW)
        a('s_mul_i32 s78, s78, 5120')
        a('s_add_u32 s79, s78, s75')
        a('s_mov_b32 m0, s78')
        for i in range(5):
            if i == 4:
                a('s_add_u32 m0, s78, 4096')
                a('s_add_u32 s79, s79, 4096')
            a('s_waitcnt vmcnt(%d)', OPT['thrw'])
            a(dma(vHA, RWS, 79, 1024 * (i & 3)).replace(' lds', ' sc1 lds'))
    else:
        srd(R0, sWO, 640 * 1280)
        rot5(83, 73)
        a('s_mul_i32 s75, s%d, 160', sOG)
        a('s_mov_b32 s77, 5')
        a.label('L_woloop')
        a('s_lshl2_add_u32 s78, s83, s%d', sW)
        a('s_mul_i32 s79, s78, 40960')
        a('s_add_u32 s79, s79, s75')
        a('s_mul_i32 s78, s78, 5120')
        a('s_mov_b32 m0, s78')
        a('s_add_u32 s73, s78, 4096')
        for i in range(5):
            if i == 4:
                a('s_mov_b32 m0, s73')
            a('s_waitcnt vmcnt(%d)', OPT['thrw'])
            a(dma(vWOA + i, R0, 79, 1024 * (i & 3)))
    a('s_add_u32 s83, s83, 1')
    a('s_cmp_eq_u32 s83, 5')
    a('s_cselect_b32 s83, 0, s83')
    a('s_sub_u32 s77, s77, 1')
    a('s_cmp_lg_u32 s77, 0')
    a('s_cbranch_scc1 L_woloop')
    for kp in range(5):
        a('s_lshl_b32 s73, s83, 7')
        a('s_add_u32 s%d, s72, s73', 4 + kp)
        a('s_lshl_b32 s%d, s83, 11', 12 + kp)
        a('s_add_u32 s83, s83, 1')
        a('s_cmp_eq_u32 s83, 5')
        a('s_cselect_b32 s83, 0, s83')

def s_mark(both):
    a('s_and_b32 s78, s%d, 1', sW)
    a('s_lshl1_add_u32 s78, s%d, s78', sQB)
    a('s_lshr_b32 s79, s%d, 1', sW)
    a('s_lshl1_add_u32 s78, s78, s79')
    a('s_mul_i32 s78, s78, %d', 4 * OBLK)
    a('s_lshr_b32 s79, s%d, 1', sHD)
    a('s_mul_i32 s79, s79, 1280')
    a('s_add_u32 s78, s78, s79')
    a('s_add_u32 s78, s78, 0x%x', WS_O)
    a('s_and_b32 s79, s%d, 1', sHD)
    a('s_mul_i32 s73, s79, 768')
    a('s_add_u32 s73, s73, s78')
    a('s_add_u32 s75, s73, %d', 2 * OBLK)
    a('s_lshl3_add_u32 s78, s79, s78')
    for k in range(2 if both else 1):
        if k:
            for r in (73, 75, 78):
                a('s_sub_u32 s%d, s%d, %d', r, r, 4 * OBLK)
        a('buffer_store_dwordx4 %s, v%d, s[%d:%d], s73 offen sc1', v(vOS + 2, 4), vOS, RWS, RWS + 3)
        a('buffer_store_dwordx4 %s, v%d, s[%d:%d], s75 offen sc1', v(vOS + 2, 4), vOS, RWS, RWS + 3)
        a('buffer_store_dwordx2 %s, v%d, s[%d:%d], s78 offen offset:512 sc1', v(vOS + 2, 2), vOS + 1, RWS, RWS + 3)

def s_scan():
    ROR = 'row_ror:8 row_mask:0xf bank_mask:0xf'
    a('s_setprio 1')
    a('s_lshl_b32 s70, s%d, 13', sG)
    a('s_add_u32 s70, s70, 0x%x', WS_E)
    a('s_add_u32 s70, s70, s%d', sWS)
    a('s_addc_u32 s71, s%d, 0', sWS + 1)
    srd(R5, 70, 8192)
    a('s_sub_u32 s70, 15, s%d', sRB)
    a('s_lshl_b32 s70, s70, 9')
    a('s_add_u32 s71, s70, 4096')
    tmp = 40
    for j in range(5):
        for k in range(8):
            a('v_mul_f32_dpp v%d, v%d, v%d %s', tmp + k, 8 * j + k, vPAR + 4 * j + 3, ROR)
        for k in range(8):
            a('v_fma_f32 v%d, v%d, v%d, v%d', 8 * j + k, vPAR + 4 * j + 2, 8 * j + k, tmp + k)
    e = [[8 * j for j in range(5)], [50 + j for j in range(5)], [56 + j for j in range(5)]]
    cur = e[0]
    for k in range(1, 8):
        nx = e[1 + (k & 1)]
        for j in range(5):
            a('v_fma_f32 v%d, v%d, v%d, v%d', nx[j], vPAR + 4 * j, cur[j], 8 * j + k)
        for j in range(5):
            a('v_fmac_f32_dpp v%d, v%d, v%d %s', nx[j], cur[j], vPAR + 4 * j + 1, ROR)
        cur = nx
    for j in range(5):
        a('ds_write_b32 v%d, v%d offset:%d', vE, cur[j], 64 * j)
    setpw(11, 104)
    for r in range(10 - OPT['tstart'], 0 if OPT['tlate'] else 6):
        a('s_waitcnt vmcnt(0)')
        for o in touch(r):
            a(o)
    stamp('S', 'pass1')
    def chain(dst, src, add):
        a('v_fma_f32 v%d, v%d, v%d, v%d', dst, vL, src, add)
        a('v_fma_f32 v%d, v%d, v%d, v%d', dst + 1, vL, src + 1, add + 1)
        a('v_fma_f32 v%d, -v%d, v%d, v%d', dst, vL + 1, src + 1, dst)
        a('v_fmac_f32 v%d, v%d, v%d', dst + 1, vL + 1, src)
    ES = 110
    a('s_cmp_eq_u32 s%d, 1', sW)
    a('s_cbranch_scc1 L_wave1')
    a('s_cmp_eq_u32 s%d, 0', sW)
    a('s_cbranch_scc0 L_wave23')
    waitpw(vSPW, 11, 105, sleep=1)
    a('s_mov_b32 exec_hi, 0xff')
    for sg in range(16):
        a('ds_read_b64 %s, v%d offset:%d', v(ES + 2 * sg, 2), vCHL, L_EL - L_H + 320 * sg)
    a('v_mov_b32 v142, 0')
    a('v_mov_b32 v143, 0')
    a('s_waitcnt lgkmcnt(0)')
    a('ds_write_b64 v%d, v[142:143] offset:%d', vCHL, L_PL - L_H)
    for sg in range(1, 16):
        a('ds_write_b64 v%d, %s offset:%d', vCHL, v(ES + 2 * sg - 2, 2), L_PL - L_H + 320 * sg)
        chain(ES + 2 * sg, ES + 2 * sg - 2, ES + 2 * sg)
    a('v_min_u32 v%d, -2, v%d', ES + 30, ES + 30)
    a('v_min_u32 v%d, -2, v%d', ES + 31, ES + 31)
    a('buffer_store_dwordx2 %s, v%d, s[%d:%d], s70 offen sc1', v(ES + 30, 2), vCH, R5, R5 + 3)
    a('s_mov_b32 exec_hi, -1')
    setpw(12, 104)
    a('s_branch L_coldone')
    a.label('L_wave1')
    a.label('L_hint')
    a('buffer_load_dword v105, v%d, s[%d:%d], s70 offen offset:512 sc1', vHINT, R5, R5 + 3)
    a('s_waitcnt vmcnt(0)')
    a('v_cmp_eq_u32 vcc, -1, v105')
    a('s_cbranch_vccz L_hintok')
    a('s_mov_b64 exec, vcc')
    a('s_sleep 3')
    a.label('L_hint2')
    a('s_sub_u32 s%d, s%d, 1', sSPIN, sSPIN)
    a('s_cbranch_scc0 L_hint')
    a('s_endpgm')
    a.label('L_hintok')
    a('s_mov_b32 exec_lo, -1')
    a('s_mov_b32 exec_hi, 0xff')
    for k in range(15, 0, -1):
        a('buffer_load_dwordx2 %s, v%d, s[%d:%d], s%d offen offset:%d sc1', v(ES + 2 * (15 - k), 2), vCH, R5, R5 + 3,
          71 if k >= 8 else 70, 512 * (k & 7))
    a('s_waitcnt vmcnt(0)')
    a('v_max_u32 v105, v%d, v%d', ES, ES + 1)
    for n in range(1, 15):
        a('v_max3_u32 v105, v105, v%d, v%d', ES + 2 * n, ES + 2 * n + 1)
    a('v_cmp_eq_u32 vcc, -1, v105')
    a('s_cbranch_vccnz L_hint2')
    for n in range(1, 15):
        chain(ES + 2 * n, ES + 2 * n - 2, ES + 2 * n)
    a('ds_write_b64 v%d, %s', vCHL, v(ES + 28, 2))
    a('s_mov_b32 exec_hi, -1')
    setpw(12, 104)
    a('s_branch L_coldone')
    a.label('L_wave23')
    if OPT['otag'] and not OPT['amark'] and OPT['smark']:
        if OPT['smark'] == 1:
            waitpw(vA0PW, 5, 105, sleep=2)
        s_mark(True)
    if OPT['woe']:
        E = OPT['woe']
        srd(R0, sWO, 640 * 1280)
        a('s_mul_i32 s75, s%d, 160', sOG)
        a('s_and_b32 s83, s%d, 3', sI)
        a('s_add_u32 s83, s83, s%d', sXCD)
        waitpw(vA0PW, 5, 105, sleep=2)
        for it in range(E):
            a('s_add_u32 s78, s83, %d', it)
            a('s_and_b32 s78, s78, %d', E - 1)
            a('s_lshl1_add_u32 s78, s78, s%d', sW)
            a('s_sub_u32 s78, s78, 2')
            a('s_mul_i32 s79, s78, 40960')
            a('s_add_u32 s79, s79, s75')
            a('s_mul_i32 s78, s78, 5120')
            a('s_mov_b32 m0, s78')
            for i in range(5):
                if i == 4:
                    a('s_add_u32 m0, s78, 4096')
                a('s_waitcnt vmcnt(%d)', OPT['thre'])
                a(dma(vWOA + i, R0, 79, 1024 * (i & 3)))
    if OPT['gtouch'] in (1, 2):
        a('s_cmp_eq_u32 s%d, 2', sW)
        a('s_cbranch_scc0 L_coldone')
        a('v_min_u32 v106, %d, v%d', 24 * 128, vF3)
        a('s_mul_i32 s78, s2, 3200')
        a('v_add_u32 v106, s78, v106')
        if OPT['gtouch'] == 1:
            waitpw(vA0PW, 5, 105, sleep=2)
        for p in (sCRE, sCIM, sWO):
            a('global_load_dword v109, v106, s[%d:%d]', p, p + 1)
    if OPT['tearly']:
        waitpw(vA0PW, 5, 105, sleep=2)
    for r in range(OPT['tearly']):
        for o in touch(r, vCT):
            a(o)
        if r + 1 < OPT['tearly']:
            a('s_waitcnt vmcnt(0)')
    a.label('L_coldone')
    a('s_lshl2_add_u32 s70, s%d, s%d', sRB, sW)
    a('s_mul_i32 s71, s70, %d', 2 * HBLK)
    a('s_mul_i32 s78, s%d, 1280', sG)
    a('s_add_u32 s71, s71, s78')
    a('s_add_u32 s71, s71, 0x%x', WS_H)
    a('s_lshl4_add_u32 s70, s70, s%d', sG)
    flagaddr(70, 70, F3, 78)
    waitpw(vP01, 12, 105, sleep=4)
    stamp('S', 'carry')
    if OPT['gtouch'] == 3:
        a('s_cmp_eq_u32 s%d, 1', sW)
        a('s_cselect_b32 s78, s%d, s%d', sCRE, sCIM)
        a('s_cselect_b32 s79, s%d, s%d', sCRE + 1, sCIM + 1)
        a('s_cmp_eq_u32 s%d, 2', sW)
        a('s_cselect_b32 s78, s%d, s78', sWO)
        a('s_cselect_b32 s79, s%d, s79', sWO + 1)
        a('s_mul_i32 s80, s2, 3200')
        a('s_add_u32 s78, s78, s80')
        a('s_addc_u32 s79, s79, 0')
        a('s_cmp_eq_u32 s%d, 0', sW)
        a('s_cbranch_scc1 L_notouch')
        a('s_mov_b64 exec, 0x1ffffff')
        a('global_load_dword v109, v%d, s[78:79]', vF3)
        a('s_mov_b64 exec, -1')
        a.label('L_notouch')
    for j in range(5):
        a('ds_read_b32 v%d, v%d offset:%d', 50 + j, vE, L_PL - L_EL + 64 * j)
        a('ds_read_b32 v%d, v%d offset:%d', 56 + j, vHH, 64 * j)
    a('s_waitcnt lgkmcnt(0)')
    for j in range(5):
        a('v_fmac_f32 v%d, v%d, v%d', 50 + j, vZ + 2 * j, 56 + j)
    for j in range(5):
        a('v_fmac_f32_dpp v%d, v%d, v%d %s', 50 + j, 56 + j, vZ + 2 * j + 1, ROR)
    for k in range(8):
        pr = [50 + j if k == 0 else 8 * j + k - 1 for j in range(5)]
        for j in range(5):
            a('v_fmac_f32 v%d, v%d, v%d', 8 * j + k, vPAR + 4 * j, pr[j])
        for j in range(5):
            a('v_fmac_f32_dpp v%d, v%d, v%d %s', 8 * j + k, pr[j], vPAR + 4 * j + 1, ROR)
    for j in range(5):
        for q in range(4):
            a('v_cvt_pk_bf16_f32 v%d, v%d, v%d', 64 + 4 * j + q, 8 * j + 2 * q, 8 * j + 2 * q + 1)
        a('ds_write_b128 v%d, %s offset:%d', vHW, v(64 + 4 * j, 4), 1024 * j)
        a('ds_read_b64_tr_b16 %s, v%d offset:%d', v(110 + 4 * j, 2), vHR0, 1024 * j)
        a('ds_read_b64_tr_b16 %s, v%d offset:%d', v(110 + 4 * j + 2, 2), vHR1, 1024 * j + 256)
    HS = OPT['hsplit']
    for j in range(5):
        if HS and j == HS:
            a('s_waitcnt lgkmcnt(0)')
            setpw(13, 104)
        if HS and j >= HS:
            a('s_waitcnt vmcnt(%d)', HS - 1)
        else:
            a('s_waitcnt lgkmcnt(%d)', 12 - 3 * j)
        a('buffer_store_dwordx4 %s, v%d, s[%d:%d], s71 offen offset:%d sc1', v(110 + 4 * j, 4), vHS, RWS, RWS + 3, 256 * j)
    if not HS:
        setpw(13, 104)

def s_b3():
    NS = 4
    acc, HF, CF = 0, 80, [208, 216]
    a('s_cmp_ge_u32 s%d, 2', sW)
    a('s_cselect_b32 s78, s%d, s%d', sCIM, sCRE)
    a('s_cselect_b32 s79, s%d, s%d', sCIM + 1, sCRE + 1)
    srd(R1, 78, 640 * 1280)
    srd(R6, sOUT, 2048 * 1280 * 4)
    a('s_mul_i32 s74, s%d, %d', sW, REGSZ)
    a('s_add_u32 s74, s74, %d', L_REG)
    a('s_and_b32 s78, s%d, 1', sW)
    a('s_mul_i32 s72, s%d, %d', sOG, 80 * 1280)
    a('s_mul_i32 s73, s78, 640')
    a('s_add_u32 s72, s72, s73')
    a('s_mul_i32 s79, s%d, %d', sW, 40 * 256)
    a('s_add_u32 s79, s79, 0x%x', WS_H)
    a('s_lshr_b32 s80, s%d, 1', sW)
    a('s_lshl1_add_u32 s78, s78, s80')
    for l in range(4):
        a('s_xor_b32 s80, s78, %d', l)
        a('s_lshl2_add_u32 s80, s%d, s80', sTB)
        a('s_mul_i32 s80, s80, %d', HBLK)
        a('s_add_u32 s%d, s80, s79', 84 + l)
    a('s_lshl_b32 s88, s%d, 12', sTB)
    a('s_add_u32 s88, s88, 0x%x', F3)
    a('s_lshl2_add_u32 s78, s%d, s78', sTB)
    a('s_mul_i32 s80, s78, %d', 16 * 1280)
    a('s_mul_i32 s81, s%d, 160', sOG)
    a('s_add_u32 s80, s80, s81')
    a('s_mul_i32 s82, s78, %d', 16 * 5120)
    a('s_lshl1_add_u32 s82, s81, s82')
    a('s_add_u32 s82, s82, 2560')
    a('s_add_u32 s90, s%d, s81', sDSK)
    a('s_addc_u32 s91, s%d, 0', sDSK + 1)
    a('s_lshl2_add_u32 s89, s%d, s%d', sOG, sW)
    a('s_mul_i32 s89, s89, 5120')
    a('s_mul_i32 s79, s%d, %d', sTB, 4 * HBLK)
    a('s_add_u32 s89, s89, s79')
    a('s_add_u32 s89, s89, 0x%x', WS_H)
    a('s_waitcnt vmcnt(0)')
    setflag(70, 40)
    if OPT['otag'] and not OPT['amark'] and not OPT['smark']:
        s_mark(False)
    stamp('S', 'hpub')
    if OPT['tlate']:
        for k in range(4):
            a('s_mov_b32 s%d, s%d', 4 + k, 84 + k)
        for r in range(OPT['tearly'], 6):
            for o in touch(r):
                a(o)
            a('s_waitcnt vmcnt(0)')
        for k in range(4):
            a('s_mov_b32 s%d, s%d', 84 + k, 4 + k)
    if OPT['newpre']:
        def cdma(n, pace=None):
            kp, j = divmod(n, 5)
            a('s_add_u32 m0, s74, %d', 2048 * (n % NS))
            a('s_add_u32 s76, s%d, %d', 4 + kp, 16 * 1280 * j)
            for k in range(2):
                if pace is not None:
                    a('s_waitcnt vmcnt(%d)', pace)
                a(dma(vCA + k, R1, 76, 1024 * k))
        def hload(l, ks):
            return 's_add_u32 s9, s%d, s%d\nbuffer_load_dwordx4 %s, v%d, s[%d:%d], s9 offen offset:%d sc1' % (
                84 + l, 12 + ks // 2, v(HF + 16 * (ks % 8) + 4 * l, 4), vHA, RWS, RWS + 3, 1024 * (ks & 1))
        srd(R0, sWO, 640 * 1280)
        rot5(83, 73)
        for kp in range(5):
            a('s_lshl_b32 s73, s83, 7')
            a('s_add_u32 s%d, s72, s73', 4 + kp)
            a('s_lshl_b32 s%d, s83, 11', 12 + kp)
            a('s_lshl2_add_u32 s%d, s83, s%d', 17 + kp, sW)
            a('s_add_u32 s83, s83, 1')
            a('s_cmp_eq_u32 s83, 5')
            a('s_cselect_b32 s83, 0, s83')
        NIT = 5 - OPT['woe'] // 2
        if OPT['woe']:
            a('s_cmp_ge_u32 s83, %d', NIT)
            a('s_cselect_b32 s73, %d, 0', NIT)
            a('s_sub_u32 s83, s83, s73')
            if NIT == 4:
                a('s_add_u32 s83, s%d, s%d', sI, sXCD)
                a('s_and_b32 s83, s83, 3')
            for it in range(NIT):
                a('s_lshl2_add_u32 s%d, s83, s%d', 17 + it, sW)
                a('s_add_u32 s%d, s%d, %d', 17 + it, 17 + it, 2 * OPT['woe'])
                a('s_add_u32 s83, s83, 1')
                a('s_cmp_eq_u32 s83, %d', NIT)
                a('s_cselect_b32 s83, 0, s83')
        a('s_mul_i32 s75, s%d, 160', sOG)
        waitpw(vSPW, 13, 41, sleep=2)
        for n in range(NS):
            cdma(n, OPT['thrc'])
        pl = 'buffer_load_dword v41, v%d, s[%d:%d], s88 offen sc1' % (vF3, RWS, RWS + 3)
        for it in range(NIT):
            if it == OPT['f3at']:
                a('s_mov_b32 exec_hi, 0')
                a(pl)
                a('s_mov_b32 exec_hi, -1')
            a('s_mul_i32 s79, s%d, 40960', 17 + it)
            a('s_add_u32 s79, s79, s75')
            a('s_mul_i32 s78, s%d, 5120', 17 + it)
            a('s_mov_b32 m0, s78')
            for i in range(5):
                if i == 4:
                    a('s_add_u32 m0, s78, 4096')
                a('s_waitcnt vmcnt(%d)', OPT['thrw'] + (1 if it == NIT - 1 and OPT['hin'] else 0))
                a(dma(vWOA + i, R0, 79, 1024 * (i & 3)))
                if it == NIT - 1 and OPT['hin'] and i < 4:
                    a(hload(i, 0))
                    a(hload(i, 1))
            if it == OPT['f3at']:
                a('s_mov_b32 exec_hi, 0')
                a('s_waitcnt vmcnt(5)')
                a('v_cmp_eq_u32 vcc, 0, v41')
                a('s_cbranch_vccz L_f3seen')
                a('s_mov_b64 exec, vcc')
                pollflags([pl], 41, sleep=4)
                a.label('L_f3seen')
                a('s_mov_b64 exec, -1')
                stamp('S', 'f3')
                if OPT['htouch']:
                    a('buffer_load_dword v41, v%d, s[%d:%d], s89 offen sc1', vHT, RWS, RWS + 3)
        stamp('S', 'wo')
        a('v_mov_b32 v42, 14')
        for ks in range(0 if OPT['hin'] else 2):
            for l in range(4):
                a('s_waitcnt vmcnt(%d)', OPT['thrw'] + 1)
                a(hload(l, ks))
        if OPT['hin']:
            a('s_waitcnt vmcnt(0)')
        a('ds_write_b32 v%d, v42', vPW)
        a('s_setprio %d', OPT['b3prio'])
    else:
        stamp('S', 'touch')
        s_wo()
        waitpw(vSPW, 13, 40, sleep=2)
        def cdma(n):
            kp, j = divmod(n, 5)
            a('s_add_u32 m0, s74, %d', 2048 * (n % NS))
            a('s_add_u32 s76, s%d, %d', 4 + kp, 16 * 1280 * j)
            a(dma(vCA, R1, 76, 0))
            a(dma(vCA + 1, R1, 76, 1024))
        for n in range(NS):
            cdma(n)
            a('s_waitcnt vmcnt(%d)', 0 if n == NS - 1 else 4)
        setpw(14, 40)
        stamp('S', 'wo')
        a('s_cmp_eq_u32 s%d, 2', sW)
        a('s_cbranch_scc0 L_f3wait')
        a('s_mov_b32 exec_hi, 0')
        pollflags(['buffer_load_dword v40, v%d, s[%d:%d], s88 offen sc1' % (vF3, RWS, RWS + 3)], 40, sleep=4)
        setpw(15, 40)
        a.label('L_f3wait')
        waitpw(vS2PW, 15, 40, sleep=4)
        stamp('S', 'f3')
        a('s_setprio %d', OPT['b3prio'])
        def hload(l, ks):
            return 's_add_u32 s9, s%d, s%d\nbuffer_load_dwordx4 %s, v%d, s[%d:%d], s9 offen offset:%d sc1' % (
                84 + l, 12 + ks // 2, v(HF + 16 * (ks % 8) + 4 * l, 4), vHA, RWS, RWS + 3, 1024 * (ks & 1))
        a('buffer_load_dword v40, v%d, s[%d:%d], s89 offen sc1', vHT, RWS, RWS + 3)
        for ks in range(2):
            if ks:
                a('s_waitcnt vmcnt(0)')
            for l in range(4):
                a(hload(l, ks))
    def creads(n):
        return ['ds_read_b128 %s, v%d offset:%d' % (v(CF[n & 1] + 4 * k, 4), vCR + k, 2048 * (n % NS)) for k in range(2)]
    q = []
    def waitfor(tag):
        idx = max(i for i, x in enumerate(q) if x == tag)
        n = len(q) - 1 - idx
        del q[:idx + 1]
        return n
    for r in creads(0):
        a(r)
    a('s_waitcnt vmcnt(0) lgkmcnt(0)')
    stamp('S', 'b3go')
    cdma(NS)
    q += [NS, NS]
    vX, vD = HF + 64, HF + 74
    hq = [(l, ks) for ks in range(2, 10) for l in range(4)]
    STOP = OPT['b3stop']
    frag = {0: CF[0]}
    free = [216, 224, 232, 240]
    def creads(n):
        return ['ds_read_b128 %s, v%d offset:%d' % (v(frag[n] + 4 * k, 4), vCR + k, 2048 * (n % NS)) for k in range(2)]
    def fetch():
        n = len(frag)
        frag[n] = free.pop(0)
        if n in q:
            a('s_waitcnt vmcnt(%d)', waitfor(n))
        for r in creads(n):
            a(r)
        return n
    def refill(n, defer=False):
        a('s_waitcnt lgkmcnt(0)')
        if n + NS < 25:
            cdma(n + NS)
            if defer:
                q.append(n + NS)
                return (a.lines.pop(), n + NS)
            q.extend([n + NS, n + NS])
    t0, t1, t2 = 175, 249, vAP4
    addr = ['v_lshrrev_b32 v%d, 2, v%d' % (t0, vLANE),
            'v_and_b32 v%d, 3, v%d' % (t1, vLANE),
            'v_lshlrev_b32 v%d, 3, v%d' % (vDO, t1),
            'v_mul_u32_u24 v%d, 1280, v%d' % (t2, t0),
            'v_add_u32 v%d, v%d, v%d' % (vXO, t2, vDO),
            'v_lshlrev_b32 v%d, 4, v%d' % (t1, t1),
            'v_lshl_add_u32 v%d, v%d, 2, v%d' % (vOA, t2, t1),
            'v_mul_u32_u24 v%d, 336, v%d' % (t2, t0),
            'v_add3_u32 v%d, v%d, v%d, s92' % (vRA, t2, t1),
            'v_add3_u32 v%d, v%d, v%d, s93' % (vRA + 1, t2, t1),
            'v_lshlrev_b32 v%d, 4, v%d' % (t1, t1),
            'v_lshl_add_u32 v%d, v%d, 2, v%d' % (t1, vLANE, t1),
            'v_add_u32 v%d, %d, v%d' % (vAP4, L_PW, t1),
            'v_add_u32 v%d, s74, v%d' % (vR1W, vHA),
            'v_add_u32 v%d, s92, v%d' % (vR1R, vHA),
            'v_and_b32 v%d, 15, v%d' % (t0, vLANE),
            'v_mul_u32_u24 v%d, 336, v%d' % (t0, t0),
            'v_and_b32 v%d, 48, v%d' % (t1, vLANE),
            'v_add3_u32 v%d, v%d, v%d, s92' % (vR2W, t0, t1),
            'v_xor_b32 v%d, 256, v%d' % (vPW1, vPW),
            'v_xor_b32 v%d, 512, v%d' % (vPW2, vPW)]
    FL = OPT['fline'] & 2
    if FL:
        pXO, pDO, pOA, pRA = 160, 161, 162, (163, 175)
        a('s_and_b32 s22, s%d, 1', sOG)
        a('s_xor_b32 s23, s22, 1')
        a('s_lshl_b32 s22, s22, 2')
        a('s_lshl_b32 s23, s23, 4')
        a('s_add_u32 s24, s80, %d', 8 * 1280)
        a('s_add_u32 s25, s82, %d', 8 * 5120)
        def aset(sh, mask, so, xo, do, oa, ra):
            return ['v_and_b32 v%d, %d, v%d' % (t1, mask, vLANE),
                    'v_add_lshl_u32 v%d, v%d, s%d, 3' % (do, t1, so),
                    'v_lshrrev_b32 v%d, %d, v%d' % (t1, sh, vLANE),
                    'v_mul_u32_u24 v%d, 1280, v%d' % (t2, t1),
                    'v_add_u32 v%d, v%d, v%d' % (xo, t2, do),
                    'v_add_lshl_u32 v%d, v%d, v%d, 1' % (oa, t2, xo),
                    'v_mul_u32_u24 v%d, 168, v%d' % (t2, t1),
                    'v_add_lshl_u32 v%d, v%d, v%d, 1' % (t2, t2, do),
                    'v_add_u32 v%d, s92, v%d' % (ra[0], t2),
                    'v_add_u32 v%d, s93, v%d' % (ra[1], t2)]
        addr = aset(3, 7, 22, pXO, pDO, pOA, pRA) + aset(2, 3, 23, vXO, vDO, vOA, (vRA, vRA + 1)) + [
            'v_add_u32 v%d, s74, v%d' % (vR1W, vHA),
            'v_add_u32 v%d, s92, v%d' % (vR1R, vHA),
            'v_and_b32 v%d, 15, v%d' % (t2, vLANE),
            'v_mul_u32_u24 v%d, 336, v%d' % (t2, t2),
            'v_and_b32 v%d, 48, v%d' % (t1, vLANE),
            'v_add3_u32 v%d, v%d, v%d, s92' % (vR2W, t2, t1),
            'v_xor_b32 v%d, 256, v%d' % (vPW1, vPW),
            'v_xor_b32 v%d, 512, v%d' % (vPW2, vPW),
            'v_and_b32 v%d, 3, v%d' % (t1, vLANE),
            'v_lshlrev_b32 v%d, 8, v%d' % (t1, t1),
            'v_lshl_add_u32 v%d, v%d, 2, v%d' % (t1, vLANE, t1),
            'v_add_u32 v%d, %d, v%d' % (vAP4, L_PW, t1)]
    dsel = (lambda i: (i & 1) if i < 4 else 2) if FL else (lambda i: i)
    FR = OPT['fastred']
    U = 180
    def skipops(i, t):
        o = []
        for hf in range(2):
            o += ['v_lshlrev_b32 v%d, 16, v%d' % (t, vX + 2 * i + hf),
                  'v_lshlrev_b32 v%d, 16, v%d' % (t + 1, vD + 2 * dsel(i) + hf),
                  'v_and_b32 v%d, 0xffff0000, v%d' % (t + 2, vX + 2 * i + hf),
                  'v_and_b32 v%d, 0xffff0000, v%d' % (t + 3, vD + 2 * dsel(i) + hf),
                  'v_mul_f32 v%d, v%d, v%d' % (U + 4 * i + 2 * hf, t, t + 1),
                  'v_mul_f32 v%d, v%d, v%d' % (U + 4 * i + 2 * hf + 1, t + 2, t + 3)]
        return o
    w1 = lambda qd: 'ds_write_b128 v%d, %s offset:%d' % (vR1W, v(acc + 40 + 4 * qd, 4), 1024 * qd)
    if FR:
        assert FL and OPT['b3res'] >= 7
        def xl(i):
            o = []
            if i in (0, 1, 4):
                o.append('global_load_dwordx2 %s, v%d, s[90:91] offset:%d' % (v(vD + 2 * dsel(i), 2), pDO if i < 4 else vDO, 64 * (i & 1)))
            o.append('buffer_load_dwordx2 %s, v%d, s[%d:%d], s%d offen offset:%d' % (v(vX + 2 * i, 2), pXO if i < 4 else vXO, R3, R3 + 3,
                                                                                  24 if i in (2, 3) else 80, 64 * (i & 1)))
            return o
        addr = addr[:5] + xl(0) + xl(1) + xl(2) + xl(3) + addr[5:15] + xl(4) + addr[15:]
        skq = [o for i in range(5) for o in skipops(i, 176)]
    assert 10 <= STOP <= 15
    for n in range(25):
        kp, j = divmod(n, 5)
        if n == 10:
            free += [HF + 32 + 8 * k for k in range(4)]
        if n == STOP:
            while len(frag) <= 20 or hq:
                for _ in range(1 if OPT['even'] else 99):
                    if hq:
                        l, ks = hq.pop(0)
                        a(hload(l, ks))
                        q.append('h%d' % (ks // 2))
                if len(frag) <= 20:
                    refill(fetch())
            a('s_setprio 1')
            a('v_and_b32 v%d, 1, v%d', vAM, vLANE)
            a('v_lshlrev_b32 v%d, 9, v%d', vAM, vAM)
            a('v_xor_b32 v%d, v%d, v%d', vAM, vAM, vPW)
            a('v_subrev_u32 v%d, 1024, v%d', vAM, vAM)
            a('s_waitcnt vmcnt(0)')
            del q[:]
            stamp('S', 'b3stop')
            waitpw(vAM, OPT['b3res'], 249, sleep=OPT['rsleep'])
            stamp('S', 'b3res')
        want = (25 if FR else n + 2) if n >= STOP else max(n + 2, 21 - OPT['ahead'] * (STOP - 1 - n))
        f1 = fetch() if (len(frag) < min(25, want) and free) else None
        if j == 0 and 'h%d' % kp in q:
            a('s_waitcnt vmcnt(%d)', waitfor('h%d' % kp))
        if OPT['fine'] >= 2 and n in (3, 6, 9):
            stamp('S', 'u%d' % n)
        extra = []
        for _ in range(OPT['hrate']):
            if hq and (hq[0][1] < 8 or n >= 5):
                l, ks = hq.pop(0)
                extra.append((hload(l, ks), 'h%d' % (ks // 2)))
        if FR:
            if n == FR:
                a('s_waitcnt vmcnt(0)')
        elif 16 <= n < 21 and FL:
            i = n - 16
            if i in (0, 1, 4):
                extra.append(('global_load_dwordx2 %s, v%d, s[90:91] offset:%d' % (v(vD + 2 * dsel(i), 2), pDO if i < 4 else vDO, 64 * (i & 1)), 'x'))
            extra.append(('buffer_load_dwordx2 %s, v%d, s[%d:%d], s%d offen offset:%d' % (v(vX + 2 * i, 2), pXO if i < 4 else vXO, R3, R3 + 3,
                                                                                     24 if i in (2, 3) else 80, 64 * (i & 1)), 'x'))
        elif 16 <= n < 21:
            i = n - 16
            extra += [('global_load_dwordx2 %s, v%d, s[90:91] offset:%d' % (v(vD + 2 * i, 2), vDO, 32 * i), 'x'),
                      ('buffer_load_dwordx2 %s, v%d, s[%d:%d], s80 offen offset:%d' % (v(vX + 2 * i, 2), vXO, R3, R3 + 3, 32 * i), 'x')]
        cnt = 0
        f2 = None
        for k in range(2):
            ks = 2 * kp + k
            for l in ((2, 3, 0, 1) if FR and n >= 20 else range(4)):
                d = acc + 20 * l + 4 * j
                a('v_mfma_f32_16x16x32_bf16 %s, %s, %s, %s', v(d, 4), v(frag[n] + 4 * k, 4), v(HF + 16 * (ks % 8) + 4 * l, 4),
                  '0' if ks == 0 else v(d, 4))
                cnt += 1
                if FR and n >= 15:
                    if n >= 21 and cnt in (6, 7):
                        assert len(frag) == 25
                        a(w1((n - 21) + 5 * (cnt - 6)))
                    else:
                        for _ in range(2):
                            if addr:
                                a(addr.pop(0))
                            elif n >= FR and skq:
                                a(skq.pop(0))
                    if cnt == 6 and f1 is not None:
                        refill(f1)
                    continue
                EV = OPT['even'] and n < STOP - 1 and OPT['hrate'] == 2
                if EV:
                    if cnt == 3:
                        second = refill(f1, True)
                    if cnt == 7:
                        assert second
                        a(second[0])
                        q.append(second[1])
                    if cnt in (1, 5) and extra:
                        o, tg = extra.pop(0)
                        a(o)
                        q.append(tg)
                    continue
                if cnt in (1, 2, 5, 6) and extra:
                    o, tg = extra.pop(0)
                    a(o)
                    q.append(tg)
                elif n >= 15 and addr:
                    a(addr.pop(0))
                if cnt == (4 if n < STOP else 6) and f1 is not None:
                    refill(f1)
                    if len(frag) < min(21, want) and free:
                        f2 = fetch()
                if cnt == 8 and f2 is not None:
                    refill(f2)
        assert not extra
        free.append(frag[n])
    assert not addr
    assert not hq
    stamp('S', 'b3gemm')
    T = 112
    def rsel(i, b):
        if not FL:
            return vRA + b, 64 * i
        return (pRA[b], 8 * 336 * (i >> 1) + 128 * (i & 1)) if i < 4 else (vRA + b, 0)
    if FR:
        a('v_mov_b32 v%d, 17', T + 2)
        a('v_mov_b32 v%d, 18', T + 3)
        for o in skq[:3]:
            a(o)
        a(w1(4))
        a(w1(9))
        a('ds_write_b32 v%d, v%d', vPW, T + 2)
        for nm in ('w1', 'xw'):
            if OPT['fine'] == 2:
                stamp('S', nm)
        half = 3 + (len(skq) - 3) // 2
        for o in skq[3:half]:
            a(o)
        if OPT['fine'] == 2:
            stamp('S', 'r1w')
        order = (5, 6, 7, 8, 9, 0, 1, 2, 3, 4)
        waitpw(vPW1, 17, T + 1, extra=['ds_read_b128 %s, v%d offset:%d' % (v(acc + 40 + 4 * qd, 4), vR1R, 1024 * qd) for qd in order])
        if OPT['fine'] == 2:
            stamp('S', 'r1s')
        for i, qd in enumerate(order):
            l, j = divmod(qd, 5)
            a('s_waitcnt lgkmcnt(%d)', 9 if i < 5 else 10)
            for e in range(4):
                a('v_add_f32 v%d, v%d, v%d', acc + 4 * qd + e, acc + 4 * qd + e, acc + 40 + 4 * qd + e)
            a('ds_write_b128 v%d, %s offset:%d', vR2W, v(acc + 4 * qd, 4), 16 * 336 * l + 64 * j)
            if qd == 9:
                a('ds_write_b32 v%d, v%d', vPW, T + 3)
        for i in range(5):
            a('ds_read_b128 %s, v%d offset:%d', v(acc + 40 + 8 * i, 4), *rsel(i, 0))
        for o in skq[half:]:
            a(o)
    else:
        if OPT['b3res'] < 7:
            waitpw(vAM, 7, T, sleep=2)
        else:
            a('s_nop 3')
        for qd in range(10):
            a('ds_write_b128 v%d, %s offset:%d', vR1W, v(acc + 40 + 4 * qd, 4), 1024 * qd)
        setpw(17, T + 1)
        if OPT['fine'] == 2:
            stamp('S', 'w1')
        a('s_waitcnt vmcnt(0)')
        if OPT['fine'] == 2:
            stamp('S', 'xw')
        U = 180
        def rsel(i, b):
            if not FL:
                return vRA + b, 64 * i
            return (pRA[b], 8 * 336 * (i >> 1) + 128 * (i & 1)) if i < 4 else (vRA + b, 0)
        def skip(i):
            for hf in range(2):
                a('v_lshlrev_b32 v%d, 16, v%d', T + 4, vX + 2 * i + hf)
                a('v_lshlrev_b32 v%d, 16, v%d', T + 5, vD + 2 * dsel(i) + hf)
                a('v_and_b32 v%d, 0xffff0000, v%d', T + 6, vX + 2 * i + hf)
                a('v_and_b32 v%d, 0xffff0000, v%d', T + 7, vD + 2 * dsel(i) + hf)
                a('v_mul_f32 v%d, v%d, v%d', U + 4 * i + 2 * hf, T + 4, T + 5)
                a('v_mul_f32 v%d, v%d, v%d', U + 4 * i + 2 * hf + 1, T + 6, T + 7)
        skip(0)
        skip(1)
        if OPT['fine'] == 2:
            stamp('S', 'r1w')
        waitpw(vPW1, 17, T + 1)
        if OPT['fine'] == 2:
            stamp('S', 'r1s')
        for qd in (5, 6, 7, 8, 9, 0, 1, 2, 3, 4):
            a('ds_read_b128 %s, v%d offset:%d', v(acc + 40 + 4 * qd, 4), vR1R, 1024 * qd)
        skip(2)
        a('s_waitcnt lgkmcnt(0)')
        for qd in (5, 6, 7, 8, 9, 0, 1, 2, 3, 4):
            l, j = divmod(qd, 5)
            for e in range(4):
                a('v_add_f32 v%d, v%d, v%d', acc + 4 * qd + e, acc + 4 * qd + e, acc + 40 + 4 * qd + e)
            a('ds_write_b128 v%d, %s offset:%d', vR2W, v(acc + 4 * qd, 4), 16 * 336 * l + 64 * j)
            if qd == 9:
                setpw(18, T + 1)
        for i in range(5):
            a('ds_read_b128 %s, v%d offset:%d', v(acc + 40 + 8 * i, 4), *rsel(i, 0))
        skip(3)
        skip(4)
    if OPT['fine'] == 2:
        stamp('S', 'r2w')
    rd2 = ['ds_read_b128 %s, v%d offset:%d' % ((v(acc + 44 + 8 * i, 4),) + tuple(rsel(i, 1))) for i in range(5)]
    waitpw(vPW2, 18, T + 1, extra=rd2 if FR else ())
    if OPT['fine'] == 2:
        stamp('S', 'r2s')
    if not FR:
        for o in rd2:
            a(o)
    for i in range(5):
        for e in range(4):
            a('v_add_f32 v%d, v%d, v%d', U + 4 * i + e, U + 4 * i + e, acc + 40 + 8 * i + e)
    for i in range(5):
        a('s_waitcnt lgkmcnt(%d)', 4 - i)
        for e in range(4):
            a('v_add_f32 v%d, v%d, v%d', U + 4 * i + e, U + 4 * i + e, acc + 44 + 8 * i + e)
    stamp('S', 'yrdy')
    if OPT['yhold']:
        waitpw(vAP4, 9, T + 1, sleep=OPT['ysleep'])
    for i in range(5):
        if FL:
            a('buffer_store_dwordx4 %s, v%d, s[%d:%d], s%d offen offset:%d%s', v(U + 4 * i, 4), pOA if i < 4 else vOA, R6, R6 + 3,
              25 if i in (2, 3) else 82, 128 * (i & 1), YSC)
        else:
            a('buffer_store_dwordx4 %s, v%d, s[%d:%d], s82 offen offset:%d%s', v(U + 4 * i, 4), vOA, R6, R6 + 3, 64 * i, YSC)
    finish('S')

prologue()
a.c('======== S role: set-up, first stages of the QKV GEMM')
s_setup()
a.c('======== S role: loader of the QKV GEMM')
s_qloader()
if OPT['sexit'] == 1:
    setpw(99, 40)
    finish('S')
a.c('======== S role: SSM input GEMM')
s_b1()
if OPT['sexit'] == 2:
    setpw(99, 40)
    finish('S')
a.c('======== S role: scan')
s_scan()
a.c('======== S role: SSM output GEMM')
s_b3()
a.label('L_exit')
a('s_endpgm')
flush_cold()
a.c('======== A role: set-up')
a_setup()
if OPT['alate'] != 1:
    a_b1_setup()
if not OPT['alate']:
    a_att_setup()
if OPT['aearly']:
    n0_ = len(a.lines)
    a_att_setup()
    del a.lines[n0_ + OPT['aearly']:]
a.c('======== A role: QKV GEMM')
a_qphase()
a.c('======== A role: loader of the SSM input GEMM, wait for Q/K/V')
a_handoff()
a.c('======== A role: attention')
a_attention()
a.c('======== A role: output projection')
a_outproj()
flush_cold()
a.label('L_codeend')

DOC = '; ---------------------------------------------------------------------------------------------------------------\n; Hand-offs between workgroups: write-through (sc1) stores, s_waitcnt vmcnt, then a flag on its own line; readers poll\n; and load with sc1.  Flags are cleared in this launch before use (signalled through d_debug).  All waits are bounded.\n; ---------------------------------------------------------------------------------------------------------------\n'
errs = check(a.lines)
for e_ in errs:
    print('HAZARD', e_, file=sys.stderr)

head = open('cdna_kernels/%s.s.ref' % NAME).read().split('; @launch')[0]
out = head + '; @launch grid=(256,1,1) block=(512,1,1) lds=%d\n' % LDS_BYTES
out += DOC
out += '''.amdgcn_target "amdgcn-amd-amdhsa--gfx950"
.text
.globl %s_kernel
.p2align 8
.type %s_kernel,@function
%s_kernel:
''' % (NAME, NAME, NAME)
body = a.text().replace('QSC', ['sc1', 'sc0 sc1', 'sc1 nt', 'sc0 sc1 nt'][OPT['qsc']])
foot = '''.section .rodata,"a"
.p2align 6
.amdhsa_kernel %s_kernel
  .amdhsa_next_free_vgpr 256
  .amdhsa_next_free_sgpr 102
  .amdhsa_accum_offset 256
  .amdhsa_group_segment_fixed_size 0
  .amdhsa_kernarg_size 120
  .amdhsa_user_sgpr_count 2
  .amdhsa_user_sgpr_kernarg_segment_ptr 1
  .amdhsa_system_sgpr_workgroup_id_x 1
.end_amdhsa_kernel
''' % NAME
import re, subprocess
def render(pads):
    def f(m):
        if not OPT['pgalign']:
            return ''
        al = 12 if (m.group(1) == 'L_roleA' or not OPT['q16']) else 6
        return '.p2align %d\n.fill %d, 4, 0xbf810000' % (al, pads.get(m.group(1), 0) // 4)
    return out + re.sub(r'\.PAD (\w+) (\w+)', f, body) + foot
pads = {}
for it_ in range(4 if OPT['pgalign'] else 0):
    open('pad.s', 'w').write(render(pads))
    subprocess.run(['clang', '-x', 'assembler', '-target', 'amdgcn-amd-amdhsa', '-mcpu=gfx950', '-c', 'pad.s', '-o', 'pad.o'], check=True)
    sym = {l.split()[-1]: int(l.split()[0], 16) for l in subprocess.run(['llvm-objdump', '-t', 'pad.o'], capture_output=True, text=True).stdout.splitlines() if ' L_' in l}
    for st_, tg_ in re.findall(r'\.PAD (\w+) (\w+)', body)[it_:]:
        d = (-(sym[tg_] - pads.get(st_, 0))) % 4096
        pads[st_] = (d + 63) // 64 * 64 % 4096
open(sys.argv[1], 'w').write(render(pads))
if DIAG:
    import json
    json.dump(nstamp, open(sys.argv[1] + '.stamps.json', 'w'))
import subprocess
r_ = subprocess.run(['clang', '-x', 'assembler', '-target', 'amdgcn-amd-amdhsa', '-mcpu=gfx950', '-c', sys.argv[1], '-o', 'chk.o'], capture_output=True, text=True)
if r_.returncode:
    print(r_.stderr[:2000])
    sys.exit(1)
if errs:
    sys.exit(1)
```

```python
import sys, math, struct
from asmlib import Asm, v, s, check

NAME = 'concat_heads__mha_block__ssm_conv_s5__prompt'
OPT = dict(diag=0, b3start=12, force_fb=0, psleep=0, fine=0, cpre=1, stag=10, b1dep=2, rot=1, thr=4, hold=3, codepre=2, psleep4=0, padto=0, outsc1=1, gate4=-1, early0=1, st10=3, b1prio=0, probe='', probewg=-1, sexit=0, b3prio=0, nocdma=0, mallpre=0, b3early=1, pretouch=-1, pace=0, pause=1, wolate=1, thrw=2, kvsplit=5, tstart=0, k2split=0, gate1='x', tlate=0, spread=1, pollat=17, tearly=0, b3stop=12, b3res=8, hrate=2, yhold=1, rot5=1, wopack=0, olead=20, allpoll=1, ysc=1, clrwide=0, nodup=1, onewait=0, vzero=1, lalign=6, lpad=0, epoll=0, npre=2, tprio=0, pgate=1, p3dyn=0, flip=1, newpre=1, f3at=2, gtouch=3, pkmerge=1, kvplain=0, acq=0, stagb=4, alate=2, slate=0, plate=1, seq='', unroll=2, lean=1, yearly=0, ysleep=2, cmap=1, l2pre=2, xpre=0, hack16=0, fastpro=1, gsleep=0, rsleep=2, xtail=1, ctail=0, hin=1, ahead=9, woe=0, thre=2, tlb=0, qsc=0, otag=0, amark=0, smark=0, x8first=1, pgalign=1, aearly=109, adep=2, eb=0, s1late=1, rotm=7, nowait=0, hsplit=1, thrc=3, even=1, jout=0, fline=3, klin=3, fastred=0, snodup=0, w7pre=0, otouch=1, htouch=1, orot=0, q16=1, qspread=8, pgst=4, snake=1, split2=0, bsnake=0, dmasc=0, wosc=0, qprio=0)
for a_ in sys.argv[2:]:
    k_, v_ = a_.split('=')
    OPT[k_] = v_ if k_ in ('probe', 'gate1', 'seq') else int(v_)
DIAG = OPT['diag']
OSC = ['', ' sc1', ' nt', ' sc1 nt'][OPT['outsc1']]
YSC = ['', ' sc1', ' nt', ' sc1 nt'][OPT['ysc']]

def f2u(x):
    return struct.unpack('<I', struct.pack('<f', x))[0]

BLK, VOFF, VROW = 247808, 164864, 10368
WS_H, HBLK = 0x800000, 40960
WS_O, OBLK = 0xD00000, 20480
WS_E = 0xF80000
WS_F = 0xFA0000
F1, F3, F4 = WS_F, WS_F + 0x8000, WS_F + 0x28000
WS_WP = 0x1000000
WS_END = WS_WP + 8 * 102400
WS_DIAG = 0x1100000
OOB = 0x7F000000
L_HT, L_H, L_EL, L_PL = 65536, 86016, 86528, 91648
L_PAR, L_Z = 131072, 132096
L_WO = 0
L_REG, REGSZ = 102400, 14848
L_PW = 161792
LDS_BYTES = 163840
sAX, sWQ, sWO, sBX, sLRE, sLIM, sBRE, sBIM, sCRE, sCIM, sLDT, sDSK, sOUT, sDBG, sWS = range(4, 34, 2)
sW, sI, sXCD = 34, 35, 3
R0, R1, RWS, R3, R4, R5, R6 = 36, 40, 44, 48, 52, 56, 60
sRB, sCG, sHD, sQB, sTB, sOG = 64, 65, 66, 67, 68, 69
sG = 97
sSPIN = 96
sHI = 94
vLANE, vPW, vTS = 254, 253, 255
SPIN_MAX = 1 << 19

a = Asm()
nstamp = {}

def stamp(role, name):
    if OPT['probe'] == role + name:
        a('s_memrealtime s[98:99]')
        a('s_waitcnt lgkmcnt(0)')
        a('s_mov_b32 s101, s98')
    if not DIAG:
        return
    l = nstamp.setdefault(role, [])
    if DIAG == 2:
        l.append(name)
        if role + name == 'Aattpro':
            a('s_memrealtime s[98:99]')
            a('s_waitcnt lgkmcnt(0)')
            a('v_writelane_b32 v%d, s98, 29', vTS)
        return
    idx = len(l)
    l.append(name)
    a('s_memtime s[98:99]')
    a('s_memrealtime s[100:101]')
    a('s_waitcnt lgkmcnt(0)')
    a('v_writelane_b32 v%d, s98, %d', vTS, idx)
    a('v_writelane_b32 v%d, s100, %d', vTS, 32 + idx)

def srd(r, base, nbytes):
    a('s_mov_b32 s%d, s%d', r, base)
    a('s_mov_b32 s%d, s%d', r + 1, base + 1)
    if isinstance(nbytes, int):
        a('s_mov_b32 s%d, 0x%x', r + 2, nbytes)
    else:
        a('s_mov_b32 s%d, %s', r + 2, nbytes)
    a('s_mov_b32 s%d, 0x20000', r + 3)

def setpw(val, tmp):
    a('v_mov_b32 v%d, %d', tmp, val)
    a('ds_write_b32 v%d, v%d', vPW, tmp)

COLD = []

def retry(label, back, sleep, pre=()):
    COLD.append(label + ':')
    COLD.extend(pre)
    if sleep:
        COLD.append('s_sleep %d' % sleep)
    COLD.append('s_sub_u32 s%d, s%d, 1' % (sSPIN, sSPIN))
    COLD.append('s_cbranch_scc0 %s' % back)
    COLD.append('s_endpgm')

def flush_cold():
    a.lines.extend(COLD)
    del COLD[:]

def waitpw(vaddr, val, tmp, sleep=0, extra=()):
    L = a.newlabel('pw')
    D = a.newlabel('pwr')
    a.label(L)
    a('ds_read_b32 v%d, v%d', tmp, vaddr)
    for e in extra:
        a(e)
    if not sleep:
        a('s_sub_u32 s%d, s%d, 1', sSPIN, sSPIN)
        a('s_cbranch_scc1 L_exit')
    a('s_waitcnt lgkmcnt(%d)', len(extra))
    a('v_cmp_gt_u32 vcc, %d, v%d', val, tmp)
    if not sleep:
        a('s_cbranch_vccnz %s', L)
        return
    a('s_cbranch_vccnz %s', D)
    retry(D, L, sleep)

def pollflags(loads, tmp, sleep=1):
    L = a.newlabel('pf')
    D = a.newlabel('pfr')
    a.label(L)
    for l in loads:
        a(l)
    if not sleep:
        a('s_sub_u32 s%d, s%d, 1', sSPIN, sSPIN)
        a('s_cbranch_scc1 L_exit')
    a('s_waitcnt vmcnt(0)')
    for i in range(1, len(loads)):
        a('v_and_b32 v%d, v%d, v%d', tmp, tmp, tmp + i)
    a('v_cmp_eq_u32 vcc, 0, v%d', tmp)
    if not sleep:
        a('s_and_b64 exec, exec, vcc')
        a('s_cbranch_scc1 %s', L)
    else:
        a('s_cbranch_vccnz %s', D)
        retry(D, L, sleep, ['s_mov_b64 exec, vcc'])
    a('s_mov_b64 exec, -1')

def dbgload(va, vd):
    return 'global_load_dword v%d, v%d, s[%d:%d] sc1' % (vd, va, sDBG, sDBG + 1)

def flagaddr(dst, idx, base, t):
    a('s_lshl_b32 s%d, s%d, 7', dst, idx)
    a('s_add_u32 s%d, s%d, 0x%x', dst, dst, base)

def setflag(soff, tmp):
    a('v_mov_b32 v%d, 1', tmp)
    a('s_mov_b64 exec, 1')
    a('buffer_store_dword v%d, off, s[%d:%d], s%d sc1', tmp, RWS, RWS + 3, soff)
    a('s_mov_b64 exec, -1')

def tau(dst, src, t):
    a('v_and_b32 v%d, 0x13, v%d', dst, src)
    a('v_and_b32 v%d, 4, v%d', t, src)
    a('v_lshl_or_b32 v%d, v%d, 1, v%d', dst, t, dst)
    a('v_and_b32 v%d, 8, v%d', t, src)
    a('v_lshrrev_b32 v%d, 1, v%d', t, t)
    a('v_or_b32 v%d, v%d, v%d', dst, t, dst)

def finish(role):
    if OPT['probe'][:1] == role:
        if OPT['probe'][1:] == 'drained':
            a('s_waitcnt vmcnt(0)')
            stamp(role, 'drained')
        a('s_sub_u32 s101, s101, s100')
        a('s_mul_i32 s101, s101, 10')
        a('s_add_u32 s101, s101, 10000')
        if OPT['probewg'] >= 0:
            a('s_and_b32 s98, s2, 31')
            a('s_cmp_eq_u32 s98, %d', OPT['probewg'])
            a('s_cselect_b32 s101, s101, 0')
        L = a.newlabel('pad')
        a.label(L)
        a('s_sleep 4')
        a('s_memrealtime s[98:99]')
        a('s_waitcnt lgkmcnt(0)')
        a('s_sub_u32 s98, s98, s100')
        a('s_cmp_lt_u32 s98, s101')
        a('s_cbranch_scc1 %s', L)
    if OPT['padto']:
        L = a.newlabel('pad')
        a.label(L)
        a('s_sleep 4')
        a('s_memrealtime s[98:99]')
        a('s_waitcnt lgkmcnt(0)')
        a('s_sub_u32 s98, s98, s100')
        a('s_cmp_lt_u32 s98, %d', OPT['padto'])
        a('s_cbranch_scc1 %s', L)
    if DIAG:
        stamp(role, 'end')
        a('s_waitcnt vmcnt(0)')
        stamp(role, 'drained')
        a('s_memrealtime s[98:99]')
        a('s_waitcnt lgkmcnt(0)')
        a('v_writelane_b32 v%d, s98, 31', vTS)
        a('s_lshl_b32 s70, s2, 3')
        a('s_add_u32 s70, s70, s%d', sW)
        if role == 'S':
            a('s_add_u32 s70, s70, 4')
        a('s_lshl_b32 s70, s70, 8')
        a('s_add_u32 s70, s70, 0x%x', WS_DIAG)
        a('v_lshlrev_b32 v0, 2, v%d', vLANE)
        a('buffer_store_dword v%d, v0, s[%d:%d], s70 offen', vTS, RWS, RWS + 3)
    a('s_endpgm')

def prologue():
    a('s_cmp_ge_u32 s2, 256')
    a('s_cbranch_scc0 L_go')
    a('s_endpgm')
    a.label('L_go')
    if OPT['padto'] or DIAG or OPT['probe']:
        a('s_memrealtime s[100:101]')
    a('s_load_dwordx16 s[4:19], s[0:1], 0')
    a('s_load_dwordx8 s[20:27], s[0:1], 64')
    a('s_load_dwordx4 s[28:31], s[0:1], 96')
    a('s_load_dwordx2 s[32:33], s[0:1], 112')
    a('s_lshr_b32 s%d, s2, 3', sI)
    if OPT['codepre'] == 2:
        a.c('pull the code into L2: every half wave of an XCD touches one line')
        a('s_getpc_b64 s[76:77]')
        a('v_lshrrev_b32 v1, 5, v0')
        a('v_lshl_add_u32 v1, s%d, 4, v1', sI)
        a('v_min_u32 v1, (L_codeend - L_go) / 128 - 1, v1')
        a('v_lshlrev_b32 v1, 7, v1')
        a('global_load_dword v%d, v1, s[76:77]', 149 if OPT['q16'] else 110)
    a('v_lshrrev_b32 v1, 6, v0')
    a('v_and_b32 v%d, 63, v0', vLANE)
    a('v_readfirstlane_b32 s%d, v1', sW)
    a('s_and_b32 s%d, s2, 7', sXCD)
    a('s_and_b32 s70, s%d, 3', sI)
    a('s_lshr_b32 s%d, s%d, 2', sOG, sI)
    a('s_lshr_b32 s71, s%d, 1', sXCD)
    a('s_lshl2_add_u32 s%d, s71, s70', sRB)
    a('s_and_b32 s71, s%d, 1', sXCD)
    a('s_lshl3_add_u32 s%d, s71, s%d', sG, sOG)
    a('s_cmp_ge_u32 s%d, %d', sI, 30 if OPT['cmap'] else 99)
    a('s_cselect_b32 s71, 8, 0')
    a('s_xor_b32 s%d, s%d, s71', sCG, sG)
    if DIAG:
        prologue2()
    a('s_cmp_ge_u32 s%d, 4', sW)
    a('s_cbranch_scc0 L_roleA')

def prologue2():
    a('v_lshlrev_b32 v%d, 2, v0', vPW)
    a('v_add_u32 v%d, %d, v%d', vPW, L_PW, vPW)
    a('v_mov_b32 v0, 0')
    a('ds_write_b32 v%d, v0', vPW)
    a('s_lshr_b32 s71, s%d, 3', sI)
    a('s_lshl2_add_u32 s%d, s%d, s71', sHD, sXCD)
    a('s_and_b32 s%d, s%d, 7', sQB, sI)
    a('s_and_b32 s70, s%d, 3', sI)
    a('s_lshl2_add_u32 s%d, s%d, s70', sTB, sXCD)
    a('s_mov_b32 s%d, 0x%x', sSPIN, SPIN_MAX)
    a('s_mov_b32 s%d, 0', sHI)
    a('s_mov_b32 s%d, -1', sHI + 1)

def ws_setup():
    srd(RWS, sWS, WS_END if not DIAG else WS_DIAG + 0x100000)
    if DIAG:
        a('v_mov_b32 v%d, 0', vTS)
        a('v_writelane_b32 v%d, s100, 30', vTS)

def stagger(k, t, add, flp, mode):
    if mode == 4:
        a('s_and_b32 s%d, s%d, 3', k, sI)
        if flp:
            a('s_xor_b32 s%d, s%d, 1', k, k)
        a('s_mul_i32 s%d, s%d, 5', k, k)
        a('s_lshr_b32 s%d, s%d, 1', k, k)
        a('s_mul_i32 s%d, s%d, 5', t, sOG)
        a('s_lshr_b32 s%d, s%d, 2', t, t)
        a('s_add_u32 s%d, s%d, s%d', k, k, t)
    elif mode in (2, 3):
        a('s_add_u32 s%d, s%d, s%d', k, sI, sOG)
        if flp:
            a('s_xor_b32 s%d, s%d, 1', k, k)
        a('s_and_b32 s%d, s%d, %d', k, k, 1 if mode == 2 else 3)
        a('s_mul_i32 s%d, s%d, 5', k, k)
        if mode == 3:
            a('s_lshr_b32 s%d, s%d, 1', k, k)
    else:
        a('s_mov_b32 s%d, 0', k)
    if mode == 0:
        a('s_mov_b32 s%d, %d', k, add)
        return
    a('s_add_u32 s%d, s%d, %d', t, sXCD, 1 + 2 * add)
    a('s_lshr_b32 s%d, s%d, 1', t, t)
    if mode == 1:
        a('s_add_u32 s%d, s%d, %d', t, sXCD, add)
    a('s_add_u32 s%d, s%d, s%d', k, k, t)
    for _ in range(2 if add else 1):
        a('s_cmp_ge_u32 s%d, 10', k)
        a('s_cselect_b32 s%d, 10, 0', t)
        a('s_sub_u32 s%d, s%d, s%d', k, k, t)

def b1_sources(rx, rb, vx, vb, sm, sb, t, j0=2):
    srd(rx, sBX, 2048 * 1280)
    a('s_cmp_ge_u32 s%d, 2', sW)
    a('s_cselect_b32 s%d, s%d, s%d', t, sBIM, sBRE)
    a('s_cselect_b32 s%d, s%d, s%d', t + 1, sBIM + 1, sBRE + 1)
    srd(rb, t, 640 * 1280)
    a('v_lshrrev_b32 v1, 3, v%d', vLANE)
    a('v_and_b32 v2, 7, v%d', vLANE)
    a('v_lshrrev_b32 v3, 4, v%d', vLANE)
    a('v_xor_b32 v4, v2, v3')
    a('v_and_b32 v5, 3, v1')
    a('v_lshrrev_b32 v6, 2, v1')
    a('v_lshl_add_u32 v5, v6, 3, v5')
    a('v_mul_u32_u24 v5, 1280, v5')
    a('v_lshl_add_u32 v%d, v4, 4, v5', vx)
    a('v_xor_b32 v6, 64, v%d', vx)
    a('v_add_u32 v%d, %d, v6', vx + 1, 16 * 1280 - 1024)
    a('v_add_u32 v%d, %d, v%d', vx + 2, 4 * 1280 - 2048, vx)
    a('v_add_u32 v%d, %d, v6', vx + 3, 20 * 1280 - 3072)
    a('s_lshr_b32 s%d, s%d, 1', t, sW)
    a('s_lshl_b32 s%d, s%d, 6', t + 1, t)
    a('v_mul_u32_u24 v5, 1280, v1')
    a('v_lshl_add_u32 v5, v4, 4, v5')
    a('v_xor_b32 v%d, s%d, v5', vb, t + 1)
    for i in range(1, 3):
        a('v_add_u32 v%d, %d, v%d', vb + i, (10240 - 1024) * i, vb)
    a('s_and_b32 s%d, s%d, 1', t + 1, sW)
    a('s_mul_i32 s%d, s%d, 5120', sm, t)
    a('s_mul_i32 s%d, s%d, %d', sb, t + 1, 1024 * j0)
    a('s_add_u32 s%d, s%d, s%d', sm, sm, sb)
    a('s_mul_i32 s%d, s%d, %d', sb, sG, 40 * 1280)
    a('s_mul_i32 s%d, s%d, %d', t + 1, t + 1, 8 * 1280 * j0)
    a('s_add_u32 s%d, s%d, s%d', sb, sb, t + 1)

def dma(voff, r, soff, imm):
    fl = ['', ' sc1', ' sc0', ' sc0 sc1'][OPT['dmasc']]
    if 186 <= voff <= 190 and not OPT['wosc']:
        fl = ''
    return 'buffer_load_dwordx4 v%d, s[%d:%d], s%d offen offset:%d%s lds' % (voff, r, r + 3, soff, imm, fl)

vAB = 141 if OPT['q16'] else 112

def a_b1stage(t):
    slot = ((t + 1) % 4) * 32768
    a('s_add_u32 m0, s6, %d', slot)
    a('s_lshl_b32 s9, s8, 7')
    a('s_add_u32 s12, s4, s9')
    for i in range(4):
        a(dma(vAB + i, R5, 12, 1024 * i))
    a('s_add_u32 m0, s7, %d', slot + 16384)
    a('s_add_u32 s12, s5, s9')
    L = a.newlabel('b3rd')
    for i in range(3):
        if i == 2 and OPT['nodup']:
            a('s_cmp_eq_u32 s%d, 1', sCW)
            a('s_cbranch_scc1 %s', L)
        a(dma(vAB + 4 + i, R6, 12, 1024 * i))
    a.label(L)
    a('s_add_u32 s8, s8, 1')
    a('s_cmp_eq_u32 s8, 10')
    a('s_cselect_b32 s8, 0, s8')

sTW, sCW = 72, 73
vXA, vWA = 96, 104
vF1A = 252
vAPW = 249

def a_setup():
    a('.PAD L_roleA L_pgQ')
    a.label('L_roleA')
    if not DIAG:
        prologue2()
    a('s_waitcnt lgkmcnt(0)')
    ws_setup()
    stamp('A', 'start')
    a('s_lshr_b32 s%d, s%d, 1', sTW, sW)
    a('s_and_b32 s%d, s%d, 1', sCW, sW)
    a('s_lshl1_add_u32 s75, s%d, s%d', sRB, sTW)
    a('s_mul_i32 s74, s75, %d', BLK)
    if OPT['amark'] == 1:
        a_mark()
    a.c('column group 15 has no GEMM tile: these workgroups clear the flags and write the constant blocks')
    a('s_cmp_eq_u32 s%d, 15', sCG)
    a('s_cbranch_scc0 L_noconst')
    a('s_lshl2_add_u32 s77, s%d, s%d', sRB, sW)
    if OPT['clrwide']:
        a('v_lshlrev_b32 v2, 4, v%d', vLANE)
        a('v_min_u32 v3, 496, v2')
        for i in range(4):
            a('v_mov_b32 v%d, 0', 4 + i)
        a('s_mul_i32 s76, s77, 4608')
        a('s_add_u32 s76, s76, 0x%x', WS_F)
        for i in range(4):
            a('buffer_store_dwordx4 v[4:7], v2, s[%d:%d], s76 offen offset:%d sc1', RWS, RWS + 3, 1024 * i)
        a('s_add_u32 s76, s76, 4096')
        a('buffer_store_dwordx4 v[4:7], v3, s[%d:%d], s76 offen sc1', RWS, RWS + 3)
    else:
        a('v_min_u32 v1, 35, v%d', vLANE)
        a('v_lshlrev_b32 v1, 7, v1')
        a('v_mov_b32 v4, 0')
        a('s_mul_i32 s76, s77, 4608')
        a('s_add_u32 s76, s76, 0x%x', WS_F)
        a('buffer_store_dword v4, v1, s[%d:%d], s76 offen sc1', RWS, RWS + 3)
        a('v_lshlrev_b32 v2, 4, v%d', vLANE)
    for i in range(4):
        a('v_mov_b32 v%d, -1', 20 + i)
    a('s_lshl_b32 s76, s77, 11')
    a('s_add_u32 s76, s76, 0x%x', WS_E)
    for i in range(2):
        a('buffer_store_dwordx4 v[20:23], v2, s[%d:%d], s76 offen offset:%d sc1', RWS, RWS + 3, 1024 * i)
    a('v_lshrrev_b32 v1, 3, v%d', vLANE)
    a('v_mul_u32_u24 v1, %d, v1', VROW - 128)
    a('v_add_u32 v1, %d, v1', VOFF + 640 * 16 - 160 * 1024)
    a('v_mul_lo_u32 v1, v1, s%d', sCW)
    a('v_add_u32 v1, v1, v2')
    a('s_mul_i32 s76, s%d, 0x3f803f80', sCW)
    a('v_mov_b32 v8, 0x3f803f80')
    a('v_mov_b32 v9, s76')
    a('v_mov_b32 v10, v8')
    a('v_mov_b32 v11, s76')
    a('s_add_u32 s76, s74, %d', 160 * 1024)
    a('buffer_store_dwordx4 v[8:11], v1, s[%d:%d], s76 offen sc1', RWS, RWS + 3)
    if OPT['w7pre']:
        srd(R3, sWQ, 640 * 3840)
        a('s_bitcmp1_b32 s%d, 0', sXCD)
        a('s_mov_b32 s76, 0x96521')
        a('s_cselect_b32 s76, 0x87430, s76')
        a('s_add_u32 s77, s%d, 1', sXCD)
        a('s_and_b32 s77, s77, -2')
        a('s_and_b32 s78, s%d, 1', sI)
        a('s_lshl2_add_u32 s78, s78, s%d', sW)
        a('s_mul_i32 s78, s78, %d', 8 * 3840)
        a('s_add_u32 s78, s78, %d', 7 * 256)
        a('v_bfe_u32 v13, v%d, 1, 3', vLANE)
        a('v_mul_u32_u24 v13, 3840, v13')
        a('v_and_b32 v14, 1, v%d', vLANE)
        a('v_lshl_add_u32 v13, v14, 7, v13')
        a('v_lshrrev_b32 v14, 4, v%d', vLANE)
        a('v_lshlrev_b32 v14, 2, v14')
        for k in range(2):
            if k:
                a('v_mov_b32 v14, 16')
            a('v_bfe_u32 v15, s76, v14, 4')
            a('v_add_u32 v15, s77, v15')
            a('v_subrev_u32 v12, 10, v15')
            a('v_min_u32 v15, v15, v12')
            a('v_mul_u32_u24 v15, 245760, v15')
            a('v_add_u32 v15, v15, v13')
            a('buffer_load_dword v111, v15, s[%d:%d], s78 offen', R3, R3 + 3)
    a.label('L_noconst')
    if OPT['codepre'] == 1:
        a.c('pull the code into L2: each wave of an XCD touches a few lines')
        a('s_getpc_b64 s[76:77]')
        a.label('L_pc')
        a('s_sub_u32 s76, s76, L_pc - L_go')
        a('s_subb_u32 s77, s77, 0')
        a('s_lshl2_add_u32 s78, s%d, s%d', sI, sW)
        a('s_mul_i32 s78, s78, 3')
        a('v_min_u32 v1, 2, v%d', vLANE)
        a('v_add_u32 v1, s78, v1')
        a('v_min_u32 v1, (L_codeend - L_go) / 128 - 1, v1')
        a('v_lshlrev_b32 v1, 7, v1')
        a('global_load_dword v110, v1, s[76:77]')
    a.c('LDS fragment addresses for the QKV GEMM')
    if OPT['q16']:
        a('v_and_b32 v1, 15, v%d', vLANE)
        a('v_lshrrev_b32 v2, 4, v%d', vLANE)
        a('v_lshrrev_b32 v3, 1, v1')
        a('v_xor_b32 v3, v3, v2')
        a('v_lshlrev_b32 v3, 4, v3')
        a('v_lshl_add_u32 v3, v1, 7, v3')
        a('s_lshl_b32 s76, s%d, 13', sTW)
        a('v_add_u32 v128, s76, v3')
        a('v_xor_b32 v129, 64, v128')
        a('v_add_u32 v130, 0x10000, v128')
        a('v_add_u32 v131, 0x10000, v129')
        a('v_bfe_u32 v4, v%d, 2, 2', vLANE)
        a('v_lshl_add_u32 v5, v2, 3, v4')
        a('v_lshlrev_b32 v5, 8, v5')
        a('v_and_b32 v6, 1, v2')
        a('v_mul_u32_u24 v6, 3, v6')
        a('v_lshl_or_b32 v6, v4, 2, v6')
        a('s_lshl_b32 s76, s%d, 3', sCW)
        a('v_xor_b32 v6, s76, v6')
        a('v_lshl_add_u32 v5, v6, 4, v5')
        a('v_and_b32 v6, 1, v%d', vLANE)
        a('v_lshl_add_u32 v5, v6, 3, v5')
        a('v_add_u32 v132, 16384, v5')
        return
    a('v_and_b32 v1, 31, v%d', vLANE)
    a('v_lshrrev_b32 v2, 5, v%d', vLANE)
    a('v_bfe_u32 v3, v1, 1, 3')
    a('v_xor_b32 v3, v3, v2')
    a('v_lshlrev_b32 v3, 4, v3')
    a('v_lshl_add_u32 v3, v1, 7, v3')
    a('s_lshl_b32 s76, s%d, 13', sTW)
    a('v_add_u32 v3, s76, v3')
    for ks in range(4):
        a('v_xor_b32 v%d, %d, v3', vXA + ks, ks << 5)
        a('v_add_u32 v%d, 0x10000, v%d', vXA + 4 + ks, vXA + ks)
    a('v_bfe_u32 v4, v%d, 2, 2', vLANE)
    a('v_lshl_add_u32 v5, v2, 3, v4')
    a('v_lshlrev_b32 v5, 8, v5')
    a('v_bfe_u32 v6, v%d, 4, 1', vLANE)
    a('v_and_b32 v7, 1, v%d', vLANE)
    a('v_lshl_add_u32 v6, v6, 1, v7')
    a('s_lshl_b32 s76, s%d, 3', sCW)
    a('v_add_u32 v6, s76, v6')
    a('v_lshlrev_b32 v4, 2, v4')
    a('v_xor_b32 v6, v6, v4')
    a('v_lshl_add_u32 v5, v6, 4, v5')
    a('v_bfe_u32 v7, v%d, 1, 1', vLANE)
    a('v_lshl_add_u32 v5, v7, 3, v5')
    a('v_add_u32 v%d, 16384, v5', vWA)
    a('v_xor_b32 v%d, 64, v%d', vWA + 1, vWA)
    a('v_add_u32 v%d, 0x10000, v%d', vWA + 2, vWA)
    a('v_add_u32 v%d, 0x10000, v%d', vWA + 3, vWA + 1)

def a_qloop(vt):
    F = [64, 80]
    def reads(st, ks, f):
        slot = (st + 1) % 4
        hi, lo = slot >> 1, (slot & 1) * 32768
        r = []
        for T in range(2):
            r.append('ds_read_b128 %s, v%d offset:%d' % (v(f + 4 * T, 4), vXA + 4 * hi + ks, lo + 4096 * T))
        for Tc in range(2):
            for rd in range(2):
                r.append('ds_read_b64_tr_b16 %s, v%d offset:%d' % (v(f + 8 + 4 * Tc + 2 * rd, 2), vWA + 2 * hi + Tc,
                                                                  lo + (16 * ks + 4 * rd) * 256))
        return [r[0], r[2], r[3], r[1], r[4], r[5]]
    def mfma(f, i, j, first):
        acc = (2 * i + j) * 16
        A = f + 4 * i if vt else f + 8 + 4 * i
        B = f + 8 + 4 * j if vt else f + 4 * j
        if OPT['hack16']:
            o = 8 if f == F[1] else 0
            B2 = f + 8 + 4 * (1 - j) if vt else f + 4 * (1 - j)
            return 'v_mfma_f32_16x16x32_bf16 %s, %s, %s, %s\nv_mfma_f32_16x16x32_bf16 %s, %s, %s, %s' % (
                v(acc + o, 4), v(A, 4), v(B, 4), v(acc + o, 4), v(acc + o + 4, 4), v(A, 4), v(B2, 4), v(acc + o + 4, 4))
        return 'v_mfma_f32_32x32x16_bf16 %s, %s, %s, %s' % (v(acc, 16), v(A, 4), v(B, 4), '0' if first else v(acc, 16))
    if OPT['hack16']:
        for i_ in range(64):
            a('v_mov_b32 v%d, 0', i_)
    a('s_barrier')
    for r in reads(0, 0, F[0]):
        a(r)
    for st in range(10):
        for ks in range(4):
            cur, nxt = F[ks & 1], F[(ks + 1) & 1]
            first = st == 0 and ks == 0
            if st == 0 and ks == 3:
                a.label('L_pgV' if vt else 'L_pgQ')
            a('s_waitcnt lgkmcnt(0)')
            if ks == 3:
                a('s_barrier')
                rr = reads(st + 1, 0, nxt) if st < 9 else []
            else:
                rr = reads(st, ks + 1, nxt)
            if st == 9 and ks == 3:
                a(mfma(cur, 0, 0, False))
                a(mfma(cur, 0, 1, False))
                return [mfma(nxt, 1, 1, False), mfma(cur, 1, 0, False), mfma(cur, 1, 1, False)]
            if OPT['hack16'] == 2 and not (st == 9 and ks >= 2):
                ms = '\n'.join(mfma(cur, i, j, first) for i in range(2) for j in range(2)).split('\n')
                for i, m in enumerate(ms):
                    a(m)
                    for r in rr[2 * i:2 * i + 2]:
                        a(r)
                continue
            a(mfma(cur, 0, 0, first))
            for r in rr[:3]:
                a(r)
            a(mfma(cur, 0, 1, first))
            for r in rr[3:]:
                a(r)
            a(mfma(cur, 1, 0, first))
            if not (st == 9 and ks == 2):
                a(mfma(cur, 1, 1, first))

def tailweave(ms, work):
    a(ms[0])
    a('s_nop 6')
    a(ms[1])
    a('s_nop 1')
    for o in work[:6]:
        a(o)
    a(ms[2])
    for o in work[6:]:
        a(o)

def a_pack_wo():
    a('s_lshl2_add_u32 s76, s%d, s%d', sRB, sW)
    a('s_mul_i32 s77, s76, 12800')
    a('s_add_u32 s78, s14, s77')
    a('s_addc_u32 s79, s15, 0')
    a('s_mul_i32 s76, s76, 10')
    a('s_mov_b32 s80, 0x%x', WS_WP)
    for n in range(13):
        a('v_add_u32 v60, %d, v%d', 64 * n, vLANE)
        if n == 12:
            a('v_min_u32 v60, 799, v60')
        a('v_lshlrev_b32 v61, 4, v60')
        a('global_load_dwordx4 %s, v61, s[78:79]', v(4 * n, 4))
        a('v_mul_u32_u24 v61, 820, v60')
        a('v_lshrrev_b32 v61, 16, v61')
        a('v_mul_u32_u24 v62, 80, v61')
        a('v_sub_u32 v60, v60, v62')
        a('v_add_u32 v61, s76, v61')
        a('v_mul_u32_u24 v62, 6554, v60')
        a('v_lshrrev_b32 v62, 16, v62')
        a('v_mul_u32_u24 v62, %d, v62', 6400 - 10)
        a('v_add_u32 v60, v60, v62')
        a('v_and_b32 v62, 0xfff3, v61')
        a('v_and_b32 v63, 4, v61')
        a('v_lshl_or_b32 v62, v63, 1, v62')
        a('v_bfe_u32 v63, v61, 3, 1')
        a('v_lshl_or_b32 v62, v63, 2, v62')
        a('v_mul_u32_u24 v62, 10, v62')
        a('v_add_lshl_u32 v%d, v60, v62, 4', 64 + n)
    for n in range(13):
        a('s_waitcnt vmcnt(12)')
        a('buffer_store_dwordx4 %s, v%d, s[%d:%d], s80 offen sc1', v(4 * n, 4), 64 + n, RWS, RWS + 3)
    if OPT['wopack'] > 1:
        a('v_min_u32 v60, 49, v%d', vLANE)
        a('v_lshl_add_u32 v60, v60, 7, s77')
        a('v_add_u32 v61, 6400, v60')
        for p in (sCRE, sCIM):
            a('global_load_dword v111, v60, s[%d:%d]', p, p + 1)
            a('global_load_dword v111, v61, s[%d:%d]', p, p + 1)

def q16_waddr(vt):
    if vt:
        a('v_bfe_u32 v1, v%d, 1, 1', vLANE)
    else:
        a('v_and_b32 v1, 3, v%d', vLANE)
    a('v_lshlrev_b32 v1, 4, v1')
    a('v_xor_b32 v132, v1, v132')
    for C in range(1, 4):
        a('v_xor_b32 v%d, %d, v132', 132 + C, 32 * C if vt else 64 * (C >> 1) + 8 * (C & 1))
    for C in range(4):
        a('v_add_u32 v%d, 0x10000, v%d', 136 + C, 132 + C)

def q16_loop(vt):
    F = [64, 96]
    def reads(st, ks, f):
        slot = (st + 1) % 4
        hi, lo = slot >> 1, (slot & 1) * 32768
        x = ['ds_read_b128 %s, v%d offset:%d' % (v(f + 4 * T, 4), 128 + 2 * hi + ks, lo + 2048 * T) for T in range(4)]
        w = ['ds_read_b64_tr_b16 %s, v%d offset:%d' % (v(f + 16 + 4 * C + 2 * rd, 2), 132 + 4 * hi + C, lo + (32 * ks + 4 * rd) * 256)
             for C in range(4) for rd in range(2)]
        return [x[0], w[0], w[1], x[1], w[2], w[3], x[2], w[4], w[5], x[3], w[6], w[7]]
    def mfmas(f, first):
        o = []
        order = [(i, (3 - j if (i & 1) and OPT['snake'] == 1 else j)) for i in range(4) for j in range(4)]
        if OPT['snake'] == 2:
            order = [(2 * p + (s_ ^ (j & 1)), j) for p in range(2) for j in range(4) for s_ in range(2)]
        for i, j in order:
            if True:
                acc = 16 * i + 4 * j
                A = f + 4 * i if vt else f + 16 + 4 * i
                B = f + 16 + 4 * j if vt else f + 4 * j
                o.append('v_mfma_f32_16x16x32_bf16 %s, %s, %s, %s' % (v(acc, 4), v(A, 4), v(B, 4), '0' if first else v(acc, 4)))
        return o
    a('s_barrier')
    for r in reads(0, 0, F[0]):
        a(r)
    for st in range(10):
        for ks in range(2):
            if st == OPT['pgst'] and ks == 1:
                a.label('L_pgV' if vt else 'L_pgQ')
            a('s_waitcnt lgkmcnt(0)')
            if ks == 1:
                a('s_barrier')
                rr = reads(st + 1, 0, F[0]) if st < 9 else []
            else:
                rr = reads(st, 1, F[1])
            ms = mfmas(F[ks], st == 0 and ks == 0)
            if st == 9 and ks == 1:
                for m in ms[:8]:
                    a(m)
                return ms[8:]
            k = 0
            for i, m in enumerate(ms):
                a(m)
                while k < min(12, (i + 1) * 12 // OPT['qspread']):
                    a(rr[k])
                    k += 1

def q16_tail(ms, work):
    k = 0
    for i, m in enumerate(ms):
        a(m)
        if i < (3 if OPT['snake'] == 1 else 2):
            a('s_nop 1')
            continue
        for _ in range(2):
            if '\n' not in work[k]:
                a(work[k])
                k += 1
    for o in work[k:]:
        a(o)

def q16_qk():
    q16_waddr(False)
    a('v_and_b32 v1, 15, v%d', vLANE)
    a('v_lshrrev_b32 v2, 4, v%d', vLANE)
    a('v_lshlrev_b32 v1, 4, v1')
    a('v_lshl_add_u32 v140, v2, 10, v1')
    a('s_lshl1_add_u32 s76, s%d, s%d', sCG, sCW)
    a('s_lshl_b32 s77, s76, 13')
    a('s_add_u32 s77, s77, s74')
    a('s_add_u32 s78, s77, 4096')
    a('s_mul_i32 s79, s%d, 3', sCW)
    a('s_add_u32 s79, s79, s%d', sCG)
    for P in range(2):
        a('s_sub_u32 s80, %d, s79', 17 + P)
        a('s_mul_i32 s81, s80, 52')
        a('s_lshr_b32 s81, s81, 8')
        a('s_mul_i32 s81, s81, 5')
        a('s_sub_u32 s80, s80, s81')
        a('s_lshl_b32 s81, s80, 4')
        a('s_bfm_b64 s[%d:%d], 16, s81', 20 + 2 * P, 21 + 2 * P)
        a('s_cmp_lt_u32 s80, 4')
        a('s_cselect_b64 s[%d:%d], s[%d:%d], 0', 20 + 2 * P, 21 + 2 * P, 20 + 2 * P, 21 + 2 * P)
    a('s_mov_b32 s80, 0x%x', f2u(math.log2(math.e) / math.sqrt(20.0)))
    ms = q16_loop(False)
    def group(P, u, scale):
        o = []
        R = 152 + 8 * (2 * P + u)
        for k, T in enumerate((u, u + 2)):
            for s_ in range(2):
                acc = 16 * (2 * P + s_) + 4 * T
                if scale:
                    o += ['v_mul_f32 v%d, s80, v%d' % (acc + e, acc + e) for e in range(4)]
                o += ['v_cvt_pk_bf16_f32 v%d, v%d, v%d' % (R + 4 * k + 2 * s_ + q, acc + 2 * q, acc + 2 * q + 1) for q in range(2)]
        o.append('s_mov_b64 exec, s[%d:%d]\nv_swap_b32 v%d, v%d\nv_swap_b32 v%d, v%d\ns_mov_b64 exec, -1' % (20 + 2 * P, 21 + 2 * P, R + 2, R + 4, R + 3, R + 5))
        for k, T in enumerate((u, u + 2)):
            o.append('buffer_store_dwordx4 %s, v140, s[%d:%d], s%d offen offset:%d QSC' % (v(R + 4 * k, 4), RWS, RWS + 3, 77 + P, 256 * T))
        return o
    a('s_cmp_ge_u32 s%d, 5', sCG)
    a('s_cbranch_scc1 L_noscale')
    q16_tail(ms, group(0, 0, True) + group(0, 1, True))
    a('s_mov_b32 s81, s80')
    for i in range(32, 64, 2):
        a('v_pk_mul_f32 %s, %s, s[80:81]', v(i, 2), v(i, 2))
    a('s_branch L_qk2')
    a.label('L_noscale')
    q16_tail(ms, group(0, 0, False) + group(0, 1, False))
    a.label('L_qk2')
    for o in group(1, 0, False) + group(1, 1, False):
        a(o)
    stamp('A', 'qloop')

def q16_v():
    q16_waddr(True)
    a('s_lshl1_add_u32 s76, s%d, s%d', sCG, sCW)
    a('v_and_b32 v1, 15, v%d', vLANE)
    a('v_lshrrev_b32 v2, 4, v%d', vLANE)
    a('v_mul_u32_u24 v2, %d, v2', VROW)
    a('v_lshl_add_u32 v140, v1, 4, v2')
    a('s_sub_u32 s76, s76, 20')
    a('s_lshl_b32 s76, s76, 10')
    a('s_add_u32 s76, s76, s74')
    a('s_add_u32 s76, s76, %d', VOFF)
    a('s_add_u32 s77, s76, %d', 4 * VROW)
    ms = q16_loop(True)
    work = []
    for P in range(2):
        for C in range(4):
            R = 152 + 4 * (4 * P + C)
            for s_ in range(2):
                acc = 16 * (2 * P + s_) + 4 * C
                work += ['v_cvt_pk_bf16_f32 v%d, v%d, v%d' % (R + 2 * s_ + q, acc + 2 * q, acc + 2 * q + 1) for q in range(2)]
            work.append('buffer_store_dwordx4 %s, v140, s[%d:%d], s%d offen offset:%d QSC' % (v(R, 4), RWS, RWS + 3, 76 + P, 256 * C))
    q16_tail(ms, work)
    if DIAG:
        nstamp['A'].pop()
    stamp('A', 'qloop')

def q32_qk():
    a('v_and_b32 v1, 31, v%d', vLANE)
    a('v_lshrrev_b32 v2, 5, v%d', vLANE)
    a('v_lshlrev_b32 v1, 4, v1')
    a('v_lshl_add_u32 v108, v2, 10, v1')
    a('s_lshl1_add_u32 s76, s%d, s%d', sCG, sCW)
    a('s_lshl_b32 s77, s76, 13')
    a('s_add_u32 s77, s77, s74')
    a('s_add_u32 s78, s77, 4096')
    a('s_mul_i32 s79, s%d, 3', sCW)
    a('s_add_u32 s79, s79, s%d', sCG)
    for _ in range(2):
        a('s_cmp_ge_u32 s79, 5')
        a('s_cselect_b32 s80, 5, 0')
        a('s_sub_u32 s79, s79, s80')
    for Tc in range(2):
        for u in range(2):
            m = 20 + 2 * (2 * Tc + u)
            a('s_cmp_eq_u32 s79, %d', (2 - 4 * Tc - 2 * u) % 5)
            a('s_cselect_b32 s%d, -1, 0', m)
            a('s_cmp_eq_u32 s79, %d', (1 - 4 * Tc - 2 * u) % 5)
            a('s_cselect_b32 s%d, -1, 0', m + 1)
    c0 = f2u(math.log2(math.e) / math.sqrt(20.0))
    a('s_mov_b32 s80, 0x%x', c0)
    ms = a_qloop(False)
    def group(Tc, u, scale):
        o = []
        P = 120 + 8 * (2 * Tc + u)
        for T in range(2):
            acc = (2 * Tc + T) * 16 + 8 * u
            if scale:
                o += ['v_mul_f32 v%d, s80, v%d' % (acc + e, acc + e) for e in range(8)]
            o += ['v_cvt_pk_bf16_f32 v%d, v%d, v%d' % (P + 4 * T + q, acc + 2 * q, acc + 2 * q + 1) for q in range(4)]
        m = 20 + 2 * (2 * Tc + u)
        o.append('s_mov_b64 exec, s[%d:%d]\nv_swap_b32 v%d, v%d\nv_swap_b32 v%d, v%d\ns_mov_b64 exec, -1' % (m, m + 1, P + 2, P + 4, P + 3, P + 5))
        for T in range(2):
            o.append('buffer_store_dwordx4 %s, v108, s[%d:%d], s%d offen offset:%d QSC' % (v(P + 4 * T, 4), RWS, RWS + 3,
                     77 + Tc, 2048 * u + 512 * T))
        return o
    a('s_cmp_ge_u32 s%d, 5', sCG)
    a('s_cbranch_scc1 L_noscale')
    tailweave(ms, group(0, 0, True) + group(0, 1, True))
    a('s_mov_b32 s81, s80')
    for i in range(32, 64, 2):
        a('v_pk_mul_f32 %s, %s, s[80:81]', v(i, 2), v(i, 2))
    a('s_branch L_qk2')
    a.label('L_noscale')
    tailweave(ms, group(0, 0, False) + group(0, 1, False))
    a.label('L_qk2')
    for o in group(1, 0, False) + group(1, 1, False):
        a(o)
    stamp('A', 'qloop')

def q32_v():
    a('s_lshl1_add_u32 s76, s%d, s%d', sCG, sCW)
    a('v_and_b32 v1, 31, v%d', vLANE)
    tau(108, 1, 2)
    if OPT['klin']:
        a('v_xor_b32 v3, v108, v1')
        a('v_mul_u32_u24 v3, 136, v3')
        for k in range(8):
            a('v_xor_b32 v%d, v3, v%d', vXA + k, vXA + k)
    if OPT['klin'] & 2:
        a('v_bfe_u32 v3, v%d, 1, 1', vLANE)
        a('v_xor_b32 v3, v3, v%d', vLANE)
        a('v_and_b32 v3, 1, v3')
        a('v_mul_u32_u24 v3, 24, v3')
        for k in range(4):
            a('v_xor_b32 v%d, v3, v%d', vWA + k, vWA + k)
        a('v_mov_b32 v108, v1')
    a('v_lshrrev_b32 v2, 5, v%d', vLANE)
    a('v_mul_u32_u24 v2, %d, v2', VROW)
    a('v_lshl_add_u32 v108, v108, 4, v2')
    a('s_sub_u32 s76, s76, 20')
    a('s_lshl_b32 s76, s76, 10')
    a('s_add_u32 s76, s76, s74')
    a('s_add_u32 s76, s76, %d', VOFF)
    for k in range(1, 4):
        a('s_add_u32 s%d, s76, %d', 76 + k, 2 * VROW * k)
    ms = a_qloop(True)
    work = []
    n = 0
    for T in range(2):
        for Tc in range(2):
            for m in range(2):
                P = 120 + 4 * n
                n += 1
                acc = (2 * T + Tc) * 16 + 8 * m
                work += ['v_cvt_pk_bf16_f32 v%d, v%d, v%d' % (P + q, acc + 2 * q, acc + 2 * q + 1) for q in range(4)]
                work.append('buffer_store_dwordx4 %s, v108, s[%d:%d], s%d offen offset:%d QSC' % (v(P, 4), RWS, RWS + 3, 76 + 2 * T + m, 512 * Tc))
    tailweave(ms, work)
    if DIAG:
        nstamp['A'].pop()
    stamp('A', 'qloop')

def a_qphase():
    a('s_cmp_ge_u32 s%d, 10', sCG)
    a('s_cbranch_scc1 L_qV')
    if OPT['q16']:
        q16_qk()
    else:
        q32_qk()
    a('s_branch L_qdone')
    a('.PAD L_qV L_pgV')
    a.label('L_qV')
    a('s_cmp_eq_u32 s%d, 15', sCG)
    a('s_cbranch_scc0 L_qV2')
    a('s_lshl_b32 s76, s%d, 4', sRB)
    a('v_mov_b32 v16, s76')
    a('v_mov_b32 v17, 1')
    a('s_waitcnt vmcnt(%d)', 2 if OPT['w7pre'] else 0)
    a('s_barrier')
    a('s_cmp_eq_u32 s%d, 0', sW)
    a('s_cbranch_scc0 L_nosig')
    a('s_mov_b64 exec, 1')
    a('global_store_dword v16, v17, s[%d:%d] sc1', sDBG, sDBG + 1)
    a('s_mov_b64 exec, -1')
    a.label('L_nosig')
    if OPT['tlb']:
        a('v_lshlrev_b32 v1, %d, v%d', OPT['tlb'], vLANE)
        a('s_lshl_b32 s76, s%d, %d', sW, OPT['tlb'] + 6)
        srd(R4, sOUT, 2048 * 1280 * 4)
        a('buffer_load_dword v111, v1, s[%d:%d], s76 offen sc1', RWS, RWS + 3)
        a('buffer_load_dword v111, v1, s[%d:%d], s76 offen sc1', R4, R4 + 3)
        a('v_min_u32 v1, 12, v%d', vLANE)
        a('v_lshlrev_b32 v1, 16, v1')
        a('v_mov_b32 v2, 0')
        for p in (14, sCRE, sCIM):
            a('global_load_dword v111, v1, s[%d:%d]', p, p + 1)
        a('global_load_dword v111, v2, s[%d:%d]', sDSK, sDSK + 1)
    if OPT['l2pre']:
        a('s_barrier')
        a('s_and_b32 s76, s%d, 1', sI)
        a('s_lshl1_add_u32 s76, s76, s%d', sCW)
        a('s_and_b32 s77, s%d, 1', sXCD)
        a('s_lshl2_add_u32 s76, s77, s76')
        a('s_mul_i32 s76, s76, %d', 80 * 1280)
        a('v_min_u32 v1, 39, v%d', vLANE)
        a('v_mul_u32_u24 v1, 1280, v1')
        a('v_add_u32 v2, %d, v1', 40 * 1280)
        for hf in range(2):
            a('s_and_b32 s77, s%d, 1', sI)
            a('s_lshl1_add_u32 s77, s77, s%d', sCW)
            a('s_lshl1_add_u32 s77, s77, %d', hf)
            a('s_mul_i32 s77, s77, 5')
            a('s_lshr_b32 s77, s77, 2')
            a('s_add_u32 s78, s%d, 1', sXCD)
            a('s_lshr_b32 s78, s78, 1')
            a('s_add_u32 s%d, s77, s78', 80 + hf)
        for d in (4, 9, 1, 6, 3, 8)[:OPT['l2pre']]:
            for hf in range(2):
                a('s_add_u32 s77, s%d, %d', 80 + hf, d)
                for _ in range(2):
                    a('s_cmp_ge_u32 s77, 10')
                    a('s_cselect_b32 s78, 10, 0')
                    a('s_sub_u32 s77, s77, s78')
                a('s_lshl_b32 s77, s77, 7')
                a('s_add_u32 s77, s77, s76')
                a('buffer_load_dword v111, v%d, s[%d:%d], s77 offen', 1 + hf, R6, R6 + 3)
    if OPT['xpre']:
        a('s_and_b32 s76, s%d, 1', sI)
        a('s_lshl1_add_u32 s76, s76, s%d', sTW)
        a('s_xor_b32 s77, s76, %d', OPT['flip'])
        a('s_mul_i32 s77, s77, 5')
        a('s_lshr_b32 s77, s77, 1')
        a('s_add_u32 s78, s%d, 9', sXCD)
        a('s_lshr_b32 s78, s78, 1')
        a('s_add_u32 s77, s77, s78')
        a('s_mul_i32 s78, s%d, 5', sCW)
        a('s_add_u32 s77, s77, s78')
        for _ in range(2):
            a('s_cmp_ge_u32 s77, 10')
            a('s_cselect_b32 s78, 10, 0')
            a('s_sub_u32 s77, s77, s78')
        a('s_lshl_b32 s77, s77, 7')
        a('s_and_b32 s78, s%d, -4', sRB)
        a('s_add_u32 s76, s76, s78')
        a('s_mul_i32 s76, s76, %d', 128 * 1280)
        a('s_add_u32 s77, s77, s76')
        a('v_mul_u32_u24 v3, 1280, v%d', vLANE)
        a('buffer_load_dword v111, v3, s[%d:%d], s77 offen', R5, R5 + 3)
        a('s_add_u32 s77, s77, %d', 64 * 1280)
        a('buffer_load_dword v111, v3, s[%d:%d], s77 offen', R5, R5 + 3)
    if OPT['wopack']:
        a_pack_wo()
    for _ in range(9 if OPT['l2pre'] else 10):
        a('s_barrier')
    if DIAG:
        nstamp['A'].pop()
    stamp('A', 'qloop')
    a('s_branch L_qdone')
    a.label('L_qV2')
    if OPT['q16']:
        q16_v()
    else:
        q32_v()
    if OPT['pgalign']:
        a('s_branch L_qdone')
    a('.PAD L_qdone L_pgO')
    a.label('L_qdone')
    if OPT['amark'] == 2:
        a_mark()

vO, vS = 0, 64
KV = [128, 156]
K1A, K1B, K2, VA0, VA1, VB0, VB1 = 0, 4, 8, 12, 16, 20, 24
vQ1, vQ2 = 184, 200
vK1, vK2, vV, vIDX, vNC, vM = 208, 209, 210, 214, 216, 220
vT = 224
vMG = 240
sQH, sKH, sODD, sP5, sOFF, sKV0, sPASS, sCNT = 76, 77, 78, 79, 80, 93, 82, 83
sKVB, sKVE = 70, 71

def a_att_setup():
    a('s_and_b32 s%d, s%d, 1', sQH, sW)
    a('s_lshr_b32 s%d, s%d, 1', sKH, sW)
    a('s_and_b32 s%d, s%d, 1', sODD, sHD)
    a('s_lshr_b32 s85, s%d, 1', sHD)
    a('s_mul_i32 s%d, s85, 5', sP5)
    a('s_mul_i32 s%d, s%d, %d', sKVB, sKH, 16 * BLK)
    a('s_add_u32 s%d, s%d, %d', sKVE, sKVB, 16 * BLK)
    a('s_and_b32 s86, s%d, %d', sQB, OPT['rotm'])
    a('s_mul_i32 s86, s86, %d', 2 * BLK * OPT['rot'])
    a('s_add_u32 s%d, s%d, s86', sKV0, sKVB)
    srd(R3, sWS, 's%d' % sKVE)
    srd(R4, sOUT, 2048 * 1280 * 4)
    a('s_mov_b32 s%d, 0', sPASS)
    i, h, t, x = vT, vT + 1, vT + 2, vT + 3
    a('v_and_b32 v%d, 31, v%d', i, vLANE)
    a('v_lshrrev_b32 v%d, 5, v%d', h, vLANE)
    tau(t, i, x)
    a('s_mul_i32 s86, s%d, 3', sODD)
    a('s_add_u32 s86, s86, s%d', sP5)
    a('s_lshl_b32 s87, s86, 10')
    a('v_lshl_add_u32 v%d, v%d, 10, s87', x, h)
    a('v_lshl_add_u32 v%d, v%d, 4, v%d', vT + 4, i, x)
    a('v_lshl_add_u32 v%d, v%d, 4, v%d', vK1, i if OPT['klin'] else t, x)
    a('v_add_u32 v%d, %d, v%d', vK1, 80 * 1024, vK1)
    a('s_add_u32 s87, s%d, 2', sP5)
    if OPT['q16']:
        a('s_xor_b32 s88, s87, s%d', sODD)
        a('s_and_b32 s88, s88, 1')
        a('s_lshl1_add_u32 s87, s87, s88')
    else:
        a('s_lshl1_add_u32 s87, s87, s%d', sODD)
    a('s_lshl_b32 s87, s87, 9')
    a('v_lshl_add_u32 v%d, v%d, 4, s87', vT + 5, i)
    a('v_mov_b32 v%d, 0x%x', x, OOB)
    a('v_cndmask_b32 v%d, v%d, v%d, s[%d:%d]', vT + 5, vT + 5, x, sHI, sHI + 1)
    a('s_add_u32 s87, s87, %d', 80 * 1024)
    a('v_lshl_add_u32 v%d, v%d, 4, s87', vK2, i if OPT['klin'] else t)
    a('v_mov_b32 v%d, %d', x, 160 * 1024)
    a('v_cndmask_b32 v%d, v%d, v%d, s[%d:%d]', vK2, vK2, x, sHI, sHI + 1)
    a('s_mul_i32 s86, s%d, 20', sHD)
    a('s_lshl2_add_u32 s87, s%d, s86', sODD)
    a('s_lshl_b32 s88, s%d, 4', sODD)
    a('s_sub_u32 s88, s86, s88')
    a('v_add_u32 v%d, s87, v%d', vV, t)
    a('v_add_u32 v%d, s88, v%d', x, i)
    a('v_cmp_le_u32 vcc, 16, v%d', i)
    a('v_mov_b32 v%d, %d', vT + 6, VOFF + 640 * 16)
    a('s_nop 0')
    a('v_cndmask_b32 v%d, v%d, v%d, vcc', vV, vV, x)
    a('v_cmp_le_u32 vcc, 20, v%d', i)
    a('v_mul_u32_u24 v%d, %d, v%d', x, VROW, h)
    a('v_add_u32 v%d, %d, v%d', x, VOFF, x)
    a('v_lshl_add_u32 v%d, v%d, 4, v%d', vV, vV, x)
    a('v_cndmask_b32 v%d, v%d, v%d, vcc', vV, vV, vT + 6)
    a('v_cmp_le_u32 vcc, %d, v%d', 21 if OPT['vzero'] else 24, i)
    a('v_mov_b32 v%d, 0x%x', x, OOB)
    a('v_mov_b32 v%d, 0xdddd', vIDX)
    a('v_cndmask_b32 v%d, v%d, v%d, vcc', vV, vV, x)
    for k in range(1, 4):
        a('v_add_u32 v%d, %d, v%d', vV + k, 2 * VROW * k, vV)
    a('s_mul_i32 s87, s85, 40')
    a('s_lshl4_add_u32 s87, s%d, s87', sODD)
    a('s_add_u32 s88, s87, 23')
    a('s_lshr_b32 s87, s87, 7')
    a('s_lshr_b32 s88, s88, 7')
    a('s_add_u32 s89, s86, 19')
    a('s_lshr_b32 s86, s86, 7')
    a('s_lshr_b32 s89, s89, 7')
    a('v_lshrrev_b32 v%d, 4, v%d', x, vLANE)
    a('s_add_u32 s90, s87, 5')
    a('v_mov_b32 v%d, s90', vF1A)
    for sel, (reg, add) in enumerate(((88, 5), (86, 10), (89, 10))):
        a('s_add_u32 s90, s%d, %d', reg, add)
        a('v_cmp_eq_u32 vcc, %d, v%d', sel + 1, x)
        a('v_mov_b32 v%d, s90', vT + 6)
        a('s_nop 0')
        a('v_cndmask_b32 v%d, v%d, v%d, vcc', vF1A, vF1A, vT + 6)
    a('v_and_b32 v%d, 15, v%d', vT + 6, vLANE)
    a('v_lshl_add_u32 v%d, v%d, 4, v%d', vF1A, vF1A, vT + 6)
    a('v_lshlrev_b32 v%d, 7, v%d', vF1A, vF1A)
    a('v_mov_b32 v%d, s87', vF1A - 1)
    a('v_mov_b32 v%d, s88', vT + 6)
    a('v_cndmask_b32 v%d, v%d, v%d, s[%d:%d]', vF1A - 1, vF1A - 1, vT + 6, sHI, sHI + 1)
    a('v_bfe_u32 v%d, v%d, 4, 1', vT + 6, vLANE)
    a('v_lshl_add_u32 v%d, v%d, 4, v%d', vF1A - 1, vF1A - 1, vT + 6)
    a('s_lshl_b32 s90, s%d, 1', sQB)
    a('v_add_lshl_u32 v%d, v%d, s90, 7', vF1A - 1, vF1A - 1)
    a('v_and_b32 v%d, 3, v%d', vAPW, vLANE)
    a('v_lshlrev_b32 v%d, 8, v%d', vAPW, vAPW)
    a('v_lshlrev_b32 v%d, 2, v%d', vAPW + 1, vLANE)
    a('v_add_u32 v%d, %d, v%d', vAPW + 1, L_PW, vAPW + 1)
    a('v_add_u32 v%d, v%d, v%d', vAPW, vAPW, vAPW + 1)
    a('s_lshl1_add_u32 s90, s%d, s%d', sQB, sQH)
    a('s_lshl1_add_u32 s90, s90, s%d', sKH)
    a('s_mul_i32 s92, s90, %d', BLK)
    a('s_xor_b32 s91, s90, 1')
    a('s_mul_i32 s91, s91, %d', BLK)
    a('s_mov_b32 s10, 0x%x', f2u(2.0 ** -4))
    a('s_mov_b32 s11, 0x%x', f2u(2.0 ** 72))
    a('s_mul_i32 s36, s%d, %d', sW, REGSZ)
    a('s_add_u32 s36, s36, %d', L_REG + 8192)
    a('s_xor_b32 s37, s%d, 2', sW)
    a('s_mul_i32 s37, s37, %d', REGSZ)
    a('s_add_u32 s37, s37, %d', L_REG + 8192)
    a('v_lshl_add_u32 v%d, v%d, 4, s36', vMG, vLANE)
    a('v_lshl_add_u32 v%d, v%d, 3, s36', vMG + 1, vLANE)
    a('v_lshl_add_u32 v%d, v%d, 4, s37', vMG + 2, vLANE)
    a('v_lshl_add_u32 v%d, v%d, 3, s37', vMG + 3, vLANE)
    a('v_xor_b32 v%d, 512, v%d', vMG + 4, vPW)
    a('v_add_u32 v%d, 1024, v%d', vMG + 5, vAPW)
    if not OPT['amark']:
        a('v_bfe_u32 v%d, v%d, 4, 1', x, vLANE)
        a('v_mul_u32_u24 v%d, %d, v%d', x, OBLK, x)
        a('v_and_b32 v%d, 15, v%d', t, vLANE)
        a('v_lshl_add_u32 v%d, v%d, 4, v%d', x, t, x)
        a('v_mul_u32_u24 v%d, %d, v%d', t, 2 * OBLK, h)
        a('v_add_u32 v%d, v%d, v%d', vMG + 7, t, x)
        a('v_lshl_add_u32 v%d, v%d, 8, v%d', vMG + 6, h, x)
        a('s_mul_i32 s40, s90, %d', 4 * OBLK)
        a('s_add_u32 s40, s40, 0x%x', WS_O)
        a('s_lshl_b32 s41, s%d, 8', sP5)
        a('s_add_u32 s40, s40, s41')
        a('s_mul_i32 s41, s%d, 768', sODD)
        a('s_add_u32 s41, s41, s40')
        a('s_add_u32 s42, s41, %d', 2 * OBLK)
        a('s_lshl3_add_u32 s40, s%d, s40', sODD)
    a('s_lshl_b32 s43, s90, 5')
    a('s_add_u32 s43, s43, s%d', sHD)
    flagaddr(43, 43, F4, 0)

def a_mark():
    i, h, t, x = vT, vT + 1, vT + 2, vT + 3
    a('s_lshl1_add_u32 s90, s%d, s%d', sQB, sCW)
    a('s_lshl1_add_u32 s90, s90, s%d', sTW)
    a('s_and_b32 s%d, s%d, 1', sODD, sHD)
    a('s_lshr_b32 s85, s%d, 1', sHD)
    a('s_mul_i32 s%d, s85, 5', sP5)
    a('v_lshrrev_b32 v%d, 5, v%d', h, vLANE)
    a('v_bfe_u32 v%d, v%d, 4, 1', x, vLANE)
    a('v_mul_u32_u24 v%d, %d, v%d', x, OBLK, x)
    a('v_and_b32 v%d, 15, v%d', t, vLANE)
    a('v_lshl_add_u32 v%d, v%d, 4, v%d', x, t, x)
    a('v_mul_u32_u24 v%d, %d, v%d', t, 2 * OBLK, h)
    a('v_add_u32 v%d, v%d, v%d', vMG + 7, t, x)
    a('v_lshl_add_u32 v%d, v%d, 8, v%d', vMG + 6, h, x)
    a('s_mul_i32 s40, s90, %d', 4 * OBLK)
    a('s_add_u32 s40, s40, 0x%x', WS_O)
    a('s_lshl_b32 s41, s%d, 8', sP5)
    a('s_add_u32 s40, s40, s41')
    a('s_mul_i32 s41, s%d, 768', sODD)
    a('s_add_u32 s41, s41, s40')
    a('s_add_u32 s42, s41, %d', 2 * OBLK)
    a('s_lshl3_add_u32 s40, s%d, s40', sODD)
    for k in range(4):
        a('v_mov_b32 v%d, -1', 24 + k)
    a('buffer_store_dwordx4 v[24:27], v%d, s[%d:%d], s41 offen sc1', vMG + 6, RWS, RWS + 3)
    a('buffer_store_dwordx4 v[24:27], v%d, s[%d:%d], s42 offen sc1', vMG + 6, RWS, RWS + 3)
    a('buffer_store_dwordx2 v[24:25], v%d, s[%d:%d], s40 offen offset:512 sc1', vMG + 7, RWS, RWS + 3)

def a_b1_setup():
    a('s_mov_b64 s[14:15], s[%d:%d]', sWO, sWO + 1)
    b1_sources(R5, R6, vAB, vAB + 4, 7, 5, 12, 3 if OPT['nodup'] else 2)
    a('s_lshl2_add_u32 s4, s%d, s%d', sRB, sW)
    a('s_mul_i32 s4, s4, %d', 32 * 1280)
    a('s_lshl_b32 s6, s%d, 12', sW)
    stagger(8, 9, OPT['st10'], OPT['flip'], OPT['stagb'])

def a_handoff():
    first = 10 + OPT['st10']
    nst = 8
    chunks = []
    if OPT['alate'] == 2:
        n0 = len(a.lines)
        a_att_setup()
        late = a.lines[n0:]
        del a.lines[n0:]
        if OPT['aearly']:
            late = late[:5] + late[OPT['aearly']:]
        nch = (OPT['eb'] - OPT['adep'] + 1 if OPT['eb'] else OPT['pollat']) - first
        k = 0
        for c in range(nch):
            e = len(late) * (c + 1) // nch
            while e < len(late) and any('cndmask' in x and 'vcc' in x for x in late[e:e + 4]):
                e += 1
            chunks.append(late[k:e])
            k = e
        chunks[-1].append('s_mov_b32 s85, 0x%x' % F1)
        nb = first - 10
        seq = OPT['seq'] or {1: 'bss', 2: 'bsbs', 3: 'bbsbs', 4: 'bbsbsb'}[nb]
        assert seq.count('b') == nb and seq.count('s') == 2
        kk = 0
        for ch in seq:
            if ch == 'b':
                a('s_barrier')
            elif ch == 'z':
                for i_ in range(64):
                    a('v_mov_b32 v%d, 0', vO + i_)
            else:
                if kk == 0 and OPT['fine'] == 1:
                    stamp('A', 'c11')
                a_b1stage(first + kk)
                if OPT['fine'] == 1:
                    stamp('A', 'iss%d' % (12 + kk))
                kk += 1
        if 'z' not in seq:
            for i_ in range(64):
                a('v_mov_b32 v%d, 0', vO + i_)
    else:
        for t in range(10, first):
            a('s_barrier')
            if t == 10:
                if OPT['alate']:
                    a_b1_setup()
                else:
                    for i_ in range(64):
                        a('v_mov_b32 v%d, 0', vO + i_)
        if OPT['fine'] == 1:
            stamp('A', 'c11')
        a_b1stage(first)
        if OPT['fine'] == 1:
            stamp('A', 'iss12')
        if OPT['alate']:
            a_att_setup()
            for i_ in range(64):
                a('v_mov_b32 v%d, 0', vO + i_)
        a_b1stage(first + 1)
        if OPT['fine'] == 1:
            stamp('A', 'iss13')
    lds_ = ['buffer_load_dword v%d, v%d, s[%d:%d], s85 offen sc1' % (104 + k, vF1A - k, RWS, RWS + 3) for k in range(2)]
    a('s_mov_b32 s85, 0x%x', F1)
    NI = 7 - OPT['nodup']
    last = first + 1
    EB = OPT['eb']
    def look(tag):
        a('s_cmp_eq_u32 s%d, 0', sW)
        a('s_cbranch_scc0 L_nopoll%s', tag)
        for l in lds_:
            a(l)
        a.label('L_nopoll%s' % tag)
    def publish(tag):
        a('s_cmp_eq_u32 s%d, 0', sW)
        a('s_cbranch_scc0 L_c%s', tag)
        a('v_and_b32 v104, v104, v105')
        a('v_cmp_eq_u32 vcc, 0, v104')
        a('s_cbranch_vccnz L_c%s', tag)
        setpw(4, 102)
        a('s_waitcnt lgkmcnt(0)')
        a.label('L_c%s' % tag)
    for t in range(first, 20):
        a('s_waitcnt vmcnt(%d)', NI * (last - t))
        if t == first:
            stamp('A', 'qdrain')
        if t == 19:
            publish('19')
        if EB and t == EB:
            publish('e')
        a('s_barrier')
        if EB and t == EB:
            assert last == 19 and not chunks
            a('ds_read_b32 v102, v%d', vAPW + 1)
            a('s_waitcnt lgkmcnt(0)')
            a('v_cmp_gt_u32 vcc, 4, v102')
            a('s_cbranch_vccnz L_notyet')
            batch1()
            for t2 in range(t + 1, 20):
                a('s_waitcnt vmcnt(%d)', NI * (19 - t2) + 8)
                a('s_barrier')
            stamp('A', 'b1load')
            stamp('A', 'f1')
            if DIAG:
                del nstamp['A'][-2:]
            a('s_branch L_att2')
            a.label('L_notyet')
        if EB and t == EB - OPT['adep'] + 1:
            look('e')
        while last < min(19, t + OPT['adep']):
            last += 1
            a_b1stage(last)
        if chunks:
            a.lines.extend(chunks.pop(0))
        if t == OPT['pollat']:
            look('')
    stamp('A', 'b1load')
    a('s_cmp_eq_u32 s%d, 0', sW)
    a('s_cbranch_scc0 L_f1wait')
    a('s_cbranch_vccz L_f1go')
    a('s_mov_b64 exec, vcc')
    pollflags(lds_, 104, sleep=OPT['psleep'])
    setpw(4, 102)
    a.label('L_f1wait')
    waitpw(vAPW + 1, 4, 102, sleep=OPT['gsleep'])
    a.label('L_f1go')
    stamp('A', 'f1')

def kvload0(st, what, soff):
    if what in (K1A, K1B):
        r = KV[st] + what
        return 'buffer_load_dwordx4 %s, v%d, s[%d:%d], s%d offen offset:%d sc1' % (v(r, 4), vK1, R3, R3 + 3, soff, 512 if what == K1B else 0)
    if what in ('2A', '2B'):
        tl = what == '2B'
        return 'buffer_load_dwordx2 %s, v%d, s[%d:%d], s%d offen offset:%d sc1' % (v(KV[st] + K2 + 2 * tl, 2), vK2, R3, R3 + 3, soff, 8 * tl)
    r = KV[st] + what
    if what == K2:
        return 'buffer_load_dwordx4 %s, v%d, s[%d:%d], s%d offen sc1' % (v(r, 4), vK2, R3, R3 + 3, soff)
    return 'buffer_load_dwordx4 %s, v%d, s[%d:%d], s%d offen sc1' % (v(r, 4), vV + (what - VA0) // 4, R3, R3 + 3, soff)

def kvload(st, what, soff):
    return kvload0(st, what, soff).replace(' sc1', [' sc1', '', ' sc1 nt'][OPT['kvplain']])

def qk1(st, tile, qt, sb, first=True):
    return 'v_mfma_f32_32x32x16_bf16 %s, %s, %s, %s' % (v(vS + 16 * sb, 16), v(KV[st] + (K1B if tile else K1A), 4), v(vQ1 + 4 * qt, 4),
                                                       '0' if first else v(vS + 16 * sb, 16))

def qk2(st, tile, qt, sb, first=False):
    return 'v_mfma_f32_32x32x8bf16_1k %s, %s, %s, %s' % (v(vS + 16 * sb, 16), v(KV[st] + K2 + 2 * tile, 2), v(vQ2 + 2 * qt, 2),
                                                        '0' if first else v(vS + 16 * sb, 16))

def pv(st, tile, qt, m):
    return 'v_smfmac_f32_32x32x32_bf16 %s, %s, %s, v%d' % (v(vO + 16 * qt, 16), v(KV[st] + VA0 + 8 * tile + 4 * m, 4), v(vS + 16 * qt + 8 * m, 8), vIDX)

def maxtree(dst, src, acc):
    if acc:
        a('v_max3_f32 v%d, v%d, v%d, v%d', dst, dst, src, src + 1)
    else:
        a('v_max_f32 v%d, v%d, v%d', dst, src, src + 1)
    for k in range(2, 16, 2):
        a('v_max3_f32 v%d, v%d, v%d, v%d', dst, dst, src + k, src + k + 1)

def qloads():
    for lp in range(2):
        for T in range(2):
            a('buffer_load_dwordx4 %s, v%d, s[%d:%d], s%d offen offset:%d sc1', v(vQ1 + 8 * lp + 4 * T, 4), vT + 4, RWS, RWS + 3, 91 + lp, 512 * T)
    for lp in range(2):
        a('buffer_load_dwordx4 %s, v%d, s[%d:%d], s%d offen sc1', v(vQ2 + 4 * lp, 4), vT + 5, RWS, RWS + 3, 91 + lp)

def batch1():
    qloads()
    for w_ in (K1A, K2):
        a(kvload0(0, w_, sKV0))

def a_attention():
    qloads()
    a.label('L_attload')
    for w_ in (K1A, K2):
        a(kvload0(0, w_, sKV0))
    a.label('L_att2')
    a('s_mov_b32 s%d, 0x40000000', sCNT)
    a('s_add_u32 s%d, s%d, %d', sOFF, sKV0, BLK)
    for i in range(4):
        a('v_mov_b32 v%d, 0', KV[1] + VB1 + i)
    if OPT['kvsplit']:
        a('s_waitcnt vmcnt(%d)', OPT['kvsplit'] - 1)
    for w_ in (VA0, VA1, K1B, VB0, VB1):
        a(kvload0(0, w_, sKV0))
    if not OPT['s1late']:
        for w_ in (K1A, VA0, VA1, K1B, K2, VB0):
            a(kvload0(1, w_, sOFF))
    a('s_waitcnt vmcnt(%d)', 5 if OPT['s1late'] else 11)
    stamp('A', 'qkload')
    a('s_cmp_eq_u32 s%d, 0', sPASS)
    a('s_cbranch_scc0 L_setc')
    if OPT['fastpro']:
        a.c('stand-in for the row maximum: the largest score among seven keys of the first tile (checked after the loop)')
        def ch(t):
            S, m, h = vS + 16 * t, vM + t, vT + 8 + t
            return ['v_max3_f32 v%d, v%d, v%d, v%d' % (m, S, S + 1, S + 2),
                    'v_max3_f32 v%d, v%d, v%d, v%d' % (m, m, S + 5, S + 8),
                    'v_max3_f32 v%d, v%d, v%d, v%d' % (m, m, S + 11, S + 14),
                    'v_cvt_pk_bf16_f32 v%d, -v%d, -v%d' % (h, m, m),
                    'v_and_b32 v%d, 0xffff0000, v%d' % (h, h),
                    'v_sub_f32 v%d, -v%d, v%d' % (m, m, h),
                    'v_cvt_pk_bf16_f32 v%d, v%d, v%d' % (m, h, m),
                    'v_cndmask_b32 v%d, v%d, v%d, s[%d:%d]' % (vQ2 + 2 * t, vQ2 + 2 * t, m, sHI, sHI + 1)]
        def nc(t):
            m, h = vM + t, vT + 8 + t
            return ['v_and_b32 v%d, 0xffff0000, v%d' % (m, m),
                    'v_add_f32 v%d, v%d, v%d' % (vNC + t, m, h),
                    'v_add_f32 v%d, v%d, v%d' % (m, m, h)]
        sw = lambda t: 'v_permlane32_swap_b32 v%d, v%d' % (vM + t, vNC + t)
        seq = [qk1(0, 0, 0, 0), qk2(0, 0, 0, 0), qk1(0, 0, 1, 1), qk2(0, 0, 1, 1), qk1(0, 0, 2, 2), 's_nop 6', qk2(0, 0, 2, 2), 's_nop 0']
        seq += ch(0)[:5] + [qk1(0, 0, 3, 3)] + ch(0)[5:] + ch(1)[:3] + [qk2(0, 0, 3, 3)] + ch(1)[3:] + nc(0)[:1]
        seq += [qk1(0, 0, 0, 0)] + ch(2)[:6] + [qk2(0, 0, 0, 0)] + ch(3)[:3]
        seq += ['v_mov_b32 v%d, 0' % (vS + 48 + 8 + i) for i in range(8)]
        seq += ch(2)[6:] + ch(3)[3:] + nc(0)[1:] + nc(1) + nc(2) + [sw(0)] + nc(3) + [sw(1), sw(2), sw(3)]
        for o in seq:
            a(o)
        a.label('L_loopentry')
    else:
        a.c('stand-in for the row maximum: the maximum over the first key tile (checked after the loop)')
        def tree(qt):
            src = vS + 16 * qt
            return ['v_max_f32 v%d, v%d, v%d' % (vM + qt, src, src + 1)] + \
                   ['v_max3_f32 v%d, v%d, v%d, v%d' % (vM + qt, vM + qt, src + k, src + k + 1) for k in range(2, 16, 2)]
        for qt in range(3):
            a(qk1(0, 0, qt, qt))
            a(qk2(0, 0, qt, qt))
        a(qk1(0, 0, 3, 3))
        a('s_nop 6')
        for o in tree(0)[:4]:
            a(o)
        a(qk2(0, 0, 3, 3))
        for o in tree(0)[4:] + tree(1) + tree(2) + tree(3):
            a(o)
        a.label('L_setc')
        for qt in range(4):
            a('v_mov_b32 v%d, v%d', vT + 8 + qt, vM + qt)
        for qt in range(4):
            a('v_permlane32_swap_b32 v%d, v%d', vM + qt, vT + 8 + qt)
        for qt in range(4):
            a('v_min_f32 v%d, -v%d, -v%d', vM + qt, vM + qt, vT + 8 + qt)
        for qt in range(4):
            a('v_cvt_pk_bf16_f32 v%d, v%d, v%d', vT + 8 + qt, vM + qt, vM + qt)
        for qt in range(4):
            a('v_and_b32 v%d, 0xffff0000, v%d', vT + 8 + qt, vT + 8 + qt)
        for qt in range(4):
            a('v_sub_f32 v%d, v%d, v%d', vM + qt, vM + qt, vT + 8 + qt)
        for qt in range(4):
            a('v_cvt_pk_bf16_f32 v%d, v%d, v%d', vM + qt, vT + 8 + qt, vM + qt)
        for qt in range(4):
            a('v_cndmask_b32 v%d, v%d, v%d, s[%d:%d]', vQ2 + 2 * qt, vQ2 + 2 * qt, vM + qt, sHI, sHI + 1)
        a(qk1(0, 0, 0, 0))
        a(qk2(0, 0, 0, 0))
        for qt in range(4):
            a('v_and_b32 v%d, 0xffff0000, v%d', vM + qt, vM + qt)
        for qt in range(4):
            a('v_add_f32 v%d, v%d, v%d', vNC + qt, vM + qt, vT + 8 + qt)
        for i in range(8):
            a('v_mov_b32 v%d, 0', vS + 48 + 8 + i)
    if OPT['s1late'] == 2:
        a('s_waitcnt vmcnt(2)')
    if OPT['split2']:
        assert OPT['s1late'] == 1 and OPT['fastpro']
        a(qk2(0, 0, 1, 1, True))
    if OPT['s1late']:
        for w_ in ((K1A, VA0, VA1, K2, K1B, VB0) if OPT['split2'] else (K1A, VA0, VA1, K1B, K2, VB0)):
            a(kvload0(1, w_, sOFF))
    if OPT['s1late'] != 2:
        a('s_waitcnt vmcnt(%d)', 9 if OPT['split2'] else 8)
    if OPT['tearly'] or OPT['gtouch'] == 1 or OPT['woe'] or OPT['smark'] == 1:
        setpw(5, vT + 8)
    stamp('A', 'attpro')
    if OPT['fine'] == 3:
        base = len(nstamp['A'])
        nstamp['A'] += ['it%d' % i for i in range(16)]
        a('s_mov_b32 s24, %d', base)
    a('.p2align %d', OPT['lalign'])
    for _ in range(OPT['lpad']):
        a('s_nop 0')
    a.label('L_attloop')
    UN = OPT['unroll']
    LEAN = OPT['rot'] == 0 and OPT['lean']
    for dt in range(UN):
        st = dt & 1
        for n in range(8):
            tile, qt = n >> 2, n & 3
            nst, ntile, nqt = (st, (n + 1) >> 2, (n + 1) & 3) if n < 7 else (st ^ 1, 0, 0)
            pst, ptile, pqt = (st, (n - 1) >> 2, (n - 1) & 3) if n > 0 else (st ^ 1, 1, 3)
            def ex(k):
                for e in range(4 * k, 4 * k + 4):
                    a('v_exp_f32 v%d, v%d', vS + 16 * qt + e, vS + 16 * qt + e)
            if OPT['split2']:
                st2, tile2, qt2 = (st, (n + 2) >> 2, (n + 2) & 3) if n < 6 else (st ^ 1, 0, n - 6)
                if n == 3:
                    a('s_waitcnt vmcnt(8)')
                a(qk1(nst, ntile, nqt, nqt, False))
                if n == 1:
                    a('s_add_u32 s%d, s%d, %d', sOFF, sOFF, BLK)
                if n in (2, 6):
                    a(kvload(st, K1A if n == 2 else K1B, sOFF))
                if n == 5 and OPT['fine'] == 3:
                    a('s_memtime s[98:99]')
                    a('s_memrealtime s[100:101]')
                if n == 6 and OPT['fine'] == 3:
                    a('s_waitcnt lgkmcnt(0)')
                    a('s_mov_b32 m0, s24')
                    a('s_add_u32 s25, s24, 32')
                    a('v_writelane_b32 v%d, s98, m0', vTS)
                    a('s_mov_b32 m0, s25')
                    a('s_add_u32 s24, s24, 1')
                    a('v_writelane_b32 v%d, s100, m0', vTS)
                ex(0)
                a(pv(pst, ptile, pqt, 1))
                if n == 0:
                    a(kvload(st ^ 1, VB1, sOFF))
                if n == 4:
                    a(kvload(st, VA1, sOFF))
                if n == 1 and st == 0 and not LEAN:
                    a('s_cmp_eq_u32 s%d, s%d', sOFF, sKVE)
                    a('s_cselect_b32 s%d, s%d, s%d', sOFF, sKVB, sOFF)
                ex(1)
                if n == 6:
                    a('s_waitcnt vmcnt(8)')
                a(qk2(st2, tile2, qt2, qt2, True))
                if n == 5:
                    a(kvload(st, K2, sOFF))
                if n == 1 and dt == UN - 2 and not LEAN:
                    a('s_cmp_eq_u32 s%d, s%d', sOFF, sKV0)
                    a('s_cselect_b32 s%d, s%d, s%d', sOFF, sCNT, sOFF)
                if dt == UN - 1 and n == 7:
                    a('s_cmp_lt_u32 s%d, s%d', sOFF, sKVE if LEAN else sCNT)
                ex(2)
                a(pv(st, tile, qt, 0))
                if n == 3:
                    a(kvload(st, VA0, sOFF))
                if n == 7:
                    a(kvload(st, VB0, sOFF))
                ex(3)
                continue
            if n == 7:
                a('s_waitcnt vmcnt(%d)', 40 if OPT['nowait'] else 7)
            X8 = OPT['x8first']
            a(qk2(nst, ntile, nqt, nqt, True) if X8 else qk1(nst, ntile, nqt, nqt))
            if n == 1:
                a('s_add_u32 s%d, s%d, %d', sOFF, sOFF, BLK)
            if n == 2 and not X8:
                a(kvload(st, K1A, sOFF))
            if n == 6:
                a(kvload(st, K2 if X8 else K1B, sOFF))
            if n == 5 and OPT['fine'] == 3:
                a('s_memtime s[98:99]')
                a('s_memrealtime s[100:101]')
            if n == 6 and OPT['fine'] == 3:
                a('s_waitcnt lgkmcnt(0)')
                a('s_mov_b32 m0, s24')
                a('s_add_u32 s25, s24, 32')
                a('v_writelane_b32 v%d, s98, m0', vTS)
                a('s_mov_b32 m0, s25')
                a('s_add_u32 s24, s24, 1')
                a('v_writelane_b32 v%d, s100, m0', vTS)
            ex(0)
            a(qk1(nst, ntile, nqt, nqt, False) if X8 else qk2(nst, ntile, nqt, nqt))
            if n == 2 and X8:
                a(kvload(st, K1A, sOFF))
            if n == 6:
                a(kvload(st, K1B if X8 else K2, sOFF))
            if n == 1 and st == 0 and not LEAN:
                a('s_cmp_eq_u32 s%d, s%d', sOFF, sKVE)
                a('s_cselect_b32 s%d, s%d, s%d', sOFF, sKVB, sOFF)
            ex(1)
            a(pv(pst, ptile, pqt, 1))
            if n == 0:
                a(kvload(st ^ 1, VB1, sOFF))
            if n == 4:
                a(kvload(st, VA1, sOFF))
            if n == 1 and dt == UN - 2 and not LEAN:
                a('s_cmp_eq_u32 s%d, s%d', sOFF, sKV0)
                a('s_cselect_b32 s%d, s%d, s%d', sOFF, sCNT, sOFF)
            if dt == UN - 1 and n == 7:
                a('s_cmp_lt_u32 s%d, s%d', sOFF, sKVE if LEAN else sCNT)
            ex(2)
            if n == 4:
                a('s_waitcnt vmcnt(%d)', 40 if OPT['nowait'] else 10)
            a(pv(st, tile, qt, 0))
            if n == 3:
                a(kvload(st, VA0, sOFF))
            if n == 7:
                a(kvload(st, VB0, sOFF))
            ex(3)
    a('s_cbranch_scc1 L_attloop')
    a('s_nop 0')
    a(pv(1, 1, 3, 1))
    stamp('A', 'attloop')
    if OPT['tprio']:
        a('s_setprio 2')
    a('ds_write_b64 v%d, %s offset:6144', vMG + 1, v(vNC, 2))
    for t in range(2):
        for q in range(3):
            a('ds_write_b128 v%d, %s offset:%d', vMG, v(vO + 16 * t + 4 * q, 4), 1024 * (3 * t + q))
    a('v_mov_b32 v%d, 6', vT + 10)
    a('v_mov_b32 v%d, 7', vT + 11)
    a('v_min3_f32 v%d, v%d, v%d, v%d', vT + 8, vO + 8, vO + 24, vO + 40)
    a('v_add_f32 v%d, v%d, v%d', vT + 9, vO + 8, vO + 24)
    a('v_add_f32 v%d, v%d, v%d', vT + 9, vT + 9, vO + 40)
    a('v_min_f32 v%d, v%d, v%d', vT + 8, vT + 8, vO + 56)
    a('v_add_f32 v%d, v%d, v%d', vT + 9, vT + 9, vO + 56)
    a('v_cmp_nle_f32 s[38:39], s10, v%d', vT + 8)
    a('v_cmp_nge_f32 vcc, s11, v%d', vT + 9)
    a('s_or_b32 s39, s39, vcc_hi')
    if OPT['force_fb']:
        a('s_cmp_eq_u32 s39, s39')
    a('s_cbranch_scc1 L_fallback')
    n0 = len(a.lines)
    a.label('L_fallback')
    a('s_cmp_eq_u32 s%d, 0', sPASS)
    a('s_cbranch_scc0 L_attok')
    a.c('fallback: exact row maximum over this wave\'s keys, then redo the pass')
    a('s_mov_b32 s%d, 1', sPASS)
    a('s_waitcnt vmcnt(0) lgkmcnt(0)')
    a('v_mov_b32 v%d, 0', vT + 8)
    for qt in range(4):
        a('v_cndmask_b32 v%d, v%d, v%d, s[%d:%d]', vQ2 + 2 * qt, vQ2 + 2 * qt, vT + 8, sHI, sHI + 1)
        a('v_mov_b32 v%d, 0xff800000', vM + qt)
    a('s_mov_b32 s%d, s%d', sOFF, sKVB)
    a('s_mov_b32 s%d, 16', sCNT)
    a.label('L_maxloop')
    for w_ in (K1A, K1B, K2):
        a(kvload(0, w_, sOFF))
    a('s_waitcnt vmcnt(0)')
    for tile in range(2):
        for qt in range(4):
            a(qk1(0, tile, qt, qt))
            a(qk2(0, tile, qt, qt))
        a('s_nop 5')
        for qt in range(4):
            maxtree(vM + qt, vS + 16 * qt, True)
    a('s_add_u32 s%d, s%d, %d', sOFF, sOFF, BLK)
    a('s_sub_u32 s%d, s%d, 1', sCNT, sCNT)
    a('s_cmp_lg_u32 s%d, 0', sCNT)
    a('s_cbranch_scc1 L_maxloop')
    for i in range(64):
        a('v_mov_b32 v%d, 0', vO + i)
    a('s_branch L_attload')
    if OPT['fastpro']:
        a.label('L_setc')
        for qt in range(4):
            a('v_mov_b32 v%d, v%d', vT + 8 + qt, vM + qt)
        for qt in range(4):
            a('v_permlane32_swap_b32 v%d, v%d', vM + qt, vT + 8 + qt)
        for qt in range(4):
            a('v_min_f32 v%d, -v%d, -v%d', vM + qt, vM + qt, vT + 8 + qt)
        for qt in range(4):
            a('v_cvt_pk_bf16_f32 v%d, v%d, v%d', vT + 8 + qt, vM + qt, vM + qt)
        for qt in range(4):
            a('v_and_b32 v%d, 0xffff0000, v%d', vT + 8 + qt, vT + 8 + qt)
        for qt in range(4):
            a('v_sub_f32 v%d, v%d, v%d', vM + qt, vM + qt, vT + 8 + qt)
        for qt in range(4):
            a('v_cvt_pk_bf16_f32 v%d, v%d, v%d', vM + qt, vT + 8 + qt, vM + qt)
        for qt in range(4):
            a('v_cndmask_b32 v%d, v%d, v%d, s[%d:%d]', vQ2 + 2 * qt, vQ2 + 2 * qt, vM + qt, sHI, sHI + 1)
        a(qk1(0, 0, 0, 0))
        a(qk2(0, 0, 0, 0))
        for qt in range(4):
            a('v_and_b32 v%d, 0xffff0000, v%d', vM + qt, vM + qt)
        for qt in range(4):
            a('v_add_f32 v%d, v%d, v%d', vNC + qt, vM + qt, vT + 8 + qt)
        for i in range(8):
            a('v_mov_b32 v%d, 0', vS + 48 + 8 + i)
        a('s_branch L_loopentry')
    COLD.extend(a.lines[n0:])
    del a.lines[n0:]
    a.label('L_attok')
    a('ds_write_b32 v%d, v%d', vPW, vT + 10)
    R = vS
    NC2 = vS + 32
    rd = ['ds_read_b64 %s, v%d offset:6144' % (v(NC2, 2), vMG + 3)]
    for t in range(2):
        rd.append('ds_read_b128 %s, v%d offset:%d' % (v(R + 16 * t + 8, 4), vMG + 2, 1024 * (3 * t + 2)))
    for t in range(2):
        for q in range(2):
            rd.append('ds_read_b128 %s, v%d offset:%d' % (v(R + 16 * t + 4 * q, 4), vMG + 2, 1024 * (3 * t + q)))
    if OPT['otag'] and not OPT['amark']:
        a('ds_read_b32 v%d, v%d', vT + 12, vMG + 5)
    waitpw(vMG + 4, 6, vT + 8, extra=rd)
    a('ds_write_b32 v%d, v%d', vPW, vT + 11)
    if OPT['otag'] and not OPT['amark']:
        a('v_cmp_gt_u32 vcc, 14, v%d', vT + 12)
        a('s_cbranch_vccnz L_swait')
        n0 = len(a.lines)
        a.label('L_swait')
        waitpw(vMG + 5, 14, vT + 12)
        a('s_branch L_sready')
        COLD.extend(a.lines[n0:])
        del a.lines[n0:]
        a.label('L_sready')
    f1, f2, l1, l2 = vS + 34, vS + 36, vS + 38, vS + 40
    a('s_waitcnt lgkmcnt(7)')
    for t in range(2):
        a('v_min_f32 v%d, v%d, v%d', l1 + t, vNC + 2 + t, NC2 + t)
    for t in range(2):
        a('v_sub_f32 v%d, v%d, v%d', f1 + t, l1 + t, vNC + 2 + t)
        a('v_sub_f32 v%d, v%d, v%d', f2 + t, l1 + t, NC2 + t)
    for t in range(2):
        a('v_exp_f32 v%d, v%d', f1 + t, f1 + t)
        a('v_exp_f32 v%d, v%d', f2 + t, f2 + t)
    a('s_waitcnt lgkmcnt(5)')
    for t in range(2):
        a('v_mul_f32 v%d, v%d, v%d', l1 + t, f1 + t, vO + 32 + 16 * t + 8)
    for t in range(2):
        a('v_fmac_f32 v%d, v%d, v%d', l1 + t, f2 + t, R + 16 * t + 8)
    for t in range(2):
        a('v_mov_b32 v%d, v%d', l2 + t, l1 + t)
    a('s_nop 0')
    for t in range(2):
        a('v_permlane32_swap_b32 v%d, v%d', l1 + t, l2 + t)
    for t in range(2):
        a('v_rcp_f32 v%d, v%d', l2 + t, l2 + t)
    a('s_waitcnt vmcnt(0) lgkmcnt(0)')
    for t in range(2):
        a('v_mul_f32 v%d, v%d, v%d', f1 + t, f1 + t, l2 + t)
        a('v_mul_f32 v%d, v%d, v%d', f2 + t, f2 + t, l2 + t)
    P = vO
    for t in range(2):
        if OPT['pkmerge']:
            sel = 'op_sel:[%d,0] op_sel_hi:[%d,1]' % (t, t)
            sel3 = 'op_sel:[%d,0,0] op_sel_hi:[%d,1,1]' % (t, t)
            for r in range(0, 12, 2):
                a('v_pk_mul_f32 %s, %s, %s %s', v(vO + 32 + 16 * t + r, 2), v(f1, 2), v(vO + 32 + 16 * t + r, 2), sel)
            for r in range(0, 12, 2):
                a('v_pk_fma_f32 %s, %s, %s, %s %s', v(vO + 32 + 16 * t + r, 2), v(f2, 2), v(R + 16 * t + r, 2), v(vO + 32 + 16 * t + r, 2), sel3)
        else:
            for r in range(12):
                a('v_mul_f32 v%d, v%d, v%d', vO + 32 + 16 * t + r, f1 + t, vO + 32 + 16 * t + r)
            for r in range(12):
                a('v_fmac_f32 v%d, v%d, v%d', vO + 32 + 16 * t + r, f2 + t, R + 16 * t + r)
        for q in range(6):
            a('v_cvt_pk_bf16_f32 v%d, v%d, v%d', P + 8 * t + q, vO + 32 + 16 * t + 2 * q, vO + 32 + 16 * t + 2 * q + 1)
        if OPT['otag']:
            for q in range(4):
                a('v_min_u32 v%d, -2, v%d', P + 8 * t + q, P + 8 * t + q)
        a('buffer_store_dwordx4 %s, v%d, s[%d:%d], s%d offen sc1', v(P + 8 * t, 4), vMG + 6, RWS, RWS + 3, 41 + t)
    if not OPT['otag']:
        a('s_nop 0')
    a('v_permlane32_swap_b32 v%d, v%d', P + 4, P + 12)
    a('v_permlane32_swap_b32 v%d, v%d', P + 5, P + 13)
    if OPT['otag']:
        a('v_min_u32 v%d, -2, v%d', P + 4, P + 4)
        a('v_min_u32 v%d, -2, v%d', P + 5, P + 5)
    a('buffer_store_dwordx2 %s, v%d, s[%d:%d], s40 offen offset:512 sc1', v(P + 4, 2), vMG + 7, RWS, RWS + 3)
    if OPT['otag']:
        setflag(43, 20)
    if OPT['tprio'] == 2:
        a('s_setprio 0')
    if OPT['pgate']:
        setpw(8, vT + 8)
        a('ds_read_b32 v%d, v%d', 99, vAPW)
    stamp('A', 'merge')

def ostore(j, r):
    return 'buffer_store_dword v%d, v%d, s[%d:%d], s86 offen offset:%d%s' % (80 + 4 * j + r, 244 + r, R4, R4 + 3, 64 * j, OSC)

def p3_static(vA0, vA1, vOA, acc):
    EP = OPT['epoll']
    TAG = OPT['otag']
    if TAG:
        stamp('A', 'odrain')
        a.label('L_p3redo')
    elif not EP:
        a('s_waitcnt vmcnt(0)')
        stamp('A', 'odrain')
        setflag(43, 1)
    NB = 7
    def reads(ks):
        f = 100 + 20 * (ks % NB)
        base, off = (vA0, ks * 5120) if ks < 10 else (vA1, (ks - 10) * 5120)
        if OPT['fline'] & 1:
            return ['ds_read_b64_tr_b16 %s, v%d offset:%d' % (v(f + 4 * j + 2 * rd, 2), base + (6 if j == 4 else 0),
                                                             off + 1280 * rd + 32 * (j & 3)) for j in range(5) for rd in range(2)]
        return ['ds_read_b64_tr_b16 %s, v%d offset:%d' % (v(f + 4 * j + 2 * rd, 2), base, off + 1280 * rd + 32 * j)
                for j in range(5) for rd in range(2)]
    pl = 'buffer_load_dword v252, v%d, s[%d:%d], s88 offen sc1' % (vOA + 1, RWS, RWS + 3)
    def oload(ks):
        a('buffer_load_dwordx4 %s, v%d, s[%d:%d], s85 offen offset:%d sc1', v(4 * ks, 4), vOA, RWS, RWS + 3, 1024 * (ks & 3))
        if ks & 3 == 3 and ks < 19:
            a('s_add_u32 s85, s85, 4096')
    LEAD = OPT['olead']
    touch_ = 'buffer_load_dword v251, v248, s[%d:%d], s85 offen sc1' % (RWS, RWS + 3)
    NP = OPT['npre'] if EP else 0
    rest = [r for ks in range(NP, NB) for r in reads(ks)]
    if EP:
        for ks in range(NP):
            for r in reads(ks):
                a(r)
        if OPT['pgate']:
            a('s_waitcnt lgkmcnt(0)')
            a('v_cmp_gt_u32 vcc, 8, v99')
            a('s_cbranch_vccz L_epoll')
            a('s_waitcnt vmcnt(0)')
            stamp('A', 'odrain')
            if DIAG:
                nstamp['A'].pop()
            setflag(43, 2)
            a('s_mov_b32 vcc_lo, -1')
            a('s_mov_b32 vcc_hi, 0')
            a('s_branch L_f4late')
            a.label('L_epoll')
        a('s_mov_b32 exec_hi, 0')
        a(pl)
        a('s_waitcnt vmcnt(1)')
        stamp('A', 'odrain')
        setflag(43, 2)
        a('s_mov_b32 exec_hi, 0')
        a('s_waitcnt vmcnt(1)')
        a('v_cmp_eq_u32 vcc, 0, v252')
        a('s_mov_b64 exec, -1')
        a('s_cbranch_vccnz L_f4late')
        stamp('A', 'f4')
        if DIAG:
            nstamp['A'].pop()
        a(touch_)
        k = 0
        for ks in range(LEAD):
            oload(ks)
            while k < len(rest) * (ks + 1) // LEAD:
                a(rest[k])
                k += 1
        a('s_branch L_p3go')
        a.label('L_f4late')
    for r in rest:
        a(r)
    if OPT['pgate'] and TAG != 1:
        a('s_mov_b64 s[38:39], vcc')
        waitpw(vAPW, 8, 99, sleep=OPT['gsleep'])
        a('s_mov_b64 vcc, s[38:39]')
    if EP:
        a('s_mov_b64 exec, vcc')
    else:
        a('s_mov_b32 exec_hi, 0')
    pollflags([pl], 252, sleep=OPT['psleep4'])
    stamp('A', 'f4')
    if OPT['otouch']:
        a(touch_)
    for ks in range(LEAD):
        oload(ks)
    a.label('L_p3go')
    a('s_waitcnt lgkmcnt(0)')
    nl = LEAD
    a('v_mov_b32 v250, 9')
    lq = []
    if nl == 20 or OPT['yearly']:
        a('ds_write_b32 v%d, v250', vPW)
    pend = []
    nck = 0
    JO = OPT['jout'] or 20
    for ks in range(JO):
        w_ = 's_waitcnt vmcnt(%d)' % (nl - 1 - ks)
        if ks in lq:
            idx = max(i for i, x in enumerate(lq) if x == ks)
            w_ += ' lgkmcnt(%d)' % min(15, len(lq) - 1 - idx)
        a(w_)
        if OPT['fine'] in (1, 2) and ks in (0, 10, 19):
            stamp('A', 'p3k%d' % ks)
        rr = reads(ks + NB) if ks + NB < 20 else []
        for j in range(5):
            a('v_mfma_f32_16x16x32_bf16 %s, %s, %s, %s', v(acc + 4 * j, 4), v(4 * ks, 4), v(100 + 20 * (ks % NB) + 4 * j, 4),
              '0' if ks == 0 else v(acc + 4 * j, 4))
            for tg, r in pend:
                a(r)
                lq.append(tg)
            if TAG and not pend and ks >= 13:
                for _ in range(2):
                    if nck < 4 * ks + 4:
                        if nck == 0:
                            a('v_max_u32 v252, v0, v1')
                        else:
                            a('v_max3_u32 v252, v252, v%d, v%d', nck, nck + 1)
                        nck += 2
            pend = [(ks + NB, r) for r in rr[2 * j:2 * j + 2]]
            if j in (0, 3) and nl < 20 and (j == 0 or ks % 2 == 0):
                oload(nl)
                nl += 1
                if nl == 20 and not OPT['yearly']:
                    a('ds_write_b32 v%d, v250', vPW)
                    lq.append('w')
    if JO < 20:
        assert not TAG and nl == 20 and not pend
        a('s_waitcnt vmcnt(0) lgkmcnt(0)')
        for j in range(5):
            for i, ks in enumerate(range(JO, 20)):
                a('v_mfma_f32_16x16x32_bf16 %s, %s, %s, %s', v(acc + 4 * j, 4), v(4 * ks, 4), v(100 + 20 * (ks % NB) + 4 * j, 4), v(acc + 4 * j, 4))
                if j and i < 2:
                    a('s_nop 2')
                elif j and i < 6:
                    a(ostore(j - 1, i - 2))
        if OPT['fine'] in (1, 2):
            stamp('A', 'p3k19')
        a('s_nop 6')
        for r in range(4):
            a(ostore(4, r))
    if TAG:
        assert nck == 80
        a('v_cmp_eq_u32 vcc, -1, v252')
        a('s_cbranch_vccnz L_p3again')
        retry('L_p3again', 'L_p3redo', 0, ['s_sub_u32 s85, s85, 16384'])

def p3_groups(vA0, vOA, acc):
    WF, vAN = 100, 241
    sP, sG, sM, sKEY, sC = 4, 5, 6, 7, 8
    pl = 'buffer_load_dword v252, v%d, s[%d:%d], s88 offen sc1' % (vOA + 1, RWS, RWS + 3)
    for g in range(4):
        a('s_sub_u32 s%d, %d, s%d', sC + g, g, sOG)
        a('s_and_b32 s%d, s%d, 3', sC + g, sC + g)
        a('s_lshl2_add_u32 s%d, s%d, %d', sC + g, sC + g, g)
    a('v_mov_b32 v248, 9')
    a('s_waitcnt lgkmcnt(0)')
    a('v_cmp_gt_u32 vcc, 8, v99')
    a('s_cbranch_vccz L_epoll')
    a('s_waitcnt vmcnt(0)')
    stamp('A', 'odrain')
    if DIAG:
        nstamp['A'].pop()
    setflag(43, 2)
    waitpw(vAPW, 8, 99, sleep=OPT['gsleep'])
    a('s_mov_b32 exec_hi, 0')
    a(pl)
    a('s_waitcnt vmcnt(0)')
    a('s_branch L_polled')
    a.label('L_epoll')
    a('s_mov_b32 exec_hi, 0')
    a(pl)
    a('s_waitcnt vmcnt(1)')
    stamp('A', 'odrain')
    setflag(43, 2)
    a('s_mov_b32 exec_hi, 0')
    a('s_waitcnt vmcnt(1)')
    a.label('L_polled')
    a('v_cmp_eq_u32 vcc, 0, v252')
    a('s_mov_b64 exec, -1')
    a('s_mov_b32 s%d, vcc_lo', sP)
    def reads(k):
        return ['ds_read_b64_tr_b16 %s, v%d offset:%d' % (v(WF + 20 * k + 4 * j + 2 * rd, 2), vAN, 5120 * k + 1280 * rd + 32 * j)
                for j in range(5) for rd in range(2)]
    def issue(sl):
        for k in range(5):
            a('buffer_load_dwordx4 %s, v%d, s[%d:%d], s%d offen offset:%d sc1', v(20 * sl + 4 * k, 4), vOA, RWS, RWS + 3,
              12 if k < 4 else 13, 1024 * (k & 3))
        if sl == 3:
            a('ds_write_b32 v%d, v248', vPW)
    for sl in range(-1, 4):
        nx = sl + 1
        Lw, Lc, Ld = a.newlabel('gw'), a.newlabel('gc'), a.newlabel('gd')
        if nx < 4:
            for g in range(4):
                a('s_bfe_u32 s14, s%d, 0x%x', sP, (8 << 16) | (8 * g))
                a('s_bcnt1_i32_b32 s14, s14')
                if g == 0:
                    a('s_lshl4_add_u32 s%d, s14, s%d', sKEY, sC)
                else:
                    a('s_lshl4_add_u32 s14, s14, s%d', sC + g)
                    a('s_min_u32 s%d, s%d, s14', sKEY, sKEY)
            a('s_and_b32 s%d, s%d, 3', sG, sKEY)
            a('s_mul_i32 s12, s%d, 5120', sG)
            a('s_add_u32 s12, s12, s85')
            a('s_add_u32 s13, s12, 4096')
            a('s_cmp_lt_u32 s%d, 16', sKEY)
            a('s_cbranch_scc0 %s', Lw)
            issue(nx)
            if sl >= 0:
                a('s_waitcnt vmcnt(5)')
            a('s_branch %s', Lc)
            a.label(Lw)
            a('s_mov_b32 exec_lo, s%d', sP)
            a('s_mov_b32 exec_hi, 0')
            a(pl)
            a('s_mov_b64 exec, -1')
            if sl >= 0:
                a('s_waitcnt vmcnt(1)')
            a.label(Lc)
            a('s_mul_i32 s14, s%d, 25600', sG)
            a('v_add_u32 v%d, s14, v%d', vAN, vA0)
            if nx < 3:
                for g in range(4):
                    a('s_cmp_eq_u32 s%d, %d', sG, g)
                    a('s_cselect_b32 s%d, 0x1000, s%d', sC + g, sC + g)
        if sl < 0:
            for k in range(5):
                for r in reads(k):
                    a(r)
        else:
            pend = []
            for k in range(5):
                if nx == 4:
                    a('s_waitcnt vmcnt(%d) lgkmcnt(%d)', 4 - k, 0 if k >= 3 else 15)
                else:
                    a('s_waitcnt lgkmcnt(15)')
                rr = reads(k) if nx < 4 else []
                for j in range(5):
                    a('v_mfma_f32_16x16x32_bf16 %s, %s, %s, %s', v(acc + 4 * j, 4), v(20 * sl + 4 * k, 4), v(WF + 20 * k + 4 * j, 4),
                      '0' if (sl == 0 and k == 0) else v(acc + 4 * j, 4))
                    for r in pend:
                        a(r)
                    pend = rr[2 * j:2 * j + 2]
            for r in pend:
                a(r)
        if nx < 4:
            a('s_cmp_lt_u32 s%d, 16', sKEY)
            a('s_cbranch_scc1 %s', Ld)
            L1, L2 = a.newlabel('gp'), a.newlabel('gq')
            a('s_lshl_b32 s14, s%d, 3', sG)
            a('s_lshl_b32 s%d, 0xff, s14', sM)
            a('s_mov_b32 exec_lo, s%d', sP)
            a('s_mov_b32 exec_hi, 0')
            a.label(L1)
            a('s_waitcnt vmcnt(0)')
            a('v_cmp_eq_u32 vcc, 0, v252')
            a('s_and_b32 s14, vcc_lo, s%d', sM)
            a('s_cbranch_scc0 %s', L2)
            a('s_mov_b64 exec, vcc')
            if OPT['psleep4']:
                a('s_sleep %d', OPT['psleep4'])
            a(pl)
            a('s_sub_u32 s%d, s%d, 1', sSPIN, sSPIN)
            a('s_cbranch_scc0 %s', L1)
            a('s_endpgm')
            a.label(L2)
            a('s_mov_b32 s%d, vcc_lo', sP)
            a('s_mov_b64 exec, -1')
            issue(nx)
            a.label(Ld)
            if nx == 3:
                stamp('A', 'f4')

def a_outproj():
    vA0, vA1, vOA, vST = 240, 241, 242, 244
    if not OPT['otag'] or OPT['amark']:
        waitpw(vMG + 5, 14, 98, sleep=1)
    a('v_lshrrev_b32 v21, 5, v%d', vLANE)
    a('v_bfe_u32 v22, v%d, 2, 3', vLANE)
    a('v_lshl_add_u32 v21, v21, 4, v22')
    a('v_mul_u32_u24 v21, 160, v21')
    a('v_and_b32 v22, 3, v%d', vLANE)
    a('v_lshl_add_u32 v%d, v22, 3, v21', vA0)
    a('v_add_u32 v%d, %d, v%d', vA1, 10 * 5120, vA0)
    a('v_lshlrev_b32 v%d, 4, v%d', vOA, vLANE)
    a('v_lshrrev_b32 v21, 4, v%d', vLANE)
    a('v_mul_u32_u24 v21, %d, v21', 4 * 5120)
    a('v_and_b32 v22, 15, v%d', vLANE)
    a('v_lshl_add_u32 v%d, v22, 2, v21', vST)
    if OPT['fline'] & 1:
        a('s_and_b32 s12, s%d, 1', sOG)
        a('s_xor_b32 s13, s12, 1')
        a('s_lshl_b32 s14, s13, 7')
        a('v_add_u32 v%d, s14, v%d', vA0 + 6, vA0)
        a('v_add_u32 v%d, s14, v%d', vA1 + 6, vA1)
        a('s_lshl_b32 s14, s12, 5')
        a('v_add_u32 v%d, s14, v%d', vA0, vA0)
        a('v_add_u32 v%d, s14, v%d', vA1, vA1)
        a('s_lshl_b32 s14, s13, 8')
        a('v_add_u32 v%d, s14, v%d', vST, vST)
        a('v_lshrrev_b32 v21, 5, v%d', vLANE)
        a('v_mul_u32_u24 v21, %d, v21', 8 * 5120)
        a('v_and_b32 v22, 31, v%d', vLANE)
        a('v_lshl_add_u32 v21, v22, 2, v21')
        a('s_lshl_b32 s14, s12, 6')
        a('v_add_u32 v%d, s14, v21', vST + 1)
    else:
        for r in range(1, 4):
            a('v_add_u32 v%d, %d, v%d', vST + r, 5120 * r, vST)
    if OPT['otouch'] or OPT['epoll']:
        a('s_mul_i32 s84, s%d, 2560', sOG)
        a('v_min_u32 v248, 19, v%d', vLANE)
        a('v_lshl_add_u32 v248, v248, 7, s84')
    if OPT['orot']:
        a('s_add_u32 s84, s%d, s%d', sW, sOG)
        a('s_and_b32 s84, s84, 3')
        a('s_lshl2_add_u32 s84, s%d, s84', sTB)
    else:
        a('s_lshl2_add_u32 s84, s%d, s%d', sTB, sW)
    a('s_mul_i32 s85, s84, %d', OBLK)
    a('s_add_u32 s85, s85, 0x%x', WS_O)
    a('s_mul_i32 s86, s84, %d', 16 * 5120)
    a('s_mul_i32 s88, s%d, 320', sOG)
    a('s_add_u32 s86, s86, s88')
    if OPT['fline'] & 1:
        for r in range(8):
            a('s_add_u32 s%d, s86, %d', 4 + r, 5120 * r)
    a('v_lshlrev_b32 v%d, 7, v%d', vOA + 1, vLANE)
    a('s_lshl_b32 s88, s%d, 12', sTB)
    a('s_add_u32 s88, s88, 0x%x', F4)
    acc = 80
    a.label('L_pgO')
    if OPT['p3dyn']:
        p3_groups(vA0, vOA, acc)
    else:
        p3_static(vA0, vA1, vOA, acc)
    if OPT['fline'] & 1:
        a('s_nop 4')
        for p in range(2):
            for r in range(4):
                a('v_permlane16_swap_b32 v%d, v%d', acc + 8 * p + r, acc + 8 * p + 4 + r)
            for r in range(8):
                a('buffer_store_dword v%d, v%d, s[%d:%d], s%d offen offset:%d%s', acc + 8 * p + r, vST + 1, R4, R4 + 3, 4 + r, 128 * p, OSC)
        for r in range(4):
            a('buffer_store_dword v%d, v%d, s[%d:%d], s%d offen%s', acc + 16 + r, vST, R4, R4 + 3, 4 + r, OSC)
    elif not OPT['jout']:
        a('s_nop 3')
        for j in range(5):
            for r in range(4):
                a(ostore(j, r))
    finish('A')

vXR, vBR, vA0PW = 96, 100, 107
vL, vE, vHW, vHR0, vHR1, vHS, vCH, vCHL, vHH, vP01, vTCH, vHINT = 146, 150, 151, 152, 153, 154, 155, 156, 157, 158, 159, 160
vDX, vDW, vDBX, vDBB = 161, 165, 169, 173
vZ, vWOA, vPAR = 176, 186, 200
vCA, vCR, vHA = 248, 250, 252
vOS = 194
vSPW, vF3, vHT = 191, 192, 193
vAM = 248
vXO, vDO, vOA, vRA, vR1W, vR1R, vR2W, vPW1, vPW2, vAP4 = 164, 165, 166, 167, 169, 170, 171, 172, 173, 174
SENT = 0xffffffff

def s_stage(t, emit=None):
    out = []
    slot = ((t + 1) % 4) * 32768
    if OPT['stag'] >= 8 and t < 10:
        out += ['s_bfe_u32 s82, s%d, 0x%x' % (86 + t // 8, (4 << 16) | (4 * (t % 8))),
                's_add_u32 s82, s82, s85', 's_cmp_ge_u32 s82, 10', 's_cselect_b32 s83, 10, 0', 's_sub_u32 s82, s82, s83']
    elif OPT['stag'] >= 5 and t < 10:
        base, size = {0: (0, 4), 1: (4, 4), 2: (8, 2)}[t // 4] if OPT['stag'] != 7 else ((0, 2) if t < 2 else ((2, 4) if t < 6 else (6, 4)))
        out += ['s_add_u32 s82, s81, %d' % t, 's_and_b32 s82, s82, %d' % (size - 1), 's_add_u32 s82, s82, %d' % base,
                's_add_u32 s82, s82, s85', 's_cmp_ge_u32 s82, 10', 's_cselect_b32 s83, 10, 0', 's_sub_u32 s82, s82, s83']
    out.append('s_add_u32 m0, s74, %d' % slot)
    out.append('s_lshl_b32 s83, s82, 7')
    out.append('s_add_u32 s76, s72, s83')
    if t < 10:
        out += [dma(vDX + i, R0, 76, 1024 * i) for i in range(4)]
        out.append('s_add_u32 m0, s74, %d' % (slot + 16384))
        out.append('s_mul_i32 s83, s82, 245760')
        out.append('s_add_u32 s76, s73, s83')
        out += [dma(vDW + i, R1, 76, 1024 * i) for i in range(4)]
    else:
        out += [dma(vDBX + i, R3, 76, 1024 * i) for i in range(4)]
        out.append('s_add_u32 m0, s75, %d' % (slot + 16384))
        out.append('s_add_u32 s76, s77, s83')
        out += [dma(vDBB + i, R4, 76, 1024 * i) for i in range(2)]
        if OPT['snodup']:
            L3 = a.newlabel('s3rd')
            out += ['s_bitcmp1_b32 s%d, 0' % sW, 's_cbranch_scc1 %s' % L3, dma(vDBB + 2, R4, 76, 2048), L3 + ':']
        else:
            out.append(dma(vDBB + 2, R4, 76, 2048))
    if not (OPT['stag'] >= 5 and t < 10):
        out.append('s_add_u32 s82, s82, 1')
        out.append('s_cmp_eq_u32 s82, 10')
        out.append('s_cselect_b32 s82, 0, s82')
    if emit is None:
        L = a.newlabel('skip')
        if t < 10:
            a('s_cmp_eq_u32 s%d, 15', sCG)
            a('s_cbranch_scc1 %s', L)
        for o in out:
            a(o)
        if t < 10:
            a.label(L)
    return out

def ninstr(t):
    return 0 if t > 19 else (8 if t < 10 else 7)

def exp_acc(dst, x, t1, t2):
    L2E = math.log2(math.e)
    hi = struct.unpack('<f', struct.pack('<f', L2E))[0]
    a('s_mov_b32 s80, 0x%x', f2u(hi))
    a('v_mul_f32 v%d, s80, v%d', t1, x)
    a('v_fma_f32 v%d, v%d, s80, -v%d', t2, x, t1)
    a('v_fmac_f32 v%d, 0x%x, v%d', t2, f2u(L2E - hi), x)
    a('v_exp_f32 v%d, v%d', dst, t1)
    a('v_mul_f32 v%d, 0x%x, v%d', t2, f2u(math.log(2.0)), t2)
    a('v_fmac_f32 v%d, v%d, v%d', dst, dst, t2)

def s_setup():
    a.label('L_roleS')
    a('s_sub_u32 s%d, s%d, 4', sW, sW)
    a('v_lshrrev_b32 v1, 3, v%d', vLANE)
    a('v_and_b32 v2, 7, v%d', vLANE)
    a('v_lshrrev_b32 v3, 4, v%d', vLANE)
    a('v_xor_b32 v4, v2, v3')
    if OPT['q16']:
        a('s_cmp_ge_u32 s%d, 10', sCG)
        a('s_cselect_b32 s70, 4, 0')
        a('s_cselect_b32 s71, 19, 9')
        a('s_cselect_b32 s75, 3, 18')
        a('v_and_b32 v5, s70, v1')
        a('v_add_u32 v5, v5, v1')
        a('v_mul_u32_u24 v5, 1280, v5')
        a('v_lshl_add_u32 v%d, v4, 4, v5', vDX)
        a('v_xor_b32 v6, 64, v%d', vDX)
        a('v_lshl_add_u32 v%d, s71, 10, v6', vDX + 1)
        a('v_lshl_add_u32 v%d, s75, 10, v%d', vDX + 2, vDX)
        a('v_lshl_add_u32 v%d, s75, 10, v%d', vDX + 3, vDX + 1)
    else:
        a('v_mul_u32_u24 v5, 1280, v1')
        a('v_lshl_add_u32 v%d, v4, 4, v5', vDX)
        a('v_xor_b32 v6, 64, v%d', vDX)
        a('v_add_u32 v%d, %d, v6', vDX + 1, 10240 - 1024)
        a('v_add_u32 v%d, %d, v%d', vDX + 2, 2 * (10240 - 1024), vDX)
        a('v_add_u32 v%d, %d, v6', vDX + 3, 3 * (10240 - 1024))
    a('v_and_b32 v7, 15, v%d', vLANE)
    a('v_lshlrev_b32 v8, 2, v3')
    a('v_xor_b32 v7, v7, v8')
    a('v_mul_u32_u24 v8, 3840, v3')
    a('v_lshl_add_u32 v%d, v7, 4, v8', vDW)
    if OPT['q16']:
        a('v_xor_b32 v7, 48, v%d', vDW)
    for i in range(1, 4):
        a('v_add_u32 v%d, %d, v%d', vDW + i, (15360 - 1024) * i, 7 if OPT['q16'] and i >= 2 else vDW)
    a('s_lshl2_add_u32 s72, s%d, s%d', sRB, sW)
    a('s_mul_i32 s72, s72, %d', 32 * 1280)
    a('s_mul_i32 s73, s%d, %d', sW, 16 * 3840)
    a('s_lshl_b32 s70, s%d, 8', sCG)
    a('s_add_u32 s73, s73, s70')
    a('s_lshl_b32 s74, s%d, 12', sW)
    if OPT['stag'] <= 4:
        stagger(82, 83, 0, 0, OPT['stag'])
    else:
        a('s_add_u32 s81, s%d, s%d', sI, sOG)
        a('s_add_u32 s85, s%d, 1', sXCD)
        a('s_lshr_b32 s85, s85, 1')
        a('s_mul_i32 s85, s85, %d', 2 if OPT['stag'] in (5, 8, 9, 10, 11, 12, 13) else 0)
        if OPT['stag'] >= 8:
            T = {8: ['0412385679', '1253049678', '2306145789', '3012745689'],
                 9: ['0142385679', '1253094678', '2306145789', '3017245689'],
                 10: ['0124358679', '1235049678', '2301645789', '3012745689'],
                 11: ['0412835679', '1523904678', '2360145789', '3071245689'],
                 12: ['0124358769', '1235049678', '2301645789', '3012754698'],
                 13: ['0142385769', '1253094678', '2306145789', '3017254698']}[OPT['stag']]
            for r in T:
                assert sorted(r) == list('0123456789')
            lo = [int(r[:8][::-1], 16) for r in T]
            hi = sum(int(r[8:][::-1], 16) << (8 * c) for c, r in enumerate(T))
            a('s_and_b32 s81, s81, 3')
            a('s_mov_b32 s86, 0x%x', lo[0])
            for c in range(1, 4):
                a('s_cmp_eq_u32 s81, %d', c)
                a('s_cselect_b32 s86, 0x%x, s86', lo[c])
            a('s_lshl_b32 s81, s81, 3')
            a('s_lshr_b32 s87, 0x%x, s81', hi)
    a('s_mov_b32 s%d, 0x%x', R0 + 2, 2048 * 1280)
    a('s_mov_b32 s%d, 0x20000', R0 + 3)
    a('s_mov_b32 s%d, 0x%x', R1 + 2, 640 * 3840)
    a('s_mov_b32 s%d, 0x20000', R1 + 3)
    st0 = s_stage(0, emit=False)
    k = next(i for i, o in enumerate(st0) if o.startswith('buffer_load'))
    for o in st0[:k]:
        a(o)
    a('s_cmp_eq_u32 s%d, 15', sCG)
    a('s_waitcnt lgkmcnt(0)')
    a('s_mov_b64 s[%d:%d], s[%d:%d]', R0, R0 + 1, sAX, sAX + 1)
    a('s_mov_b64 s[%d:%d], s[%d:%d]', R1, R1 + 1, sWQ, sWQ + 1)
    if DIAG:
        ws_setup()
    stamp('S', 'start')
    a('s_cbranch_scc1 L_skip0')
    for o in st0[k:]:
        a(o)
    a.label('L_skip0')
    if not DIAG:
        prologue2()
        ws_setup()
    if OPT['fine'] == 1:
        stamp('S', 'iss0')
    def params():
        a('s_mul_i32 s70, s%d, 40', sG)
        a('v_min_u32 v9, 39, v%d', vLANE)
        a('v_add_lshl_u32 v9, v9, s70, 1')
        a('global_load_ushort v10, v9, s[%d:%d]', sLDT, sLDT + 1)
        a('global_load_ushort v11, v9, s[%d:%d]', sLRE, sLRE + 1)
        a('global_load_ushort v12, v9, s[%d:%d]', sLIM, sLIM + 1)
    params()
    n0 = len(a.lines)
    b1_sources(R3, R4, vDBX, vDBB, 75, 77, 70, 3 if OPT['snodup'] else 2)
    a('v_and_b32 v5, 3, v%d', vLANE)
    a('v_lshlrev_b32 v5, 8, v5')
    a('v_lshl_add_u32 v5, v%d, 2, v5', vLANE)
    a('v_add_u32 v%d, %d, v5', vSPW, L_PW + 1024)
    s_addresses()
    if OPT['slate']:
        late = a.lines[n0:]
        del a.lines[n0:]
        k = 0
        nch = OPT['slate']
        for c in range(nch):
            e = len(late) * (c + 1) // nch
            while e < len(late) and ('cselect' in late[e] or 'cndmask' in late[e] or 'cndmask' in late[e + 1] or 'cndmask' in late[min(e + 2, len(late) - 1)]):
                e += 1
            SLATE.append(late[k:e])
            k = e
    s_stage(1)
    if OPT['fine'] == 1:
        stamp('S', 'iss1')
    a('s_waitcnt vmcnt(11) lgkmcnt(0)')
    stamp('S', 'st0')
    if OPT['qprio']:
        a('s_setprio 1')
    a('s_barrier')
    s_stage(2)
    slate()
    a('s_waitcnt vmcnt(8)')
    a('s_barrier')
    s_stage(3)
    s_stage(4)

SLATE = []

def slate():
    if SLATE:
        a.lines.extend(SLATE.pop(0))

def s_addresses():
    c, g, t0, t1, t2 = 40, 41, 42, 43, 44
    a('v_and_b32 v%d, 15, v%d', c, vLANE)
    a('v_lshrrev_b32 v%d, 4, v%d', g, vLANE)
    a('v_lshrrev_b32 v%d, 1, v%d', t0, c)
    a('v_xor_b32 v%d, v%d, v%d', t0, t0, g)
    a('v_lshlrev_b32 v%d, 4, v%d', t0, t0)
    a('v_lshl_add_u32 v%d, v%d, 7, v%d', t0, c, t0)
    a('v_xor_b32 v%d, 64, v%d', t1, t0)
    a('v_add_u32 v%d, s74, v%d', vXR, t0)
    a('v_add_u32 v%d, s74, v%d', vXR + 1, t1)
    a('s_mul_i32 s70, s%d, %d', sW, REGSZ)
    a('s_add_u32 s70, s70, %d', L_REG)
    a('v_add_u32 v%d, s70, v%d', vCR, t0)
    a('v_add_u32 v%d, s70, v%d', vCR + 1, t1)
    a('v_lshrrev_b32 v%d, 3, v%d', t2, c)
    a('v_lshl_add_u32 v%d, v%d, 12, v%d', t0, t2, t0)
    a('v_add_u32 v%d, 16384, v%d', vBR, t0)
    a('v_xor_b32 v%d, 64, v%d', vBR + 1, vBR)
    for k in range(2):
        a('v_add_u32 v%d, 0x10000, v%d', vXR + 2 + k, vXR + k)
        a('v_add_u32 v%d, 0x10000, v%d', vBR + 2 + k, vBR + k)
    a('v_and_b32 v%d, 7, v%d', t0, vLANE)
    a('v_lshlrev_b32 v%d, 2, v%d', t2, t2)
    a('v_lshl_add_u32 v%d, v%d, 3, v%d', t0, t0, t2)
    a('v_add_u32 v%d, %d, v%d', vHH, L_H, t0)
    a('v_mul_u32_u24 v%d, 320, v%d', t1, g)
    a('s_mul_i32 s71, s%d, 1280', sW)
    a('s_add_u32 s71, s71, %d', L_EL)
    a('v_add3_u32 v%d, v%d, v%d, s71', vE, t0, t1)
    a('v_lshlrev_b32 v%d, 3, v%d', vCH, vLANE)
    a('v_add_u32 v%d, %d, v%d', vCHL, L_H, vCH)
    a('v_lshlrev_b32 v%d, 9, v%d', vHINT, vLANE)
    a('v_lshlrev_b32 v%d, 2, v%d', vA0PW, vLANE)
    a('v_add_u32 v%d, %d, v%d', vA0PW, L_PW, vA0PW)
    a('v_and_b32 v%d, 0x%x, v%d', vP01, 0xffffffff ^ 512, vSPW)
    a('v_bfe_u32 v%d, v%d, 1, 2', t0, vLANE)
    a('v_xor_b32 v%d, v%d, v%d', t0, t0, g)
    a('v_lshlrev_b32 v%d, 4, v%d', t0, t0)
    a('s_mul_i32 s71, s%d, 5120', sW)
    a('s_add_u32 s71, s71, %d', L_HT)
    a('v_lshl_add_u32 v%d, v%d, 6, v%d', t0, c, t0)
    a('v_add_u32 v%d, s71, v%d', vHW, t0)
    a('v_bfe_u32 v%d, v%d, 2, 2', t0, vLANE)
    a('v_lshrrev_b32 v%d, 5, v%d', t1, vLANE)
    a('v_lshl_add_u32 v%d, v%d, 3, v%d', vHR0, t1, t0)
    a('v_lshlrev_b32 v%d, 6, v%d', vHR0, vHR0)
    a('v_mul_u32_u24 v%d, %d, v%d', vHS, 80 * 256, t1)
    a('v_lshrrev_b32 v%d, 1, v%d', t0, t0)
    a('v_bfe_u32 v%d, v%d, 4, 1', t1, vLANE)
    a('v_bfe_u32 v%d, v%d, 1, 1', t2, vLANE)
    a('v_lshl_add_u32 v%d, v%d, 1, v%d', t2, t1, t2)
    a('v_xor_b32 v%d, v%d, v%d', t2, t2, t0)
    a('v_lshl_add_u32 v%d, v%d, 4, v%d', vHR0, t2, vHR0)
    a('v_and_b32 v%d, 1, v%d', t2, vLANE)
    a('v_lshl_add_u32 v%d, v%d, 3, v%d', vHR0, t2, vHR0)
    a('v_xor_b32 v%d, 32, v%d', vHR1, vHR0)
    a('v_add_u32 v%d, s71, v%d', vHR0, vHR0)
    a('v_add_u32 v%d, s71, v%d', vHR1, vHR1)
    a('v_mul_u32_u24 v%d, %d, v%d', t1, HBLK, t1)
    a('v_lshl_add_u32 v%d, v%d, 4, v%d', t1, c, t1)
    a('v_add_u32 v%d, v%d, v%d', vHS, vHS, t1)
    if OPT['otag'] and not OPT['amark']:
        a('v_bfe_u32 v%d, v%d, 4, 1', t0, vLANE)
        a('v_mul_u32_u24 v%d, %d, v%d', t0, OBLK, t0)
        a('v_lshl_add_u32 v%d, v%d, 4, v%d', t0, c, t0)
        a('v_lshrrev_b32 v%d, 5, v%d', t1, vLANE)
        a('v_mul_u32_u24 v%d, %d, v%d', t2, 2 * OBLK, t1)
        a('v_add_u32 v%d, v%d, v%d', vOS + 1, t2, t0)
        a('v_lshl_add_u32 v%d, v%d, 8, v%d', vOS, t1, t0)
        for k in range(4):
            a('v_mov_b32 v%d, -1', vOS + 2 + k)
    if OPT['q16']:
        a('v_mul_u32_u24 v%d, 1280, v1', t0)
        a('v_lshl_add_u32 v%d, v4, 4, v%d', vCA, t0)
        a('v_xor_b32 v%d, 64, v%d', t0, vCA)
        a('v_add_u32 v%d, %d, v%d', vCA + 1, 10240 - 1024, t0)
    else:
        a('v_mov_b32 v%d, v%d', vCA, vDX)
        a('v_mov_b32 v%d, v%d', vCA + 1, vDX + 1)
    a('v_lshlrev_b32 v%d, 4, v%d', vHA, vLANE)
    a('v_lshlrev_b32 v%d, 7, v%d', vF3, vLANE)
    a('v_min_u32 v%d, %d, v%d', vHT, 39 * 128, vF3)
    a('s_xor_b32 s92, s%d, 1', sW)
    a('s_mul_i32 s92, s92, %d', REGSZ)
    a('s_add_u32 s92, s92, %d', L_REG)
    a('s_xor_b32 s93, s%d, 3', sW)
    a('s_mul_i32 s93, s93, %d', REGSZ)
    a('s_add_u32 s93, s93, %d', L_REG + 16 * 336)
    if not OPT['wopack']:
        s_wooffs()

def s_params():
    a('s_cmp_eq_u32 s%d, 0', sW)
    a('s_cbranch_scc0 L_nopar')
    for r in (10, 11, 12):
        a('v_lshlrev_b32 v%d, 16, v%d', r, r)
    exp_acc(13, 10, 14, 15)
    a('v_cvt_pk_bf16_f32 v13, v13, v13')
    a('v_and_b32 v13, 0xffff0000, v13')
    a('v_mul_f32 v14, v13, v11')
    a('v_mul_f32 v15, v13, v12')
    exp_acc(16, 14, 17, 18)
    I2P = 1.0 / (2 * math.pi)
    hi = struct.unpack('<f', struct.pack('<f', I2P))[0]
    a('s_mov_b32 s80, 0x%x', f2u(hi))
    a('v_mul_f32 v17, s80, v15')
    a('v_rndne_f32 v17, v17')
    a('v_fma_f32 v17, v15, s80, -v17')
    a('v_fmac_f32 v17, 0x%x, v15', f2u(I2P - hi))
    a('v_cos_f32 v20, v17')
    a('v_sin_f32 v21, v17')
    a('v_mul_f32 v18, v11, v11')
    a('v_fmac_f32 v18, v12, v12')
    a('v_rcp_f32 v19, v18')
    a('v_mul_f32 v20, v16, v20')
    a('v_mul_f32 v21, v16, v21')
    a('v_fma_f32 v18, -v18, v19, 1.0')
    a('v_fmac_f32 v19, v19, v18')
    a('v_add_f32 v19, v19, v19')
    a('v_add_f32 v17, -1.0, v20')
    a('v_mul_f32 v22, v17, v11')
    a('v_fmac_f32 v22, v21, v12')
    a('v_mul_f32 v23, v17, v12')
    a('v_fma_f32 v23, -v21, v11, v23')
    a('v_mul_f32 v22, v22, v19')
    a('v_mul_f32 v23, v23, v19')
    a('v_lshlrev_b32 v9, 4, v%d', vLANE)
    a('v_add_u32 v9, %d, v9', L_PAR)
    a('ds_write_b128 v9, v[20:23]')
    a('v_mov_b32 v24, v20')
    a('v_sub_f32 v25, 0, v21')
    for k in range(3):
        a('v_mul_f32 v26, v25, v25')
        a('v_add_f32 v27, v24, v24')
        a('v_fma_f32 v24, v24, v24, -v26')
        a('v_mul_f32 v25, v27, v25')
    a.label('L_nopar')

def s_params2():
    a('s_cmp_eq_u32 s%d, 0', sW)
    a('s_cbranch_scc0 L_nopar2')
    a('s_mov_b32 exec_hi, 0xff')
    a('v_mov_b32 v14, 1.0')
    a('v_mov_b32 v15, 0')
    a('ds_write_b64 v%d, v[14:15] offset:%d', vCHL, L_Z - L_H)
    a('ds_write_b64 v%d, v[24:25] offset:%d', vCHL, L_Z - L_H + 320)
    src = 24
    for sg in range(2, 17):
        dst = 16 + 2 * (sg % 3)
        a('v_mul_f32 v%d, v24, v%d', dst, src)
        a('v_mul_f32 v%d, v24, v%d', dst + 1, src + 1)
        a('v_fma_f32 v%d, -v25, v%d, v%d', dst, src + 1, dst)
        a('v_fmac_f32 v%d, v25, v%d', dst + 1, src)
        a('ds_write_b64 v%d, %s offset:%d', vCHL, v(dst, 2), L_Z - L_H + 320 * sg)
        src = dst
    a('s_mov_b32 exec_hi, -1')
    a('s_waitcnt lgkmcnt(0)')
    a.label('L_nopar2')

def s_wooffs():
    for i in range(5):
        a('v_add_u32 v40, %d, v%d', 64 * i, vLANE)
        a('v_mul_u32_u24 v41, 6554, v40')
        a('v_lshrrev_b32 v41, 16, v41')
        a('v_mul_u32_u24 v42, 10, v41')
        a('v_sub_u32 v40, v40, v42')
        tau(42, 41, 43)
        a('v_mul_u32_u24 v42, 1280, v42')
        a('v_lshl_add_u32 v%d, v40, 4, v42', vWOA + i)
        if 0 < i < 4:
            a('v_subrev_u32 v%d, %d, v%d', vWOA + i, 1024 * i, vWOA + i)

def s_qloader():
    early = {1: {7: 10}, 2: {7: 10, 9: 11}, 3: {7: 10, 8: 11, 9: 12}, 4: {7: 10, 8: 11, 9: 12}, 0: {}}[OPT['st10']]
    q = [2] * 8 + [3] * 8 + [4] * 8
    for st in range(2, 10):
        a('s_waitcnt vmcnt(%d)', len(q) - 1 - max(i for i, x in enumerate(q) if x == st))
        if OPT['fine'] == 1 and st in (2, 4, 6, 7, 8, 9):
            stamp('S', 'st%d' % st)
        a('s_barrier')
        if st == 6:
            a('v_and_b32 v32, 15, v%d', vLANE)
            a('v_lshlrev_b32 v32, 4, v32')
            a('v_mov_b32 v33, 1')
            a('s_cmp_eq_u32 s%d, 3', sW)
            a('s_cbranch_scc0 L_nodbg')
            a(dbgload(32, 33))
            a.label('L_nodbg')
            a('s_cmp_eq_u32 s%d, 15', sCG)
            a('s_cbranch_scc0 L_cw')
            a('s_waitcnt vmcnt(0)')
            a.label('L_cw')
        if st <= 6:
            s_stage(st + 3)
            q += [st + 3] * 8
            slate()
        if st == OPT['pretouch']:
            a('s_cmp_eq_u32 s%d, 2', sW)
            a('s_cselect_b32 s70, s%d, s%d', sBRE, sBIM)
            a('s_cselect_b32 s71, s%d, s%d', sBRE + 1, sBIM + 1)
            a('s_mul_i32 s83, s2, 3200')
            a('s_lshl1_add_u32 s84, s2, s%d', sW)
            a('s_mul_i32 s84, s84, 5120')
            a('s_cmp_lt_u32 s%d, 2', sW)
            a('s_cselect_b32 s70, s%d, s70', sBX)
            a('s_cselect_b32 s71, s%d, s71', sBX + 1)
            a('s_cselect_b32 s83, s84, s83')
            a('s_cselect_b32 s84, 39, 24')
            a('v_min_u32 v30, s84, v%d', vLANE)
            a('v_lshl_add_u32 v30, v30, 7, s83')
            a('global_load_dword v31, v30, s[70:71]')
            q.append('t')
        if st == 7:
            stagger(82, 83, 0, OPT['flip'], OPT['stagb'])
        if st in early:
            s_stage(early[st])
            q += [early[st]] * (7 - OPT['snodup'])
        if st == 7 and not OPT['plate']:
            s_params()
        if st == 8 and not OPT['plate']:
            s_params2()

    a('v_cmp_eq_u32 vcc, 0, v33')
    a('s_cbranch_vccz L_clrok')
    pollflags([dbgload(32, 33)], 33, sleep=8)
    a.label('L_clrok')
    a('s_barrier')
    stamp('S', 'qend')
    if OPT['qprio'] == 1:
        a('s_setprio 0')
    if OPT['st10'] == 4:
        s_stage(13)
    if OPT['plate']:
        s_params()
        s_params2()
    else:
        s_consts()

def s_consts():
    a('v_and_b32 v104, 7, v%d', vLANE)
    a('v_lshlrev_b32 v104, 4, v104')
    a('v_add_u32 v104, %d, v104', L_PAR)
    for j in range(5):
        a('ds_read_b128 %s, v104 offset:%d', v(vPAR + 4 * j, 4), 128 * j)
    a('v_and_b32 v105, -8, v%d', vE)
    a('v_add_u32 v105, %d, v105', L_Z - L_EL)
    for j in range(5):
        a('ds_read_b64 %s, v105 offset:%d', v(vZ + 2 * j, 2), 64 * j)
    a('s_cmp_eq_u32 s%d, 0', sW)
    a('s_cselect_b32 s70, 1, 16')
    a('s_mul_i32 s70, s70, 320')
    a('v_add_u32 v106, s70, v%d', vCHL)
    a('ds_read_b64 %s, v106 offset:%d', v(vL, 2), L_Z - L_H)
    a('v_bfe_u32 v145, v%d, 3, 1', vLANE)
    a('v_lshlrev_b32 v145, 31, v145')
    a('v_xor_b32 v144, 0x80000000, v145')
    a('s_waitcnt lgkmcnt(0)')
    for j in range(5):
        a('v_xor_b32 v%d, v145, v%d', vPAR + 4 * j + 1, vPAR + 4 * j + 1)
        a('v_xor_b32 v%d, v145, v%d', vPAR + 4 * j + 2, vPAR + 4 * j + 2)
        a('v_xor_b32 v%d, v144, v%d', vZ + 2 * j + 1, vZ + 2 * j + 1)

def touch(r, va=None):
    o = ['s_add_u32 s84, s%d, %d' % (sXCD, r),
         's_cmp_ge_u32 s84, 6', 's_cselect_b32 s85, 6, 0', 's_sub_u32 s84, s84, s85',
         's_cmp_ge_u32 s84, 6', 's_cselect_b32 s85, 6, 0', 's_sub_u32 s84, s84, s85',
         's_cmp_ge_u32 s84, 2',
         's_cselect_b32 s86, s%d, s%d' % (sCRE, sWO), 's_cselect_b32 s87, s%d, s%d' % (sCRE + 1, sWO + 1),
         's_cmp_ge_u32 s84, 4',
         's_cselect_b32 s86, s%d, s86' % sCIM, 's_cselect_b32 s87, s%d, s87' % (sCIM + 1),
         's_and_b32 s84, s84, 1', 's_mul_i32 s84, s84, 3200',
         's_add_u32 s86, s86, s84', 's_addc_u32 s87, s87, 0',
         'global_load_dword v109, v%d, s[86:87]' % (va or vTCH)]
    return o

def s_b1():
    F = [40, 68]
    def reads(t, ks, f):
        slot = (t + 1) % 4
        hi, lo = slot >> 1, (slot & 1) * 32768
        r = ['ds_read_b128 %s, v%d offset:%d' % (v(f + 4 * T, 4), vXR + 2 * hi + ks, lo + 2048 * T) for T in range(2)]
        r += ['ds_read_b128 %s, v%d offset:%d' % (v(f + 8 + 4 * j, 4), vBR + 2 * hi + ks, lo + 1024 * j) for j in range(5)]
        return r
    def mfmas(f, first):
        return ['v_mfma_f32_16x16x32_bf16 %s, %s, %s, %s' % (v(8 * j + 4 * T, 4), v(f + 4 * T, 4), v(f + 8 + 4 * j, 4),
                '0' if first else v(8 * j + 4 * T, 4)) for j in range(5) for T in ((1, 0) if j & 1 and OPT['bsnake'] else (0, 1))]
    def weave(ms, others):
        n = len(ms)
        k = 0
        for i_, m in enumerate(ms):
            a(m)
            while k < len(others) * (i_ + 1) // n:
                a(others[k])
                k += 1
    first = 10 + OPT['st10']
    a('s_lshl4_add_u32 s84, s%d, s%d', sCG, sRB)
    flagaddr(84, 84, F1, 85)
    a('s_waitcnt vmcnt(%d)', max(0, (7 - OPT['snodup']) * (first - 11)))
    a('s_barrier')
    for r in reads(10, 0, F[0]):
        a(r)
    for u in range(10):
        t = 10 + u
        if OPT['fine'] == 1 and u in (0, 2, 3, 4, 8):
            stamp('S', 'b1w%d' % u)
        a('s_waitcnt lgkmcnt(0)')
        m0_ = mfmas(F[0], u == 0)
        weave(m0_[:4], reads(t, 1, F[1]))
        for m in m0_[4:]:
            a(m)
        m1_ = mfmas(F[1], False)
        if u < 9:
            if t + 1 < first:
                a('s_waitcnt vmcnt(%d) lgkmcnt(0)', (7 - OPT['snodup']) * (first - t - 2))
            else:
                if t + 1 == first and OPT['plate']:
                    s_consts()
                a('s_waitcnt lgkmcnt(0)')
            a('s_barrier')
            if t + 1 == first:
                a('s_cmp_eq_u32 s%d, 3', sW)
                a('s_cbranch_scc0 L_noflag')
                setflag(84, 104)
                a.label('L_noflag')
            weave(m1_[:4], reads(t + 1, 0, F[0]))
            for m in m1_[4:]:
                a(m)
        else:
            a('s_waitcnt lgkmcnt(0)')
            for m in m1_:
                a(m)
    stamp('S', 'b1gemm')

def rot5(dst, t):
    a('s_and_b32 s%d, s%d, 3', dst, sI)
    a('s_add_u32 s%d, s%d, s%d', dst, dst, sXCD)
    for _ in range(2):
        a('s_cmp_ge_u32 s%d, 5', dst)
        a('s_cselect_b32 s%d, 5, 0', t)
        a('s_sub_u32 s%d, s%d, s%d', dst, dst, t)
    if not OPT['rot5']:
        a('s_mov_b32 s%d, 0', dst)

def s_wo():
    if OPT['wopack']:
        a('s_mov_b32 s73, 0x%x', F1 + 15 * 16 * 128)
        a('s_mov_b64 exec, 0xffff')
        pollflags(['buffer_load_dword v40, v%d, s[%d:%d], s73 offen sc1' % (vF3, RWS, RWS + 3)], 40, sleep=4)
        rot5(83, 73)
        a('s_mul_i32 s75, s%d, 102400', sOG)
        a('s_add_u32 s75, s75, 0x%x', WS_WP)
        a('s_mov_b32 s77, 5')
        a.label('L_woloop')
        a('s_lshl2_add_u32 s78, s83, s%d', sW)
        a('s_mul_i32 s78, s78, 5120')
        a('s_add_u32 s79, s78, s75')
        a('s_mov_b32 m0, s78')
        for i in range(5):
            if i == 4:
                a('s_add_u32 m0, s78, 4096')
                a('s_add_u32 s79, s79, 4096')
            a('s_waitcnt vmcnt(%d)', OPT['thrw'])
            a(dma(vHA, RWS, 79, 1024 * (i & 3)).replace(' lds', ' sc1 lds'))
    else:
        srd(R0, sWO, 640 * 1280)
        rot5(83, 73)
        a('s_mul_i32 s75, s%d, 160', sOG)
        a('s_mov_b32 s77, 5')
        a.label('L_woloop')
        a('s_lshl2_add_u32 s78, s83, s%d', sW)
        a('s_mul_i32 s79, s78, 40960')
        a('s_add_u32 s79, s79, s75')
        a('s_mul_i32 s78, s78, 5120')
        a('s_mov_b32 m0, s78')
        a('s_add_u32 s73, s78, 4096')
        for i in range(5):
            if i == 4:
                a('s_mov_b32 m0, s73')
            a('s_waitcnt vmcnt(%d)', OPT['thrw'])
            a(dma(vWOA + i, R0, 79, 1024 * (i & 3)))
    a('s_add_u32 s83, s83, 1')
    a('s_cmp_eq_u32 s83, 5')
    a('s_cselect_b32 s83, 0, s83')
    a('s_sub_u32 s77, s77, 1')
    a('s_cmp_lg_u32 s77, 0')
    a('s_cbranch_scc1 L_woloop')
    for kp in range(5):
        a('s_lshl_b32 s73, s83, 7')
        a('s_add_u32 s%d, s72, s73', 4 + kp)
        a('s_lshl_b32 s%d, s83, 11', 12 + kp)
        a('s_add_u32 s83, s83, 1')
        a('s_cmp_eq_u32 s83, 5')
        a('s_cselect_b32 s83, 0, s83')

def s_mark(both):
    a('s_and_b32 s78, s%d, 1', sW)
    a('s_lshl1_add_u32 s78, s%d, s78', sQB)
    a('s_lshr_b32 s79, s%d, 1', sW)
    a('s_lshl1_add_u32 s78, s78, s79')
    a('s_mul_i32 s78, s78, %d', 4 * OBLK)
    a('s_lshr_b32 s79, s%d, 1', sHD)
    a('s_mul_i32 s79, s79, 1280')
    a('s_add_u32 s78, s78, s79')
    a('s_add_u32 s78, s78, 0x%x', WS_O)
    a('s_and_b32 s79, s%d, 1', sHD)
    a('s_mul_i32 s73, s79, 768')
    a('s_add_u32 s73, s73, s78')
    a('s_add_u32 s75, s73, %d', 2 * OBLK)
    a('s_lshl3_add_u32 s78, s79, s78')
    for k in range(2 if both else 1):
        if k:
            for r in (73, 75, 78):
                a('s_sub_u32 s%d, s%d, %d', r, r, 4 * OBLK)
        a('buffer_store_dwordx4 %s, v%d, s[%d:%d], s73 offen sc1', v(vOS + 2, 4), vOS, RWS, RWS + 3)
        a('buffer_store_dwordx4 %s, v%d, s[%d:%d], s75 offen sc1', v(vOS + 2, 4), vOS, RWS, RWS + 3)
        a('buffer_store_dwordx2 %s, v%d, s[%d:%d], s78 offen offset:512 sc1', v(vOS + 2, 2), vOS + 1, RWS, RWS + 3)

def s_scan():
    ROR = 'row_ror:8 row_mask:0xf bank_mask:0xf'
    a('s_setprio 1')
    a('s_lshl_b32 s70, s%d, 13', sG)
    a('s_add_u32 s70, s70, 0x%x', WS_E)
    a('s_add_u32 s70, s70, s%d', sWS)
    a('s_addc_u32 s71, s%d, 0', sWS + 1)
    srd(R5, 70, 8192)
    a('s_sub_u32 s70, 15, s%d', sRB)
    a('s_lshl_b32 s70, s70, 9')
    a('s_add_u32 s71, s70, 4096')
    tmp = 40
    for j in range(5):
        for k in range(8):
            a('v_mul_f32_dpp v%d, v%d, v%d %s', tmp + k, 8 * j + k, vPAR + 4 * j + 3, ROR)
        for k in range(8):
            a('v_fma_f32 v%d, v%d, v%d, v%d', 8 * j + k, vPAR + 4 * j + 2, 8 * j + k, tmp + k)
    e = [[8 * j for j in range(5)], [50 + j for j in range(5)], [56 + j for j in range(5)]]
    cur = e[0]
    for k in range(1, 8):
        nx = e[1 + (k & 1)]
        for j in range(5):
            a('v_fma_f32 v%d, v%d, v%d, v%d', nx[j], vPAR + 4 * j, cur[j], 8 * j + k)
        for j in range(5):
            a('v_fmac_f32_dpp v%d, v%d, v%d %s', nx[j], cur[j], vPAR + 4 * j + 1, ROR)
        cur = nx
    for j in range(5):
        a('ds_write_b32 v%d, v%d offset:%d', vE, cur[j], 64 * j)
    setpw(11, 104)
    for r in range(10 - OPT['tstart'], 0 if OPT['tlate'] else 6):
        a('s_waitcnt vmcnt(0)')
        for o in touch(r):
            a(o)
    stamp('S', 'pass1')
    def chain(dst, src, add):
        a('v_fma_f32 v%d, v%d, v%d, v%d', dst, vL, src, add)
        a('v_fma_f32 v%d, v%d, v%d, v%d', dst + 1, vL, src + 1, add + 1)
        a('v_fma_f32 v%d, -v%d, v%d, v%d', dst, vL + 1, src + 1, dst)
        a('v_fmac_f32 v%d, v%d, v%d', dst + 1, vL + 1, src)
    ES = 110
    a('s_cmp_eq_u32 s%d, 1', sW)
    a('s_cbranch_scc1 L_wave1')
    a('s_cmp_eq_u32 s%d, 0', sW)
    a('s_cbranch_scc0 L_wave23')
    waitpw(vSPW, 11, 105, sleep=1)
    a('s_mov_b32 exec_hi, 0xff')
    for sg in range(16):
        a('ds_read_b64 %s, v%d offset:%d', v(ES + 2 * sg, 2), vCHL, L_EL - L_H + 320 * sg)
    a('v_mov_b32 v142, 0')
    a('v_mov_b32 v143, 0')
    a('s_waitcnt lgkmcnt(0)')
    a('ds_write_b64 v%d, v[142:143] offset:%d', vCHL, L_PL - L_H)
    for sg in range(1, 16):
        a('ds_write_b64 v%d, %s offset:%d', vCHL, v(ES + 2 * sg - 2, 2), L_PL - L_H + 320 * sg)
        chain(ES + 2 * sg, ES + 2 * sg - 2, ES + 2 * sg)
    a('v_min_u32 v%d, -2, v%d', ES + 30, ES + 30)
    a('v_min_u32 v%d, -2, v%d', ES + 31, ES + 31)
    a('buffer_store_dwordx2 %s, v%d, s[%d:%d], s70 offen sc1', v(ES + 30, 2), vCH, R5, R5 + 3)
    a('s_mov_b32 exec_hi, -1')
    setpw(12, 104)
    a('s_branch L_coldone')
    a.label('L_wave1')
    a.label('L_hint')
    a('buffer_load_dword v105, v%d, s[%d:%d], s70 offen offset:512 sc1', vHINT, R5, R5 + 3)
    a('s_waitcnt vmcnt(0)')
    a('v_cmp_eq_u32 vcc, -1, v105')
    a('s_cbranch_vccz L_hintok')
    a('s_mov_b64 exec, vcc')
    a('s_sleep 3')
    a.label('L_hint2')
    a('s_sub_u32 s%d, s%d, 1', sSPIN, sSPIN)
    a('s_cbranch_scc0 L_hint')
    a('s_endpgm')
    a.label('L_hintok')
    a('s_mov_b32 exec_lo, -1')
    a('s_mov_b32 exec_hi, 0xff')
    for k in range(15, 0, -1):
        a('buffer_load_dwordx2 %s, v%d, s[%d:%d], s%d offen offset:%d sc1', v(ES + 2 * (15 - k), 2), vCH, R5, R5 + 3,
          71 if k >= 8 else 70, 512 * (k & 7))
    a('s_waitcnt vmcnt(0)')
    a('v_max_u32 v105, v%d, v%d', ES, ES + 1)
    for n in range(1, 15):
        a('v_max3_u32 v105, v105, v%d, v%d', ES + 2 * n, ES + 2 * n + 1)
    a('v_cmp_eq_u32 vcc, -1, v105')
    a('s_cbranch_vccnz L_hint2')
    for n in range(1, 15):
        chain(ES + 2 * n, ES + 2 * n - 2, ES + 2 * n)
    a('ds_write_b64 v%d, %s', vCHL, v(ES + 28, 2))
    a('s_mov_b32 exec_hi, -1')
    setpw(12, 104)
    a('s_branch L_coldone')
    a.label('L_wave23')
    if OPT['otag'] and not OPT['amark'] and OPT['smark']:
        if OPT['smark'] == 1:
            waitpw(vA0PW, 5, 105, sleep=2)
        s_mark(True)
    if OPT['woe']:
        E = OPT['woe']
        srd(R0, sWO, 640 * 1280)
        a('s_mul_i32 s75, s%d, 160', sOG)
        a('s_and_b32 s83, s%d, 3', sI)
        a('s_add_u32 s83, s83, s%d', sXCD)
        waitpw(vA0PW, 5, 105, sleep=2)
        for it in range(E):
            a('s_add_u32 s78, s83, %d', it)
            a('s_and_b32 s78, s78, %d', E - 1)
            a('s_lshl1_add_u32 s78, s78, s%d', sW)
            a('s_sub_u32 s78, s78, 2')
            a('s_mul_i32 s79, s78, 40960')
            a('s_add_u32 s79, s79, s75')
            a('s_mul_i32 s78, s78, 5120')
            a('s_mov_b32 m0, s78')
            for i in range(5):
                if i == 4:
                    a('s_add_u32 m0, s78, 4096')
                a('s_waitcnt vmcnt(%d)', OPT['thre'])
                a(dma(vWOA + i, R0, 79, 1024 * (i & 3)))
    if OPT['gtouch'] in (1, 2):
        a('s_cmp_eq_u32 s%d, 2', sW)
        a('s_cbranch_scc0 L_coldone')
        a('v_min_u32 v106, %d, v%d', 24 * 128, vF3)
        a('s_mul_i32 s78, s2, 3200')
        a('v_add_u32 v106, s78, v106')
        if OPT['gtouch'] == 1:
            waitpw(vA0PW, 5, 105, sleep=2)
        for p in (sCRE, sCIM, sWO):
            a('global_load_dword v109, v106, s[%d:%d]', p, p + 1)
    if OPT['tearly']:
        waitpw(vA0PW, 5, 105, sleep=2)
    for r in range(OPT['tearly']):
        for o in touch(r, vCT):
            a(o)
        if r + 1 < OPT['tearly']:
            a('s_waitcnt vmcnt(0)')
    a.label('L_coldone')
    a('s_lshl2_add_u32 s70, s%d, s%d', sRB, sW)
    a('s_mul_i32 s71, s70, %d', 2 * HBLK)
    a('s_mul_i32 s78, s%d, 1280', sG)
    a('s_add_u32 s71, s71, s78')
    a('s_add_u32 s71, s71, 0x%x', WS_H)
    a('s_lshl4_add_u32 s70, s70, s%d', sG)
    flagaddr(70, 70, F3, 78)
    waitpw(vP01, 12, 105, sleep=4)
    stamp('S', 'carry')
    if OPT['gtouch'] == 3:
        a('s_cmp_eq_u32 s%d, 1', sW)
        a('s_cselect_b32 s78, s%d, s%d', sCRE, sCIM)
        a('s_cselect_b32 s79, s%d, s%d', sCRE + 1, sCIM + 1)
        a('s_cmp_eq_u32 s%d, 2', sW)
        a('s_cselect_b32 s78, s%d, s78', sWO)
        a('s_cselect_b32 s79, s%d, s79', sWO + 1)
        a('s_mul_i32 s80, s2, 3200')
        a('s_add_u32 s78, s78, s80')
        a('s_addc_u32 s79, s79, 0')
        a('s_cmp_eq_u32 s%d, 0', sW)
        a('s_cbranch_scc1 L_notouch')
        a('s_mov_b64 exec, 0x1ffffff')
        a('global_load_dword v109, v%d, s[78:79]', vF3)
        a('s_mov_b64 exec, -1')
        a.label('L_notouch')
    for j in range(5):
        a('ds_read_b32 v%d, v%d offset:%d', 50 + j, vE, L_PL - L_EL + 64 * j)
        a('ds_read_b32 v%d, v%d offset:%d', 56 + j, vHH, 64 * j)
    a('s_waitcnt lgkmcnt(0)')
    for j in range(5):
        a('v_fmac_f32 v%d, v%d, v%d', 50 + j, vZ + 2 * j, 56 + j)
    for j in range(5):
        a('v_fmac_f32_dpp v%d, v%d, v%d %s', 50 + j, 56 + j, vZ + 2 * j + 1, ROR)
    for k in range(8):
        pr = [50 + j if k == 0 else 8 * j + k - 1 for j in range(5)]
        for j in range(5):
            a('v_fmac_f32 v%d, v%d, v%d', 8 * j + k, vPAR + 4 * j, pr[j])
        for j in range(5):
            a('v_fmac_f32_dpp v%d, v%d, v%d %s', 8 * j + k, pr[j], vPAR + 4 * j + 1, ROR)
    for j in range(5):
        for q in range(4):
            a('v_cvt_pk_bf16_f32 v%d, v%d, v%d', 64 + 4 * j + q, 8 * j + 2 * q, 8 * j + 2 * q + 1)
        a('ds_write_b128 v%d, %s offset:%d', vHW, v(64 + 4 * j, 4), 1024 * j)
        a('ds_read_b64_tr_b16 %s, v%d offset:%d', v(110 + 4 * j, 2), vHR0, 1024 * j)
        a('ds_read_b64_tr_b16 %s, v%d offset:%d', v(110 + 4 * j + 2, 2), vHR1, 1024 * j + 256)
    HS = OPT['hsplit']
    for j in range(5):
        if HS and j == HS:
            a('s_waitcnt lgkmcnt(0)')
            setpw(13, 104)
        if HS and j >= HS:
            a('s_waitcnt vmcnt(%d)', HS - 1)
        else:
            a('s_waitcnt lgkmcnt(%d)', 12 - 3 * j)
        a('buffer_store_dwordx4 %s, v%d, s[%d:%d], s71 offen offset:%d sc1', v(110 + 4 * j, 4), vHS, RWS, RWS + 3, 256 * j)
    if not HS:
        setpw(13, 104)

def s_b3():
    NS = 4
    acc, HF, CF = 0, 80, [208, 216]
    a('s_cmp_ge_u32 s%d, 2', sW)
    a('s_cselect_b32 s78, s%d, s%d', sCIM, sCRE)
    a('s_cselect_b32 s79, s%d, s%d', sCIM + 1, sCRE + 1)
    srd(R1, 78, 640 * 1280)
    srd(R6, sOUT, 2048 * 1280 * 4)
    a('s_mul_i32 s74, s%d, %d', sW, REGSZ)
    a('s_add_u32 s74, s74, %d', L_REG)
    a('s_and_b32 s78, s%d, 1', sW)
    a('s_mul_i32 s72, s%d, %d', sOG, 80 * 1280)
    a('s_mul_i32 s73, s78, 640')
    a('s_add_u32 s72, s72, s73')
    a('s_mul_i32 s79, s%d, %d', sW, 40 * 256)
    a('s_add_u32 s79, s79, 0x%x', WS_H)
    a('s_lshr_b32 s80, s%d, 1', sW)
    a('s_lshl1_add_u32 s78, s78, s80')
    for l in range(4):
        a('s_xor_b32 s80, s78, %d', l)
        a('s_lshl2_add_u32 s80, s%d, s80', sTB)
        a('s_mul_i32 s80, s80, %d', HBLK)
        a('s_add_u32 s%d, s80, s79', 84 + l)
    a('s_lshl_b32 s88, s%d, 12', sTB)
    a('s_add_u32 s88, s88, 0x%x', F3)
    a('s_lshl2_add_u32 s78, s%d, s78', sTB)
    a('s_mul_i32 s80, s78, %d', 16 * 1280)
    a('s_mul_i32 s81, s%d, 160', sOG)
    a('s_add_u32 s80, s80, s81')
    a('s_mul_i32 s82, s78, %d', 16 * 5120)
    a('s_lshl1_add_u32 s82, s81, s82')
    a('s_add_u32 s82, s82, 2560')
    a('s_add_u32 s90, s%d, s81', sDSK)
    a('s_addc_u32 s91, s%d, 0', sDSK + 1)
    a('s_lshl2_add_u32 s89, s%d, s%d', sOG, sW)
    a('s_mul_i32 s89, s89, 5120')
    a('s_mul_i32 s79, s%d, %d', sTB, 4 * HBLK)
    a('s_add_u32 s89, s89, s79')
    a('s_add_u32 s89, s89, 0x%x', WS_H)
    a('s_waitcnt vmcnt(0)')
    setflag(70, 40)
    if OPT['otag'] and not OPT['amark'] and not OPT['smark']:
        s_mark(False)
    stamp('S', 'hpub')
    if OPT['tlate']:
        for k in range(4):
            a('s_mov_b32 s%d, s%d', 4 + k, 84 + k)
        for r in range(OPT['tearly'], 6):
            for o in touch(r):
                a(o)
            a('s_waitcnt vmcnt(0)')
        for k in range(4):
            a('s_mov_b32 s%d, s%d', 84 + k, 4 + k)
    if OPT['newpre']:
        def cdma(n, pace=None):
            kp, j = divmod(n, 5)
            a('s_add_u32 m0, s74, %d', 2048 * (n % NS))
            a('s_add_u32 s76, s%d, %d', 4 + kp, 16 * 1280 * j)
            for k in range(2):
                if pace is not None:
                    a('s_waitcnt vmcnt(%d)', pace)
                a(dma(vCA + k, R1, 76, 1024 * k))
        def hload(l, ks):
            return 's_add_u32 s9, s%d, s%d\nbuffer_load_dwordx4 %s, v%d, s[%d:%d], s9 offen offset:%d sc1' % (
                84 + l, 12 + ks // 2, v(HF + 16 * (ks % 8) + 4 * l, 4), vHA, RWS, RWS + 3, 1024 * (ks & 1))
        srd(R0, sWO, 640 * 1280)
        rot5(83, 73)
        for kp in range(5):
            a('s_lshl_b32 s73, s83, 7')
            a('s_add_u32 s%d, s72, s73', 4 + kp)
            a('s_lshl_b32 s%d, s83, 11', 12 + kp)
            a('s_lshl2_add_u32 s%d, s83, s%d', 17 + kp, sW)
            a('s_add_u32 s83, s83, 1')
            a('s_cmp_eq_u32 s83, 5')
            a('s_cselect_b32 s83, 0, s83')
        NIT = 5 - OPT['woe'] // 2
        if OPT['woe']:
            a('s_cmp_ge_u32 s83, %d', NIT)
            a('s_cselect_b32 s73, %d, 0', NIT)
            a('s_sub_u32 s83, s83, s73')
            if NIT == 4:
                a('s_add_u32 s83, s%d, s%d', sI, sXCD)
                a('s_and_b32 s83, s83, 3')
            for it in range(NIT):
                a('s_lshl2_add_u32 s%d, s83, s%d', 17 + it, sW)
                a('s_add_u32 s%d, s%d, %d', 17 + it, 17 + it, 2 * OPT['woe'])
                a('s_add_u32 s83, s83, 1')
                a('s_cmp_eq_u32 s83, %d', NIT)
                a('s_cselect_b32 s83, 0, s83')
        a('s_mul_i32 s75, s%d, 160', sOG)
        waitpw(vSPW, 13, 41, sleep=2)
        for n in range(NS):
            cdma(n, OPT['thrc'])
        pl = 'buffer_load_dword v41, v%d, s[%d:%d], s88 offen sc1' % (vF3, RWS, RWS + 3)
        for it in range(NIT):
            if it == OPT['f3at']:
                a('s_mov_b32 exec_hi, 0')
                a(pl)
                a('s_mov_b32 exec_hi, -1')
            a('s_mul_i32 s79, s%d, 40960', 17 + it)
            a('s_add_u32 s79, s79, s75')
            a('s_mul_i32 s78, s%d, 5120', 17 + it)
            a('s_mov_b32 m0, s78')
            for i in range(5):
                if i == 4:
                    a('s_add_u32 m0, s78, 4096')
                a('s_waitcnt vmcnt(%d)', OPT['thrw'] + (1 if it == NIT - 1 and OPT['hin'] else 0))
                a(dma(vWOA + i, R0, 79, 1024 * (i & 3)))
                if it == NIT - 1 and OPT['hin'] and i < 4:
                    a(hload(i, 0))
                    a(hload(i, 1))
            if it == OPT['f3at']:
                a('s_mov_b32 exec_hi, 0')
                a('s_waitcnt vmcnt(5)')
                a('v_cmp_eq_u32 vcc, 0, v41')
                a('s_cbranch_vccz L_f3seen')
                a('s_mov_b64 exec, vcc')
                pollflags([pl], 41, sleep=4)
                a.label('L_f3seen')
                a('s_mov_b64 exec, -1')
                stamp('S', 'f3')
                if OPT['htouch']:
                    a('buffer_load_dword v41, v%d, s[%d:%d], s89 offen sc1', vHT, RWS, RWS + 3)
        stamp('S', 'wo')
        a('v_mov_b32 v42, 14')
        for ks in range(0 if OPT['hin'] else 2):
            for l in range(4):
                a('s_waitcnt vmcnt(%d)', OPT['thrw'] + 1)
                a(hload(l, ks))
        if OPT['hin']:
            a('s_waitcnt vmcnt(0)')
        a('ds_write_b32 v%d, v42', vPW)
        a('s_setprio %d', OPT['b3prio'])
    else:
        stamp('S', 'touch')
        s_wo()
        waitpw(vSPW, 13, 40, sleep=2)
        def cdma(n):
            kp, j = divmod(n, 5)
            a('s_add_u32 m0, s74, %d', 2048 * (n % NS))
            a('s_add_u32 s76, s%d, %d', 4 + kp, 16 * 1280 * j)
            a(dma(vCA, R1, 76, 0))
            a(dma(vCA + 1, R1, 76, 1024))
        for n in range(NS):
            cdma(n)
            a('s_waitcnt vmcnt(%d)', 0 if n == NS - 1 else 4)
        setpw(14, 40)
        stamp('S', 'wo')
        a('s_cmp_eq_u32 s%d, 2', sW)
        a('s_cbranch_scc0 L_f3wait')
        a('s_mov_b32 exec_hi, 0')
        pollflags(['buffer_load_dword v40, v%d, s[%d:%d], s88 offen sc1' % (vF3, RWS, RWS + 3)], 40, sleep=4)
        setpw(15, 40)
        a.label('L_f3wait')
        waitpw(vS2PW, 15, 40, sleep=4)
        stamp('S', 'f3')
        a('s_setprio %d', OPT['b3prio'])
        def hload(l, ks):
            return 's_add_u32 s9, s%d, s%d\nbuffer_load_dwordx4 %s, v%d, s[%d:%d], s9 offen offset:%d sc1' % (
                84 + l, 12 + ks // 2, v(HF + 16 * (ks % 8) + 4 * l, 4), vHA, RWS, RWS + 3, 1024 * (ks & 1))
        a('buffer_load_dword v40, v%d, s[%d:%d], s89 offen sc1', vHT, RWS, RWS + 3)
        for ks in range(2):
            if ks:
                a('s_waitcnt vmcnt(0)')
            for l in range(4):
                a(hload(l, ks))
    def creads(n):
        return ['ds_read_b128 %s, v%d offset:%d' % (v(CF[n & 1] + 4 * k, 4), vCR + k, 2048 * (n % NS)) for k in range(2)]
    q = []
    def waitfor(tag):
        idx = max(i for i, x in enumerate(q) if x == tag)
        n = len(q) - 1 - idx
        del q[:idx + 1]
        return n
    for r in creads(0):
        a(r)
    a('s_waitcnt vmcnt(0) lgkmcnt(0)')
    stamp('S', 'b3go')
    cdma(NS)
    q += [NS, NS]
    vX, vD = HF + 64, HF + 74
    hq = [(l, ks) for ks in range(2, 10) for l in range(4)]
    STOP = OPT['b3stop']
    frag = {0: CF[0]}
    free = [216, 224, 232, 240]
    def creads(n):
        return ['ds_read_b128 %s, v%d offset:%d' % (v(frag[n] + 4 * k, 4), vCR + k, 2048 * (n % NS)) for k in range(2)]
    def fetch():
        n = len(frag)
        frag[n] = free.pop(0)
        if n in q:
            a('s_waitcnt vmcnt(%d)', waitfor(n))
        for r in creads(n):
            a(r)
        return n
    def refill(n, defer=False):
        a('s_waitcnt lgkmcnt(0)')
        if n + NS < 25:
            cdma(n + NS)
            if defer:
                q.append(n + NS)
                return (a.lines.pop(), n + NS)
            q.extend([n + NS, n + NS])
    t0, t1, t2 = 175, 249, vAP4
    addr = ['v_lshrrev_b32 v%d, 2, v%d' % (t0, vLANE),
            'v_and_b32 v%d, 3, v%d' % (t1, vLANE),
            'v_lshlrev_b32 v%d, 3, v%d' % (vDO, t1),
            'v_mul_u32_u24 v%d, 1280, v%d' % (t2, t0),
            'v_add_u32 v%d, v%d, v%d' % (vXO, t2, vDO),
            'v_lshlrev_b32 v%d, 4, v%d' % (t1, t1),
            'v_lshl_add_u32 v%d, v%d, 2, v%d' % (vOA, t2, t1),
            'v_mul_u32_u24 v%d, 336, v%d' % (t2, t0),
            'v_add3_u32 v%d, v%d, v%d, s92' % (vRA, t2, t1),
            'v_add3_u32 v%d, v%d, v%d, s93' % (vRA + 1, t2, t1),
            'v_lshlrev_b32 v%d, 4, v%d' % (t1, t1),
            'v_lshl_add_u32 v%d, v%d, 2, v%d' % (t1, vLANE, t1),
            'v_add_u32 v%d, %d, v%d' % (vAP4, L_PW, t1),
            'v_add_u32 v%d, s74, v%d' % (vR1W, vHA),
            'v_add_u32 v%d, s92, v%d' % (vR1R, vHA),
            'v_and_b32 v%d, 15, v%d' % (t0, vLANE),
            'v_mul_u32_u24 v%d, 336, v%d' % (t0, t0),
            'v_and_b32 v%d, 48, v%d' % (t1, vLANE),
            'v_add3_u32 v%d, v%d, v%d, s92' % (vR2W, t0, t1),
            'v_xor_b32 v%d, 256, v%d' % (vPW1, vPW),
            'v_xor_b32 v%d, 512, v%d' % (vPW2, vPW)]
    FL = OPT['fline'] & 2
    if FL:
        pXO, pDO, pOA, pRA = 160, 161, 162, (163, 175)
        a('s_and_b32 s22, s%d, 1', sOG)
        a('s_xor_b32 s23, s22, 1')
        a('s_lshl_b32 s22, s22, 2')
        a('s_lshl_b32 s23, s23, 4')
        a('s_add_u32 s24, s80, %d', 8 * 1280)
        a('s_add_u32 s25, s82, %d', 8 * 5120)
        def aset(sh, mask, so, xo, do, oa, ra):
            return ['v_and_b32 v%d, %d, v%d' % (t1, mask, vLANE),
                    'v_add_lshl_u32 v%d, v%d, s%d, 3' % (do, t1, so),
                    'v_lshrrev_b32 v%d, %d, v%d' % (t1, sh, vLANE),
                    'v_mul_u32_u24 v%d, 1280, v%d' % (t2, t1),
                    'v_add_u32 v%d, v%d, v%d' % (xo, t2, do),
                    'v_add_lshl_u32 v%d, v%d, v%d, 1' % (oa, t2, xo),
                    'v_mul_u32_u24 v%d, 168, v%d' % (t2, t1),
                    'v_add_lshl_u32 v%d, v%d, v%d, 1' % (t2, t2, do),
                    'v_add_u32 v%d, s92, v%d' % (ra[0], t2),
                    'v_add_u32 v%d, s93, v%d' % (ra[1], t2)]
        addr = aset(3, 7, 22, pXO, pDO, pOA, pRA) + aset(2, 3, 23, vXO, vDO, vOA, (vRA, vRA + 1)) + [
            'v_add_u32 v%d, s74, v%d' % (vR1W, vHA),
            'v_add_u32 v%d, s92, v%d' % (vR1R, vHA),
            'v_and_b32 v%d, 15, v%d' % (t2, vLANE),
            'v_mul_u32_u24 v%d, 336, v%d' % (t2, t2),
            'v_and_b32 v%d, 48, v%d' % (t1, vLANE),
            'v_add3_u32 v%d, v%d, v%d, s92' % (vR2W, t2, t1),
            'v_xor_b32 v%d, 256, v%d' % (vPW1, vPW),
            'v_xor_b32 v%d, 512, v%d' % (vPW2, vPW),
            'v_and_b32 v%d, 3, v%d' % (t1, vLANE),
            'v_lshlrev_b32 v%d, 8, v%d' % (t1, t1),
            'v_lshl_add_u32 v%d, v%d, 2, v%d' % (t1, vLANE, t1),
            'v_add_u32 v%d, %d, v%d' % (vAP4, L_PW, t1)]
    dsel = (lambda i: (i & 1) if i < 4 else 2) if FL else (lambda i: i)
    FR = OPT['fastred']
    U = 180
    def skipops(i, t):
        o = []
        for hf in range(2):
            o += ['v_lshlrev_b32 v%d, 16, v%d' % (t, vX + 2 * i + hf),
                  'v_lshlrev_b32 v%d, 16, v%d' % (t + 1, vD + 2 * dsel(i) + hf),
                  'v_and_b32 v%d, 0xffff0000, v%d' % (t + 2, vX + 2 * i + hf),
                  'v_and_b32 v%d, 0xffff0000, v%d' % (t + 3, vD + 2 * dsel(i) + hf),
                  'v_mul_f32 v%d, v%d, v%d' % (U + 4 * i + 2 * hf, t, t + 1),
                  'v_mul_f32 v%d, v%d, v%d' % (U + 4 * i + 2 * hf + 1, t + 2, t + 3)]
        return o
    w1 = lambda qd: 'ds_write_b128 v%d, %s offset:%d' % (vR1W, v(acc + 40 + 4 * qd, 4), 1024 * qd)
    if FR:
        assert FL and OPT['b3res'] >= 7
        def xl(i):
            o = []
            if i in (0, 1, 4):
                o.append('global_load_dwordx2 %s, v%d, s[90:91] offset:%d' % (v(vD + 2 * dsel(i), 2), pDO if i < 4 else vDO, 64 * (i & 1)))
            o.append('buffer_load_dwordx2 %s, v%d, s[%d:%d], s%d offen offset:%d' % (v(vX + 2 * i, 2), pXO if i < 4 else vXO, R3, R3 + 3,
                                                                                  24 if i in (2, 3) else 80, 64 * (i & 1)))
            return o
        addr = addr[:5] + xl(0) + xl(1) + xl(2) + xl(3) + addr[5:15] + xl(4) + addr[15:]
        skq = [o for i in range(5) for o in skipops(i, 176)]
    assert 10 <= STOP <= 15
    for n in range(25):
        kp, j = divmod(n, 5)
        if n == 10:
            free += [HF + 32 + 8 * k for k in range(4)]
        if n == STOP:
            while len(frag) <= 20 or hq:
                for _ in range(1 if OPT['even'] else 99):
                    if hq:
                        l, ks = hq.pop(0)
                        a(hload(l, ks))
                        q.append('h%d' % (ks // 2))
                if len(frag) <= 20:
                    refill(fetch())
            a('s_setprio 1')
            a('v_and_b32 v%d, 1, v%d', vAM, vLANE)
            a('v_lshlrev_b32 v%d, 9, v%d', vAM, vAM)
            a('v_xor_b32 v%d, v%d, v%d', vAM, vAM, vPW)
            a('v_subrev_u32 v%d, 1024, v%d', vAM, vAM)
            a('s_waitcnt vmcnt(0)')
            del q[:]
            stamp('S', 'b3stop')
            waitpw(vAM, OPT['b3res'], 249, sleep=OPT['rsleep'])
            stamp('S', 'b3res')
        want = (25 if FR else n + 2) if n >= STOP else max(n + 2, 21 - OPT['ahead'] * (STOP - 1 - n))
        f1 = fetch() if (len(frag) < min(25, want) and free) else None
        if j == 0 and 'h%d' % kp in q:
            a('s_waitcnt vmcnt(%d)', waitfor('h%d' % kp))
        if OPT['fine'] >= 2 and n in (3, 6, 9):
            stamp('S', 'u%d' % n)
        extra = []
        for _ in range(OPT['hrate']):
            if hq and (hq[0][1] < 8 or n >= 5):
                l, ks = hq.pop(0)
                extra.append((hload(l, ks), 'h%d' % (ks // 2)))
        if FR:
            if n == FR:
                a('s_waitcnt vmcnt(0)')
        elif 16 <= n < 21 and FL:
            i = n - 16
            if i in (0, 1, 4):
                extra.append(('global_load_dwordx2 %s, v%d, s[90:91] offset:%d' % (v(vD + 2 * dsel(i), 2), pDO if i < 4 else vDO, 64 * (i & 1)), 'x'))
            extra.append(('buffer_load_dwordx2 %s, v%d, s[%d:%d], s%d offen offset:%d' % (v(vX + 2 * i, 2), pXO if i < 4 else vXO, R3, R3 + 3,
                                                                                     24 if i in (2, 3) else 80, 64 * (i & 1)), 'x'))
        elif 16 <= n < 21:
            i = n - 16
            extra += [('global_load_dwordx2 %s, v%d, s[90:91] offset:%d' % (v(vD + 2 * i, 2), vDO, 32 * i), 'x'),
                      ('buffer_load_dwordx2 %s, v%d, s[%d:%d], s80 offen offset:%d' % (v(vX + 2 * i, 2), vXO, R3, R3 + 3, 32 * i), 'x')]
        cnt = 0
        f2 = None
        for k in range(2):
            ks = 2 * kp + k
            for l in ((2, 3, 0, 1) if FR and n >= 20 else range(4)):
                d = acc + 20 * l + 4 * j
                a('v_mfma_f32_16x16x32_bf16 %s, %s, %s, %s', v(d, 4), v(frag[n] + 4 * k, 4), v(HF + 16 * (ks % 8) + 4 * l, 4),
                  '0' if ks == 0 else v(d, 4))
                cnt += 1
                if FR and n >= 15:
                    if n >= 21 and cnt in (6, 7):
                        assert len(frag) == 25
                        a(w1((n - 21) + 5 * (cnt - 6)))
                    else:
                        for _ in range(2):
                            if addr:
                                a(addr.pop(0))
                            elif n >= FR and skq:
                                a(skq.pop(0))
                    if cnt == 6 and f1 is not None:
                        refill(f1)
                    continue
                EV = OPT['even'] and n < STOP - 1 and OPT['hrate'] == 2
                if EV:
                    if cnt == 3:
                        second = refill(f1, True)
                    if cnt == 7:
                        assert second
                        a(second[0])
                        q.append(second[1])
                    if cnt in (1, 5) and extra:
                        o, tg = extra.pop(0)
                        a(o)
                        q.append(tg)
                    continue
                if cnt in (1, 2, 5, 6) and extra:
                    o, tg = extra.pop(0)
                    a(o)
                    q.append(tg)
                elif n >= 15 and addr:
                    a(addr.pop(0))
                if cnt == (4 if n < STOP else 6) and f1 is not None:
                    refill(f1)
                    if len(frag) < min(21, want) and free:
                        f2 = fetch()
                if cnt == 8 and f2 is not None:
                    refill(f2)
        assert not extra
        free.append(frag[n])
    assert not addr
    assert not hq
    stamp('S', 'b3gemm')
    T = 112
    def rsel(i, b):
        if not FL:
            return vRA + b, 64 * i
        return (pRA[b], 8 * 336 * (i >> 1) + 128 * (i & 1)) if i < 4 else (vRA + b, 0)
    if FR:
        a('v_mov_b32 v%d, 17', T + 2)
        a('v_mov_b32 v%d, 18', T + 3)
        for o in skq[:3]:
            a(o)
        a(w1(4))
        a(w1(9))
        a('ds_write_b32 v%d, v%d', vPW, T + 2)
        for nm in ('w1', 'xw'):
            if OPT['fine'] == 2:
                stamp('S', nm)
        half = 3 + (len(skq) - 3) // 2
        for o in skq[3:half]:
            a(o)
        if OPT['fine'] == 2:
            stamp('S', 'r1w')
        order = (5, 6, 7, 8, 9, 0, 1, 2, 3, 4)
        waitpw(vPW1, 17, T + 1, extra=['ds_read_b128 %s, v%d offset:%d' % (v(acc + 40 + 4 * qd, 4), vR1R, 1024 * qd) for qd in order])
        if OPT['fine'] == 2:
            stamp('S', 'r1s')
        for i, qd in enumerate(order):
            l, j = divmod(qd, 5)
            a('s_waitcnt lgkmcnt(%d)', 9 if i < 5 else 10)
            for e in range(4):
                a('v_add_f32 v%d, v%d, v%d', acc + 4 * qd + e, acc + 4 * qd + e, acc + 40 + 4 * qd + e)
            a('ds_write_b128 v%d, %s offset:%d', vR2W, v(acc + 4 * qd, 4), 16 * 336 * l + 64 * j)
            if qd == 9:
                a('ds_write_b32 v%d, v%d', vPW, T + 3)
        for i in range(5):
            a('ds_read_b128 %s, v%d offset:%d', v(acc + 40 + 8 * i, 4), *rsel(i, 0))
        for o in skq[half:]:
            a(o)
    else:
        if OPT['b3res'] < 7:
            waitpw(vAM, 7, T, sleep=2)
        else:
            a('s_nop 3')
        for qd in range(10):
            a('ds_write_b128 v%d, %s offset:%d', vR1W, v(acc + 40 + 4 * qd, 4), 1024 * qd)
        setpw(17, T + 1)
        if OPT['fine'] == 2:
            stamp('S', 'w1')
        a('s_waitcnt vmcnt(0)')
        if OPT['fine'] == 2:
            stamp('S', 'xw')
        U = 180
        def rsel(i, b):
            if not FL:
                return vRA + b, 64 * i
            return (pRA[b], 8 * 336 * (i >> 1) + 128 * (i & 1)) if i < 4 else (vRA + b, 0)
        def skip(i):
            for hf in range(2):
                a('v_lshlrev_b32 v%d, 16, v%d', T + 4, vX + 2 * i + hf)
                a('v_lshlrev_b32 v%d, 16, v%d', T + 5, vD + 2 * dsel(i) + hf)
                a('v_and_b32 v%d, 0xffff0000, v%d', T + 6, vX + 2 * i + hf)
                a('v_and_b32 v%d, 0xffff0000, v%d', T + 7, vD + 2 * dsel(i) + hf)
                a('v_mul_f32 v%d, v%d, v%d', U + 4 * i + 2 * hf, T + 4, T + 5)
                a('v_mul_f32 v%d, v%d, v%d', U + 4 * i + 2 * hf + 1, T + 6, T + 7)
        skip(0)
        skip(1)
        if OPT['fine'] == 2:
            stamp('S', 'r1w')
        waitpw(vPW1, 17, T + 1)
        if OPT['fine'] == 2:
            stamp('S', 'r1s')
        for qd in (5, 6, 7, 8, 9, 0, 1, 2, 3, 4):
            a('ds_read_b128 %s, v%d offset:%d', v(acc + 40 + 4 * qd, 4), vR1R, 1024 * qd)
        skip(2)
        a('s_waitcnt lgkmcnt(0)')
        for qd in (5, 6, 7, 8, 9, 0, 1, 2, 3, 4):
            l, j = divmod(qd, 5)
            for e in range(4):
                a('v_add_f32 v%d, v%d, v%d', acc + 4 * qd + e, acc + 4 * qd + e, acc + 40 + 4 * qd + e)
            a('ds_write_b128 v%d, %s offset:%d', vR2W, v(acc + 4 * qd, 4), 16 * 336 * l + 64 * j)
            if qd == 9:
                setpw(18, T + 1)
        for i in range(5):
            a('ds_read_b128 %s, v%d offset:%d', v(acc + 40 + 8 * i, 4), *rsel(i, 0))
        skip(3)
        skip(4)
    if OPT['fine'] == 2:
        stamp('S', 'r2w')
    rd2 = ['ds_read_b128 %s, v%d offset:%d' % ((v(acc + 44 + 8 * i, 4),) + tuple(rsel(i, 1))) for i in range(5)]
    waitpw(vPW2, 18, T + 1, extra=rd2 if FR else ())
    if OPT['fine'] == 2:
        stamp('S', 'r2s')
    if not FR:
        for o in rd2:
            a(o)
    for i in range(5):
        for e in range(4):
            a('v_add_f32 v%d, v%d, v%d', U + 4 * i + e, U + 4 * i + e, acc + 40 + 8 * i + e)
    for i in range(5):
        a('s_waitcnt lgkmcnt(%d)', 4 - i)
        for e in range(4):
            a('v_add_f32 v%d, v%d, v%d', U + 4 * i + e, U + 4 * i + e, acc + 44 + 8 * i + e)
    stamp('S', 'yrdy')
    if OPT['yhold']:
        waitpw(vAP4, 9, T + 1, sleep=OPT['ysleep'])
    for i in range(5):
        if FL:
            a('buffer_store_dwordx4 %s, v%d, s[%d:%d], s%d offen offset:%d%s', v(U + 4 * i, 4), pOA if i < 4 else vOA, R6, R6 + 3,
              25 if i in (2, 3) else 82, 128 * (i & 1), YSC)
        else:
            a('buffer_store_dwordx4 %s, v%d, s[%d:%d], s82 offen offset:%d%s', v(U + 4 * i, 4), vOA, R6, R6 + 3, 64 * i, YSC)
    finish('S')

prologue()
a.c('======== S role: set-up, first stages of the QKV GEMM')
s_setup()
a.c('======== S role: loader of the QKV GEMM')
s_qloader()
if OPT['sexit'] == 1:
    setpw(99, 40)
    finish('S')
a.c('======== S role: SSM input GEMM')
s_b1()
if OPT['sexit'] == 2:
    setpw(99, 40)
    finish('S')
a.c('======== S role: scan')
s_scan()
a.c('======== S role: SSM output GEMM')
s_b3()
a.label('L_exit')
a('s_endpgm')
flush_cold()
a.c('======== A role: set-up')
a_setup()
if OPT['alate'] != 1:
    a_b1_setup()
if not OPT['alate']:
    a_att_setup()
if OPT['aearly']:
    n0_ = len(a.lines)
    a_att_setup()
    del a.lines[n0_ + OPT['aearly']:]
a.c('======== A role: QKV GEMM')
a_qphase()
a.c('======== A role: loader of the SSM input GEMM, wait for Q/K/V')
a_handoff()
a.c('======== A role: attention')
a_attention()
a.c('======== A role: output projection')
a_outproj()
flush_cold()
a.label('L_codeend')

DOC = '; ---------------------------------------------------------------------------------------------------------------\n; Hand-offs between workgroups: write-through (sc1) stores, s_waitcnt vmcnt, then a flag on its own line; readers poll\n; and load with sc1.  Flags are cleared in this launch before use (signalled through d_debug).  All waits are bounded.\n; ---------------------------------------------------------------------------------------------------------------\n'
errs = check(a.lines)
for e_ in errs:
    print('HAZARD', e_, file=sys.stderr)

head = open('cdna_kernels/%s.s.ref' % NAME).read().split('; @launch')[0]
out = head + '; @launch grid=(256,1,1) block=(512,1,1) lds=%d\n' % LDS_BYTES
out += DOC
out += '''.amdgcn_target "amdgcn-amd-amdhsa--gfx950"
.text
.globl %s_kernel
.p2align 8
.type %s_kernel,@function
%s_kernel:
''' % (NAME, NAME, NAME)
body = a.text().replace('QSC', ['sc1', 'sc0 sc1', 'sc1 nt', 'sc0 sc1 nt'][OPT['qsc']])
foot = '''.section .rodata,"a"
.p2align 6
.amdhsa_kernel %s_kernel
  .amdhsa_next_free_vgpr 256
  .amdhsa_next_free_sgpr 102
  .amdhsa_accum_offset 256
  .amdhsa_group_segment_fixed_size 0
  .amdhsa_kernarg_size 120
  .amdhsa_user_sgpr_count 2
  .amdhsa_user_sgpr_kernarg_segment_ptr 1
  .amdhsa_system_sgpr_workgroup_id_x 1
.end_amdhsa_kernel
''' % NAME
import re, subprocess
def render(pads):
    def f(m):
        if not OPT['pgalign']:
            return ''
        al = 12 if (m.group(1) == 'L_roleA' or not OPT['q16']) else 6
        return '.p2align %d\n.fill %d, 4, 0xbf810000' % (al, pads.get(m.group(1), 0) // 4)
    return out + re.sub(r'\.PAD (\w+) (\w+)', f, body) + foot
pads = {}
for it_ in range(4 if OPT['pgalign'] else 0):
    open('pad.s', 'w').write(render(pads))
    subprocess.run(['clang', '-x', 'assembler', '-target', 'amdgcn-amd-amdhsa', '-mcpu=gfx950', '-c', 'pad.s', '-o', 'pad.o'], check=True)
    sym = {l.split()[-1]: int(l.split()[0], 16) for l in subprocess.run(['llvm-objdump', '-t', 'pad.o'], capture_output=True, text=True).stdout.splitlines() if ' L_' in l}
    for st_, tg_ in re.findall(r'\.PAD (\w+) (\w+)', body)[it_:]:
        d = (-(sym[tg_] - pads.get(st_, 0))) % 4096
        pads[st_] = (d + 63) // 64 * 64 % 4096
open(sys.argv[1], 'w').write(render(pads))
if DIAG:
    import json
    json.dump(nstamp, open(sys.argv[1] + '.stamps.json', 'w'))
import subprocess
r_ = subprocess.run(['clang', '-x', 'assembler', '-target', 'amdgcn-amd-amdhsa', '-mcpu=gfx950', '-c', sys.argv[1], '-o', 'chk.o'], capture_output=True, text=True)
if r_.returncode:
    print(r_.stderr[:2000])
    sys.exit(1)
if errs:
    sys.exit(1)
```

```python
import sys, math, struct
from asmlib import Asm, v, s, check

NAME = 'concat_heads__mha_block__ssm_conv_s5__prompt'
OPT = dict(diag=0, b3start=12, force_fb=0, psleep=0, fine=0, cpre=1, stag=10, b1dep=2, rot=1, thr=4, hold=3, codepre=2, psleep4=0, padto=0, outsc1=1, gate4=-1, early0=1, st10=3, b1prio=0, probe='', probewg=-1, sexit=0, b3prio=0, nocdma=0, mallpre=0, b3early=1, pretouch=-1, pace=0, pause=1, wolate=1, thrw=2, kvsplit=5, tstart=0, k2split=0, gate1='x', tlate=0, spread=1, pollat=17, tearly=0, b3stop=12, b3res=8, hrate=2, yhold=1, rot5=1, wopack=0, olead=20, allpoll=1, ysc=1, clrwide=0, nodup=1, onewait=0, vzero=1, lalign=6, lpad=0, epoll=0, npre=2, tprio=0, pgate=1, p3dyn=0, flip=1, newpre=1, f3at=2, gtouch=3, pkmerge=1, kvplain=0, acq=0, stagb=4, alate=2, slate=0, plate=1, seq='', unroll=2, lean=1, yearly=0, ysleep=2, cmap=1, l2pre=2, xpre=0, hack16=0, fastpro=1, gsleep=0, rsleep=2, xtail=1, ctail=0, hin=1, ahead=9, woe=0, thre=2, tlb=0, qsc=0, otag=0, amark=0, smark=0, x8first=1, pgalign=1, aearly=110, adep=2, eb=0, s1late=1, rotm=7, nowait=0, hsplit=1, thrc=3, even=1, jout=0, fline=3, klin=3, fastred=0, snodup=0, w7pre=0, otouch=1, htouch=1, orot=0, q16=1, qspread=8, pgst=4, snake=1, split2=0, bsnake=0, dmasc=0, wosc=0, qprio=0, csplit=0, peel=1, rdat=13)
for a_ in sys.argv[2:]:
    k_, v_ = a_.split('=')
    OPT[k_] = v_ if k_ in ('probe', 'gate1', 'seq') else int(v_)
DIAG = OPT['diag']
OSC = ['', ' sc1', ' nt', ' sc1 nt'][OPT['outsc1']]
YSC = ['', ' sc1', ' nt', ' sc1 nt'][OPT['ysc']]

def f2u(x):
    return struct.unpack('<I', struct.pack('<f', x))[0]

BLK, VOFF, VROW = 247808, 164864, 10368
WS_H, HBLK = 0x800000, 40960
WS_O, OBLK = 0xD00000, 20480
WS_E = 0xF80000
WS_F = 0xFA0000
F1, F3, F4 = WS_F, WS_F + 0x8000, WS_F + 0x28000
WS_WP = 0x1000000
WS_END = WS_WP + 8 * 102400
WS_DIAG = 0x1100000
OOB = 0x7F000000
L_HT, L_H, L_EL, L_PL = 65536, 86016, 86528, 91648
L_PAR, L_Z = 131072, 132096
L_WO = 0
L_REG, REGSZ = 102400, 14848
L_PW = 161792
LDS_BYTES = 163840
sAX, sWQ, sWO, sBX, sLRE, sLIM, sBRE, sBIM, sCRE, sCIM, sLDT, sDSK, sOUT, sDBG, sWS = range(4, 34, 2)
sW, sI, sXCD = 34, 35, 3
R0, R1, RWS, R3, R4, R5, R6 = 36, 40, 44, 48, 52, 56, 60
sRB, sCG, sHD, sQB, sTB, sOG = 64, 65, 66, 67, 68, 69
sG = 97
sSPIN = 96
sHI = 94
vLANE, vPW, vTS = 254, 253, 255
SPIN_MAX = 1 << 19

a = Asm()
nstamp = {}

def stamp(role, name):
    if OPT['probe'] == role + name:
        a('s_memrealtime s[98:99]')
        a('s_waitcnt lgkmcnt(0)')
        a('s_mov_b32 s101, s98')
    if not DIAG:
        return
    l = nstamp.setdefault(role, [])
    if DIAG == 2:
        l.append(name)
        if role + name == 'Aattpro':
            a('s_memrealtime s[98:99]')
            a('s_waitcnt lgkmcnt(0)')
            a('v_writelane_b32 v%d, s98, 29', vTS)
        return
    idx = len(l)
    l.append(name)
    a('s_memtime s[98:99]')
    a('s_memrealtime s[100:101]')
    a('s_waitcnt lgkmcnt(0)')
    a('v_writelane_b32 v%d, s98, %d', vTS, idx)
    a('v_writelane_b32 v%d, s100, %d', vTS, 32 + idx)

def srd(r, base, nbytes):
    a('s_mov_b32 s%d, s%d', r, base)
    a('s_mov_b32 s%d, s%d', r + 1, base + 1)
    if isinstance(nbytes, int):
        a('s_mov_b32 s%d, 0x%x', r + 2, nbytes)
    else:
        a('s_mov_b32 s%d, %s', r + 2, nbytes)
    a('s_mov_b32 s%d, 0x20000', r + 3)

def setpw(val, tmp):
    a('v_mov_b32 v%d, %d', tmp, val)
    a('ds_write_b32 v%d, v%d', vPW, tmp)

COLD = []

def retry(label, back, sleep, pre=()):
    COLD.append(label + ':')
    COLD.extend(pre)
    if sleep:
        COLD.append('s_sleep %d' % sleep)
    COLD.append('s_sub_u32 s%d, s%d, 1' % (sSPIN, sSPIN))
    COLD.append('s_cbranch_scc0 %s' % back)
    COLD.append('s_endpgm')

def flush_cold():
    a.lines.extend(COLD)
    del COLD[:]

def waitpw(vaddr, val, tmp, sleep=0, extra=()):
    L = a.newlabel('pw')
    D = a.newlabel('pwr')
    a.label(L)
    a('ds_read_b32 v%d, v%d', tmp, vaddr)
    for e in extra:
        a(e)
    if not sleep:
        a('s_sub_u32 s%d, s%d, 1', sSPIN, sSPIN)
        a('s_cbranch_scc1 L_exit')
    a('s_waitcnt lgkmcnt(%d)', len(extra))
    a('v_cmp_gt_u32 vcc, %d, v%d', val, tmp)
    if not sleep:
        a('s_cbranch_vccnz %s', L)
        return
    a('s_cbranch_vccnz %s', D)
    retry(D, L, sleep)

def pollflags(loads, tmp, sleep=1):
    L = a.newlabel('pf')
    D = a.newlabel('pfr')
    a.label(L)
    for l in loads:
        a(l)
    if not sleep:
        a('s_sub_u32 s%d, s%d, 1', sSPIN, sSPIN)
        a('s_cbranch_scc1 L_exit')
    a('s_waitcnt vmcnt(0)')
    for i in range(1, len(loads)):
        a('v_and_b32 v%d, v%d, v%d', tmp, tmp, tmp + i)
    a('v_cmp_eq_u32 vcc, 0, v%d', tmp)
    if not sleep:
        a('s_and_b64 exec, exec, vcc')
        a('s_cbranch_scc1 %s', L)
    else:
        a('s_cbranch_vccnz %s', D)
        retry(D, L, sleep, ['s_mov_b64 exec, vcc'])
    a('s_mov_b64 exec, -1')

def dbgload(va, vd):
    return 'global_load_dword v%d, v%d, s[%d:%d] sc1' % (vd, va, sDBG, sDBG + 1)

def flagaddr(dst, idx, base, t):
    a('s_lshl_b32 s%d, s%d, 7', dst, idx)
    a('s_add_u32 s%d, s%d, 0x%x', dst, dst, base)

def setflag(soff, tmp):
    a('v_mov_b32 v%d, 1', tmp)
    a('s_mov_b64 exec, 1')
    a('buffer_store_dword v%d, off, s[%d:%d], s%d sc1', tmp, RWS, RWS + 3, soff)
    a('s_mov_b64 exec, -1')

def tau(dst, src, t):
    a('v_and_b32 v%d, 0x13, v%d', dst, src)
    a('v_and_b32 v%d, 4, v%d', t, src)
    a('v_lshl_or_b32 v%d, v%d, 1, v%d', dst, t, dst)
    a('v_and_b32 v%d, 8, v%d', t, src)
    a('v_lshrrev_b32 v%d, 1, v%d', t, t)
    a('v_or_b32 v%d, v%d, v%d', dst, t, dst)

def finish(role):
    if OPT['probe'][:1] == role:
        if OPT['probe'][1:] == 'drained':
            a('s_waitcnt vmcnt(0)')
            stamp(role, 'drained')
        a('s_sub_u32 s101, s101, s100')
        a('s_mul_i32 s101, s101, 10')
        a('s_add_u32 s101, s101, 10000')
        if OPT['probewg'] >= 0:
            a('s_and_b32 s98, s2, 31')
            a('s_cmp_eq_u32 s98, %d', OPT['probewg'])
            a('s_cselect_b32 s101, s101, 0')
        L = a.newlabel('pad')
        a.label(L)
        a('s_sleep 4')
        a('s_memrealtime s[98:99]')
        a('s_waitcnt lgkmcnt(0)')
        a('s_sub_u32 s98, s98, s100')
        a('s_cmp_lt_u32 s98, s101')
        a('s_cbranch_scc1 %s', L)
    if OPT['padto']:
        L = a.newlabel('pad')
        a.label(L)
        a('s_sleep 4')
        a('s_memrealtime s[98:99]')
        a('s_waitcnt lgkmcnt(0)')
        a('s_sub_u32 s98, s98, s100')
        a('s_cmp_lt_u32 s98, %d', OPT['padto'])
        a('s_cbranch_scc1 %s', L)
    if DIAG:
        stamp(role, 'end')
        a('s_waitcnt vmcnt(0)')
        stamp(role, 'drained')
        a('s_memrealtime s[98:99]')
        a('s_waitcnt lgkmcnt(0)')
        a('v_writelane_b32 v%d, s98, 31', vTS)
        a('s_lshl_b32 s70, s2, 3')
        a('s_add_u32 s70, s70, s%d', sW)
        if role == 'S':
            a('s_add_u32 s70, s70, 4')
        a('s_lshl_b32 s70, s70, 8')
        a('s_add_u32 s70, s70, 0x%x', WS_DIAG)
        a('v_lshlrev_b32 v0, 2, v%d', vLANE)
        a('buffer_store_dword v%d, v0, s[%d:%d], s70 offen', vTS, RWS, RWS + 3)
    a('s_endpgm')

def prologue():
    a('s_cmp_ge_u32 s2, 256')
    a('s_cbranch_scc0 L_go')
    a('s_endpgm')
    a.label('L_go')
    if OPT['padto'] or DIAG or OPT['probe']:
        a('s_memrealtime s[100:101]')
    a('s_load_dwordx16 s[4:19], s[0:1], 0')
    a('s_load_dwordx8 s[20:27], s[0:1], 64')
    a('s_load_dwordx4 s[28:31], s[0:1], 96')
    a('s_load_dwordx2 s[32:33], s[0:1], 112')
    a('s_lshr_b32 s%d, s2, 3', sI)
    if OPT['codepre'] == 2:
        a.c('pull the code into L2: every half wave of an XCD touches one line')
        a('s_getpc_b64 s[76:77]')
        a('v_lshrrev_b32 v1, 5, v0')
        a('v_lshl_add_u32 v1, s%d, 4, v1', sI)
        a('v_min_u32 v1, (L_codeend - L_go) / 128 - 1, v1')
        a('v_lshlrev_b32 v1, 7, v1')
        a('global_load_dword v%d, v1, s[76:77]', 149 if OPT['q16'] else 110)
    a('v_lshrrev_b32 v1, 6, v0')
    a('v_and_b32 v%d, 63, v0', vLANE)
    a('v_readfirstlane_b32 s%d, v1', sW)
    a('s_and_b32 s%d, s2, 7', sXCD)
    a('s_and_b32 s70, s%d, 3', sI)
    a('s_lshr_b32 s%d, s%d, 2', sOG, sI)
    a('s_lshr_b32 s71, s%d, 1', sXCD)
    a('s_lshl2_add_u32 s%d, s71, s70', sRB)
    a('s_and_b32 s71, s%d, 1', sXCD)
    a('s_lshl3_add_u32 s%d, s71, s%d', sG, sOG)
    a('s_cmp_ge_u32 s%d, %d', sI, 30 if OPT['cmap'] else 99)
    a('s_cselect_b32 s71, 8, 0')
    a('s_xor_b32 s%d, s%d, s71', sCG, sG)
    if DIAG:
        prologue2()
    a('s_cmp_ge_u32 s%d, 4', sW)
    a('s_cbranch_scc0 L_roleA')

def prologue2():
    a('v_lshlrev_b32 v%d, 2, v0', vPW)
    a('v_add_u32 v%d, %d, v%d', vPW, L_PW, vPW)
    a('v_mov_b32 v0, 0')
    a('ds_write_b32 v%d, v0', vPW)
    a('s_lshr_b32 s71, s%d, 3', sI)
    a('s_lshl2_add_u32 s%d, s%d, s71', sHD, sXCD)
    a('s_and_b32 s%d, s%d, 7', sQB, sI)
    a('s_and_b32 s70, s%d, 3', sI)
    a('s_lshl2_add_u32 s%d, s%d, s70', sTB, sXCD)
    a('s_mov_b32 s%d, 0x%x', sSPIN, SPIN_MAX)
    a('s_mov_b32 s%d, 0', sHI)
    a('s_mov_b32 s%d, -1', sHI + 1)

def ws_setup():
    srd(RWS, sWS, WS_END if not DIAG else WS_DIAG + 0x100000)
    if DIAG:
        a('v_mov_b32 v%d, 0', vTS)
        a('v_writelane_b32 v%d, s100, 30', vTS)

def stagger(k, t, add, flp, mode):
    if mode == 4:
        a('s_and_b32 s%d, s%d, 3', k, sI)
        if flp:
            a('s_xor_b32 s%d, s%d, 1', k, k)
        a('s_mul_i32 s%d, s%d, 5', k, k)
        a('s_lshr_b32 s%d, s%d, 1', k, k)
        a('s_mul_i32 s%d, s%d, 5', t, sOG)
        a('s_lshr_b32 s%d, s%d, 2', t, t)
        a('s_add_u32 s%d, s%d, s%d', k, k, t)
    elif mode in (2, 3):
        a('s_add_u32 s%d, s%d, s%d', k, sI, sOG)
        if flp:
            a('s_xor_b32 s%d, s%d, 1', k, k)
        a('s_and_b32 s%d, s%d, %d', k, k, 1 if mode == 2 else 3)
        a('s_mul_i32 s%d, s%d, 5', k, k)
        if mode == 3:
            a('s_lshr_b32 s%d, s%d, 1', k, k)
    else:
        a('s_mov_b32 s%d, 0', k)
    if mode == 0:
        a('s_mov_b32 s%d, %d', k, add)
        return
    a('s_add_u32 s%d, s%d, %d', t, sXCD, 1 + 2 * add)
    a('s_lshr_b32 s%d, s%d, 1', t, t)
    if mode == 1:
        a('s_add_u32 s%d, s%d, %d', t, sXCD, add)
    a('s_add_u32 s%d, s%d, s%d', k, k, t)
    for _ in range(2 if add else 1):
        a('s_cmp_ge_u32 s%d, 10', k)
        a('s_cselect_b32 s%d, 10, 0', t)
        a('s_sub_u32 s%d, s%d, s%d', k, k, t)

def b1_sources(rx, rb, vx, vb, sm, sb, t, j0=2):
    srd(rx, sBX, 2048 * 1280)
    a('s_cmp_ge_u32 s%d, 2', sW)
    a('s_cselect_b32 s%d, s%d, s%d', t, sBIM, sBRE)
    a('s_cselect_b32 s%d, s%d, s%d', t + 1, sBIM + 1, sBRE + 1)
    srd(rb, t, 640 * 1280)
    a('v_lshrrev_b32 v1, 3, v%d', vLANE)
    a('v_and_b32 v2, 7, v%d', vLANE)
    a('v_lshrrev_b32 v3, 4, v%d', vLANE)
    a('v_xor_b32 v4, v2, v3')
    a('v_and_b32 v5, 3, v1')
    a('v_lshrrev_b32 v6, 2, v1')
    a('v_lshl_add_u32 v5, v6, 3, v5')
    a('v_mul_u32_u24 v5, 1280, v5')
    a('v_lshl_add_u32 v%d, v4, 4, v5', vx)
    a('v_xor_b32 v6, 64, v%d', vx)
    a('v_add_u32 v%d, %d, v6', vx + 1, 16 * 1280 - 1024)
    a('v_add_u32 v%d, %d, v%d', vx + 2, 4 * 1280 - 2048, vx)
    a('v_add_u32 v%d, %d, v6', vx + 3, 20 * 1280 - 3072)
    a('s_lshr_b32 s%d, s%d, 1', t, sW)
    a('s_lshl_b32 s%d, s%d, 6', t + 1, t)
    a('v_mul_u32_u24 v5, 1280, v1')
    a('v_lshl_add_u32 v5, v4, 4, v5')
    a('v_xor_b32 v%d, s%d, v5', vb, t + 1)
    for i in range(1, 3):
        a('v_add_u32 v%d, %d, v%d', vb + i, (10240 - 1024) * i, vb)
    a('s_and_b32 s%d, s%d, 1', t + 1, sW)
    a('s_mul_i32 s%d, s%d, 5120', sm, t)
    a('s_mul_i32 s%d, s%d, %d', sb, t + 1, 1024 * j0)
    a('s_add_u32 s%d, s%d, s%d', sm, sm, sb)
    a('s_mul_i32 s%d, s%d, %d', sb, sG, 40 * 1280)
    a('s_mul_i32 s%d, s%d, %d', t + 1, t + 1, 8 * 1280 * j0)
    a('s_add_u32 s%d, s%d, s%d', sb, sb, t + 1)

def dma(voff, r, soff, imm):
    fl = ['', ' sc1', ' sc0', ' sc0 sc1'][OPT['dmasc']]
    if 186 <= voff <= 190 and not OPT['wosc']:
        fl = ''
    return 'buffer_load_dwordx4 v%d, s[%d:%d], s%d offen offset:%d%s lds' % (voff, r, r + 3, soff, imm, fl)

vAB = 141 if OPT['q16'] else 112

def a_b1stage(t):
    slot = ((t + 1) % 4) * 32768
    a('s_add_u32 m0, s6, %d', slot)
    a('s_lshl_b32 s9, s8, 7')
    a('s_add_u32 s12, s4, s9')
    for i in range(4):
        a(dma(vAB + i, R5, 12, 1024 * i))
    a('s_add_u32 m0, s7, %d', slot + 16384)
    a('s_add_u32 s12, s5, s9')
    L = a.newlabel('b3rd')
    for i in range(3):
        if i == 2 and OPT['nodup']:
            a('s_cmp_eq_u32 s%d, 1', sCW)
            a('s_cbranch_scc1 %s', L)
        a(dma(vAB + 4 + i, R6, 12, 1024 * i))
    a.label(L)
    a('s_add_u32 s8, s8, 1')
    a('s_cmp_eq_u32 s8, 10')
    a('s_cselect_b32 s8, 0, s8')

sTW, sCW = 72, 73
vXA, vWA = 96, 104
vF1A = 252
vAPW = 249

def a_setup():
    a('.PAD L_roleA L_pgQ')
    a.label('L_roleA')
    if not DIAG:
        prologue2()
    a('s_waitcnt lgkmcnt(0)')
    ws_setup()
    stamp('A', 'start')
    a('s_lshr_b32 s%d, s%d, 1', sTW, sW)
    a('s_and_b32 s%d, s%d, 1', sCW, sW)
    a('s_lshl1_add_u32 s75, s%d, s%d', sRB, sTW)
    a('s_mul_i32 s74, s75, %d', BLK)
    if OPT['amark'] == 1:
        a_mark()
    a.c('column group 15 has no GEMM tile: these workgroups clear the flags and write the constant blocks')
    a('s_cmp_eq_u32 s%d, 15', sCG)
    a('s_cbranch_scc0 L_noconst')
    a('s_lshl2_add_u32 s77, s%d, s%d', sRB, sW)
    if OPT['clrwide']:
        a('v_lshlrev_b32 v2, 4, v%d', vLANE)
        a('v_min_u32 v3, 496, v2')
        for i in range(4):
            a('v_mov_b32 v%d, 0', 4 + i)
        a('s_mul_i32 s76, s77, 4608')
        a('s_add_u32 s76, s76, 0x%x', WS_F)
        for i in range(4):
            a('buffer_store_dwordx4 v[4:7], v2, s[%d:%d], s76 offen offset:%d sc1', RWS, RWS + 3, 1024 * i)
        a('s_add_u32 s76, s76, 4096')
        a('buffer_store_dwordx4 v[4:7], v3, s[%d:%d], s76 offen sc1', RWS, RWS + 3)
    else:
        a('v_min_u32 v1, 35, v%d', vLANE)
        a('v_lshlrev_b32 v1, 7, v1')
        a('v_mov_b32 v4, 0')
        a('s_mul_i32 s76, s77, 4608')
        a('s_add_u32 s76, s76, 0x%x', WS_F)
        a('buffer_store_dword v4, v1, s[%d:%d], s76 offen sc1', RWS, RWS + 3)
        a('v_lshlrev_b32 v2, 4, v%d', vLANE)
    for i in range(4):
        a('v_mov_b32 v%d, -1', 20 + i)
    a('s_lshl_b32 s76, s77, 11')
    a('s_add_u32 s76, s76, 0x%x', WS_E)
    for i in range(2):
        a('buffer_store_dwordx4 v[20:23], v2, s[%d:%d], s76 offen offset:%d sc1', RWS, RWS + 3, 1024 * i)
    a('v_lshrrev_b32 v1, 3, v%d', vLANE)
    a('v_mul_u32_u24 v1, %d, v1', VROW - 128)
    a('v_add_u32 v1, %d, v1', VOFF + 640 * 16 - 160 * 1024)
    a('v_mul_lo_u32 v1, v1, s%d', sCW)
    a('v_add_u32 v1, v1, v2')
    a('s_mul_i32 s76, s%d, 0x3f803f80', sCW)
    a('v_mov_b32 v8, 0x3f803f80')
    a('v_mov_b32 v9, s76')
    a('v_mov_b32 v10, v8')
    a('v_mov_b32 v11, s76')
    a('s_add_u32 s76, s74, %d', 160 * 1024)
    a('buffer_store_dwordx4 v[8:11], v1, s[%d:%d], s76 offen sc1', RWS, RWS + 3)
    if OPT['w7pre']:
        srd(R3, sWQ, 640 * 3840)
        a('s_bitcmp1_b32 s%d, 0', sXCD)
        a('s_mov_b32 s76, 0x96521')
        a('s_cselect_b32 s76, 0x87430, s76')
        a('s_add_u32 s77, s%d, 1', sXCD)
        a('s_and_b32 s77, s77, -2')
        a('s_and_b32 s78, s%d, 1', sI)
        a('s_lshl2_add_u32 s78, s78, s%d', sW)
        a('s_mul_i32 s78, s78, %d', 8 * 3840)
        a('s_add_u32 s78, s78, %d', 7 * 256)
        a('v_bfe_u32 v13, v%d, 1, 3', vLANE)
        a('v_mul_u32_u24 v13, 3840, v13')
        a('v_and_b32 v14, 1, v%d', vLANE)
        a('v_lshl_add_u32 v13, v14, 7, v13')
        a('v_lshrrev_b32 v14, 4, v%d', vLANE)
        a('v_lshlrev_b32 v14, 2, v14')
        for k in range(2):
            if k:
                a('v_mov_b32 v14, 16')
            a('v_bfe_u32 v15, s76, v14, 4')
            a('v_add_u32 v15, s77, v15')
            a('v_subrev_u32 v12, 10, v15')
            a('v_min_u32 v15, v15, v12')
            a('v_mul_u32_u24 v15, 245760, v15')
            a('v_add_u32 v15, v15, v13')
            a('buffer_load_dword v111, v15, s[%d:%d], s78 offen', R3, R3 + 3)
    a.label('L_noconst')
    if OPT['codepre'] == 1:
        a.c('pull the code into L2: each wave of an XCD touches a few lines')
        a('s_getpc_b64 s[76:77]')
        a.label('L_pc')
        a('s_sub_u32 s76, s76, L_pc - L_go')
        a('s_subb_u32 s77, s77, 0')
        a('s_lshl2_add_u32 s78, s%d, s%d', sI, sW)
        a('s_mul_i32 s78, s78, 3')
        a('v_min_u32 v1, 2, v%d', vLANE)
        a('v_add_u32 v1, s78, v1')
        a('v_min_u32 v1, (L_codeend - L_go) / 128 - 1, v1')
        a('v_lshlrev_b32 v1, 7, v1')
        a('global_load_dword v110, v1, s[76:77]')
    a.c('LDS fragment addresses for the QKV GEMM')
    if OPT['q16']:
        a('v_and_b32 v1, 15, v%d', vLANE)
        a('v_lshrrev_b32 v2, 4, v%d', vLANE)
        a('v_lshrrev_b32 v3, 1, v1')
        a('v_xor_b32 v3, v3, v2')
        a('v_lshlrev_b32 v3, 4, v3')
        a('v_lshl_add_u32 v3, v1, 7, v3')
        a('s_lshl_b32 s76, s%d, 13', sTW)
        a('v_add_u32 v128, s76, v3')
        a('v_xor_b32 v129, 64, v128')
        a('v_add_u32 v130, 0x10000, v128')
        a('v_add_u32 v131, 0x10000, v129')
        a('v_bfe_u32 v4, v%d, 2, 2', vLANE)
        a('v_lshl_add_u32 v5, v2, 3, v4')
        a('v_lshlrev_b32 v5, 8, v5')
        a('v_and_b32 v6, 1, v2')
        a('v_mul_u32_u24 v6, 3, v6')
        a('v_lshl_or_b32 v6, v4, 2, v6')
        a('s_lshl_b32 s76, s%d, 3', sCW)
        a('v_xor_b32 v6, s76, v6')
        a('v_lshl_add_u32 v5, v6, 4, v5')
        a('v_and_b32 v6, 1, v%d', vLANE)
        a('v_lshl_add_u32 v5, v6, 3, v5')
        a('v_add_u32 v132, 16384, v5')
        return
    a('v_and_b32 v1, 31, v%d', vLANE)
    a('v_lshrrev_b32 v2, 5, v%d', vLANE)
    a('v_bfe_u32 v3, v1, 1, 3')
    a('v_xor_b32 v3, v3, v2')
    a('v_lshlrev_b32 v3, 4, v3')
    a('v_lshl_add_u32 v3, v1, 7, v3')
    a('s_lshl_b32 s76, s%d, 13', sTW)
    a('v_add_u32 v3, s76, v3')
    for ks in range(4):
        a('v_xor_b32 v%d, %d, v3', vXA + ks, ks << 5)
        a('v_add_u32 v%d, 0x10000, v%d', vXA + 4 + ks, vXA + ks)
    a('v_bfe_u32 v4, v%d, 2, 2', vLANE)
    a('v_lshl_add_u32 v5, v2, 3, v4')
    a('v_lshlrev_b32 v5, 8, v5')
    a('v_bfe_u32 v6, v%d, 4, 1', vLANE)
    a('v_and_b32 v7, 1, v%d', vLANE)
    a('v_lshl_add_u32 v6, v6, 1, v7')
    a('s_lshl_b32 s76, s%d, 3', sCW)
    a('v_add_u32 v6, s76, v6')
    a('v_lshlrev_b32 v4, 2, v4')
    a('v_xor_b32 v6, v6, v4')
    a('v_lshl_add_u32 v5, v6, 4, v5')
    a('v_bfe_u32 v7, v%d, 1, 1', vLANE)
    a('v_lshl_add_u32 v5, v7, 3, v5')
    a('v_add_u32 v%d, 16384, v5', vWA)
    a('v_xor_b32 v%d, 64, v%d', vWA + 1, vWA)
    a('v_add_u32 v%d, 0x10000, v%d', vWA + 2, vWA)
    a('v_add_u32 v%d, 0x10000, v%d', vWA + 3, vWA + 1)

def a_qloop(vt):
    F = [64, 80]
    def reads(st, ks, f):
        slot = (st + 1) % 4
        hi, lo = slot >> 1, (slot & 1) * 32768
        r = []
        for T in range(2):
            r.append('ds_read_b128 %s, v%d offset:%d' % (v(f + 4 * T, 4), vXA + 4 * hi + ks, lo + 4096 * T))
        for Tc in range(2):
            for rd in range(2):
                r.append('ds_read_b64_tr_b16 %s, v%d offset:%d' % (v(f + 8 + 4 * Tc + 2 * rd, 2), vWA + 2 * hi + Tc,
                                                                  lo + (16 * ks + 4 * rd) * 256))
        return [r[0], r[2], r[3], r[1], r[4], r[5]]
    def mfma(f, i, j, first):
        acc = (2 * i + j) * 16
        A = f + 4 * i if vt else f + 8 + 4 * i
        B = f + 8 + 4 * j if vt else f + 4 * j
        if OPT['hack16']:
            o = 8 if f == F[1] else 0
            B2 = f + 8 + 4 * (1 - j) if vt else f + 4 * (1 - j)
            return 'v_mfma_f32_16x16x32_bf16 %s, %s, %s, %s\nv_mfma_f32_16x16x32_bf16 %s, %s, %s, %s' % (
                v(acc + o, 4), v(A, 4), v(B, 4), v(acc + o, 4), v(acc + o + 4, 4), v(A, 4), v(B2, 4), v(acc + o + 4, 4))
        return 'v_mfma_f32_32x32x16_bf16 %s, %s, %s, %s' % (v(acc, 16), v(A, 4), v(B, 4), '0' if first else v(acc, 16))
    if OPT['hack16']:
        for i_ in range(64):
            a('v_mov_b32 v%d, 0', i_)
    a('s_barrier')
    for r in reads(0, 0, F[0]):
        a(r)
    for st in range(10):
        for ks in range(4):
            cur, nxt = F[ks & 1], F[(ks + 1) & 1]
            first = st == 0 and ks == 0
            if st == 0 and ks == 3:
                a.label('L_pgV' if vt else 'L_pgQ')
            a('s_waitcnt lgkmcnt(0)')
            if ks == 3:
                a('s_barrier')
                rr = reads(st + 1, 0, nxt) if st < 9 else []
            else:
                rr = reads(st, ks + 1, nxt)
            if st == 9 and ks == 3:
                a(mfma(cur, 0, 0, False))
                a(mfma(cur, 0, 1, False))
                return [mfma(nxt, 1, 1, False), mfma(cur, 1, 0, False), mfma(cur, 1, 1, False)]
            if OPT['hack16'] == 2 and not (st == 9 and ks >= 2):
                ms = '\n'.join(mfma(cur, i, j, first) for i in range(2) for j in range(2)).split('\n')
                for i, m in enumerate(ms):
                    a(m)
                    for r in rr[2 * i:2 * i + 2]:
                        a(r)
                continue
            a(mfma(cur, 0, 0, first))
            for r in rr[:3]:
                a(r)
            a(mfma(cur, 0, 1, first))
            for r in rr[3:]:
                a(r)
            a(mfma(cur, 1, 0, first))
            if not (st == 9 and ks == 2):
                a(mfma(cur, 1, 1, first))

def tailweave(ms, work):
    a(ms[0])
    a('s_nop 6')
    a(ms[1])
    a('s_nop 1')
    for o in work[:6]:
        a(o)
    a(ms[2])
    for o in work[6:]:
        a(o)

def a_pack_wo():
    a('s_lshl2_add_u32 s76, s%d, s%d', sRB, sW)
    a('s_mul_i32 s77, s76, 12800')
    a('s_add_u32 s78, s14, s77')
    a('s_addc_u32 s79, s15, 0')
    a('s_mul_i32 s76, s76, 10')
    a('s_mov_b32 s80, 0x%x', WS_WP)
    for n in range(13):
        a('v_add_u32 v60, %d, v%d', 64 * n, vLANE)
        if n == 12:
            a('v_min_u32 v60, 799, v60')
        a('v_lshlrev_b32 v61, 4, v60')
        a('global_load_dwordx4 %s, v61, s[78:79]', v(4 * n, 4))
        a('v_mul_u32_u24 v61, 820, v60')
        a('v_lshrrev_b32 v61, 16, v61')
        a('v_mul_u32_u24 v62, 80, v61')
        a('v_sub_u32 v60, v60, v62')
        a('v_add_u32 v61, s76, v61')
        a('v_mul_u32_u24 v62, 6554, v60')
        a('v_lshrrev_b32 v62, 16, v62')
        a('v_mul_u32_u24 v62, %d, v62', 6400 - 10)
        a('v_add_u32 v60, v60, v62')
        a('v_and_b32 v62, 0xfff3, v61')
        a('v_and_b32 v63, 4, v61')
        a('v_lshl_or_b32 v62, v63, 1, v62')
        a('v_bfe_u32 v63, v61, 3, 1')
        a('v_lshl_or_b32 v62, v63, 2, v62')
        a('v_mul_u32_u24 v62, 10, v62')
        a('v_add_lshl_u32 v%d, v60, v62, 4', 64 + n)
    for n in range(13):
        a('s_waitcnt vmcnt(12)')
        a('buffer_store_dwordx4 %s, v%d, s[%d:%d], s80 offen sc1', v(4 * n, 4), 64 + n, RWS, RWS + 3)
    if OPT['wopack'] > 1:
        a('v_min_u32 v60, 49, v%d', vLANE)
        a('v_lshl_add_u32 v60, v60, 7, s77')
        a('v_add_u32 v61, 6400, v60')
        for p in (sCRE, sCIM):
            a('global_load_dword v111, v60, s[%d:%d]', p, p + 1)
            a('global_load_dword v111, v61, s[%d:%d]', p, p + 1)

def q16_waddr(vt):
    if vt:
        a('v_bfe_u32 v1, v%d, 1, 1', vLANE)
    else:
        a('v_and_b32 v1, 3, v%d', vLANE)
    a('v_lshlrev_b32 v1, 4, v1')
    a('v_xor_b32 v132, v1, v132')
    for C in range(1, 4):
        a('v_xor_b32 v%d, %d, v132', 132 + C, 32 * C if vt else 64 * (C >> 1) + 8 * (C & 1))
    for C in range(4):
        a('v_add_u32 v%d, 0x10000, v%d', 136 + C, 132 + C)

def q16_loop(vt):
    F = [64, 96]
    def reads(st, ks, f):
        slot = (st + 1) % 4
        hi, lo = slot >> 1, (slot & 1) * 32768
        x = ['ds_read_b128 %s, v%d offset:%d' % (v(f + 4 * T, 4), 128 + 2 * hi + ks, lo + 2048 * T) for T in range(4)]
        w = ['ds_read_b64_tr_b16 %s, v%d offset:%d' % (v(f + 16 + 4 * C + 2 * rd, 2), 132 + 4 * hi + C, lo + (32 * ks + 4 * rd) * 256)
             for C in range(4) for rd in range(2)]
        return [x[0], w[0], w[1], x[1], w[2], w[3], x[2], w[4], w[5], x[3], w[6], w[7]]
    def mfmas(f, first):
        o = []
        order = [(i, (3 - j if (i & 1) and OPT['snake'] == 1 else j)) for i in range(4) for j in range(4)]
        if OPT['snake'] == 2:
            order = [(2 * p + (s_ ^ (j & 1)), j) for p in range(2) for j in range(4) for s_ in range(2)]
        for i, j in order:
            if True:
                acc = 16 * i + 4 * j
                A = f + 4 * i if vt else f + 16 + 4 * i
                B = f + 16 + 4 * j if vt else f + 4 * j
                o.append('v_mfma_f32_16x16x32_bf16 %s, %s, %s, %s' % (v(acc, 4), v(A, 4), v(B, 4), '0' if first else v(acc, 4)))
        return o
    a('s_barrier')
    for r in reads(0, 0, F[0]):
        a(r)
    for st in range(10):
        for ks in range(2):
            if st == OPT['pgst'] and ks == 1:
                a.label('L_pgV' if vt else 'L_pgQ')
            a('s_waitcnt lgkmcnt(0)')
            if ks == 1:
                a('s_barrier')
                rr = reads(st + 1, 0, F[0]) if st < 9 else []
            else:
                rr = reads(st, 1, F[1])
            ms = mfmas(F[ks], st == 0 and ks == 0)
            if st == 9 and ks == 1:
                for m in ms[:8]:
                    a(m)
                return ms[8:]
            k = 0
            for i, m in enumerate(ms):
                a(m)
                while k < min(12, (i + 1) * 12 // OPT['qspread']):
                    a(rr[k])
                    k += 1

def q16_tail(ms, work):
    k = 0
    for i, m in enumerate(ms):
        a(m)
        if i < (3 if OPT['snake'] == 1 else 2):
            a('s_nop 1')
            continue
        for _ in range(2):
            if '\n' not in work[k]:
                a(work[k])
                k += 1
    for o in work[k:]:
        a(o)

def q16_qk():
    q16_waddr(False)
    a('v_and_b32 v1, 15, v%d', vLANE)
    a('v_lshrrev_b32 v2, 4, v%d', vLANE)
    a('v_lshlrev_b32 v1, 4, v1')
    a('v_lshl_add_u32 v140, v2, 10, v1')
    a('s_lshl1_add_u32 s76, s%d, s%d', sCG, sCW)
    a('s_lshl_b32 s77, s76, 13')
    a('s_add_u32 s77, s77, s74')
    a('s_add_u32 s78, s77, 4096')
    a('s_mul_i32 s79, s%d, 3', sCW)
    a('s_add_u32 s79, s79, s%d', sCG)
    for P in range(2):
        a('s_sub_u32 s80, %d, s79', 17 + P)
        a('s_mul_i32 s81, s80, 52')
        a('s_lshr_b32 s81, s81, 8')
        a('s_mul_i32 s81, s81, 5')
        a('s_sub_u32 s80, s80, s81')
        a('s_lshl_b32 s81, s80, 4')
        a('s_bfm_b64 s[%d:%d], 16, s81', 20 + 2 * P, 21 + 2 * P)
        a('s_cmp_lt_u32 s80, 4')
        a('s_cselect_b64 s[%d:%d], s[%d:%d], 0', 20 + 2 * P, 21 + 2 * P, 20 + 2 * P, 21 + 2 * P)
    a('s_mov_b32 s80, 0x%x', f2u(math.log2(math.e) / math.sqrt(20.0)))
    ms = q16_loop(False)
    def group(P, u, scale):
        o = []
        R = 152 + 8 * (2 * P + u)
        for k, T in enumerate((u, u + 2)):
            for s_ in range(2):
                acc = 16 * (2 * P + s_) + 4 * T
                if scale:
                    o += ['v_mul_f32 v%d, s80, v%d' % (acc + e, acc + e) for e in range(4)]
                o += ['v_cvt_pk_bf16_f32 v%d, v%d, v%d' % (R + 4 * k + 2 * s_ + q, acc + 2 * q, acc + 2 * q + 1) for q in range(2)]
        o.append('s_mov_b64 exec, s[%d:%d]\nv_swap_b32 v%d, v%d\nv_swap_b32 v%d, v%d\ns_mov_b64 exec, -1' % (20 + 2 * P, 21 + 2 * P, R + 2, R + 4, R + 3, R + 5))
        for k, T in enumerate((u, u + 2)):
            o.append('buffer_store_dwordx4 %s, v140, s[%d:%d], s%d offen offset:%d QSC' % (v(R + 4 * k, 4), RWS, RWS + 3, 77 + P, 256 * T))
        return o
    a('s_cmp_ge_u32 s%d, 5', sCG)
    a('s_cbranch_scc1 L_noscale')
    q16_tail(ms, group(0, 0, True) + group(0, 1, True))
    a('s_mov_b32 s81, s80')
    for i in range(32, 64, 2):
        a('v_pk_mul_f32 %s, %s, s[80:81]', v(i, 2), v(i, 2))
    a('s_branch L_qk2')
    a.label('L_noscale')
    q16_tail(ms, group(0, 0, False) + group(0, 1, False))
    a.label('L_qk2')
    for o in group(1, 0, False) + group(1, 1, False):
        a(o)
    stamp('A', 'qloop')

def q16_v():
    q16_waddr(True)
    a('s_lshl1_add_u32 s76, s%d, s%d', sCG, sCW)
    a('v_and_b32 v1, 15, v%d', vLANE)
    a('v_lshrrev_b32 v2, 4, v%d', vLANE)
    a('v_mul_u32_u24 v2, %d, v2', VROW)
    a('v_lshl_add_u32 v140, v1, 4, v2')
    a('s_sub_u32 s76, s76, 20')
    a('s_lshl_b32 s76, s76, 10')
    a('s_add_u32 s76, s76, s74')
    a('s_add_u32 s76, s76, %d', VOFF)
    a('s_add_u32 s77, s76, %d', 4 * VROW)
    ms = q16_loop(True)
    work = []
    for P in range(2):
        for C in range(4):
            R = 152 + 4 * (4 * P + C)
            for s_ in range(2):
                acc = 16 * (2 * P + s_) + 4 * C
                work += ['v_cvt_pk_bf16_f32 v%d, v%d, v%d' % (R + 2 * s_ + q, acc + 2 * q, acc + 2 * q + 1) for q in range(2)]
            work.append('buffer_store_dwordx4 %s, v140, s[%d:%d], s%d offen offset:%d QSC' % (v(R, 4), RWS, RWS + 3, 76 + P, 256 * C))
    q16_tail(ms, work)
    if DIAG:
        nstamp['A'].pop()
    stamp('A', 'qloop')

def q32_qk():
    a('v_and_b32 v1, 31, v%d', vLANE)
    a('v_lshrrev_b32 v2, 5, v%d', vLANE)
    a('v_lshlrev_b32 v1, 4, v1')
    a('v_lshl_add_u32 v108, v2, 10, v1')
    a('s_lshl1_add_u32 s76, s%d, s%d', sCG, sCW)
    a('s_lshl_b32 s77, s76, 13')
    a('s_add_u32 s77, s77, s74')
    a('s_add_u32 s78, s77, 4096')
    a('s_mul_i32 s79, s%d, 3', sCW)
    a('s_add_u32 s79, s79, s%d', sCG)
    for _ in range(2):
        a('s_cmp_ge_u32 s79, 5')
        a('s_cselect_b32 s80, 5, 0')
        a('s_sub_u32 s79, s79, s80')
    for Tc in range(2):
        for u in range(2):
            m = 20 + 2 * (2 * Tc + u)
            a('s_cmp_eq_u32 s79, %d', (2 - 4 * Tc - 2 * u) % 5)
            a('s_cselect_b32 s%d, -1, 0', m)
            a('s_cmp_eq_u32 s79, %d', (1 - 4 * Tc - 2 * u) % 5)
            a('s_cselect_b32 s%d, -1, 0', m + 1)
    c0 = f2u(math.log2(math.e) / math.sqrt(20.0))
    a('s_mov_b32 s80, 0x%x', c0)
    ms = a_qloop(False)
    def group(Tc, u, scale):
        o = []
        P = 120 + 8 * (2 * Tc + u)
        for T in range(2):
            acc = (2 * Tc + T) * 16 + 8 * u
            if scale:
                o += ['v_mul_f32 v%d, s80, v%d' % (acc + e, acc + e) for e in range(8)]
            o += ['v_cvt_pk_bf16_f32 v%d, v%d, v%d' % (P + 4 * T + q, acc + 2 * q, acc + 2 * q + 1) for q in range(4)]
        m = 20 + 2 * (2 * Tc + u)
        o.append('s_mov_b64 exec, s[%d:%d]\nv_swap_b32 v%d, v%d\nv_swap_b32 v%d, v%d\ns_mov_b64 exec, -1' % (m, m + 1, P + 2, P + 4, P + 3, P + 5))
        for T in range(2):
            o.append('buffer_store_dwordx4 %s, v108, s[%d:%d], s%d offen offset:%d QSC' % (v(P + 4 * T, 4), RWS, RWS + 3,
                     77 + Tc, 2048 * u + 512 * T))
        return o
    a('s_cmp_ge_u32 s%d, 5', sCG)
    a('s_cbranch_scc1 L_noscale')
    tailweave(ms, group(0, 0, True) + group(0, 1, True))
    a('s_mov_b32 s81, s80')
    for i in range(32, 64, 2):
        a('v_pk_mul_f32 %s, %s, s[80:81]', v(i, 2), v(i, 2))
    a('s_branch L_qk2')
    a.label('L_noscale')
    tailweave(ms, group(0, 0, False) + group(0, 1, False))
    a.label('L_qk2')
    for o in group(1, 0, False) + group(1, 1, False):
        a(o)
    stamp('A', 'qloop')

def q32_v():
    a('s_lshl1_add_u32 s76, s%d, s%d', sCG, sCW)
    a('v_and_b32 v1, 31, v%d', vLANE)
    tau(108, 1, 2)
    if OPT['klin']:
        a('v_xor_b32 v3, v108, v1')
        a('v_mul_u32_u24 v3, 136, v3')
        for k in range(8):
            a('v_xor_b32 v%d, v3, v%d', vXA + k, vXA + k)
    if OPT['klin'] & 2:
        a('v_bfe_u32 v3, v%d, 1, 1', vLANE)
        a('v_xor_b32 v3, v3, v%d', vLANE)
        a('v_and_b32 v3, 1, v3')
        a('v_mul_u32_u24 v3, 24, v3')
        for k in range(4):
            a('v_xor_b32 v%d, v3, v%d', vWA + k, vWA + k)
        a('v_mov_b32 v108, v1')
    a('v_lshrrev_b32 v2, 5, v%d', vLANE)
    a('v_mul_u32_u24 v2, %d, v2', VROW)
    a('v_lshl_add_u32 v108, v108, 4, v2')
    a('s_sub_u32 s76, s76, 20')
    a('s_lshl_b32 s76, s76, 10')
    a('s_add_u32 s76, s76, s74')
    a('s_add_u32 s76, s76, %d', VOFF)
    for k in range(1, 4):
        a('s_add_u32 s%d, s76, %d', 76 + k, 2 * VROW * k)
    ms = a_qloop(True)
    work = []
    n = 0
    for T in range(2):
        for Tc in range(2):
            for m in range(2):
                P = 120 + 4 * n
                n += 1
                acc = (2 * T + Tc) * 16 + 8 * m
                work += ['v_cvt_pk_bf16_f32 v%d, v%d, v%d' % (P + q, acc + 2 * q, acc + 2 * q + 1) for q in range(4)]
                work.append('buffer_store_dwordx4 %s, v108, s[%d:%d], s%d offen offset:%d QSC' % (v(P, 4), RWS, RWS + 3, 76 + 2 * T + m, 512 * Tc))
    tailweave(ms, work)
    if DIAG:
        nstamp['A'].pop()
    stamp('A', 'qloop')

def a_qphase():
    a('s_cmp_ge_u32 s%d, 10', sCG)
    a('s_cbranch_scc1 L_qV')
    if OPT['q16']:
        q16_qk()
    else:
        q32_qk()
    a('s_branch L_qdone')
    a('.PAD L_qV L_pgV')
    a.label('L_qV')
    a('s_cmp_eq_u32 s%d, 15', sCG)
    a('s_cbranch_scc0 L_qV2')
    a('s_lshl_b32 s76, s%d, 4', sRB)
    a('v_mov_b32 v16, s76')
    a('v_mov_b32 v17, 1')
    a('s_waitcnt vmcnt(%d)', 2 if OPT['w7pre'] else 0)
    a('s_barrier')
    a('s_cmp_eq_u32 s%d, 0', sW)
    a('s_cbranch_scc0 L_nosig')
    a('s_mov_b64 exec, 1')
    a('global_store_dword v16, v17, s[%d:%d] sc1', sDBG, sDBG + 1)
    a('s_mov_b64 exec, -1')
    a.label('L_nosig')
    if OPT['tlb']:
        a('v_lshlrev_b32 v1, %d, v%d', OPT['tlb'], vLANE)
        a('s_lshl_b32 s76, s%d, %d', sW, OPT['tlb'] + 6)
        srd(R4, sOUT, 2048 * 1280 * 4)
        a('buffer_load_dword v111, v1, s[%d:%d], s76 offen sc1', RWS, RWS + 3)
        a('buffer_load_dword v111, v1, s[%d:%d], s76 offen sc1', R4, R4 + 3)
        a('v_min_u32 v1, 12, v%d', vLANE)
        a('v_lshlrev_b32 v1, 16, v1')
        a('v_mov_b32 v2, 0')
        for p in (14, sCRE, sCIM):
            a('global_load_dword v111, v1, s[%d:%d]', p, p + 1)
        a('global_load_dword v111, v2, s[%d:%d]', sDSK, sDSK + 1)
    if OPT['l2pre']:
        a('s_barrier')
        a('s_and_b32 s76, s%d, 1', sI)
        a('s_lshl1_add_u32 s76, s76, s%d', sCW)
        a('s_and_b32 s77, s%d, 1', sXCD)
        a('s_lshl2_add_u32 s76, s77, s76')
        a('s_mul_i32 s76, s76, %d', 80 * 1280)
        a('v_min_u32 v1, 39, v%d', vLANE)
        a('v_mul_u32_u24 v1, 1280, v1')
        a('v_add_u32 v2, %d, v1', 40 * 1280)
        for hf in range(2):
            a('s_and_b32 s77, s%d, 1', sI)
            a('s_lshl1_add_u32 s77, s77, s%d', sCW)
            a('s_lshl1_add_u32 s77, s77, %d', hf)
            a('s_mul_i32 s77, s77, 5')
            a('s_lshr_b32 s77, s77, 2')
            a('s_add_u32 s78, s%d, 1', sXCD)
            a('s_lshr_b32 s78, s78, 1')
            a('s_add_u32 s%d, s77, s78', 80 + hf)
        for d in (4, 9, 1, 6, 3, 8)[:OPT['l2pre']]:
            for hf in range(2):
                a('s_add_u32 s77, s%d, %d', 80 + hf, d)
                for _ in range(2):
                    a('s_cmp_ge_u32 s77, 10')
                    a('s_cselect_b32 s78, 10, 0')
                    a('s_sub_u32 s77, s77, s78')
                a('s_lshl_b32 s77, s77, 7')
                a('s_add_u32 s77, s77, s76')
                a('buffer_load_dword v111, v%d, s[%d:%d], s77 offen', 1 + hf, R6, R6 + 3)
    if OPT['xpre']:
        a('s_and_b32 s76, s%d, 1', sI)
        a('s_lshl1_add_u32 s76, s76, s%d', sTW)
        a('s_xor_b32 s77, s76, %d', OPT['flip'])
        a('s_mul_i32 s77, s77, 5')
        a('s_lshr_b32 s77, s77, 1')
        a('s_add_u32 s78, s%d, 9', sXCD)
        a('s_lshr_b32 s78, s78, 1')
        a('s_add_u32 s77, s77, s78')
        a('s_mul_i32 s78, s%d, 5', sCW)
        a('s_add_u32 s77, s77, s78')
        for _ in range(2):
            a('s_cmp_ge_u32 s77, 10')
            a('s_cselect_b32 s78, 10, 0')
            a('s_sub_u32 s77, s77, s78')
        a('s_lshl_b32 s77, s77, 7')
        a('s_and_b32 s78, s%d, -4', sRB)
        a('s_add_u32 s76, s76, s78')
        a('s_mul_i32 s76, s76, %d', 128 * 1280)
        a('s_add_u32 s77, s77, s76')
        a('v_mul_u32_u24 v3, 1280, v%d', vLANE)
        a('buffer_load_dword v111, v3, s[%d:%d], s77 offen', R5, R5 + 3)
        a('s_add_u32 s77, s77, %d', 64 * 1280)
        a('buffer_load_dword v111, v3, s[%d:%d], s77 offen', R5, R5 + 3)
    if OPT['wopack']:
        a_pack_wo()
    for _ in range(9 if OPT['l2pre'] else 10):
        a('s_barrier')
    if DIAG:
        nstamp['A'].pop()
    stamp('A', 'qloop')
    a('s_branch L_qdone')
    a.label('L_qV2')
    if OPT['q16']:
        q16_v()
    else:
        q32_v()
    if OPT['pgalign']:
        a('s_branch L_qdone')
    a('.PAD L_qdone L_pgO')
    a.label('L_qdone')
    if OPT['amark'] == 2:
        a_mark()

vO, vS = 0, 64
KV = [128, 156]
K1A, K1B, K2, VA0, VA1, VB0, VB1 = 0, 4, 8, 12, 16, 20, 24
vQ1, vQ2 = 184, 200
vK1, vK2, vV, vIDX, vNC, vM = 208, 209, 210, 214, 216, 220
vT = 224
vMG = 240
sQH, sKH, sODD, sP5, sOFF, sKV0, sPASS, sCNT = 76, 77, 78, 79, 80, 93, 82, 83
sKVB, sKVE = 70, 71

def a_att_setup():
    a('s_and_b32 s%d, s%d, 1', sQH, sW)
    a('s_lshr_b32 s%d, s%d, 1', sKH, sW)
    a('s_and_b32 s%d, s%d, 1', sODD, sHD)
    a('s_lshr_b32 s85, s%d, 1', sHD)
    a('s_mul_i32 s%d, s85, 5', sP5)
    a('s_mul_i32 s%d, s%d, %d', sKVB, sKH, 16 * BLK)
    a('s_add_u32 s%d, s%d, %d', sKVE, sKVB, 16 * BLK)
    a('s_and_b32 s86, s%d, %d', sQB, OPT['rotm'])
    a('s_mul_i32 s86, s86, %d', 2 * BLK * OPT['rot'])
    a('s_add_u32 s%d, s%d, s86', sKV0, sKVB)
    srd(R3, sWS, 's%d' % sKVE)
    srd(R4, sOUT, 2048 * 1280 * 4)
    a('s_mov_b32 s%d, 0', sPASS)
    if OPT['peel']:
        a('s_mov_b32 s84, 0')
    i, h, t, x = vT, vT + 1, vT + 2, vT + 3
    a('v_and_b32 v%d, 31, v%d', i, vLANE)
    a('v_lshrrev_b32 v%d, 5, v%d', h, vLANE)
    tau(t, i, x)
    a('s_mul_i32 s86, s%d, 3', sODD)
    a('s_add_u32 s86, s86, s%d', sP5)
    a('s_lshl_b32 s87, s86, 10')
    a('v_lshl_add_u32 v%d, v%d, 10, s87', x, h)
    a('v_lshl_add_u32 v%d, v%d, 4, v%d', vT + 4, i, x)
    a('v_lshl_add_u32 v%d, v%d, 4, v%d', vK1, i if OPT['klin'] else t, x)
    a('v_add_u32 v%d, %d, v%d', vK1, 80 * 1024, vK1)
    a('s_add_u32 s87, s%d, 2', sP5)
    if OPT['q16']:
        a('s_xor_b32 s88, s87, s%d', sODD)
        a('s_and_b32 s88, s88, 1')
        a('s_lshl1_add_u32 s87, s87, s88')
    else:
        a('s_lshl1_add_u32 s87, s87, s%d', sODD)
    a('s_lshl_b32 s87, s87, 9')
    a('v_lshl_add_u32 v%d, v%d, 4, s87', vT + 5, i)
    a('v_mov_b32 v%d, 0x%x', x, OOB)
    a('v_cndmask_b32 v%d, v%d, v%d, s[%d:%d]', vT + 5, vT + 5, x, sHI, sHI + 1)
    a('s_add_u32 s87, s87, %d', 80 * 1024)
    a('v_lshl_add_u32 v%d, v%d, 4, s87', vK2, i if OPT['klin'] else t)
    a('v_mov_b32 v%d, %d', x, 160 * 1024)
    a('v_cndmask_b32 v%d, v%d, v%d, s[%d:%d]', vK2, vK2, x, sHI, sHI + 1)
    a('s_mul_i32 s86, s%d, 20', sHD)
    a('s_lshl2_add_u32 s87, s%d, s86', sODD)
    a('s_lshl_b32 s88, s%d, 4', sODD)
    a('s_sub_u32 s88, s86, s88')
    a('v_add_u32 v%d, s87, v%d', vV, t)
    a('v_add_u32 v%d, s88, v%d', x, i)
    a('v_cmp_le_u32 vcc, 16, v%d', i)
    a('v_mov_b32 v%d, %d', vT + 6, VOFF + 640 * 16)
    a('s_nop 0')
    a('v_cndmask_b32 v%d, v%d, v%d, vcc', vV, vV, x)
    a('v_cmp_le_u32 vcc, 20, v%d', i)
    a('v_mul_u32_u24 v%d, %d, v%d', x, VROW, h)
    a('v_add_u32 v%d, %d, v%d', x, VOFF, x)
    a('v_lshl_add_u32 v%d, v%d, 4, v%d', vV, vV, x)
    a('v_cndmask_b32 v%d, v%d, v%d, vcc', vV, vV, vT + 6)
    a('v_cmp_le_u32 vcc, %d, v%d', 21 if OPT['vzero'] else 24, i)
    a('v_mov_b32 v%d, 0x%x', x, OOB)
    a('v_mov_b32 v%d, 0xdddd', vIDX)
    a('v_cndmask_b32 v%d, v%d, v%d, vcc', vV, vV, x)
    for k in range(1, 4):
        a('v_add_u32 v%d, %d, v%d', vV + k, 2 * VROW * k, vV)
    a('s_mul_i32 s87, s85, 40')
    a('s_lshl4_add_u32 s87, s%d, s87', sODD)
    a('s_add_u32 s88, s87, 23')
    a('s_lshr_b32 s87, s87, 7')
    a('s_lshr_b32 s88, s88, 7')
    a('s_add_u32 s89, s86, 19')
    a('s_lshr_b32 s86, s86, 7')
    a('s_lshr_b32 s89, s89, 7')
    a('v_lshrrev_b32 v%d, 4, v%d', x, vLANE)
    a('s_add_u32 s90, s87, 5')
    a('v_mov_b32 v%d, s90', vF1A)
    for sel, (reg, add) in enumerate(((88, 5), (86, 10), (89, 10))):
        a('s_add_u32 s90, s%d, %d', reg, add)
        a('v_cmp_eq_u32 vcc, %d, v%d', sel + 1, x)
        a('v_mov_b32 v%d, s90', vT + 6)
        a('s_nop 0')
        a('v_cndmask_b32 v%d, v%d, v%d, vcc', vF1A, vF1A, vT + 6)
    a('v_and_b32 v%d, 15, v%d', vT + 6, vLANE)
    a('v_lshl_add_u32 v%d, v%d, 4, v%d', vF1A, vF1A, vT + 6)
    a('v_lshlrev_b32 v%d, 7, v%d', vF1A, vF1A)
    a('v_mov_b32 v%d, s87', vF1A - 1)
    a('v_mov_b32 v%d, s88', vT + 6)
    a('v_cndmask_b32 v%d, v%d, v%d, s[%d:%d]', vF1A - 1, vF1A - 1, vT + 6, sHI, sHI + 1)
    a('v_bfe_u32 v%d, v%d, 4, 1', vT + 6, vLANE)
    a('v_lshl_add_u32 v%d, v%d, 4, v%d', vF1A - 1, vF1A - 1, vT + 6)
    a('s_lshl_b32 s90, s%d, 1', sQB)
    a('v_add_lshl_u32 v%d, v%d, s90, 7', vF1A - 1, vF1A - 1)
    a('v_and_b32 v%d, 3, v%d', vAPW, vLANE)
    a('v_lshlrev_b32 v%d, 8, v%d', vAPW, vAPW)
    a('v_lshlrev_b32 v%d, 2, v%d', vAPW + 1, vLANE)
    a('v_add_u32 v%d, %d, v%d', vAPW + 1, L_PW, vAPW + 1)
    a('v_add_u32 v%d, v%d, v%d', vAPW, vAPW, vAPW + 1)
    a('s_lshl1_add_u32 s90, s%d, s%d', sQB, sQH)
    a('s_lshl1_add_u32 s90, s90, s%d', sKH)
    a('s_mul_i32 s92, s90, %d', BLK)
    a('s_xor_b32 s91, s90, 1')
    a('s_mul_i32 s91, s91, %d', BLK)
    a('s_mov_b32 s10, 0x%x', f2u(2.0 ** -4))
    a('s_mov_b32 s11, 0x%x', f2u(2.0 ** 72))
    a('s_mul_i32 s36, s%d, %d', sW, REGSZ)
    a('s_add_u32 s36, s36, %d', L_REG + 8192)
    a('s_xor_b32 s37, s%d, 2', sW)
    a('s_mul_i32 s37, s37, %d', REGSZ)
    a('s_add_u32 s37, s37, %d', L_REG + 8192)
    a('v_lshl_add_u32 v%d, v%d, 4, s36', vMG, vLANE)
    a('v_lshl_add_u32 v%d, v%d, 3, s36', vMG + 1, vLANE)
    a('v_lshl_add_u32 v%d, v%d, 4, s37', vMG + 2, vLANE)
    a('v_lshl_add_u32 v%d, v%d, 3, s37', vMG + 3, vLANE)
    a('v_xor_b32 v%d, 512, v%d', vMG + 4, vPW)
    a('v_add_u32 v%d, 1024, v%d', vMG + 5, vAPW)
    if not OPT['amark']:
        a('v_bfe_u32 v%d, v%d, 4, 1', x, vLANE)
        a('v_mul_u32_u24 v%d, %d, v%d', x, OBLK, x)
        a('v_and_b32 v%d, 15, v%d', t, vLANE)
        a('v_lshl_add_u32 v%d, v%d, 4, v%d', x, t, x)
        a('v_mul_u32_u24 v%d, %d, v%d', t, 2 * OBLK, h)
        a('v_add_u32 v%d, v%d, v%d', vMG + 7, t, x)
        a('v_lshl_add_u32 v%d, v%d, 8, v%d', vMG + 6, h, x)
        a('s_mul_i32 s40, s90, %d', 4 * OBLK)
        a('s_add_u32 s40, s40, 0x%x', WS_O)
        a('s_lshl_b32 s41, s%d, 8', sP5)
        a('s_add_u32 s40, s40, s41')
        a('s_mul_i32 s41, s%d, 768', sODD)
        a('s_add_u32 s41, s41, s40')
        a('s_add_u32 s42, s41, %d', 2 * OBLK)
        a('s_lshl3_add_u32 s40, s%d, s40', sODD)
    a('s_lshl_b32 s43, s90, 5')
    a('s_add_u32 s43, s43, s%d', sHD)
    flagaddr(43, 43, F4, 0)

def a_mark():
    i, h, t, x = vT, vT + 1, vT + 2, vT + 3
    a('s_lshl1_add_u32 s90, s%d, s%d', sQB, sCW)
    a('s_lshl1_add_u32 s90, s90, s%d', sTW)
    a('s_and_b32 s%d, s%d, 1', sODD, sHD)
    a('s_lshr_b32 s85, s%d, 1', sHD)
    a('s_mul_i32 s%d, s85, 5', sP5)
    a('v_lshrrev_b32 v%d, 5, v%d', h, vLANE)
    a('v_bfe_u32 v%d, v%d, 4, 1', x, vLANE)
    a('v_mul_u32_u24 v%d, %d, v%d', x, OBLK, x)
    a('v_and_b32 v%d, 15, v%d', t, vLANE)
    a('v_lshl_add_u32 v%d, v%d, 4, v%d', x, t, x)
    a('v_mul_u32_u24 v%d, %d, v%d', t, 2 * OBLK, h)
    a('v_add_u32 v%d, v%d, v%d', vMG + 7, t, x)
    a('v_lshl_add_u32 v%d, v%d, 8, v%d', vMG + 6, h, x)
    a('s_mul_i32 s40, s90, %d', 4 * OBLK)
    a('s_add_u32 s40, s40, 0x%x', WS_O)
    a('s_lshl_b32 s41, s%d, 8', sP5)
    a('s_add_u32 s40, s40, s41')
    a('s_mul_i32 s41, s%d, 768', sODD)
    a('s_add_u32 s41, s41, s40')
    a('s_add_u32 s42, s41, %d', 2 * OBLK)
    a('s_lshl3_add_u32 s40, s%d, s40', sODD)
    for k in range(4):
        a('v_mov_b32 v%d, -1', 24 + k)
    a('buffer_store_dwordx4 v[24:27], v%d, s[%d:%d], s41 offen sc1', vMG + 6, RWS, RWS + 3)
    a('buffer_store_dwordx4 v[24:27], v%d, s[%d:%d], s42 offen sc1', vMG + 6, RWS, RWS + 3)
    a('buffer_store_dwordx2 v[24:25], v%d, s[%d:%d], s40 offen offset:512 sc1', vMG + 7, RWS, RWS + 3)

def a_b1_setup():
    a('s_mov_b64 s[14:15], s[%d:%d]', sWO, sWO + 1)
    b1_sources(R5, R6, vAB, vAB + 4, 7, 5, 12, 3 if OPT['nodup'] else 2)
    a('s_lshl2_add_u32 s4, s%d, s%d', sRB, sW)
    a('s_mul_i32 s4, s4, %d', 32 * 1280)
    a('s_lshl_b32 s6, s%d, 12', sW)
    stagger(8, 9, OPT['st10'], OPT['flip'], OPT['stagb'])

def a_handoff():
    first = 10 + OPT['st10']
    nst = 8
    chunks = []
    if OPT['alate'] == 2:
        n0 = len(a.lines)
        a_att_setup()
        late = a.lines[n0:]
        del a.lines[n0:]
        if OPT['aearly']:
            late = late[:5] + late[OPT['aearly']:]
        nch = (OPT['eb'] - OPT['adep'] + 1 if OPT['eb'] else OPT['pollat']) - first
        k = 0
        for c in range(nch):
            e = len(late) * (c + 1) // nch
            while e < len(late) and any('cndmask' in x and 'vcc' in x for x in late[e:e + 4]):
                e += 1
            chunks.append(late[k:e])
            k = e
        chunks[-1].append('s_mov_b32 s85, 0x%x' % F1)
        nb = first - 10
        seq = OPT['seq'] or {1: 'bss', 2: 'bsbs', 3: 'bbsbs', 4: 'bbsbsb'}[nb]
        assert seq.count('b') == nb and seq.count('s') == 2
        kk = 0
        for ch in seq:
            if ch == 'b':
                a('s_barrier')
            elif ch == 'z':
                for i_ in range(64):
                    a('v_mov_b32 v%d, 0', vO + i_)
            else:
                if kk == 0 and OPT['fine'] == 1:
                    stamp('A', 'c11')
                a_b1stage(first + kk)
                if OPT['fine'] == 1:
                    stamp('A', 'iss%d' % (12 + kk))
                kk += 1
        if 'z' not in seq:
            for i_ in range(64):
                a('v_mov_b32 v%d, 0', vO + i_)
    else:
        for t in range(10, first):
            a('s_barrier')
            if t == 10:
                if OPT['alate']:
                    a_b1_setup()
                else:
                    for i_ in range(64):
                        a('v_mov_b32 v%d, 0', vO + i_)
        if OPT['fine'] == 1:
            stamp('A', 'c11')
        a_b1stage(first)
        if OPT['fine'] == 1:
            stamp('A', 'iss12')
        if OPT['alate']:
            a_att_setup()
            for i_ in range(64):
                a('v_mov_b32 v%d, 0', vO + i_)
        a_b1stage(first + 1)
        if OPT['fine'] == 1:
            stamp('A', 'iss13')
    lds_ = ['buffer_load_dword v%d, v%d, s[%d:%d], s85 offen sc1' % (104 + k, vF1A - k, RWS, RWS + 3) for k in range(2)]
    a('s_mov_b32 s85, 0x%x', F1)
    NI = 7 - OPT['nodup']
    last = first + 1
    EB = OPT['eb']
    def look(tag):
        a('s_cmp_eq_u32 s%d, 0', sW)
        a('s_cbranch_scc0 L_nopoll%s', tag)
        for l in lds_:
            a(l)
        a.label('L_nopoll%s' % tag)
    def publish(tag):
        a('s_cmp_eq_u32 s%d, 0', sW)
        a('s_cbranch_scc0 L_c%s', tag)
        a('v_and_b32 v104, v104, v105')
        a('v_cmp_eq_u32 vcc, 0, v104')
        a('s_cbranch_vccnz L_c%s', tag)
        setpw(4, 102)
        a('s_waitcnt lgkmcnt(0)')
        a.label('L_c%s' % tag)
    for t in range(first, 20):
        a('s_waitcnt vmcnt(%d)', NI * (last - t))
        if t == first:
            stamp('A', 'qdrain')
        if t == 19:
            publish('19')
        if EB and t == EB:
            publish('e')
        a('s_barrier')
        if EB and t == EB:
            assert last == 19 and not chunks
            a('ds_read_b32 v102, v%d', vAPW + 1)
            a('s_waitcnt lgkmcnt(0)')
            a('v_cmp_gt_u32 vcc, 4, v102')
            a('s_cbranch_vccnz L_notyet')
            batch1()
            for t2 in range(t + 1, 20):
                a('s_waitcnt vmcnt(%d)', NI * (19 - t2) + 8)
                a('s_barrier')
            stamp('A', 'b1load')
            stamp('A', 'f1')
            if DIAG:
                del nstamp['A'][-2:]
            a('s_branch L_att2')
            a.label('L_notyet')
        if EB and t == EB - OPT['adep'] + 1:
            look('e')
        while last < min(19, t + OPT['adep']):
            last += 1
            a_b1stage(last)
        if chunks:
            a.lines.extend(chunks.pop(0))
        if t == OPT['pollat']:
            look('')
    stamp('A', 'b1load')
    a('s_cmp_eq_u32 s%d, 0', sW)
    a('s_cbranch_scc0 L_f1wait')
    a('s_cbranch_vccz L_f1go')
    a('s_mov_b64 exec, vcc')
    pollflags(lds_, 104, sleep=OPT['psleep'])
    setpw(4, 102)
    a.label('L_f1wait')
    waitpw(vAPW + 1, 4, 102, sleep=OPT['gsleep'])
    a.label('L_f1go')
    stamp('A', 'f1')

def kvload0(st, what, soff):
    if what in (K1A, K1B):
        r = KV[st] + what
        return 'buffer_load_dwordx4 %s, v%d, s[%d:%d], s%d offen offset:%d sc1' % (v(r, 4), vK1, R3, R3 + 3, soff, 512 if what == K1B else 0)
    if what in ('2A', '2B'):
        tl = what == '2B'
        return 'buffer_load_dwordx2 %s, v%d, s[%d:%d], s%d offen offset:%d sc1' % (v(KV[st] + K2 + 2 * tl, 2), vK2, R3, R3 + 3, soff, 8 * tl)
    r = KV[st] + what
    if what == K2:
        return 'buffer_load_dwordx4 %s, v%d, s[%d:%d], s%d offen sc1' % (v(r, 4), vK2, R3, R3 + 3, soff)
    return 'buffer_load_dwordx4 %s, v%d, s[%d:%d], s%d offen sc1' % (v(r, 4), vV + (what - VA0) // 4, R3, R3 + 3, soff)

def kvload(st, what, soff):
    return kvload0(st, what, soff).replace(' sc1', [' sc1', '', ' sc1 nt'][OPT['kvplain']])

def qk1(st, tile, qt, sb, first=True):
    return 'v_mfma_f32_32x32x16_bf16 %s, %s, %s, %s' % (v(vS + 16 * sb, 16), v(KV[st] + (K1B if tile else K1A), 4), v(vQ1 + 4 * qt, 4),
                                                       '0' if first else v(vS + 16 * sb, 16))

def qk2(st, tile, qt, sb, first=False):
    return 'v_mfma_f32_32x32x8bf16_1k %s, %s, %s, %s' % (v(vS + 16 * sb, 16), v(KV[st] + K2 + 2 * tile, 2), v(vQ2 + 2 * qt, 2),
                                                        '0' if first else v(vS + 16 * sb, 16))

def pv(st, tile, qt, m, sb=None):
    sb = qt if sb is None else sb
    return 'v_smfmac_f32_32x32x32_bf16 %s, %s, %s, v%d' % (v(vO + 16 * qt, 16), v(KV[st] + VA0 + 8 * tile + 4 * m, 4), v(vS + 16 * sb + 8 * m, 8), vIDX)

def maxtree(dst, src, acc):
    if acc:
        a('v_max3_f32 v%d, v%d, v%d, v%d', dst, dst, src, src + 1)
    else:
        a('v_max_f32 v%d, v%d, v%d', dst, src, src + 1)
    for k in range(2, 16, 2):
        a('v_max3_f32 v%d, v%d, v%d, v%d', dst, dst, src + k, src + k + 1)

def qloads():
    for lp in range(2):
        for T in range(2):
            a('buffer_load_dwordx4 %s, v%d, s[%d:%d], s%d offen offset:%d sc1', v(vQ1 + 8 * lp + 4 * T, 4), vT + 4, RWS, RWS + 3, 91 + lp, 512 * T)
    for lp in range(2):
        a('buffer_load_dwordx4 %s, v%d, s[%d:%d], s%d offen sc1', v(vQ2 + 4 * lp, 4), vT + 5, RWS, RWS + 3, 91 + lp)

def batch1():
    qloads()
    for w_ in (K1A, K2):
        a(kvload0(0, w_, sKV0))

def a_attention():
    qloads()
    a.label('L_attload')
    for w_ in (K1A, K2):
        a(kvload0(0, w_, sKV0))
    a.label('L_att2')
    if OPT['peel']:
        a('s_cmp_eq_u32 s%d, s%d', sKV0, sKVB)
        a('s_cselect_b32 s%d, s%d, s%d', sCNT, sKVE, sKV0)
        a('s_sub_u32 s%d, s%d, %d', sCNT, sCNT, BLK)
    else:
        a('s_mov_b32 s%d, 0x40000000', sCNT)
    a('s_add_u32 s%d, s%d, %d', sOFF, sKV0, BLK)
    for i in range(4):
        a('v_mov_b32 v%d, 0', KV[1] + VB1 + i)
    if OPT['kvsplit']:
        a('s_waitcnt vmcnt(%d)', OPT['kvsplit'] - 1)
    for w_ in (VA0, VA1, K1B, VB0, VB1):
        a(kvload0(0, w_, sKV0))
    if not OPT['s1late']:
        for w_ in (K1A, VA0, VA1, K1B, K2, VB0):
            a(kvload0(1, w_, sOFF))
    a('s_waitcnt vmcnt(%d)', 5 if OPT['s1late'] else 11)
    stamp('A', 'qkload')
    a('s_cmp_eq_u32 s%d, 0', sPASS)
    a('s_cbranch_scc0 L_setc')
    if OPT['fastpro']:
        a.c('stand-in for the row maximum: the largest score among seven keys of the first tile (checked after the loop)')
        def ch(t):
            S, m, h = vS + 16 * t, vM + t, vT + 8 + t
            return ['v_max3_f32 v%d, v%d, v%d, v%d' % (m, S, S + 1, S + 2),
                    'v_max3_f32 v%d, v%d, v%d, v%d' % (m, m, S + 5, S + 8),
                    'v_max3_f32 v%d, v%d, v%d, v%d' % (m, m, S + 11, S + 14),
                    'v_cvt_pk_bf16_f32 v%d, -v%d, -v%d' % (h, m, m),
                    'v_and_b32 v%d, 0xffff0000, v%d' % (h, h),
                    'v_sub_f32 v%d, -v%d, v%d' % (m, m, h),
                    'v_cvt_pk_bf16_f32 v%d, v%d, v%d' % (m, h, m),
                    'v_cndmask_b32 v%d, v%d, v%d, s[%d:%d]' % (vQ2 + 2 * t, vQ2 + 2 * t, m, sHI, sHI + 1)]
        def nc(t):
            m, h = vM + t, vT + 8 + t
            return ['v_and_b32 v%d, 0xffff0000, v%d' % (m, m),
                    'v_add_f32 v%d, v%d, v%d' % (vNC + t, m, h),
                    'v_add_f32 v%d, v%d, v%d' % (m, m, h)]
        sw = lambda t: 'v_permlane32_swap_b32 v%d, v%d' % (vM + t, vNC + t)
        seq = [qk1(0, 0, 0, 0), qk2(0, 0, 0, 0), qk1(0, 0, 1, 1), qk2(0, 0, 1, 1), qk1(0, 0, 2, 2), 's_nop 6', qk2(0, 0, 2, 2), 's_nop 0']
        seq += ch(0)[:5] + [qk1(0, 0, 3, 3)] + ch(0)[5:] + ch(1)[:3] + [qk2(0, 0, 3, 3)] + ch(1)[3:] + nc(0)[:1]
        seq += [qk1(0, 0, 0, 0)] + ch(2)[:6] + [qk2(0, 0, 0, 0)] + ch(3)[:3]
        seq += ['v_mov_b32 v%d, 0' % (vS + 48 + 8 + i) for i in range(8)]
        seq += ch(2)[6:] + ch(3)[3:] + nc(0)[1:] + nc(1) + nc(2) + [sw(0)] + nc(3) + [sw(1), sw(2), sw(3)]
        for o in seq:
            a(o)
        a.label('L_loopentry')
    else:
        a.c('stand-in for the row maximum: the maximum over the first key tile (checked after the loop)')
        def tree(qt):
            src = vS + 16 * qt
            return ['v_max_f32 v%d, v%d, v%d' % (vM + qt, src, src + 1)] + \
                   ['v_max3_f32 v%d, v%d, v%d, v%d' % (vM + qt, vM + qt, src + k, src + k + 1) for k in range(2, 16, 2)]
        for qt in range(3):
            a(qk1(0, 0, qt, qt))
            a(qk2(0, 0, qt, qt))
        a(qk1(0, 0, 3, 3))
        a('s_nop 6')
        for o in tree(0)[:4]:
            a(o)
        a(qk2(0, 0, 3, 3))
        for o in tree(0)[4:] + tree(1) + tree(2) + tree(3):
            a(o)
        a.label('L_setc')
        for qt in range(4):
            a('v_mov_b32 v%d, v%d', vT + 8 + qt, vM + qt)
        for qt in range(4):
            a('v_permlane32_swap_b32 v%d, v%d', vM + qt, vT + 8 + qt)
        for qt in range(4):
            a('v_min_f32 v%d, -v%d, -v%d', vM + qt, vM + qt, vT + 8 + qt)
        for qt in range(4):
            a('v_cvt_pk_bf16_f32 v%d, v%d, v%d', vT + 8 + qt, vM + qt, vM + qt)
        for qt in range(4):
            a('v_and_b32 v%d, 0xffff0000, v%d', vT + 8 + qt, vT + 8 + qt)
        for qt in range(4):
            a('v_sub_f32 v%d, v%d, v%d', vM + qt, vM + qt, vT + 8 + qt)
        for qt in range(4):
            a('v_cvt_pk_bf16_f32 v%d, v%d, v%d', vM + qt, vT + 8 + qt, vM + qt)
        for qt in range(4):
            a('v_cndmask_b32 v%d, v%d, v%d, s[%d:%d]', vQ2 + 2 * qt, vQ2 + 2 * qt, vM + qt, sHI, sHI + 1)
        a(qk1(0, 0, 0, 0))
        a(qk2(0, 0, 0, 0))
        for qt in range(4):
            a('v_and_b32 v%d, 0xffff0000, v%d', vM + qt, vM + qt)
        for qt in range(4):
            a('v_add_f32 v%d, v%d, v%d', vNC + qt, vM + qt, vT + 8 + qt)
        for i in range(8):
            a('v_mov_b32 v%d, 0', vS + 48 + 8 + i)
    if OPT['s1late'] == 2:
        a('s_waitcnt vmcnt(2)')
    if OPT['split2']:
        assert OPT['s1late'] == 1 and OPT['fastpro']
        a(qk2(0, 0, 1, 1, True))
    if OPT['s1late']:
        for w_ in ((K1A, VA0, VA1, K2, K1B, VB0) if OPT['split2'] else (K1A, VA0, VA1, K1B, K2, VB0)):
            a(kvload0(1, w_, sOFF))
    if OPT['s1late'] != 2:
        a('s_waitcnt vmcnt(%d)', 9 if OPT['split2'] else 8)
    if OPT['tearly'] or OPT['gtouch'] == 1 or OPT['woe'] or OPT['smark'] == 1:
        setpw(5, vT + 8)
    stamp('A', 'attpro')
    if OPT['fine'] == 3:
        base = len(nstamp['A'])
        nstamp['A'] += ['it%d' % i for i in range(16)]
        a('s_mov_b32 s24, %d', base)
    a('.p2align %d', OPT['lalign'])
    for _ in range(OPT['lpad']):
        a('s_nop 0')
    a.label('L_attloop')
    UN = OPT['unroll']
    LEAN = OPT['rot'] == 0 and OPT['lean']
    for dt in range(UN):
        st = dt & 1
        for n in range(8):
            tile, qt = n >> 2, n & 3
            nst, ntile, nqt = (st, (n + 1) >> 2, (n + 1) & 3) if n < 7 else (st ^ 1, 0, 0)
            pst, ptile, pqt = (st, (n - 1) >> 2, (n - 1) & 3) if n > 0 else (st ^ 1, 1, 3)
            def ex(k):
                for e in range(4 * k, 4 * k + 4):
                    a('v_exp_f32 v%d, v%d', vS + 16 * qt + e, vS + 16 * qt + e)
            if OPT['split2']:
                st2, tile2, qt2 = (st, (n + 2) >> 2, (n + 2) & 3) if n < 6 else (st ^ 1, 0, n - 6)
                if n == 3:
                    a('s_waitcnt vmcnt(8)')
                a(qk1(nst, ntile, nqt, nqt, False))
                if n == 1:
                    a('s_add_u32 s%d, s%d, %d', sOFF, sOFF, BLK)
                if n in (2, 6):
                    a(kvload(st, K1A if n == 2 else K1B, sOFF))
                if n == 5 and OPT['fine'] == 3:
                    a('s_memtime s[98:99]')
                    a('s_memrealtime s[100:101]')
                if n == 6 and OPT['fine'] == 3:
                    a('s_waitcnt lgkmcnt(0)')
                    a('s_mov_b32 m0, s24')
                    a('s_add_u32 s25, s24, 32')
                    a('v_writelane_b32 v%d, s98, m0', vTS)
                    a('s_mov_b32 m0, s25')
                    a('s_add_u32 s24, s24, 1')
                    a('v_writelane_b32 v%d, s100, m0', vTS)
                ex(0)
                a(pv(pst, ptile, pqt, 1))
                if n == 0:
                    a(kvload(st ^ 1, VB1, sOFF))
                if n == 4:
                    a(kvload(st, VA1, sOFF))
                if n == 1 and st == 0 and not LEAN:
                    a('s_cmp_eq_u32 s%d, s%d', sOFF, sKVE)
                    a('s_cselect_b32 s%d, s%d, s%d', sOFF, sKVB, sOFF)
                ex(1)
                if n == 6:
                    a('s_waitcnt vmcnt(8)')
                a(qk2(st2, tile2, qt2, qt2, True))
                if n == 5:
                    a(kvload(st, K2, sOFF))
                if n == 1 and dt == UN - 2 and not LEAN:
                    a('s_cmp_eq_u32 s%d, s%d', sOFF, sKV0)
                    a('s_cselect_b32 s%d, s%d, s%d', sOFF, sCNT, sOFF)
                if dt == UN - 1 and n == 7:
                    a('s_cmp_lt_u32 s%d, s%d', sOFF, sKVE if LEAN else sCNT)
                ex(2)
                a(pv(st, tile, qt, 0))
                if n == 3:
                    a(kvload(st, VA0, sOFF))
                if n == 7:
                    a(kvload(st, VB0, sOFF))
                ex(3)
                continue
            if n == 7:
                a('s_waitcnt vmcnt(%d)', 40 if OPT['nowait'] else 7)
            X8 = OPT['x8first']
            a(qk2(nst, ntile, nqt, nqt, True) if X8 else qk1(nst, ntile, nqt, nqt))
            if n == 1:
                a('s_add_u32 s%d, s%d, %d', sOFF, sOFF, BLK)
            if n == 2 and not X8:
                a(kvload(st, K1A, sOFF))
            if n == 6:
                a(kvload(st, K2 if X8 else K1B, sOFF))
            if n == 5 and OPT['fine'] == 3:
                a('s_memtime s[98:99]')
                a('s_memrealtime s[100:101]')
            if n == 6 and OPT['fine'] == 3:
                a('s_waitcnt lgkmcnt(0)')
                a('s_mov_b32 m0, s24')
                a('s_add_u32 s25, s24, 32')
                a('v_writelane_b32 v%d, s98, m0', vTS)
                a('s_mov_b32 m0, s25')
                a('s_add_u32 s24, s24, 1')
                a('v_writelane_b32 v%d, s100, m0', vTS)
            ex(0)
            a(qk1(nst, ntile, nqt, nqt, False) if X8 else qk2(nst, ntile, nqt, nqt))
            if n == 2 and X8:
                a(kvload(st, K1A, sOFF))
            if n == 6:
                a(kvload(st, K1B if X8 else K2, sOFF))
            if n == 1 and st == 0 and not LEAN:
                a('s_cmp_eq_u32 s%d, s%d', sOFF, sKVE)
                a('s_cselect_b32 s%d, s%d, s%d', sOFF, sKVB, sOFF)
            ex(1)
            a(pv(pst, ptile, pqt, 1))
            if n == 0:
                a(kvload(st ^ 1, VB1, sOFF))
            if n == 4:
                a(kvload(st, VA1, sOFF))
            if n == 1 and dt == UN - 2 and not LEAN and not OPT['peel']:
                a('s_cmp_eq_u32 s%d, s%d', sOFF, sKV0)
                a('s_cselect_b32 s%d, s%d, s%d', sOFF, sCNT, sOFF)
            if dt == UN - 1 and n == 7:
                if OPT['peel']:
                    a('s_cmp_lg_u32 s%d, s%d', sOFF, sCNT)
                else:
                    a('s_cmp_lt_u32 s%d, s%d', sOFF, sKVE if LEAN else sCNT)
            ex(2)
            if n == 4:
                a('s_waitcnt vmcnt(%d)', 40 if OPT['nowait'] else 10)
            a(pv(st, tile, qt, 0))
            if n == 3:
                a(kvload(st, VA0, sOFF))
            if n == 7:
                a(kvload(st, VB0, sOFF))
            ex(3)
    a('s_cbranch_scc1 L_attloop')
    PEEL = OPT['peel']
    R, NC2 = (vO, vT + 14) if PEEL else (vS, vS + 32)
    rd = ['ds_read_b64 %s, v%d offset:6144' % (v(NC2, 2), vMG + 3)]
    for t in range(2):
        rd.append('ds_read_b128 %s, v%d offset:%d' % (v(R + 16 * t + 8, 4), vMG + 2, 1024 * (3 * t + 2)))
    for t in range(2):
        for q in range(2):
            rd.append('ds_read_b128 %s, v%d offset:%d' % (v(R + 16 * t + 4 * q, 4), vMG + 2, 1024 * (3 * t + q)))
    def rcheck(t0, lab):
        o = ['v_min_f32 v%d, v%d, v%d' % (vT + 8, vO + 16 * t0 + 8, vO + 16 * t0 + 24),
             'v_add_f32 v%d, v%d, v%d' % (vT + 9, vO + 16 * t0 + 8, vO + 16 * t0 + 24),
             'v_cmp_nle_f32 s[38:39], s10, v%d' % (vT + 8),
             'v_cmp_nge_f32 vcc, s11, v%d' % (vT + 9),
             's_or_b32 s39, s39, vcc_hi']
        if OPT['force_fb'] == lab:
            o.append('s_cmp_eq_u32 s39, s39')
        o += ['s_cbranch_scc1 L_fb%d' % lab, 'L_ok%d:' % lab]
        COLD.extend(['L_fb%d:' % lab, 's_cmp_eq_u32 s%d, 0' % sPASS, 's_cbranch_scc0 L_ok%d' % lab, 's_mov_b32 s84, %d' % (lab - 1),
                     's_branch L_fallback'])
        return o
    if PEEL:
        assert OPT['x8first'] and not OPT['split2'] and UN == 2 and not OPT['otag'] and OPT['b3res'] == 8
        a.c('last two double tiles, query tiles 0 and 1 first: they are handed to the partner wave while 2 and 3 finish')
        def item(k):
            if k < 0:
                return 1, 1, 3
            kt = (k & 7) >> 1
            return kt >> 1, kt & 1, (k & 1) + 2 * (k >> 3)
        wr = lambda t: ['ds_write_b128 v%d, %s offset:%d' % (vMG, v(vO + 16 * t + 4 * q, 4), 1024 * (3 * t + q)) for q in range(3)]
        after = {(0, 2): [kvload(1, VB1, sOFF)],
                 (1, 0): ['s_cmp_lg_u32 s84, 0'],
                 (8, 3): ['s_cbranch_scc1 L_nosend0', 'ds_write_b64 v%d, %s offset:6144' % (vMG + 1, v(vNC, 2))] + wr(0) + ['L_nosend0:'],
                 (9, 2): ['s_cbranch_scc1 L_nosend1'] + wr(1) + ['L_nosend1:'],
                 (9, 3): ['v_mov_b32 v%d, 6' % (vT + 10)] + rcheck(0, 1) + ['ds_write_b32 v%d, v%d' % (vPW, vT + 10)],
                 (OPT['rdat'], 0): ['ds_read_b32 v%d, v%d' % (vT + 11, vMG + 4)] + rd[:3],
                 (OPT['rdat'], 1): rd[3:]}
        before = {(2, 3): ['s_waitcnt vmcnt(2)'], (6, 3): ['s_waitcnt vmcnt(0)']}
        for k in range(16):
            st, tile, qt = item(k)
            ms = [None, None, pv(*item(k - 1), 1, (k - 1) & 3), pv(st, tile, qt, 0, k & 3)]
            if k < 15:
                ms[0] = qk2(*item(k + 1), (k + 1) & 3, True)
                ms[1] = qk1(*item(k + 1), (k + 1) & 3, False)
            for sl in range(4):
                for o in before.get((k, sl), []):
                    a(o)
                if ms[sl]:
                    a(ms[sl])
                for o in after.get((k, sl), []):
                    a(o)
                for e in range(4 * sl, 4 * sl + 4):
                    a('v_exp_f32 v%d, v%d', vS + 16 * (k & 3) + e, vS + 16 * (k & 3) + e)
        a('s_waitcnt lgkmcnt(0)')
        a('v_cmp_gt_u32 vcc, 6, v%d', vT + 11)
        a(pv(1, 1, 3, 1, 3))
        stamp('A', 'attloop')
        a('s_cbranch_vccnz L_pwait')
        n1 = len(a.lines)
        a.label('L_pwait')
        waitpw(vMG + 4, 6, vT + 11, extra=rd)
        a('s_waitcnt lgkmcnt(0)')
        a('s_branch L_pready')
        COLD.extend(a.lines[n1:])
        del a.lines[n1:]
        a.label('L_pready')
    else:
        a('s_nop 0')
        a(pv(1, 1, 3, 1))
        stamp('A', 'attloop')
        if OPT['tprio']:
            a('s_setprio 2')
        a('ds_write_b64 v%d, %s offset:6144', vMG + 1, v(vNC, 2))
        for t in range(2):
            for q in range(3):
                a('ds_write_b128 v%d, %s offset:%d', vMG, v(vO + 16 * t + 4 * q, 4), 1024 * (3 * t + q))
        a('v_mov_b32 v%d, 6', vT + 10)
        a('v_mov_b32 v%d, 7', vT + 11)
        a('v_min3_f32 v%d, v%d, v%d, v%d', vT + 8, vO + 8, vO + 24, vO + 40)
        a('v_add_f32 v%d, v%d, v%d', vT + 9, vO + 8, vO + 24)
        a('v_add_f32 v%d, v%d, v%d', vT + 9, vT + 9, vO + 40)
        a('v_min_f32 v%d, v%d, v%d', vT + 8, vT + 8, vO + 56)
        a('v_add_f32 v%d, v%d, v%d', vT + 9, vT + 9, vO + 56)
        a('v_cmp_nle_f32 s[38:39], s10, v%d', vT + 8)
        a('v_cmp_nge_f32 vcc, s11, v%d', vT + 9)
        a('s_or_b32 s39, s39, vcc_hi')
        if OPT['force_fb']:
            a('s_cmp_eq_u32 s39, s39')
        a('s_cbranch_scc1 L_fallback')
    n0 = len(a.lines)
    a.label('L_fallback')
    if not PEEL:
        a('s_cmp_eq_u32 s%d, 0', sPASS)
        a('s_cbranch_scc0 L_attok')
    a.c('fallback: exact row maximum over this wave\'s keys, then redo the pass')
    a('s_mov_b32 s%d, 1', sPASS)
    a('s_waitcnt vmcnt(0) lgkmcnt(0)')
    a('v_mov_b32 v%d, 0', vT + 8)
    for qt in range(4):
        a('v_cndmask_b32 v%d, v%d, v%d, s[%d:%d]', vQ2 + 2 * qt, vQ2 + 2 * qt, vT + 8, sHI, sHI + 1)
        a('v_mov_b32 v%d, 0xff800000', vM + qt)
    a('s_mov_b32 s%d, s%d', sOFF, sKVB)
    a('s_mov_b32 s%d, 16', sCNT)
    a.label('L_maxloop')
    for w_ in (K1A, K1B, K2):
        a(kvload(0, w_, sOFF))
    a('s_waitcnt vmcnt(0)')
    for tile in range(2):
        for qt in range(4):
            a(qk1(0, tile, qt, qt))
            a(qk2(0, tile, qt, qt))
        a('s_nop 5')
        for qt in range(4):
            maxtree(vM + qt, vS + 16 * qt, True)
    a('s_add_u32 s%d, s%d, %d', sOFF, sOFF, BLK)
    a('s_sub_u32 s%d, s%d, 1', sCNT, sCNT)
    a('s_cmp_lg_u32 s%d, 0', sCNT)
    a('s_cbranch_scc1 L_maxloop')
    for i in range(64):
        a('v_mov_b32 v%d, 0', vO + i)
    a('s_branch L_attload')
    if OPT['fastpro']:
        a.label('L_setc')
        for qt in range(4):
            a('v_mov_b32 v%d, v%d', vT + 8 + qt, vM + qt)
        for qt in range(4):
            a('v_permlane32_swap_b32 v%d, v%d', vM + qt, vT + 8 + qt)
        for qt in range(4):
            a('v_min_f32 v%d, -v%d, -v%d', vM + qt, vM + qt, vT + 8 + qt)
        for qt in range(4):
            a('v_cvt_pk_bf16_f32 v%d, v%d, v%d', vT + 8 + qt, vM + qt, vM + qt)
        for qt in range(4):
            a('v_and_b32 v%d, 0xffff0000, v%d', vT + 8 + qt, vT + 8 + qt)
        for qt in range(4):
            a('v_sub_f32 v%d, v%d, v%d', vM + qt, vM + qt, vT + 8 + qt)
        for qt in range(4):
            a('v_cvt_pk_bf16_f32 v%d, v%d, v%d', vM + qt, vT + 8 + qt, vM + qt)
        for qt in range(4):
            a('v_cndmask_b32 v%d, v%d, v%d, s[%d:%d]', vQ2 + 2 * qt, vQ2 + 2 * qt, vM + qt, sHI, sHI + 1)
        a(qk1(0, 0, 0, 0))
        a(qk2(0, 0, 0, 0))
        for qt in range(4):
            a('v_and_b32 v%d, 0xffff0000, v%d', vM + qt, vM + qt)
        for qt in range(4):
            a('v_add_f32 v%d, v%d, v%d', vNC + qt, vM + qt, vT + 8 + qt)
        for i in range(8):
            a('v_mov_b32 v%d, 0', vS + 48 + 8 + i)
        a('s_branch L_loopentry')
    COLD.extend(a.lines[n0:])
    del a.lines[n0:]
    a.label('L_attok')
    if not PEEL:
        a('ds_write_b32 v%d, v%d', vPW, vT + 10)
    if OPT['otag'] and not OPT['amark']:
        a('ds_read_b32 v%d, v%d', vT + 12, vMG + 5)
    if not PEEL:
        waitpw(vMG + 4, 6, vT + 8, extra=rd)
        a('ds_write_b32 v%d, v%d', vPW, vT + 11)
    if OPT['otag'] and not OPT['amark']:
        a('v_cmp_gt_u32 vcc, 14, v%d', vT + 12)
        a('s_cbranch_vccnz L_swait')
        n0 = len(a.lines)
        a.label('L_swait')
        waitpw(vMG + 5, 14, vT + 12)
        a('s_branch L_sready')
        COLD.extend(a.lines[n0:])
        del a.lines[n0:]
        a.label('L_sready')
    f1, f2, l1, l2 = (vM, vM + 2, vT, vT + 2) if PEEL else (vS + 34, vS + 36, vS + 38, vS + 40)
    if not PEEL:
        a('s_waitcnt lgkmcnt(7)')
    for t in range(2):
        a('v_min_f32 v%d, v%d, v%d', l1 + t, vNC + 2 + t, NC2 + t)
    for t in range(2):
        a('v_sub_f32 v%d, v%d, v%d', f1 + t, l1 + t, vNC + 2 + t)
        a('v_sub_f32 v%d, v%d, v%d', f2 + t, l1 + t, NC2 + t)
    for t in range(2):
        a('v_exp_f32 v%d, v%d', f1 + t, f1 + t)
        a('v_exp_f32 v%d, v%d', f2 + t, f2 + t)
    if PEEL:
        a('s_nop 0')
        for o in rcheck(2, 2):
            a(o)
    else:
        a('s_waitcnt lgkmcnt(5)')
    for t in range(2):
        a('v_mul_f32 v%d, v%d, v%d', l1 + t, f1 + t, vO + 32 + 16 * t + 8)
    for t in range(2):
        a('v_fmac_f32 v%d, v%d, v%d', l1 + t, f2 + t, R + 16 * t + 8)
    for t in range(2):
        a('v_mov_b32 v%d, v%d', l2 + t, l1 + t)
    a('s_nop 0')
    for t in range(2):
        a('v_permlane32_swap_b32 v%d, v%d', l1 + t, l2 + t)
    for t in range(2):
        a('v_rcp_f32 v%d, v%d', l2 + t, l2 + t)
    a('s_waitcnt vmcnt(0) lgkmcnt(0)')
    for t in range(2):
        a('v_mul_f32 v%d, v%d, v%d', f1 + t, f1 + t, l2 + t)
        a('v_mul_f32 v%d, v%d, v%d', f2 + t, f2 + t, l2 + t)
    P = vS if PEEL else vO
    for t in range(2):
        if OPT['pkmerge']:
            sel = 'op_sel:[%d,0] op_sel_hi:[%d,1]' % (t, t)
            sel3 = 'op_sel:[%d,0,0] op_sel_hi:[%d,1,1]' % (t, t)
            for r in range(0, 12, 2):
                a('v_pk_mul_f32 %s, %s, %s %s', v(vO + 32 + 16 * t + r, 2), v(f1, 2), v(vO + 32 + 16 * t + r, 2), sel)
            for r in range(0, 12, 2):
                a('v_pk_fma_f32 %s, %s, %s, %s %s', v(vO + 32 + 16 * t + r, 2), v(f2, 2), v(R + 16 * t + r, 2), v(vO + 32 + 16 * t + r, 2), sel3)
        else:
            for r in range(12):
                a('v_mul_f32 v%d, v%d, v%d', vO + 32 + 16 * t + r, f1 + t, vO + 32 + 16 * t + r)
            for r in range(12):
                a('v_fmac_f32 v%d, v%d, v%d', vO + 32 + 16 * t + r, f2 + t, R + 16 * t + r)
        for q in range(6):
            a('v_cvt_pk_bf16_f32 v%d, v%d, v%d', P + 8 * t + q, vO + 32 + 16 * t + 2 * q, vO + 32 + 16 * t + 2 * q + 1)
        if OPT['otag']:
            for q in range(4):
                a('v_min_u32 v%d, -2, v%d', P + 8 * t + q, P + 8 * t + q)
        a('buffer_store_dwordx4 %s, v%d, s[%d:%d], s%d offen sc1', v(P + 8 * t, 4), vMG + 6, RWS, RWS + 3, 41 + t)
    if not OPT['otag']:
        a('s_nop 0')
    a('v_permlane32_swap_b32 v%d, v%d', P + 4, P + 12)
    a('v_permlane32_swap_b32 v%d, v%d', P + 5, P + 13)
    if OPT['otag']:
        a('v_min_u32 v%d, -2, v%d', P + 4, P + 4)
        a('v_min_u32 v%d, -2, v%d', P + 5, P + 5)
    a('buffer_store_dwordx2 %s, v%d, s[%d:%d], s40 offen offset:512 sc1', v(P + 4, 2), vMG + 7, RWS, RWS + 3)
    if OPT['otag']:
        setflag(43, 20)
    if PEEL:
        a.label('L_stored')
    if OPT['tprio'] == 2:
        a('s_setprio 0')
    if OPT['pgate']:
        setpw(8, vT + 8)
        a('ds_read_b32 v%d, v%d', 99, vAPW)
    stamp('A', 'merge')

def ostore(j, r):
    return 'buffer_store_dword v%d, v%d, s[%d:%d], s86 offen offset:%d%s' % (80 + 4 * j + r, 244 + r, R4, R4 + 3, 64 * j, OSC)

def p3_static(vA0, vA1, vOA, acc):
    EP = OPT['epoll']
    TAG = OPT['otag']
    if TAG:
        stamp('A', 'odrain')
        a.label('L_p3redo')
    elif not EP:
        a('s_waitcnt vmcnt(0)')
        stamp('A', 'odrain')
        setflag(43, 1)
    NB = 7
    def reads(ks):
        f = 100 + 20 * (ks % NB)
        base, off = (vA0, ks * 5120) if ks < 10 else (vA1, (ks - 10) * 5120)
        if OPT['fline'] & 1:
            return ['ds_read_b64_tr_b16 %s, v%d offset:%d' % (v(f + 4 * j + 2 * rd, 2), base + (6 if j == 4 else 0),
                                                             off + 1280 * rd + 32 * (j & 3)) for j in range(5) for rd in range(2)]
        return ['ds_read_b64_tr_b16 %s, v%d offset:%d' % (v(f + 4 * j + 2 * rd, 2), base, off + 1280 * rd + 32 * j)
                for j in range(5) for rd in range(2)]
    pl = 'buffer_load_dword v252, v%d, s[%d:%d], s88 offen sc1' % (vOA + 1, RWS, RWS + 3)
    def oload(ks):
        a('buffer_load_dwordx4 %s, v%d, s[%d:%d], s85 offen offset:%d sc1', v(4 * ks, 4), vOA, RWS, RWS + 3, 1024 * (ks & 3))
        if ks & 3 == 3 and ks < 19:
            a('s_add_u32 s85, s85, 4096')
    LEAD = OPT['olead']
    touch_ = 'buffer_load_dword v251, v248, s[%d:%d], s85 offen sc1' % (RWS, RWS + 3)
    NP = OPT['npre'] if EP else 0
    rest = [r for ks in range(NP, NB) for r in reads(ks)]
    if EP:
        for ks in range(NP):
            for r in reads(ks):
                a(r)
        if OPT['pgate']:
            a('s_waitcnt lgkmcnt(0)')
            a('v_cmp_gt_u32 vcc, 8, v99')
            a('s_cbranch_vccz L_epoll')
            a('s_waitcnt vmcnt(0)')
            stamp('A', 'odrain')
            if DIAG:
                nstamp['A'].pop()
            setflag(43, 2)
            a('s_mov_b32 vcc_lo, -1')
            a('s_mov_b32 vcc_hi, 0')
            a('s_branch L_f4late')
            a.label('L_epoll')
        a('s_mov_b32 exec_hi, 0')
        a(pl)
        a('s_waitcnt vmcnt(1)')
        stamp('A', 'odrain')
        setflag(43, 2)
        a('s_mov_b32 exec_hi, 0')
        a('s_waitcnt vmcnt(1)')
        a('v_cmp_eq_u32 vcc, 0, v252')
        a('s_mov_b64 exec, -1')
        a('s_cbranch_vccnz L_f4late')
        stamp('A', 'f4')
        if DIAG:
            nstamp['A'].pop()
        a(touch_)
        k = 0
        for ks in range(LEAD):
            oload(ks)
            while k < len(rest) * (ks + 1) // LEAD:
                a(rest[k])
                k += 1
        a('s_branch L_p3go')
        a.label('L_f4late')
    for r in rest:
        a(r)
    if OPT['pgate'] and TAG != 1:
        a('s_mov_b64 s[38:39], vcc')
        waitpw(vAPW, 8, 99, sleep=OPT['gsleep'])
        a('s_mov_b64 vcc, s[38:39]')
    if EP:
        a('s_mov_b64 exec, vcc')
    else:
        a('s_mov_b32 exec_hi, 0')
    pollflags([pl], 252, sleep=OPT['psleep4'])
    stamp('A', 'f4')
    if OPT['otouch']:
        a(touch_)
    for ks in range(LEAD):
        oload(ks)
    a.label('L_p3go')
    a('s_waitcnt lgkmcnt(0)')
    nl = LEAD
    a('v_mov_b32 v250, 9')
    lq = []
    if nl == 20 or OPT['yearly']:
        a('ds_write_b32 v%d, v250', vPW)
    pend = []
    nck = 0
    JO = OPT['jout'] or 20
    for ks in range(JO):
        w_ = 's_waitcnt vmcnt(%d)' % (nl - 1 - ks)
        if ks in lq:
            idx = max(i for i, x in enumerate(lq) if x == ks)
            w_ += ' lgkmcnt(%d)' % min(15, len(lq) - 1 - idx)
        a(w_)
        if OPT['fine'] in (1, 2) and ks in (0, 10, 19):
            stamp('A', 'p3k%d' % ks)
        rr = reads(ks + NB) if ks + NB < 20 else []
        for j in range(5):
            a('v_mfma_f32_16x16x32_bf16 %s, %s, %s, %s', v(acc + 4 * j, 4), v(4 * ks, 4), v(100 + 20 * (ks % NB) + 4 * j, 4),
              '0' if ks == 0 else v(acc + 4 * j, 4))
            for tg, r in pend:
                a(r)
                lq.append(tg)
            if TAG and not pend and ks >= 13:
                for _ in range(2):
                    if nck < 4 * ks + 4:
                        if nck == 0:
                            a('v_max_u32 v252, v0, v1')
                        else:
                            a('v_max3_u32 v252, v252, v%d, v%d', nck, nck + 1)
                        nck += 2
            pend = [(ks + NB, r) for r in rr[2 * j:2 * j + 2]]
            if j in (0, 3) and nl < 20 and (j == 0 or ks % 2 == 0):
                oload(nl)
                nl += 1
                if nl == 20 and not OPT['yearly']:
                    a('ds_write_b32 v%d, v250', vPW)
                    lq.append('w')
    if JO < 20:
        assert not TAG and nl == 20 and not pend
        a('s_waitcnt vmcnt(0) lgkmcnt(0)')
        for j in range(5):
            for i, ks in enumerate(range(JO, 20)):
                a('v_mfma_f32_16x16x32_bf16 %s, %s, %s, %s', v(acc + 4 * j, 4), v(4 * ks, 4), v(100 + 20 * (ks % NB) + 4 * j, 4), v(acc + 4 * j, 4))
                if j and i < 2:
                    a('s_nop 2')
                elif j and i < 6:
                    a(ostore(j - 1, i - 2))
        if OPT['fine'] in (1, 2):
            stamp('A', 'p3k19')
        a('s_nop 6')
        for r in range(4):
            a(ostore(4, r))
    if TAG:
        assert nck == 80
        a('v_cmp_eq_u32 vcc, -1, v252')
        a('s_cbranch_vccnz L_p3again')
        retry('L_p3again', 'L_p3redo', 0, ['s_sub_u32 s85, s85, 16384'])

def p3_groups(vA0, vOA, acc):
    WF, vAN = 100, 241
    sP, sG, sM, sKEY, sC = 4, 5, 6, 7, 8
    pl = 'buffer_load_dword v252, v%d, s[%d:%d], s88 offen sc1' % (vOA + 1, RWS, RWS + 3)
    for g in range(4):
        a('s_sub_u32 s%d, %d, s%d', sC + g, g, sOG)
        a('s_and_b32 s%d, s%d, 3', sC + g, sC + g)
        a('s_lshl2_add_u32 s%d, s%d, %d', sC + g, sC + g, g)
    a('v_mov_b32 v248, 9')
    a('s_waitcnt lgkmcnt(0)')
    a('v_cmp_gt_u32 vcc, 8, v99')
    a('s_cbranch_vccz L_epoll')
    a('s_waitcnt vmcnt(0)')
    stamp('A', 'odrain')
    if DIAG:
        nstamp['A'].pop()
    setflag(43, 2)
    waitpw(vAPW, 8, 99, sleep=OPT['gsleep'])
    a('s_mov_b32 exec_hi, 0')
    a(pl)
    a('s_waitcnt vmcnt(0)')
    a('s_branch L_polled')
    a.label('L_epoll')
    a('s_mov_b32 exec_hi, 0')
    a(pl)
    a('s_waitcnt vmcnt(1)')
    stamp('A', 'odrain')
    setflag(43, 2)
    a('s_mov_b32 exec_hi, 0')
    a('s_waitcnt vmcnt(1)')
    a.label('L_polled')
    a('v_cmp_eq_u32 vcc, 0, v252')
    a('s_mov_b64 exec, -1')
    a('s_mov_b32 s%d, vcc_lo', sP)
    def reads(k):
        return ['ds_read_b64_tr_b16 %s, v%d offset:%d' % (v(WF + 20 * k + 4 * j + 2 * rd, 2), vAN, 5120 * k + 1280 * rd + 32 * j)
                for j in range(5) for rd in range(2)]
    def issue(sl):
        for k in range(5):
            a('buffer_load_dwordx4 %s, v%d, s[%d:%d], s%d offen offset:%d sc1', v(20 * sl + 4 * k, 4), vOA, RWS, RWS + 3,
              12 if k < 4 else 13, 1024 * (k & 3))
        if sl == 3:
            a('ds_write_b32 v%d, v248', vPW)
    for sl in range(-1, 4):
        nx = sl + 1
        Lw, Lc, Ld = a.newlabel('gw'), a.newlabel('gc'), a.newlabel('gd')
        if nx < 4:
            for g in range(4):
                a('s_bfe_u32 s14, s%d, 0x%x', sP, (8 << 16) | (8 * g))
                a('s_bcnt1_i32_b32 s14, s14')
                if g == 0:
                    a('s_lshl4_add_u32 s%d, s14, s%d', sKEY, sC)
                else:
                    a('s_lshl4_add_u32 s14, s14, s%d', sC + g)
                    a('s_min_u32 s%d, s%d, s14', sKEY, sKEY)
            a('s_and_b32 s%d, s%d, 3', sG, sKEY)
            a('s_mul_i32 s12, s%d, 5120', sG)
            a('s_add_u32 s12, s12, s85')
            a('s_add_u32 s13, s12, 4096')
            a('s_cmp_lt_u32 s%d, 16', sKEY)
            a('s_cbranch_scc0 %s', Lw)
            issue(nx)
            if sl >= 0:
                a('s_waitcnt vmcnt(5)')
            a('s_branch %s', Lc)
            a.label(Lw)
            a('s_mov_b32 exec_lo, s%d', sP)
            a('s_mov_b32 exec_hi, 0')
            a(pl)
            a('s_mov_b64 exec, -1')
            if sl >= 0:
                a('s_waitcnt vmcnt(1)')
            a.label(Lc)
            a('s_mul_i32 s14, s%d, 25600', sG)
            a('v_add_u32 v%d, s14, v%d', vAN, vA0)
            if nx < 3:
                for g in range(4):
                    a('s_cmp_eq_u32 s%d, %d', sG, g)
                    a('s_cselect_b32 s%d, 0x1000, s%d', sC + g, sC + g)
        if sl < 0:
            for k in range(5):
                for r in reads(k):
                    a(r)
        else:
            pend = []
            for k in range(5):
                if nx == 4:
                    a('s_waitcnt vmcnt(%d) lgkmcnt(%d)', 4 - k, 0 if k >= 3 else 15)
                else:
                    a('s_waitcnt lgkmcnt(15)')
                rr = reads(k) if nx < 4 else []
                for j in range(5):
                    a('v_mfma_f32_16x16x32_bf16 %s, %s, %s, %s', v(acc + 4 * j, 4), v(20 * sl + 4 * k, 4), v(WF + 20 * k + 4 * j, 4),
                      '0' if (sl == 0 and k == 0) else v(acc + 4 * j, 4))
                    for r in pend:
                        a(r)
                    pend = rr[2 * j:2 * j + 2]
            for r in pend:
                a(r)
        if nx < 4:
            a('s_cmp_lt_u32 s%d, 16', sKEY)
            a('s_cbranch_scc1 %s', Ld)
            L1, L2 = a.newlabel('gp'), a.newlabel('gq')
            a('s_lshl_b32 s14, s%d, 3', sG)
            a('s_lshl_b32 s%d, 0xff, s14', sM)
            a('s_mov_b32 exec_lo, s%d', sP)
            a('s_mov_b32 exec_hi, 0')
            a.label(L1)
            a('s_waitcnt vmcnt(0)')
            a('v_cmp_eq_u32 vcc, 0, v252')
            a('s_and_b32 s14, vcc_lo, s%d', sM)
            a('s_cbranch_scc0 %s', L2)
            a('s_mov_b64 exec, vcc')
            if OPT['psleep4']:
                a('s_sleep %d', OPT['psleep4'])
            a(pl)
            a('s_sub_u32 s%d, s%d, 1', sSPIN, sSPIN)
            a('s_cbranch_scc0 %s', L1)
            a('s_endpgm')
            a.label(L2)
            a('s_mov_b32 s%d, vcc_lo', sP)
            a('s_mov_b64 exec, -1')
            issue(nx)
            a.label(Ld)
            if nx == 3:
                stamp('A', 'f4')

def a_outproj():
    vA0, vA1, vOA, vST = 240, 241, 242, 244
    if not OPT['otag'] or OPT['amark']:
        waitpw(vMG + 5, 14, 98, sleep=1)
    a('v_lshrrev_b32 v21, 5, v%d', vLANE)
    a('v_bfe_u32 v22, v%d, 2, 3', vLANE)
    a('v_lshl_add_u32 v21, v21, 4, v22')
    a('v_mul_u32_u24 v21, 160, v21')
    a('v_and_b32 v22, 3, v%d', vLANE)
    a('v_lshl_add_u32 v%d, v22, 3, v21', vA0)
    a('v_add_u32 v%d, %d, v%d', vA1, 10 * 5120, vA0)
    a('v_lshlrev_b32 v%d, 4, v%d', vOA, vLANE)
    a('v_lshrrev_b32 v21, 4, v%d', vLANE)
    a('v_mul_u32_u24 v21, %d, v21', 4 * 5120)
    a('v_and_b32 v22, 15, v%d', vLANE)
    a('v_lshl_add_u32 v%d, v22, 2, v21', vST)
    if OPT['fline'] & 1:
        a('s_and_b32 s12, s%d, 1', sOG)
        a('s_xor_b32 s13, s12, 1')
        a('s_lshl_b32 s14, s13, 7')
        a('v_add_u32 v%d, s14, v%d', vA0 + 6, vA0)
        a('v_add_u32 v%d, s14, v%d', vA1 + 6, vA1)
        a('s_lshl_b32 s14, s12, 5')
        a('v_add_u32 v%d, s14, v%d', vA0, vA0)
        a('v_add_u32 v%d, s14, v%d', vA1, vA1)
        a('s_lshl_b32 s14, s13, 8')
        a('v_add_u32 v%d, s14, v%d', vST, vST)
        if OPT['peel']:
            a.label('L_pgO')
        a('v_lshrrev_b32 v21, 5, v%d', vLANE)
        a('v_mul_u32_u24 v21, %d, v21', 8 * 5120)
        a('v_and_b32 v22, 31, v%d', vLANE)
        a('v_lshl_add_u32 v21, v22, 2, v21')
        a('s_lshl_b32 s14, s12, 6')
        a('v_add_u32 v%d, s14, v21', vST + 1)
    else:
        for r in range(1, 4):
            a('v_add_u32 v%d, %d, v%d', vST + r, 5120 * r, vST)
    if OPT['otouch'] or OPT['epoll']:
        a('s_mul_i32 s84, s%d, 2560', sOG)
        a('v_min_u32 v248, 19, v%d', vLANE)
        a('v_lshl_add_u32 v248, v248, 7, s84')
    if OPT['orot']:
        a('s_add_u32 s84, s%d, s%d', sW, sOG)
        a('s_and_b32 s84, s84, 3')
        a('s_lshl2_add_u32 s84, s%d, s84', sTB)
    else:
        a('s_lshl2_add_u32 s84, s%d, s%d', sTB, sW)
    a('s_mul_i32 s85, s84, %d', OBLK)
    a('s_add_u32 s85, s85, 0x%x', WS_O)
    a('s_mul_i32 s86, s84, %d', 16 * 5120)
    a('s_mul_i32 s88, s%d, 320', sOG)
    a('s_add_u32 s86, s86, s88')
    if OPT['fline'] & 1:
        for r in range(8):
            a('s_add_u32 s%d, s86, %d', 4 + r, 5120 * r)
    a('v_lshlrev_b32 v%d, 7, v%d', vOA + 1, vLANE)
    a('s_lshl_b32 s88, s%d, 12', sTB)
    a('s_add_u32 s88, s88, 0x%x', F4)
    acc = 80
    if not OPT['peel']:
        a.label('L_pgO')
    if OPT['p3dyn']:
        p3_groups(vA0, vOA, acc)
    else:
        p3_static(vA0, vA1, vOA, acc)
    if OPT['fline'] & 1:
        a('s_nop 4')
        for p in range(2):
            for r in range(4):
                a('v_permlane16_swap_b32 v%d, v%d', acc + 8 * p + r, acc + 8 * p + 4 + r)
            for r in range(8):
                a('buffer_store_dword v%d, v%d, s[%d:%d], s%d offen offset:%d%s', acc + 8 * p + r, vST + 1, R4, R4 + 3, 4 + r, 128 * p, OSC)
        for r in range(4):
            a('buffer_store_dword v%d, v%d, s[%d:%d], s%d offen%s', acc + 16 + r, vST, R4, R4 + 3, 4 + r, OSC)
    elif not OPT['jout']:
        a('s_nop 3')
        for j in range(5):
            for r in range(4):
                a(ostore(j, r))
    finish('A')

vXR, vBR, vA0PW = 96, 100, 107
vL, vE, vHW, vHR0, vHR1, vHS, vCH, vCHL, vHH, vP01, vTCH, vHINT = 146, 150, 151, 152, 153, 154, 155, 156, 157, 158, 159, 160
vDX, vDW, vDBX, vDBB = 161, 165, 169, 173
vZ, vWOA, vPAR = 176, 186, 200
vCA, vCR, vHA = 248, 250, 252
vOS = 194
vSPW, vF3, vHT = 191, 192, 193
vAM = 248
vXO, vDO, vOA, vRA, vR1W, vR1R, vR2W, vPW1, vPW2, vAP4 = 164, 165, 166, 167, 169, 170, 171, 172, 173, 174
SENT = 0xffffffff

def s_stage(t, emit=None):
    out = []
    slot = ((t + 1) % 4) * 32768
    if OPT['stag'] >= 8 and t < 10:
        out += ['s_bfe_u32 s82, s%d, 0x%x' % (86 + t // 8, (4 << 16) | (4 * (t % 8))),
                's_add_u32 s82, s82, s85', 's_cmp_ge_u32 s82, 10', 's_cselect_b32 s83, 10, 0', 's_sub_u32 s82, s82, s83']
    elif OPT['stag'] >= 5 and t < 10:
        base, size = {0: (0, 4), 1: (4, 4), 2: (8, 2)}[t // 4] if OPT['stag'] != 7 else ((0, 2) if t < 2 else ((2, 4) if t < 6 else (6, 4)))
        out += ['s_add_u32 s82, s81, %d' % t, 's_and_b32 s82, s82, %d' % (size - 1), 's_add_u32 s82, s82, %d' % base,
                's_add_u32 s82, s82, s85', 's_cmp_ge_u32 s82, 10', 's_cselect_b32 s83, 10, 0', 's_sub_u32 s82, s82, s83']
    out.append('s_add_u32 m0, s74, %d' % slot)
    out.append('s_lshl_b32 s83, s82, 7')
    out.append('s_add_u32 s76, s72, s83')
    if t < 10:
        out += [dma(vDX + i, R0, 76, 1024 * i) for i in range(4)]
        out.append('s_add_u32 m0, s74, %d' % (slot + 16384))
        out.append('s_mul_i32 s83, s82, 245760')
        out.append('s_add_u32 s76, s73, s83')
        out += [dma(vDW + i, R1, 76, 1024 * i) for i in range(4)]
    else:
        out += [dma(vDBX + i, R3, 76, 1024 * i) for i in range(4)]
        out.append('s_add_u32 m0, s75, %d' % (slot + 16384))
        out.append('s_add_u32 s76, s77, s83')
        out += [dma(vDBB + i, R4, 76, 1024 * i) for i in range(2)]
        if OPT['snodup']:
            L3 = a.newlabel('s3rd')
            out += ['s_bitcmp1_b32 s%d, 0' % sW, 's_cbranch_scc1 %s' % L3, dma(vDBB + 2, R4, 76, 2048), L3 + ':']
        else:
            out.append(dma(vDBB + 2, R4, 76, 2048))
    if not (OPT['stag'] >= 5 and t < 10):
        out.append('s_add_u32 s82, s82, 1')
        out.append('s_cmp_eq_u32 s82, 10')
        out.append('s_cselect_b32 s82, 0, s82')
    if emit is None:
        L = a.newlabel('skip')
        if t < 10:
            a('s_cmp_eq_u32 s%d, 15', sCG)
            a('s_cbranch_scc1 %s', L)
        for o in out:
            a(o)
        if t < 10:
            a.label(L)
    return out

def ninstr(t):
    return 0 if t > 19 else (8 if t < 10 else 7)

def exp_acc(dst, x, t1, t2):
    L2E = math.log2(math.e)
    hi = struct.unpack('<f', struct.pack('<f', L2E))[0]
    a('s_mov_b32 s80, 0x%x', f2u(hi))
    a('v_mul_f32 v%d, s80, v%d', t1, x)
    a('v_fma_f32 v%d, v%d, s80, -v%d', t2, x, t1)
    a('v_fmac_f32 v%d, 0x%x, v%d', t2, f2u(L2E - hi), x)
    a('v_exp_f32 v%d, v%d', dst, t1)
    a('v_mul_f32 v%d, 0x%x, v%d', t2, f2u(math.log(2.0)), t2)
    a('v_fmac_f32 v%d, v%d, v%d', dst, dst, t2)

def s_setup():
    a.label('L_roleS')
    a('s_sub_u32 s%d, s%d, 4', sW, sW)
    a('v_lshrrev_b32 v1, 3, v%d', vLANE)
    a('v_and_b32 v2, 7, v%d', vLANE)
    a('v_lshrrev_b32 v3, 4, v%d', vLANE)
    a('v_xor_b32 v4, v2, v3')
    if OPT['q16']:
        a('s_cmp_ge_u32 s%d, 10', sCG)
        a('s_cselect_b32 s70, 4, 0')
        a('s_cselect_b32 s71, 19, 9')
        a('s_cselect_b32 s75, 3, 18')
        a('v_and_b32 v5, s70, v1')
        a('v_add_u32 v5, v5, v1')
        a('v_mul_u32_u24 v5, 1280, v5')
        a('v_lshl_add_u32 v%d, v4, 4, v5', vDX)
        a('v_xor_b32 v6, 64, v%d', vDX)
        a('v_lshl_add_u32 v%d, s71, 10, v6', vDX + 1)
        a('v_lshl_add_u32 v%d, s75, 10, v%d', vDX + 2, vDX)
        a('v_lshl_add_u32 v%d, s75, 10, v%d', vDX + 3, vDX + 1)
    else:
        a('v_mul_u32_u24 v5, 1280, v1')
        a('v_lshl_add_u32 v%d, v4, 4, v5', vDX)
        a('v_xor_b32 v6, 64, v%d', vDX)
        a('v_add_u32 v%d, %d, v6', vDX + 1, 10240 - 1024)
        a('v_add_u32 v%d, %d, v%d', vDX + 2, 2 * (10240 - 1024), vDX)
        a('v_add_u32 v%d, %d, v6', vDX + 3, 3 * (10240 - 1024))
    a('v_and_b32 v7, 15, v%d', vLANE)
    a('v_lshlrev_b32 v8, 2, v3')
    a('v_xor_b32 v7, v7, v8')
    a('v_mul_u32_u24 v8, 3840, v3')
    a('v_lshl_add_u32 v%d, v7, 4, v8', vDW)
    if OPT['q16']:
        a('v_xor_b32 v7, 48, v%d', vDW)
    for i in range(1, 4):
        a('v_add_u32 v%d, %d, v%d', vDW + i, (15360 - 1024) * i, 7 if OPT['q16'] and i >= 2 else vDW)
    a('s_lshl2_add_u32 s72, s%d, s%d', sRB, sW)
    a('s_mul_i32 s72, s72, %d', 32 * 1280)
    a('s_mul_i32 s73, s%d, %d', sW, 16 * 3840)
    a('s_lshl_b32 s70, s%d, 8', sCG)
    a('s_add_u32 s73, s73, s70')
    a('s_lshl_b32 s74, s%d, 12', sW)
    if OPT['stag'] <= 4:
        stagger(82, 83, 0, 0, OPT['stag'])
    else:
        a('s_add_u32 s81, s%d, s%d', sI, sOG)
        a('s_add_u32 s85, s%d, 1', sXCD)
        a('s_lshr_b32 s85, s85, 1')
        a('s_mul_i32 s85, s85, %d', 2 if OPT['stag'] in (5, 8, 9, 10, 11, 12, 13) else 0)
        if OPT['stag'] >= 8:
            T = {8: ['0412385679', '1253049678', '2306145789', '3012745689'],
                 9: ['0142385679', '1253094678', '2306145789', '3017245689'],
                 10: ['0124358679', '1235049678', '2301645789', '3012745689'],
                 11: ['0412835679', '1523904678', '2360145789', '3071245689'],
                 12: ['0124358769', '1235049678', '2301645789', '3012754698'],
                 13: ['0142385769', '1253094678', '2306145789', '3017254698']}[OPT['stag']]
            for r in T:
                assert sorted(r) == list('0123456789')
            lo = [int(r[:8][::-1], 16) for r in T]
            hi = sum(int(r[8:][::-1], 16) << (8 * c) for c, r in enumerate(T))
            a('s_and_b32 s81, s81, 3')
            a('s_mov_b32 s86, 0x%x', lo[0])
            for c in range(1, 4):
                a('s_cmp_eq_u32 s81, %d', c)
                a('s_cselect_b32 s86, 0x%x, s86', lo[c])
            a('s_lshl_b32 s81, s81, 3')
            a('s_lshr_b32 s87, 0x%x, s81', hi)
    a('s_mov_b32 s%d, 0x%x', R0 + 2, 2048 * 1280)
    a('s_mov_b32 s%d, 0x20000', R0 + 3)
    a('s_mov_b32 s%d, 0x%x', R1 + 2, 640 * 3840)
    a('s_mov_b32 s%d, 0x20000', R1 + 3)
    st0 = s_stage(0, emit=False)
    k = next(i for i, o in enumerate(st0) if o.startswith('buffer_load'))
    for o in st0[:k]:
        a(o)
    a('s_cmp_eq_u32 s%d, 15', sCG)
    a('s_waitcnt lgkmcnt(0)')
    a('s_mov_b64 s[%d:%d], s[%d:%d]', R0, R0 + 1, sAX, sAX + 1)
    a('s_mov_b64 s[%d:%d], s[%d:%d]', R1, R1 + 1, sWQ, sWQ + 1)
    if DIAG:
        ws_setup()
    stamp('S', 'start')
    a('s_cbranch_scc1 L_skip0')
    for o in st0[k:]:
        a(o)
    a.label('L_skip0')
    if not DIAG:
        prologue2()
        ws_setup()
    if OPT['fine'] == 1:
        stamp('S', 'iss0')
    def params():
        a('s_mul_i32 s70, s%d, 40', sG)
        a('v_min_u32 v9, 39, v%d', vLANE)
        a('v_add_lshl_u32 v9, v9, s70, 1')
        a('global_load_ushort v10, v9, s[%d:%d]', sLDT, sLDT + 1)
        a('global_load_ushort v11, v9, s[%d:%d]', sLRE, sLRE + 1)
        a('global_load_ushort v12, v9, s[%d:%d]', sLIM, sLIM + 1)
    params()
    n0 = len(a.lines)
    b1_sources(R3, R4, vDBX, vDBB, 75, 77, 70, 3 if OPT['snodup'] else 2)
    a('v_and_b32 v5, 3, v%d', vLANE)
    a('v_lshlrev_b32 v5, 8, v5')
    a('v_lshl_add_u32 v5, v%d, 2, v5', vLANE)
    a('v_add_u32 v%d, %d, v5', vSPW, L_PW + 1024)
    s_addresses()
    if OPT['slate']:
        late = a.lines[n0:]
        del a.lines[n0:]
        k = 0
        nch = OPT['slate']
        for c in range(nch):
            e = len(late) * (c + 1) // nch
            while e < len(late) and ('cselect' in late[e] or 'cndmask' in late[e] or 'cndmask' in late[e + 1] or 'cndmask' in late[min(e + 2, len(late) - 1)]):
                e += 1
            SLATE.append(late[k:e])
            k = e
    s_stage(1)
    if OPT['fine'] == 1:
        stamp('S', 'iss1')
    a('s_waitcnt vmcnt(11) lgkmcnt(0)')
    stamp('S', 'st0')
    if OPT['qprio']:
        a('s_setprio 1')
    a('s_barrier')
    s_stage(2)
    slate()
    a('s_waitcnt vmcnt(8)')
    a('s_barrier')
    s_stage(3)
    s_stage(4)

SLATE = []

def slate():
    if SLATE:
        a.lines.extend(SLATE.pop(0))

def s_addresses():
    c, g, t0, t1, t2 = 40, 41, 42, 43, 44
    a('v_and_b32 v%d, 15, v%d', c, vLANE)
    a('v_lshrrev_b32 v%d, 4, v%d', g, vLANE)
    a('v_lshrrev_b32 v%d, 1, v%d', t0, c)
    a('v_xor_b32 v%d, v%d, v%d', t0, t0, g)
    a('v_lshlrev_b32 v%d, 4, v%d', t0, t0)
    a('v_lshl_add_u32 v%d, v%d, 7, v%d', t0, c, t0)
    a('v_xor_b32 v%d, 64, v%d', t1, t0)
    a('v_add_u32 v%d, s74, v%d', vXR, t0)
    a('v_add_u32 v%d, s74, v%d', vXR + 1, t1)
    a('s_mul_i32 s70, s%d, %d', sW, REGSZ)
    a('s_add_u32 s70, s70, %d', L_REG)
    a('v_add_u32 v%d, s70, v%d', vCR, t0)
    a('v_add_u32 v%d, s70, v%d', vCR + 1, t1)
    a('v_lshrrev_b32 v%d, 3, v%d', t2, c)
    a('v_lshl_add_u32 v%d, v%d, 12, v%d', t0, t2, t0)
    a('v_add_u32 v%d, 16384, v%d', vBR, t0)
    a('v_xor_b32 v%d, 64, v%d', vBR + 1, vBR)
    for k in range(2):
        a('v_add_u32 v%d, 0x10000, v%d', vXR + 2 + k, vXR + k)
        a('v_add_u32 v%d, 0x10000, v%d', vBR + 2 + k, vBR + k)
    a('v_and_b32 v%d, 7, v%d', t0, vLANE)
    a('v_lshlrev_b32 v%d, 2, v%d', t2, t2)
    a('v_lshl_add_u32 v%d, v%d, 3, v%d', t0, t0, t2)
    a('v_add_u32 v%d, %d, v%d', vHH, L_H, t0)
    a('v_mul_u32_u24 v%d, 320, v%d', t1, g)
    a('s_mul_i32 s71, s%d, 1280', sW)
    a('s_add_u32 s71, s71, %d', L_EL)
    a('v_add3_u32 v%d, v%d, v%d, s71', vE, t0, t1)
    a('v_lshlrev_b32 v%d, 3, v%d', vCH, vLANE)
    a('v_add_u32 v%d, %d, v%d', vCHL, L_H, vCH)
    a('v_lshlrev_b32 v%d, 9, v%d', vHINT, vLANE)
    a('v_lshlrev_b32 v%d, 2, v%d', vA0PW, vLANE)
    a('v_add_u32 v%d, %d, v%d', vA0PW, L_PW, vA0PW)
    a('v_and_b32 v%d, 0x%x, v%d', vP01, 0xffffffff ^ 512, vSPW)
    a('v_bfe_u32 v%d, v%d, 1, 2', t0, vLANE)
    a('v_xor_b32 v%d, v%d, v%d', t0, t0, g)
    a('v_lshlrev_b32 v%d, 4, v%d', t0, t0)
    a('s_mul_i32 s71, s%d, 5120', sW)
    a('s_add_u32 s71, s71, %d', L_HT)
    a('v_lshl_add_u32 v%d, v%d, 6, v%d', t0, c, t0)
    a('v_add_u32 v%d, s71, v%d', vHW, t0)
    a('v_bfe_u32 v%d, v%d, 2, 2', t0, vLANE)
    a('v_lshrrev_b32 v%d, 5, v%d', t1, vLANE)
    a('v_lshl_add_u32 v%d, v%d, 3, v%d', vHR0, t1, t0)
    a('v_lshlrev_b32 v%d, 6, v%d', vHR0, vHR0)
    a('v_mul_u32_u24 v%d, %d, v%d', vHS, 80 * 256, t1)
    a('v_lshrrev_b32 v%d, 1, v%d', t0, t0)
    a('v_bfe_u32 v%d, v%d, 4, 1', t1, vLANE)
    a('v_bfe_u32 v%d, v%d, 1, 1', t2, vLANE)
    a('v_lshl_add_u32 v%d, v%d, 1, v%d', t2, t1, t2)
    a('v_xor_b32 v%d, v%d, v%d', t2, t2, t0)
    a('v_lshl_add_u32 v%d, v%d, 4, v%d', vHR0, t2, vHR0)
    a('v_and_b32 v%d, 1, v%d', t2, vLANE)
    a('v_lshl_add_u32 v%d, v%d, 3, v%d', vHR0, t2, vHR0)
    a('v_xor_b32 v%d, 32, v%d', vHR1, vHR0)
    a('v_add_u32 v%d, s71, v%d', vHR0, vHR0)
    a('v_add_u32 v%d, s71, v%d', vHR1, vHR1)
    a('v_mul_u32_u24 v%d, %d, v%d', t1, HBLK, t1)
    a('v_lshl_add_u32 v%d, v%d, 4, v%d', t1, c, t1)
    a('v_add_u32 v%d, v%d, v%d', vHS, vHS, t1)
    if OPT['otag'] and not OPT['amark']:
        a('v_bfe_u32 v%d, v%d, 4, 1', t0, vLANE)
        a('v_mul_u32_u24 v%d, %d, v%d', t0, OBLK, t0)
        a('v_lshl_add_u32 v%d, v%d, 4, v%d', t0, c, t0)
        a('v_lshrrev_b32 v%d, 5, v%d', t1, vLANE)
        a('v_mul_u32_u24 v%d, %d, v%d', t2, 2 * OBLK, t1)
        a('v_add_u32 v%d, v%d, v%d', vOS + 1, t2, t0)
        a('v_lshl_add_u32 v%d, v%d, 8, v%d', vOS, t1, t0)
        for k in range(4):
            a('v_mov_b32 v%d, -1', vOS + 2 + k)
    if OPT['q16']:
        a('v_mul_u32_u24 v%d, 1280, v1', t0)
        a('v_lshl_add_u32 v%d, v4, 4, v%d', vCA, t0)
        a('v_xor_b32 v%d, 64, v%d', t0, vCA)
        a('v_add_u32 v%d, %d, v%d', vCA + 1, 10240 - 1024, t0)
    else:
        a('v_mov_b32 v%d, v%d', vCA, vDX)
        a('v_mov_b32 v%d, v%d', vCA + 1, vDX + 1)
    a('v_lshlrev_b32 v%d, 4, v%d', vHA, vLANE)
    a('v_lshlrev_b32 v%d, 7, v%d', vF3, vLANE)
    a('v_min_u32 v%d, %d, v%d', vHT, 39 * 128, vF3)
    a('s_xor_b32 s92, s%d, 1', sW)
    a('s_mul_i32 s92, s92, %d', REGSZ)
    a('s_add_u32 s92, s92, %d', L_REG)
    a('s_xor_b32 s93, s%d, 3', sW)
    a('s_mul_i32 s93, s93, %d', REGSZ)
    a('s_add_u32 s93, s93, %d', L_REG + 16 * 336)
    if not OPT['wopack']:
        s_wooffs()

def s_params():
    a('s_cmp_eq_u32 s%d, 0', sW)
    a('s_cbranch_scc0 L_nopar')
    for r in (10, 11, 12):
        a('v_lshlrev_b32 v%d, 16, v%d', r, r)
    exp_acc(13, 10, 14, 15)
    a('v_cvt_pk_bf16_f32 v13, v13, v13')
    a('v_and_b32 v13, 0xffff0000, v13')
    a('v_mul_f32 v14, v13, v11')
    a('v_mul_f32 v15, v13, v12')
    exp_acc(16, 14, 17, 18)
    I2P = 1.0 / (2 * math.pi)
    hi = struct.unpack('<f', struct.pack('<f', I2P))[0]
    a('s_mov_b32 s80, 0x%x', f2u(hi))
    a('v_mul_f32 v17, s80, v15')
    a('v_rndne_f32 v17, v17')
    a('v_fma_f32 v17, v15, s80, -v17')
    a('v_fmac_f32 v17, 0x%x, v15', f2u(I2P - hi))
    a('v_cos_f32 v20, v17')
    a('v_sin_f32 v21, v17')
    a('v_mul_f32 v18, v11, v11')
    a('v_fmac_f32 v18, v12, v12')
    a('v_rcp_f32 v19, v18')
    a('v_mul_f32 v20, v16, v20')
    a('v_mul_f32 v21, v16, v21')
    a('v_fma_f32 v18, -v18, v19, 1.0')
    a('v_fmac_f32 v19, v19, v18')
    a('v_add_f32 v19, v19, v19')
    a('v_add_f32 v17, -1.0, v20')
    a('v_mul_f32 v22, v17, v11')
    a('v_fmac_f32 v22, v21, v12')
    a('v_mul_f32 v23, v17, v12')
    a('v_fma_f32 v23, -v21, v11, v23')
    a('v_mul_f32 v22, v22, v19')
    a('v_mul_f32 v23, v23, v19')
    a('v_lshlrev_b32 v9, 4, v%d', vLANE)
    a('v_add_u32 v9, %d, v9', L_PAR)
    a('ds_write_b128 v9, v[20:23]')
    a('v_mov_b32 v24, v20')
    a('v_sub_f32 v25, 0, v21')
    for k in range(3):
        a('v_mul_f32 v26, v25, v25')
        a('v_add_f32 v27, v24, v24')
        a('v_fma_f32 v24, v24, v24, -v26')
        a('v_mul_f32 v25, v27, v25')
    a.label('L_nopar')

def s_params2():
    a('s_cmp_eq_u32 s%d, 0', sW)
    a('s_cbranch_scc0 L_nopar2')
    a('s_mov_b32 exec_hi, 0xff')
    a('v_mov_b32 v14, 1.0')
    a('v_mov_b32 v15, 0')
    a('ds_write_b64 v%d, v[14:15] offset:%d', vCHL, L_Z - L_H)
    a('ds_write_b64 v%d, v[24:25] offset:%d', vCHL, L_Z - L_H + 320)
    src = 24
    for sg in range(2, 17):
        dst = 16 + 2 * (sg % 3)
        a('v_mul_f32 v%d, v24, v%d', dst, src)
        a('v_mul_f32 v%d, v24, v%d', dst + 1, src + 1)
        a('v_fma_f32 v%d, -v25, v%d, v%d', dst, src + 1, dst)
        a('v_fmac_f32 v%d, v25, v%d', dst + 1, src)
        a('ds_write_b64 v%d, %s offset:%d', vCHL, v(dst, 2), L_Z - L_H + 320 * sg)
        src = dst
    a('s_mov_b32 exec_hi, -1')
    a('s_waitcnt lgkmcnt(0)')
    a.label('L_nopar2')

def s_wooffs():
    for i in range(5):
        a('v_add_u32 v40, %d, v%d', 64 * i, vLANE)
        a('v_mul_u32_u24 v41, 6554, v40')
        a('v_lshrrev_b32 v41, 16, v41')
        a('v_mul_u32_u24 v42, 10, v41')
        a('v_sub_u32 v40, v40, v42')
        tau(42, 41, 43)
        a('v_mul_u32_u24 v42, 1280, v42')
        a('v_lshl_add_u32 v%d, v40, 4, v42', vWOA + i)
        if 0 < i < 4:
            a('v_subrev_u32 v%d, %d, v%d', vWOA + i, 1024 * i, vWOA + i)

def s_qloader():
    early = {1: {7: 10}, 2: {7: 10, 9: 11}, 3: {7: 10, 8: 11, 9: 12}, 4: {7: 10, 8: 11, 9: 12}, 0: {}}[OPT['st10']]
    q = [2] * 8 + [3] * 8 + [4] * 8
    for st in range(2, 10):
        a('s_waitcnt vmcnt(%d)', len(q) - 1 - max(i for i, x in enumerate(q) if x == st))
        if OPT['fine'] == 1 and st in (2, 4, 6, 7, 8, 9):
            stamp('S', 'st%d' % st)
        a('s_barrier')
        if st == 6:
            a('v_and_b32 v32, 15, v%d', vLANE)
            a('v_lshlrev_b32 v32, 4, v32')
            a('v_mov_b32 v33, 1')
            a('s_cmp_eq_u32 s%d, 3', sW)
            a('s_cbranch_scc0 L_nodbg')
            a(dbgload(32, 33))
            a.label('L_nodbg')
            a('s_cmp_eq_u32 s%d, 15', sCG)
            a('s_cbranch_scc0 L_cw')
            a('s_waitcnt vmcnt(0)')
            a.label('L_cw')
        if st <= 6:
            s_stage(st + 3)
            q += [st + 3] * 8
            slate()
        if st == OPT['pretouch']:
            a('s_cmp_eq_u32 s%d, 2', sW)
            a('s_cselect_b32 s70, s%d, s%d', sBRE, sBIM)
            a('s_cselect_b32 s71, s%d, s%d', sBRE + 1, sBIM + 1)
            a('s_mul_i32 s83, s2, 3200')
            a('s_lshl1_add_u32 s84, s2, s%d', sW)
            a('s_mul_i32 s84, s84, 5120')
            a('s_cmp_lt_u32 s%d, 2', sW)
            a('s_cselect_b32 s70, s%d, s70', sBX)
            a('s_cselect_b32 s71, s%d, s71', sBX + 1)
            a('s_cselect_b32 s83, s84, s83')
            a('s_cselect_b32 s84, 39, 24')
            a('v_min_u32 v30, s84, v%d', vLANE)
            a('v_lshl_add_u32 v30, v30, 7, s83')
            a('global_load_dword v31, v30, s[70:71]')
            q.append('t')
        if st == 7:
            stagger(82, 83, 0, OPT['flip'], OPT['stagb'])
        if st in early:
            s_stage(early[st])
            q += [early[st]] * (7 - OPT['snodup'])
        if st == 7 and not OPT['plate']:
            s_params()
        if st == 8 and not OPT['plate']:
            s_params2()

    a('v_cmp_eq_u32 vcc, 0, v33')
    a('s_cbranch_vccz L_clrok')
    pollflags([dbgload(32, 33)], 33, sleep=8)
    a.label('L_clrok')
    a('s_barrier')
    stamp('S', 'qend')
    if OPT['qprio'] == 1:
        a('s_setprio 0')
    if OPT['st10'] == 4:
        s_stage(13)
    if OPT['plate']:
        s_params()
        s_params2()
    else:
        s_consts()

def s_consts():
    a('v_and_b32 v104, 7, v%d', vLANE)
    a('v_lshlrev_b32 v104, 4, v104')
    a('v_add_u32 v104, %d, v104', L_PAR)
    for j in range(5):
        a('ds_read_b128 %s, v104 offset:%d', v(vPAR + 4 * j, 4), 128 * j)
    a('v_and_b32 v105, -8, v%d', vE)
    a('v_add_u32 v105, %d, v105', L_Z - L_EL)
    for j in range(5):
        a('ds_read_b64 %s, v105 offset:%d', v(vZ + 2 * j, 2), 64 * j)
    if OPT['csplit']:
        a('s_lshr_b32 s70, s%d, 1', sW)
        a('s_mul_i32 s70, s70, 160')
        a('v_lshl_add_u32 v%d, v%d, 2, s70', vCH, vLANE)
        a('v_add_u32 v%d, s70, v%d', vHINT, vHINT)
        a('v_add_u32 v%d, %d, v%d', vCHL, L_H, vCH)
        a('s_bitcmp1_b32 s%d, 0', sW)
        a('s_cselect_b32 s70, 16, 1')
        a('s_mul_i32 s70, s70, 320')
        a('v_and_b32 v106, -8, v%d', vCHL)
        a('v_add_u32 v106, s70, v106')
        a('v_not_b32 v148, v%d', vLANE)
        a('v_lshlrev_b32 v148, 31, v148')
    else:
        a('s_cmp_eq_u32 s%d, 0', sW)
        a('s_cselect_b32 s70, 1, 16')
        a('s_mul_i32 s70, s70, 320')
        a('v_add_u32 v106, s70, v%d', vCHL)
    a('ds_read_b64 %s, v106 offset:%d', v(vL, 2), L_Z - L_H)
    a('v_bfe_u32 v145, v%d, 3, 1', vLANE)
    a('v_lshlrev_b32 v145, 31, v145')
    a('v_xor_b32 v144, 0x80000000, v145')
    a('s_waitcnt lgkmcnt(0)')
    for j in range(5):
        a('v_xor_b32 v%d, v145, v%d', vPAR + 4 * j + 1, vPAR + 4 * j + 1)
        a('v_xor_b32 v%d, v145, v%d', vPAR + 4 * j + 2, vPAR + 4 * j + 2)
        a('v_xor_b32 v%d, v144, v%d', vZ + 2 * j + 1, vZ + 2 * j + 1)
    if OPT['csplit']:
        a('v_xor_b32 v%d, v148, v%d', vL + 1, vL + 1)

def touch(r, va=None):
    o = ['s_add_u32 s84, s%d, %d' % (sXCD, r),
         's_cmp_ge_u32 s84, 6', 's_cselect_b32 s85, 6, 0', 's_sub_u32 s84, s84, s85',
         's_cmp_ge_u32 s84, 6', 's_cselect_b32 s85, 6, 0', 's_sub_u32 s84, s84, s85',
         's_cmp_ge_u32 s84, 2',
         's_cselect_b32 s86, s%d, s%d' % (sCRE, sWO), 's_cselect_b32 s87, s%d, s%d' % (sCRE + 1, sWO + 1),
         's_cmp_ge_u32 s84, 4',
         's_cselect_b32 s86, s%d, s86' % sCIM, 's_cselect_b32 s87, s%d, s87' % (sCIM + 1),
         's_and_b32 s84, s84, 1', 's_mul_i32 s84, s84, 3200',
         's_add_u32 s86, s86, s84', 's_addc_u32 s87, s87, 0',
         'global_load_dword v109, v%d, s[86:87]' % (va or vTCH)]
    return o

def s_b1():
    F = [40, 68]
    def reads(t, ks, f):
        slot = (t + 1) % 4
        hi, lo = slot >> 1, (slot & 1) * 32768
        r = ['ds_read_b128 %s, v%d offset:%d' % (v(f + 4 * T, 4), vXR + 2 * hi + ks, lo + 2048 * T) for T in range(2)]
        r += ['ds_read_b128 %s, v%d offset:%d' % (v(f + 8 + 4 * j, 4), vBR + 2 * hi + ks, lo + 1024 * j) for j in range(5)]
        return r
    def mfmas(f, first):
        return ['v_mfma_f32_16x16x32_bf16 %s, %s, %s, %s' % (v(8 * j + 4 * T, 4), v(f + 4 * T, 4), v(f + 8 + 4 * j, 4),
                '0' if first else v(8 * j + 4 * T, 4)) for j in range(5) for T in ((1, 0) if j & 1 and OPT['bsnake'] else (0, 1))]
    def weave(ms, others):
        n = len(ms)
        k = 0
        for i_, m in enumerate(ms):
            a(m)
            while k < len(others) * (i_ + 1) // n:
                a(others[k])
                k += 1
    first = 10 + OPT['st10']
    a('s_lshl4_add_u32 s84, s%d, s%d', sCG, sRB)
    flagaddr(84, 84, F1, 85)
    a('s_waitcnt vmcnt(%d)', max(0, (7 - OPT['snodup']) * (first - 11)))
    a('s_barrier')
    for r in reads(10, 0, F[0]):
        a(r)
    for u in range(10):
        t = 10 + u
        if OPT['fine'] == 1 and u in (0, 2, 3, 4, 8):
            stamp('S', 'b1w%d' % u)
        a('s_waitcnt lgkmcnt(0)')
        m0_ = mfmas(F[0], u == 0)
        weave(m0_[:4], reads(t, 1, F[1]))
        for m in m0_[4:]:
            a(m)
        m1_ = mfmas(F[1], False)
        if u < 9:
            if t + 1 < first:
                a('s_waitcnt vmcnt(%d) lgkmcnt(0)', (7 - OPT['snodup']) * (first - t - 2))
            else:
                if t + 1 == first and OPT['plate']:
                    s_consts()
                a('s_waitcnt lgkmcnt(0)')
            a('s_barrier')
            if t + 1 == first:
                a('s_cmp_eq_u32 s%d, 3', sW)
                a('s_cbranch_scc0 L_noflag')
                setflag(84, 104)
                a.label('L_noflag')
            weave(m1_[:4], reads(t + 1, 0, F[0]))
            for m in m1_[4:]:
                a(m)
        else:
            a('s_waitcnt lgkmcnt(0)')
            for m in m1_:
                a(m)
    stamp('S', 'b1gemm')

def rot5(dst, t):
    a('s_and_b32 s%d, s%d, 3', dst, sI)
    a('s_add_u32 s%d, s%d, s%d', dst, dst, sXCD)
    for _ in range(2):
        a('s_cmp_ge_u32 s%d, 5', dst)
        a('s_cselect_b32 s%d, 5, 0', t)
        a('s_sub_u32 s%d, s%d, s%d', dst, dst, t)
    if not OPT['rot5']:
        a('s_mov_b32 s%d, 0', dst)

def s_wo():
    if OPT['wopack']:
        a('s_mov_b32 s73, 0x%x', F1 + 15 * 16 * 128)
        a('s_mov_b64 exec, 0xffff')
        pollflags(['buffer_load_dword v40, v%d, s[%d:%d], s73 offen sc1' % (vF3, RWS, RWS + 3)], 40, sleep=4)
        rot5(83, 73)
        a('s_mul_i32 s75, s%d, 102400', sOG)
        a('s_add_u32 s75, s75, 0x%x', WS_WP)
        a('s_mov_b32 s77, 5')
        a.label('L_woloop')
        a('s_lshl2_add_u32 s78, s83, s%d', sW)
        a('s_mul_i32 s78, s78, 5120')
        a('s_add_u32 s79, s78, s75')
        a('s_mov_b32 m0, s78')
        for i in range(5):
            if i == 4:
                a('s_add_u32 m0, s78, 4096')
                a('s_add_u32 s79, s79, 4096')
            a('s_waitcnt vmcnt(%d)', OPT['thrw'])
            a(dma(vHA, RWS, 79, 1024 * (i & 3)).replace(' lds', ' sc1 lds'))
    else:
        srd(R0, sWO, 640 * 1280)
        rot5(83, 73)
        a('s_mul_i32 s75, s%d, 160', sOG)
        a('s_mov_b32 s77, 5')
        a.label('L_woloop')
        a('s_lshl2_add_u32 s78, s83, s%d', sW)
        a('s_mul_i32 s79, s78, 40960')
        a('s_add_u32 s79, s79, s75')
        a('s_mul_i32 s78, s78, 5120')
        a('s_mov_b32 m0, s78')
        a('s_add_u32 s73, s78, 4096')
        for i in range(5):
            if i == 4:
                a('s_mov_b32 m0, s73')
            a('s_waitcnt vmcnt(%d)', OPT['thrw'])
            a(dma(vWOA + i, R0, 79, 1024 * (i & 3)))
    a('s_add_u32 s83, s83, 1')
    a('s_cmp_eq_u32 s83, 5')
    a('s_cselect_b32 s83, 0, s83')
    a('s_sub_u32 s77, s77, 1')
    a('s_cmp_lg_u32 s77, 0')
    a('s_cbranch_scc1 L_woloop')
    for kp in range(5):
        a('s_lshl_b32 s73, s83, 7')
        a('s_add_u32 s%d, s72, s73', 4 + kp)
        a('s_lshl_b32 s%d, s83, 11', 12 + kp)
        a('s_add_u32 s83, s83, 1')
        a('s_cmp_eq_u32 s83, 5')
        a('s_cselect_b32 s83, 0, s83')

def s_mark(both):
    a('s_and_b32 s78, s%d, 1', sW)
    a('s_lshl1_add_u32 s78, s%d, s78', sQB)
    a('s_lshr_b32 s79, s%d, 1', sW)
    a('s_lshl1_add_u32 s78, s78, s79')
    a('s_mul_i32 s78, s78, %d', 4 * OBLK)
    a('s_lshr_b32 s79, s%d, 1', sHD)
    a('s_mul_i32 s79, s79, 1280')
    a('s_add_u32 s78, s78, s79')
    a('s_add_u32 s78, s78, 0x%x', WS_O)
    a('s_and_b32 s79, s%d, 1', sHD)
    a('s_mul_i32 s73, s79, 768')
    a('s_add_u32 s73, s73, s78')
    a('s_add_u32 s75, s73, %d', 2 * OBLK)
    a('s_lshl3_add_u32 s78, s79, s78')
    for k in range(2 if both else 1):
        if k:
            for r in (73, 75, 78):
                a('s_sub_u32 s%d, s%d, %d', r, r, 4 * OBLK)
        a('buffer_store_dwordx4 %s, v%d, s[%d:%d], s73 offen sc1', v(vOS + 2, 4), vOS, RWS, RWS + 3)
        a('buffer_store_dwordx4 %s, v%d, s[%d:%d], s75 offen sc1', v(vOS + 2, 4), vOS, RWS, RWS + 3)
        a('buffer_store_dwordx2 %s, v%d, s[%d:%d], s78 offen offset:512 sc1', v(vOS + 2, 2), vOS + 1, RWS, RWS + 3)

def s_scan():
    ROR = 'row_ror:8 row_mask:0xf bank_mask:0xf'
    a('s_setprio 1')
    a('s_lshl_b32 s70, s%d, 13', sG)
    a('s_add_u32 s70, s70, 0x%x', WS_E)
    a('s_add_u32 s70, s70, s%d', sWS)
    a('s_addc_u32 s71, s%d, 0', sWS + 1)
    srd(R5, 70, 8192)
    a('s_sub_u32 s70, 15, s%d', sRB)
    a('s_lshl_b32 s70, s70, 9')
    a('s_add_u32 s71, s70, 4096')
    tmp = 40
    for j in range(5):
        for k in range(8):
            a('v_mul_f32_dpp v%d, v%d, v%d %s', tmp + k, 8 * j + k, vPAR + 4 * j + 3, ROR)
        for k in range(8):
            a('v_fma_f32 v%d, v%d, v%d, v%d', 8 * j + k, vPAR + 4 * j + 2, 8 * j + k, tmp + k)
    e = [[8 * j for j in range(5)], [50 + j for j in range(5)], [56 + j for j in range(5)]]
    cur = e[0]
    for k in range(1, 8):
        nx = e[1 + (k & 1)]
        for j in range(5):
            a('v_fma_f32 v%d, v%d, v%d, v%d', nx[j], vPAR + 4 * j, cur[j], 8 * j + k)
        for j in range(5):
            a('v_fmac_f32_dpp v%d, v%d, v%d %s', nx[j], cur[j], vPAR + 4 * j + 1, ROR)
        cur = nx
    for j in range(5):
        a('ds_write_b32 v%d, v%d offset:%d', vE, cur[j], 64 * j)
    setpw(11, 104)
    for r in range(10 - OPT['tstart'], 0 if OPT['tlate'] else 6):
        a('s_waitcnt vmcnt(0)')
        for o in touch(r):
            a(o)
    stamp('S', 'pass1')
    def chain(dst, src, add):
        a('v_fma_f32 v%d, v%d, v%d, v%d', dst, vL, src, add)
        a('v_fma_f32 v%d, v%d, v%d, v%d', dst + 1, vL, src + 1, add + 1)
        a('v_fma_f32 v%d, -v%d, v%d, v%d', dst, vL + 1, src + 1, dst)
        a('v_fmac_f32 v%d, v%d, v%d', dst + 1, vL + 1, src)
    ES = 110
    if OPT['csplit']:
        QP = 'quad_perm:[1,0,3,2] row_mask:0xf bank_mask:0xf'
        def step(n, mid):
            a('v_fmac_f32 v%d, v%d, v%d', ES + n, vL, ES + n - 1)
            a(mid)
            a('v_fmac_f32_dpp v%d, v%d, v%d %s', ES + n, ES + n - 1, vL + 1, QP)
        a('s_bitcmp1_b32 s%d, 0', sW)
        a('s_cbranch_scc1 L_wave1')
        a('v_mov_b32 v142, 0')
        waitpw(vSPW, 11, 105, sleep=1)
        a('s_mov_b32 exec_hi, 0xff')
        for sg in range(16):
            a('ds_read_b32 v%d, v%d offset:%d', ES + sg, vCHL, L_EL - L_H + 320 * sg)
        a('s_waitcnt lgkmcnt(0)')
        a('ds_write_b32 v%d, v142 offset:%d', vCHL, L_PL - L_H)
        for sg in range(1, 16):
            step(sg, 'ds_write_b32 v%d, v%d offset:%d' % (vCHL, ES + sg - 1, L_PL - L_H + 320 * sg) + '\ns_nop 0')
        a('v_min_u32 v%d, -2, v%d', ES + 15, ES + 15)
        a('buffer_store_dword v%d, v%d, s[%d:%d], s70 offen sc1', ES + 15, vCH, R5, R5 + 3)
        a('s_branch L_chaindone')
        a.label('L_wave1')
        a.label('L_hint')
        a('buffer_load_dword v105, v%d, s[%d:%d], s70 offen offset:512 sc1', vHINT, R5, R5 + 3)
        a('s_waitcnt vmcnt(0)')
        a('v_cmp_eq_u32 vcc, -1, v105')
        a('s_cbranch_vccz L_hintok')
        a('s_mov_b64 exec, vcc')
        a('s_sleep 3')
        a.label('L_hint2')
        a('s_sub_u32 s%d, s%d, 1', sSPIN, sSPIN)
        a('s_cbranch_scc0 L_hint')
        a('s_endpgm')
        a.label('L_hintok')
        a('s_mov_b32 exec_lo, -1')
        a('s_mov_b32 exec_hi, 0xff')
        for k in range(15, 0, -1):
            a('buffer_load_dword v%d, v%d, s[%d:%d], s%d offen offset:%d sc1', ES + 15 - k, vCH, R5, R5 + 3,
              71 if k >= 8 else 70, 512 * (k & 7))
        a('s_waitcnt vmcnt(0)')
        a('v_max3_u32 v105, v%d, v%d, v%d', ES, ES + 1, ES + 2)
        for n in range(3, 15, 2):
            a('v_max3_u32 v105, v105, v%d, v%d', ES + n, ES + n + 1)
        a('v_cmp_eq_u32 vcc, -1, v105')
        a('s_cbranch_vccnz L_hint2')
        for n in range(1, 15):
            step(n, 's_nop 1')
        a('ds_write_b32 v%d, v%d', vCHL, ES + 14)
        a.label('L_chaindone')
        a('s_mov_b32 exec_hi, -1')
        setpw(12, 104)
    else:
        a('s_cmp_eq_u32 s%d, 1', sW)
        a('s_cbranch_scc1 L_wave1')
        a('s_cmp_eq_u32 s%d, 0', sW)
        a('s_cbranch_scc0 L_wave23')
        waitpw(vSPW, 11, 105, sleep=1)
        a('s_mov_b32 exec_hi, 0xff')
        for sg in range(16):
            a('ds_read_b64 %s, v%d offset:%d', v(ES + 2 * sg, 2), vCHL, L_EL - L_H + 320 * sg)
        a('v_mov_b32 v142, 0')
        a('v_mov_b32 v143, 0')
        a('s_waitcnt lgkmcnt(0)')
        a('ds_write_b64 v%d, v[142:143] offset:%d', vCHL, L_PL - L_H)
        for sg in range(1, 16):
            a('ds_write_b64 v%d, %s offset:%d', vCHL, v(ES + 2 * sg - 2, 2), L_PL - L_H + 320 * sg)
            chain(ES + 2 * sg, ES + 2 * sg - 2, ES + 2 * sg)
        a('v_min_u32 v%d, -2, v%d', ES + 30, ES + 30)
        a('v_min_u32 v%d, -2, v%d', ES + 31, ES + 31)
        a('buffer_store_dwordx2 %s, v%d, s[%d:%d], s70 offen sc1', v(ES + 30, 2), vCH, R5, R5 + 3)
        a('s_mov_b32 exec_hi, -1')
        setpw(12, 104)
        a('s_branch L_coldone')
        a.label('L_wave1')
        a.label('L_hint')
        a('buffer_load_dword v105, v%d, s[%d:%d], s70 offen offset:512 sc1', vHINT, R5, R5 + 3)
        a('s_waitcnt vmcnt(0)')
        a('v_cmp_eq_u32 vcc, -1, v105')
        a('s_cbranch_vccz L_hintok')
        a('s_mov_b64 exec, vcc')
        a('s_sleep 3')
        a.label('L_hint2')
        a('s_sub_u32 s%d, s%d, 1', sSPIN, sSPIN)
        a('s_cbranch_scc0 L_hint')
        a('s_endpgm')
        a.label('L_hintok')
        a('s_mov_b32 exec_lo, -1')
        a('s_mov_b32 exec_hi, 0xff')
        for k in range(15, 0, -1):
            a('buffer_load_dwordx2 %s, v%d, s[%d:%d], s%d offen offset:%d sc1', v(ES + 2 * (15 - k), 2), vCH, R5, R5 + 3,
              71 if k >= 8 else 70, 512 * (k & 7))
        a('s_waitcnt vmcnt(0)')
        a('v_max_u32 v105, v%d, v%d', ES, ES + 1)
        for n in range(1, 15):
            a('v_max3_u32 v105, v105, v%d, v%d', ES + 2 * n, ES + 2 * n + 1)
        a('v_cmp_eq_u32 vcc, -1, v105')
        a('s_cbranch_vccnz L_hint2')
        for n in range(1, 15):
            chain(ES + 2 * n, ES + 2 * n - 2, ES + 2 * n)
        a('ds_write_b64 v%d, %s', vCHL, v(ES + 28, 2))
        a('s_mov_b32 exec_hi, -1')
        setpw(12, 104)
        a('s_branch L_coldone')
        a.label('L_wave23')
        if OPT['otag'] and not OPT['amark'] and OPT['smark']:
            if OPT['smark'] == 1:
                waitpw(vA0PW, 5, 105, sleep=2)
            s_mark(True)
        if OPT['woe']:
            E = OPT['woe']
            srd(R0, sWO, 640 * 1280)
            a('s_mul_i32 s75, s%d, 160', sOG)
            a('s_and_b32 s83, s%d, 3', sI)
            a('s_add_u32 s83, s83, s%d', sXCD)
            waitpw(vA0PW, 5, 105, sleep=2)
            for it in range(E):
                a('s_add_u32 s78, s83, %d', it)
                a('s_and_b32 s78, s78, %d', E - 1)
                a('s_lshl1_add_u32 s78, s78, s%d', sW)
                a('s_sub_u32 s78, s78, 2')
                a('s_mul_i32 s79, s78, 40960')
                a('s_add_u32 s79, s79, s75')
                a('s_mul_i32 s78, s78, 5120')
                a('s_mov_b32 m0, s78')
                for i in range(5):
                    if i == 4:
                        a('s_add_u32 m0, s78, 4096')
                    a('s_waitcnt vmcnt(%d)', OPT['thre'])
                    a(dma(vWOA + i, R0, 79, 1024 * (i & 3)))
        if OPT['gtouch'] in (1, 2):
            a('s_cmp_eq_u32 s%d, 2', sW)
            a('s_cbranch_scc0 L_coldone')
            a('v_min_u32 v106, %d, v%d', 24 * 128, vF3)
            a('s_mul_i32 s78, s2, 3200')
            a('v_add_u32 v106, s78, v106')
            if OPT['gtouch'] == 1:
                waitpw(vA0PW, 5, 105, sleep=2)
            for p in (sCRE, sCIM, sWO):
                a('global_load_dword v109, v106, s[%d:%d]', p, p + 1)
        if OPT['tearly']:
            waitpw(vA0PW, 5, 105, sleep=2)
        for r in range(OPT['tearly']):
            for o in touch(r, vCT):
                a(o)
            if r + 1 < OPT['tearly']:
                a('s_waitcnt vmcnt(0)')
    a.label('L_coldone')
    a('s_lshl2_add_u32 s70, s%d, s%d', sRB, sW)
    a('s_mul_i32 s71, s70, %d', 2 * HBLK)
    a('s_mul_i32 s78, s%d, 1280', sG)
    a('s_add_u32 s71, s71, s78')
    a('s_add_u32 s71, s71, 0x%x', WS_H)
    a('s_lshl4_add_u32 s70, s70, s%d', sG)
    flagaddr(70, 70, F3, 78)
    waitpw(vSPW if OPT['csplit'] else vP01, 12, 105, sleep=4)
    stamp('S', 'carry')
    if OPT['gtouch'] == 3:
        a('s_cmp_eq_u32 s%d, 1', sW)
        a('s_cselect_b32 s78, s%d, s%d', sCRE, sCIM)
        a('s_cselect_b32 s79, s%d, s%d', sCRE + 1, sCIM + 1)
        a('s_cmp_eq_u32 s%d, 2', sW)
        a('s_cselect_b32 s78, s%d, s78', sWO)
        a('s_cselect_b32 s79, s%d, s79', sWO + 1)
        a('s_mul_i32 s80, s2, 3200')
        a('s_add_u32 s78, s78, s80')
        a('s_addc_u32 s79, s79, 0')
        a('s_cmp_eq_u32 s%d, 0', sW)
        a('s_cbranch_scc1 L_notouch')
        a('s_mov_b64 exec, 0x1ffffff')
        a('global_load_dword v109, v%d, s[78:79]', vF3)
        a('s_mov_b64 exec, -1')
        a.label('L_notouch')
    for j in range(5):
        a('ds_read_b32 v%d, v%d offset:%d', 50 + j, vE, L_PL - L_EL + 64 * j)
        a('ds_read_b32 v%d, v%d offset:%d', 56 + j, vHH, 64 * j)
    a('s_waitcnt lgkmcnt(0)')
    for j in range(5):
        a('v_fmac_f32 v%d, v%d, v%d', 50 + j, vZ + 2 * j, 56 + j)
    for j in range(5):
        a('v_fmac_f32_dpp v%d, v%d, v%d %s', 50 + j, 56 + j, vZ + 2 * j + 1, ROR)
    for k in range(8):
        pr = [50 + j if k == 0 else 8 * j + k - 1 for j in range(5)]
        for j in range(5):
            a('v_fmac_f32 v%d, v%d, v%d', 8 * j + k, vPAR + 4 * j, pr[j])
        for j in range(5):
            a('v_fmac_f32_dpp v%d, v%d, v%d %s', 8 * j + k, pr[j], vPAR + 4 * j + 1, ROR)
    for j in range(5):
        for q in range(4):
            a('v_cvt_pk_bf16_f32 v%d, v%d, v%d', 64 + 4 * j + q, 8 * j + 2 * q, 8 * j + 2 * q + 1)
        a('ds_write_b128 v%d, %s offset:%d', vHW, v(64 + 4 * j, 4), 1024 * j)
        a('ds_read_b64_tr_b16 %s, v%d offset:%d', v(110 + 4 * j, 2), vHR0, 1024 * j)
        a('ds_read_b64_tr_b16 %s, v%d offset:%d', v(110 + 4 * j + 2, 2), vHR1, 1024 * j + 256)
    HS = OPT['hsplit']
    for j in range(5):
        if HS and j == HS:
            a('s_waitcnt lgkmcnt(0)')
            setpw(13, 104)
        if HS and j >= HS:
            a('s_waitcnt vmcnt(%d)', HS - 1)
        else:
            a('s_waitcnt lgkmcnt(%d)', 12 - 3 * j)
        a('buffer_store_dwordx4 %s, v%d, s[%d:%d], s71 offen offset:%d sc1', v(110 + 4 * j, 4), vHS, RWS, RWS + 3, 256 * j)
    if not HS:
        setpw(13, 104)

def s_b3():
    NS = 4
    acc, HF, CF = 0, 80, [208, 216]
    a('s_cmp_ge_u32 s%d, 2', sW)
    a('s_cselect_b32 s78, s%d, s%d', sCIM, sCRE)
    a('s_cselect_b32 s79, s%d, s%d', sCIM + 1, sCRE + 1)
    srd(R1, 78, 640 * 1280)
    srd(R6, sOUT, 2048 * 1280 * 4)
    a('s_mul_i32 s74, s%d, %d', sW, REGSZ)
    a('s_add_u32 s74, s74, %d', L_REG)
    a('s_and_b32 s78, s%d, 1', sW)
    a('s_mul_i32 s72, s%d, %d', sOG, 80 * 1280)
    a('s_mul_i32 s73, s78, 640')
    a('s_add_u32 s72, s72, s73')
    a('s_mul_i32 s79, s%d, %d', sW, 40 * 256)
    a('s_add_u32 s79, s79, 0x%x', WS_H)
    a('s_lshr_b32 s80, s%d, 1', sW)
    a('s_lshl1_add_u32 s78, s78, s80')
    for l in range(4):
        a('s_xor_b32 s80, s78, %d', l)
        a('s_lshl2_add_u32 s80, s%d, s80', sTB)
        a('s_mul_i32 s80, s80, %d', HBLK)
        a('s_add_u32 s%d, s80, s79', 84 + l)
    a('s_lshl_b32 s88, s%d, 12', sTB)
    a('s_add_u32 s88, s88, 0x%x', F3)
    a('s_lshl2_add_u32 s78, s%d, s78', sTB)
    a('s_mul_i32 s80, s78, %d', 16 * 1280)
    a('s_mul_i32 s81, s%d, 160', sOG)
    a('s_add_u32 s80, s80, s81')
    a('s_mul_i32 s82, s78, %d', 16 * 5120)
    a('s_lshl1_add_u32 s82, s81, s82')
    a('s_add_u32 s82, s82, 2560')
    a('s_add_u32 s90, s%d, s81', sDSK)
    a('s_addc_u32 s91, s%d, 0', sDSK + 1)
    a('s_lshl2_add_u32 s89, s%d, s%d', sOG, sW)
    a('s_mul_i32 s89, s89, 5120')
    a('s_mul_i32 s79, s%d, %d', sTB, 4 * HBLK)
    a('s_add_u32 s89, s89, s79')
    a('s_add_u32 s89, s89, 0x%x', WS_H)
    a('s_waitcnt vmcnt(0)')
    setflag(70, 40)
    if OPT['otag'] and not OPT['amark'] and not OPT['smark']:
        s_mark(False)
    stamp('S', 'hpub')
    if OPT['tlate']:
        for k in range(4):
            a('s_mov_b32 s%d, s%d', 4 + k, 84 + k)
        for r in range(OPT['tearly'], 6):
            for o in touch(r):
                a(o)
            a('s_waitcnt vmcnt(0)')
        for k in range(4):
            a('s_mov_b32 s%d, s%d', 84 + k, 4 + k)
    if OPT['newpre']:
        def cdma(n, pace=None):
            kp, j = divmod(n, 5)
            a('s_add_u32 m0, s74, %d', 2048 * (n % NS))
            a('s_add_u32 s76, s%d, %d', 4 + kp, 16 * 1280 * j)
            for k in range(2):
                if pace is not None:
                    a('s_waitcnt vmcnt(%d)', pace)
                a(dma(vCA + k, R1, 76, 1024 * k))
        def hload(l, ks):
            return 's_add_u32 s9, s%d, s%d\nbuffer_load_dwordx4 %s, v%d, s[%d:%d], s9 offen offset:%d sc1' % (
                84 + l, 12 + ks // 2, v(HF + 16 * (ks % 8) + 4 * l, 4), vHA, RWS, RWS + 3, 1024 * (ks & 1))
        srd(R0, sWO, 640 * 1280)
        rot5(83, 73)
        for kp in range(5):
            a('s_lshl_b32 s73, s83, 7')
            a('s_add_u32 s%d, s72, s73', 4 + kp)
            a('s_lshl_b32 s%d, s83, 11', 12 + kp)
            a('s_lshl2_add_u32 s%d, s83, s%d', 17 + kp, sW)
            a('s_add_u32 s83, s83, 1')
            a('s_cmp_eq_u32 s83, 5')
            a('s_cselect_b32 s83, 0, s83')
        NIT = 5 - OPT['woe'] // 2
        if OPT['woe']:
            a('s_cmp_ge_u32 s83, %d', NIT)
            a('s_cselect_b32 s73, %d, 0', NIT)
            a('s_sub_u32 s83, s83, s73')
            if NIT == 4:
                a('s_add_u32 s83, s%d, s%d', sI, sXCD)
                a('s_and_b32 s83, s83, 3')
            for it in range(NIT):
                a('s_lshl2_add_u32 s%d, s83, s%d', 17 + it, sW)
                a('s_add_u32 s%d, s%d, %d', 17 + it, 17 + it, 2 * OPT['woe'])
                a('s_add_u32 s83, s83, 1')
                a('s_cmp_eq_u32 s83, %d', NIT)
                a('s_cselect_b32 s83, 0, s83')
        a('s_mul_i32 s75, s%d, 160', sOG)
        waitpw(vSPW, 13, 41, sleep=2)
        for n in range(NS):
            cdma(n, OPT['thrc'])
        pl = 'buffer_load_dword v41, v%d, s[%d:%d], s88 offen sc1' % (vF3, RWS, RWS + 3)
        for it in range(NIT):
            if it == OPT['f3at']:
                a('s_mov_b32 exec_hi, 0')
                a(pl)
                a('s_mov_b32 exec_hi, -1')
            a('s_mul_i32 s79, s%d, 40960', 17 + it)
            a('s_add_u32 s79, s79, s75')
            a('s_mul_i32 s78, s%d, 5120', 17 + it)
            a('s_mov_b32 m0, s78')
            for i in range(5):
                if i == 4:
                    a('s_add_u32 m0, s78, 4096')
                a('s_waitcnt vmcnt(%d)', OPT['thrw'] + (1 if it == NIT - 1 and OPT['hin'] else 0))
                a(dma(vWOA + i, R0, 79, 1024 * (i & 3)))
                if it == NIT - 1 and OPT['hin'] and i < 4:
                    a(hload(i, 0))
                    a(hload(i, 1))
            if it == OPT['f3at']:
                a('s_mov_b32 exec_hi, 0')
                a('s_waitcnt vmcnt(5)')
                a('v_cmp_eq_u32 vcc, 0, v41')
                a('s_cbranch_vccz L_f3seen')
                a('s_mov_b64 exec, vcc')
                pollflags([pl], 41, sleep=4)
                a.label('L_f3seen')
                a('s_mov_b64 exec, -1')
                stamp('S', 'f3')
                if OPT['htouch']:
                    a('buffer_load_dword v41, v%d, s[%d:%d], s89 offen sc1', vHT, RWS, RWS + 3)
        stamp('S', 'wo')
        a('v_mov_b32 v42, 14')
        for ks in range(0 if OPT['hin'] else 2):
            for l in range(4):
                a('s_waitcnt vmcnt(%d)', OPT['thrw'] + 1)
                a(hload(l, ks))
        if OPT['hin']:
            a('s_waitcnt vmcnt(0)')
        a('ds_write_b32 v%d, v42', vPW)
        a('s_setprio %d', OPT['b3prio'])
    else:
        stamp('S', 'touch')
        s_wo()
        waitpw(vSPW, 13, 40, sleep=2)
        def cdma(n):
            kp, j = divmod(n, 5)
            a('s_add_u32 m0, s74, %d', 2048 * (n % NS))
            a('s_add_u32 s76, s%d, %d', 4 + kp, 16 * 1280 * j)
            a(dma(vCA, R1, 76, 0))
            a(dma(vCA + 1, R1, 76, 1024))
        for n in range(NS):
            cdma(n)
            a('s_waitcnt vmcnt(%d)', 0 if n == NS - 1 else 4)
        setpw(14, 40)
        stamp('S', 'wo')
        a('s_cmp_eq_u32 s%d, 2', sW)
        a('s_cbranch_scc0 L_f3wait')
        a('s_mov_b32 exec_hi, 0')
        pollflags(['buffer_load_dword v40, v%d, s[%d:%d], s88 offen sc1' % (vF3, RWS, RWS + 3)], 40, sleep=4)
        setpw(15, 40)
        a.label('L_f3wait')
        waitpw(vS2PW, 15, 40, sleep=4)
        stamp('S', 'f3')
        a('s_setprio %d', OPT['b3prio'])
        def hload(l, ks):
            return 's_add_u32 s9, s%d, s%d\nbuffer_load_dwordx4 %s, v%d, s[%d:%d], s9 offen offset:%d sc1' % (
                84 + l, 12 + ks // 2, v(HF + 16 * (ks % 8) + 4 * l, 4), vHA, RWS, RWS + 3, 1024 * (ks & 1))
        a('buffer_load_dword v40, v%d, s[%d:%d], s89 offen sc1', vHT, RWS, RWS + 3)
        for ks in range(2):
            if ks:
                a('s_waitcnt vmcnt(0)')
            for l in range(4):
                a(hload(l, ks))
    def creads(n):
        return ['ds_read_b128 %s, v%d offset:%d' % (v(CF[n & 1] + 4 * k, 4), vCR + k, 2048 * (n % NS)) for k in range(2)]
    q = []
    def waitfor(tag):
        idx = max(i for i, x in enumerate(q) if x == tag)
        n = len(q) - 1 - idx
        del q[:idx + 1]
        return n
    for r in creads(0):
        a(r)
    a('s_waitcnt vmcnt(0) lgkmcnt(0)')
    stamp('S', 'b3go')
    cdma(NS)
    q += [NS, NS]
    vX, vD = HF + 64, HF + 74
    hq = [(l, ks) for ks in range(2, 10) for l in range(4)]
    STOP = OPT['b3stop']
    frag = {0: CF[0]}
    free = [216, 224, 232, 240]
    def creads(n):
        return ['ds_read_b128 %s, v%d offset:%d' % (v(frag[n] + 4 * k, 4), vCR + k, 2048 * (n % NS)) for k in range(2)]
    def fetch():
        n = len(frag)
        frag[n] = free.pop(0)
        if n in q:
            a('s_waitcnt vmcnt(%d)', waitfor(n))
        for r in creads(n):
            a(r)
        return n
    def refill(n, defer=False):
        a('s_waitcnt lgkmcnt(0)')
        if n + NS < 25:
            cdma(n + NS)
            if defer:
                q.append(n + NS)
                return (a.lines.pop(), n + NS)
            q.extend([n + NS, n + NS])
    t0, t1, t2 = 175, 249, vAP4
    addr = ['v_lshrrev_b32 v%d, 2, v%d' % (t0, vLANE),
            'v_and_b32 v%d, 3, v%d' % (t1, vLANE),
            'v_lshlrev_b32 v%d, 3, v%d' % (vDO, t1),
            'v_mul_u32_u24 v%d, 1280, v%d' % (t2, t0),
            'v_add_u32 v%d, v%d, v%d' % (vXO, t2, vDO),
            'v_lshlrev_b32 v%d, 4, v%d' % (t1, t1),
            'v_lshl_add_u32 v%d, v%d, 2, v%d' % (vOA, t2, t1),
            'v_mul_u32_u24 v%d, 336, v%d' % (t2, t0),
            'v_add3_u32 v%d, v%d, v%d, s92' % (vRA, t2, t1),
            'v_add3_u32 v%d, v%d, v%d, s93' % (vRA + 1, t2, t1),
            'v_lshlrev_b32 v%d, 4, v%d' % (t1, t1),
            'v_lshl_add_u32 v%d, v%d, 2, v%d' % (t1, vLANE, t1),
            'v_add_u32 v%d, %d, v%d' % (vAP4, L_PW, t1),
            'v_add_u32 v%d, s74, v%d' % (vR1W, vHA),
            'v_add_u32 v%d, s92, v%d' % (vR1R, vHA),
            'v_and_b32 v%d, 15, v%d' % (t0, vLANE),
            'v_mul_u32_u24 v%d, 336, v%d' % (t0, t0),
            'v_and_b32 v%d, 48, v%d' % (t1, vLANE),
            'v_add3_u32 v%d, v%d, v%d, s92' % (vR2W, t0, t1),
            'v_xor_b32 v%d, 256, v%d' % (vPW1, vPW),
            'v_xor_b32 v%d, 512, v%d' % (vPW2, vPW)]
    FL = OPT['fline'] & 2
    if FL:
        pXO, pDO, pOA, pRA = 160, 161, 162, (163, 175)
        a('s_and_b32 s22, s%d, 1', sOG)
        a('s_xor_b32 s23, s22, 1')
        a('s_lshl_b32 s22, s22, 2')
        a('s_lshl_b32 s23, s23, 4')
        a('s_add_u32 s24, s80, %d', 8 * 1280)
        a('s_add_u32 s25, s82, %d', 8 * 5120)
        def aset(sh, mask, so, xo, do, oa, ra):
            return ['v_and_b32 v%d, %d, v%d' % (t1, mask, vLANE),
                    'v_add_lshl_u32 v%d, v%d, s%d, 3' % (do, t1, so),
                    'v_lshrrev_b32 v%d, %d, v%d' % (t1, sh, vLANE),
                    'v_mul_u32_u24 v%d, 1280, v%d' % (t2, t1),
                    'v_add_u32 v%d, v%d, v%d' % (xo, t2, do),
                    'v_add_lshl_u32 v%d, v%d, v%d, 1' % (oa, t2, xo),
                    'v_mul_u32_u24 v%d, 168, v%d' % (t2, t1),
                    'v_add_lshl_u32 v%d, v%d, v%d, 1' % (t2, t2, do),
                    'v_add_u32 v%d, s92, v%d' % (ra[0], t2),
                    'v_add_u32 v%d, s93, v%d' % (ra[1], t2)]
        addr = aset(3, 7, 22, pXO, pDO, pOA, pRA) + aset(2, 3, 23, vXO, vDO, vOA, (vRA, vRA + 1)) + [
            'v_add_u32 v%d, s74, v%d' % (vR1W, vHA),
            'v_add_u32 v%d, s92, v%d' % (vR1R, vHA),
            'v_and_b32 v%d, 15, v%d' % (t2, vLANE),
            'v_mul_u32_u24 v%d, 336, v%d' % (t2, t2),
            'v_and_b32 v%d, 48, v%d' % (t1, vLANE),
            'v_add3_u32 v%d, v%d, v%d, s92' % (vR2W, t2, t1),
            'v_xor_b32 v%d, 256, v%d' % (vPW1, vPW),
            'v_xor_b32 v%d, 512, v%d' % (vPW2, vPW),
            'v_and_b32 v%d, 3, v%d' % (t1, vLANE),
            'v_lshlrev_b32 v%d, 8, v%d' % (t1, t1),
            'v_lshl_add_u32 v%d, v%d, 2, v%d' % (t1, vLANE, t1),
            'v_add_u32 v%d, %d, v%d' % (vAP4, L_PW, t1)]
    dsel = (lambda i: (i & 1) if i < 4 else 2) if FL else (lambda i: i)
    FR = OPT['fastred']
    U = 180
    def skipops(i, t):
        o = []
        for hf in range(2):
            o += ['v_lshlrev_b32 v%d, 16, v%d' % (t, vX + 2 * i + hf),
                  'v_lshlrev_b32 v%d, 16, v%d' % (t + 1, vD + 2 * dsel(i) + hf),
                  'v_and_b32 v%d, 0xffff0000, v%d' % (t + 2, vX + 2 * i + hf),
                  'v_and_b32 v%d, 0xffff0000, v%d' % (t + 3, vD + 2 * dsel(i) + hf),
                  'v_mul_f32 v%d, v%d, v%d' % (U + 4 * i + 2 * hf, t, t + 1),
                  'v_mul_f32 v%d, v%d, v%d' % (U + 4 * i + 2 * hf + 1, t + 2, t + 3)]
        return o
    w1 = lambda qd: 'ds_write_b128 v%d, %s offset:%d' % (vR1W, v(acc + 40 + 4 * qd, 4), 1024 * qd)
    if FR:
        assert FL and OPT['b3res'] >= 7
        def xl(i):
            o = []
            if i in (0, 1, 4):
                o.append('global_load_dwordx2 %s, v%d, s[90:91] offset:%d' % (v(vD + 2 * dsel(i), 2), pDO if i < 4 else vDO, 64 * (i & 1)))
            o.append('buffer_load_dwordx2 %s, v%d, s[%d:%d], s%d offen offset:%d' % (v(vX + 2 * i, 2), pXO if i < 4 else vXO, R3, R3 + 3,
                                                                                  24 if i in (2, 3) else 80, 64 * (i & 1)))
            return o
        addr = addr[:5] + xl(0) + xl(1) + xl(2) + xl(3) + addr[5:15] + xl(4) + addr[15:]
        skq = [o for i in range(5) for o in skipops(i, 176)]
    assert 10 <= STOP <= 15
    for n in range(25):
        kp, j = divmod(n, 5)
        if n == 10:
            free += [HF + 32 + 8 * k for k in range(4)]
        if n == STOP:
            while len(frag) <= 20 or hq:
                for _ in range(1 if OPT['even'] else 99):
                    if hq:
                        l, ks = hq.pop(0)
                        a(hload(l, ks))
                        q.append('h%d' % (ks // 2))
                if len(frag) <= 20:
                    refill(fetch())
            a('s_setprio 1')
            a('v_and_b32 v%d, 1, v%d', vAM, vLANE)
            a('v_lshlrev_b32 v%d, 9, v%d', vAM, vAM)
            a('v_xor_b32 v%d, v%d, v%d', vAM, vAM, vPW)
            a('v_subrev_u32 v%d, 1024, v%d', vAM, vAM)
            a('s_waitcnt vmcnt(0)')
            del q[:]
            stamp('S', 'b3stop')
            waitpw(vAM, OPT['b3res'], 249, sleep=OPT['rsleep'])
            stamp('S', 'b3res')
        want = (25 if FR else n + 2) if n >= STOP else max(n + 2, 21 - OPT['ahead'] * (STOP - 1 - n))
        f1 = fetch() if (len(frag) < min(25, want) and free) else None
        if j == 0 and 'h%d' % kp in q:
            a('s_waitcnt vmcnt(%d)', waitfor('h%d' % kp))
        if OPT['fine'] >= 2 and n in (3, 6, 9):
            stamp('S', 'u%d' % n)
        extra = []
        for _ in range(OPT['hrate']):
            if hq and (hq[0][1] < 8 or n >= 5):
                l, ks = hq.pop(0)
                extra.append((hload(l, ks), 'h%d' % (ks // 2)))
        if FR:
            if n == FR:
                a('s_waitcnt vmcnt(0)')
        elif 16 <= n < 21 and FL:
            i = n - 16
            if i in (0, 1, 4):
                extra.append(('global_load_dwordx2 %s, v%d, s[90:91] offset:%d' % (v(vD + 2 * dsel(i), 2), pDO if i < 4 else vDO, 64 * (i & 1)), 'x'))
            extra.append(('buffer_load_dwordx2 %s, v%d, s[%d:%d], s%d offen offset:%d' % (v(vX + 2 * i, 2), pXO if i < 4 else vXO, R3, R3 + 3,
                                                                                     24 if i in (2, 3) else 80, 64 * (i & 1)), 'x'))
        elif 16 <= n < 21:
            i = n - 16
            extra += [('global_load_dwordx2 %s, v%d, s[90:91] offset:%d' % (v(vD + 2 * i, 2), vDO, 32 * i), 'x'),
                      ('buffer_load_dwordx2 %s, v%d, s[%d:%d], s80 offen offset:%d' % (v(vX + 2 * i, 2), vXO, R3, R3 + 3, 32 * i), 'x')]
        cnt = 0
        f2 = None
        for k in range(2):
            ks = 2 * kp + k
            for l in ((2, 3, 0, 1) if FR and n >= 20 else range(4)):
                d = acc + 20 * l + 4 * j
                a('v_mfma_f32_16x16x32_bf16 %s, %s, %s, %s', v(d, 4), v(frag[n] + 4 * k, 4), v(HF + 16 * (ks % 8) + 4 * l, 4),
                  '0' if ks == 0 else v(d, 4))
                cnt += 1
                if FR and n >= 15:
                    if n >= 21 and cnt in (6, 7):
                        assert len(frag) == 25
                        a(w1((n - 21) + 5 * (cnt - 6)))
                    else:
                        for _ in range(2):
                            if addr:
                                a(addr.pop(0))
                            elif n >= FR and skq:
                                a(skq.pop(0))
                    if cnt == 6 and f1 is not None:
                        refill(f1)
                    continue
                EV = OPT['even'] and n < STOP - 1 and OPT['hrate'] == 2
                if EV:
                    if cnt == 3:
                        second = refill(f1, True)
                    if cnt == 7:
                        assert second
                        a(second[0])
                        q.append(second[1])
                    if cnt in (1, 5) and extra:
                        o, tg = extra.pop(0)
                        a(o)
                        q.append(tg)
                    continue
                if cnt in (1, 2, 5, 6) and extra:
                    o, tg = extra.pop(0)
                    a(o)
                    q.append(tg)
                elif n >= 15 and addr:
                    a(addr.pop(0))
                if cnt == (4 if n < STOP else 6) and f1 is not None:
                    refill(f1)
                    if len(frag) < min(21, want) and free:
                        f2 = fetch()
                if cnt == 8 and f2 is not None:
                    refill(f2)
        assert not extra
        free.append(frag[n])
    assert not addr
    assert not hq
    stamp('S', 'b3gemm')
    T = 112
    def rsel(i, b):
        if not FL:
            return vRA + b, 64 * i
        return (pRA[b], 8 * 336 * (i >> 1) + 128 * (i & 1)) if i < 4 else (vRA + b, 0)
    if FR:
        a('v_mov_b32 v%d, 17', T + 2)
        a('v_mov_b32 v%d, 18', T + 3)
        for o in skq[:3]:
            a(o)
        a(w1(4))
        a(w1(9))
        a('ds_write_b32 v%d, v%d', vPW, T + 2)
        for nm in ('w1', 'xw'):
            if OPT['fine'] == 2:
                stamp('S', nm)
        half = 3 + (len(skq) - 3) // 2
        for o in skq[3:half]:
            a(o)
        if OPT['fine'] == 2:
            stamp('S', 'r1w')
        order = (5, 6, 7, 8, 9, 0, 1, 2, 3, 4)
        waitpw(vPW1, 17, T + 1, extra=['ds_read_b128 %s, v%d offset:%d' % (v(acc + 40 + 4 * qd, 4), vR1R, 1024 * qd) for qd in order])
        if OPT['fine'] == 2:
            stamp('S', 'r1s')
        for i, qd in enumerate(order):
            l, j = divmod(qd, 5)
            a('s_waitcnt lgkmcnt(%d)', 9 if i < 5 else 10)
            for e in range(4):
                a('v_add_f32 v%d, v%d, v%d', acc + 4 * qd + e, acc + 4 * qd + e, acc + 40 + 4 * qd + e)
            a('ds_write_b128 v%d, %s offset:%d', vR2W, v(acc + 4 * qd, 4), 16 * 336 * l + 64 * j)
            if qd == 9:
                a('ds_write_b32 v%d, v%d', vPW, T + 3)
        for i in range(5):
            a('ds_read_b128 %s, v%d offset:%d', v(acc + 40 + 8 * i, 4), *rsel(i, 0))
        for o in skq[half:]:
            a(o)
    else:
        if OPT['b3res'] < 7:
            waitpw(vAM, 7, T, sleep=2)
        else:
            a('s_nop 3')
        for qd in range(10):
            a('ds_write_b128 v%d, %s offset:%d', vR1W, v(acc + 40 + 4 * qd, 4), 1024 * qd)
        setpw(17, T + 1)
        if OPT['fine'] == 2:
            stamp('S', 'w1')
        a('s_waitcnt vmcnt(0)')
        if OPT['fine'] == 2:
            stamp('S', 'xw')
        U = 180
        def rsel(i, b):
            if not FL:
                return vRA + b, 64 * i
            return (pRA[b], 8 * 336 * (i >> 1) + 128 * (i & 1)) if i < 4 else (vRA + b, 0)
        def skip(i):
            for hf in range(2):
                a('v_lshlrev_b32 v%d, 16, v%d', T + 4, vX + 2 * i + hf)
                a('v_lshlrev_b32 v%d, 16, v%d', T + 5, vD + 2 * dsel(i) + hf)
                a('v_and_b32 v%d, 0xffff0000, v%d', T + 6, vX + 2 * i + hf)
                a('v_and_b32 v%d, 0xffff0000, v%d', T + 7, vD + 2 * dsel(i) + hf)
                a('v_mul_f32 v%d, v%d, v%d', U + 4 * i + 2 * hf, T + 4, T + 5)
                a('v_mul_f32 v%d, v%d, v%d', U + 4 * i + 2 * hf + 1, T + 6, T + 7)
        skip(0)
        skip(1)
        if OPT['fine'] == 2:
            stamp('S', 'r1w')
        waitpw(vPW1, 17, T + 1)
        if OPT['fine'] == 2:
            stamp('S', 'r1s')
        for qd in (5, 6, 7, 8, 9, 0, 1, 2, 3, 4):
            a('ds_read_b128 %s, v%d offset:%d', v(acc + 40 + 4 * qd, 4), vR1R, 1024 * qd)
        skip(2)
        a('s_waitcnt lgkmcnt(0)')
        for qd in (5, 6, 7, 8, 9, 0, 1, 2, 3, 4):
            l, j = divmod(qd, 5)
            for e in range(4):
                a('v_add_f32 v%d, v%d, v%d', acc + 4 * qd + e, acc + 4 * qd + e, acc + 40 + 4 * qd + e)
            a('ds_write_b128 v%d, %s offset:%d', vR2W, v(acc + 4 * qd, 4), 16 * 336 * l + 64 * j)
            if qd == 9:
                setpw(18, T + 1)
        for i in range(5):
            a('ds_read_b128 %s, v%d offset:%d', v(acc + 40 + 8 * i, 4), *rsel(i, 0))
        skip(3)
        skip(4)
    if OPT['fine'] == 2:
        stamp('S', 'r2w')
    rd2 = ['ds_read_b128 %s, v%d offset:%d' % ((v(acc + 44 + 8 * i, 4),) + tuple(rsel(i, 1))) for i in range(5)]
    waitpw(vPW2, 18, T + 1, extra=rd2 if FR else ())
    if OPT['fine'] == 2:
        stamp('S', 'r2s')
    if not FR:
        for o in rd2:
            a(o)
    for i in range(5):
        for e in range(4):
            a('v_add_f32 v%d, v%d, v%d', U + 4 * i + e, U + 4 * i + e, acc + 40 + 8 * i + e)
    for i in range(5):
        a('s_waitcnt lgkmcnt(%d)', 4 - i)
        for e in range(4):
            a('v_add_f32 v%d, v%d, v%d', U + 4 * i + e, U + 4 * i + e, acc + 44 + 8 * i + e)
    stamp('S', 'yrdy')
    if OPT['yhold']:
        waitpw(vAP4, 9, T + 1, sleep=OPT['ysleep'])
    for i in range(5):
        if FL:
            a('buffer_store_dwordx4 %s, v%d, s[%d:%d], s%d offen offset:%d%s', v(U + 4 * i, 4), pOA if i < 4 else vOA, R6, R6 + 3,
              25 if i in (2, 3) else 82, 128 * (i & 1), YSC)
        else:
            a('buffer_store_dwordx4 %s, v%d, s[%d:%d], s82 offen offset:%d%s', v(U + 4 * i, 4), vOA, R6, R6 + 3, 64 * i, YSC)
    finish('S')

prologue()
a.c('======== S role: set-up, first stages of the QKV GEMM')
s_setup()
a.c('======== S role: loader of the QKV GEMM')
s_qloader()
if OPT['sexit'] == 1:
    setpw(99, 40)
    finish('S')
a.c('======== S role: SSM input GEMM')
s_b1()
if OPT['sexit'] == 2:
    setpw(99, 40)
    finish('S')
a.c('======== S role: scan')
s_scan()
a.c('======== S role: SSM output GEMM')
s_b3()
a.label('L_exit')
a('s_endpgm')
flush_cold()
a.c('======== A role: set-up')
a_setup()
if OPT['alate'] != 1:
    a_b1_setup()
if not OPT['alate']:
    a_att_setup()
if OPT['aearly']:
    n0_ = len(a.lines)
    a_att_setup()
    del a.lines[n0_ + OPT['aearly']:]
a.c('======== A role: QKV GEMM')
a_qphase()
a.c('======== A role: loader of the SSM input GEMM, wait for Q/K/V')
a_handoff()
a.c('======== A role: attention')
a_attention()
a.c('======== A role: output projection')
a_outproj()
flush_cold()
a.label('L_codeend')

DOC = '; ---------------------------------------------------------------------------------------------------------------\n; Hand-offs between workgroups: write-through (sc1) stores, s_waitcnt vmcnt, then a flag on its own line; readers poll\n; and load with sc1.  Flags are cleared in this launch before use (signalled through d_debug).  All waits are bounded.\n; ---------------------------------------------------------------------------------------------------------------\n'
errs = check(a.lines)
for e_ in errs:
    print('HAZARD', e_, file=sys.stderr)

head = open('cdna_kernels/%s.s.ref' % NAME).read().split('; @launch')[0]
out = head + '; @launch grid=(256,1,1) block=(512,1,1) lds=%d\n' % LDS_BYTES
out += DOC
out += '''.amdgcn_target "amdgcn-amd-amdhsa--gfx950"
.text
.globl %s_kernel
.p2align 8
.type %s_kernel,@function
%s_kernel:
''' % (NAME, NAME, NAME)
body = a.text().replace('QSC', ['sc1', 'sc0 sc1', 'sc1 nt', 'sc0 sc1 nt'][OPT['qsc']])
foot = '''.section .rodata,"a"
.p2align 6
.amdhsa_kernel %s_kernel
  .amdhsa_next_free_vgpr 256
  .amdhsa_next_free_sgpr 102
  .amdhsa_accum_offset 256
  .amdhsa_group_segment_fixed_size 0
  .amdhsa_kernarg_size 120
  .amdhsa_user_sgpr_count 2
  .amdhsa_user_sgpr_kernarg_segment_ptr 1
  .amdhsa_system_sgpr_workgroup_id_x 1
.end_amdhsa_kernel
''' % NAME
import re, subprocess
def render(pads):
    def f(m):
        if not OPT['pgalign']:
            return ''
        al = 12 if (m.group(1) == 'L_roleA' or not OPT['q16']) else 6
        return '.p2align %d\n.fill %d, 4, 0xbf810000' % (al, pads.get(m.group(1), 0) // 4)
    return out + re.sub(r'\.PAD (\w+) (\w+)', f, body) + foot
pads = {}
for it_ in range(4 if OPT['pgalign'] else 0):
    open('pad.s', 'w').write(render(pads))
    subprocess.run(['clang', '-x', 'assembler', '-target', 'amdgcn-amd-amdhsa', '-mcpu=gfx950', '-c', 'pad.s', '-o', 'pad.o'], check=True)
    sym = {l.split()[-1]: int(l.split()[0], 16) for l in subprocess.run(['llvm-objdump', '-t', 'pad.o'], capture_output=True, text=True).stdout.splitlines() if ' L_' in l}
    for st_, tg_ in re.findall(r'\.PAD (\w+) (\w+)', body)[it_:]:
        d = (-(sym[tg_] - pads.get(st_, 0))) % 4096
        pads[st_] = (d + 63) // 64 * 64 % 4096
open(sys.argv[1], 'w').write(render(pads))
if DIAG:
    import json
    json.dump(nstamp, open(sys.argv[1] + '.stamps.json', 'w'))
import subprocess
r_ = subprocess.run(['clang', '-x', 'assembler', '-target', 'amdgcn-amd-amdhsa', '-mcpu=gfx950', '-c', sys.argv[1], '-o', 'chk.o'], capture_output=True, text=True)
if r_.returncode:
    print(r_.stderr[:2000])
    sys.exit(1)
if errs:
    sys.exit(1)
```
